```python
import torch

def _softmax(x, axis=-1):
    return torch.softmax(x, dim=axis)

def _gelu(x):
    return torch.nn.functional.gelu(x, approximate='tanh')

def _silu(x):
    return torch.nn.functional.silu(x)

def _sigmoid(x):
    return torch.sigmoid(x)

def _layernorm(x, axis=-1, eps=1e-05):
    m = x.mean(dim=axis, keepdim=True)
    v = x.var(dim=axis, keepdim=True, unbiased=False)
    return (x - m) / torch.sqrt(v + eps)

def _scatter_add(tgt, idx, src, axis=0):
    return tgt.clone().index_add_(axis, idx, src)

def _segment_sum(src, seg, n):
    out = torch.zeros((n,) + src.shape[1:], dtype=src.dtype)
    return out.index_add_(0, seg, src)

def _pad(x, pw):
    flat = tuple((v for pair in reversed(pw) for v in pair))
    return torch.nn.functional.pad(x, flat)
kernel_name = 'concat_heads__memory_aug_recurrent_mem_tr__spectral_gfnet__prompt'

def setup_inputs():

    _w = lambda a: (lambda t: t.to(torch.bfloat16) if t.is_floating_point() else t)(torch.as_tensor(a))

    def _A_setup():
        B, S, Dm = (1, 2048, 1024)
        H, Dh = (32, 128)
        M, seg = (8, 32)
        seg = min(seg, S)
        S = S // seg * seg
        return {'x': _w((lambda *s: torch.randn(*s, dtype=torch.bfloat16) * 0.05)(B, S, Dm)), 'mem0': _w((lambda *s: torch.randn(*s, dtype=torch.bfloat16) * 0.4)(B, M, Dm)), 'Wq': _w((lambda *s: torch.randn(*s, dtype=torch.bfloat16) * 6.4)(Dm, H, Dh) * Dm ** (-0.5)), 'Wk': _w((lambda *s: torch.randn(*s, dtype=torch.bfloat16) * 6.4)(Dm, H, Dh) * Dm ** (-0.5)), 'Wv': _w((lambda *s: torch.randn(*s, dtype=torch.bfloat16) * 0.4)(Dm, H, Dh) * Dm ** (-0.5)), 'Wo': _w((lambda *s: torch.randn(*s, dtype=torch.bfloat16) * 0.4)(H, Dh, Dm) * (H * Dh) ** (-0.5)), 'seg_len': seg}
    _A_in = _A_setup()

    def _B_setup():
        B, S, D = (1, 2048, 1024)
        Df = D // 2 + 1
        return {'x': _w((lambda *s: torch.randn(*s, dtype=torch.bfloat16) * 0.05)(B, S, D)), 'w_r': _w((lambda *s: torch.randn(*s, dtype=torch.bfloat16) * 3.2)(S, Df) * 0.02), 'w_i': _w((lambda *s: torch.randn(*s, dtype=torch.bfloat16) * 3.2)(S, Df) * 0.02)}
    _B_in = _B_setup()
    return {'A_x': _A_in['x'], 'A_mem0': _A_in['mem0'], 'A_Wq': _A_in['Wq'], 'A_Wk': _A_in['Wk'], 'A_Wv': _A_in['Wv'], 'A_Wo': _A_in['Wo'], 'A_seg_len': _A_in['seg_len'], 'B_x': _B_in['x'], 'B_w_r': _B_in['w_r'], 'B_w_i': _B_in['w_i']}

def reference(A_x, A_mem0, A_Wq, A_Wk, A_Wv, A_Wo, A_seg_len, B_x, B_w_r, B_w_i):

    def _A_ref(x, mem0, Wq, Wk, Wv, Wo, seg_len):
        B, S, Dm = x.shape
        H, Dh = (Wq.shape[1], Wq.shape[2])
        M = mem0.shape[1]
        scale = Dh ** (-0.5)
        n_seg = S // seg_len
        L = M + seg_len
        idx = torch.arange(L)
        mask = (idx[:, None] < M) | (idx[:, None] >= idx[None, :])
        mem = mem0
        outs = []
        for s in range(n_seg):
            xs = x[:, s * seg_len:(s + 1) * seg_len, :].clone()
            h = torch.concatenate([mem, xs], axis=1)
            q = torch.einsum('btd,dhe->bhte', h, Wq)
            k = torch.einsum('btd,dhe->bhte', h, Wk)
            v = torch.einsum('btd,dhe->bhte', h, Wv)
            scores = torch.einsum('bhqe,bhke->bhqk', q, k) * scale
            scores = torch.where(mask[None, None], scores, -1000000000.0)
            p = _softmax(scores, axis=-1)
            o = torch.einsum('bhqk,bhke->bhqe', p, v)
            o = torch.einsum('bhte,hed->btd', o, Wo)
            mem = o[:, :M, :].clone()
            outs.append(o[:, M:, :])
        return torch.concatenate(outs, axis=1)

    def _B_ref(x, w_r, w_i):
        B, S, D = x.shape
        X = (lambda x, axes=(-2, -1): torch.fft.rfft2(x.float(), dim=axes))(x, axes=(-2, -1))
        W = w_r + 1j * w_i
        X = X * W
        y = (lambda x, s, axes=(-2, -1): torch.fft.irfft2(x, s=s, dim=axes).to(torch.bfloat16))(X, (S, D), axes=(-2, -1))
        return y
    a = _A_ref(A_x, A_mem0, A_Wq, A_Wk, A_Wv, A_Wo, A_seg_len)
    b = _B_ref(B_x, B_w_r, B_w_i)
    return torch.concatenate([a, b], axis=-1)
```

```python
KNAME = "concat_heads__memory_aug_recurrent_mem_tr__spectral_gfnet__prompt"

MB = 1 << 20
WS_QX = 0
WS_KX = 16 * MB
WS_VT = 32 * MB
WS_O = 48 * MB
WS_MEM = 64 * MB
WS_QKVM = 74 * MB
WS_PART = 88 * MB
WS_T1 = 92 * MB
WS_T2 = 104 * MB
WS_BYTES = 256 * MB

KA_AX, KA_MEM0, KA_WQ, KA_WK, KA_WV, KA_WO, KA_SEG, KA_BX, KA_WR, KA_WI, KA_OUT, KA_DBG, KA_WS = [8 * i for i in range(13)]


class Asm:
    def __init__(self):
        self.lines = []
        self.uid = 0

    def __call__(self, s):
        for l in s.strip("\n").split("\n"):
            self.lines.append("    " + l.strip())

    def label(self, name):
        self.lines.append(name + ":")

    def newlabel(self, base="L"):
        self.uid += 1
        return f"{base}_{self.uid}"

    def comment(self, s):
        self.lines.append("    ; " + s)

    def text(self):
        return "\n".join(self.lines) + "\n"

    def kernel_begin(self, name):
        self.lines.append(f".globl {name}")
        self.lines.append(".p2align 8")
        self.lines.append(f".type {name},@function")
        self.lines.append(f"{name}:")

    def nops(self, n):
        while n > 0:
            k = min(n, 16)
            self(f"s_nop {k-1}")
            n -= k


def vr(base, n=1):
    return f"v{base}" if n == 1 else f"v[{base}:{base+n-1}]"


def ar(base, n=1):
    return f"a{base}" if n == 1 else f"a[{base}:{base+n-1}]"


def sr(base, n=1):
    return f"s{base}" if n == 1 else f"s[{base}:{base+n-1}]"


def kd(name, vgpr, sgpr=102, accum=None, ids="x"):
    if accum is None:
        accum = (vgpr + 3) // 4 * 4
    s = f""".p2align 6
.amdhsa_kernel {name}
  .amdhsa_next_free_vgpr {vgpr}
  .amdhsa_next_free_sgpr {sgpr}
  .amdhsa_accum_offset {accum}
  .amdhsa_group_segment_fixed_size 0
  .amdhsa_kernarg_size 104
  .amdhsa_user_sgpr_count 2
  .amdhsa_user_sgpr_kernarg_segment_ptr 1
  .amdhsa_system_sgpr_workgroup_id_x 1
.end_amdhsa_kernel
"""
    return s


import os
HEADER = open(os.path.join(os.path.dirname(os.path.abspath(__file__)), "..", KNAME + ".s.ref")).read().split("; Override launch geometry")[0]
```

```python
from gen_common import *

SC = "sc1"


def gen_rec(a: Asm, name, nsteps=64, prof=False):
    a.kernel_begin(name)
    NST = 8
    def stamp(i):
        if not prof: return
        a("s_memtime s[66:67]")
        a("s_waitcnt lgkmcnt(0)")
        a("s_sub_u32 s68, s66, s69")
        a(f"s_add_u32 s{70+i}, s{70+i}, s68")
        a("s_mov_b32 s69, s66")
    S_WS, S_W1, S_WO, S_M0 = 4, 8, 12, 16
    S_WAVE, S_H, S_J, S_STEP = 20, 21, 22, 23
    S_T0, S_T1, S_T2, S_T3 = 24, 25, 32, 33
    S_MASKN8, S_MASKLO32, S_MASK8 = 26, 28, 30
    S_SOFF_MEM, S_SOFF_QKVM, S_SOFF_X, S_SOFF_PART = 34, 35, 36, 37
    S_NEGMASK = 38
    S_C = 40
    S_MEMSRD = 44
    V_LANE, V_G, V_M = 1, 2, 3
    V_OMEM, V_OQK, V_OVTM, V_OKX0, V_OKX1, V_OVTX, V_OPUB1, V_OPART, V_ORED, V_OMPUB = 4, 5, 6, 7, 8, 9, 10, 11, 12, 13
    V_T0, V_T1 = 14, 15
    V_R = 16
    V_Q, V_KM, V_VTM = 80, 96, 112
    V_KX, V_VTX = 128, 160
    V_S = 192
    V_O = 204
    V_OB = 236
    V_P = 16
    V_TMP = 24
    A_W1, A_WO = 0, 128

    if prof:
        for i in range(NST + 4):
            a(f"s_mov_b32 s{70+i}, 0")
        a("s_memtime s[66:67]")
        a("s_waitcnt lgkmcnt(0)")
        a("s_mov_b32 s69, s66")
    a(f"""
    s_cmp_ge_u32 s2, 256
    s_cbranch_scc1 {name}_end
    s_load_dwordx2 s[{S_WS}:{S_WS+1}], s[0:1], {KA_WS}
    s_load_dwordx2 s[{S_M0}:{S_M0+1}], s[0:1], {KA_MEM0}
    s_load_dwordx2 s[{S_WO}:{S_WO+1}], s[0:1], {KA_WO}
    s_load_dwordx2 s[48:49], s[0:1], {KA_WQ}
    s_load_dwordx2 s[50:51], s[0:1], {KA_WK}
    s_load_dwordx2 s[52:53], s[0:1], {KA_WV}
    v_lshrrev_b32 v{V_T0}, 6, v0
    v_and_b32 v{V_LANE}, 63, v0
    v_readfirstlane_b32 s{S_WAVE}, v{V_T0}
    v_lshrrev_b32 v{V_G}, 4, v{V_LANE}
    v_and_b32 v{V_M}, 15, v{V_LANE}
    s_and_b32 s{S_H}, s2, 31
    s_lshr_b32 s{S_J}, s2, 5
    s_waitcnt lgkmcnt(0)
    s_mov_b32 s{S_WS+2}, {WS_BYTES}
    s_mov_b32 s{S_WS+3}, 0x00020000
    s_mov_b32 s{S_M0+2}, 16384
    s_mov_b32 s{S_M0+3}, 0x00020000
    s_mov_b32 s{S_WO+2}, {8*MB}
    s_mov_b32 s{S_WO+3}, 0x00020000
    s_mov_b32 s{S_W1+2}, {8*MB}
    s_mov_b32 s{S_W1+3}, 0x00020000
    s_cmp_eq_u32 s{S_WAVE}, 1
    s_cselect_b32 s{S_W1}, s50, s48
    s_cselect_b32 s{S_W1+1}, s51, s49
    s_cmp_eq_u32 s{S_WAVE}, 2
    s_cselect_b32 s{S_W1}, s52, s{S_W1}
    s_cselect_b32 s{S_W1+1}, s53, s{S_W1+1}
    s_mov_b32 s{S_MASKN8}, 0x00ff00ff
    s_mov_b32 s{S_MASKN8+1}, 0x00ff00ff
    s_mov_b32 s{S_MASKLO32}, -1
    s_mov_b32 s{S_MASKLO32+1}, 0
    s_mov_b32 s{S_MASK8}, 0xff
    s_mov_b32 s{S_MASK8+1}, 0
    s_mov_b32 s{S_NEGMASK}, 0
    s_mov_b32 s{S_NEGMASK+1}, -1
    s_mov_b32 s{S_C}, 0x3e0293ee   ; 128^-0.5 * log2(e) = 0.12751743
    """)
    a(f"""
    v_and_b32 v{V_T0}, 7, v{V_M}
    v_lshlrev_b32 v{V_OMEM}, 11, v{V_T0}
    v_lshrrev_b32 v{V_T1}, 3, v{V_M}
    v_lshlrev_b32 v{V_T1}, 10, v{V_T1}
    v_add_u32 v{V_OMEM}, v{V_OMEM}, v{V_T1}
    v_lshl_add_u32 v{V_OMEM}, v{V_G}, 4, v{V_OMEM}
    v_lshlrev_b32 v{V_OQK}, 8, v{V_T0}
    v_lshl_add_u32 v{V_OQK}, v{V_G}, 4, v{V_OQK}
    v_and_b32 v{V_T1}, 1, v{V_G}
    v_lshlrev_b32 v{V_OVTM}, 4, v{V_M}
    v_lshl_add_u32 v{V_OVTM}, v{V_T1}, 3, v{V_OVTM}
    v_add_u32 v{V_OVTM}, 4096, v{V_OVTM}
    s_lshl_b32 s{S_T0}, s{S_H}, 8
    s_add_u32 s{S_T0}, s{S_T0}, {WS_KX}
    v_lshlrev_b32 v{V_OKX0}, 13, v{V_M}
    v_lshl_add_u32 v{V_OKX0}, v{V_G}, 4, v{V_OKX0}
    v_add_u32 v{V_OKX0}, s{S_T0}, v{V_OKX0}
    v_add_u32 v{V_OKX1}, 0x20000, v{V_OKX0}
    s_lshl_b32 s{S_T0}, s{S_H}, 13
    s_add_u32 s{S_T0}, s{S_T0}, {WS_VT}
    v_lshlrev_b32 v{V_OVTX}, 6, v{V_M}
    v_lshl_add_u32 v{V_OVTX}, v{V_G}, 4, v{V_OVTX}
    v_add_u32 v{V_OVTX}, s{S_T0}, v{V_OVTX}
    s_lshl_b32 s{S_T0}, s{S_J}, 2
    s_add_u32 s{S_T0}, s{S_T0}, s{S_WAVE}
    s_lshl_b32 s{S_T0}, s{S_T0}, 12
    s_lshl_b32 s{S_T1}, s{S_H}, 7
    s_add_u32 s{S_T0}, s{S_T0}, s{S_T1}
    v_lshlrev_b32 v{V_OPART}, 17, v{V_M}
    v_lshl_add_u32 v{V_OPART}, v{V_G}, 4, v{V_OPART}
    v_add_u32 v{V_OPART}, s{S_T0}, v{V_OPART}
    s_lshl_b32 s{S_T0}, s2, 12
    v_lshlrev_b32 v{V_ORED}, 4, v{V_LANE}
    v_add_u32 v{V_ORED}, s{S_T0}, v{V_ORED}
    s_lshr_b32 s{S_T0}, s2, 5
    s_lshl_b32 s{S_T0}, s{S_T0}, 11
    s_and_b32 s{S_T1}, s2, 31
    s_lshl_b32 s{S_T1}, s{S_T1}, 6
    s_add_u32 s{S_T0}, s{S_T0}, s{S_T1}
    v_lshlrev_b32 v{V_OMPUB}, 3, v{V_LANE}
    v_add_u32 v{V_OMPUB}, s{S_T0}, v{V_OMPUB}
    s_lshl_b32 s{S_T0}, s{S_WAVE}, 11
    s_lshl_b32 s{S_T1}, s{S_J}, 5
    s_add_u32 s{S_T0}, s{S_T0}, s{S_T1}
    v_lshlrev_b32 v{V_OPUB1}, 8, v{V_M}
    v_lshl_add_u32 v{V_OPUB1}, v{V_G}, 3, v{V_OPUB1}
    v_add_u32 v{V_OPUB1}, s{S_T0}, v{V_OPUB1}
    s_cmp_eq_u32 s{S_WAVE}, 2
    s_cbranch_scc0 {name}_pub1_done
    s_lshl_b32 s{S_T0}, s{S_J}, 8
    s_add_u32 s{S_T0}, s{S_T0}, 4096
    v_lshlrev_b32 v{V_OPUB1}, 4, v{V_M}
    v_lshl_add_u32 v{V_OPUB1}, v{V_G}, 3, v{V_OPUB1}
    v_add_u32 v{V_OPUB1}, s{S_T0}, v{V_OPUB1}
    """)
    a.label(f"{name}_pub1_done")
    a(f"""
    s_lshl_b32 s{S_T0}, s{S_H}, 18
    s_lshl_b32 s{S_T1}, s{S_J}, 8
    s_add_u32 s{S_T0}, s{S_T0}, s{S_T1}
    s_lshl_b32 s{S_T1}, s{S_WAVE}, 6
    s_add_u32 s{S_T0}, s{S_T0}, s{S_T1}
    v_lshlrev_b32 v{V_T0}, 13, v{V_G}
    v_lshl_add_u32 v{V_T0}, v{V_M}, 1, v{V_T0}
    v_add_u32 v{V_T0}, s{S_T0}, v{V_T0}
    """)
    for t in range(2):
        for u in range(4):
            for i in range(8):
                e = 32 * u + 16 * (i >> 2) + (i & 3)
                a(f"s_mov_b32 s{S_T1}, {e*2048}")
                a(f"buffer_load_ushort v{V_R + (t*4+u)*8 + i}, v{V_T0}, s[{S_WO}:{S_WO+3}], s{S_T1} offen offset:{32*t}")
    a("s_waitcnt vmcnt(0)")
    for f in range(8):
        for i in range(4):
            a(f"v_lshl_or_b32 v{V_T1}, v{V_R + f*8 + 2*i + 1}, 16, v{V_R + f*8 + 2*i}")
            a(f"v_accvgpr_write_b32 a{A_WO + f*4 + i}, v{V_T1}")
    a(f"""
    s_cmp_eq_u32 s{S_WAVE}, 3
    s_cbranch_scc1 {name}_w1_done
    s_lshl_b32 s{S_T0}, s{S_H}, 8
    s_lshl_b32 s{S_T1}, s{S_J}, 5
    s_add_u32 s{S_T0}, s{S_T0}, s{S_T1}
    v_lshlrev_b32 v{V_T0}, 16, v{V_G}
    v_lshl_add_u32 v{V_T0}, v{V_M}, 1, v{V_T0}
    v_add_u32 v{V_T0}, s{S_T0}, v{V_T0}
    """)
    for tb in range(4):
        for t in range(8 * tb, 8 * tb + 8):
            for i in range(8):
                k = 32 * t + i
                a(f"s_mov_b32 s{S_T1}, {k*8192}")
                a(f"buffer_load_ushort v{V_R + (t & 7)*8 + i}, v{V_T0}, s[{S_W1}:{S_W1+3}], s{S_T1} offen")
        a("s_waitcnt vmcnt(0)")
        for t in range(8 * tb, 8 * tb + 8):
            for i in range(4):
                a(f"v_lshl_or_b32 v{V_T1}, v{V_R + (t & 7)*8 + 2*i + 1}, 16, v{V_R + (t & 7)*8 + 2*i}")
                a(f"v_accvgpr_write_b32 a{A_W1 + t*4 + i}, v{V_T1}")
    a.label(f"{name}_w1_done")
    a(f"""
    s_mov_b32 s{S_STEP}, 0
    s_waitcnt vmcnt(0)
    """)
    stamp(0)

    def prefetch_x():
        a(f"s_lshl_b32 s{S_SOFF_X}, s{S_STEP}, 18")
        for tt in range(2):
            for t in range(4):
                a(f"buffer_load_dwordx4 v[{V_KX+16*tt+4*t}:{V_KX+16*tt+4*t+3}], v{V_OKX0 if tt==0 else V_OKX1}, s[{S_WS}:{S_WS+3}], s{S_SOFF_X} offen offset:{64*t}")
        a(f"v_add_u32 v{V_T1}, 4096, v{V_OVTX}")
        for T in range(8):
            vo = V_OVTX if T < 4 else V_T1
            a(f"buffer_load_dwordx4 v[{V_VTX+4*T}:{V_VTX+4*T+3}], v{vo}, s[{S_WS}:{S_WS+3}], s{S_SOFF_X} offen offset:{1024*(T&3)}")

    prefetch_x()

    a.label(f"{name}_loop")
    a(f"""
    s_lshl_b32 s{S_SOFF_MEM}, s{S_STEP}, 14
    s_add_u32 s{S_SOFF_MEM}, s{S_SOFF_MEM}, {WS_MEM}
    s_lshl_b32 s{S_T0}, s{S_STEP}, 5
    s_add_u32 s{S_T0}, s{S_T0}, s{S_H}
    s_mul_i32 s{S_SOFF_QKVM}, s{S_T0}, 6144
    s_add_u32 s{S_SOFF_QKVM}, s{S_SOFF_QKVM}, {WS_QKVM}
    s_and_b32 s{S_T0}, s{S_STEP}, 1
    s_lshl_b32 s{S_SOFF_PART}, s{S_T0}, 20
    s_add_u32 s{S_SOFF_PART}, s{S_SOFF_PART}, {WS_PART}
    s_cmp_eq_u32 s{S_WAVE}, 3
    s_cbranch_scc1 {name}_phaseB
    s_cmp_eq_u32 s{S_STEP}, 0
    s_cselect_b32 s{S_MEMSRD}, s{S_M0}, s{S_WS}
    s_cselect_b32 s{S_MEMSRD+1}, s{S_M0+1}, s{S_WS+1}
    s_cselect_b32 s{S_MEMSRD+2}, s{S_M0+2}, s{S_WS+2}
    s_mov_b32 s{S_MEMSRD+3}, 0x00020000
    s_cselect_b32 s{S_SOFF_MEM}, 0, s{S_SOFF_MEM}
    """)
    a.label(f"{name}_poll1")
    for t in range(16):
        a(f"buffer_load_dwordx4 v[{V_R+4*t}:{V_R+4*t+3}], v{V_OMEM}, s[{S_MEMSRD}:{S_MEMSRD+3}], s{S_SOFF_MEM} offen offset:{64*t} {SC}")
    a("s_waitcnt vmcnt(0)")

    def check(regs, tmp, target):
        regs = list(regs)
        a(f"v_max3_u32 v{tmp}, v{regs[0]}, v{regs[1]}, v{regs[2]}")
        rest = regs[3:]
        while len(rest) >= 2:
            a(f"v_max3_u32 v{tmp}, v{tmp}, v{rest[0]}, v{rest[1]}")
            rest = rest[2:]
        if rest:
            a(f"v_max_u32 v{tmp}, v{tmp}, v{rest[0]}")
        a(f"v_cmp_eq_u32 vcc, -1, v{tmp}")
        a(f"s_cbranch_vccnz {target}")

    if prof: a("s_add_u32 s78, s78, 1")
    check(range(V_R, V_R + 64), V_T0, f"{name}_poll1")
    stamp(1)
    LO, HI = V_S, V_S + 4
    a(f"""
    s_cmp_eq_u32 s{S_WAVE}, 2
    s_cbranch_scc1 {name}_p1v
    """)
    for t in range(16):
        c0 = "0" if t == 0 else f"v[{LO}:{LO+3}]"
        c1 = "0" if t == 0 else f"v[{HI}:{HI+3}]"
        a(f"v_mfma_f32_16x16x32_bf16 v[{LO}:{LO+3}], a[{A_W1+4*t}:{A_W1+4*t+3}], v[{V_R+4*t}:{V_R+4*t+3}], {c0}")
        a(f"v_mfma_f32_16x16x32_bf16 v[{HI}:{HI+3}], a[{A_W1+4*(t+16)}:{A_W1+4*(t+16)+3}], v[{V_R+4*t}:{V_R+4*t+3}], {c1}")
    a.nops(8)
    for r in range(4):
        a(f"v_add_f32_dpp v{LO+r}, v{HI+r}, v{LO+r} row_ror:8 row_mask:0xf bank_mask:0xf")
    a(f"""
    v_cvt_pk_bf16_f32 v{HI}, v{LO}, v{LO+1}
    v_cvt_pk_bf16_f32 v{HI+1}, v{LO+2}, v{LO+3}
    v_min_u32 v{HI}, -2, v{HI}
    v_min_u32 v{HI+1}, -2, v{HI+1}
    s_mov_b64 exec, s[{S_MASKN8}:{S_MASKN8+1}]
    buffer_store_dwordx2 v[{HI}:{HI+1}], v{V_OPUB1}, s[{S_WS}:{S_WS+3}], s{S_SOFF_QKVM} offen {SC}
    s_mov_b64 exec, -1
    s_branch {name}_p1done
    """)
    a.label(f"{name}_p1v")
    for t in range(16):
        c0 = "0" if t == 0 else f"v[{LO}:{LO+3}]"
        c1 = "0" if t == 0 else f"v[{HI}:{HI+3}]"
        a(f"v_mfma_f32_16x16x32_bf16 v[{LO}:{LO+3}], v[{V_R+4*t}:{V_R+4*t+3}], a[{A_W1+4*t}:{A_W1+4*t+3}], {c0}")
        a(f"v_mfma_f32_16x16x32_bf16 v[{HI}:{HI+3}], v[{V_R+4*t}:{V_R+4*t+3}], a[{A_W1+4*(t+16)}:{A_W1+4*(t+16)+3}], {c1}")
    a.nops(8)
    Y = V_S + 8
    for r in range(4):
        a(f"v_permlane32_swap_b32 v{HI+r}, v{Y+r}")
    a.nops(1)
    for r in range(4):
        a(f"v_add_f32 v{LO+r}, v{LO+r}, v{Y+r}")
    a(f"""
    v_cvt_pk_bf16_f32 v{HI}, v{LO}, v{LO+1}
    v_cvt_pk_bf16_f32 v{HI+1}, v{LO+2}, v{LO+3}
    v_min_u32 v{HI}, -2, v{HI}
    v_min_u32 v{HI+1}, -2, v{HI+1}
    s_mov_b64 exec, s[{S_MASKLO32}:{S_MASKLO32+1}]
    buffer_store_dwordx2 v[{HI}:{HI+1}], v{V_OPUB1}, s[{S_WS}:{S_WS+3}], s{S_SOFF_QKVM} offen {SC}
    s_mov_b64 exec, -1
    """)
    a.label(f"{name}_p1done")
    stamp(2)
    a.label(f"{name}_phaseB")
    a(f"""
    s_cmp_eq_u32 s{S_STEP}, {nsteps-1}
    s_cbranch_scc1 {name}_end
    """)
    a.label(f"{name}_poll2")
    for t in range(4):
        a(f"buffer_load_dwordx4 v[{V_Q+4*t}:{V_Q+4*t+3}], v{V_OQK}, s[{S_WS}:{S_WS+3}], s{S_SOFF_QKVM} offen offset:{64*t} {SC}")
    for t in range(4):
        a(f"buffer_load_dwordx4 v[{V_KM+4*t}:{V_KM+4*t+3}], v{V_OQK}, s[{S_WS}:{S_WS+3}], s{S_SOFF_QKVM} offen offset:{2048+64*t} {SC}")
    for T in range(8):
        a(f"buffer_load_dwordx2 v[{V_VTM+2*T}:{V_VTM+2*T+1}], v{V_OVTM}, s[{S_WS}:{S_WS+3}], s{S_SOFF_QKVM} offen offset:{256*T} {SC}")
    a("s_waitcnt vmcnt(0)")
    if prof: a("s_add_u32 s79, s79, 1")
    check(range(V_Q, V_Q + 48), V_T0, f"{name}_poll2")
    stamp(3)
    for t in range(4):
        for tile in range(3):
            src = (V_KX + 16 * tile + 4 * t) if tile < 2 else (V_KM + 4 * t)
            d = V_S + 4 * tile
            c = "0" if t == 0 else f"v[{d}:{d+3}]"
            a(f"v_mfma_f32_16x16x32_bf16 v[{d}:{d+3}], v[{src}:{src+3}], v[{V_Q+4*t}:{V_Q+4*t+3}], {c}")
    a.nops(8)
    a(f"v_mov_b32 v{V_T1}, 0xff7fffff")
    for r in range(4):
        a(f"v_cndmask_b32 v{V_S+8+r}, v{V_S+8+r}, v{V_T1}, s[{S_NEGMASK}:{S_NEGMASK+1}]")
    MX, TM = V_TMP, V_TMP + 1
    a(f"v_max3_f32 v{MX}, v{V_S}, v{V_S+1}, v{V_S+2}")
    for i in range(3, 11, 2):
        a(f"v_max3_f32 v{MX}, v{MX}, v{V_S+i}, v{V_S+i+1}")
    a(f"v_max_f32 v{MX}, v{MX}, v{V_S+11}")

    def allreduce(op, x, tmp):
        for sw in ("v_permlane16_swap_b32", "v_permlane32_swap_b32"):
            a(f"v_mov_b32 v{tmp}, v{x}")
            a.nops(2)
            a(f"{sw} v{x}, v{tmp}")
            a.nops(1)
            a(f"{op} v{x}, v{x}, v{tmp}")

    allreduce("v_max_f32", MX, TM)
    a(f"v_mul_f32 v{MX}, s{S_C}, v{MX}")
    for i in range(12):
        a(f"v_fma_f32 v{V_S+i}, v{V_S+i}, s{S_C}, -v{MX}")
    for i in range(12):
        a(f"v_exp_f32 v{V_S+i}, v{V_S+i}")
    a.nops(1)
    SM = V_TMP + 2
    a(f"v_add_f32 v{SM}, v{V_S}, v{V_S+1}")
    for i in range(2, 12):
        a(f"v_add_f32 v{SM}, v{SM}, v{V_S+i}")
    allreduce("v_add_f32", SM, TM)
    a(f"v_rcp_f32 v{SM}, v{SM}")
    a.nops(1)
    for i in range(12):
        a(f"v_mul_f32 v{V_S+i}, v{V_S+i}, v{SM}")
    for i in range(6):
        a(f"v_cvt_pk_bf16_f32 v{V_P+i}, v{V_S+2*i}, v{V_S+2*i+1}")
    a.nops(2)
    for T in range(8):
        d = V_O + 4 * T
        a(f"v_mfma_f32_16x16x32_bf16 v[{d}:{d+3}], v[{V_VTX+4*T}:{V_VTX+4*T+3}], v[{V_P}:{V_P+3}], 0")
    for T in range(8):
        d = V_O + 4 * T
        a(f"v_mfma_f32_16x16x16_bf16 v[{d}:{d+3}], v[{V_VTM+2*T}:{V_VTM+2*T+1}], v[{V_P+4}:{V_P+5}], v[{d}:{d+3}]")
    a(f"s_add_u32 s{S_STEP}, s{S_STEP}, 1")
    a.nops(4)
    prefetch_x()
    for i in range(16):
        a(f"v_cvt_pk_bf16_f32 v{V_OB+i}, v{V_O+2*i}, v{V_O+2*i+1}")
    a.nops(2)
    F = V_S
    for u in range(4):
        for t in range(2):
            d = F + 4 * t
            c = "0" if u == 0 else f"v[{d}:{d+3}]"
            wo = A_WO + (t * 4 + u) * 4
            a(f"v_mfma_f32_16x16x32_bf16 v[{d}:{d+3}], a[{wo}:{wo+3}], v[{V_OB+4*u}:{V_OB+4*u+3}], {c}")
    a.nops(8)
    for i in range(8):
        a(f"v_min_u32 v{F+i}, -2, v{F+i}")
    a(f"""
    s_mov_b64 exec, s[{S_MASKN8}:{S_MASKN8+1}]
    buffer_store_dwordx4 v[{F}:{F+3}], v{V_OPART}, s[{S_WS}:{S_WS+3}], s{S_SOFF_PART} offen {SC}
    buffer_store_dwordx4 v[{F+4}:{F+7}], v{V_OPART}, s[{S_WS}:{S_WS+3}], s{S_SOFF_PART} offen offset:64 {SC}
    s_mov_b64 exec, -1
    """)
    stamp(4)
    a(f"""
    s_cmp_eq_u32 s{S_WAVE}, 3
    s_cbranch_scc0 {name}_loop
    """)
    RR = V_R
    a.label(f"{name}_poll3")
    for i in range(4):
        a(f"buffer_load_dwordx4 v[{RR+4*i}:{RR+4*i+3}], v{V_ORED}, s[{S_WS}:{S_WS+3}], s{S_SOFF_PART} offen offset:{1024*i} {SC}")
    a("s_waitcnt vmcnt(0)")
    if prof: a("s_add_u32 s80, s80, 1")
    check(range(RR, RR + 16), V_T0, f"{name}_poll3")
    stamp(5)
    for r in range(4):
        a(f"v_add_f32 v{RR+r}, v{RR+r}, v{RR+4+r}")
        a(f"v_add_f32 v{RR+8+r}, v{RR+8+r}, v{RR+12+r}")
    for r in range(4):
        a(f"v_add_f32 v{RR+r}, v{RR+r}, v{RR+8+r}")
    a.nops(2)
    for r in range(4):
        a(f"v_add_f32_dpp v{RR+r}, v{RR+r}, v{RR+r} row_ror:8 row_mask:0xf bank_mask:0xf")
    for sw in ("v_permlane16_swap_b32", "v_permlane32_swap_b32"):
        for r in range(4):
            a(f"v_mov_b32 v{RR+4+r}, v{RR+r}")
        a.nops(2)
        for r in range(4):
            a(f"{sw} v{RR+r}, v{RR+4+r}")
        a.nops(1)
        for r in range(4):
            a(f"v_add_f32 v{RR+r}, v{RR+r}, v{RR+4+r}")
    a(f"""
    v_cvt_pk_bf16_f32 v{RR+4}, v{RR}, v{RR+1}
    v_cvt_pk_bf16_f32 v{RR+5}, v{RR+2}, v{RR+3}
    v_min_u32 v{RR+4}, -2, v{RR+4}
    v_min_u32 v{RR+5}, -2, v{RR+5}
    v_mov_b32 v{RR+8}, -1
    v_mov_b32 v{RR+9}, -1
    v_mov_b32 v{RR+10}, -1
    v_mov_b32 v{RR+11}, -1
    s_lshl_b32 s{S_SOFF_MEM}, s{S_STEP}, 14
    s_add_u32 s{S_SOFF_MEM}, s{S_SOFF_MEM}, {WS_MEM}
    s_mov_b64 exec, s[{S_MASK8}:{S_MASK8+1}]
    buffer_store_dwordx2 v[{RR+4}:{RR+5}], v{V_OMPUB}, s[{S_WS}:{S_WS+3}], s{S_SOFF_MEM} offen {SC}
    s_mov_b64 exec, -1
    """)
    for i in range(4):
        a(f"buffer_store_dwordx4 v[{RR+8}:{RR+11}], v{V_ORED}, s[{S_WS}:{S_WS+3}], s{S_SOFF_PART} offen offset:{1024*i} {SC}")
    stamp(6)
    a(f"s_branch {name}_loop")
    a.label(f"{name}_end")
    if prof:
        a(f"""
        s_cmp_lg_u32 s2, 0
        s_cbranch_scc1 {name}_end2
        s_load_dwordx2 s[60:61], s[0:1], {KA_DBG}
        s_waitcnt lgkmcnt(0)
        s_mov_b32 s62, 256
        s_mov_b32 s63, 0x00020000
        s_mul_i32 s64, s{S_WAVE}, 48
        """)
        for i in range(12):
            a(f"v_mov_b32 v{V_T0}, s{70+i}")
            a(f"v_mov_b32 v{V_T1}, {4*i}")
            a(f"s_mov_b64 exec, 1")
            a(f"buffer_store_dword v{V_T0}, v{V_T1}, s[60:63], s64 offen")
            a(f"s_mov_b64 exec, -1")
        a.label(f"{name}_end2")
    a("s_endpgm")
    return kd(name, 512, sgpr=96, accum=256)


if __name__ == "__main__":
    a = Asm()
    name = "rec_kernel"
    import sys
    k = gen_rec(a, name, prof=(len(sys.argv) > 1))
    out = HEADER + f"; @launch kernel={name} grid=(256,1,1) block=(256,1,1) lds=0\n"
    out += '.amdgcn_target "amdgcn-amd-amdhsa--gfx950"\n.text\n' + a.text() + '.section .rodata,"a"\n' + k
    open("rec_only.s", "w").write(out)
```

```python
from gen_common import *
from gen_rec import S_WSD, S_DBG, E

W = S_WSD
SRD = f"s[{W}:{W+3}]"
S_H = 40
S_WAVE, S_SEG, S_T0, S_T1, S_T2 = 41, 42, 43, 44, 45
S_WM, S_XM = 4, 8
V_L, V_T0, V_T1, V_T2, V_LL = 1, 2, 3, 4, 5


def wdog(a, name):
    if E("WD", 0):
        a(f"s_add_u32 s99, s99, 1\ns_cmp_gt_u32 s99, 300000\ns_cbranch_scc1 {name}_quit")


def tsx(a, ts, i):
    if E("BPROF", 0):
        ts(i)
        a(f"v_and_b32 v{V_L}, 63, v0")


def pst(i):
    if not E("KPROF", 0): return []
    return ["s_memtime s[76:77]", "s_waitcnt lgkmcnt(0)", "s_sub_u32 s78, s76, s31", f"s_add_u32 s{32+i}, s{32+i}, s78", "s_mov_b32 s31, s76"]


def pinit(a):
    if not E("KPROF", 0): return
    for i in range(8): a(f"s_mov_b32 s{32+i}, 0")
    a("s_memtime s[76:77]\ns_waitcnt lgkmcnt(0)\ns_mov_b32 s31, s76")


def pdump(a):
    if not E("KPROF", 0): return
    a(f"s_lshl_b32 s78, s2, 7\ns_lshl_b32 s77, s{S_WAVE}, 5\ns_add_u32 s78, s78, s77\ns_add_u32 s78, s78, {WS_PROF + 9*MB}\nv_mov_b32 v2, 0\ns_mov_b64 exec, 1")
    for i in range(8):
        a(f"v_mov_b32 v3, s{32+i}\nbuffer_store_dword v3, v2, {SRD}, s78 offen offset:{4*i}\ns_nop 1")
    a("s_mov_b64 exec, -1")


def common(a, ka_w, ka_x, xbytes):
    a(f"""
    s_load_dwordx2 s[{S_WM}:{S_WM+1}], s[0:1], {ka_w}
    s_load_dwordx2 s[{S_XM}:{S_XM+1}], s[0:1], {ka_x}
    v_lshrrev_b32 v{V_T0}, 6, v0
    v_and_b32 v{V_L}, 63, v0
    v_readfirstlane_b32 s{S_WAVE}, v{V_T0}
    v_lshlrev_b32 v{V_LL}, 4, v{V_L}
    s_mov_b32 s99, 0
    s_waitcnt lgkmcnt(0)
    s_mov_b32 s{S_WM+2}, {8*MB}
    s_mov_b32 s{S_WM+3}, 0x00020000
    s_mov_b32 s{S_XM+2}, {xbytes}
    s_mov_b32 s{S_XM+3}, 0x00020000
    """)


def load_weights(a, rowlog, s_base, lane_addr, frag_off, rot=None):
    a(f"""
    v_lshrrev_b32 v{V_T0}, 2, v{V_L}
    v_and_b32 v{V_T1}, 3, v{V_L}
    v_lshlrev_b32 v16, {rowlog}, v{V_T0}
    v_lshl_add_u32 v16, v{V_T1}, 4, v16
    v_add_u32 v16, s{s_base}, v16
    s_lshl_b32 s{S_T2}, s{S_WAVE}, 15
    """)
    a(lane_addr)
    a(f"v_add_u32 v17, s{S_T2}, v17")

    def dma(ch):
        for r in range(16):
            a(f"s_add_u32 m0, s{S_T2}, {(ch & 1)*16384 + 1024*r}")
            if rot is None:
                a(f"s_mov_b32 s{S_T1}, {(256 * ch + 16 * r) << rowlog}")
            else:
                a(f"s_add_u32 s{S_T1}, s{rot}, {256 * ch + 16 * r}\ns_and_b32 s{S_T1}, s{S_T1}, 1023\ns_lshl_b32 s{S_T1}, s{S_T1}, {rowlog}")
            a(f"buffer_load_dwordx4 v16, s[{S_WM}:{S_WM+3}], s{S_T1} offen lds")

    def tr(ch):
        for f in range(16 * ch, 16 * ch + 16):
            for jj in range(2):
                o = frag_off(f, jj) - 16384 * ch
                assert 0 <= o < 16384
                a(f"ds_read_b64_tr_b16 a[{4*f+2*jj}:{4*f+2*jj+1}], v17 offset:{(ch & 1)*16384 + o}")
            if f % 4 == 3:
                a("s_waitcnt lgkmcnt(0)")
    dma(0); dma(1)
    a("s_waitcnt vmcnt(16)"); tr(0); dma(2)
    a("s_waitcnt vmcnt(16)"); tr(1); dma(3)
    a("s_waitcnt vmcnt(16)"); tr(2)
    a("s_waitcnt vmcnt(0)"); tr(3)
    a("s_barrier")


def lane32(hi_mul, swap=False):
    if swap:
        return lane32(hi_mul).replace(f"v_lshl_add_u32 v17, v{V_T1}, 3, v17", f"""
        v_and_b32 v18, 1, v{V_L}
        v_lshl_add_u32 v17, v18, 4, v17
        v_bfe_u32 v18, v{V_L}, 1, 1
        v_lshl_add_u32 v17, v18, 3, v17""")
    return f"""
    v_bfe_u32 v17, v{V_L}, 2, 2
    v_lshrrev_b32 v18, 5, v{V_L}
    v_mul_u32_u24 v18, {hi_mul}, v18
    v_add_u32 v17, v17, v18
    v_lshlrev_b32 v17, 6, v17
    v_bfe_u32 v18, v{V_L}, 4, 1
    v_lshl_add_u32 v17, v18, 5, v17
    v_lshl_add_u32 v17, v{V_T1}, 3, v17
    """


def lane16(qlog):
    return f"""
    v_bfe_u32 v17, v{V_L}, 2, 2
    v_lshrrev_b32 v18, 4, v{V_L}
    v_lshl_add_u32 v17, v18, 3, v17
    v_lshlrev_b32 v17, 6, v17
    v_lshl_add_u32 v17, v{V_T1}, {qlog}, v17
    """


M32 = E('M32', 1)
GR2 = 512 if M32 else 1024
V_DX, V_RA, V_ST = 6, 8, 7
FR, NFR, AHEAD = 20, 8, 6
ACC = (52, 68)
EP = 84
S_XB = 46
S_CU, S_OB, S_FL = 47, 48, 49


def proj_setup(a, ka_w, swap):
    common(a, ka_w, KA_AX, 4 * MB)
    a(f"""
    s_lshl_b32 s{S_T0}, s{S_H}, 8
    s_lshl_b32 s{S_T1}, s{S_WAVE}, 6
    s_add_u32 s{S_OB}, s{S_T0}, s{S_T1}
    """)
    if M32:
        load_weights(a, 13, S_OB, lane32(8, swap), lambda k, jj: (16 * k + 4 * jj) * 64)
    else:
      load_weights(a, 13, S_OB, lane16(4 if swap else 3), lambda f, jj: (32 * (f >> 1) + 4 * jj) * 64 + (f & 1) * (8 if swap else 32))
    a(f"""
    v_lshrrev_b32 v{V_T0}, 3, v{V_L}
    s_lshl_b32 s{S_T0}, s{S_WAVE}, 3
    v_add_u32 v{V_T0}, s{S_T0}, v{V_T0}
    v_bfe_u32 v{V_T1}, v{V_T0}, 1, 3
    v_and_b32 v{V_T2}, 7, v{V_L}
    v_xor_b32 v{V_T1}, v{V_T1}, v{V_T2}
    v_lshlrev_b32 v{V_DX}, 11, v{V_T0}
    v_lshl_add_u32 v{V_DX}, v{V_T1}, 4, v{V_DX}
    s_lshl_b32 s{S_XB}, s{S_WAVE}, 10
    v_and_b32 v{V_T0}, 15, v{V_L}
    v_bfe_u32 v{V_T1}, v{V_T0}, 1, 3
    v_lshrrev_b32 v{V_T2}, 4, v{V_L}
    v_xor_b32 v{V_T1}, v{V_T1}, v{V_T2}
    v_lshlrev_b32 v{V_RA}, 7, v{V_T0}
    v_lshl_add_u32 v{V_RA}, v{V_T1}, 4, v{V_RA}
    v_xor_b32 v{V_RA+1}, 64, v{V_RA}
    v_add_u32 v{V_RA+2}, 0x10000, v{V_RA}
    v_add_u32 v{V_RA+3}, 0x10000, v{V_RA+1}
    v_mov_b32 v{V_ST}, v{V_LL}
    """)
    if M32:
        a(f"""
        v_and_b32 v{V_T0}, 31, v{V_L}
        v_bfe_u32 v{V_T1}, v{V_T0}, 1, 3
        v_lshrrev_b32 v{V_T2}, 5, v{V_L}
        v_xor_b32 v{V_T1}, v{V_T1}, v{V_T2}
        v_lshlrev_b32 v{V_RA}, 7, v{V_T0}
        v_lshl_add_u32 v{V_RA}, v{V_T1}, 4, v{V_RA}
        v_xor_b32 v{V_RA+1}, 32, v{V_RA}
        v_xor_b32 v{V_RA+2}, 64, v{V_RA}
        v_xor_b32 v{V_RA+3}, 96, v{V_RA}
        v_add_u32 v{V_RA+4}, 0x10000, v{V_RA}
        v_add_u32 v{V_RA+5}, 0x10000, v{V_RA+1}
        v_add_u32 v{V_RA+6}, 0x10000, v{V_RA+2}
        v_add_u32 v{V_RA+7}, 0x10000, v{V_RA+3}
        v_bfe_u32 v{V_T1}, v{V_L}, 4, 1
        v_lshlrev_b32 v{V_ST}, 10, v{V_T1}
        v_lshl_add_u32 v{V_ST}, v{V_T2}, 8, v{V_ST}
        v_and_b32 v{V_T1}, 15, v{V_L}
        v_lshl_add_u32 v{V_ST}, v{V_T1}, 4, v{V_ST}
        """)
    a(f"""
    s_lshl_b32 s{S_CU}, s{S_H}, 2
    s_add_u32 s{S_CU}, s{S_CU}, s{S_WAVE}
    s_mov_b32 s{S_SEG}, 0
    """)


def xdma_lines(buf, s_off):
    out = []
    for kb in range(16):
        out.append([f"s_add_u32 m0, s{S_XB}, {buf*65536 + kb*3968}", "s_nop 0",
                    f"buffer_load_dwordx4 v{V_DX}, s[{S_XM}:{S_XM+3}], s{s_off} offen offset:{128*kb} lds"])
    return out


def proj_segment(a, buf, acc, wA, fill):
    def rd(n):
        f = FR + 4 * (n % NFR)
        k = n >> 1
        if M32:
            a(f"ds_read_b128 v[{f}:{f+3}], v{V_RA + 4*buf + (n & 3)} offset:{4096*(n >> 2)}")
        else:
            a(f"ds_read_b128 v[{f}:{f+3}], v{V_RA + 2*buf + (k & 1)} offset:{4096*(k >> 1) + 2048*(n & 1)}")
    for n in range(AHEAD):
        rd(n)
    for n in range(64):
        f = FR + 4 * (n % NFR)
        k, tt = n >> 1, n & 1
        fl = list(fill.get(n, []))
        if fl and "m0" in fl[0] and fl[1] == "s_nop 0":
            a(fl[0]); fl = fl[2:]
        if not (E("LG2", 1) and n % 2 == 1 and n + AHEAD < 64):
            a(f"s_waitcnt lgkmcnt({min(AHEAD, 64 - n) - 1 - (1 if E('LG2', 1) and n + 1 + AHEAD < 64 else 0)})")
        if M32:
            c = "0" if n == 0 else f"v[{acc}:{acc+15}]"
            if wA:
                a(f"v_mfma_f32_32x32x16_bf16 v[{acc}:{acc+15}], a[{4*n}:{4*n+3}], v[{f}:{f+3}], {c}")
            else:
                a(f"v_mfma_f32_32x32x16_bf16 v[{acc}:{acc+15}], v[{f}:{f+3}], a[{4*n}:{4*n+3}], {c}")
            if n + AHEAD < 64:
                rd(n + AHEAD)
        for u in range(0 if M32 else 2):
            d = acc + 8 * tt + 4 * u
            w = 4 * (2 * k + u)
            c = "0" if k == 0 else f"v[{d}:{d+3}]"
            if wA:
                a(f"v_mfma_f32_16x16x32_bf16 v[{d}:{d+3}], a[{w}:{w+3}], v[{f}:{f+3}], {c}")
            else:
                a(f"v_mfma_f32_16x16x32_bf16 v[{d}:{d+3}], v[{f}:{f+3}], a[{w}:{w+3}], {c}")
            if u == 0 and n + AHEAD < 64:
                rd(n + AHEAD)
        for l in fl:
            a(l)


def pack_lines(acc, isV):
    src = [0, 2, 8, 10, 4, 6, 12, 14] if isV else [0, 2, 4, 6, 8, 10, 12, 14]
    return [f"v_cvt_pk_bf16_f32 v{EP+i}, v{acc+s}, v{acc+s+1}" for i, s in enumerate(src)]


def kvx(cu):
    m = E("KVPAR", 0)
    return ["", f"s_xor_b32 s{S_T1}, s{S_T1}, 1", f"s_xor_b32 s{S_T1}, s{S_T1}, s{cu}"][m]


def near_base(a, dst, cu, log, region):
    a(f"""
    s_lshr_b32 s{S_T1}, s{cu}, {21 - log}
    s_xor_b32 s{S_T1}, s{S_T1}, s98
    {kvx(cu) if log == 18 else ""}
    s_and_b32 s{S_T1}, s{S_T1}, 1
    s_lshl_b32 s{S_T1}, s{S_T1}, 13
    s_lshl_b32 s{dst}, s{cu}, {log}
    s_add_u32 s{dst}, s{dst}, s{S_T1}
    s_add_u32 s{dst}, s{dst}, {region}
    """)


def kv_role(a: Asm, name, isV, ts):
    proj_setup(a, KA_WV if isV else KA_WK, not isV)
    tsx(a, ts, 3)
    near_base(a, S_OB, S_CU, 18, WS_VT if isV else WS_KX)
    a(f"""
    s_xor_b32 s{S_T1}, s98, 1
    s_lshl_b32 s{S_T1}, s{S_T1}, 13
    s_lshl_b32 s{S_FL}, s{S_H}, 7
    s_add_u32 s{S_FL}, s{S_FL}, s{S_T1}
    s_lshl_b32 s{S_T1}, s{S_WAVE}, 2
    s_add_u32 s{S_FL}, s{S_FL}, s{S_T1}
    s_add_u32 s{S_FL}, s{S_FL}, {WS_F + (F_V if isV else F_K)}
    v_mov_b32 v16, 0
    s_mov_b32 s50, 0
    """)
    for g in xdma_lines(0, 50):
        a("\n".join(g))

    def store_lines():
        return [f"s_add_u32 s51, s{S_SEG}, s{S_CU}", "s_sub_u32 s51, s51, 1", "s_bfe_u32 s52, s51, 0x40002", "s_lshl_b32 s52, s52, 14",
                "s_and_b32 s51, s51, 3", "s_lshl_b32 s51, s51, 11", "s_add_u32 s51, s51, s52", f"s_add_u32 s51, s51, s{S_OB}",
                f"buffer_store_dwordx4 v[{EP}:{EP+3}], v{V_ST}, {SRD}, s51 offen sc1",
                f"buffer_store_dwordx4 v[{EP+4}:{EP+7}], v{V_ST}, {SRD}, s51 offen offset:{GR2} sc1"]

    def flag_lines():
        return [f"v_mov_b32 v17, s{S_SEG}", "s_mov_b64 exec, 1", f"buffer_store_dword v17, v16, {SRD}, s{S_FL} offen sc1", "s_mov_b64 exec, -1"]

    ORD = E("ORD", 1)
    def seg(buf, first):
        a("\n".join(pst(0)))
        if ORD == 0:
            a(f"s_waitcnt vmcnt({0 if first else 1})")
        else:
            a(f"s_waitcnt vmcnt({0 if first else 3 + E('TOUCH', 1)})")
        a("\n".join(pst(1)))
        a("s_barrier")
        a("\n".join(pst(2)))
        a(f"s_add_u32 s50, s{S_SEG}, 1\ns_min_u32 s50, s50, 63\ns_lshl_b32 s50, s50, 16")
        fill = {}
        if ORD == 0:
            if not first:
                pk = pack_lines(ACC[1 - buf], isV)
                fill[0] = pk[:4]; fill[1] = pk[4:]
                st = store_lines()
                fill[2] = st[:5]; fill[3] = st[5:9]; fill[4] = st[9:]
                fill[40] = ["s_waitcnt vmcnt(16)"] + flag_lines()
            for i, g in enumerate(xdma_lines(1 - buf, 50)):
                fill[5 + 2 * i] = g
        else:
            DS = E("DS", 2)
            for i, g in enumerate(xdma_lines(1 - buf, 50)):
                fill[DS * i] = g
            if not first:
                b = 16 * DS + 1
                fl = flag_lines()
                fill[b] = pst(3) + ["s_waitcnt vmcnt(16)"] + pst(4) + [f"s_sub_u32 s53, s{S_SEG}, 1", f"s_cmp_le_u32 s{S_SEG}, {E('EARLY', 4)}", f"s_cselect_b32 s53, s{S_SEG}, s53", "v_mov_b32 v17, s53"] + fl[1:]
                pk = pack_lines(ACC[1 - buf], isV)
                for i in range(4): fill[b + 1 + i] = pk[2*i:2*i+2]
                st = store_lines()
                fill[b + 5] = st[:4]; fill[b + 6] = st[4:9]; fill[b + 7] = st[9:]
                if E("TOUCH", 1):
                    fill[b + 8] = [f"s_add_u32 s53, s{S_SEG}, 3", "s_min_u32 s53, s53, 63", "s_lshl_b32 s53, s53, 16",
                                "s_mov_b64 exec, 0xffff", f"buffer_load_dword v18, v19, s[{S_XM}:{S_XM+3}], s53 offen", "s_mov_b64 exec, -1"]
        proj_segment(a, buf, ACC[buf], not isV, fill)
        a(f"s_add_u32 s{S_SEG}, s{S_SEG}, 1")
        if ORD:
            tg = f"{name}_ne{buf}{int(first)}"
            a(f"s_cmp_le_u32 s{S_SEG}, {E('EARLY', 4)}\ns_cbranch_scc0 {tg}")
            a.nops(10)
            a("\n".join(pack_lines(ACC[buf], isV) + store_lines() + ["s_waitcnt vmcnt(0)"] + flag_lines()))
            a.label(tg)
    a(f"s_and_b32 s53, s{S_CU}, 31\ns_lshl_b32 s53, s53, 4\nv_add_u32 v19, s53, v{V_L}\nv_lshlrev_b32 v19, 7, v19")
    pinit(a)
    seg(0, True)
    a("s_waitcnt vmcnt(0)")
    a.label(f"{name}_loop")
    seg(1, False)
    a(f"s_cmp_eq_u32 s{S_SEG}, 64\ns_cbranch_scc1 {name}_fin")
    seg(0, False)
    a(f"s_branch {name}_loop")
    a.label(f"{name}_fin")
    a.nops(12)
    a("\n".join(pack_lines(ACC[1], isV) + store_lines() + ["s_waitcnt vmcnt(0)"] + flag_lines()))
    pdump(a)
    a("s_waitcnt vmcnt(0)\ns_barrier")


def qx_role(a: Asm, name, ts):
    proj_setup(a, KA_WQ, True)
    tsx(a, ts, 3)
    L_Q, L_KV, L_KM = 131072, 139264, 155648
    S_NT, S_EH, S_C, S_KVN, S_KMN = 52, 53, 54, 55, 56
    S_KB, S_MB, S_LK, S_LM = 58, 59, 60, 61
    S_MK = 12
    V_G, V_M, V_OKM, V_OVM, V_OO, V_NEG, V_CM, V_OF, V_OF2, V_QW, V_QR = 92, 93, 94, 95, 96, 97, 98, 99, 100, 101, 102
    ONE, LS = 104, 108
    V_KR, V_VR = 103, 240
    KX, VT, KM, VM, Q, S, P, O, TMP = 112, 144, 160, 176, 184, 200, 212, 220, 236
    a(f"""
    v_lshrrev_b32 v{V_G}, 4, v{V_L}
    v_and_b32 v{V_M}, 15, v{V_L}
    s_and_b32 s{S_NT}, s{S_WAVE}, 1
    s_lshr_b32 s{S_EH}, s{S_WAVE}, 1
    s_mov_b32 s{S_C}, 0x3e0293ee
    s_mov_b32 s{S_KVN}, 0
    s_mov_b32 s{S_KMN}, 0
    v_mov_b32 v{V_NEG}, 0xff7fffff
    v_and_b32 v{V_T0}, 7, v{V_M}
    v_lshlrev_b32 v{V_OKM}, 7, v{V_G}
    v_lshl_add_u32 v{V_OKM}, v{V_T0}, 4, v{V_OKM}
    v_and_b32 v{V_T0}, 31, v{V_L}
    v_lshlrev_b32 v{V_OVM}, 3, v{V_T0}
    v_lshrrev_b32 v{V_T0}, 1, v{V_G}
    v_lshlrev_b32 v{V_OO}, 10, v{V_T0}
    v_and_b32 v{V_T0}, 1, v{V_G}
    v_lshl_add_u32 v{V_OO}, v{V_T0}, 9, v{V_OO}
    v_lshl_add_u32 v{V_OO}, v{V_M}, 4, v{V_OO}
    s_lshl_b32 s{S_T0}, s{S_H}, 13
    s_lshl_b32 s{S_T1}, s{S_EH}, 12
    s_add_u32 s{S_T0}, s{S_T0}, s{S_T1}
    s_lshl_b32 s{S_T1}, s{S_NT}, 8
    s_add_u32 s{S_T0}, s{S_T0}, s{S_T1}
    s_add_u32 s{S_T0}, s{S_T0}, {WS_O}
    v_add_u32 v{V_OO}, s{S_T0}, v{V_OO}
    s_lshl_b32 s{S_T0}, s{S_NT}, 4
    v_add_u32 v{V_CM}, s{S_T0}, v{V_M}
    v_lshlrev_b32 v{V_T0}, 2, v{V_G}
    v_sub_u32 v{V_CM}, v{V_CM}, v{V_T0}
    s_mov_b32 s28, 0
    s_mov_b32 s29, -1
    s_xor_b32 s{S_T1}, s98, 1
    s_lshl_b32 s{S_T1}, s{S_T1}, 13
    s_lshl_b32 s{S_T0}, s{S_H}, 7
    s_add_u32 s{S_T0}, s{S_T0}, s{S_T1}
    s_add_u32 s{S_T0}, s{S_T0}, {WS_F}
    v_and_b32 v{V_T0}, 3, v{V_L}
    v_bfe_u32 v{V_T1}, v{V_L}, 2, 1
    v_lshlrev_b32 v{V_OF}, 12, v{V_T1}
    v_lshl_add_u32 v{V_OF}, v{V_T0}, 2, v{V_OF}
    v_add_u32 v{V_OF}, s{S_T0}, v{V_OF}
    v_and_b32 v{V_T0}, 7, v{V_L}
    v_lshlrev_b32 v{V_OF2}, 2, v{V_T0}
    s_add_u32 s{S_T0}, s{S_T0}, {F_KVM}
    v_add_u32 v{V_OF2}, s{S_T0}, v{V_OF2}
    s_lshl_b32 s{S_FL}, s{S_CU}, 2
    s_add_u32 s{S_FL}, s{S_FL}, {WS_F + F_O}
    s_lshl_b32 s{S_T0}, s{S_WAVE}, 11
    s_add_u32 s{S_T0}, s{S_T0}, {L_Q}
    v_add_u32 v{V_QW}, s{S_T0}, v{V_ST}
    s_lshl_b32 s{S_T0}, s{S_NT}, 10
    s_add_u32 s{S_T0}, s{S_T0}, {L_Q}
    v_add_u32 v{V_QR}, s{S_T0}, v{V_LL}
    v_mov_b32 v16, 0
    s_mov_b32 s50, 0
    """)
    for i in range(4):
        a(f"v_mov_b32 v{ONE+i}, 0x3f803f80")
    for t in range(2):
        for r in range(4):
            a(f"v_cmp_gt_i32 s[{S_MK+8*t+2*r}:{S_MK+8*t+2*r+1}], {16*t+r}, v{V_CM}")
    near_base(a, S_KB, S_CU, 18, WS_KX)
    near_base(a, S_MB, S_CU, 17, WS_KVM)
    a(f"""
    s_lshl_b32 s{S_LK}, s{S_WAVE}, 11
    s_add_u32 s{S_LK}, s{S_LK}, {L_KV}
    s_lshl_b32 s{S_LM}, s{S_WAVE}, 10
    s_add_u32 s{S_LM}, s{S_LM}, {L_KM}
    v_add_u32 v{V_OKM}, {L_KM}, v{V_OKM}
    s_lshl_b32 s{S_T0}, s{S_EH}, 11
    s_add_u32 s{S_T0}, s{S_T0}, {L_KM + 512}
    v_add_u32 v{V_OVM}, s{S_T0}, v{V_OVM}
    v_add_u32 v{V_KR}, {L_KV}, v{V_LL}
    s_lshl_b32 s{S_T0}, s{S_EH}, 12
    s_add_u32 s{S_T0}, s{S_T0}, {L_KV + 8192}
    v_add_u32 v{V_VR}, s{S_T0}, v{V_LL}
    """)
    for g in xdma_lines(0, 50):
        a("\n".join(g))
    a("s_waitcnt vmcnt(0)")

    def wait_flag(tag, known, voff, sleep):
        a(f"""
        s_cmp_gt_i32 s{known}, s{S_SEG}
        s_cbranch_scc1 {name}_{tag}k
{name}_{tag}w:
        """)
        wdog(a, name)
        a(f"""
        buffer_load_dword v{V_T0}, v{voff}, {SRD}, 0 offen sc1
        s_waitcnt vmcnt(0)
        v_min_i32_dpp v{V_T0}, v{V_T0}, v{V_T0} quad_perm:[1,0,3,2] row_mask:0xf bank_mask:0xf
        s_nop 1
        v_min_i32_dpp v{V_T0}, v{V_T0}, v{V_T0} quad_perm:[2,3,0,1] row_mask:0xf bank_mask:0xf
        s_nop 1
        v_min_i32_dpp v{V_T0}, v{V_T0}, v{V_T0} row_ror:4 row_mask:0xf bank_mask:0xf
        s_nop 0
        v_readfirstlane_b32 s{known}, v{V_T0}
        s_cmp_gt_i32 s{known}, s{S_SEG}
        s_cbranch_scc1 {name}_{tag}k
        s_sleep {sleep}
        s_branch {name}_{tag}w
{name}_{tag}k:
        """)

    def flag_lines():
        return [f"v_mov_b32 v17, s{S_SEG}", "s_mov_b64 exec, 1", f"buffer_store_dword v17, v16, {SRD}, s{S_FL} offen sc1", "s_mov_b64 exec, -1"]

    def km_lines():
        return [f"s_mov_b32 m0, s{S_LM}", "s_nop 0", f"buffer_load_dwordx4 v{V_LL}, {SRD}, s68 offen sc1 lds"]

    def seg(buf):
        a("s_barrier")
        a("\n".join(pst(0)))
        wait_flag(f"kv{buf}", S_KVN, V_OF, 4)
        a(f"""
        s_add_u32 s51, s{S_CU}, s{S_SEG}
        s_bfe_u32 s57, s51, 0x40002
        s_lshl_b32 s57, s57, 14
        s_and_b32 s66, s51, 3
        s_lshl_b32 s66, s66, 11
        s_add_u32 s66, s66, s57
        s_add_u32 s66, s66, s{S_KB}
        s_add_u32 s67, s66, {WS_VT}
        s_bfe_u32 s57, s51, 0x30003
        s_lshl_b32 s57, s57, 14
        s_and_b32 s68, s51, 7
        s_lshl_b32 s68, s68, 10
        s_add_u32 s68, s68, s57
        s_add_u32 s68, s68, s{S_MB}
        s_add_u32 s50, s{S_SEG}, 1
        s_min_u32 s50, s50, 63
        s_lshl_b32 s50, s50, 16
        s_cmp_gt_i32 s{S_KMN}, s{S_SEG}
        s_cselect_b32 s30, 1, 0
        """)
        fill = {}
        for i in range(4):
            fill[2 * i] = [f"s_add_u32 m0, s{S_LK}, {8192 * (i >> 1)}", "s_nop 0",
                           f"buffer_load_dwordx4 v{V_LL}, {SRD}, s{66 + (i >> 1)} offen offset:{1024 * (i & 1)} sc1 lds"]
        fill[8] = ["s_cmp_eq_u32 s30, 1", f"s_cbranch_scc0 {name}_ke{buf}"] + km_lines() + [f"{name}_ke{buf}:"]
        for i, g in enumerate(xdma_lines(1 - buf, 50)):
            fill[10 + 2 * i] = g
        a("\n".join(pst(1)))
        fill[44] = pst(2) + ["s_waitcnt vmcnt(20)"] + pst(3) + flag_lines()
        proj_segment(a, buf, ACC[0], True, fill)
        a("\n".join(pst(2)))
        a(f"s_cmp_eq_u32 s30, 1\ns_cbranch_scc1 {name}_kl{buf}")
        wait_flag(f"km{buf}", S_KMN, V_OF2, 2)
        a("\n".join(km_lines()))
        a.label(f"{name}_kl{buf}")
        a("\n".join(pst(4)))
        a.nops(10)
        a("\n".join(pack_lines(ACC[0], False)))
        a(f"""
        ds_write_b128 v{V_QW}, v[{EP}:{EP+3}]
        ds_write_b128 v{V_QW}, v[{EP+4}:{EP+7}] offset:{GR2}
        s_waitcnt lgkmcnt(0) vmcnt(0)
        s_barrier
        """)
        a("\n".join(pst(5)))
        for j in range(4):
            a(f"ds_read_b128 v[{Q+4*j}:{Q+4*j+3}], v{V_QR} offset:{2048*j}")
            for t in range(2):
                a(f"ds_read_b128 v[{KX+16*t+4*j}:{KX+16*t+4*j+3}], v{V_KR} offset:{2048*j + 1024*t}")
        for j in range(4):
            a(f"s_waitcnt lgkmcnt({9 - 2*j})")
            for t in range(2):
                c = "0" if j == 0 else f"v[{S+4*t}:{S+4*t+3}]"
                a(f"v_mfma_f32_16x16x32_bf16 v[{S+4*t}:{S+4*t+3}], v[{KX+16*t+4*j}:{KX+16*t+4*j+3}], v[{Q+4*j}:{Q+4*j+3}], {c}")
            a(f"ds_read_b128 v[{KM+4*j}:{KM+4*j+3}], v{V_OKM} offset:{1024*j}")
        for j in range(4):
            a(f"s_waitcnt lgkmcnt({3 + j})")
            c = "0" if j == 0 else f"v[{S+8}:{S+11}]"
            a(f"v_mfma_f32_16x16x32_bf16 v[{S+8}:{S+11}], v[{KM+4*j}:{KM+4*j+3}], v[{Q+4*j}:{Q+4*j+3}], {c}")
            a(f"ds_read_b128 v[{VT+4*j}:{VT+4*j+3}], v{V_VR} offset:{1024*j}")
            a(f"ds_read_b64 v[{VM+2*j}:{VM+2*j+1}], v{V_OVM} offset:{1024*(j >> 1) + 256*(j & 1)}")
        a.nops(4)
        for i in range(8):
            a(f"v_cndmask_b32 v{S+i}, v{S+i}, v{V_NEG}, s[{S_MK+2*i}:{S_MK+2*i+1}]")
        for i in range(4):
            a(f"v_cndmask_b32 v{S+8+i}, v{S+8+i}, v{V_NEG}, s[28:29]")
        MX, TM, SM = TMP, TMP + 1, TMP + 2
        a(f"v_max3_f32 v{MX}, v{S}, v{S+1}, v{S+2}")
        for i in range(3, 11, 2):
            a(f"v_max3_f32 v{MX}, v{MX}, v{S+i}, v{S+i+1}")
        a(f"""
        v_max_f32 v{TM}, v{MX}, v{S+11}
        v_max_f32 v{MX}, v{MX}, v{S+11}
        s_nop 1
        v_permlane16_swap_b32 v{MX}, v{TM}
        s_nop 0
        v_max_f32 v{SM}, v{MX}, v{TM}
        v_max_f32 v{SM+1}, v{MX}, v{TM}
        s_nop 1
        v_permlane32_swap_b32 v{SM}, v{SM+1}
        s_nop 0
        v_max_f32 v{MX}, v{SM}, v{SM+1}
        v_mul_f32 v{MX}, s{S_C}, v{MX}
        """)
        for i in range(12):
            a(f"v_fma_f32 v{S+i}, v{S+i}, s{S_C}, -v{MX}")
        for i in range(12):
            a(f"v_exp_f32 v{S+i}, v{S+i}")
        a.nops(1)
        for i in range(6):
            a(f"v_cvt_pk_bf16_f32 v{P+i}, v{S+2*i}, v{S+2*i+1}")
        a("s_waitcnt lgkmcnt(0)\ns_nop 0")
        a(f"v_mfma_f32_16x16x32_bf16 v[{LS}:{LS+3}], v[{ONE}:{ONE+3}], v[{P}:{P+3}], 0")
        for T in range(4):
            a(f"v_mfma_f32_16x16x32_bf16 v[{O+4*T}:{O+4*T+3}], v[{VT+4*T}:{VT+4*T+3}], v[{P}:{P+3}], 0")
        a(f"v_mfma_f32_16x16x16_bf16 v[{LS}:{LS+3}], v[{ONE}:{ONE+1}], v[{P+4}:{P+5}], v[{LS}:{LS+3}]")
        for T in range(4):
            a(f"v_mfma_f32_16x16x16_bf16 v[{O+4*T}:{O+4*T+3}], v[{VM+2*T}:{VM+2*T+1}], v[{P+4}:{P+5}], v[{O+4*T}:{O+4*T+3}]")
        a(f"""
        s_lshl_b32 s51, s{S_SEG}, 18
        s_nop 2
        v_rcp_f32 v{SM}, v{LS}
        v_rcp_f32 v{SM+1}, v{LS+1}
        s_nop 1
        """)
        for i in range(0, 16, 2):
            a(f"v_pk_mul_f32 v[{O+i}:{O+i+1}], v[{O+i}:{O+i+1}], v[{SM}:{SM+1}]")
        for i in range(8):
            a(f"v_cvt_pk_bf16_f32 v{S+i}, v{O+2*i}, v{O+2*i+1}")
        a(f"""
        buffer_store_dwordx4 v[{S}:{S+3}], v{V_OO}, {SRD}, s51 offen sc1
        buffer_store_dwordx4 v[{S+4}:{S+7}], v{V_OO}, {SRD}, s51 offen offset:2048 sc1
        s_add_u32 s{S_SEG}, s{S_SEG}, 1
        """)
        a("\n".join(pst(6)))
        a(f"""
        s_cmp_gt_i32 s{S_KMN}, s{S_SEG}
        s_cbranch_scc1 {name}_nf{buf}
        s_waitcnt vmcnt(0)
        """)
        a("\n".join(flag_lines()))
        a.label(f"{name}_nf{buf}")
        a("\n".join(pst(7)))
    pinit(a)
    a.label(f"{name}_loop")
    seg(0)
    seg(1)
    a(f"s_cmp_lt_u32 s{S_SEG}, 64\ns_cbranch_scc1 {name}_loop")
    pdump(a)
    a.label(f"{name}_quit")
    ts(4)
    a("s_endpgm")


def out_role(a: Asm, name, ts):
    common(a, KA_WO, KA_OUT, 8 * MB)
    S_ON = 52
    V_OL, V_OF, V_LW, V_LR, V_OS = 6, 7, 8, 9, 10
    ACCO, RD, F0, NF = 20, 36, 64, 32
    a(f"""
    s_lshl_b32 s{S_T0}, s{S_WAVE}, 21
    s_lshl_b32 s{S_T1}, s{S_H}, 6
    s_add_u32 s{S_OB}, s{S_T0}, s{S_T1}
    """)
    a(f"s_and_b32 s56, s{S_H}, {E('ROT', 7)}\ns_lshl_b32 s56, s56, 7")
    load_weights(a, 11, S_OB, lane32(4), lambda k, jj: (128 * (k >> 3) + 32 * ((k >> 1) & 3) + 8 * (k & 1) + 16 * jj) * 64, rot=56)
    a("s_lshl_b32 s56, s56, 6")
    a(f"""
    s_lshl_b32 s{S_T0}, s{S_WAVE}, 16
    s_add_u32 s{S_T0}, s{S_T0}, {WS_O}
    v_add_u32 v{V_OL}, s{S_T0}, v{V_LL}
    v_and_b32 v{V_T0}, 31, v{V_L}
    v_lshlrev_b32 v{V_OF}, 2, v{V_T0}
    s_lshl_b32 s{S_T0}, s{S_WAVE}, 7
    s_add_u32 s{S_T0}, s{S_T0}, {WS_F + F_O}
    v_add_u32 v{V_OF}, s{S_T0}, v{V_OF}
    s_lshl_b32 s{S_T0}, s{S_WAVE}, 12
    v_add_u32 v{V_LW}, s{S_T0}, v{V_LL}
    v_bfe_u32 v{V_T0}, v{V_L}, 1, 2
    v_lshlrev_b32 v{V_LR}, 10, v{V_T0}
    v_and_b32 v{V_T0}, 1, v{V_L}
    v_lshl_add_u32 v{V_LR}, v{V_T0}, 9, v{V_LR}
    v_lshrrev_b32 v{V_T1}, 3, v{V_L}
    v_lshl_add_u32 v{V_LR}, v{V_T1}, 4, v{V_LR}
    s_lshl_b32 s{S_T0}, s{S_WAVE}, 7
    v_add_u32 v{V_LR}, s{S_T0}, v{V_LR}
    s_lshl_b32 s{S_T0}, s{S_WAVE}, 15
    s_lshl_b32 s{S_T1}, s{S_H}, 6
    s_add_u32 s{S_T0}, s{S_T0}, s{S_T1}
    v_lshlrev_b32 v{V_OS}, 12, v{V_T1}
    v_and_b32 v{V_T0}, 7, v{V_L}
    v_lshl_add_u32 v{V_OS}, v{V_T0}, 3, v{V_OS}
    v_add_u32 v{V_OS}, s{S_T0}, v{V_OS}
    s_mov_b32 s{S_SEG}, 0
    s_mov_b32 s{S_ON}, 0
    s_mov_b32 s53, 0
    """)

    def ld(k, sbase):
        f = F0 + 4 * (k % NF)
        if k % 4 == 0:
            a(f"s_add_u32 s51, s56, {1024 * k}\ns_and_b32 s51, s51, 0xffff\ns_add_u32 s51, s51, s{sbase}")
        a(f"buffer_load_dwordx4 v[{f}:{f+3}], v{V_OL}, {SRD}, s51 offen offset:{1024*(k & 3)} sc1")

    def mf(k):
        f = F0 + 4 * (k % NF)
        c = "0" if k == 0 else f"v[{ACCO}:{ACCO+15}]"
        a(f"v_mfma_f32_32x32x16_bf16 v[{ACCO}:{ACCO+15}], a[{4*k}:{4*k+3}], v[{f}:{f+3}], {c}")

    tsx(a, ts, 3)
    a.label(f"{name}_cold")
    a(f"s_cmp_gt_i32 s{S_ON}, s{S_SEG}\ns_cbranch_scc1 {name}_fk")
    a.label(f"{name}_fw")
    wdog(a, name)
    a(f"""
    buffer_load_dword v{V_T0}, v{V_OF}, {SRD}, 0 offen sc1
    s_waitcnt vmcnt(0)
    v_min_i32_dpp v{V_T0}, v{V_T0}, v{V_T0} quad_perm:[1,0,3,2] row_mask:0xf bank_mask:0xf
    s_nop 1
    v_min_i32_dpp v{V_T0}, v{V_T0}, v{V_T0} quad_perm:[2,3,0,1] row_mask:0xf bank_mask:0xf
    s_nop 1
    v_min_i32_dpp v{V_T0}, v{V_T0}, v{V_T0} row_ror:4 row_mask:0xf bank_mask:0xf
    s_nop 1
    v_min_i32_dpp v{V_T0}, v{V_T0}, v{V_T0} row_ror:8 row_mask:0xf bank_mask:0xf
    s_nop 0
    v_readlane_b32 s{S_ON}, v{V_T0}, 0
    v_readlane_b32 s{S_T0}, v{V_T0}, 16
    s_nop 1
    s_min_i32 s{S_ON}, s{S_ON}, s{S_T0}
    s_cmp_gt_i32 s{S_ON}, s{S_SEG}
    s_cbranch_scc1 {name}_fk
    s_sleep 2
    s_branch {name}_fw
    """)
    a.label(f"{name}_fk")
    a(f"s_lshl_b32 s50, s{S_SEG}, 18")
    for k in range(NF):
        ld(k, 50)
    a.label(f"{name}_warm")
    a(f"s_lshl_b32 s50, s{S_SEG}, 18")
    for k in range(NF):
        a(f"s_waitcnt vmcnt({NF-1})")
        mf(k)
        ld(k + NF, 50)
    a(f"""
    s_add_u32 s54, s{S_SEG}, 1
    s_cmp_gt_i32 s{S_ON}, s54
    s_cselect_b32 s55, 1, 0
    s_cbranch_scc1 {name}_pre
    """)
    for k in range(NF, 64):
        a(f"s_waitcnt vmcnt({63-k})")
        mf(k)
    a(f"s_branch {name}_epi")
    a.label(f"{name}_pre")
    a(f"s_lshl_b32 s50, s54, 18")
    for k in range(NF, 64):
        a(f"s_waitcnt vmcnt({NF-1})")
        mf(k)
        ld(k - NF, 50)
    a.label(f"{name}_epi")
    a(f"v_add_u32 v{V_T0}, s53, v{V_LW}\nv_add_u32 v{V_T1}, s53, v{V_LR}")
    a.nops(10)
    for q in range(4):
        a(f"ds_write_b128 v{V_T0}, v[{ACCO+4*q}:{ACCO+4*q+3}] offset:{1024*q}")
    a("s_waitcnt lgkmcnt(0)\ns_barrier")
    for w in range(4):
        a(f"ds_read_b128 v[{RD+4*w}:{RD+4*w+3}], v{V_T1} offset:{4096*w}")
    a(f"s_lshl_b32 s51, s{S_SEG}, 17\ns_xor_b32 s53, s53, 16384\ns_waitcnt lgkmcnt(0)")
    for i in (0, 2):
        a(f"v_pk_add_f32 v[{RD+i}:{RD+i+1}], v[{RD+i}:{RD+i+1}], v[{RD+4+i}:{RD+4+i+1}]")
        a(f"v_pk_add_f32 v[{RD+8+i}:{RD+8+i+1}], v[{RD+8+i}:{RD+8+i+1}], v[{RD+12+i}:{RD+12+i+1}]")
    for i in (0, 2):
        a(f"v_pk_add_f32 v[{RD+i}:{RD+i+1}], v[{RD+i}:{RD+i+1}], v[{RD+8+i}:{RD+8+i+1}]")
    a(f"""
    v_cvt_pk_bf16_f32 v{RD+16}, v{RD}, v{RD+1}
    v_cvt_pk_bf16_f32 v{RD+17}, v{RD+2}, v{RD+3}
    buffer_store_dwordx2 v[{RD+16}:{RD+17}], v{V_OS}, s[{S_XM}:{S_XM+3}], s51 offen
    s_add_u32 s{S_SEG}, s{S_SEG}, 1
    s_cmp_eq_u32 s{S_SEG}, 64
    s_cbranch_scc1 {name}_quit
    s_cmp_eq_u32 s55, 1
    s_cbranch_scc1 {name}_warm
    s_branch {name}_cold
    """)
    a.label(f"{name}_quit")
    ts(4)
    a("s_endpgm")
```

```python
import os
KNAME = "concat_heads__memory_aug_recurrent_mem_tr__spectral_gfnet__prompt"

MB = 1 << 20
WS_KX = 0
WS_VT = 32 * MB
WS_KVM = 68 * MB
WS_O = 128 * MB
WS_H = 144 * MB
WS_I = 66 * MB
WS_F = 67 * MB
WS_T1 = 92 * MB
WS_T2 = 104 * MB
WS_WT = 116 * MB
WS_PROF = 200 * MB
WS_BYTES = 256 * MB
F_K = 0
F_V = 4096
F_KVM = 16384
F_O = 32768
F_CNT = 36864

KA_AX, KA_MEM0, KA_WQ, KA_WK, KA_WV, KA_WO, KA_SEG, KA_BX, KA_WR, KA_WI, KA_OUT, KA_DBG, KA_WS = [8 * i for i in range(13)]


class Asm:
    def __init__(self):
        self.lines = []
        self.uid = 0

    def __call__(self, s):
        for l in s.strip("\n").split("\n"):
            if l.strip():
                self.lines.append("    " + l.strip())

    def label(self, name):
        self.lines.append(name + ":")

    def text(self):
        return "\n".join(self.lines) + "\n"

    def kernel_begin(self, name):
        self.lines.append(f".globl {name}")
        self.lines.append(".p2align 8")
        self.lines.append(f".type {name},@function")
        self.lines.append(f"{name}:")

    def nops(self, n):
        while n > 0:
            k = min(n, 16)
            self(f"s_nop {k-1}")
            n -= k


def kd(name, vgpr, sgpr=102, accum=None, ids="x"):
    if accum is None:
        accum = (vgpr + 3) // 4 * 4
    return f""".p2align 6
.amdhsa_kernel {name}
  .amdhsa_next_free_vgpr {vgpr}
  .amdhsa_next_free_sgpr {sgpr}
  .amdhsa_accum_offset {accum}
  .amdhsa_group_segment_fixed_size 0
  .amdhsa_kernarg_size 104
  .amdhsa_user_sgpr_count 2
  .amdhsa_user_sgpr_kernarg_segment_ptr 1
  .amdhsa_system_sgpr_workgroup_id_x 1
.end_amdhsa_kernel
"""


HEADER = open(os.path.join(os.path.dirname(os.path.abspath(__file__)), "..", KNAME + ".s.ref")).read().split("; Override launch geometry")[0]
```

```python
import math, struct
from gen_common import *


SCALE = 0.5 / (2048.0 * 1024.0)


def flit(x):
    return "0x%08x" % struct.unpack("<I", struct.pack("<f", x))[0]


class RegFFT:
    def __init__(self, a, re, im, temps):
        self.a, self.re, self.im, self.t = a, list(re), list(im), list(temps)

    def fft(self, sign):
        a = self.a
        n = len(self.re)
        re, im = self.re, self.im
        span = n // 2
        while span >= 1:
            for start in range(0, n, 2 * span):
                for j in range(span):
                    p, q = start + j, start + j + span
                    num, den = j, 2 * span
                    tr, ti = self.t[0], self.t[1]
                    if num == 0:
                        a(f"v_sub_f32 v{tr}, v{re[p]}, v{re[q]}")
                        a(f"v_sub_f32 v{ti}, v{im[p]}, v{im[q]}")
                        a(f"v_add_f32 v{re[p]}, v{re[p]}, v{re[q]}")
                        a(f"v_add_f32 v{im[p]}, v{im[p]}, v{im[q]}")
                        self.t[0], re[q] = re[q], tr
                        self.t[1], im[q] = im[q], ti
                    elif 4 * num == den:
                        if sign > 0:
                            a(f"v_sub_f32 v{tr}, v{im[q]}, v{im[p]}")
                            a(f"v_sub_f32 v{ti}, v{re[p]}, v{re[q]}")
                        else:
                            a(f"v_sub_f32 v{tr}, v{im[p]}, v{im[q]}")
                            a(f"v_sub_f32 v{ti}, v{re[q]}, v{re[p]}")
                        a(f"v_add_f32 v{re[p]}, v{re[p]}, v{re[q]}")
                        a(f"v_add_f32 v{im[p]}, v{im[p]}, v{im[q]}")
                        self.t[0], re[q] = re[q], tr
                        self.t[1], im[q] = im[q], ti
                    else:
                        c = math.cos(2 * math.pi * num / den)
                        s = sign * math.sin(2 * math.pi * num / den)
                        a(f"v_sub_f32 v{tr}, v{re[p]}, v{re[q]}")
                        a(f"v_sub_f32 v{ti}, v{im[p]}, v{im[q]}")
                        a(f"v_add_f32 v{re[p]}, v{re[p]}, v{re[q]}")
                        a(f"v_add_f32 v{im[p]}, v{im[p]}, v{im[q]}")
                        a(f"v_mul_f32 v{re[q]}, {flit(c)}, v{tr}")
                        a(f"v_mul_f32 v{im[q]}, {flit(s)}, v{tr}")
                        a(f"v_fmac_f32 v{re[q]}, {flit(-s)}, v{ti}")
                        a(f"v_fmac_f32 v{im[q]}, {flit(c)}, v{ti}")
            span //= 2
        bits = n.bit_length() - 1
        rev = [int(format(i, f"0{bits}b")[::-1], 2) for i in range(n)]
        self.re = [re[rev[i]] for i in range(n)]
        self.im = [im[rev[i]] for i in range(n)]

    def twiddle(self, vx, den, sign, scale_idx=1):
        a = self.a
        re, im = self.re, self.im
        tA, tC, tS, tR = self.t[0], self.t[1], self.t[2], self.t[3]
        for k in range(1, len(re)):
            a(f"v_mul_f32 v{tA}, {flit(sign * k / den)}, v{vx}")
            a(f"v_cos_f32 v{tC}, v{tA}")
            a(f"v_sin_f32 v{tS}, v{tA}")
            a("s_nop 0")
            a(f"v_mul_f32 v{tR}, v{re[k]}, v{tC}")
            a(f"v_fma_f32 v{tR}, -v{im[k]}, v{tS}, v{tR}")
            a(f"v_mul_f32 v{im[k]}, v{im[k]}, v{tC}")
            a(f"v_fmac_f32 v{im[k]}, v{re[k]}, v{tS}")
            self.t[3], re[k] = re[k], tR
            tR = self.t[3]


def srd(a, s, ptr_lo, nbytes):
    a(f"s_mov_b32 s{s+2}, {nbytes}")
    a(f"s_mov_b32 s{s+3}, 0x00020000")


def fft1024(a, F, v_tau_f, v_lw, v_lr, sign):
    F.fft(sign)
    F.twiddle(v_tau_f, 1024.0, sign)
    for k in range(32):
        a(f"ds_write_b32 v{v_lw}, v{F.re[k]} offset:{k*264}")
        a(f"ds_write_b32 v{v_lw}, v{F.im[k]} offset:{k*264+4}")
    a("s_waitcnt lgkmcnt(0)")
    for n in range(32):
        a(f"ds_read_b32 v{F.re[n]}, v{v_lr} offset:{n*8}")
        a(f"ds_read_b32 v{F.im[n]}, v{v_lr} offset:{n*8+4}")
        if n % 7 == 6:
            a("s_waitcnt lgkmcnt(0)")
    a("s_waitcnt lgkmcnt(0)")
    F.fft(sign)


def gen_f0(a: Asm, name, role=None, noend=False):
    SI = "s2" if role is None else f"s{role}"
    if role is None:
        a.kernel_begin(name)
        a(f"s_cmp_ge_u32 s2, 288\ns_cbranch_scc1 {name}_end")
    a(f"""
    s_load_dwordx2 s[4:5], s[0:1], {KA_WR}
    s_load_dwordx2 s[8:9], s[0:1], {KA_WI}
    s_load_dwordx2 s[12:13], s[0:1], {KA_WS}
    s_and_b32 s16, {SI}, 31       ; k0 tile
    s_lshr_b32 s17, {SI}, 5
    v_and_b32 v1, 63, v0
    v_lshrrev_b32 v2, 6, v0
    s_waitcnt lgkmcnt(0)
    s_mov_b32 s6, {2048*513*2}
    s_mov_b32 s7, 0x00020000
    s_mov_b32 s10, {2048*513*2}
    s_mov_b32 s11, 0x00020000
    s_add_u32 s12, s12, {WS_WT}
    s_addc_u32 s13, s13, 0
    s_mov_b32 s14, {513*8192}
    s_mov_b32 s15, 0x00020000
    s_lshl_b32 s18, s16, 6
    v_add_u32 v3, s18, v2
    s_movk_i32 s19, 1026
    v_mul_lo_u32 v3, v3, s19
    s_lshl_b32 s18, s17, 7
    v_add_u32 v3, s18, v3
    v_lshl_add_u32 v3, v1, 1, v3
    """)
    for i in range(16):
        a(f"s_mov_b32 s18, {4*1026*i}")
        a(f"buffer_load_ushort v{16+i}, v3, s[4:7], s18 offen")
        a(f"buffer_load_ushort v{32+i}, v3, s[8:11], s18 offen")
    a(f"""
    v_mul_u32_u24 v4, 65, v1
    v_add_u32 v4, v4, v2
    v_lshlrev_b32 v4, 2, v4
    s_waitcnt vmcnt(0)
    """)
    for i in range(16):
        a(f"v_lshl_or_b32 v{16+i}, v{32+i}, 16, v{16+i}")
        a(f"ds_write_b32 v4, v{16+i} offset:{16*i}")
    a(f"""
    v_lshrrev_b32 v7, 4, v0
    v_and_b32 v8, 15, v0
    v_mul_u32_u24 v5, 65, v7
    v_lshl_add_u32 v5, v8, 2, v5
    v_lshlrev_b32 v5, 2, v5
    s_waitcnt lgkmcnt(0)
    s_barrier
    """)
    for i in range(4):
        for r in range(4):
            a(f"ds_read_b32 v{16+4*i+r}, v5 offset:{16*65*4*i + 4*r}")
    a(f"""
    s_lshl_b32 s18, s17, 6
    v_add_u32 v6, s18, v7
    v_lshlrev_b32 v6, 13, v6
    s_lshl_b32 s18, s16, 8
    v_add_u32 v6, s18, v6
    v_lshl_add_u32 v6, v8, 4, v6
    s_waitcnt lgkmcnt(0)
    """)
    for i in range(4):
        a(f"s_mov_b32 s18, {16*8192*i}")
        a(f"buffer_store_dwordx4 v[{16+4*i}:{19+4*i}], v6, s[12:15], s18 offen{' sc1' if noend else ''}")
    if noend:
        return
    if role is not None:
        a("s_endpgm")
        return 288
    a.label(f"{name}_end")
    a("s_endpgm")
    return kd(name, 48, sgpr=24), 288, 64 * 65 * 4


def gen_f1(a: Asm, name, role=None):
    ST = "s2" if role is None else f"s{role}"
    SCX = "" if role is None else " sc1"
    if role is None:
        a.kernel_begin(name)
        a(f"s_cmp_ge_u32 s2, 128\ns_cbranch_scc1 {name}_end")
    else:
        a("s_barrier")
    V_TAU, V_F, V_TAUF, V_LW, V_LR, V_T0, V_T1, V_T2 = 1, 2, 3, 4, 5, 6, 7, 8
    RE = list(range(16, 48)); IM = list(range(48, 80)); TMP = list(range(80, 84))
    FB = 8448
    a(f"""
    s_load_dwordx2 s[4:5], s[0:1], {KA_BX}
    s_load_dwordx2 s[8:9], s[0:1], {KA_WS}
    v_and_b32 v{V_TAU}, 31, v0
    v_lshrrev_b32 v{V_F}, 5, v0
    v_cvt_f32_u32 v{V_TAUF}, v{V_TAU}
    s_waitcnt lgkmcnt(0)
    s_mov_b32 s6, {4*MB}
    s_mov_b32 s7, 0x00020000
    s_mov_b32 s10, {WS_BYTES}
    s_mov_b32 s11, 0x00020000
    s_lshl_b32 s12, {ST}, 15
    v_lshlrev_b32 v{V_T0}, 12, v{V_F}
    v_lshl_add_u32 v{V_T0}, v{V_TAU}, 1, v{V_T0}
    """)
    for i in range(32):
        a(f"buffer_load_ushort v{RE[i]}, v{V_T0}, s[4:7], s12 offen offset:{64*i}")
        a(f"buffer_load_ushort v{IM[i]}, v{V_T0}, s[4:7], s12 offen offset:{2048+64*i}")
    a(f"""
    s_movk_i32 s13, {FB}
    v_mul_lo_u32 v{V_T1}, v{V_F}, s13
    v_lshl_add_u32 v{V_LW}, v{V_TAU}, 3, v{V_T1}
    s_movk_i32 s13, 264
    v_mul_lo_u32 v{V_LR}, v{V_TAU}, s13
    v_add_u32 v{V_LR}, v{V_LR}, v{V_T1}
    s_waitcnt vmcnt(0)
    """)
    for i in range(32):
        a(f"v_lshlrev_b32 v{RE[i]}, 16, v{RE[i]}")
        a(f"v_lshlrev_b32 v{IM[i]}, 16, v{IM[i]}")
    F = RegFFT(a, RE, IM, TMP)
    fft1024(a, F, V_TAUF, V_LW, V_LR, -1)
    for i in range(32):
        a(f"ds_write_b32 v{V_LW}, v{F.re[i]} offset:{256*i}")
        a(f"ds_write_b32 v{V_LW}, v{F.im[i]} offset:{256*i+4}")
    a("s_waitcnt lgkmcnt(0)\ns_barrier")
    a(f"""
    v_and_b32 v{V_T0}, 7, v0
    v_lshrrev_b32 v{V_T1}, 3, v0
    s_movk_i32 s13, {FB}
    v_mul_lo_u32 v{V_T2}, v{V_T0}, s13          ; f*FB
    v_lshl_add_u32 v{V_LW}, v{V_T1}, 3, v{V_T2}
    ; global: T1 + k*16384 + (16b + 2f)*8
    v_lshlrev_b32 v{V_LR}, 14, v{V_T1}
    v_lshl_add_u32 v{V_LR}, v{V_T0}, 4, v{V_LR}
    s_lshl_b32 s12, {ST}, 7
    s_add_u32 s12, s12, {WS_T1}
    """)
    for it in range(17):
        a(f"""
        v_sub_u32 v{V_T0}, {1024 - 32*it}, v{V_T1}
        v_and_b32 v{V_T0}, 1023, v{V_T0}
        v_lshl_add_u32 v{V_T0}, v{V_T0}, 3, v{V_T2}
        ds_read_b64 v[16:17], v{V_LW} offset:{256*it}
        ds_read_b64 v[18:19], v{V_T0}
        s_waitcnt lgkmcnt(0)
        v_add_f32 v20, v16, v18      ; ar+br
        v_sub_f32 v21, v17, v19      ; ai-bi
        v_add_f32 v22, v17, v19      ; ai+bi
        v_sub_f32 v23, v18, v16      ; br-ar
        s_mov_b32 s13, s12
        """)
        if it == 16:
            a(f"v_cmp_eq_u32 vcc, 0, v{V_T1}")
            a("s_and_saveexec_b64 s[14:15], vcc")
        a(f"s_add_u32 s13, s12, {it * 32 * 16384}")
        a(f"buffer_store_dwordx4 v[20:23], v{V_LR}, s[8:11], s13 offen{SCX}")
        a.nops(2)
    if role is not None:
        a("s_mov_b64 exec, -1")
        return
    a.label(f"{name}_end")
    a("s_endpgm")
    return kd(name, 96, sgpr=24), 128, 8 * FB


def gen_f3(a: Asm, name, role=None):
    ST = "s2" if role is None else f"s{role}"
    if role is None:
        a.kernel_begin(name)
        a(f"s_cmp_ge_u32 s2, 128\ns_cbranch_scc1 {name}_end")
    else:
        a("s_barrier")
    V_TAU, V_F, V_TAUF, V_LW, V_LR, V_T0, V_T1, V_T2 = 1, 2, 3, 4, 5, 6, 7, 8
    RE = list(range(16, 48)); IM = list(range(48, 80)); TMP = list(range(80, 84))
    FB = 8448
    a(f"""
    s_load_dwordx2 s[4:5], s[0:1], {KA_OUT}
    s_load_dwordx2 s[8:9], s[0:1], {KA_WS}
    v_and_b32 v{V_T0}, 7, v0
    v_lshrrev_b32 v{V_T1}, 3, v0
    s_movk_i32 s13, {FB}
    v_mul_lo_u32 v{V_T2}, v{V_T0}, s13          ; f*FB
    v_lshl_add_u32 v{V_LW}, v{V_T1}, 3, v{V_T2}
    v_lshlrev_b32 v{V_LR}, 14, v{V_T1}
    v_lshl_add_u32 v{V_LR}, v{V_T0}, 4, v{V_LR}
    s_lshl_b32 s12, {ST}, 7
    s_add_u32 s12, s12, {WS_T2}
    s_waitcnt lgkmcnt(0)
    s_mov_b32 s6, {8*MB}
    s_mov_b32 s7, 0x00020000
    s_mov_b32 s10, {WS_BYTES}
    s_mov_b32 s11, 0x00020000
    """)
    for it in range(17):
        a(f"s_add_u32 s13, s12, {it * 32 * 16384}")
        a(f"buffer_load_dwordx4 v[{16+4*it}:{19+4*it}], v{V_LR}, s[8:11], s13 offen")
    a("s_waitcnt vmcnt(0)")
    a(f"v_cmp_eq_u32 vcc, 0, v{V_T1}")
    a.nops(2)
    a("v_mov_b32 v9, 0")
    for it in (0, 16):
        b = 16 + 4 * it
        a(f"v_cndmask_b32 v{b+1}, v{b+1}, v9, vcc")
        a(f"v_cndmask_b32 v{b+3}, v{b+3}, v9, vcc")
    for it in range(17):
        b = 16 + 4 * it
        if it == 16:
            a("s_and_saveexec_b64 s[14:15], vcc")
        a(f"""
        v_sub_u32 v{V_T0}, {1024 - 32*it}, v{V_T1}
        v_and_b32 v{V_T0}, 1023, v{V_T0}
        v_lshl_add_u32 v{V_T0}, v{V_T0}, 3, v{V_T2}
        v_sub_f32 v10, v{b}, v{b+3}
        v_add_f32 v11, v{b+1}, v{b+2}
        v_add_f32 v12, v{b}, v{b+3}
        v_sub_f32 v13, v{b+2}, v{b+1}
        ds_write_b64 v{V_LW}, v[10:11] offset:{256*it}
        ds_write_b64 v{V_T0}, v[12:13]
        """)
        if it == 16:
            a("s_mov_b64 exec, s[14:15]")
    a(f"""
    s_waitcnt lgkmcnt(0)
    s_barrier
    v_and_b32 v{V_TAU}, 31, v0
    v_lshrrev_b32 v{V_F}, 5, v0
    v_cvt_f32_u32 v{V_TAUF}, v{V_TAU}
    s_movk_i32 s13, {FB}
    v_mul_lo_u32 v{V_T1}, v{V_F}, s13
    v_lshl_add_u32 v{V_LW}, v{V_TAU}, 3, v{V_T1}
    s_movk_i32 s13, 264
    v_mul_lo_u32 v{V_LR}, v{V_TAU}, s13
    v_add_u32 v{V_LR}, v{V_LR}, v{V_T1}
    """)
    for i in range(32):
        a(f"ds_read_b32 v{RE[i]}, v{V_LW} offset:{256*i}")
        a(f"ds_read_b32 v{IM[i]}, v{V_LW} offset:{256*i+4}")
        if i % 7 == 6:
            a("s_waitcnt lgkmcnt(0)")
    a("s_waitcnt lgkmcnt(0)")
    F = RegFFT(a, RE, IM, TMP)
    fft1024(a, F, V_TAUF, V_LW, V_LR, +1)
    a(f"v_lshl_add_u32 v{V_T0}, v{V_TAU}, 2, v{V_T1}")
    for i in range(32):
        a(f"ds_write_b32 v{V_T0}, v{F.re[i]} offset:{128*i}")
        a(f"ds_write_b32 v{V_T0}, v{F.im[i]} offset:{4096+128*i}")
    a("s_waitcnt lgkmcnt(0)\ns_barrier")
    a(f"""
    v_and_b32 v{V_T0}, 127, v0
    v_lshrrev_b32 v{V_T1}, 7, v0
    v_lshlrev_b32 v{V_T2}, 5, v{V_T0}            ; c*32 B (lds)
    v_lshl_add_u32 v{V_T2}, v{V_T1}, 12, v{V_T2}  ; + ab*4096
    v_lshlrev_b32 v{V_LR}, 4, v{V_T0}
    v_lshl_add_u32 v{V_LR}, v{V_T1}, 12, v{V_LR}
    v_add_u32 v{V_LR}, 2048, v{V_LR}
    s_lshl_b32 s12, {ST}, 16
    """)
    for j in range(8):
        a(f"""
        ds_read_b128 v[16:19], v{V_T2} offset:{FB*j}
        ds_read_b128 v[20:23], v{V_T2} offset:{FB*j+16}
        s_waitcnt lgkmcnt(0)
        v_cvt_pk_bf16_f32 v24, v16, v17
        v_cvt_pk_bf16_f32 v25, v18, v19
        v_cvt_pk_bf16_f32 v26, v20, v21
        v_cvt_pk_bf16_f32 v27, v22, v23
        s_add_u32 s13, s12, {8192*j}
        buffer_store_dwordx4 v[24:27], v{V_LR}, s[4:7], s13 offen
        s_nop 1
        """)
    if role is not None:
        return
    a.label(f"{name}_end")
    a("s_endpgm")
    return kd(name, 96, sgpr=24), 128, 8 * FB


def gen_f2(a: Asm, name, role=None):
    ST = "s2" if role is None else f"s{role}"
    SCX = "" if role is None else " sc1"
    if role is None:
        a.kernel_begin(name)
    else:
        a("s_barrier")
    V_L, V_LF, V_LW, V_LR, V_T0, V_T1, V_B, V_K1F, V_SG, V_BF = 1, 2, 3, 4, 5, 6, 7, 8, 9, 10
    RE = [16 + 2 * i for i in range(32)]; IM = [17 + 2 * i for i in range(32)]; TMP = list(range(80, 88))
    WB = 32 * 66 * 8
    a(f"""
    s_load_dwordx2 s[8:9], s[0:1], {KA_WS}
    v_lshrrev_b32 v{V_T0}, 6, v0
    v_and_b32 v{V_L}, 63, v0
    v_readfirstlane_b32 s12, v{V_T0}
    s_lshl_b32 s13, {ST}, 2
    s_add_u32 s13, s13, s12          ; column
    s_cmp_ge_u32 s13, 513
    s_cbranch_scc1 {name}_end
    v_cvt_f32_u32 v{V_LF}, v{V_L}
    s_waitcnt lgkmcnt(0)
    s_mov_b32 s10, {WS_BYTES}
    s_mov_b32 s11, 0x00020000
    s_lshl_b32 s14, s13, 14          ; col*16384
    s_add_u32 s15, s14, {WS_T1}
    v_lshlrev_b32 v{V_T0}, 3, v{V_L}
    """)
    for i in range(32):
        a(f"s_add_u32 s16, s15, {512*i}")
        a(f"buffer_load_dwordx2 v[{RE[i]}:{IM[i]}], v{V_T0}, s[8:11], s16 offen")
    a(f"""
    s_mul_i32 s17, s12, {WB}
    v_lshlrev_b32 v{V_LW}, 3, v{V_L}
    v_add_u32 v{V_LW}, s17, v{V_LW}
    v_and_b32 v{V_B}, 1, v{V_L}
    v_lshrrev_b32 v{V_T1}, 1, v{V_L}          ; k1
    v_cvt_f32_u32 v{V_K1F}, v{V_T1}
    v_cvt_f32_u32 v{V_BF}, v{V_B}
    s_movk_i32 s18, 528
    v_mul_lo_u32 v{V_LR}, v{V_T1}, s18
    v_lshl_add_u32 v{V_LR}, v{V_B}, 3, v{V_LR}
    v_add_u32 v{V_LR}, s17, v{V_LR}
    ; sign = 1 - 2b
    v_mov_b32 v{V_SG}, 1.0
    v_fma_f32 v{V_SG}, v{V_BF}, -2.0, v{V_SG}
    ; W offset: b*4096 + k1*4 (+128 k2')
    v_lshlrev_b32 v{V_T0}, 12, v{V_B}
    v_lshl_add_u32 v11, v{V_T1}, 2, v{V_T0}
    s_lshl_b32 s19, s13, 13
    s_add_u32 s19, s19, {WS_WT}
    s_waitcnt vmcnt(0)
    """)
    F = RegFFT(a, RE, IM, TMP)
    F.fft(-1)
    F.twiddle(V_LF, 2048.0, -1)
    for k in range(32):
        a(f"ds_write_b32 v{V_LW}, v{F.re[k]} offset:{k*528}")
        a(f"ds_write_b32 v{V_LW}, v{F.im[k]} offset:{k*528+4}")
    a("s_waitcnt lgkmcnt(0)")
    for m in range(32):
        a(f"ds_read_b32 v{F.re[m]}, v{V_LR} offset:{m*16}")
        a(f"ds_read_b32 v{F.im[m]}, v{V_LR} offset:{m*16+4}")
        if m % 7 == 6:
            a("s_waitcnt lgkmcnt(0)")
    a("s_waitcnt lgkmcnt(0)")
    WR = 88
    for k in range(32):
        a(f"buffer_load_dword v{WR+k}, v11, s[8:11], s19 offen offset:{128*k}")
    F.fft(-1)
    F.twiddle(V_BF, 64.0, -1)
    tA = F.t[0]

    def cross():
        for k in range(32):
            for arr in (F.re, F.im):
                a(f"v_mov_b32_dpp v{F.t[0]}, v{arr[k]} quad_perm:[1,0,3,2] row_mask:0xf bank_mask:0xf")
                a(f"v_fma_f32 v{arr[k]}, v{arr[k]}, v{V_SG}, v{F.t[0]}")
    a.nops(2)
    cross()
    a("s_waitcnt vmcnt(0)")
    a(f"s_mov_b32 s20, {flit(SCALE)}")
    for k in range(32):
        t0, t1, t2 = F.t[0], F.t[1], F.t[2]
        a(f"v_lshlrev_b32 v{t0}, 16, v{WR+k}")
        a(f"v_and_b32 v{t1}, 0xffff0000, v{WR+k}")
        a(f"v_mul_f32 v{t0}, s20, v{t0}")
        a(f"v_mul_f32 v{t1}, s20, v{t1}")
        a(f"v_mul_f32 v{t2}, v{F.re[k]}, v{t0}")
        a(f"v_fma_f32 v{t2}, -v{F.im[k]}, v{t1}, v{t2}")
        a(f"v_mul_f32 v{F.im[k]}, v{F.im[k]}, v{t0}")
        a(f"v_fmac_f32 v{F.im[k]}, v{F.re[k]}, v{t1}")
        F.t[2], F.re[k] = F.re[k], t2
    a.nops(2)
    cross()
    F.twiddle(V_BF, 64.0, +1)
    F.fft(+1)
    F.twiddle_n2 = None
    a(f"v_mul_f32 v12, v{V_BF}, v{V_K1F}")
    a(f"v_mul_f32 v12, {flit(1.0/2048.0)}, v12")
    tA, tC, tS, tR = F.t[0], F.t[1], F.t[2], F.t[3]
    for m in range(32):
        a(f"v_mov_b32 v{tA}, v12")
        a(f"v_fmac_f32 v{tA}, {flit(2.0*m/2048.0)}, v{V_K1F}")
        a(f"v_cos_f32 v{tC}, v{tA}")
        a(f"v_sin_f32 v{tS}, v{tA}")
        a("s_nop 0")
        a(f"v_mul_f32 v{tR}, v{F.re[m]}, v{tC}")
        a(f"v_fma_f32 v{tR}, -v{F.im[m]}, v{tS}, v{tR}")
        a(f"v_mul_f32 v{F.im[m]}, v{F.im[m]}, v{tC}")
        a(f"v_fmac_f32 v{F.im[m]}, v{F.re[m]}, v{tS}")
        F.t[3], F.re[m] = F.re[m], tR
        tR = F.t[3]
    for m in range(32):
        a(f"ds_write_b32 v{V_LR}, v{F.re[m]} offset:{m*16}")
        a(f"ds_write_b32 v{V_LR}, v{F.im[m]} offset:{m*16+4}")
    a("s_waitcnt lgkmcnt(0)")
    for k in range(32):
        a(f"ds_read_b32 v{F.re[k]}, v{V_LW} offset:{k*528}")
        a(f"ds_read_b32 v{F.im[k]}, v{V_LW} offset:{k*528+4}")
        if k % 7 == 6:
            a("s_waitcnt lgkmcnt(0)")
    a("s_waitcnt lgkmcnt(0)")
    F.fft(+1)
    a(f"s_add_u32 s15, s14, {WS_T2}")
    a(f"v_lshlrev_b32 v{V_T0}, 3, v{V_L}")
    for i in range(32):
        a(f"s_add_u32 s16, s15, {512*i}")
        pr = 88 + 2 * (i % 8)
        a(f"v_mov_b32 v{pr}, v{F.re[i]}")
        a(f"v_mov_b32 v{pr+1}, v{F.im[i]}")
        a(f"buffer_store_dwordx2 v[{pr}:{pr+1}], v{V_T0}, s[8:11], s16 offen{SCX}")
    a.label(f"{name}_end")
    if role is not None:
        return
    a("s_endpgm")
    return kd(name, 120, sgpr=24), 129, 4 * WB
```

```python
from gen_common import *

S_X, S_T = 30, 31
S_WSD, S_DBG = 84, 72
DBG_TOTAL, DBG_PAR, DBG_XP = 128, 192, 224
E = lambda k, d: int(os.environ.get(k, d))


def start_code(a: Asm, name, force_slow=False):
    W, D = S_WSD, S_DBG
    NCH = (2 * MB + MB + 65536) // 4096
    a(f"""
    s_load_dwordx2 s[{W}:{W+1}], s[0:1], {KA_WS}
    s_load_dwordx2 s[{D}:{D+1}], s[0:1], {KA_DBG}
    s_getreg_b32 s90, hwreg(HW_REG_XCC_ID)
    s_and_b32 s90, s90, 7
    v_lshlrev_b32 v1, 4, v0
    v_mov_b32 v8, -1
    v_mov_b32 v9, -1
    v_mov_b32 v10, -1
    v_mov_b32 v11, -1
    s_lshl_b32 s91, s2, 12
    s_add_u32 s91, s91, {WS_I}
    s_waitcnt lgkmcnt(0)
    s_mov_b32 s{W+2}, {WS_BYTES}
    s_mov_b32 s{W+3}, 0x00020000
    s_mov_b32 s{D+2}, 256
    s_mov_b32 s{D+3}, 0x00020000
    """)
    a(f"""
    v_lshrrev_b32 v2, 6, v0
    s_nop 0
    v_readfirstlane_b32 s92, v2
    s_lshl_b32 s93, s2, 2
    s_add_u32 s93, s93, s92
    s_cmp_eq_u32 s93, 1
    s_cbranch_scc0 {name}_nocal
    v_mov_b32 v2, 0
    s_mov_b32 s94, {WS_H}
    buffer_load_dword v3, v2, s[{W}:{W+3}], s94 offen offset:2048 sc1
    s_waitcnt vmcnt(0)
    s_mov_b32 s60, 0x7fffffff
    s_mov_b32 s61, 0x7fffffff
    """)
    for i in range(8):
        p = i & 1
        a(f"""
        s_mov_b32 s94, {WS_H + (i >> 1) * 16384 + p * 8192 + (i >> 1) * 1024}
        s_memtime s[62:63]
        s_waitcnt lgkmcnt(0)
        buffer_load_dword v3, v2, s[{W}:{W+3}], s94 offen sc1
        s_waitcnt vmcnt(0)
        s_memtime s[64:65]
        s_waitcnt lgkmcnt(0)
        s_sub_u32 s64, s64, s62
        s_min_u32 s{60+p}, s{60+p}, s64
        """)
    a(f"""
    s_cmp_lt_u32 s61, s60
    s_cselect_b32 s60, 1, 0          ; parity that is near this XCD
    s_lshr_b32 s61, s90, 2
    s_xor_b32 s60, s60, s61          ; parity near XCDs 0..3
    s_add_u32 s60, s60, 1
    v_mov_b32 v3, s60
    buffer_store_dword v3, v2, s[{D}:{D+3}], 0 offen offset:{DBG_PAR} sc1
{name}_nocal:
    """)
    a(f"buffer_store_dwordx4 v[8:11], v1, s[{W}:{W+3}], s91 offen sc1")
    a(f"s_add_u32 s91, s91, {MB}")
    a(f"""
    s_cmp_lt_u32 s2, 16
    s_cbranch_scc0 {name}_pz
    buffer_store_dwordx4 v[8:11], v1, s[{W}:{W+3}], s91 offen sc1
{name}_pz:
    s_waitcnt vmcnt(0)
    s_barrier
    v_mov_b32 v1, 0
    v_mov_b32 v2, 1
    v_mov_b32 v3, 1
    s_lshl_b32 s91, s90, 4
    v_cmp_eq_u32 vcc, 0, v0
    s_and_saveexec_b64 s[88:89], vcc
    s_cbranch_execz {name}_tkd
    buffer_atomic_add v2, v1, s[{D}:{D+3}], s91 offen sc0
    s_waitcnt vmcnt(0)
    buffer_atomic_add v3, v1, s[{D}:{D+3}], 0 offen offset:{DBG_TOTAL} sc0
    s_waitcnt vmcnt(0)
    ds_write_b64 v1, v[2:3]
    s_waitcnt lgkmcnt(0)
{name}_tkw:
    buffer_load_dword v4, v1, s[{D}:{D+3}], 0 offen offset:{DBG_TOTAL} sc1
    s_waitcnt vmcnt(0)
    v_cmp_ne_u32 vcc, 256, v4
    s_cbranch_vccnz {name}_tkw
{name}_tkd:
    s_mov_b64 exec, s[88:89]
    s_barrier
    ds_read_b64 v[2:3], v1
    v_and_b32 v4, 7, v0
    v_lshlrev_b32 v4, 4, v4
    buffer_load_dword v5, v4, s[{D}:{D+3}], 0 offen sc1
    buffer_load_dword v6, v1, s[{D}:{D+3}], 0 offen offset:{DBG_PAR} sc1
    s_waitcnt vmcnt(0) lgkmcnt(0)
    v_readfirstlane_b32 s96, v2
    v_readfirstlane_b32 s97, v3
    v_readfirstlane_b32 s98, v6
    v_cmp_ne_u32 vcc, 32, v5
    s_nop 3
    s_cmp_eq_u64 vcc, 0
    s_cselect_b32 s95, 1, 0
    s_sub_u32 s98, s98, 1
    s_and_b32 s98, s98, 1            ; near parity
    s_barrier
    """)
    if force_slow:
        a("s_mov_b32 s95, 0")
    if "PAR" in os.environ:
        a(f"s_xor_b32 s98, s98, {os.environ['PAR']}")


NXP = 64


def xp_poison(a: Asm, name, idx):
    W, D = S_WSD, S_DBG
    a(f"""
    v_mov_b32 v8, -1
    v_mov_b32 v9, -1
    v_mov_b32 v10, -1
    v_mov_b32 v11, -1
    v_lshlrev_b32 v1, 4, v0
    v_add_u32 v2, 4096, v1
    s_lshr_b32 s60, s{idx}, 3
    s_xor_b32 s60, s60, s98
    s_and_b32 s60, s60, 1
    s_lshl_b32 s60, s60, 13
    s_lshl_b32 s61, s{idx}, 18
    s_add_u32 s60, s60, s61
    s_add_u32 s60, s60, {WS_H}
    """)
    for i in range(16):
        a(f"buffer_store_dwordx4 v[8:11], v1, s[{W}:{W+3}], s60 offen sc1")
        a(f"buffer_store_dwordx4 v[8:11], v2, s[{W}:{W+3}], s60 offen sc1")
        a(f"s_add_u32 s60, s60, 16384")
    a(f"""
    s_waitcnt vmcnt(0)
    s_barrier
    v_mov_b32 v1, 0
    v_mov_b32 v2, 1
    v_cmp_eq_u32 vcc, 0, v0
    s_and_saveexec_b64 s[60:61], vcc
    s_cbranch_execz {name}_xps
    buffer_atomic_add v2, v1, s[{D}:{D+3}], 0 offen offset:{DBG_XP} sc1
{name}_xps:
    s_mov_b64 exec, s[60:61]
    """)


def rec_body(a: Asm, name, IS, nsteps=64, prof=False, flags=True, ts=None):
    W = S_WSD
    SRD = f"s[{W}:{W+3}]"
    S_WQ, S_WK, S_WV, S_WO, S_M0 = 4, 8, 12, 16, 20
    S_WAVE, S_H, S_J, S_STEP, S_T0, S_T1 = 24, 25, 26, 27, 28, 29
    S_C = 32
    S_SL, S_SLO = 33, 34
    S_XS, S_XSO = 35, 36
    S_P = 37
    S_MN8, S_MMEM = 40, 42
    S_XBR, S_XBW = 44, 45
    S_KVN = 46
    S_KVB, S_FLB, S_CU, S_KXB, S_TAG = 79, 81, 82, 83, 47
    ONE, LS, ZER = 220, 224, 228
    S_MKM = 48
    V_L, V_G, V_M, V_T0, V_T1, V_IDX = 1, 2, 3, 4, 5, 6
    V_OMEM, V_OM0, V_OPUB, V_OSCM, V_OOP, V_OXW, V_OXR = 7, 8, 9, 10, 11, 12, 13
    V_LWQ, V_LWK, V_LRR, V_LL, V_LWO, V_LRO, V_LVW, V_LVR, V_OKV, V_NEG, V_OFL = 14, 15, 16, 17, 18, 19, 20, 21, 22, 23, 24
    V_POI = 28
    MA, AQ, AV = 32, 96, 112
    RP, R, KX, VTX, S, PL = 120, 152, 156, 164, 172, 184
    VM, P, PM, O, TMP = 208, 212, 216, 120, 232
    MO, AO, KVH = 32, 96, 244
    A_W1, A_WO = 0, 192
    L_QK, L_VP, L_OP, L_VM, L_XB, L_ST = 0, 9216, 13312, 17920, 18432, 32768

    def wdog():
        if E("WD", 0):
            a(f"s_add_u32 s99, s99, 1\ns_cmp_gt_u32 s99, 300000\ns_cbranch_scc1 {name}_end")
    if E("WD", 0): a("s_mov_b32 s99, 0")

    def stamp(i):
        if E("TR", 0):
            if i == 0: return
            if i < 11: a(f"s_memtime s[{48+2*i}:{49+2*i}]")
            if i == 11:
                a("s_memrealtime s[70:71]\ns_memtime s[100:101]\ns_waitcnt lgkmcnt(0)\nv_writelane_b32 v250, s100, 12")
                for k in range(1, 12):
                    a(f"v_writelane_b32 v250, s{48+2*k}, {k}")
                a(f"v_writelane_b32 v250, s99, 0")
                a(f"""
                s_lshl_b32 s80, s{S_X}, 5
                s_add_u32 s80, s80, s{S_T}
                s_lshl_b32 s80, s80, 2
                s_add_u32 s80, s80, s{S_WAVE}
                s_lshl_b32 s80, s80, 6
                s_add_u32 s80, s80, s{S_STEP}
                s_lshl_b32 s80, s80, 6
                s_add_u32 s80, s80, {WS_PROF}
                v_lshlrev_b32 v251, 2, v{V_L}
                s_mov_b64 exec, 0xffff
                buffer_store_dword v250, v251, {SRD}, s80 offen
                s_mov_b64 exec, -1
                """)
            return
        if not prof or i == 11:
            return
        a("s_memtime s[66:67]")
        a("s_waitcnt lgkmcnt(0)")
        a("s_sub_u32 s68, s66, s69")
        a(f"s_add_u32 s{50+i}, s{50+i}, s68")
        a("s_mov_b32 s69, s66")

    if prof:
        for i in range(16):
            a(f"s_mov_b32 s{50+i}, 0")
        a("s_memtime s[66:67]\ns_waitcnt lgkmcnt(0)\ns_mov_b32 s69, s66")
    if ts: ts(1)
    a(f"""
    s_load_dwordx2 s[{S_M0}:{S_M0+1}], s[0:1], {KA_MEM0}
    s_load_dwordx2 s[{S_WO}:{S_WO+1}], s[0:1], {KA_WO}
    s_load_dwordx2 s[{S_WQ}:{S_WQ+1}], s[0:1], {KA_WQ}
    s_load_dwordx2 s[{S_WK}:{S_WK+1}], s[0:1], {KA_WK}
    s_load_dwordx2 s[{S_WV}:{S_WV+1}], s[0:1], {KA_WV}
    v_lshrrev_b32 v{V_T0}, 6, v0
    v_and_b32 v{V_L}, 63, v0
    v_readfirstlane_b32 s{S_WAVE}, v{V_T0}
    v_lshrrev_b32 v{V_G}, 4, v{V_L}
    v_and_b32 v{V_M}, 15, v{V_L}
    v_lshlrev_b32 v{V_LL}, 4, v{V_L}
    s_lshr_b32 s{S_T0}, s{S_T}, 2
    s_lshl_b32 s{S_H}, s{S_X}, 3
    s_add_u32 s{S_H}, s{S_H}, s{S_T0}
    s_and_b32 s{S_J}, s{S_T}, 3
    s_waitcnt lgkmcnt(0)
    s_mov_b32 s{S_M0+2}, 16384
    s_mov_b32 s{S_M0+3}, 0x00020000
    """)
    for s in (S_WO, S_WQ, S_WK, S_WV):
        a(f"s_mov_b32 s{s+2}, {8*MB}\ns_mov_b32 s{s+3}, 0x00020000")
    a(f"""
    s_lshl_b32 s{S_T0}, s{S_H}, 8
    s_lshl_b32 s{S_T1}, s{S_J}, 6
    s_add_u32 s{S_T0}, s{S_T0}, s{S_T1}
    s_lshl_b32 s{S_T1}, s{S_WAVE}, 21
    s_add_u32 s{S_T0}, s{S_T0}, s{S_T1}
    v_lshrrev_b32 v{V_T0}, 2, v{V_L}
    v_and_b32 v{V_T1}, 3, v{V_L}
    v_lshlrev_b32 v40, 13, v{V_T0}
    v_lshl_add_u32 v40, v{V_T1}, 4, v40
    v_add_u32 v40, s{S_T0}, v40
    s_lshl_b32 s{S_T0}, s{S_X}, 21
    s_lshl_b32 s{S_T1}, s{S_WAVE}, 19
    s_add_u32 s{S_T0}, s{S_T0}, s{S_T1}
    s_lshl_b32 s{S_T1}, s{S_T}, 6
    s_add_u32 s{S_T0}, s{S_T0}, s{S_T1}
    v_lshlrev_b32 v41, 11, v{V_T0}
    v_lshl_add_u32 v41, v{V_T1}, 4, v41
    v_add_u32 v41, s{S_T0}, v41
    s_lshl_b32 s47, s{S_WAVE}, 15
    s_add_u32 s47, s47, {L_ST}
    """)

    def wdma(c, half):
        srd = (S_WQ, S_WK, S_WV, S_WO)[c]
        for r in range(16):
            a(f"s_add_u32 m0, s47, {half*16384 + 1024*r}")
            a(f"s_mov_b32 s{S_T1}, {16 * r * (8192 if c < 3 else 2048)}")
            a(f"buffer_load_dwordx4 v{40 if c < 3 else 41}, s[{srd}:{srd+3}], s{S_T1} offen lds")
    wdma(0, 0)
    wdma(1, 1)
    a(f"""
    s_mov_b32 s{S_MN8}, 0x00ff00ff
    s_mov_b32 s{S_MN8+1}, 0x00ff00ff
    s_mov_b32 s{S_MKM}, 0xff00ff00
    s_mov_b32 s{S_MKM+1}, 0xff00ff00
    s_mov_b32 s{S_MMEM}, 0
    s_mov_b32 s{S_MMEM+1}, 0x00ff00ff
    s_mov_b32 s{S_C}, 0x3e0293ee
    v_mov_b32 v{V_NEG}, 0xff7fffff
    v_mov_b32 v{V_IDX}, 0x4444
    v_mov_b32 v{V_T0}, 0xeeee
    v_cndmask_b32 v{V_IDX}, v{V_IDX}, v{V_T0}, s[{S_MKM}:{S_MKM+1}]
    v_mov_b32 v{V_POI}, -1
    v_mov_b32 v{V_POI+1}, -1
    v_mov_b32 v{V_POI+2}, -1
    v_mov_b32 v{V_POI+3}, -1
    s_lshl_b32 s{S_T0}, s{S_WAVE}, 12
    v_add_u32 v{V_OMEM}, s{S_T0}, v{V_LL}
    v_and_b32 v{V_T0}, 7, v{V_L}
    v_lshlrev_b32 v{V_OM0}, 11, v{V_T0}
    v_lshrrev_b32 v{V_T1}, 3, v{V_L}
    v_lshl_add_u32 v{V_OM0}, v{V_T1}, 4, v{V_OM0}
    s_lshl_b32 s{S_T0}, s{S_WAVE}, 9
    v_add_u32 v{V_OM0}, s{S_T0}, v{V_OM0}
    s_lshl_b32 s{S_T0}, s{S_T}, 9
    v_lshlrev_b32 v{V_OPUB}, 3, v{V_L}
    v_add_u32 v{V_OPUB}, s{S_T0}, v{V_OPUB}
    ; o publish: 16384 + t*512 + g*128 + (m&7)*16
    v_and_b32 v{V_T0}, 7, v{V_M}
    v_lshlrev_b32 v{V_OOP}, 7, v{V_G}
    v_lshl_add_u32 v{V_OOP}, v{V_T0}, 4, v{V_OOP}
    v_add_u32 v{V_OKV}, 0, v{V_OOP}              ; g*128 + (m&7)*16 (k_m publish)
    s_add_u32 s{S_T0}, s{S_T0}, 16384
    v_add_u32 v{V_OOP}, s{S_T0}, v{V_OOP}
    v_and_b32 v{V_T1}, 1, v{V_G}
    v_lshlrev_b32 v{V_OSCM}, 7, v{V_T1}
    v_lshl_add_u32 v{V_OSCM}, v{V_T0}, 4, v{V_OSCM}
    v_add_u32 v{V_OSCM}, 1024, v{V_OSCM}
    ; partner score offsets: 32768 + (t ^ p)*2048, own in S_P+3 (s47 later); kept relative to slot base
    """)
    for p in range(1, 4):
        a(f"""
        s_xor_b32 s{S_P+p-1}, s{S_T}, {p}
        s_lshl_b32 s{S_P+p-1}, s{S_P+p-1}, 11
        s_add_u32 s{S_P+p-1}, s{S_P+p-1}, 32768
        """)
    a(f"""
    ; cross exchange: WS_H + t*512K + ((par ^ (t>>2))&1)*8K + src*1K  (+ step offset)
    s_lshr_b32 s{S_T0}, s{S_T}, 2
    s_xor_b32 s{S_T0}, s{S_T0}, s98
    s_and_b32 s{S_T0}, s{S_T0}, 1
    s_lshl_b32 s{S_T0}, s{S_T0}, 13
    s_lshl_b32 s{S_T1}, s{S_T}, 19
    s_add_u32 s{S_T0}, s{S_T0}, s{S_T1}
    s_lshl_b32 s{S_T1}, s{S_X}, 10
    s_add_u32 s{S_T0}, s{S_T0}, s{S_T1}
    s_add_u32 s{S_T0}, s{S_T0}, {WS_H}
    v_add_u32 v{V_OXW}, s{S_T0}, v{V_LL}
    v_xor_b32 v25, 1024, v{V_OXW}
    v_xor_b32 v26, 2048, v{V_OXW}
    v_xor_b32 v27, 3072, v{V_OXW}
    ; LDS: q/k partial write: w*2304 + (4*(g&1))*144 + ((g>>1)*16 + m)*4
    v_and_b32 v{V_T0}, 1, v{V_G}
    v_mul_u32_u24 v{V_LWQ}, 576, v{V_T0}
    v_lshrrev_b32 v{V_T1}, 1, v{V_G}
    v_lshl_add_u32 v{V_T1}, v{V_T1}, 4, v{V_M}
    v_lshl_add_u32 v{V_LWQ}, v{V_T1}, 2, v{V_LWQ}
    s_mul_i32 s{S_T0}, s{S_WAVE}, 1152
    s_add_u32 s{S_T0}, s{S_T0}, {L_OP}
    v_add_u32 v{V_LWO}, s{S_T0}, v{V_LWQ}
    s_mul_i32 s{S_T0}, s{S_WAVE}, 2304
    v_add_u32 v{V_LWQ}, s{S_T0}, v{V_LWQ}
    v_add_u32 v{V_LWK}, 1152, v{V_LWQ}
    ; R read: m*144 + g*32
    v_mul_u32_u24 v{V_LRR}, 144, v{V_M}
    v_lshl_add_u32 v{V_LRR}, v{V_G}, 5, v{V_LRR}
    ; O partial read: L_OP + ((l>>1)&7)*144 + (2*(l>>4) + (l&1))*16
    v_bfe_u32 v{V_T0}, v{V_L}, 1, 3
    v_mul_u32_u24 v{V_LRO}, 144, v{V_T0}
    v_lshl_add_u32 v{V_LRO}, v{V_G}, 5, v{V_LRO}
    v_and_b32 v{V_T0}, 1, v{V_L}
    v_lshl_add_u32 v{V_LRO}, v{V_T0}, 4, v{V_LRO}
    v_add_u32 v{V_LRO}, {L_OP}, v{V_LRO}
    ; v partial write: L_VP + w*1024 + lane*16 ; read (tile u at +512u): L_VP + (l&31)*16
    s_lshl_b32 s{S_T0}, s{S_WAVE}, 10
    s_add_u32 s{S_T0}, s{S_T0}, {L_VP}
    v_add_u32 v{V_LVW}, s{S_T0}, v{V_LL}
    v_and_b32 v{V_T0}, 31, v{V_L}
    v_lshlrev_b32 v{V_LVR}, 3, v{V_T0}
    v_add_u32 v{V_LVR}, {L_VM}, v{V_LVR}
    v_lshrrev_b32 v{V_T0}, 2, v{V_M}             ; r
    v_and_b32 v42, 1, v{V_T0}                    ; r&1
    v_lshrrev_b32 v43, 1, v{V_T0}                ; r>>1
    v_lshrrev_b32 v44, 1, v{V_G}                 ; g>>1
    v_and_b32 v45, 1, v{V_G}                     ; g&1
    v_lshl_add_u32 v46, v44, 4, v42
    v_lshl_add_u32 v46, v45, 2, v46
    v_lshl_add_u32 v46, v43, 3, v46              ; W1 row
    v_lshl_add_u32 v47, v44, 3, v42
    v_lshl_add_u32 v47, v45, 4, v47
    v_lshl_add_u32 v47, v43, 2, v47
    v_and_b32 v{V_T1}, 3, v{V_M}
    v_lshlrev_b32 v{V_T1}, 3, v{V_T1}
    v_lshl_add_u32 v46, v46, 6, v{V_T1}
    v_lshl_add_u32 v47, v47, 6, v{V_T1}
    v_add_u32 v46, s47, v46
    v_add_u32 v47, s47, v47
    """)

    def wtr(c, half):
        for u in range(2):
            for k in range(4):
                d = (A_W1 + ((c * 2 + u) * 4 + k) * 8) if c < 3 else (A_WO + (u * 4 + k) * 8)
                for Pp in range(4):
                    off = half * 16384 + (64 * k + 32 * (Pp >> 1) + 2 * (Pp & 1)) * 64 + 32 * u
                    a(f"ds_read_b64_tr_b16 a[{d+2*Pp}:{d+2*Pp+1}], v{46 if c < 3 else 47} offset:{off}")
                if k & 1:
                    a("s_waitcnt lgkmcnt(0)")
    a("s_waitcnt vmcnt(16)")
    wtr(0, 0)
    wdma(2, 0)
    a("s_waitcnt vmcnt(16)")
    wtr(1, 1)
    wdma(3, 1)
    a("s_waitcnt vmcnt(16)")
    wtr(2, 0)
    a("s_waitcnt vmcnt(0)")
    wtr(3, 1)
    a(f"""
    s_lshl_b32 s{S_T0}, s{S_H}, 2
    s_add_u32 s{S_T0}, s{S_T0}, s{S_J}
    s_mov_b32 s{S_CU}, s{S_T0}
    s_lshr_b32 s{S_T1}, s{S_T0}, 3
    s_xor_b32 s{S_T1}, s{S_T1}, s98
    {["", f"s_xor_b32 s{S_T1}, s{S_T1}, 1", f"s_xor_b32 s{S_T1}, s{S_T1}, s{S_T0}"][E("KVPAR", 0)]}
    s_and_b32 s{S_T1}, s{S_T1}, 1
    s_lshl_b32 s{S_T1}, s{S_T1}, 13
    s_lshl_b32 s76, s{S_T0}, 18
    s_add_u32 s76, s76, s{S_T1}
    s_mov_b32 s{S_KXB}, s76
    v_add_u32 v{TMP+8}, s76, v{V_LL}
    v_add_u32 v{TMP+9}, {WS_VT}, v{TMP+8}
    s_lshr_b32 s{S_T1}, s{S_T0}, 4
    s_xor_b32 s{S_T1}, s{S_T1}, s98
    s_and_b32 s{S_T1}, s{S_T1}, 1
    s_lshl_b32 s{S_T1}, s{S_T1}, 13
    s_lshl_b32 s{S_KVB}, s{S_T0}, 17
    s_add_u32 s{S_KVB}, s{S_KVB}, s{S_T1}
    s_add_u32 s{S_KVB}, s{S_KVB}, {WS_KVM}
    ; flags
    s_xor_b32 s{S_T1}, s98, 1
    s_lshl_b32 s{S_T1}, s{S_T1}, 13
    s_lshl_b32 s{S_T0}, s{S_H}, 7
    s_add_u32 s{S_T0}, s{S_T0}, s{S_T1}
    s_add_u32 s{S_T0}, s{S_T0}, {WS_F}
    v_and_b32 v{V_T0}, 1, v{V_L}
    v_lshlrev_b32 v{V_OFL}, 12, v{V_T0}
    v_add_u32 v{V_OFL}, s{S_T0}, v{V_OFL}
    s_lshl_b32 s{S_T1}, s{S_J}, 2
    v_add_u32 v{V_OFL}, s{S_T1}, v{V_OFL}
    s_lshl_b32 s{S_T1}, s{S_J}, 3
    s_add_u32 s{S_FLB}, s{S_T0}, s{S_T1}
    s_lshl_b32 s{S_T1}, s{S_WAVE}, 2
    s_add_u32 s{S_FLB}, s{S_FLB}, s{S_T1}
    s_add_u32 s{S_FLB}, s{S_FLB}, {F_KVM - 4}
    v_mov_b32 v{ONE}, 0x3f803f80
    v_mov_b32 v{ONE+1}, 0x3f803f80
    v_mov_b32 v{ONE+2}, 0x3f803f80
    v_mov_b32 v{ONE+3}, 0x3f803f80
    v_mov_b32 v{ZER}, 0
    s_mov_b32 s{S_STEP}, 0
    s_mov_b32 s{S_KVN}, 0
    s_mov_b32 s{S_XBR}, {L_XB}
    s_mov_b32 s{S_XBW}, {L_XB}
    """)
    V_PK, V_PV = TMP + 8, TMP + 9
    pfn = [0]

    def prefetch(seg_sreg, part=3, chk=True):
        i = pfn[0]; pfn[0] += 1
        if flags and chk:
            a(f"""
            s_cmp_gt_i32 s{S_KVN}, s{seg_sreg}
            s_cbranch_scc1 {name}_pf{i}ok
{name}_pf{i}w:
            """)
            wdog()
            a(f"""
            buffer_load_dword v{V_T0}, v{V_OFL}, {SRD}, 0 offen sc1
            s_waitcnt vmcnt(0)
            v_readlane_b32 s{S_KVN}, v{V_T0}, 0
            v_readlane_b32 s{S_T0}, v{V_T0}, 1
            s_nop 1
            s_min_i32 s{S_KVN}, s{S_KVN}, s{S_T0}
            s_cmp_gt_i32 s{S_KVN}, s{seg_sreg}
            s_cbranch_scc0 {name}_pf{i}w
{name}_pf{i}ok:
            """)
        a(f"""
        s_add_u32 s77, s{seg_sreg}, s{S_CU}
        s_bfe_u32 s{S_T0}, s77, 0x40002
        s_lshl_b32 s{S_T0}, s{S_T0}, 14
        s_and_b32 s77, s77, 3
        s_lshl_b32 s77, s77, 11
        s_add_u32 s{S_T0}, s{S_T0}, s77
        """)
        if part <= 0:
            a(f"s_add_u32 s{S_T0}, s{S_T0}, s{S_KXB}")
            if part < 0: a(f"s_add_u32 s{S_T0}, s{S_T0}, {WS_VT}")
            for l in range(16):
                a(f"s_buffer_load_dword s78, {SRD}, s{S_T0} offset:{128*l}")
            return
        for f in range(4):
            if not (part >> (f >> 1)) & 1: continue
            a(f"s_add_u32 m0, s{S_XBW}, {2048 * (f >> 1)}")
            a("s_nop 0")
            a(f"buffer_load_dwordx4 v{V_PK if f < 2 else V_PV}, {SRD}, s{S_T0} offen offset:{1024 * (f & 1)} sc1 lds")
        if part & 2: a(f"""
        s_add_u32 s{S_XBW}, s{S_XBW}, 4096
        s_cmp_eq_u32 s{S_XBW}, {L_XB + 3 * 4096}
        s_cselect_b32 s{S_XBW}, {L_XB}, s{S_XBW}
        """)

    def flag_store(val_sreg):
        a(f"""
        v_mov_b32 v{V_T1}, s{val_sreg}
        s_mov_b64 exec, 1
        buffer_store_dword v{V_T1}, v{ZER}, {SRD}, s{S_FLB} offen sc1
        s_mov_b64 exec, -1
        """)

    def zero(base, n):
        for i in range(n):
            a(f"v_mov_b32 v{base+i}, 0")

    if ts and E("BPROF", 0):
        ts(2)
        a(f"v_and_b32 v{V_L}, 63, v0\nv_lshrrev_b32 v{V_G}, 4, v{V_L}")
    a(f"s_cmp_eq_u32 s{S_WAVE}, 3\ns_cbranch_scc0 {name}_pfi")
    a(f"s_mov_b32 s76, 0")
    prefetch(76)
    a(f"s_mov_b32 s76, 1")
    prefetch(76)
    if E("SPF", 1):
        a(f"s_mov_b32 s76, 2")
        prefetch(76, 0)
        prefetch(76, -1, False)
    a("s_waitcnt vmcnt(0) lgkmcnt(0)")
    a.label(f"{name}_pfi")
    a(f"s_cmp_eq_u32 s{S_WAVE}, 2\ns_cbranch_scc0 {name}_xpd")
    a.label(f"{name}_xpw")
    wdog()
    a(f"""
    buffer_load_dword v{V_T0}, v{ZER}, s[{S_DBG}:{S_DBG+3}], 0 offen offset:{DBG_XP} sc1
    s_waitcnt vmcnt(0)
    v_cmp_ne_u32 vcc, {NXP}, v{V_T0}
    s_cbranch_vccnz {name}_xpw
    """)
    a.label(f"{name}_xpd")
    zero(AQ, 24)
    a("s_barrier")
    if ts and E("BPROF", 0):
        ts(3)
        a(f"v_and_b32 v{V_L}, 63, v0\nv_lshrrev_b32 v{V_G}, 4, v{V_L}")
    stamp(0)

    def smf(d, areg, w):
        a(f"v_smfmac_f32_16x16x64_bf16 v[{d}:{d+3}], v[{areg}:{areg+3}], a[{w}:{w+7}], v{V_IDX}")

    def stream_poll(tag, base, soff, off0, two, work, first=None):
        def ld(i):
            a(f"buffer_load_dwordx4 v[{base+4*i}:{base+4*i+3}], v{V_OMEM}, {SRD}, s{soff} offen offset:{1024*i} sc1")
        G = E("GAP", 10)
        for i in range(4):
            ld(i)
            if i == 0 and first:
                first()
                if G > 5: a.nops(G - 5)
            elif i < 3 and G:
                a.nops(G)
        for i in range(4):
            a.label(f"{name}_{tag}{i}")
            a(f"s_waitcnt vmcnt({3-i})")
            if two:
                a(f"v_max_u32 v{V_T0}, v{base+4*i}, v{base+4*i+2}")
                a(f"v_cmp_eq_u32 vcc, -1, v{V_T0}")
            else:
                a(f"v_cmp_eq_u32 vcc, -1, v{base+4*i}")
            a(f"s_cbranch_vccnz {name}_{tag}r{i}")
            a.label(f"{name}_{tag}k{i}")
            work(i)
        def stubs():
            for i in range(4):
                a.label(f"{name}_{tag}r{i}")
                if prof: a(f"s_add_u32 s{62 if tag == 'pa' else 63}, s{62 if tag == 'pa' else 63}, 1")
                wdog()
                if not E("IMM", 1): a("s_waitcnt vmcnt(0)")
                for k in range(i, 4):
                    ld(k)
                a(f"s_branch {name}_{tag}{i}")
        return stubs

    def fold(t0, t1):
        for i in range(4):
            a(f"v_permlane32_swap_b32 v{t0+i}, v{t1+i}")
        a(f"v_pk_add_f32 v[{t0}:{t0+1}], v[{t0}:{t0+1}], v[{t1}:{t1+1}]")
        a(f"v_pk_add_f32 v[{t0+2}:{t0+3}], v[{t0+2}:{t0+3}], v[{t1+2}:{t1+3}]")

    def vwork(lo, hi):
        for n in range(lo, hi):
            i, u = n >> 1, n & 1
            smf(AV + 4 * u, MA + 4 * i, A_W1 + ((4 + u) * 4 + (i & 3)) * 8)

    def vfin():
        fold(AV, AV + 4)
        a(f"ds_write_b128 v{V_LVW}, v[{AV}:{AV+3}]")

    def rread():
        for w in range(4):
            for hh in range(2):
                d = RP + 8 * w + 4 * hh
                a(f"ds_read_b128 v[{d}:{d+3}], v{V_LRR} offset:{L_QK + 2304*w + 16*hh}")

    def rsum(dst):
        a("s_waitcnt lgkmcnt(4)")
        for i in range(0, 8, 2):
            a(f"v_pk_add_f32 v[{RP+i}:{RP+i+1}], v[{RP+i}:{RP+i+1}], v[{RP+8+i}:{RP+8+i+1}]")
        a("s_waitcnt lgkmcnt(0)")
        for i in range(0, 8, 2):
            a(f"v_pk_add_f32 v[{RP+16+i}:{RP+16+i+1}], v[{RP+16+i}:{RP+16+i+1}], v[{RP+24+i}:{RP+24+i+1}]")
        for i in range(0, 8, 2):
            a(f"v_pk_add_f32 v[{RP+i}:{RP+i+1}], v[{RP+i}:{RP+i+1}], v[{RP+16+i}:{RP+16+i+1}]")
        for i in range(4):
            a(f"v_cvt_pk_bf16_f32 v{dst+i}, v{RP+2*i}, v{RP+2*i+1}")

    S_FM = S_TAG
    def heads():
        a(f"""
        s_and_b32 s{S_T1}, s{S_STEP}, 1
        s_lshl_b32 s{S_SL}, s{S_T1}, 17
        s_lshl_b32 s{S_T0}, s{S_X}, 18
        s_add_u32 s{S_SL}, s{S_SL}, s{S_T0}
        s_add_u32 s{S_SL}, s{S_SL}, {WS_I}
        s_xor_b32 s{S_SLO}, s{S_SL}, {1 << 17}
        s_add_u32 s{S_T0}, s{S_STEP}, s{S_T}
        s_and_b32 s{S_T1}, s{S_T0}, 1
        s_lshl_b32 s{S_XS}, s{S_T1}, 12
        s_and_b32 s{S_T0}, s{S_T0}, 14
        s_and_b32 s{S_T1}, s{S_STEP}, 48
        s_or_b32 s{S_T0}, s{S_T0}, s{S_T1}
        s_lshl_b32 s{S_T0}, s{S_T0}, 13
        s_add_u32 s{S_XS}, s{S_XS}, s{S_T0}
        """)
    heads()
    a(f"s_branch {name}_first")

    def wa(i):
        for c in range(4):
            smf(AQ + 4 * c, MA + 4 * i, A_W1 + (c * 4 + (i & 3)) * 8)

    def xread():
        a(f"v_add_u32 v{V_T1}, s{S_XBR}, v{V_LL}")
        for f in range(4):
            a(f"ds_read_b128 v[{KX+4*f}:{KX+4*f+3}], v{V_T1} offset:{1024*f}")

    a.label(f"{name}_loop")
    stubs_a = stream_poll("pa", MA, S_SL, 0, True, wa, first=xread)
    a.label(f"{name}_adone")
    stamp(1)
    a.nops(6)
    fold(AQ, AQ + 4)
    a(f"ds_write2_b32 v{V_LWQ}, v{AQ}, v{AQ+1} offset0:0 offset1:36")
    a(f"ds_write2_b32 v{V_LWQ}, v{AQ+2}, v{AQ+3} offset0:72 offset1:108")
    fold(AQ + 8, AQ + 12)
    a(f"ds_write2_b32 v{V_LWK}, v{AQ+8}, v{AQ+9} offset0:0 offset1:36")
    a(f"ds_write2_b32 v{V_LWK}, v{AQ+10}, v{AQ+11} offset0:72 offset1:108")
    VE, VE2 = E("VE", 4), 8
    vwork(0, VE)
    a(f"""
    s_waitcnt lgkmcnt(0)
    s_barrier
    s_cmp_lg_u32 s{S_WAVE}, 0
    s_cbranch_scc1 {name}_side
    """)
    stamp(2)
    rread()
    vwork(VE, VE2)
    a(f"""
    s_lshl_b32 s{S_T0}, s{S_T}, 11
    s_add_u32 s{S_T0}, s{S_T0}, s{S_SL}
    s_add_u32 s{S_T0}, s{S_T0}, 32768
    s_add_u32 s76, s{S_P}, s{S_SL}
    s_add_u32 s77, s{S_P+1}, s{S_SL}
    s_add_u32 s78, s{S_P+2}, s{S_SL}
    """)
    rsum(R)
    a.nops(2)
    a(f"v_mfma_f32_16x16x32_bf16 v[{S+4}:{S+7}], v[{KX+4}:{KX+7}], v[{R}:{R+3}], 0")
    a(f"v_mfma_f32_16x16x32_bf16 v[{S}:{S+3}], v[{KX}:{KX+3}], v[{R}:{R+3}], 0")
    a(f"v_mfma_f32_16x16x32_bf16 v[{S+8}:{S+11}], v[{R}:{R+3}], v[{R}:{R+3}], 0")
    a(f"s_cmp_eq_u32 s{S_STEP}, {nsteps-1}")
    a(f"s_cbranch_scc1 {name}_w0last")
    a.nops(5)
    for i in range(4):
        a(f"v_mov_b32_dpp v{S+i}, v{S+4+i} row_shr:8 row_mask:0xf bank_mask:0xc")
    a(f"""
    v_min_u32 v{S+8}, -2, v{S+8}
    v_min_u32 v{S}, -2, v{S}
    s_mov_b64 exec, s[{S_MMEM}:{S_MMEM+1}]
    buffer_store_dwordx4 v[{S+8}:{S+11}], v{V_OSCM}, {SRD}, s{S_T0} offen {IS}
    s_mov_b64 exec, -1
    buffer_store_dwordx4 v[{S}:{S+3}], v{V_LL}, {SRD}, s{S_T0} offen {IS}
    """)
    stamp(3)

    def p2ld():
        for p, so in enumerate((76, 77, 78)):
            a(f"buffer_load_dwordx4 v[{PL+8*p}:{PL+8*p+3}], v{V_LL}, {SRD}, s{so} offen sc1")
            a(f"buffer_load_dwordx4 v[{PL+8*p+4}:{PL+8*p+7}], v{V_OSCM}, {SRD}, s{so} offen sc1")
    vfin()
    p2ld()
    zero(AO, 8)
    a("s_waitcnt lgkmcnt(0)\ns_barrier")
    if E("W2", 8): a.nops(E("W2", 8))
    p2ld()
    stamp(4)
    a.label(f"{name}_p2")
    a(f"s_waitcnt vmcnt(6)")
    a(f"v_max3_u32 v{V_T0}, v{PL}, v{PL+4}, v{PL+8}")
    a(f"v_max3_u32 v{V_T1}, v{PL+12}, v{PL+16}, v{PL+20}")
    a(f"v_max_u32 v{V_T0}, v{V_T0}, v{V_T1}")
    a(f"v_cmp_eq_u32 vcc, -1, v{V_T0}")
    a(f"s_cbranch_vccnz {name}_p2r")
    stamp(5)
    BP = E("BP", 1)
    def b2b():
        a("s_barrier")
        a(f"ds_read2_b64 v[{VM}:{VM+3}], v{V_LVR} offset0:0 offset1:32")
    if BP == 0: b2b()
    for (d, o) in ((S + 8, 4), (S, 0)):
        for i in (0, 2):
            a(f"v_pk_add_f32 v[{d+i}:{d+i+1}], v[{d+i}:{d+i+1}], v[{PL+o+i}:{PL+o+i+1}]")
            a(f"v_pk_add_f32 v[{RP+o+i}:{RP+o+i+1}], v[{PL+8+o+i}:{PL+8+o+i+1}], v[{PL+16+o+i}:{PL+16+o+i+1}]")
    for (d, o) in ((S + 8, 4), (S, 0)):
        for i in (0, 2):
            a(f"v_pk_add_f32 v[{d+i}:{d+i+1}], v[{d+i}:{d+i+1}], v[{RP+o+i}:{RP+o+i+1}]")
    for i in range(4):
        a(f"v_cndmask_b32 v{S+4+i}, v{V_NEG}, v{S+8+i}, s[{S_MMEM}:{S_MMEM+1}]")
    MX, TM, SM = TMP, TMP + 1, TMP + 2
    a(f"""
    v_max3_f32 v{MX}, v{S}, v{S+1}, v{S+2}
    v_max3_f32 v{TM}, v{S+4}, v{S+5}, v{S+6}
    v_max3_f32 v{MX}, v{MX}, v{S+3}, v{S+7}
    v_max_f32 v{SM}, v{MX}, v{TM}
    """)
    if BP == 1: b2b()
    else: a("s_nop 1")
    a(f"""
    v_max_f32_dpp v{MX}, v{SM}, v{SM} row_ror:8 row_mask:0xf bank_mask:0xf
    v_max_f32_dpp v{TM}, v{SM}, v{SM} row_ror:8 row_mask:0xf bank_mask:0xf
    s_nop 1
    v_permlane16_swap_b32 v{MX}, v{TM}
    s_nop 0
    v_max_f32 v{SM}, v{MX}, v{TM}
    v_max_f32 v{SM+1}, v{MX}, v{TM}
    """)
    if BP == 2: b2b()
    else: a("s_nop 1")
    a(f"""
    v_permlane32_swap_b32 v{SM}, v{SM+1}
    s_nop 0
    v_max_f32 v{MX}, v{SM}, v{SM+1}
    v_mul_f32 v{MX}, s{S_C}, v{MX}
    """)
    for i in (4, 5, 6, 7, 0, 1, 2, 3):
        a(f"v_fma_f32 v{S+i}, v{S+i}, s{S_C}, -v{MX}")
    for i in (4, 5, 6, 7):
        a(f"v_exp_f32 v{S+i}, v{S+i}")
    a(f"""
    v_exp_f32 v{S}, v{S}
    v_cvt_pk_bf16_f32 v{PM}, v{S+4}, v{S+5}
    v_cvt_pk_bf16_f32 v{PM+1}, v{S+6}, v{S+7}
    v_exp_f32 v{S+1}, v{S+1}
    v_exp_f32 v{S+2}, v{S+2}
    v_mfma_f32_16x16x16_bf16 v[{LS}:{LS+3}], v[{ONE}:{ONE+1}], v[{PM}:{PM+1}], 0
    v_exp_f32 v{S+3}, v{S+3}
    v_cvt_pk_bf16_f32 v{P}, v{S}, v{S+1}
    s_waitcnt lgkmcnt(0)
    v_mfma_f32_16x16x16_bf16 v[{O}:{O+3}], v[{VM}:{VM+1}], v[{PM}:{PM+1}], 0
    v_cvt_pk_bf16_f32 v{P+1}, v{S+2}, v{S+3}
    v_mfma_f32_16x16x16_bf16 v[{O+4}:{O+7}], v[{VM+2}:{VM+3}], v[{PM}:{PM+1}], 0
    v_mov_b32_dpp v{P+2}, v{P} row_ror:8 row_mask:0xf bank_mask:0xf
    v_mov_b32_dpp v{P+3}, v{P+1} row_ror:8 row_mask:0xf bank_mask:0xf
    s_nop 1
    v_mfma_f32_16x16x32_bf16 v[{LS}:{LS+3}], v[{ONE}:{ONE+3}], v[{P}:{P+3}], v[{LS}:{LS+3}]
    v_mfma_f32_16x16x32_bf16 v[{O}:{O+3}], v[{VTX}:{VTX+3}], v[{P}:{P+3}], v[{O}:{O+3}]
    v_mfma_f32_16x16x32_bf16 v[{O+4}:{O+7}], v[{VTX+4}:{VTX+7}], v[{P}:{P+3}], v[{O+4}:{O+7}]
    s_add_u32 s{S_T1}, s{S_SL}, 16384
    s_nop 4
    v_rcp_f32 v{SM}, v{LS}
    v_rcp_f32 v{SM+1}, v{LS+1}
    s_nop 0
    """)
    for i in range(0, 8, 2):
        a(f"v_pk_mul_f32 v[{O+i}:{O+i+1}], v[{O+i}:{O+i+1}], v[{SM}:{SM+1}]")
    for i in range(4):
        a(f"v_cvt_pk_bf16_f32 v{P+i}, v{O+2*i}, v{O+2*i+1}")
    a(f"""
    v_min_u32 v{P}, -2, v{P}
    s_mov_b64 exec, s[{S_MN8}:{S_MN8+1}]
    buffer_store_dwordx4 v[{P}:{P+3}], v{V_OOP}, {SRD}, s{S_SL} offen {IS}
    s_mov_b64 exec, -1
    """)
    a.label(f"{name}_b3")
    a("s_barrier")
    stamp(6)
    if E("W3", 0): a.nops(E("W3", 0))

    def wc(i):
        for u in range(2):
            smf(AO + 4 * u, MO + 4 * i, A_WO + (u * 4 + i) * 8)
    stubs_c = stream_poll("pc", MO, S_T1, 0, False, wc)
    stamp(7)
    a.nops(8)
    fold(AO, AO + 4)
    a(f"ds_write2_b32 v{V_LWO}, v{AO}, v{AO+1} offset0:0 offset1:36")
    a(f"ds_write2_b32 v{V_LWO}, v{AO+2}, v{AO+3} offset0:72 offset1:108")
    a("s_waitcnt lgkmcnt(0)\ns_barrier")
    a(f"s_cmp_lg_u32 s{S_WAVE}, 0\ns_cbranch_scc1 {name}_x1")
    for w in range(4):
        a(f"ds_read_b128 v[{RP+4*w}:{RP+4*w+3}], v{V_LRO} offset:{1152*w}")
    zero(AQ, 24)
    a("s_waitcnt lgkmcnt(2)")
    for i in (0, 2):
        a(f"v_pk_add_f32 v[{RP+i}:{RP+i+1}], v[{RP+i}:{RP+i+1}], v[{RP+4+i}:{RP+4+i+1}]")
    a("s_waitcnt lgkmcnt(0)")
    for i in (0, 2):
        a(f"v_pk_add_f32 v[{RP+8+i}:{RP+8+i+1}], v[{RP+8+i}:{RP+8+i+1}], v[{RP+12+i}:{RP+12+i+1}]")
    for i in (0, 2):
        a(f"v_pk_add_f32 v[{RP+i}:{RP+i+1}], v[{RP+i}:{RP+i+1}], v[{RP+8+i}:{RP+8+i+1}]")
    X4 = 48
    A4 = E("A4", 2)
    def p4ld():
        for p in range(3):
            a(f"buffer_load_dwordx4 v[{X4+4*p}:{X4+4*p+3}], v{25+p}, {SRD}, s{S_XS} offen sc1")
    def maxall(regs):
        regs = list(regs)
        h = len(regs) // 2
        for t, rs in ((V_T0, regs[:h]), (V_T1, regs[h:])):
            a(f"v_max3_u32 v{t}, v{rs[0]}, v{rs[1]}, v{rs[2]}")
        k = 3
        while k < h:
            for t, rs in ((V_T0, regs[:h]), (V_T1, regs[h:])):
                if k + 1 < h: a(f"v_max3_u32 v{t}, v{t}, v{rs[k]}, v{rs[k+1]}")
                else: a(f"v_max_u32 v{t}, v{t}, v{rs[k]}")
            k += 2
        a(f"v_max_u32 v{V_T0}, v{V_T0}, v{V_T1}")
        a(f"v_cmp_eq_u32 vcc, -1, v{V_T0}")
    for i in range(4 if A4 else 1):
        a(f"v_min_u32 v{RP+i}, -2, v{RP+i}")
    a(f"buffer_store_dwordx4 v[{RP}:{RP+3}], v{V_OXW}, {SRD}, s{S_XS} offen sc1")
    stamp(8)
    if A4:
        for i in range(12):
            a(f"v_mov_b32 v{X4+i}, -1")
    if E("XW", 24): a.nops(E("XW", 24))
    stamp(11)
    a.label(f"{name}_p4")
    if prof: a("s_add_u32 s64, s64, 1")
    wdog()
    p4ld()
    if A4:
        a("s_waitcnt vmcnt(36)")
        for rep in range(E("A4R", 1)):
            a.nops(A4 // E("A4R", 1))
            maxall(range(X4, X4 + 12))
            a(f"s_cbranch_vccz {name}_p4d")
        a(f"s_branch {name}_p4")
        a.label(f"{name}_p4d")
    else:
        a(f"""
        s_waitcnt vmcnt(0)
        v_max3_u32 v{V_T0}, v{X4}, v{X4+4}, v{X4+8}
        v_cmp_eq_u32 vcc, -1, v{V_T0}
        s_cbranch_vccnz {name}_p4
        """)
    stamp(9)
    for i in (0, 2):
        a(f"v_pk_add_f32 v[{RP+i}:{RP+i+1}], v[{RP+i}:{RP+i+1}], v[{X4+i}:{X4+i+1}]")
        a(f"v_pk_add_f32 v[{RP+4+i}:{RP+4+i+1}], v[{X4+4+i}:{X4+4+i+1}], v[{X4+8+i}:{X4+8+i+1}]")
    for i in (0, 2):
        a(f"v_pk_add_f32 v[{RP+i}:{RP+i+1}], v[{RP+i}:{RP+i+1}], v[{RP+4+i}:{RP+4+i+1}]")
    a(f"""
    v_cvt_pk_bf16_f32 v{P}, v{RP}, v{RP+1}
    v_cvt_pk_bf16_f32 v{P+1}, v{RP+2}, v{RP+3}
    v_min_u32 v{P}, -2, v{P}
    buffer_store_dwordx2 v[{P}:{P+1}], v{V_OPUB}, {SRD}, s{S_SLO} offen {IS}
    """)
    a.label(f"{name}_b5")
    a(f"""
    s_add_u32 s{S_STEP}, s{S_STEP}, 1
    s_add_u32 s{S_XBR}, s{S_XBR}, 4096
    s_cmp_eq_u32 s{S_XBR}, {L_XB + 3 * 4096}
    s_cselect_b32 s{S_XBR}, {L_XB}, s{S_XBR}
    s_barrier
    """)
    heads()
    stamp(10)
    if E("W1", 0): a.nops(E("W1", 0))
    a(f"s_branch {name}_loop")
    a.label(f"{name}_x1")
    a(f"""
    s_cmp_eq_u32 s{S_WAVE}, 3
    s_cbranch_scc0 {name}_x4
    buffer_store_dwordx2 v[{V_POI}:{V_POI+1}], v{V_OPUB}, {SRD}, s{S_SL} offen {IS}
    s_lshl_b32 s{S_T0}, s{S_T}, 11
    s_add_u32 s{S_T0}, s{S_T0}, s{S_SL}
    s_add_u32 s{S_T0}, s{S_T0}, 32768
    buffer_store_dwordx4 v[{V_POI}:{V_POI+3}], v{V_LL}, {SRD}, s{S_T0} offen {IS}
    buffer_store_dwordx4 v[{V_POI}:{V_POI+3}], v{V_OSCM}, {SRD}, s{S_T0} offen {IS}
    s_add_u32 s76, s{S_STEP}, 3
    s_cmp_lt_u32 s76, {nsteps-1}
    s_cbranch_scc0 {name}_x4
    """)
    if not E("NOPF", 0) and not E("TR", 0): prefetch(76, -1, False)
    a.label(f"{name}_x4")
    stamp(11)
    zero(AQ, 24)
    a(f"s_branch {name}_b5")
    a.label(f"{name}_p2r")
    if prof: a("s_add_u32 s65, s65, 1")
    wdog()
    p2ld()
    a(f"s_branch {name}_p2")
    stubs_a()
    stubs_c()
    a.label(f"{name}_w0last")
    a.nops(8)
    vfin()
    a("s_waitcnt lgkmcnt(0)\ns_barrier")
    a(f"s_branch {name}_end")
    a.label(f"{name}_side")
    a(f"""
    s_cmp_eq_u32 s{S_WAVE}, 3
    s_cbranch_scc1 {name}_sd3
    s_cmp_eq_u32 s{S_WAVE}, 2
    s_cbranch_scc0 {name}_sd4
    s_mov_b64 exec, s[{S_MN8}:{S_MN8+1}]
    buffer_store_dwordx4 v[{V_POI}:{V_POI+3}], v{V_OOP}, {SRD}, s{S_SLO} offen {IS}
    s_mov_b64 exec, -1
    s_branch {name}_sd4
{name}_sd3:
    s_add_u32 s76, s{S_STEP}, 2
    s_cmp_lt_u32 s76, {nsteps-1}
    s_cbranch_scc0 {name}_sd4
    """)
    if not E("NOPF", 0): prefetch(76, 3, False)
    a.label(f"{name}_sd4")
    vwork(VE, 8)
    a.nops(8)
    vfin()
    zero(AO, 8)
    a(f"""
    s_cmp_eq_u32 s{S_WAVE}, 1
    s_cbranch_scc0 {name}_s1
    s_waitcnt lgkmcnt(0)
    """)
    rread()
    rsum(KVH)
    a.label(f"{name}_s1")
    a(f"""
    v_add_u32 v{V_T1}, {L_VP}, v{V_LL}
    s_waitcnt lgkmcnt(0)
    s_barrier
    s_cmp_eq_u32 s{S_WAVE}, 2
    s_cbranch_scc0 {name}_s3
    """)
    for w in range(4):
        a(f"ds_read_b128 v[{RP+4*w}:{RP+4*w+3}], v{V_T1} offset:{1024*w}")
    a(f"v_lshrrev_b32 v{V_T1}, 1, v{V_LL}")
    a("s_waitcnt lgkmcnt(2)")
    for i in (0, 2):
        a(f"v_pk_add_f32 v[{RP+i}:{RP+i+1}], v[{RP+i}:{RP+i+1}], v[{RP+4+i}:{RP+4+i+1}]")
    a("s_waitcnt lgkmcnt(0)")
    for i in (0, 2):
        a(f"v_pk_add_f32 v[{RP+8+i}:{RP+8+i+1}], v[{RP+8+i}:{RP+8+i+1}], v[{RP+12+i}:{RP+12+i+1}]")
    for i in (0, 2):
        a(f"v_pk_add_f32 v[{RP+i}:{RP+i+1}], v[{RP+i}:{RP+i+1}], v[{RP+8+i}:{RP+8+i+1}]")
    a(f"v_cvt_pk_bf16_f32 v{KVH}, v{RP}, v{RP+1}")
    a(f"v_cvt_pk_bf16_f32 v{KVH+1}, v{RP+2}, v{RP+3}")
    a(f"ds_write_b64 v{V_T1}, v[{KVH}:{KVH+1}] offset:{L_VM}")
    a("s_waitcnt lgkmcnt(0)")
    a.label(f"{name}_s3")
    a(f"""
    s_cmp_eq_u32 s{S_STEP}, {nsteps-1}
    s_cbranch_scc1 {name}_slast
    s_add_u32 s{S_T1}, s{S_SL}, 16384
    s_barrier
    """)

    def kv_pub(tag):
        a(f"""
        s_add_u32 s77, s{S_STEP}, s{S_CU}
        s_bfe_u32 s{S_T0}, s77, 0x30003
        s_lshl_b32 s{S_T0}, s{S_T0}, 14
        s_and_b32 s77, s77, 7
        s_lshl_b32 s77, s77, 10
        s_add_u32 s{S_T0}, s{S_T0}, s77
        s_add_u32 s{S_T0}, s{S_T0}, s{S_KVB}
        s_cmp_eq_u32 s{S_WAVE}, 2
        s_cbranch_scc1 {name}_kv2{tag}
        s_mov_b64 exec, s[{S_MKM}:{S_MKM+1}]
        buffer_store_dwordx4 v[{KVH}:{KVH+3}], v{V_OKV}, {SRD}, s{S_T0} offen sc1
        s_mov_b64 exec, -1
        s_branch {name}_kvd{tag}
{name}_kv2{tag}:
        v_lshlrev_b32 v{V_T0}, 3, v{V_L}
        buffer_store_dwordx2 v[{KVH}:{KVH+1}], v{V_T0}, {SRD}, s{S_T0} offen offset:512 sc1
{name}_kvd{tag}:
        """)
    a(f"s_cmp_eq_u32 s{S_WAVE}, 3\ns_cbranch_scc1 {name}_y3")
    if not E("NOKVM", 0):
        kv_pub("a")
        a(f"""
        s_and_b32 s76, s{S_STEP}, {E("FLM", 3)}
        s_cmp_ge_u32 s{S_STEP}, {nsteps-4}
        s_cselect_b32 s76, 0, s76
        s_cmp_eq_u32 s76, 0
        s_cbranch_scc0 {name}_y4
        """)
        flag_store(S_STEP)
    a(f"s_branch {name}_y4")
    a.label(f"{name}_y3")
    a(f"""
    s_add_u32 s76, s{S_STEP}, 3
    s_cmp_lt_u32 s76, {nsteps-1}
    s_cbranch_scc0 {name}_y4
    """)
    if not E("NOPF", 0): prefetch(76, 0)
    a.label(f"{name}_y4")
    a(f"s_branch {name}_b3")
    a.label(f"{name}_first")
    for i in range(4):
        a(f"buffer_load_dwordx4 v[{MA+4*i}:{MA+4*i+3}], v{V_OM0}, s[{S_M0}:{S_M0+3}], 0 offen offset:{128*i}")
    xread()
    a("s_waitcnt vmcnt(0)")
    for i in range(4):
        wa(i)
    a.nops(2)
    a(f"s_branch {name}_adone")
    a.label(f"{name}_slast")
    a(f"s_cmp_eq_u32 s{S_WAVE}, 3\ns_cbranch_scc1 {name}_end")
    kv_pub("b")
    a(f"s_waitcnt vmcnt(0)\ns_mov_b32 s76, {nsteps}")
    flag_store(76)
    a.label(f"{name}_end")
    if ts: ts(4)
    if prof:
        a(f"""
        s_lshl_b32 s{S_T0}, s{S_X}, 5
        s_add_u32 s{S_T0}, s{S_T0}, s{S_T}
        s_lshl_b32 s{S_T0}, s{S_T0}, 2
        s_add_u32 s{S_T0}, s{S_T0}, s{S_WAVE}
        s_lshl_b32 s{S_T0}, s{S_T0}, 6
        s_add_u32 s{S_T0}, s{S_T0}, {WS_PROF}
        v_mov_b32 v{V_T1}, 0
        s_mov_b64 exec, 1
        """)
        for i in range(16):
            a(f"v_mov_b32 v{V_T0}, s{50+i}")
            a(f"buffer_store_dword v{V_T0}, v{V_T1}, {SRD}, s{S_T0} offen offset:{4*i}")
            a("s_nop 1")
    a("s_endpgm")


def gen_rec_standalone(a: Asm, name, prof=False, force_slow=False):
    a.kernel_begin(name)
    a(f"s_cmp_ge_u32 s2, 256\ns_cbranch_scc1 {name}_exit")
    start_code(a, name, force_slow)
    a(f"""
    s_cmp_eq_u32 s95, 1
    s_cbranch_scc0 {name}_slow
    s_sub_u32 s40, s90, 6
    s_lshl_b32 s40, s40, 5
    s_add_u32 s40, s40, s96
    s_cmp_lt_u32 s90, 4
    s_cbranch_scc0 {name}_oth
    s_mov_b32 s{S_X}, s90
    s_mov_b32 s{S_T}, s96
    """)
    rec_body(a, name + "_f", "", prof=prof, flags=False)
    a.label(f"{name}_slow")
    a(f"""
    s_sub_u32 s40, s97, 192
    s_cmp_lt_u32 s97, 128
    s_cbranch_scc0 {name}_oth
    s_lshr_b32 s{S_X}, s97, 5
    s_and_b32 s{S_T}, s97, 31
    """)
    rec_body(a, name + "_s", "sc1", prof=prof, flags=False)
    a.label(f"{name}_oth")
    a(f"s_cmp_lt_u32 s40, {NXP}\ns_cbranch_scc0 {name}_exit")
    xp_poison(a, name, 40)
    a.label(f"{name}_exit")
    a("s_endpgm")
    return kd(name, 512, sgpr=102, accum=256)


if __name__ == "__main__":
    import sys
    a = Asm()
    name = "rec_kernel"
    k = gen_rec_standalone(a, name, prof=("prof" in sys.argv), force_slow=("slow" in sys.argv))
    out = HEADER + f"; @launch kernel={name} grid=(256,1,1) block=(256,1,1) lds=163840\n"
    out += '.amdgcn_target "amdgcn-amd-amdhsa--gfx950"\n.text\n' + a.text() + '.section .rodata,"a"\n' + k
    open(os.environ.get("OUT", "rec.s"), "w").write(out)
```

```python
import sys
from gen_common import *
from gen_rec import S_X, S_T, S_WSD, S_DBG, E, start_code, rec_body, xp_poison
from gen_bulk import kv_role, qx_role, out_role, S_H
from gen_fft import gen_f0, gen_f1, gen_f2, gen_f3

LDS = 163840


def gen_mega(a, name, force_slow=False):
    W = S_WSD
    S_B, S_G, S_F = 90, 91, 92
    a.kernel_begin(name)

    def ts(i):
        if not E("BPROF", 0): return
        a(f"""
        s_memrealtime s[76:77]
        s_memtime s[100:101]
        s_waitcnt lgkmcnt(0)
        v_mov_b32 v1, 0
        v_mov_b32 v2, s76
        s_lshl_b32 s78, s2, 6
        s_add_u32 s78, s78, {WS_PROF + 8 * MB + 4 * i}
        s_mov_b64 exec, 1
        buffer_store_dword v2, v1, s[{W}:{W+3}], s78 offen
        s_nop 1
        v_mov_b32 v2, s100
        s_add_u32 s78, s78, 16384
        buffer_store_dword v2, v1, s[{W}:{W+3}], s78 offen
        s_mov_b64 exec, -1
        """)
    a(f"s_cmp_ge_u32 s2, 256\ns_cbranch_scc1 {name}_exit")
    if E("BPROF", 0): a("s_memrealtime s[80:81]")
    start_code(a, name, force_slow)
    a(f"""
    s_cmp_eq_u32 s95, 1
    s_cbranch_scc0 {name}_slowsel
    s_mov_b32 s{S_X}, s90
    s_mov_b32 s{S_T}, s96
    s_cmp_lt_u32 s90, 4
    s_cbranch_scc1 {name}_recf
    s_sub_u32 s{S_B}, s90, 4
    s_lshl_b32 s{S_B}, s{S_B}, 5
    s_add_u32 s{S_B}, s{S_B}, s96
    s_branch {name}_bulk
{name}_slowsel:
    s_lshr_b32 s{S_X}, s97, 5
    s_and_b32 s{S_T}, s97, 31
    s_cmp_lt_u32 s97, 128
    s_cbranch_scc1 {name}_recs
    s_sub_u32 s{S_B}, s97, 128
{name}_bulk:
    """)
    if E("MIX", 0):
        a(f"s_and_b32 s{S_G}, s{S_B}, 3\ns_lshr_b32 s{S_H}, s{S_B}, 2")
    else:
        a(f"s_lshr_b32 s{S_G}, s{S_B}, 5\ns_and_b32 s{S_H}, s{S_B}, 31")
    a(f"""
    s_and_b32 s{S_F}, s{S_G}, 1
    s_lshl_b32 s{S_F}, s{S_F}, 5
    s_add_u32 s{S_F}, s{S_F}, s{S_H}
    """)
    if E("BPROF", 0):
        a(f"""
        v_mov_b32 v1, 0
        v_mov_b32 v2, s80
        v_mov_b32 v3, s{S_G}
        s_lshl_b32 s78, s2, 6
        s_add_u32 s78, s78, {WS_PROF + 8 * MB}
        s_mov_b64 exec, 1
        buffer_store_dword v2, v1, s[{W}:{W+3}], s78 offen
        buffer_store_dword v3, v1, s[{W}:{W+3}], s78 offen offset:60
        s_mov_b64 exec, -1
        """)
    ts(1)
    a(f"""
    s_cmp_eq_u32 s{S_G}, 0
    s_cbranch_scc1 {name}_rk
    s_cmp_eq_u32 s{S_G}, 1
    s_cbranch_scc1 {name}_rv
    """)
    xp_poison(a, name, S_F)
    ts(2)
    a(f"s_cmp_eq_u32 s{S_G}, 2\ns_cbranch_scc0 {name}_ro")
    qx_role(a, name + "_q", ts)
    a.label(f"{name}_ro")
    out_role(a, name + "_o", ts)
    a.label(f"{name}_rk")
    kv_role(a, name + "_k", False, ts)
    a(f"s_branch {name}_fft")
    a.label(f"{name}_rv")
    kv_role(a, name + "_v", True, ts)
    a.label(f"{name}_fft")
    ts(4)

    def signal(i):
        a(f"""
        s_waitcnt vmcnt(0)
        s_barrier
        v_mov_b32 v1, 0
        v_mov_b32 v2, 1
        s_mov_b32 s82, {WS_F + F_CNT + 128 * i}
        v_cmp_eq_u32 vcc, 0, v0
        s_and_saveexec_b64 s[80:81], vcc
        s_cbranch_execz {name}_sg{i}
        buffer_atomic_add v2, v1, s[{W}:{W+3}], s82 offen sc1
{name}_sg{i}:
        s_mov_b64 exec, s[80:81]
        """)

    def wait(i, n):
        a(f"v_mov_b32 v1, 0\ns_mov_b32 s82, {WS_F + F_CNT + 128 * i}")
        a.label(f"{name}_w{i}")
        if E("WD", 0):
            a(f"s_add_u32 s99, s99, 1\ns_cmp_gt_u32 s99, 300000\ns_cbranch_scc1 {name}_exit")
        a(f"""
        s_sleep 8
        buffer_load_dword v2, v1, s[{W}:{W+3}], s82 offen sc1
        s_waitcnt vmcnt(0)
        v_cmp_ne_u32 vcc, {n-1}, v2
        s_cbranch_vccnz {name}_w{i}
        """)

    def tasks(tag, fn, n):
        a(f"s_mov_b32 s93, s{S_F}")
        a.label(f"{name}_{tag}l")
        fn()
        a(f"s_add_u32 s93, s93, 64\ns_cmp_lt_u32 s93, {n}\ns_cbranch_scc1 {name}_{tag}l")
    if not E("NOFFT", 0):
        tasks("f0", lambda: (a("s_barrier"), gen_f0(a, name + "_f0", role=93, noend=True)), 288)
        ts(5)
        tasks("f1", lambda: gen_f1(a, name + "_f1", role=93), 128)
        signal(0)
        ts(6)
        wait(0, 64)
        tasks("f2", lambda: gen_f2(a, name + "_f2", role=93), 129)
        signal(1)
        ts(7)
        wait(1, 64)
        tasks("f3", lambda: gen_f3(a, name + "_f3", role=93), 128)
        ts(8)
    a.label(f"{name}_exit")
    a("s_endpgm")
    a.label(f"{name}_recf")
    rec_body(a, name + "_rf", "", prof=bool(E("PROF", 0)), ts=ts)
    a.label(f"{name}_recs")
    rec_body(a, name + "_rs", "sc1")
    return kd(name, 512, sgpr=102, accum=256)


def build(path, force_slow=False):
    a = Asm()
    k = gen_mega(a, "mega_kernel", force_slow)
    out = HEADER + f"; @launch kernel=mega_kernel grid=(256,1,1) block=(256,1,1) lds={LDS}\n"
    out += '.amdgcn_target "amdgcn-amd-amdhsa--gfx950"\n.text\n' + a.text() + '.section .rodata,"a"\n' + k
    open(path, "w").write(out)


if __name__ == "__main__":
    build(sys.argv[1] if len(sys.argv) > 1 else "mega.s", force_slow=("slow" in sys.argv))
```

```python
from gen_common import *
from gen_rec import S_WSD, S_DBG, E

W = S_WSD
SRD = f"s[{W}:{W+3}]"
S_H = 40
S_WAVE, S_SEG, S_T0, S_T1, S_T2 = 41, 42, 43, 44, 45
S_WM, S_XM = 4, 8
V_L, V_T0, V_T1, V_T2, V_LL = 1, 2, 3, 4, 5


def wdog(a, name):
    wd_code(a, name + ":" + a.lines[-1], f"s{S_SEG}")


def tsx(a, ts, i):
    if E("BPROF", 0):
        ts(i)
        a(f"v_and_b32 v{V_L}, 63, v0")


def pst(i):
    if not E("KPROF", 0): return []
    return ["s_memtime s[76:77]", "s_waitcnt lgkmcnt(0)", "s_sub_u32 s78, s76, s31", f"s_add_u32 s{32+i}, s{32+i}, s78", "s_mov_b32 s31, s76"]


def pinit(a):
    if not E("KPROF", 0): return
    for i in range(8): a(f"s_mov_b32 s{32+i}, 0")
    a("s_memtime s[76:77]\ns_waitcnt lgkmcnt(0)\ns_mov_b32 s31, s76")


def pdump(a):
    if not E("KPROF", 0): return
    a(f"s_lshl_b32 s78, s2, 7\ns_lshl_b32 s77, s{S_WAVE}, 5\ns_add_u32 s78, s78, s77\ns_add_u32 s78, s78, {WS_PROF + 9*MB}\nv_mov_b32 v2, 0\ns_mov_b64 exec, 1")
    for i in range(8):
        a(f"v_mov_b32 v3, s{32+i}\nbuffer_store_dword v3, v2, {SRD}, s78 offen offset:{4*i}\ns_nop 1")
    a("s_mov_b64 exec, -1")


def common(a, ka_w, ka_x, xbytes):
    a(f"""
    s_load_dwordx2 s[{S_WM}:{S_WM+1}], s[0:1], {ka_w}
    s_load_dwordx2 s[{S_XM}:{S_XM+1}], s[0:1], {ka_x}
    v_lshrrev_b32 v{V_T0}, 6, v0
    v_and_b32 v{V_L}, 63, v0
    v_readfirstlane_b32 s{S_WAVE}, v{V_T0}
    v_lshlrev_b32 v{V_LL}, 4, v{V_L}
    s_waitcnt lgkmcnt(0)
    s_mov_b32 s{S_WM+2}, {8*MB}
    s_mov_b32 s{S_WM+3}, 0x00020000
    s_mov_b32 s{S_XM+2}, {xbytes}
    s_mov_b32 s{S_XM+3}, 0x00020000
    """)


def load_weights(a, rowlog, s_base, lane_addr, frag_off, rot=None, cl=2, touch=False):
    a(f"""
    v_lshrrev_b32 v{V_T0}, {cl}, v{V_L}
    v_and_b32 v{V_T1}, {(1 << cl) - 1}, v{V_L}
    v_lshlrev_b32 v16, {rowlog}, v{V_T0}
    v_lshl_add_u32 v16, v{V_T1}, 4, v16
    v_add_u32 v16, s{s_base}, v16
    v_and_b32 v{V_T1}, 3, v{V_L}
    s_lshl_b32 s{S_T2}, s{S_WAVE}, 15
    """)
    RI = 64 >> cl
    a(lane_addr)
    a(f"v_add_u32 v17, s{S_T2}, v17")

    HELP = 1 if (touch and E("BHELP", 1)) else 0
    if HELP:
        a(f"""
        s_and_b32 s{S_T0}, s{S_H}, 3
        s_lshl_b32 s{S_T0}, s{S_T0}, 2
        s_add_u32 s{S_T0}, s{S_T0}, s{S_WAVE}
        s_lshl_b32 s{S_T0}, s{S_T0}, 4
        v_and_b32 v23, 15, v{V_L}
        v_add_u32 v23, s{S_T0}, v23
        s_lshr_b32 s{S_T0}, s{S_H}, 2
        s_lshl_b32 s{S_T0}, s{S_T0}, 10
        s_add_u32 s{S_T1}, s{S_T0}, 896
        s_add_u32 s{S_T0}, s{S_T0}, 384
        s_cmp_ge_u32 s{S_H}, 28
        s_cselect_b32 s{S_T1}, s{S_T1}, s{S_T0}
        v_mov_b32 v24, s{S_T0}
        v_mov_b32 v25, s{S_T1}
        v_cmp_gt_u32 vcc, 32, v{V_L}
        s_nop 1
        v_cndmask_b32 v24, v25, v24, vcc
        v_lshl_add_u32 v23, v23, 13, v24
        """)

    def dma(ch):
        if HELP:
            a(f"s_mov_b32 s{S_T1}, {ch * 2 * MB}\nbuffer_load_dword v22, v23, s[{S_WM}:{S_WM+3}], s{S_T1} offen")
        for r in range(16):
            a(f"s_add_u32 m0, s{S_T2}, {(ch & 1)*16384 + 1024*r}")
            if rot is None:
                a(f"s_mov_b32 s{S_T1}, {(RI * (16 * ch + r)) << rowlog}")
            else:
                a(f"s_add_u32 s{S_T1}, s{rot}, {RI * (16 * ch + r)}\ns_and_b32 s{S_T1}, s{S_T1}, {64 * RI - 1}\ns_lshl_b32 s{S_T1}, s{S_T1}, {rowlog}")
            a(f"buffer_load_dwordx4 v16, s[{S_WM}:{S_WM+3}], s{S_T1} offen {'nt ' if E('BNT', 0) else ''}lds")

    def tr(ch):
        for f in range(16 * ch, 16 * ch + 16):
            for jj in range(2):
                o = frag_off(f, jj) - 16384 * ch
                assert 0 <= o < 16384
                a(f"ds_read_b64_tr_b16 a[{4*f+2*jj}:{4*f+2*jj+1}], v17 offset:{(ch & 1)*16384 + o}")
            if f % 4 == 3:
                a("s_waitcnt lgkmcnt(0)")
    WT = E("BWT", 0) if touch else 0
    if WT:
        a(f"""
        s_lshl_b32 s{S_T0}, s{S_H}, 16
        s_lshl_b32 s{S_T1}, s{S_WAVE}, 14
        s_add_u32 s{S_T0}, s{S_T0}, s{S_T1}
        v_lshlrev_b32 v21, 7, v{V_L}
        v_add_u32 v21, s{S_T0}, v21
        """)
    def tch(n):
        for i in range(2):
            a(f"s_mov_b32 s{S_T1}, {n * 2 * MB + i * 8192}")
            a(f"buffer_load_dword v22, v21, s[{S_WM}:{S_WM+3}], s{S_T1} offen")
    if WT == 1:
        tch(0); tch(1); dma(0); tch(2); dma(1); tch(3)
    elif WT == 2:
        tch(0); tch(1); tch(2); tch(3); dma(0); dma(1)
    else:
        dma(0); dma(1)
    a(f"s_waitcnt vmcnt({(20 if WT == 1 else 16) + HELP})"); tr(0); dma(2)
    a(f"s_waitcnt vmcnt({(18 if WT == 1 else 16) + HELP})"); tr(1); dma(3)
    a("s_waitcnt vmcnt(16)"); tr(2)
    a("s_waitcnt vmcnt(0)"); tr(3)
    a("s_barrier")


def lane32(hi_mul, swap=False, rl=6):
    if swap:
        return lane32(hi_mul).replace(f"v_lshl_add_u32 v17, v{V_T1}, 3, v17", f"""
        v_and_b32 v18, 1, v{V_L}
        v_lshl_add_u32 v17, v18, 4, v17
        v_bfe_u32 v18, v{V_L}, 1, 1
        v_lshl_add_u32 v17, v18, 3, v17""")
    return f"""
    v_bfe_u32 v17, v{V_L}, 2, 2
    v_lshrrev_b32 v18, 5, v{V_L}
    v_mul_u32_u24 v18, {hi_mul}, v18
    v_add_u32 v17, v17, v18
    v_lshlrev_b32 v17, {rl}, v17
    v_bfe_u32 v18, v{V_L}, 4, 1
    v_lshl_add_u32 v17, v18, 5, v17
    v_lshl_add_u32 v17, v{V_T1}, 3, v17
    """


def lane16(qlog):
    return f"""
    v_bfe_u32 v17, v{V_L}, 2, 2
    v_lshrrev_b32 v18, 4, v{V_L}
    v_lshl_add_u32 v17, v18, 3, v17
    v_lshlrev_b32 v17, 6, v17
    v_lshl_add_u32 v17, v{V_T1}, {qlog}, v17
    """


M32 = E('M32', 1)
GR2 = 512 if M32 else 1024
V_DX, V_RA, V_ST = 6, 8, 7
FR, NFR, AHEAD = 20, 8, 6
ACC = (52, 68)
EP = 84
S_XB = 46
S_CU, S_OB, S_FL = 47, 48, 49


def proj_setup(a, ka_w, swap):
    common(a, ka_w, KA_AX, 4 * MB)
    a(f"""
    s_lshl_b32 s{S_T0}, s{S_H}, 8
    s_lshl_b32 s{S_T1}, s{S_WAVE}, 6
    s_add_u32 s{S_OB}, s{S_T0}, s{S_T1}
    s_and_b32 s{S_T0}, s{S_OB}, 0x7ff
    v_add_u32 v19, s{S_T0}, v{V_L}
    v_lshlrev_b32 v19, 7, v19
    buffer_load_dword v20, v19, s[{S_XM}:{S_XM+3}], 0 offen
    """)
    if M32:
        load_weights(a, 13, S_OB, lane32(8, swap), lambda k, jj: (16 * k + 4 * jj) * 64, touch=True)
    else:
      load_weights(a, 13, S_OB, lane16(4 if swap else 3), lambda f, jj: (32 * (f >> 1) + 4 * jj) * 64 + (f & 1) * (8 if swap else 32))
    a(f"""
    v_lshrrev_b32 v{V_T0}, 3, v{V_L}
    s_lshl_b32 s{S_T0}, s{S_WAVE}, 3
    v_add_u32 v{V_T0}, s{S_T0}, v{V_T0}
    v_bfe_u32 v{V_T1}, v{V_T0}, 1, 3
    v_and_b32 v{V_T2}, 7, v{V_L}
    v_xor_b32 v{V_T1}, v{V_T1}, v{V_T2}
    v_lshlrev_b32 v{V_DX}, 11, v{V_T0}
    v_lshl_add_u32 v{V_DX}, v{V_T1}, 4, v{V_DX}
    s_lshl_b32 s{S_XB}, s{S_WAVE}, 10
    v_and_b32 v{V_T0}, 15, v{V_L}
    v_bfe_u32 v{V_T1}, v{V_T0}, 1, 3
    v_lshrrev_b32 v{V_T2}, 4, v{V_L}
    v_xor_b32 v{V_T1}, v{V_T1}, v{V_T2}
    v_lshlrev_b32 v{V_RA}, 7, v{V_T0}
    v_lshl_add_u32 v{V_RA}, v{V_T1}, 4, v{V_RA}
    v_xor_b32 v{V_RA+1}, 64, v{V_RA}
    v_add_u32 v{V_RA+2}, 0x10000, v{V_RA}
    v_add_u32 v{V_RA+3}, 0x10000, v{V_RA+1}
    v_mov_b32 v{V_ST}, v{V_LL}
    """)
    if M32:
        a(f"""
        v_and_b32 v{V_T0}, 31, v{V_L}
        v_bfe_u32 v{V_T1}, v{V_T0}, 1, 3
        v_lshrrev_b32 v{V_T2}, 5, v{V_L}
        v_xor_b32 v{V_T1}, v{V_T1}, v{V_T2}
        v_lshlrev_b32 v{V_RA}, 7, v{V_T0}
        v_lshl_add_u32 v{V_RA}, v{V_T1}, 4, v{V_RA}
        v_xor_b32 v{V_RA+1}, 32, v{V_RA}
        v_xor_b32 v{V_RA+2}, 64, v{V_RA}
        v_xor_b32 v{V_RA+3}, 96, v{V_RA}
        v_add_u32 v{V_RA+4}, 0x10000, v{V_RA}
        v_add_u32 v{V_RA+5}, 0x10000, v{V_RA+1}
        v_add_u32 v{V_RA+6}, 0x10000, v{V_RA+2}
        v_add_u32 v{V_RA+7}, 0x10000, v{V_RA+3}
        v_bfe_u32 v{V_T1}, v{V_L}, 4, 1
        v_lshlrev_b32 v{V_ST}, 10, v{V_T1}
        v_lshl_add_u32 v{V_ST}, v{V_T2}, 8, v{V_ST}
        v_and_b32 v{V_T1}, 15, v{V_L}
        v_lshl_add_u32 v{V_ST}, v{V_T1}, 4, v{V_ST}
        """)
    a(f"""
    s_lshl_b32 s{S_CU}, s{S_H}, 2
    s_add_u32 s{S_CU}, s{S_CU}, s{S_WAVE}
    s_mov_b32 s{S_SEG}, 0
    """)


def xdma_lines(buf, s_off):
    out = []
    for kb in range(16):
        out.append([f"s_add_u32 m0, s{S_XB}, {buf*65536 + kb*3968}", "s_nop 0",
                    f"buffer_load_dwordx4 v{V_DX}, s[{S_XM}:{S_XM+3}], s{s_off} offen offset:{128*kb} lds"])
    return out


def proj_segment(a, buf, acc, wA, fill):
    def rd(n):
        f = FR + 4 * (n % NFR)
        k = n >> 1
        if M32:
            a(f"ds_read_b128 v[{f}:{f+3}], v{V_RA + 4*buf + (n & 3)} offset:{4096*(n >> 2)}")
        else:
            a(f"ds_read_b128 v[{f}:{f+3}], v{V_RA + 2*buf + (k & 1)} offset:{4096*(k >> 1) + 2048*(n & 1)}")
    for n in range(AHEAD):
        rd(n)
    for n in range(64):
        f = FR + 4 * (n % NFR)
        k, tt = n >> 1, n & 1
        fl = list(fill.get(n, []))
        if fl and "m0" in fl[0] and fl[1] == "s_nop 0":
            a(fl[0]); fl = fl[2:]
        if not (E("LG2", 1) and n % 2 == 1 and n + AHEAD < 64):
            a(f"s_waitcnt lgkmcnt({min(AHEAD, 64 - n) - 1 - (1 if E('LG2', 1) and n + 1 + AHEAD < 64 else 0)})")
        if M32:
            c = "0" if n == 0 else f"v[{acc}:{acc+15}]"
            if wA:
                a(f"v_mfma_f32_32x32x16_bf16 v[{acc}:{acc+15}], a[{4*n}:{4*n+3}], v[{f}:{f+3}], {c}")
            else:
                a(f"v_mfma_f32_32x32x16_bf16 v[{acc}:{acc+15}], v[{f}:{f+3}], a[{4*n}:{4*n+3}], {c}")
            if n + AHEAD < 64:
                rd(n + AHEAD)
        for u in range(0 if M32 else 2):
            d = acc + 8 * tt + 4 * u
            w = 4 * (2 * k + u)
            c = "0" if k == 0 else f"v[{d}:{d+3}]"
            if wA:
                a(f"v_mfma_f32_16x16x32_bf16 v[{d}:{d+3}], a[{w}:{w+3}], v[{f}:{f+3}], {c}")
            else:
                a(f"v_mfma_f32_16x16x32_bf16 v[{d}:{d+3}], v[{f}:{f+3}], a[{w}:{w+3}], {c}")
            if u == 0 and n + AHEAD < 64:
                rd(n + AHEAD)
        for l in fl:
            a(l)


def pack_lines(acc, isV):
    src = [0, 2, 8, 10, 4, 6, 12, 14] if isV else [0, 2, 4, 6, 8, 10, 12, 14]
    return [f"v_cvt_pk_bf16_f32 v{EP+i}, v{acc+s}, v{acc+s+1}" for i, s in enumerate(src)]


def kvx(cu):
    m = E("KVPAR", 0)
    return ["", f"s_xor_b32 s{S_T1}, s{S_T1}, 1", f"s_xor_b32 s{S_T1}, s{S_T1}, s{cu}"][m]


def near_base(a, dst, cu, log, region):
    a(f"""
    s_lshr_b32 s{S_T1}, s{cu}, {21 - log}
    s_xor_b32 s{S_T1}, s{S_T1}, s98
    {kvx(cu) if log == 18 else ""}
    s_and_b32 s{S_T1}, s{S_T1}, 1
    s_lshl_b32 s{S_T1}, s{S_T1}, 13
    s_lshl_b32 s{dst}, s{cu}, {log}
    s_add_u32 s{dst}, s{dst}, s{S_T1}
    s_add_u32 s{dst}, s{dst}, {region}
    """)


def kv_role(a: Asm, name, isV, ts, sync):
    proj_setup(a, KA_WV if isV else KA_WK, not isV)
    tsx(a, ts, 2)
    a("s_mov_b32 s50, 0")
    for g in xdma_lines(0, 50):
        a("\n".join(g))
    def store_lines():
        return [f"s_add_u32 s51, s{S_SEG}, s{S_CU}", "s_sub_u32 s51, s51, 1", "s_bfe_u32 s52, s51, 0x40002", "s_lshl_b32 s52, s52, 14",
                "s_and_b32 s51, s51, 3", "s_lshl_b32 s51, s51, 11", "s_add_u32 s51, s51, s52", f"s_add_u32 s51, s51, s{S_OB}",
                f"buffer_store_dwordx4 v[{EP}:{EP+3}], v{V_ST}, {SRD}, s51 offen sc1",
                f"buffer_store_dwordx4 v[{EP+4}:{EP+7}], v{V_ST}, {SRD}, s51 offen offset:{GR2} sc1"]

    def flag_lines():
        return [f"v_mov_b32 v17, s{S_SEG}", "s_mov_b64 exec, 1", f"buffer_store_dword v17, v16, {SRD}, s{S_FL} offen sc1", "s_mov_b64 exec, -1"]

    def seg(buf, first):
        a("\n".join(pst(0)))
        a(f"s_waitcnt vmcnt({0 if first else 2})")
        a("\n".join(pst(1)))
        a("s_barrier")
        a("\n".join(pst(2)))
        a(f"s_add_u32 s50, s{S_SEG}, 1\ns_min_u32 s50, s50, 63\ns_lshl_b32 s50, s50, 16")
        fill = {}
        if not first:
            pk = pack_lines(ACC[1 - buf], isV)
            fill[0] = pk[:3]; fill[1] = pk[3:6]; fill[2] = pk[6:]
            st = store_lines()
            fill[3] = st[:4]; fill[4] = st[4:9]; fill[5] = st[9:]
            fill[E("FG", 42)] = pst(3) + ["s_waitcnt vmcnt(16)"] + pst(4) + flag_lines()
        fill[E("FG", 42) + 2] = [f"s_add_u32 s53, s{S_SEG}, 3", "s_min_u32 s53, s53, 63", "s_lshl_b32 s53, s53, 16",
                    "s_mov_b64 exec, 0xffff", f"buffer_load_dword v18, v19, s[{S_XM}:{S_XM+3}], s53 offen", "s_mov_b64 exec, -1"]
        for i, g in enumerate(xdma_lines(1 - buf, 50)):
            fill[7 + 2 * i] = g
        proj_segment(a, buf, ACC[buf], not isV, fill)
        a(f"s_add_u32 s{S_SEG}, s{S_SEG}, 1")
    a(f"s_and_b32 s53, s{S_CU}, 31\ns_lshl_b32 s53, s53, 4\nv_add_u32 v19, s53, v{V_L}\nv_lshlrev_b32 v19, 7, v19")
    pinit(a)
    seg(0, True)
    sync(V_T0)
    tsx(a, ts, 3)
    near_base(a, S_OB, S_CU, 18, WS_VT if isV else WS_KX)
    a(f"""
    s_xor_b32 s{S_T1}, s98, 1
    s_lshl_b32 s{S_T1}, s{S_T1}, 13
    s_lshl_b32 s{S_FL}, s{S_H}, 7
    s_add_u32 s{S_FL}, s{S_FL}, s{S_T1}
    s_lshl_b32 s{S_T1}, s{S_WAVE}, 2
    s_add_u32 s{S_FL}, s{S_FL}, s{S_T1}
    s_add_u32 s{S_FL}, s{S_FL}, {WS_F + (F_V if isV else F_K)}
    v_mov_b32 v16, 0
    """)

    a("\n".join(pack_lines(ACC[0], isV) + store_lines() + ["s_waitcnt vmcnt(0)"] + flag_lines()))
    a.label(f"{name}_loop")
    seg(1, False)
    a(f"s_cmp_eq_u32 s{S_SEG}, 64\ns_cbranch_scc1 {name}_fin")
    seg(0, False)
    a(f"s_branch {name}_loop")
    a.label(f"{name}_fin")
    a.nops(12)
    a("\n".join(pack_lines(ACC[1], isV) + store_lines() + ["s_waitcnt vmcnt(0)"] + flag_lines()))
    pdump(a)
    a("s_waitcnt vmcnt(0)\ns_barrier")


def qx_role(a: Asm, name, ts, sync):
    sync(V_T0)
    proj_setup(a, KA_WQ, True)
    tsx(a, ts, 3)
    L_Q, L_KV, L_KM = 131072, 139264, 155648
    S_NT, S_EH, S_C, S_KVN, S_KMN = 52, 53, 54, 55, 56
    S_KB, S_MB, S_LK, S_LM = 58, 59, 60, 61
    S_MK = 12
    V_G, V_M, V_OKM, V_OVM, V_OO, V_NEG, V_CM, V_OF, V_OF2, V_QW, V_QR = 92, 93, 94, 95, 96, 97, 98, 99, 100, 101, 102
    ONE, LS = 104, 108
    V_KR, V_VR = 103, 240
    KX, VT, KM, VM, Q, S, P, O, TMP = 112, 144, 160, 176, 184, 200, 212, 220, 236
    a(f"""
    v_lshrrev_b32 v{V_G}, 4, v{V_L}
    v_and_b32 v{V_M}, 15, v{V_L}
    s_and_b32 s{S_NT}, s{S_WAVE}, 1
    s_lshr_b32 s{S_EH}, s{S_WAVE}, 1
    s_mov_b32 s{S_C}, 0x3e0293ee
    s_mov_b32 s{S_KVN}, 0
    s_mov_b32 s{S_KMN}, 0
    v_mov_b32 v{V_NEG}, 0xff7fffff
    v_and_b32 v{V_T0}, 7, v{V_M}
    v_lshlrev_b32 v{V_OKM}, 7, v{V_G}
    v_lshl_add_u32 v{V_OKM}, v{V_T0}, 4, v{V_OKM}
    v_and_b32 v{V_T0}, 31, v{V_L}
    v_lshlrev_b32 v{V_OVM}, 3, v{V_T0}
    v_lshrrev_b32 v{V_T0}, 1, v{V_G}
    v_lshlrev_b32 v{V_OO}, 10, v{V_T0}
    v_and_b32 v{V_T0}, 1, v{V_G}
    v_lshl_add_u32 v{V_OO}, v{V_T0}, 9, v{V_OO}
    v_lshl_add_u32 v{V_OO}, v{V_M}, 4, v{V_OO}
    s_lshl_b32 s{S_T0}, s{S_H}, 13
    s_lshl_b32 s{S_T1}, s{S_EH}, 12
    s_add_u32 s{S_T0}, s{S_T0}, s{S_T1}
    s_lshl_b32 s{S_T1}, s{S_NT}, 8
    s_add_u32 s{S_T0}, s{S_T0}, s{S_T1}
    s_add_u32 s{S_T0}, s{S_T0}, {WS_O}
    v_add_u32 v{V_OO}, s{S_T0}, v{V_OO}
    s_lshl_b32 s{S_T0}, s{S_NT}, 4
    v_add_u32 v{V_CM}, s{S_T0}, v{V_M}
    v_lshlrev_b32 v{V_T0}, 2, v{V_G}
    v_sub_u32 v{V_CM}, v{V_CM}, v{V_T0}
    s_mov_b32 s28, 0
    s_mov_b32 s29, -1
    s_xor_b32 s{S_T1}, s98, 1
    s_lshl_b32 s{S_T1}, s{S_T1}, 13
    s_lshl_b32 s{S_T0}, s{S_H}, 7
    s_add_u32 s{S_T0}, s{S_T0}, s{S_T1}
    s_add_u32 s{S_T0}, s{S_T0}, {WS_F}
    v_and_b32 v{V_T0}, 3, v{V_L}
    v_bfe_u32 v{V_T1}, v{V_L}, 2, 1
    v_lshlrev_b32 v{V_OF}, 12, v{V_T1}
    v_lshl_add_u32 v{V_OF}, v{V_T0}, 2, v{V_OF}
    v_add_u32 v{V_OF}, s{S_T0}, v{V_OF}
    s_xor_b32 s62, s98, 1
    s_lshl_b32 s62, s62, 13
    s_lshr_b32 s{S_T1}, s{S_CU}, 6
    s_lshl_b32 s{S_T1}, s{S_T1}, 14
    s_add_u32 s62, s62, s{S_T1}
    s_and_b32 s{S_T1}, s{S_CU}, 63
    s_lshl_b32 s{S_T1}, s{S_T1}, 7
    s_add_u32 s62, s62, s{S_T1}
    s_add_u32 s62, s62, {WS_F + F_KVM}
    s_lshl_b32 s{S_FL}, s{S_CU}, 2
    s_add_u32 s{S_FL}, s{S_FL}, {WS_F + F_O}
    s_lshl_b32 s{S_T0}, s{S_WAVE}, 11
    s_add_u32 s{S_T0}, s{S_T0}, {L_Q}
    v_add_u32 v{V_QW}, s{S_T0}, v{V_ST}
    s_lshl_b32 s{S_T0}, s{S_NT}, 10
    s_add_u32 s{S_T0}, s{S_T0}, {L_Q}
    v_add_u32 v{V_QR}, s{S_T0}, v{V_LL}
    v_mov_b32 v16, 0
    s_mov_b32 s50, 0
    """)
    for i in range(4):
        a(f"v_mov_b32 v{ONE+i}, 0x3f803f80")
    for t in range(2):
        for r in range(4):
            a(f"v_cmp_gt_i32 s[{S_MK+8*t+2*r}:{S_MK+8*t+2*r+1}], {16*t+r}, v{V_CM}")
    near_base(a, S_KB, S_CU, 18, WS_KX)
    near_base(a, S_MB, S_CU, 17, WS_KVM)
    a(f"""
    s_lshl_b32 s{S_LK}, s{S_WAVE}, 11
    s_add_u32 s{S_LK}, s{S_LK}, {L_KV}
    s_lshl_b32 s{S_LM}, s{S_WAVE}, 10
    s_add_u32 s{S_LM}, s{S_LM}, {L_KM}
    v_add_u32 v{V_OKM}, {L_KM}, v{V_OKM}
    s_lshl_b32 s{S_T0}, s{S_EH}, 11
    s_add_u32 s{S_T0}, s{S_T0}, {L_KM + 512}
    v_add_u32 v{V_OVM}, s{S_T0}, v{V_OVM}
    v_add_u32 v{V_KR}, {L_KV}, v{V_LL}
    s_lshl_b32 s{S_T0}, s{S_EH}, 12
    s_add_u32 s{S_T0}, s{S_T0}, {L_KV + 8192}
    v_add_u32 v{V_VR}, s{S_T0}, v{V_LL}
    """)
    for g in xdma_lines(0, 50):
        a("\n".join(g))
    a("s_waitcnt vmcnt(0)")

    def wait_flag(tag, known, voff, sleep):
        a(f"""
        s_cmp_gt_i32 s{known}, s{S_SEG}
        s_cbranch_scc1 {name}_{tag}k
{name}_{tag}w:
        """)
        wdog(a, name)
        a(f"""
        buffer_load_dword v{V_T0}, v{voff}, {SRD}, 0 offen sc1
        s_waitcnt vmcnt(0)
        v_min_i32_dpp v{V_T0}, v{V_T0}, v{V_T0} quad_perm:[1,0,3,2] row_mask:0xf bank_mask:0xf
        s_nop 1
        v_min_i32_dpp v{V_T0}, v{V_T0}, v{V_T0} quad_perm:[2,3,0,1] row_mask:0xf bank_mask:0xf
        s_nop 1
        v_min_i32_dpp v{V_T0}, v{V_T0}, v{V_T0} row_ror:4 row_mask:0xf bank_mask:0xf
        s_nop 0
        v_readfirstlane_b32 s{known}, v{V_T0}
        s_cmp_gt_i32 s{known}, s{S_SEG}
        s_cbranch_scc1 {name}_{tag}k
        s_sleep {sleep}
        s_branch {name}_{tag}w
{name}_{tag}k:
        """)

    def flag_lines():
        return [f"v_mov_b32 v17, s{S_SEG}", "s_mov_b64 exec, 1", f"buffer_store_dword v17, v16, {SRD}, s{S_FL} offen sc1", "s_mov_b64 exec, -1"]

    def kmpoll_lines():
        if E("APOLL", 1):
            return [f"v_mov_b32 v{V_OF2}, 0", "s_mov_b64 exec, 1", f"buffer_atomic_add v{V_OF2}, v16, {SRD}, s62 offen sc0 sc1", "s_mov_b64 exec, -1"]
        return [f"buffer_load_dword v{V_OF2}, v16, {SRD}, s62 offen sc1"]

    def km_lines():
        return [f"s_mov_b32 m0, s{S_LM}", "s_nop 0", f"buffer_load_dwordx4 v{V_LL}, {SRD}, s68 offen sc1 lds"]

    def seg(buf):
        a("s_barrier")
        a("\n".join(pst(0)))
        wait_flag(f"kv{buf}", S_KVN, V_OF, 4)
        a(f"""
        s_add_u32 s51, s{S_CU}, s{S_SEG}
        s_bfe_u32 s57, s51, 0x40002
        s_lshl_b32 s57, s57, 14
        s_and_b32 s66, s51, 3
        s_lshl_b32 s66, s66, 11
        s_add_u32 s66, s66, s57
        s_add_u32 s66, s66, s{S_KB}
        s_add_u32 s67, s66, {WS_VT}
        s_bfe_u32 s57, s51, 0x30003
        s_lshl_b32 s57, s57, 14
        s_and_b32 s68, s51, 7
        s_lshl_b32 s68, s68, 10
        s_add_u32 s68, s68, s57
        s_add_u32 s68, s68, s{S_MB}
        s_add_u32 s50, s{S_SEG}, 1
        s_min_u32 s50, s50, 63
        s_lshl_b32 s50, s50, 16
        s_cmp_gt_i32 s{S_KMN}, s{S_SEG}
        s_cselect_b32 s30, 1, 0
        """)
        fill = {}
        for i in range(4):
            fill[2 * i] = [f"s_add_u32 m0, s{S_LK}, {8192 * (i >> 1)}", "s_nop 0",
                           f"buffer_load_dwordx4 v{V_LL}, {SRD}, s{66 + (i >> 1)} offen offset:{1024 * (i & 1)} sc1 lds"]
        fill[8] = ["s_cmp_eq_u32 s30, 1", f"s_cbranch_scc0 {name}_ke{buf}"] + km_lines() + [f"{name}_ke{buf}:"]
        for i, g in enumerate(xdma_lines(1 - buf, 50)):
            fill[10 + 2 * i] = g
        a("\n".join(pst(1)))
        fill[27] = ["s_waitcnt vmcnt(13)"] + flag_lines()
        fill[29] = kmpoll_lines()
        fill[58] = ["s_waitcnt vmcnt(6)", f"v_readfirstlane_b32 s{S_KMN}, v{V_OF2}", "s_cmp_eq_u32 s30, 1", f"s_cbranch_scc1 {name}_kf{buf}",
                    f"s_cmp_gt_i32 s{S_KMN}, s{S_SEG}", f"s_cbranch_scc0 {name}_kf{buf}", "s_mov_b32 s30, 1"] + km_lines() + [f"{name}_kf{buf}:"]
        proj_segment(a, buf, ACC[0], True, fill)
        a("\n".join(pst(2)))
        a(f"s_cmp_eq_u32 s30, 1\ns_cbranch_scc1 {name}_kl{buf}")
        a.label(f"{name}_kw{buf}")
        wdog(a, name)
        a("\n".join(kmpoll_lines()))
        a(f"""
        s_waitcnt vmcnt(0)
        v_readfirstlane_b32 s{S_KMN}, v{V_OF2}
        s_cmp_gt_i32 s{S_KMN}, s{S_SEG}
        s_cbranch_scc0 {name}_kw{buf}
        """)
        a("\n".join(km_lines()))
        a.label(f"{name}_kl{buf}")
        a("\n".join(pst(4)))
        a.nops(10)
        a("\n".join(pack_lines(ACC[0], False)))
        a(f"""
        ds_write_b128 v{V_QW}, v[{EP}:{EP+3}]
        ds_write_b128 v{V_QW}, v[{EP+4}:{EP+7}] offset:{GR2}
        s_waitcnt lgkmcnt(0) vmcnt(0)
        s_barrier
        """)
        a("\n".join(pst(5)))
        for j in range(4):
            a(f"ds_read_b128 v[{Q+4*j}:{Q+4*j+3}], v{V_QR} offset:{2048*j}")
            for t in range(2):
                a(f"ds_read_b128 v[{KX+16*t+4*j}:{KX+16*t+4*j+3}], v{V_KR} offset:{2048*j + 1024*t}")
        for j in range(4):
            a(f"s_waitcnt lgkmcnt({9 - 2*j})")
            for t in range(2):
                c = "0" if j == 0 else f"v[{S+4*t}:{S+4*t+3}]"
                a(f"v_mfma_f32_16x16x32_bf16 v[{S+4*t}:{S+4*t+3}], v[{KX+16*t+4*j}:{KX+16*t+4*j+3}], v[{Q+4*j}:{Q+4*j+3}], {c}")
            a(f"ds_read_b128 v[{KM+4*j}:{KM+4*j+3}], v{V_OKM} offset:{1024*j}")
        for j in range(4):
            a(f"s_waitcnt lgkmcnt({3 + j})")
            c = "0" if j == 0 else f"v[{S+8}:{S+11}]"
            a(f"v_mfma_f32_16x16x32_bf16 v[{S+8}:{S+11}], v[{KM+4*j}:{KM+4*j+3}], v[{Q+4*j}:{Q+4*j+3}], {c}")
            a(f"ds_read_b128 v[{VT+4*j}:{VT+4*j+3}], v{V_VR} offset:{1024*j}")
            a(f"ds_read_b64 v[{VM+2*j}:{VM+2*j+1}], v{V_OVM} offset:{1024*(j >> 1) + 256*(j & 1)}")
        a.nops(4)
        for i in range(8):
            a(f"v_cndmask_b32 v{S+i}, v{S+i}, v{V_NEG}, s[{S_MK+2*i}:{S_MK+2*i+1}]")
        for i in range(4):
            a(f"v_cndmask_b32 v{S+8+i}, v{S+8+i}, v{V_NEG}, s[28:29]")
        MX, TM, SM = TMP, TMP + 1, TMP + 2
        a(f"v_max3_f32 v{MX}, v{S}, v{S+1}, v{S+2}")
        for i in range(3, 11, 2):
            a(f"v_max3_f32 v{MX}, v{MX}, v{S+i}, v{S+i+1}")
        a(f"""
        v_max_f32 v{TM}, v{MX}, v{S+11}
        v_max_f32 v{MX}, v{MX}, v{S+11}
        s_nop 1
        v_permlane16_swap_b32 v{MX}, v{TM}
        s_nop 0
        v_max_f32 v{SM}, v{MX}, v{TM}
        v_max_f32 v{SM+1}, v{MX}, v{TM}
        s_nop 1
        v_permlane32_swap_b32 v{SM}, v{SM+1}
        s_nop 0
        v_max_f32 v{MX}, v{SM}, v{SM+1}
        v_mul_f32 v{MX}, s{S_C}, v{MX}
        """)
        for i in range(12):
            a(f"v_fma_f32 v{S+i}, v{S+i}, s{S_C}, -v{MX}")
        for i in range(12):
            a(f"v_exp_f32 v{S+i}, v{S+i}")
        a.nops(1)
        for i in range(6):
            a(f"v_cvt_pk_bf16_f32 v{P+i}, v{S+2*i}, v{S+2*i+1}")
        a("s_waitcnt lgkmcnt(0)\ns_nop 0")
        a(f"v_mfma_f32_16x16x32_bf16 v[{LS}:{LS+3}], v[{ONE}:{ONE+3}], v[{P}:{P+3}], 0")
        for T in range(4):
            a(f"v_mfma_f32_16x16x32_bf16 v[{O+4*T}:{O+4*T+3}], v[{VT+4*T}:{VT+4*T+3}], v[{P}:{P+3}], 0")
        a(f"v_mfma_f32_16x16x16_bf16 v[{LS}:{LS+3}], v[{ONE}:{ONE+1}], v[{P+4}:{P+5}], v[{LS}:{LS+3}]")
        for T in range(4):
            a(f"v_mfma_f32_16x16x16_bf16 v[{O+4*T}:{O+4*T+3}], v[{VM+2*T}:{VM+2*T+1}], v[{P+4}:{P+5}], v[{O+4*T}:{O+4*T+3}]")
        a(f"""
        s_lshl_b32 s51, s{S_SEG}, 18
        s_nop 2
        v_rcp_f32 v{SM}, v{LS}
        v_rcp_f32 v{SM+1}, v{LS+1}
        s_nop 1
        """)
        for i in range(0, 16, 2):
            a(f"v_pk_mul_f32 v[{O+i}:{O+i+1}], v[{O+i}:{O+i+1}], v[{SM}:{SM+1}]")
        for i in range(8):
            a(f"v_cvt_pk_bf16_f32 v{S+i}, v{O+2*i}, v{O+2*i+1}")
        a(f"""
        buffer_store_dwordx4 v[{S}:{S+3}], v{V_OO}, {SRD}, s51 offen sc1
        buffer_store_dwordx4 v[{S+4}:{S+7}], v{V_OO}, {SRD}, s51 offen offset:2048 sc1
        s_add_u32 s{S_SEG}, s{S_SEG}, 1
        """)
        a("\n".join(pst(6)))
        a(f"""
        s_cmp_lt_u32 s{S_SEG}, 64
        s_cbranch_scc1 {name}_nf{buf}
        s_waitcnt vmcnt(0)
        """)
        a("\n".join(flag_lines()))
        a.label(f"{name}_nf{buf}")
        a("\n".join(pst(7)))
    pinit(a)
    a.label(f"{name}_loop")
    seg(0)
    seg(1)
    a(f"s_cmp_lt_u32 s{S_SEG}, 64\ns_cbranch_scc1 {name}_loop")
    pdump(a)
    a.label(f"{name}_quit")
    ts(4)
    a("s_endpgm")


def out_role(a: Asm, name, ts):
    common(a, KA_WO, KA_OUT, 8 * MB)
    S_ON, S_PAR, S_PRE, S_ROT, S_PEND, S_KH, S_C = 52, 53, 55, 56, 57, 58, 59
    V_OL, V_OF, V_LW, V_LRK, V_LRS, V_OS, V_SND, V_RCV = 6, 7, 8, 9, 10, 11, 12, 13
    ACCO, RD, KEEP, INB, F0, NF, STG = 20, 52, 84, 88, 96, 32, 224
    HS, QS, US, WSs, PS = 544, 1088, 4352, 8704, 34816
    a(f"""
    s_and_b32 s{S_KH}, s{S_H}, 1
    s_lshr_b32 s{S_C}, s{S_H}, 1
    s_lshl_b32 s{S_T0}, s{S_KH}, 22
    s_lshl_b32 s{S_T1}, s{S_WAVE}, 20
    s_add_u32 s{S_T0}, s{S_T0}, s{S_T1}
    s_lshl_b32 s{S_T1}, s{S_C}, 7
    s_add_u32 s{S_OB}, s{S_T0}, s{S_T1}
    s_and_b32 s{S_ROT}, s{S_C}, 3
    s_lshl_b32 s{S_ROT}, s{S_ROT}, 7
    """)
    load_weights(a, 11, S_OB, lane32(4, rl=7), lambda f, jj: (128 * (f >> 4) + 32 * ((f >> 2) & 3) + 8 * ((f >> 1) & 1) + 16 * jj) * 128 + 64 * (f & 1), rot=S_ROT, cl=3)
    a(f"""
    s_lshl_b32 s{S_ROT}, s{S_ROT}, 6
    s_lshl_b32 s{S_T0}, s{S_KH}, 17
    s_lshl_b32 s{S_T1}, s{S_WAVE}, 15
    s_add_u32 s{S_T0}, s{S_T0}, s{S_T1}
    s_add_u32 s{S_T0}, s{S_T0}, {WS_O}
    v_add_u32 v{V_OL}, s{S_T0}, v{V_LL}
    v_and_b32 v{V_T0}, 15, v{V_L}
    v_lshlrev_b32 v{V_OF}, 2, v{V_T0}
    s_lshl_b32 s{S_T0}, s{S_KH}, 8
    s_lshl_b32 s{S_T1}, s{S_WAVE}, 6
    s_add_u32 s{S_T0}, s{S_T0}, s{S_T1}
    s_add_u32 s{S_T0}, s{S_T0}, {WS_F + F_O}
    v_add_u32 v{V_OF}, s{S_T0}, v{V_OF}
    s_mul_i32 s{S_T0}, s{S_WAVE}, {WSs}
    v_lshrrev_b32 v{V_T0}, 5, v{V_L}
    v_lshl_add_u32 v{V_LW}, v{V_T0}, 5, v{V_LL}
    v_add_u32 v{V_LW}, s{S_T0}, v{V_LW}
    v_and_b32 v{V_T0}, 7, v{V_L}
    v_mul_u32_u24 v{V_LRK}, {HS}, v{V_T0}
    v_lshrrev_b32 v{V_T1}, 3, v{V_L}
    v_lshl_add_u32 v{V_LRK}, v{V_T1}, 4, v{V_LRK}
    s_lshl_b32 s{S_T0}, s{S_WAVE}, 7
    v_add_u32 v{V_LRK}, s{S_T0}, v{V_LRK}
    s_mul_i32 s{S_T0}, s{S_KH}, {US}
    s_sub_u32 s{S_T1}, {US}, s{S_T0}
    v_add_u32 v{V_LRS}, s{S_T1}, v{V_LRK}
    v_add_u32 v{V_LRK}, s{S_T0}, v{V_LRK}
    s_lshl_b32 s{S_T0}, s{S_WAVE}, 15
    s_lshl_b32 s{S_T1}, s{S_H}, 6
    s_add_u32 s{S_T0}, s{S_T0}, s{S_T1}
    v_lshlrev_b32 v{V_OS}, 12, v{V_T1}
    v_and_b32 v{V_T0}, 7, v{V_L}
    v_lshl_add_u32 v{V_OS}, v{V_T0}, 3, v{V_OS}
    v_add_u32 v{V_OS}, s{S_T0}, v{V_OS}
    s_lshl_b32 s{S_T0}, s{S_H}, 13
    s_lshl_b32 s{S_T1}, s{S_WAVE}, 10
    s_add_u32 s{S_T0}, s{S_T0}, s{S_T1}
    s_add_u32 s{S_T0}, s{S_T0}, {WS_OI}
    v_add_u32 v{V_RCV}, s{S_T0}, v{V_LL}
    v_xor_b32 v{V_SND}, 8192, v{V_RCV}
    s_mov_b32 s{S_SEG}, 0
    s_mov_b32 s{S_ON}, 0
    s_mov_b32 s{S_PAR}, 0
    s_mov_b32 s{S_PEND}, 0
    """)

    def ld(k, sbase):
        f = F0 + 4 * k
        if k % 4 == 0:
            a(f"s_add_u32 s51, s{S_ROT}, {1024 * k}\ns_and_b32 s51, s51, 0x7fff\ns_add_u32 s51, s51, s{sbase}")
        a(f"buffer_load_dwordx4 v[{f}:{f+3}], v{V_OL}, {SRD}, s51 offen offset:{1024*(k & 3)} sc1")

    def mf(k):
        f = F0 + 4 * k
        for u in range(2):
            d = ACCO + 16 * u
            c = "0" if k == 0 else f"v[{d}:{d+15}]"
            if k == NF - 1: d = STG + 16 * u
            a(f"v_mfma_f32_32x32x16_bf16 v[{d}:{d+15}], a[{8*k+4*u}:{8*k+4*u+3}], v[{f}:{f+3}], {c}")

    def inb(sreg):
        a(f"s_and_b32 s60, s{sreg}, 1\ns_lshl_b32 s60, s60, 12")
        a(f"buffer_load_dwordx4 v[{INB}:{INB+3}], v{V_RCV}, {SRD}, s60 offen sc1")

    def fin(tag, sreg, cnt):
        a(f"s_bfe_u32 s61, s{sreg}, 0x10001\ns_waitcnt vmcnt({cnt})")
        a.label(f"{name}_{tag}c")
        a(f"""
        v_and_b32 v14, 1, v{INB}
        v_cmp_ne_u32 vcc, s61, v14
        s_cbranch_vccz {name}_{tag}k
        """)
        wdog(a, name)
        inb(sreg)
        a(f"s_waitcnt vmcnt(0)\ns_branch {name}_{tag}c")
        a.label(f"{name}_{tag}k")
        a(f"""
        v_pk_add_f32 v[{INB}:{INB+1}], v[{INB}:{INB+1}], v[{KEEP}:{KEEP+1}]
        v_pk_add_f32 v[{INB+2}:{INB+3}], v[{INB+2}:{INB+3}], v[{KEEP+2}:{KEEP+3}]
        s_lshl_b32 s60, s{sreg}, 17
        v_cvt_pk_bf16_f32 v{INB+4}, v{INB}, v{INB+1}
        v_cvt_pk_bf16_f32 v{INB+5}, v{INB+2}, v{INB+3}
        buffer_store_dwordx2 v[{INB+4}:{INB+5}], v{V_OS}, s[{S_XM}:{S_XM+3}], s60 offen
        """)

    tsx(a, ts, 3)
    pinit(a)
    a.label(f"{name}_cold")
    a(f"s_cmp_gt_i32 s{S_ON}, s{S_SEG}\ns_cbranch_scc1 {name}_fk")
    a.label(f"{name}_fw")
    wdog(a, name)
    a(f"""
    buffer_load_dword v{V_T0}, v{V_OF}, {SRD}, 0 offen sc1
    s_waitcnt vmcnt(0)
    v_min_i32_dpp v{V_T0}, v{V_T0}, v{V_T0} quad_perm:[1,0,3,2] row_mask:0xf bank_mask:0xf
    s_nop 1
    v_min_i32_dpp v{V_T0}, v{V_T0}, v{V_T0} quad_perm:[2,3,0,1] row_mask:0xf bank_mask:0xf
    s_nop 1
    v_min_i32_dpp v{V_T0}, v{V_T0}, v{V_T0} row_ror:4 row_mask:0xf bank_mask:0xf
    s_nop 1
    v_min_i32_dpp v{V_T0}, v{V_T0}, v{V_T0} row_ror:8 row_mask:0xf bank_mask:0xf
    s_nop 0
    v_readfirstlane_b32 s{S_ON}, v{V_T0}
    s_cmp_gt_i32 s{S_ON}, s{S_SEG}
    s_cbranch_scc1 {name}_fk
    s_sleep 2
    s_branch {name}_fw
    """)
    a.label(f"{name}_fk")
    a(f"s_lshl_b32 s50, s{S_SEG}, 18")
    for k in range(NF):
        ld(k, 50)
    a("\n".join(pst(0)))
    if E("KPROF", 0): a("s_add_u32 s39, s39, 64")

    uid = [0]
    def epi_groups(sreg):
        g = [[f"v_add_u32 v{V_T0}, s{S_PAR}, v{V_LW}", f"v_add_u32 v{V_T1}, s{S_PAR}, v{V_LRK}", f"v_add_u32 v{V_T2}, s{S_PAR}, v{V_LRS}"]]
        for q in range(0, 8, 2):
            g.append([f"ds_write_b128 v{V_T0}, v[{STG+4*(q+i)}:{STG+4*(q+i)+3}] offset:{QS*(q+i)}" for i in range(2)])
        g.append([])
        g.append(["s_waitcnt lgkmcnt(0)", "s_barrier"] + [f"ds_read_b128 v[{RD+4*w}:{RD+4*w+3}], v{V_T2} offset:{WSs*w}" for w in range(4)])
        g.append([f"ds_read_b128 v[{RD+16+4*w}:{RD+16+4*w+3}], v{V_T1} offset:{WSs*w}" for w in range(4)] +
                 [f"s_sub_u32 s{S_PAR}, {PS}, s{S_PAR}", f"s_bfe_u32 s61, s{sreg}, 0x10001", f"s_and_b32 s60, s{sreg}, 1", "s_lshl_b32 s60, s60, 12"])
        g.append([])
        for h, dst in ((0, RD), (16, KEEP)):
            b = RD + h
            l = [f"s_waitcnt lgkmcnt({4 if h == 0 else 0})"]
            for i in range(4):
                l.append(f"v_add_f32 v{b+i}, v{b+i}, v{b+4+i}")
                l.append(f"v_add_f32 v{b+8+i}, v{b+8+i}, v{b+12+i}")
            g.append(l)
            l = [f"v_add_f32 v{dst+i}, v{b+i}, v{b+8+i}" for i in range(4)]
            if h == 0:
                uid[0] += 1
                l += [f"v_and_or_b32 v{RD}, v{RD}, -2, s61", "s_cmp_eq_u32 s95, 0", f"s_cbranch_scc1 {name}_sa{uid[0]}",
                      f"buffer_store_dwordx4 v[{RD}:{RD+3}], v{V_SND}, {SRD}, s60 offen sc1", f"s_branch {name}_sb{uid[0]}", f"{name}_sa{uid[0]}:",
                      f"buffer_store_dwordx4 v[{RD}:{RD+3}], v{V_SND}, {SRD}, s60 offen", f"{name}_sb{uid[0]}:"]
            g.append(l)
        return g

    def loop(pre, epi):
        g = epi_groups(62) if epi else []
        for k in range(NF):
            a(f"s_waitcnt vmcnt({NF-1 if pre else NF-1-k})")
            mf(k)
            if pre: ld(k, 50)
            if 1 <= k <= len(g): a("\n".join(g[k-1]))
            if epi and k == 27: inb(62)
            if not pre and k == 20: a(f"buffer_load_dword v15, v{V_OF}, {SRD}, 0 offen sc1")
        if epi: fin(f"f{pre}", 62, 4 if pre else 0)

    for epi in range(2):
        a.label(f"{name}_w{epi}")
        a(f"""
        s_add_u32 s54, s{S_SEG}, 1
        s_sub_u32 s62, s{S_SEG}, 1
        s_lshl_b32 s50, s54, 18
        s_cmp_gt_i32 s{S_ON}, s54
        s_cbranch_scc0 {name}_n{epi}
        """)
        loop(1, epi)
        a("\n".join(pst(1)))
        a(f"s_add_u32 s{S_SEG}, s{S_SEG}, 1\ns_branch {name}_w1")
        a.label(f"{name}_n{epi}")
        loop(0, epi)
        a("\n".join(pst(2)))
        if epi == 0: a(f"s_branch {name}_imm")
    a.label(f"{name}_imm")
    a(f"""
    s_waitcnt vmcnt(1)
    v_min_i32_dpp v15, v15, v15 quad_perm:[1,0,3,2] row_mask:0xf bank_mask:0xf
    s_nop 1
    v_min_i32_dpp v15, v15, v15 quad_perm:[2,3,0,1] row_mask:0xf bank_mask:0xf
    s_nop 1
    v_min_i32_dpp v15, v15, v15 row_ror:4 row_mask:0xf bank_mask:0xf
    s_nop 1
    v_min_i32_dpp v15, v15, v15 row_ror:8 row_mask:0xf bank_mask:0xf
    s_nop 0
    v_readfirstlane_b32 s{S_ON}, v15
    s_cmp_gt_i32 s{S_ON}, s54
    s_cbranch_scc0 {name}_im2
    """)
    for k in range(NF):
        ld(k, 50)
    a(f"s_add_u32 s{S_SEG}, s{S_SEG}, 1\ns_branch {name}_w1")
    a.label(f"{name}_im2")
    for g in epi_groups(S_SEG):
        a("\n".join(g))
    inb(S_SEG)
    fin("f2", S_SEG, 0)
    a("\n".join(pst(4)))
    a(f"""
    s_add_u32 s{S_SEG}, s{S_SEG}, 1
    s_cmp_lt_u32 s{S_SEG}, 64
    s_cbranch_scc1 {name}_cold
    """)
    pdump(a)
    a.label(f"{name}_quit")
    ts(4)
    a("s_endpgm")
```

```python
import os
KNAME = "concat_heads__memory_aug_recurrent_mem_tr__spectral_gfnet__prompt"

MB = 1 << 20
WS_KX = 0
WS_VT = 32 * MB
WS_KVM = 68 * MB
WS_O = 128 * MB
WS_H = 64 * MB
WS_OI = WS_H + MB // 2
WS_XU = 144 * MB
WS_CAL = 160 * MB
WS_I = 65 * MB
WS_F = 66 * MB
WS_T1 = 88 * MB
WS_T2 = 108 * MB
WS_WT = 164 * MB
WS_PROF = 200 * MB
WS_BYTES = 256 * MB
F_K = 0
F_V = 4096
F_KVM = 16384
F_O = 49152
F_CNT = 53248

KA_AX, KA_MEM0, KA_WQ, KA_WK, KA_WV, KA_WO, KA_SEG, KA_BX, KA_WR, KA_WI, KA_OUT, KA_DBG, KA_WS = [8 * i for i in range(13)]


class Asm:
    def __init__(self):
        self.lines = []
        self.uid = 0

    def __call__(self, s):
        for l in s.strip("\n").split("\n"):
            if l.strip():
                self.lines.append(l.strip())

    def label(self, name):
        self.lines.append(name + ":")

    def text(self):
        if int(os.environ.get("A8", 0)):
            import align8
            return "\n".join(align8.fix(self.lines, int(os.environ.get("A8M", 2)), int(os.environ.get("A8I", 7)))) + "\n"
        return "\n".join(self.lines) + "\n"

    def kernel_begin(self, name):
        self.lines.append(f".globl {name}")
        self.lines.append(".p2align 8")
        self.lines.append(f".type {name},@function")
        self.lines.append(f"{name}:")

    def nops(self, n):
        while n > 0:
            k = min(n, 16)
            self(f"s_nop {k-1}")
            n -= k


def kd(name, vgpr, sgpr=102, accum=None, ids="x"):
    if accum is None:
        accum = (vgpr + 3) // 4 * 4
    return f""".p2align 6
.amdhsa_kernel {name}
  .amdhsa_next_free_vgpr {vgpr}
  .amdhsa_next_free_sgpr {sgpr}
  .amdhsa_accum_offset {accum}
  .amdhsa_group_segment_fixed_size 0
  .amdhsa_kernarg_size 104
  .amdhsa_user_sgpr_count 2
  .amdhsa_user_sgpr_kernarg_segment_ptr 1
  .amdhsa_system_sgpr_workgroup_id_x 1
.end_amdhsa_kernel
"""


HEADER = open(os.path.join(os.path.dirname(os.path.abspath(__file__)), "..", KNAME + ".s.ref")).read().split("; Override launch geometry")[0]


WD_SITES = []
def wd_code(a, tag, info="s2"):
    if not int(os.environ.get("WD", 0)):
        return
    WD_SITES.append(tag)
    n = len(WD_SITES)
    a(f"""
    s_add_u32 s99, s99, 1
    s_cmp_lt_u32 s99, {int(os.environ.get("WDN", 200000))}
    s_cbranch_scc1 wdok_{n}
    s_mov_b64 exec, -1
    v_lshrrev_b32 v253, 6, v0
    v_lshlrev_b32 v253, 4, v253
    v_mov_b32 v254, {n}
    v_mov_b32 v255, {info}
    s_lshl_b32 s99, s2, 6
    s_add_u32 s99, s99, {WS_PROF + 12 * MB}
    buffer_store_dwordx2 v[254:255], v253, s[84:87], s99 offen
    v_mov_b32 v254, s90
    v_mov_b32 v255, s96
    buffer_store_dwordx2 v[254:255], v253, s[84:87], s99 offen offset:8
    s_endpgm
wdok_{n}:
    """)
```

```python
from gen_common import *

S_X, S_T = 30, 31
S_WSD, S_DBG = 84, 72
E = lambda k, d: int(os.environ.get(k, d))


D_VOTE, D_PD, D_SLOW, D_PD2 = 128, 160, 192, 224


def start_code(a: Asm, name):
    W, D = S_WSD, S_DBG
    a(f"""
    s_load_dwordx2 s[{W}:{W+1}], s[0:1], {KA_WS}
    s_load_dwordx2 s[{D}:{D+1}], s[0:1], {KA_DBG}
    s_getreg_b32 s90, hwreg(HW_REG_XCC_ID)
    s_and_b32 s90, s90, 7
    v_mov_b32 v1, 0
    v_mov_b32 v2, 1
    s_lshl_b32 s91, s90, 4
    s_mov_b32 s95, 0
    s_mov_b32 s99, 0
    s_waitcnt lgkmcnt(0)
    s_mov_b32 s{W+2}, {WS_BYTES}
    s_mov_b32 s{W+3}, 0x00020000
    s_mov_b32 s{D+2}, 256
    s_mov_b32 s{D+3}, 0x00020000
    v_cmp_eq_u32 vcc, 0, v0
    s_and_saveexec_b64 s[88:89], vcc
    s_cbranch_execz {name}_tkd
    s_lshl_b32 s92, s2, 13
    s_add_u32 s92, s92, {WS_CAL}
    buffer_atomic_add v2, v1, s[{D}:{D+3}], s91 offen sc0
    buffer_load_dword v251, v1, s[{W}:{W+3}], s92 offen offset:2048 sc1
    s_waitcnt vmcnt(1)
    ds_write_b32 v1, v2
    s_waitcnt lgkmcnt(0)
{name}_tkd:
    s_mov_b64 exec, s[88:89]
    s_barrier
    ds_read_b32 v2, v1
    s_waitcnt lgkmcnt(0)
    v_readfirstlane_b32 s96, v2
    s_barrier
    """)


def sync_code(a: Asm, kname, tag, vt, force_slow=False):
    D = S_DBG
    n = f"{kname}_sy{tag}"
    a(f"""
    v_and_b32 v{vt+1}, 15, v0
    v_lshlrev_b32 v{vt+1}, 4, v{vt+1}
    s_branch {n}
{n}w:
    s_sleep 4
{n}:
    """)
    wd_code(a, n)
    a(f"""
    buffer_load_dword v{vt}, v{vt+1}, s[{D}:{D+3}], 0 offen sc1
    s_waitcnt vmcnt(0)
    s_cmp_eq_u32 s95, 1
    s_cbranch_scc0 {n}f
    v_readlane_b32 s76, v{vt}, {D_PD2 // 16}
    s_mov_b32 s98, 0
    s_cmp_eq_u32 s76, 64
    s_cbranch_scc0 {n}w
    s_branch {n}d
{n}f:
    s_mov_b32 s77, 0
    s_mov_b32 s78, 0
    """)
    for i in range(8):
        a(f"v_readlane_b32 s76, v{vt}, {i}\ns_add_u32 s77, s77, s76\ns_xor_b32 s76, s76, 32\ns_or_b32 s78, s78, s76")
    a(f"""
    s_cmp_eq_u32 s77, 256
    s_cbranch_scc0 {n}w
    {"s_mov_b32 s78, 1" if force_slow else ""}
    v_mov_b32 v252, v{vt}
    s_cmp_eq_u32 s78, 0
    s_cbranch_scc0 {kname}_slowent
    v_readlane_b32 s76, v{vt}, {D_PD // 16}
    v_readlane_b32 s77, v{vt}, {D_VOTE // 16}
    s_cmp_eq_u32 s76, 64
    s_cbranch_scc0 {n}w
    s_cmp_gt_u32 s77, 32
    s_cselect_b32 s98, 1, 0
    {f"s_xor_b32 s98, s98, {os.environ['PAR']}" if "PAR" in os.environ else ""}
{n}d:
    """)


def slow_entry(a: Asm, name):
    D = S_DBG
    a.label(f"{name}_slowent")
    a(f"""
    s_mov_b64 exec, -1
    s_waitcnt vmcnt(0) lgkmcnt(0)
    s_barrier
    s_mov_b32 s97, s96
    """)
    for i in range(7):
        a(f"v_readlane_b32 s76, v252, {i}\ns_cmp_gt_u32 s90, {i}\ns_cselect_b32 s76, s76, 0\ns_add_u32 s97, s97, s76")
    a(f"""
    v_mov_b32 v1, 0
    v_mov_b32 v2, 1
    v_cmp_eq_u32 vcc, 0, v0
    s_and_saveexec_b64 s[88:89], vcc
    s_cbranch_execz {name}_sb1
    buffer_atomic_add v2, v1, s[{D}:{D+3}], 0 offen offset:{D_SLOW} sc1
{name}_sb1:
    s_mov_b64 exec, s[88:89]
{name}_sb2:
    s_sleep 4
    """)
    wd_code(a, "slowbar")
    a(f"""
    buffer_load_dword v2, v1, s[{D}:{D+3}], 0 offen offset:{D_SLOW} sc1
    s_waitcnt vmcnt(0)
    v_cmp_ne_u32 vcc, 256, v2
    s_cbranch_vccnz {name}_sb2
    s_mov_b32 s95, 1
    """)


def init_cd(a: Asm, name, idx):
    W, D = S_WSD, S_DBG
    a(f"""
    v_mov_b32 v8, -1
    v_mov_b32 v9, -1
    v_mov_b32 v10, -1
    v_mov_b32 v11, -1
    v_lshlrev_b32 v1, 4, v0
    v_mov_b32 v2, 0
    v_cmp_gt_u32 vcc, 64, v0
    s_cbranch_vccz {name}_nv
    s_cmp_eq_u32 s95, 0
    s_cbranch_scc0 {name}_nv
    ; latency samples of both parities (order alternates with idx), sign vote
    s_lshr_b32 s60, s2, 1
    s_lshl_b32 s60, s60, 14
    s_and_b32 s61, s{idx}, 1
    s_lshl_b32 s66, s61, 13
    s_add_u32 s60, s60, s66
    s_and_b32 s66, s2, 1
    s_lshl_b32 s66, s66, 10
    s_add_u32 s60, s60, s66
    s_add_u32 s60, s60, {WS_CAL}
    s_mov_b32 s66, 0x7fffffff
    s_mov_b32 s67, 0x7fffffff
    s_waitcnt vmcnt(0)
    """)
    for i in range(E("NSAMP", 4)):
        a(f"""
        s_memtime s[62:63]
        s_waitcnt lgkmcnt(0)
        buffer_load_dword v3, v2, s[{W}:{W+3}], s60 offen offset:{256 * (i >> 1)} sc1
        s_waitcnt vmcnt(0)
        s_memtime s[64:65]
        s_xor_b32 s60, s60, 8192
        s_waitcnt lgkmcnt(0)
        s_sub_u32 s64, s64, s62
        s_min_u32 s{66 + (i & 1)}, s{66 + (i & 1)}, s64
        """)
    a(f"""
    s_cmp_lt_u32 s67, s66
    s_cselect_b32 s60, 1, 0
    s_xor_b32 s60, s60, s61          ; parity that is near this XCD
    s_lshr_b32 s61, s90, 2
    s_xor_b32 s60, s60, s61
    v_mov_b32 v3, s60
    s_mov_b64 exec, 1
    buffer_atomic_add v3, v2, s[{D}:{D+3}], 0 offen offset:{D_VOTE} sc1
    s_mov_b64 exec, -1
{name}_nv:
    s_barrier
    s_lshl_b32 s60, s{idx}, 12
    s_add_u32 s60, s60, {WS_H}
    """)
    for i in range(8):
        a(f"buffer_store_dwordx4 v[8:11], v1, s[{W}:{W+3}], s60 offen sc1")
        a(f"s_add_u32 s60, s60, {64 * 4096}")
    a(f"""
    s_cmp_lt_u32 s{idx}, 16
    s_cbranch_scc0 {name}_pz
    buffer_store_dwordx4 v[8:11], v1, s[{W}:{W+3}], s60 offen sc1
{name}_pz:
    s_waitcnt vmcnt(0)
    s_barrier
    v_mov_b32 v3, 1
    s_lshl_b32 s62, s95, 6
    v_cmp_eq_u32 vcc, 0, v0
    s_and_saveexec_b64 s[60:61], vcc
    s_cbranch_execz {name}_xps
    buffer_atomic_add v3, v2, s[{D}:{D+3}], s62 offen offset:{D_PD} sc1
{name}_xps:
    s_mov_b64 exec, s[60:61]
    """)


def rec_body(a: Asm, name, IS, sync, nsteps=64, prof=False, flags=True, ts=None):
    W = S_WSD
    SRD = f"s[{W}:{W+3}]"
    S_WQ, S_WK, S_WV, S_WO, S_M0 = 4, 8, 12, 16, 20
    S_WAVE, S_H, S_J, S_STEP, S_T0, S_T1 = 24, 25, 26, 27, 28, 29
    S_C = 32
    S_SL, S_SLO = 33, 34
    S_XS, S_XSO = 35, 36
    S_P = 37
    S_MN8, S_MMEM = 40, 42
    S_XBR, S_XBW = 44, 45
    S_KVN = 46
    S_KVB, S_FLB, S_CU, S_KXB, S_TAG = 79, 81, 82, 83, 47
    ONE, LS, ZER = 220, 224, 228
    S_MKM = 48
    V_L, V_G, V_M, V_T0, V_T1, V_IDX = 1, 2, 3, 4, 5, 6
    V_OMEM, V_OM0, V_OPUB, V_OSCM, V_OOP, V_OXW, V_OXR = 7, 8, 9, 10, 11, 12, 13
    V_LWQ, V_LWK, V_LRR, V_LL, V_LWO, V_LRO, V_LVW, V_LVR, V_OKV, V_NEG, V_OFL = 14, 15, 16, 17, 18, 19, 20, 21, 22, 23, 24
    V_POI = 28
    MA, AQ, AV = 32, 96, 112
    RP, R, KX, VTX, S, PL = 120, 152, 156, 164, 172, 184
    VM, P, PM, O, TMP = 208, 212, 216, 120, 232
    MO, AO, KVH = 32, 96, 244
    A_W1, A_WO = 0, 192
    L_QK, L_VP, L_OP, L_VM, L_XB, L_ST = 0, 9216, 13312, 17920, 18432, 32768

    TAG = E("TAG", 1)

    def wdog():
        wd_code(a, name + ":" + a.lines[-1], f"s{S_STEP}")

    def stamp(i):
        if E("TR", 0):
            if i == 0: return
            if i < 11: a(f"s_memtime s[{48+2*i}:{49+2*i}]")
            if i == 11:
                a("s_memrealtime s[70:71]\ns_memtime s[100:101]\ns_waitcnt lgkmcnt(0)\nv_writelane_b32 v250, s100, 12")
                for k in range(1, 12):
                    a(f"v_writelane_b32 v250, s{48+2*k}, {k}")
                a(f"v_writelane_b32 v250, s99, 0")
                a(f"""
                s_lshl_b32 s80, s{S_X}, 5
                s_add_u32 s80, s80, s{S_T}
                s_lshl_b32 s80, s80, 2
                s_add_u32 s80, s80, s{S_WAVE}
                s_lshl_b32 s80, s80, 6
                s_add_u32 s80, s80, s{S_STEP}
                s_lshl_b32 s80, s80, 6
                s_add_u32 s80, s80, {WS_PROF}
                v_lshlrev_b32 v251, 2, v{V_L}
                s_mov_b64 exec, 0xffff
                buffer_store_dword v250, v251, {SRD}, s80 offen
                s_mov_b64 exec, -1
                """)
            return
        if not prof or i == 11:
            return
        a("s_memtime s[66:67]")
        a("s_waitcnt lgkmcnt(0)")
        a("s_sub_u32 s68, s66, s69")
        a(f"s_add_u32 s{50+i}, s{50+i}, s68")
        a("s_mov_b32 s69, s66")

    if prof:
        for i in range(16):
            a(f"s_mov_b32 s{50+i}, 0")
        a("s_memtime s[66:67]\ns_waitcnt lgkmcnt(0)\ns_mov_b32 s69, s66")
    if ts: ts(1)
    a(f"""
    s_load_dwordx2 s[{S_M0}:{S_M0+1}], s[0:1], {KA_MEM0}
    s_load_dwordx2 s[{S_WO}:{S_WO+1}], s[0:1], {KA_WO}
    s_load_dwordx2 s[{S_WQ}:{S_WQ+1}], s[0:1], {KA_WQ}
    s_load_dwordx2 s[{S_WK}:{S_WK+1}], s[0:1], {KA_WK}
    s_load_dwordx2 s[{S_WV}:{S_WV+1}], s[0:1], {KA_WV}
    v_lshrrev_b32 v{V_T0}, 6, v0
    v_and_b32 v{V_L}, 63, v0
    v_readfirstlane_b32 s{S_WAVE}, v{V_T0}
    v_lshrrev_b32 v{V_G}, 4, v{V_L}
    v_and_b32 v{V_M}, 15, v{V_L}
    v_lshlrev_b32 v{V_LL}, 4, v{V_L}
    s_lshr_b32 s{S_T0}, s{S_T}, 2
    s_lshl_b32 s{S_H}, s{S_X}, 3
    s_add_u32 s{S_H}, s{S_H}, s{S_T0}
    s_and_b32 s{S_J}, s{S_T}, 3
    s_waitcnt lgkmcnt(0)
    s_mov_b32 s{S_M0+2}, 16384
    s_mov_b32 s{S_M0+3}, 0x00020000
    """)
    for s in (S_WO, S_WQ, S_WK, S_WV):
        a(f"s_mov_b32 s{s+2}, {8*MB}\ns_mov_b32 s{s+3}, 0x00020000")
    FULL = E("FULL", 0)
    CL = 2 + FULL
    a(f"""
    s_lshl_b32 s{S_T0}, s{S_H}, 8
    s_lshr_b32 s{S_T1}, s{S_J}, {FULL}
    s_lshl_b32 s{S_T1}, s{S_T1}, {6 + FULL}
    s_add_u32 s{S_T0}, s{S_T0}, s{S_T1}
    s_lshl_b32 s{S_T1}, s{S_WAVE}, 21
    s_add_u32 s{S_T0}, s{S_T0}, s{S_T1}
    v_lshrrev_b32 v{V_T0}, {CL}, v{V_L}
    v_and_b32 v{V_T1}, {(1 << CL) - 1}, v{V_L}
    v_lshlrev_b32 v40, 13, v{V_T0}
    v_lshl_add_u32 v40, v{V_T1}, 4, v40
    v_add_u32 v40, s{S_T0}, v40
    s_lshl_b32 s{S_T0}, s{S_X}, 21
    s_lshl_b32 s{S_T1}, s{S_WAVE}, 19
    s_add_u32 s{S_T0}, s{S_T0}, s{S_T1}
    s_lshr_b32 s{S_T1}, s{S_T}, {FULL}
    s_lshl_b32 s{S_T1}, s{S_T1}, {6 + FULL}
    s_add_u32 s{S_T0}, s{S_T0}, s{S_T1}
    v_lshlrev_b32 v41, 11, v{V_T0}
    v_lshl_add_u32 v41, v{V_T1}, 4, v41
    v_add_u32 v41, s{S_T0}, v41
    s_lshl_b32 s47, s{S_WAVE}, 15
    s_add_u32 s47, s47, {L_ST}
    """)
    order = [int(c) for c in os.environ.get("WORD", "0123")]
    PH = [(c, p) for c in order for p in range(1 << FULL)]
    RI = 64 >> CL

    def wdma(n):
        c, p = PH[n]
        srd = (S_WQ, S_WK, S_WV, S_WO)[c]
        if E("HELP", 1):
            a(f"buffer_load_dword v50, v{51 if c < 3 else 52}, s[{srd}:{srd+3}], 0 offen")
        for r in range(16):
            if E("PSW", 1):
                a(f"s_xor_b32 s{S_T1}, s76, {r}")
                a(f"s_lshl_b32 s{S_T0}, s{S_T1}, 10")
                a(f"s_add_u32 s{S_T0}, s{S_T0}, s47")
                a(f"s_add_u32 m0, s{S_T0}, {(n & 1)*16384}")
                a(f"s_lshl_b32 s{S_T1}, s{S_T1}, {17 if c < 3 else 15}")
            else:
                a(f"s_add_u32 m0, s47, {(n & 1)*16384 + 1024*r}")
                a(f"s_mov_b32 s{S_T1}, {RI * (16 * p + r) * (8192 if c < 3 else 2048)}")
            a(f"buffer_load_dwordx4 v{40 if c < 3 else 41}, s[{srd}:{srd+3}], s{S_T1} offen {'nt ' if E('RNT', 0) else ''}lds")
    WT = E("WT", 0)
    assert not (WT and FULL)
    a(f"""
    s_lshl_b32 s{S_T0}, s{S_T}, 18
    s_lshl_b32 s{S_T1}, s{S_WAVE}, 16
    s_add_u32 s{S_T0}, s{S_T0}, s{S_T1}
    s_lshl_b32 s{S_T1}, s{S_X}, 11
    s_add_u32 s{S_T0}, s{S_T0}, s{S_T1}
    v_lshlrev_b32 v48, 13, v{V_G}
    v_lshl_add_u32 v48, v{V_M}, 7, v48
    v_add_u32 v48, s{S_T0}, v48
    s_lshl_b32 s{S_T0}, s{S_X}, 21
    s_lshl_b32 s{S_T1}, s{S_T}, 16
    s_add_u32 s{S_T0}, s{S_T0}, s{S_T1}
    s_lshl_b32 s{S_T1}, s{S_WAVE}, 14
    s_add_u32 s{S_T0}, s{S_T0}, s{S_T1}
    v_lshlrev_b32 v49, 7, v{V_L}
    v_add_u32 v49, s{S_T0}, v49
    """)

    a(f"""
    s_and_b32 s76, s{S_T}, 1
    s_mul_i32 s76, s76, {E("PSW", 1) * 8 if E("PSW", 1) < 2 else E("PSW", 1)}
    ; helper touch of the slow lines: row = 256w + 16*(l&15... ) : rows w*256 + (t&15)*16 + (l&15), col (t>>4)*1024 + 384
    s_and_b32 s{S_T0}, s{S_T}, 15
    s_lshl_b32 s{S_T0}, s{S_T0}, 4
    s_lshl_b32 s{S_T1}, s{S_WAVE}, 8
    s_add_u32 s{S_T0}, s{S_T0}, s{S_T1}
    v_add_u32 v53, s{S_T0}, v{V_M}
    s_lshr_b32 s{S_T0}, s{S_T}, 4
    s_lshl_b32 s{S_T0}, s{S_T0}, 10
    s_add_u32 s{S_T0}, s{S_T0}, 384
    v_mov_b32 v54, s{S_T0}
    v_mov_b32 v55, 1920
    v_cmp_gt_u32 vcc, 32, v{V_L}
    s_nop 1
    v_cndmask_b32 v54, v55, v54, vcc
    s_lshl_b32 s{S_T1}, s{S_X}, 11
    v_lshl_add_u32 v51, v53, 13, v54
    v_add_u32 v51, s{S_T1}, v51
    s_lshl_b32 s{S_T1}, s{S_X}, 21
    v_lshl_add_u32 v52, v53, 11, v54
    v_add_u32 v52, s{S_T1}, v52
    """)

    def wtouch(n):
        c, p = PH[n]
        srd = (S_WQ, S_WK, S_WV, S_WO)[c]
        for i in range(2):
            a(f"s_mov_b32 s{S_T1}, {i * (32768 if c < 3 else 8192)}")
            a(f"buffer_load_dword v50, v{48 if c < 3 else 49}, s[{srd}:{srd+3}], s{S_T1} offen")
    if WT == 1:
        wtouch(0); wtouch(1); wdma(0); wtouch(2); wdma(1); wtouch(3)
    elif WT == 2:
        wtouch(0); wtouch(1); wtouch(2); wtouch(3); wdma(0); wdma(1)
    else:
        wdma(0); wdma(1)
    a(f"""
    s_mov_b32 s{S_MN8}, 0x00ff00ff
    s_mov_b32 s{S_MN8+1}, 0x00ff00ff
    s_mov_b32 s{S_MKM}, 0xff00ff00
    s_mov_b32 s{S_MKM+1}, 0xff00ff00
    s_mov_b32 s{S_MMEM}, 0
    s_mov_b32 s{S_MMEM+1}, 0x00ff00ff
    s_mov_b32 s{S_C}, 0x3e0293ee
    v_mov_b32 v{V_NEG}, 0xff7fffff
    v_mov_b32 v{V_IDX}, 0x4444
    v_mov_b32 v{V_T0}, 0xeeee
    v_cndmask_b32 v{V_IDX}, v{V_IDX}, v{V_T0}, s[{S_MKM}:{S_MKM+1}]
    v_mov_b32 v{V_POI}, -1
    v_mov_b32 v{V_POI+1}, -1
    v_mov_b32 v{V_POI+2}, -1
    v_mov_b32 v{V_POI+3}, -1
    s_lshl_b32 s{S_T0}, s{S_WAVE}, 12
    v_add_u32 v{V_OMEM}, s{S_T0}, v{V_LL}
    v_and_b32 v{V_T0}, 7, v{V_L}
    v_lshlrev_b32 v{V_OM0}, 11, v{V_T0}
    v_lshrrev_b32 v{V_T1}, 3, v{V_L}
    v_lshl_add_u32 v{V_OM0}, v{V_T1}, 4, v{V_OM0}
    s_lshl_b32 s{S_T0}, s{S_WAVE}, 9
    v_add_u32 v{V_OM0}, s{S_T0}, v{V_OM0}
    s_lshl_b32 s{S_T0}, s{S_T}, 9
    v_lshlrev_b32 v{V_OPUB}, 3, v{V_L}
    v_add_u32 v{V_OPUB}, s{S_T0}, v{V_OPUB}
    ; o publish: 16384 + t*512 + g*128 + (m&7)*16
    v_and_b32 v{V_T0}, 7, v{V_M}
    v_lshlrev_b32 v{V_OOP}, 7, v{V_G}
    v_lshl_add_u32 v{V_OOP}, v{V_T0}, 4, v{V_OOP}
    v_add_u32 v{V_OKV}, 0, v{V_OOP}              ; g*128 + (m&7)*16 (k_m publish)
    s_add_u32 s{S_T0}, s{S_T0}, 16384
    v_add_u32 v{V_OOP}, s{S_T0}, v{V_OOP}
    v_and_b32 v{V_T1}, 1, v{V_G}
    v_lshlrev_b32 v{V_OSCM}, 7, v{V_T1}
    v_lshl_add_u32 v{V_OSCM}, v{V_T0}, 4, v{V_OSCM}
    v_add_u32 v{V_OSCM}, 1024, v{V_OSCM}
    ; partner score offsets: 32768 + (t ^ p)*2048, own in S_P+3 (s47 later); kept relative to slot base
    """)
    for p in range(1, 4):
        a(f"""
        s_xor_b32 s{S_P+p-1}, s{S_T}, {p}
        s_lshl_b32 s{S_P+p-1}, s{S_P+p-1}, 11
        s_add_u32 s{S_P+p-1}, s{S_P+p-1}, 32768
        """)
    a(f"""
    ; LDS: q/k partial write: w*2304 + (4*(g&1))*144 + ((g>>1)*16 + m)*4
    v_and_b32 v{V_T0}, 1, v{V_G}
    v_mul_u32_u24 v{V_LWQ}, 576, v{V_T0}
    v_lshrrev_b32 v{V_T1}, 1, v{V_G}
    v_lshl_add_u32 v{V_T1}, v{V_T1}, 4, v{V_M}
    v_lshl_add_u32 v{V_LWQ}, v{V_T1}, 2, v{V_LWQ}
    s_mul_i32 s{S_T0}, s{S_WAVE}, 1152
    s_add_u32 s{S_T0}, s{S_T0}, {L_OP}
    v_add_u32 v{V_LWO}, s{S_T0}, v{V_LWQ}
    s_mul_i32 s{S_T0}, s{S_WAVE}, 2304
    v_add_u32 v{V_LWQ}, s{S_T0}, v{V_LWQ}
    v_add_u32 v{V_LWK}, 1152, v{V_LWQ}
    ; R read: m*144 + g*32
    v_mul_u32_u24 v{V_LRR}, 144, v{V_M}
    v_lshl_add_u32 v{V_LRR}, v{V_G}, 5, v{V_LRR}
    ; O partial read: L_OP + ((l>>1)&7)*144 + (2*(l>>4) + (l&1))*16
    v_bfe_u32 v{V_T0}, v{V_L}, 1, 3
    v_mul_u32_u24 v{V_LRO}, 144, v{V_T0}
    v_lshl_add_u32 v{V_LRO}, v{V_G}, 5, v{V_LRO}
    v_and_b32 v{V_T0}, 1, v{V_L}
    v_lshl_add_u32 v{V_LRO}, v{V_T0}, 4, v{V_LRO}
    v_add_u32 v{V_LRO}, {L_OP}, v{V_LRO}
    ; v partial write: L_VP + w*1024 + lane*16 ; read (tile u at +512u): L_VP + (l&31)*16
    s_lshl_b32 s{S_T0}, s{S_WAVE}, 10
    s_add_u32 s{S_T0}, s{S_T0}, {L_VP}
    v_add_u32 v{V_LVW}, s{S_T0}, v{V_LL}
    v_and_b32 v{V_T0}, 31, v{V_L}
    v_lshlrev_b32 v{V_LVR}, 3, v{V_T0}
    v_add_u32 v{V_LVR}, {L_VM}, v{V_LVR}
    v_lshrrev_b32 v{V_T0}, 2, v{V_M}             ; r
    v_and_b32 v42, 1, v{V_T0}                    ; r&1
    v_lshrrev_b32 v43, 1, v{V_T0}                ; r>>1
    v_lshrrev_b32 v44, 1, v{V_G}                 ; g>>1
    v_and_b32 v45, 1, v{V_G}                     ; g&1
    v_lshl_add_u32 v46, v44, 4, v42
    v_lshl_add_u32 v46, v45, 2, v46
    v_lshl_add_u32 v46, v43, 3, v46              ; W1 row
    v_lshl_add_u32 v47, v44, 3, v42
    v_lshl_add_u32 v47, v45, 4, v47
    v_lshl_add_u32 v47, v43, 2, v47
    v_and_b32 v{V_T1}, 3, v{V_M}
    v_lshlrev_b32 v{V_T1}, 3, v{V_T1}
    v_lshl_add_u32 v46, v46, {6 + FULL}, v{V_T1}
    v_lshl_add_u32 v47, v47, {6 + FULL}, v{V_T1}
    s_and_b32 s{S_T0}, s{S_T}, {FULL}
    s_lshl_b32 s{S_T0}, s{S_T0}, 6
    s_add_u32 s{S_T0}, s{S_T0}, s47
    v_add_u32 v46, s{S_T0}, v46
    v_add_u32 v47, s{S_T0}, v47
    """)

    def wtr(n):
        c, p = PH[n]
        nk = 4 >> FULL
        for u in range(2):
            for k in range(nk * p, nk * p + nk):
                d = (A_W1 + ((c * 2 + u) * 4 + k) * 8) if c < 3 else (A_WO + (u * 4 + k) * 8)
                for Pp in range(4):
                    off = (n & 1) * 16384 + ((64 * (k - nk * p) + 32 * (Pp >> 1) + 2 * (Pp & 1)) << (6 + FULL)) + 32 * u
                    a(f"ds_read_b64_tr_b16 a[{d+2*Pp}:{d+2*Pp+1}], v{46 if c < 3 else 47} offset:{off}")
                if k & 1:
                    a("s_waitcnt lgkmcnt(0)")
    for n in range(len(PH)):
        a(f"s_waitcnt vmcnt({(16 + E('HELP', 1) + ([4, 2, 0][n] if WT == 1 else 0)) if n + 1 < len(PH) else 0})")
        wtr(n)
        if n + 2 < len(PH): wdma(n + 2)
    sync(V_T0)
    a(f"""
    ; cross exchange: WS_H + slot*256K + src*64K + (t>>3)*16K + par*8K + (t&7)*1K
    s_lshr_b32 s{S_T0}, s{S_T}, 3
    s_lshl_b32 s{S_T0}, s{S_T0}, 14
    s_lshl_b32 s{S_T1}, s98, 13
    s_add_u32 s{S_T0}, s{S_T0}, s{S_T1}
    s_and_b32 s{S_T1}, s{S_T}, 7
    s_lshl_b32 s{S_T1}, s{S_T1}, 10
    s_add_u32 s{S_T0}, s{S_T0}, s{S_T1}
    s_lshl_b32 s{S_T1}, s{S_X}, 16
    s_add_u32 s{S_T0}, s{S_T0}, s{S_T1}
    s_add_u32 s{S_T0}, s{S_T0}, {WS_H}
    v_add_u32 v{V_OXW}, s{S_T0}, v{V_LL}
    v_xor_b32 v25, 0x10000, v{V_OXW}
    v_xor_b32 v26, 0x20000, v{V_OXW}
    v_xor_b32 v27, 0x30000, v{V_OXW}
    """)
    a(f"""
    s_lshl_b32 s{S_T0}, s{S_H}, 2
    s_add_u32 s{S_T0}, s{S_T0}, s{S_J}
    s_mov_b32 s{S_CU}, s{S_T0}
    s_lshr_b32 s{S_T1}, s{S_T0}, 3
    s_xor_b32 s{S_T1}, s{S_T1}, s98
    {["", f"s_xor_b32 s{S_T1}, s{S_T1}, 1", f"s_xor_b32 s{S_T1}, s{S_T1}, s{S_T0}"][E("KVPAR", 0)]}
    s_and_b32 s{S_T1}, s{S_T1}, 1
    s_lshl_b32 s{S_T1}, s{S_T1}, 13
    s_lshl_b32 s76, s{S_T0}, 18
    s_add_u32 s76, s76, s{S_T1}
    s_mov_b32 s{S_KXB}, s76
    v_add_u32 v{TMP+8}, s76, v{V_LL}
    v_add_u32 v{TMP+9}, {WS_VT}, v{TMP+8}
    s_lshr_b32 s{S_T1}, s{S_T0}, 4
    s_xor_b32 s{S_T1}, s{S_T1}, s98
    s_and_b32 s{S_T1}, s{S_T1}, 1
    s_lshl_b32 s{S_T1}, s{S_T1}, 13
    s_lshl_b32 s{S_KVB}, s{S_T0}, 17
    s_add_u32 s{S_KVB}, s{S_KVB}, s{S_T1}
    s_add_u32 s{S_KVB}, s{S_KVB}, {WS_KVM}
    ; flags
    s_xor_b32 s{S_T1}, s98, 1
    s_lshl_b32 s{S_T1}, s{S_T1}, 13
    s_lshl_b32 s{S_T0}, s{S_H}, 7
    s_add_u32 s{S_T0}, s{S_T0}, s{S_T1}
    s_add_u32 s{S_T0}, s{S_T0}, {WS_F}
    v_and_b32 v{V_T0}, 1, v{V_L}
    v_lshlrev_b32 v{V_OFL}, 12, v{V_T0}
    v_add_u32 v{V_OFL}, s{S_T0}, v{V_OFL}
    s_lshl_b32 s{S_T1}, s{S_J}, 2
    v_add_u32 v{V_OFL}, s{S_T1}, v{V_OFL}
    s_xor_b32 s{S_FLB}, s98, 1
    s_lshl_b32 s{S_FLB}, s{S_FLB}, 13
    s_lshr_b32 s{S_T1}, s{S_CU}, 6
    s_lshl_b32 s{S_T1}, s{S_T1}, 14
    s_add_u32 s{S_FLB}, s{S_FLB}, s{S_T1}
    s_and_b32 s{S_T1}, s{S_CU}, 63
    s_lshl_b32 s{S_T1}, s{S_T1}, 7
    s_add_u32 s{S_FLB}, s{S_FLB}, s{S_T1}
    s_add_u32 s{S_FLB}, s{S_FLB}, {WS_F + F_KVM}
    v_mov_b32 v{ONE}, 0x3f803f80
    v_mov_b32 v{ONE+1}, 0x3f803f80
    v_mov_b32 v{ONE+2}, 0x3f803f80
    v_mov_b32 v{ONE+3}, 0x3f803f80
    v_mov_b32 v{ZER}, 0
    s_mov_b32 s{S_STEP}, 0
    s_mov_b32 s{S_KVN}, 0
    s_mov_b32 s{S_XBR}, {L_XB}
    s_mov_b32 s{S_XBW}, {L_XB}
    """)
    V_PK, V_PV = TMP + 8, TMP + 9
    pfn = [0]

    def prefetch(seg_sreg, part=3, chk=True, skip=None):
        i = pfn[0]; pfn[0] += 1
        if flags and chk:
            a(f"""
            s_cmp_gt_i32 s{S_KVN}, s{seg_sreg}
            s_cbranch_scc1 {name}_pf{i}ok
{name}_pf{i}w:
            """)
            wdog()
            a(f"""
            buffer_load_dword v{V_T0}, v{V_OFL}, {SRD}, 0 offen sc1
            s_waitcnt vmcnt(0)
            v_readlane_b32 s{S_KVN}, v{V_T0}, 0
            v_readlane_b32 s{S_T0}, v{V_T0}, 1
            s_nop 1
            s_min_i32 s{S_KVN}, s{S_KVN}, s{S_T0}
            s_cmp_gt_i32 s{S_KVN}, s{seg_sreg}
            s_cbranch_scc0 {skip or f"{name}_pf{i}w"}
{name}_pf{i}ok:
            """)
        a(f"""
        s_add_u32 s77, s{seg_sreg}, s{S_CU}
        s_bfe_u32 s{S_T0}, s77, 0x40002
        s_lshl_b32 s{S_T0}, s{S_T0}, 14
        s_and_b32 s77, s77, 3
        s_lshl_b32 s77, s77, 11
        s_add_u32 s{S_T0}, s{S_T0}, s77
        """)
        if part <= 0:
            a(f"s_add_u32 s{S_T0}, s{S_T0}, s{S_KXB}")
            if part < 0: a(f"s_add_u32 s{S_T0}, s{S_T0}, {WS_VT}")
            for l in range(16):
                a(f"s_buffer_load_dword s78, {SRD}, s{S_T0} offset:{128*l}")
            return
        for f in range(4):
            if not (part >> (f >> 1)) & 1: continue
            a(f"s_add_u32 m0, s{S_XBW}, {2048 * (f >> 1)}")
            a("s_nop 0")
            a(f"buffer_load_dwordx4 v{V_PK if f < 2 else V_PV}, {SRD}, s{S_T0} offen offset:{1024 * (f & 1)} sc1 lds")
        if part & 2: a(f"""
        s_add_u32 s{S_XBW}, s{S_XBW}, 4096
        s_cmp_eq_u32 s{S_XBW}, {L_XB + 3 * 4096}
        s_cselect_b32 s{S_XBW}, {L_XB}, s{S_XBW}
        """)

    def flag_store(val_sreg):
        a(f"""
        v_mov_b32 v{V_T1}, s{val_sreg}
        s_mov_b64 exec, 1
        buffer_store_dword v{V_T1}, v{ZER}, {SRD}, s{S_FLB} offen sc1
        s_mov_b64 exec, -1
        """)

    def zero(base, n):
        for i in range(n):
            a(f"v_mov_b32 v{base+i}, 0")

    if ts and E("BPROF", 0):
        ts(2)
        a(f"v_and_b32 v{V_L}, 63, v0\nv_lshrrev_b32 v{V_G}, 4, v{V_L}")
    a(f"s_cmp_eq_u32 s{S_WAVE}, 3\ns_cbranch_scc0 {name}_pfi")
    a(f"s_mov_b32 s76, 0")
    prefetch(76)
    a("s_waitcnt vmcnt(0) lgkmcnt(0)")
    a.label(f"{name}_pfi")
    zero(AQ, 24)
    a("s_barrier")
    if ts and E("BPROF", 0):
        ts(3)
        a(f"v_and_b32 v{V_L}, 63, v0\nv_lshrrev_b32 v{V_G}, 4, v{V_L}")
    stamp(0)

    def smf(d, areg, w):
        a(f"v_smfmac_f32_16x16x64_bf16 v[{d}:{d+3}], v[{areg}:{areg+3}], a[{w}:{w+7}], v{V_IDX}")

    def stream_poll(tag, base, soff, off0, two, work, first=None):
        def ld(i):
            a(f"buffer_load_dwordx4 v[{base+4*i}:{base+4*i+3}], v{V_OMEM}, {SRD}, s{soff} offen offset:{1024*i} sc1")
        G = E("GAP", 10)
        for i in range(4):
            ld(i)
            if i == 0 and first:
                first()
                if G > 5: a.nops(G - 5)
            elif i < 3 and G:
                a.nops(G)
        for i in range(4):
            a.label(f"{name}_{tag}{i}")
            a(f"s_waitcnt vmcnt({3-i})")
            if two:
                a(f"v_max_u32 v{V_T0}, v{base+4*i}, v{base+4*i+2}")
                a(f"v_cmp_eq_u32 vcc, -1, v{V_T0}")
            else:
                a(f"v_cmp_eq_u32 vcc, -1, v{base+4*i}")
            a(f"s_cbranch_vccnz {name}_{tag}r{i}")
            a.label(f"{name}_{tag}k{i}")
            work(i)
        def stubs():
            for i in range(4):
                a.label(f"{name}_{tag}r{i}")
                if prof: a(f"s_add_u32 s{62 if tag == 'pa' else 63}, s{62 if tag == 'pa' else 63}, 1")
                wdog()
                if not E("IMM", 1): a("s_waitcnt vmcnt(0)")
                for k in range(i, 4):
                    ld(k)
                a(f"s_branch {name}_{tag}{i}")
        return stubs

    def fold(t0, t1):
        for i in range(4):
            a(f"v_permlane32_swap_b32 v{t0+i}, v{t1+i}")
        a(f"v_pk_add_f32 v[{t0}:{t0+1}], v[{t0}:{t0+1}], v[{t1}:{t1+1}]")
        a(f"v_pk_add_f32 v[{t0+2}:{t0+3}], v[{t0+2}:{t0+3}], v[{t1+2}:{t1+3}]")

    def vwork(lo, hi):
        for n in range(lo, hi):
            i, u = n >> 1, n & 1
            smf(AV + 4 * u, MA + 4 * i, A_W1 + ((4 + u) * 4 + (i & 3)) * 8)

    def vfin():
        fold(AV, AV + 4)
        a(f"ds_write_b128 v{V_LVW}, v[{AV}:{AV+3}]")

    def rread():
        for w in range(4):
            for hh in range(2):
                d = RP + 8 * w + 4 * hh
                a(f"ds_read_b128 v[{d}:{d+3}], v{V_LRR} offset:{L_QK + 2304*w + 16*hh}")

    def rsum(dst):
        a("s_waitcnt lgkmcnt(4)")
        for i in range(0, 8, 2):
            a(f"v_pk_add_f32 v[{RP+i}:{RP+i+1}], v[{RP+i}:{RP+i+1}], v[{RP+8+i}:{RP+8+i+1}]")
        a("s_waitcnt lgkmcnt(0)")
        for i in range(0, 8, 2):
            a(f"v_pk_add_f32 v[{RP+16+i}:{RP+16+i+1}], v[{RP+16+i}:{RP+16+i+1}], v[{RP+24+i}:{RP+24+i+1}]")
        for i in range(0, 8, 2):
            a(f"v_pk_add_f32 v[{RP+i}:{RP+i+1}], v[{RP+i}:{RP+i+1}], v[{RP+16+i}:{RP+16+i+1}]")
        for i in range(4):
            a(f"v_cvt_pk_bf16_f32 v{dst+i}, v{RP+2*i}, v{RP+2*i+1}")

    S_FM = S_TAG
    def heads():
        a(f"""
        s_and_b32 s{S_T1}, s{S_STEP}, 1
        s_lshl_b32 s{S_SL}, s{S_T1}, 17
        s_lshl_b32 s{S_T0}, s{S_X}, 18
        s_add_u32 s{S_SL}, s{S_SL}, s{S_T0}
        s_add_u32 s{S_SL}, s{S_SL}, {WS_I}
        s_xor_b32 s{S_SLO}, s{S_SL}, {1 << 17}
        """)
        if TAG: a(f"""
        s_lshl_b32 s{S_XS}, s{S_T1}, 18
        s_bfe_u32 s{S_TAG}, s{S_STEP}, 0x10001
        """)
        else: a(f"""
        s_add_u32 s{S_T0}, s{S_STEP}, s{S_T}
        s_and_b32 s{S_T1}, s{S_T0}, 1
        s_lshl_b32 s{S_XS}, s{S_T1}, 12
        s_and_b32 s{S_T0}, s{S_T0}, 14
        s_and_b32 s{S_T1}, s{S_STEP}, 48
        s_or_b32 s{S_T0}, s{S_T0}, s{S_T1}
        s_lshl_b32 s{S_T0}, s{S_T0}, 13
        s_add_u32 s{S_XS}, s{S_XS}, s{S_T0}
        """)
    heads()
    a(f"s_branch {name}_first")

    def wa(i):
        for c in range(4):
            smf(AQ + 4 * c, MA + 4 * i, A_W1 + (c * 4 + (i & 3)) * 8)

    def xread():
        a(f"v_add_u32 v{V_T1}, s{S_XBR}, v{V_LL}")
        for f in range(4):
            a(f"ds_read_b128 v[{KX+4*f}:{KX+4*f+3}], v{V_T1} offset:{1024*f}")

    a.label(f"{name}_loop")
    stubs_a = stream_poll("pa", MA, S_SL, 0, True, wa, first=xread)
    a.label(f"{name}_adone")
    stamp(1)
    a.nops(6)
    fold(AQ, AQ + 4)
    a(f"ds_write2_b32 v{V_LWQ}, v{AQ}, v{AQ+1} offset0:0 offset1:36")
    a(f"ds_write2_b32 v{V_LWQ}, v{AQ+2}, v{AQ+3} offset0:72 offset1:108")
    fold(AQ + 8, AQ + 12)
    a(f"ds_write2_b32 v{V_LWK}, v{AQ+8}, v{AQ+9} offset0:0 offset1:36")
    a(f"ds_write2_b32 v{V_LWK}, v{AQ+10}, v{AQ+11} offset0:72 offset1:108")
    VE, VE2 = E("VE", 4), 8
    vwork(0, VE)
    a(f"""
    s_waitcnt lgkmcnt(0)
    s_barrier
    s_cmp_lg_u32 s{S_WAVE}, 0
    s_cbranch_scc1 {name}_side
    """)
    stamp(2)
    rread()
    vwork(VE, VE2)
    a(f"""
    s_lshl_b32 s{S_T0}, s{S_T}, 11
    s_add_u32 s{S_T0}, s{S_T0}, s{S_SL}
    s_add_u32 s{S_T0}, s{S_T0}, 32768
    s_add_u32 s76, s{S_P}, s{S_SL}
    s_add_u32 s77, s{S_P+1}, s{S_SL}
    s_add_u32 s78, s{S_P+2}, s{S_SL}
    """)
    rsum(R)
    a.nops(2)
    a(f"v_mfma_f32_16x16x32_bf16 v[{S+4}:{S+7}], v[{KX+4}:{KX+7}], v[{R}:{R+3}], 0")
    a(f"v_mfma_f32_16x16x32_bf16 v[{S}:{S+3}], v[{KX}:{KX+3}], v[{R}:{R+3}], 0")
    a(f"v_mfma_f32_16x16x32_bf16 v[{S+8}:{S+11}], v[{R}:{R+3}], v[{R}:{R+3}], 0")
    a(f"s_cmp_eq_u32 s{S_STEP}, {nsteps-1}")
    a(f"s_cbranch_scc1 {name}_w0last")
    a.nops(5)
    for i in range(4):
        a(f"v_mov_b32_dpp v{S+i}, v{S+4+i} row_shr:8 row_mask:0xf bank_mask:0xc")
    a(f"""
    v_min_u32 v{S+8}, -2, v{S+8}
    v_min_u32 v{S}, -2, v{S}
    s_mov_b64 exec, s[{S_MMEM}:{S_MMEM+1}]
    buffer_store_dwordx4 v[{S+8}:{S+11}], v{V_OSCM}, {SRD}, s{S_T0} offen {IS}
    s_mov_b64 exec, -1
    buffer_store_dwordx4 v[{S}:{S+3}], v{V_LL}, {SRD}, s{S_T0} offen {IS}
    """)
    stamp(3)

    def p2ld():
        for p, so in enumerate((76, 77, 78)):
            a(f"buffer_load_dwordx4 v[{PL+8*p}:{PL+8*p+3}], v{V_LL}, {SRD}, s{so} offen sc1")
            a(f"buffer_load_dwordx4 v[{PL+8*p+4}:{PL+8*p+7}], v{V_OSCM}, {SRD}, s{so} offen sc1")
    vfin()
    p2ld()
    zero(AO, 8)
    a("s_waitcnt lgkmcnt(0)\ns_barrier")
    if E("W2", 8): a.nops(E("W2", 8))
    p2ld()
    stamp(4)
    a.label(f"{name}_p2")
    a(f"s_waitcnt vmcnt(6)")
    a(f"v_max3_u32 v{V_T0}, v{PL}, v{PL+4}, v{PL+8}")
    a(f"v_max3_u32 v{V_T1}, v{PL+12}, v{PL+16}, v{PL+20}")
    a(f"v_max_u32 v{V_T0}, v{V_T0}, v{V_T1}")
    a(f"v_cmp_eq_u32 vcc, -1, v{V_T0}")
    a(f"s_cbranch_vccnz {name}_p2r")
    stamp(5)
    BP = E("BP", 1)
    def b2b():
        a("s_barrier")
        a(f"ds_read2_b64 v[{VM}:{VM+3}], v{V_LVR} offset0:0 offset1:32")
    if BP == 0: b2b()
    for (d, o) in ((S + 8, 4), (S, 0)):
        for i in (0, 2):
            a(f"v_pk_add_f32 v[{d+i}:{d+i+1}], v[{d+i}:{d+i+1}], v[{PL+o+i}:{PL+o+i+1}]")
            a(f"v_pk_add_f32 v[{RP+o+i}:{RP+o+i+1}], v[{PL+8+o+i}:{PL+8+o+i+1}], v[{PL+16+o+i}:{PL+16+o+i+1}]")
    for (d, o) in ((S + 8, 4), (S, 0)):
        for i in (0, 2):
            a(f"v_pk_add_f32 v[{d+i}:{d+i+1}], v[{d+i}:{d+i+1}], v[{RP+o+i}:{RP+o+i+1}]")
    for i in range(4):
        a(f"v_cndmask_b32 v{S+4+i}, v{V_NEG}, v{S+8+i}, s[{S_MMEM}:{S_MMEM+1}]")
    MX, TM, SM = TMP, TMP + 1, TMP + 2
    a(f"""
    v_max3_f32 v{MX}, v{S}, v{S+1}, v{S+2}
    v_max3_f32 v{TM}, v{S+4}, v{S+5}, v{S+6}
    v_max3_f32 v{MX}, v{MX}, v{S+3}, v{S+7}
    v_max_f32 v{SM}, v{MX}, v{TM}
    """)
    if BP == 1: b2b()
    else: a("s_nop 1")
    a(f"""
    v_max_f32_dpp v{MX}, v{SM}, v{SM} row_ror:8 row_mask:0xf bank_mask:0xf
    v_max_f32_dpp v{TM}, v{SM}, v{SM} row_ror:8 row_mask:0xf bank_mask:0xf
    s_nop 1
    v_permlane16_swap_b32 v{MX}, v{TM}
    s_nop 0
    v_max_f32 v{SM}, v{MX}, v{TM}
    v_max_f32 v{SM+1}, v{MX}, v{TM}
    """)
    if BP == 2: b2b()
    else: a("s_nop 1")
    a(f"""
    v_permlane32_swap_b32 v{SM}, v{SM+1}
    s_nop 0
    v_max_f32 v{MX}, v{SM}, v{SM+1}
    v_mul_f32 v{MX}, s{S_C}, v{MX}
    """)
    for i in (4, 5, 6, 7, 0, 1, 2, 3):
        a(f"v_fma_f32 v{S+i}, v{S+i}, s{S_C}, -v{MX}")
    for i in (4, 5, 6, 7):
        a(f"v_exp_f32 v{S+i}, v{S+i}")
    a(f"""
    v_exp_f32 v{S}, v{S}
    v_cvt_pk_bf16_f32 v{PM}, v{S+4}, v{S+5}
    v_cvt_pk_bf16_f32 v{PM+1}, v{S+6}, v{S+7}
    v_exp_f32 v{S+1}, v{S+1}
    v_exp_f32 v{S+2}, v{S+2}
    v_mfma_f32_16x16x16_bf16 v[{LS}:{LS+3}], v[{ONE}:{ONE+1}], v[{PM}:{PM+1}], 0
    v_exp_f32 v{S+3}, v{S+3}
    v_cvt_pk_bf16_f32 v{P}, v{S}, v{S+1}
    s_waitcnt lgkmcnt(0)
    v_mfma_f32_16x16x16_bf16 v[{O}:{O+3}], v[{VM}:{VM+1}], v[{PM}:{PM+1}], 0
    v_cvt_pk_bf16_f32 v{P+1}, v{S+2}, v{S+3}
    v_mfma_f32_16x16x16_bf16 v[{O+4}:{O+7}], v[{VM+2}:{VM+3}], v[{PM}:{PM+1}], 0
    v_mov_b32_dpp v{P+2}, v{P} row_ror:8 row_mask:0xf bank_mask:0xf
    v_mov_b32_dpp v{P+3}, v{P+1} row_ror:8 row_mask:0xf bank_mask:0xf
    s_nop 1
    v_mfma_f32_16x16x32_bf16 v[{LS}:{LS+3}], v[{ONE}:{ONE+3}], v[{P}:{P+3}], v[{LS}:{LS+3}]
    v_mfma_f32_16x16x32_bf16 v[{O}:{O+3}], v[{VTX}:{VTX+3}], v[{P}:{P+3}], v[{O}:{O+3}]
    v_mfma_f32_16x16x32_bf16 v[{O+4}:{O+7}], v[{VTX+4}:{VTX+7}], v[{P}:{P+3}], v[{O+4}:{O+7}]
    s_add_u32 s{S_T1}, s{S_SL}, 16384
    s_nop 4
    v_rcp_f32 v{SM}, v{LS}
    v_rcp_f32 v{SM+1}, v{LS+1}
    s_nop 0
    """)
    for i in range(0, 8, 2):
        a(f"v_pk_mul_f32 v[{O+i}:{O+i+1}], v[{O+i}:{O+i+1}], v[{SM}:{SM+1}]")
    for i in range(4):
        a(f"v_cvt_pk_bf16_f32 v{P+i}, v{O+2*i}, v{O+2*i+1}")
    a(f"""
    v_min_u32 v{P}, -2, v{P}
    s_mov_b64 exec, s[{S_MN8}:{S_MN8+1}]
    buffer_store_dwordx4 v[{P}:{P+3}], v{V_OOP}, {SRD}, s{S_SL} offen {IS}
    s_mov_b64 exec, -1
    """)
    a.label(f"{name}_b3")
    a("s_barrier")
    stamp(6)
    if E("W3", 0): a.nops(E("W3", 0))

    def wc(i):
        for u in range(2):
            smf(AO + 4 * u, MO + 4 * i, A_WO + (u * 4 + i) * 8)
    stubs_c = stream_poll("pc", MO, S_T1, 0, False, wc)
    stamp(7)
    a.nops(8)
    fold(AO, AO + 4)
    a(f"ds_write2_b32 v{V_LWO}, v{AO}, v{AO+1} offset0:0 offset1:36")
    a(f"ds_write2_b32 v{V_LWO}, v{AO+2}, v{AO+3} offset0:72 offset1:108")
    a("s_waitcnt lgkmcnt(0)\ns_barrier")
    a(f"s_cmp_lg_u32 s{S_WAVE}, 0\ns_cbranch_scc1 {name}_x1")
    for w in range(4):
        a(f"ds_read_b128 v[{RP+4*w}:{RP+4*w+3}], v{V_LRO} offset:{1152*w}")
    zero(AQ, 24)
    a("s_waitcnt lgkmcnt(2)")
    for i in (0, 2):
        a(f"v_pk_add_f32 v[{RP+i}:{RP+i+1}], v[{RP+i}:{RP+i+1}], v[{RP+4+i}:{RP+4+i+1}]")
    a("s_waitcnt lgkmcnt(0)")
    for i in (0, 2):
        a(f"v_pk_add_f32 v[{RP+8+i}:{RP+8+i+1}], v[{RP+8+i}:{RP+8+i+1}], v[{RP+12+i}:{RP+12+i+1}]")
    for i in (0, 2):
        a(f"v_pk_add_f32 v[{RP+i}:{RP+i+1}], v[{RP+i}:{RP+i+1}], v[{RP+8+i}:{RP+8+i+1}]")
    X4 = 48
    A4 = E("A4", 2)
    def p4ld():
        for p in range(3):
            a(f"buffer_load_dwordx4 v[{X4+4*p}:{X4+4*p+3}], v{25+p}, {SRD}, s{S_XS} offen sc1")
    def maxall(regs):
        regs = list(regs)
        h = len(regs) // 2
        for t, rs in ((V_T0, regs[:h]), (V_T1, regs[h:])):
            a(f"v_max3_u32 v{t}, v{rs[0]}, v{rs[1]}, v{rs[2]}")
        k = 3
        while k < h:
            for t, rs in ((V_T0, regs[:h]), (V_T1, regs[h:])):
                if k + 1 < h: a(f"v_max3_u32 v{t}, v{t}, v{rs[k]}, v{rs[k+1]}")
                else: a(f"v_max_u32 v{t}, v{t}, v{rs[k]}")
            k += 2
        a(f"v_max_u32 v{V_T0}, v{V_T0}, v{V_T1}")
        a(f"v_cmp_eq_u32 vcc, -1, v{V_T0}")
    if TAG:
        for i in range(4):
            a(f"v_and_or_b32 v{RP+i}, v{RP+i}, -2, s{S_TAG}")
        a(f"buffer_store_dwordx4 v[{RP}:{RP+3}], v{V_OXW}, {SRD}, s{S_XS} offen sc1")
        stamp(8)
        a(f"s_xor_b32 s76, s{S_TAG}, 1")
        for i in range(12):
            a(f"v_mov_b32 v{X4+i}, s76")
        if E("XW", 40): a.nops(E("XW", 40))
        stamp(11)
        a(f"s_cmp_eq_u32 s{S_TAG}, 1\ns_cbranch_scc1 {name}_p4_1")
        for tg in range(2):
            a.label(f"{name}_p4_{tg}")
            wdog()
            p4ld()
            a("s_waitcnt vmcnt(36)")
            a.nops(A4)
            bo = "0xfe" if tg == 0 else "0x80"
            for t, b in ((V_T0, X4), (V_T1, X4 + 6)):
                a(f"v_bitop3_b32 v{t}, v{b}, v{b+1}, v{b+2} bitop3:{bo}")
            for t, b in ((V_T0, X4), (V_T1, X4 + 6)):
                a(f"v_bitop3_b32 v{t}, v{t}, v{b+3}, v{b+4} bitop3:{bo}")
            a(f"v_bitop3_b32 v{V_T0}, v{V_T0}, v{X4+5}, v{X4+11} bitop3:{bo}")
            a(f"v_bitop3_b32 v{V_T0}, v{V_T0}, v{V_T1}, 1 bitop3:{'0xa8' if tg == 0 else '0x80'}")
            a(f"v_cmp_ne_u32 vcc, {tg}, v{V_T0}")
            a(f"s_cbranch_vccnz {name}_p4_{tg}")
            if tg == 0: a(f"s_branch {name}_p4d")
        a.label(f"{name}_p4d")
    else:
        for i in range(4 if A4 else 1):
            a(f"v_min_u32 v{RP+i}, -2, v{RP+i}")
        a(f"buffer_store_dwordx4 v[{RP}:{RP+3}], v{V_OXW}, {SRD}, s{S_XS} offen sc1")
        stamp(8)
        if A4:
            for i in range(12):
                a(f"v_mov_b32 v{X4+i}, -1")
        if E("XW", 40): a.nops(E("XW", 40))
        stamp(11)
        a.label(f"{name}_p4")
        if prof: a("s_add_u32 s64, s64, 1")
        wdog()
        p4ld()
        if A4:
            a("s_waitcnt vmcnt(36)")
            for rep in range(E("A4R", 1)):
                a.nops(A4 // E("A4R", 1))
                maxall(range(X4, X4 + 12))
                a(f"s_cbranch_vccz {name}_p4d")
            a(f"s_branch {name}_p4")
            a.label(f"{name}_p4d")
        else:
            a(f"""
            s_waitcnt vmcnt(0)
            v_max3_u32 v{V_T0}, v{X4}, v{X4+4}, v{X4+8}
            v_cmp_eq_u32 vcc, -1, v{V_T0}
            s_cbranch_vccnz {name}_p4
            """)
    stamp(9)
    for i in (0, 2):
        a(f"v_pk_add_f32 v[{RP+i}:{RP+i+1}], v[{RP+i}:{RP+i+1}], v[{X4+i}:{X4+i+1}]")
        a(f"v_pk_add_f32 v[{RP+4+i}:{RP+4+i+1}], v[{X4+4+i}:{X4+4+i+1}], v[{X4+8+i}:{X4+8+i+1}]")
    for i in (0, 2):
        a(f"v_pk_add_f32 v[{RP+i}:{RP+i+1}], v[{RP+i}:{RP+i+1}], v[{RP+4+i}:{RP+4+i+1}]")
    a(f"""
    v_cvt_pk_bf16_f32 v{P}, v{RP}, v{RP+1}
    v_cvt_pk_bf16_f32 v{P+1}, v{RP+2}, v{RP+3}
    v_min_u32 v{P}, -2, v{P}
    buffer_store_dwordx2 v[{P}:{P+1}], v{V_OPUB}, {SRD}, s{S_SLO} offen {IS}
    """)
    a.label(f"{name}_b5")
    a(f"""
    s_add_u32 s{S_STEP}, s{S_STEP}, 1
    s_add_u32 s{S_XBR}, s{S_XBR}, 4096
    s_cmp_eq_u32 s{S_XBR}, {L_XB + 3 * 4096}
    s_cselect_b32 s{S_XBR}, {L_XB}, s{S_XBR}
    s_barrier
    """)
    heads()
    stamp(10)
    if E("W1", 0): a.nops(E("W1", 0))
    a(f"s_branch {name}_loop")
    a.label(f"{name}_x1")
    a(f"""
    s_cmp_eq_u32 s{S_WAVE}, 3
    s_cbranch_scc0 {name}_x4
    buffer_store_dwordx2 v[{V_POI}:{V_POI+1}], v{V_OPUB}, {SRD}, s{S_SL} offen {IS}
    s_lshl_b32 s{S_T0}, s{S_T}, 11
    s_add_u32 s{S_T0}, s{S_T0}, s{S_SL}
    s_add_u32 s{S_T0}, s{S_T0}, 32768
    buffer_store_dwordx4 v[{V_POI}:{V_POI+3}], v{V_LL}, {SRD}, s{S_T0} offen {IS}
    buffer_store_dwordx4 v[{V_POI}:{V_POI+3}], v{V_OSCM}, {SRD}, s{S_T0} offen {IS}
    s_add_u32 s76, s{S_STEP}, 2
    s_cmp_lt_u32 s76, {nsteps-1}
    s_cbranch_scc0 {name}_x4
    {f"s_cmp_gt_i32 s{S_KVN}, s76" if flags else ""}
    s_cbranch_scc0 {name}_x4
    """)
    if not E("NOPF", 0) and not E("TR", 0): prefetch(76, -1, False)
    a.label(f"{name}_x4")
    stamp(11)
    zero(AQ, 24)
    a(f"s_branch {name}_b5")
    a.label(f"{name}_p2r")
    if prof: a("s_add_u32 s65, s65, 1")
    wdog()
    p2ld()
    a(f"s_branch {name}_p2")
    stubs_a()
    stubs_c()
    a.label(f"{name}_w0last")
    a.nops(8)
    vfin()
    a("s_waitcnt lgkmcnt(0)\ns_barrier")
    a(f"s_branch {name}_end")
    a.label(f"{name}_side")
    a(f"""
    s_cmp_eq_u32 s{S_WAVE}, 3
    s_cbranch_scc1 {name}_sd3
    s_cmp_eq_u32 s{S_WAVE}, 2
    s_cbranch_scc0 {name}_sd4
    s_mov_b64 exec, s[{S_MN8}:{S_MN8+1}]
    buffer_store_dwordx4 v[{V_POI}:{V_POI+3}], v{V_OOP}, {SRD}, s{S_SLO} offen {IS}
    s_mov_b64 exec, -1
    s_branch {name}_sd4
{name}_sd3:
    s_add_u32 s76, s{S_STEP}, 1
    s_cmp_lt_u32 s76, {nsteps-1}
    s_cbranch_scc0 {name}_sd4
    """)
    if not E("NOPF", 0): prefetch(76, 3)
    a.label(f"{name}_sd4")
    vwork(VE, 8)
    a.nops(8)
    vfin()
    zero(AO, 8)
    a(f"""
    s_cmp_eq_u32 s{S_WAVE}, 1
    s_cbranch_scc0 {name}_s1
    s_waitcnt lgkmcnt(0)
    """)
    rread()
    rsum(KVH)
    a.label(f"{name}_s1")
    a(f"""
    v_add_u32 v{V_T1}, {L_VP}, v{V_LL}
    s_waitcnt lgkmcnt(0)
    s_barrier
    s_cmp_eq_u32 s{S_WAVE}, 2
    s_cbranch_scc0 {name}_s3
    """)
    for w in range(4):
        a(f"ds_read_b128 v[{RP+4*w}:{RP+4*w+3}], v{V_T1} offset:{1024*w}")
    a(f"v_lshrrev_b32 v{V_T1}, 1, v{V_LL}")
    a("s_waitcnt lgkmcnt(2)")
    for i in (0, 2):
        a(f"v_pk_add_f32 v[{RP+i}:{RP+i+1}], v[{RP+i}:{RP+i+1}], v[{RP+4+i}:{RP+4+i+1}]")
    a("s_waitcnt lgkmcnt(0)")
    for i in (0, 2):
        a(f"v_pk_add_f32 v[{RP+8+i}:{RP+8+i+1}], v[{RP+8+i}:{RP+8+i+1}], v[{RP+12+i}:{RP+12+i+1}]")
    for i in (0, 2):
        a(f"v_pk_add_f32 v[{RP+i}:{RP+i+1}], v[{RP+i}:{RP+i+1}], v[{RP+8+i}:{RP+8+i+1}]")
    a(f"v_cvt_pk_bf16_f32 v{KVH}, v{RP}, v{RP+1}")
    a(f"v_cvt_pk_bf16_f32 v{KVH+1}, v{RP+2}, v{RP+3}")
    a(f"ds_write_b64 v{V_T1}, v[{KVH}:{KVH+1}] offset:{L_VM}")
    a("s_waitcnt lgkmcnt(0)")
    a.label(f"{name}_s3")
    a(f"""
    s_cmp_eq_u32 s{S_STEP}, {nsteps-1}
    s_cbranch_scc1 {name}_slast
    s_add_u32 s{S_T1}, s{S_SL}, 16384
    s_barrier
    """)

    def kv_pub(tag):
        a(f"""
        s_add_u32 s77, s{S_STEP}, s{S_CU}
        s_bfe_u32 s{S_T0}, s77, 0x30003
        s_lshl_b32 s{S_T0}, s{S_T0}, 14
        s_and_b32 s77, s77, 7
        s_lshl_b32 s77, s77, 10
        s_add_u32 s{S_T0}, s{S_T0}, s77
        s_add_u32 s{S_T0}, s{S_T0}, s{S_KVB}
        s_cmp_eq_u32 s{S_WAVE}, 2
        s_cbranch_scc1 {name}_kv2{tag}
        s_mov_b64 exec, s[{S_MKM}:{S_MKM+1}]
        buffer_store_dwordx4 v[{KVH}:{KVH+3}], v{V_OKV}, {SRD}, s{S_T0} offen sc1
        s_mov_b64 exec, -1
        s_branch {name}_kvd{tag}
{name}_kv2{tag}:
        v_lshlrev_b32 v{V_T0}, 3, v{V_L}
        buffer_store_dwordx2 v[{KVH}:{KVH+1}], v{V_T0}, {SRD}, s{S_T0} offen offset:512 sc1
{name}_kvd{tag}:
        """)
    a(f"s_cmp_eq_u32 s{S_WAVE}, 3\ns_cbranch_scc1 {name}_y3")
    if not E("NOKVM", 0):
        kv_pub("a")
        a(f"""
        s_and_b32 s76, s{S_STEP}, {E("FLM", 0)}
        s_cmp_ge_u32 s{S_STEP}, {nsteps-E("FLE", 12)}
        s_cselect_b32 s76, 0, s76
        s_add_u32 s76, s76, s{S_WAVE}
        s_cmp_eq_u32 s76, 1
        s_cbranch_scc0 {name}_y4
        """)
        flag_store(S_STEP)
    a(f"s_branch {name}_y4")
    a.label(f"{name}_y3")
    a(f"""
    s_add_u32 s76, s{S_STEP}, 2
    s_cmp_lt_u32 s76, {nsteps-1}
    s_cbranch_scc0 {name}_y4
    """)
    if not E("NOPF", 0): prefetch(76, 0, skip=f"{name}_y4")
    a.label(f"{name}_y4")
    a(f"s_branch {name}_b3")
    a.label(f"{name}_first")
    for i in range(4):
        a(f"buffer_load_dwordx4 v[{MA+4*i}:{MA+4*i+3}], v{V_OM0}, s[{S_M0}:{S_M0+3}], 0 offen offset:{128*i}")
    xread()
    a("s_waitcnt vmcnt(0)")
    for i in range(4):
        wa(i)
    a.nops(2)
    a(f"s_branch {name}_adone")
    a.label(f"{name}_slast")
    a(f"s_cmp_eq_u32 s{S_WAVE}, 3\ns_cbranch_scc1 {name}_end")
    kv_pub("b")
    a(f"s_waitcnt vmcnt(0)\ns_barrier\ns_mov_b32 s76, {nsteps}\ns_cmp_eq_u32 s{S_WAVE}, 1\ns_cbranch_scc0 {name}_end")
    flag_store(76)
    a.label(f"{name}_end")
    if ts: ts(4)
    if prof:
        a(f"""
        s_lshl_b32 s{S_T0}, s{S_X}, 5
        s_add_u32 s{S_T0}, s{S_T0}, s{S_T}
        s_lshl_b32 s{S_T0}, s{S_T0}, 2
        s_add_u32 s{S_T0}, s{S_T0}, s{S_WAVE}
        s_lshl_b32 s{S_T0}, s{S_T0}, 6
        s_add_u32 s{S_T0}, s{S_T0}, {WS_PROF}
        v_mov_b32 v{V_T1}, 0
        s_mov_b64 exec, 1
        """)
        for i in range(16):
            a(f"v_mov_b32 v{V_T0}, s{50+i}")
            a(f"buffer_store_dword v{V_T0}, v{V_T1}, {SRD}, s{S_T0} offen offset:{4*i}")
            a("s_nop 1")
    a("s_endpgm")


def gen_rec_standalone(a: Asm, name, prof=False, force_slow=False):
    a.kernel_begin(name)
    a(f"s_cmp_ge_u32 s2, 256\ns_cbranch_scc1 {name}_exit")
    start_code(a, name)
    a(f"""
    s_sub_u32 s40, s90, 6
    s_lshl_b32 s40, s40, 5
    s_add_u32 s40, s40, s96
    s_cmp_lt_u32 s90, 4
    s_cbranch_scc0 {name}_oth
    s_mov_b32 s{S_X}, s90
    s_mov_b32 s{S_T}, s96
    """)
    rec_body(a, name + "_f", "", lambda vt: sync_code(a, name, "r", vt), prof=prof, flags=False)
    a.label(f"{name}_oth")
    a(f"s_cmp_lt_u32 s40, 64\ns_cbranch_scc0 {name}_exit")
    init_cd(a, name, 40)
    a.label(f"{name}_slowent")
    a.label(f"{name}_exit")
    a("s_endpgm")
    return kd(name, 512, sgpr=102, accum=256)


if __name__ == "__main__":
    import sys
    a = Asm()
    name = "rec_kernel"
    k = gen_rec_standalone(a, name, prof=("prof" in sys.argv), force_slow=("slow" in sys.argv))
    out = HEADER + f"; @launch kernel={name} grid=(256,1,1) block=(256,1,1) lds=163840\n"
    out += '.amdgcn_target "amdgcn-amd-amdhsa--gfx950"\n.text\n' + a.text() + '.section .rodata,"a"\n' + k
    open(os.environ.get("OUT", "rec.s"), "w").write(out)
```

```python
import sys
from gen_common import *
from gen_rec import S_X, S_T, S_WSD, S_DBG, E, start_code, rec_body, sync_code, slow_entry, init_cd
from gen_bulk import kv_role, qx_role, out_role, S_H
from gen_fft import gen_f0, gen_f1, gen_f2, gen_f3

LDS = 163840


def gen_mega(a, name, force_slow=False):
    W = S_WSD
    S_B, S_G, S_F = 94, 91, 92
    a.kernel_begin(name)

    def ts(i):
        if not E("BPROF", 0): return
        a(f"""
        s_memrealtime s[76:77]
        s_memtime s[100:101]
        s_waitcnt lgkmcnt(0)
        v_mov_b32 v1, 0
        v_mov_b32 v2, s76
        s_lshl_b32 s78, s2, 6
        s_add_u32 s78, s78, {WS_PROF + 8 * MB + 4 * i}
        s_mov_b64 exec, 1
        buffer_store_dword v2, v1, s[{W}:{W+3}], s78 offen
        s_nop 1
        v_mov_b32 v2, s100
        s_add_u32 s78, s78, 16384
        buffer_store_dword v2, v1, s[{W}:{W+3}], s78 offen
        s_nop 1
        v_mov_b32 v2, s96
        s_lshl_b32 s78, s2, 6
        s_add_u32 s78, s78, {WS_PROF + 8 * MB + 56}
        buffer_store_dword v2, v1, s[{W}:{W+3}], s78 offen
        s_mov_b64 exec, -1
        """)
    a(f"s_cmp_ge_u32 s2, 256\ns_cbranch_scc1 {name}_exit")
    if E("BPROF", 0): a("s_memrealtime s[80:81]")
    start_code(a, name)
    sync = lambda tag: (lambda vt: sync_code(a, name, tag, vt, force_slow))
    a(f"""
    s_cmp_lt_u32 s96, 32
    s_cbranch_scc1 {name}_spec
    """)
    sync("x")(2)
    slow_entry(a, name)
    a(f"""
    s_lshr_b32 s{S_X}, s97, 5
    s_and_b32 s{S_T}, s97, 31
    s_cmp_lt_u32 s97, 128
    s_cbranch_scc1 {name}_recs
    s_sub_u32 s{S_B}, s97, 128
    s_branch {name}_bulk
{name}_spec:
    s_mov_b32 s{S_X}, s90
    s_mov_b32 s{S_T}, s96
    s_cmp_lt_u32 s90, 4
    s_cbranch_scc1 {name}_recf
    s_sub_u32 s{S_B}, s90, 4
    s_lshl_b32 s{S_B}, s{S_B}, 5
    s_add_u32 s{S_B}, s{S_B}, s96
{name}_bulk:
    """)
    if E("MIX", 0):
        a(f"s_and_b32 s{S_G}, s{S_B}, 3\ns_lshr_b32 s{S_H}, s{S_B}, 2")
    else:
        a(f"s_lshr_b32 s{S_G}, s{S_B}, 5\ns_and_b32 s{S_H}, s{S_B}, 31")
    a(f"""
    s_and_b32 s{S_F}, s{S_G}, 1
    s_lshl_b32 s{S_F}, s{S_F}, 5
    s_add_u32 s{S_F}, s{S_F}, s{S_H}
    """)
    if E("BPROF", 0):
        a(f"""
        v_mov_b32 v1, 0
        v_mov_b32 v2, s80
        v_mov_b32 v3, s{S_G}
        s_lshl_b32 s78, s2, 6
        s_add_u32 s78, s78, {WS_PROF + 8 * MB}
        s_mov_b64 exec, 1
        buffer_store_dword v2, v1, s[{W}:{W+3}], s78 offen
        buffer_store_dword v3, v1, s[{W}:{W+3}], s78 offen offset:60
        s_mov_b64 exec, -1
        """)
    ts(1)
    a(f"""
    s_cmp_eq_u32 s{S_G}, 0
    s_cbranch_scc1 {name}_rk
    s_cmp_eq_u32 s{S_G}, 1
    s_cbranch_scc1 {name}_rv
    """)
    def signal(i):
        a(f"""
        s_waitcnt vmcnt(0)
        s_barrier
        v_mov_b32 v1, 0
        v_mov_b32 v2, 1
        s_mov_b32 s82, {WS_F + F_CNT + 128 * i}
        v_cmp_eq_u32 vcc, 0, v0
        s_and_saveexec_b64 s[80:81], vcc
        s_cbranch_execz {name}_sg{i}
        buffer_atomic_add v2, v1, s[{W}:{W+3}], s82 offen sc1
{name}_sg{i}:
        s_mov_b64 exec, s[80:81]
        """)

    def wait(i, n):
        a(f"v_mov_b32 v1, 0\ns_mov_b32 s82, {WS_F + F_CNT + 128 * i}")
        a.label(f"{name}_w{i}")
        wd_code(a, f"fftwait{i}")
        a(f"""
        s_sleep 8
        buffer_load_dword v2, v1, s[{W}:{W+3}], s82 offen sc1
        s_waitcnt vmcnt(0)
        v_cmp_ne_u32 vcc, {n-1}, v2
        s_cbranch_vccnz {name}_w{i}
        """)

    def tasks(tag, fn, first, stride, n, base_sreg):
        a(f"s_add_u32 s93, s{base_sreg}, {first}")
        a(f"s_cmp_lt_u32 s93, {n}\ns_cbranch_scc0 {name}_{tag}e")
        a.label(f"{name}_{tag}l")
        fn()
        a(f"s_add_u32 s93, s93, {stride}\ns_cmp_lt_u32 s93, {n}\ns_cbranch_scc1 {name}_{tag}l")
        a.label(f"{name}_{tag}e")
    DF2 = E("DF2", 1)
    init_cd(a, name, S_F)
    ts(2)
    a(f"s_cmp_eq_u32 s{S_G}, 2\ns_cbranch_scc0 {name}_rd")
    qx_role(a, name + "_q", ts, sync("c"))
    a.label(f"{name}_rd")
    tasks("f1", lambda: gen_f1(a, name + "_f1", role=93), 0, 32, 128, S_H)
    ts(5)
    tasks("f0", lambda: (a("s_barrier"), gen_f0(a, name + "_f0", role=93, noend=True)), 0, 32, 288, S_H)
    sync("d")(2)
    signal(0)
    ts(6)
    a(f"s_add_u32 s38, s{S_H}, {129 - DF2}\ns_mov_b32 s39, 32\ns_mov_b32 s37, 129")
    a(f"s_cmp_lt_u32 s38, 129\ns_cbranch_scc1 {name}_f2s\ns_branch {name}_f2e")
    a.label(f"{name}_rk")
    kv_role(a, name + "_k", False, ts, sync("k"))
    a(f"s_branch {name}_fft")
    a.label(f"{name}_rv")
    kv_role(a, name + "_v", True, ts, sync("v"))
    a.label(f"{name}_fft")
    ts(4)
    a(f"s_mov_b32 s38, s{S_F}\ns_mov_b32 s39, 64\ns_mov_b32 s37, {129 - DF2}")
    a.label(f"{name}_f2s")
    wait(0, 32)
    tasks("f2", lambda: gen_f2(a, name + "_f2", role=93), 0, "s39", "s37", 38)
    signal(1)
    ts(7)
    a(f"s_cmp_eq_u32 s{S_G}, 3\ns_cbranch_scc0 {name}_f3s")
    out_role(a, name + "_o", ts)
    a.label(f"{name}_f3s")
    wait(1, 96)
    tasks("f3", lambda: gen_f3(a, name + "_f3", role=93), 0, 64, 128, S_F)
    ts(8)
    a.label(f"{name}_exit")
    a("s_endpgm")
    a.label(f"{name}_recf")
    rec_body(a, name + "_rf", "", sync("r"), prof=bool(E("PROF", 0)), ts=ts)
    a.label(f"{name}_recs")
    rec_body(a, name + "_rs", "sc1", sync("s"))
    return kd(name, 512, sgpr=102, accum=256)


def build(path, force_slow=False):
    a = Asm()
    k = gen_mega(a, "mega_kernel", force_slow)
    out = HEADER + f"; @launch kernel=mega_kernel grid=(256,1,1) block=(256,1,1) lds={LDS}\n"
    out += '.amdgcn_target "amdgcn-amd-amdhsa--gfx950"\n.text\n' + a.text() + '.section .rodata,"a"\n' + k
    open(path, "w").write(out)
    import json
    json.dump(WD_SITES, open("wd.json", "w"))


if __name__ == "__main__":
    build(sys.argv[1] if len(sys.argv) > 1 else "mega.s", force_slow=("slow" in sys.argv))
```

```python
from gen_common import *
from gen_rec import S_WSD, S_DBG, E

W = S_WSD
SRD = f"s[{W}:{W+3}]"
S_H = 40
S_WAVE, S_SEG, S_T0, S_T1, S_T2 = 41, 42, 43, 44, 45
S_WM, S_XM = 4, 8
V_L, V_T0, V_T1, V_T2, V_LL = 1, 2, 3, 4, 5


def wdog(a, name):
    wd_code(a, name + ":" + a.lines[-1], f"s{S_SEG}")


def tsx(a, ts, i):
    if E("BPROF", 0):
        ts(i)
        a(f"v_and_b32 v{V_L}, 63, v0")


def pst(i):
    if not E("KPROF", 0): return []
    return ["s_memtime s[76:77]", "s_waitcnt lgkmcnt(0)", "s_sub_u32 s78, s76, s31", f"s_add_u32 s{32+i}, s{32+i}, s78", "s_mov_b32 s31, s76"]


def pinit(a):
    if not E("KPROF", 0): return
    for i in range(8): a(f"s_mov_b32 s{32+i}, 0")
    a("s_memtime s[76:77]\ns_waitcnt lgkmcnt(0)\ns_mov_b32 s31, s76")


def pdump(a):
    if not E("KPROF", 0): return
    a(f"s_lshl_b32 s78, s2, 7\ns_lshl_b32 s77, s{S_WAVE}, 5\ns_add_u32 s78, s78, s77\ns_add_u32 s78, s78, {WS_PROF + 9*MB}\nv_mov_b32 v2, 0\ns_mov_b64 exec, 1")
    for i in range(8):
        a(f"v_mov_b32 v3, s{32+i}\nbuffer_store_dword v3, v2, {SRD}, s78 offen offset:{4*i}\ns_nop 1")
    a("s_mov_b64 exec, -1")


def common(a, ka_w, ka_x, xbytes):
    a(f"""
    s_load_dwordx2 s[{S_WM}:{S_WM+1}], s[0:1], {ka_w}
    s_load_dwordx2 s[{S_XM}:{S_XM+1}], s[0:1], {ka_x}
    v_lshrrev_b32 v{V_T0}, 6, v0
    v_and_b32 v{V_L}, 63, v0
    v_readfirstlane_b32 s{S_WAVE}, v{V_T0}
    v_lshlrev_b32 v{V_LL}, 4, v{V_L}
    s_waitcnt lgkmcnt(0)
    s_mov_b32 s{S_WM+2}, {8*MB}
    s_mov_b32 s{S_WM+3}, 0x00020000
    s_mov_b32 s{S_XM+2}, {xbytes}
    s_mov_b32 s{S_XM+3}, 0x00020000
    """)


def load_weights(a, rowlog, s_base, lane_addr, frag_off, rot=None, cl=2, touch=False):
    a(f"""
    v_lshrrev_b32 v{V_T0}, {cl}, v{V_L}
    v_and_b32 v{V_T1}, {(1 << cl) - 1}, v{V_L}
    v_lshlrev_b32 v16, {rowlog}, v{V_T0}
    v_lshl_add_u32 v16, v{V_T1}, 4, v16
    v_add_u32 v16, s{s_base}, v16
    v_and_b32 v{V_T1}, 3, v{V_L}
    s_lshl_b32 s{S_T2}, s{S_WAVE}, 15
    """)
    RI = 64 >> cl
    a(lane_addr)
    a(f"v_add_u32 v17, s{S_T2}, v17")

    HELP = 1 if (touch and E("BHELP", 1)) else 0
    if HELP:
        a(f"""
        s_and_b32 s{S_T0}, s{S_H}, 3
        s_lshl_b32 s{S_T0}, s{S_T0}, 2
        s_add_u32 s{S_T0}, s{S_T0}, s{S_WAVE}
        s_lshl_b32 s{S_T0}, s{S_T0}, 4
        v_and_b32 v23, 15, v{V_L}
        v_add_u32 v23, s{S_T0}, v23
        s_lshr_b32 s{S_T0}, s{S_H}, 2
        s_lshl_b32 s{S_T0}, s{S_T0}, 10
        s_add_u32 s{S_T1}, s{S_T0}, 896
        s_add_u32 s{S_T0}, s{S_T0}, 384
        s_cmp_ge_u32 s{S_H}, 28
        s_cselect_b32 s{S_T1}, s{S_T1}, s{S_T0}
        v_mov_b32 v24, s{S_T0}
        v_mov_b32 v25, s{S_T1}
        v_cmp_gt_u32 vcc, 32, v{V_L}
        s_nop 1
        v_cndmask_b32 v24, v25, v24, vcc
        v_lshl_add_u32 v23, v23, 13, v24
        """)

    def dma(ch):
        if HELP:
            a(f"s_mov_b32 s{S_T1}, {ch * 2 * MB}\nbuffer_load_dword v22, v23, s[{S_WM}:{S_WM+3}], s{S_T1} offen")
        for r in range(16):
            a(f"s_add_u32 m0, s{S_T2}, {(ch & 1)*16384 + 1024*r}")
            if rot is None:
                a(f"s_mov_b32 s{S_T1}, {(RI * (16 * ch + r)) << rowlog}")
            else:
                a(f"s_add_u32 s{S_T1}, s{rot}, {RI * (16 * ch + r)}\ns_and_b32 s{S_T1}, s{S_T1}, {64 * RI - 1}\ns_lshl_b32 s{S_T1}, s{S_T1}, {rowlog}")
            a(f"buffer_load_dwordx4 v16, s[{S_WM}:{S_WM+3}], s{S_T1} offen {'nt ' if E('BNT', 0) else ''}lds")

    def tr(ch):
        for f in range(16 * ch, 16 * ch + 16):
            for jj in range(2):
                o = frag_off(f, jj) - 16384 * ch
                assert 0 <= o < 16384
                a(f"ds_read_b64_tr_b16 a[{4*f+2*jj}:{4*f+2*jj+1}], v17 offset:{(ch & 1)*16384 + o}")
            if f % 4 == 3:
                a("s_waitcnt lgkmcnt(0)")
    WT = E("BWT", 0) if touch else 0
    if WT:
        a(f"""
        s_lshl_b32 s{S_T0}, s{S_H}, 16
        s_lshl_b32 s{S_T1}, s{S_WAVE}, 14
        s_add_u32 s{S_T0}, s{S_T0}, s{S_T1}
        v_lshlrev_b32 v21, 7, v{V_L}
        v_add_u32 v21, s{S_T0}, v21
        """)
    def tch(n):
        for i in range(2):
            a(f"s_mov_b32 s{S_T1}, {n * 2 * MB + i * 8192}")
            a(f"buffer_load_dword v22, v21, s[{S_WM}:{S_WM+3}], s{S_T1} offen")
    if WT == 1:
        tch(0); tch(1); dma(0); tch(2); dma(1); tch(3)
    elif WT == 2:
        tch(0); tch(1); tch(2); tch(3); dma(0); dma(1)
    else:
        dma(0); dma(1)
    a(f"s_waitcnt vmcnt({(20 if WT == 1 else 16) + HELP})"); tr(0); dma(2)
    a(f"s_waitcnt vmcnt({(18 if WT == 1 else 16) + HELP})"); tr(1); dma(3)
    a("s_waitcnt vmcnt(16)"); tr(2)
    a("s_waitcnt vmcnt(0)"); tr(3)
    a("s_barrier")


def lane32(hi_mul, swap=False, rl=6):
    if swap:
        return lane32(hi_mul).replace(f"v_lshl_add_u32 v17, v{V_T1}, 3, v17", f"""
        v_and_b32 v18, 1, v{V_L}
        v_lshl_add_u32 v17, v18, 4, v17
        v_bfe_u32 v18, v{V_L}, 1, 1
        v_lshl_add_u32 v17, v18, 3, v17""")
    return f"""
    v_bfe_u32 v17, v{V_L}, 2, 2
    v_lshrrev_b32 v18, 5, v{V_L}
    v_mul_u32_u24 v18, {hi_mul}, v18
    v_add_u32 v17, v17, v18
    v_lshlrev_b32 v17, {rl}, v17
    v_bfe_u32 v18, v{V_L}, 4, 1
    v_lshl_add_u32 v17, v18, 5, v17
    v_lshl_add_u32 v17, v{V_T1}, 3, v17
    """


def lane16(qlog):
    return f"""
    v_bfe_u32 v17, v{V_L}, 2, 2
    v_lshrrev_b32 v18, 4, v{V_L}
    v_lshl_add_u32 v17, v18, 3, v17
    v_lshlrev_b32 v17, 6, v17
    v_lshl_add_u32 v17, v{V_T1}, {qlog}, v17
    """


M32 = E('M32', 0)
GR2 = 512 if M32 else 1024
V_DX, V_RA, V_ST = 6, 8, 7
FR, NFR, AHEAD = 20, 8, 6
ACC = (52, 68)
EP = 84
S_XB = 46
S_CU, S_OB, S_FL = 47, 48, 49
S_O0, S_O1, S_OI, S_OT = 64, 65, 66, 67


def proj_setup(a, ka_w, swap):
    common(a, ka_w, KA_AX, 4 * MB)
    a(f"""
    s_lshl_b32 s{S_T0}, s{S_H}, 8
    s_lshl_b32 s{S_T1}, s{S_WAVE}, 6
    s_add_u32 s{S_OB}, s{S_T0}, s{S_T1}
    s_and_b32 s{S_T0}, s{S_OB}, 0x7ff
    v_add_u32 v19, s{S_T0}, v{V_L}
    v_lshlrev_b32 v19, 7, v19
    buffer_load_dword v20, v19, s[{S_XM}:{S_XM+3}], 0 offen
    """)
    if M32:
        load_weights(a, 13, S_OB, lane32(8, swap), lambda k, jj: (16 * k + 4 * jj) * 64, touch=True)
    else:
      load_weights(a, 13, S_OB, lane16(4 if swap else 3), lambda f, jj: (32 * (f >> 1) + 4 * jj) * 64 + (f & 1) * (8 if swap else 32))
    a(f"""
    v_lshrrev_b32 v{V_T0}, 3, v{V_L}
    s_lshl_b32 s{S_T0}, s{S_WAVE}, 3
    v_add_u32 v{V_T0}, s{S_T0}, v{V_T0}
    v_bfe_u32 v{V_T1}, v{V_T0}, 1, 3
    v_and_b32 v{V_T2}, 7, v{V_L}
    v_xor_b32 v{V_T1}, v{V_T1}, v{V_T2}
    v_lshlrev_b32 v{V_DX}, 11, v{V_T0}
    v_lshl_add_u32 v{V_DX}, v{V_T1}, 4, v{V_DX}
    s_lshl_b32 s{S_XB}, s{S_WAVE}, 10
    v_and_b32 v{V_T0}, 15, v{V_L}
    v_bfe_u32 v{V_T1}, v{V_T0}, 1, 3
    v_lshrrev_b32 v{V_T2}, 4, v{V_L}
    v_xor_b32 v{V_T1}, v{V_T1}, v{V_T2}
    v_lshlrev_b32 v{V_RA}, 7, v{V_T0}
    v_lshl_add_u32 v{V_RA}, v{V_T1}, 4, v{V_RA}
    v_xor_b32 v{V_RA+1}, 64, v{V_RA}
    v_add_u32 v{V_RA+2}, 0x10000, v{V_RA}
    v_add_u32 v{V_RA+3}, 0x10000, v{V_RA+1}
    v_mov_b32 v{V_ST}, v{V_LL}
    """)
    if M32:
        a(f"""
        v_and_b32 v{V_T0}, 31, v{V_L}
        v_bfe_u32 v{V_T1}, v{V_T0}, 1, 3
        v_lshrrev_b32 v{V_T2}, 5, v{V_L}
        v_xor_b32 v{V_T1}, v{V_T1}, v{V_T2}
        v_lshlrev_b32 v{V_RA}, 7, v{V_T0}
        v_lshl_add_u32 v{V_RA}, v{V_T1}, 4, v{V_RA}
        v_xor_b32 v{V_RA+1}, 32, v{V_RA}
        v_xor_b32 v{V_RA+2}, 64, v{V_RA}
        v_xor_b32 v{V_RA+3}, 96, v{V_RA}
        v_add_u32 v{V_RA+4}, 0x10000, v{V_RA}
        v_add_u32 v{V_RA+5}, 0x10000, v{V_RA+1}
        v_add_u32 v{V_RA+6}, 0x10000, v{V_RA+2}
        v_add_u32 v{V_RA+7}, 0x10000, v{V_RA+3}
        v_bfe_u32 v{V_T1}, v{V_L}, 4, 1
        v_lshlrev_b32 v{V_ST}, 10, v{V_T1}
        v_lshl_add_u32 v{V_ST}, v{V_T2}, 8, v{V_ST}
        v_and_b32 v{V_T1}, 15, v{V_L}
        v_lshl_add_u32 v{V_ST}, v{V_T1}, 4, v{V_ST}
        """)
    a(f"""
    s_lshl_b32 s{S_CU}, s{S_H}, 2
    s_add_u32 s{S_CU}, s{S_CU}, s{S_WAVE}
    s_mov_b32 s{S_SEG}, 0
    """)


def xdma_lines(buf, s_off):
    out = []
    for kb in range(16):
        out.append([f"s_add_u32 m0, s{S_XB}, {buf*65536 + kb*3968}", "s_nop 0",
                    f"buffer_load_dwordx4 v{V_DX}, s[{S_XM}:{S_XM+3}], s{s_off} offen offset:{128*kb} lds"])
    return out


def proj_segment(a, buf, acc, wA, fill):
    def rd(n):
        f = FR + 4 * (n % NFR)
        k = n >> 1
        if M32:
            a(f"ds_read_b128 v[{f}:{f+3}], v{V_RA + 4*buf + (n & 3)} offset:{4096*(n >> 2)}")
        else:
            a(f"ds_read_b128 v[{f}:{f+3}], v{V_RA + 2*buf + (k & 1)} offset:{4096*(k >> 1) + 2048*(n & 1)}")
    for n in range(AHEAD):
        rd(n)
    for n in range(64):
        f = FR + 4 * (n % NFR)
        k, tt = n >> 1, n & 1
        fl = list(fill.get(n, []))
        if fl and "m0" in fl[0] and fl[1] == "s_nop 0":
            a(fl[0]); fl = fl[2:]
        if not (E("LG2", 1) and n % 2 == 1 and n + AHEAD < 64):
            a(f"s_waitcnt lgkmcnt({min(AHEAD, 64 - n) - 1 - (1 if E('LG2', 1) and n + 1 + AHEAD < 64 else 0)})")
        if M32:
            c = "0" if n == 0 else f"v[{acc}:{acc+15}]"
            if wA:
                a(f"v_mfma_f32_32x32x16_bf16 v[{acc}:{acc+15}], a[{4*n}:{4*n+3}], v[{f}:{f+3}], {c}")
            else:
                a(f"v_mfma_f32_32x32x16_bf16 v[{acc}:{acc+15}], v[{f}:{f+3}], a[{4*n}:{4*n+3}], {c}")
            if n + AHEAD < 64:
                rd(n + AHEAD)
        for u in range(0 if M32 else 2):
            d = acc + 8 * tt + 4 * u
            w = 4 * (2 * k + u)
            c = "0" if k == 0 else f"v[{d}:{d+3}]"
            if wA:
                a(f"v_mfma_f32_16x16x32_bf16 v[{d}:{d+3}], a[{w}:{w+3}], v[{f}:{f+3}], {c}")
            else:
                a(f"v_mfma_f32_16x16x32_bf16 v[{d}:{d+3}], v[{f}:{f+3}], a[{w}:{w+3}], {c}")
            if u == 0 and n + AHEAD < 64:
                rd(n + AHEAD)
        for l in fl:
            a(l)


def pack_lines(acc, isV):
    src = [0, 2, 8, 10, 4, 6, 12, 14] if isV else [0, 2, 4, 6, 8, 10, 12, 14]
    return [f"v_cvt_pk_bf16_f32 v{EP+i}, v{acc+s}, v{acc+s+1}" for i, s in enumerate(src)]


def kvx(cu):
    m = E("KVPAR", 0)
    return ["", f"s_xor_b32 s{S_T1}, s{S_T1}, 1", f"s_xor_b32 s{S_T1}, s{S_T1}, s{cu}"][m]


def near_base(a, dst, cu, log, region):
    a(f"""
    s_lshr_b32 s{S_T1}, s{cu}, {21 - log}
    s_xor_b32 s{S_T1}, s{S_T1}, s98
    {kvx(cu) if log == 18 else ""}
    s_and_b32 s{S_T1}, s{S_T1}, 1
    s_lshl_b32 s{S_T1}, s{S_T1}, 13
    s_lshl_b32 s{dst}, s{cu}, {log}
    s_add_u32 s{dst}, s{dst}, s{S_T1}
    s_add_u32 s{dst}, s{dst}, {region}
    """)


def kv_role(a: Asm, name, isV, ts, sync):
    proj_setup(a, KA_WV if isV else KA_WK, not isV)
    tsx(a, ts, 2)
    a("s_mov_b32 s50, 0")
    for g in xdma_lines(0, 50):
        a("\n".join(g))
    def store_lines():
        return [f"s_add_u32 s51, s{S_SEG}, s{S_CU}", "s_sub_u32 s51, s51, 1", "s_bfe_u32 s52, s51, 0x40002", "s_lshl_b32 s52, s52, 14",
                "s_and_b32 s51, s51, 3", "s_lshl_b32 s51, s51, 11", "s_add_u32 s51, s51, s52", f"s_add_u32 s51, s51, s{S_OB}",
                f"buffer_store_dwordx4 v[{EP}:{EP+3}], v{V_ST}, {SRD}, s51 offen sc1",
                f"buffer_store_dwordx4 v[{EP+4}:{EP+7}], v{V_ST}, {SRD}, s51 offen offset:{GR2} sc1"]

    def flag_lines():
        return [f"v_mov_b32 v17, s{S_SEG}", "s_mov_b64 exec, 1", f"buffer_store_dword v17, v16, {SRD}, s{S_FL} offen sc1", "s_mov_b64 exec, -1"]

    def seg(buf, first):
        a("\n".join(pst(0)))
        a(f"s_waitcnt vmcnt({0 if first else 2})")
        a("\n".join(pst(1)))
        a("s_barrier")
        a("\n".join(pst(2)))
        a(f"s_add_u32 s50, s{S_SEG}, 1\ns_min_u32 s50, s50, 63\ns_lshl_b32 s50, s50, 16")
        fill = {}
        if not first:
            pk = pack_lines(ACC[1 - buf], isV)
            fill[0] = pk[:3]; fill[1] = pk[3:6]; fill[2] = pk[6:]
            st = store_lines()
            fill[3] = st[:4]; fill[4] = st[4:9]; fill[5] = st[9:]
            fill[E("FG", 42)] = pst(3) + ["s_waitcnt vmcnt(16)"] + pst(4) + flag_lines()
        fill[E("FG", 42) + 2] = [f"s_add_u32 s53, s{S_SEG}, 3", "s_min_u32 s53, s53, 63", "s_lshl_b32 s53, s53, 16",
                    "s_mov_b64 exec, 0xffff", f"buffer_load_dword v18, v19, s[{S_XM}:{S_XM+3}], s53 offen", "s_mov_b64 exec, -1"]
        for i, g in enumerate(xdma_lines(1 - buf, 50)):
            fill[7 + 2 * i] = g
        proj_segment(a, buf, ACC[buf], not isV, fill)
        a(f"s_add_u32 s{S_SEG}, s{S_SEG}, 1")
    a(f"s_and_b32 s53, s{S_CU}, 31\ns_lshl_b32 s53, s53, 4\nv_add_u32 v19, s53, v{V_L}\nv_lshlrev_b32 v19, 7, v19")
    pinit(a)
    seg(0, True)
    sync(V_T0)
    tsx(a, ts, 3)
    near_base(a, S_OB, S_CU, 18, WS_VT if isV else WS_KX)
    a(f"""
    s_xor_b32 s{S_T1}, s98, 1
    s_lshl_b32 s{S_T1}, s{S_T1}, 13
    s_lshl_b32 s{S_FL}, s{S_H}, 7
    s_add_u32 s{S_FL}, s{S_FL}, s{S_T1}
    s_lshl_b32 s{S_T1}, s{S_WAVE}, 2
    s_add_u32 s{S_FL}, s{S_FL}, s{S_T1}
    s_add_u32 s{S_FL}, s{S_FL}, {WS_F + (F_V if isV else F_K)}
    v_mov_b32 v16, 0
    """)

    a("\n".join(pack_lines(ACC[0], isV) + store_lines() + ["s_waitcnt vmcnt(0)"] + flag_lines()))
    a.label(f"{name}_loop")
    seg(1, False)
    a(f"s_cmp_eq_u32 s{S_SEG}, 64\ns_cbranch_scc1 {name}_fin")
    seg(0, False)
    a(f"s_branch {name}_loop")
    a.label(f"{name}_fin")
    a.nops(12)
    a("\n".join(pack_lines(ACC[1], isV) + store_lines() + ["s_waitcnt vmcnt(0)"] + flag_lines()))
    pdump(a)
    a("s_waitcnt vmcnt(0)\ns_barrier")


def qx_role(a: Asm, name, ts, sync):
    sync(V_T0)
    proj_setup(a, KA_WQ, True)
    tsx(a, ts, 3)
    L_Q, L_KV, L_KM = 131072, 139264, 155648
    S_NT, S_EH, S_C, S_KVN, S_KMN = 52, 53, 54, 55, 56
    S_KB, S_MB, S_LK, S_LM = 58, 59, 60, 61
    S_MK = 12
    V_G, V_M, V_OKM, V_OVM, V_OO, V_NEG, V_CM, V_OF, V_OF2, V_QW, V_QR = 92, 93, 94, 95, 96, 97, 98, 99, 100, 101, 102
    ONE, LS = 104, 108
    V_KR, V_VR = 103, 240
    KX, VT, KM, VM, Q, S, P, O, TMP = 112, 144, 160, 176, 184, 200, 212, 220, 236
    a(f"""
    v_lshrrev_b32 v{V_G}, 4, v{V_L}
    v_and_b32 v{V_M}, 15, v{V_L}
    s_and_b32 s{S_NT}, s{S_WAVE}, 1
    s_lshr_b32 s{S_EH}, s{S_WAVE}, 1
    s_mov_b32 s{S_C}, 0x3e0293ee
    s_mov_b32 s{S_KVN}, 0
    s_mov_b32 s{S_KMN}, 0
    v_mov_b32 v{V_NEG}, 0xff7fffff
    v_and_b32 v{V_T0}, 7, v{V_M}
    v_lshlrev_b32 v{V_OKM}, 7, v{V_G}
    v_lshl_add_u32 v{V_OKM}, v{V_T0}, 4, v{V_OKM}
    v_and_b32 v{V_T0}, 31, v{V_L}
    v_lshlrev_b32 v{V_OVM}, 3, v{V_T0}
    v_lshrrev_b32 v{V_T0}, 1, v{V_G}
    v_lshlrev_b32 v{V_OO}, 10, v{V_T0}
    v_and_b32 v{V_T0}, 1, v{V_G}
    v_lshl_add_u32 v{V_OO}, v{V_T0}, 9, v{V_OO}
    v_lshl_add_u32 v{V_OO}, v{V_M}, 4, v{V_OO}
    s_lshl_b32 s{S_T0}, s{S_H}, 13
    s_lshl_b32 s{S_T1}, s{S_EH}, 12
    s_add_u32 s{S_T0}, s{S_T0}, s{S_T1}
    s_lshl_b32 s{S_T1}, s{S_NT}, 8
    s_add_u32 s{S_T0}, s{S_T0}, s{S_T1}
    s_add_u32 s{S_T0}, s{S_T0}, {WS_O}
    v_add_u32 v{V_OO}, s{S_T0}, v{V_OO}
    s_lshl_b32 s{S_T0}, s{S_NT}, 4
    v_add_u32 v{V_CM}, s{S_T0}, v{V_M}
    v_lshlrev_b32 v{V_T0}, 2, v{V_G}
    v_sub_u32 v{V_CM}, v{V_CM}, v{V_T0}
    s_mov_b32 s28, 0
    s_mov_b32 s29, -1
    s_xor_b32 s{S_T1}, s98, 1
    s_lshl_b32 s{S_T1}, s{S_T1}, 13
    s_lshl_b32 s{S_T0}, s{S_H}, 7
    s_add_u32 s{S_T0}, s{S_T0}, s{S_T1}
    s_add_u32 s{S_T0}, s{S_T0}, {WS_F}
    v_and_b32 v{V_T0}, 3, v{V_L}
    v_bfe_u32 v{V_T1}, v{V_L}, 2, 1
    v_lshlrev_b32 v{V_OF}, 12, v{V_T1}
    v_lshl_add_u32 v{V_OF}, v{V_T0}, 2, v{V_OF}
    v_add_u32 v{V_OF}, s{S_T0}, v{V_OF}
    s_xor_b32 s62, s98, 1
    s_lshl_b32 s62, s62, 13
    s_lshr_b32 s{S_T1}, s{S_CU}, 6
    s_lshl_b32 s{S_T1}, s{S_T1}, 14
    s_add_u32 s62, s62, s{S_T1}
    s_and_b32 s{S_T1}, s{S_CU}, 63
    s_lshl_b32 s{S_T1}, s{S_T1}, 7
    s_add_u32 s62, s62, s{S_T1}
    s_add_u32 s62, s62, {WS_F + F_KVM}
    s_lshl_b32 s{S_FL}, s{S_CU}, 2
    s_add_u32 s{S_FL}, s{S_FL}, {WS_F + F_O}
    s_lshl_b32 s{S_T0}, s{S_WAVE}, 11
    s_add_u32 s{S_T0}, s{S_T0}, {L_Q}
    v_add_u32 v{V_QW}, s{S_T0}, v{V_ST}
    s_lshl_b32 s{S_T0}, s{S_NT}, 10
    s_add_u32 s{S_T0}, s{S_T0}, {L_Q}
    v_add_u32 v{V_QR}, s{S_T0}, v{V_LL}
    v_mov_b32 v16, 0
    s_mov_b32 s50, 0
    """)
    for i in range(4):
        a(f"v_mov_b32 v{ONE+i}, 0x3f803f80")
    for t in range(2):
        for r in range(4):
            a(f"v_cmp_gt_i32 s[{S_MK+8*t+2*r}:{S_MK+8*t+2*r+1}], {16*t+r}, v{V_CM}")
    near_base(a, S_KB, S_CU, 18, WS_KX)
    near_base(a, S_MB, S_CU, 17, WS_KVM)
    a(f"""
    s_lshl_b32 s{S_LK}, s{S_WAVE}, 11
    s_add_u32 s{S_LK}, s{S_LK}, {L_KV}
    s_lshl_b32 s{S_LM}, s{S_WAVE}, 10
    s_add_u32 s{S_LM}, s{S_LM}, {L_KM}
    v_add_u32 v{V_OKM}, {L_KM}, v{V_OKM}
    s_lshl_b32 s{S_T0}, s{S_EH}, 11
    s_add_u32 s{S_T0}, s{S_T0}, {L_KM + 512}
    v_add_u32 v{V_OVM}, s{S_T0}, v{V_OVM}
    v_add_u32 v{V_KR}, {L_KV}, v{V_LL}
    s_lshl_b32 s{S_T0}, s{S_EH}, 12
    s_add_u32 s{S_T0}, s{S_T0}, {L_KV + 8192}
    v_add_u32 v{V_VR}, s{S_T0}, v{V_LL}
    """)
    for g in xdma_lines(0, 50):
        a("\n".join(g))
    a("s_waitcnt vmcnt(0)")

    def wait_flag(tag, known, voff, sleep):
        a(f"""
        s_cmp_gt_i32 s{known}, s{S_SEG}
        s_cbranch_scc1 {name}_{tag}k
{name}_{tag}w:
        """)
        wdog(a, name)
        a(f"""
        buffer_load_dword v{V_T0}, v{voff}, {SRD}, 0 offen sc1
        s_waitcnt vmcnt(0)
        v_min_i32_dpp v{V_T0}, v{V_T0}, v{V_T0} quad_perm:[1,0,3,2] row_mask:0xf bank_mask:0xf
        s_nop 1
        v_min_i32_dpp v{V_T0}, v{V_T0}, v{V_T0} quad_perm:[2,3,0,1] row_mask:0xf bank_mask:0xf
        s_nop 1
        v_min_i32_dpp v{V_T0}, v{V_T0}, v{V_T0} row_ror:4 row_mask:0xf bank_mask:0xf
        s_nop 0
        v_readfirstlane_b32 s{known}, v{V_T0}
        s_cmp_gt_i32 s{known}, s{S_SEG}
        s_cbranch_scc1 {name}_{tag}k
        s_sleep {sleep}
        s_branch {name}_{tag}w
{name}_{tag}k:
        """)

    def flag_lines():
        return [f"v_mov_b32 v17, s{S_SEG}", "s_mov_b64 exec, 1", f"buffer_store_dword v17, v16, {SRD}, s{S_FL} offen sc1", "s_mov_b64 exec, -1"]

    def kmpoll_lines():
        if E("APOLL", 1):
            return [f"v_mov_b32 v{V_OF2}, 0", "s_mov_b64 exec, 1", f"buffer_atomic_add v{V_OF2}, v16, {SRD}, s62 offen sc0 sc1", "s_mov_b64 exec, -1"]
        return [f"buffer_load_dword v{V_OF2}, v16, {SRD}, s62 offen sc1"]

    def km_lines():
        return [f"s_mov_b32 m0, s{S_LM}", "s_nop 0", f"buffer_load_dwordx4 v{V_LL}, {SRD}, s68 offen sc1 lds"]

    def seg(buf):
        a("s_barrier")
        a("\n".join(pst(0)))
        a("\n".join(pack_lines(ACC[0], False)))
        a(f"""
        ds_write_b128 v{V_QW}, v[{EP}:{EP+3}]
        ds_write_b128 v{V_QW}, v[{EP+4}:{EP+7}] offset:{GR2}
        """)
        wait_flag(f"kv{buf}", S_KVN, V_OF, 4)
        a(f"""
        s_add_u32 s51, s{S_CU}, s{S_SEG}
        s_bfe_u32 s57, s51, 0x40002
        s_lshl_b32 s57, s57, 14
        s_and_b32 s66, s51, 3
        s_lshl_b32 s66, s66, 11
        s_add_u32 s66, s66, s57
        s_add_u32 s66, s66, s{S_KB}
        s_add_u32 s67, s66, {WS_VT}
        s_bfe_u32 s57, s51, 0x30003
        s_lshl_b32 s57, s57, 14
        s_and_b32 s68, s51, 7
        s_lshl_b32 s68, s68, 10
        s_add_u32 s68, s68, s57
        s_add_u32 s68, s68, s{S_MB}
        s_add_u32 s50, s{S_SEG}, 2
        s_min_u32 s50, s50, 63
        s_lshl_b32 s50, s50, 16
        s_cmp_gt_i32 s{S_KMN}, s{S_SEG}
        s_cselect_b32 s30, 1, 0
        """)
        fill = {}
        for i in range(4):
            fill[2 * i] = [f"s_add_u32 m0, s{S_LK}, {8192 * (i >> 1)}", "s_nop 0",
                           f"buffer_load_dwordx4 v{V_LL}, {SRD}, s{66 + (i >> 1)} offen offset:{1024 * (i & 1)} sc1 lds"]
        fill[8] = ["s_cmp_eq_u32 s30, 1", f"s_cbranch_scc0 {name}_ke{buf}"] + km_lines() + [f"{name}_ke{buf}:"]
        for i, g in enumerate(xdma_lines(1 - (buf & 1), 50)):
            fill[10 + 2 * i] = g
        a("\n".join(pst(1)))
        fill[27] = ["s_waitcnt vmcnt(13)"] + flag_lines()
        fill[29] = kmpoll_lines()
        fill[58] = ["s_waitcnt vmcnt(6)", f"v_readfirstlane_b32 s{S_KMN}, v{V_OF2}", "s_cmp_eq_u32 s30, 1", f"s_cbranch_scc1 {name}_kf{buf}",
                    f"s_cmp_gt_i32 s{S_KMN}, s{S_SEG}", f"s_cbranch_scc0 {name}_kf{buf}", "s_mov_b32 s30, 1"] + km_lines() + [f"{name}_kf{buf}:"]
        if buf < 2:
            proj_segment(a, buf, ACC[0], True, fill)
        else:
            for i in (0, 2, 4, 6, 8):
                a("\n".join(fill[i]))
            a("\n".join(["s_waitcnt vmcnt(4)"] + flag_lines()))
        a("\n".join(pst(2)))
        a(f"s_cmp_eq_u32 s30, 1\ns_cbranch_scc1 {name}_kl{buf}")
        a.label(f"{name}_kw{buf}")
        wdog(a, name)
        a("\n".join(kmpoll_lines()))
        a(f"""
        s_waitcnt vmcnt(0)
        v_readfirstlane_b32 s{S_KMN}, v{V_OF2}
        s_cmp_gt_i32 s{S_KMN}, s{S_SEG}
        s_cbranch_scc0 {name}_kw{buf}
        """)
        a("\n".join(km_lines()))
        a.label(f"{name}_kl{buf}")
        a("\n".join(pst(4)))
        a(f"""
        s_waitcnt lgkmcnt(0) vmcnt(0)
        s_barrier
        """)
        a("\n".join(pst(5)))
        for j in range(4):
            a(f"ds_read_b128 v[{Q+4*j}:{Q+4*j+3}], v{V_QR} offset:{2048*j}")
            for t in range(2):
                a(f"ds_read_b128 v[{KX+16*t+4*j}:{KX+16*t+4*j+3}], v{V_KR} offset:{2048*j + 1024*t}")
        for j in range(4):
            a(f"s_waitcnt lgkmcnt({9 - 2*j})")
            for t in range(2):
                c = "0" if j == 0 else f"v[{S+4*t}:{S+4*t+3}]"
                a(f"v_mfma_f32_16x16x32_bf16 v[{S+4*t}:{S+4*t+3}], v[{KX+16*t+4*j}:{KX+16*t+4*j+3}], v[{Q+4*j}:{Q+4*j+3}], {c}")
            a(f"ds_read_b128 v[{KM+4*j}:{KM+4*j+3}], v{V_OKM} offset:{1024*j}")
        for j in range(4):
            a(f"s_waitcnt lgkmcnt({3 + j})")
            c = "0" if j == 0 else f"v[{S+8}:{S+11}]"
            a(f"v_mfma_f32_16x16x32_bf16 v[{S+8}:{S+11}], v[{KM+4*j}:{KM+4*j+3}], v[{Q+4*j}:{Q+4*j+3}], {c}")
            a(f"ds_read_b128 v[{VT+4*j}:{VT+4*j+3}], v{V_VR} offset:{1024*j}")
            a(f"ds_read_b64 v[{VM+2*j}:{VM+2*j+1}], v{V_OVM} offset:{1024*(j >> 1) + 256*(j & 1)}")
        a.nops(4)
        for i in range(8):
            a(f"v_cndmask_b32 v{S+i}, v{S+i}, v{V_NEG}, s[{S_MK+2*i}:{S_MK+2*i+1}]")
        for i in range(4):
            a(f"v_cndmask_b32 v{S+8+i}, v{S+8+i}, v{V_NEG}, s[28:29]")
        MX, TM, SM = TMP, TMP + 1, TMP + 2
        a(f"v_max3_f32 v{MX}, v{S}, v{S+1}, v{S+2}")
        for i in range(3, 11, 2):
            a(f"v_max3_f32 v{MX}, v{MX}, v{S+i}, v{S+i+1}")
        a(f"""
        v_max_f32 v{TM}, v{MX}, v{S+11}
        v_max_f32 v{MX}, v{MX}, v{S+11}
        s_nop 1
        v_permlane16_swap_b32 v{MX}, v{TM}
        s_nop 0
        v_max_f32 v{SM}, v{MX}, v{TM}
        v_max_f32 v{SM+1}, v{MX}, v{TM}
        s_nop 1
        v_permlane32_swap_b32 v{SM}, v{SM+1}
        s_nop 0
        v_max_f32 v{MX}, v{SM}, v{SM+1}
        v_mul_f32 v{MX}, s{S_C}, v{MX}
        """)
        for i in range(12):
            a(f"v_fma_f32 v{S+i}, v{S+i}, s{S_C}, -v{MX}")
        for i in range(12):
            a(f"v_exp_f32 v{S+i}, v{S+i}")
        a.nops(1)
        for i in range(6):
            a(f"v_cvt_pk_bf16_f32 v{P+i}, v{S+2*i}, v{S+2*i+1}")
        a("s_waitcnt lgkmcnt(0)\ns_nop 0")
        a(f"v_mfma_f32_16x16x32_bf16 v[{LS}:{LS+3}], v[{ONE}:{ONE+3}], v[{P}:{P+3}], 0")
        for T in range(4):
            a(f"v_mfma_f32_16x16x32_bf16 v[{O+4*T}:{O+4*T+3}], v[{VT+4*T}:{VT+4*T+3}], v[{P}:{P+3}], 0")
        a(f"v_mfma_f32_16x16x16_bf16 v[{LS}:{LS+3}], v[{ONE}:{ONE+1}], v[{P+4}:{P+5}], v[{LS}:{LS+3}]")
        for T in range(4):
            a(f"v_mfma_f32_16x16x16_bf16 v[{O+4*T}:{O+4*T+3}], v[{VM+2*T}:{VM+2*T+1}], v[{P+4}:{P+5}], v[{O+4*T}:{O+4*T+3}]")
        a(f"""
        s_lshl_b32 s51, s{S_SEG}, 18
        s_nop 2
        v_rcp_f32 v{SM}, v{LS}
        v_rcp_f32 v{SM+1}, v{LS+1}
        s_nop 1
        """)
        for i in range(0, 16, 2):
            a(f"v_pk_mul_f32 v[{O+i}:{O+i+1}], v[{O+i}:{O+i+1}], v[{SM}:{SM+1}]")
        for i in range(8):
            a(f"v_cvt_pk_bf16_f32 v{S+i}, v{O+2*i}, v{O+2*i+1}")
        a(f"""
        buffer_store_dwordx4 v[{S}:{S+3}], v{V_OO}, {SRD}, s51 offen sc1
        buffer_store_dwordx4 v[{S+4}:{S+7}], v{V_OO}, {SRD}, s51 offen offset:2048 sc1
        s_add_u32 s{S_SEG}, s{S_SEG}, 1
        """)
        a("\n".join(pst(6)))
    pinit(a)
    a("s_barrier\ns_mov_b32 s50, 0x10000")
    proj_segment(a, 0, ACC[0], True, {2 * i: g for i, g in enumerate(xdma_lines(1, 50))})
    a("s_waitcnt vmcnt(0)")
    a.nops(10)
    a.label(f"{name}_loop")
    seg(1)
    a(f"s_cmp_eq_u32 s{S_SEG}, 63\ns_cbranch_scc1 {name}_last")
    seg(0)
    a(f"s_branch {name}_loop")
    a.label(f"{name}_last")
    seg(2)
    a("\n".join(["s_waitcnt vmcnt(0)"] + flag_lines()))
    pdump(a)
    a.label(f"{name}_quit")
    ts(4)
    a("s_endpgm")


def out_role(a: Asm, name, ts):
    common(a, KA_WO, KA_OUT, 8 * MB)
    S_ON, S_PAR, S_PRE, S_ROT, S_PEND, S_KH, S_C = 52, 53, 55, 56, 57, 58, 59
    V_OL, V_OF, V_LW, V_LRK, V_LRS, V_OS, V_SND, V_RCV = 6, 7, 8, 9, 10, 11, 12, 13
    ACCO, RD, KEEP, INB, F0, NF, STG = 20, 52, 84, 88, 96, 32, 224
    HS, QS, US, WSs, PS = 544, 1088, 4352, 8704, 34816
    a(f"""
    s_and_b32 s{S_KH}, s{S_H}, 1
    s_lshr_b32 s{S_C}, s{S_H}, 1
    s_lshl_b32 s{S_T0}, s{S_KH}, 22
    s_lshl_b32 s{S_T1}, s{S_WAVE}, 20
    s_add_u32 s{S_T0}, s{S_T0}, s{S_T1}
    s_lshl_b32 s{S_T1}, s{S_C}, 7
    s_add_u32 s{S_OB}, s{S_T0}, s{S_T1}
    s_and_b32 s{S_ROT}, s{S_C}, 3
    s_lshl_b32 s{S_ROT}, s{S_ROT}, 7
    """)
    load_weights(a, 11, S_OB, lane32(4, rl=7), lambda f, jj: (128 * (f >> 4) + 32 * ((f >> 2) & 3) + 8 * ((f >> 1) & 1) + 16 * jj) * 128 + 64 * (f & 1), rot=S_ROT, cl=3)
    a(f"""
    s_lshl_b32 s{S_ROT}, s{S_ROT}, 6
    s_lshl_b32 s{S_T0}, s{S_KH}, 17
    s_lshl_b32 s{S_T1}, s{S_WAVE}, 15
    s_add_u32 s{S_T0}, s{S_T0}, s{S_T1}
    s_add_u32 s{S_T0}, s{S_T0}, {WS_O}
    v_add_u32 v{V_OL}, s{S_T0}, v{V_LL}
    v_and_b32 v{V_T0}, 15, v{V_L}
    v_lshlrev_b32 v{V_OF}, 2, v{V_T0}
    s_lshl_b32 s{S_T0}, s{S_KH}, 8
    s_lshl_b32 s{S_T1}, s{S_WAVE}, 6
    s_add_u32 s{S_T0}, s{S_T0}, s{S_T1}
    s_add_u32 s{S_T0}, s{S_T0}, {WS_F + F_O}
    v_add_u32 v{V_OF}, s{S_T0}, v{V_OF}
    s_mul_i32 s{S_T0}, s{S_WAVE}, {WSs}
    v_lshrrev_b32 v{V_T0}, 5, v{V_L}
    v_lshl_add_u32 v{V_LW}, v{V_T0}, 5, v{V_LL}
    v_add_u32 v{V_LW}, s{S_T0}, v{V_LW}
    v_and_b32 v{V_T0}, 7, v{V_L}
    v_mul_u32_u24 v{V_LRK}, {HS}, v{V_T0}
    v_lshrrev_b32 v{V_T1}, 3, v{V_L}
    v_lshl_add_u32 v{V_LRK}, v{V_T1}, 4, v{V_LRK}
    s_lshl_b32 s{S_T0}, s{S_WAVE}, 7
    v_add_u32 v{V_LRK}, s{S_T0}, v{V_LRK}
    s_mul_i32 s{S_T0}, s{S_KH}, {US}
    s_sub_u32 s{S_T1}, {US}, s{S_T0}
    v_add_u32 v{V_LRS}, s{S_T1}, v{V_LRK}
    v_add_u32 v{V_LRK}, s{S_T0}, v{V_LRK}
    s_lshl_b32 s{S_T0}, s{S_WAVE}, 15
    s_lshl_b32 s{S_T1}, s{S_H}, 6
    s_add_u32 s{S_T0}, s{S_T0}, s{S_T1}
    v_lshlrev_b32 v{V_OS}, 12, v{V_T1}
    v_and_b32 v{V_T0}, 7, v{V_L}
    v_lshl_add_u32 v{V_OS}, v{V_T0}, 3, v{V_OS}
    v_add_u32 v{V_OS}, s{S_T0}, v{V_OS}
    s_lshl_b32 s{S_T0}, s{S_H}, 13
    s_lshl_b32 s{S_T1}, s{S_WAVE}, 10
    s_add_u32 s{S_T0}, s{S_T0}, s{S_T1}
    s_add_u32 s{S_T0}, s{S_T0}, {WS_OI}
    s_add_u32 s{S_T0}, s{S_T0}, s{S_OI}
    v_add_u32 v{V_RCV}, s{S_T0}, v{V_LL}
    v_xor_b32 v{V_SND}, 8192, v{V_RCV}
    s_mov_b32 s{S_SEG}, s{S_O0}
    s_mov_b32 s{S_ON}, 0
    s_mov_b32 s{S_PAR}, 0
    s_mov_b32 s{S_PEND}, 0
    """)

    def ld(k, sbase):
        f = F0 + 4 * k
        if k % 4 == 0:
            a(f"s_add_u32 s51, s{S_ROT}, {1024 * k}\ns_and_b32 s51, s51, 0x7fff\ns_add_u32 s51, s51, s{sbase}")
        a(f"buffer_load_dwordx4 v[{f}:{f+3}], v{V_OL}, {SRD}, s51 offen offset:{1024*(k & 3)} sc1")

    def mf(k):
        f = F0 + 4 * k
        for u in range(2):
            d = ACCO + 16 * u
            c = "0" if k == 0 else f"v[{d}:{d+15}]"
            if k == NF - 1: d = STG + 16 * u
            a(f"v_mfma_f32_32x32x16_bf16 v[{d}:{d+15}], a[{8*k+4*u}:{8*k+4*u+3}], v[{f}:{f+3}], {c}")

    def inb(sreg):
        a(f"s_and_b32 s60, s{sreg}, 1\ns_lshl_b32 s60, s60, 12")
        a(f"buffer_load_dwordx4 v[{INB}:{INB+3}], v{V_RCV}, {SRD}, s60 offen sc1")

    def fin(tag, sreg, cnt):
        a(f"s_bfe_u32 s61, s{sreg}, 0x10001\ns_xor_b32 s61, s61, s{S_OT}\ns_waitcnt vmcnt({cnt})")
        a.label(f"{name}_{tag}c")
        a(f"""
        v_and_b32 v14, 1, v{INB}
        v_cmp_ne_u32 vcc, s61, v14
        s_cbranch_vccz {name}_{tag}k
        """)
        wdog(a, name)
        inb(sreg)
        a(f"s_waitcnt vmcnt(0)\ns_branch {name}_{tag}c")
        a.label(f"{name}_{tag}k")
        a(f"""
        v_pk_add_f32 v[{INB}:{INB+1}], v[{INB}:{INB+1}], v[{KEEP}:{KEEP+1}]
        v_pk_add_f32 v[{INB+2}:{INB+3}], v[{INB+2}:{INB+3}], v[{KEEP+2}:{KEEP+3}]
        s_lshl_b32 s60, s{sreg}, 17
        v_cvt_pk_bf16_f32 v{INB+4}, v{INB}, v{INB+1}
        v_cvt_pk_bf16_f32 v{INB+5}, v{INB+2}, v{INB+3}
        buffer_store_dwordx2 v[{INB+4}:{INB+5}], v{V_OS}, s[{S_XM}:{S_XM+3}], s60 offen
        """)

    tsx(a, ts, 3)
    pinit(a)
    a.label(f"{name}_cold")
    a(f"s_cmp_gt_i32 s{S_ON}, s{S_SEG}\ns_cbranch_scc1 {name}_fk")
    a.label(f"{name}_fw")
    wdog(a, name)
    a(f"""
    buffer_load_dword v{V_T0}, v{V_OF}, {SRD}, 0 offen sc1
    s_waitcnt vmcnt(0)
    v_min_i32_dpp v{V_T0}, v{V_T0}, v{V_T0} quad_perm:[1,0,3,2] row_mask:0xf bank_mask:0xf
    s_nop 1
    v_min_i32_dpp v{V_T0}, v{V_T0}, v{V_T0} quad_perm:[2,3,0,1] row_mask:0xf bank_mask:0xf
    s_nop 1
    v_min_i32_dpp v{V_T0}, v{V_T0}, v{V_T0} row_ror:4 row_mask:0xf bank_mask:0xf
    s_nop 1
    v_min_i32_dpp v{V_T0}, v{V_T0}, v{V_T0} row_ror:8 row_mask:0xf bank_mask:0xf
    s_nop 0
    v_readfirstlane_b32 s{S_ON}, v{V_T0}
    s_min_i32 s{S_ON}, s{S_ON}, s{S_O1}
    s_cmp_gt_i32 s{S_ON}, s{S_SEG}
    s_cbranch_scc1 {name}_fk
    s_sleep 2
    s_add_u32 s{S_T0}, s{S_ON}, 2
    s_cmp_gt_i32 s{S_T0}, s{S_SEG}
    s_cbranch_scc1 {name}_fw
    s_sleep 48
    s_branch {name}_fw
    """)
    a.label(f"{name}_fk")
    a(f"s_lshl_b32 s50, s{S_SEG}, 18")
    for k in range(NF):
        ld(k, 50)
    a("\n".join(pst(0)))
    if E("KPROF", 0): a("s_add_u32 s39, s39, 64")

    uid = [0]
    def epi_groups(sreg):
        g = [[f"v_add_u32 v{V_T0}, s{S_PAR}, v{V_LW}", f"v_add_u32 v{V_T1}, s{S_PAR}, v{V_LRK}", f"v_add_u32 v{V_T2}, s{S_PAR}, v{V_LRS}"]]
        for q in range(0, 8, 2):
            g.append([f"ds_write_b128 v{V_T0}, v[{STG+4*(q+i)}:{STG+4*(q+i)+3}] offset:{QS*(q+i)}" for i in range(2)])
        g.append([])
        g.append(["s_waitcnt lgkmcnt(0)", "s_barrier"] + [f"ds_read_b128 v[{RD+4*w}:{RD+4*w+3}], v{V_T2} offset:{WSs*w}" for w in range(4)])
        g.append([f"ds_read_b128 v[{RD+16+4*w}:{RD+16+4*w+3}], v{V_T1} offset:{WSs*w}" for w in range(4)] +
                 [f"s_sub_u32 s{S_PAR}, {PS}, s{S_PAR}", f"s_bfe_u32 s61, s{sreg}, 0x10001", f"s_xor_b32 s61, s61, s{S_OT}", f"s_and_b32 s60, s{sreg}, 1", "s_lshl_b32 s60, s60, 12"])
        g.append([])
        for h, dst in ((0, RD), (16, KEEP)):
            b = RD + h
            l = [f"s_waitcnt lgkmcnt({4 if h == 0 else 0})"]
            for i in range(4):
                l.append(f"v_add_f32 v{b+i}, v{b+i}, v{b+4+i}")
                l.append(f"v_add_f32 v{b+8+i}, v{b+8+i}, v{b+12+i}")
            g.append(l)
            l = [f"v_add_f32 v{dst+i}, v{b+i}, v{b+8+i}" for i in range(4)]
            if h == 0:
                uid[0] += 1
                l += [f"v_and_or_b32 v{RD}, v{RD}, -2, s61", "s_cmp_eq_u32 s95, 0", f"s_cbranch_scc1 {name}_sa{uid[0]}",
                      f"buffer_store_dwordx4 v[{RD}:{RD+3}], v{V_SND}, {SRD}, s60 offen sc1", f"s_branch {name}_sb{uid[0]}", f"{name}_sa{uid[0]}:",
                      f"buffer_store_dwordx4 v[{RD}:{RD+3}], v{V_SND}, {SRD}, s60 offen", f"{name}_sb{uid[0]}:"]
            g.append(l)
        return g

    def loop(pre, epi):
        g = epi_groups(62) if epi else []
        for k in range(NF):
            a(f"s_waitcnt vmcnt({NF-1 if pre else NF-1-k})")
            mf(k)
            if pre: ld(k, 50)
            if 1 <= k <= len(g): a("\n".join(g[k-1]))
            if epi and k == 27: inb(62)
            if not pre and k == 20: a(f"buffer_load_dword v15, v{V_OF}, {SRD}, 0 offen sc1")
        if epi: fin(f"f{pre}", 62, 4 if pre else 0)

    for epi in range(2):
        a.label(f"{name}_w{epi}")
        a(f"""
        s_add_u32 s54, s{S_SEG}, 1
        s_sub_u32 s62, s{S_SEG}, 1
        s_lshl_b32 s50, s54, 18
        s_cmp_gt_i32 s{S_ON}, s54
        s_cbranch_scc0 {name}_n{epi}
        """)
        loop(1, epi)
        a("\n".join(pst(1)))
        a(f"s_add_u32 s{S_SEG}, s{S_SEG}, 1\ns_branch {name}_w1")
        a.label(f"{name}_n{epi}")
        loop(0, epi)
        a("\n".join(pst(2)))
        if epi == 0: a(f"s_branch {name}_imm")
    a.label(f"{name}_imm")
    a(f"""
    s_waitcnt vmcnt(1)
    v_min_i32_dpp v15, v15, v15 quad_perm:[1,0,3,2] row_mask:0xf bank_mask:0xf
    s_nop 1
    v_min_i32_dpp v15, v15, v15 quad_perm:[2,3,0,1] row_mask:0xf bank_mask:0xf
    s_nop 1
    v_min_i32_dpp v15, v15, v15 row_ror:4 row_mask:0xf bank_mask:0xf
    s_nop 1
    v_min_i32_dpp v15, v15, v15 row_ror:8 row_mask:0xf bank_mask:0xf
    s_nop 0
    v_readfirstlane_b32 s{S_ON}, v15
    s_min_i32 s{S_ON}, s{S_ON}, s{S_O1}
    s_cmp_gt_i32 s{S_ON}, s54
    s_cbranch_scc0 {name}_im2
    """)
    for k in range(NF):
        ld(k, 50)
    a(f"s_add_u32 s{S_SEG}, s{S_SEG}, 1\ns_branch {name}_w1")
    a.label(f"{name}_im2")
    for g in epi_groups(S_SEG):
        a("\n".join(g))
    inb(S_SEG)
    fin("f2", S_SEG, 0)
    a("\n".join(pst(4)))
    a(f"""
    s_add_u32 s{S_SEG}, s{S_SEG}, 1
    s_cmp_lt_u32 s{S_SEG}, s{S_O1}
    s_cbranch_scc1 {name}_cold
    """)
    pdump(a)
    a.label(f"{name}_quit")
    ts(4)
    a("s_endpgm")
```

```python
import math, struct
from gen_common import *

SCALE = 0.5 / (2048.0 * 1024.0)
SC = 48
WSRD = "s[84:87]"


def flit(x):
    return "0x%08x" % struct.unpack("<I", struct.pack("<f", x))[0]


def P(r):
    return f"v[{r}:{r+1}]"


def consts(a):
    for k in range(1, 9):
        a(f"s_mov_b32 s{SC+2*k-2}, {flit(math.cos(2*math.pi*k/64))}")
        a(f"s_mov_b32 s{SC+2*k-1}, {flit(math.sin(2*math.pi*k/64))}")


def cmul(a, dst, src, tmp, w, ic=0, is_=1, sc=1, ss=1):
    n = lambda b: int(bool(b))
    a(f"v_pk_mul_f32 {P(tmp)}, {P(src)}, {w} op_sel:[0,{ic}] op_sel_hi:[0,{is_}] neg_lo:[0,{n(sc<0)}] neg_hi:[0,{n(ss<0)}]")
    a(f"v_pk_fma_f32 {P(dst)}, {P(src)}, {w}, {P(tmp)} op_sel:[1,{is_},0] op_sel_hi:[1,{ic},1] neg_lo:[0,{n(ss>0)},0] neg_hi:[0,{n(sc<0)},0]")


def cmul_const(a, dst, src, tmp, c, s):
    eps = 1e-9
    n = lambda b: int(bool(b))
    if abs(s) < eps:
        a(f"v_pk_add_f32 {P(dst)}, {P(src)}, 0 neg_lo:[{n(c<0)},0] neg_hi:[{n(c<0)},0]"); return
    if abs(c) < eps:
        a(f"v_pk_add_f32 {P(dst)}, {P(src)}, 0 op_sel:[1,0] op_sel_hi:[0,0] neg_lo:[{n(s>0)},0] neg_hi:[{n(s<0)},0]"); return
    for k in range(1, 9):
        C, S = math.cos(2*math.pi*k/64), math.sin(2*math.pi*k/64)
        w = f"s[{SC+2*k-2}:{SC+2*k-1}]"
        if abs(abs(c) - C) < eps and abs(abs(s) - S) < eps:
            return cmul(a, dst, src, tmp, w, 0, 1, c, s)
        if abs(abs(c) - S) < eps and abs(abs(s) - C) < eps:
            return cmul(a, dst, src, tmp, w, 1, 0, c, s)
    raise ValueError


class PF:
    def __init__(self, a, base, tmp):
        self.a, self.base, self.tmp0 = a, base, tmp
        self.reset()

    def reset(self):
        self.r = [self.base + 2 * i for i in range(32)]
        self.t = self.tmp0

    def fft(self, sign, src=None, after_first=None):
        a, r = self.a, self.r
        span = 16
        while span >= 1:
            for start in range(0, 32, 2 * span):
                for j in range(span):
                    p, q = start + j, start + j + span
                    sp, sq = (src[p], src[q]) if src else (r[p], r[q])
                    den = 2 * span
                    triv = j == 0 or 4 * j == den
                    d = r[q] if (src and triv) else self.t
                    if 4 * j == den:
                        if sign > 0:
                            a(f"v_pk_add_f32 {P(d)}, {P(sp)}, {P(sq)} op_sel:[1,1] op_sel_hi:[0,0] neg_lo:[1,0] neg_hi:[0,1]")
                        else:
                            a(f"v_pk_add_f32 {P(d)}, {P(sp)}, {P(sq)} op_sel:[1,1] op_sel_hi:[0,0] neg_lo:[0,1] neg_hi:[1,0]")
                    else:
                        a(f"v_pk_add_f32 {P(d)}, {P(sp)}, {P(sq)} neg_lo:[0,1] neg_hi:[0,1]")
                    a(f"v_pk_add_f32 {P(r[p])}, {P(sp)}, {P(sq)}")
                    if triv:
                        if not src:
                            self.t, r[q] = r[q], self.t
                    else:
                        cmul_const(a, r[q], self.t, r[q], math.cos(2*math.pi*j/den), sign * math.sin(2*math.pi*j/den))
            if src and after_first:
                after_first()
            src = None
            span //= 2
        rev = [int(format(i, "05b")[::-1], 2) for i in range(32)]
        self.r = [r[rev[i]] for i in range(32)]

    def twiddle(self, tw, first=1):
        for k in range(first, 32):
            cmul(self.a, self.r[k], self.r[k], self.t, P(tw + 2 * k))

    def lds_write(self, va, stride):
        for k in range(32):
            self.a(f"ds_write_b64 v{va}, {P(self.r[k])} offset:{k*stride}")

    def lds_read(self, va, stride):
        self.reset()
        order = [i // 2 + 16 * (i & 1) for i in range(32)]
        for n in order:
            self.a(f"ds_read_b64 {P(self.r[n])}, v{va} offset:{n*stride}")
        self.a("s_waitcnt lgkmcnt(0)")


def make_tw(a, tw, vx, den, sign, vbase=None, mul=1, scale=None, tmp=12, first=1):
    for k in range(first, 32):
        if vbase is None:
            a(f"v_mul_f32 v{tmp}, {flit(sign * mul * k / den)}, v{vx}")
        else:
            a(f"v_mov_b32 v{tmp}, v{vbase}")
            a(f"v_fmac_f32 v{tmp}, {flit(sign * mul * k / den)}, v{vx}")
        a(f"v_cos_f32 v{tw+2*k}, v{tmp}")
        a(f"v_sin_f32 v{tw+2*k+1}, v{tmp}")
    if scale is not None:
        a("s_nop 0")
        for k in range(first, 32):
            a(f"v_mul_f32 v{tw+2*k}, {flit(scale)}, v{tw+2*k}")
            a(f"v_mul_f32 v{tw+2*k+1}, {flit(scale)}, v{tw+2*k+1}")


FB = 8448
D0, T0, TW, IN = 16, 14, 80, 144


def row_setup(a, sign):
    consts(a)
    a(f"""
    v_and_b32 v1, 31, v0
    v_lshrrev_b32 v2, 5, v0
    v_cvt_f32_u32 v3, v1
    v_mul_u32_u24 v10, {FB}, v2
    v_lshl_add_u32 v4, v1, 3, v10
    v_mul_u32_u24 v5, 264, v1
    v_add_u32 v5, v5, v10
    v_and_b32 v11, 7, v0
    v_lshrrev_b32 v9, 3, v0
    v_mul_u32_u24 v10, {FB}, v11
    v_lshl_add_u32 v6, v9, 3, v10
    v_lshlrev_b32 v7, 3, v9
    v_sub_u32 v7, v10, v7
    v_add_u32 v7, 4096, v7
    v_lshlrev_b32 v8, 14, v9
    v_lshl_add_u32 v8, v11, 4, v8
    """)
    make_tw(a, TW, 3, 1024.0, sign)


def task_loop(a, name, st, stride, n, issue, body):
    a(f"s_cmp_lt_u32 s{st}, {n}\ns_cbranch_scc0 {name}_e")
    issue(st)
    a.label(f"{name}_l")
    a(f"s_add_u32 s21, s{st}, {stride}\ns_cmp_lt_u32 s21, {n}\ns_cselect_b32 s22, s21, s{st}")
    body(lambda: issue(22))
    a(f"s_mov_b32 s{st}, s21\ns_cmp_lt_u32 s{st}, {n}\ns_cbranch_scc1 {name}_l")
    a.label(f"{name}_e")


def gen_f1(a: Asm, name, st, stride, n):
    a(f"s_load_dwordx2 s[4:5], s[0:1], {KA_BX}")
    row_setup(a, -1)
    a(f"""
    v_lshlrev_b32 v12, 12, v2
    v_lshl_add_u32 v12, v1, 1, v12
    s_waitcnt lgkmcnt(0)
    s_mov_b32 s6, {4*MB}
    s_mov_b32 s7, 0x00020000
    """)
    for i in range(64):
        a(f"v_mov_b32 v{IN+i}, 0")
    F = PF(a, D0, T0)

    def issue(s):
        a(f"s_lshl_b32 s12, s{s}, 15")
        for i in [i // 2 + 16 * (i & 1) for i in range(32)]:
            a(f"buffer_load_short_d16_hi v{IN+2*i}, v12, s[4:7], s12 offen offset:{64*i}")
            a(f"buffer_load_short_d16_hi v{IN+2*i+1}, v12, s[4:7], s12 offen offset:{2048+64*i}")

    def body(pref):
        a("s_waitcnt vmcnt(17)")
        F.reset()
        F.fft(-1, src=[IN + 2 * i for i in range(32)], after_first=pref)
        F.twiddle(TW)
        a("s_barrier")
        F.lds_write(4, 264)
        a("s_waitcnt lgkmcnt(0)")
        F.lds_read(5, 8)
        F.fft(-1)
        F.lds_write(4, 256)
        a(f"ds_write_b64 v4, {P(F.r[0])} offset:8192")
        a(f"s_waitcnt lgkmcnt(0)\ns_barrier\ns_lshl_b32 s13, s{st}, 7\ns_add_u32 s13, s13, {WS_T1}")
        R, O = D0, 208
        def rd(it):
            b = R + 4 * (it % 8)
            a(f"ds_read_b64 {P(b)}, v6 offset:{256*it}")
            a(f"ds_read_b64 {P(b+2)}, v7 offset:{4096 - 256*it}")
        for it in range(6): rd(it)
        for it in range(17):
            b, o = R + 4 * (it % 8), O + 4 * (it % 8)
            a(f"s_waitcnt lgkmcnt({2 * (min(it + 6, 17) - it - 1)})")
            a(f"v_pk_add_f32 {P(o)}, {P(b)}, {P(b+2)} neg_hi:[0,1]")
            a(f"v_pk_add_f32 {P(o+2)}, {P(b)}, {P(b+2)} op_sel:[1,1] op_sel_hi:[0,0] neg_hi:[1,0]")
            if it + 6 < 17: rd(it + 6)
            if it == 16:
                a(f"v_cmp_eq_u32 vcc, 0, v9\ns_nop 1\nv_cndmask_b32 v13, -16, v8, vcc")
            a(f"buffer_store_dwordx4 v[{o}:{o+3}], v{13 if it == 16 else 8}, {WSRD}, s13 offen sc1")
            a(f"s_add_u32 s13, s13, {32 * 16384}")
    def issue0(s):
        issue(s)
    def issue_first(s):
        issue(s)
        if s == st: a("s_waitcnt vmcnt(0)")
    task_loop(a, name, st, stride, n, issue_first, body)


def gen_f3(a: Asm, name, st, stride, n):
    a(f"s_load_dwordx2 s[4:5], s[0:1], {KA_OUT}")
    row_setup(a, +1)
    a(f"""
    v_lshlrev_b32 v12, 2, v1
    v_sub_u32 v12, v4, v12
    v_and_b32 v10, 127, v0
    v_lshrrev_b32 v11, 7, v0
    v_lshlrev_b32 v2, 5, v10
    v_lshl_add_u32 v2, v11, 12, v2
    v_lshlrev_b32 v3, 4, v10
    v_lshl_add_u32 v3, v11, 12, v3
    v_add_u32 v3, 2048, v3
    v_cmp_eq_u32 s[14:15], 0, v9
    s_waitcnt lgkmcnt(0)
    s_mov_b32 s6, {8*MB}
    s_mov_b32 s7, 0x00020000
    """)
    F = PF(a, D0, T0)

    def issue(s):
        a(f"s_lshl_b32 s12, s{s}, 7\ns_add_u32 s12, s12, {WS_T2}")
        for it in range(17):
            a(f"buffer_load_dwordx4 v[{IN+4*it}:{IN+4*it+3}], v8, {WSRD}, s12 offen sc1")
            a(f"s_add_u32 s12, s12, {32 * 16384}")
        if s == st: a("s_waitcnt vmcnt(0)")

    def body(pref):
        a("s_waitcnt vmcnt(8)\ns_barrier")
        for it in (0, 16):
            b = IN + 4 * it
            a(f"v_cndmask_b32 v{b+1}, v{b+1}, 0, s[14:15]")
            a(f"v_cndmask_b32 v{b+3}, v{b+3}, 0, s[14:15]")
        for it in range(17):
            b, o = IN + 4 * it, D0 + 4 * (it % 16)
            a(f"v_pk_add_f32 {P(o)}, {P(b)}, {P(b+2)} op_sel:[0,1] op_sel_hi:[1,0] neg_lo:[0,1]")
            a(f"v_pk_add_f32 {P(o+2)}, {P(b)}, {P(b+2)} op_sel:[0,1] op_sel_hi:[1,0] neg_hi:[1,0]")
            if it == 16: a("s_mov_b64 exec, s[14:15]")
            a(f"ds_write_b64 v6, {P(o)} offset:{256*it}")
            if it < 16: a(f"ds_write_b64 v7, {P(o+2)} offset:{4096 - 256*it}")
            if it == 14: a("s_waitcnt lgkmcnt(8)")
        a("s_mov_b64 exec, -1")
        pref()
        a("s_waitcnt lgkmcnt(0)\ns_barrier")
        F.lds_read(4, 256)
        F.fft(+1)
        F.twiddle(TW)
        F.lds_write(4, 264)
        a("s_waitcnt lgkmcnt(0)")
        F.lds_read(5, 8)
        F.fft(+1)
        for i in range(32):
            a(f"ds_write2st64_b32 v12, v{F.r[i]}, v{F.r[i]+1} offset0:0 offset1:16" if i == 0 else
              f"ds_write_b32 v12, v{F.r[i]} offset:{128*i}\nds_write_b32 v12, v{F.r[i]+1} offset:{4096+128*i}")
        a(f"s_waitcnt lgkmcnt(0)\ns_barrier\ns_lshl_b32 s13, s{st}, 16")
        for j in range(8):
            a(f"ds_read_b128 v[{D0+8*j}:{D0+8*j+3}], v2 offset:{FB*j}")
            a(f"ds_read_b128 v[{D0+8*j+4}:{D0+8*j+7}], v2 offset:{FB*j+16}")
            if j == 6: a("s_waitcnt lgkmcnt(12)")
        for j in range(8):
            a(f"s_waitcnt lgkmcnt({14 - 2*j})")
            o = 216 + 4 * j
            for i in range(4):
                a(f"v_cvt_pk_bf16_f32 v{o+i}, v{D0+8*j+2*i}, v{D0+8*j+2*i+1}")
            a(f"buffer_store_dwordx4 v[{o}:{o+3}], v3, s[4:7], s13 offen {os.environ.get('OSTF', 'sc1')}")
            a(f"s_add_u32 s13, s13, 8192")
    task_loop(a, name, st, stride, n, issue, body)


def gen_f2(a: Asm, name, st, stride, n):
    TW2, WR = 144, 208
    WB = 32 * 66 * 8
    consts(a)
    a(f"""
    v_lshrrev_b32 v10, 6, v0
    v_and_b32 v1, 63, v0
    v_readfirstlane_b32 s16, v10
    v_cvt_f32_u32 v2, v1
    v_lshlrev_b32 v5, 3, v1                   ; T1/T2 offset
    s_mul_i32 s17, s16, {WB}
    v_add_u32 v3, s17, v5                     ; n2*8 + k1*528
    v_and_b32 v7, 1, v1
    v_lshrrev_b32 v6, 1, v1
    v_cvt_f32_u32 v8, v6
    v_cvt_f32_u32 v10, v7
    v_mul_u32_u24 v4, 528, v6
    v_lshl_add_u32 v4, v7, 3, v4
    v_add_u32 v4, s17, v4                     ; k1*528 + b*8 + m*16
    v_lshlrev_b32 v11, 12, v7
    v_lshl_add_u32 v11, v6, 2, v11
    v_fma_f32 v9, v10, 2.0, -1.0
    v_sub_f32 v7, 0, v9
    v_mul_f32 v13, v10, v8
    v_mul_f32 v13, {flit(1.0/2048.0)}, v13
    s_mov_b32 s18, 0xaaaaaaaa
    s_mov_b32 s19, 0xaaaaaaaa
    """)
    make_tw(a, TW, 2, 2048.0, -1)
    make_tw(a, TW2, 8, 2048.0, +1, vbase=13, mul=2, scale=SCALE, first=0)
    F = PF(a, D0, T0)

    def issue(s):
        a(f"s_lshl_b32 s12, s{s}, 2\ns_add_u32 s12, s12, s16\ns_min_u32 s12, s12, 512\ns_lshl_b32 s13, s12, 13\ns_lshl_b32 s12, s12, 14")
        a(f"s_add_u32 s12, s12, {WS_T1}\ns_add_u32 s13, s13, {WS_WT}")
        for i in range(32):
            a(f"buffer_load_dwordx2 a[{2*i}:{2*i+1}], v5, {WSRD}, s12 offen offset:{512*(i & 7)} sc1")
            if i % 8 == 7: a("s_add_u32 s12, s12, 4096")
        for k in range(32):
            a(f"buffer_load_dword a{64+k}, v11, {WSRD}, s13 offen offset:{128*k} sc1")
        if s == st: a("s_waitcnt vmcnt(0)")

    def w64(sign):
        a("s_mov_b64 exec, s[18:19]")
        for k in range(32):
            cmul_const(a, F.r[k], F.r[k], F.t, -math.cos(2*math.pi*k/64), -sign * math.sin(2*math.pi*k/64))
        a("s_mov_b64 exec, -1")

    def cross(vs):
        for k in range(32):
            for h in range(2):
                a(f"v_fmac_f32_dpp v{F.r[k]+h}, v{F.r[k]+h}, v{vs} quad_perm:[1,0,3,2] row_mask:0xf bank_mask:0xf")

    def body(pref):
        a("s_waitcnt vmcnt(32)")
        F.reset()
        for i in range(64):
            a(f"v_accvgpr_read_b32 v{D0+i}, a{i}")
        for k in range(32):
            a(f"v_accvgpr_read_b32 v{WR+k}, a{64+k}")
        pref()
        F.fft(-1)
        F.twiddle(TW)
        F.lds_write(3, 528)
        a("s_waitcnt lgkmcnt(0)")
        F.lds_read(4, 16)
        F.fft(-1)
        w64(-1)
        cross(9)
        for k in range(32):
            a(f"v_lshlrev_b32 v240, 16, v{WR+k}")
            a(f"v_and_b32 v241, 0xffff0000, v{WR+k}")
            cmul(a, F.r[k], F.r[k], F.t, P(240))
        cross(7)
        w64(+1)
        F.fft(+1)
        F.twiddle(TW2, first=0)
        F.lds_write(4, 16)
        a("s_waitcnt lgkmcnt(0)")
        F.lds_read(3, 528)
        F.fft(+1)
        a(f"s_lshl_b32 s12, s{st}, 2\ns_add_u32 s12, s12, s16\ns_min_u32 s12, s12, 512\ns_lshl_b32 s12, s12, 14\ns_add_u32 s12, s12, {WS_T2}")
        for i in range(32):
            a(f"buffer_store_dwordx2 {P(F.r[i])}, v5, {WSRD}, s12 offen offset:{512*(i & 7)} sc1")
            if i % 8 == 7: a("s_add_u32 s12, s12, 4096")
    task_loop(a, name, st, stride, n, issue, body)


def gen_f0(a: Asm, name, st, stride, n):
    a(f"""
    s_load_dwordx2 s[4:5], s[0:1], {KA_WR}
    s_load_dwordx2 s[8:9], s[0:1], {KA_WI}
    v_and_b32 v1, 63, v0
    v_lshrrev_b32 v2, 6, v0
    v_mul_u32_u24 v3, 1026, v2
    v_lshl_add_u32 v3, v1, 1, v3
    v_mul_u32_u24 v4, 65, v1
    v_add_u32 v4, v4, v2
    v_lshlrev_b32 v4, 2, v4
    v_lshrrev_b32 v7, 4, v0
    v_and_b32 v8, 15, v0
    v_mul_u32_u24 v5, 65, v7
    v_lshl_add_u32 v5, v8, 2, v5
    v_lshlrev_b32 v5, 2, v5
    v_lshlrev_b32 v6, 13, v7
    v_lshl_add_u32 v6, v8, 4, v6
    s_add_u32 s24, s84, {WS_WT}
    s_addc_u32 s25, s85, 0
    s_mov_b32 s26, {513*8192}
    s_mov_b32 s27, 0x00020000
    s_waitcnt lgkmcnt(0)
    s_mov_b32 s6, {2048*513*2}
    s_mov_b32 s7, 0x00020000
    s_mov_b32 s10, {2048*513*2}
    s_mov_b32 s11, 0x00020000
    """)

    def issue(s):
        a(f"s_and_b32 s12, s{s}, 31\ns_mul_i32 s12, s12, {64*1026}\ns_lshr_b32 s13, s{s}, 5\ns_lshl_b32 s13, s13, 7\ns_add_u32 s12, s12, s13")
        for i in range(16):
            a(f"buffer_load_ushort v{16+i}, v3, s[4:7], s12 offen")
            a(f"buffer_load_ushort v{32+i}, v3, s[8:11], s12 offen")
            a(f"s_add_u32 s12, s12, {4*1026}")
        if s == st: a("s_waitcnt vmcnt(0)")

    def body(pref):
        a("s_waitcnt vmcnt(4)")
        for i in range(16):
            a(f"v_lshl_or_b32 v{48+i}, v{32+i}, 16, v{16+i}")
        pref()
        a("s_barrier")
        for i in range(16):
            a(f"ds_write_b32 v4, v{48+i} offset:{16*i}")
            if i == 11: a("s_waitcnt lgkmcnt(4)")
        a("s_waitcnt lgkmcnt(0)\ns_barrier")
        for i in range(4):
            a(f"ds_read2_b32 v[{64+4*i}:{65+4*i}], v5 offset0:0 offset1:1" if i == 0 else f"ds_read_b32 v{64+4*i}, v5 offset:{16*65*4*i}\nds_read_b32 v{65+4*i}, v5 offset:{16*65*4*i+4}")
            a(f"ds_read_b32 v{66+4*i}, v5 offset:{16*65*4*i+8}\nds_read_b32 v{67+4*i}, v5 offset:{16*65*4*i+12}")
        a(f"s_and_b32 s14, s{st}, 31\ns_lshl_b32 s14, s14, 8\ns_lshr_b32 s15, s{st}, 5\ns_lshl_b32 s15, s15, 19\ns_add_u32 s14, s14, s15\ns_waitcnt lgkmcnt(0)")
        for i in range(4):
            a(f"buffer_store_dwordx4 v[{64+4*i}:{67+4*i}], v6, s[24:27], s14 offen sc1")
            a(f"s_add_u32 s14, s14, {16*8192}")
    task_loop(a, name, st, stride, n, issue, body)
```

```python
from gen_common import *

S_X, S_T = 30, 31
S_WSD, S_DBG = 84, 72
E = lambda k, d: int(os.environ.get(k, d))


D_VOTE, D_PD, D_SLOW, D_PD2 = 128, 160, 192, 224


def start_code(a: Asm, name):
    W, D = S_WSD, S_DBG
    a(f"""
    s_load_dwordx2 s[{W}:{W+1}], s[0:1], {KA_WS}
    s_load_dwordx2 s[{D}:{D+1}], s[0:1], {KA_DBG}
    s_getreg_b32 s90, hwreg(HW_REG_XCC_ID)
    s_and_b32 s90, s90, 7
    v_mov_b32 v1, 0
    v_mov_b32 v2, 1
    s_lshl_b32 s91, s90, 4
    s_mov_b32 s95, 0
    s_mov_b32 s99, 0
    s_waitcnt lgkmcnt(0)
    s_mov_b32 s{W+2}, {WS_BYTES}
    s_mov_b32 s{W+3}, 0x00020000
    s_mov_b32 s{D+2}, 256
    s_mov_b32 s{D+3}, 0x00020000
    v_cmp_eq_u32 vcc, 0, v0
    s_and_saveexec_b64 s[88:89], vcc
    s_cbranch_execz {name}_tkd
    s_lshl_b32 s92, s2, 13
    s_add_u32 s92, s92, {WS_CAL}
    buffer_atomic_add v2, v1, s[{D}:{D+3}], s91 offen sc0
    buffer_load_dword v251, v1, s[{W}:{W+3}], s92 offen offset:2048 sc1
    s_waitcnt vmcnt(1)
    ds_write_b32 v1, v2
    s_waitcnt lgkmcnt(0)
{name}_tkd:
    s_mov_b64 exec, s[88:89]
    s_barrier
    ds_read_b32 v2, v1
    s_waitcnt lgkmcnt(0)
    v_readfirstlane_b32 s96, v2
    s_barrier
    """)


def sync_code(a: Asm, kname, tag, vt, force_slow=False):
    D = S_DBG
    n = f"{kname}_sy{tag}"
    a(f"""
    v_and_b32 v{vt+1}, 15, v0
    v_lshlrev_b32 v{vt+1}, 4, v{vt+1}
    s_branch {n}
{n}w:
    s_sleep 4
{n}:
    """)
    wd_code(a, n)
    a(f"""
    buffer_load_dword v{vt}, v{vt+1}, s[{D}:{D+3}], 0 offen sc1
    s_waitcnt vmcnt(0)
    s_cmp_eq_u32 s95, 1
    s_cbranch_scc0 {n}f
    v_readlane_b32 s76, v{vt}, {D_PD2 // 16}
    s_mov_b32 s98, 0
    s_cmp_eq_u32 s76, 64
    s_cbranch_scc0 {n}w
    s_branch {n}d
{n}f:
    s_mov_b32 s77, 0
    s_mov_b32 s78, 0
    """)
    for i in range(8):
        a(f"v_readlane_b32 s76, v{vt}, {i}\ns_add_u32 s77, s77, s76\ns_xor_b32 s76, s76, 32\ns_or_b32 s78, s78, s76")
    a(f"""
    s_cmp_eq_u32 s77, 256
    s_cbranch_scc0 {n}w
    {"s_mov_b32 s78, 1" if force_slow else ""}
    v_mov_b32 v252, v{vt}
    s_cmp_eq_u32 s78, 0
    s_cbranch_scc0 {kname}_slowent
    v_readlane_b32 s76, v{vt}, {D_PD // 16}
    v_readlane_b32 s77, v{vt}, {D_VOTE // 16}
    s_cmp_eq_u32 s76, 64
    s_cbranch_scc0 {n}w
    s_cmp_gt_u32 s77, 32
    s_cselect_b32 s98, 1, 0
    {f"s_xor_b32 s98, s98, {os.environ['PAR']}" if "PAR" in os.environ else ""}
{n}d:
    """)


def slow_entry(a: Asm, name):
    D = S_DBG
    a.label(f"{name}_slowent")
    a(f"""
    s_mov_b64 exec, -1
    s_waitcnt vmcnt(0) lgkmcnt(0)
    s_barrier
    s_mov_b32 s97, s96
    """)
    for i in range(7):
        a(f"v_readlane_b32 s76, v252, {i}\ns_cmp_gt_u32 s90, {i}\ns_cselect_b32 s76, s76, 0\ns_add_u32 s97, s97, s76")
    a(f"""
    v_mov_b32 v1, 0
    v_mov_b32 v2, 1
    v_cmp_eq_u32 vcc, 0, v0
    s_and_saveexec_b64 s[88:89], vcc
    s_cbranch_execz {name}_sb1
    buffer_atomic_add v2, v1, s[{D}:{D+3}], 0 offen offset:{D_SLOW} sc1
{name}_sb1:
    s_mov_b64 exec, s[88:89]
{name}_sb2:
    s_sleep 4
    """)
    wd_code(a, "slowbar")
    a(f"""
    buffer_load_dword v2, v1, s[{D}:{D+3}], 0 offen offset:{D_SLOW} sc1
    s_waitcnt vmcnt(0)
    v_cmp_ne_u32 vcc, 256, v2
    s_cbranch_vccnz {name}_sb2
    s_mov_b32 s95, 1
    """)


def init_cd(a: Asm, name, idx):
    W, D = S_WSD, S_DBG
    a(f"""
    v_mov_b32 v8, -1
    v_mov_b32 v9, -1
    v_mov_b32 v10, -1
    v_mov_b32 v11, -1
    v_lshlrev_b32 v1, 4, v0
    v_mov_b32 v2, 0
    v_cmp_gt_u32 vcc, 64, v0
    s_cbranch_vccz {name}_nv
    s_cmp_eq_u32 s95, 0
    s_cbranch_scc0 {name}_nv
    ; latency samples of both parities (order alternates with idx), sign vote
    s_lshr_b32 s60, s2, 1
    s_lshl_b32 s60, s60, 14
    s_and_b32 s61, s{idx}, 1
    s_lshl_b32 s66, s61, 13
    s_add_u32 s60, s60, s66
    s_and_b32 s66, s2, 1
    s_lshl_b32 s66, s66, 10
    s_add_u32 s60, s60, s66
    s_add_u32 s60, s60, {WS_CAL}
    s_mov_b32 s66, 0x7fffffff
    s_mov_b32 s67, 0x7fffffff
    s_mov_b64 exec, 0xff
    s_waitcnt vmcnt(0)
    """)
    for i in range(E("NSAMP", 4)):
        a(f"""
        s_memtime s[62:63]
        s_waitcnt lgkmcnt(0)
        buffer_store_dwordx4 v[8:11], v1, s[{W}:{W+3}], s60 offen offset:{256 * (i >> 1)} sc1
        s_waitcnt vmcnt(0)
        s_memtime s[64:65]
        s_xor_b32 s60, s60, 8192
        s_waitcnt lgkmcnt(0)
        s_sub_u32 s64, s64, s62
        s_min_u32 s{66 + (i & 1)}, s{66 + (i & 1)}, s64
        """)
    a(f"""
    s_cmp_lt_u32 s67, s66
    s_cselect_b32 s60, 1, 0
    s_xor_b32 s60, s60, s61          ; parity that is near this XCD
    s_lshr_b32 s61, s90, 2
    s_xor_b32 s60, s60, s61
    v_mov_b32 v3, s60
    s_mov_b64 exec, 1
    buffer_atomic_add v3, v2, s[{D}:{D+3}], 0 offen offset:{D_VOTE} sc1
    s_mov_b64 exec, -1
{name}_nv:
    s_barrier
    s_lshl_b32 s60, s{idx}, 12
    s_add_u32 s60, s60, {WS_H}
    """)
    for i in range(8):
        a(f"buffer_store_dwordx4 v[8:11], v1, s[{W}:{W+3}], s60 offen sc1")
        a(f"s_add_u32 s60, s60, {64 * 4096}")
    a(f"""
    s_lshr_b32 s62, s{idx}, 1
    s_and_b32 s63, s{idx}, 1
    s_add_u32 s63, s63, s62
    s_lshl_b32 s62, s62, 19
    s_and_b32 s64, s63, 14
    s_lshl_b32 s64, s64, 13
    s_add_u32 s62, s62, s64
    s_and_b32 s64, s63, 1
    s_lshl_b32 s64, s64, 12
    s_add_u32 s62, s62, s64
    s_add_u32 s62, s62, {WS_XU}
    {"" if E("TAG", 1) else f"buffer_store_dwordx4 v[8:11], v1, s[{W}:{W+3}], s62 offen sc1"}
    s_add_u32 s62, s62, 8192
    {"" if E("TAG", 1) else f"buffer_store_dwordx4 v[8:11], v1, s[{W}:{W+3}], s62 offen sc1"}
    s_cmp_lt_u32 s{idx}, 16
    s_cbranch_scc0 {name}_pz
    buffer_store_dwordx4 v[8:11], v1, s[{W}:{W+3}], s60 offen sc1
{name}_pz:
    s_waitcnt vmcnt(0)
    s_barrier
    v_mov_b32 v3, 1
    s_lshl_b32 s62, s95, 6
    v_cmp_eq_u32 vcc, 0, v0
    s_and_saveexec_b64 s[60:61], vcc
    s_cbranch_execz {name}_xps
    buffer_atomic_add v3, v2, s[{D}:{D+3}], s62 offen offset:{D_PD} sc1
{name}_xps:
    s_mov_b64 exec, s[60:61]
    """)


def rec_body(a: Asm, name, IS, sync, nsteps=64, prof=False, flags=True, ts=None):
    W = S_WSD
    SRD = f"s[{W}:{W+3}]"
    S_WQ, S_WK, S_WV, S_WO, S_M0 = 4, 8, 12, 16, 20
    S_WAVE, S_H, S_J, S_STEP, S_T0, S_T1 = 24, 25, 26, 27, 28, 29
    S_C = 32
    S_SL, S_SLO = 33, 34
    S_XS, S_XSO = 35, 36
    S_P = 37
    S_MN8, S_MMEM = 40, 42
    S_XBR, S_XBW = 44, 45
    S_KVN = 46
    S_KVB, S_FLB, S_CU, S_KXB, S_TAG = 79, 81, 82, 83, 47
    ONE, LS, ZER = 220, 224, 228
    S_MKM = 48
    V_L, V_G, V_M, V_T0, V_T1, V_IDX = 1, 2, 3, 4, 5, 6
    V_OMEM, V_OM0, V_OPUB, V_OSCM, V_OOP, V_OXW, V_OXR = 7, 8, 9, 10, 11, 12, 13
    V_LWQ, V_LWK, V_LRR, V_LL, V_LWO, V_LRO, V_LVW, V_LVR, V_OKV, V_NEG, V_OFL = 14, 15, 16, 17, 18, 19, 20, 21, 22, 23, 24
    V_POI = 28
    MA, AQ, AV = 32, 96, 112
    RP, R, KX, VTX, S, PL = 120, 152, 156, 164, 172, 184
    VM, P, PM, O, TMP = 208, 212, 216, 120, 232
    MO, AO, KVH = 32, 96, 244
    A_W1, A_WO = 0, 192
    L_QK, L_VP, L_OP, L_VM, L_XB, L_ST = 0, 9216, 13312, 17920, 18432, 32768

    TAG = E("TAG", 1)

    def wdog():
        wd_code(a, name + ":" + a.lines[-1], f"s{S_STEP}")

    def stamp(i):
        if E("TR", 0):
            if i == 0: return
            if i < 11: a(f"s_memtime s[{48+2*i}:{49+2*i}]")
            if i == 11:
                a("s_memrealtime s[70:71]\ns_memtime s[100:101]\ns_waitcnt lgkmcnt(0)\nv_writelane_b32 v250, s100, 12")
                for k in range(1, 12):
                    a(f"v_writelane_b32 v250, s{48+2*k}, {k}")
                a(f"v_writelane_b32 v250, s99, 0")
                a(f"""
                s_lshl_b32 s80, s{S_X}, 5
                s_add_u32 s80, s80, s{S_T}
                s_lshl_b32 s80, s80, 2
                s_add_u32 s80, s80, s{S_WAVE}
                s_lshl_b32 s80, s80, 6
                s_add_u32 s80, s80, s{S_STEP}
                s_lshl_b32 s80, s80, 6
                s_add_u32 s80, s80, {WS_PROF}
                v_lshlrev_b32 v251, 2, v{V_L}
                s_mov_b64 exec, 0xffff
                buffer_store_dword v250, v251, {SRD}, s80 offen
                s_mov_b64 exec, -1
                """)
            return
        if not prof or i == 11:
            return
        a("s_memtime s[66:67]")
        a("s_waitcnt lgkmcnt(0)")
        a("s_sub_u32 s68, s66, s69")
        a(f"s_add_u32 s{50+i}, s{50+i}, s68")
        a("s_mov_b32 s69, s66")

    if prof:
        for i in range(16):
            a(f"s_mov_b32 s{50+i}, 0")
        a("s_memtime s[66:67]\ns_waitcnt lgkmcnt(0)\ns_mov_b32 s69, s66")
    if ts: ts(1)
    a(f"""
    s_load_dwordx2 s[{S_M0}:{S_M0+1}], s[0:1], {KA_MEM0}
    s_load_dwordx2 s[{S_WO}:{S_WO+1}], s[0:1], {KA_WO}
    s_load_dwordx2 s[{S_WQ}:{S_WQ+1}], s[0:1], {KA_WQ}
    s_load_dwordx2 s[{S_WK}:{S_WK+1}], s[0:1], {KA_WK}
    s_load_dwordx2 s[{S_WV}:{S_WV+1}], s[0:1], {KA_WV}
    v_lshrrev_b32 v{V_T0}, 6, v0
    v_and_b32 v{V_L}, 63, v0
    v_readfirstlane_b32 s{S_WAVE}, v{V_T0}
    v_lshrrev_b32 v{V_G}, 4, v{V_L}
    v_and_b32 v{V_M}, 15, v{V_L}
    v_lshlrev_b32 v{V_LL}, 4, v{V_L}
    s_lshr_b32 s{S_T0}, s{S_T}, 2
    s_lshl_b32 s{S_H}, s{S_X}, 3
    s_add_u32 s{S_H}, s{S_H}, s{S_T0}
    s_and_b32 s{S_J}, s{S_T}, 3
    s_waitcnt lgkmcnt(0)
    s_mov_b32 s{S_M0+2}, 16384
    s_mov_b32 s{S_M0+3}, 0x00020000
    """)
    for s in (S_WO, S_WQ, S_WK, S_WV):
        a(f"s_mov_b32 s{s+2}, {8*MB}\ns_mov_b32 s{s+3}, 0x00020000")
    FULL = E("FULL", 0)
    CL = 2 + FULL
    a(f"""
    s_lshl_b32 s{S_T0}, s{S_H}, 8
    s_lshr_b32 s{S_T1}, s{S_J}, {FULL}
    s_lshl_b32 s{S_T1}, s{S_T1}, {6 + FULL}
    s_add_u32 s{S_T0}, s{S_T0}, s{S_T1}
    s_lshl_b32 s{S_T1}, s{S_WAVE}, 21
    s_add_u32 s{S_T0}, s{S_T0}, s{S_T1}
    v_lshrrev_b32 v{V_T0}, {CL}, v{V_L}
    v_and_b32 v{V_T1}, {(1 << CL) - 1}, v{V_L}
    v_lshlrev_b32 v40, 13, v{V_T0}
    v_lshl_add_u32 v40, v{V_T1}, 4, v40
    v_add_u32 v40, s{S_T0}, v40
    s_lshl_b32 s{S_T0}, s{S_X}, 21
    s_lshl_b32 s{S_T1}, s{S_WAVE}, 19
    s_add_u32 s{S_T0}, s{S_T0}, s{S_T1}
    s_lshr_b32 s{S_T1}, s{S_T}, {FULL}
    s_lshl_b32 s{S_T1}, s{S_T1}, {6 + FULL}
    s_add_u32 s{S_T0}, s{S_T0}, s{S_T1}
    v_lshlrev_b32 v41, 11, v{V_T0}
    v_lshl_add_u32 v41, v{V_T1}, 4, v41
    v_add_u32 v41, s{S_T0}, v41
    s_lshl_b32 s47, s{S_WAVE}, 15
    s_add_u32 s47, s47, {L_ST}
    """)
    order = [int(c) for c in os.environ.get("WORD", "0123")]
    PH = [(c, p) for c in order for p in range(1 << FULL)]
    RI = 64 >> CL

    def wdma(n):
        c, p = PH[n]
        srd = (S_WQ, S_WK, S_WV, S_WO)[c]
        if E("HELP", 1):
            a(f"buffer_load_dword v50, v{51 if c < 3 else 52}, s[{srd}:{srd+3}], 0 offen")
        for r in range(16):
            if E("PSW", 1):
                a(f"s_xor_b32 s{S_T1}, s76, {r}")
                a(f"s_lshl_b32 s{S_T0}, s{S_T1}, 10")
                a(f"s_add_u32 s{S_T0}, s{S_T0}, s47")
                a(f"s_add_u32 m0, s{S_T0}, {(n & 1)*16384}")
                a(f"s_lshl_b32 s{S_T1}, s{S_T1}, {17 if c < 3 else 15}")
            else:
                a(f"s_add_u32 m0, s47, {(n & 1)*16384 + 1024*r}")
                a(f"s_mov_b32 s{S_T1}, {RI * (16 * p + r) * (8192 if c < 3 else 2048)}")
            a(f"buffer_load_dwordx4 v{40 if c < 3 else 41}, s[{srd}:{srd+3}], s{S_T1} offen {'nt ' if E('RNT', 0) else ''}lds")
    WT = E("WT", 0)
    assert not (WT and FULL)
    a(f"""
    s_lshl_b32 s{S_T0}, s{S_T}, 18
    s_lshl_b32 s{S_T1}, s{S_WAVE}, 16
    s_add_u32 s{S_T0}, s{S_T0}, s{S_T1}
    s_lshl_b32 s{S_T1}, s{S_X}, 11
    s_add_u32 s{S_T0}, s{S_T0}, s{S_T1}
    v_lshlrev_b32 v48, 13, v{V_G}
    v_lshl_add_u32 v48, v{V_M}, 7, v48
    v_add_u32 v48, s{S_T0}, v48
    s_lshl_b32 s{S_T0}, s{S_X}, 21
    s_lshl_b32 s{S_T1}, s{S_T}, 16
    s_add_u32 s{S_T0}, s{S_T0}, s{S_T1}
    s_lshl_b32 s{S_T1}, s{S_WAVE}, 14
    s_add_u32 s{S_T0}, s{S_T0}, s{S_T1}
    v_lshlrev_b32 v49, 7, v{V_L}
    v_add_u32 v49, s{S_T0}, v49
    """)

    a(f"""
    s_and_b32 s76, s{S_T}, 1
    s_mul_i32 s76, s76, {E("PSW", 1) * 8 if E("PSW", 1) < 2 else E("PSW", 1)}
    ; helper touch of the slow lines: row = 256w + 16*(l&15... ) : rows w*256 + (t&15)*16 + (l&15), col (t>>4)*1024 + 384
    s_and_b32 s{S_T0}, s{S_T}, 15
    s_lshl_b32 s{S_T0}, s{S_T0}, 4
    s_lshl_b32 s{S_T1}, s{S_WAVE}, 8
    s_add_u32 s{S_T0}, s{S_T0}, s{S_T1}
    v_add_u32 v53, s{S_T0}, v{V_M}
    s_lshr_b32 s{S_T0}, s{S_T}, 4
    s_lshl_b32 s{S_T0}, s{S_T0}, 10
    s_add_u32 s{S_T0}, s{S_T0}, 384
    v_mov_b32 v54, s{S_T0}
    v_mov_b32 v55, 1920
    v_cmp_gt_u32 vcc, 32, v{V_L}
    s_nop 1
    v_cndmask_b32 v54, v55, v54, vcc
    s_lshl_b32 s{S_T1}, s{S_X}, 11
    v_lshl_add_u32 v51, v53, 13, v54
    v_add_u32 v51, s{S_T1}, v51
    s_lshl_b32 s{S_T1}, s{S_X}, 21
    v_lshl_add_u32 v52, v53, 11, v54
    v_add_u32 v52, s{S_T1}, v52
    """)

    def wtouch(n):
        c, p = PH[n]
        srd = (S_WQ, S_WK, S_WV, S_WO)[c]
        for i in range(2):
            a(f"s_mov_b32 s{S_T1}, {i * (32768 if c < 3 else 8192)}")
            a(f"buffer_load_dword v50, v{48 if c < 3 else 49}, s[{srd}:{srd+3}], s{S_T1} offen")
    if WT == 1:
        wtouch(0); wtouch(1); wdma(0); wtouch(2); wdma(1); wtouch(3)
    elif WT == 2:
        wtouch(0); wtouch(1); wtouch(2); wtouch(3); wdma(0); wdma(1)
    else:
        wdma(0); wdma(1)
    a(f"""
    s_mov_b32 s{S_MN8}, 0x00ff00ff
    s_mov_b32 s{S_MN8+1}, 0x00ff00ff
    s_mov_b32 s{S_MKM}, 0xff00ff00
    s_mov_b32 s{S_MKM+1}, 0xff00ff00
    s_mov_b32 s{S_MMEM}, 0
    s_mov_b32 s{S_MMEM+1}, 0x00ff00ff
    s_mov_b32 s{S_C}, 0x3e0293ee
    v_mov_b32 v{V_NEG}, 0xff7fffff
    v_mov_b32 v{V_IDX}, 0x4444
    v_mov_b32 v{V_T0}, 0xeeee
    v_cndmask_b32 v{V_IDX}, v{V_IDX}, v{V_T0}, s[{S_MKM}:{S_MKM+1}]
    v_mov_b32 v{V_POI}, -1
    v_mov_b32 v{V_POI+1}, -1
    v_mov_b32 v{V_POI+2}, -1
    v_mov_b32 v{V_POI+3}, -1
    s_lshl_b32 s{S_T0}, s{S_WAVE}, 12
    v_add_u32 v{V_OMEM}, s{S_T0}, v{V_LL}
    v_and_b32 v{V_T0}, 7, v{V_L}
    v_lshlrev_b32 v{V_OM0}, 11, v{V_T0}
    v_lshrrev_b32 v{V_T1}, 3, v{V_L}
    v_lshl_add_u32 v{V_OM0}, v{V_T1}, 4, v{V_OM0}
    s_lshl_b32 s{S_T0}, s{S_WAVE}, 9
    v_add_u32 v{V_OM0}, s{S_T0}, v{V_OM0}
    s_lshl_b32 s{S_T0}, s{S_T}, 9
    v_lshlrev_b32 v{V_OPUB}, 3, v{V_L}
    v_add_u32 v{V_OPUB}, s{S_T0}, v{V_OPUB}
    ; o publish: 16384 + t*512 + g*128 + (m&7)*16
    v_and_b32 v{V_T0}, 7, v{V_M}
    v_lshlrev_b32 v{V_OOP}, 7, v{V_G}
    v_lshl_add_u32 v{V_OOP}, v{V_T0}, 4, v{V_OOP}
    v_add_u32 v{V_OKV}, 0, v{V_OOP}              ; g*128 + (m&7)*16 (k_m publish)
    s_add_u32 s{S_T0}, s{S_T0}, 16384
    v_add_u32 v{V_OOP}, s{S_T0}, v{V_OOP}
    v_and_b32 v{V_T1}, 1, v{V_G}
    v_lshlrev_b32 v{V_OSCM}, 7, v{V_T1}
    v_lshl_add_u32 v{V_OSCM}, v{V_T0}, 4, v{V_OSCM}
    v_add_u32 v{V_OSCM}, 1024, v{V_OSCM}
    ; partner score offsets: 32768 + (t ^ p)*2048, own in S_P+3 (s47 later); kept relative to slot base
    """)
    for p in range(1, 4):
        a(f"""
        s_xor_b32 s{S_P+p-1}, s{S_T}, {p}
        s_lshl_b32 s{S_P+p-1}, s{S_P+p-1}, 11
        s_add_u32 s{S_P+p-1}, s{S_P+p-1}, 32768
        """)
    a(f"""
    ; LDS: q/k partial write: w*2304 + (4*(g&1))*144 + ((g>>1)*16 + m)*4
    v_and_b32 v{V_T0}, 1, v{V_G}
    v_mul_u32_u24 v{V_LWQ}, 576, v{V_T0}
    v_lshrrev_b32 v{V_T1}, 1, v{V_G}
    v_lshl_add_u32 v{V_T1}, v{V_T1}, 4, v{V_M}
    v_lshl_add_u32 v{V_LWQ}, v{V_T1}, 2, v{V_LWQ}
    s_mul_i32 s{S_T0}, s{S_WAVE}, 1152
    s_add_u32 s{S_T0}, s{S_T0}, {L_OP}
    v_add_u32 v{V_LWO}, s{S_T0}, v{V_LWQ}
    s_mul_i32 s{S_T0}, s{S_WAVE}, 2304
    v_add_u32 v{V_LWQ}, s{S_T0}, v{V_LWQ}
    v_add_u32 v{V_LWK}, 1152, v{V_LWQ}
    ; R read: m*144 + g*32
    v_mul_u32_u24 v{V_LRR}, 144, v{V_M}
    v_lshl_add_u32 v{V_LRR}, v{V_G}, 5, v{V_LRR}
    ; O partial read: L_OP + ((l>>1)&7)*144 + (2*(l>>4) + (l&1))*16
    v_bfe_u32 v{V_T0}, v{V_L}, 1, 3
    v_mul_u32_u24 v{V_LRO}, 144, v{V_T0}
    v_lshl_add_u32 v{V_LRO}, v{V_G}, 5, v{V_LRO}
    v_and_b32 v{V_T0}, 1, v{V_L}
    v_lshl_add_u32 v{V_LRO}, v{V_T0}, 4, v{V_LRO}
    v_add_u32 v{V_LRO}, {L_OP}, v{V_LRO}
    ; v partial write: L_VP + w*1024 + lane*16 ; read (tile u at +512u): L_VP + (l&31)*16
    s_lshl_b32 s{S_T0}, s{S_WAVE}, 10
    s_add_u32 s{S_T0}, s{S_T0}, {L_VP}
    v_add_u32 v{V_LVW}, s{S_T0}, v{V_LL}
    v_and_b32 v{V_T0}, 31, v{V_L}
    v_lshlrev_b32 v{V_LVR}, 3, v{V_T0}
    v_add_u32 v{V_LVR}, {L_VM}, v{V_LVR}
    v_lshrrev_b32 v{V_T0}, 2, v{V_M}             ; r
    v_and_b32 v42, 1, v{V_T0}                    ; r&1
    v_lshrrev_b32 v43, 1, v{V_T0}                ; r>>1
    v_lshrrev_b32 v44, 1, v{V_G}                 ; g>>1
    v_and_b32 v45, 1, v{V_G}                     ; g&1
    v_lshl_add_u32 v46, v44, 4, v42
    v_lshl_add_u32 v46, v45, 2, v46
    v_lshl_add_u32 v46, v43, 3, v46              ; W1 row
    v_lshl_add_u32 v47, v44, 3, v42
    v_lshl_add_u32 v47, v45, 4, v47
    v_lshl_add_u32 v47, v43, 2, v47
    v_and_b32 v{V_T1}, 3, v{V_M}
    v_lshlrev_b32 v{V_T1}, 3, v{V_T1}
    v_lshl_add_u32 v46, v46, {6 + FULL}, v{V_T1}
    v_lshl_add_u32 v47, v47, {6 + FULL}, v{V_T1}
    s_and_b32 s{S_T0}, s{S_T}, {FULL}
    s_lshl_b32 s{S_T0}, s{S_T0}, 6
    s_add_u32 s{S_T0}, s{S_T0}, s47
    v_add_u32 v46, s{S_T0}, v46
    v_add_u32 v47, s{S_T0}, v47
    """)

    def wtr(n):
        c, p = PH[n]
        nk = 4 >> FULL
        for u in range(2):
            for k in range(nk * p, nk * p + nk):
                d = (A_W1 + ((c * 2 + u) * 4 + k) * 8) if c < 3 else (A_WO + (u * 4 + k) * 8)
                for Pp in range(4):
                    off = (n & 1) * 16384 + ((64 * (k - nk * p) + 32 * (Pp >> 1) + 2 * (Pp & 1)) << (6 + FULL)) + 32 * u
                    a(f"ds_read_b64_tr_b16 a[{d+2*Pp}:{d+2*Pp+1}], v{46 if c < 3 else 47} offset:{off}")
                if k & 1:
                    a("s_waitcnt lgkmcnt(0)")
    for n in range(len(PH)):
        a(f"s_waitcnt vmcnt({(16 + E('HELP', 1) + ([4, 2, 0][n] if WT == 1 else 0)) if n + 1 < len(PH) else 0})")
        wtr(n)
        if n + 2 < len(PH): wdma(n + 2)
    sync(V_T0)
    if TAG: a(f"""
    ; cross exchange: WS_H + slot*256K + src*64K + (t>>3)*16K + par*8K + (t&7)*1K
    s_lshr_b32 s{S_T0}, s{S_T}, 3
    s_lshl_b32 s{S_T0}, s{S_T0}, 14
    s_lshl_b32 s{S_T1}, s98, 13
    s_add_u32 s{S_T0}, s{S_T0}, s{S_T1}
    s_and_b32 s{S_T1}, s{S_T}, 7
    s_lshl_b32 s{S_T1}, s{S_T1}, 10
    s_add_u32 s{S_T0}, s{S_T0}, s{S_T1}
    s_lshl_b32 s{S_T1}, s{S_X}, 16
    s_add_u32 s{S_T0}, s{S_T0}, s{S_T1}
    s_add_u32 s{S_T0}, s{S_T0}, {WS_H}
    v_add_u32 v{V_OXW}, s{S_T0}, v{V_LL}
    v_xor_b32 v25, 0x10000, v{V_OXW}
    v_xor_b32 v26, 0x20000, v{V_OXW}
    v_xor_b32 v27, 0x30000, v{V_OXW}
    """)
    else: a(f"""
    s_lshr_b32 s{S_T0}, s{S_T}, 2
    s_xor_b32 s{S_T0}, s{S_T0}, s98
    s_and_b32 s{S_T0}, s{S_T0}, 1
    s_lshl_b32 s{S_T0}, s{S_T0}, 13
    s_lshl_b32 s{S_T1}, s{S_T}, 19
    s_add_u32 s{S_T0}, s{S_T0}, s{S_T1}
    s_lshl_b32 s{S_T1}, s{S_X}, 10
    s_add_u32 s{S_T0}, s{S_T0}, s{S_T1}
    s_add_u32 s{S_T0}, s{S_T0}, {WS_XU}
    v_add_u32 v{V_OXW}, s{S_T0}, v{V_LL}
    v_xor_b32 v25, 1024, v{V_OXW}
    v_xor_b32 v26, 2048, v{V_OXW}
    v_xor_b32 v27, 3072, v{V_OXW}
    """)
    a(f"""
    s_lshl_b32 s{S_T0}, s{S_H}, 2
    s_add_u32 s{S_T0}, s{S_T0}, s{S_J}
    s_mov_b32 s{S_CU}, s{S_T0}
    s_lshr_b32 s{S_T1}, s{S_T0}, 3
    s_xor_b32 s{S_T1}, s{S_T1}, s98
    {["", f"s_xor_b32 s{S_T1}, s{S_T1}, 1", f"s_xor_b32 s{S_T1}, s{S_T1}, s{S_T0}"][E("KVPAR", 0)]}
    s_and_b32 s{S_T1}, s{S_T1}, 1
    s_lshl_b32 s{S_T1}, s{S_T1}, 13
    s_lshl_b32 s76, s{S_T0}, 18
    s_add_u32 s76, s76, s{S_T1}
    s_mov_b32 s{S_KXB}, s76
    v_add_u32 v{TMP+8}, s76, v{V_LL}
    v_add_u32 v{TMP+9}, {WS_VT}, v{TMP+8}
    s_lshr_b32 s{S_T1}, s{S_T0}, 4
    s_xor_b32 s{S_T1}, s{S_T1}, s98
    s_and_b32 s{S_T1}, s{S_T1}, 1
    s_lshl_b32 s{S_T1}, s{S_T1}, 13
    s_lshl_b32 s{S_KVB}, s{S_T0}, 17
    s_add_u32 s{S_KVB}, s{S_KVB}, s{S_T1}
    s_add_u32 s{S_KVB}, s{S_KVB}, {WS_KVM}
    ; flags
    s_xor_b32 s{S_T1}, s98, 1
    s_lshl_b32 s{S_T1}, s{S_T1}, 13
    s_lshl_b32 s{S_T0}, s{S_H}, 7
    s_add_u32 s{S_T0}, s{S_T0}, s{S_T1}
    s_add_u32 s{S_T0}, s{S_T0}, {WS_F}
    v_and_b32 v{V_T0}, 1, v{V_L}
    v_lshlrev_b32 v{V_OFL}, 12, v{V_T0}
    v_add_u32 v{V_OFL}, s{S_T0}, v{V_OFL}
    s_lshl_b32 s{S_T1}, s{S_J}, 2
    v_add_u32 v{V_OFL}, s{S_T1}, v{V_OFL}
    s_xor_b32 s{S_FLB}, s98, 1
    s_lshl_b32 s{S_FLB}, s{S_FLB}, 13
    s_lshr_b32 s{S_T1}, s{S_CU}, 6
    s_lshl_b32 s{S_T1}, s{S_T1}, 14
    s_add_u32 s{S_FLB}, s{S_FLB}, s{S_T1}
    s_and_b32 s{S_T1}, s{S_CU}, 63
    s_lshl_b32 s{S_T1}, s{S_T1}, 7
    s_add_u32 s{S_FLB}, s{S_FLB}, s{S_T1}
    s_add_u32 s{S_FLB}, s{S_FLB}, {WS_F + F_KVM}
    v_mov_b32 v{ONE}, 0x3f803f80
    v_mov_b32 v{ONE+1}, 0x3f803f80
    v_mov_b32 v{ONE+2}, 0x3f803f80
    v_mov_b32 v{ONE+3}, 0x3f803f80
    v_mov_b32 v{ZER}, 0
    s_mov_b32 s{S_STEP}, 0
    s_mov_b32 s{S_KVN}, 0
    s_mov_b32 s{S_XBR}, {L_XB}
    s_mov_b32 s{S_XBW}, {L_XB}
    """)
    V_PK, V_PV = TMP + 8, TMP + 9
    pfn = [0]

    def prefetch(seg_sreg, part=3, chk=True, skip=None):
        i = pfn[0]; pfn[0] += 1
        if flags and chk:
            a(f"""
            s_cmp_gt_i32 s{S_KVN}, s{seg_sreg}
            s_cbranch_scc1 {name}_pf{i}ok
{name}_pf{i}w:
            """)
            wdog()
            a(f"""
            buffer_load_dword v{V_T0}, v{V_OFL}, {SRD}, 0 offen sc1
            s_waitcnt vmcnt(0)
            v_readlane_b32 s{S_KVN}, v{V_T0}, 0
            v_readlane_b32 s{S_T0}, v{V_T0}, 1
            s_nop 1
            s_min_i32 s{S_KVN}, s{S_KVN}, s{S_T0}
            s_cmp_gt_i32 s{S_KVN}, s{seg_sreg}
            s_cbranch_scc0 {skip or f"{name}_pf{i}w"}
{name}_pf{i}ok:
            """)
        if part is None: return
        a(f"""
        s_add_u32 s77, s{seg_sreg}, s{S_CU}
        s_bfe_u32 s{S_T0}, s77, 0x40002
        s_lshl_b32 s{S_T0}, s{S_T0}, 14
        s_and_b32 s77, s77, 3
        s_lshl_b32 s77, s77, 11
        s_add_u32 s{S_T0}, s{S_T0}, s77
        """)
        if part <= 0:
            a(f"s_add_u32 s{S_T0}, s{S_T0}, s{S_KXB}")
            if part < 0: a(f"s_add_u32 s{S_T0}, s{S_T0}, {WS_VT}")
            for l in range(16):
                a(f"s_buffer_load_dword s78, {SRD}, s{S_T0} offset:{128*l}")
            return
        for f in range(4):
            if not (part >> (f >> 1)) & 1: continue
            a(f"s_add_u32 m0, s{S_XBW}, {2048 * (f >> 1)}")
            a("s_nop 0")
            a(f"buffer_load_dwordx4 v{V_PK if f < 2 else V_PV}, {SRD}, s{S_T0} offen offset:{1024 * (f & 1)} sc1 lds")
        if part & 2: a(f"""
        s_add_u32 s{S_XBW}, s{S_XBW}, 4096
        s_cmp_eq_u32 s{S_XBW}, {L_XB + 3 * 4096}
        s_cselect_b32 s{S_XBW}, {L_XB}, s{S_XBW}
        """)

    def flag_store(val_sreg):
        a(f"""
        v_mov_b32 v{V_T1}, s{val_sreg}
        s_mov_b64 exec, 1
        buffer_store_dword v{V_T1}, v{ZER}, {SRD}, s{S_FLB} offen sc1
        s_mov_b64 exec, -1
        """)

    def zero(base, n):
        for i in range(n):
            a(f"v_mov_b32 v{base+i}, 0")

    if ts and E("BPROF", 0):
        ts(2)
        a(f"v_and_b32 v{V_L}, 63, v0\nv_lshrrev_b32 v{V_G}, 4, v{V_L}")
    a(f"s_cmp_eq_u32 s{S_WAVE}, 3\ns_cbranch_scc0 {name}_pfi")
    a(f"s_mov_b32 s76, 0")
    prefetch(76)
    a("s_waitcnt vmcnt(0) lgkmcnt(0)")
    a.label(f"{name}_pfi")
    zero(AQ, 24)
    a("s_barrier")
    if ts and E("BPROF", 0):
        ts(3)
        a(f"v_and_b32 v{V_L}, 63, v0\nv_lshrrev_b32 v{V_G}, 4, v{V_L}")
    stamp(0)

    def smf(d, areg, w):
        a(f"v_smfmac_f32_16x16x64_bf16 v[{d}:{d+3}], v[{areg}:{areg+3}], a[{w}:{w+7}], v{V_IDX}")

    def stream_poll(tag, base, soff, off0, two, work, first=None):
        def ld(i):
            a(f"buffer_load_dwordx4 v[{base+4*i}:{base+4*i+3}], v{V_OMEM}, {SRD}, s{soff} offen offset:{1024*i} sc1")
        G = E("GAP", 10)
        for i in range(4):
            ld(i)
            if i == 0 and first:
                first()
                if G > 5: a.nops(G - 5)
            elif i < 3 and G:
                a.nops(G)
        if E("RR", 1):
            def lab(S, i): return f"{name}_{tag}_{S}_{i}"
            def nxt(S, i):
                for d in range(1, 5):
                    if S >> ((i + d) & 3) & 1: return (i + d) & 3
            def chk(i):
                if two:
                    a(f"v_max_u32 v{V_T0}, v{base+4*i}, v{base+4*i+2}")
                    a(f"v_cmp_eq_u32 vcc, -1, v{V_T0}")
                else:
                    a(f"v_cmp_eq_u32 vcc, -1, v{base+4*i}")
            def block(S, i, fall):
                a.label(lab(S, i))
                a(f"s_waitcnt vmcnt({bin(S).count('1') - 1})")
                chk(i)
                a(f"s_cbranch_vccnz {lab(S, i)}f")
                work(i)
                if not fall:
                    S2 = S & ~(1 << i)
                    a(f"s_branch {lab(S2, nxt(S2, i)) if S2 else f'{name}_{tag}_d'}")
            fast = [(15, 0), (14, 1), (12, 2), (8, 3)]
            if E("HOIST", 1) and two:
                def cap(fn, *ar):
                    sv = a.lines; a.lines = []; fn(*ar); o = a.lines; a.lines = sv; return o
                a("s_waitcnt vmcnt(3)")
                chk(0)
                for n, (S, i) in enumerate(fast):
                    a(f"s_cbranch_vccnz {lab(S, i)}f")
                    wk = cap(work, i)
                    a.lines += wk[:3]
                    if i < 3:
                        a(f"s_waitcnt vmcnt({2 - i})")
                        chk(i + 1)
                    a.lines += wk[3:]
                fast = []
            for S, i in fast:
                block(S, i, True)
            a.label(f"{name}_{tag}_d")
            def stubs():
                for S in range(1, 16):
                    for i in range(4):
                        if not S >> i & 1: continue
                        a.label(lab(S, i) + "f")
                        if E("MSK", 1): a("s_mov_b64 exec, vcc")
                        ld(i)
                        if E("MSK", 1): a("s_mov_b64 exec, -1")
                        if bin(S).count('1') == 1 or i == nxt(S, 3): wdog()
                        a(f"s_branch {lab(S, nxt(S, i))}")
                        if (S, i) not in fast:
                            block(S, i, False)
            return stubs
        for i in range(4):
            a.label(f"{name}_{tag}{i}")
            a(f"s_waitcnt vmcnt({3-i})")
            if two:
                a(f"v_max_u32 v{V_T0}, v{base+4*i}, v{base+4*i+2}")
                a(f"v_cmp_eq_u32 vcc, -1, v{V_T0}")
            else:
                a(f"v_cmp_eq_u32 vcc, -1, v{base+4*i}")
            a(f"s_cbranch_vccnz {name}_{tag}r{i}")
            a.label(f"{name}_{tag}k{i}")
            work(i)
        def stubs():
            for i in range(4):
                a.label(f"{name}_{tag}r{i}")
                if prof: a(f"s_add_u32 s{62 if tag == 'pa' else 63}, s{62 if tag == 'pa' else 63}, 1")
                wdog()
                if not E("IMM", 1): a("s_waitcnt vmcnt(0)")
                for k in range(i, 4):
                    ld(k)
                a(f"s_branch {name}_{tag}{i}")
        return stubs

    def fold(t0, t1):
        for i in range(4):
            a(f"v_permlane32_swap_b32 v{t0+i}, v{t1+i}")
        a(f"v_pk_add_f32 v[{t0}:{t0+1}], v[{t0}:{t0+1}], v[{t1}:{t1+1}]")
        a(f"v_pk_add_f32 v[{t0+2}:{t0+3}], v[{t0+2}:{t0+3}], v[{t1+2}:{t1+3}]")

    def vwork(lo, hi):
        for n in range(lo, hi):
            i, u = n >> 1, n & 1
            smf(AV + 4 * u, MA + 4 * i, A_W1 + ((4 + u) * 4 + (i & 3)) * 8)

    def vfin():
        fold(AV, AV + 4)
        a(f"ds_write_b128 v{V_LVW}, v[{AV}:{AV+3}]")

    def rread():
        for w in range(4):
            for hh in range(2):
                d = RP + 8 * w + 4 * hh
                a(f"ds_read_b128 v[{d}:{d+3}], v{V_LRR} offset:{L_QK + 2304*w + 16*hh}")

    def rsum(dst):
        a("s_waitcnt lgkmcnt(4)")
        for i in range(0, 8, 2):
            a(f"v_pk_add_f32 v[{RP+i}:{RP+i+1}], v[{RP+i}:{RP+i+1}], v[{RP+8+i}:{RP+8+i+1}]")
        a("s_waitcnt lgkmcnt(0)")
        for i in range(0, 8, 2):
            a(f"v_pk_add_f32 v[{RP+16+i}:{RP+16+i+1}], v[{RP+16+i}:{RP+16+i+1}], v[{RP+24+i}:{RP+24+i+1}]")
        for i in range(0, 8, 2):
            a(f"v_pk_add_f32 v[{RP+i}:{RP+i+1}], v[{RP+i}:{RP+i+1}], v[{RP+16+i}:{RP+16+i+1}]")
        for i in range(4):
            a(f"v_cvt_pk_bf16_f32 v{dst+i}, v{RP+2*i}, v{RP+2*i+1}")

    S_FM = S_TAG
    def xuoff(dst, step):
        a(f"""
        s_add_u32 s{S_T0}, s{step}, s{S_T}
        s_and_b32 s77, s{S_T0}, 14
        s_and_b32 s{S_T0}, s{S_T0}, 1
        s_lshl_b32 s{S_T0}, s{S_T0}, 12
        s_and_b32 s{dst}, s{step}, 48
        s_or_b32 s{dst}, s{dst}, s77
        s_lshl_b32 s{dst}, s{dst}, 13
        s_add_u32 s{dst}, s{dst}, s{S_T0}
        """)

    def heads():
        a(f"""
        s_and_b32 s{S_T1}, s{S_STEP}, 1
        s_lshl_b32 s{S_SL}, s{S_T1}, 17
        s_lshl_b32 s{S_T0}, s{S_X}, 18
        s_add_u32 s{S_SL}, s{S_SL}, s{S_T0}
        s_add_u32 s{S_SL}, s{S_SL}, {WS_I}
        s_xor_b32 s{S_SLO}, s{S_SL}, {1 << 17}
        """)
        if TAG: a(f"""
        s_lshl_b32 s{S_XS}, s{S_T1}, 18
        s_bfe_u32 s{S_TAG}, s{S_STEP}, 0x10001
        """)
        else: xuoff(S_XS, S_STEP)
    heads()
    a(f"s_branch {name}_first")

    def wa(i):
        for c in range(4):
            smf(AQ + 4 * c, MA + 4 * i, A_W1 + (c * 4 + (i & 3)) * 8)

    def xread():
        a(f"v_add_u32 v{V_T1}, s{S_XBR}, v{V_LL}")
        for f in range(4):
            a(f"ds_read_b128 v[{KX+4*f}:{KX+4*f+3}], v{V_T1} offset:{1024*f}")

    a.label(f"{name}_loop")
    stubs_a = stream_poll("pa", MA, S_SL, 0, True, wa, first=xread)
    a.label(f"{name}_adone")
    stamp(1)
    a.nops(6)
    fold(AQ, AQ + 4)
    a(f"ds_write2_b32 v{V_LWQ}, v{AQ}, v{AQ+1} offset0:0 offset1:36")
    a(f"ds_write2_b32 v{V_LWQ}, v{AQ+2}, v{AQ+3} offset0:72 offset1:108")
    fold(AQ + 8, AQ + 12)
    a(f"ds_write2_b32 v{V_LWK}, v{AQ+8}, v{AQ+9} offset0:0 offset1:36")
    a(f"ds_write2_b32 v{V_LWK}, v{AQ+10}, v{AQ+11} offset0:72 offset1:108")
    VE, VE2 = E("VE", 4), 8
    vwork(0, VE)
    a(f"""
    s_waitcnt lgkmcnt(0)
    s_barrier
    s_cmp_lg_u32 s{S_WAVE}, 0
    s_cbranch_scc1 {name}_side
    """)
    stamp(2)
    rread()
    vwork(VE, VE2)
    a(f"""
    s_lshl_b32 s{S_T0}, s{S_T}, 11
    s_add_u32 s{S_T0}, s{S_T0}, s{S_SL}
    s_add_u32 s{S_T0}, s{S_T0}, 32768
    s_add_u32 s76, s{S_P}, s{S_SL}
    s_add_u32 s77, s{S_P+1}, s{S_SL}
    s_add_u32 s78, s{S_P+2}, s{S_SL}
    """)
    rsum(R)
    a.nops(2)
    a(f"v_mfma_f32_16x16x32_bf16 v[{S+4}:{S+7}], v[{KX+4}:{KX+7}], v[{R}:{R+3}], 0")
    a(f"v_mfma_f32_16x16x32_bf16 v[{S}:{S+3}], v[{KX}:{KX+3}], v[{R}:{R+3}], 0")
    a(f"v_mfma_f32_16x16x32_bf16 v[{S+8}:{S+11}], v[{R}:{R+3}], v[{R}:{R+3}], 0")
    a(f"s_cmp_eq_u32 s{S_STEP}, {nsteps-1}")
    a(f"s_cbranch_scc1 {name}_w0last")
    if E("VF", 0) == 1: vfin()
    else: a.nops(5)
    for i in range(4):
        a(f"v_mov_b32_dpp v{S+i}, v{S+4+i} row_shr:8 row_mask:0xf bank_mask:0xc")
    a(f"""
    v_min_u32 v{S+8}, -2, v{S+8}
    v_min_u32 v{S}, -2, v{S}
    s_mov_b64 exec, s[{S_MMEM}:{S_MMEM+1}]
    buffer_store_dwordx4 v[{S+8}:{S+11}], v{V_OSCM}, {SRD}, s{S_T0} offen {IS}
    s_mov_b64 exec, -1
    buffer_store_dwordx4 v[{S}:{S+3}], v{V_LL}, {SRD}, s{S_T0} offen {IS}
    """)
    stamp(3)

    def p2ld():
        for p, so in enumerate((76, 77, 78)):
            a(f"buffer_load_dwordx4 v[{PL+8*p}:{PL+8*p+3}], v{V_LL}, {SRD}, s{so} offen sc1")
            a(f"buffer_load_dwordx4 v[{PL+8*p+4}:{PL+8*p+7}], v{V_OSCM}, {SRD}, s{so} offen sc1")
    if E("VF", 0) == 0: vfin()
    a("s_waitcnt lgkmcnt(0)\ns_barrier")
    zero(AO, 8)
    if E("W2A", 0): a.nops(E("W2A", 0))
    p2ld()
    if not TAG: a(f"s_mov_b32 s80, s77"); xuoff(S_XS, S_STEP); a("s_mov_b32 s77, s80")
    if E("W2", 24): a.nops(E("W2", 24) - (0 if TAG else 10))
    p2ld()
    stamp(4)
    a.label(f"{name}_p2")
    a(f"s_waitcnt vmcnt(6)")
    a(f"v_max3_u32 v{V_T0}, v{PL}, v{PL+4}, v{PL+8}")
    a(f"v_max3_u32 v{V_T1}, v{PL+12}, v{PL+16}, v{PL+20}")
    a(f"v_max_u32 v{V_T0}, v{V_T0}, v{V_T1}")
    a(f"v_cmp_eq_u32 vcc, -1, v{V_T0}")
    a(f"s_cbranch_vccnz {name}_p2r")
    stamp(5)
    BP = E("BP", 1)
    def b2b():
        a("s_barrier")
        a(f"ds_read2_b64 v[{VM}:{VM+3}], v{V_LVR} offset0:0 offset1:32")
    if BP == 0: b2b()
    for (d, o) in ((S + 8, 4), (S, 0)):
        for i in (0, 2):
            a(f"v_pk_add_f32 v[{d+i}:{d+i+1}], v[{d+i}:{d+i+1}], v[{PL+o+i}:{PL+o+i+1}]")
            a(f"v_pk_add_f32 v[{RP+o+i}:{RP+o+i+1}], v[{PL+8+o+i}:{PL+8+o+i+1}], v[{PL+16+o+i}:{PL+16+o+i+1}]")
    for (d, o) in ((S + 8, 4), (S, 0)):
        for i in (0, 2):
            a(f"v_pk_add_f32 v[{d+i}:{d+i+1}], v[{d+i}:{d+i+1}], v[{RP+o+i}:{RP+o+i+1}]")
    for i in range(4):
        a(f"v_cndmask_b32 v{S+4+i}, v{V_NEG}, v{S+8+i}, s[{S_MMEM}:{S_MMEM+1}]")
    MX, TM, SM = TMP, TMP + 1, TMP + 2
    a(f"""
    v_max3_f32 v{MX}, v{S}, v{S+1}, v{S+2}
    v_max3_f32 v{TM}, v{S+4}, v{S+5}, v{S+6}
    v_max3_f32 v{MX}, v{MX}, v{S+3}, v{S+7}
    v_max_f32 v{SM}, v{MX}, v{TM}
    """)
    if BP == 1: b2b()
    else: a("s_nop 1")
    a(f"""
    v_max_f32_dpp v{MX}, v{SM}, v{SM} row_ror:8 row_mask:0xf bank_mask:0xf
    v_max_f32_dpp v{TM}, v{SM}, v{SM} row_ror:8 row_mask:0xf bank_mask:0xf
    s_nop 1
    v_permlane16_swap_b32 v{MX}, v{TM}
    s_nop 0
    v_max_f32 v{SM}, v{MX}, v{TM}
    v_max_f32 v{SM+1}, v{MX}, v{TM}
    """)
    if BP == 2: b2b()
    else: a("s_nop 1")
    a(f"""
    v_permlane32_swap_b32 v{SM}, v{SM+1}
    s_nop 0
    v_max_f32 v{MX}, v{SM}, v{SM+1}
    v_mul_f32 v{MX}, s{S_C}, v{MX}
    """)
    for i in (4, 5, 6, 7, 0, 1, 2, 3):
        a(f"v_fma_f32 v{S+i}, v{S+i}, s{S_C}, -v{MX}")
    for i in (4, 5, 6, 7):
        a(f"v_exp_f32 v{S+i}, v{S+i}")
    a(f"""
    v_exp_f32 v{S}, v{S}
    v_cvt_pk_bf16_f32 v{PM}, v{S+4}, v{S+5}
    v_cvt_pk_bf16_f32 v{PM+1}, v{S+6}, v{S+7}
    v_exp_f32 v{S+1}, v{S+1}
    v_exp_f32 v{S+2}, v{S+2}
    v_mfma_f32_16x16x16_bf16 v[{LS}:{LS+3}], v[{ONE}:{ONE+1}], v[{PM}:{PM+1}], 0
    v_exp_f32 v{S+3}, v{S+3}
    v_cvt_pk_bf16_f32 v{P}, v{S}, v{S+1}
    s_waitcnt lgkmcnt(0)
    v_mfma_f32_16x16x16_bf16 v[{O}:{O+3}], v[{VM}:{VM+1}], v[{PM}:{PM+1}], 0
    v_cvt_pk_bf16_f32 v{P+1}, v{S+2}, v{S+3}
    v_mfma_f32_16x16x16_bf16 v[{O+4}:{O+7}], v[{VM+2}:{VM+3}], v[{PM}:{PM+1}], 0
    v_mov_b32_dpp v{P+2}, v{P} row_ror:8 row_mask:0xf bank_mask:0xf
    v_mov_b32_dpp v{P+3}, v{P+1} row_ror:8 row_mask:0xf bank_mask:0xf
    s_nop 1
    v_mfma_f32_16x16x32_bf16 v[{LS}:{LS+3}], v[{ONE}:{ONE+3}], v[{P}:{P+3}], v[{LS}:{LS+3}]
    v_mfma_f32_16x16x32_bf16 v[{O}:{O+3}], v[{VTX}:{VTX+3}], v[{P}:{P+3}], v[{O}:{O+3}]
    v_mfma_f32_16x16x32_bf16 v[{O+4}:{O+7}], v[{VTX+4}:{VTX+7}], v[{P}:{P+3}], v[{O+4}:{O+7}]
    s_add_u32 s{S_T1}, s{S_SL}, 16384
    s_nop 4
    v_rcp_f32 v{SM}, v{LS}
    v_rcp_f32 v{SM+1}, v{LS+1}
    s_nop 0
    """)
    for i in range(0, 8, 2):
        a(f"v_pk_mul_f32 v[{O+i}:{O+i+1}], v[{O+i}:{O+i+1}], v[{SM}:{SM+1}]")
    for i in range(4):
        a(f"v_cvt_pk_bf16_f32 v{P+i}, v{O+2*i}, v{O+2*i+1}")
    a(f"""
    v_min_u32 v{P}, -2, v{P}
    s_mov_b64 exec, s[{S_MN8}:{S_MN8+1}]
    buffer_store_dwordx4 v[{P}:{P+3}], v{V_OOP}, {SRD}, s{S_SL} offen {IS}
    s_mov_b64 exec, -1
    """)
    a.label(f"{name}_b3")
    a("s_barrier")
    stamp(6)
    if E("W3", 10): a.nops(E("W3", 10))

    def wc(i):
        for u in range(2):
            smf(AO + 4 * u, MO + 4 * i, A_WO + (u * 4 + i) * 8)
    stubs_c = stream_poll("pc", MO, S_T1, 0, False, wc)
    stamp(7)
    a.nops(8)
    fold(AO, AO + 4)
    a(f"ds_write2_b32 v{V_LWO}, v{AO}, v{AO+1} offset0:0 offset1:36")
    a(f"ds_write2_b32 v{V_LWO}, v{AO+2}, v{AO+3} offset0:72 offset1:108")
    a("s_waitcnt lgkmcnt(0)\ns_barrier")
    a(f"s_cmp_lg_u32 s{S_WAVE}, 0\ns_cbranch_scc1 {name}_x1")
    for w in range(4):
        a(f"ds_read_b128 v[{RP+4*w}:{RP+4*w+3}], v{V_LRO} offset:{1152*w}")
    a("s_waitcnt lgkmcnt(2)")
    for i in (0, 2):
        a(f"v_pk_add_f32 v[{RP+i}:{RP+i+1}], v[{RP+i}:{RP+i+1}], v[{RP+4+i}:{RP+4+i+1}]")
    a("s_waitcnt lgkmcnt(0)")
    for i in (0, 2):
        a(f"v_pk_add_f32 v[{RP+8+i}:{RP+8+i+1}], v[{RP+8+i}:{RP+8+i+1}], v[{RP+12+i}:{RP+12+i+1}]")
    for i in (0, 2):
        a(f"v_pk_add_f32 v[{RP+i}:{RP+i+1}], v[{RP+i}:{RP+i+1}], v[{RP+8+i}:{RP+8+i+1}]")
    X4 = 48
    A4 = E("A4", 2)
    def p4ld():
        for p in range(3):
            a(f"buffer_load_dwordx4 v[{X4+4*p}:{X4+4*p+3}], v{25+p}, {SRD}, s{S_XS} offen sc1")
    def maxall(regs):
        regs = list(regs)
        h = len(regs) // 2
        for t, rs in ((V_T0, regs[:h]), (V_T1, regs[h:])):
            a(f"v_max3_u32 v{t}, v{rs[0]}, v{rs[1]}, v{rs[2]}")
        k = 3
        while k < h:
            for t, rs in ((V_T0, regs[:h]), (V_T1, regs[h:])):
                if k + 1 < h: a(f"v_max3_u32 v{t}, v{t}, v{rs[k]}, v{rs[k+1]}")
                else: a(f"v_max_u32 v{t}, v{t}, v{rs[k]}")
            k += 2
        a(f"v_max_u32 v{V_T0}, v{V_T0}, v{V_T1}")
        a(f"v_cmp_eq_u32 vcc, -1, v{V_T0}")
    if TAG:
        for i in range(4):
            a(f"v_and_or_b32 v{RP+i}, v{RP+i}, -2, s{S_TAG}")
        a(f"buffer_store_dwordx4 v[{RP}:{RP+3}], v{V_OXW}, {SRD}, s{S_XS} offen sc1")
        stamp(8)
        a(f"s_xor_b32 s76, s{S_TAG}, 1")
        for i in range(12):
            a(f"v_mov_b32 v{X4+i}, s76")
        zero(AQ, 24)
        if E("XW", 16): a.nops(E("XW", 16))
        stamp(11)
        a(f"s_cmp_eq_u32 s{S_TAG}, 1\ns_cbranch_scc1 {name}_p4_1")
        for tg in range(2):
            a.label(f"{name}_p4_{tg}")
            wdog()
            p4ld()
            a("s_waitcnt vmcnt(36)")
            a.nops(A4)
            bo = "0xfe" if tg == 0 else "0x80"
            for t, b in ((V_T0, X4), (V_T1, X4 + 6)):
                a(f"v_bitop3_b32 v{t}, v{b}, v{b+1}, v{b+2} bitop3:{bo}")
            for t, b in ((V_T0, X4), (V_T1, X4 + 6)):
                a(f"v_bitop3_b32 v{t}, v{t}, v{b+3}, v{b+4} bitop3:{bo}")
            a(f"v_bitop3_b32 v{V_T0}, v{V_T0}, v{X4+5}, v{X4+11} bitop3:{bo}")
            a(f"v_bitop3_b32 v{V_T0}, v{V_T0}, v{V_T1}, 1 bitop3:{'0xa8' if tg == 0 else '0x80'}")
            a(f"v_cmp_ne_u32 vcc, {tg}, v{V_T0}")
            a(f"s_cbranch_vccnz {name}_p4_{tg}")
            if tg == 0: a(f"s_branch {name}_p4d")
        a.label(f"{name}_p4d")
    else:
        for i in range(4 if A4 else 1):
            a(f"v_min_u32 v{RP+i}, -2, v{RP+i}")
        a(f"buffer_store_dwordx4 v[{RP}:{RP+3}], v{V_OXW}, {SRD}, s{S_XS} offen sc1")
        stamp(8)
        if A4:
            for i in range(12):
                a(f"v_mov_b32 v{X4+i}, -1")
        zero(AQ, 24)
        if E("XW", 16): a.nops(E("XW", 16))
        stamp(11)
        a.label(f"{name}_p4")
        if prof: a("s_add_u32 s64, s64, 1")
        wdog()
        p4ld()
        if A4:
            a("s_waitcnt vmcnt(36)")
            for rep in range(E("A4R", 1)):
                a.nops(A4 // E("A4R", 1))
                maxall(range(X4, X4 + 12))
                a(f"s_cbranch_vccz {name}_p4d")
            a(f"s_branch {name}_p4")
            a.label(f"{name}_p4d")
        else:
            a(f"""
            s_waitcnt vmcnt(0)
            v_max3_u32 v{V_T0}, v{X4}, v{X4+4}, v{X4+8}
            v_cmp_eq_u32 vcc, -1, v{V_T0}
            s_cbranch_vccnz {name}_p4
            """)
    stamp(9)
    for i in (0, 2):
        a(f"v_pk_add_f32 v[{RP+i}:{RP+i+1}], v[{RP+i}:{RP+i+1}], v[{X4+i}:{X4+i+1}]")
        a(f"v_pk_add_f32 v[{RP+4+i}:{RP+4+i+1}], v[{X4+4+i}:{X4+4+i+1}], v[{X4+8+i}:{X4+8+i+1}]")
    for i in (0, 2):
        a(f"v_pk_add_f32 v[{RP+i}:{RP+i+1}], v[{RP+i}:{RP+i+1}], v[{RP+4+i}:{RP+4+i+1}]")
    a(f"""
    v_cvt_pk_bf16_f32 v{P}, v{RP}, v{RP+1}
    v_cvt_pk_bf16_f32 v{P+1}, v{RP+2}, v{RP+3}
    v_min_u32 v{P}, -2, v{P}
    buffer_store_dwordx2 v[{P}:{P+1}], v{V_OPUB}, {SRD}, s{S_SLO} offen {IS}
    """)
    a.label(f"{name}_b5")
    a(f"""
    s_add_u32 s{S_STEP}, s{S_STEP}, 1
    s_add_u32 s{S_XBR}, s{S_XBR}, 4096
    s_cmp_eq_u32 s{S_XBR}, {L_XB + 3 * 4096}
    s_cselect_b32 s{S_XBR}, {L_XB}, s{S_XBR}
    s_mov_b32 s{S_T0}, s{S_SL}
    s_mov_b32 s{S_SL}, s{S_SLO}
    s_mov_b32 s{S_SLO}, s{S_T0}
    {f"s_xor_b32 s{S_XS}, s{S_XS}, {1 << 18}" if TAG else ""}
    {f"s_bfe_u32 s{S_TAG}, s{S_STEP}, 0x10001" if TAG else ""}
    s_barrier
    """)
    stamp(10)
    if E("W1", 10): a.nops(E("W1", 10))
    a(f"s_branch {name}_loop")
    a.label(f"{name}_x1")
    if not E("NOKVM", 0):
        a(f"s_cmp_eq_u32 s{S_WAVE}, 1\ns_cbranch_scc0 {name}_x2\ns_add_u32 s76, s{S_STEP}, 1")
        flag_store(76)
        a.label(f"{name}_x2")
    a(f"""
    s_cmp_eq_u32 s{S_WAVE}, 3
    s_cbranch_scc0 {name}_x4
    buffer_store_dwordx2 v[{V_POI}:{V_POI+1}], v{V_OPUB}, {SRD}, s{S_SL} offen {IS}
    s_lshl_b32 s{S_T0}, s{S_T}, 11
    s_add_u32 s{S_T0}, s{S_T0}, s{S_SL}
    s_add_u32 s{S_T0}, s{S_T0}, 32768
    buffer_store_dwordx4 v[{V_POI}:{V_POI+3}], v{V_LL}, {SRD}, s{S_T0} offen {IS}
    buffer_store_dwordx4 v[{V_POI}:{V_POI+3}], v{V_OSCM}, {SRD}, s{S_T0} offen {IS}
    s_add_u32 s76, s{S_STEP}, 2
    s_cmp_lt_u32 s76, {nsteps-1}
    s_cbranch_scc0 {name}_x4
    {f"s_cmp_gt_i32 s{S_KVN}, s76" if flags else ""}
    s_cbranch_scc0 {name}_x4
    """)
    if not E("NOPF", 0) and not E("TR", 0): prefetch(76, -1, False)
    a.label(f"{name}_x4")
    stamp(11)
    zero(AQ, 24)
    a(f"s_branch {name}_b5")
    a.label(f"{name}_p2r")
    if prof: a("s_add_u32 s65, s65, 1")
    wdog()
    p2ld()
    a(f"s_branch {name}_p2")
    stubs_a()
    stubs_c()
    a.label(f"{name}_w0last")
    a.nops(8)
    vfin()
    a("s_waitcnt lgkmcnt(0)\ns_barrier")
    a(f"s_branch {name}_end")
    a.label(f"{name}_side")
    a(f"""
    s_cmp_eq_u32 s{S_WAVE}, 3
    s_cbranch_scc1 {name}_sd3
    s_cmp_eq_u32 s{S_WAVE}, 2
    s_cbranch_scc0 {name}_sd4
    s_mov_b64 exec, s[{S_MN8}:{S_MN8+1}]
    buffer_store_dwordx4 v[{V_POI}:{V_POI+3}], v{V_OOP}, {SRD}, s{S_SLO} offen {IS}
    s_mov_b64 exec, -1
    s_branch {name}_sd4
{name}_sd3:
    s_add_u32 s76, s{S_STEP}, 1
    s_cmp_lt_u32 s76, {nsteps-1}
    s_cbranch_scc0 {name}_sd4
    """)
    if not E("NOPF", 0): prefetch(76, 3)
    a.label(f"{name}_sd4")
    vwork(VE, 8)
    a.nops(8)
    vfin()
    zero(AO, 8)
    a(f"""
    s_cmp_eq_u32 s{S_WAVE}, 1
    s_cbranch_scc0 {name}_s1
    s_waitcnt lgkmcnt(0)
    """)
    rread()
    rsum(KVH)
    a.label(f"{name}_s1")
    a(f"""
    v_add_u32 v{V_T1}, {L_VP}, v{V_LL}
    s_waitcnt lgkmcnt(0)
    s_barrier
    s_cmp_eq_u32 s{S_WAVE}, 2
    s_cbranch_scc1 {name}_s2
    """)
    if E("KPF", 1) and not E("NOPF", 0):
        a(f"""
        s_cmp_eq_u32 s{S_WAVE}, 3
        s_cbranch_scc0 {name}_s3
        s_add_u32 s76, s{S_STEP}, 2
        s_cmp_lt_u32 s76, {nsteps-1}
        s_cbranch_scc0 {name}_s3
        {f"s_cmp_gt_i32 s{S_KVN}, s76" if flags else ""}
        s_cbranch_scc0 {name}_s3
        """)
        prefetch(76, 0, False)
    a(f"s_branch {name}_s3")
    a.label(f"{name}_s2")
    for w in range(4):
        a(f"ds_read_b128 v[{RP+4*w}:{RP+4*w+3}], v{V_T1} offset:{1024*w}")
    a(f"v_lshrrev_b32 v{V_T1}, 1, v{V_LL}")
    a("s_waitcnt lgkmcnt(2)")
    for i in (0, 2):
        a(f"v_pk_add_f32 v[{RP+i}:{RP+i+1}], v[{RP+i}:{RP+i+1}], v[{RP+4+i}:{RP+4+i+1}]")
    a("s_waitcnt lgkmcnt(0)")
    for i in (0, 2):
        a(f"v_pk_add_f32 v[{RP+8+i}:{RP+8+i+1}], v[{RP+8+i}:{RP+8+i+1}], v[{RP+12+i}:{RP+12+i+1}]")
    for i in (0, 2):
        a(f"v_pk_add_f32 v[{RP+i}:{RP+i+1}], v[{RP+i}:{RP+i+1}], v[{RP+8+i}:{RP+8+i+1}]")
    a(f"v_cvt_pk_bf16_f32 v{KVH}, v{RP}, v{RP+1}")
    a(f"v_cvt_pk_bf16_f32 v{KVH+1}, v{RP+2}, v{RP+3}")
    a(f"ds_write_b64 v{V_T1}, v[{KVH}:{KVH+1}] offset:{L_VM}")
    a("s_waitcnt lgkmcnt(0)")
    a.label(f"{name}_s3")
    a(f"""
    s_cmp_eq_u32 s{S_STEP}, {nsteps-1}
    s_cbranch_scc1 {name}_slast
    s_add_u32 s{S_T1}, s{S_SL}, 16384
    s_barrier
    """)

    def kv_pub(tag):
        a(f"""
        s_add_u32 s77, s{S_STEP}, s{S_CU}
        s_bfe_u32 s{S_T0}, s77, 0x30003
        s_lshl_b32 s{S_T0}, s{S_T0}, 14
        s_and_b32 s77, s77, 7
        s_lshl_b32 s77, s77, 10
        s_add_u32 s{S_T0}, s{S_T0}, s77
        s_add_u32 s{S_T0}, s{S_T0}, s{S_KVB}
        s_cmp_eq_u32 s{S_WAVE}, 2
        s_cbranch_scc1 {name}_kv2{tag}
        s_mov_b64 exec, s[{S_MKM}:{S_MKM+1}]
        buffer_store_dwordx4 v[{KVH}:{KVH+3}], v{V_OKV}, {SRD}, s{S_T0} offen sc1
        s_mov_b64 exec, -1
        s_branch {name}_kvd{tag}
{name}_kv2{tag}:
        v_lshlrev_b32 v{V_T0}, 3, v{V_L}
        buffer_store_dwordx2 v[{KVH}:{KVH+1}], v{V_T0}, {SRD}, s{S_T0} offen offset:512 sc1
{name}_kvd{tag}:
        """)
    a(f"s_cmp_eq_u32 s{S_WAVE}, 3\ns_cbranch_scc1 {name}_y3")
    if not E("NOKVM", 0):
        kv_pub("a")
    a(f"s_branch {name}_y4")
    a.label(f"{name}_y3")
    if not TAG:
        a(f"s_add_u32 s76, s{S_STEP}, 2\ns_and_b32 s76, s76, 63")
        xuoff(S_XS, 76)
        a(f"s_cmp_lt_u32 s76, 2\ns_cbranch_scc1 {name}_y4")
        a(f"buffer_store_dwordx4 v[{V_POI}:{V_POI+3}], v{V_OXW}, {SRD}, s{S_XS} offen sc1")
    a(f"""
    s_add_u32 s76, s{S_STEP}, 2
    s_cmp_lt_u32 s76, {nsteps-1}
    s_cbranch_scc0 {name}_y4
    """)
    if not E("NOPF", 0):
        if E("KPF", 1):
            a(f"s_add_u32 s76, s{S_STEP}, 3")
            prefetch(76, None, skip=f"{name}_y4")
        else:
            prefetch(76, 0, skip=f"{name}_y4")
    a.label(f"{name}_y4")
    a(f"s_branch {name}_b3")
    a.label(f"{name}_first")
    for i in range(4):
        a(f"buffer_load_dwordx4 v[{MA+4*i}:{MA+4*i+3}], v{V_OM0}, s[{S_M0}:{S_M0+3}], 0 offen offset:{128*i}")
    xread()
    a("s_waitcnt vmcnt(0)")
    for i in range(4):
        wa(i)
    a.nops(2)
    a(f"s_branch {name}_adone")
    a.label(f"{name}_slast")
    a(f"s_cmp_eq_u32 s{S_WAVE}, 3\ns_cbranch_scc1 {name}_end")
    kv_pub("b")
    a(f"s_waitcnt vmcnt(0)\ns_barrier\ns_mov_b32 s76, {nsteps}\ns_cmp_eq_u32 s{S_WAVE}, 1\ns_cbranch_scc0 {name}_end")
    flag_store(76)
    a.label(f"{name}_end")
    if ts: ts(4)
    if prof:
        a(f"""
        s_lshl_b32 s{S_T0}, s{S_X}, 5
        s_add_u32 s{S_T0}, s{S_T0}, s{S_T}
        s_lshl_b32 s{S_T0}, s{S_T0}, 2
        s_add_u32 s{S_T0}, s{S_T0}, s{S_WAVE}
        s_lshl_b32 s{S_T0}, s{S_T0}, 6
        s_add_u32 s{S_T0}, s{S_T0}, {WS_PROF}
        v_mov_b32 v{V_T1}, 0
        s_mov_b64 exec, 1
        """)
        for i in range(16):
            a(f"v_mov_b32 v{V_T0}, s{50+i}")
            a(f"buffer_store_dword v{V_T0}, v{V_T1}, {SRD}, s{S_T0} offen offset:{4*i}")
            a("s_nop 1")
    a("s_endpgm")


def gen_rec_standalone(a: Asm, name, prof=False, force_slow=False):
    a.kernel_begin(name)
    a(f"s_cmp_ge_u32 s2, 256\ns_cbranch_scc1 {name}_exit")
    start_code(a, name)
    a(f"""
    s_sub_u32 s40, s90, 6
    s_lshl_b32 s40, s40, 5
    s_add_u32 s40, s40, s96
    s_cmp_lt_u32 s90, 4
    s_cbranch_scc0 {name}_oth
    s_mov_b32 s{S_X}, s90
    s_mov_b32 s{S_T}, s96
    """)
    rec_body(a, name + "_f", "", lambda vt: sync_code(a, name, "r", vt), prof=prof, flags=False)
    a.label(f"{name}_oth")
    a(f"s_cmp_lt_u32 s40, 64\ns_cbranch_scc0 {name}_exit")
    init_cd(a, name, 40)
    a.label(f"{name}_slowent")
    a.label(f"{name}_exit")
    a("s_endpgm")
    return kd(name, 512, sgpr=102, accum=256)


if __name__ == "__main__":
    import sys
    a = Asm()
    name = "rec_kernel"
    k = gen_rec_standalone(a, name, prof=("prof" in sys.argv), force_slow=("slow" in sys.argv))
    out = HEADER + f"; @launch kernel={name} grid=(256,1,1) block=(256,1,1) lds=163840\n"
    out += '.amdgcn_target "amdgcn-amd-amdhsa--gfx950"\n.text\n' + a.text() + '.section .rodata,"a"\n' + k
    open(os.environ.get("OUT", "rec.s"), "w").write(out)
```

```python
import sys
from gen_common import *
from gen_rec import S_X, S_T, S_WSD, S_DBG, E, start_code, rec_body, sync_code, slow_entry, init_cd
from gen_bulk import kv_role, qx_role, out_role, S_H, S_O0, S_O1, S_OI, S_OT
from gen_fft2 import gen_f0, gen_f1, gen_f2, gen_f3

LDS = 163840


def gen_mega(a, name, force_slow=False):
    W = S_WSD
    S_B, S_G, S_F = 94, 91, 92
    a.kernel_begin(name)

    def ts(i):
        if not E("BPROF", 0): return
        a(f"""
        s_memrealtime s[76:77]
        s_memtime s[100:101]
        s_waitcnt lgkmcnt(0)
        v_mov_b32 v1, 0
        v_mov_b32 v2, s76
        s_lshl_b32 s78, s2, 6
        s_add_u32 s78, s78, {WS_PROF + 8 * MB + 4 * i}
        s_mov_b64 exec, 1
        buffer_store_dword v2, v1, s[{W}:{W+3}], s78 offen
        s_nop 1
        v_mov_b32 v2, s100
        s_add_u32 s78, s78, 16384
        buffer_store_dword v2, v1, s[{W}:{W+3}], s78 offen
        s_nop 1
        v_mov_b32 v2, s96
        s_lshl_b32 s78, s2, 6
        s_add_u32 s78, s78, {WS_PROF + 8 * MB + 56}
        buffer_store_dword v2, v1, s[{W}:{W+3}], s78 offen
        s_mov_b64 exec, -1
        """)
    a(f"s_cmp_ge_u32 s2, 256\ns_cbranch_scc1 {name}_exit")
    if E("BPROF", 0): a("s_memrealtime s[80:81]")
    start_code(a, name)
    sync = lambda tag: (lambda vt: sync_code(a, name, tag, vt, force_slow))
    a(f"""
    s_cmp_lt_u32 s96, 32
    s_cbranch_scc1 {name}_spec
    """)
    sync("x")(2)
    slow_entry(a, name)
    a(f"""
    s_lshr_b32 s{S_X}, s97, 5
    s_and_b32 s{S_T}, s97, 31
    s_cmp_lt_u32 s97, 128
    s_cbranch_scc1 {name}_recs
    s_sub_u32 s{S_B}, s97, 128
    s_branch {name}_bulk
{name}_spec:
    s_mov_b32 s{S_X}, s90
    s_mov_b32 s{S_T}, s96
    s_cmp_lt_u32 s90, 4
    s_cbranch_scc1 {name}_recf
    s_sub_u32 s{S_B}, s90, 4
    s_lshl_b32 s{S_B}, s{S_B}, 5
    s_add_u32 s{S_B}, s{S_B}, s96
{name}_bulk:
    """)
    if E("MIX", 0):
        a(f"s_and_b32 s{S_G}, s{S_B}, 3\ns_lshr_b32 s{S_H}, s{S_B}, 2")
    else:
        a(f"s_lshr_b32 s{S_G}, s{S_B}, 5\ns_and_b32 s{S_H}, s{S_B}, 31")
    a(f"""
    s_and_b32 s{S_F}, s{S_G}, 1
    s_lshl_b32 s{S_F}, s{S_F}, 5
    s_add_u32 s{S_F}, s{S_F}, s{S_H}
    """)
    if E("BPROF", 0):
        a(f"""
        v_mov_b32 v1, 0
        v_mov_b32 v2, s80
        v_mov_b32 v3, s{S_G}
        s_lshl_b32 s78, s2, 6
        s_add_u32 s78, s78, {WS_PROF + 8 * MB}
        s_mov_b64 exec, 1
        buffer_store_dword v2, v1, s[{W}:{W+3}], s78 offen
        buffer_store_dword v3, v1, s[{W}:{W+3}], s78 offen offset:60
        s_mov_b64 exec, -1
        """)
    ts(1)
    a(f"""
    s_cmp_eq_u32 s{S_G}, 0
    s_cbranch_scc1 {name}_rk
    s_cmp_eq_u32 s{S_G}, 1
    s_cbranch_scc1 {name}_rv
    """)
    def signal(i):
        a(f"""
        s_waitcnt vmcnt(0)
        s_barrier
        v_mov_b32 v1, 0
        v_mov_b32 v2, 1
        s_mov_b32 s82, {WS_F + F_CNT + 128 * i}
        v_cmp_eq_u32 vcc, 0, v0
        s_and_saveexec_b64 s[80:81], vcc
        s_cbranch_execz {name}_sg{i}
        buffer_atomic_add v2, v1, s[{W}:{W+3}], s82 offen sc1
{name}_sg{i}:
        s_mov_b64 exec, s[80:81]
        """)

    def wait(i, n):
        a(f"v_mov_b32 v1, 0\ns_mov_b32 s82, {WS_F + F_CNT + 128 * i}")
        a.label(f"{name}_w{i}")
        wd_code(a, f"fftwait{i}")
        a(f"""
        s_sleep 8
        buffer_load_dword v2, v1, s[{W}:{W+3}], s82 offen sc1
        s_waitcnt vmcnt(0)
        v_cmp_ne_u32 vcc, {n-1}, v2
        s_cbranch_vccnz {name}_w{i}
        """)

    def tasks(tag, fn, first, stride, n, base_sreg):
        a(f"s_add_u32 s93, s{base_sreg}, {first}")
        a(f"s_cmp_lt_u32 s93, {n}\ns_cbranch_scc0 {name}_{tag}e")
        a.label(f"{name}_{tag}l")
        fn()
        a(f"s_add_u32 s93, s93, {stride}\ns_cmp_lt_u32 s93, {n}\ns_cbranch_scc1 {name}_{tag}l")
        a.label(f"{name}_{tag}e")
    DF2 = E("DF2", 1)
    init_cd(a, name, S_F)
    ts(2)
    a(f"s_cmp_eq_u32 s{S_G}, 2\ns_cbranch_scc0 {name}_rd")
    qx_role(a, name + "_q", ts, sync("c"))
    a.label(f"{name}_rd")
    a(f"s_mov_b32 s93, s{S_H}")
    gen_f1(a, name + "_f1", 93, 32, 128)
    ts(5)
    a(f"s_mov_b32 s93, s{S_H}\ns_waitcnt vmcnt(0)")
    gen_f0(a, name + "_f0", 93, 32, 288)
    sync("d")(2)
    signal(0)
    ts(6)
    a(f"s_add_u32 s38, s{S_H}, {129 - DF2}\ns_mov_b32 s39, 32\ns_mov_b32 s37, 129")
    a(f"s_cmp_lt_u32 s38, 129\ns_cbranch_scc1 {name}_f2s\ns_branch {name}_f2e")
    a.label(f"{name}_rk")
    kv_role(a, name + "_k", False, ts, sync("k"))
    a(f"s_branch {name}_fft")
    a.label(f"{name}_rv")
    kv_role(a, name + "_v", True, ts, sync("v"))
    a.label(f"{name}_fft")
    ts(4)
    a(f"s_mov_b32 s38, s{S_F}\ns_mov_b32 s39, 64\ns_mov_b32 s37, {129 - DF2}")
    a.label(f"{name}_f2s")
    wait(0, 32)
    gen_f2(a, name + "_f2", 38, "s39", "s37")
    a.label(f"{name}_f2e")
    signal(1)
    ts(7)
    TL = E("TAILG", 1)
    a(f"s_mov_b32 s{S_O0}, 0\ns_mov_b32 s{S_O1}, {62 if TL else 64}\ns_mov_b32 s{S_OI}, 0\ns_mov_b32 s{S_OT}, 0")
    a(f"s_cmp_eq_u32 s{S_G}, 3\ns_cbranch_scc1 {name}_out")
    wait(1, 96)
    a(f"s_mov_b32 s93, s{S_F}")
    gen_f3(a, name + "_f3", 93, 64, 128)
    ts(8)
    if TL:
        a(f"s_add_u32 s{S_O0}, s{S_G}, 62\ns_add_u32 s{S_O1}, s{S_G}, 63\ns_mov_b32 s{S_OI}, {32 * 8192}\ns_mov_b32 s{S_OT}, 1\ns_waitcnt vmcnt(0)\ns_barrier")
    else:
        a(f"s_branch {name}_exit")
    a.label(f"{name}_out")
    out_role(a, name + "_o", lambda i: ts(i + 6))
    a.label(f"{name}_exit")
    a("s_endpgm")
    a.label(f"{name}_recf")
    rec_body(a, name + "_rf", "", sync("r"), prof=bool(E("PROF", 0)), ts=ts)
    a.label(f"{name}_recs")
    rec_body(a, name + "_rs", "sc1", sync("s"))
    return kd(name, 512, sgpr=102, accum=256)


def build(path, force_slow=False):
    a = Asm()
    k = gen_mega(a, "mega_kernel", force_slow)
    out = HEADER + f"; @launch kernel=mega_kernel grid=(256,1,1) block=(256,1,1) lds={LDS}\n"
    out += '.amdgcn_target "amdgcn-amd-amdhsa--gfx950"\n.text\n' + a.text() + '.section .rodata,"a"\n' + k
    open(path, "w").write(out)
    import json
    json.dump(WD_SITES, open("wd.json", "w"))


if __name__ == "__main__":
    build(sys.argv[1] if len(sys.argv) > 1 else "mega.s", force_slow=("slow" in sys.argv))
```

```python
from gen_common import *
from gen_rec import S_WSD, S_DBG, E

W = S_WSD
SRD = f"s[{W}:{W+3}]"
S_H = 40
S_WAVE, S_SEG, S_T0, S_T1, S_T2 = 41, 42, 43, 44, 45
S_WM, S_XM = 4, 8
V_L, V_T0, V_T1, V_T2, V_LL = 1, 2, 3, 4, 5


def wdog(a, name):
    wd_code(a, name + ":" + a.lines[-1], f"s{S_SEG}")


def tsx(a, ts, i):
    if E("BPROF", 0):
        ts(i)
        a(f"v_and_b32 v{V_L}, 63, v0")


def pst(i):
    if not E("KPROF", 0): return []
    return ["s_memtime s[76:77]", "s_waitcnt lgkmcnt(0)", "s_sub_u32 s78, s76, s31", f"s_add_u32 s{32+i}, s{32+i}, s78", "s_mov_b32 s31, s76"]


def pinit(a):
    if not E("KPROF", 0): return
    for i in range(8): a(f"s_mov_b32 s{32+i}, 0")
    a("s_memtime s[76:77]\ns_waitcnt lgkmcnt(0)\ns_mov_b32 s31, s76")


def pdump(a):
    if not E("KPROF", 0): return
    a(f"s_lshl_b32 s78, s2, 7\ns_lshl_b32 s77, s{S_WAVE}, 5\ns_add_u32 s78, s78, s77\ns_add_u32 s78, s78, {WS_PROF + 9*MB}\nv_mov_b32 v2, 0\ns_mov_b64 exec, 1")
    for i in range(8):
        a(f"v_mov_b32 v3, s{32+i}\nbuffer_store_dword v3, v2, {SRD}, s78 offen offset:{4*i}\ns_nop 1")
    a("s_mov_b64 exec, -1")


def common(a, ka_w, ka_x, xbytes):
    a(f"""
    s_load_dwordx2 s[{S_WM}:{S_WM+1}], s[0:1], {ka_w}
    s_load_dwordx2 s[{S_XM}:{S_XM+1}], s[0:1], {ka_x}
    v_lshrrev_b32 v{V_T0}, 6, v0
    v_and_b32 v{V_L}, 63, v0
    v_readfirstlane_b32 s{S_WAVE}, v{V_T0}
    v_lshlrev_b32 v{V_LL}, 4, v{V_L}
    s_waitcnt lgkmcnt(0)
    s_mov_b32 s{S_WM+2}, {8*MB}
    s_mov_b32 s{S_WM+3}, 0x00020000
    s_mov_b32 s{S_XM+2}, {xbytes}
    s_mov_b32 s{S_XM+3}, 0x00020000
    """)


def load_weights(a, rowlog, s_base, lane_addr, frag_off, rot=None, cl=2, touch=False):
    a(f"""
    v_lshrrev_b32 v{V_T0}, {cl}, v{V_L}
    v_and_b32 v{V_T1}, {(1 << cl) - 1}, v{V_L}
    v_lshlrev_b32 v16, {rowlog}, v{V_T0}
    v_lshl_add_u32 v16, v{V_T1}, 4, v16
    v_add_u32 v16, s{s_base}, v16
    v_and_b32 v{V_T1}, 3, v{V_L}
    s_lshl_b32 s{S_T2}, s{S_WAVE}, 15
    """)
    RI = 64 >> cl
    a(lane_addr)
    a(f"v_add_u32 v17, s{S_T2}, v17")

    HELP = 1 if (touch and E("BHELP", 1)) else 0
    if HELP:
        a(f"""
        s_and_b32 s{S_T0}, s{S_H}, 3
        s_lshl_b32 s{S_T0}, s{S_T0}, 2
        s_add_u32 s{S_T0}, s{S_T0}, s{S_WAVE}
        s_lshl_b32 s{S_T0}, s{S_T0}, 4
        v_and_b32 v23, 15, v{V_L}
        v_add_u32 v23, s{S_T0}, v23
        s_lshr_b32 s{S_T0}, s{S_H}, 2
        s_lshl_b32 s{S_T0}, s{S_T0}, 10
        s_add_u32 s{S_T1}, s{S_T0}, 896
        s_add_u32 s{S_T0}, s{S_T0}, 384
        s_cmp_ge_u32 s{S_H}, 28
        s_cselect_b32 s{S_T1}, s{S_T1}, s{S_T0}
        v_mov_b32 v24, s{S_T0}
        v_mov_b32 v25, s{S_T1}
        v_cmp_gt_u32 vcc, 32, v{V_L}
        s_nop 1
        v_cndmask_b32 v24, v25, v24, vcc
        v_lshl_add_u32 v23, v23, 13, v24
        """)

    def dma(ch):
        if HELP:
            a(f"s_mov_b32 s{S_T1}, {ch * 2 * MB}\nbuffer_load_dword v22, v23, s[{S_WM}:{S_WM+3}], s{S_T1} offen")
        for r in range(16):
            a(f"s_add_u32 m0, s{S_T2}, {(ch & 1)*16384 + 1024*r}")
            if rot is None:
                a(f"s_mov_b32 s{S_T1}, {(RI * (16 * ch + r)) << rowlog}")
            else:
                a(f"s_add_u32 s{S_T1}, s{rot}, {RI * (16 * ch + r)}\ns_and_b32 s{S_T1}, s{S_T1}, {64 * RI - 1}\ns_lshl_b32 s{S_T1}, s{S_T1}, {rowlog}")
            a(f"buffer_load_dwordx4 v16, s[{S_WM}:{S_WM+3}], s{S_T1} offen {'nt ' if E('BNT', 0) else ''}lds")

    def tr(ch):
        for f in range(16 * ch, 16 * ch + 16):
            for jj in range(2):
                o = frag_off(f, jj) - 16384 * ch
                assert 0 <= o < 16384
                a(f"ds_read_b64_tr_b16 a[{4*f+2*jj}:{4*f+2*jj+1}], v17 offset:{(ch & 1)*16384 + o}")
            if f % 4 == 3:
                a("s_waitcnt lgkmcnt(0)")
    WT = E("BWT", 0) if touch else 0
    if WT:
        a(f"""
        s_lshl_b32 s{S_T0}, s{S_H}, 16
        s_lshl_b32 s{S_T1}, s{S_WAVE}, 14
        s_add_u32 s{S_T0}, s{S_T0}, s{S_T1}
        v_lshlrev_b32 v21, 7, v{V_L}
        v_add_u32 v21, s{S_T0}, v21
        """)
    def tch(n):
        for i in range(2):
            a(f"s_mov_b32 s{S_T1}, {n * 2 * MB + i * 8192}")
            a(f"buffer_load_dword v22, v21, s[{S_WM}:{S_WM+3}], s{S_T1} offen")
    if WT == 1:
        tch(0); tch(1); dma(0); tch(2); dma(1); tch(3)
    elif WT == 2:
        tch(0); tch(1); tch(2); tch(3); dma(0); dma(1)
    else:
        dma(0); dma(1)
    a(f"s_waitcnt vmcnt({(20 if WT == 1 else 16) + HELP})"); tr(0); dma(2)
    a(f"s_waitcnt vmcnt({(18 if WT == 1 else 16) + HELP})"); tr(1); dma(3)
    a("s_waitcnt vmcnt(16)"); tr(2)
    a("s_waitcnt vmcnt(0)"); tr(3)
    a("s_barrier")


def lane32(hi_mul, swap=False, rl=6):
    if swap:
        return lane32(hi_mul).replace(f"v_lshl_add_u32 v17, v{V_T1}, 3, v17", f"""
        v_and_b32 v18, 1, v{V_L}
        v_lshl_add_u32 v17, v18, 4, v17
        v_bfe_u32 v18, v{V_L}, 1, 1
        v_lshl_add_u32 v17, v18, 3, v17""")
    return f"""
    v_bfe_u32 v17, v{V_L}, 2, 2
    v_lshrrev_b32 v18, 5, v{V_L}
    v_mul_u32_u24 v18, {hi_mul}, v18
    v_add_u32 v17, v17, v18
    v_lshlrev_b32 v17, {rl}, v17
    v_bfe_u32 v18, v{V_L}, 4, 1
    v_lshl_add_u32 v17, v18, 5, v17
    v_lshl_add_u32 v17, v{V_T1}, 3, v17
    """


def lane16(qlog):
    return f"""
    v_bfe_u32 v17, v{V_L}, 2, 2
    v_lshrrev_b32 v18, 4, v{V_L}
    v_lshl_add_u32 v17, v18, 3, v17
    v_lshlrev_b32 v17, 6, v17
    v_lshl_add_u32 v17, v{V_T1}, {qlog}, v17
    """


M32 = E('M32', 0)
GR2 = 512 if M32 else 1024
V_DX, V_RA, V_ST = 6, 8, 7
FR, NFR, AHEAD = 20, 8, 6
ACC = (52, 68)
EP = 84
S_XB = 46
S_CU, S_OB, S_FL = 47, 48, 49
S_O0, S_O1, S_OI, S_OT = 64, 65, 66, 67


def proj_setup(a, ka_w, swap):
    assert not M32
    common(a, ka_w, KA_AX, 4 * MB)
    a(f"""
    s_lshl_b32 s{S_T0}, s{S_H}, 8
    s_lshl_b32 s{S_T1}, s{S_WAVE}, 6
    s_add_u32 s{S_OB}, s{S_T0}, s{S_T1}
    s_and_b32 s{S_T0}, s{S_OB}, 0x7ff
    v_add_u32 v19, s{S_T0}, v{V_L}
    v_lshlrev_b32 v19, 7, v19
    buffer_load_dword v250, v19, s[{S_XM}:{S_XM+3}], 0 offen
    s_nop 0
    """)
    a(f"""
    v_lshrrev_b32 v{V_T0}, 3, v{V_L}
    s_lshl_b32 s{S_T0}, s{S_WAVE}, 3
    v_add_u32 v{V_T0}, s{S_T0}, v{V_T0}
    v_bfe_u32 v{V_T1}, v{V_T0}, 1, 3
    v_and_b32 v{V_T2}, 7, v{V_L}
    v_xor_b32 v{V_T1}, v{V_T1}, v{V_T2}
    v_lshlrev_b32 v{V_DX}, 11, v{V_T0}
    v_lshl_add_u32 v{V_DX}, v{V_T1}, 4, v{V_DX}
    s_lshl_b32 s{S_XB}, s{S_WAVE}, 10
    v_and_b32 v{V_T0}, 15, v{V_L}
    v_bfe_u32 v{V_T1}, v{V_T0}, 1, 3
    v_lshrrev_b32 v{V_T2}, 4, v{V_L}
    v_xor_b32 v{V_T1}, v{V_T1}, v{V_T2}
    v_lshlrev_b32 v{V_RA}, 7, v{V_T0}
    v_lshl_add_u32 v{V_RA}, v{V_T1}, 4, v{V_RA}
    v_xor_b32 v{V_RA+1}, 64, v{V_RA}
    v_add_u32 v{V_RA+2}, 0x10000, v{V_RA}
    v_add_u32 v{V_RA+3}, 0x10000, v{V_RA+1}
    v_mov_b32 v{V_ST}, v{V_LL}
    """)
    if M32:
        a(f"""
        v_and_b32 v{V_T0}, 31, v{V_L}
        v_bfe_u32 v{V_T1}, v{V_T0}, 1, 3
        v_lshrrev_b32 v{V_T2}, 5, v{V_L}
        v_xor_b32 v{V_T1}, v{V_T1}, v{V_T2}
        v_lshlrev_b32 v{V_RA}, 7, v{V_T0}
        v_lshl_add_u32 v{V_RA}, v{V_T1}, 4, v{V_RA}
        v_xor_b32 v{V_RA+1}, 32, v{V_RA}
        v_xor_b32 v{V_RA+2}, 64, v{V_RA}
        v_xor_b32 v{V_RA+3}, 96, v{V_RA}
        v_add_u32 v{V_RA+4}, 0x10000, v{V_RA}
        v_add_u32 v{V_RA+5}, 0x10000, v{V_RA+1}
        v_add_u32 v{V_RA+6}, 0x10000, v{V_RA+2}
        v_add_u32 v{V_RA+7}, 0x10000, v{V_RA+3}
        v_bfe_u32 v{V_T1}, v{V_L}, 4, 1
        v_lshlrev_b32 v{V_ST}, 10, v{V_T1}
        v_lshl_add_u32 v{V_ST}, v{V_T2}, 8, v{V_ST}
        v_and_b32 v{V_T1}, 15, v{V_L}
        v_lshl_add_u32 v{V_ST}, v{V_T1}, 4, v{V_ST}
        """)
    a(f"""
    s_lshl_b32 s{S_CU}, s{S_H}, 2
    s_add_u32 s{S_CU}, s{S_CU}, s{S_WAVE}
    s_mov_b32 s{S_SEG}, 0
    s_mov_b32 s50, 0
    """)
    for g in xdma_lines(0, 50):
        a("\n".join(g))
    a(f"""
    v_lshrrev_b32 v{V_T0}, 2, v{V_L}
    v_and_b32 v{V_T1}, 3, v{V_L}
    v_lshlrev_b32 v16, 13, v{V_T0}
    v_lshl_add_u32 v16, v{V_T1}, 4, v16
    v_add_u32 v16, s{S_OB}, v16
    s_mul_i32 s{S_T2}, s{S_WAVE}, 24576
    s_add_u32 s{S_T2}, s{S_T2}, 65536
    """)
    a(lane16(4 if swap else 3))
    a(f"""
    v_add_u32 v17, s{S_T2}, v17
    s_and_b32 s{S_T0}, s{S_H}, 3
    s_lshl_b32 s{S_T0}, s{S_T0}, 2
    s_add_u32 s{S_T0}, s{S_T0}, s{S_WAVE}
    s_lshl_b32 s{S_T0}, s{S_T0}, 3
    v_and_b32 v12, 7, v{V_L}
    v_add_u32 v12, s{S_T0}, v12
    s_lshr_b32 s{S_T0}, s{S_H}, 2
    s_lshl_b32 s{S_T0}, s{S_T0}, 10
    s_add_u32 s{S_T1}, s{S_T0}, 896
    s_add_u32 s{S_T0}, s{S_T0}, 384
    s_cmp_ge_u32 s{S_H}, 28
    s_cselect_b32 s{S_T1}, s{S_T1}, s{S_T0}
    v_mov_b32 v13, s{S_T0}
    v_mov_b32 v14, s{S_T1}
    v_cmp_gt_u32 vcc, 32, v{V_L}
    s_nop 1
    v_cndmask_b32 v13, v14, v13, vcc
    v_lshl_add_u32 v12, v12, 13, v13
    """)

    def dma(ch):
        a(f"s_mov_b32 s{S_T1}, {min(ch + E('HA', 0), 7) * MB}\nbuffer_load_dword v250, v12, s[{S_WM}:{S_WM+3}], s{S_T1} offen")
        for r in range(8):
            a(f"s_add_u32 m0, s{S_T2}, {(ch % 3)*8192 + 1024*r}")
            a(f"s_mov_b32 s{S_T1}, {(128 * ch + 16 * r) << 13}")
            a(f"buffer_load_dwordx4 v16, s[{S_WM}:{S_WM+3}], s{S_T1} offen lds")
    for ch in range(3): dma(ch)
    acc = ACC[0]
    for ch in range(8):
        a(f"s_waitcnt vmcnt({9 * min(2, 7 - ch)})")
        if ch == 0: a("s_barrier")
        for f in range(8 * ch, 8 * ch + 8):
            for jj in range(2):
                o = (32 * ((f >> 1) - 4 * ch) + 4 * jj) * 64 + (f & 1) * (8 if swap else 32)
                a(f"ds_read_b64_tr_b16 a[{4*f+2*jj}:{4*f+2*jj+1}], v17 offset:{(ch % 3)*8192 + o}")
            if f % 4 == 3: a("s_waitcnt lgkmcnt(0)")
        for n in range(8 * ch, 8 * ch + 8):
            k = n >> 1
            a(f"ds_read_b128 v[{FR+4*(n%8)}:{FR+4*(n%8)+3}], v{V_RA + (k & 1)} offset:{4096*(k >> 1) + 2048*(n & 1)}")
        if ch + 3 < 8: dma(ch + 3)
        a("s_waitcnt lgkmcnt(0)")
        for n in range(8 * ch, 8 * ch + 8):
            k, tt, f = n >> 1, n & 1, FR + 4 * (n % 8)
            for u in range(2):
                d, w = acc + 8 * tt + 4 * u, 4 * (2 * k + u)
                c = "0" if k == 0 else f"v[{d}:{d+3}]"
                if swap: a(f"v_mfma_f32_16x16x32_bf16 v[{d}:{d+3}], a[{w}:{w+3}], v[{f}:{f+3}], {c}")
                else: a(f"v_mfma_f32_16x16x32_bf16 v[{d}:{d+3}], v[{f}:{f+3}], a[{w}:{w+3}], {c}")
    a("s_barrier\ns_mov_b32 s50, 0x10000")
    for g in xdma_lines(1, 50):
        a("\n".join(g))


def xdma_lines(buf, s_off):
    out = []
    for kb in range(16):
        out.append([f"s_add_u32 m0, s{S_XB}, {buf*65536 + kb*3968}", "s_nop 0",
                    f"buffer_load_dwordx4 v{V_DX}, s[{S_XM}:{S_XM+3}], s{s_off} offen offset:{128*kb} lds"])
    return out


def proj_segment(a, buf, acc, wA, fill, stg=None):
    def rd(n):
        f = FR + 4 * (n % NFR)
        k = n >> 1
        if M32:
            a(f"ds_read_b128 v[{f}:{f+3}], v{V_RA + 4*buf + (n & 3)} offset:{4096*(n >> 2)}")
        else:
            a(f"ds_read_b128 v[{f}:{f+3}], v{V_RA + 2*buf + (k & 1)} offset:{4096*(k >> 1) + 2048*(n & 1)}")
    for n in range(AHEAD):
        rd(n)
    for l in fill.get(-1, []):
        a(l)
    for n in range(64):
        f = FR + 4 * (n % NFR)
        k, tt = n >> 1, n & 1
        fl = list(fill.get(n, []))
        if fl and "m0" in fl[0] and fl[1] == "s_nop 0":
            a(fl[0]); fl = fl[2:]
        if not (E("LG2", 1) and n % 2 == 1 and n + AHEAD < 64):
            a(f"s_waitcnt lgkmcnt({min(AHEAD, 64 - n) - 1 - (1 if E('LG2', 1) and n + 1 + AHEAD < 64 else 0)})")
        if M32:
            c = "0" if n == 0 else f"v[{acc}:{acc+15}]"
            if wA:
                a(f"v_mfma_f32_32x32x16_bf16 v[{acc}:{acc+15}], a[{4*n}:{4*n+3}], v[{f}:{f+3}], {c}")
            else:
                a(f"v_mfma_f32_32x32x16_bf16 v[{acc}:{acc+15}], v[{f}:{f+3}], a[{4*n}:{4*n+3}], {c}")
            if n + AHEAD < 64:
                rd(n + AHEAD)
        for u in range(0 if M32 else 2):
            d = acc + 8 * tt + 4 * u
            w = 4 * (2 * k + u)
            c = "0" if k == 0 else f"v[{d}:{d+3}]"
            if stg is not None and k == 31: d += stg - acc
            if wA:
                a(f"v_mfma_f32_16x16x32_bf16 v[{d}:{d+3}], a[{w}:{w+3}], v[{f}:{f+3}], {c}")
            else:
                a(f"v_mfma_f32_16x16x32_bf16 v[{d}:{d+3}], v[{f}:{f+3}], a[{w}:{w+3}], {c}")
            if u == 0 and n + AHEAD < 64:
                rd(n + AHEAD)
        for l in fl:
            a(l)


def pack_lines(acc, isV):
    src = [0, 2, 8, 10, 4, 6, 12, 14] if isV else [0, 2, 4, 6, 8, 10, 12, 14]
    return [f"v_cvt_pk_bf16_f32 v{EP+i}, v{acc+s}, v{acc+s+1}" for i, s in enumerate(src)]


def kvx(cu):
    m = E("KVPAR", 0)
    return ["", f"s_xor_b32 s{S_T1}, s{S_T1}, 1", f"s_xor_b32 s{S_T1}, s{S_T1}, s{cu}"][m]


def near_base(a, dst, cu, log, region):
    a(f"""
    s_lshr_b32 s{S_T1}, s{cu}, {21 - log}
    s_xor_b32 s{S_T1}, s{S_T1}, s98
    {kvx(cu) if log == 18 else ""}
    s_and_b32 s{S_T1}, s{S_T1}, 1
    s_lshl_b32 s{S_T1}, s{S_T1}, 13
    s_lshl_b32 s{dst}, s{cu}, {log}
    s_add_u32 s{dst}, s{dst}, s{S_T1}
    s_add_u32 s{dst}, s{dst}, {region}
    """)


def kv_role(a: Asm, name, isV, ts, sync):
    proj_setup(a, KA_WV if isV else KA_WK, not isV)
    tsx(a, ts, 2)
    def store_lines():
        return [f"s_add_u32 s51, s{S_SEG}, s{S_CU}", "s_sub_u32 s51, s51, 1", "s_bfe_u32 s52, s51, 0x40002", "s_lshl_b32 s52, s52, 14",
                "s_and_b32 s51, s51, 3", "s_lshl_b32 s51, s51, 11", "s_add_u32 s51, s51, s52", f"s_add_u32 s51, s51, s{S_OB}",
                f"buffer_store_dwordx4 v[{EP}:{EP+3}], v{V_ST}, {SRD}, s51 offen sc1",
                f"buffer_store_dwordx4 v[{EP+4}:{EP+7}], v{V_ST}, {SRD}, s51 offen offset:{GR2} sc1"]

    def flag_lines():
        return [f"v_mov_b32 v17, s{S_SEG}", "s_mov_b64 exec, 1", f"buffer_store_dword v17, v16, {SRD}, s{S_FL} offen sc1", "s_mov_b64 exec, -1"]

    def seg(buf, first):
        a("\n".join(pst(0)))
        a(f"s_waitcnt vmcnt({0 if first else 2})")
        a("\n".join(pst(1)))
        a("s_barrier")
        a("\n".join(pst(2)))
        a(f"s_add_u32 s50, s{S_SEG}, 1\ns_min_u32 s50, s50, 63\ns_lshl_b32 s50, s50, 16")
        fill = {}
        if not first:
            pk = pack_lines(ACC[1 - buf], isV)
            fill[0] = pk[:3]; fill[1] = pk[3:6]; fill[2] = pk[6:]
            st = store_lines()
            fill[3] = st[:4]; fill[4] = st[4:9]; fill[5] = st[9:]
            fill[E("FG", 42)] = pst(3) + ["s_waitcnt vmcnt(16)"] + pst(4) + flag_lines()
        fill[E("FG", 42) + 2] = [f"s_add_u32 s53, s{S_SEG}, 3", "s_min_u32 s53, s53, 63", "s_lshl_b32 s53, s53, 16",
                    "s_mov_b64 exec, 0xffff", f"buffer_load_dword v250, v19, s[{S_XM}:{S_XM+3}], s53 offen", "s_mov_b64 exec, -1"]
        for i, g in enumerate(xdma_lines(1 - buf, 50)):
            fill[7 + 2 * i] = g
        proj_segment(a, buf, ACC[buf], not isV, fill)
        a(f"s_add_u32 s{S_SEG}, s{S_SEG}, 1")
    a(f"s_and_b32 s53, s{S_CU}, 31\ns_lshl_b32 s53, s53, 4\nv_add_u32 v19, s53, v{V_L}\nv_lshlrev_b32 v19, 7, v19")
    pinit(a)
    a(f"s_mov_b32 s{S_SEG}, 1")
    sync(V_T0)
    tsx(a, ts, 3)
    near_base(a, S_OB, S_CU, 18, WS_VT if isV else WS_KX)
    a(f"""
    s_xor_b32 s{S_T1}, s98, 1
    s_lshl_b32 s{S_T1}, s{S_T1}, 13
    s_lshl_b32 s{S_FL}, s{S_H}, 7
    s_add_u32 s{S_FL}, s{S_FL}, s{S_T1}
    s_lshl_b32 s{S_T1}, s{S_WAVE}, 2
    s_add_u32 s{S_FL}, s{S_FL}, s{S_T1}
    s_add_u32 s{S_FL}, s{S_FL}, {WS_F + (F_V if isV else F_K)}
    v_mov_b32 v16, 0
    """)

    a("\n".join(pack_lines(ACC[0], isV) + store_lines() + ["s_waitcnt vmcnt(0)"] + flag_lines()))
    a.label(f"{name}_loop")
    seg(1, False)
    a(f"s_cmp_eq_u32 s{S_SEG}, 64\ns_cbranch_scc1 {name}_fin")
    seg(0, False)
    a(f"s_branch {name}_loop")
    a.label(f"{name}_fin")
    a.nops(12)
    a("\n".join(pack_lines(ACC[1], isV) + store_lines() + ["s_waitcnt vmcnt(0)"] + flag_lines()))
    pdump(a)
    a("s_waitcnt vmcnt(0)\ns_barrier")


def qx_role(a: Asm, name, ts, sync):
    sync(V_T0)
    proj_setup(a, KA_WQ, True)
    tsx(a, ts, 3)
    L_Q, L_KV, L_KM = 131072, 139264, 155648
    S_NT, S_EH, S_C, S_KVN, S_KMN = 52, 53, 54, 55, 56
    S_KB, S_MB, S_LK, S_LM = 58, 59, 60, 61
    S_MK = 12
    V_G, V_M, V_OKM, V_OVM, V_OO, V_NEG, V_CM, V_OF, V_OF2, V_QW, V_QR = 92, 93, 94, 95, 96, 97, 98, 99, 100, 101, 102
    ONE, LS = 104, 108
    V_KR, V_VR = 103, 240
    KX, VT, KM, VM, Q, S, P, O, TMP = 112, 144, 160, 176, 184, 200, 212, 220, 236
    a(f"""
    v_lshrrev_b32 v{V_G}, 4, v{V_L}
    v_and_b32 v{V_M}, 15, v{V_L}
    s_and_b32 s{S_NT}, s{S_WAVE}, 1
    s_lshr_b32 s{S_EH}, s{S_WAVE}, 1
    s_mov_b32 s{S_C}, 0x3e0293ee
    s_mov_b32 s{S_KVN}, 0
    s_mov_b32 s{S_KMN}, 0
    v_mov_b32 v{V_NEG}, 0xff7fffff
    v_and_b32 v{V_T0}, 7, v{V_M}
    v_lshlrev_b32 v{V_OKM}, 7, v{V_G}
    v_lshl_add_u32 v{V_OKM}, v{V_T0}, 4, v{V_OKM}
    v_and_b32 v{V_T0}, 31, v{V_L}
    v_lshlrev_b32 v{V_OVM}, 3, v{V_T0}
    v_lshrrev_b32 v{V_T0}, 1, v{V_G}
    v_lshlrev_b32 v{V_OO}, 10, v{V_T0}
    v_and_b32 v{V_T0}, 1, v{V_G}
    v_lshl_add_u32 v{V_OO}, v{V_T0}, 9, v{V_OO}
    v_lshl_add_u32 v{V_OO}, v{V_M}, 4, v{V_OO}
    s_lshl_b32 s{S_T0}, s{S_H}, 13
    s_lshl_b32 s{S_T1}, s{S_EH}, 12
    s_add_u32 s{S_T0}, s{S_T0}, s{S_T1}
    s_lshl_b32 s{S_T1}, s{S_NT}, 8
    s_add_u32 s{S_T0}, s{S_T0}, s{S_T1}
    s_add_u32 s{S_T0}, s{S_T0}, {WS_O}
    v_add_u32 v{V_OO}, s{S_T0}, v{V_OO}
    s_lshl_b32 s{S_T0}, s{S_NT}, 4
    v_add_u32 v{V_CM}, s{S_T0}, v{V_M}
    v_lshlrev_b32 v{V_T0}, 2, v{V_G}
    v_sub_u32 v{V_CM}, v{V_CM}, v{V_T0}
    s_mov_b32 s28, 0
    s_mov_b32 s29, -1
    s_xor_b32 s{S_T1}, s98, 1
    s_lshl_b32 s{S_T1}, s{S_T1}, 13
    s_lshl_b32 s{S_T0}, s{S_H}, 7
    s_add_u32 s{S_T0}, s{S_T0}, s{S_T1}
    s_add_u32 s{S_T0}, s{S_T0}, {WS_F}
    v_and_b32 v{V_T0}, 3, v{V_L}
    v_bfe_u32 v{V_T1}, v{V_L}, 2, 1
    v_lshlrev_b32 v{V_OF}, 12, v{V_T1}
    v_lshl_add_u32 v{V_OF}, v{V_T0}, 2, v{V_OF}
    v_add_u32 v{V_OF}, s{S_T0}, v{V_OF}
    s_xor_b32 s62, s98, 1
    s_lshl_b32 s62, s62, 13
    s_lshr_b32 s{S_T1}, s{S_CU}, 6
    s_lshl_b32 s{S_T1}, s{S_T1}, 14
    s_add_u32 s62, s62, s{S_T1}
    s_and_b32 s{S_T1}, s{S_CU}, 63
    s_lshl_b32 s{S_T1}, s{S_T1}, 7
    s_add_u32 s62, s62, s{S_T1}
    s_add_u32 s62, s62, {WS_F + F_KVM}
    s_lshl_b32 s{S_FL}, s{S_CU}, 2
    s_add_u32 s{S_FL}, s{S_FL}, {WS_F + F_O}
    s_lshl_b32 s{S_T0}, s{S_WAVE}, 11
    s_add_u32 s{S_T0}, s{S_T0}, {L_Q}
    v_add_u32 v{V_QW}, s{S_T0}, v{V_ST}
    s_lshl_b32 s{S_T0}, s{S_NT}, 10
    s_add_u32 s{S_T0}, s{S_T0}, {L_Q}
    v_add_u32 v{V_QR}, s{S_T0}, v{V_LL}
    v_mov_b32 v16, 0
    s_mov_b32 s50, 0
    """)
    for i in range(4):
        a(f"v_mov_b32 v{ONE+i}, 0x3f803f80")
    for t in range(2):
        for r in range(4):
            a(f"v_cmp_gt_i32 s[{S_MK+8*t+2*r}:{S_MK+8*t+2*r+1}], {16*t+r}, v{V_CM}")
    near_base(a, S_KB, S_CU, 18, WS_KX)
    near_base(a, S_MB, S_CU, 17, WS_KVM)
    a(f"""
    s_lshl_b32 s{S_LK}, s{S_WAVE}, 11
    s_add_u32 s{S_LK}, s{S_LK}, {L_KV}
    s_lshl_b32 s{S_LM}, s{S_WAVE}, 10
    s_add_u32 s{S_LM}, s{S_LM}, {L_KM}
    v_add_u32 v{V_OKM}, {L_KM}, v{V_OKM}
    s_lshl_b32 s{S_T0}, s{S_EH}, 11
    s_add_u32 s{S_T0}, s{S_T0}, {L_KM + 512}
    v_add_u32 v{V_OVM}, s{S_T0}, v{V_OVM}
    v_add_u32 v{V_KR}, {L_KV}, v{V_LL}
    s_lshl_b32 s{S_T0}, s{S_EH}, 12
    s_add_u32 s{S_T0}, s{S_T0}, {L_KV + 8192}
    v_add_u32 v{V_VR}, s{S_T0}, v{V_LL}
    """)
    a("s_waitcnt vmcnt(0)")

    def wait_flag(tag, known, voff, sleep):
        a(f"""
        s_cmp_gt_i32 s{known}, s{S_SEG}
        s_cbranch_scc1 {name}_{tag}k
{name}_{tag}w:
        """)
        wdog(a, name)
        a(f"""
        buffer_load_dword v{V_T0}, v{voff}, {SRD}, 0 offen sc1
        s_waitcnt vmcnt(0)
        v_min_i32_dpp v{V_T0}, v{V_T0}, v{V_T0} quad_perm:[1,0,3,2] row_mask:0xf bank_mask:0xf
        s_nop 1
        v_min_i32_dpp v{V_T0}, v{V_T0}, v{V_T0} quad_perm:[2,3,0,1] row_mask:0xf bank_mask:0xf
        s_nop 1
        v_min_i32_dpp v{V_T0}, v{V_T0}, v{V_T0} row_ror:4 row_mask:0xf bank_mask:0xf
        s_nop 0
        v_readfirstlane_b32 s{known}, v{V_T0}
        s_cmp_gt_i32 s{known}, s{S_SEG}
        s_cbranch_scc1 {name}_{tag}k
        s_sleep {sleep}
        s_branch {name}_{tag}w
{name}_{tag}k:
        """)

    def flag_lines():
        return [f"v_mov_b32 v17, s{S_SEG}", "s_mov_b64 exec, 1", f"buffer_store_dword v17, v16, {SRD}, s{S_FL} offen sc1", "s_mov_b64 exec, -1"]

    def kmpoll_lines():
        if E("APOLL", 1):
            return [f"v_mov_b32 v{V_OF2}, 0", "s_mov_b64 exec, 1", f"buffer_atomic_add v{V_OF2}, v16, {SRD}, s62 offen sc0 sc1", "s_mov_b64 exec, -1"]
        return [f"buffer_load_dword v{V_OF2}, v16, {SRD}, s62 offen sc1"]

    def km_lines():
        return [f"s_mov_b32 m0, s{S_LM}", "s_nop 0", f"buffer_load_dwordx4 v{V_LL}, {SRD}, s68 offen sc1 lds"]

    def seg(buf):
        a("s_barrier")
        a("\n".join(pst(0)))
        wait_flag(f"kv{buf}", S_KVN, V_OF, 4)
        sal = f"""s_add_u32 s51, s{S_CU}, s{S_SEG}
        s_bfe_u32 s57, s51, 0x40002
        s_lshl_b32 s57, s57, 14
        s_and_b32 s66, s51, 3
        s_lshl_b32 s66, s66, 11
        s_add_u32 s66, s66, s57
        s_add_u32 s66, s66, s{S_KB}
        s_add_u32 s67, s66, {WS_VT}
        s_bfe_u32 s57, s51, 0x30003
        s_lshl_b32 s57, s57, 14
        s_and_b32 s68, s51, 7
        s_lshl_b32 s68, s68, 10
        s_add_u32 s68, s68, s57
        s_add_u32 s68, s68, s{S_MB}
        s_add_u32 s50, s{S_SEG}, 2
        s_min_u32 s50, s50, 63
        s_lshl_b32 s50, s50, 16
        s_cmp_gt_i32 s{S_KMN}, s{S_SEG}
        s_cselect_b32 s30, 1, 0""".split("\n")
        fill = {-1: sal}
        for i in range(4):
            fill[2 * i] = [f"s_add_u32 m0, s{S_LK}, {8192 * (i >> 1)}", "s_nop 0",
                           f"buffer_load_dwordx4 v{V_LL}, {SRD}, s{66 + (i >> 1)} offen offset:{1024 * (i & 1)} sc1 lds"]
        fill[8] = ["s_cmp_eq_u32 s30, 1", f"s_cbranch_scc0 {name}_ke{buf}"] + km_lines() + [f"{name}_ke{buf}:"]
        for i, g in enumerate(xdma_lines(1 - (buf & 1), 50)):
            fill[10 + 2 * i] = g
        a("\n".join(pst(1)))
        fill[27] = ["s_waitcnt vmcnt(13)"] + flag_lines()
        fill[29] = kmpoll_lines()
        pk = pack_lines(ACC[1], False)
        for i in range(4): fill[43 + 2 * i] = pk[2*i:2*i+2]
        fill[54] = ["s_waitcnt vmcnt(6)", f"v_readfirstlane_b32 s{S_KMN}, v{V_OF2}", "s_cmp_eq_u32 s30, 1", f"s_cbranch_scc1 {name}_kf{buf}",
                    f"s_cmp_gt_i32 s{S_KMN}, s{S_SEG}", f"s_cbranch_scc0 {name}_kf{buf}", "s_mov_b32 s30, 1"] + km_lines() + [f"{name}_kf{buf}:"]
        fill[61] = [f"ds_write_b128 v{V_QW}, v[{EP}:{EP+3}]", f"ds_write_b128 v{V_QW}, v[{EP+4}:{EP+7}] offset:{GR2}"]
        if buf < 2:
            proj_segment(a, buf, ACC[0], True, fill, stg=ACC[1])
        else:
            for i in (-1, 0, 2, 4, 6, 8, 43, 45, 47, 49, 61):
                a("\n".join(fill[i]))
            a("\n".join(["s_waitcnt vmcnt(4)"] + flag_lines()))
        a("\n".join(pst(2)))
        a(f"s_cmp_eq_u32 s30, 1\ns_cbranch_scc1 {name}_kl{buf}")
        a.label(f"{name}_kw{buf}")
        wdog(a, name)
        a("\n".join(kmpoll_lines()))
        a(f"""
        s_waitcnt vmcnt(0)
        v_readfirstlane_b32 s{S_KMN}, v{V_OF2}
        s_cmp_gt_i32 s{S_KMN}, s{S_SEG}
        s_cbranch_scc0 {name}_kw{buf}
        """)
        a("\n".join(km_lines()))
        a.label(f"{name}_kl{buf}")
        a("\n".join(pst(4)))
        a(f"""
        s_waitcnt lgkmcnt(0) vmcnt(0)
        s_barrier
        """)
        a("\n".join(pst(5)))
        for j in range(4):
            a(f"ds_read_b128 v[{Q+4*j}:{Q+4*j+3}], v{V_QR} offset:{2048*j}")
            for t in range(2):
                a(f"ds_read_b128 v[{KX+16*t+4*j}:{KX+16*t+4*j+3}], v{V_KR} offset:{2048*j + 1024*t}")
        for j in range(4):
            a(f"s_waitcnt lgkmcnt({9 - 2*j})")
            for t in range(2):
                c = "0" if j == 0 else f"v[{S+4*t}:{S+4*t+3}]"
                a(f"v_mfma_f32_16x16x32_bf16 v[{S+4*t}:{S+4*t+3}], v[{KX+16*t+4*j}:{KX+16*t+4*j+3}], v[{Q+4*j}:{Q+4*j+3}], {c}")
            a(f"ds_read_b128 v[{KM+4*j}:{KM+4*j+3}], v{V_OKM} offset:{1024*j}")
        for j in range(4):
            a(f"s_waitcnt lgkmcnt({3 + j})")
            c = "0" if j == 0 else f"v[{S+8}:{S+11}]"
            a(f"v_mfma_f32_16x16x32_bf16 v[{S+8}:{S+11}], v[{KM+4*j}:{KM+4*j+3}], v[{Q+4*j}:{Q+4*j+3}], {c}")
            a(f"ds_read_b128 v[{VT+4*j}:{VT+4*j+3}], v{V_VR} offset:{1024*j}")
            a(f"ds_read_b64 v[{VM+2*j}:{VM+2*j+1}], v{V_OVM} offset:{1024*(j >> 1) + 256*(j & 1)}")
        a.nops(4)
        for i in range(8):
            a(f"v_cndmask_b32 v{S+i}, v{S+i}, v{V_NEG}, s[{S_MK+2*i}:{S_MK+2*i+1}]")
        for i in range(4):
            a(f"v_cndmask_b32 v{S+8+i}, v{S+8+i}, v{V_NEG}, s[28:29]")
        MX, TM, SM = TMP, TMP + 1, TMP + 2
        a(f"v_max3_f32 v{MX}, v{S}, v{S+1}, v{S+2}")
        for i in range(3, 11, 2):
            a(f"v_max3_f32 v{MX}, v{MX}, v{S+i}, v{S+i+1}")
        a(f"""
        v_max_f32 v{TM}, v{MX}, v{S+11}
        v_max_f32 v{MX}, v{MX}, v{S+11}
        s_nop 1
        v_permlane16_swap_b32 v{MX}, v{TM}
        s_nop 0
        v_max_f32 v{SM}, v{MX}, v{TM}
        v_max_f32 v{SM+1}, v{MX}, v{TM}
        s_nop 1
        v_permlane32_swap_b32 v{SM}, v{SM+1}
        s_nop 0
        v_max_f32 v{MX}, v{SM}, v{SM+1}
        v_mul_f32 v{MX}, s{S_C}, v{MX}
        """)
        for i in range(0, 12, 2):
            a(f"v_pk_fma_f32 v[{S+i}:{S+i+1}], v[{S+i}:{S+i+1}], s[{S_C}:{S_C+1}], v[{MX}:{MX+1}] op_sel_hi:[1,0,0] neg_lo:[0,0,1] neg_hi:[0,0,1]")
        for i in range(12):
            a(f"v_exp_f32 v{S+i}, v{S+i}")
        a.nops(1)
        for i in range(6):
            a(f"v_cvt_pk_bf16_f32 v{P+i}, v{S+2*i}, v{S+2*i+1}")
        a("s_waitcnt lgkmcnt(0)\ns_nop 0")
        a(f"v_mfma_f32_16x16x32_bf16 v[{LS}:{LS+3}], v[{ONE}:{ONE+3}], v[{P}:{P+3}], 0")
        for T in range(4):
            a(f"v_mfma_f32_16x16x32_bf16 v[{O+4*T}:{O+4*T+3}], v[{VT+4*T}:{VT+4*T+3}], v[{P}:{P+3}], 0")
        a(f"v_mfma_f32_16x16x16_bf16 v[{LS}:{LS+3}], v[{ONE}:{ONE+1}], v[{P+4}:{P+5}], v[{LS}:{LS+3}]")
        for T in range(4):
            a(f"v_mfma_f32_16x16x16_bf16 v[{O+4*T}:{O+4*T+3}], v[{VM+2*T}:{VM+2*T+1}], v[{P+4}:{P+5}], v[{O+4*T}:{O+4*T+3}]")
        a(f"""
        s_lshl_b32 s51, s{S_SEG}, 18
        s_nop 2
        v_rcp_f32 v{SM}, v{LS}
        v_rcp_f32 v{SM+1}, v{LS+1}
        s_nop 1
        """)
        for i in range(0, 16, 2):
            a(f"v_pk_mul_f32 v[{O+i}:{O+i+1}], v[{O+i}:{O+i+1}], v[{SM}:{SM+1}]")
        for i in range(8):
            a(f"v_cvt_pk_bf16_f32 v{S+i}, v{O+2*i}, v{O+2*i+1}")
        a(f"""
        buffer_store_dwordx4 v[{S}:{S+3}], v{V_OO}, {SRD}, s51 offen sc1
        buffer_store_dwordx4 v[{S+4}:{S+7}], v{V_OO}, {SRD}, s51 offen offset:2048 sc1
        s_add_u32 s{S_SEG}, s{S_SEG}, 1
        """)
        a("\n".join(pst(6)))
    pinit(a)
    for i in range(16):
        a(f"v_mov_b32 v{ACC[1]+i}, v{ACC[0]+i}")
    a.label(f"{name}_loop")
    seg(1)
    a(f"s_cmp_eq_u32 s{S_SEG}, 63\ns_cbranch_scc1 {name}_last")
    seg(0)
    a(f"s_branch {name}_loop")
    a.label(f"{name}_last")
    seg(2)
    a("\n".join(["s_waitcnt vmcnt(0)"] + flag_lines()))
    pdump(a)
    a.label(f"{name}_quit")
    ts(4)
    a("s_endpgm")


def out_role(a: Asm, name, ts):
    common(a, KA_WO, KA_OUT, 8 * MB)
    S_ON, S_PAR, S_PRE, S_ROT, S_PEND, S_KH, S_C = 52, 53, 55, 56, 57, 58, 59
    V_OL, V_OF, V_LW, V_LRK, V_LRS, V_OS, V_SND, V_RCV = 6, 7, 8, 9, 10, 11, 12, 13
    ACCO, RD, KEEP, INB, F0, NF, STG = 20, 52, 84, 88, 96, 32, 224
    HS, QS, US, WSs, PS = 544, 1088, 4352, 8704, 34816
    a(f"""
    s_and_b32 s{S_KH}, s{S_H}, 1
    s_lshr_b32 s{S_C}, s{S_H}, 1
    s_lshl_b32 s{S_T0}, s{S_KH}, 22
    s_lshl_b32 s{S_T1}, s{S_WAVE}, 20
    s_add_u32 s{S_T0}, s{S_T0}, s{S_T1}
    s_lshl_b32 s{S_T1}, s{S_C}, 7
    s_add_u32 s{S_OB}, s{S_T0}, s{S_T1}
    s_and_b32 s{S_ROT}, s{S_C}, {7 if E("ROT8", 1) else 3}
    s_lshl_b32 s{S_ROT}, s{S_ROT}, {6 if E("ROT8", 1) else 7}
    """)
    load_weights(a, 11, S_OB, lane32(4, rl=7), lambda f, jj: (128 * (f >> 4) + 32 * ((f >> 2) & 3) + 8 * ((f >> 1) & 1) + 16 * jj) * 128 + 64 * (f & 1), rot=S_ROT, cl=3)
    a(f"""
    s_lshl_b32 s{S_ROT}, s{S_ROT}, 6
    s_lshl_b32 s{S_T0}, s{S_KH}, 17
    s_lshl_b32 s{S_T1}, s{S_WAVE}, 15
    s_add_u32 s{S_T0}, s{S_T0}, s{S_T1}
    s_add_u32 s{S_T0}, s{S_T0}, {WS_O}
    v_add_u32 v{V_OL}, s{S_T0}, v{V_LL}
    v_and_b32 v{V_T0}, 15, v{V_L}
    v_lshlrev_b32 v{V_OF}, 2, v{V_T0}
    s_lshl_b32 s{S_T0}, s{S_KH}, 8
    s_lshl_b32 s{S_T1}, s{S_WAVE}, 6
    s_add_u32 s{S_T0}, s{S_T0}, s{S_T1}
    s_add_u32 s{S_T0}, s{S_T0}, {WS_F + F_O}
    v_add_u32 v{V_OF}, s{S_T0}, v{V_OF}
    s_mul_i32 s{S_T0}, s{S_WAVE}, {WSs}
    v_lshrrev_b32 v{V_T0}, 5, v{V_L}
    v_lshl_add_u32 v{V_LW}, v{V_T0}, 5, v{V_LL}
    v_add_u32 v{V_LW}, s{S_T0}, v{V_LW}
    v_and_b32 v{V_T0}, 7, v{V_L}
    v_mul_u32_u24 v{V_LRK}, {HS}, v{V_T0}
    v_lshrrev_b32 v{V_T1}, 3, v{V_L}
    v_lshl_add_u32 v{V_LRK}, v{V_T1}, 4, v{V_LRK}
    s_lshl_b32 s{S_T0}, s{S_WAVE}, 7
    v_add_u32 v{V_LRK}, s{S_T0}, v{V_LRK}
    s_mul_i32 s{S_T0}, s{S_KH}, {US}
    s_sub_u32 s{S_T1}, {US}, s{S_T0}
    v_add_u32 v{V_LRS}, s{S_T1}, v{V_LRK}
    v_add_u32 v{V_LRK}, s{S_T0}, v{V_LRK}
    s_lshl_b32 s{S_T0}, s{S_WAVE}, 15
    s_lshl_b32 s{S_T1}, s{S_H}, 6
    s_add_u32 s{S_T0}, s{S_T0}, s{S_T1}
    v_lshlrev_b32 v{V_OS}, 12, v{V_T1}
    v_and_b32 v{V_T0}, 7, v{V_L}
    v_lshl_add_u32 v{V_OS}, v{V_T0}, 3, v{V_OS}
    v_add_u32 v{V_OS}, s{S_T0}, v{V_OS}
    s_lshl_b32 s{S_T0}, s{S_H}, 13
    s_lshl_b32 s{S_T1}, s{S_WAVE}, 10
    s_add_u32 s{S_T0}, s{S_T0}, s{S_T1}
    s_add_u32 s{S_T0}, s{S_T0}, {WS_OI}
    s_add_u32 s{S_T0}, s{S_T0}, s{S_OI}
    v_add_u32 v{V_RCV}, s{S_T0}, v{V_LL}
    v_xor_b32 v{V_SND}, 8192, v{V_RCV}
    s_mov_b32 s{S_SEG}, s{S_O0}
    s_mov_b32 s{S_ON}, 0
    s_mov_b32 s{S_PAR}, 0
    s_mov_b32 s{S_PEND}, 0
    """)

    def ld(k, sbase):
        f = F0 + 4 * k
        if k % 4 == 0:
            a(f"s_add_u32 s51, s{S_ROT}, {1024 * k}\ns_and_b32 s51, s51, 0x7fff\ns_add_u32 s51, s51, s{sbase}")
        a(f"buffer_load_dwordx4 v[{f}:{f+3}], v{V_OL}, {SRD}, s51 offen offset:{1024*(k & 3)} sc1")

    def mf(k):
        f = F0 + 4 * k
        for u in range(2):
            d = ACCO + 16 * u
            c = "0" if k == 0 else f"v[{d}:{d+15}]"
            if k == NF - 1: d = STG + 16 * u
            a(f"v_mfma_f32_32x32x16_bf16 v[{d}:{d+15}], a[{8*k+4*u}:{8*k+4*u+3}], v[{f}:{f+3}], {c}")

    def inb(sreg):
        a(f"s_and_b32 s60, s{sreg}, 1\ns_lshl_b32 s60, s60, 12")
        a(f"buffer_load_dwordx4 v[{INB}:{INB+3}], v{V_RCV}, {SRD}, s60 offen sc1")

    def fin(tag, sreg, cnt):
        a(f"s_bfe_u32 s61, s{sreg}, 0x10001\ns_xor_b32 s61, s61, s{S_OT}\ns_waitcnt vmcnt({cnt})")
        a.label(f"{name}_{tag}c")
        a(f"""
        v_and_b32 v14, 1, v{INB}
        v_cmp_ne_u32 vcc, s61, v14
        s_cbranch_vccz {name}_{tag}k
        """)
        wdog(a, name)
        inb(sreg)
        a(f"s_waitcnt vmcnt(0)\ns_branch {name}_{tag}c")
        a.label(f"{name}_{tag}k")
        a(f"""
        v_pk_add_f32 v[{INB}:{INB+1}], v[{INB}:{INB+1}], v[{KEEP}:{KEEP+1}]
        v_pk_add_f32 v[{INB+2}:{INB+3}], v[{INB+2}:{INB+3}], v[{KEEP+2}:{KEEP+3}]
        s_lshl_b32 s60, s{sreg}, 17
        v_cvt_pk_bf16_f32 v{INB+4}, v{INB}, v{INB+1}
        v_cvt_pk_bf16_f32 v{INB+5}, v{INB+2}, v{INB+3}
        buffer_store_dwordx2 v[{INB+4}:{INB+5}], v{V_OS}, s[{S_XM}:{S_XM+3}], s60 offen
        """)

    tsx(a, ts, 3)
    pinit(a)
    a.label(f"{name}_cold")
    a(f"s_cmp_gt_i32 s{S_ON}, s{S_SEG}\ns_cbranch_scc1 {name}_fk")
    a.label(f"{name}_fw")
    wdog(a, name)
    a(f"""
    buffer_load_dword v{V_T0}, v{V_OF}, {SRD}, 0 offen sc1
    s_waitcnt vmcnt(0)
    v_min_i32_dpp v{V_T0}, v{V_T0}, v{V_T0} quad_perm:[1,0,3,2] row_mask:0xf bank_mask:0xf
    s_nop 1
    v_min_i32_dpp v{V_T0}, v{V_T0}, v{V_T0} quad_perm:[2,3,0,1] row_mask:0xf bank_mask:0xf
    s_nop 1
    v_min_i32_dpp v{V_T0}, v{V_T0}, v{V_T0} row_ror:4 row_mask:0xf bank_mask:0xf
    s_nop 1
    v_min_i32_dpp v{V_T0}, v{V_T0}, v{V_T0} row_ror:8 row_mask:0xf bank_mask:0xf
    s_nop 0
    v_readfirstlane_b32 s{S_ON}, v{V_T0}
    s_min_i32 s{S_ON}, s{S_ON}, s{S_O1}
    s_cmp_gt_i32 s{S_ON}, s{S_SEG}
    s_cbranch_scc1 {name}_fk
    s_sleep 2
    s_add_u32 s{S_T0}, s{S_ON}, 2
    s_cmp_gt_i32 s{S_T0}, s{S_SEG}
    s_cbranch_scc1 {name}_fw
    s_sleep 48
    s_branch {name}_fw
    """)
    a.label(f"{name}_fk")
    a(f"s_lshl_b32 s50, s{S_SEG}, 18")
    for k in range(NF):
        ld(k, 50)
    a("\n".join(pst(0)))
    if E("KPROF", 0): a("s_add_u32 s39, s39, 64")

    uid = [0]
    def epi_groups(sreg):
        g = [[f"v_add_u32 v{V_T0}, s{S_PAR}, v{V_LW}", f"v_add_u32 v{V_T1}, s{S_PAR}, v{V_LRK}", f"v_add_u32 v{V_T2}, s{S_PAR}, v{V_LRS}"]]
        for q in range(0, 8, 2):
            g.append([f"ds_write_b128 v{V_T0}, v[{STG+4*(q+i)}:{STG+4*(q+i)+3}] offset:{QS*(q+i)}" for i in range(2)])
        g.append([])
        g.append(["s_waitcnt lgkmcnt(0)", "s_barrier"] + [f"ds_read_b128 v[{RD+4*w}:{RD+4*w+3}], v{V_T2} offset:{WSs*w}" for w in range(4)])
        g.append([f"ds_read_b128 v[{RD+16+4*w}:{RD+16+4*w+3}], v{V_T1} offset:{WSs*w}" for w in range(4)] +
                 [f"s_sub_u32 s{S_PAR}, {PS}, s{S_PAR}", f"s_bfe_u32 s61, s{sreg}, 0x10001", f"s_xor_b32 s61, s61, s{S_OT}", f"s_and_b32 s60, s{sreg}, 1", "s_lshl_b32 s60, s60, 12"])
        g.append([])
        for h, dst in ((0, RD), (16, KEEP)):
            b = RD + h
            l = [f"s_waitcnt lgkmcnt({4 if h == 0 else 0})"]
            for i in range(4):
                l.append(f"v_add_f32 v{b+i}, v{b+i}, v{b+4+i}")
                l.append(f"v_add_f32 v{b+8+i}, v{b+8+i}, v{b+12+i}")
            g.append(l)
            l = [f"v_add_f32 v{dst+i}, v{b+i}, v{b+8+i}" for i in range(4)]
            if h == 0:
                uid[0] += 1
                l += [f"v_and_or_b32 v{RD}, v{RD}, -2, s61", "s_cmp_eq_u32 s95, 0", f"s_cbranch_scc1 {name}_sa{uid[0]}",
                      f"buffer_store_dwordx4 v[{RD}:{RD+3}], v{V_SND}, {SRD}, s60 offen sc1", f"s_branch {name}_sb{uid[0]}", f"{name}_sa{uid[0]}:",
                      f"buffer_store_dwordx4 v[{RD}:{RD+3}], v{V_SND}, {SRD}, s60 offen", f"{name}_sb{uid[0]}:"]
            g.append(l)
        return g

    def loop(pre, epi):
        g = epi_groups(62) if epi else []
        for k in range(NF):
            a(f"s_waitcnt vmcnt({NF-1 if pre else NF-1-k})")
            mf(k)
            if pre: ld(k, 50)
            if 1 <= k <= len(g): a("\n".join(g[k-1]))
            if epi and k == 27: inb(62)
            if not pre and k == 20: a(f"buffer_load_dword v15, v{V_OF}, {SRD}, 0 offen sc1")
        if epi: fin(f"f{pre}", 62, 4 if pre else 0)

    for epi in range(2):
        a.label(f"{name}_w{epi}")
        a(f"""
        s_add_u32 s54, s{S_SEG}, 1
        s_sub_u32 s62, s{S_SEG}, 1
        s_lshl_b32 s50, s54, 18
        s_cmp_gt_i32 s{S_ON}, s54
        s_cbranch_scc0 {name}_n{epi}
        """)
        loop(1, epi)
        a("\n".join(pst(1)))
        a(f"s_add_u32 s{S_SEG}, s{S_SEG}, 1\ns_branch {name}_w1")
        a.label(f"{name}_n{epi}")
        loop(0, epi)
        a("\n".join(pst(2)))
        if epi == 0: a(f"s_branch {name}_imm")
    a.label(f"{name}_imm")
    a(f"""
    s_waitcnt vmcnt(1)
    v_min_i32_dpp v15, v15, v15 quad_perm:[1,0,3,2] row_mask:0xf bank_mask:0xf
    s_nop 1
    v_min_i32_dpp v15, v15, v15 quad_perm:[2,3,0,1] row_mask:0xf bank_mask:0xf
    s_nop 1
    v_min_i32_dpp v15, v15, v15 row_ror:4 row_mask:0xf bank_mask:0xf
    s_nop 1
    v_min_i32_dpp v15, v15, v15 row_ror:8 row_mask:0xf bank_mask:0xf
    s_nop 0
    v_readfirstlane_b32 s{S_ON}, v15
    s_min_i32 s{S_ON}, s{S_ON}, s{S_O1}
    s_cmp_gt_i32 s{S_ON}, s54
    s_cbranch_scc0 {name}_im2
    """)
    for k in range(NF):
        ld(k, 50)
    a(f"s_add_u32 s{S_SEG}, s{S_SEG}, 1\ns_branch {name}_w1")
    a.label(f"{name}_im2")
    for g in epi_groups(S_SEG):
        a("\n".join(g))
    inb(S_SEG)
    fin("f2", S_SEG, 0)
    a("\n".join(pst(4)))
    a(f"""
    s_add_u32 s{S_SEG}, s{S_SEG}, 1
    s_cmp_lt_u32 s{S_SEG}, s{S_O1}
    s_cbranch_scc1 {name}_cold
    """)
    pdump(a)
    a.label(f"{name}_quit")
    ts(4)
    a("s_endpgm")
```

```python
from gen_common import *

S_X, S_T = 30, 31
S_WSD, S_DBG = 84, 72
E = lambda k, d: int(os.environ.get(k, d))


D_VOTE, D_PD, D_SLOW, D_PD2 = 128, 160, 192, 224


def start_code(a: Asm, name):
    W, D = S_WSD, S_DBG
    a(f"""
    s_load_dwordx2 s[{W}:{W+1}], s[0:1], {KA_WS}
    s_load_dwordx2 s[{D}:{D+1}], s[0:1], {KA_DBG}
    s_getreg_b32 s90, hwreg(HW_REG_XCC_ID)
    s_and_b32 s90, s90, 7
    v_mov_b32 v1, 0
    v_mov_b32 v2, 1
    s_lshl_b32 s91, s90, 4
    s_mov_b32 s95, 0
    s_mov_b32 s99, 0
    s_waitcnt lgkmcnt(0)
    s_mov_b32 s{W+2}, {WS_BYTES}
    s_mov_b32 s{W+3}, 0x00020000
    s_mov_b32 s{D+2}, 256
    s_mov_b32 s{D+3}, 0x00020000
    v_cmp_eq_u32 vcc, 0, v0
    s_and_saveexec_b64 s[88:89], vcc
    s_cbranch_execz {name}_tkd
    s_lshl_b32 s92, s2, 13
    s_add_u32 s92, s92, {WS_CAL}
    buffer_atomic_add v2, v1, s[{D}:{D+3}], s91 offen sc0
    buffer_load_dword v251, v1, s[{W}:{W+3}], s92 offen offset:2048 sc1
    s_waitcnt vmcnt(1)
    ds_write_b32 v1, v2
    s_waitcnt lgkmcnt(0)
{name}_tkd:
    s_mov_b64 exec, s[88:89]
    s_barrier
    ds_read_b32 v2, v1
    s_waitcnt lgkmcnt(0)
    v_readfirstlane_b32 s96, v2
    s_barrier
    """)


def sync_code(a: Asm, kname, tag, vt, force_slow=False):
    D = S_DBG
    n = f"{kname}_sy{tag}"
    a(f"""
    v_and_b32 v{vt+1}, 15, v0
    v_lshlrev_b32 v{vt+1}, 4, v{vt+1}
    s_branch {n}
{n}w:
    s_sleep 4
{n}:
    """)
    wd_code(a, n)
    a(f"""
    buffer_load_dword v{vt}, v{vt+1}, s[{D}:{D+3}], 0 offen sc1
    s_waitcnt vmcnt(0)
    s_cmp_eq_u32 s95, 1
    s_cbranch_scc0 {n}f
    v_readlane_b32 s76, v{vt}, {D_PD2 // 16}
    s_mov_b32 s98, 0
    s_cmp_eq_u32 s76, 64
    s_cbranch_scc0 {n}w
    s_branch {n}d
{n}f:
    s_mov_b32 s77, 0
    s_mov_b32 s78, 0
    """)
    for i in range(8):
        a(f"v_readlane_b32 s76, v{vt}, {i}\ns_add_u32 s77, s77, s76\ns_xor_b32 s76, s76, 32\ns_or_b32 s78, s78, s76")
    a(f"""
    s_cmp_eq_u32 s77, 256
    s_cbranch_scc0 {n}w
    {"s_mov_b32 s78, 1" if force_slow else ""}
    v_mov_b32 v252, v{vt}
    s_cmp_eq_u32 s78, 0
    s_cbranch_scc0 {kname}_slowent
    v_readlane_b32 s76, v{vt}, {D_PD // 16}
    v_readlane_b32 s77, v{vt}, {D_VOTE // 16}
    s_cmp_eq_u32 s76, 64
    s_cbranch_scc0 {n}w
    s_cmp_gt_u32 s77, 32
    s_cselect_b32 s98, 1, 0
    {f"s_xor_b32 s98, s98, {os.environ['PAR']}" if "PAR" in os.environ else ""}
{n}d:
    """)


def slow_entry(a: Asm, name):
    D = S_DBG
    a.label(f"{name}_slowent")
    a(f"""
    s_mov_b64 exec, -1
    s_waitcnt vmcnt(0) lgkmcnt(0)
    s_barrier
    s_mov_b32 s97, s96
    """)
    for i in range(7):
        a(f"v_readlane_b32 s76, v252, {i}\ns_cmp_gt_u32 s90, {i}\ns_cselect_b32 s76, s76, 0\ns_add_u32 s97, s97, s76")
    a(f"""
    v_mov_b32 v1, 0
    v_mov_b32 v2, 1
    v_cmp_eq_u32 vcc, 0, v0
    s_and_saveexec_b64 s[88:89], vcc
    s_cbranch_execz {name}_sb1
    buffer_atomic_add v2, v1, s[{D}:{D+3}], 0 offen offset:{D_SLOW} sc1
{name}_sb1:
    s_mov_b64 exec, s[88:89]
{name}_sb2:
    s_sleep 4
    """)
    wd_code(a, "slowbar")
    a(f"""
    buffer_load_dword v2, v1, s[{D}:{D+3}], 0 offen offset:{D_SLOW} sc1
    s_waitcnt vmcnt(0)
    v_cmp_ne_u32 vcc, 256, v2
    s_cbranch_vccnz {name}_sb2
    s_mov_b32 s95, 1
    """)


def init_cd(a: Asm, name, idx):
    W, D = S_WSD, S_DBG
    a(f"""
    v_mov_b32 v8, -1
    v_mov_b32 v9, -1
    v_mov_b32 v10, -1
    v_mov_b32 v11, -1
    v_lshlrev_b32 v1, 4, v0
    v_mov_b32 v2, 0
    v_cmp_gt_u32 vcc, 64, v0
    s_cbranch_vccz {name}_nv
    s_cmp_eq_u32 s95, 0
    s_cbranch_scc0 {name}_nv
    ; latency samples of both parities (order alternates with idx), sign vote
    s_lshr_b32 s60, s2, 1
    s_lshl_b32 s60, s60, 14
    s_and_b32 s61, s{idx}, 1
    s_lshl_b32 s66, s61, 13
    s_add_u32 s60, s60, s66
    s_and_b32 s66, s2, 1
    s_lshl_b32 s66, s66, 10
    s_add_u32 s60, s60, s66
    s_add_u32 s60, s60, {WS_CAL}
    s_mov_b32 s66, 0x7fffffff
    s_mov_b32 s67, 0x7fffffff
    s_mov_b64 exec, 0xff
    s_waitcnt vmcnt(0)
    """)
    for i in range(E("NSAMP", 4)):
        a(f"""
        s_memtime s[62:63]
        s_waitcnt lgkmcnt(0)
        buffer_store_dwordx4 v[8:11], v1, s[{W}:{W+3}], s60 offen offset:{256 * (i >> 1)} sc1
        s_waitcnt vmcnt(0)
        s_memtime s[64:65]
        s_xor_b32 s60, s60, 8192
        s_waitcnt lgkmcnt(0)
        s_sub_u32 s64, s64, s62
        s_min_u32 s{66 + (i & 1)}, s{66 + (i & 1)}, s64
        """)
    a(f"""
    s_cmp_lt_u32 s67, s66
    s_cselect_b32 s60, 1, 0
    s_xor_b32 s60, s60, s61          ; parity that is near this XCD
    s_lshr_b32 s61, s90, 2
    s_xor_b32 s60, s60, s61
    v_mov_b32 v3, s60
    s_mov_b64 exec, 1
    buffer_atomic_add v3, v2, s[{D}:{D+3}], 0 offen offset:{D_VOTE} sc1
    s_mov_b64 exec, -1
{name}_nv:
    s_barrier
    s_lshl_b32 s60, s{idx}, 12
    s_add_u32 s60, s60, {WS_H}
    """)
    for i in range(8):
        a(f"buffer_store_dwordx4 v[8:11], v1, s[{W}:{W+3}], s60 offen sc1")
        a(f"s_add_u32 s60, s60, {64 * 4096}")
    a(f"""
    s_lshr_b32 s62, s{idx}, 1
    s_and_b32 s63, s{idx}, 1
    s_add_u32 s63, s63, s62
    s_lshl_b32 s62, s62, 19
    s_and_b32 s64, s63, 14
    s_lshl_b32 s64, s64, 13
    s_add_u32 s62, s62, s64
    s_and_b32 s64, s63, 1
    s_lshl_b32 s64, s64, 12
    s_add_u32 s62, s62, s64
    s_add_u32 s62, s62, {WS_XU}
    {"" if E("TAG", 1) else f"buffer_store_dwordx4 v[8:11], v1, s[{W}:{W+3}], s62 offen sc1"}
    s_add_u32 s62, s62, 8192
    {"" if E("TAG", 1) else f"buffer_store_dwordx4 v[8:11], v1, s[{W}:{W+3}], s62 offen sc1"}
    s_cmp_lt_u32 s{idx}, 16
    s_cbranch_scc0 {name}_pz
    buffer_store_dwordx4 v[8:11], v1, s[{W}:{W+3}], s60 offen sc1
{name}_pz:
    s_waitcnt vmcnt(0)
    s_barrier
    v_mov_b32 v3, 1
    s_lshl_b32 s62, s95, 6
    v_cmp_eq_u32 vcc, 0, v0
    s_and_saveexec_b64 s[60:61], vcc
    s_cbranch_execz {name}_xps
    buffer_atomic_add v3, v2, s[{D}:{D+3}], s62 offen offset:{D_PD} sc1
{name}_xps:
    s_mov_b64 exec, s[60:61]
    """)


def rec_body(a: Asm, name, IS, sync, nsteps=64, prof=False, flags=True, ts=None):
    W = S_WSD
    SRD = f"s[{W}:{W+3}]"
    S_WQ, S_WK, S_WV, S_WO, S_M0 = 4, 8, 12, 16, 20
    S_WAVE, S_H, S_J, S_STEP, S_T0, S_T1 = 24, 25, 26, 27, 28, 29
    S_C = 32
    S_SL, S_SLO = 33, 34
    S_XS, S_XSO = 35, 36
    S_P = 37
    S_MN8, S_MMEM = 40, 42
    S_XBR, S_XBW = 44, 45
    S_KVN = 46
    S_KVB, S_FLB, S_CU, S_KXB, S_TAG = 79, 81, 82, 83, 47
    S_LATE = 36
    ONE, LS, ZER = 220, 224, 228
    S_MKM = 48
    V_L, V_G, V_M, V_T0, V_T1, V_IDX = 1, 2, 3, 4, 5, 6
    V_OMEM, V_OM0, V_OPUB, V_OSCM, V_OOP, V_OXW, V_OXR = 7, 8, 9, 10, 11, 12, 13
    V_LWQ, V_LWK, V_LRR, V_LL, V_LWO, V_LRO, V_LVW, V_LVR, V_OKV, V_NEG, V_OFL = 14, 15, 16, 17, 18, 19, 20, 21, 22, 23, 24
    V_POI = 28
    MA, AQ, AV = 32, 96, 112
    RP, R, KX, VTX, S, PL = 120, 152, 156, 164, 172, 184
    VM, P, PM, O, TMP = 208, 212, 216, 120, 232
    MO, AO, KVH = 32, 96, 244
    A_W1, A_WO = 0, 192
    L_QK, L_VP, L_OP, L_VM, L_XB, L_ST = 0, 9216, 13312, 17920, 18432, 32768

    TAG = E("TAG", 1)

    def wdog():
        wd_code(a, name + ":" + a.lines[-1], f"s{S_STEP}")

    def stamp(i):
        if E("TR", 0):
            if i == 0: return
            if i < 11: a(f"s_memtime s[{48+2*i}:{49+2*i}]")
            if i == 11:
                a("s_memrealtime s[70:71]\ns_memtime s[100:101]\ns_waitcnt lgkmcnt(0)\nv_writelane_b32 v250, s100, 12")
                for k in range(1, 12):
                    a(f"v_writelane_b32 v250, s{48+2*k}, {k}")
                a(f"v_writelane_b32 v250, s99, 0")
                a(f"""
                s_lshl_b32 s80, s{S_X}, 5
                s_add_u32 s80, s80, s{S_T}
                s_lshl_b32 s80, s80, 2
                s_add_u32 s80, s80, s{S_WAVE}
                s_lshl_b32 s80, s80, 6
                s_add_u32 s80, s80, s{S_STEP}
                s_lshl_b32 s80, s80, 6
                s_add_u32 s80, s80, {WS_PROF}
                v_lshlrev_b32 v251, 2, v{V_L}
                s_mov_b64 exec, 0xffff
                buffer_store_dword v250, v251, {SRD}, s80 offen
                s_mov_b64 exec, -1
                """)
            return
        if not prof or i == 11:
            return
        a("s_memtime s[66:67]")
        a("s_waitcnt lgkmcnt(0)")
        a("s_sub_u32 s68, s66, s69")
        a(f"s_add_u32 s{50+i}, s{50+i}, s68")
        a("s_mov_b32 s69, s66")

    if prof:
        for i in range(16):
            a(f"s_mov_b32 s{50+i}, 0")
        a("s_memtime s[66:67]\ns_waitcnt lgkmcnt(0)\ns_mov_b32 s69, s66")
    if ts: ts(1)
    a(f"""
    s_load_dwordx2 s[{S_M0}:{S_M0+1}], s[0:1], {KA_MEM0}
    s_load_dwordx2 s[{S_WO}:{S_WO+1}], s[0:1], {KA_WO}
    s_load_dwordx2 s[{S_WQ}:{S_WQ+1}], s[0:1], {KA_WQ}
    s_load_dwordx2 s[{S_WK}:{S_WK+1}], s[0:1], {KA_WK}
    s_load_dwordx2 s[{S_WV}:{S_WV+1}], s[0:1], {KA_WV}
    v_lshrrev_b32 v{V_T0}, 6, v0
    v_and_b32 v{V_L}, 63, v0
    v_readfirstlane_b32 s{S_WAVE}, v{V_T0}
    v_lshrrev_b32 v{V_G}, 4, v{V_L}
    v_and_b32 v{V_M}, 15, v{V_L}
    v_lshlrev_b32 v{V_LL}, 4, v{V_L}
    s_lshr_b32 s{S_T0}, s{S_T}, 2
    s_lshl_b32 s{S_H}, s{S_X}, 3
    s_add_u32 s{S_H}, s{S_H}, s{S_T0}
    s_and_b32 s{S_J}, s{S_T}, 3
    s_waitcnt lgkmcnt(0)
    s_mov_b32 s{S_M0+2}, 16384
    s_mov_b32 s{S_M0+3}, 0x00020000
    """)
    for s in (S_WO, S_WQ, S_WK, S_WV):
        a(f"s_mov_b32 s{s+2}, {8*MB}\ns_mov_b32 s{s+3}, 0x00020000")
    FULL = E("FULL", 0)
    CL = 2 + FULL
    a(f"""
    s_lshl_b32 s{S_T0}, s{S_H}, 8
    s_lshr_b32 s{S_T1}, s{S_J}, {FULL}
    s_lshl_b32 s{S_T1}, s{S_T1}, {6 + FULL}
    s_add_u32 s{S_T0}, s{S_T0}, s{S_T1}
    s_lshl_b32 s{S_T1}, s{S_WAVE}, 21
    s_add_u32 s{S_T0}, s{S_T0}, s{S_T1}
    v_lshrrev_b32 v{V_T0}, {CL}, v{V_L}
    v_and_b32 v{V_T1}, {(1 << CL) - 1}, v{V_L}
    v_lshlrev_b32 v40, 13, v{V_T0}
    v_lshl_add_u32 v40, v{V_T1}, 4, v40
    v_add_u32 v40, s{S_T0}, v40
    s_lshl_b32 s{S_T0}, s{S_X}, 21
    s_lshl_b32 s{S_T1}, s{S_WAVE}, 19
    s_add_u32 s{S_T0}, s{S_T0}, s{S_T1}
    s_lshr_b32 s{S_T1}, s{S_T}, {FULL}
    s_lshl_b32 s{S_T1}, s{S_T1}, {6 + FULL}
    s_add_u32 s{S_T0}, s{S_T0}, s{S_T1}
    v_lshlrev_b32 v41, 11, v{V_T0}
    v_lshl_add_u32 v41, v{V_T1}, 4, v41
    v_add_u32 v41, s{S_T0}, v41
    s_lshl_b32 s47, s{S_WAVE}, 15
    s_add_u32 s47, s47, {L_ST}
    """)
    order = [int(c) for c in os.environ.get("WORD", "0123")]
    PH = [(c, p) for c in order for p in range(1 << FULL)]
    RI = 64 >> CL

    def wdma(n):
        c, p = PH[n]
        srd = (S_WQ, S_WK, S_WV, S_WO)[c]
        if E("HELP", 1):
            a(f"buffer_load_dword v50, v{51 if c < 3 else 52}, s[{srd}:{srd+3}], 0 offen")
        for r in range(16):
            if E("PSW", 1):
                a(f"s_xor_b32 s{S_T1}, s76, {r}")
                a(f"s_lshl_b32 s{S_T0}, s{S_T1}, 10")
                a(f"s_add_u32 s{S_T0}, s{S_T0}, s47")
                a(f"s_add_u32 m0, s{S_T0}, {(n & 1)*16384}")
                a(f"s_lshl_b32 s{S_T1}, s{S_T1}, {17 if c < 3 else 15}")
            else:
                a(f"s_add_u32 m0, s47, {(n & 1)*16384 + 1024*r}")
                a(f"s_mov_b32 s{S_T1}, {RI * (16 * p + r) * (8192 if c < 3 else 2048)}")
            a(f"buffer_load_dwordx4 v{40 if c < 3 else 41}, s[{srd}:{srd+3}], s{S_T1} offen {'nt ' if E('RNT', 0) else ''}lds")
    WT = E("WT", 0)
    assert not (WT and FULL)
    a(f"""
    s_lshl_b32 s{S_T0}, s{S_T}, 18
    s_lshl_b32 s{S_T1}, s{S_WAVE}, 16
    s_add_u32 s{S_T0}, s{S_T0}, s{S_T1}
    s_lshl_b32 s{S_T1}, s{S_X}, 11
    s_add_u32 s{S_T0}, s{S_T0}, s{S_T1}
    v_lshlrev_b32 v48, 13, v{V_G}
    v_lshl_add_u32 v48, v{V_M}, 7, v48
    v_add_u32 v48, s{S_T0}, v48
    s_lshl_b32 s{S_T0}, s{S_X}, 21
    s_lshl_b32 s{S_T1}, s{S_T}, 16
    s_add_u32 s{S_T0}, s{S_T0}, s{S_T1}
    s_lshl_b32 s{S_T1}, s{S_WAVE}, 14
    s_add_u32 s{S_T0}, s{S_T0}, s{S_T1}
    v_lshlrev_b32 v49, 7, v{V_L}
    v_add_u32 v49, s{S_T0}, v49
    """)

    a(f"""
    s_and_b32 s76, s{S_T}, 1
    s_mul_i32 s76, s76, {E("PSW", 1) * 8 if E("PSW", 1) < 2 else E("PSW", 1)}
    ; helper touch of the slow lines: row = 256w + 16*(l&15... ) : rows w*256 + (t&15)*16 + (l&15), col (t>>4)*1024 + 384
    s_and_b32 s{S_T0}, s{S_T}, 15
    s_lshl_b32 s{S_T0}, s{S_T0}, 4
    s_lshl_b32 s{S_T1}, s{S_WAVE}, 8
    s_add_u32 s{S_T0}, s{S_T0}, s{S_T1}
    v_add_u32 v53, s{S_T0}, v{V_M}
    s_lshr_b32 s{S_T0}, s{S_T}, 4
    s_lshl_b32 s{S_T0}, s{S_T0}, 10
    s_add_u32 s{S_T0}, s{S_T0}, 384
    v_mov_b32 v54, s{S_T0}
    v_mov_b32 v55, 1920
    v_cmp_gt_u32 vcc, 32, v{V_L}
    s_nop 1
    v_cndmask_b32 v54, v55, v54, vcc
    s_lshl_b32 s{S_T1}, s{S_X}, 11
    v_lshl_add_u32 v51, v53, 13, v54
    v_add_u32 v51, s{S_T1}, v51
    s_lshl_b32 s{S_T1}, s{S_X}, 21
    v_lshl_add_u32 v52, v53, 11, v54
    v_add_u32 v52, s{S_T1}, v52
    """)

    def wtouch(n):
        c, p = PH[n]
        srd = (S_WQ, S_WK, S_WV, S_WO)[c]
        for i in range(2):
            a(f"s_mov_b32 s{S_T1}, {i * (32768 if c < 3 else 8192)}")
            a(f"buffer_load_dword v50, v{48 if c < 3 else 49}, s[{srd}:{srd+3}], s{S_T1} offen")
    if WT == 1:
        wtouch(0); wtouch(1); wdma(0); wtouch(2); wdma(1); wtouch(3)
    elif WT == 2:
        wtouch(0); wtouch(1); wtouch(2); wtouch(3); wdma(0); wdma(1)
    else:
        wdma(0); wdma(1)
    a(f"""
    s_mov_b32 s{S_MN8}, 0x00ff00ff
    s_mov_b32 s{S_MN8+1}, 0x00ff00ff
    s_mov_b32 s{S_MKM}, 0xff00ff00
    s_mov_b32 s{S_MKM+1}, 0xff00ff00
    s_mov_b32 s{S_MMEM}, 0
    s_mov_b32 s{S_MMEM+1}, 0x00ff00ff
    s_mov_b32 s{S_C}, 0x3e0293ee
    v_mov_b32 v{V_NEG}, 0xff800000
    v_mov_b32 v{V_IDX}, 0x4444
    v_mov_b32 v{V_T0}, 0xeeee
    v_cndmask_b32 v{V_IDX}, v{V_IDX}, v{V_T0}, s[{S_MKM}:{S_MKM+1}]
    v_mov_b32 v{V_POI}, -1
    v_mov_b32 v{V_POI+1}, -1
    v_mov_b32 v{V_POI+2}, -1
    v_mov_b32 v{V_POI+3}, -1
    s_lshl_b32 s{S_T0}, s{S_WAVE}, 12
    v_add_u32 v{V_OMEM}, s{S_T0}, v{V_LL}
    v_and_b32 v{V_T0}, 7, v{V_L}
    v_lshlrev_b32 v{V_OM0}, 11, v{V_T0}
    v_lshrrev_b32 v{V_T1}, 3, v{V_L}
    v_lshl_add_u32 v{V_OM0}, v{V_T1}, 4, v{V_OM0}
    s_lshl_b32 s{S_T0}, s{S_WAVE}, 9
    v_add_u32 v{V_OM0}, s{S_T0}, v{V_OM0}
    s_lshl_b32 s{S_T0}, s{S_T}, 9
    v_lshlrev_b32 v{V_OPUB}, 3, v{V_L}
    v_add_u32 v{V_OPUB}, s{S_T0}, v{V_OPUB}
    ; o publish: 16384 + t*512 + g*128 + (m&7)*16
    v_and_b32 v{V_T0}, 7, v{V_M}
    v_lshlrev_b32 v{V_OOP}, 7, v{V_G}
    v_lshl_add_u32 v{V_OOP}, v{V_T0}, 4, v{V_OOP}
    v_add_u32 v{V_OKV}, 0, v{V_OOP}              ; g*128 + (m&7)*16 (k_m publish)
    s_add_u32 s{S_T0}, s{S_T0}, 16384
    v_add_u32 v{V_OOP}, s{S_T0}, v{V_OOP}
    v_and_b32 v{V_T1}, 1, v{V_G}
    v_lshlrev_b32 v{V_OSCM}, 7, v{V_T1}
    v_lshl_add_u32 v{V_OSCM}, v{V_T0}, 4, v{V_OSCM}
    v_add_u32 v{V_OSCM}, 1024, v{V_OSCM}
    ; partner score offsets: 32768 + (t ^ p)*2048, own in S_P+3 (s47 later); kept relative to slot base
    """)
    for p in range(1, 4):
        a(f"""
        s_xor_b32 s{S_P+p-1}, s{S_T}, {p}
        s_lshl_b32 s{S_P+p-1}, s{S_P+p-1}, 11
        s_add_u32 s{S_P+p-1}, s{S_P+p-1}, 32768
        """)
    a(f"""
    ; LDS: q/k partial write: w*2304 + (4*(g&1))*144 + ((g>>1)*16 + m)*4
    v_and_b32 v{V_T0}, 1, v{V_G}
    v_mul_u32_u24 v{V_LWQ}, 576, v{V_T0}
    v_lshrrev_b32 v{V_T1}, 1, v{V_G}
    v_lshl_add_u32 v{V_T1}, v{V_T1}, 4, v{V_M}
    v_lshl_add_u32 v{V_LWQ}, v{V_T1}, 2, v{V_LWQ}
    s_mul_i32 s{S_T0}, s{S_WAVE}, 1152
    s_add_u32 s{S_T0}, s{S_T0}, {L_OP}
    v_add_u32 v{V_LWO}, s{S_T0}, v{V_LWQ}
    s_mul_i32 s{S_T0}, s{S_WAVE}, 2304
    v_add_u32 v{V_LWQ}, s{S_T0}, v{V_LWQ}
    v_add_u32 v{V_LWK}, 1152, v{V_LWQ}
    ; R read: m*144 + g*32
    v_mul_u32_u24 v{V_LRR}, 144, v{V_M}
    v_lshl_add_u32 v{V_LRR}, v{V_G}, 5, v{V_LRR}
    ; O partial read: L_OP + ((l>>1)&7)*144 + (2*(l>>4) + (l&1))*16
    v_bfe_u32 v{V_T0}, v{V_L}, 1, 3
    v_mul_u32_u24 v{V_LRO}, 144, v{V_T0}
    v_lshl_add_u32 v{V_LRO}, v{V_G}, 5, v{V_LRO}
    v_and_b32 v{V_T0}, 1, v{V_L}
    v_lshl_add_u32 v{V_LRO}, v{V_T0}, 4, v{V_LRO}
    v_add_u32 v{V_LRO}, {L_OP}, v{V_LRO}
    ; v partial write: L_VP + w*1024 + lane*16 ; read (tile u at +512u): L_VP + (l&31)*16
    s_lshl_b32 s{S_T0}, s{S_WAVE}, 10
    s_add_u32 s{S_T0}, s{S_T0}, {L_VP}
    v_add_u32 v{V_LVW}, s{S_T0}, v{V_LL}
    v_and_b32 v{V_T0}, 31, v{V_L}
    v_lshlrev_b32 v{V_LVR}, 3, v{V_T0}
    v_add_u32 v{V_LVR}, {L_VM}, v{V_LVR}
    v_lshrrev_b32 v{V_T0}, 2, v{V_M}             ; r
    v_and_b32 v42, 1, v{V_T0}                    ; r&1
    v_lshrrev_b32 v43, 1, v{V_T0}                ; r>>1
    v_lshrrev_b32 v44, 1, v{V_G}                 ; g>>1
    v_and_b32 v45, 1, v{V_G}                     ; g&1
    v_lshl_add_u32 v46, v44, 4, v42
    v_lshl_add_u32 v46, v45, 2, v46
    v_lshl_add_u32 v46, v43, 3, v46              ; W1 row
    v_lshl_add_u32 v47, v44, 3, v42
    v_lshl_add_u32 v47, v45, 4, v47
    v_lshl_add_u32 v47, v43, 2, v47
    v_and_b32 v{V_T1}, 3, v{V_M}
    v_lshlrev_b32 v{V_T1}, 3, v{V_T1}
    v_lshl_add_u32 v46, v46, {6 + FULL}, v{V_T1}
    v_lshl_add_u32 v47, v47, {6 + FULL}, v{V_T1}
    s_and_b32 s{S_T0}, s{S_T}, {FULL}
    s_lshl_b32 s{S_T0}, s{S_T0}, 6
    s_add_u32 s{S_T0}, s{S_T0}, s47
    v_add_u32 v46, s{S_T0}, v46
    v_add_u32 v47, s{S_T0}, v47
    """)

    def wtr(n):
        c, p = PH[n]
        nk = 4 >> FULL
        for u in range(2):
            for k in range(nk * p, nk * p + nk):
                d = (A_W1 + ((c * 2 + u) * 4 + k) * 8) if c < 3 else (A_WO + (u * 4 + k) * 8)
                for Pp in range(4):
                    off = (n & 1) * 16384 + ((64 * (k - nk * p) + 32 * (Pp >> 1) + 2 * (Pp & 1)) << (6 + FULL)) + 32 * u
                    a(f"ds_read_b64_tr_b16 a[{d+2*Pp}:{d+2*Pp+1}], v{46 if c < 3 else 47} offset:{off}")
                if k & 1:
                    a("s_waitcnt lgkmcnt(0)")
    for n in range(len(PH)):
        a(f"s_waitcnt vmcnt({(16 + E('HELP', 1) + ([4, 2, 0][n] if WT == 1 else 0)) if n + 1 < len(PH) else 0})")
        wtr(n)
        if n + 2 < len(PH): wdma(n + 2)
    sync(V_T0)
    if TAG: a(f"""
    ; cross exchange: WS_H + slot*256K + src*64K + (t>>3)*16K + par*8K + (t&7)*1K
    s_lshr_b32 s{S_T0}, s{S_T}, 3
    s_lshl_b32 s{S_T0}, s{S_T0}, 14
    s_lshl_b32 s{S_T1}, s98, 13
    s_add_u32 s{S_T0}, s{S_T0}, s{S_T1}
    s_and_b32 s{S_T1}, s{S_T}, 7
    s_lshl_b32 s{S_T1}, s{S_T1}, 10
    s_add_u32 s{S_T0}, s{S_T0}, s{S_T1}
    s_lshl_b32 s{S_T1}, s{S_X}, 16
    s_add_u32 s{S_T0}, s{S_T0}, s{S_T1}
    s_add_u32 s{S_T0}, s{S_T0}, {WS_H}
    v_add_u32 v{V_OXW}, s{S_T0}, v{V_LL}
    v_xor_b32 v25, 0x10000, v{V_OXW}
    v_xor_b32 v26, 0x20000, v{V_OXW}
    v_xor_b32 v27, 0x30000, v{V_OXW}
    """)
    else: a(f"""
    s_lshr_b32 s{S_T0}, s{S_T}, 2
    s_xor_b32 s{S_T0}, s{S_T0}, s98
    s_and_b32 s{S_T0}, s{S_T0}, 1
    s_lshl_b32 s{S_T0}, s{S_T0}, 13
    s_lshl_b32 s{S_T1}, s{S_T}, 19
    s_add_u32 s{S_T0}, s{S_T0}, s{S_T1}
    s_lshl_b32 s{S_T1}, s{S_X}, 10
    s_add_u32 s{S_T0}, s{S_T0}, s{S_T1}
    s_add_u32 s{S_T0}, s{S_T0}, {WS_XU}
    v_add_u32 v{V_OXW}, s{S_T0}, v{V_LL}
    v_xor_b32 v25, 1024, v{V_OXW}
    v_xor_b32 v26, 2048, v{V_OXW}
    v_xor_b32 v27, 3072, v{V_OXW}
    """)
    a(f"""
    s_lshl_b32 s{S_T0}, s{S_H}, 2
    s_add_u32 s{S_T0}, s{S_T0}, s{S_J}
    s_mov_b32 s{S_CU}, s{S_T0}
    s_lshr_b32 s{S_T1}, s{S_T0}, 3
    s_xor_b32 s{S_T1}, s{S_T1}, s98
    {["", f"s_xor_b32 s{S_T1}, s{S_T1}, 1", f"s_xor_b32 s{S_T1}, s{S_T1}, s{S_T0}"][E("KVPAR", 0)]}
    s_and_b32 s{S_T1}, s{S_T1}, 1
    s_lshl_b32 s{S_T1}, s{S_T1}, 13
    s_lshl_b32 s76, s{S_T0}, 18
    s_add_u32 s76, s76, s{S_T1}
    s_mov_b32 s{S_KXB}, s76
    v_add_u32 v{TMP+8}, s76, v{V_LL}
    v_add_u32 v{TMP+9}, {WS_VT}, v{TMP+8}
    s_lshr_b32 s{S_T1}, s{S_T0}, 4
    s_xor_b32 s{S_T1}, s{S_T1}, s98
    s_and_b32 s{S_T1}, s{S_T1}, 1
    s_lshl_b32 s{S_T1}, s{S_T1}, 13
    s_lshl_b32 s{S_KVB}, s{S_T0}, 17
    s_add_u32 s{S_KVB}, s{S_KVB}, s{S_T1}
    s_add_u32 s{S_KVB}, s{S_KVB}, {WS_KVM}
    ; flags
    s_xor_b32 s{S_T1}, s98, 1
    s_lshl_b32 s{S_T1}, s{S_T1}, 13
    s_lshl_b32 s{S_T0}, s{S_H}, 7
    s_add_u32 s{S_T0}, s{S_T0}, s{S_T1}
    s_add_u32 s{S_T0}, s{S_T0}, {WS_F}
    v_and_b32 v{V_T0}, 1, v{V_L}
    v_lshlrev_b32 v{V_OFL}, 12, v{V_T0}
    v_add_u32 v{V_OFL}, s{S_T0}, v{V_OFL}
    s_lshl_b32 s{S_T1}, s{S_J}, 2
    v_add_u32 v{V_OFL}, s{S_T1}, v{V_OFL}
    s_xor_b32 s{S_FLB}, s98, 1
    s_lshl_b32 s{S_FLB}, s{S_FLB}, 13
    s_lshr_b32 s{S_T1}, s{S_CU}, 6
    s_lshl_b32 s{S_T1}, s{S_T1}, 14
    s_add_u32 s{S_FLB}, s{S_FLB}, s{S_T1}
    s_and_b32 s{S_T1}, s{S_CU}, 63
    s_lshl_b32 s{S_T1}, s{S_T1}, 7
    s_add_u32 s{S_FLB}, s{S_FLB}, s{S_T1}
    s_add_u32 s{S_FLB}, s{S_FLB}, {WS_F + F_KVM}
    v_mov_b32 v{ONE}, 0x3f803f80
    v_mov_b32 v{ONE+1}, 0x3f803f80
    v_mov_b32 v{ONE+2}, 0x3f803f80
    v_mov_b32 v{ONE+3}, 0x3f803f80
    v_mov_b32 v{ZER}, 0
    s_mov_b32 s{S_STEP}, 0
    s_mov_b32 s{S_KVN}, 0
    s_mov_b32 s{S_XBR}, {L_XB}
    s_mov_b32 s{S_XBW}, {L_XB}
    """)
    V_PK, V_PV = TMP + 8, TMP + 9
    pfn = [0]

    def prefetch(seg_sreg, part=3, chk=True, skip=None):
        i = pfn[0]; pfn[0] += 1
        if flags and chk:
            a(f"""
            s_cmp_gt_i32 s{S_KVN}, s{seg_sreg}
            s_cbranch_scc1 {name}_pf{i}ok
{name}_pf{i}w:
            """)
            wdog()
            a(f"""
            buffer_load_dword v{V_T0}, v{V_OFL}, {SRD}, 0 offen sc1
            s_waitcnt vmcnt(0)
            v_readlane_b32 s{S_KVN}, v{V_T0}, 0
            v_readlane_b32 s{S_T0}, v{V_T0}, 1
            s_nop 1
            s_min_i32 s{S_KVN}, s{S_KVN}, s{S_T0}
            s_cmp_gt_i32 s{S_KVN}, s{seg_sreg}
            s_cbranch_scc0 {skip or f"{name}_pf{i}w"}
{name}_pf{i}ok:
            """)
        if part is None: return
        a(f"""
        s_add_u32 s77, s{seg_sreg}, s{S_CU}
        s_bfe_u32 s{S_T0}, s77, 0x40002
        s_lshl_b32 s{S_T0}, s{S_T0}, 14
        s_and_b32 s77, s77, 3
        s_lshl_b32 s77, s77, 11
        s_add_u32 s{S_T0}, s{S_T0}, s77
        """)
        if part <= 0:
            a(f"s_add_u32 s{S_T0}, s{S_T0}, s{S_KXB}")
            if part < 0: a(f"s_add_u32 s{S_T0}, s{S_T0}, {WS_VT}")
            for l in range(16):
                a(f"s_buffer_load_dword s78, {SRD}, s{S_T0} offset:{128*l}")
            return
        for f in range(4):
            if not (part >> (f >> 1)) & 1: continue
            a(f"s_add_u32 m0, s{S_XBW}, {2048 * (f >> 1)}")
            a("s_nop 0")
            a(f"buffer_load_dwordx4 v{V_PK if f < 2 else V_PV}, {SRD}, s{S_T0} offen offset:{1024 * (f & 1)} sc1 lds")
        if part & 2: a(f"""
        s_add_u32 s{S_XBW}, s{S_XBW}, 4096
        s_cmp_eq_u32 s{S_XBW}, {L_XB + 3 * 4096}
        s_cselect_b32 s{S_XBW}, {L_XB}, s{S_XBW}
        """)

    def flag_store(val_sreg):
        a(f"""
        v_mov_b32 v{V_T1}, s{val_sreg}
        s_mov_b64 exec, 1
        buffer_store_dword v{V_T1}, v{ZER}, {SRD}, s{S_FLB} offen sc1
        s_mov_b64 exec, -1
        """)

    def zero(base, n):
        for i in range(n):
            a(f"v_mov_b32 v{base+i}, 0")

    if ts and E("BPROF", 0):
        ts(2)
        a(f"v_and_b32 v{V_L}, 63, v0\nv_lshrrev_b32 v{V_G}, 4, v{V_L}")
    a(f"s_cmp_eq_u32 s{S_WAVE}, 3\ns_cbranch_scc0 {name}_pfi")
    a(f"s_mov_b32 s76, 0")
    prefetch(76)
    a("s_waitcnt vmcnt(0) lgkmcnt(0)")
    a.label(f"{name}_pfi")
    zero(AQ, 24)
    a("s_barrier")
    if ts and E("BPROF", 0):
        ts(3)
        a(f"v_and_b32 v{V_L}, 63, v0\nv_lshrrev_b32 v{V_G}, 4, v{V_L}")
    stamp(0)

    def smf(d, areg, w):
        a(f"v_smfmac_f32_16x16x64_bf16 v[{d}:{d+3}], v[{areg}:{areg+3}], a[{w}:{w+7}], v{V_IDX}")

    def stream_poll(tag, base, soff, off0, two, work, first=None):
        def ld(i):
            a(f"buffer_load_dwordx4 v[{base+4*i}:{base+4*i+3}], v{V_OMEM}, {SRD}, s{soff} offen offset:{1024*i} sc1")
        G = E("GAP", 10)
        for i in range(4):
            ld(i)
            if i == 0 and first:
                first()
                if G > 5: a.nops(G - 5)
            elif i < 3 and G:
                a.nops(G)
        if E("RR", 1):
            def lab(S, i): return f"{name}_{tag}_{S}_{i}"
            def nxt(S, i):
                for d in range(1, 5):
                    if S >> ((i + d) & 3) & 1: return (i + d) & 3
            def chk(i):
                if two:
                    a(f"v_max_u32 v{V_T0}, v{base+4*i}, v{base+4*i+2}")
                    a(f"v_cmp_eq_u32 vcc, -1, v{V_T0}")
                else:
                    a(f"v_cmp_eq_u32 vcc, -1, v{base+4*i}")
            def block(S, i, fall):
                a.label(lab(S, i))
                a(f"s_waitcnt vmcnt({bin(S).count('1') - 1})")
                chk(i)
                a(f"s_cbranch_vccnz {lab(S, i)}f")
                work(i)
                if not fall:
                    S2 = S & ~(1 << i)
                    a(f"s_branch {lab(S2, nxt(S2, i)) if S2 else f'{name}_{tag}_d'}")
            fast = [(15, 0), (14, 1), (12, 2), (8, 3)]
            if E("HOIST", 1) and two:
                def cap(fn, *ar):
                    sv = a.lines; a.lines = []; fn(*ar); o = a.lines; a.lines = sv; return o
                a("s_waitcnt vmcnt(3)")
                chk(0)
                for n, (S, i) in enumerate(fast):
                    a(f"s_cbranch_vccnz {lab(S, i)}f")
                    wk = cap(work, i)
                    a.lines += wk[:3]
                    if i < 3:
                        a(f"s_waitcnt vmcnt({2 - i})")
                        chk(i + 1)
                    a.lines += wk[3:]
                fast = []
            for S, i in fast:
                block(S, i, True)
            a.label(f"{name}_{tag}_d")
            def stubs():
                for S in range(1, 16):
                    for i in range(4):
                        if not S >> i & 1: continue
                        a.label(lab(S, i) + "f")
                        if E("MSK", 1): a("s_mov_b64 exec, vcc")
                        ld(i)
                        if E("MSK", 1): a("s_mov_b64 exec, -1")
                        if bin(S).count('1') == 1 or i == nxt(S, 3): wdog()
                        a(f"s_branch {lab(S, nxt(S, i))}")
                        if (S, i) not in fast:
                            block(S, i, False)
            return stubs
        for i in range(4):
            a.label(f"{name}_{tag}{i}")
            a(f"s_waitcnt vmcnt({3-i})")
            if two:
                a(f"v_max_u32 v{V_T0}, v{base+4*i}, v{base+4*i+2}")
                a(f"v_cmp_eq_u32 vcc, -1, v{V_T0}")
            else:
                a(f"v_cmp_eq_u32 vcc, -1, v{base+4*i}")
            a(f"s_cbranch_vccnz {name}_{tag}r{i}")
            a.label(f"{name}_{tag}k{i}")
            work(i)
        def stubs():
            for i in range(4):
                a.label(f"{name}_{tag}r{i}")
                if prof: a(f"s_add_u32 s{62 if tag == 'pa' else 63}, s{62 if tag == 'pa' else 63}, 1")
                wdog()
                if not E("IMM", 1): a("s_waitcnt vmcnt(0)")
                for k in range(i, 4):
                    ld(k)
                a(f"s_branch {name}_{tag}{i}")
        return stubs

    def fold(t0, t1):
        for i in range(4):
            a(f"v_permlane32_swap_b32 v{t0+i}, v{t1+i}")
        a(f"v_pk_add_f32 v[{t0}:{t0+1}], v[{t0}:{t0+1}], v[{t1}:{t1+1}]")
        a(f"v_pk_add_f32 v[{t0+2}:{t0+3}], v[{t0+2}:{t0+3}], v[{t1+2}:{t1+3}]")

    def vwork(lo, hi):
        for n in range(lo, hi):
            i, u = n >> 1, n & 1
            smf(AV + 4 * u, MA + 4 * i, A_W1 + ((4 + u) * 4 + (i & 3)) * 8)

    def vfin():
        fold(AV, AV + 4)
        a(f"ds_write_b128 v{V_LVW}, v[{AV}:{AV+3}]")

    def rread():
        for w in range(4):
            for hh in range(2):
                d = RP + 8 * w + 4 * hh
                a(f"ds_read_b128 v[{d}:{d+3}], v{V_LRR} offset:{L_QK + 2304*w + 16*hh}")

    def rsum(dst):
        a("s_waitcnt lgkmcnt(4)")
        for i in range(0, 8, 2):
            a(f"v_pk_add_f32 v[{RP+i}:{RP+i+1}], v[{RP+i}:{RP+i+1}], v[{RP+8+i}:{RP+8+i+1}]")
        a("s_waitcnt lgkmcnt(0)")
        for i in range(0, 8, 2):
            a(f"v_pk_add_f32 v[{RP+16+i}:{RP+16+i+1}], v[{RP+16+i}:{RP+16+i+1}], v[{RP+24+i}:{RP+24+i+1}]")
        for i in range(0, 8, 2):
            a(f"v_pk_add_f32 v[{RP+i}:{RP+i+1}], v[{RP+i}:{RP+i+1}], v[{RP+16+i}:{RP+16+i+1}]")
        for i in range(4):
            a(f"v_cvt_pk_bf16_f32 v{dst+i}, v{RP+2*i}, v{RP+2*i+1}")

    S_FM = S_TAG
    def xuoff(dst, step):
        a(f"""
        s_add_u32 s{S_T0}, s{step}, s{S_T}
        s_and_b32 s77, s{S_T0}, 14
        s_and_b32 s{S_T0}, s{S_T0}, 1
        s_lshl_b32 s{S_T0}, s{S_T0}, 12
        s_and_b32 s{dst}, s{step}, 48
        s_or_b32 s{dst}, s{dst}, s77
        s_lshl_b32 s{dst}, s{dst}, 13
        s_add_u32 s{dst}, s{dst}, s{S_T0}
        """)

    def heads():
        a(f"""
        s_and_b32 s{S_T1}, s{S_STEP}, 1
        s_lshl_b32 s{S_SL}, s{S_T1}, 17
        s_lshl_b32 s{S_T0}, s{S_X}, 18
        s_add_u32 s{S_SL}, s{S_SL}, s{S_T0}
        s_add_u32 s{S_SL}, s{S_SL}, {WS_I}
        s_xor_b32 s{S_SLO}, s{S_SL}, {1 << 17}
        """)
        if TAG: a(f"""
        s_lshl_b32 s{S_XS}, s{S_T1}, 18
        s_bfe_u32 s{S_TAG}, s{S_STEP}, 0x10001
        """)
        else: xuoff(S_XS, S_STEP)
    heads()
    a(f"s_branch {name}_first")

    def wa(i):
        for c in range(4):
            smf(AQ + 4 * c, MA + 4 * i, A_W1 + (c * 4 + (i & 3)) * 8)

    def xread():
        a(f"v_add_u32 v{V_T1}, s{S_XBR}, v{V_LL}")
        for f in range(4):
            a(f"ds_read_b128 v[{KX+4*f}:{KX+4*f+3}], v{V_T1} offset:{1024*f}")

    a.label(f"{name}_loop")
    stubs_a = stream_poll("pa", MA, S_SL, 0, True, wa, first=xread)
    a.label(f"{name}_adone")
    stamp(1)
    a.nops(6)
    fold(AQ, AQ + 4)
    a(f"ds_write2_b32 v{V_LWQ}, v{AQ}, v{AQ+1} offset0:0 offset1:36")
    a(f"ds_write2_b32 v{V_LWQ}, v{AQ+2}, v{AQ+3} offset0:72 offset1:108")
    fold(AQ + 8, AQ + 12)
    a(f"ds_write2_b32 v{V_LWK}, v{AQ+8}, v{AQ+9} offset0:0 offset1:36")
    a(f"ds_write2_b32 v{V_LWK}, v{AQ+10}, v{AQ+11} offset0:72 offset1:108")
    VE, VE2 = E("VE", 4), 8
    vwork(0, VE)
    a(f"""
    s_waitcnt lgkmcnt(0)
    s_barrier
    s_cmp_lg_u32 s{S_WAVE}, 0
    s_cbranch_scc1 {name}_side
    """)
    stamp(2)
    rread()
    vwork(VE, VE2)
    a(f"""
    s_lshl_b32 s{S_T0}, s{S_T}, 11
    s_add_u32 s{S_T0}, s{S_T0}, s{S_SL}
    s_add_u32 s{S_T0}, s{S_T0}, 32768
    s_add_u32 s76, s{S_P}, s{S_SL}
    s_add_u32 s77, s{S_P+1}, s{S_SL}
    s_add_u32 s78, s{S_P+2}, s{S_SL}
    """)
    rsum(R)
    a.nops(2)
    a(f"v_mfma_f32_16x16x32_bf16 v[{S+4}:{S+7}], v[{KX+4}:{KX+7}], v[{R}:{R+3}], 0")
    a(f"v_mfma_f32_16x16x32_bf16 v[{S}:{S+3}], v[{KX}:{KX+3}], v[{R}:{R+3}], 0")
    a(f"v_mfma_f32_16x16x32_bf16 v[{S+8}:{S+11}], v[{R}:{R+3}], v[{R}:{R+3}], 0")
    a(f"s_cmp_eq_u32 s{S_STEP}, {nsteps-1}")
    a(f"s_cbranch_scc1 {name}_w0last")
    if E("VF", 0) == 1: vfin()
    else: a.nops(5)
    for i in range(4):
        a(f"v_mov_b32_dpp v{S+i}, v{S+4+i} row_shr:8 row_mask:0xf bank_mask:0xc")
    a(f"""
    v_min_u32 v{S+8}, -2, v{S+8}
    v_min_u32 v{S}, -2, v{S}
    s_mov_b64 exec, s[{S_MMEM}:{S_MMEM+1}]
    buffer_store_dwordx4 v[{S+8}:{S+11}], v{V_OSCM}, {SRD}, s{S_T0} offen {IS}
    s_mov_b64 exec, -1
    buffer_store_dwordx4 v[{S}:{S+3}], v{V_LL}, {SRD}, s{S_T0} offen {IS}
    """)
    stamp(3)

    def p2ld():
        for p, so in enumerate((76, 77, 78)):
            a(f"buffer_load_dwordx4 v[{PL+8*p}:{PL+8*p+3}], v{V_LL}, {SRD}, s{so} offen sc1")
            a(f"buffer_load_dwordx4 v[{PL+8*p+4}:{PL+8*p+7}], v{V_OSCM}, {SRD}, s{so} offen sc1")
    if E("VF", 0) == 0: vfin()
    a("s_waitcnt lgkmcnt(0)\ns_barrier")
    zero(AO, 8)
    for i in range(4):
        a(f"v_cndmask_b32 v{S+4+i}, v{V_NEG}, v{S+8+i}, s[{S_MMEM}:{S_MMEM+1}]")
    if E("W2A", 0): a.nops(E("W2A", 0))
    p2ld()
    if not TAG: a(f"s_mov_b32 s80, s77"); xuoff(S_XS, S_STEP); a("s_mov_b32 s77, s80")
    if E("W2", 24): a.nops(E("W2", 24) - (0 if TAG else 10))
    p2ld()
    stamp(4)
    a.label(f"{name}_p2")
    a(f"s_waitcnt vmcnt(6)")
    a(f"v_max3_u32 v{V_T0}, v{PL}, v{PL+4}, v{PL+8}")
    a(f"v_max3_u32 v{V_T1}, v{PL+12}, v{PL+16}, v{PL+20}")
    a(f"v_max_u32 v{V_T0}, v{V_T0}, v{V_T1}")
    a(f"v_cmp_eq_u32 vcc, -1, v{V_T0}")
    a(f"s_cbranch_vccnz {name}_p2r")
    stamp(5)
    BP = E("BP", 1)
    def b2b():
        a("s_barrier")
        a(f"ds_read2_b64 v[{VM}:{VM+3}], v{V_LVR} offset0:0 offset1:32")
    if BP == 0: b2b()
    for (d, o) in ((S + 4, 4), (S, 0)):
        for i in (0, 2):
            a(f"v_pk_add_f32 v[{d+i}:{d+i+1}], v[{d+i}:{d+i+1}], v[{PL+o+i}:{PL+o+i+1}]")
            a(f"v_pk_add_f32 v[{RP+o+i}:{RP+o+i+1}], v[{PL+8+o+i}:{PL+8+o+i+1}], v[{PL+16+o+i}:{PL+16+o+i+1}]")
    for (d, o) in ((S + 4, 4), (S, 0)):
        for i in (0, 2):
            a(f"v_pk_add_f32 v[{d+i}:{d+i+1}], v[{d+i}:{d+i+1}], v[{RP+o+i}:{RP+o+i+1}]")
    MX, TM, SM = TMP, TMP + 1, TMP + 2
    a(f"""
    v_max3_f32 v{MX}, v{S}, v{S+1}, v{S+2}
    v_max3_f32 v{TM}, v{S+4}, v{S+5}, v{S+6}
    v_max3_f32 v{MX}, v{MX}, v{S+3}, v{S+7}
    v_max_f32 v{SM}, v{MX}, v{TM}
    """)
    if BP == 1: b2b()
    else: a("s_nop 1")
    a(f"""
    v_max_f32_dpp v{MX}, v{SM}, v{SM} row_ror:8 row_mask:0xf bank_mask:0xf
    v_max_f32_dpp v{TM}, v{SM}, v{SM} row_ror:8 row_mask:0xf bank_mask:0xf
    s_nop 1
    v_permlane16_swap_b32 v{MX}, v{TM}
    s_nop 0
    v_max_f32 v{SM}, v{MX}, v{TM}
    v_max_f32 v{SM+1}, v{MX}, v{TM}
    """)
    if BP == 2: b2b()
    else: a("s_nop 1")
    a(f"""
    v_permlane32_swap_b32 v{SM}, v{SM+1}
    s_nop 0
    v_max_f32 v{MX}, v{SM}, v{SM+1}
    v_mul_f32 v{MX}, s{S_C}, v{MX}
    """)
    for i in (4, 6, 0, 2):
        a(f"v_pk_fma_f32 v[{S+i}:{S+i+1}], v[{S+i}:{S+i+1}], s[{S_C}:{S_C+1}], v[{MX}:{MX+1}] op_sel_hi:[1,0,0] neg_lo:[0,0,1] neg_hi:[0,0,1]")
    for i in (4, 5, 6, 7):
        a(f"v_exp_f32 v{S+i}, v{S+i}")
    a(f"""
    v_exp_f32 v{S}, v{S}
    v_cvt_pk_bf16_f32 v{PM}, v{S+4}, v{S+5}
    v_cvt_pk_bf16_f32 v{PM+1}, v{S+6}, v{S+7}
    v_exp_f32 v{S+1}, v{S+1}
    v_exp_f32 v{S+2}, v{S+2}
    v_mfma_f32_16x16x16_bf16 v[{LS}:{LS+3}], v[{ONE}:{ONE+1}], v[{PM}:{PM+1}], 0
    v_exp_f32 v{S+3}, v{S+3}
    v_cvt_pk_bf16_f32 v{P}, v{S}, v{S+1}
    s_waitcnt lgkmcnt(0)
    v_mfma_f32_16x16x16_bf16 v[{O}:{O+3}], v[{VM}:{VM+1}], v[{PM}:{PM+1}], 0
    v_cvt_pk_bf16_f32 v{P+1}, v{S+2}, v{S+3}
    v_mfma_f32_16x16x16_bf16 v[{O+4}:{O+7}], v[{VM+2}:{VM+3}], v[{PM}:{PM+1}], 0
    v_mov_b32_dpp v{P+2}, v{P} row_ror:8 row_mask:0xf bank_mask:0xf
    v_mov_b32_dpp v{P+3}, v{P+1} row_ror:8 row_mask:0xf bank_mask:0xf
    s_nop 1
    v_mfma_f32_16x16x32_bf16 v[{LS}:{LS+3}], v[{ONE}:{ONE+3}], v[{P}:{P+3}], v[{LS}:{LS+3}]
    v_mfma_f32_16x16x32_bf16 v[{O}:{O+3}], v[{VTX}:{VTX+3}], v[{P}:{P+3}], v[{O}:{O+3}]
    v_mfma_f32_16x16x32_bf16 v[{O+4}:{O+7}], v[{VTX+4}:{VTX+7}], v[{P}:{P+3}], v[{O+4}:{O+7}]
    s_add_u32 s{S_T1}, s{S_SL}, 16384
    s_nop 4
    v_rcp_f32 v{SM}, v{LS}
    s_nop 0
    """)
    for i in range(0, 8, 2):
        a(f"v_pk_mul_f32 v[{O+i}:{O+i+1}], v[{O+i}:{O+i+1}], v[{SM}:{SM+1}] op_sel_hi:[1,0]")
    for i in range(4):
        a(f"v_cvt_pk_bf16_f32 v{P+i}, v{O+2*i}, v{O+2*i+1}")
    a(f"""
    v_min_u32 v{P}, -2, v{P}
    s_mov_b64 exec, s[{S_MN8}:{S_MN8+1}]
    buffer_store_dwordx4 v[{P}:{P+3}], v{V_OOP}, {SRD}, s{S_SL} offen {IS}
    s_mov_b64 exec, -1
    """)
    NB3, NB5 = E("NB3", 0), E("NB5", 0)
    if NB3:
        stamp(6)
        if E("W3", 10): a.nops(E("W3", 10))
        a.label(f"{name}_b3")
    else:
        a.label(f"{name}_b3")
        a("s_barrier")
        stamp(6)
        if E("W3", 10): a.nops(E("W3", 10))

    def wc(i):
        for u in range(2):
            smf(AO + 4 * u, MO + 4 * i, A_WO + (u * 4 + i) * 8)
    stubs_c = stream_poll("pc", MO, S_T1, 0, False, wc)
    stamp(7)
    a.nops(8)
    fold(AO, AO + 4)
    a(f"ds_write2_b32 v{V_LWO}, v{AO}, v{AO+1} offset0:0 offset1:36")
    a(f"ds_write2_b32 v{V_LWO}, v{AO+2}, v{AO+3} offset0:72 offset1:108")
    a("s_waitcnt lgkmcnt(0)\ns_barrier")
    a(f"s_cmp_lg_u32 s{S_WAVE}, 0\ns_cbranch_scc1 {name}_x1")
    for w in range(4):
        a(f"ds_read_b128 v[{RP+4*w}:{RP+4*w+3}], v{V_LRO} offset:{1152*w}")
    a("s_waitcnt lgkmcnt(2)")
    for i in (0, 2):
        a(f"v_pk_add_f32 v[{RP+i}:{RP+i+1}], v[{RP+i}:{RP+i+1}], v[{RP+4+i}:{RP+4+i+1}]")
    a("s_waitcnt lgkmcnt(0)")
    for i in (0, 2):
        a(f"v_pk_add_f32 v[{RP+8+i}:{RP+8+i+1}], v[{RP+8+i}:{RP+8+i+1}], v[{RP+12+i}:{RP+12+i+1}]")
    for i in (0, 2):
        a(f"v_pk_add_f32 v[{RP+i}:{RP+i+1}], v[{RP+i}:{RP+i+1}], v[{RP+8+i}:{RP+8+i+1}]")
    X4 = 48
    A4 = E("A4", 2)
    def p4ld():
        for p in range(3):
            a(f"buffer_load_dwordx4 v[{X4+4*p}:{X4+4*p+3}], v{25+p}, {SRD}, s{S_XS} offen sc1")
    def maxall(regs):
        regs = list(regs)
        h = len(regs) // 2
        for t, rs in ((V_T0, regs[:h]), (V_T1, regs[h:])):
            a(f"v_max3_u32 v{t}, v{rs[0]}, v{rs[1]}, v{rs[2]}")
        k = 3
        while k < h:
            for t, rs in ((V_T0, regs[:h]), (V_T1, regs[h:])):
                if k + 1 < h: a(f"v_max3_u32 v{t}, v{t}, v{rs[k]}, v{rs[k+1]}")
                else: a(f"v_max_u32 v{t}, v{t}, v{rs[k]}")
            k += 2
        a(f"v_max_u32 v{V_T0}, v{V_T0}, v{V_T1}")
        a(f"v_cmp_eq_u32 vcc, -1, v{V_T0}")
    if TAG:
        for i in range(4):
            a(f"v_and_or_b32 v{RP+i}, v{RP+i}, -2, s{S_TAG}")
        a(f"buffer_store_dwordx4 v[{RP}:{RP+3}], v{V_OXW}, {SRD}, s{S_XS} offen sc1")
        stamp(8)
        a(f"s_xor_b32 s76, s{S_TAG}, 1")
        for i in range(12):
            a(f"v_mov_b32 v{X4+i}, s76")
        zero(AQ, 24)
        if E("XW", 16): a.nops(E("XW", 16))
        stamp(11)
        a(f"s_cmp_eq_u32 s{S_TAG}, 1\ns_cbranch_scc1 {name}_p4_1")
        for tg in range(2):
            a.label(f"{name}_p4_{tg}")
            wdog()
            p4ld()
            a("s_waitcnt vmcnt(36)")
            a.nops(A4)
            bo = "0xfe" if tg == 0 else "0x80"
            for t, b in ((V_T0, X4), (V_T1, X4 + 6)):
                a(f"v_bitop3_b32 v{t}, v{b}, v{b+1}, v{b+2} bitop3:{bo}")
            for t, b in ((V_T0, X4), (V_T1, X4 + 6)):
                a(f"v_bitop3_b32 v{t}, v{t}, v{b+3}, v{b+4} bitop3:{bo}")
            a(f"v_bitop3_b32 v{V_T0}, v{V_T0}, v{X4+5}, v{X4+11} bitop3:{bo}")
            a(f"v_bitop3_b32 v{V_T0}, v{V_T0}, v{V_T1}, 1 bitop3:{'0xa8' if tg == 0 else '0x80'}")
            a(f"v_cmp_ne_u32 vcc, {tg}, v{V_T0}")
            a(f"s_cbranch_vccnz {name}_p4_{tg}")
            if tg == 0: a(f"s_branch {name}_p4d")
        a.label(f"{name}_p4d")
    else:
        for i in range(4 if A4 else 1):
            a(f"v_min_u32 v{RP+i}, -2, v{RP+i}")
        a(f"buffer_store_dwordx4 v[{RP}:{RP+3}], v{V_OXW}, {SRD}, s{S_XS} offen sc1")
        stamp(8)
        if A4:
            for i in range(12):
                a(f"v_mov_b32 v{X4+i}, -1")
        zero(AQ, 24)
        if E("XW", 16): a.nops(E("XW", 16))
        stamp(11)
        a.label(f"{name}_p4")
        if prof: a("s_add_u32 s64, s64, 1")
        wdog()
        p4ld()
        if A4:
            a("s_waitcnt vmcnt(36)")
            for rep in range(E("A4R", 1)):
                a.nops(A4 // E("A4R", 1))
                maxall(range(X4, X4 + 12))
                a(f"s_cbranch_vccz {name}_p4d")
            a(f"s_branch {name}_p4")
            a.label(f"{name}_p4d")
        else:
            a(f"""
            s_waitcnt vmcnt(0)
            v_max3_u32 v{V_T0}, v{X4}, v{X4+4}, v{X4+8}
            v_cmp_eq_u32 vcc, -1, v{V_T0}
            s_cbranch_vccnz {name}_p4
            """)
    stamp(9)
    for i in (0, 2):
        a(f"v_pk_add_f32 v[{RP+i}:{RP+i+1}], v[{RP+i}:{RP+i+1}], v[{X4+i}:{X4+i+1}]")
        a(f"v_pk_add_f32 v[{RP+4+i}:{RP+4+i+1}], v[{X4+4+i}:{X4+4+i+1}], v[{X4+8+i}:{X4+8+i+1}]")
    for i in (0, 2):
        a(f"v_pk_add_f32 v[{RP+i}:{RP+i+1}], v[{RP+i}:{RP+i+1}], v[{RP+4+i}:{RP+4+i+1}]")
    a(f"""
    v_cvt_pk_bf16_f32 v{P}, v{RP}, v{RP+1}
    v_cvt_pk_bf16_f32 v{P+1}, v{RP+2}, v{RP+3}
    v_min_u32 v{P}, -2, v{P}
    buffer_store_dwordx2 v[{P}:{P+1}], v{V_OPUB}, {SRD}, s{S_SLO} offen {IS}
    """)
    a.label(f"{name}_b5")
    a(f"""
    s_add_u32 s{S_STEP}, s{S_STEP}, 1
    s_add_u32 s{S_XBR}, s{S_XBR}, 4096
    s_cmp_eq_u32 s{S_XBR}, {L_XB + 3 * 4096}
    s_cselect_b32 s{S_XBR}, {L_XB}, s{S_XBR}
    s_mov_b32 s{S_T0}, s{S_SL}
    s_mov_b32 s{S_SL}, s{S_SLO}
    s_mov_b32 s{S_SLO}, s{S_T0}
    {f"s_xor_b32 s{S_XS}, s{S_XS}, {1 << 18}" if TAG else ""}
    {f"s_bfe_u32 s{S_TAG}, s{S_STEP}, 0x10001" if TAG else ""}
    {"" if NB5 else "s_barrier"}
    """)
    stamp(10)
    if E("W1", 10): a.nops(E("W1", 10))
    a(f"s_branch {name}_loop")
    a.label(f"{name}_x1")
    if not E("NOKVM", 0):
        a(f"s_cmp_eq_u32 s{S_WAVE}, 1\ns_cbranch_scc0 {name}_x2\ns_add_u32 s76, s{S_STEP}, 1")
        flag_store(76)
        a.label(f"{name}_x2")
    a(f"""
    s_cmp_eq_u32 s{S_WAVE}, 3
    s_cbranch_scc0 {name}_x4
    s_cmp_eq_u32 s{S_LATE}, 1
    s_cbranch_scc0 {name}_x5
    s_add_u32 s76, s{S_STEP}, 1
    """)
    prefetch(76, 3)
    a(f"""
    s_waitcnt vmcnt(0)
{name}_x5:
    """)
    if E("RF4", 1):
        a(f"s_add_u32 s76, s{S_STEP}, 3\ns_min_u32 s76, s76, 63")
        prefetch(76, None, skip=f"{name}_x6")
        a.label(f"{name}_x6")
    a(f"""
    """)
    if not E("PB1", 1): a(f"""
    buffer_store_dwordx2 v[{V_POI}:{V_POI+1}], v{V_OPUB}, {SRD}, s{S_SL} offen {IS}
    s_lshl_b32 s{S_T0}, s{S_T}, 11
    s_add_u32 s{S_T0}, s{S_T0}, s{S_SL}
    s_add_u32 s{S_T0}, s{S_T0}, 32768
    buffer_store_dwordx4 v[{V_POI}:{V_POI+3}], v{V_LL}, {SRD}, s{S_T0} offen {IS}
    buffer_store_dwordx4 v[{V_POI}:{V_POI+3}], v{V_OSCM}, {SRD}, s{S_T0} offen {IS}
    """)
    a(f"""
    s_add_u32 s76, s{S_STEP}, 2
    s_cmp_lt_u32 s76, {nsteps-1}
    s_cbranch_scc0 {name}_x4
    {f"s_cmp_gt_i32 s{S_KVN}, s76" if flags else ""}
    s_cbranch_scc0 {name}_x4
    """)
    if not E("NOPF", 0) and not E("TR", 0): prefetch(76, -1, False)
    a.label(f"{name}_x4")
    stamp(11)
    zero(AQ, 24)
    if NB5: a(f"s_sleep {NB5}")
    a(f"s_branch {name}_b5")
    a.label(f"{name}_p2r")
    if prof: a("s_add_u32 s65, s65, 1")
    wdog()
    p2ld()
    a(f"s_branch {name}_p2")
    stubs_a()
    stubs_c()
    a.label(f"{name}_w0last")
    a.nops(8)
    vfin()
    a("s_waitcnt lgkmcnt(0)\ns_barrier")
    a(f"s_branch {name}_end")
    a.label(f"{name}_side")
    a(f"""
    s_cmp_eq_u32 s{S_WAVE}, 3
    s_cbranch_scc1 {name}_sd3
    s_cmp_eq_u32 s{S_WAVE}, 2
    s_cbranch_scc0 {name}_sd4
    s_mov_b64 exec, s[{S_MN8}:{S_MN8+1}]
    buffer_store_dwordx4 v[{V_POI}:{V_POI+3}], v{V_OOP}, {SRD}, s{S_SLO} offen {IS}
    s_mov_b64 exec, -1
    """)
    if E("PB1", 1): a(f"""
    buffer_store_dwordx2 v[{V_POI}:{V_POI+1}], v{V_OPUB}, {SRD}, s{S_SLO} offen {IS}
    s_lshl_b32 s{S_T0}, s{S_T}, 11
    s_add_u32 s{S_T0}, s{S_T0}, s{S_SLO}
    s_add_u32 s{S_T0}, s{S_T0}, 32768
    buffer_store_dwordx4 v[{V_POI}:{V_POI+3}], v{V_LL}, {SRD}, s{S_T0} offen {IS}
    buffer_store_dwordx4 v[{V_POI}:{V_POI+3}], v{V_OSCM}, {SRD}, s{S_T0} offen {IS}
    """)
    a(f"""
    s_branch {name}_sd4
{name}_sd3:
    s_mov_b32 s{S_LATE}, 0
    s_add_u32 s76, s{S_STEP}, 1
    s_cmp_lt_u32 s76, {nsteps-1}
    s_cbranch_scc0 {name}_sd4
    {f"s_cmp_gt_i32 s{S_KVN}, s76" if flags else ""}
    s_cselect_b32 s{S_LATE}, 0, 1
    s_cbranch_scc0 {name}_sd4
    """)
    if not E("NOPF", 0): prefetch(76, 3, False)
    a.label(f"{name}_sd4")
    vwork(VE, 8)
    a.nops(8)
    vfin()
    zero(AO, 8)
    a(f"""
    s_cmp_eq_u32 s{S_WAVE}, 1
    s_cbranch_scc0 {name}_s1
    s_waitcnt lgkmcnt(0)
    """)
    rread()
    rsum(KVH)
    a.label(f"{name}_s1")
    a(f"""
    v_add_u32 v{V_T1}, {L_VP}, v{V_LL}
    s_waitcnt lgkmcnt(0)
    s_barrier
    s_cmp_eq_u32 s{S_WAVE}, 2
    s_cbranch_scc1 {name}_s2
    """)
    if E("KPF", 1) and not E("NOPF", 0):
        a(f"""
        s_cmp_eq_u32 s{S_WAVE}, 3
        s_cbranch_scc0 {name}_s3
        s_add_u32 s76, s{S_STEP}, 2
        s_cmp_lt_u32 s76, {nsteps-1}
        s_cbranch_scc0 {name}_s3
        {f"s_cmp_gt_i32 s{S_KVN}, s76" if flags else ""}
        s_cbranch_scc0 {name}_s3
        """)
        prefetch(76, 0, False)
    a(f"s_branch {name}_s3")
    a.label(f"{name}_s2")
    for w in range(4):
        a(f"ds_read_b128 v[{RP+4*w}:{RP+4*w+3}], v{V_T1} offset:{1024*w}")
    a(f"v_lshrrev_b32 v{V_T1}, 1, v{V_LL}")
    a("s_waitcnt lgkmcnt(2)")
    for i in (0, 2):
        a(f"v_pk_add_f32 v[{RP+i}:{RP+i+1}], v[{RP+i}:{RP+i+1}], v[{RP+4+i}:{RP+4+i+1}]")
    a("s_waitcnt lgkmcnt(0)")
    for i in (0, 2):
        a(f"v_pk_add_f32 v[{RP+8+i}:{RP+8+i+1}], v[{RP+8+i}:{RP+8+i+1}], v[{RP+12+i}:{RP+12+i+1}]")
    for i in (0, 2):
        a(f"v_pk_add_f32 v[{RP+i}:{RP+i+1}], v[{RP+i}:{RP+i+1}], v[{RP+8+i}:{RP+8+i+1}]")
    a(f"v_cvt_pk_bf16_f32 v{KVH}, v{RP}, v{RP+1}")
    a(f"v_cvt_pk_bf16_f32 v{KVH+1}, v{RP+2}, v{RP+3}")
    a(f"ds_write_b64 v{V_T1}, v[{KVH}:{KVH+1}] offset:{L_VM}")
    a("s_waitcnt lgkmcnt(0) vmcnt(0)")
    a.label(f"{name}_s3")
    a(f"""
    s_cmp_eq_u32 s{S_STEP}, {nsteps-1}
    s_cbranch_scc1 {name}_slast
    s_add_u32 s{S_T1}, s{S_SL}, 16384
    s_barrier
    """)

    def kv_pub(tag):
        a(f"""
        s_add_u32 s77, s{S_STEP}, s{S_CU}
        s_bfe_u32 s{S_T0}, s77, 0x30003
        s_lshl_b32 s{S_T0}, s{S_T0}, 14
        s_and_b32 s77, s77, 7
        s_lshl_b32 s77, s77, 10
        s_add_u32 s{S_T0}, s{S_T0}, s77
        s_add_u32 s{S_T0}, s{S_T0}, s{S_KVB}
        s_cmp_eq_u32 s{S_WAVE}, 2
        s_cbranch_scc1 {name}_kv2{tag}
        s_mov_b64 exec, s[{S_MKM}:{S_MKM+1}]
        buffer_store_dwordx4 v[{KVH}:{KVH+3}], v{V_OKV}, {SRD}, s{S_T0} offen sc1
        s_mov_b64 exec, -1
        s_branch {name}_kvd{tag}
{name}_kv2{tag}:
        v_lshlrev_b32 v{V_T0}, 3, v{V_L}
        buffer_store_dwordx2 v[{KVH}:{KVH+1}], v{V_T0}, {SRD}, s{S_T0} offen offset:512 sc1
{name}_kvd{tag}:
        """)
    a(f"s_cmp_eq_u32 s{S_WAVE}, 3\ns_cbranch_scc1 {name}_y3")
    if not E("NOKVM", 0):
        kv_pub("a")
    a(f"s_branch {name}_y4")
    a.label(f"{name}_y3")
    if not TAG:
        a(f"s_add_u32 s76, s{S_STEP}, 2\ns_and_b32 s76, s76, 63")
        xuoff(S_XS, 76)
        a(f"s_cmp_lt_u32 s76, 2\ns_cbranch_scc1 {name}_y4")
        a(f"buffer_store_dwordx4 v[{V_POI}:{V_POI+3}], v{V_OXW}, {SRD}, s{S_XS} offen sc1")
    a(f"""
    s_add_u32 s76, s{S_STEP}, 2
    s_cmp_lt_u32 s76, {nsteps-1}
    s_cbranch_scc0 {name}_y4
    """)
    if not E("NOPF", 0):
        if E("KPF", 1):
            if not E("RF4", 1):
                a(f"s_add_u32 s76, s{S_STEP}, 3")
                prefetch(76, None, skip=f"{name}_y4")
        else:
            prefetch(76, 0, skip=f"{name}_y4")
    a.label(f"{name}_y4")
    if NB3: a(f"s_sleep {NB3}")
    a(f"s_branch {name}_b3")
    a.label(f"{name}_first")
    for i in range(4):
        a(f"buffer_load_dwordx4 v[{MA+4*i}:{MA+4*i+3}], v{V_OM0}, s[{S_M0}:{S_M0+3}], 0 offen offset:{128*i}")
    xread()
    a("s_waitcnt vmcnt(0)")
    for i in range(4):
        wa(i)
    a.nops(2)
    a(f"s_branch {name}_adone")
    a.label(f"{name}_slast")
    a(f"s_cmp_eq_u32 s{S_WAVE}, 3\ns_cbranch_scc1 {name}_end")
    kv_pub("b")
    a(f"s_waitcnt vmcnt(0)\ns_barrier\ns_mov_b32 s76, {nsteps}\ns_cmp_eq_u32 s{S_WAVE}, 1\ns_cbranch_scc0 {name}_end")
    flag_store(76)
    a.label(f"{name}_end")
    if ts: ts(4)
    if prof:
        a(f"""
        s_lshl_b32 s{S_T0}, s{S_X}, 5
        s_add_u32 s{S_T0}, s{S_T0}, s{S_T}
        s_lshl_b32 s{S_T0}, s{S_T0}, 2
        s_add_u32 s{S_T0}, s{S_T0}, s{S_WAVE}
        s_lshl_b32 s{S_T0}, s{S_T0}, 6
        s_add_u32 s{S_T0}, s{S_T0}, {WS_PROF}
        v_mov_b32 v{V_T1}, 0
        s_mov_b64 exec, 1
        """)
        for i in range(16):
            a(f"v_mov_b32 v{V_T0}, s{50+i}")
            a(f"buffer_store_dword v{V_T0}, v{V_T1}, {SRD}, s{S_T0} offen offset:{4*i}")
            a("s_nop 1")
    a("s_endpgm")


def gen_rec_standalone(a: Asm, name, prof=False, force_slow=False):
    a.kernel_begin(name)
    a(f"s_cmp_ge_u32 s2, 256\ns_cbranch_scc1 {name}_exit")
    start_code(a, name)
    a(f"""
    s_sub_u32 s40, s90, 6
    s_lshl_b32 s40, s40, 5
    s_add_u32 s40, s40, s96
    s_cmp_lt_u32 s90, 4
    s_cbranch_scc0 {name}_oth
    s_mov_b32 s{S_X}, s90
    s_mov_b32 s{S_T}, s96
    """)
    rec_body(a, name + "_f", "", lambda vt: sync_code(a, name, "r", vt), prof=prof, flags=False)
    a.label(f"{name}_oth")
    a(f"s_cmp_lt_u32 s40, 64\ns_cbranch_scc0 {name}_exit")
    init_cd(a, name, 40)
    a.label(f"{name}_slowent")
    a.label(f"{name}_exit")
    a("s_endpgm")
    return kd(name, 512, sgpr=102, accum=256)


if __name__ == "__main__":
    import sys
    a = Asm()
    name = "rec_kernel"
    k = gen_rec_standalone(a, name, prof=("prof" in sys.argv), force_slow=("slow" in sys.argv))
    out = HEADER + f"; @launch kernel={name} grid=(256,1,1) block=(256,1,1) lds=163840\n"
    out += '.amdgcn_target "amdgcn-amd-amdhsa--gfx950"\n.text\n' + a.text() + '.section .rodata,"a"\n' + k
    open(os.environ.get("OUT", "rec.s"), "w").write(out)
```

```python
import sys
from gen_common import *
from gen_rec import S_X, S_T, S_WSD, S_DBG, E, start_code, rec_body, sync_code, slow_entry, init_cd
from gen_bulk import kv_role, qx_role, out_role, S_H, S_O0, S_O1, S_OI, S_OT
from gen_fft2 import gen_f0, gen_f1, gen_f2, gen_f3

LDS = 163840


def gen_mega(a, name, force_slow=False):
    W = S_WSD
    S_B, S_G, S_F = 94, 91, 92
    a.kernel_begin(name)

    def ts(i):
        if not E("BPROF", 0): return
        a(f"""
        s_memrealtime s[76:77]
        s_memtime s[100:101]
        s_waitcnt lgkmcnt(0)
        v_mov_b32 v1, 0
        v_mov_b32 v2, s76
        s_lshl_b32 s78, s2, 6
        s_add_u32 s78, s78, {WS_PROF + 8 * MB + 4 * i}
        s_mov_b64 exec, 1
        buffer_store_dword v2, v1, s[{W}:{W+3}], s78 offen
        s_nop 1
        v_mov_b32 v2, s100
        s_add_u32 s78, s78, 16384
        buffer_store_dword v2, v1, s[{W}:{W+3}], s78 offen
        s_nop 1
        v_mov_b32 v2, s96
        s_lshl_b32 s78, s2, 6
        s_add_u32 s78, s78, {WS_PROF + 8 * MB + 56}
        buffer_store_dword v2, v1, s[{W}:{W+3}], s78 offen
        s_mov_b64 exec, -1
        """)
    a(f"s_cmp_ge_u32 s2, 256\ns_cbranch_scc1 {name}_exit")
    if E("BPROF", 0): a("s_memrealtime s[80:81]")
    start_code(a, name)
    sync = lambda tag: (lambda vt: sync_code(a, name, tag, vt, force_slow))
    a(f"""
    s_cmp_lt_u32 s96, 32
    s_cbranch_scc1 {name}_spec
    """)
    sync("x")(2)
    slow_entry(a, name)
    a(f"""
    s_lshr_b32 s{S_X}, s97, 5
    s_and_b32 s{S_T}, s97, 31
    s_cmp_lt_u32 s97, 128
    s_cbranch_scc1 {name}_recs
    s_sub_u32 s{S_B}, s97, 128
    s_branch {name}_bulk
{name}_spec:
    s_mov_b32 s{S_X}, s90
    s_mov_b32 s{S_T}, s96
    s_cmp_lt_u32 s90, 4
    s_cbranch_scc1 {name}_recf
    s_sub_u32 s{S_B}, s90, 4
    s_lshl_b32 s{S_B}, s{S_B}, 5
    s_add_u32 s{S_B}, s{S_B}, s96
{name}_bulk:
    """)
    if E("MIX", 0):
        a(f"s_and_b32 s{S_G}, s{S_B}, 3\ns_lshr_b32 s{S_H}, s{S_B}, 2")
    else:
        a(f"s_lshr_b32 s{S_G}, s{S_B}, 5\ns_and_b32 s{S_H}, s{S_B}, 31")
    a(f"""
    s_and_b32 s{S_F}, s{S_G}, 1
    s_lshl_b32 s{S_F}, s{S_F}, 5
    s_add_u32 s{S_F}, s{S_F}, s{S_H}
    """)
    if E("BPROF", 0):
        a(f"""
        v_mov_b32 v1, 0
        v_mov_b32 v2, s80
        v_mov_b32 v3, s{S_G}
        s_lshl_b32 s78, s2, 6
        s_add_u32 s78, s78, {WS_PROF + 8 * MB}
        s_mov_b64 exec, 1
        buffer_store_dword v2, v1, s[{W}:{W+3}], s78 offen
        buffer_store_dword v3, v1, s[{W}:{W+3}], s78 offen offset:60
        s_mov_b64 exec, -1
        """)
    ts(1)
    a(f"""
    s_cmp_eq_u32 s{S_G}, 0
    s_cbranch_scc1 {name}_rk
    s_cmp_eq_u32 s{S_G}, 1
    s_cbranch_scc1 {name}_rv
    """)
    def signal(i):
        a(f"""
        s_waitcnt vmcnt(0)
        s_barrier
        v_mov_b32 v1, 0
        v_mov_b32 v2, 1
        s_mov_b32 s82, {WS_F + F_CNT + 128 * i}
        v_cmp_eq_u32 vcc, 0, v0
        s_and_saveexec_b64 s[80:81], vcc
        s_cbranch_execz {name}_sg{i}
        buffer_atomic_add v2, v1, s[{W}:{W+3}], s82 offen sc1
{name}_sg{i}:
        s_mov_b64 exec, s[80:81]
        """)

    def wait(i, n):
        a(f"v_mov_b32 v1, 0\ns_mov_b32 s82, {WS_F + F_CNT + 128 * i}")
        a.label(f"{name}_w{i}")
        wd_code(a, f"fftwait{i}")
        a(f"""
        s_sleep 8
        buffer_load_dword v2, v1, s[{W}:{W+3}], s82 offen sc1
        s_waitcnt vmcnt(0)
        v_cmp_ne_u32 vcc, {n-1}, v2
        s_cbranch_vccnz {name}_w{i}
        """)

    def tasks(tag, fn, first, stride, n, base_sreg):
        a(f"s_add_u32 s93, s{base_sreg}, {first}")
        a(f"s_cmp_lt_u32 s93, {n}\ns_cbranch_scc0 {name}_{tag}e")
        a.label(f"{name}_{tag}l")
        fn()
        a(f"s_add_u32 s93, s93, {stride}\ns_cmp_lt_u32 s93, {n}\ns_cbranch_scc1 {name}_{tag}l")
        a.label(f"{name}_{tag}e")
    DF2 = E("DF2", 0)
    init_cd(a, name, S_F)
    if E("CDH", 0):
        if E("CDH", 0) == 1: a(f"s_cmp_eq_u32 s{S_G}, 2\ns_cbranch_scc1 {name}_nohold")
        sync("h")(2)
        a(f"""
        s_xor_b32 s76, s98, 1
        s_lshl_b32 s76, s76, 13
        s_lshl_b32 s77, s{S_H}, 7
        s_add_u32 s76, s76, s77
        s_add_u32 s76, s76, {WS_F + F_K}
        v_mov_b32 v1, 0
{name}_hold:
        s_sleep 12
        """)
        wd_code(a, "hold")
        a(f"""
        buffer_load_dword v2, v1, s[{W}:{W+3}], s76 offen sc1
        s_waitcnt vmcnt(0)
        v_cmp_gt_i32 vcc, 1, v2
        s_cbranch_vccnz {name}_hold
{name}_nohold:
        """)
    ts(2)
    a(f"s_cmp_eq_u32 s{S_G}, 2\ns_cbranch_scc0 {name}_rd")
    qx_role(a, name + "_q", ts, sync("c"))
    a.label(f"{name}_rd")
    a(f"s_mov_b32 s93, s{S_H}")
    gen_f1(a, name + "_f1", 93, 32, 128)
    ts(5)
    a(f"s_mov_b32 s93, s{S_H}\ns_waitcnt vmcnt(0)")
    gen_f0(a, name + "_f0", 93, 32, 288)
    sync("d")(2)
    signal(0)
    ts(6)
    a(f"s_add_u32 s38, s{S_H}, {129 - DF2}\ns_mov_b32 s39, 32\ns_mov_b32 s37, 129")
    a(f"s_cmp_lt_u32 s38, 129\ns_cbranch_scc1 {name}_f2s\ns_branch {name}_f2e")
    a.label(f"{name}_rk")
    kv_role(a, name + "_k", False, ts, sync("k"))
    a(f"s_branch {name}_fft")
    a.label(f"{name}_rv")
    kv_role(a, name + "_v", True, ts, sync("v"))
    a.label(f"{name}_fft")
    ts(4)
    a(f"s_mov_b32 s38, s{S_F}\ns_mov_b32 s39, 64\ns_mov_b32 s37, {129 - DF2}")
    a.label(f"{name}_f2s")
    wait(0, 32)
    gen_f2(a, name + "_f2", 38, "s39", "s37")
    a.label(f"{name}_f2e")
    signal(1)
    ts(7)
    TL = E("TAILG", 1)
    a(f"s_mov_b32 s{S_O0}, 0\ns_mov_b32 s{S_O1}, {62 if TL else 64}\ns_mov_b32 s{S_OI}, 0\ns_mov_b32 s{S_OT}, 0")
    a(f"s_cmp_eq_u32 s{S_G}, 3\ns_cbranch_scc1 {name}_out")
    wait(1, 96)
    a(f"s_mov_b32 s93, s{S_F}")
    gen_f3(a, name + "_f3", 93, 64, 128)
    ts(8)
    if TL:
        a(f"s_add_u32 s{S_O0}, s{S_G}, 62\ns_add_u32 s{S_O1}, s{S_G}, 63\ns_mov_b32 s{S_OI}, {32 * 8192}\ns_mov_b32 s{S_OT}, 1\ns_waitcnt vmcnt(0)\ns_barrier")
    else:
        a(f"s_branch {name}_exit")
    a.label(f"{name}_out")
    out_role(a, name + "_o", lambda i: ts(i + 6))
    a.label(f"{name}_exit")
    a("s_endpgm")
    a.label(f"{name}_recf")
    rec_body(a, name + "_rf", "", sync("r"), prof=bool(E("PROF", 0)), ts=ts)
    a.label(f"{name}_recs")
    rec_body(a, name + "_rs", "sc1", sync("s"))
    return kd(name, 512, sgpr=102, accum=256)


def build(path, force_slow=False):
    a = Asm()
    k = gen_mega(a, "mega_kernel", force_slow)
    out = HEADER + f"; @launch kernel=mega_kernel grid=(256,1,1) block=(256,1,1) lds={LDS}\n"
    out += '.amdgcn_target "amdgcn-amd-amdhsa--gfx950"\n.text\n' + a.text() + '.section .rodata,"a"\n' + k
    open(path, "w").write(out)
    import json
    json.dump(WD_SITES, open("wd.json", "w"))


if __name__ == "__main__":
    build(sys.argv[1] if len(sys.argv) > 1 else "mega.s", force_slow=("slow" in sys.argv))
```

```python
from gen_common import *
from gen_rec import S_WSD, S_DBG, E

W = S_WSD
SRD = f"s[{W}:{W+3}]"
S_H = 40
S_WAVE, S_SEG, S_T0, S_T1, S_T2 = 41, 42, 43, 44, 45
S_WM, S_XM = 4, 8
V_L, V_T0, V_T1, V_T2, V_LL = 1, 2, 3, 4, 5


def wdog(a, name):
    wd_code(a, name + ":" + a.lines[-1], f"s{S_SEG}")


def tsx(a, ts, i):
    if E("BPROF", 0):
        ts(i)
        a(f"v_and_b32 v{V_L}, 63, v0")


def pst(i):
    if not E("KPROF", 0): return []
    return ["s_memtime s[76:77]", "s_waitcnt lgkmcnt(0)", "s_sub_u32 s78, s76, s31", f"s_add_u32 s{32+i}, s{32+i}, s78", "s_mov_b32 s31, s76"]


def pinit(a):
    if not E("KPROF", 0): return
    for i in range(8): a(f"s_mov_b32 s{32+i}, 0")
    a("s_memtime s[76:77]\ns_waitcnt lgkmcnt(0)\ns_mov_b32 s31, s76")


def pdump(a):
    if not E("KPROF", 0): return
    a(f"s_lshl_b32 s78, s2, 7\ns_lshl_b32 s77, s{S_WAVE}, 5\ns_add_u32 s78, s78, s77\ns_add_u32 s78, s78, {WS_PROF + 9*MB}\nv_mov_b32 v2, 0\ns_mov_b64 exec, 1")
    for i in range(8):
        a(f"v_mov_b32 v3, s{32+i}\nbuffer_store_dword v3, v2, {SRD}, s78 offen offset:{4*i}\ns_nop 1")
    a("s_mov_b64 exec, -1")


def common(a, ka_w, ka_x, xbytes):
    a(f"""
    s_load_dwordx2 s[{S_WM}:{S_WM+1}], s[0:1], {ka_w}
    s_load_dwordx2 s[{S_XM}:{S_XM+1}], s[0:1], {ka_x}
    v_lshrrev_b32 v{V_T0}, 6, v0
    v_and_b32 v{V_L}, 63, v0
    v_readfirstlane_b32 s{S_WAVE}, v{V_T0}
    v_lshlrev_b32 v{V_LL}, 4, v{V_L}
    s_waitcnt lgkmcnt(0)
    s_mov_b32 s{S_WM+2}, {8*MB}
    s_mov_b32 s{S_WM+3}, 0x00020000
    s_mov_b32 s{S_XM+2}, {xbytes}
    s_mov_b32 s{S_XM+3}, 0x00020000
    """)


def load_weights(a, rowlog, s_base, lane_addr, frag_off, rot=None, cl=2, touch=False):
    a(f"""
    v_lshrrev_b32 v{V_T0}, {cl}, v{V_L}
    v_and_b32 v{V_T1}, {(1 << cl) - 1}, v{V_L}
    v_lshlrev_b32 v16, {rowlog}, v{V_T0}
    v_lshl_add_u32 v16, v{V_T1}, 4, v16
    v_add_u32 v16, s{s_base}, v16
    v_and_b32 v{V_T1}, 3, v{V_L}
    s_lshl_b32 s{S_T2}, s{S_WAVE}, 15
    """)
    RI = 64 >> cl
    a(lane_addr)
    a(f"v_add_u32 v17, s{S_T2}, v17")

    HELP = 1 if (touch and E("BHELP", 1)) else 0
    if HELP:
        a(f"""
        s_and_b32 s{S_T0}, s{S_H}, 3
        s_lshl_b32 s{S_T0}, s{S_T0}, 2
        s_add_u32 s{S_T0}, s{S_T0}, s{S_WAVE}
        s_lshl_b32 s{S_T0}, s{S_T0}, 4
        v_and_b32 v23, 15, v{V_L}
        v_add_u32 v23, s{S_T0}, v23
        s_lshr_b32 s{S_T0}, s{S_H}, 2
        s_lshl_b32 s{S_T0}, s{S_T0}, 10
        s_add_u32 s{S_T1}, s{S_T0}, 896
        s_add_u32 s{S_T0}, s{S_T0}, 384
        s_cmp_ge_u32 s{S_H}, 28
        s_cselect_b32 s{S_T1}, s{S_T1}, s{S_T0}
        v_mov_b32 v24, s{S_T0}
        v_mov_b32 v25, s{S_T1}
        v_cmp_gt_u32 vcc, 32, v{V_L}
        s_nop 1
        v_cndmask_b32 v24, v25, v24, vcc
        v_lshl_add_u32 v23, v23, 13, v24
        """)

    def dma(ch):
        if HELP:
            a(f"s_mov_b32 s{S_T1}, {ch * 2 * MB}\nbuffer_load_dword v22, v23, s[{S_WM}:{S_WM+3}], s{S_T1} offen")
        for r in range(16):
            a(f"s_add_u32 m0, s{S_T2}, {(ch & 1)*16384 + 1024*r}")
            if rot is None:
                a(f"s_mov_b32 s{S_T1}, {(RI * (16 * ch + r)) << rowlog}")
            else:
                a(f"s_add_u32 s{S_T1}, s{rot}, {RI * (16 * ch + r)}\ns_and_b32 s{S_T1}, s{S_T1}, {64 * RI - 1}\ns_lshl_b32 s{S_T1}, s{S_T1}, {rowlog}")
            a(f"buffer_load_dwordx4 v16, s[{S_WM}:{S_WM+3}], s{S_T1} offen {'nt ' if E('BNT', 0) else ''}lds")

    def tr(ch):
        for f in range(16 * ch, 16 * ch + 16):
            for jj in range(2):
                o = frag_off(f, jj) - 16384 * ch
                assert 0 <= o < 16384
                a(f"ds_read_b64_tr_b16 a[{4*f+2*jj}:{4*f+2*jj+1}], v17 offset:{(ch & 1)*16384 + o}")
            if f % 4 == 3:
                a("s_waitcnt lgkmcnt(0)")
    WT = E("BWT", 0) if touch else 0
    if WT:
        a(f"""
        s_lshl_b32 s{S_T0}, s{S_H}, 16
        s_lshl_b32 s{S_T1}, s{S_WAVE}, 14
        s_add_u32 s{S_T0}, s{S_T0}, s{S_T1}
        v_lshlrev_b32 v21, 7, v{V_L}
        v_add_u32 v21, s{S_T0}, v21
        """)
    def tch(n):
        for i in range(2):
            a(f"s_mov_b32 s{S_T1}, {n * 2 * MB + i * 8192}")
            a(f"buffer_load_dword v22, v21, s[{S_WM}:{S_WM+3}], s{S_T1} offen")
    if WT == 1:
        tch(0); tch(1); dma(0); tch(2); dma(1); tch(3)
    elif WT == 2:
        tch(0); tch(1); tch(2); tch(3); dma(0); dma(1)
    else:
        dma(0); dma(1)
    a(f"s_waitcnt vmcnt({(20 if WT == 1 else 16) + HELP})"); tr(0); dma(2)
    a(f"s_waitcnt vmcnt({(18 if WT == 1 else 16) + HELP})"); tr(1); dma(3)
    a("s_waitcnt vmcnt(16)"); tr(2)
    a("s_waitcnt vmcnt(0)"); tr(3)
    a("s_barrier")


def lane32(hi_mul, swap=False, rl=6):
    if swap:
        return lane32(hi_mul).replace(f"v_lshl_add_u32 v17, v{V_T1}, 3, v17", f"""
        v_and_b32 v18, 1, v{V_L}
        v_lshl_add_u32 v17, v18, 4, v17
        v_bfe_u32 v18, v{V_L}, 1, 1
        v_lshl_add_u32 v17, v18, 3, v17""")
    return f"""
    v_bfe_u32 v17, v{V_L}, 2, 2
    v_lshrrev_b32 v18, 5, v{V_L}
    v_mul_u32_u24 v18, {hi_mul}, v18
    v_add_u32 v17, v17, v18
    v_lshlrev_b32 v17, {rl}, v17
    v_bfe_u32 v18, v{V_L}, 4, 1
    v_lshl_add_u32 v17, v18, 5, v17
    v_lshl_add_u32 v17, v{V_T1}, 3, v17
    """


def lane16(qlog):
    return f"""
    v_bfe_u32 v17, v{V_L}, 2, 2
    v_lshrrev_b32 v18, 4, v{V_L}
    v_lshl_add_u32 v17, v18, 3, v17
    v_lshlrev_b32 v17, 6, v17
    v_lshl_add_u32 v17, v{V_T1}, {qlog}, v17
    """


M32 = E('M32', 0)
GR2 = 512 if M32 else 1024
V_DX, V_RA, V_ST = 6, 8, 7
FR, NFR, AHEAD = 20, 8, 6
ACC = (52, 68)
EP = 84
S_XB = 46
S_CU, S_OB, S_FL = 47, 48, 49
S_O0, S_O1, S_OI, S_OT = 64, 65, 66, 67


def proj_setup(a, ka_w, swap):
    assert not M32
    common(a, ka_w, KA_AX, 4 * MB)
    a(f"""
    s_lshl_b32 s{S_T0}, s{S_H}, 8
    s_lshl_b32 s{S_T1}, s{S_WAVE}, 6
    s_add_u32 s{S_OB}, s{S_T0}, s{S_T1}
    s_and_b32 s{S_T0}, s{S_OB}, 0x7ff
    v_add_u32 v19, s{S_T0}, v{V_L}
    v_lshlrev_b32 v19, 7, v19
    buffer_load_dword v250, v19, s[{S_XM}:{S_XM+3}], 0 offen
    s_nop 0
    """)
    a(f"""
    v_lshrrev_b32 v{V_T0}, 3, v{V_L}
    s_lshl_b32 s{S_T0}, s{S_WAVE}, 3
    v_add_u32 v{V_T0}, s{S_T0}, v{V_T0}
    v_bfe_u32 v{V_T1}, v{V_T0}, 1, 3
    v_and_b32 v{V_T2}, 7, v{V_L}
    v_xor_b32 v{V_T1}, v{V_T1}, v{V_T2}
    v_lshlrev_b32 v{V_DX}, 11, v{V_T0}
    v_lshl_add_u32 v{V_DX}, v{V_T1}, 4, v{V_DX}
    s_lshl_b32 s{S_XB}, s{S_WAVE}, 10
    v_and_b32 v{V_T0}, 15, v{V_L}
    v_bfe_u32 v{V_T1}, v{V_T0}, 1, 3
    v_lshrrev_b32 v{V_T2}, 4, v{V_L}
    v_xor_b32 v{V_T1}, v{V_T1}, v{V_T2}
    v_lshlrev_b32 v{V_RA}, 7, v{V_T0}
    v_lshl_add_u32 v{V_RA}, v{V_T1}, 4, v{V_RA}
    v_xor_b32 v{V_RA+1}, 64, v{V_RA}
    v_add_u32 v{V_RA+2}, 0x10000, v{V_RA}
    v_add_u32 v{V_RA+3}, 0x10000, v{V_RA+1}
    v_mov_b32 v{V_ST}, v{V_LL}
    """)
    if M32:
        a(f"""
        v_and_b32 v{V_T0}, 31, v{V_L}
        v_bfe_u32 v{V_T1}, v{V_T0}, 1, 3
        v_lshrrev_b32 v{V_T2}, 5, v{V_L}
        v_xor_b32 v{V_T1}, v{V_T1}, v{V_T2}
        v_lshlrev_b32 v{V_RA}, 7, v{V_T0}
        v_lshl_add_u32 v{V_RA}, v{V_T1}, 4, v{V_RA}
        v_xor_b32 v{V_RA+1}, 32, v{V_RA}
        v_xor_b32 v{V_RA+2}, 64, v{V_RA}
        v_xor_b32 v{V_RA+3}, 96, v{V_RA}
        v_add_u32 v{V_RA+4}, 0x10000, v{V_RA}
        v_add_u32 v{V_RA+5}, 0x10000, v{V_RA+1}
        v_add_u32 v{V_RA+6}, 0x10000, v{V_RA+2}
        v_add_u32 v{V_RA+7}, 0x10000, v{V_RA+3}
        v_bfe_u32 v{V_T1}, v{V_L}, 4, 1
        v_lshlrev_b32 v{V_ST}, 10, v{V_T1}
        v_lshl_add_u32 v{V_ST}, v{V_T2}, 8, v{V_ST}
        v_and_b32 v{V_T1}, 15, v{V_L}
        v_lshl_add_u32 v{V_ST}, v{V_T1}, 4, v{V_ST}
        """)
    a(f"""
    s_lshl_b32 s{S_CU}, s{S_H}, 2
    s_add_u32 s{S_CU}, s{S_CU}, s{S_WAVE}
    s_mov_b32 s{S_SEG}, 0
    s_mov_b32 s50, 0
    """)
    for g in xdma_lines(0, 50):
        a("\n".join(g))
    a(f"""
    v_lshrrev_b32 v{V_T0}, 2, v{V_L}
    v_and_b32 v{V_T1}, 3, v{V_L}
    v_lshlrev_b32 v16, 13, v{V_T0}
    v_lshl_add_u32 v16, v{V_T1}, 4, v16
    v_add_u32 v16, s{S_OB}, v16
    s_mul_i32 s{S_T2}, s{S_WAVE}, 24576
    s_add_u32 s{S_T2}, s{S_T2}, 65536
    """)
    a(lane16(4 if swap else 3))
    a(f"""
    v_add_u32 v17, s{S_T2}, v17
    s_and_b32 s{S_T0}, s{S_H}, 3
    s_lshl_b32 s{S_T0}, s{S_T0}, 2
    s_add_u32 s{S_T0}, s{S_T0}, s{S_WAVE}
    s_lshl_b32 s{S_T0}, s{S_T0}, 3
    v_and_b32 v12, 7, v{V_L}
    v_add_u32 v12, s{S_T0}, v12
    s_lshr_b32 s{S_T0}, s{S_H}, 2
    s_lshl_b32 s{S_T0}, s{S_T0}, 10
    s_add_u32 s{S_T1}, s{S_T0}, 896
    s_add_u32 s{S_T0}, s{S_T0}, 384
    s_cmp_ge_u32 s{S_H}, 28
    s_cselect_b32 s{S_T1}, s{S_T1}, s{S_T0}
    v_mov_b32 v13, s{S_T0}
    v_mov_b32 v14, s{S_T1}
    v_cmp_gt_u32 vcc, 32, v{V_L}
    s_nop 1
    v_cndmask_b32 v13, v14, v13, vcc
    v_lshl_add_u32 v12, v12, 13, v13
    """)

    def dma(ch):
        a(f"s_mov_b32 s{S_T1}, {min(ch + E('HA', 0), 7) * MB}\nbuffer_load_dword v250, v12, s[{S_WM}:{S_WM+3}], s{S_T1} offen")
        for r in range(8):
            a(f"s_add_u32 m0, s{S_T2}, {(ch % 3)*8192 + 1024*r}")
            a(f"s_mov_b32 s{S_T1}, {(128 * ch + 16 * r) << 13}")
            a(f"buffer_load_dwordx4 v16, s[{S_WM}:{S_WM+3}], s{S_T1} offen {'nt ' if E('BNT', 0) else ''}lds")
    for ch in range(3): dma(ch)
    acc = ACC[0]
    for ch in range(8):
        a(f"s_waitcnt vmcnt({9 * min(2, 7 - ch)})")
        if ch == 0: a("s_barrier")
        for f in range(8 * ch, 8 * ch + 8):
            for jj in range(2):
                o = (32 * ((f >> 1) - 4 * ch) + 4 * jj) * 64 + (f & 1) * (8 if swap else 32)
                a(f"ds_read_b64_tr_b16 a[{4*f+2*jj}:{4*f+2*jj+1}], v17 offset:{(ch % 3)*8192 + o}")
            if f % 4 == 3: a("s_waitcnt lgkmcnt(0)")
        for n in range(8 * ch, 8 * ch + 8):
            k = n >> 1
            a(f"ds_read_b128 v[{FR+4*(n%8)}:{FR+4*(n%8)+3}], v{V_RA + (k & 1)} offset:{4096*(k >> 1) + 2048*(n & 1)}")
        if ch + 3 < 8: dma(ch + 3)
        a("s_waitcnt lgkmcnt(0)")
        for n in range(8 * ch, 8 * ch + 8):
            k, tt, f = n >> 1, n & 1, FR + 4 * (n % 8)
            for u in range(2):
                d, w = acc + 8 * tt + 4 * u, 4 * (2 * k + u)
                c = "0" if k == 0 else f"v[{d}:{d+3}]"
                if swap: a(f"v_mfma_f32_16x16x32_bf16 v[{d}:{d+3}], a[{w}:{w+3}], v[{f}:{f+3}], {c}")
                else: a(f"v_mfma_f32_16x16x32_bf16 v[{d}:{d+3}], v[{f}:{f+3}], a[{w}:{w+3}], {c}")
    a("s_barrier\ns_mov_b32 s50, 0x10000")
    for g in xdma_lines(1, 50):
        a("\n".join(g))


def xdma_lines(buf, s_off):
    out = []
    for kb in range(16):
        out.append([f"s_add_u32 m0, s{S_XB}, {buf*65536 + kb*3968}", "s_nop 0",
                    f"buffer_load_dwordx4 v{V_DX}, s[{S_XM}:{S_XM+3}], s{s_off} offen offset:{128*kb} lds"])
    return out


def proj_segment(a, buf, acc, wA, fill, stg=None):
    def rd(n):
        f = FR + 4 * (n % NFR)
        k = n >> 1
        if M32:
            a(f"ds_read_b128 v[{f}:{f+3}], v{V_RA + 4*buf + (n & 3)} offset:{4096*(n >> 2)}")
        else:
            a(f"ds_read_b128 v[{f}:{f+3}], v{V_RA + 2*buf + (k & 1)} offset:{4096*(k >> 1) + 2048*(n & 1)}")
    for n in range(AHEAD):
        rd(n)
    for l in fill.get(-1, []):
        a(l)
    for n in range(64):
        f = FR + 4 * (n % NFR)
        k, tt = n >> 1, n & 1
        fl = list(fill.get(n, []))
        if fl and "m0" in fl[0] and fl[1] == "s_nop 0":
            a(fl[0]); fl = fl[2:]
        if not (E("LG2", 1) and n % 2 == 1 and n + AHEAD < 64):
            a(f"s_waitcnt lgkmcnt({min(AHEAD, 64 - n) - 1 - (1 if E('LG2', 1) and n + 1 + AHEAD < 64 else 0)})")
        if M32:
            c = "0" if n == 0 else f"v[{acc}:{acc+15}]"
            if wA:
                a(f"v_mfma_f32_32x32x16_bf16 v[{acc}:{acc+15}], a[{4*n}:{4*n+3}], v[{f}:{f+3}], {c}")
            else:
                a(f"v_mfma_f32_32x32x16_bf16 v[{acc}:{acc+15}], v[{f}:{f+3}], a[{4*n}:{4*n+3}], {c}")
            if n + AHEAD < 64:
                rd(n + AHEAD)
        for u in range(0 if M32 else 2):
            d = acc + 8 * tt + 4 * u
            w = 4 * (2 * k + u)
            c = "0" if k == 0 else f"v[{d}:{d+3}]"
            if stg is not None and k == 31: d += stg - acc
            if wA:
                a(f"v_mfma_f32_16x16x32_bf16 v[{d}:{d+3}], a[{w}:{w+3}], v[{f}:{f+3}], {c}")
            else:
                a(f"v_mfma_f32_16x16x32_bf16 v[{d}:{d+3}], v[{f}:{f+3}], a[{w}:{w+3}], {c}")
            if u == 0 and n + AHEAD < 64:
                rd(n + AHEAD)
        for l in fl:
            a(l)


def pack_lines(acc, isV):
    src = [0, 2, 8, 10, 4, 6, 12, 14] if isV else [0, 2, 4, 6, 8, 10, 12, 14]
    return [f"v_cvt_pk_bf16_f32 v{EP+i}, v{acc+s}, v{acc+s+1}" for i, s in enumerate(src)]


def kvx(cu):
    m = E("KVPAR", 0)
    return ["", f"s_xor_b32 s{S_T1}, s{S_T1}, 1", f"s_xor_b32 s{S_T1}, s{S_T1}, s{cu}"][m]


def near_base(a, dst, cu, log, region):
    a(f"""
    s_lshr_b32 s{S_T1}, s{cu}, {21 - log}
    s_xor_b32 s{S_T1}, s{S_T1}, s98
    {kvx(cu) if log == 18 else ""}
    s_and_b32 s{S_T1}, s{S_T1}, 1
    s_lshl_b32 s{S_T1}, s{S_T1}, 13
    s_lshl_b32 s{dst}, s{cu}, {log}
    s_add_u32 s{dst}, s{dst}, s{S_T1}
    s_add_u32 s{dst}, s{dst}, {region}
    """)


def kv_role(a: Asm, name, isV, ts, sync):
    proj_setup(a, KA_WV if isV else KA_WK, not isV)
    tsx(a, ts, 2)
    def store_lines():
        return [f"s_add_u32 s51, s{S_SEG}, s{S_CU}", "s_sub_u32 s51, s51, 1", "s_bfe_u32 s52, s51, 0x40002", "s_lshl_b32 s52, s52, 14",
                "s_and_b32 s51, s51, 3", "s_lshl_b32 s51, s51, 11", "s_add_u32 s51, s51, s52", f"s_add_u32 s51, s51, s{S_OB}",
                f"buffer_store_dwordx4 v[{EP}:{EP+3}], v{V_ST}, {SRD}, s51 offen sc1",
                f"buffer_store_dwordx4 v[{EP+4}:{EP+7}], v{V_ST}, {SRD}, s51 offen offset:{GR2} sc1"]

    def flag_lines():
        return [f"v_mov_b32 v17, s{S_SEG}", "s_mov_b64 exec, 1", f"buffer_store_dword v17, v16, {SRD}, s{S_FL} offen sc1", "s_mov_b64 exec, -1"]

    def seg(buf, first):
        a("\n".join(pst(0)))
        a(f"s_waitcnt vmcnt({0 if first else 2})")
        a("\n".join(pst(1)))
        a("s_barrier")
        a("\n".join(pst(2)))
        a(f"s_add_u32 s50, s{S_SEG}, 1\ns_min_u32 s50, s50, 63\ns_lshl_b32 s50, s50, 16")
        fill = {}
        if not first:
            pk = pack_lines(ACC[1 - buf], isV)
            fill[0] = pk[:3]; fill[1] = pk[3:6]; fill[2] = pk[6:]
            st = store_lines()
            fill[3] = st[:4]; fill[4] = st[4:9]; fill[5] = st[9:]
            fill[E("FG", 42)] = pst(3) + ["s_waitcnt vmcnt(16)"] + pst(4) + flag_lines()
        fill[E("FG", 42) + 2] = [f"s_add_u32 s53, s{S_SEG}, 3", "s_min_u32 s53, s53, 63", "s_lshl_b32 s53, s53, 16",
                    "s_mov_b64 exec, 0xffff", f"buffer_load_dword v250, v19, s[{S_XM}:{S_XM+3}], s53 offen", "s_mov_b64 exec, -1"]
        for i, g in enumerate(xdma_lines(1 - buf, 50)):
            fill[7 + 2 * i] = g
        proj_segment(a, buf, ACC[buf], not isV, fill)
        a(f"s_add_u32 s{S_SEG}, s{S_SEG}, 1")
    a(f"s_and_b32 s53, s{S_CU}, 31\ns_lshl_b32 s53, s53, 4\nv_add_u32 v19, s53, v{V_L}\nv_lshlrev_b32 v19, 7, v19")
    pinit(a)
    a(f"s_mov_b32 s{S_SEG}, 1")
    sync(V_T0)
    tsx(a, ts, 3)
    near_base(a, S_OB, S_CU, 18, WS_VT if isV else WS_KX)
    a(f"""
    s_xor_b32 s{S_T1}, s98, 1
    s_lshl_b32 s{S_T1}, s{S_T1}, 13
    s_lshl_b32 s{S_FL}, s{S_H}, 7
    s_add_u32 s{S_FL}, s{S_FL}, s{S_T1}
    s_lshl_b32 s{S_T1}, s{S_WAVE}, 2
    s_add_u32 s{S_FL}, s{S_FL}, s{S_T1}
    s_add_u32 s{S_FL}, s{S_FL}, {WS_F + (F_V if isV else F_K)}
    v_mov_b32 v16, 0
    """)

    a("\n".join(pack_lines(ACC[0], isV) + store_lines() + ["s_waitcnt vmcnt(0)"] + flag_lines()))
    a.label(f"{name}_loop")
    seg(1, False)
    a(f"s_cmp_eq_u32 s{S_SEG}, 64\ns_cbranch_scc1 {name}_fin")
    seg(0, False)
    a(f"s_branch {name}_loop")
    a.label(f"{name}_fin")
    a.nops(12)
    a("\n".join(pack_lines(ACC[1], isV) + store_lines() + ["s_waitcnt vmcnt(0)"] + flag_lines()))
    pdump(a)
    a("s_waitcnt vmcnt(0)\ns_barrier")


def qx_role(a: Asm, name, ts, sync):
    if E('NI', 64) == 64: sync(V_T0)
    proj_setup(a, KA_WQ, True)
    if E('NI', 64) == 32: sync(V_T0)
    tsx(a, ts, 3)
    L_Q, L_KV, L_KM = 131072, 139264, 155648
    S_NT, S_EH, S_C, S_KVN, S_KMN = 52, 53, 54, 55, 56
    S_KB, S_MB, S_LK, S_LM = 58, 59, 60, 61
    S_MK = 12
    V_G, V_M, V_OKM, V_OVM, V_OO, V_NEG, V_CM, V_OF, V_OF2, V_QW, V_QR = 92, 93, 94, 95, 96, 97, 98, 99, 100, 101, 102
    ONE, LS = 104, 108
    V_KR, V_VR = 103, 240
    KX, VT, KM, VM, Q, S, P, O, TMP = 112, 144, 160, 176, 184, 200, 212, 220, 236
    a(f"""
    v_lshrrev_b32 v{V_G}, 4, v{V_L}
    v_and_b32 v{V_M}, 15, v{V_L}
    s_and_b32 s{S_NT}, s{S_WAVE}, 1
    s_lshr_b32 s{S_EH}, s{S_WAVE}, 1
    s_mov_b32 s{S_C}, 0x3e0293ee
    s_mov_b32 s{S_KVN}, 0
    s_mov_b32 s{S_KMN}, 0
    v_mov_b32 v{V_NEG}, 0xff7fffff
    v_and_b32 v{V_T0}, 7, v{V_M}
    v_lshlrev_b32 v{V_OKM}, 7, v{V_G}
    v_lshl_add_u32 v{V_OKM}, v{V_T0}, 4, v{V_OKM}
    v_and_b32 v{V_T0}, 31, v{V_L}
    v_lshlrev_b32 v{V_OVM}, 3, v{V_T0}
    v_lshrrev_b32 v{V_T0}, 1, v{V_G}
    v_lshlrev_b32 v{V_OO}, 10, v{V_T0}
    v_and_b32 v{V_T0}, 1, v{V_G}
    v_lshl_add_u32 v{V_OO}, v{V_T0}, 9, v{V_OO}
    v_lshl_add_u32 v{V_OO}, v{V_M}, 4, v{V_OO}
    s_lshl_b32 s{S_T0}, s{S_H}, 13
    s_lshl_b32 s{S_T1}, s{S_EH}, 12
    s_add_u32 s{S_T0}, s{S_T0}, s{S_T1}
    s_lshl_b32 s{S_T1}, s{S_NT}, 8
    s_add_u32 s{S_T0}, s{S_T0}, s{S_T1}
    s_add_u32 s{S_T0}, s{S_T0}, {WS_O}
    v_add_u32 v{V_OO}, s{S_T0}, v{V_OO}
    s_lshl_b32 s{S_T0}, s{S_NT}, 4
    v_add_u32 v{V_CM}, s{S_T0}, v{V_M}
    v_lshlrev_b32 v{V_T0}, 2, v{V_G}
    v_sub_u32 v{V_CM}, v{V_CM}, v{V_T0}
    s_mov_b32 s28, 0
    s_mov_b32 s29, -1
    s_xor_b32 s{S_T1}, s98, 1
    s_lshl_b32 s{S_T1}, s{S_T1}, 13
    s_lshl_b32 s{S_T0}, s{S_H}, 7
    s_add_u32 s{S_T0}, s{S_T0}, s{S_T1}
    s_add_u32 s{S_T0}, s{S_T0}, {WS_F}
    v_and_b32 v{V_T0}, 3, v{V_L}
    v_bfe_u32 v{V_T1}, v{V_L}, 2, 1
    v_lshlrev_b32 v{V_OF}, 12, v{V_T1}
    v_lshl_add_u32 v{V_OF}, v{V_T0}, 2, v{V_OF}
    v_add_u32 v{V_OF}, s{S_T0}, v{V_OF}
    s_xor_b32 s62, s98, 1
    s_lshl_b32 s62, s62, 13
    s_lshr_b32 s{S_T1}, s{S_CU}, 6
    s_lshl_b32 s{S_T1}, s{S_T1}, 14
    s_add_u32 s62, s62, s{S_T1}
    s_and_b32 s{S_T1}, s{S_CU}, 63
    s_lshl_b32 s{S_T1}, s{S_T1}, 7
    s_add_u32 s62, s62, s{S_T1}
    s_add_u32 s62, s62, {WS_F + F_KVM}
    s_lshl_b32 s{S_FL}, s{S_CU}, 2
    s_add_u32 s{S_FL}, s{S_FL}, {WS_F + F_O}
    s_lshl_b32 s{S_T0}, s{S_WAVE}, 11
    s_add_u32 s{S_T0}, s{S_T0}, {L_Q}
    v_add_u32 v{V_QW}, s{S_T0}, v{V_ST}
    s_lshl_b32 s{S_T0}, s{S_NT}, 10
    s_add_u32 s{S_T0}, s{S_T0}, {L_Q}
    v_add_u32 v{V_QR}, s{S_T0}, v{V_LL}
    v_mov_b32 v16, 0
    s_mov_b32 s50, 0
    """)
    for i in range(4):
        a(f"v_mov_b32 v{ONE+i}, 0x3f803f80")
    for t in range(2):
        for r in range(4):
            a(f"v_cmp_gt_i32 s[{S_MK+8*t+2*r}:{S_MK+8*t+2*r+1}], {16*t+r}, v{V_CM}")
    near_base(a, S_KB, S_CU, 18, WS_KX)
    near_base(a, S_MB, S_CU, 17, WS_KVM)
    a(f"""
    s_lshl_b32 s{S_LK}, s{S_WAVE}, 11
    s_add_u32 s{S_LK}, s{S_LK}, {L_KV}
    s_lshl_b32 s{S_LM}, s{S_WAVE}, 10
    s_add_u32 s{S_LM}, s{S_LM}, {L_KM}
    v_add_u32 v{V_OKM}, {L_KM}, v{V_OKM}
    s_lshl_b32 s{S_T0}, s{S_EH}, 11
    s_add_u32 s{S_T0}, s{S_T0}, {L_KM + 512}
    v_add_u32 v{V_OVM}, s{S_T0}, v{V_OVM}
    v_add_u32 v{V_KR}, {L_KV}, v{V_LL}
    s_lshl_b32 s{S_T0}, s{S_EH}, 12
    s_add_u32 s{S_T0}, s{S_T0}, {L_KV + 8192}
    v_add_u32 v{V_VR}, s{S_T0}, v{V_LL}
    """)
    a("s_waitcnt vmcnt(0)")

    def wait_flag(tag, known, voff, sleep):
        a(f"""
        s_cmp_gt_i32 s{known}, s{S_SEG}
        s_cbranch_scc1 {name}_{tag}k
{name}_{tag}w:
        """)
        wdog(a, name)
        a(f"""
        buffer_load_dword v{V_T0}, v{voff}, {SRD}, 0 offen sc1
        s_waitcnt vmcnt(0)
        v_min_i32_dpp v{V_T0}, v{V_T0}, v{V_T0} quad_perm:[1,0,3,2] row_mask:0xf bank_mask:0xf
        s_nop 1
        v_min_i32_dpp v{V_T0}, v{V_T0}, v{V_T0} quad_perm:[2,3,0,1] row_mask:0xf bank_mask:0xf
        s_nop 1
        v_min_i32_dpp v{V_T0}, v{V_T0}, v{V_T0} row_ror:4 row_mask:0xf bank_mask:0xf
        s_nop 0
        v_readfirstlane_b32 s{known}, v{V_T0}
        s_cmp_gt_i32 s{known}, s{S_SEG}
        s_cbranch_scc1 {name}_{tag}k
        s_sleep {sleep}
        s_branch {name}_{tag}w
{name}_{tag}k:
        """)

    def flag_lines():
        return [f"v_mov_b32 v17, s{S_SEG}", "s_mov_b64 exec, 1", f"buffer_store_dword v17, v16, {SRD}, s{S_FL} offen sc1", "s_mov_b64 exec, -1"]

    def kmpoll_lines():
        if E("APOLL", 1):
            return [f"v_mov_b32 v{V_OF2}, 0", "s_mov_b64 exec, 1", f"buffer_atomic_add v{V_OF2}, v16, {SRD}, s62 offen sc0 sc1", "s_mov_b64 exec, -1"]
        return [f"buffer_load_dword v{V_OF2}, v16, {SRD}, s62 offen sc1"]

    def km_lines():
        return [f"s_mov_b32 m0, s{S_LM}", "s_nop 0", f"buffer_load_dwordx4 v{V_LL}, {SRD}, s68 offen sc1 lds"]

    def seg(buf):
        a("s_barrier")
        a("\n".join(pst(0)))
        wait_flag(f"kv{buf}", S_KVN, V_OF, 4)
        sal = f"""s_add_u32 s51, s{S_CU}, s{S_SEG}
        s_bfe_u32 s57, s51, 0x40002
        s_lshl_b32 s57, s57, 14
        s_and_b32 s66, s51, 3
        s_lshl_b32 s66, s66, 11
        s_add_u32 s66, s66, s57
        s_add_u32 s66, s66, s{S_KB}
        s_add_u32 s67, s66, {WS_VT}
        s_bfe_u32 s57, s51, 0x30003
        s_lshl_b32 s57, s57, 14
        s_and_b32 s68, s51, 7
        s_lshl_b32 s68, s68, 10
        s_add_u32 s68, s68, s57
        s_add_u32 s68, s68, s{S_MB}
        s_add_u32 s50, s{S_SEG}, 2
        s_min_u32 s50, s50, 63
        s_lshl_b32 s50, s50, 16
        s_cmp_gt_i32 s{S_KMN}, s{S_SEG}
        s_cselect_b32 s30, 1, 0""".split("\n")
        fill = {-1: sal}
        for i in range(4):
            fill[2 * i] = [f"s_add_u32 m0, s{S_LK}, {8192 * (i >> 1)}", "s_nop 0",
                           f"buffer_load_dwordx4 v{V_LL}, {SRD}, s{66 + (i >> 1)} offen offset:{1024 * (i & 1)} sc1 lds"]
        fill[8] = ["s_cmp_eq_u32 s30, 1", f"s_cbranch_scc0 {name}_ke{buf}"] + km_lines() + [f"{name}_ke{buf}:"]
        for i, g in enumerate(xdma_lines(1 - (buf & 1), 50)):
            fill[10 + 2 * i] = g
        a("\n".join(pst(1)))
        fill[27] = ["s_waitcnt vmcnt(13)"] + flag_lines()
        fill[29] = kmpoll_lines()
        pk = pack_lines(ACC[1], False)
        for i in range(4): fill[43 + 2 * i] = pk[2*i:2*i+2]
        fill[54] = ["s_waitcnt vmcnt(6)", f"v_readfirstlane_b32 s{S_KMN}, v{V_OF2}", "s_cmp_eq_u32 s30, 1", f"s_cbranch_scc1 {name}_kf{buf}",
                    f"s_cmp_gt_i32 s{S_KMN}, s{S_SEG}", f"s_cbranch_scc0 {name}_kf{buf}", "s_mov_b32 s30, 1"] + km_lines() + [f"{name}_kf{buf}:"]
        fill[61] = [f"ds_write_b128 v{V_QW}, v[{EP}:{EP+3}]", f"ds_write_b128 v{V_QW}, v[{EP+4}:{EP+7}] offset:{GR2}"]
        if buf < 2:
            proj_segment(a, buf, ACC[0], True, fill, stg=ACC[1])
        else:
            for i in (-1, 0, 2, 4, 6, 8, 43, 45, 47, 49, 61):
                a("\n".join(fill[i]))
            a("\n".join(["s_waitcnt vmcnt(4)"] + flag_lines()))
        a("\n".join(pst(2)))
        a(f"s_cmp_eq_u32 s30, 1\ns_cbranch_scc1 {name}_kl{buf}")
        a.label(f"{name}_kw{buf}")
        wdog(a, name)
        a("\n".join(kmpoll_lines()))
        a(f"""
        s_waitcnt vmcnt(0)
        v_readfirstlane_b32 s{S_KMN}, v{V_OF2}
        s_cmp_gt_i32 s{S_KMN}, s{S_SEG}
        s_cbranch_scc0 {name}_kw{buf}
        """)
        a("\n".join(km_lines()))
        a.label(f"{name}_kl{buf}")
        a("\n".join(pst(4)))
        a(f"""
        s_waitcnt lgkmcnt(0) vmcnt(0)
        s_barrier
        """)
        a("\n".join(pst(5)))
        for j in range(4):
            a(f"ds_read_b128 v[{Q+4*j}:{Q+4*j+3}], v{V_QR} offset:{2048*j}")
            for t in range(2):
                a(f"ds_read_b128 v[{KX+16*t+4*j}:{KX+16*t+4*j+3}], v{V_KR} offset:{2048*j + 1024*t}")
        for j in range(4):
            a(f"s_waitcnt lgkmcnt({9 - 2*j})")
            for t in range(2):
                c = "0" if j == 0 else f"v[{S+4*t}:{S+4*t+3}]"
                a(f"v_mfma_f32_16x16x32_bf16 v[{S+4*t}:{S+4*t+3}], v[{KX+16*t+4*j}:{KX+16*t+4*j+3}], v[{Q+4*j}:{Q+4*j+3}], {c}")
            a(f"ds_read_b128 v[{KM+4*j}:{KM+4*j+3}], v{V_OKM} offset:{1024*j}")
        for j in range(4):
            a(f"s_waitcnt lgkmcnt({3 + j})")
            c = "0" if j == 0 else f"v[{S+8}:{S+11}]"
            a(f"v_mfma_f32_16x16x32_bf16 v[{S+8}:{S+11}], v[{KM+4*j}:{KM+4*j+3}], v[{Q+4*j}:{Q+4*j+3}], {c}")
            a(f"ds_read_b128 v[{VT+4*j}:{VT+4*j+3}], v{V_VR} offset:{1024*j}")
            a(f"ds_read_b64 v[{VM+2*j}:{VM+2*j+1}], v{V_OVM} offset:{1024*(j >> 1) + 256*(j & 1)}")
        a.nops(4)
        for i in range(8):
            a(f"v_cndmask_b32 v{S+i}, v{S+i}, v{V_NEG}, s[{S_MK+2*i}:{S_MK+2*i+1}]")
        for i in range(4):
            a(f"v_cndmask_b32 v{S+8+i}, v{S+8+i}, v{V_NEG}, s[28:29]")
        MX, TM, SM = TMP, TMP + 1, TMP + 2
        a(f"v_max3_f32 v{MX}, v{S}, v{S+1}, v{S+2}")
        for i in range(3, 11, 2):
            a(f"v_max3_f32 v{MX}, v{MX}, v{S+i}, v{S+i+1}")
        a(f"""
        v_max_f32 v{TM}, v{MX}, v{S+11}
        v_max_f32 v{MX}, v{MX}, v{S+11}
        s_nop 1
        v_permlane16_swap_b32 v{MX}, v{TM}
        s_nop 0
        v_max_f32 v{SM}, v{MX}, v{TM}
        v_max_f32 v{SM+1}, v{MX}, v{TM}
        s_nop 1
        v_permlane32_swap_b32 v{SM}, v{SM+1}
        s_nop 0
        v_max_f32 v{MX}, v{SM}, v{SM+1}
        v_mul_f32 v{MX}, s{S_C}, v{MX}
        """)
        for i in range(0, 12, 2):
            a(f"v_pk_fma_f32 v[{S+i}:{S+i+1}], v[{S+i}:{S+i+1}], s[{S_C}:{S_C+1}], v[{MX}:{MX+1}] op_sel_hi:[1,0,0] neg_lo:[0,0,1] neg_hi:[0,0,1]")
        for i in range(12):
            a(f"v_exp_f32 v{S+i}, v{S+i}")
        a.nops(1)
        for i in range(6):
            a(f"v_cvt_pk_bf16_f32 v{P+i}, v{S+2*i}, v{S+2*i+1}")
        a("s_waitcnt lgkmcnt(0)\ns_nop 0")
        a(f"v_mfma_f32_16x16x32_bf16 v[{LS}:{LS+3}], v[{ONE}:{ONE+3}], v[{P}:{P+3}], 0")
        for T in range(4):
            a(f"v_mfma_f32_16x16x32_bf16 v[{O+4*T}:{O+4*T+3}], v[{VT+4*T}:{VT+4*T+3}], v[{P}:{P+3}], 0")
        a(f"v_mfma_f32_16x16x16_bf16 v[{LS}:{LS+3}], v[{ONE}:{ONE+1}], v[{P+4}:{P+5}], v[{LS}:{LS+3}]")
        for T in range(4):
            a(f"v_mfma_f32_16x16x16_bf16 v[{O+4*T}:{O+4*T+3}], v[{VM+2*T}:{VM+2*T+1}], v[{P+4}:{P+5}], v[{O+4*T}:{O+4*T+3}]")
        a(f"""
        s_lshl_b32 s51, s{S_SEG}, 18
        s_nop 2
        v_rcp_f32 v{SM}, v{LS}
        v_rcp_f32 v{SM+1}, v{LS+1}
        s_nop 1
        """)
        for i in range(0, 16, 2):
            a(f"v_pk_mul_f32 v[{O+i}:{O+i+1}], v[{O+i}:{O+i+1}], v[{SM}:{SM+1}]")
        for i in range(8):
            a(f"v_cvt_pk_bf16_f32 v{S+i}, v{O+2*i}, v{O+2*i+1}")
        a(f"""
        buffer_store_dwordx4 v[{S}:{S+3}], v{V_OO}, {SRD}, s51 offen sc1
        buffer_store_dwordx4 v[{S+4}:{S+7}], v{V_OO}, {SRD}, s51 offen offset:2048 sc1
        s_add_u32 s{S_SEG}, s{S_SEG}, 1
        """)
        a("\n".join(pst(6)))
    pinit(a)
    for i in range(16):
        a(f"v_mov_b32 v{ACC[1]+i}, v{ACC[0]+i}")
    a.label(f"{name}_loop")
    seg(1)
    a(f"s_cmp_eq_u32 s{S_SEG}, 63\ns_cbranch_scc1 {name}_last")
    seg(0)
    a(f"s_branch {name}_loop")
    a.label(f"{name}_last")
    seg(2)
    a("\n".join(["s_waitcnt vmcnt(0)"] + flag_lines()))
    pdump(a)
    a.label(f"{name}_quit")
    ts(4)
    a("s_endpgm")


def out_role(a: Asm, name, ts):
    common(a, KA_WO, KA_OUT, 8 * MB)
    S_ON, S_PAR, S_PRE, S_ROT, S_PEND, S_KH, S_C = 52, 53, 55, 56, 57, 58, 59
    V_OL, V_OF, V_LW, V_LRK, V_LRS, V_OS, V_SND, V_RCV = 6, 7, 8, 9, 10, 11, 12, 13
    ACCO, RD, KEEP, INB, F0, NF, STG = 20, 52, 84, 88, 96, 32, 224
    HS, QS, US, WSs, PS = 544, 1088, 4352, 8704, 34816
    a(f"""
    s_and_b32 s{S_KH}, s{S_H}, 1
    s_lshr_b32 s{S_C}, s{S_H}, 1
    s_lshl_b32 s{S_T0}, s{S_KH}, 22
    s_lshl_b32 s{S_T1}, s{S_WAVE}, 20
    s_add_u32 s{S_T0}, s{S_T0}, s{S_T1}
    s_lshl_b32 s{S_T1}, s{S_C}, 7
    s_add_u32 s{S_OB}, s{S_T0}, s{S_T1}
    s_and_b32 s{S_ROT}, s{S_C}, {7 if E("ROT8", 1) else 3}
    s_lshl_b32 s{S_ROT}, s{S_ROT}, {6 if E("ROT8", 1) else 7}
    """)
    load_weights(a, 11, S_OB, lane32(4, rl=7), lambda f, jj: (128 * (f >> 4) + 32 * ((f >> 2) & 3) + 8 * ((f >> 1) & 1) + 16 * jj) * 128 + 64 * (f & 1), rot=S_ROT, cl=3)
    a(f"""
    s_lshl_b32 s{S_ROT}, s{S_ROT}, 6
    s_lshl_b32 s{S_T0}, s{S_KH}, 17
    s_lshl_b32 s{S_T1}, s{S_WAVE}, 15
    s_add_u32 s{S_T0}, s{S_T0}, s{S_T1}
    s_add_u32 s{S_T0}, s{S_T0}, {WS_O}
    v_add_u32 v{V_OL}, s{S_T0}, v{V_LL}
    v_and_b32 v{V_T0}, 15, v{V_L}
    v_lshlrev_b32 v{V_OF}, 2, v{V_T0}
    s_lshl_b32 s{S_T0}, s{S_KH}, 8
    s_lshl_b32 s{S_T1}, s{S_WAVE}, 6
    s_add_u32 s{S_T0}, s{S_T0}, s{S_T1}
    s_add_u32 s{S_T0}, s{S_T0}, {WS_F + F_O}
    v_add_u32 v{V_OF}, s{S_T0}, v{V_OF}
    s_mul_i32 s{S_T0}, s{S_WAVE}, {WSs}
    v_lshrrev_b32 v{V_T0}, 5, v{V_L}
    v_lshl_add_u32 v{V_LW}, v{V_T0}, 5, v{V_LL}
    v_add_u32 v{V_LW}, s{S_T0}, v{V_LW}
    v_and_b32 v{V_T0}, 7, v{V_L}
    v_mul_u32_u24 v{V_LRK}, {HS}, v{V_T0}
    v_lshrrev_b32 v{V_T1}, 3, v{V_L}
    v_lshl_add_u32 v{V_LRK}, v{V_T1}, 4, v{V_LRK}
    s_lshl_b32 s{S_T0}, s{S_WAVE}, 7
    v_add_u32 v{V_LRK}, s{S_T0}, v{V_LRK}
    s_mul_i32 s{S_T0}, s{S_KH}, {US}
    s_sub_u32 s{S_T1}, {US}, s{S_T0}
    v_add_u32 v{V_LRS}, s{S_T1}, v{V_LRK}
    v_add_u32 v{V_LRK}, s{S_T0}, v{V_LRK}
    s_lshl_b32 s{S_T0}, s{S_WAVE}, 15
    s_lshl_b32 s{S_T1}, s{S_H}, 6
    s_add_u32 s{S_T0}, s{S_T0}, s{S_T1}
    v_lshlrev_b32 v{V_OS}, 12, v{V_T1}
    v_and_b32 v{V_T0}, 7, v{V_L}
    v_lshl_add_u32 v{V_OS}, v{V_T0}, 3, v{V_OS}
    v_add_u32 v{V_OS}, s{S_T0}, v{V_OS}
    s_lshl_b32 s{S_T0}, s{S_H}, 13
    s_lshl_b32 s{S_T1}, s{S_WAVE}, 10
    s_add_u32 s{S_T0}, s{S_T0}, s{S_T1}
    s_add_u32 s{S_T0}, s{S_T0}, {WS_OI}
    s_add_u32 s{S_T0}, s{S_T0}, s{S_OI}
    v_add_u32 v{V_RCV}, s{S_T0}, v{V_LL}
    v_xor_b32 v{V_SND}, 8192, v{V_RCV}
    s_mov_b32 s{S_SEG}, s{S_O0}
    s_mov_b32 s{S_ON}, 0
    s_mov_b32 s{S_PAR}, 0
    s_mov_b32 s{S_PEND}, 0
    """)

    def ld(k, sbase):
        f = F0 + 4 * k
        if k % 4 == 0:
            a(f"s_add_u32 s51, s{S_ROT}, {1024 * k}\ns_and_b32 s51, s51, 0x7fff\ns_add_u32 s51, s51, s{sbase}")
        a(f"buffer_load_dwordx4 v[{f}:{f+3}], v{V_OL}, {SRD}, s51 offen offset:{1024*(k & 3)} sc1")

    def mf(k):
        f = F0 + 4 * k
        for u in range(2):
            d = ACCO + 16 * u
            c = "0" if k == 0 else f"v[{d}:{d+15}]"
            if k == NF - 1: d = STG + 16 * u
            a(f"v_mfma_f32_32x32x16_bf16 v[{d}:{d+15}], a[{8*k+4*u}:{8*k+4*u+3}], v[{f}:{f+3}], {c}")

    def inb(sreg):
        a(f"s_and_b32 s60, s{sreg}, 1\ns_lshl_b32 s60, s60, 12")
        a(f"buffer_load_dwordx4 v[{INB}:{INB+3}], v{V_RCV}, {SRD}, s60 offen sc1")

    def fin(tag, sreg, cnt):
        a(f"s_bfe_u32 s61, s{sreg}, 0x10001\ns_xor_b32 s61, s61, s{S_OT}\ns_waitcnt vmcnt({cnt})")
        a.label(f"{name}_{tag}c")
        a(f"""
        v_and_b32 v14, 1, v{INB}
        v_cmp_ne_u32 vcc, s61, v14
        s_cbranch_vccz {name}_{tag}k
        """)
        wdog(a, name)
        inb(sreg)
        a(f"s_waitcnt vmcnt(0)\ns_branch {name}_{tag}c")
        a.label(f"{name}_{tag}k")
        a(f"""
        v_pk_add_f32 v[{INB}:{INB+1}], v[{INB}:{INB+1}], v[{KEEP}:{KEEP+1}]
        v_pk_add_f32 v[{INB+2}:{INB+3}], v[{INB+2}:{INB+3}], v[{KEEP+2}:{KEEP+3}]
        s_lshl_b32 s60, s{sreg}, 17
        v_cvt_pk_bf16_f32 v{INB+4}, v{INB}, v{INB+1}
        v_cvt_pk_bf16_f32 v{INB+5}, v{INB+2}, v{INB+3}
        buffer_store_dwordx2 v[{INB+4}:{INB+5}], v{V_OS}, s[{S_XM}:{S_XM+3}], s60 offen {os.environ.get('OSTO', 'sc1')}
        """)

    tsx(a, ts, 3)
    pinit(a)
    a.label(f"{name}_cold")
    a(f"s_cmp_gt_i32 s{S_ON}, s{S_SEG}\ns_cbranch_scc1 {name}_fk")
    a.label(f"{name}_fw")
    wdog(a, name)
    a(f"""
    buffer_load_dword v{V_T0}, v{V_OF}, {SRD}, 0 offen sc1
    s_waitcnt vmcnt(0)
    v_min_i32_dpp v{V_T0}, v{V_T0}, v{V_T0} quad_perm:[1,0,3,2] row_mask:0xf bank_mask:0xf
    s_nop 1
    v_min_i32_dpp v{V_T0}, v{V_T0}, v{V_T0} quad_perm:[2,3,0,1] row_mask:0xf bank_mask:0xf
    s_nop 1
    v_min_i32_dpp v{V_T0}, v{V_T0}, v{V_T0} row_ror:4 row_mask:0xf bank_mask:0xf
    s_nop 1
    v_min_i32_dpp v{V_T0}, v{V_T0}, v{V_T0} row_ror:8 row_mask:0xf bank_mask:0xf
    s_nop 0
    v_readfirstlane_b32 s{S_ON}, v{V_T0}
    s_min_i32 s{S_ON}, s{S_ON}, s{S_O1}
    s_cmp_gt_i32 s{S_ON}, s{S_SEG}
    s_cbranch_scc1 {name}_fk
    s_sleep 2
    s_add_u32 s{S_T0}, s{S_ON}, 2
    s_cmp_gt_i32 s{S_T0}, s{S_SEG}
    s_cbranch_scc1 {name}_fw
    s_sleep 48
    s_branch {name}_fw
    """)
    a.label(f"{name}_fk")
    a(f"s_lshl_b32 s50, s{S_SEG}, 18")
    for k in range(NF):
        ld(k, 50)
    a("\n".join(pst(0)))
    if E("KPROF", 0): a("s_add_u32 s39, s39, 64")

    uid = [0]
    def epi_groups(sreg):
        g = [[f"v_add_u32 v{V_T0}, s{S_PAR}, v{V_LW}", f"v_add_u32 v{V_T1}, s{S_PAR}, v{V_LRK}", f"v_add_u32 v{V_T2}, s{S_PAR}, v{V_LRS}"]]
        for q in range(0, 8, 2):
            g.append([f"ds_write_b128 v{V_T0}, v[{STG+4*(q+i)}:{STG+4*(q+i)+3}] offset:{QS*(q+i)}" for i in range(2)])
        g.append([])
        g.append(["s_waitcnt lgkmcnt(0)", "s_barrier"] + [f"ds_read_b128 v[{RD+4*w}:{RD+4*w+3}], v{V_T2} offset:{WSs*w}" for w in range(4)])
        g.append([f"ds_read_b128 v[{RD+16+4*w}:{RD+16+4*w+3}], v{V_T1} offset:{WSs*w}" for w in range(4)] +
                 [f"s_sub_u32 s{S_PAR}, {PS}, s{S_PAR}", f"s_bfe_u32 s61, s{sreg}, 0x10001", f"s_xor_b32 s61, s61, s{S_OT}", f"s_and_b32 s60, s{sreg}, 1", "s_lshl_b32 s60, s60, 12"])
        g.append([])
        for h, dst in ((0, RD), (16, KEEP)):
            b = RD + h
            l = [f"s_waitcnt lgkmcnt({4 if h == 0 else 0})"]
            for i in range(4):
                l.append(f"v_add_f32 v{b+i}, v{b+i}, v{b+4+i}")
                l.append(f"v_add_f32 v{b+8+i}, v{b+8+i}, v{b+12+i}")
            g.append(l)
            l = [f"v_add_f32 v{dst+i}, v{b+i}, v{b+8+i}" for i in range(4)]
            if h == 0:
                uid[0] += 1
                l += [f"v_and_or_b32 v{RD}, v{RD}, -2, s61", "s_cmp_eq_u32 s95, 0", f"s_cbranch_scc1 {name}_sa{uid[0]}",
                      f"buffer_store_dwordx4 v[{RD}:{RD+3}], v{V_SND}, {SRD}, s60 offen sc1", f"s_branch {name}_sb{uid[0]}", f"{name}_sa{uid[0]}:",
                      f"buffer_store_dwordx4 v[{RD}:{RD+3}], v{V_SND}, {SRD}, s60 offen", f"{name}_sb{uid[0]}:"]
            g.append(l)
        return g

    def loop(pre, epi):
        g = epi_groups(62) if epi else []
        for k in range(NF):
            a(f"s_waitcnt vmcnt({NF-1 if pre else NF-1-k})")
            mf(k)
            if pre: ld(k, 50)
            if 1 <= k <= len(g): a("\n".join(g[k-1]))
            if epi and k == 27: inb(62)
            if not pre and k == 20: a(f"buffer_load_dword v15, v{V_OF}, {SRD}, 0 offen sc1")
        if epi: fin(f"f{pre}", 62, 4 if pre else 0)

    for epi in range(2):
        a.label(f"{name}_w{epi}")
        a(f"""
        s_add_u32 s54, s{S_SEG}, 1
        s_sub_u32 s62, s{S_SEG}, 1
        s_lshl_b32 s50, s54, 18
        s_cmp_gt_i32 s{S_ON}, s54
        s_cbranch_scc0 {name}_n{epi}
        """)
        loop(1, epi)
        a("\n".join(pst(1)))
        a(f"s_add_u32 s{S_SEG}, s{S_SEG}, 1\ns_branch {name}_w1")
        a.label(f"{name}_n{epi}")
        loop(0, epi)
        a("\n".join(pst(2)))
        if epi == 0: a(f"s_branch {name}_imm")
    a.label(f"{name}_imm")
    a(f"""
    s_waitcnt vmcnt(1)
    v_min_i32_dpp v15, v15, v15 quad_perm:[1,0,3,2] row_mask:0xf bank_mask:0xf
    s_nop 1
    v_min_i32_dpp v15, v15, v15 quad_perm:[2,3,0,1] row_mask:0xf bank_mask:0xf
    s_nop 1
    v_min_i32_dpp v15, v15, v15 row_ror:4 row_mask:0xf bank_mask:0xf
    s_nop 1
    v_min_i32_dpp v15, v15, v15 row_ror:8 row_mask:0xf bank_mask:0xf
    s_nop 0
    v_readfirstlane_b32 s{S_ON}, v15
    s_min_i32 s{S_ON}, s{S_ON}, s{S_O1}
    s_cmp_gt_i32 s{S_ON}, s54
    s_cbranch_scc0 {name}_im2
    """)
    for k in range(NF):
        ld(k, 50)
    a(f"s_add_u32 s{S_SEG}, s{S_SEG}, 1\ns_branch {name}_w1")
    a.label(f"{name}_im2")
    for g in epi_groups(S_SEG):
        a("\n".join(g))
    inb(S_SEG)
    fin("f2", S_SEG, 0)
    a("\n".join(pst(4)))
    a(f"""
    s_add_u32 s{S_SEG}, s{S_SEG}, 1
    s_cmp_lt_u32 s{S_SEG}, s{S_O1}
    s_cbranch_scc1 {name}_cold
    """)
    pdump(a)
    a.label(f"{name}_quit")
    ts(4)
    a("s_endpgm")
```

```python
from gen_common import *

S_X, S_T = 30, 31
S_WSD, S_DBG = 84, 72
E = lambda k, d: int(os.environ.get(k, d))


D_VOTE, D_PD, D_SLOW, D_PD2 = 128, 160, 192, 224
NI = E('NI', 64)


def start_code(a: Asm, name):
    W, D = S_WSD, S_DBG
    a(f"""
    s_load_dwordx2 s[{W}:{W+1}], s[0:1], {KA_WS}
    s_load_dwordx2 s[{D}:{D+1}], s[0:1], {KA_DBG}
    s_getreg_b32 s90, hwreg(HW_REG_XCC_ID)
    s_and_b32 s90, s90, 7
    v_mov_b32 v1, 0
    v_mov_b32 v2, 1
    s_lshl_b32 s91, s90, 4
    s_mov_b32 s95, 0
    s_mov_b32 s99, 0
    s_waitcnt lgkmcnt(0)
    s_mov_b32 s{W+2}, {WS_BYTES}
    s_mov_b32 s{W+3}, 0x00020000
    s_mov_b32 s{D+2}, 256
    s_mov_b32 s{D+3}, 0x00020000
    v_cmp_eq_u32 vcc, 0, v0
    s_and_saveexec_b64 s[88:89], vcc
    s_cbranch_execz {name}_tkd
    s_lshl_b32 s92, s2, 13
    s_add_u32 s92, s92, {WS_CAL}
    buffer_atomic_add v2, v1, s[{D}:{D+3}], s91 offen sc0
    buffer_load_dword v251, v1, s[{W}:{W+3}], s92 offen offset:2048 sc1
    s_waitcnt vmcnt(1)
    ds_write_b32 v1, v2
    s_waitcnt lgkmcnt(0)
{name}_tkd:
    s_mov_b64 exec, s[88:89]
    s_barrier
    ds_read_b32 v2, v1
    s_waitcnt lgkmcnt(0)
    v_readfirstlane_b32 s96, v2
    s_barrier
    """)


def sync_code(a: Asm, kname, tag, vt, force_slow=False):
    D = S_DBG
    n = f"{kname}_sy{tag}"
    a(f"""
    v_and_b32 v{vt+1}, 15, v0
    v_lshlrev_b32 v{vt+1}, 4, v{vt+1}
    s_branch {n}
{n}w:
    s_sleep 4
{n}:
    """)
    wd_code(a, n)
    a(f"""
    buffer_load_dword v{vt}, v{vt+1}, s[{D}:{D+3}], 0 offen sc1
    s_waitcnt vmcnt(0)
    s_cmp_eq_u32 s95, 1
    s_cbranch_scc0 {n}f
    v_readlane_b32 s76, v{vt}, {D_PD2 // 16}
    s_mov_b32 s98, 0
    s_cmp_eq_u32 s76, {NI}
    s_cbranch_scc0 {n}w
    s_branch {n}d
{n}f:
    s_mov_b32 s77, 0
    s_mov_b32 s78, 0
    """)
    for i in range(8):
        a(f"v_readlane_b32 s76, v{vt}, {i}\ns_add_u32 s77, s77, s76\ns_xor_b32 s76, s76, 32\ns_or_b32 s78, s78, s76")
    a(f"""
    s_cmp_eq_u32 s77, 256
    s_cbranch_scc0 {n}w
    {"s_mov_b32 s78, 1" if force_slow else ""}
    v_mov_b32 v252, v{vt}
    s_cmp_eq_u32 s78, 0
    s_cbranch_scc0 {kname}_slowent
    v_readlane_b32 s76, v{vt}, {D_PD // 16}
    v_readlane_b32 s77, v{vt}, {D_VOTE // 16}
    s_cmp_eq_u32 s76, {NI}
    s_cbranch_scc0 {n}w
    s_cmp_gt_u32 s77, {NI // 2}
    s_cselect_b32 s98, 1, 0
    {f"s_xor_b32 s98, s98, {os.environ['PAR']}" if "PAR" in os.environ else ""}
{n}d:
    """)


def slow_entry(a: Asm, name):
    D = S_DBG
    a.label(f"{name}_slowent")
    a(f"""
    s_mov_b64 exec, -1
    s_waitcnt vmcnt(0) lgkmcnt(0)
    s_barrier
    s_mov_b32 s97, s96
    """)
    for i in range(7):
        a(f"v_readlane_b32 s76, v252, {i}\ns_cmp_gt_u32 s90, {i}\ns_cselect_b32 s76, s76, 0\ns_add_u32 s97, s97, s76")
    a(f"""
    v_mov_b32 v1, 0
    v_mov_b32 v2, 1
    v_cmp_eq_u32 vcc, 0, v0
    s_and_saveexec_b64 s[88:89], vcc
    s_cbranch_execz {name}_sb1
    buffer_atomic_add v2, v1, s[{D}:{D+3}], 0 offen offset:{D_SLOW} sc1
{name}_sb1:
    s_mov_b64 exec, s[88:89]
{name}_sb2:
    s_sleep 4
    """)
    wd_code(a, "slowbar")
    a(f"""
    buffer_load_dword v2, v1, s[{D}:{D+3}], 0 offen offset:{D_SLOW} sc1
    s_waitcnt vmcnt(0)
    v_cmp_ne_u32 vcc, 256, v2
    s_cbranch_vccnz {name}_sb2
    s_mov_b32 s95, 1
    """)


def init_cd(a: Asm, name, idx):
    W, D = S_WSD, S_DBG
    a(f"""
    v_mov_b32 v8, -1
    v_mov_b32 v9, -1
    v_mov_b32 v10, -1
    v_mov_b32 v11, -1
    v_lshlrev_b32 v1, 4, v0
    v_mov_b32 v2, 0
    v_cmp_gt_u32 vcc, 64, v0
    s_cbranch_vccz {name}_nv
    s_cmp_eq_u32 s95, 0
    s_cbranch_scc0 {name}_nv
    ; latency samples of both parities (order alternates with idx), sign vote
    s_lshr_b32 s60, s2, 1
    s_lshl_b32 s60, s60, 14
    s_and_b32 s61, s{idx}, 1
    s_lshl_b32 s66, s61, 13
    s_add_u32 s60, s60, s66
    s_and_b32 s66, s2, 1
    s_lshl_b32 s66, s66, 10
    s_add_u32 s60, s60, s66
    s_add_u32 s60, s60, {WS_CAL}
    s_mov_b32 s66, 0x7fffffff
    s_mov_b32 s67, 0x7fffffff
    s_mov_b64 exec, 0xff
    s_waitcnt vmcnt(0)
    """)
    for i in range(E("NSAMP", 4)):
        a(f"""
        s_memtime s[62:63]
        s_waitcnt lgkmcnt(0)
        buffer_store_dwordx4 v[8:11], v1, s[{W}:{W+3}], s60 offen offset:{256 * (i >> 1)} sc1
        s_waitcnt vmcnt(0)
        s_memtime s[64:65]
        s_xor_b32 s60, s60, 8192
        s_waitcnt lgkmcnt(0)
        s_sub_u32 s64, s64, s62
        s_min_u32 s{66 + (i & 1)}, s{66 + (i & 1)}, s64
        """)
    a(f"""
    s_cmp_lt_u32 s67, s66
    s_cselect_b32 s60, 1, 0
    s_xor_b32 s60, s60, s61          ; parity that is near this XCD
    s_lshr_b32 s61, s90, 2
    s_xor_b32 s60, s60, s61
    v_mov_b32 v3, s60
    s_mov_b64 exec, 1
    buffer_atomic_add v3, v2, s[{D}:{D+3}], 0 offen offset:{D_VOTE} sc1
    s_mov_b64 exec, -1
{name}_nv:
    s_barrier
    s_lshl_b32 s60, s{idx}, 12
    s_add_u32 s60, s60, {WS_H}
    """)
    for i in range(512 // NI):
        a(f"buffer_store_dwordx4 v[8:11], v1, s[{W}:{W+3}], s60 offen sc1")
        a(f"s_add_u32 s60, s60, {NI * 4096}")
    a(f"""
    s_lshr_b32 s62, s{idx}, 1
    s_and_b32 s63, s{idx}, 1
    s_add_u32 s63, s63, s62
    s_lshl_b32 s62, s62, 19
    s_and_b32 s64, s63, 14
    s_lshl_b32 s64, s64, 13
    s_add_u32 s62, s62, s64
    s_and_b32 s64, s63, 1
    s_lshl_b32 s64, s64, 12
    s_add_u32 s62, s62, s64
    s_add_u32 s62, s62, {WS_XU}
    {"" if E("TAG", 1) else f"buffer_store_dwordx4 v[8:11], v1, s[{W}:{W+3}], s62 offen sc1"}
    s_add_u32 s62, s62, 8192
    {"" if E("TAG", 1) else f"buffer_store_dwordx4 v[8:11], v1, s[{W}:{W+3}], s62 offen sc1"}
    s_cmp_lt_u32 s{idx}, 16
    s_cbranch_scc0 {name}_pz
    buffer_store_dwordx4 v[8:11], v1, s[{W}:{W+3}], s60 offen sc1
{name}_pz:
    s_waitcnt vmcnt(0)
    s_barrier
    v_mov_b32 v3, 1
    s_lshl_b32 s62, s95, 6
    v_cmp_eq_u32 vcc, 0, v0
    s_and_saveexec_b64 s[60:61], vcc
    s_cbranch_execz {name}_xps
    buffer_atomic_add v3, v2, s[{D}:{D+3}], s62 offen offset:{D_PD} sc1
{name}_xps:
    s_mov_b64 exec, s[60:61]
    """)


def rec_body(a: Asm, name, IS, sync, nsteps=64, prof=False, flags=True, ts=None):
    W = S_WSD
    SRD = f"s[{W}:{W+3}]"
    S_WQ, S_WK, S_WV, S_WO, S_M0 = 4, 8, 12, 16, 20
    S_WAVE, S_H, S_J, S_STEP, S_T0, S_T1 = 24, 25, 26, 27, 28, 29
    S_C = 32
    S_SL, S_SLO = 33, 34
    S_XS, S_XSO = 35, 36
    S_P = 37
    S_MN8, S_MMEM = 40, 42
    S_XBR, S_XBW = 44, 45
    S_KVN = 46
    S_KVB, S_FLB, S_CU, S_KXB, S_TAG = 79, 81, 82, 83, 47
    S_LATE, S_WARM = 36, 89
    ONE, LS, ZER = 220, 224, 228
    S_MKM = 48
    V_L, V_G, V_M, V_T0, V_T1, V_IDX = 1, 2, 3, 4, 5, 6
    V_OMEM, V_OM0, V_OPUB, V_OSCM, V_OOP, V_OXW, V_OXR = 7, 8, 9, 10, 11, 12, 13
    V_LWQ, V_LWK, V_LRR, V_LL, V_LWO, V_LRO, V_LVW, V_LVR, V_OKV, V_NEG, V_OFL = 14, 15, 16, 17, 18, 19, 20, 21, 22, 23, 24
    V_POI = 28
    MA, AQ, AV = 32, 96, 112
    RP, R, KX, VTX, S, PL = 120, 152, 156, 164, 172, 184
    VM, P, PM, O, TMP = 208, 212, 216, 120, 232
    MO, AO, KVH = 32, 96, 244
    A_W1, A_WO = 0, 192
    L_QK, L_VP, L_OP, L_VM, L_XB, L_ST = 0, 9216, 13312, 17920, 18432, 32768

    TAG = E("TAG", 1)
    WPAD, SCS = E("WPAD", 0), E("SCS", 2048)
    OXO, SCO = 24576, 49152

    def wdog():
        wd_code(a, name + ":" + a.lines[-1], f"s{S_STEP}")

    def stamp(i):
        if E("TR", 0):
            if i == 0: return
            if i < 11: a(f"s_memtime s[{48+2*i}:{49+2*i}]")
            if i == 11:
                a("s_memrealtime s[70:71]\ns_memtime s[100:101]\ns_waitcnt lgkmcnt(0)\nv_writelane_b32 v250, s100, 12")
                for k in range(1, 12):
                    a(f"v_writelane_b32 v250, s{48+2*k}, {k}")
                a(f"v_writelane_b32 v250, s99, 0")
                a(f"""
                s_lshl_b32 s80, s{S_X}, 5
                s_add_u32 s80, s80, s{S_T}
                s_lshl_b32 s80, s80, 2
                s_add_u32 s80, s80, s{S_WAVE}
                s_lshl_b32 s80, s80, 6
                s_add_u32 s80, s80, s{S_STEP}
                s_lshl_b32 s80, s80, 6
                s_add_u32 s80, s80, {WS_PROF}
                v_lshlrev_b32 v251, 2, v{V_L}
                s_mov_b64 exec, 0xffff
                buffer_store_dword v250, v251, {SRD}, s80 offen
                s_mov_b64 exec, -1
                """)
            return
        if not prof or i == 11:
            return
        a("s_memtime s[66:67]")
        a("s_waitcnt lgkmcnt(0)")
        a("s_sub_u32 s68, s66, s69")
        a(f"s_add_u32 s{50+i}, s{50+i}, s68")
        a("s_mov_b32 s69, s66")

    if prof:
        for i in range(16):
            a(f"s_mov_b32 s{50+i}, 0")
        a("s_memtime s[66:67]\ns_waitcnt lgkmcnt(0)\ns_mov_b32 s69, s66")
    if ts: ts(1)
    a(f"""
    s_load_dwordx2 s[{S_M0}:{S_M0+1}], s[0:1], {KA_MEM0}
    s_load_dwordx2 s[{S_WO}:{S_WO+1}], s[0:1], {KA_WO}
    s_load_dwordx2 s[{S_WQ}:{S_WQ+1}], s[0:1], {KA_WQ}
    s_load_dwordx2 s[{S_WK}:{S_WK+1}], s[0:1], {KA_WK}
    s_load_dwordx2 s[{S_WV}:{S_WV+1}], s[0:1], {KA_WV}
    v_lshrrev_b32 v{V_T0}, 6, v0
    v_and_b32 v{V_L}, 63, v0
    v_readfirstlane_b32 s{S_WAVE}, v{V_T0}
    v_lshrrev_b32 v{V_G}, 4, v{V_L}
    v_and_b32 v{V_M}, 15, v{V_L}
    v_lshlrev_b32 v{V_LL}, 4, v{V_L}
    s_lshr_b32 s{S_T0}, s{S_T}, 2
    s_lshl_b32 s{S_H}, s{S_X}, 3
    s_add_u32 s{S_H}, s{S_H}, s{S_T0}
    s_and_b32 s{S_J}, s{S_T}, 3
    s_waitcnt lgkmcnt(0)
    s_mov_b32 s{S_M0+2}, 16384
    s_mov_b32 s{S_M0+3}, 0x00020000
    """)
    for s in (S_WO, S_WQ, S_WK, S_WV):
        a(f"s_mov_b32 s{s+2}, {8*MB}\ns_mov_b32 s{s+3}, 0x00020000")
    FULL = E("FULL", 0)
    CL = 2 + FULL
    a(f"""
    s_lshl_b32 s{S_T0}, s{S_H}, 8
    s_lshr_b32 s{S_T1}, s{S_J}, {FULL}
    s_lshl_b32 s{S_T1}, s{S_T1}, {6 + FULL}
    s_add_u32 s{S_T0}, s{S_T0}, s{S_T1}
    s_lshl_b32 s{S_T1}, s{S_WAVE}, 21
    s_add_u32 s{S_T0}, s{S_T0}, s{S_T1}
    v_lshrrev_b32 v{V_T0}, {CL}, v{V_L}
    v_and_b32 v{V_T1}, {(1 << CL) - 1}, v{V_L}
    v_lshlrev_b32 v40, 13, v{V_T0}
    v_lshl_add_u32 v40, v{V_T1}, 4, v40
    v_add_u32 v40, s{S_T0}, v40
    s_lshl_b32 s{S_T0}, s{S_X}, 21
    s_lshl_b32 s{S_T1}, s{S_WAVE}, 19
    s_add_u32 s{S_T0}, s{S_T0}, s{S_T1}
    s_lshr_b32 s{S_T1}, s{S_T}, {FULL}
    s_lshl_b32 s{S_T1}, s{S_T1}, {6 + FULL}
    s_add_u32 s{S_T0}, s{S_T0}, s{S_T1}
    v_lshlrev_b32 v41, 11, v{V_T0}
    v_lshl_add_u32 v41, v{V_T1}, 4, v41
    v_add_u32 v41, s{S_T0}, v41
    s_lshl_b32 s47, s{S_WAVE}, 15
    s_add_u32 s47, s47, {L_ST}
    """)
    order = [int(c) for c in os.environ.get("WORD", "1203")]
    PH = [(c, p) for c in order for p in range(1 << FULL)]
    RI = 64 >> CL

    def wdma(n):
        c, p = PH[n]
        srd = (S_WQ, S_WK, S_WV, S_WO)[c]
        if E("HELP", 1):
            a(f"buffer_load_dword v50, v{51 if c < 3 else 52}, s[{srd}:{srd+3}], 0 offen")
        for r in range(16):
            if E("PSW", 1):
                a(f"s_xor_b32 s{S_T1}, s76, {r}")
                a(f"s_lshl_b32 s{S_T0}, s{S_T1}, 10")
                a(f"s_add_u32 s{S_T0}, s{S_T0}, s47")
                a(f"s_add_u32 m0, s{S_T0}, {(n & 1)*16384}")
                a(f"s_lshl_b32 s{S_T1}, s{S_T1}, {17 if c < 3 else 15}")
            else:
                a(f"s_add_u32 m0, s47, {(n & 1)*16384 + 1024*r}")
                a(f"s_mov_b32 s{S_T1}, {RI * (16 * p + r) * (8192 if c < 3 else 2048)}")
            a(f"buffer_load_dwordx4 v{40 if c < 3 else 41}, s[{srd}:{srd+3}], s{S_T1} offen {'nt ' if E('RNT', 0) else ''}lds")
    WT = E("WT", 0)
    assert not (WT and FULL)
    a(f"""
    s_lshl_b32 s{S_T0}, s{S_T}, 18
    s_lshl_b32 s{S_T1}, s{S_WAVE}, 16
    s_add_u32 s{S_T0}, s{S_T0}, s{S_T1}
    s_lshl_b32 s{S_T1}, s{S_X}, 11
    s_add_u32 s{S_T0}, s{S_T0}, s{S_T1}
    v_lshlrev_b32 v48, 13, v{V_G}
    v_lshl_add_u32 v48, v{V_M}, 7, v48
    v_add_u32 v48, s{S_T0}, v48
    s_lshl_b32 s{S_T0}, s{S_X}, 21
    s_lshl_b32 s{S_T1}, s{S_T}, 16
    s_add_u32 s{S_T0}, s{S_T0}, s{S_T1}
    s_lshl_b32 s{S_T1}, s{S_WAVE}, 14
    s_add_u32 s{S_T0}, s{S_T0}, s{S_T1}
    v_lshlrev_b32 v49, 7, v{V_L}
    v_add_u32 v49, s{S_T0}, v49
    """)

    a(f"""
    s_and_b32 s76, s{S_T}, 1
    s_mul_i32 s76, s76, {E("PSW", 1) * 8 if E("PSW", 1) < 2 else E("PSW", 1)}
    ; helper touch of the slow lines: row = 256w + 16*(l&15... ) : rows w*256 + (t&15)*16 + (l&15), col (t>>4)*1024 + 384
    s_and_b32 s{S_T0}, s{S_T}, 15
    s_lshl_b32 s{S_T0}, s{S_T0}, 4
    s_lshl_b32 s{S_T1}, s{S_WAVE}, 8
    s_add_u32 s{S_T0}, s{S_T0}, s{S_T1}
    v_add_u32 v53, s{S_T0}, v{V_M}
    s_lshr_b32 s{S_T0}, s{S_T}, 4
    s_lshl_b32 s{S_T0}, s{S_T0}, 10
    s_add_u32 s{S_T0}, s{S_T0}, 384
    v_mov_b32 v54, s{S_T0}
    v_mov_b32 v55, 1920
    v_cmp_gt_u32 vcc, 32, v{V_L}
    s_nop 1
    v_cndmask_b32 v54, v55, v54, vcc
    s_lshl_b32 s{S_T1}, s{S_X}, 11
    v_lshl_add_u32 v51, v53, 13, v54
    v_add_u32 v51, s{S_T1}, v51
    s_lshl_b32 s{S_T1}, s{S_X}, 21
    v_lshl_add_u32 v52, v53, 11, v54
    v_add_u32 v52, s{S_T1}, v52
    """)

    NSELF = E("NSELF", 0)
    XF, XA = 64, 192
    if NSELF:
        assert order[:2] == [1, 2] and not FULL
        a(f"""
        s_load_dwordx2 s[56:57], s[0:1], {KA_AX}
        v_lshrrev_b32 v56, 1, v{V_G}
        v_lshlrev_b32 v56, 5, v56
        v_and_b32 v57, 1, v{V_G}
        v_lshl_add_u32 v56, v57, 3, v56
        v_lshl_add_u32 v56, v{V_M}, 11, v56
        s_lshl_b32 s{S_T0}, s{S_WAVE}, 9
        v_add_u32 v56, s{S_T0}, v56
        s_mov_b32 s58, {4*MB}
        s_mov_b32 s59, 0x00020000
        s_waitcnt lgkmcnt(0)
        """)
        for zt in range(2 * NSELF):
            a(f"s_mov_b32 s{S_T1}, {zt * 32768}")
            for hk in range(8):
                f = XF + (zt * 8 + hk) * 4
                a(f"buffer_load_dwordx2 v[{f}:{f+1}], v56, s[56:59], s{S_T1} offen offset:{64*hk}")
                a(f"buffer_load_dwordx2 v[{f+2}:{f+3}], v56, s[56:59], s{S_T1} offen offset:{64*hk+16}")

    def selfproj(isV):
        if not isV:
            for f in range(16 * NSELF):
                a(f"v_swap_b32 v{XF+4*f+1}, v{XF+4*f+2}")
            a(f"""
            s_lshl_b32 s{S_T0}, s{S_WAVE}, 12
            v_add_u32 v57, s{S_T0}, v{V_LL}
            v_lshlrev_b32 v60, 3, v0
            v_add_u32 v60, {L_XB}, v60
            v_bfe_u32 v61, v0, 1, 4
            v_lshlrev_b32 v58, 4, v61                    ; m*16
            v_and_b32 v61, 1, v0
            v_lshrrev_b32 v62, 5, v0
            v_lshl_add_u32 v59, v61, 11, v58             ; V: tt*2048
            v_lshl_add_u32 v59, v62, 8, v59              ;   + u*1024 + g*256
            v_lshl_add_u32 v58, v61, 8, v58              ; K: hf*256
            v_lshl_add_u32 v58, v62, 9, v58              ;   + (tt*2048 + u*1024 + (g'&1)*512)
            """)
        for z in range(NSELF):
            for hk in range(8):
                for tt in range(2):
                    for u in range(2):
                        d, f = XA + 8 * tt + 4 * u, XF + ((2 * z + tt) * 8 + hk) * 4
                        w = A_W1 + (((2 if isV else 1) * 2 + u) * 4 + (hk >> 1)) * 8 + 4 * (hk & 1)
                        c = "0" if hk == 0 else f"v[{d}:{d+3}]"
                        if isV: a(f"v_mfma_f32_16x16x32_bf16 v[{d}:{d+3}], v[{f}:{f+3}], a[{w}:{w+3}], {c}")
                        else: a(f"v_mfma_f32_16x16x32_bf16 v[{d}:{d+3}], a[{w}:{w+3}], v[{f}:{f+3}], {c}")
            a("s_barrier")
            a.nops(8)
            for i in range(4):
                a(f"ds_write_b128 v57, v[{XA+4*i}:{XA+4*i+3}] offset:{1024*i}")
            a("s_waitcnt lgkmcnt(0)\ns_barrier")
            for w in range(4):
                a(f"ds_read_b128 v[{XA+16+4*w}:{XA+16+4*w+3}], v{59 if isV else 58} offset:{4096*w}")
            a("s_waitcnt lgkmcnt(0)")
            b = XA + 16
            for i in (0, 2):
                a(f"v_pk_add_f32 v[{b+i}:{b+i+1}], v[{b+i}:{b+i+1}], v[{b+4+i}:{b+4+i+1}]")
                a(f"v_pk_add_f32 v[{b+8+i}:{b+8+i+1}], v[{b+8+i}:{b+8+i+1}], v[{b+12+i}:{b+12+i+1}]")
            for i in (0, 2):
                a(f"v_pk_add_f32 v[{b+i}:{b+i+1}], v[{b+i}:{b+i+1}], v[{b+8+i}:{b+8+i+1}]")
            a(f"v_cvt_pk_bf16_f32 v{b+4}, v{b}, v{b+1}\nv_cvt_pk_bf16_f32 v{b+5}, v{b+2}, v{b+3}")
            a(f"ds_write_b64 v60, v[{b+4}:{b+5}] offset:{4096*z + (2048 if isV else 0)}")

    def wtouch(n):
        c, p = PH[n]
        srd = (S_WQ, S_WK, S_WV, S_WO)[c]
        for i in range(2):
            a(f"s_mov_b32 s{S_T1}, {i * (32768 if c < 3 else 8192)}")
            a(f"buffer_load_dword v50, v{48 if c < 3 else 49}, s[{srd}:{srd+3}], s{S_T1} offen")
    if WT == 1:
        wtouch(0); wtouch(1); wdma(0); wtouch(2); wdma(1); wtouch(3)
    elif WT == 2:
        wtouch(0); wtouch(1); wtouch(2); wtouch(3); wdma(0); wdma(1)
    else:
        wdma(0); wdma(1)
    a(f"""
    s_mov_b32 s{S_MN8}, 0x00ff00ff
    s_mov_b32 s{S_MN8+1}, 0x00ff00ff
    s_mov_b32 s{S_MKM}, 0xff00ff00
    s_mov_b32 s{S_MKM+1}, 0xff00ff00
    s_mov_b32 s{S_MMEM}, 0
    s_mov_b32 s{S_MMEM+1}, 0x00ff00ff
    s_mov_b32 s{S_C}, 0x3e0293ee
    v_mov_b32 v{V_NEG}, 0xff800000
    v_mov_b32 v{V_IDX}, 0x4444
    v_mov_b32 v{V_T0}, 0xeeee
    v_cndmask_b32 v{V_IDX}, v{V_IDX}, v{V_T0}, s[{S_MKM}:{S_MKM+1}]
    v_mov_b32 v{V_POI}, -1
    v_mov_b32 v{V_POI+1}, -1
    v_mov_b32 v{V_POI+2}, -1
    v_mov_b32 v{V_POI+3}, -1
    s_mul_i32 s{S_T0}, s{S_WAVE}, {4096 + WPAD}
    v_add_u32 v{V_OMEM}, s{S_T0}, v{V_LL}
    v_and_b32 v{V_T0}, 7, v{V_L}
    v_lshlrev_b32 v{V_OM0}, 11, v{V_T0}
    v_lshrrev_b32 v{V_T1}, 3, v{V_L}
    v_lshl_add_u32 v{V_OM0}, v{V_T1}, 4, v{V_OM0}
    s_lshl_b32 s{S_T0}, s{S_WAVE}, 9
    v_add_u32 v{V_OM0}, s{S_T0}, v{V_OM0}
    s_lshl_b32 s{S_T0}, s{S_T}, 9
    s_lshr_b32 s{S_T1}, s{S_T}, 3
    s_mul_i32 s{S_T1}, s{S_T1}, {WPAD}
    s_add_u32 s{S_T0}, s{S_T0}, s{S_T1}
    v_lshlrev_b32 v{V_OPUB}, 3, v{V_L}
    v_add_u32 v{V_OPUB}, s{S_T0}, v{V_OPUB}
    ; o publish: 16384 + t*512 + g*128 + (m&7)*16
    v_and_b32 v{V_T0}, 7, v{V_M}
    v_lshlrev_b32 v{V_OOP}, 7, v{V_G}
    v_lshl_add_u32 v{V_OOP}, v{V_T0}, 4, v{V_OOP}
    v_add_u32 v{V_OKV}, 0, v{V_OOP}              ; g*128 + (m&7)*16 (k_m publish)
    s_add_u32 s{S_T0}, s{S_T0}, {OXO}
    v_add_u32 v{V_OOP}, s{S_T0}, v{V_OOP}
    v_and_b32 v{V_T1}, 1, v{V_G}
    v_lshlrev_b32 v{V_OSCM}, 7, v{V_T1}
    v_lshl_add_u32 v{V_OSCM}, v{V_T0}, 4, v{V_OSCM}
    v_add_u32 v{V_OSCM}, 1024, v{V_OSCM}
    ; partner score offsets: 32768 + (t ^ p)*2048, own in S_P+3 (s47 later); kept relative to slot base
    """)
    for p in range(1, 4):
        a(f"""
        s_xor_b32 s{S_P+p-1}, s{S_T}, {p}
        s_mul_i32 s{S_P+p-1}, s{S_P+p-1}, {SCS}
        s_add_u32 s{S_P+p-1}, s{S_P+p-1}, {SCO}
        """)
    a(f"""
    ; LDS: q/k partial write: w*2304 + (4*(g&1))*144 + ((g>>1)*16 + m)*4
    v_and_b32 v{V_T0}, 1, v{V_G}
    v_mul_u32_u24 v{V_LWQ}, 576, v{V_T0}
    v_lshrrev_b32 v{V_T1}, 1, v{V_G}
    v_lshl_add_u32 v{V_T1}, v{V_T1}, 4, v{V_M}
    v_lshl_add_u32 v{V_LWQ}, v{V_T1}, 2, v{V_LWQ}
    s_mul_i32 s{S_T0}, s{S_WAVE}, 1152
    s_add_u32 s{S_T0}, s{S_T0}, {L_OP}
    v_add_u32 v{V_LWO}, s{S_T0}, v{V_LWQ}
    s_mul_i32 s{S_T0}, s{S_WAVE}, 2304
    v_add_u32 v{V_LWQ}, s{S_T0}, v{V_LWQ}
    v_add_u32 v{V_LWK}, 1152, v{V_LWQ}
    ; R read: m*144 + g*32
    v_mul_u32_u24 v{V_LRR}, 144, v{V_M}
    v_lshl_add_u32 v{V_LRR}, v{V_G}, 5, v{V_LRR}
    ; O partial read: L_OP + ((l>>1)&7)*144 + (2*(l>>4) + (l&1))*16
    v_bfe_u32 v{V_T0}, v{V_L}, 1, 3
    v_mul_u32_u24 v{V_LRO}, 144, v{V_T0}
    v_lshl_add_u32 v{V_LRO}, v{V_G}, 5, v{V_LRO}
    v_and_b32 v{V_T0}, 1, v{V_L}
    v_lshl_add_u32 v{V_LRO}, v{V_T0}, 4, v{V_LRO}
    v_add_u32 v{V_LRO}, {L_OP}, v{V_LRO}
    ; v partial write: L_VP + w*1024 + lane*16 ; read (tile u at +512u): L_VP + (l&31)*16
    s_lshl_b32 s{S_T0}, s{S_WAVE}, 10
    s_add_u32 s{S_T0}, s{S_T0}, {L_VP}
    v_add_u32 v{V_LVW}, s{S_T0}, v{V_LL}
    v_and_b32 v{V_T0}, 31, v{V_L}
    v_lshlrev_b32 v{V_LVR}, 3, v{V_T0}
    v_add_u32 v{V_LVR}, {L_VM}, v{V_LVR}
    v_lshrrev_b32 v{V_T0}, 2, v{V_M}             ; r
    v_and_b32 v42, 1, v{V_T0}                    ; r&1
    v_lshrrev_b32 v43, 1, v{V_T0}                ; r>>1
    v_lshrrev_b32 v44, 1, v{V_G}                 ; g>>1
    v_and_b32 v45, 1, v{V_G}                     ; g&1
    v_lshl_add_u32 v46, v44, 4, v42
    v_lshl_add_u32 v46, v45, 2, v46
    v_lshl_add_u32 v46, v43, 3, v46              ; W1 row
    v_lshl_add_u32 v47, v44, 3, v42
    v_lshl_add_u32 v47, v45, 4, v47
    v_lshl_add_u32 v47, v43, 2, v47
    v_and_b32 v{V_T1}, 3, v{V_M}
    v_lshlrev_b32 v{V_T1}, 3, v{V_T1}
    v_lshl_add_u32 v46, v46, {6 + FULL}, v{V_T1}
    v_lshl_add_u32 v47, v47, {6 + FULL}, v{V_T1}
    s_and_b32 s{S_T0}, s{S_T}, {FULL}
    s_lshl_b32 s{S_T0}, s{S_T0}, 6
    s_add_u32 s{S_T0}, s{S_T0}, s47
    v_add_u32 v46, s{S_T0}, v46
    v_add_u32 v47, s{S_T0}, v47
    """)

    def wtr(n):
        c, p = PH[n]
        nk = 4 >> FULL
        for u in range(2):
            for k in range(nk * p, nk * p + nk):
                d = (A_W1 + ((c * 2 + u) * 4 + k) * 8) if c < 3 else (A_WO + (u * 4 + k) * 8)
                for Pp in range(4):
                    off = (n & 1) * 16384 + ((64 * (k - nk * p) + 32 * (Pp >> 1) + 2 * (Pp & 1)) << (6 + FULL)) + 32 * u
                    a(f"ds_read_b64_tr_b16 a[{d+2*Pp}:{d+2*Pp+1}], v{46 if c < 3 else 47} offset:{off}")
                if k & 1:
                    a("s_waitcnt lgkmcnt(0)")
    for n in range(len(PH)):
        a(f"s_waitcnt vmcnt({(16 + E('HELP', 1) + ([4, 2, 0][n] if WT == 1 else 0)) if n + 1 < len(PH) else 0})")
        wtr(n)
        if n + 2 < len(PH): wdma(n + 2)
        if NSELF and n < 2: selfproj(n == 1)
    sync(V_T0)
    if TAG: a(f"""
    ; cross exchange: WS_H + slot*256K + src*64K + (t>>3)*16K + par*8K + (t&7)*1K
    s_lshr_b32 s{S_T0}, s{S_T}, 3
    s_lshl_b32 s{S_T0}, s{S_T0}, 14
    s_lshl_b32 s{S_T1}, s98, 13
    s_add_u32 s{S_T0}, s{S_T0}, s{S_T1}
    s_and_b32 s{S_T1}, s{S_T}, 7
    s_lshl_b32 s{S_T1}, s{S_T1}, 10
    s_add_u32 s{S_T0}, s{S_T0}, s{S_T1}
    s_lshl_b32 s{S_T1}, s{S_X}, 16
    s_add_u32 s{S_T0}, s{S_T0}, s{S_T1}
    s_add_u32 s{S_T0}, s{S_T0}, {WS_H}
    v_add_u32 v{V_OXW}, s{S_T0}, v{V_LL}
    v_xor_b32 v25, 0x10000, v{V_OXW}
    v_xor_b32 v26, 0x20000, v{V_OXW}
    v_xor_b32 v27, 0x30000, v{V_OXW}
    v_add_u32 v25, {(WS_XU - WS_H) * E("COPY3", 0)}, v25
    v_add_u32 v26, {(WS_XU - WS_H + 4 * MB) * E("COPY3", 0)}, v26
    v_add_u32 v27, {(WS_XU - WS_H + 8 * MB) * E("COPY3", 0)}, v27
    """)
    else: a(f"""
    s_lshr_b32 s{S_T0}, s{S_T}, 2
    s_xor_b32 s{S_T0}, s{S_T0}, s98
    s_and_b32 s{S_T0}, s{S_T0}, 1
    s_lshl_b32 s{S_T0}, s{S_T0}, 13
    s_lshl_b32 s{S_T1}, s{S_T}, 19
    s_add_u32 s{S_T0}, s{S_T0}, s{S_T1}
    s_lshl_b32 s{S_T1}, s{S_X}, 10
    s_add_u32 s{S_T0}, s{S_T0}, s{S_T1}
    s_add_u32 s{S_T0}, s{S_T0}, {WS_XU}
    v_add_u32 v{V_OXW}, s{S_T0}, v{V_LL}
    v_xor_b32 v25, 1024, v{V_OXW}
    v_xor_b32 v26, 2048, v{V_OXW}
    v_xor_b32 v27, 3072, v{V_OXW}
    """)
    a(f"""
    s_lshl_b32 s{S_T0}, s{S_H}, 2
    s_add_u32 s{S_T0}, s{S_T0}, s{S_J}
    s_mov_b32 s{S_CU}, s{S_T0}
    s_lshr_b32 s{S_T1}, s{S_T0}, 3
    s_xor_b32 s{S_T1}, s{S_T1}, s98
    {["", f"s_xor_b32 s{S_T1}, s{S_T1}, 1", f"s_xor_b32 s{S_T1}, s{S_T1}, s{S_T0}"][E("KVPAR", 0)]}
    s_and_b32 s{S_T1}, s{S_T1}, 1
    s_lshl_b32 s{S_T1}, s{S_T1}, 13
    s_lshl_b32 s76, s{S_T0}, 18
    s_add_u32 s76, s76, s{S_T1}
    s_mov_b32 s{S_KXB}, s76
    v_add_u32 v{TMP+8}, s76, v{V_LL}
    v_add_u32 v{TMP+9}, {WS_VT}, v{TMP+8}
    s_lshr_b32 s{S_T1}, s{S_T0}, 4
    s_xor_b32 s{S_T1}, s{S_T1}, s98
    s_and_b32 s{S_T1}, s{S_T1}, 1
    s_lshl_b32 s{S_T1}, s{S_T1}, 13
    s_lshl_b32 s{S_KVB}, s{S_T0}, 17
    s_add_u32 s{S_KVB}, s{S_KVB}, s{S_T1}
    s_add_u32 s{S_KVB}, s{S_KVB}, {WS_KVM}
    ; flags
    s_xor_b32 s{S_T1}, s98, 1
    s_lshl_b32 s{S_T1}, s{S_T1}, 13
    s_lshl_b32 s{S_T0}, s{S_H}, 7
    s_add_u32 s{S_T0}, s{S_T0}, s{S_T1}
    s_add_u32 s{S_T0}, s{S_T0}, {WS_F}
    v_and_b32 v{V_T0}, 1, v{V_L}
    v_lshlrev_b32 v{V_OFL}, 12, v{V_T0}
    v_add_u32 v{V_OFL}, s{S_T0}, v{V_OFL}
    s_lshl_b32 s{S_T1}, s{S_J}, 2
    v_add_u32 v{V_OFL}, s{S_T1}, v{V_OFL}
    s_xor_b32 s{S_FLB}, s98, 1
    s_lshl_b32 s{S_FLB}, s{S_FLB}, 13
    s_lshr_b32 s{S_T1}, s{S_CU}, 6
    s_lshl_b32 s{S_T1}, s{S_T1}, 14
    s_add_u32 s{S_FLB}, s{S_FLB}, s{S_T1}
    s_and_b32 s{S_T1}, s{S_CU}, 63
    s_lshl_b32 s{S_T1}, s{S_T1}, 7
    s_add_u32 s{S_FLB}, s{S_FLB}, s{S_T1}
    s_add_u32 s{S_FLB}, s{S_FLB}, {WS_F + F_KVM}
    v_mov_b32 v{ONE}, 0x3f803f80
    v_mov_b32 v{ONE+1}, 0x3f803f80
    v_mov_b32 v{ONE+2}, 0x3f803f80
    v_mov_b32 v{ONE+3}, 0x3f803f80
    v_mov_b32 v{ZER}, 0
    s_mov_b32 s{S_STEP}, 0
    s_mov_b32 s{S_KVN}, 0
    s_mov_b32 s{S_WARM}, 0
    s_mov_b32 s88, 0
    s_mov_b32 s{S_XBR}, {L_XB}
    s_mov_b32 s{S_XBW}, {L_XB + 4096 * NSELF}
    """)
    V_PK, V_PV = TMP + 8, TMP + 9
    pfn = [0]

    def prefetch(seg_sreg, part=3, chk=True, skip=None):
        i = pfn[0]; pfn[0] += 1
        if flags and chk:
            a(f"""
            s_cmp_gt_i32 s{S_KVN}, s{seg_sreg}
            s_cbranch_scc1 {name}_pf{i}ok
{name}_pf{i}w:
            """)
            wdog()
            a(f"""
            buffer_load_dword v{V_T0}, v{V_OFL}, {SRD}, 0 offen sc1
            s_waitcnt vmcnt(0)
            v_readlane_b32 s{S_KVN}, v{V_T0}, 0
            v_readlane_b32 s{S_T0}, v{V_T0}, 1
            s_nop 1
            s_min_i32 s{S_KVN}, s{S_KVN}, s{S_T0}
            s_cmp_gt_i32 s{S_KVN}, s{seg_sreg}
            s_cbranch_scc0 {skip or f"{name}_pf{i}w"}
{name}_pf{i}ok:
            """)
        if part is None: return
        a(f"""
        s_add_u32 s77, s{seg_sreg}, s{S_CU}
        s_bfe_u32 s{S_T0}, s77, 0x40002
        s_lshl_b32 s{S_T0}, s{S_T0}, 14
        s_and_b32 s77, s77, 3
        s_lshl_b32 s77, s77, 11
        s_add_u32 s{S_T0}, s{S_T0}, s77
        """)
        if part <= 0:
            a(f"s_add_u32 s{S_T0}, s{S_T0}, s{S_KXB}")
            if part < 0: a(f"s_add_u32 s{S_T0}, s{S_T0}, {WS_VT}")
            for l in range(16):
                a(f"s_buffer_load_dword s78, {SRD}, s{S_T0} offset:{128*l}")
            return
        for f in range(4):
            if not (part >> (f >> 1)) & 1: continue
            a(f"s_add_u32 m0, s{S_XBW}, {2048 * (f >> 1)}")
            a("s_nop 0")
            a(f"buffer_load_dwordx4 v{V_PK if f < 2 else V_PV}, {SRD}, s{S_T0} offen offset:{1024 * (f & 1)} sc1 lds")
        if part & 2: a(f"""
        s_add_u32 s{S_XBW}, s{S_XBW}, 4096
        s_cmp_eq_u32 s{S_XBW}, {L_XB + 3 * 4096}
        s_cselect_b32 s{S_XBW}, {L_XB}, s{S_XBW}
        """)

    def flag_store(val_sreg):
        a(f"""
        v_mov_b32 v{V_T1}, s{val_sreg}
        s_mov_b64 exec, 1
        buffer_store_dword v{V_T1}, v{ZER}, {SRD}, s{S_FLB} offen sc1
        s_mov_b64 exec, -1
        """)

    def zero(base, n):
        for i in range(n):
            a(f"v_mov_b32 v{base+i}, 0")

    if ts and E("BPROF", 0):
        ts(2)
        a(f"v_and_b32 v{V_L}, 63, v0\nv_lshrrev_b32 v{V_G}, 4, v{V_L}")
    a(f"s_cmp_eq_u32 s{S_WAVE}, 3\ns_cbranch_scc0 {name}_pfi")
    a(f"s_mov_b32 s76, 0")
    if not NSELF: prefetch(76)
    a("s_waitcnt vmcnt(0) lgkmcnt(0)")
    a.label(f"{name}_pfi")
    zero(AQ, 24)
    a("s_barrier")
    if ts and E("BPROF", 0):
        ts(3)
        a(f"v_and_b32 v{V_L}, 63, v0\nv_lshrrev_b32 v{V_G}, 4, v{V_L}")
    stamp(0)

    def smf(d, areg, w):
        a(f"v_smfmac_f32_16x16x64_bf16 v[{d}:{d+3}], v[{areg}:{areg+3}], a[{w}:{w+7}], v{V_IDX}")

    def stream_poll(tag, base, soff, off0, two, work, first=None):
        def ld(i):
            a(f"buffer_load_dwordx4 v[{base+4*i}:{base+4*i+3}], v{V_OMEM}, {SRD}, s{soff} offen offset:{1024*i} sc1")
        G = E("GAP", 10)
        for i in range(4):
            ld(i)
            if i == 0 and first:
                first()
                if G > 5: a.nops(G - 5)
            elif i < 3 and G:
                a.nops(G)
        if E("RR", 1):
            def lab(S, i): return f"{name}_{tag}_{S}_{i}"
            def nxt(S, i):
                for d in range(1, 5):
                    if S >> ((i + d) & 3) & 1: return (i + d) & 3
            def chk(i):
                if two:
                    a(f"v_max_u32 v{V_T0}, v{base+4*i}, v{base+4*i+2}")
                    a(f"v_cmp_eq_u32 vcc, -1, v{V_T0}")
                else:
                    a(f"v_cmp_eq_u32 vcc, -1, v{base+4*i}")
            def block(S, i, fall):
                a.label(lab(S, i))
                a(f"s_waitcnt vmcnt({bin(S).count('1') - 1})")
                chk(i)
                a(f"s_cbranch_vccnz {lab(S, i)}f")
                work(i)
                if not fall:
                    S2 = S & ~(1 << i)
                    a(f"s_branch {lab(S2, nxt(S2, i)) if S2 else f'{name}_{tag}_d'}")
            fast = [(15, 0), (14, 1), (12, 2), (8, 3)]
            if E("HOIST", 1) and two:
                def cap(fn, *ar):
                    sv = a.lines; a.lines = []; fn(*ar); o = a.lines; a.lines = sv; return o
                a("s_waitcnt vmcnt(3)")
                chk(0)
                for n, (S, i) in enumerate(fast):
                    a(f"s_cbranch_vccnz {lab(S, i)}f")
                    wk = cap(work, i)
                    a.lines += wk[:3]
                    if i < 3:
                        a(f"s_waitcnt vmcnt({2 - i})")
                        chk(i + 1)
                    a.lines += wk[3:]
                fast = []
            for S, i in fast:
                block(S, i, True)
            a.label(f"{name}_{tag}_d")
            def stubs():
                for S in range(1, 16):
                    for i in range(4):
                        if not S >> i & 1: continue
                        a.label(lab(S, i) + "f")
                        if E("MSK", 1): a("s_mov_b64 exec, vcc")
                        ld(i)
                        if E("MSK", 1): a("s_mov_b64 exec, -1")
                        if bin(S).count('1') == 1 or i == nxt(S, 3): wdog()
                        a(f"s_branch {lab(S, nxt(S, i))}")
                        if (S, i) not in fast:
                            block(S, i, False)
            return stubs
        for i in range(4):
            a.label(f"{name}_{tag}{i}")
            a(f"s_waitcnt vmcnt({3-i})")
            if two:
                a(f"v_max_u32 v{V_T0}, v{base+4*i}, v{base+4*i+2}")
                a(f"v_cmp_eq_u32 vcc, -1, v{V_T0}")
            else:
                a(f"v_cmp_eq_u32 vcc, -1, v{base+4*i}")
            a(f"s_cbranch_vccnz {name}_{tag}r{i}")
            a.label(f"{name}_{tag}k{i}")
            work(i)
        def stubs():
            for i in range(4):
                a.label(f"{name}_{tag}r{i}")
                if prof: a(f"s_add_u32 s{62 if tag == 'pa' else 63}, s{62 if tag == 'pa' else 63}, 1")
                wdog()
                if not E("IMM", 1): a("s_waitcnt vmcnt(0)")
                for k in range(i, 4):
                    ld(k)
                a(f"s_branch {name}_{tag}{i}")
        return stubs

    def fold(t0, t1):
        for i in range(4):
            a(f"v_permlane32_swap_b32 v{t0+i}, v{t1+i}")
        a(f"v_pk_add_f32 v[{t0}:{t0+1}], v[{t0}:{t0+1}], v[{t1}:{t1+1}]")
        a(f"v_pk_add_f32 v[{t0+2}:{t0+3}], v[{t0+2}:{t0+3}], v[{t1+2}:{t1+3}]")

    def vwork(lo, hi):
        for n in range(lo, hi):
            i, u = n >> 1, n & 1
            smf(AV + 4 * u, MA + 4 * i, A_W1 + ((4 + u) * 4 + (i & 3)) * 8)

    def vfin():
        fold(AV, AV + 4)
        a(f"ds_write_b128 v{V_LVW}, v[{AV}:{AV+3}]")

    def rread():
        for w in range(4):
            for hh in range(2):
                d = RP + 8 * w + 4 * hh
                a(f"ds_read_b128 v[{d}:{d+3}], v{V_LRR} offset:{L_QK + 2304*w + 16*hh}")

    def rsum(dst):
        a("s_waitcnt lgkmcnt(4)")
        for i in range(0, 8, 2):
            a(f"v_pk_add_f32 v[{RP+i}:{RP+i+1}], v[{RP+i}:{RP+i+1}], v[{RP+8+i}:{RP+8+i+1}]")
        a("s_waitcnt lgkmcnt(0)")
        for i in range(0, 8, 2):
            a(f"v_pk_add_f32 v[{RP+16+i}:{RP+16+i+1}], v[{RP+16+i}:{RP+16+i+1}], v[{RP+24+i}:{RP+24+i+1}]")
        for i in range(0, 8, 2):
            a(f"v_pk_add_f32 v[{RP+i}:{RP+i+1}], v[{RP+i}:{RP+i+1}], v[{RP+16+i}:{RP+16+i+1}]")
        for i in range(4):
            a(f"v_cvt_pk_bf16_f32 v{dst+i}, v{RP+2*i}, v{RP+2*i+1}")

    S_FM = S_TAG
    def xuoff(dst, step):
        a(f"""
        s_add_u32 s{S_T0}, s{step}, s{S_T}
        s_and_b32 s77, s{S_T0}, 14
        s_and_b32 s{S_T0}, s{S_T0}, 1
        s_lshl_b32 s{S_T0}, s{S_T0}, 12
        s_and_b32 s{dst}, s{step}, 48
        s_or_b32 s{dst}, s{dst}, s77
        s_lshl_b32 s{dst}, s{dst}, 13
        s_add_u32 s{dst}, s{dst}, s{S_T0}
        """)

    def heads():
        a(f"""
        s_and_b32 s{S_T1}, s{S_STEP}, 1
        s_lshl_b32 s{S_SL}, s{S_T1}, 17
        s_lshl_b32 s{S_T0}, s{S_X}, 18
        s_add_u32 s{S_SL}, s{S_SL}, s{S_T0}
        s_add_u32 s{S_SL}, s{S_SL}, {WS_I}
        s_xor_b32 s{S_SLO}, s{S_SL}, {1 << 17}
        """)
        if TAG: a(f"""
        s_lshl_b32 s{S_XS}, s{S_T1}, 18
        s_bfe_u32 s{S_TAG}, s{S_STEP}, 0x10001
        """)
        else: xuoff(S_XS, S_STEP)
    heads()
    a(f"s_branch {name}_first")

    def wa(i):
        for c in range(4):
            smf(AQ + 4 * c, MA + 4 * i, A_W1 + (c * 4 + (i & 3)) * 8)

    def xread():
        a(f"v_add_u32 v{V_T1}, s{S_XBR}, v{V_LL}")
        for f in range(4):
            a(f"ds_read_b128 v[{KX+4*f}:{KX+4*f+3}], v{V_T1} offset:{1024*f}")

    a.label(f"{name}_loop")
    stubs_a = stream_poll("pa", MA, S_SL, 0, True, wa, first=xread)
    a.label(f"{name}_adone")
    stamp(1)
    a.nops(6)
    fold(AQ, AQ + 4)
    a(f"ds_write2_b32 v{V_LWQ}, v{AQ}, v{AQ+1} offset0:0 offset1:36")
    a(f"ds_write2_b32 v{V_LWQ}, v{AQ+2}, v{AQ+3} offset0:72 offset1:108")
    fold(AQ + 8, AQ + 12)
    a(f"ds_write2_b32 v{V_LWK}, v{AQ+8}, v{AQ+9} offset0:0 offset1:36")
    a(f"ds_write2_b32 v{V_LWK}, v{AQ+10}, v{AQ+11} offset0:72 offset1:108")
    VE, VE2 = E("VE", 4), 8
    vwork(0, VE)
    a(f"""
    s_waitcnt lgkmcnt(0)
    s_barrier
    s_cmp_lg_u32 s{S_WAVE}, 0
    s_cbranch_scc1 {name}_side
    """)
    stamp(2)
    rread()
    vwork(VE, VE2)
    a(f"""
    s_mul_i32 s{S_T0}, s{S_T}, {SCS}
    s_add_u32 s{S_T0}, s{S_T0}, s{S_SL}
    s_add_u32 s{S_T0}, s{S_T0}, {SCO}
    s_add_u32 s76, s{S_P}, s{S_SL}
    s_add_u32 s77, s{S_P+1}, s{S_SL}
    s_add_u32 s78, s{S_P+2}, s{S_SL}
    """)
    rsum(R)
    a.nops(2)
    a(f"v_mfma_f32_16x16x32_bf16 v[{S+4}:{S+7}], v[{KX+4}:{KX+7}], v[{R}:{R+3}], 0")
    a(f"v_mfma_f32_16x16x32_bf16 v[{S}:{S+3}], v[{KX}:{KX+3}], v[{R}:{R+3}], 0")
    a(f"v_mfma_f32_16x16x32_bf16 v[{S+8}:{S+11}], v[{R}:{R+3}], v[{R}:{R+3}], 0")
    a(f"s_cmp_eq_u32 s{S_STEP}, {nsteps-1}")
    a(f"s_cbranch_scc1 {name}_w0last")
    if E("VF", 0) == 1: vfin()
    else: a.nops(5)
    for i in range(4):
        a(f"v_mov_b32_dpp v{S+i}, v{S+4+i} row_shr:8 row_mask:0xf bank_mask:0xc")
    a(f"""
    v_min_u32 v{S+8}, -2, v{S+8}
    v_min_u32 v{S}, -2, v{S}
    s_mov_b64 exec, s[{S_MMEM}:{S_MMEM+1}]
    buffer_store_dwordx4 v[{S+8}:{S+11}], v{V_OSCM}, {SRD}, s{S_T0} offen {IS}
    s_mov_b64 exec, -1
    buffer_store_dwordx4 v[{S}:{S+3}], v{V_LL}, {SRD}, s{S_T0} offen {IS}
    """)
    stamp(3)

    def p2ld():
        for p, so in enumerate((76, 77, 78)):
            a(f"buffer_load_dwordx4 v[{PL+8*p}:{PL+8*p+3}], v{V_LL}, {SRD}, s{so} offen sc1")
            a(f"buffer_load_dwordx4 v[{PL+8*p+4}:{PL+8*p+7}], v{V_OSCM}, {SRD}, s{so} offen sc1")
    if E("VF", 0) == 0: vfin()
    a("s_waitcnt lgkmcnt(0)\ns_barrier")
    zero(AO, 8)
    for i in range(4):
        a(f"v_cndmask_b32 v{S+4+i}, v{V_NEG}, v{S+8+i}, s[{S_MMEM}:{S_MMEM+1}]")
    if E("W2A", 0): a.nops(E("W2A", 0))
    p2ld()
    if not TAG: a(f"s_mov_b32 s80, s77"); xuoff(S_XS, S_STEP); a("s_mov_b32 s77, s80")
    if E("W2", 24): a.nops(E("W2", 24) - (0 if TAG else 10))
    p2ld()
    stamp(4)
    a.label(f"{name}_p2")
    a(f"s_waitcnt vmcnt(6)")
    a(f"v_max3_u32 v{V_T0}, v{PL}, v{PL+4}, v{PL+8}")
    a(f"v_max3_u32 v{V_T1}, v{PL+12}, v{PL+16}, v{PL+20}")
    a(f"v_max_u32 v{V_T0}, v{V_T0}, v{V_T1}")
    a(f"v_cmp_eq_u32 vcc, -1, v{V_T0}")
    a(f"s_cbranch_vccnz {name}_p2r")
    stamp(5)
    BP = E("BP", 1)
    def b2b():
        a("s_barrier")
        a(f"ds_read2_b64 v[{VM}:{VM+3}], v{V_LVR} offset0:0 offset1:32")
    if BP == 0: b2b()
    for (d, o) in ((S + 4, 4), (S, 0)):
        for i in (0, 2):
            a(f"v_pk_add_f32 v[{d+i}:{d+i+1}], v[{d+i}:{d+i+1}], v[{PL+o+i}:{PL+o+i+1}]")
            a(f"v_pk_add_f32 v[{RP+o+i}:{RP+o+i+1}], v[{PL+8+o+i}:{PL+8+o+i+1}], v[{PL+16+o+i}:{PL+16+o+i+1}]")
    for (d, o) in ((S + 4, 4), (S, 0)):
        for i in (0, 2):
            a(f"v_pk_add_f32 v[{d+i}:{d+i+1}], v[{d+i}:{d+i+1}], v[{RP+o+i}:{RP+o+i+1}]")
    MX, TM, SM = TMP, TMP + 1, TMP + 2
    a(f"""
    v_max3_f32 v{MX}, v{S}, v{S+1}, v{S+2}
    v_max3_f32 v{TM}, v{S+4}, v{S+5}, v{S+6}
    v_max3_f32 v{MX}, v{MX}, v{S+3}, v{S+7}
    v_max_f32 v{SM}, v{MX}, v{TM}
    """)
    if BP == 1: b2b()
    else: a("s_nop 1")
    a(f"""
    v_max_f32_dpp v{MX}, v{SM}, v{SM} row_ror:8 row_mask:0xf bank_mask:0xf
    v_max_f32_dpp v{TM}, v{SM}, v{SM} row_ror:8 row_mask:0xf bank_mask:0xf
    s_nop 1
    v_permlane16_swap_b32 v{MX}, v{TM}
    s_nop 0
    v_max_f32 v{SM}, v{MX}, v{TM}
    v_max_f32 v{SM+1}, v{MX}, v{TM}
    """)
    if BP == 2: b2b()
    else: a("s_nop 1")
    a(f"""
    v_permlane32_swap_b32 v{SM}, v{SM+1}
    s_nop 0
    v_max_f32 v{MX}, v{SM}, v{SM+1}
    v_mul_f32 v{MX}, s{S_C}, v{MX}
    """)
    for i in (4, 6, 0, 2):
        a(f"v_pk_fma_f32 v[{S+i}:{S+i+1}], v[{S+i}:{S+i+1}], s[{S_C}:{S_C+1}], v[{MX}:{MX+1}] op_sel_hi:[1,0,0] neg_lo:[0,0,1] neg_hi:[0,0,1]")
    for i in (4, 5, 6, 7):
        a(f"v_exp_f32 v{S+i}, v{S+i}")
    a(f"""
    v_exp_f32 v{S}, v{S}
    v_cvt_pk_bf16_f32 v{PM}, v{S+4}, v{S+5}
    v_cvt_pk_bf16_f32 v{PM+1}, v{S+6}, v{S+7}
    v_exp_f32 v{S+1}, v{S+1}
    v_exp_f32 v{S+2}, v{S+2}
    v_mfma_f32_16x16x16_bf16 v[{LS}:{LS+3}], v[{ONE}:{ONE+1}], v[{PM}:{PM+1}], 0
    v_exp_f32 v{S+3}, v{S+3}
    v_cvt_pk_bf16_f32 v{P}, v{S}, v{S+1}
    s_waitcnt lgkmcnt(0)
    v_mfma_f32_16x16x16_bf16 v[{O}:{O+3}], v[{VM}:{VM+1}], v[{PM}:{PM+1}], 0
    v_cvt_pk_bf16_f32 v{P+1}, v{S+2}, v{S+3}
    v_mfma_f32_16x16x16_bf16 v[{O+4}:{O+7}], v[{VM+2}:{VM+3}], v[{PM}:{PM+1}], 0
    v_mov_b32_dpp v{P+2}, v{P} row_ror:8 row_mask:0xf bank_mask:0xf
    v_mov_b32_dpp v{P+3}, v{P+1} row_ror:8 row_mask:0xf bank_mask:0xf
    s_nop 1
    v_mfma_f32_16x16x32_bf16 v[{LS}:{LS+3}], v[{ONE}:{ONE+3}], v[{P}:{P+3}], v[{LS}:{LS+3}]
    v_mfma_f32_16x16x32_bf16 v[{O}:{O+3}], v[{VTX}:{VTX+3}], v[{P}:{P+3}], v[{O}:{O+3}]
    v_mfma_f32_16x16x32_bf16 v[{O+4}:{O+7}], v[{VTX+4}:{VTX+7}], v[{P}:{P+3}], v[{O+4}:{O+7}]
    s_add_u32 s{S_T1}, s{S_SL}, {OXO}
    s_nop 4
    v_rcp_f32 v{SM}, v{LS}
    s_nop 0
    """)
    for i in range(0, 8, 2):
        a(f"v_pk_mul_f32 v[{O+i}:{O+i+1}], v[{O+i}:{O+i+1}], v[{SM}:{SM+1}] op_sel_hi:[1,0]")
    for i in range(4):
        a(f"v_cvt_pk_bf16_f32 v{P+i}, v{O+2*i}, v{O+2*i+1}")
    a(f"""
    v_min_u32 v{P}, -2, v{P}
    s_mov_b64 exec, s[{S_MN8}:{S_MN8+1}]
    buffer_store_dwordx4 v[{P}:{P+3}], v{V_OOP}, {SRD}, s{S_SL} offen {IS}
    s_mov_b64 exec, -1
    """)
    NB3, NB5 = E("NB3", 0), E("NB5", 0)
    if NB3:
        stamp(6)
        if E("W3", 24): a.nops(E("W3", 24))
        a.label(f"{name}_b3")
    else:
        a.label(f"{name}_b3")
        a("s_barrier")
        stamp(6)
        if E("W3", 24): a.nops(E("W3", 24))

    def wc(i):
        for u in range(2):
            smf(AO + 4 * u, MO + 4 * i, A_WO + (u * 4 + i) * 8)
    stubs_c = stream_poll("pc", MO, S_T1, 0, False, wc)
    stamp(7)
    a.nops(8)
    fold(AO, AO + 4)
    a(f"ds_write2_b32 v{V_LWO}, v{AO}, v{AO+1} offset0:0 offset1:36")
    a(f"ds_write2_b32 v{V_LWO}, v{AO+2}, v{AO+3} offset0:72 offset1:108")
    a("s_waitcnt lgkmcnt(0)\ns_barrier")
    a(f"s_cmp_lg_u32 s{S_WAVE}, 0\ns_cbranch_scc1 {name}_x1")
    for w in range(4):
        a(f"ds_read_b128 v[{RP+4*w}:{RP+4*w+3}], v{V_LRO} offset:{1152*w}")
    a("s_waitcnt lgkmcnt(2)")
    for i in (0, 2):
        a(f"v_pk_add_f32 v[{RP+i}:{RP+i+1}], v[{RP+i}:{RP+i+1}], v[{RP+4+i}:{RP+4+i+1}]")
    a("s_waitcnt lgkmcnt(0)")
    for i in (0, 2):
        a(f"v_pk_add_f32 v[{RP+8+i}:{RP+8+i+1}], v[{RP+8+i}:{RP+8+i+1}], v[{RP+12+i}:{RP+12+i+1}]")
    for i in (0, 2):
        a(f"v_pk_add_f32 v[{RP+i}:{RP+i+1}], v[{RP+i}:{RP+i+1}], v[{RP+8+i}:{RP+8+i+1}]")
    X4 = 48
    A4 = E("A4", 2)
    def p4ld():
        for p in range(3):
            a(f"buffer_load_dwordx4 v[{X4+4*p}:{X4+4*p+3}], v{25+p}, {SRD}, s{S_XS} offen sc1")
    def maxall(regs):
        regs = list(regs)
        h = len(regs) // 2
        for t, rs in ((V_T0, regs[:h]), (V_T1, regs[h:])):
            a(f"v_max3_u32 v{t}, v{rs[0]}, v{rs[1]}, v{rs[2]}")
        k = 3
        while k < h:
            for t, rs in ((V_T0, regs[:h]), (V_T1, regs[h:])):
                if k + 1 < h: a(f"v_max3_u32 v{t}, v{t}, v{rs[k]}, v{rs[k+1]}")
                else: a(f"v_max_u32 v{t}, v{t}, v{rs[k]}")
            k += 2
        a(f"v_max_u32 v{V_T0}, v{V_T0}, v{V_T1}")
        a(f"v_cmp_eq_u32 vcc, -1, v{V_T0}")
    if TAG:
        for i in range(4):
            a(f"v_and_or_b32 v{RP+i}, v{RP+i}, -2, s{S_TAG}")
        if E("HALF", 0): a(f"s_mov_b64 exec, {hex((1 << E('HALF', 0)) - 1)}")
        if E("COPY3", 0):
            for p in range(3):
                a(f"s_add_u32 s76, s{S_XS}, {WS_XU - WS_H + p * 4 * MB}")
                a(f"buffer_store_dwordx4 v[{RP}:{RP+3}], v{V_OXW}, {SRD}, s76 offen sc1")
        else:
            a(f"buffer_store_dwordx4 v[{RP}:{RP+3}], v{V_OXW}, {SRD}, s{S_XS} offen sc1")
        stamp(8)
        a(f"s_xor_b32 s76, s{S_TAG}, 1")
        for i in range(12):
            a(f"v_mov_b32 v{X4+i}, s76")
        if E("HALF", 0): a("s_mov_b64 exec, -1")
        zero(AQ, 24)
        if E("HALF", 0): a(f"s_mov_b64 exec, {hex((1 << E('HALF', 0)) - 1)}")
        if E("XW", 16): a.nops(E("XW", 16))
        stamp(11)
        a(f"s_cmp_eq_u32 s{S_TAG}, 1\ns_cbranch_scc1 {name}_p4_1")
        for tg in range(2):
            a.label(f"{name}_p4_{tg}")
            wdog()
            p4ld()
            a("s_waitcnt vmcnt(36)")
            a.nops(A4)
            bo = "0xfe" if tg == 0 else "0x80"
            for t, b in ((V_T0, X4), (V_T1, X4 + 6)):
                a(f"v_bitop3_b32 v{t}, v{b}, v{b+1}, v{b+2} bitop3:{bo}")
            for t, b in ((V_T0, X4), (V_T1, X4 + 6)):
                a(f"v_bitop3_b32 v{t}, v{t}, v{b+3}, v{b+4} bitop3:{bo}")
            a(f"v_bitop3_b32 v{V_T0}, v{V_T0}, v{X4+5}, v{X4+11} bitop3:{bo}")
            a(f"v_bitop3_b32 v{V_T0}, v{V_T0}, v{V_T1}, 1 bitop3:{'0xa8' if tg == 0 else '0x80'}")
            a(f"v_cmp_ne_u32 vcc, {tg}, v{V_T0}")
            a(f"s_cbranch_vccnz {name}_p4_{tg}")
            if tg == 0: a(f"s_branch {name}_p4d")
        a.label(f"{name}_p4d")
        if E("HALF", 0): a("s_mov_b64 exec, -1")
    else:
        for i in range(4 if A4 else 1):
            a(f"v_min_u32 v{RP+i}, -2, v{RP+i}")
        a(f"buffer_store_dwordx4 v[{RP}:{RP+3}], v{V_OXW}, {SRD}, s{S_XS} offen sc1")
        stamp(8)
        if A4:
            for i in range(12):
                a(f"v_mov_b32 v{X4+i}, -1")
        zero(AQ, 24)
        if E("XW", 16): a.nops(E("XW", 16))
        stamp(11)
        a.label(f"{name}_p4")
        if prof: a("s_add_u32 s64, s64, 1")
        wdog()
        p4ld()
        if A4:
            a("s_waitcnt vmcnt(36)")
            for rep in range(E("A4R", 1)):
                a.nops(A4 // E("A4R", 1))
                maxall(range(X4, X4 + 12))
                a(f"s_cbranch_vccz {name}_p4d")
            a(f"s_branch {name}_p4")
            a.label(f"{name}_p4d")
        else:
            a(f"""
            s_waitcnt vmcnt(0)
            v_max3_u32 v{V_T0}, v{X4}, v{X4+4}, v{X4+8}
            v_cmp_eq_u32 vcc, -1, v{V_T0}
            s_cbranch_vccnz {name}_p4
            """)
    stamp(9)
    for i in (0, 2):
        a(f"v_pk_add_f32 v[{RP+i}:{RP+i+1}], v[{RP+i}:{RP+i+1}], v[{X4+i}:{X4+i+1}]")
        a(f"v_pk_add_f32 v[{RP+4+i}:{RP+4+i+1}], v[{X4+4+i}:{X4+4+i+1}], v[{X4+8+i}:{X4+8+i+1}]")
    for i in (0, 2):
        a(f"v_pk_add_f32 v[{RP+i}:{RP+i+1}], v[{RP+i}:{RP+i+1}], v[{RP+4+i}:{RP+4+i+1}]")
    a(f"""
    v_cvt_pk_bf16_f32 v{P}, v{RP}, v{RP+1}
    v_cvt_pk_bf16_f32 v{P+1}, v{RP+2}, v{RP+3}
    v_min_u32 v{P}, -2, v{P}
    buffer_store_dwordx2 v[{P}:{P+1}], v{V_OPUB}, {SRD}, s{S_SLO} offen {IS}
    """)
    if E("LT", 0):
        a(f"s_cmp_eq_u32 s{S_STEP}, 8\ns_cbranch_scc0 {name}_lt\ns_memtime s[50:51]\ns_memrealtime s[52:53]")
        a.label(f"{name}_lt")
    a.label(f"{name}_b5")
    a(f"""
    s_add_u32 s{S_STEP}, s{S_STEP}, 1
    s_add_u32 s{S_XBR}, s{S_XBR}, 4096
    s_cmp_eq_u32 s{S_XBR}, {L_XB + 3 * 4096}
    s_cselect_b32 s{S_XBR}, {L_XB}, s{S_XBR}
    s_mov_b32 s{S_T0}, s{S_SL}
    s_mov_b32 s{S_SL}, s{S_SLO}
    s_mov_b32 s{S_SLO}, s{S_T0}
    {f"s_xor_b32 s{S_XS}, s{S_XS}, {1 << 18}" if TAG else ""}
    {f"s_bfe_u32 s{S_TAG}, s{S_STEP}, 0x10001" if TAG else ""}
    {"" if NB5 else "s_barrier"}
    """)
    stamp(10)
    if E("W1", 24): a.nops(E("W1", 24))
    a(f"s_branch {name}_loop")
    a.label(f"{name}_x1")
    stamp(11)
    if not E("NOKVM", 0):
        a(f"s_cmp_eq_u32 s{S_WAVE}, 1\ns_cbranch_scc0 {name}_x2\ns_add_u32 s76, s{S_STEP}, 1")
        flag_store(76)
        a.label(f"{name}_x2")
    a(f"""
    s_cmp_eq_u32 s{S_WAVE}, 3
    s_cbranch_scc0 {name}_x4
    s_cmp_eq_u32 s{S_LATE}, 1
    s_cbranch_scc0 {name}_x5
    s_add_u32 s76, s{S_STEP}, 1
    """)
    prefetch(76, 3)
    a(f"""
    s_waitcnt vmcnt(0)
{name}_x5:
    """)
    if E("RF4", 1):
        a(f"s_add_u32 s76, s{S_STEP}, 3\ns_min_u32 s76, s76, 63")
        prefetch(76, None, skip=f"{name}_x6")
        a.label(f"{name}_x6")
    a(f"""
    """)
    if not E("PB1", 1): a(f"""
    buffer_store_dwordx2 v[{V_POI}:{V_POI+1}], v{V_OPUB}, {SRD}, s{S_SL} offen {IS}
    s_mul_i32 s{S_T0}, s{S_T}, {SCS}
    s_add_u32 s{S_T0}, s{S_T0}, s{S_SL}
    s_add_u32 s{S_T0}, s{S_T0}, {SCO}
    buffer_store_dwordx4 v[{V_POI}:{V_POI+3}], v{V_LL}, {SRD}, s{S_T0} offen {IS}
    buffer_store_dwordx4 v[{V_POI}:{V_POI+3}], v{V_OSCM}, {SRD}, s{S_T0} offen {IS}
    """)
    a(f"""
    s_add_u32 s76, s{S_STEP}, 2
    s_cmp_lt_u32 s76, {nsteps-1}
    s_cbranch_scc0 {name}_x4
    {f"s_cmp_gt_i32 s{S_KVN}, s76" if flags else ""}
    s_cbranch_scc0 {name}_x4
    """)
    if not E("NOPF", 0):
        a(f"s_cmp_eq_u32 s88, s76\ns_cbranch_scc1 {name}_x7")
        prefetch(76, 0, False)
        a.label(f"{name}_x7")
        prefetch(76, -1, False)
        a(f"s_mov_b32 s{S_WARM}, s76")
    a.label(f"{name}_x4")
    zero(AQ, 24)
    if NB5: a(f"s_sleep {NB5}")
    a(f"s_branch {name}_b5")
    a.label(f"{name}_p2r")
    if prof: a("s_add_u32 s65, s65, 1")
    wdog()
    p2ld()
    a(f"s_branch {name}_p2")
    stubs_a()
    stubs_c()
    a.label(f"{name}_w0last")
    if E("LT", 0):
        a(f"""
        s_memtime s[54:55]
        s_memrealtime s[56:57]
        s_waitcnt lgkmcnt(0)
        s_sub_u32 s54, s54, s50
        s_sub_u32 s56, s56, s52
        v_mov_b32 v250, s54
        v_mov_b32 v251, s56
        s_lshl_b32 s80, s{S_CU}, 3
        s_add_u32 s80, s80, {WS_PROF + 14 * MB}
        buffer_store_dwordx2 v[250:251], v{ZER}, {SRD}, s80 offen
        """)
    a.nops(8)
    vfin()
    a("s_waitcnt lgkmcnt(0)\ns_barrier")
    a(f"s_branch {name}_end")
    a.label(f"{name}_side")
    a(f"""
    s_cmp_eq_u32 s{S_WAVE}, 3
    s_cbranch_scc1 {name}_sd3
    s_cmp_eq_u32 s{S_WAVE}, 2
    s_cbranch_scc0 {name}_sd4
    s_mov_b64 exec, s[{S_MN8}:{S_MN8+1}]
    buffer_store_dwordx4 v[{V_POI}:{V_POI+3}], v{V_OOP}, {SRD}, s{S_SLO} offen {IS}
    s_mov_b64 exec, -1
    """)
    if E("PB1", 1): a(f"""
    buffer_store_dwordx2 v[{V_POI}:{V_POI+1}], v{V_OPUB}, {SRD}, s{S_SLO} offen {IS}
    s_mul_i32 s{S_T0}, s{S_T}, {SCS}
    s_add_u32 s{S_T0}, s{S_T0}, s{S_SLO}
    s_add_u32 s{S_T0}, s{S_T0}, {SCO}
    buffer_store_dwordx4 v[{V_POI}:{V_POI+3}], v{V_LL}, {SRD}, s{S_T0} offen {IS}
    buffer_store_dwordx4 v[{V_POI}:{V_POI+3}], v{V_OSCM}, {SRD}, s{S_T0} offen {IS}
    """)
    a(f"""
    s_branch {name}_sd4
{name}_sd3:
    s_mov_b32 s{S_LATE}, 0
    s_add_u32 s76, s{S_STEP}, 1
    s_cmp_lt_u32 s76, {nsteps-1}
    s_cbranch_scc0 {name}_sd4
    s_cmp_ge_u32 s76, {NSELF}
    s_cbranch_scc0 {name}_sd4
    {(f"s_cmp_eq_u32 s{S_WARM}, s76" if E("WARM", 0) else f"s_cmp_gt_i32 s{S_KVN}, s76") if flags else ""}
    s_cselect_b32 s{S_LATE}, 0, 1
    s_cbranch_scc0 {name}_sd4
    """)
    if not E("NOPF", 0): prefetch(76, 3, False)
    a.label(f"{name}_sd4")
    vwork(VE, 8)
    a.nops(8)
    vfin()
    zero(AO, 8)
    a(f"""
    s_cmp_eq_u32 s{S_WAVE}, 1
    s_cbranch_scc0 {name}_s1
    s_waitcnt lgkmcnt(0)
    """)
    rread()
    rsum(KVH)
    a.label(f"{name}_s1")
    a(f"""
    v_add_u32 v{V_T1}, {L_VP}, v{V_LL}
    s_waitcnt lgkmcnt(0)
    s_barrier
    s_cmp_eq_u32 s{S_WAVE}, 2
    s_cbranch_scc1 {name}_s2
    """)
    if E("KPF", 1) and not E("NOPF", 0):
        a(f"""
        s_cmp_eq_u32 s{S_WAVE}, 3
        s_cbranch_scc0 {name}_s3
        s_add_u32 s76, s{S_STEP}, 2
        s_cmp_lt_u32 s76, {nsteps-1}
        s_cbranch_scc0 {name}_s3
        {f"s_cmp_gt_i32 s{S_KVN}, s76" if flags else ""}
        s_cbranch_scc0 {name}_s3
        """)
        prefetch(76, 0, False)
        a(f"s_mov_b32 s88, s76")
    a(f"s_branch {name}_s3")
    a.label(f"{name}_s2")
    for w in range(4):
        a(f"ds_read_b128 v[{RP+4*w}:{RP+4*w+3}], v{V_T1} offset:{1024*w}")
    a(f"v_lshrrev_b32 v{V_T1}, 1, v{V_LL}")
    a("s_waitcnt lgkmcnt(2)")
    for i in (0, 2):
        a(f"v_pk_add_f32 v[{RP+i}:{RP+i+1}], v[{RP+i}:{RP+i+1}], v[{RP+4+i}:{RP+4+i+1}]")
    a("s_waitcnt lgkmcnt(0)")
    for i in (0, 2):
        a(f"v_pk_add_f32 v[{RP+8+i}:{RP+8+i+1}], v[{RP+8+i}:{RP+8+i+1}], v[{RP+12+i}:{RP+12+i+1}]")
    for i in (0, 2):
        a(f"v_pk_add_f32 v[{RP+i}:{RP+i+1}], v[{RP+i}:{RP+i+1}], v[{RP+8+i}:{RP+8+i+1}]")
    a(f"v_cvt_pk_bf16_f32 v{KVH}, v{RP}, v{RP+1}")
    a(f"v_cvt_pk_bf16_f32 v{KVH+1}, v{RP+2}, v{RP+3}")
    a(f"ds_write_b64 v{V_T1}, v[{KVH}:{KVH+1}] offset:{L_VM}")
    a("s_waitcnt lgkmcnt(0) vmcnt(0)")
    a.label(f"{name}_s3")
    a(f"""
    s_cmp_eq_u32 s{S_STEP}, {nsteps-1}
    s_cbranch_scc1 {name}_slast
    s_add_u32 s{S_T1}, s{S_SL}, {OXO}
    s_barrier
    """)

    def kv_pub(tag):
        a(f"""
        s_add_u32 s77, s{S_STEP}, s{S_CU}
        s_bfe_u32 s{S_T0}, s77, 0x30003
        s_lshl_b32 s{S_T0}, s{S_T0}, 14
        s_and_b32 s77, s77, 7
        s_lshl_b32 s77, s77, 10
        s_add_u32 s{S_T0}, s{S_T0}, s77
        s_add_u32 s{S_T0}, s{S_T0}, s{S_KVB}
        s_cmp_eq_u32 s{S_WAVE}, 2
        s_cbranch_scc1 {name}_kv2{tag}
        s_mov_b64 exec, s[{S_MKM}:{S_MKM+1}]
        buffer_store_dwordx4 v[{KVH}:{KVH+3}], v{V_OKV}, {SRD}, s{S_T0} offen sc1
        s_mov_b64 exec, -1
        s_branch {name}_kvd{tag}
{name}_kv2{tag}:
        v_lshlrev_b32 v{V_T0}, 3, v{V_L}
        buffer_store_dwordx2 v[{KVH}:{KVH+1}], v{V_T0}, {SRD}, s{S_T0} offen offset:512 sc1
{name}_kvd{tag}:
        """)
    a(f"s_cmp_eq_u32 s{S_WAVE}, 3\ns_cbranch_scc1 {name}_y3")
    if not E("NOKVM", 0):
        kv_pub("a")
    a(f"s_branch {name}_y4")
    a.label(f"{name}_y3")
    if not TAG:
        a(f"s_add_u32 s76, s{S_STEP}, 2\ns_and_b32 s76, s76, 63")
        xuoff(S_XS, 76)
        a(f"s_cmp_lt_u32 s76, 2\ns_cbranch_scc1 {name}_y4")
        a(f"buffer_store_dwordx4 v[{V_POI}:{V_POI+3}], v{V_OXW}, {SRD}, s{S_XS} offen sc1")
    a(f"""
    s_add_u32 s76, s{S_STEP}, 2
    s_cmp_lt_u32 s76, {nsteps-1}
    s_cbranch_scc0 {name}_y4
    """)
    if not E("NOPF", 0):
        if E("KPF", 1):
            if not E("RF4", 1):
                a(f"s_add_u32 s76, s{S_STEP}, 3")
                prefetch(76, None, skip=f"{name}_y4")
        else:
            prefetch(76, 0, skip=f"{name}_y4")
    a.label(f"{name}_y4")
    if NB3: a(f"s_sleep {NB3}")
    a(f"s_branch {name}_b3")
    a.label(f"{name}_first")
    for i in range(4):
        a(f"buffer_load_dwordx4 v[{MA+4*i}:{MA+4*i+3}], v{V_OM0}, s[{S_M0}:{S_M0+3}], 0 offen offset:{128*i}")
    xread()
    a("s_waitcnt vmcnt(0)")
    for i in range(4):
        wa(i)
    a.nops(2)
    a(f"s_branch {name}_adone")
    a.label(f"{name}_slast")
    a(f"s_cmp_eq_u32 s{S_WAVE}, 3\ns_cbranch_scc1 {name}_end")
    kv_pub("b")
    a(f"s_waitcnt vmcnt(0)\ns_barrier\ns_mov_b32 s76, {nsteps}\ns_cmp_eq_u32 s{S_WAVE}, 1\ns_cbranch_scc0 {name}_end")
    flag_store(76)
    a.label(f"{name}_end")
    if ts: ts(4)
    if prof:
        a(f"""
        s_lshl_b32 s{S_T0}, s{S_X}, 5
        s_add_u32 s{S_T0}, s{S_T0}, s{S_T}
        s_lshl_b32 s{S_T0}, s{S_T0}, 2
        s_add_u32 s{S_T0}, s{S_T0}, s{S_WAVE}
        s_lshl_b32 s{S_T0}, s{S_T0}, 6
        s_add_u32 s{S_T0}, s{S_T0}, {WS_PROF}
        v_mov_b32 v{V_T1}, 0
        s_mov_b64 exec, 1
        """)
        for i in range(16):
            a(f"v_mov_b32 v{V_T0}, s{50+i}")
            a(f"buffer_store_dword v{V_T0}, v{V_T1}, {SRD}, s{S_T0} offen offset:{4*i}")
            a("s_nop 1")
    a("s_endpgm")


def gen_rec_standalone(a: Asm, name, prof=False, force_slow=False):
    a.kernel_begin(name)
    a(f"s_cmp_ge_u32 s2, 256\ns_cbranch_scc1 {name}_exit")
    start_code(a, name)
    a(f"""
    s_sub_u32 s40, s90, 6
    s_lshl_b32 s40, s40, 5
    s_add_u32 s40, s40, s96
    s_cmp_lt_u32 s90, 4
    s_cbranch_scc0 {name}_oth
    s_mov_b32 s{S_X}, s90
    s_mov_b32 s{S_T}, s96
    """)
    rec_body(a, name + "_f", "", lambda vt: sync_code(a, name, "r", vt), prof=prof, flags=False)
    a.label(f"{name}_oth")
    a(f"s_cmp_lt_u32 s40, {NI}\ns_cbranch_scc0 {name}_exit")
    init_cd(a, name, 40)
    a.label(f"{name}_slowent")
    a.label(f"{name}_exit")
    a("s_endpgm")
    return kd(name, 512, sgpr=102, accum=256)


if __name__ == "__main__":
    import sys
    a = Asm()
    name = "rec_kernel"
    k = gen_rec_standalone(a, name, prof=("prof" in sys.argv), force_slow=("slow" in sys.argv))
    out = HEADER + f"; @launch kernel={name} grid=(256,1,1) block=(256,1,1) lds=163840\n"
    out += '.amdgcn_target "amdgcn-amd-amdhsa--gfx950"\n.text\n' + a.text() + '.section .rodata,"a"\n' + k
    open(os.environ.get("OUT", "rec.s"), "w").write(out)
```

```python
import sys
from gen_common import *
from gen_rec import S_X, S_T, S_WSD, S_DBG, E, start_code, rec_body, sync_code, slow_entry, init_cd
from gen_bulk import kv_role, qx_role, out_role, S_H, S_O0, S_O1, S_OI, S_OT
from gen_fft2 import gen_f0, gen_f1, gen_f2, gen_f3

LDS = 163840


def gen_mega(a, name, force_slow=False):
    W = S_WSD
    S_B, S_G, S_F = 94, 91, 92
    a.kernel_begin(name)

    def ts(i):
        if not E("BPROF", 0): return
        a(f"""
        s_memrealtime s[76:77]
        s_memtime s[100:101]
        s_waitcnt lgkmcnt(0)
        v_mov_b32 v1, 0
        v_mov_b32 v2, s76
        s_lshl_b32 s78, s2, 6
        s_add_u32 s78, s78, {WS_PROF + 8 * MB + 4 * i}
        s_mov_b64 exec, 1
        buffer_store_dword v2, v1, s[{W}:{W+3}], s78 offen
        s_nop 1
        v_mov_b32 v2, s100
        s_add_u32 s78, s78, 16384
        buffer_store_dword v2, v1, s[{W}:{W+3}], s78 offen
        s_nop 1
        v_mov_b32 v2, s96
        s_lshl_b32 s78, s2, 6
        s_add_u32 s78, s78, {WS_PROF + 8 * MB + 56}
        buffer_store_dword v2, v1, s[{W}:{W+3}], s78 offen
        s_mov_b64 exec, -1
        """)
    a(f"s_cmp_ge_u32 s2, 256\ns_cbranch_scc1 {name}_exit")
    if E("BPROF", 0): a("s_memrealtime s[80:81]")
    start_code(a, name)
    sync = lambda tag: (lambda vt: sync_code(a, name, tag, vt, force_slow))
    a(f"""
    s_cmp_lt_u32 s96, 32
    s_cbranch_scc1 {name}_spec
    """)
    sync("x")(2)
    slow_entry(a, name)
    a(f"""
    s_lshr_b32 s{S_X}, s97, 5
    s_and_b32 s{S_T}, s97, 31
    s_cmp_lt_u32 s97, 128
    s_cbranch_scc1 {name}_recs
    s_sub_u32 s{S_B}, s97, 128
    s_branch {name}_bulk
{name}_spec:
    s_mov_b32 s{S_X}, s90
    s_mov_b32 s{S_T}, s96
    s_cmp_lt_u32 s90, 4
    s_cbranch_scc1 {name}_recf
    s_sub_u32 s{S_B}, s90, 4
    s_lshl_b32 s{S_B}, s{S_B}, 5
    s_add_u32 s{S_B}, s{S_B}, s96
{name}_bulk:
    """)
    if E("MIX", 0):
        a(f"s_and_b32 s{S_G}, s{S_B}, 3\ns_lshr_b32 s{S_H}, s{S_B}, 2")
    else:
        a(f"s_lshr_b32 s{S_G}, s{S_B}, 5\ns_and_b32 s{S_H}, s{S_B}, 31")
    a(f"""
    s_and_b32 s{S_F}, s{S_G}, 1
    s_lshl_b32 s{S_F}, s{S_F}, 5
    s_add_u32 s{S_F}, s{S_F}, s{S_H}
    """)
    if E("BPROF", 0):
        a(f"""
        v_mov_b32 v1, 0
        v_mov_b32 v2, s80
        v_mov_b32 v3, s{S_G}
        s_lshl_b32 s78, s2, 6
        s_add_u32 s78, s78, {WS_PROF + 8 * MB}
        s_mov_b64 exec, 1
        buffer_store_dword v2, v1, s[{W}:{W+3}], s78 offen
        buffer_store_dword v3, v1, s[{W}:{W+3}], s78 offen offset:60
        s_mov_b64 exec, -1
        """)
    ts(1)
    a(f"""
    s_cmp_eq_u32 s{S_G}, 0
    s_cbranch_scc1 {name}_rk
    s_cmp_eq_u32 s{S_G}, 1
    s_cbranch_scc1 {name}_rv
    """)
    def signal(i):
        a(f"""
        s_waitcnt vmcnt(0)
        s_barrier
        v_mov_b32 v1, 0
        v_mov_b32 v2, 1
        s_mov_b32 s82, {WS_F + F_CNT + 128 * i}
        v_cmp_eq_u32 vcc, 0, v0
        s_and_saveexec_b64 s[80:81], vcc
        s_cbranch_execz {name}_sg{i}
        buffer_atomic_add v2, v1, s[{W}:{W+3}], s82 offen sc1
{name}_sg{i}:
        s_mov_b64 exec, s[80:81]
        """)

    def wait(i, n):
        a(f"v_mov_b32 v1, 0\ns_mov_b32 s82, {WS_F + F_CNT + 128 * i}")
        a.label(f"{name}_w{i}")
        wd_code(a, f"fftwait{i}")
        a(f"""
        s_sleep 8
        buffer_load_dword v2, v1, s[{W}:{W+3}], s82 offen sc1
        s_waitcnt vmcnt(0)
        v_cmp_ne_u32 vcc, {n-1}, v2
        s_cbranch_vccnz {name}_w{i}
        """)

    def tasks(tag, fn, first, stride, n, base_sreg):
        a(f"s_add_u32 s93, s{base_sreg}, {first}")
        a(f"s_cmp_lt_u32 s93, {n}\ns_cbranch_scc0 {name}_{tag}e")
        a.label(f"{name}_{tag}l")
        fn()
        a(f"s_add_u32 s93, s93, {stride}\ns_cmp_lt_u32 s93, {n}\ns_cbranch_scc1 {name}_{tag}l")
        a.label(f"{name}_{tag}e")
    DF2 = E("DF2", 0)
    if E("NI", 64) == 32:
        a(f"s_cmp_eq_u32 s{S_G}, 2\ns_cbranch_scc1 {name}_noinit")
        init_cd(a, name, S_H)
        if E("WOT", 1):
            a(f"""
            s_load_dwordx2 s[4:5], s[0:1], {KA_WO}
            v_lshlrev_b32 v1, 7, v0
            s_lshl_b32 s8, s{S_H}, 15
            s_waitcnt lgkmcnt(0)
            s_mov_b32 s6, {8*MB}
            s_mov_b32 s7, 0x00020000
            """)
            for i in range(8):
                a(f"buffer_load_dword v250, v1, s[4:7], s8 offen\ns_add_u32 s8, s8, {MB}")
            a("s_waitcnt vmcnt(0)")
        a.label(f"{name}_noinit")
    else:
        init_cd(a, name, S_F)
    if E("CDH", 0):
        if E("CDH", 0) == 1: a(f"s_cmp_eq_u32 s{S_G}, 2\ns_cbranch_scc1 {name}_nohold")
        sync("h")(2)
        a(f"""
        s_xor_b32 s76, s98, 1
        s_lshl_b32 s76, s76, 13
        s_lshl_b32 s77, s{S_H}, 7
        s_add_u32 s76, s76, s77
        s_add_u32 s76, s76, {WS_F + F_K}
        v_mov_b32 v1, 0
{name}_hold:
        s_sleep 12
        """)
        wd_code(a, "hold")
        a(f"""
        buffer_load_dword v2, v1, s[{W}:{W+3}], s76 offen sc1
        s_waitcnt vmcnt(0)
        v_cmp_gt_i32 vcc, 1, v2
        s_cbranch_vccnz {name}_hold
{name}_nohold:
        """)
    ts(2)
    a(f"s_cmp_eq_u32 s{S_G}, 2\ns_cbranch_scc0 {name}_rd")
    qx_role(a, name + "_q", ts, sync("c"))
    a.label(f"{name}_rd")
    a(f"s_mov_b32 s93, s{S_H}")
    gen_f1(a, name + "_f1", 93, 32, 128)
    ts(5)
    a(f"s_mov_b32 s93, s{S_H}\ns_waitcnt vmcnt(0)")
    gen_f0(a, name + "_f0", 93, 32, 288)
    sync("d")(2)
    signal(0)
    ts(6)
    a(f"s_add_u32 s38, s{S_H}, {129 - DF2}\ns_mov_b32 s39, 32\ns_mov_b32 s37, 129")
    a(f"s_cmp_lt_u32 s38, 129\ns_cbranch_scc1 {name}_f2s\ns_branch {name}_f2e")
    a.label(f"{name}_rk")
    kv_role(a, name + "_k", False, ts, sync("k"))
    a(f"s_branch {name}_fft")
    a.label(f"{name}_rv")
    kv_role(a, name + "_v", True, ts, sync("v"))
    a.label(f"{name}_fft")
    ts(4)
    a(f"s_mov_b32 s38, s{S_F}\ns_mov_b32 s39, 64\ns_mov_b32 s37, {129 - DF2}")
    a.label(f"{name}_f2s")
    wait(0, 32)
    gen_f2(a, name + "_f2", 38, "s39", "s37")
    a.label(f"{name}_f2e")
    signal(1)
    ts(7)
    TL = E("TAILG", 1)
    a(f"s_mov_b32 s{S_O0}, 0\ns_mov_b32 s{S_O1}, {62 if TL else 64}\ns_mov_b32 s{S_OI}, 0\ns_mov_b32 s{S_OT}, 0")
    a(f"s_cmp_eq_u32 s{S_G}, 3\ns_cbranch_scc1 {name}_out")
    wait(1, 96)
    a(f"s_mov_b32 s93, s{S_F}")
    gen_f3(a, name + "_f3", 93, 64, 128)
    ts(8)
    if TL:
        a(f"s_add_u32 s{S_O0}, s{S_G}, 62\ns_add_u32 s{S_O1}, s{S_G}, 63\ns_mov_b32 s{S_OI}, {32 * 8192}\ns_mov_b32 s{S_OT}, 1\ns_waitcnt vmcnt(0)\ns_barrier")
    else:
        a(f"s_branch {name}_exit")
    a.label(f"{name}_out")
    out_role(a, name + "_o", lambda i: ts(i + 6))
    a.label(f"{name}_exit")
    a("s_endpgm")
    a.label(f"{name}_recf")
    rec_body(a, name + "_rf", "", sync("r"), prof=bool(E("PROF", 0)), ts=ts)
    a.label(f"{name}_recs")
    rec_body(a, name + "_rs", "sc1", sync("s"))
    return kd(name, 512, sgpr=102, accum=256)


def build(path, force_slow=False):
    a = Asm()
    k = gen_mega(a, "mega_kernel", force_slow)
    out = HEADER + f"; @launch kernel=mega_kernel grid=(256,1,1) block=(256,1,1) lds={LDS}\n"
    out += '.amdgcn_target "amdgcn-amd-amdhsa--gfx950"\n.text\n' + a.text() + '.section .rodata,"a"\n' + k
    open(path, "w").write(out)
    import json
    json.dump(WD_SITES, open("wd.json", "w"))


if __name__ == "__main__":
    build(sys.argv[1] if len(sys.argv) > 1 else "mega.s", force_slow=("slow" in sys.argv))
```

```python
import sys
from gen_common import *
from gen_rec import S_X, S_T, S_WSD, S_DBG, E, start_code, rec_body, sync_code, slow_entry, init_cd
from gen_bulk import kv_role, qx_role, out_role, S_H, S_O0, S_O1, S_OI, S_OT
from gen_fft2 import gen_f0, gen_f1, gen_f2, gen_f3

LDS = 163840


def gen_mega(a, name, force_slow=False):
    W = S_WSD
    S_B, S_G, S_F = 94, 91, 92
    a.kernel_begin(name)

    def ts(i):
        if E("DBGT", 0):
            slot = {2: 1, 3: 2, 4: 3, 7: 5, 8: 6, 10: 7}.get(i)
            if slot is None: return
            a(f"""
            s_memrealtime s[76:77]
            s_waitcnt lgkmcnt(0)
            s_sub_u32 s76, s76, s100
            s_cmp_lt_u32 s90, 4
            s_cselect_b32 s78, 0, 32
            v_mov_b32 v1, 0
            v_mov_b32 v2, s76
            s_mov_b64 exec, 1
            buffer_atomic_umax v2, v1, s[{S_DBG}:{S_DBG+3}], s78 offen offset:{4 * slot} sc1
            s_mov_b64 exec, -1
            """)
            return
        if not E("BPROF", 0): return
        a(f"""
        s_memrealtime s[76:77]
        s_memtime s[100:101]
        s_waitcnt lgkmcnt(0)
        v_mov_b32 v1, 0
        v_mov_b32 v2, s76
        s_lshl_b32 s78, s2, 6
        s_add_u32 s78, s78, {WS_PROF + 8 * MB + 4 * i}
        s_mov_b64 exec, 1
        buffer_store_dword v2, v1, s[{W}:{W+3}], s78 offen
        s_nop 1
        v_mov_b32 v2, s100
        s_add_u32 s78, s78, 16384
        buffer_store_dword v2, v1, s[{W}:{W+3}], s78 offen
        s_nop 1
        v_mov_b32 v2, s96
        s_lshl_b32 s78, s2, 6
        s_add_u32 s78, s78, {WS_PROF + 8 * MB + 56}
        buffer_store_dword v2, v1, s[{W}:{W+3}], s78 offen
        s_mov_b64 exec, -1
        """)
    a(f"s_cmp_ge_u32 s2, 256\ns_cbranch_scc1 {name}_exit")
    if E("BPROF", 0) == 1: a("s_memrealtime s[80:81]")
    if E("DBGT", 0): a("s_memrealtime s[100:101]")
    start_code(a, name)
    sync = lambda tag: (lambda vt: sync_code(a, name, tag, vt, force_slow))
    a(f"""
    s_cmp_lt_u32 s96, 32
    s_cbranch_scc1 {name}_spec
    """)
    sync("x")(2)
    slow_entry(a, name)
    a(f"""
    s_lshr_b32 s{S_X}, s97, 5
    s_and_b32 s{S_T}, s97, 31
    s_cmp_lt_u32 s97, 128
    s_cbranch_scc1 {name}_recs
    s_sub_u32 s{S_B}, s97, 128
    s_branch {name}_bulk
{name}_spec:
    s_mov_b32 s{S_X}, s90
    s_mov_b32 s{S_T}, s96
    s_cmp_lt_u32 s90, 4
    s_cbranch_scc1 {name}_recf
    s_sub_u32 s{S_B}, s90, 4
    s_lshl_b32 s{S_B}, s{S_B}, 5
    s_add_u32 s{S_B}, s{S_B}, s96
{name}_bulk:
    """)
    if E("MIX", 0):
        a(f"s_and_b32 s{S_G}, s{S_B}, 3\ns_lshr_b32 s{S_H}, s{S_B}, 2")
    else:
        a(f"s_lshr_b32 s{S_G}, s{S_B}, 5\ns_and_b32 s{S_H}, s{S_B}, 31")
    a(f"""
    s_and_b32 s{S_F}, s{S_G}, 1
    s_lshl_b32 s{S_F}, s{S_F}, 5
    s_add_u32 s{S_F}, s{S_F}, s{S_H}
    """)
    if E("BPROF", 0) == 1:
        a(f"""
        v_mov_b32 v1, 0
        v_mov_b32 v2, s80
        v_mov_b32 v3, s{S_G}
        s_lshl_b32 s78, s2, 6
        s_add_u32 s78, s78, {WS_PROF + 8 * MB}
        s_mov_b64 exec, 1
        buffer_store_dword v2, v1, s[{W}:{W+3}], s78 offen
        buffer_store_dword v3, v1, s[{W}:{W+3}], s78 offen offset:60
        s_mov_b64 exec, -1
        """)
    ts(1)
    a(f"""
    s_cmp_eq_u32 s{S_G}, 0
    s_cbranch_scc1 {name}_rk
    s_cmp_eq_u32 s{S_G}, 1
    s_cbranch_scc1 {name}_rv
    """)
    def signal(i):
        a(f"""
        s_waitcnt vmcnt(0)
        s_barrier
        v_mov_b32 v1, 0
        v_mov_b32 v2, 1
        s_mov_b32 s82, {WS_F + F_CNT + 128 * i}
        v_cmp_eq_u32 vcc, 0, v0
        s_and_saveexec_b64 s[80:81], vcc
        s_cbranch_execz {name}_sg{i}
        buffer_atomic_add v2, v1, s[{W}:{W+3}], s82 offen sc1
{name}_sg{i}:
        s_mov_b64 exec, s[80:81]
        """)

    def wait(i, n):
        a(f"v_mov_b32 v1, 0\ns_mov_b32 s82, {WS_F + F_CNT + 128 * i}")
        a.label(f"{name}_w{i}")
        wd_code(a, f"fftwait{i}")
        a(f"""
        s_sleep 8
        buffer_load_dword v2, v1, s[{W}:{W+3}], s82 offen sc1
        s_waitcnt vmcnt(0)
        v_cmp_ne_u32 vcc, {n-1}, v2
        s_cbranch_vccnz {name}_w{i}
        """)

    def tasks(tag, fn, first, stride, n, base_sreg):
        a(f"s_add_u32 s93, s{base_sreg}, {first}")
        a(f"s_cmp_lt_u32 s93, {n}\ns_cbranch_scc0 {name}_{tag}e")
        a.label(f"{name}_{tag}l")
        fn()
        a(f"s_add_u32 s93, s93, {stride}\ns_cmp_lt_u32 s93, {n}\ns_cbranch_scc1 {name}_{tag}l")
        a.label(f"{name}_{tag}e")
    DF2 = E("DF2", 0)
    if E("NI", 64) == 32:
        a(f"s_cmp_eq_u32 s{S_G}, 2\ns_cbranch_scc1 {name}_noinit")
        init_cd(a, name, S_H)
        if E("WOT", 1):
            a(f"""
            s_load_dwordx2 s[4:5], s[0:1], {KA_WO}
            v_lshlrev_b32 v1, 7, v0
            s_lshl_b32 s8, s{S_H}, 15
            s_waitcnt lgkmcnt(0)
            s_mov_b32 s6, {8*MB}
            s_mov_b32 s7, 0x00020000
            """)
            for i in range(8):
                a(f"buffer_load_dword v250, v1, s[4:7], s8 offen\ns_add_u32 s8, s8, {MB}")
            a("s_waitcnt vmcnt(0)")
        a.label(f"{name}_noinit")
    else:
        init_cd(a, name, S_F)
    if E("CDH", 0):
        if E("CDH", 0) == 1: a(f"s_cmp_eq_u32 s{S_G}, 2\ns_cbranch_scc1 {name}_nohold")
        sync("h")(2)
        a(f"""
        s_xor_b32 s76, s98, 1
        s_lshl_b32 s76, s76, 13
        s_lshl_b32 s77, s{S_H}, 7
        s_add_u32 s76, s76, s77
        s_add_u32 s76, s76, {WS_F + F_K}
        v_mov_b32 v1, 0
{name}_hold:
        s_sleep 12
        """)
        wd_code(a, "hold")
        a(f"""
        buffer_load_dword v2, v1, s[{W}:{W+3}], s76 offen sc1
        s_waitcnt vmcnt(0)
        v_cmp_gt_i32 vcc, 1, v2
        s_cbranch_vccnz {name}_hold
{name}_nohold:
        """)
    ts(2)
    a(f"s_cmp_eq_u32 s{S_G}, 2\ns_cbranch_scc0 {name}_rd")
    qx_role(a, name + "_q", ts, sync("c"))
    a.label(f"{name}_rd")
    a(f"s_mov_b32 s93, s{S_H}")
    gen_f1(a, name + "_f1", 93, 32, 128)
    ts(5)
    a(f"s_mov_b32 s93, s{S_H}\ns_waitcnt vmcnt(0)")
    gen_f0(a, name + "_f0", 93, 32, 288)
    sync("d")(2)
    signal(0)
    ts(6)
    a(f"s_add_u32 s38, s{S_H}, {129 - DF2}\ns_mov_b32 s39, 32\ns_mov_b32 s37, 129")
    a(f"s_cmp_lt_u32 s38, 129\ns_cbranch_scc1 {name}_f2s\ns_branch {name}_f2e")
    a.label(f"{name}_rk")
    kv_role(a, name + "_k", False, ts, sync("k"))
    a(f"s_branch {name}_fft")
    a.label(f"{name}_rv")
    kv_role(a, name + "_v", True, ts, sync("v"))
    a.label(f"{name}_fft")
    ts(4)
    a(f"s_mov_b32 s38, s{S_F}\ns_mov_b32 s39, 64\ns_mov_b32 s37, {129 - DF2}")
    a.label(f"{name}_f2s")
    wait(0, 32)
    gen_f2(a, name + "_f2", 38, "s39", "s37")
    a.label(f"{name}_f2e")
    signal(1)
    ts(7)
    TL = E("TAILG", 1)
    a(f"s_mov_b32 s{S_O0}, 0\ns_mov_b32 s{S_O1}, {62 if TL else 64}\ns_mov_b32 s{S_OI}, 0\ns_mov_b32 s{S_OT}, 0")
    a(f"s_cmp_eq_u32 s{S_G}, 3\ns_cbranch_scc1 {name}_out")
    wait(1, 96)
    a(f"s_mov_b32 s93, s{S_F}")
    gen_f3(a, name + "_f3", 93, 64, 128)
    ts(8)
    if TL:
        a(f"s_add_u32 s{S_O0}, s{S_G}, 62\ns_add_u32 s{S_O1}, s{S_G}, 63\ns_mov_b32 s{S_OI}, {32 * 8192}\ns_mov_b32 s{S_OT}, 1\ns_waitcnt vmcnt(0)\ns_barrier")
    else:
        a(f"s_branch {name}_exit")
    a.label(f"{name}_out")
    out_role(a, name + "_o", lambda i: ts(i + 6))
    a.label(f"{name}_exit")
    a("s_endpgm")
    a.label(f"{name}_recf")
    rec_body(a, name + "_rf", "", sync("r"), prof=bool(E("PROF", 0)), ts=ts)
    a.label(f"{name}_recs")
    rec_body(a, name + "_rs", "sc1", sync("s"))
    return kd(name, 512, sgpr=102, accum=256)


def build(path, force_slow=False):
    a = Asm()
    k = gen_mega(a, "mega_kernel", force_slow)
    out = HEADER + f"; @launch kernel=mega_kernel grid=(256,1,1) block=(256,1,1) lds={LDS}\n"
    out += '.amdgcn_target "amdgcn-amd-amdhsa--gfx950"\n.text\n' + a.text() + '.section .rodata,"a"\n' + k
    open(path, "w").write(out)
    import json
    json.dump(WD_SITES, open("wd.json", "w"))


if __name__ == "__main__":
    build(sys.argv[1] if len(sys.argv) > 1 else "mega.s", force_slow=("slow" in sys.argv))
```

```python
import sys
from gen_common import *
from gen_rec import S_X, S_T, S_WSD, S_DBG, E, start_code, rec_body, sync_code, slow_entry, init_cd
from gen_bulk import kv_role, qx_role, out_role, S_H, S_O0, S_O1, S_OI, S_OT
from gen_fft2 import gen_f0, gen_f1, gen_f2, gen_f3

LDS = 163840


def gen_mega(a, name, force_slow=False):
    W = S_WSD
    S_B, S_G, S_F = 94, 91, 92
    a.kernel_begin(name)

    dbgn = [0]
    def ts(i):
        if E("DBGT", 0):
            slot = {2: 1, 3: 2, 4: 3, 8: 2, 10: 3}.get(i)
            if slot is None: return
            dbgn[0] += 1
            a(f"""
            s_cmp_eq_u32 s96, 5
            s_cbranch_scc0 {name}_dg{dbgn[0]}
            v_cmp_eq_u32 vcc, 64, v0
            s_cbranch_vccz {name}_dg{dbgn[0]}
            s_memrealtime s[76:77]
            s_waitcnt lgkmcnt(0)
            s_sub_u32 s76, s76, s100
            s_sub_u32 s78, s90, 3
            s_max_i32 s78, s78, 0
            s_cmp_eq_u32 s90, 7
            s_cselect_b32 s78, 1, s78
            s_cmp_eq_u32 s90, 4
            s_cbranch_scc1 {name}_dg{dbgn[0]}
            s_lshl_b32 s78, s78, 4
            v_mov_b32 v1, 0
            v_mov_b32 v2, s76
            s_mov_b64 exec, 1
            buffer_atomic_umax v2, v1, s[{S_DBG}:{S_DBG+3}], s78 offen offset:{4 * slot} sc1
            s_mov_b64 exec, -1
{name}_dg{dbgn[0]}:
            """)
            return
        if not E("BPROF", 0): return
        a(f"""
        s_memrealtime s[76:77]
        s_memtime s[100:101]
        s_waitcnt lgkmcnt(0)
        v_mov_b32 v1, 0
        v_mov_b32 v2, s76
        s_lshl_b32 s78, s2, 6
        s_add_u32 s78, s78, {WS_PROF + 8 * MB + 4 * i}
        s_mov_b64 exec, 1
        buffer_store_dword v2, v1, s[{W}:{W+3}], s78 offen
        s_nop 1
        v_mov_b32 v2, s100
        s_add_u32 s78, s78, 16384
        buffer_store_dword v2, v1, s[{W}:{W+3}], s78 offen
        s_nop 1
        v_mov_b32 v2, s96
        s_lshl_b32 s78, s2, 6
        s_add_u32 s78, s78, {WS_PROF + 8 * MB + 56}
        buffer_store_dword v2, v1, s[{W}:{W+3}], s78 offen
        s_mov_b64 exec, -1
        """)
    a(f"s_cmp_ge_u32 s2, 256\ns_cbranch_scc1 {name}_exit")
    if E("BPROF", 0) == 1: a("s_memrealtime s[80:81]")
    if E("DBGT", 0): a("s_memrealtime s[100:101]")
    start_code(a, name)
    sync = lambda tag: (lambda vt: sync_code(a, name, tag, vt, force_slow))
    a(f"""
    s_cmp_lt_u32 s96, 32
    s_cbranch_scc1 {name}_spec
    """)
    sync("x")(2)
    slow_entry(a, name)
    a(f"""
    s_lshr_b32 s{S_X}, s97, 5
    s_and_b32 s{S_T}, s97, 31
    s_cmp_lt_u32 s97, 128
    s_cbranch_scc1 {name}_recs
    s_sub_u32 s{S_B}, s97, 128
    s_branch {name}_bulk
{name}_spec:
    s_mov_b32 s{S_X}, s90
    s_mov_b32 s{S_T}, s96
    s_cmp_lt_u32 s90, 4
    s_cbranch_scc1 {name}_recf
    s_sub_u32 s{S_B}, s90, 4
    s_lshl_b32 s{S_B}, s{S_B}, 5
    s_add_u32 s{S_B}, s{S_B}, s96
{name}_bulk:
    """)
    if E("MIX", 0):
        a(f"s_and_b32 s{S_G}, s{S_B}, 3\ns_lshr_b32 s{S_H}, s{S_B}, 2")
    else:
        a(f"s_lshr_b32 s{S_G}, s{S_B}, 5\ns_and_b32 s{S_H}, s{S_B}, 31")
    a(f"""
    s_and_b32 s{S_F}, s{S_G}, 1
    s_lshl_b32 s{S_F}, s{S_F}, 5
    s_add_u32 s{S_F}, s{S_F}, s{S_H}
    """)
    if E("BPROF", 0) == 1:
        a(f"""
        v_mov_b32 v1, 0
        v_mov_b32 v2, s80
        v_mov_b32 v3, s{S_G}
        s_lshl_b32 s78, s2, 6
        s_add_u32 s78, s78, {WS_PROF + 8 * MB}
        s_mov_b64 exec, 1
        buffer_store_dword v2, v1, s[{W}:{W+3}], s78 offen
        buffer_store_dword v3, v1, s[{W}:{W+3}], s78 offen offset:60
        s_mov_b64 exec, -1
        """)
    ts(1)
    a(f"""
    s_cmp_eq_u32 s{S_G}, 0
    s_cbranch_scc1 {name}_rk
    s_cmp_eq_u32 s{S_G}, 1
    s_cbranch_scc1 {name}_rv
    """)
    def signal(i):
        a(f"""
        s_waitcnt vmcnt(0)
        s_barrier
        v_mov_b32 v1, 0
        v_mov_b32 v2, 1
        s_mov_b32 s82, {WS_F + F_CNT + 128 * i}
        v_cmp_eq_u32 vcc, 0, v0
        s_and_saveexec_b64 s[80:81], vcc
        s_cbranch_execz {name}_sg{i}
        buffer_atomic_add v2, v1, s[{W}:{W+3}], s82 offen sc1
{name}_sg{i}:
        s_mov_b64 exec, s[80:81]
        """)

    def wait(i, n):
        a(f"v_mov_b32 v1, 0\ns_mov_b32 s82, {WS_F + F_CNT + 128 * i}")
        a.label(f"{name}_w{i}")
        wd_code(a, f"fftwait{i}")
        a(f"""
        s_sleep 8
        buffer_load_dword v2, v1, s[{W}:{W+3}], s82 offen sc1
        s_waitcnt vmcnt(0)
        v_cmp_ne_u32 vcc, {n-1}, v2
        s_cbranch_vccnz {name}_w{i}
        """)

    def tasks(tag, fn, first, stride, n, base_sreg):
        a(f"s_add_u32 s93, s{base_sreg}, {first}")
        a(f"s_cmp_lt_u32 s93, {n}\ns_cbranch_scc0 {name}_{tag}e")
        a.label(f"{name}_{tag}l")
        fn()
        a(f"s_add_u32 s93, s93, {stride}\ns_cmp_lt_u32 s93, {n}\ns_cbranch_scc1 {name}_{tag}l")
        a.label(f"{name}_{tag}e")
    DF2 = E("DF2", 0)
    if E("NI", 64) == 32:
        a(f"s_cmp_eq_u32 s{S_G}, 2\ns_cbranch_scc1 {name}_noinit")
        init_cd(a, name, S_H)
        if E("WOT", 1):
            a(f"""
            s_load_dwordx2 s[4:5], s[0:1], {KA_WO}
            v_lshlrev_b32 v1, 7, v0
            s_lshl_b32 s8, s{S_H}, 15
            s_waitcnt lgkmcnt(0)
            s_mov_b32 s6, {8*MB}
            s_mov_b32 s7, 0x00020000
            """)
            for i in range(8):
                a(f"buffer_load_dword v250, v1, s[4:7], s8 offen\ns_add_u32 s8, s8, {MB}")
            a("s_waitcnt vmcnt(0)")
        a.label(f"{name}_noinit")
    else:
        init_cd(a, name, S_F)
    if E("CDH", 0):
        if E("CDH", 0) == 1: a(f"s_cmp_eq_u32 s{S_G}, 2\ns_cbranch_scc1 {name}_nohold")
        sync("h")(2)
        a(f"""
        s_xor_b32 s76, s98, 1
        s_lshl_b32 s76, s76, 13
        s_lshl_b32 s77, s{S_H}, 7
        s_add_u32 s76, s76, s77
        s_add_u32 s76, s76, {WS_F + F_K}
        v_mov_b32 v1, 0
{name}_hold:
        s_sleep 12
        """)
        wd_code(a, "hold")
        a(f"""
        buffer_load_dword v2, v1, s[{W}:{W+3}], s76 offen sc1
        s_waitcnt vmcnt(0)
        v_cmp_gt_i32 vcc, 1, v2
        s_cbranch_vccnz {name}_hold
{name}_nohold:
        """)
    ts(2)
    a(f"s_cmp_eq_u32 s{S_G}, 2\ns_cbranch_scc0 {name}_rd")
    qx_role(a, name + "_q", ts, sync("c"))
    a.label(f"{name}_rd")
    a(f"s_mov_b32 s93, s{S_H}")
    gen_f1(a, name + "_f1", 93, 32, 128)
    ts(5)
    a(f"s_mov_b32 s93, s{S_H}\ns_waitcnt vmcnt(0)")
    gen_f0(a, name + "_f0", 93, 32, 288)
    sync("d")(2)
    signal(0)
    ts(6)
    a(f"s_add_u32 s38, s{S_H}, {129 - DF2}\ns_mov_b32 s39, 32\ns_mov_b32 s37, 129")
    a(f"s_cmp_lt_u32 s38, 129\ns_cbranch_scc1 {name}_f2s\ns_branch {name}_f2e")
    a.label(f"{name}_rk")
    kv_role(a, name + "_k", False, ts, sync("k"))
    a(f"s_branch {name}_fft")
    a.label(f"{name}_rv")
    kv_role(a, name + "_v", True, ts, sync("v"))
    a.label(f"{name}_fft")
    ts(4)
    a(f"s_mov_b32 s38, s{S_F}\ns_mov_b32 s39, 64\ns_mov_b32 s37, {129 - DF2}")
    a.label(f"{name}_f2s")
    wait(0, 32)
    gen_f2(a, name + "_f2", 38, "s39", "s37")
    a.label(f"{name}_f2e")
    signal(1)
    ts(7)
    TL = E("TAILG", 1)
    a(f"s_mov_b32 s{S_O0}, 0\ns_mov_b32 s{S_O1}, {62 if TL else 64}\ns_mov_b32 s{S_OI}, 0\ns_mov_b32 s{S_OT}, 0")
    a(f"s_cmp_eq_u32 s{S_G}, 3\ns_cbranch_scc1 {name}_out")
    wait(1, 96)
    a(f"s_mov_b32 s93, s{S_F}")
    gen_f3(a, name + "_f3", 93, 64, 128)
    ts(8)
    if TL:
        a(f"s_add_u32 s{S_O0}, s{S_G}, 62\ns_add_u32 s{S_O1}, s{S_G}, 63\ns_mov_b32 s{S_OI}, {32 * 8192}\ns_mov_b32 s{S_OT}, 1\ns_waitcnt vmcnt(0)\ns_barrier")
    else:
        a(f"s_branch {name}_exit")
    a.label(f"{name}_out")
    out_role(a, name + "_o", lambda i: ts(i + 6))
    a.label(f"{name}_exit")
    a("s_endpgm")
    a.label(f"{name}_recf")
    rec_body(a, name + "_rf", "", sync("r"), prof=bool(E("PROF", 0)), ts=ts)
    a.label(f"{name}_recs")
    rec_body(a, name + "_rs", "sc1", sync("s"))
    return kd(name, 512, sgpr=102, accum=256)


def build(path, force_slow=False):
    a = Asm()
    k = gen_mega(a, "mega_kernel", force_slow)
    out = HEADER + f"; @launch kernel=mega_kernel grid=(256,1,1) block=(256,1,1) lds={LDS}\n"
    out += '.amdgcn_target "amdgcn-amd-amdhsa--gfx950"\n.text\n' + a.text() + '.section .rodata,"a"\n' + k
    open(path, "w").write(out)
    import json
    json.dump(WD_SITES, open("wd.json", "w"))


if __name__ == "__main__":
    build(sys.argv[1] if len(sys.argv) > 1 else "mega.s", force_slow=("slow" in sys.argv))
```

```python
from gen_common import *
from gen_rec import S_WSD, S_DBG, E

W = S_WSD
SRD = f"s[{W}:{W+3}]"
S_H = 40
S_WAVE, S_SEG, S_T0, S_T1, S_T2 = 41, 42, 43, 44, 45
S_WM, S_XM = 4, 8
V_L, V_T0, V_T1, V_T2, V_LL = 1, 2, 3, 4, 5


def wdog(a, name):
    wd_code(a, name + ":" + a.lines[-1], f"s{S_SEG}")


def tsx(a, ts, i):
    if E("BPROF", 0):
        ts(i)
        a(f"v_and_b32 v{V_L}, 63, v0")


def pst(i):
    if not E("KPROF", 0): return []
    return ["s_memtime s[76:77]", "s_waitcnt lgkmcnt(0)", "s_sub_u32 s78, s76, s31", f"s_add_u32 s{32+i}, s{32+i}, s78", "s_mov_b32 s31, s76"]


def pinit(a):
    if not E("KPROF", 0): return
    for i in range(8): a(f"s_mov_b32 s{32+i}, 0")
    a("s_memtime s[76:77]\ns_waitcnt lgkmcnt(0)\ns_mov_b32 s31, s76")


def pdump(a):
    if not E("KPROF", 0): return
    a(f"s_lshl_b32 s78, s2, 7\ns_lshl_b32 s77, s{S_WAVE}, 5\ns_add_u32 s78, s78, s77\ns_add_u32 s78, s78, {WS_PROF + 9*MB}\nv_mov_b32 v2, 0\ns_mov_b64 exec, 1")
    for i in range(8):
        a(f"v_mov_b32 v3, s{32+i}\nbuffer_store_dword v3, v2, {SRD}, s78 offen offset:{4*i}\ns_nop 1")
    a("s_mov_b64 exec, -1")


def common(a, ka_w, ka_x, xbytes):
    a(f"""
    s_load_dwordx2 s[{S_WM}:{S_WM+1}], s[0:1], {ka_w}
    s_load_dwordx2 s[{S_XM}:{S_XM+1}], s[0:1], {ka_x}
    v_lshrrev_b32 v{V_T0}, 6, v0
    v_and_b32 v{V_L}, 63, v0
    v_readfirstlane_b32 s{S_WAVE}, v{V_T0}
    v_lshlrev_b32 v{V_LL}, 4, v{V_L}
    s_waitcnt lgkmcnt(0)
    s_mov_b32 s{S_WM+2}, {8*MB}
    s_mov_b32 s{S_WM+3}, 0x00020000
    s_mov_b32 s{S_XM+2}, {xbytes}
    s_mov_b32 s{S_XM+3}, 0x00020000
    """)


def load_weights(a, rowlog, s_base, lane_addr, frag_off, rot=None, cl=2, touch=False):
    a(f"""
    v_lshrrev_b32 v{V_T0}, {cl}, v{V_L}
    v_and_b32 v{V_T1}, {(1 << cl) - 1}, v{V_L}
    v_lshlrev_b32 v16, {rowlog}, v{V_T0}
    v_lshl_add_u32 v16, v{V_T1}, 4, v16
    v_add_u32 v16, s{s_base}, v16
    v_and_b32 v{V_T1}, 3, v{V_L}
    s_lshl_b32 s{S_T2}, s{S_WAVE}, 15
    """)
    RI = 64 >> cl
    a(lane_addr)
    a(f"v_add_u32 v17, s{S_T2}, v17")

    HELP = 1 if (touch and E("BHELP", 1)) else 0
    if HELP:
        a(f"""
        s_and_b32 s{S_T0}, s{S_H}, 3
        s_lshl_b32 s{S_T0}, s{S_T0}, 2
        s_add_u32 s{S_T0}, s{S_T0}, s{S_WAVE}
        s_lshl_b32 s{S_T0}, s{S_T0}, 4
        v_and_b32 v23, 15, v{V_L}
        v_add_u32 v23, s{S_T0}, v23
        s_lshr_b32 s{S_T0}, s{S_H}, 2
        s_lshl_b32 s{S_T0}, s{S_T0}, 10
        s_add_u32 s{S_T1}, s{S_T0}, 896
        s_add_u32 s{S_T0}, s{S_T0}, 384
        s_cmp_ge_u32 s{S_H}, 28
        s_cselect_b32 s{S_T1}, s{S_T1}, s{S_T0}
        v_mov_b32 v24, s{S_T0}
        v_mov_b32 v25, s{S_T1}
        v_cmp_gt_u32 vcc, 32, v{V_L}
        s_nop 1
        v_cndmask_b32 v24, v25, v24, vcc
        v_lshl_add_u32 v23, v23, 13, v24
        """)

    def dma(ch):
        if HELP:
            a(f"s_mov_b32 s{S_T1}, {ch * 2 * MB}\nbuffer_load_dword v22, v23, s[{S_WM}:{S_WM+3}], s{S_T1} offen")
        for r in range(16):
            a(f"s_add_u32 m0, s{S_T2}, {(ch & 1)*16384 + 1024*r}")
            if rot is None:
                a(f"s_mov_b32 s{S_T1}, {(RI * (16 * ch + r)) << rowlog}")
            else:
                a(f"s_add_u32 s{S_T1}, s{rot}, {RI * (16 * ch + r)}\ns_and_b32 s{S_T1}, s{S_T1}, {64 * RI - 1}\ns_lshl_b32 s{S_T1}, s{S_T1}, {rowlog}")
            a(f"buffer_load_dwordx4 v16, s[{S_WM}:{S_WM+3}], s{S_T1} offen {'nt ' if E('BNT', 0) else ''}lds")

    def tr(ch):
        for f in range(16 * ch, 16 * ch + 16):
            for jj in range(2):
                o = frag_off(f, jj) - 16384 * ch
                assert 0 <= o < 16384
                a(f"ds_read_b64_tr_b16 a[{4*f+2*jj}:{4*f+2*jj+1}], v17 offset:{(ch & 1)*16384 + o}")
            if f % 4 == 3:
                a("s_waitcnt lgkmcnt(0)")
    WT = E("BWT", 0) if touch else 0
    if WT:
        a(f"""
        s_lshl_b32 s{S_T0}, s{S_H}, 16
        s_lshl_b32 s{S_T1}, s{S_WAVE}, 14
        s_add_u32 s{S_T0}, s{S_T0}, s{S_T1}
        v_lshlrev_b32 v21, 7, v{V_L}
        v_add_u32 v21, s{S_T0}, v21
        """)
    def tch(n):
        for i in range(2):
            a(f"s_mov_b32 s{S_T1}, {n * 2 * MB + i * 8192}")
            a(f"buffer_load_dword v22, v21, s[{S_WM}:{S_WM+3}], s{S_T1} offen")
    if WT == 1:
        tch(0); tch(1); dma(0); tch(2); dma(1); tch(3)
    elif WT == 2:
        tch(0); tch(1); tch(2); tch(3); dma(0); dma(1)
    else:
        dma(0); dma(1)
    a(f"s_waitcnt vmcnt({(20 if WT == 1 else 16) + HELP})"); tr(0); dma(2)
    a(f"s_waitcnt vmcnt({(18 if WT == 1 else 16) + HELP})"); tr(1); dma(3)
    a("s_waitcnt vmcnt(16)"); tr(2)
    a("s_waitcnt vmcnt(0)"); tr(3)
    a("s_barrier")


def lane32(hi_mul, swap=False, rl=6):
    if swap:
        return lane32(hi_mul).replace(f"v_lshl_add_u32 v17, v{V_T1}, 3, v17", f"""
        v_and_b32 v18, 1, v{V_L}
        v_lshl_add_u32 v17, v18, 4, v17
        v_bfe_u32 v18, v{V_L}, 1, 1
        v_lshl_add_u32 v17, v18, 3, v17""")
    return f"""
    v_bfe_u32 v17, v{V_L}, 2, 2
    v_lshrrev_b32 v18, 5, v{V_L}
    v_mul_u32_u24 v18, {hi_mul}, v18
    v_add_u32 v17, v17, v18
    v_lshlrev_b32 v17, {rl}, v17
    v_bfe_u32 v18, v{V_L}, 4, 1
    v_lshl_add_u32 v17, v18, 5, v17
    v_lshl_add_u32 v17, v{V_T1}, 3, v17
    """


def lane16(qlog):
    return f"""
    v_bfe_u32 v17, v{V_L}, 2, 2
    v_lshrrev_b32 v18, 4, v{V_L}
    v_lshl_add_u32 v17, v18, 3, v17
    v_lshlrev_b32 v17, 6, v17
    v_lshl_add_u32 v17, v{V_T1}, {qlog}, v17
    """


M32 = E('M32', 0)
GR2 = 512 if M32 else 1024
V_DX, V_RA, V_ST = 6, 8, 7
FR, NFR, AHEAD = 20, 8, 6
ACC = (52, 68)
EP = 84
S_XB = 46
S_CU, S_OB, S_FL = 47, 48, 49
S_OX, S_OM = 68, 69
S_O0, S_O1, S_OI, S_OT = 64, 65, 66, 67


def proj_setup(a, ka_w, swap):
    assert not M32
    common(a, ka_w, KA_AX, 4 * MB)
    a(f"""
    s_lshl_b32 s{S_T0}, s{S_H}, 8
    s_lshl_b32 s{S_T1}, s{S_WAVE}, 6
    s_add_u32 s{S_OB}, s{S_T0}, s{S_T1}
    s_and_b32 s{S_T0}, s{S_OB}, 0x7ff
    v_add_u32 v19, s{S_T0}, v{V_L}
    v_lshlrev_b32 v19, 7, v19
    buffer_load_dword v250, v19, s[{S_XM}:{S_XM+3}], 0 offen
    s_nop 0
    """)
    a(f"""
    v_lshrrev_b32 v{V_T0}, 3, v{V_L}
    s_lshl_b32 s{S_T0}, s{S_WAVE}, 3
    v_add_u32 v{V_T0}, s{S_T0}, v{V_T0}
    v_bfe_u32 v{V_T1}, v{V_T0}, 1, 3
    v_and_b32 v{V_T2}, 7, v{V_L}
    v_xor_b32 v{V_T1}, v{V_T1}, v{V_T2}
    v_lshlrev_b32 v{V_DX}, 11, v{V_T0}
    v_lshl_add_u32 v{V_DX}, v{V_T1}, 4, v{V_DX}
    s_lshl_b32 s{S_XB}, s{S_WAVE}, 10
    v_and_b32 v{V_T0}, 15, v{V_L}
    v_bfe_u32 v{V_T1}, v{V_T0}, 1, 3
    v_lshrrev_b32 v{V_T2}, 4, v{V_L}
    v_xor_b32 v{V_T1}, v{V_T1}, v{V_T2}
    v_lshlrev_b32 v{V_RA}, 7, v{V_T0}
    v_lshl_add_u32 v{V_RA}, v{V_T1}, 4, v{V_RA}
    v_xor_b32 v{V_RA+1}, 64, v{V_RA}
    v_add_u32 v{V_RA+2}, 0x10000, v{V_RA}
    v_add_u32 v{V_RA+3}, 0x10000, v{V_RA+1}
    v_mov_b32 v{V_ST}, v{V_LL}
    """)
    if M32:
        a(f"""
        v_and_b32 v{V_T0}, 31, v{V_L}
        v_bfe_u32 v{V_T1}, v{V_T0}, 1, 3
        v_lshrrev_b32 v{V_T2}, 5, v{V_L}
        v_xor_b32 v{V_T1}, v{V_T1}, v{V_T2}
        v_lshlrev_b32 v{V_RA}, 7, v{V_T0}
        v_lshl_add_u32 v{V_RA}, v{V_T1}, 4, v{V_RA}
        v_xor_b32 v{V_RA+1}, 32, v{V_RA}
        v_xor_b32 v{V_RA+2}, 64, v{V_RA}
        v_xor_b32 v{V_RA+3}, 96, v{V_RA}
        v_add_u32 v{V_RA+4}, 0x10000, v{V_RA}
        v_add_u32 v{V_RA+5}, 0x10000, v{V_RA+1}
        v_add_u32 v{V_RA+6}, 0x10000, v{V_RA+2}
        v_add_u32 v{V_RA+7}, 0x10000, v{V_RA+3}
        v_bfe_u32 v{V_T1}, v{V_L}, 4, 1
        v_lshlrev_b32 v{V_ST}, 10, v{V_T1}
        v_lshl_add_u32 v{V_ST}, v{V_T2}, 8, v{V_ST}
        v_and_b32 v{V_T1}, 15, v{V_L}
        v_lshl_add_u32 v{V_ST}, v{V_T1}, 4, v{V_ST}
        """)
    a(f"""
    s_lshl_b32 s{S_CU}, s{S_H}, 2
    s_add_u32 s{S_CU}, s{S_CU}, s{S_WAVE}
    s_mov_b32 s{S_SEG}, 0
    s_mov_b32 s50, 0
    """)
    for g in xdma_lines(0, 50):
        a("\n".join(g))
    a(f"""
    v_lshrrev_b32 v{V_T0}, 2, v{V_L}
    v_and_b32 v{V_T1}, 3, v{V_L}
    v_lshlrev_b32 v16, 13, v{V_T0}
    v_lshl_add_u32 v16, v{V_T1}, 4, v16
    v_add_u32 v16, s{S_OB}, v16
    s_mul_i32 s{S_T2}, s{S_WAVE}, 24576
    s_add_u32 s{S_T2}, s{S_T2}, 65536
    """)
    a(lane16(4 if swap else 3))
    a(f"""
    v_add_u32 v17, s{S_T2}, v17
    s_and_b32 s{S_T0}, s{S_H}, 3
    s_lshl_b32 s{S_T0}, s{S_T0}, 2
    s_add_u32 s{S_T0}, s{S_T0}, s{S_WAVE}
    s_lshl_b32 s{S_T0}, s{S_T0}, 3
    v_and_b32 v12, 7, v{V_L}
    v_add_u32 v12, s{S_T0}, v12
    s_lshr_b32 s{S_T0}, s{S_H}, 2
    s_lshl_b32 s{S_T0}, s{S_T0}, 10
    s_add_u32 s{S_T1}, s{S_T0}, 896
    s_add_u32 s{S_T0}, s{S_T0}, 384
    s_cmp_ge_u32 s{S_H}, 28
    s_cselect_b32 s{S_T1}, s{S_T1}, s{S_T0}
    v_mov_b32 v13, s{S_T0}
    v_mov_b32 v14, s{S_T1}
    v_cmp_gt_u32 vcc, 32, v{V_L}
    s_nop 1
    v_cndmask_b32 v13, v14, v13, vcc
    v_lshl_add_u32 v12, v12, 13, v13
    """)

    def dma(ch):
        a(f"s_mov_b32 s{S_T1}, {min(ch + E('HA', 0), 7) * MB}\nbuffer_load_dword v250, v12, s[{S_WM}:{S_WM+3}], s{S_T1} offen")
        for r in range(8):
            a(f"s_add_u32 m0, s{S_T2}, {(ch % 3)*8192 + 1024*r}")
            a(f"s_mov_b32 s{S_T1}, {(128 * ch + 16 * r) << 13}")
            a(f"buffer_load_dwordx4 v16, s[{S_WM}:{S_WM+3}], s{S_T1} offen {'nt ' if E('BNT', 0) else ''}lds")
    for ch in range(3): dma(ch)
    acc = ACC[0]
    for ch in range(8):
        a(f"s_waitcnt vmcnt({9 * min(2, 7 - ch)})")
        if ch == 0: a("s_barrier")
        for f in range(8 * ch, 8 * ch + 8):
            for jj in range(2):
                o = (32 * ((f >> 1) - 4 * ch) + 4 * jj) * 64 + (f & 1) * (8 if swap else 32)
                a(f"ds_read_b64_tr_b16 a[{4*f+2*jj}:{4*f+2*jj+1}], v17 offset:{(ch % 3)*8192 + o}")
            if f % 4 == 3: a("s_waitcnt lgkmcnt(0)")
        for n in range(8 * ch, 8 * ch + 8):
            k = n >> 1
            a(f"ds_read_b128 v[{FR+4*(n%8)}:{FR+4*(n%8)+3}], v{V_RA + (k & 1)} offset:{4096*(k >> 1) + 2048*(n & 1)}")
        if ch + 3 < 8: dma(ch + 3)
        a("s_waitcnt lgkmcnt(0)")
        for n in range(8 * ch, 8 * ch + 8):
            k, tt, f = n >> 1, n & 1, FR + 4 * (n % 8)
            for u in range(2):
                d, w = acc + 8 * tt + 4 * u, 4 * (2 * k + u)
                c = "0" if k == 0 else f"v[{d}:{d+3}]"
                if swap: a(f"v_mfma_f32_16x16x32_bf16 v[{d}:{d+3}], a[{w}:{w+3}], v[{f}:{f+3}], {c}")
                else: a(f"v_mfma_f32_16x16x32_bf16 v[{d}:{d+3}], v[{f}:{f+3}], a[{w}:{w+3}], {c}")
    a("s_barrier\ns_mov_b32 s50, 0x10000")
    for g in xdma_lines(1, 50):
        a("\n".join(g))


def xdma_lines(buf, s_off):
    out = []
    for kb in range(16):
        out.append([f"s_add_u32 m0, s{S_XB}, {buf*65536 + kb*3968}", "s_nop 0",
                    f"buffer_load_dwordx4 v{V_DX}, s[{S_XM}:{S_XM+3}], s{s_off} offen offset:{128*kb} lds"])
    return out


def proj_segment(a, buf, acc, wA, fill, stg=None):
    def rd(n):
        f = FR + 4 * (n % NFR)
        k = n >> 1
        if M32:
            a(f"ds_read_b128 v[{f}:{f+3}], v{V_RA + 4*buf + (n & 3)} offset:{4096*(n >> 2)}")
        else:
            a(f"ds_read_b128 v[{f}:{f+3}], v{V_RA + 2*buf + (k & 1)} offset:{4096*(k >> 1) + 2048*(n & 1)}")
    for n in range(AHEAD):
        rd(n)
    for l in fill.get(-1, []):
        a(l)
    for n in range(64):
        f = FR + 4 * (n % NFR)
        k, tt = n >> 1, n & 1
        fl = list(fill.get(n, []))
        if fl and "m0" in fl[0] and fl[1] == "s_nop 0":
            a(fl[0]); fl = fl[2:]
        if not (E("LG2", 1) and n % 2 == 1 and n + AHEAD < 64):
            a(f"s_waitcnt lgkmcnt({min(AHEAD, 64 - n) - 1 - (1 if E('LG2', 1) and n + 1 + AHEAD < 64 else 0)})")
        if M32:
            c = "0" if n == 0 else f"v[{acc}:{acc+15}]"
            if wA:
                a(f"v_mfma_f32_32x32x16_bf16 v[{acc}:{acc+15}], a[{4*n}:{4*n+3}], v[{f}:{f+3}], {c}")
            else:
                a(f"v_mfma_f32_32x32x16_bf16 v[{acc}:{acc+15}], v[{f}:{f+3}], a[{4*n}:{4*n+3}], {c}")
            if n + AHEAD < 64:
                rd(n + AHEAD)
        for u in range(0 if M32 else 2):
            d = acc + 8 * tt + 4 * u
            w = 4 * (2 * k + u)
            c = "0" if k == 0 else f"v[{d}:{d+3}]"
            if stg is not None and k == 31: d += stg - acc
            if wA:
                a(f"v_mfma_f32_16x16x32_bf16 v[{d}:{d+3}], a[{w}:{w+3}], v[{f}:{f+3}], {c}")
            else:
                a(f"v_mfma_f32_16x16x32_bf16 v[{d}:{d+3}], v[{f}:{f+3}], a[{w}:{w+3}], {c}")
            if u == 0 and n + AHEAD < 64:
                rd(n + AHEAD)
        for l in fl:
            a(l)


def pack_lines(acc, isV):
    src = [0, 2, 8, 10, 4, 6, 12, 14] if isV else [0, 2, 4, 6, 8, 10, 12, 14]
    return [f"v_cvt_pk_bf16_f32 v{EP+i}, v{acc+s}, v{acc+s+1}" for i, s in enumerate(src)]


def kvx(cu):
    m = E("KVPAR", 0)
    return ["", f"s_xor_b32 s{S_T1}, s{S_T1}, 1", f"s_xor_b32 s{S_T1}, s{S_T1}, s{cu}"][m]


def near_base(a, dst, cu, log, region):
    a(f"""
    s_lshr_b32 s{S_T1}, s{cu}, {21 - log}
    s_xor_b32 s{S_T1}, s{S_T1}, s98
    {kvx(cu) if log == 18 else ""}
    s_and_b32 s{S_T1}, s{S_T1}, 1
    s_lshl_b32 s{S_T1}, s{S_T1}, 13
    s_lshl_b32 s{dst}, s{cu}, {log}
    s_add_u32 s{dst}, s{dst}, s{S_T1}
    s_add_u32 s{dst}, s{dst}, {region}
    """)


def kv_role(a: Asm, name, isV, ts, sync):
    proj_setup(a, KA_WV if isV else KA_WK, not isV)
    tsx(a, ts, 2)
    def store_lines():
        return [f"s_add_u32 s51, s{S_SEG}, s{S_CU}", "s_sub_u32 s51, s51, 1", "s_bfe_u32 s52, s51, 0x40002", "s_lshl_b32 s52, s52, 14",
                "s_and_b32 s51, s51, 3", "s_lshl_b32 s51, s51, 11", "s_add_u32 s51, s51, s52", f"s_add_u32 s51, s51, s{S_OB}",
                f"buffer_store_dwordx4 v[{EP}:{EP+3}], v{V_ST}, {SRD}, s51 offen sc1",
                f"buffer_store_dwordx4 v[{EP+4}:{EP+7}], v{V_ST}, {SRD}, s51 offen offset:{GR2} sc1"]

    def flag_lines():
        return [f"v_mov_b32 v17, s{S_SEG}", "s_mov_b64 exec, 1", f"buffer_store_dword v17, v16, {SRD}, s{S_FL} offen sc1", "s_mov_b64 exec, -1"]

    def seg(buf, first):
        a("\n".join(pst(0)))
        a(f"s_waitcnt vmcnt({0 if first else 2})")
        a("\n".join(pst(1)))
        a("s_barrier")
        a("\n".join(pst(2)))
        a(f"s_add_u32 s50, s{S_SEG}, 1\ns_min_u32 s50, s50, 63\ns_lshl_b32 s50, s50, 16")
        fill = {}
        if not first:
            pk = pack_lines(ACC[1 - buf], isV)
            fill[0] = pk[:3]; fill[1] = pk[3:6]; fill[2] = pk[6:]
            st = store_lines()
            fill[3] = st[:4]; fill[4] = st[4:9]; fill[5] = st[9:]
            fill[E("FG", 42)] = pst(3) + ["s_waitcnt vmcnt(16)"] + pst(4) + flag_lines()
        fill[E("FG", 42) + 2] = [f"s_add_u32 s53, s{S_SEG}, 3", "s_min_u32 s53, s53, 63", "s_lshl_b32 s53, s53, 16",
                    "s_mov_b64 exec, 0xffff", f"buffer_load_dword v250, v19, s[{S_XM}:{S_XM+3}], s53 offen", "s_mov_b64 exec, -1"]
        for i, g in enumerate(xdma_lines(1 - buf, 50)):
            fill[7 + 2 * i] = g
        proj_segment(a, buf, ACC[buf], not isV, fill)
        a(f"s_add_u32 s{S_SEG}, s{S_SEG}, 1")
        if E("EARLY", 0):
            a(f"s_cmp_le_u32 s{S_SEG}, {E('EARLY', 0)}\ns_cbranch_scc0 {name}_ne{buf}")
            a.nops(8)
            a("\n".join(pack_lines(ACC[buf], isV) + store_lines() + ["s_waitcnt vmcnt(0)"] + flag_lines()))
            a.label(f"{name}_ne{buf}")
    a(f"s_and_b32 s53, s{S_CU}, 31\ns_lshl_b32 s53, s53, 4\nv_add_u32 v19, s53, v{V_L}\nv_lshlrev_b32 v19, 7, v19")
    pinit(a)
    a(f"s_mov_b32 s{S_SEG}, 1")
    sync(V_T0)
    tsx(a, ts, 3)
    near_base(a, S_OB, S_CU, 18, WS_VT if isV else WS_KX)
    a(f"""
    s_xor_b32 s{S_T1}, s98, 1
    s_lshl_b32 s{S_T1}, s{S_T1}, 13
    s_lshl_b32 s{S_FL}, s{S_H}, 7
    s_add_u32 s{S_FL}, s{S_FL}, s{S_T1}
    s_lshl_b32 s{S_T1}, s{S_WAVE}, 2
    s_add_u32 s{S_FL}, s{S_FL}, s{S_T1}
    s_add_u32 s{S_FL}, s{S_FL}, {WS_F + (F_V if isV else F_K)}
    v_mov_b32 v16, 0
    """)

    a("\n".join(pack_lines(ACC[0], isV) + store_lines() + ["s_waitcnt vmcnt(0)"] + flag_lines()))
    a.label(f"{name}_loop")
    seg(1, False)
    a(f"s_cmp_eq_u32 s{S_SEG}, 64\ns_cbranch_scc1 {name}_fin")
    seg(0, False)
    a(f"s_branch {name}_loop")
    a.label(f"{name}_fin")
    a.nops(12)
    a("\n".join(pack_lines(ACC[1], isV) + store_lines() + ["s_waitcnt vmcnt(0)"] + flag_lines()))
    pdump(a)
    a("s_waitcnt vmcnt(0)\ns_barrier")


def qx_role(a: Asm, name, ts, sync):
    if E('NI', 64) == 64: sync(V_T0)
    proj_setup(a, KA_WQ, True)
    if E('NI', 64) == 32: sync(V_T0)
    tsx(a, ts, 3)
    L_Q, L_KV, L_KM = 131072, 139264, 155648
    S_NT, S_EH, S_C, S_KVN, S_KMN = 52, 53, 54, 55, 56
    S_KB, S_MB, S_LK, S_LM = 58, 59, 60, 61
    S_MK = 12
    V_G, V_M, V_OKM, V_OVM, V_OO, V_NEG, V_CM, V_OF, V_OF2, V_QW, V_QR = 92, 93, 94, 95, 96, 97, 98, 99, 100, 101, 102
    ONE, LS = 104, 108
    V_KR, V_VR = 103, 240
    KX, VT, KM, VM, Q, S, P, O, TMP = 112, 144, 160, 176, 184, 200, 212, 220, 236
    a(f"""
    v_lshrrev_b32 v{V_G}, 4, v{V_L}
    v_and_b32 v{V_M}, 15, v{V_L}
    s_and_b32 s{S_NT}, s{S_WAVE}, 1
    s_lshr_b32 s{S_EH}, s{S_WAVE}, 1
    s_mov_b32 s{S_C}, 0x3e0293ee
    s_mov_b32 s{S_KVN}, 0
    s_mov_b32 s{S_KMN}, 0
    v_mov_b32 v{V_NEG}, 0xff7fffff
    v_and_b32 v{V_T0}, 7, v{V_M}
    v_lshlrev_b32 v{V_OKM}, 7, v{V_G}
    v_lshl_add_u32 v{V_OKM}, v{V_T0}, 4, v{V_OKM}
    v_and_b32 v{V_T0}, 31, v{V_L}
    v_lshlrev_b32 v{V_OVM}, 3, v{V_T0}
    v_lshrrev_b32 v{V_T0}, 1, v{V_G}
    v_lshlrev_b32 v{V_OO}, 10, v{V_T0}
    v_and_b32 v{V_T0}, 1, v{V_G}
    v_lshl_add_u32 v{V_OO}, v{V_T0}, 9, v{V_OO}
    v_lshl_add_u32 v{V_OO}, v{V_M}, 4, v{V_OO}
    s_lshl_b32 s{S_T0}, s{S_H}, 13
    s_lshl_b32 s{S_T1}, s{S_EH}, 12
    s_add_u32 s{S_T0}, s{S_T0}, s{S_T1}
    s_lshl_b32 s{S_T1}, s{S_NT}, 8
    s_add_u32 s{S_T0}, s{S_T0}, s{S_T1}
    s_add_u32 s{S_T0}, s{S_T0}, {WS_O}
    v_add_u32 v{V_OO}, s{S_T0}, v{V_OO}
    s_lshl_b32 s{S_T0}, s{S_NT}, 4
    v_add_u32 v{V_CM}, s{S_T0}, v{V_M}
    v_lshlrev_b32 v{V_T0}, 2, v{V_G}
    v_sub_u32 v{V_CM}, v{V_CM}, v{V_T0}
    s_mov_b32 s28, 0
    s_mov_b32 s29, -1
    s_xor_b32 s{S_T1}, s98, 1
    s_lshl_b32 s{S_T1}, s{S_T1}, 13
    s_lshl_b32 s{S_T0}, s{S_H}, 7
    s_add_u32 s{S_T0}, s{S_T0}, s{S_T1}
    s_add_u32 s{S_T0}, s{S_T0}, {WS_F}
    v_and_b32 v{V_T0}, 3, v{V_L}
    v_bfe_u32 v{V_T1}, v{V_L}, 2, 1
    v_lshlrev_b32 v{V_OF}, 12, v{V_T1}
    v_lshl_add_u32 v{V_OF}, v{V_T0}, 2, v{V_OF}
    v_add_u32 v{V_OF}, s{S_T0}, v{V_OF}
    s_xor_b32 s62, s98, 1
    s_lshl_b32 s62, s62, 13
    s_lshr_b32 s{S_T1}, s{S_CU}, 6
    s_lshl_b32 s{S_T1}, s{S_T1}, 14
    s_add_u32 s62, s62, s{S_T1}
    s_and_b32 s{S_T1}, s{S_CU}, 63
    s_lshl_b32 s{S_T1}, s{S_T1}, 7
    s_add_u32 s62, s62, s{S_T1}
    s_add_u32 s62, s62, {WS_F + F_KVM}
    s_lshl_b32 s{S_FL}, s{S_H}, 7
    s_lshl_b32 s{S_T1}, s{S_WAVE}, 2
    s_add_u32 s{S_FL}, s{S_FL}, s{S_T1}
    s_lshl_b32 s{S_T1}, s98, 13
    s_add_u32 s{S_FL}, s{S_FL}, s{S_T1}
    s_add_u32 s{S_FL}, s{S_FL}, {WS_F + F_O}
    s_lshl_b32 s{S_T0}, s{S_WAVE}, 11
    s_add_u32 s{S_T0}, s{S_T0}, {L_Q}
    v_add_u32 v{V_QW}, s{S_T0}, v{V_ST}
    s_lshl_b32 s{S_T0}, s{S_NT}, 10
    s_add_u32 s{S_T0}, s{S_T0}, {L_Q}
    v_add_u32 v{V_QR}, s{S_T0}, v{V_LL}
    v_mov_b32 v16, 0
    s_mov_b32 s50, 0
    """)
    for i in range(4):
        a(f"v_mov_b32 v{ONE+i}, 0x3f803f80")
    for t in range(2):
        for r in range(4):
            a(f"v_cmp_gt_i32 s[{S_MK+8*t+2*r}:{S_MK+8*t+2*r+1}], {16*t+r}, v{V_CM}")
    near_base(a, S_KB, S_CU, 18, WS_KX)
    near_base(a, S_MB, S_CU, 17, WS_KVM)
    a(f"""
    s_lshl_b32 s{S_LK}, s{S_WAVE}, 11
    s_add_u32 s{S_LK}, s{S_LK}, {L_KV}
    s_lshl_b32 s{S_LM}, s{S_WAVE}, 10
    s_add_u32 s{S_LM}, s{S_LM}, {L_KM}
    v_add_u32 v{V_OKM}, {L_KM}, v{V_OKM}
    s_lshl_b32 s{S_T0}, s{S_EH}, 11
    s_add_u32 s{S_T0}, s{S_T0}, {L_KM + 512}
    v_add_u32 v{V_OVM}, s{S_T0}, v{V_OVM}
    v_add_u32 v{V_KR}, {L_KV}, v{V_LL}
    s_lshl_b32 s{S_T0}, s{S_EH}, 12
    s_add_u32 s{S_T0}, s{S_T0}, {L_KV + 8192}
    v_add_u32 v{V_VR}, s{S_T0}, v{V_LL}
    """)
    a("s_waitcnt vmcnt(0)")

    def wait_flag(tag, known, voff, sleep):
        a(f"""
        s_cmp_gt_i32 s{known}, s{S_SEG}
        s_cbranch_scc1 {name}_{tag}k
{name}_{tag}w:
        """)
        wdog(a, name)
        a(f"""
        buffer_load_dword v{V_T0}, v{voff}, {SRD}, 0 offen sc1
        s_waitcnt vmcnt(0)
        v_min_i32_dpp v{V_T0}, v{V_T0}, v{V_T0} quad_perm:[1,0,3,2] row_mask:0xf bank_mask:0xf
        s_nop 1
        v_min_i32_dpp v{V_T0}, v{V_T0}, v{V_T0} quad_perm:[2,3,0,1] row_mask:0xf bank_mask:0xf
        s_nop 1
        v_min_i32_dpp v{V_T0}, v{V_T0}, v{V_T0} row_ror:4 row_mask:0xf bank_mask:0xf
        s_nop 0
        v_readfirstlane_b32 s{known}, v{V_T0}
        s_cmp_gt_i32 s{known}, s{S_SEG}
        s_cbranch_scc1 {name}_{tag}k
        s_sleep {sleep}
        s_branch {name}_{tag}w
{name}_{tag}k:
        """)

    def flag_lines():
        return [f"v_mov_b32 v17, s{S_SEG}", "s_mov_b64 exec, 1", f"buffer_store_dword v17, v16, {SRD}, s{S_FL} offen sc1", "s_mov_b64 exec, -1"]

    def kmpoll_lines():
        if E("APOLL", 1):
            return [f"v_mov_b32 v{V_OF2}, 0", "s_mov_b64 exec, 1", f"buffer_atomic_add v{V_OF2}, v16, {SRD}, s62 offen sc0 sc1", "s_mov_b64 exec, -1"]
        return [f"buffer_load_dword v{V_OF2}, v16, {SRD}, s62 offen sc1"]

    def km_lines():
        return [f"s_mov_b32 m0, s{S_LM}", "s_nop 0", f"buffer_load_dwordx4 v{V_LL}, {SRD}, s68 offen sc1 lds"]

    def seg(buf):
        a("s_barrier")
        a("\n".join(pst(0)))
        wait_flag(f"kv{buf}", S_KVN, V_OF, 4)
        sal = f"""s_add_u32 s51, s{S_CU}, s{S_SEG}
        s_bfe_u32 s57, s51, 0x40002
        s_lshl_b32 s57, s57, 14
        s_and_b32 s66, s51, 3
        s_lshl_b32 s66, s66, 11
        s_add_u32 s66, s66, s57
        s_add_u32 s66, s66, s{S_KB}
        s_add_u32 s67, s66, {WS_VT}
        s_bfe_u32 s57, s51, 0x30003
        s_lshl_b32 s57, s57, 14
        s_and_b32 s68, s51, 7
        s_lshl_b32 s68, s68, 10
        s_add_u32 s68, s68, s57
        s_add_u32 s68, s68, s{S_MB}
        s_add_u32 s50, s{S_SEG}, 2
        s_min_u32 s50, s50, 63
        s_lshl_b32 s50, s50, 16
        s_cmp_gt_i32 s{S_KMN}, s{S_SEG}
        s_cselect_b32 s30, 1, 0""".split("\n")
        fill = {-1: sal}
        for i in range(4):
            fill[2 * i] = [f"s_add_u32 m0, s{S_LK}, {8192 * (i >> 1)}", "s_nop 0",
                           f"buffer_load_dwordx4 v{V_LL}, {SRD}, s{66 + (i >> 1)} offen offset:{1024 * (i & 1)} sc1 lds"]
        fill[8] = ["s_cmp_eq_u32 s30, 1", f"s_cbranch_scc0 {name}_ke{buf}"] + km_lines() + [f"{name}_ke{buf}:"]
        for i, g in enumerate(xdma_lines(1 - (buf & 1), 50)):
            fill[10 + 2 * i] = g
        a("\n".join(pst(1)))
        fill[27] = ["s_waitcnt vmcnt(13)"] + flag_lines()
        fill[29] = kmpoll_lines()
        pk = pack_lines(ACC[1], False)
        for i in range(4): fill[43 + 2 * i] = pk[2*i:2*i+2]
        fill[54] = ["s_waitcnt vmcnt(6)", f"v_readfirstlane_b32 s{S_KMN}, v{V_OF2}", "s_cmp_eq_u32 s30, 1", f"s_cbranch_scc1 {name}_kf{buf}",
                    f"s_cmp_gt_i32 s{S_KMN}, s{S_SEG}", f"s_cbranch_scc0 {name}_kf{buf}", "s_mov_b32 s30, 1"] + km_lines() + [f"{name}_kf{buf}:"]
        fill[61] = [f"ds_write_b128 v{V_QW}, v[{EP}:{EP+3}]", f"ds_write_b128 v{V_QW}, v[{EP+4}:{EP+7}] offset:{GR2}"]
        if buf == 0:
            a(f"s_cmp_eq_u32 s{S_SEG}, 63\ns_cbranch_scc0 {name}_nl")
            for i in (-1, 0, 2, 4, 6, 8, 43, 45, 47, 49, 61):
                a("\n".join(fill[i]).replace(f"{name}_ke0", f"{name}_ke2"))
            a("\n".join(["s_waitcnt vmcnt(4)"] + flag_lines()))
            a(f"s_branch {name}_jl")
            a.label(f"{name}_nl")
        proj_segment(a, buf, ACC[0], True, fill, stg=ACC[1])
        if buf == 0: a.label(f"{name}_jl")
        a("\n".join(pst(2)))
        a(f"s_cmp_eq_u32 s30, 1\ns_cbranch_scc1 {name}_kl{buf}")
        a.label(f"{name}_kw{buf}")
        wdog(a, name)
        a("\n".join(kmpoll_lines()))
        a(f"""
        s_waitcnt vmcnt(0)
        v_readfirstlane_b32 s{S_KMN}, v{V_OF2}
        s_cmp_gt_i32 s{S_KMN}, s{S_SEG}
        s_cbranch_scc0 {name}_kw{buf}
        """)
        a("\n".join(km_lines()))
        a.label(f"{name}_kl{buf}")
        a("\n".join(pst(4)))
        a(f"""
        s_waitcnt lgkmcnt(0) vmcnt(0)
        s_barrier
        """)
        a("\n".join(pst(5)))
        for j in range(4):
            a(f"ds_read_b128 v[{Q+4*j}:{Q+4*j+3}], v{V_QR} offset:{2048*j}")
            for t in range(2):
                a(f"ds_read_b128 v[{KX+16*t+4*j}:{KX+16*t+4*j+3}], v{V_KR} offset:{2048*j + 1024*t}")
        for j in range(4):
            a(f"s_waitcnt lgkmcnt({9 - 2*j})")
            for t in range(2):
                c = "0" if j == 0 else f"v[{S+4*t}:{S+4*t+3}]"
                a(f"v_mfma_f32_16x16x32_bf16 v[{S+4*t}:{S+4*t+3}], v[{KX+16*t+4*j}:{KX+16*t+4*j+3}], v[{Q+4*j}:{Q+4*j+3}], {c}")
            a(f"ds_read_b128 v[{KM+4*j}:{KM+4*j+3}], v{V_OKM} offset:{1024*j}")
        for j in range(4):
            a(f"s_waitcnt lgkmcnt({3 + j})")
            c = "0" if j == 0 else f"v[{S+8}:{S+11}]"
            a(f"v_mfma_f32_16x16x32_bf16 v[{S+8}:{S+11}], v[{KM+4*j}:{KM+4*j+3}], v[{Q+4*j}:{Q+4*j+3}], {c}")
            a(f"ds_read_b128 v[{VT+4*j}:{VT+4*j+3}], v{V_VR} offset:{1024*j}")
            a(f"ds_read_b64 v[{VM+2*j}:{VM+2*j+1}], v{V_OVM} offset:{1024*(j >> 1) + 256*(j & 1)}")
        a.nops(4)
        for i in range(8):
            a(f"v_cndmask_b32 v{S+i}, v{S+i}, v{V_NEG}, s[{S_MK+2*i}:{S_MK+2*i+1}]")
        for i in range(4):
            a(f"v_cndmask_b32 v{S+8+i}, v{S+8+i}, v{V_NEG}, s[28:29]")
        MX, TM, SM = TMP, TMP + 1, TMP + 2
        a(f"v_max3_f32 v{MX}, v{S}, v{S+1}, v{S+2}")
        for i in range(3, 11, 2):
            a(f"v_max3_f32 v{MX}, v{MX}, v{S+i}, v{S+i+1}")
        a(f"""
        v_max_f32 v{TM}, v{MX}, v{S+11}
        v_max_f32 v{MX}, v{MX}, v{S+11}
        s_nop 1
        v_permlane16_swap_b32 v{MX}, v{TM}
        s_nop 0
        v_max_f32 v{SM}, v{MX}, v{TM}
        v_max_f32 v{SM+1}, v{MX}, v{TM}
        s_nop 1
        v_permlane32_swap_b32 v{SM}, v{SM+1}
        s_nop 0
        v_max_f32 v{MX}, v{SM}, v{SM+1}
        v_mul_f32 v{MX}, s{S_C}, v{MX}
        """)
        for i in range(0, 12, 2):
            a(f"v_pk_fma_f32 v[{S+i}:{S+i+1}], v[{S+i}:{S+i+1}], s[{S_C}:{S_C+1}], v[{MX}:{MX+1}] op_sel_hi:[1,0,0] neg_lo:[0,0,1] neg_hi:[0,0,1]")
        for i in range(12):
            a(f"v_exp_f32 v{S+i}, v{S+i}")
        a.nops(1)
        for i in range(6):
            a(f"v_cvt_pk_bf16_f32 v{P+i}, v{S+2*i}, v{S+2*i+1}")
        a("s_waitcnt lgkmcnt(0)\ns_nop 0")
        a(f"v_mfma_f32_16x16x32_bf16 v[{LS}:{LS+3}], v[{ONE}:{ONE+3}], v[{P}:{P+3}], 0")
        for T in range(4):
            a(f"v_mfma_f32_16x16x32_bf16 v[{O+4*T}:{O+4*T+3}], v[{VT+4*T}:{VT+4*T+3}], v[{P}:{P+3}], 0")
        a(f"v_mfma_f32_16x16x16_bf16 v[{LS}:{LS+3}], v[{ONE}:{ONE+1}], v[{P+4}:{P+5}], v[{LS}:{LS+3}]")
        for T in range(4):
            a(f"v_mfma_f32_16x16x16_bf16 v[{O+4*T}:{O+4*T+3}], v[{VM+2*T}:{VM+2*T+1}], v[{P+4}:{P+5}], v[{O+4*T}:{O+4*T+3}]")
        a(f"""
        s_lshl_b32 s51, s{S_SEG}, 18
        s_nop 2
        v_rcp_f32 v{SM}, v{LS}
        v_rcp_f32 v{SM+1}, v{LS+1}
        s_nop 1
        """)
        for i in range(0, 16, 2):
            a(f"v_pk_mul_f32 v[{O+i}:{O+i+1}], v[{O+i}:{O+i+1}], v[{SM}:{SM+1}]")
        for i in range(8):
            a(f"v_cvt_pk_bf16_f32 v{S+i}, v{O+2*i}, v{O+2*i+1}")
        a(f"""
        buffer_store_dwordx4 v[{S}:{S+3}], v{V_OO}, {SRD}, s51 offen sc1
        buffer_store_dwordx4 v[{S+4}:{S+7}], v{V_OO}, {SRD}, s51 offen offset:2048 sc1
        s_add_u32 s{S_SEG}, s{S_SEG}, 1
        """)
        a("\n".join(pst(6)))
    pinit(a)
    for i in range(16):
        a(f"v_mov_b32 v{ACC[1]+i}, v{ACC[0]+i}")
    a.label(f"{name}_loop")
    seg(1)
    seg(0)
    a(f"s_cmp_lt_u32 s{S_SEG}, 64\ns_cbranch_scc1 {name}_loop")
    a("\n".join(["s_waitcnt vmcnt(0)"] + flag_lines()))
    pdump(a)
    a.label(f"{name}_quit")
    ts(4)
    a("s_endpgm")


def out_role(a: Asm, name, ts):
    common(a, KA_WO, KA_OUT, 8 * MB)
    S_ON, S_PAR, S_PRE, S_ROT, S_PEND, S_KH, S_C = 52, 53, 55, 56, 57, 58, 59
    S_AM = 71
    V_OL, V_OF, V_LW, V_LRK, V_LRS, V_OS, V_SND, V_RCV = 6, 7, 8, 9, 10, 11, 12, 13
    ACCO, RD, KEEP, INB, F0, NF, STG = 20, 52, 84, 88, 96, 32, 224
    HS, QS, US, WSs, PS = 544, 1088, 4352, 8704, 34816
    a(f"""
    s_and_b32 s{S_KH}, s{S_H}, 1
    s_lshr_b32 s{S_C}, s{S_H}, 1
    s_lshl_b32 s{S_T0}, s{S_KH}, 22
    s_lshl_b32 s{S_T1}, s{S_WAVE}, 20
    s_add_u32 s{S_T0}, s{S_T0}, s{S_T1}
    s_lshl_b32 s{S_T1}, s{S_C}, 7
    s_add_u32 s{S_OB}, s{S_T0}, s{S_T1}
    s_and_b32 s{S_ROT}, s{S_C}, {7 if E("ROT8", 1) else 3}
    s_lshl_b32 s{S_ROT}, s{S_ROT}, {6 if E("ROT8", 1) else 7}
    """)
    load_weights(a, 11, S_OB, lane32(4, rl=7), lambda f, jj: (128 * (f >> 4) + 32 * ((f >> 2) & 3) + 8 * ((f >> 1) & 1) + 16 * jj) * 128 + 64 * (f & 1), rot=S_ROT, cl=3)
    a(f"""
    s_lshl_b32 s{S_ROT}, s{S_ROT}, 6
    s_lshl_b32 s{S_T0}, s{S_KH}, 17
    s_lshl_b32 s{S_T1}, s{S_WAVE}, 15
    s_add_u32 s{S_T0}, s{S_T0}, s{S_T1}
    s_add_u32 s{S_T0}, s{S_T0}, {WS_O}
    v_add_u32 v{V_OL}, s{S_T0}, v{V_LL}
    v_and_b32 v{V_T0}, 3, v{V_L}
    v_lshlrev_b32 v{V_OF}, 2, v{V_T0}
    v_bfe_u32 v{V_T0}, v{V_L}, 2, 2
    v_lshl_add_u32 v{V_OF}, v{V_T0}, 7, v{V_OF}
    s_lshl_b32 s{S_T0}, s{S_KH}, 11
    s_lshl_b32 s{S_T1}, s{S_WAVE}, 9
    s_add_u32 s{S_T0}, s{S_T0}, s{S_T1}
    s_lshl_b32 s{S_T1}, s98, 13
    s_add_u32 s{S_T0}, s{S_T0}, s{S_T1}
    s_add_u32 s{S_T0}, s{S_T0}, {WS_F + F_O}
    v_add_u32 v{V_OF}, s{S_T0}, v{V_OF}
    s_mul_i32 s{S_T0}, s{S_WAVE}, {WSs}
    v_lshrrev_b32 v{V_T0}, 5, v{V_L}
    v_lshl_add_u32 v{V_LW}, v{V_T0}, 5, v{V_LL}
    v_add_u32 v{V_LW}, s{S_T0}, v{V_LW}
    v_and_b32 v{V_T0}, 7, v{V_L}
    v_mul_u32_u24 v{V_LRK}, {HS}, v{V_T0}
    v_lshrrev_b32 v{V_T1}, 3, v{V_L}
    v_lshl_add_u32 v{V_LRK}, v{V_T1}, 4, v{V_LRK}
    s_lshl_b32 s{S_T0}, s{S_WAVE}, 7
    v_add_u32 v{V_LRK}, s{S_T0}, v{V_LRK}
    s_mul_i32 s{S_T0}, s{S_KH}, {US}
    s_sub_u32 s{S_T1}, {US}, s{S_T0}
    v_add_u32 v{V_LRS}, s{S_T1}, v{V_LRK}
    v_add_u32 v{V_LRK}, s{S_T0}, v{V_LRK}
    s_lshl_b32 s{S_T0}, s{S_WAVE}, 15
    s_lshl_b32 s{S_T1}, s{S_H}, 6
    s_add_u32 s{S_T0}, s{S_T0}, s{S_T1}
    v_lshlrev_b32 v{V_OS}, 12, v{V_T1}
    v_and_b32 v{V_T0}, 7, v{V_L}
    v_lshl_add_u32 v{V_OS}, v{V_T0}, 3, v{V_OS}
    v_add_u32 v{V_OS}, s{S_T0}, v{V_OS}
    s_lshl_b32 s{S_T1}, s{S_WAVE}, 10
    s_add_u32 s{S_T0}, s{S_OI}, s{S_T1}
    v_add_u32 v{V_RCV}, s{S_T0}, v{V_LL}
    v_xor_b32 v{V_SND}, s{S_OX}, v{V_RCV}
    s_mov_b32 s{S_SEG}, s{S_O0}
    s_mov_b32 s{S_ON}, 0
    s_mov_b32 s{S_PAR}, 0
    s_mov_b32 s{S_PEND}, 0
    """)

    def opoll(r):
        if E("OAP", 0):
            a(f"v_mov_b32 v{r}, 0\ns_mov_b64 exec, 0xffff\nbuffer_atomic_add v{r}, v{V_OF}, {SRD}, 0 offen sc0 sc1\ns_mov_b64 exec, -1")
        else:
            a(f"buffer_load_dword v{r}, v{V_OF}, {SRD}, 0 offen sc1")

    def ld(k, sbase):
        f = F0 + 4 * k
        if k % 4 == 0:
            a(f"s_add_u32 s51, s{S_ROT}, {1024 * k}\ns_and_b32 s51, s51, 0x7fff\ns_add_u32 s51, s51, s{sbase}")
        a(f"buffer_load_dwordx4 v[{f}:{f+3}], v{V_OL}, {SRD}, s51 offen offset:{1024*(k & 3)} sc1")

    def mf(k):
        f = F0 + 4 * k
        for u in range(2):
            d = ACCO + 16 * u
            c = "0" if k == 0 else f"v[{d}:{d+15}]"
            if k == NF - 1: d = STG + 16 * u
            a(f"v_mfma_f32_32x32x16_bf16 v[{d}:{d+15}], a[{8*k+4*u}:{8*k+4*u+3}], v[{f}:{f+3}], {c}")

    def inb(sreg):
        a(f"s_and_b32 s60, s{sreg}, s{S_OM}\ns_lshl_b32 s60, s60, 12")
        a(f"buffer_load_dwordx4 v[{INB}:{INB+3}], v{V_RCV}, {SRD}, s60 offen sc1")

    def fin(tag, sreg, cnt):
        a(f"s_bfe_u32 s61, s{sreg}, 0x10001\ns_xor_b32 s61, s61, s{S_OT}\ns_and_b32 s61, s61, s{S_AM}\ns_waitcnt vmcnt({cnt})")
        a.label(f"{name}_{tag}c")
        a(f"""
        v_and_b32 v14, s{S_AM}, v{INB}
        v_cmp_ne_u32 vcc, s61, v14
        s_cbranch_vccz {name}_{tag}k
        """)
        wdog(a, name)
        inb(sreg)
        a(f"s_waitcnt vmcnt(0)\ns_branch {name}_{tag}c")
        a.label(f"{name}_{tag}k")
        a(f"""
        v_pk_add_f32 v[{INB}:{INB+1}], v[{INB}:{INB+1}], v[{KEEP}:{KEEP+1}]
        v_pk_add_f32 v[{INB+2}:{INB+3}], v[{INB+2}:{INB+3}], v[{KEEP+2}:{KEEP+3}]
        s_lshl_b32 s60, s{sreg}, 17
        v_cvt_pk_bf16_f32 v{INB+4}, v{INB}, v{INB+1}
        v_cvt_pk_bf16_f32 v{INB+5}, v{INB+2}, v{INB+3}
        buffer_store_dwordx2 v[{INB+4}:{INB+5}], v{V_OS}, s[{S_XM}:{S_XM+3}], s60 offen {os.environ.get('OSTO', 'sc1')}
        """)

    a(f"""
    s_mov_b32 s{S_AM}, 1
    s_cmp_eq_u32 s{S_O0}, 0
    s_cbranch_scc1 {name}_nodry
    s_mov_b32 s{S_AM}, 0
    s_mov_b32 s{S_SEG}, 0
    s_mov_b32 s70, s{S_O1}
    s_mov_b32 s{S_O1}, 1
    v_mov_b32 v16, v{V_SND}
    v_mov_b32 v17, v{V_OS}
    v_mov_b32 v{V_SND}, -16
    v_mov_b32 v{V_OS}, -16
{name}_nodry:
    """)
    tsx(a, ts, 3)
    pinit(a)
    a.label(f"{name}_cold")
    a(f"s_cmp_gt_i32 s{S_ON}, s{S_SEG}\ns_cbranch_scc1 {name}_fk")
    a.label(f"{name}_fw")
    wdog(a, name)
    opoll(V_T0)
    a(f"""
    s_waitcnt vmcnt(0)
    v_min_i32_dpp v{V_T0}, v{V_T0}, v{V_T0} quad_perm:[1,0,3,2] row_mask:0xf bank_mask:0xf
    s_nop 1
    v_min_i32_dpp v{V_T0}, v{V_T0}, v{V_T0} quad_perm:[2,3,0,1] row_mask:0xf bank_mask:0xf
    s_nop 1
    v_min_i32_dpp v{V_T0}, v{V_T0}, v{V_T0} row_ror:4 row_mask:0xf bank_mask:0xf
    s_nop 1
    v_min_i32_dpp v{V_T0}, v{V_T0}, v{V_T0} row_ror:8 row_mask:0xf bank_mask:0xf
    s_nop 0
    v_readfirstlane_b32 s{S_ON}, v{V_T0}
    s_min_i32 s{S_ON}, s{S_ON}, s{S_O1}
    s_cmp_gt_i32 s{S_ON}, s{S_SEG}
    s_cbranch_scc1 {name}_fk
    s_sleep 2
    s_add_u32 s{S_T0}, s{S_ON}, 2
    s_cmp_gt_i32 s{S_T0}, s{S_SEG}
    s_cbranch_scc1 {name}_fw
    s_sleep 48
    s_branch {name}_fw
    """)
    a.label(f"{name}_fk")
    a(f"s_add_u32 s54, s{S_SEG}, 1\ns_cmp_gt_i32 s{S_ON}, s54\ns_cbranch_scc0 {name}_c0")
    a(f"s_lshl_b32 s50, s{S_SEG}, 18")
    for k in range(NF):
        ld(k, 50)
    a("\n".join(pst(0)))
    if E("KPROF", 0): a("s_add_u32 s39, s39, 64")

    uid = [0]
    def epi_groups(sreg):
        g = [[f"v_add_u32 v{V_T0}, s{S_PAR}, v{V_LW}", f"v_add_u32 v{V_T1}, s{S_PAR}, v{V_LRK}", f"v_add_u32 v{V_T2}, s{S_PAR}, v{V_LRS}"]]
        for q in range(0, 8, 2):
            g.append([f"ds_write_b128 v{V_T0}, v[{STG+4*(q+i)}:{STG+4*(q+i)+3}] offset:{QS*(q+i)}" for i in range(2)])
        g.append([])
        g.append(["s_waitcnt lgkmcnt(0)", "s_barrier"] + [f"ds_read_b128 v[{RD+4*w}:{RD+4*w+3}], v{V_T2} offset:{WSs*w}" for w in range(4)])
        g.append([f"ds_read_b128 v[{RD+16+4*w}:{RD+16+4*w+3}], v{V_T1} offset:{WSs*w}" for w in range(4)] +
                 [f"s_sub_u32 s{S_PAR}, {PS}, s{S_PAR}", f"s_bfe_u32 s61, s{sreg}, 0x10001", f"s_xor_b32 s61, s61, s{S_OT}", f"s_and_b32 s60, s{sreg}, s{S_OM}", "s_lshl_b32 s60, s60, 12"])
        g.append([])
        for h, dst in ((0, RD), (16, KEEP)):
            b = RD + h
            l = [f"s_waitcnt lgkmcnt({4 if h == 0 else 0})"]
            for i in range(4):
                l.append(f"v_add_f32 v{b+i}, v{b+i}, v{b+4+i}")
                l.append(f"v_add_f32 v{b+8+i}, v{b+8+i}, v{b+12+i}")
            g.append(l)
            l = [f"v_add_f32 v{dst+i}, v{b+i}, v{b+8+i}" for i in range(4)]
            if h == 0:
                uid[0] += 1
                l += [f"v_and_or_b32 v{RD}, v{RD}, -2, s61", "s_cmp_eq_u32 s95, 0", f"s_cbranch_scc1 {name}_sa{uid[0]}",
                      f"buffer_store_dwordx4 v[{RD}:{RD+3}], v{V_SND}, {SRD}, s60 offen sc1", f"s_branch {name}_sb{uid[0]}", f"{name}_sa{uid[0]}:",
                      f"buffer_store_dwordx4 v[{RD}:{RD+3}], v{V_SND}, {SRD}, s60 offen", f"{name}_sb{uid[0]}:"]
            g.append(l)
        return g

    def loop(pre, epi):
        g = epi_groups(62) if epi else []
        for k in range(NF):
            a(f"s_waitcnt vmcnt({NF-1 if pre else NF-1-k})")
            mf(k)
            if pre: ld(k, 50)
            if 1 <= k <= len(g): a("\n".join(g[k-1]))
            if epi and k == 27: inb(62)
            if not pre and k == 20: opoll(15)
        if epi: fin(f"f{pre}", 62, 4 if pre else 0)

    def loopc(epi):
        Wn = E("OWIN", 8)
        g = epi_groups(62) if epi else []
        a.label(f"{name}_c{epi}")
        if epi == 0: tsx(a, ts, 5)
        a(f"s_add_u32 s54, s{S_SEG}, 1\ns_sub_u32 s62, s{S_SEG}, 1\ns_lshl_b32 s50, s{S_SEG}, 18")
        for k in range(Wn):
            ld(k, 50)
        for l in g: a("\n".join(l))
        for k in range(NF):
            a(f"s_waitcnt vmcnt({min(Wn, NF - k) - 1})")
            mf(k)
            if k + Wn < NF: ld(k + Wn, 50)
            if epi and k == 24: inb(62)
            if k == 24: opoll(15)
        if epi == 0: tsx(a, ts, 6)
        if epi: fin("fc", 62, 0)
        a("\n".join(pst(3)))
        a(f"s_lshl_b32 s50, s54, 18\ns_branch {name}_imm")

    for epi in range(2):
        a.label(f"{name}_w{epi}")
        a(f"""
        s_add_u32 s54, s{S_SEG}, 1
        s_sub_u32 s62, s{S_SEG}, 1
        s_lshl_b32 s50, s54, 18
        s_cmp_gt_i32 s{S_ON}, s54
        s_cbranch_scc0 {name}_n{epi}
        """)
        loop(1, epi)
        a("\n".join(pst(1)))
        a(f"s_add_u32 s{S_SEG}, s{S_SEG}, 1\ns_branch {name}_w1")
        a.label(f"{name}_n{epi}")
        loop(0, epi)
        a("\n".join(pst(2)))
        if epi == 0: a(f"s_branch {name}_imm")
    a.label(f"{name}_imm")
    a(f"""
    s_waitcnt vmcnt(1)
    v_min_i32_dpp v15, v15, v15 quad_perm:[1,0,3,2] row_mask:0xf bank_mask:0xf
    s_nop 1
    v_min_i32_dpp v15, v15, v15 quad_perm:[2,3,0,1] row_mask:0xf bank_mask:0xf
    s_nop 1
    v_min_i32_dpp v15, v15, v15 row_ror:4 row_mask:0xf bank_mask:0xf
    s_nop 1
    v_min_i32_dpp v15, v15, v15 row_ror:8 row_mask:0xf bank_mask:0xf
    s_nop 0
    v_readfirstlane_b32 s{S_ON}, v15
    s_min_i32 s{S_ON}, s{S_ON}, s{S_O1}
    s_cmp_gt_i32 s{S_ON}, s54
    s_cbranch_scc0 {name}_im2
    s_add_u32 s{S_SEG}, s{S_SEG}, 1
    s_add_u32 s54, s54, 1
    s_cmp_gt_i32 s{S_ON}, s54
    s_cbranch_scc0 {name}_c1
    """)
    for k in range(NF):
        ld(k, 50)
    a(f"s_branch {name}_w1")
    loopc(0)
    loopc(1)
    a.label(f"{name}_im2")
    for g in epi_groups(S_SEG):
        a("\n".join(g))
    inb(S_SEG)
    fin("f2", S_SEG, 0)
    a("\n".join(pst(4)))
    a(f"""
    s_add_u32 s{S_SEG}, s{S_SEG}, 1
    s_cmp_lt_u32 s{S_SEG}, s{S_O1}
    s_cbranch_scc1 {name}_cold
    s_cmp_eq_u32 s{S_AM}, 1
    s_cbranch_scc1 {name}_fin
    s_mov_b32 s{S_AM}, 1
    s_mov_b32 s{S_SEG}, s{S_O0}
    s_mov_b32 s{S_O1}, s70
    v_mov_b32 v{V_SND}, v16
    v_mov_b32 v{V_OS}, v17
    """)
    inb(S_SEG)
    a(f"s_branch {name}_cold")
    a.label(f"{name}_fin")
    pdump(a)
    a.label(f"{name}_quit")
    ts(4)
    a("s_endpgm")
```

```python
from gen_common import *

S_X, S_T = 30, 31
S_WSD, S_DBG = 84, 72
E = lambda k, d: int(os.environ.get(k, d))


D_VOTE, D_PD, D_SLOW, D_PD2 = 128, 160, 192, 224
NI = E('NI', 64)


def start_code(a: Asm, name):
    W, D = S_WSD, S_DBG
    a(f"""
    s_load_dwordx2 s[{W}:{W+1}], s[0:1], {KA_WS}
    s_load_dwordx2 s[{D}:{D+1}], s[0:1], {KA_DBG}
    s_getreg_b32 s90, hwreg(HW_REG_XCC_ID)
    s_and_b32 s90, s90, 7
    v_mov_b32 v1, 0
    v_mov_b32 v2, 1
    s_lshl_b32 s91, s90, 4
    s_mov_b32 s95, 0
    s_mov_b32 s99, 0
    s_waitcnt lgkmcnt(0)
    s_mov_b32 s{W+2}, {WS_BYTES}
    s_mov_b32 s{W+3}, 0x00020000
    s_mov_b32 s{D+2}, 256
    s_mov_b32 s{D+3}, 0x00020000
    v_cmp_eq_u32 vcc, 0, v0
    s_and_saveexec_b64 s[88:89], vcc
    s_cbranch_execz {name}_tkd
    s_lshl_b32 s92, s2, 13
    s_add_u32 s92, s92, {WS_CAL}
    buffer_atomic_add v2, v1, s[{D}:{D+3}], s91 offen sc0
    buffer_load_dword v251, v1, s[{W}:{W+3}], s92 offen offset:2048 sc1
    s_waitcnt vmcnt(1)
    ds_write_b32 v1, v2
    s_waitcnt lgkmcnt(0)
{name}_tkd:
    s_mov_b64 exec, s[88:89]
    s_barrier
    ds_read_b32 v2, v1
    s_waitcnt lgkmcnt(0)
    v_readfirstlane_b32 s96, v2
    s_barrier
    """)


def sync_code(a: Asm, kname, tag, vt, force_slow=False):
    D = S_DBG
    n = f"{kname}_sy{tag}"
    a(f"""
    v_and_b32 v{vt+1}, 15, v0
    v_lshlrev_b32 v{vt+1}, 4, v{vt+1}
    s_branch {n}
{n}w:
    s_sleep 4
{n}:
    """)
    wd_code(a, n)
    a(f"""
    buffer_load_dword v{vt}, v{vt+1}, s[{D}:{D+3}], 0 offen sc1
    s_waitcnt vmcnt(0)
    s_cmp_eq_u32 s95, 1
    s_cbranch_scc0 {n}f
    v_readlane_b32 s76, v{vt}, {D_PD2 // 16}
    s_mov_b32 s98, 0
    s_cmp_eq_u32 s76, {NI}
    s_cbranch_scc0 {n}w
    s_branch {n}d
{n}f:
    s_mov_b32 s77, 0
    s_mov_b32 s78, 0
    """)
    for i in range(8):
        a(f"v_readlane_b32 s76, v{vt}, {i}\ns_add_u32 s77, s77, s76\ns_xor_b32 s76, s76, 32\ns_or_b32 s78, s78, s76")
    a(f"""
    s_cmp_eq_u32 s77, 256
    s_cbranch_scc0 {n}w
    {"s_mov_b32 s78, 1" if force_slow else ""}
    v_mov_b32 v252, v{vt}
    s_cmp_eq_u32 s78, 0
    s_cbranch_scc0 {kname}_slowent
    v_readlane_b32 s76, v{vt}, {D_PD // 16}
    v_readlane_b32 s77, v{vt}, {D_VOTE // 16}
    s_cmp_eq_u32 s76, {NI}
    s_cbranch_scc0 {n}w
    s_cmp_gt_u32 s77, {NI // 2}
    s_cselect_b32 s98, 1, 0
    {f"s_xor_b32 s98, s98, {os.environ['PAR']}" if "PAR" in os.environ else ""}
{n}d:
    """)


def slow_entry(a: Asm, name):
    D = S_DBG
    a.label(f"{name}_slowent")
    a(f"""
    s_mov_b64 exec, -1
    s_waitcnt vmcnt(0) lgkmcnt(0)
    s_barrier
    s_mov_b32 s97, s96
    """)
    for i in range(7):
        a(f"v_readlane_b32 s76, v252, {i}\ns_cmp_gt_u32 s90, {i}\ns_cselect_b32 s76, s76, 0\ns_add_u32 s97, s97, s76")
    a(f"""
    v_mov_b32 v1, 0
    v_mov_b32 v2, 1
    v_cmp_eq_u32 vcc, 0, v0
    s_and_saveexec_b64 s[88:89], vcc
    s_cbranch_execz {name}_sb1
    buffer_atomic_add v2, v1, s[{D}:{D+3}], 0 offen offset:{D_SLOW} sc1
{name}_sb1:
    s_mov_b64 exec, s[88:89]
{name}_sb2:
    s_sleep 4
    """)
    wd_code(a, "slowbar")
    a(f"""
    buffer_load_dword v2, v1, s[{D}:{D+3}], 0 offen offset:{D_SLOW} sc1
    s_waitcnt vmcnt(0)
    v_cmp_ne_u32 vcc, 256, v2
    s_cbranch_vccnz {name}_sb2
    s_mov_b32 s95, 1
    """)


def init_cd(a: Asm, name, idx):
    W, D = S_WSD, S_DBG
    a(f"""
    v_mov_b32 v8, -1
    v_mov_b32 v9, -1
    v_mov_b32 v10, -1
    v_mov_b32 v11, -1
    v_lshlrev_b32 v1, 4, v0
    v_mov_b32 v2, 0
    v_cmp_gt_u32 vcc, 64, v0
    s_cbranch_vccz {name}_nv
    s_cmp_eq_u32 s95, 0
    s_cbranch_scc0 {name}_nv
    ; latency samples of both parities (order alternates with idx), sign vote
    s_lshr_b32 s60, s2, 1
    s_lshl_b32 s60, s60, 14
    s_and_b32 s61, s{idx}, 1
    s_lshl_b32 s66, s61, 13
    s_add_u32 s60, s60, s66
    s_and_b32 s66, s2, 1
    s_lshl_b32 s66, s66, 10
    s_add_u32 s60, s60, s66
    s_add_u32 s60, s60, {WS_CAL}
    s_mov_b32 s66, 0x7fffffff
    s_mov_b32 s67, 0x7fffffff
    s_mov_b64 exec, 0xff
    s_waitcnt vmcnt(0)
    """)
    for i in range(E("NSAMP", 4)):
        a(f"""
        s_memtime s[62:63]
        s_waitcnt lgkmcnt(0)
        buffer_store_dwordx4 v[8:11], v1, s[{W}:{W+3}], s60 offen offset:{256 * (i >> 1)} sc1
        s_waitcnt vmcnt(0)
        s_memtime s[64:65]
        s_xor_b32 s60, s60, 8192
        s_waitcnt lgkmcnt(0)
        s_sub_u32 s64, s64, s62
        s_min_u32 s{66 + (i & 1)}, s{66 + (i & 1)}, s64
        """)
    a(f"""
    s_cmp_lt_u32 s67, s66
    s_cselect_b32 s60, 1, 0
    s_xor_b32 s60, s60, s61          ; parity that is near this XCD
    s_lshr_b32 s61, s90, 2
    s_xor_b32 s60, s60, s61
    v_mov_b32 v3, s60
    s_mov_b64 exec, 1
    buffer_atomic_add v3, v2, s[{D}:{D+3}], 0 offen offset:{D_VOTE} sc1
    s_mov_b64 exec, -1
{name}_nv:
    s_barrier
    s_lshl_b32 s60, s{idx}, 12
    s_add_u32 s60, s60, {WS_H}
    """)
    for i in range(512 // NI):
        a(f"buffer_store_dwordx4 v[8:11], v1, s[{W}:{W+3}], s60 offen sc1")
        a(f"s_add_u32 s60, s60, {NI * 4096}")
    a(f"""
    s_lshr_b32 s62, s{idx}, 1
    s_and_b32 s63, s{idx}, 1
    s_add_u32 s63, s63, s62
    s_lshl_b32 s62, s62, 19
    s_and_b32 s64, s63, 14
    s_lshl_b32 s64, s64, 13
    s_add_u32 s62, s62, s64
    s_and_b32 s64, s63, 1
    s_lshl_b32 s64, s64, 12
    s_add_u32 s62, s62, s64
    s_add_u32 s62, s62, {WS_XU}
    {"" if E("TAG", 1) else f"buffer_store_dwordx4 v[8:11], v1, s[{W}:{W+3}], s62 offen sc1"}
    s_add_u32 s62, s62, 8192
    {"" if E("TAG", 1) else f"buffer_store_dwordx4 v[8:11], v1, s[{W}:{W+3}], s62 offen sc1"}
    s_cmp_lt_u32 s{idx}, 16
    s_cbranch_scc0 {name}_pz
    buffer_store_dwordx4 v[8:11], v1, s[{W}:{W+3}], s60 offen sc1
{name}_pz:
    s_waitcnt vmcnt(0)
    s_barrier
    v_mov_b32 v3, 1
    s_lshl_b32 s62, s95, 6
    v_cmp_eq_u32 vcc, 0, v0
    s_and_saveexec_b64 s[60:61], vcc
    s_cbranch_execz {name}_xps
    buffer_atomic_add v3, v2, s[{D}:{D+3}], s62 offen offset:{D_PD} sc1
{name}_xps:
    s_mov_b64 exec, s[60:61]
    """)


def rec_body(a: Asm, name, IS, sync, nsteps=64, prof=False, flags=True, ts=None):
    W = S_WSD
    SRD = f"s[{W}:{W+3}]"
    S_WQ, S_WK, S_WV, S_WO, S_M0 = 4, 8, 12, 16, 20
    S_WAVE, S_H, S_J, S_STEP, S_T0, S_T1 = 24, 25, 26, 27, 28, 29
    S_C = 32
    S_SL, S_SLO = 33, 34
    S_XS, S_XSO = 35, 36
    S_P = 37
    S_MN8, S_MMEM = 40, 42
    S_XBR, S_XBW = 44, 45
    S_KVN = 46
    S_KVB, S_FLB, S_CU, S_KXB, S_TAG = 79, 81, 82, 83, 47
    S_LATE, S_WARM = 36, 89
    ONE, LS, ZER = 220, 224, 228
    S_MKM = 48
    V_L, V_G, V_M, V_T0, V_T1, V_IDX = 1, 2, 3, 4, 5, 6
    V_OMEM, V_OM0, V_OPUB, V_OSCM, V_OOP, V_OXW, V_OXR = 7, 8, 9, 10, 11, 12, 13
    V_LWQ, V_LWK, V_LRR, V_LL, V_LWO, V_LRO, V_LVW, V_LVR, V_OKV, V_NEG, V_OFL = 14, 15, 16, 17, 18, 19, 20, 21, 22, 23, 24
    V_POI = 28
    MA, AQ, AV = 32, 96, 112
    RP, R, KX, VTX, S, PL = 120, 152, 156, 164, 172, 184
    VM, P, PM, O, TMP = 208, 212, 216, 120, 232
    MO, AO, KVH = 32, 96, 244
    A_W1, A_WO = 0, 192
    L_QK, L_VP, L_OP, L_VM, L_XB, L_ST = 0, 9216, 13312, 17920, 18432, 32768

    TAG = E("TAG", 1)
    WPAD, SCS = E("WPAD", 0), E("SCS", 2048)
    OXO, SCO = 24576, 49152

    def wdog():
        wd_code(a, name + ":" + a.lines[-1], f"s{S_STEP}")

    def stamp(i):
        if E("TR", 0):
            if i == 0: return
            if i < 11: a(f"s_memtime s[{48+2*i}:{49+2*i}]")
            if i == 11:
                a("s_memrealtime s[70:71]\ns_memtime s[100:101]\ns_waitcnt lgkmcnt(0)\nv_writelane_b32 v250, s100, 12")
                for k in range(1, 12):
                    a(f"v_writelane_b32 v250, s{48+2*k}, {k}")
                a(f"v_writelane_b32 v250, s99, 0")
                a(f"""
                s_lshl_b32 s80, s{S_X}, 5
                s_add_u32 s80, s80, s{S_T}
                s_lshl_b32 s80, s80, 2
                s_add_u32 s80, s80, s{S_WAVE}
                s_lshl_b32 s80, s80, 6
                s_add_u32 s80, s80, s{S_STEP}
                s_lshl_b32 s80, s80, 6
                s_add_u32 s80, s80, {WS_PROF}
                v_lshlrev_b32 v251, 2, v{V_L}
                s_mov_b64 exec, 0xffff
                buffer_store_dword v250, v251, {SRD}, s80 offen
                s_mov_b64 exec, -1
                """)
            return
        if not prof or i == 11:
            return
        a("s_memtime s[66:67]")
        a("s_waitcnt lgkmcnt(0)")
        a("s_sub_u32 s68, s66, s69")
        a(f"s_add_u32 s{50+i}, s{50+i}, s68")
        a("s_mov_b32 s69, s66")

    if prof:
        for i in range(16):
            a(f"s_mov_b32 s{50+i}, 0")
        a("s_memtime s[66:67]\ns_waitcnt lgkmcnt(0)\ns_mov_b32 s69, s66")
    if ts: ts(1)
    a(f"""
    s_load_dwordx2 s[{S_M0}:{S_M0+1}], s[0:1], {KA_MEM0}
    s_load_dwordx2 s[{S_WO}:{S_WO+1}], s[0:1], {KA_WO}
    s_load_dwordx2 s[{S_WQ}:{S_WQ+1}], s[0:1], {KA_WQ}
    s_load_dwordx2 s[{S_WK}:{S_WK+1}], s[0:1], {KA_WK}
    s_load_dwordx2 s[{S_WV}:{S_WV+1}], s[0:1], {KA_WV}
    v_lshrrev_b32 v{V_T0}, 6, v0
    v_and_b32 v{V_L}, 63, v0
    v_readfirstlane_b32 s{S_WAVE}, v{V_T0}
    v_lshrrev_b32 v{V_G}, 4, v{V_L}
    v_and_b32 v{V_M}, 15, v{V_L}
    v_lshlrev_b32 v{V_LL}, 4, v{V_L}
    s_lshr_b32 s{S_T0}, s{S_T}, 2
    s_lshl_b32 s{S_H}, s{S_X}, 3
    s_add_u32 s{S_H}, s{S_H}, s{S_T0}
    s_and_b32 s{S_J}, s{S_T}, 3
    s_waitcnt lgkmcnt(0)
    s_mov_b32 s{S_M0+2}, 16384
    s_mov_b32 s{S_M0+3}, 0x00020000
    """)
    for s in (S_WO, S_WQ, S_WK, S_WV):
        a(f"s_mov_b32 s{s+2}, {8*MB}\ns_mov_b32 s{s+3}, 0x00020000")
    FULL = E("FULL", 0)
    CL = 2 + FULL
    a(f"""
    s_lshl_b32 s{S_T0}, s{S_H}, 8
    s_lshr_b32 s{S_T1}, s{S_J}, {FULL}
    s_lshl_b32 s{S_T1}, s{S_T1}, {6 + FULL}
    s_add_u32 s{S_T0}, s{S_T0}, s{S_T1}
    s_lshl_b32 s{S_T1}, s{S_WAVE}, 21
    s_add_u32 s{S_T0}, s{S_T0}, s{S_T1}
    v_lshrrev_b32 v{V_T0}, {CL}, v{V_L}
    v_and_b32 v{V_T1}, {(1 << CL) - 1}, v{V_L}
    v_lshlrev_b32 v40, 13, v{V_T0}
    v_lshl_add_u32 v40, v{V_T1}, 4, v40
    v_add_u32 v40, s{S_T0}, v40
    s_lshl_b32 s{S_T0}, s{S_X}, 21
    s_lshl_b32 s{S_T1}, s{S_WAVE}, 19
    s_add_u32 s{S_T0}, s{S_T0}, s{S_T1}
    s_lshr_b32 s{S_T1}, s{S_T}, {FULL}
    s_lshl_b32 s{S_T1}, s{S_T1}, {6 + FULL}
    s_add_u32 s{S_T0}, s{S_T0}, s{S_T1}
    v_lshlrev_b32 v41, 11, v{V_T0}
    v_lshl_add_u32 v41, v{V_T1}, 4, v41
    v_add_u32 v41, s{S_T0}, v41
    s_lshl_b32 s47, s{S_WAVE}, 15
    s_add_u32 s47, s47, {L_ST}
    """)
    order = [int(c) for c in os.environ.get("WORD", "1203")]
    PH = [(c, p) for c in order for p in range(1 << FULL)]
    RI = 64 >> CL

    def wdma(n):
        c, p = PH[n]
        srd = (S_WQ, S_WK, S_WV, S_WO)[c]
        if E("HELP", 1):
            a(f"buffer_load_dword v50, v{51 if c < 3 else 52}, s[{srd}:{srd+3}], 0 offen")
        for r in range(16):
            if E("PSW", 1):
                a(f"s_xor_b32 s{S_T1}, s76, {r}")
                a(f"s_lshl_b32 s{S_T0}, s{S_T1}, 10")
                a(f"s_add_u32 s{S_T0}, s{S_T0}, s47")
                a(f"s_add_u32 m0, s{S_T0}, {(n & 1)*16384}")
                a(f"s_lshl_b32 s{S_T1}, s{S_T1}, {17 if c < 3 else 15}")
            else:
                a(f"s_add_u32 m0, s47, {(n & 1)*16384 + 1024*r}")
                a(f"s_mov_b32 s{S_T1}, {RI * (16 * p + r) * (8192 if c < 3 else 2048)}")
            a(f"buffer_load_dwordx4 v{40 if c < 3 else 41}, s[{srd}:{srd+3}], s{S_T1} offen {'nt ' if (E('RNT', 0) >> c) & 1 else ''}lds")
    WT = E("WT", 0)
    assert not (WT and FULL)
    a(f"""
    s_lshl_b32 s{S_T0}, s{S_T}, 18
    s_lshl_b32 s{S_T1}, s{S_WAVE}, 16
    s_add_u32 s{S_T0}, s{S_T0}, s{S_T1}
    s_lshl_b32 s{S_T1}, s{S_X}, 11
    s_add_u32 s{S_T0}, s{S_T0}, s{S_T1}
    v_lshlrev_b32 v48, 13, v{V_G}
    v_lshl_add_u32 v48, v{V_M}, 7, v48
    v_add_u32 v48, s{S_T0}, v48
    s_lshl_b32 s{S_T0}, s{S_X}, 21
    s_lshl_b32 s{S_T1}, s{S_T}, 16
    s_add_u32 s{S_T0}, s{S_T0}, s{S_T1}
    s_lshl_b32 s{S_T1}, s{S_WAVE}, 14
    s_add_u32 s{S_T0}, s{S_T0}, s{S_T1}
    v_lshlrev_b32 v49, 7, v{V_L}
    v_add_u32 v49, s{S_T0}, v49
    """)

    a(f"""
    s_and_b32 s76, s{S_T}, 1
    s_mul_i32 s76, s76, {E("PSW", 1) * 8 if E("PSW", 1) < 2 else E("PSW", 1)}
    ; helper touch of the slow lines: row = 256w + 16*(l&15... ) : rows w*256 + (t&15)*16 + (l&15), col (t>>4)*1024 + 384
    s_and_b32 s{S_T0}, s{S_T}, 15
    s_lshl_b32 s{S_T0}, s{S_T0}, 4
    s_lshl_b32 s{S_T1}, s{S_WAVE}, 8
    s_add_u32 s{S_T0}, s{S_T0}, s{S_T1}
    v_add_u32 v53, s{S_T0}, v{V_M}
    s_lshr_b32 s{S_T0}, s{S_T}, 4
    s_lshl_b32 s{S_T0}, s{S_T0}, 10
    s_add_u32 s{S_T0}, s{S_T0}, 384
    v_mov_b32 v54, s{S_T0}
    v_mov_b32 v55, 1920
    v_cmp_gt_u32 vcc, 32, v{V_L}
    s_nop 1
    v_cndmask_b32 v54, v55, v54, vcc
    s_lshl_b32 s{S_T1}, s{S_X}, 11
    v_lshl_add_u32 v51, v53, 13, v54
    v_add_u32 v51, s{S_T1}, v51
    s_lshl_b32 s{S_T1}, s{S_X}, 21
    v_lshl_add_u32 v52, v53, 11, v54
    v_add_u32 v52, s{S_T1}, v52
    """)

    NSELF = E("NSELF", 0)
    XF, XA = 64, 192
    if NSELF:
        assert order[:2] == [1, 2] and not FULL
        a(f"""
        s_load_dwordx2 s[56:57], s[0:1], {KA_AX}
        v_lshrrev_b32 v56, 1, v{V_G}
        v_lshlrev_b32 v56, 5, v56
        v_and_b32 v57, 1, v{V_G}
        v_lshl_add_u32 v56, v57, 3, v56
        v_lshl_add_u32 v56, v{V_M}, 11, v56
        s_lshl_b32 s{S_T0}, s{S_WAVE}, 9
        v_add_u32 v56, s{S_T0}, v56
        s_mov_b32 s58, {4*MB}
        s_mov_b32 s59, 0x00020000
        s_waitcnt lgkmcnt(0)
        """)
        for zt in range(2 * NSELF):
            a(f"s_mov_b32 s{S_T1}, {zt * 32768}")
            for hk in range(8):
                f = XF + (zt * 8 + hk) * 4
                a(f"buffer_load_dwordx2 v[{f}:{f+1}], v56, s[56:59], s{S_T1} offen offset:{64*hk}")
                a(f"buffer_load_dwordx2 v[{f+2}:{f+3}], v56, s[56:59], s{S_T1} offen offset:{64*hk+16}")

    def selfproj(isV):
        if not isV:
            for f in range(16 * NSELF):
                a(f"v_swap_b32 v{XF+4*f+1}, v{XF+4*f+2}")
            a(f"""
            s_lshl_b32 s{S_T0}, s{S_WAVE}, 12
            v_add_u32 v57, s{S_T0}, v{V_LL}
            v_lshlrev_b32 v60, 3, v0
            v_add_u32 v60, {L_XB}, v60
            v_bfe_u32 v61, v0, 1, 4
            v_lshlrev_b32 v58, 4, v61                    ; m*16
            v_and_b32 v61, 1, v0
            v_lshrrev_b32 v62, 5, v0
            v_lshl_add_u32 v59, v61, 11, v58             ; V: tt*2048
            v_lshl_add_u32 v59, v62, 8, v59              ;   + u*1024 + g*256
            v_lshl_add_u32 v58, v61, 8, v58              ; K: hf*256
            v_lshl_add_u32 v58, v62, 9, v58              ;   + (tt*2048 + u*1024 + (g'&1)*512)
            """)
        for z in range(NSELF):
            for hk in range(8):
                for tt in range(2):
                    for u in range(2):
                        d, f = XA + 8 * tt + 4 * u, XF + ((2 * z + tt) * 8 + hk) * 4
                        w = A_W1 + (((2 if isV else 1) * 2 + u) * 4 + (hk >> 1)) * 8 + 4 * (hk & 1)
                        c = "0" if hk == 0 else f"v[{d}:{d+3}]"
                        if isV: a(f"v_mfma_f32_16x16x32_bf16 v[{d}:{d+3}], v[{f}:{f+3}], a[{w}:{w+3}], {c}")
                        else: a(f"v_mfma_f32_16x16x32_bf16 v[{d}:{d+3}], a[{w}:{w+3}], v[{f}:{f+3}], {c}")
            a("s_barrier")
            a.nops(8)
            for i in range(4):
                a(f"ds_write_b128 v57, v[{XA+4*i}:{XA+4*i+3}] offset:{1024*i}")
            a("s_waitcnt lgkmcnt(0)\ns_barrier")
            for w in range(4):
                a(f"ds_read_b128 v[{XA+16+4*w}:{XA+16+4*w+3}], v{59 if isV else 58} offset:{4096*w}")
            a("s_waitcnt lgkmcnt(0)")
            b = XA + 16
            for i in (0, 2):
                a(f"v_pk_add_f32 v[{b+i}:{b+i+1}], v[{b+i}:{b+i+1}], v[{b+4+i}:{b+4+i+1}]")
                a(f"v_pk_add_f32 v[{b+8+i}:{b+8+i+1}], v[{b+8+i}:{b+8+i+1}], v[{b+12+i}:{b+12+i+1}]")
            for i in (0, 2):
                a(f"v_pk_add_f32 v[{b+i}:{b+i+1}], v[{b+i}:{b+i+1}], v[{b+8+i}:{b+8+i+1}]")
            a(f"v_cvt_pk_bf16_f32 v{b+4}, v{b}, v{b+1}\nv_cvt_pk_bf16_f32 v{b+5}, v{b+2}, v{b+3}")
            a(f"ds_write_b64 v60, v[{b+4}:{b+5}] offset:{4096*z + (2048 if isV else 0)}")

    def wtouch(n):
        c, p = PH[n]
        srd = (S_WQ, S_WK, S_WV, S_WO)[c]
        for i in range(2):
            a(f"s_mov_b32 s{S_T1}, {i * (32768 if c < 3 else 8192)}")
            a(f"buffer_load_dword v50, v{48 if c < 3 else 49}, s[{srd}:{srd+3}], s{S_T1} offen")
    if WT == 1:
        wtouch(0); wtouch(1); wdma(0); wtouch(2); wdma(1); wtouch(3)
    elif WT == 2:
        wtouch(0); wtouch(1); wtouch(2); wtouch(3); wdma(0); wdma(1)
    else:
        wdma(0); wdma(1)
    a(f"""
    s_mov_b32 s{S_MN8}, 0x00ff00ff
    s_mov_b32 s{S_MN8+1}, 0x00ff00ff
    s_mov_b32 s{S_MKM}, 0xff00ff00
    s_mov_b32 s{S_MKM+1}, 0xff00ff00
    s_mov_b32 s{S_MMEM}, 0
    s_mov_b32 s{S_MMEM+1}, 0x00ff00ff
    s_mov_b32 s{S_C}, 0x3e0293ee
    v_mov_b32 v{V_NEG}, 0xff800000
    v_mov_b32 v{V_IDX}, 0x4444
    v_mov_b32 v{V_T0}, 0xeeee
    v_cndmask_b32 v{V_IDX}, v{V_IDX}, v{V_T0}, s[{S_MKM}:{S_MKM+1}]
    v_mov_b32 v{V_POI}, -1
    v_mov_b32 v{V_POI+1}, -1
    v_mov_b32 v{V_POI+2}, -1
    v_mov_b32 v{V_POI+3}, -1
    s_mul_i32 s{S_T0}, s{S_WAVE}, {4096 + WPAD}
    v_add_u32 v{V_OMEM}, s{S_T0}, v{V_LL}
    v_and_b32 v{V_T0}, 7, v{V_L}
    v_lshlrev_b32 v{V_OM0}, 11, v{V_T0}
    v_lshrrev_b32 v{V_T1}, 3, v{V_L}
    v_lshl_add_u32 v{V_OM0}, v{V_T1}, 4, v{V_OM0}
    s_lshl_b32 s{S_T0}, s{S_WAVE}, 9
    v_add_u32 v{V_OM0}, s{S_T0}, v{V_OM0}
    s_lshl_b32 s{S_T0}, s{S_T}, 9
    s_lshr_b32 s{S_T1}, s{S_T}, 3
    s_mul_i32 s{S_T1}, s{S_T1}, {WPAD}
    s_add_u32 s{S_T0}, s{S_T0}, s{S_T1}
    v_lshlrev_b32 v{V_OPUB}, 3, v{V_L}
    v_add_u32 v{V_OPUB}, s{S_T0}, v{V_OPUB}
    ; o publish: 16384 + t*512 + g*128 + (m&7)*16
    v_and_b32 v{V_T0}, 7, v{V_M}
    v_lshlrev_b32 v{V_OOP}, 7, v{V_G}
    v_lshl_add_u32 v{V_OOP}, v{V_T0}, 4, v{V_OOP}
    v_add_u32 v{V_OKV}, 0, v{V_OOP}              ; g*128 + (m&7)*16 (k_m publish)
    s_add_u32 s{S_T0}, s{S_T0}, {OXO}
    v_add_u32 v{V_OOP}, s{S_T0}, v{V_OOP}
    v_and_b32 v{V_T1}, 1, v{V_G}
    v_lshlrev_b32 v{V_OSCM}, 7, v{V_T1}
    v_lshl_add_u32 v{V_OSCM}, v{V_T0}, 4, v{V_OSCM}
    v_add_u32 v{V_OSCM}, 1024, v{V_OSCM}
    ; partner score offsets: 32768 + (t ^ p)*2048, own in S_P+3 (s47 later); kept relative to slot base
    """)
    for p in range(1, 4):
        a(f"""
        s_xor_b32 s{S_P+p-1}, s{S_T}, {p}
        s_mul_i32 s{S_P+p-1}, s{S_P+p-1}, {SCS}
        s_add_u32 s{S_P+p-1}, s{S_P+p-1}, {SCO}
        """)
    a(f"""
    ; LDS: q/k partial write: w*2304 + (4*(g&1))*144 + ((g>>1)*16 + m)*4
    v_and_b32 v{V_T0}, 1, v{V_G}
    v_mul_u32_u24 v{V_LWQ}, 576, v{V_T0}
    v_lshrrev_b32 v{V_T1}, 1, v{V_G}
    v_lshl_add_u32 v{V_T1}, v{V_T1}, 4, v{V_M}
    v_lshl_add_u32 v{V_LWQ}, v{V_T1}, 2, v{V_LWQ}
    s_mul_i32 s{S_T0}, s{S_WAVE}, 1152
    s_add_u32 s{S_T0}, s{S_T0}, {L_OP}
    v_add_u32 v{V_LWO}, s{S_T0}, v{V_LWQ}
    s_mul_i32 s{S_T0}, s{S_WAVE}, 2304
    v_add_u32 v{V_LWQ}, s{S_T0}, v{V_LWQ}
    v_add_u32 v{V_LWK}, 1152, v{V_LWQ}
    ; R read: m*144 + g*32
    v_mul_u32_u24 v{V_LRR}, 144, v{V_M}
    v_lshl_add_u32 v{V_LRR}, v{V_G}, 5, v{V_LRR}
    ; O partial read: L_OP + ((l>>1)&7)*144 + (2*(l>>4) + (l&1))*16
    v_bfe_u32 v{V_T0}, v{V_L}, 1, 3
    v_mul_u32_u24 v{V_LRO}, 144, v{V_T0}
    v_lshl_add_u32 v{V_LRO}, v{V_G}, 5, v{V_LRO}
    v_and_b32 v{V_T0}, 1, v{V_L}
    v_lshl_add_u32 v{V_LRO}, v{V_T0}, 4, v{V_LRO}
    v_add_u32 v{V_LRO}, {L_OP}, v{V_LRO}
    ; v partial write: L_VP + w*1024 + lane*16 ; read (tile u at +512u): L_VP + (l&31)*16
    s_lshl_b32 s{S_T0}, s{S_WAVE}, 10
    s_add_u32 s{S_T0}, s{S_T0}, {L_VP}
    v_add_u32 v{V_LVW}, s{S_T0}, v{V_LL}
    v_and_b32 v{V_T0}, 31, v{V_L}
    v_lshlrev_b32 v{V_LVR}, 3, v{V_T0}
    v_add_u32 v{V_LVR}, {L_VM}, v{V_LVR}
    v_lshrrev_b32 v{V_T0}, 2, v{V_M}             ; r
    v_and_b32 v42, 1, v{V_T0}                    ; r&1
    v_lshrrev_b32 v43, 1, v{V_T0}                ; r>>1
    v_lshrrev_b32 v44, 1, v{V_G}                 ; g>>1
    v_and_b32 v45, 1, v{V_G}                     ; g&1
    v_lshl_add_u32 v46, v44, 4, v42
    v_lshl_add_u32 v46, v45, 2, v46
    v_lshl_add_u32 v46, v43, 3, v46              ; W1 row
    v_lshl_add_u32 v47, v44, 3, v42
    v_lshl_add_u32 v47, v45, 4, v47
    v_lshl_add_u32 v47, v43, 2, v47
    v_and_b32 v{V_T1}, 3, v{V_M}
    v_lshlrev_b32 v{V_T1}, 3, v{V_T1}
    v_lshl_add_u32 v46, v46, {6 + FULL}, v{V_T1}
    v_lshl_add_u32 v47, v47, {6 + FULL}, v{V_T1}
    s_and_b32 s{S_T0}, s{S_T}, {FULL}
    s_lshl_b32 s{S_T0}, s{S_T0}, 6
    s_add_u32 s{S_T0}, s{S_T0}, s47
    v_add_u32 v46, s{S_T0}, v46
    v_add_u32 v47, s{S_T0}, v47
    """)

    def wtr(n):
        c, p = PH[n]
        nk = 4 >> FULL
        for u in range(2):
            for k in range(nk * p, nk * p + nk):
                d = (A_W1 + ((c * 2 + u) * 4 + k) * 8) if c < 3 else (A_WO + (u * 4 + k) * 8)
                for Pp in range(4):
                    off = (n & 1) * 16384 + ((64 * (k - nk * p) + 32 * (Pp >> 1) + 2 * (Pp & 1)) << (6 + FULL)) + 32 * u
                    a(f"ds_read_b64_tr_b16 a[{d+2*Pp}:{d+2*Pp+1}], v{46 if c < 3 else 47} offset:{off}")
                if k & 1:
                    a("s_waitcnt lgkmcnt(0)")
    for n in range(len(PH)):
        a(f"s_waitcnt vmcnt({(16 + E('HELP', 1) + ([4, 2, 0][n] if WT == 1 else 0)) if n + 1 < len(PH) else 0})")
        wtr(n)
        if n + 2 < len(PH): wdma(n + 2)
        if NSELF and n < 2: selfproj(n == 1)
    sync(V_T0)
    if TAG: a(f"""
    ; cross exchange: WS_H + slot*256K + src*64K + (t>>3)*16K + par*8K + (t&7)*1K
    s_lshr_b32 s{S_T0}, s{S_T}, 3
    s_lshl_b32 s{S_T0}, s{S_T0}, 14
    s_lshl_b32 s{S_T1}, s98, 13
    s_add_u32 s{S_T0}, s{S_T0}, s{S_T1}
    s_and_b32 s{S_T1}, s{S_T}, 7
    s_lshl_b32 s{S_T1}, s{S_T1}, 10
    s_add_u32 s{S_T0}, s{S_T0}, s{S_T1}
    s_lshl_b32 s{S_T1}, s{S_X}, 16
    s_add_u32 s{S_T0}, s{S_T0}, s{S_T1}
    s_add_u32 s{S_T0}, s{S_T0}, {WS_H}
    v_add_u32 v{V_OXW}, s{S_T0}, v{V_LL}
    v_xor_b32 v25, 0x10000, v{V_OXW}
    v_xor_b32 v26, 0x20000, v{V_OXW}
    v_xor_b32 v27, 0x30000, v{V_OXW}
    v_add_u32 v25, {(WS_XU - WS_H) * E("COPY3", 0)}, v25
    v_add_u32 v26, {(WS_XU - WS_H + 4 * MB) * E("COPY3", 0)}, v26
    v_add_u32 v27, {(WS_XU - WS_H + 8 * MB) * E("COPY3", 0)}, v27
    """)
    else: a(f"""
    s_lshr_b32 s{S_T0}, s{S_T}, 2
    s_xor_b32 s{S_T0}, s{S_T0}, s98
    s_and_b32 s{S_T0}, s{S_T0}, 1
    s_lshl_b32 s{S_T0}, s{S_T0}, 13
    s_lshl_b32 s{S_T1}, s{S_T}, 19
    s_add_u32 s{S_T0}, s{S_T0}, s{S_T1}
    s_lshl_b32 s{S_T1}, s{S_X}, 10
    s_add_u32 s{S_T0}, s{S_T0}, s{S_T1}
    s_add_u32 s{S_T0}, s{S_T0}, {WS_XU}
    v_add_u32 v{V_OXW}, s{S_T0}, v{V_LL}
    v_xor_b32 v25, 1024, v{V_OXW}
    v_xor_b32 v26, 2048, v{V_OXW}
    v_xor_b32 v27, 3072, v{V_OXW}
    """)
    a(f"""
    s_lshl_b32 s{S_T0}, s{S_H}, 2
    s_add_u32 s{S_T0}, s{S_T0}, s{S_J}
    s_mov_b32 s{S_CU}, s{S_T0}
    s_lshr_b32 s{S_T1}, s{S_T0}, 3
    s_xor_b32 s{S_T1}, s{S_T1}, s98
    {["", f"s_xor_b32 s{S_T1}, s{S_T1}, 1", f"s_xor_b32 s{S_T1}, s{S_T1}, s{S_T0}"][E("KVPAR", 0)]}
    s_and_b32 s{S_T1}, s{S_T1}, 1
    s_lshl_b32 s{S_T1}, s{S_T1}, 13
    s_lshl_b32 s76, s{S_T0}, 18
    s_add_u32 s76, s76, s{S_T1}
    s_mov_b32 s{S_KXB}, s76
    v_add_u32 v{TMP+8}, s76, v{V_LL}
    v_add_u32 v{TMP+9}, {WS_VT}, v{TMP+8}
    s_lshr_b32 s{S_T1}, s{S_T0}, 4
    s_xor_b32 s{S_T1}, s{S_T1}, s98
    s_and_b32 s{S_T1}, s{S_T1}, 1
    s_lshl_b32 s{S_T1}, s{S_T1}, 13
    s_lshl_b32 s{S_KVB}, s{S_T0}, 17
    s_add_u32 s{S_KVB}, s{S_KVB}, s{S_T1}
    s_add_u32 s{S_KVB}, s{S_KVB}, {WS_KVM}
    ; flags
    s_xor_b32 s{S_T1}, s98, 1
    s_lshl_b32 s{S_T1}, s{S_T1}, 13
    s_lshl_b32 s{S_T0}, s{S_H}, 7
    s_add_u32 s{S_T0}, s{S_T0}, s{S_T1}
    s_add_u32 s{S_T0}, s{S_T0}, {WS_F}
    v_and_b32 v{V_T0}, 1, v{V_L}
    v_lshlrev_b32 v{V_OFL}, 12, v{V_T0}
    v_add_u32 v{V_OFL}, s{S_T0}, v{V_OFL}
    s_lshl_b32 s{S_T1}, s{S_J}, 2
    v_add_u32 v{V_OFL}, s{S_T1}, v{V_OFL}
    s_xor_b32 s{S_FLB}, s98, 1
    s_lshl_b32 s{S_FLB}, s{S_FLB}, 13
    s_lshr_b32 s{S_T1}, s{S_CU}, 6
    s_lshl_b32 s{S_T1}, s{S_T1}, 14
    s_add_u32 s{S_FLB}, s{S_FLB}, s{S_T1}
    s_and_b32 s{S_T1}, s{S_CU}, 63
    s_lshl_b32 s{S_T1}, s{S_T1}, 7
    s_add_u32 s{S_FLB}, s{S_FLB}, s{S_T1}
    s_add_u32 s{S_FLB}, s{S_FLB}, {WS_F + F_KVM}
    v_mov_b32 v{ONE}, 0x3f803f80
    v_mov_b32 v{ONE+1}, 0x3f803f80
    v_mov_b32 v{ONE+2}, 0x3f803f80
    v_mov_b32 v{ONE+3}, 0x3f803f80
    v_mov_b32 v{ZER}, 0
    s_mov_b32 s{S_STEP}, 0
    s_mov_b32 s{S_KVN}, 0
    s_mov_b32 s{S_WARM}, 0
    s_mov_b32 s88, 0
    s_mov_b32 s{S_XBR}, {L_XB}
    s_mov_b32 s{S_XBW}, {L_XB + 4096 * NSELF}
    """)
    V_PK, V_PV = TMP + 8, TMP + 9
    pfn = [0]

    def prefetch(seg_sreg, part=3, chk=True, skip=None):
        i = pfn[0]; pfn[0] += 1
        if flags and chk:
            a(f"""
            s_cmp_gt_i32 s{S_KVN}, s{seg_sreg}
            s_cbranch_scc1 {name}_pf{i}ok
{name}_pf{i}w:
            """)
            wdog()
            a(f"""
            buffer_load_dword v{V_T0}, v{V_OFL}, {SRD}, 0 offen sc1
            s_waitcnt vmcnt(0)
            v_readlane_b32 s{S_KVN}, v{V_T0}, 0
            v_readlane_b32 s{S_T0}, v{V_T0}, 1
            s_nop 1
            s_min_i32 s{S_KVN}, s{S_KVN}, s{S_T0}
            s_cmp_gt_i32 s{S_KVN}, s{seg_sreg}
            s_cbranch_scc0 {skip or f"{name}_pf{i}w"}
{name}_pf{i}ok:
            """)
        if part is None: return
        a(f"""
        s_add_u32 s77, s{seg_sreg}, s{S_CU}
        s_bfe_u32 s{S_T0}, s77, 0x40002
        s_lshl_b32 s{S_T0}, s{S_T0}, 14
        s_and_b32 s77, s77, 3
        s_lshl_b32 s77, s77, 11
        s_add_u32 s{S_T0}, s{S_T0}, s77
        """)
        if part <= 0:
            a(f"s_add_u32 s{S_T0}, s{S_T0}, s{S_KXB}")
            if part < 0: a(f"s_add_u32 s{S_T0}, s{S_T0}, {WS_VT}")
            for l in range(16):
                a(f"s_buffer_load_dword s78, {SRD}, s{S_T0} offset:{128*l}")
            return
        for f in range(4):
            if not (part >> (f >> 1)) & 1: continue
            a(f"s_add_u32 m0, s{S_XBW}, {2048 * (f >> 1)}")
            a("s_nop 0")
            a(f"buffer_load_dwordx4 v{V_PK if f < 2 else V_PV}, {SRD}, s{S_T0} offen offset:{1024 * (f & 1)} sc1 lds")
        if part & 2: a(f"""
        s_add_u32 s{S_XBW}, s{S_XBW}, 4096
        s_cmp_eq_u32 s{S_XBW}, {L_XB + 3 * 4096}
        s_cselect_b32 s{S_XBW}, {L_XB}, s{S_XBW}
        """)

    def flag_store(val_sreg):
        a(f"""
        v_mov_b32 v{V_T1}, s{val_sreg}
        s_mov_b64 exec, 1
        buffer_store_dword v{V_T1}, v{ZER}, {SRD}, s{S_FLB} offen sc1
        s_mov_b64 exec, -1
        """)

    def zero(base, n):
        for i in range(n):
            a(f"v_mov_b32 v{base+i}, 0")

    if ts and E("BPROF", 0):
        ts(2)
        a(f"v_and_b32 v{V_L}, 63, v0\nv_lshrrev_b32 v{V_G}, 4, v{V_L}")
    a(f"s_cmp_eq_u32 s{S_WAVE}, 3\ns_cbranch_scc0 {name}_pfi")
    a(f"s_mov_b32 s76, 0")
    if not NSELF: prefetch(76)
    a("s_waitcnt vmcnt(0) lgkmcnt(0)")
    a.label(f"{name}_pfi")
    zero(AQ, 24)
    a("s_barrier")
    if ts and E("BPROF", 0):
        ts(3)
        a(f"v_and_b32 v{V_L}, 63, v0\nv_lshrrev_b32 v{V_G}, 4, v{V_L}")
    stamp(0)

    def smf(d, areg, w):
        a(f"v_smfmac_f32_16x16x64_bf16 v[{d}:{d+3}], v[{areg}:{areg+3}], a[{w}:{w+7}], v{V_IDX}")

    def stream_poll(tag, base, soff, off0, two, work, first=None):
        def ld(i):
            a(f"buffer_load_dwordx4 v[{base+4*i}:{base+4*i+3}], v{V_OMEM}, {SRD}, s{soff} offen offset:{1024*i} sc1")
        G = E("GAP", 10)
        for i in range(4):
            ld(i)
            if i == 0 and first:
                first()
                if G > 5: a.nops(G - 5)
            elif i < 3 and G:
                a.nops(G)
        if E("RR", 1):
            def lab(S, i): return f"{name}_{tag}_{S}_{i}"
            def nxt(S, i):
                for d in range(1, 5):
                    if S >> ((i + d) & 3) & 1: return (i + d) & 3
            def chk(i):
                if two:
                    a(f"v_max_u32 v{V_T0}, v{base+4*i}, v{base+4*i+2}")
                    a(f"v_cmp_eq_u32 vcc, -1, v{V_T0}")
                else:
                    a(f"v_cmp_eq_u32 vcc, -1, v{base+4*i}")
            def block(S, i, fall):
                a.label(lab(S, i))
                a(f"s_waitcnt vmcnt({bin(S).count('1') - 1})")
                chk(i)
                a(f"s_cbranch_vccnz {lab(S, i)}f")
                work(i)
                if not fall:
                    S2 = S & ~(1 << i)
                    a(f"s_branch {lab(S2, nxt(S2, i)) if S2 else f'{name}_{tag}_d'}")
            fast = [(15, 0), (14, 1), (12, 2), (8, 3)]
            if E("HOIST", 1) and two:
                def cap(fn, *ar):
                    sv = a.lines; a.lines = []; fn(*ar); o = a.lines; a.lines = sv; return o
                a("s_waitcnt vmcnt(3)")
                chk(0)
                for n, (S, i) in enumerate(fast):
                    a(f"s_cbranch_vccnz {lab(S, i)}f")
                    wk = cap(work, i)
                    a.lines += wk[:3]
                    if i < 3:
                        a(f"s_waitcnt vmcnt({2 - i})")
                        chk(i + 1)
                    a.lines += wk[3:]
                fast = []
            for S, i in fast:
                block(S, i, True)
            a.label(f"{name}_{tag}_d")
            def stubs():
                for S in range(1, 16):
                    for i in range(4):
                        if not S >> i & 1: continue
                        a.label(lab(S, i) + "f")
                        if E("MSK", 1): a("s_mov_b64 exec, vcc")
                        ld(i)
                        if E("MSK", 1): a("s_mov_b64 exec, -1")
                        if bin(S).count('1') == 1 or i == nxt(S, 3): wdog()
                        a(f"s_branch {lab(S, nxt(S, i))}")
                        if (S, i) not in fast:
                            block(S, i, False)
            return stubs
        for i in range(4):
            a.label(f"{name}_{tag}{i}")
            a(f"s_waitcnt vmcnt({3-i})")
            if two:
                a(f"v_max_u32 v{V_T0}, v{base+4*i}, v{base+4*i+2}")
                a(f"v_cmp_eq_u32 vcc, -1, v{V_T0}")
            else:
                a(f"v_cmp_eq_u32 vcc, -1, v{base+4*i}")
            a(f"s_cbranch_vccnz {name}_{tag}r{i}")
            a.label(f"{name}_{tag}k{i}")
            work(i)
        def stubs():
            for i in range(4):
                a.label(f"{name}_{tag}r{i}")
                if prof: a(f"s_add_u32 s{62 if tag == 'pa' else 63}, s{62 if tag == 'pa' else 63}, 1")
                wdog()
                if not E("IMM", 1): a("s_waitcnt vmcnt(0)")
                for k in range(i, 4):
                    ld(k)
                a(f"s_branch {name}_{tag}{i}")
        return stubs

    def fold(t0, t1):
        for i in range(4):
            a(f"v_permlane32_swap_b32 v{t0+i}, v{t1+i}")
        a(f"v_pk_add_f32 v[{t0}:{t0+1}], v[{t0}:{t0+1}], v[{t1}:{t1+1}]")
        a(f"v_pk_add_f32 v[{t0+2}:{t0+3}], v[{t0+2}:{t0+3}], v[{t1+2}:{t1+3}]")

    def vwork(lo, hi):
        for n in range(lo, hi):
            i, u = n >> 1, n & 1
            smf(AV + 4 * u, MA + 4 * i, A_W1 + ((4 + u) * 4 + (i & 3)) * 8)

    def vfin():
        fold(AV, AV + 4)
        a(f"ds_write_b128 v{V_LVW}, v[{AV}:{AV+3}]")

    def rread():
        for w in range(4):
            for hh in range(2):
                d = RP + 8 * w + 4 * hh
                a(f"ds_read_b128 v[{d}:{d+3}], v{V_LRR} offset:{L_QK + 2304*w + 16*hh}")

    def rsum(dst):
        a("s_waitcnt lgkmcnt(4)")
        for i in range(0, 8, 2):
            a(f"v_pk_add_f32 v[{RP+i}:{RP+i+1}], v[{RP+i}:{RP+i+1}], v[{RP+8+i}:{RP+8+i+1}]")
        a("s_waitcnt lgkmcnt(0)")
        for i in range(0, 8, 2):
            a(f"v_pk_add_f32 v[{RP+16+i}:{RP+16+i+1}], v[{RP+16+i}:{RP+16+i+1}], v[{RP+24+i}:{RP+24+i+1}]")
        for i in range(0, 8, 2):
            a(f"v_pk_add_f32 v[{RP+i}:{RP+i+1}], v[{RP+i}:{RP+i+1}], v[{RP+16+i}:{RP+16+i+1}]")
        for i in range(4):
            a(f"v_cvt_pk_bf16_f32 v{dst+i}, v{RP+2*i}, v{RP+2*i+1}")

    S_FM = S_TAG
    def xuoff(dst, step):
        a(f"""
        s_add_u32 s{S_T0}, s{step}, s{S_T}
        s_and_b32 s77, s{S_T0}, 14
        s_and_b32 s{S_T0}, s{S_T0}, 1
        s_lshl_b32 s{S_T0}, s{S_T0}, 12
        s_and_b32 s{dst}, s{step}, 48
        s_or_b32 s{dst}, s{dst}, s77
        s_lshl_b32 s{dst}, s{dst}, 13
        s_add_u32 s{dst}, s{dst}, s{S_T0}
        """)

    def heads():
        a(f"""
        s_and_b32 s{S_T1}, s{S_STEP}, 1
        s_lshl_b32 s{S_SL}, s{S_T1}, 17
        s_lshl_b32 s{S_T0}, s{S_X}, 18
        s_add_u32 s{S_SL}, s{S_SL}, s{S_T0}
        s_add_u32 s{S_SL}, s{S_SL}, {WS_I}
        s_xor_b32 s{S_SLO}, s{S_SL}, {1 << 17}
        """)
        if TAG: a(f"""
        s_lshl_b32 s{S_XS}, s{S_T1}, 18
        s_bfe_u32 s{S_TAG}, s{S_STEP}, 0x10001
        """)
        else: xuoff(S_XS, S_STEP)
    heads()
    if E("PRIO", 0):
        a(f"s_cmp_eq_u32 s{S_WAVE}, 0\ns_cbranch_scc0 {name}_np\ns_setprio 3")
        a.label(f"{name}_np")
    a(f"s_branch {name}_first")

    def wa(i):
        for c in range(4):
            smf(AQ + 4 * c, MA + 4 * i, A_W1 + (c * 4 + (i & 3)) * 8)

    def xread():
        a(f"v_add_u32 v{V_T1}, s{S_XBR}, v{V_LL}")
        for f in range(4):
            a(f"ds_read_b128 v[{KX+4*f}:{KX+4*f+3}], v{V_T1} offset:{1024*f}")

    a.label(f"{name}_loop")
    stubs_a = stream_poll("pa", MA, S_SL, 0, True, wa, first=xread)
    a.label(f"{name}_adone")
    stamp(1)
    a.nops(6)
    fold(AQ, AQ + 4)
    a(f"ds_write2_b32 v{V_LWQ}, v{AQ}, v{AQ+1} offset0:0 offset1:36")
    a(f"ds_write2_b32 v{V_LWQ}, v{AQ+2}, v{AQ+3} offset0:72 offset1:108")
    fold(AQ + 8, AQ + 12)
    a(f"ds_write2_b32 v{V_LWK}, v{AQ+8}, v{AQ+9} offset0:0 offset1:36")
    a(f"ds_write2_b32 v{V_LWK}, v{AQ+10}, v{AQ+11} offset0:72 offset1:108")
    VE, VE2 = E("VE", 4), 8
    vwork(0, VE)
    a(f"""
    s_waitcnt lgkmcnt(0)
    s_barrier
    s_cmp_lg_u32 s{S_WAVE}, 0
    s_cbranch_scc1 {name}_side
    """)
    stamp(2)
    rread()
    vwork(VE, VE2)
    a(f"""
    s_mul_i32 s{S_T0}, s{S_T}, {SCS}
    s_add_u32 s{S_T0}, s{S_T0}, s{S_SL}
    s_add_u32 s{S_T0}, s{S_T0}, {SCO}
    s_add_u32 s76, s{S_P}, s{S_SL}
    s_add_u32 s77, s{S_P+1}, s{S_SL}
    s_add_u32 s78, s{S_P+2}, s{S_SL}
    """)
    rsum(R)
    a.nops(2)
    a(f"v_mfma_f32_16x16x32_bf16 v[{S+4}:{S+7}], v[{KX+4}:{KX+7}], v[{R}:{R+3}], 0")
    a(f"v_mfma_f32_16x16x32_bf16 v[{S}:{S+3}], v[{KX}:{KX+3}], v[{R}:{R+3}], 0")
    a(f"v_mfma_f32_16x16x32_bf16 v[{S+8}:{S+11}], v[{R}:{R+3}], v[{R}:{R+3}], 0")
    a(f"s_cmp_eq_u32 s{S_STEP}, {nsteps-1}")
    a(f"s_cbranch_scc1 {name}_w0last")
    if E("VF", 0) == 1: vfin()
    else: a.nops(5)
    for i in range(4):
        a(f"v_mov_b32_dpp v{S+i}, v{S+4+i} row_shr:8 row_mask:0xf bank_mask:0xc")
    a(f"""
    v_min_u32 v{S+8}, -2, v{S+8}
    v_min_u32 v{S}, -2, v{S}
    s_mov_b64 exec, s[{S_MMEM}:{S_MMEM+1}]
    buffer_store_dwordx4 v[{S+8}:{S+11}], v{V_OSCM}, {SRD}, s{S_T0} offen {IS}
    s_mov_b64 exec, -1
    buffer_store_dwordx4 v[{S}:{S+3}], v{V_LL}, {SRD}, s{S_T0} offen {IS}
    """)
    stamp(3)

    def p2ld():
        for p, so in enumerate((76, 77, 78)):
            a(f"buffer_load_dwordx4 v[{PL+8*p}:{PL+8*p+3}], v{V_LL}, {SRD}, s{so} offen sc1")
            a(f"buffer_load_dwordx4 v[{PL+8*p+4}:{PL+8*p+7}], v{V_OSCM}, {SRD}, s{so} offen sc1")
    P2M = E("P2M", 0)
    if E("VF", 0) == 0: vfin()
    def p2fill():
        zero(AO, 8)
        for i in range(4):
            a(f"v_cndmask_b32 v{S+4+i}, v{V_NEG}, v{S+8+i}, s[{S_MMEM}:{S_MMEM+1}]")
    if P2M == 0:
        a("s_waitcnt lgkmcnt(0)\ns_barrier")
        p2fill()
        p2ld()
        a.nops(24)
        p2ld()
    elif P2M == 1:
        if E("W2A", 0): a.nops(E("W2A", 0))
        p2ld()
        a("s_waitcnt lgkmcnt(0)\ns_barrier")
        p2fill()
        if E("W2", 0): a.nops(E("W2", 0))
        p2ld()
    elif P2M == 2:
        p2fill()
        p2ld()
        a("s_waitcnt lgkmcnt(0)\ns_barrier")
        if E("W2", 0): a.nops(E("W2", 0))
        p2ld()
    else:
        if E("W2A", 0): a.nops(E("W2A", 0))
        p2ld()
        a("s_waitcnt lgkmcnt(0)\ns_barrier")
        p2fill()
        for r in range(P2M - 1):
            p2ld()
            if r + 2 < P2M: a.nops(E("W2", 16))
    assert TAG
    stamp(4)
    a.label(f"{name}_p2")
    a(f"s_waitcnt vmcnt({6 * (max(P2M, 2) - 1)})")
    a(f"v_max3_u32 v{V_T0}, v{PL}, v{PL+4}, v{PL+8}")
    a(f"v_max3_u32 v{V_T1}, v{PL+12}, v{PL+16}, v{PL+20}")
    a(f"v_max_u32 v{V_T0}, v{V_T0}, v{V_T1}")
    a(f"v_cmp_eq_u32 vcc, -1, v{V_T0}")
    a(f"s_cbranch_vccnz {name}_p2r")
    stamp(5)
    BP = E("BP", 1)
    def b2b():
        a("s_barrier")
        a(f"ds_read2_b64 v[{VM}:{VM+3}], v{V_LVR} offset0:0 offset1:32")
    if BP == 0: b2b()
    for (d, o) in ((S + 4, 4), (S, 0)):
        for i in (0, 2):
            a(f"v_pk_add_f32 v[{d+i}:{d+i+1}], v[{d+i}:{d+i+1}], v[{PL+o+i}:{PL+o+i+1}]")
            a(f"v_pk_add_f32 v[{RP+o+i}:{RP+o+i+1}], v[{PL+8+o+i}:{PL+8+o+i+1}], v[{PL+16+o+i}:{PL+16+o+i+1}]")
    for (d, o) in ((S + 4, 4), (S, 0)):
        for i in (0, 2):
            a(f"v_pk_add_f32 v[{d+i}:{d+i+1}], v[{d+i}:{d+i+1}], v[{RP+o+i}:{RP+o+i+1}]")
    MX, TM, SM = TMP, TMP + 1, TMP + 2
    a(f"""
    v_max3_f32 v{MX}, v{S}, v{S+1}, v{S+2}
    v_max3_f32 v{TM}, v{S+4}, v{S+5}, v{S+6}
    v_max3_f32 v{MX}, v{MX}, v{S+3}, v{S+7}
    v_max_f32 v{SM}, v{MX}, v{TM}
    """)
    if BP == 1: b2b()
    else: a("s_nop 1")
    a(f"""
    v_max_f32_dpp v{MX}, v{SM}, v{SM} row_ror:8 row_mask:0xf bank_mask:0xf
    v_max_f32_dpp v{TM}, v{SM}, v{SM} row_ror:8 row_mask:0xf bank_mask:0xf
    s_nop 1
    v_permlane16_swap_b32 v{MX}, v{TM}
    s_nop 0
    v_max_f32 v{SM}, v{MX}, v{TM}
    v_max_f32 v{SM+1}, v{MX}, v{TM}
    """)
    if BP == 2: b2b()
    else: a("s_nop 1")
    a(f"""
    v_permlane32_swap_b32 v{SM}, v{SM+1}
    s_nop 0
    v_max_f32 v{MX}, v{SM}, v{SM+1}
    v_mul_f32 v{MX}, s{S_C}, v{MX}
    """)
    for i in (4, 6, 0, 2):
        a(f"v_pk_fma_f32 v[{S+i}:{S+i+1}], v[{S+i}:{S+i+1}], s[{S_C}:{S_C+1}], v[{MX}:{MX+1}] op_sel_hi:[1,0,0] neg_lo:[0,0,1] neg_hi:[0,0,1]")
    for i in (4, 5, 6, 7):
        a(f"v_exp_f32 v{S+i}, v{S+i}")
    a(f"""
    v_exp_f32 v{S}, v{S}
    v_cvt_pk_bf16_f32 v{PM}, v{S+4}, v{S+5}
    v_cvt_pk_bf16_f32 v{PM+1}, v{S+6}, v{S+7}
    v_exp_f32 v{S+1}, v{S+1}
    v_exp_f32 v{S+2}, v{S+2}
    v_mfma_f32_16x16x16_bf16 v[{LS}:{LS+3}], v[{ONE}:{ONE+1}], v[{PM}:{PM+1}], 0
    v_exp_f32 v{S+3}, v{S+3}
    v_cvt_pk_bf16_f32 v{P}, v{S}, v{S+1}
    s_waitcnt lgkmcnt(0)
    v_mfma_f32_16x16x16_bf16 v[{O}:{O+3}], v[{VM}:{VM+1}], v[{PM}:{PM+1}], 0
    v_cvt_pk_bf16_f32 v{P+1}, v{S+2}, v{S+3}
    v_mfma_f32_16x16x16_bf16 v[{O+4}:{O+7}], v[{VM+2}:{VM+3}], v[{PM}:{PM+1}], 0
    v_mov_b32_dpp v{P+2}, v{P} row_ror:8 row_mask:0xf bank_mask:0xf
    v_mov_b32_dpp v{P+3}, v{P+1} row_ror:8 row_mask:0xf bank_mask:0xf
    s_nop 1
    v_mfma_f32_16x16x32_bf16 v[{LS}:{LS+3}], v[{ONE}:{ONE+3}], v[{P}:{P+3}], v[{LS}:{LS+3}]
    v_mfma_f32_16x16x32_bf16 v[{O}:{O+3}], v[{VTX}:{VTX+3}], v[{P}:{P+3}], v[{O}:{O+3}]
    v_mfma_f32_16x16x32_bf16 v[{O+4}:{O+7}], v[{VTX+4}:{VTX+7}], v[{P}:{P+3}], v[{O+4}:{O+7}]
    s_add_u32 s{S_T1}, s{S_SL}, {OXO}
    s_nop 4
    v_rcp_f32 v{SM}, v{LS}
    s_nop 0
    """)
    for i in range(0, 8, 2):
        a(f"v_pk_mul_f32 v[{O+i}:{O+i+1}], v[{O+i}:{O+i+1}], v[{SM}:{SM+1}] op_sel_hi:[1,0]")
    for i in range(4):
        a(f"v_cvt_pk_bf16_f32 v{P+i}, v{O+2*i}, v{O+2*i+1}")
    a(f"""
    v_min_u32 v{P}, -2, v{P}
    s_mov_b64 exec, s[{S_MN8}:{S_MN8+1}]
    buffer_store_dwordx4 v[{P}:{P+3}], v{V_OOP}, {SRD}, s{S_SL} offen {IS}
    s_mov_b64 exec, -1
    """)
    NB3, NB5 = E("NB3", 0), E("NB5", 0)
    if NB3:
        stamp(6)
        if E("W3", 24): a.nops(E("W3", 24))
        a.label(f"{name}_b3")
    else:
        a.label(f"{name}_b3")
        a("s_barrier")
        stamp(6)
        if E("W3", 24): a.nops(E("W3", 24))

    def wc(i):
        for u in range(2):
            smf(AO + 4 * u, MO + 4 * i, A_WO + (u * 4 + i) * 8)
    stubs_c = stream_poll("pc", MO, S_T1, 0, False, wc)
    stamp(7)
    a.nops(8)
    fold(AO, AO + 4)
    a(f"ds_write2_b32 v{V_LWO}, v{AO}, v{AO+1} offset0:0 offset1:36")
    a(f"ds_write2_b32 v{V_LWO}, v{AO+2}, v{AO+3} offset0:72 offset1:108")
    a("s_waitcnt lgkmcnt(0)\ns_barrier")
    a(f"s_cmp_lg_u32 s{S_WAVE}, 0\ns_cbranch_scc1 {name}_x1")
    for w in range(4):
        a(f"ds_read_b128 v[{RP+4*w}:{RP+4*w+3}], v{V_LRO} offset:{1152*w}")
    a("s_waitcnt lgkmcnt(2)")
    for i in (0, 2):
        a(f"v_pk_add_f32 v[{RP+i}:{RP+i+1}], v[{RP+i}:{RP+i+1}], v[{RP+4+i}:{RP+4+i+1}]")
    a("s_waitcnt lgkmcnt(0)")
    for i in (0, 2):
        a(f"v_pk_add_f32 v[{RP+8+i}:{RP+8+i+1}], v[{RP+8+i}:{RP+8+i+1}], v[{RP+12+i}:{RP+12+i+1}]")
    for i in (0, 2):
        a(f"v_pk_add_f32 v[{RP+i}:{RP+i+1}], v[{RP+i}:{RP+i+1}], v[{RP+8+i}:{RP+8+i+1}]")
    X4 = 48
    A4 = E("A4", 0)
    def p4ld():
        for p in range(3):
            a(f"buffer_load_dwordx4 v[{X4+4*p}:{X4+4*p+3}], v{25+p}, {SRD}, s{S_XS} offen sc1")
    def maxall(regs):
        regs = list(regs)
        h = len(regs) // 2
        for t, rs in ((V_T0, regs[:h]), (V_T1, regs[h:])):
            a(f"v_max3_u32 v{t}, v{rs[0]}, v{rs[1]}, v{rs[2]}")
        k = 3
        while k < h:
            for t, rs in ((V_T0, regs[:h]), (V_T1, regs[h:])):
                if k + 1 < h: a(f"v_max3_u32 v{t}, v{t}, v{rs[k]}, v{rs[k+1]}")
                else: a(f"v_max_u32 v{t}, v{t}, v{rs[k]}")
            k += 2
        a(f"v_max_u32 v{V_T0}, v{V_T0}, v{V_T1}")
        a(f"v_cmp_eq_u32 vcc, -1, v{V_T0}")
    if TAG:
        for i in range(4):
            a(f"v_and_or_b32 v{RP+i}, v{RP+i}, -2, s{S_TAG}")
        if E("HALF", 0): a(f"s_mov_b64 exec, {hex((1 << E('HALF', 0)) - 1)}")
        if E("COPY3", 0):
            for p in range(3):
                a(f"s_add_u32 s76, s{S_XS}, {WS_XU - WS_H + p * 4 * MB}")
                a(f"buffer_store_dwordx4 v[{RP}:{RP+3}], v{V_OXW}, {SRD}, s76 offen sc1")
        else:
            a(f"buffer_store_dwordx4 v[{RP}:{RP+3}], v{V_OXW}, {SRD}, s{S_XS} offen sc1")
        stamp(8)
        a(f"s_xor_b32 s76, s{S_TAG}, 1")
        for i in range(12):
            a(f"v_mov_b32 v{X4+i}, s76")
        if E("HALF", 0): a("s_mov_b64 exec, -1")
        zero(AQ, 24)
        if E("HALF", 0): a(f"s_mov_b64 exec, {hex((1 << E('HALF', 0)) - 1)}")
        if E("XW", 16): a.nops(E("XW", 16))
        stamp(11)
        a(f"s_cmp_eq_u32 s{S_TAG}, 1\ns_cbranch_scc1 {name}_p4_1")
        for tg in range(2):
            a.label(f"{name}_p4_{tg}")
            wdog()
            p4ld()
            a("s_waitcnt vmcnt(36)")
            a.nops(A4)
            bo = "0xfe" if tg == 0 else "0x80"
            for t, b in ((V_T0, X4), (V_T1, X4 + 6)):
                a(f"v_bitop3_b32 v{t}, v{b}, v{b+1}, v{b+2} bitop3:{bo}")
            for t, b in ((V_T0, X4), (V_T1, X4 + 6)):
                a(f"v_bitop3_b32 v{t}, v{t}, v{b+3}, v{b+4} bitop3:{bo}")
            a(f"v_bitop3_b32 v{V_T0}, v{V_T0}, v{X4+5}, v{X4+11} bitop3:{bo}")
            a(f"v_bitop3_b32 v{V_T0}, v{V_T0}, v{V_T1}, 1 bitop3:{'0xa8' if tg == 0 else '0x80'}")
            a(f"v_cmp_ne_u32 vcc, {tg}, v{V_T0}")
            a(f"s_cbranch_vccnz {name}_p4_{tg}")
            if tg == 0: a(f"s_branch {name}_p4d")
        a.label(f"{name}_p4d")
        if E("HALF", 0): a("s_mov_b64 exec, -1")
    else:
        for i in range(4 if A4 else 1):
            a(f"v_min_u32 v{RP+i}, -2, v{RP+i}")
        a(f"buffer_store_dwordx4 v[{RP}:{RP+3}], v{V_OXW}, {SRD}, s{S_XS} offen sc1")
        stamp(8)
        if A4:
            for i in range(12):
                a(f"v_mov_b32 v{X4+i}, -1")
        zero(AQ, 24)
        if E("XW", 16): a.nops(E("XW", 16))
        stamp(11)
        a.label(f"{name}_p4")
        if prof: a("s_add_u32 s64, s64, 1")
        wdog()
        p4ld()
        if A4:
            a("s_waitcnt vmcnt(36)")
            for rep in range(E("A4R", 1)):
                a.nops(A4 // E("A4R", 1))
                maxall(range(X4, X4 + 12))
                a(f"s_cbranch_vccz {name}_p4d")
            a(f"s_branch {name}_p4")
            a.label(f"{name}_p4d")
        else:
            a(f"""
            s_waitcnt vmcnt(0)
            v_max3_u32 v{V_T0}, v{X4}, v{X4+4}, v{X4+8}
            v_cmp_eq_u32 vcc, -1, v{V_T0}
            s_cbranch_vccnz {name}_p4
            """)
    stamp(9)
    for i in (0, 2):
        a(f"v_pk_add_f32 v[{RP+i}:{RP+i+1}], v[{RP+i}:{RP+i+1}], v[{X4+i}:{X4+i+1}]")
        a(f"v_pk_add_f32 v[{RP+4+i}:{RP+4+i+1}], v[{X4+4+i}:{X4+4+i+1}], v[{X4+8+i}:{X4+8+i+1}]")
    for i in (0, 2):
        a(f"v_pk_add_f32 v[{RP+i}:{RP+i+1}], v[{RP+i}:{RP+i+1}], v[{RP+4+i}:{RP+4+i+1}]")
    a(f"""
    v_cvt_pk_bf16_f32 v{P}, v{RP}, v{RP+1}
    v_cvt_pk_bf16_f32 v{P+1}, v{RP+2}, v{RP+3}
    v_min_u32 v{P}, -2, v{P}
    buffer_store_dwordx2 v[{P}:{P+1}], v{V_OPUB}, {SRD}, s{S_SLO} offen {IS}
    """)
    if E("LT", 0):
        a(f"s_cmp_eq_u32 s{S_STEP}, 8\ns_cbranch_scc0 {name}_lt\ns_memtime s[50:51]\ns_memrealtime s[52:53]")
        a.label(f"{name}_lt")
    a.label(f"{name}_b5")
    a(f"""
    s_add_u32 s{S_STEP}, s{S_STEP}, 1
    s_add_u32 s{S_XBR}, s{S_XBR}, 4096
    s_cmp_eq_u32 s{S_XBR}, {L_XB + 3 * 4096}
    s_cselect_b32 s{S_XBR}, {L_XB}, s{S_XBR}
    s_mov_b32 s{S_T0}, s{S_SL}
    s_mov_b32 s{S_SL}, s{S_SLO}
    s_mov_b32 s{S_SLO}, s{S_T0}
    {f"s_xor_b32 s{S_XS}, s{S_XS}, {1 << 18}" if TAG else ""}
    {f"s_bfe_u32 s{S_TAG}, s{S_STEP}, 0x10001" if TAG else ""}
    {"" if NB5 else "s_barrier"}
    """)
    stamp(10)
    if E("W1", 24): a.nops(E("W1", 24))
    a(f"s_branch {name}_loop")
    a.label(f"{name}_x1")
    stamp(11)
    if not E("NOKVM", 0):
        a(f"s_cmp_eq_u32 s{S_WAVE}, 1\ns_cbranch_scc0 {name}_x2\ns_add_u32 s76, s{S_STEP}, 1")
        flag_store(76)
        a.label(f"{name}_x2")
    a(f"""
    s_cmp_eq_u32 s{S_WAVE}, 3
    s_cbranch_scc0 {name}_x4
    s_cmp_eq_u32 s{S_LATE}, 1
    s_cbranch_scc0 {name}_x5
    s_add_u32 s76, s{S_STEP}, 1
    """)
    prefetch(76, 3)
    a(f"""
    s_waitcnt vmcnt(0)
{name}_x5:
    """)
    if E("RF4", 1):
        a(f"s_add_u32 s76, s{S_STEP}, 3\ns_min_u32 s76, s76, 63")
        prefetch(76, None, skip=f"{name}_x6")
        a.label(f"{name}_x6")
    a(f"""
    """)
    if not E("PB1", 1): a(f"""
    buffer_store_dwordx2 v[{V_POI}:{V_POI+1}], v{V_OPUB}, {SRD}, s{S_SL} offen {IS}
    s_mul_i32 s{S_T0}, s{S_T}, {SCS}
    s_add_u32 s{S_T0}, s{S_T0}, s{S_SL}
    s_add_u32 s{S_T0}, s{S_T0}, {SCO}
    buffer_store_dwordx4 v[{V_POI}:{V_POI+3}], v{V_LL}, {SRD}, s{S_T0} offen {IS}
    buffer_store_dwordx4 v[{V_POI}:{V_POI+3}], v{V_OSCM}, {SRD}, s{S_T0} offen {IS}
    """)
    a(f"""
    s_add_u32 s76, s{S_STEP}, 2
    s_cmp_lt_u32 s76, {nsteps-1}
    s_cbranch_scc0 {name}_x4
    {f"s_cmp_gt_i32 s{S_KVN}, s76" if flags else ""}
    s_cbranch_scc0 {name}_x4
    """)
    if not E("NOPF", 0):
        a(f"s_cmp_eq_u32 s88, s76\ns_cbranch_scc1 {name}_x7")
        prefetch(76, 0, False)
        a.label(f"{name}_x7")
        prefetch(76, -1, False)
        a(f"s_mov_b32 s{S_WARM}, s76")
    a.label(f"{name}_x4")
    zero(AQ, 24)
    if NB5: a(f"s_sleep {NB5}")
    a(f"s_branch {name}_b5")
    a.label(f"{name}_p2r")
    if prof: a("s_add_u32 s65, s65, 1")
    wdog()
    p2ld()
    a(f"s_branch {name}_p2")
    stubs_a()
    stubs_c()
    a.label(f"{name}_w0last")
    if E("LT", 0):
        a(f"""
        s_memtime s[54:55]
        s_memrealtime s[56:57]
        s_waitcnt lgkmcnt(0)
        s_sub_u32 s54, s54, s50
        s_sub_u32 s56, s56, s52
        v_mov_b32 v250, s54
        v_mov_b32 v251, s56
        s_lshl_b32 s80, s{S_CU}, 3
        s_add_u32 s80, s80, {WS_PROF + 14 * MB}
        buffer_store_dwordx2 v[250:251], v{ZER}, {SRD}, s80 offen
        """)
    a.nops(8)
    vfin()
    a("s_waitcnt lgkmcnt(0)\ns_barrier")
    a(f"s_branch {name}_end")
    a.label(f"{name}_side")
    if E("SV", 0): vwork(VE, 8)
    a(f"""
    s_cmp_eq_u32 s{S_WAVE}, 3
    s_cbranch_scc1 {name}_sd3
    s_cmp_eq_u32 s{S_WAVE}, 2
    s_cbranch_scc0 {name}_sd4
    s_mov_b64 exec, s[{S_MN8}:{S_MN8+1}]
    buffer_store_dwordx4 v[{V_POI}:{V_POI+3}], v{V_OOP}, {SRD}, s{S_SLO} offen {IS}
    s_mov_b64 exec, -1
    """)
    if E("PB1", 1): a(f"""
    buffer_store_dwordx2 v[{V_POI}:{V_POI+1}], v{V_OPUB}, {SRD}, s{S_SLO} offen {IS}
    s_mul_i32 s{S_T0}, s{S_T}, {SCS}
    s_add_u32 s{S_T0}, s{S_T0}, s{S_SLO}
    s_add_u32 s{S_T0}, s{S_T0}, {SCO}
    buffer_store_dwordx4 v[{V_POI}:{V_POI+3}], v{V_LL}, {SRD}, s{S_T0} offen {IS}
    buffer_store_dwordx4 v[{V_POI}:{V_POI+3}], v{V_OSCM}, {SRD}, s{S_T0} offen {IS}
    """)
    a(f"""
    s_branch {name}_sd4
{name}_sd3:
    s_mov_b32 s{S_LATE}, 0
    s_add_u32 s76, s{S_STEP}, 1
    s_cmp_lt_u32 s76, {nsteps-1}
    s_cbranch_scc0 {name}_sd4
    s_cmp_ge_u32 s76, {NSELF}
    s_cbranch_scc0 {name}_sd4
    {(f"s_cmp_eq_u32 s{S_WARM}, s76" if E("WARM", 0) else f"s_cmp_gt_i32 s{S_KVN}, s76") if flags else ""}
    s_cselect_b32 s{S_LATE}, 0, 1
    s_cbranch_scc0 {name}_sd4
    """)
    if not E("NOPF", 0): prefetch(76, 3, False)
    a.label(f"{name}_sd4")
    if not E("SV", 0): vwork(VE, 8)
    a.nops(8)
    vfin()
    zero(AO, 8)
    if not E("K2", 0):
        a(f"""
        s_cmp_eq_u32 s{S_WAVE}, 1
        s_cbranch_scc0 {name}_s1
        s_waitcnt lgkmcnt(0)
        """)
        rread()
        rsum(KVH)
        a.label(f"{name}_s1")
    a(f"""
    v_add_u32 v{V_T1}, {L_VP}, v{V_LL}
    s_waitcnt lgkmcnt(0)
    s_barrier
    s_cmp_eq_u32 s{S_WAVE}, 2
    s_cbranch_scc1 {name}_s2
    """)
    if E("K2", 0):
        a(f"s_cmp_eq_u32 s{S_WAVE}, 1\ns_cbranch_scc0 {name}_s1")
        rread()
        rsum(KVH)
        a(f"s_branch {name}_s3")
        a.label(f"{name}_s1")
    if E("KPF", 1) and not E("NOPF", 0):
        a(f"""
        s_cmp_eq_u32 s{S_WAVE}, 3
        s_cbranch_scc0 {name}_s3
        s_add_u32 s76, s{S_STEP}, 2
        s_cmp_lt_u32 s76, {nsteps-1}
        s_cbranch_scc0 {name}_s3
        {f"s_cmp_gt_i32 s{S_KVN}, s76" if flags else ""}
        s_cbranch_scc0 {name}_s3
        """)
        prefetch(76, 0, False)
        a(f"s_mov_b32 s88, s76")
    a(f"s_branch {name}_s3")
    a.label(f"{name}_s2")
    for w in range(4):
        a(f"ds_read_b128 v[{RP+4*w}:{RP+4*w+3}], v{V_T1} offset:{1024*w}")
    a(f"v_lshrrev_b32 v{V_T1}, 1, v{V_LL}")
    a("s_waitcnt lgkmcnt(2)")
    for i in (0, 2):
        a(f"v_pk_add_f32 v[{RP+i}:{RP+i+1}], v[{RP+i}:{RP+i+1}], v[{RP+4+i}:{RP+4+i+1}]")
    a("s_waitcnt lgkmcnt(0)")
    for i in (0, 2):
        a(f"v_pk_add_f32 v[{RP+8+i}:{RP+8+i+1}], v[{RP+8+i}:{RP+8+i+1}], v[{RP+12+i}:{RP+12+i+1}]")
    for i in (0, 2):
        a(f"v_pk_add_f32 v[{RP+i}:{RP+i+1}], v[{RP+i}:{RP+i+1}], v[{RP+8+i}:{RP+8+i+1}]")
    a(f"v_cvt_pk_bf16_f32 v{KVH}, v{RP}, v{RP+1}")
    a(f"v_cvt_pk_bf16_f32 v{KVH+1}, v{RP+2}, v{RP+3}")
    a(f"ds_write_b64 v{V_T1}, v[{KVH}:{KVH+1}] offset:{L_VM}")
    a("s_waitcnt lgkmcnt(0) vmcnt(0)")
    a.label(f"{name}_s3")
    a(f"""
    s_cmp_eq_u32 s{S_STEP}, {nsteps-1}
    s_cbranch_scc1 {name}_slast
    s_add_u32 s{S_T1}, s{S_SL}, {OXO}
    s_barrier
    """)

    def kv_pub(tag):
        a(f"""
        s_add_u32 s77, s{S_STEP}, s{S_CU}
        s_bfe_u32 s{S_T0}, s77, 0x30003
        s_lshl_b32 s{S_T0}, s{S_T0}, 14
        s_and_b32 s77, s77, 7
        s_lshl_b32 s77, s77, 10
        s_add_u32 s{S_T0}, s{S_T0}, s77
        s_add_u32 s{S_T0}, s{S_T0}, s{S_KVB}
        s_cmp_eq_u32 s{S_WAVE}, 2
        s_cbranch_scc1 {name}_kv2{tag}
        s_mov_b64 exec, s[{S_MKM}:{S_MKM+1}]
        buffer_store_dwordx4 v[{KVH}:{KVH+3}], v{V_OKV}, {SRD}, s{S_T0} offen sc1
        s_mov_b64 exec, -1
        s_branch {name}_kvd{tag}
{name}_kv2{tag}:
        v_lshlrev_b32 v{V_T0}, 3, v{V_L}
        buffer_store_dwordx2 v[{KVH}:{KVH+1}], v{V_T0}, {SRD}, s{S_T0} offen offset:512 sc1
{name}_kvd{tag}:
        """)
    a(f"s_cmp_eq_u32 s{S_WAVE}, 3\ns_cbranch_scc1 {name}_y3")
    if not E("NOKVM", 0):
        kv_pub("a")
    a(f"s_branch {name}_y4")
    a.label(f"{name}_y3")
    if not TAG:
        a(f"s_add_u32 s76, s{S_STEP}, 2\ns_and_b32 s76, s76, 63")
        xuoff(S_XS, 76)
        a(f"s_cmp_lt_u32 s76, 2\ns_cbranch_scc1 {name}_y4")
        a(f"buffer_store_dwordx4 v[{V_POI}:{V_POI+3}], v{V_OXW}, {SRD}, s{S_XS} offen sc1")
    a(f"""
    s_add_u32 s76, s{S_STEP}, 2
    s_cmp_lt_u32 s76, {nsteps-1}
    s_cbranch_scc0 {name}_y4
    """)
    if not E("NOPF", 0):
        if E("KPF", 1):
            if not E("RF4", 1):
                a(f"s_add_u32 s76, s{S_STEP}, 3")
                prefetch(76, None, skip=f"{name}_y4")
        else:
            prefetch(76, 0, skip=f"{name}_y4")
    a.label(f"{name}_y4")
    if NB3: a(f"s_sleep {NB3}")
    a(f"s_branch {name}_b3")
    a.label(f"{name}_first")
    for i in range(4):
        a(f"buffer_load_dwordx4 v[{MA+4*i}:{MA+4*i+3}], v{V_OM0}, s[{S_M0}:{S_M0+3}], 0 offen offset:{128*i}")
    xread()
    a("s_waitcnt vmcnt(0)")
    for i in range(4):
        wa(i)
    a.nops(2)
    a(f"s_branch {name}_adone")
    a.label(f"{name}_slast")
    a(f"s_cmp_eq_u32 s{S_WAVE}, 3\ns_cbranch_scc1 {name}_end")
    kv_pub("b")
    a(f"s_waitcnt vmcnt(0)\ns_barrier\ns_mov_b32 s76, {nsteps}\ns_cmp_eq_u32 s{S_WAVE}, 1\ns_cbranch_scc0 {name}_end")
    flag_store(76)
    a.label(f"{name}_end")
    if ts: ts(4)
    if prof:
        a(f"""
        s_lshl_b32 s{S_T0}, s{S_X}, 5
        s_add_u32 s{S_T0}, s{S_T0}, s{S_T}
        s_lshl_b32 s{S_T0}, s{S_T0}, 2
        s_add_u32 s{S_T0}, s{S_T0}, s{S_WAVE}
        s_lshl_b32 s{S_T0}, s{S_T0}, 6
        s_add_u32 s{S_T0}, s{S_T0}, {WS_PROF}
        v_mov_b32 v{V_T1}, 0
        s_mov_b64 exec, 1
        """)
        for i in range(16):
            a(f"v_mov_b32 v{V_T0}, s{50+i}")
            a(f"buffer_store_dword v{V_T0}, v{V_T1}, {SRD}, s{S_T0} offen offset:{4*i}")
            a("s_nop 1")
    a("s_endpgm")


def gen_rec_standalone(a: Asm, name, prof=False, force_slow=False):
    a.kernel_begin(name)
    a(f"s_cmp_ge_u32 s2, 256\ns_cbranch_scc1 {name}_exit")
    start_code(a, name)
    a(f"""
    s_sub_u32 s40, s90, 6
    s_lshl_b32 s40, s40, 5
    s_add_u32 s40, s40, s96
    s_cmp_lt_u32 s90, 4
    s_cbranch_scc0 {name}_oth
    s_mov_b32 s{S_X}, s90
    s_mov_b32 s{S_T}, s96
    """)
    rec_body(a, name + "_f", "", lambda vt: sync_code(a, name, "r", vt), prof=prof, flags=False)
    a.label(f"{name}_oth")
    a(f"s_cmp_lt_u32 s40, {NI}\ns_cbranch_scc0 {name}_exit")
    init_cd(a, name, 40)
    a.label(f"{name}_slowent")
    a.label(f"{name}_exit")
    a("s_endpgm")
    return kd(name, 512, sgpr=102, accum=256)


if __name__ == "__main__":
    import sys
    a = Asm()
    name = "rec_kernel"
    k = gen_rec_standalone(a, name, prof=("prof" in sys.argv), force_slow=("slow" in sys.argv))
    out = HEADER + f"; @launch kernel={name} grid=(256,1,1) block=(256,1,1) lds=163840\n"
    out += '.amdgcn_target "amdgcn-amd-amdhsa--gfx950"\n.text\n' + a.text() + '.section .rodata,"a"\n' + k
    open(os.environ.get("OUT", "rec.s"), "w").write(out)
```

```python
import sys
from gen_common import *
from gen_rec import S_X, S_T, S_WSD, S_DBG, E, start_code, rec_body, sync_code, slow_entry, init_cd
from gen_bulk import kv_role, qx_role, out_role, S_H, S_O0, S_O1, S_OI, S_OT, S_OX, S_OM
from gen_fft2 import gen_f0, gen_f1, gen_f2, gen_f3

LDS = 163840


def gen_mega(a, name, force_slow=False):
    W = S_WSD
    S_B, S_G, S_F = 94, 91, 92
    a.kernel_begin(name)

    dbgn = [0]
    def ts(i):
        if E("DBGT", 0):
            slot = {2: 1, 3: 2, 4: 3, 8: 2, 10: 3}.get(i)
            if slot is None: return
            dbgn[0] += 1
            a(f"""
            s_cmp_eq_u32 s96, 5
            s_cbranch_scc0 {name}_dg{dbgn[0]}
            v_cmp_eq_u32 vcc, 64, v0
            s_cbranch_vccz {name}_dg{dbgn[0]}
            s_memrealtime s[76:77]
            s_waitcnt lgkmcnt(0)
            s_sub_u32 s76, s76, s100
            s_sub_u32 s78, s90, 3
            s_max_i32 s78, s78, 0
            s_cmp_eq_u32 s90, 7
            s_cselect_b32 s78, 1, s78
            s_cmp_eq_u32 s90, 4
            s_cbranch_scc1 {name}_dg{dbgn[0]}
            s_lshl_b32 s78, s78, 4
            v_mov_b32 v1, 0
            v_mov_b32 v2, s76
            s_mov_b64 exec, 1
            buffer_atomic_umax v2, v1, s[{S_DBG}:{S_DBG+3}], s78 offen offset:{4 * slot} sc1
            s_mov_b64 exec, -1
{name}_dg{dbgn[0]}:
            """)
            return
        if not E("BPROF", 0): return
        a(f"""
        s_memrealtime s[76:77]
        s_memtime s[100:101]
        s_waitcnt lgkmcnt(0)
        v_mov_b32 v1, 0
        v_mov_b32 v2, s76
        s_lshl_b32 s78, s2, 6
        s_add_u32 s78, s78, {WS_PROF + 8 * MB + 4 * i}
        s_mov_b64 exec, 1
        buffer_store_dword v2, v1, s[{W}:{W+3}], s78 offen
        s_nop 1
        v_mov_b32 v2, s100
        s_add_u32 s78, s78, 16384
        buffer_store_dword v2, v1, s[{W}:{W+3}], s78 offen
        s_nop 1
        v_mov_b32 v2, s96
        s_lshl_b32 s78, s2, 6
        s_add_u32 s78, s78, {WS_PROF + 8 * MB + 56}
        buffer_store_dword v2, v1, s[{W}:{W+3}], s78 offen
        s_mov_b64 exec, -1
        """)
    a(f"s_cmp_ge_u32 s2, 256\ns_cbranch_scc1 {name}_exit")
    if E("BPROF", 0) == 1: a("s_memrealtime s[80:81]")
    if E("DBGT", 0): a("s_memrealtime s[100:101]")
    start_code(a, name)
    sync = lambda tag: (lambda vt: sync_code(a, name, tag, vt, force_slow))
    a(f"""
    s_cmp_lt_u32 s96, 32
    s_cbranch_scc1 {name}_spec
    """)
    sync("x")(2)
    slow_entry(a, name)
    a(f"""
    s_lshr_b32 s{S_X}, s97, 5
    s_and_b32 s{S_T}, s97, 31
    s_cmp_lt_u32 s97, 128
    s_cbranch_scc1 {name}_recs
    s_sub_u32 s{S_B}, s97, 128
    s_branch {name}_bulk
{name}_spec:
    s_mov_b32 s{S_X}, s90
    s_mov_b32 s{S_T}, s96
    s_cmp_lt_u32 s90, 4
    s_cbranch_scc1 {name}_recf
    s_sub_u32 s{S_B}, s90, 4
    s_lshl_b32 s{S_B}, s{S_B}, 5
    s_add_u32 s{S_B}, s{S_B}, s96
{name}_bulk:
    """)
    if E("MIX", 0):
        a(f"s_and_b32 s{S_G}, s{S_B}, 3\ns_lshr_b32 s{S_H}, s{S_B}, 2")
    else:
        a(f"s_lshr_b32 s{S_G}, s{S_B}, 5\ns_and_b32 s{S_H}, s{S_B}, 31")
    a(f"""
    s_and_b32 s{S_F}, s{S_G}, 1
    s_lshl_b32 s{S_F}, s{S_F}, 5
    s_add_u32 s{S_F}, s{S_F}, s{S_H}
    """)
    if E("BPROF", 0) == 1:
        a(f"""
        v_mov_b32 v1, 0
        v_mov_b32 v2, s80
        v_mov_b32 v3, s{S_G}
        s_lshl_b32 s78, s2, 6
        s_add_u32 s78, s78, {WS_PROF + 8 * MB}
        s_mov_b64 exec, 1
        buffer_store_dword v2, v1, s[{W}:{W+3}], s78 offen
        buffer_store_dword v3, v1, s[{W}:{W+3}], s78 offen offset:60
        s_mov_b64 exec, -1
        """)
    ts(1)
    a(f"""
    s_cmp_eq_u32 s{S_G}, 0
    s_cbranch_scc1 {name}_rk
    s_cmp_eq_u32 s{S_G}, 1
    s_cbranch_scc1 {name}_rv
    """)
    def signal(i):
        a(f"""
        s_waitcnt vmcnt(0)
        s_barrier
        v_mov_b32 v1, 0
        v_mov_b32 v2, 1
        s_mov_b32 s82, {WS_F + F_CNT + 128 * i}
        v_cmp_eq_u32 vcc, 0, v0
        s_and_saveexec_b64 s[80:81], vcc
        s_cbranch_execz {name}_sg{i}
        buffer_atomic_add v2, v1, s[{W}:{W+3}], s82 offen sc1
{name}_sg{i}:
        s_mov_b64 exec, s[80:81]
        """)

    def wait(i, n):
        a(f"v_mov_b32 v1, 0\ns_mov_b32 s82, {WS_F + F_CNT + 128 * i}")
        a.label(f"{name}_w{i}")
        wd_code(a, f"fftwait{i}")
        a(f"""
        s_sleep 8
        buffer_load_dword v2, v1, s[{W}:{W+3}], s82 offen sc1
        s_waitcnt vmcnt(0)
        v_cmp_ne_u32 vcc, {n-1}, v2
        s_cbranch_vccnz {name}_w{i}
        """)

    def tasks(tag, fn, first, stride, n, base_sreg):
        a(f"s_add_u32 s93, s{base_sreg}, {first}")
        a(f"s_cmp_lt_u32 s93, {n}\ns_cbranch_scc0 {name}_{tag}e")
        a.label(f"{name}_{tag}l")
        fn()
        a(f"s_add_u32 s93, s93, {stride}\ns_cmp_lt_u32 s93, {n}\ns_cbranch_scc1 {name}_{tag}l")
        a.label(f"{name}_{tag}e")
    DF2 = E("DF2", 0)
    if E("NI", 64) == 32:
        a(f"s_cmp_eq_u32 s{S_G}, 2\ns_cbranch_scc1 {name}_noinit")
        init_cd(a, name, S_H)
        if E("WOT", 1):
            a(f"""
            s_load_dwordx2 s[4:5], s[0:1], {KA_WO}
            v_lshlrev_b32 v1, 7, v0
            s_lshl_b32 s8, s{S_H}, 15
            s_waitcnt lgkmcnt(0)
            s_mov_b32 s6, {8*MB}
            s_mov_b32 s7, 0x00020000
            """)
            for i in range(8):
                a(f"buffer_load_dword v250, v1, s[4:7], s8 offen\ns_add_u32 s8, s8, {MB}")
            a("s_waitcnt vmcnt(0)")
        a.label(f"{name}_noinit")
    else:
        init_cd(a, name, S_F)
    if E("CDH", 0):
        if E("CDH", 0) == 1: a(f"s_cmp_eq_u32 s{S_G}, 2\ns_cbranch_scc1 {name}_nohold")
        sync("h")(2)
        a(f"""
        s_xor_b32 s76, s98, 1
        s_lshl_b32 s76, s76, 13
        s_lshl_b32 s77, s{S_H}, 7
        s_add_u32 s76, s76, s77
        s_add_u32 s76, s76, {WS_F + F_K}
        v_mov_b32 v1, 0
{name}_hold:
        s_sleep 12
        """)
        wd_code(a, "hold")
        a(f"""
        buffer_load_dword v2, v1, s[{W}:{W+3}], s76 offen sc1
        s_waitcnt vmcnt(0)
        v_cmp_gt_i32 vcc, 1, v2
        s_cbranch_vccnz {name}_hold
{name}_nohold:
        """)
    ts(2)
    a(f"s_cmp_eq_u32 s{S_G}, 2\ns_cbranch_scc0 {name}_rd")
    qx_role(a, name + "_q", ts, sync("c"))
    a.label(f"{name}_rd")
    a(f"s_mov_b32 s93, s{S_H}")
    gen_f1(a, name + "_f1", 93, 32, 128)
    ts(5)
    a(f"s_mov_b32 s93, s{S_H}\ns_waitcnt vmcnt(0)")
    gen_f0(a, name + "_f0", 93, 32, 288)
    sync("d")(2)
    signal(0)
    ts(6)
    a(f"s_add_u32 s38, s{S_H}, {129 - DF2}\ns_mov_b32 s39, 32\ns_mov_b32 s37, 129")
    a(f"s_cmp_lt_u32 s38, 129\ns_cbranch_scc1 {name}_f2s\ns_branch {name}_f2e")
    a.label(f"{name}_rk")
    kv_role(a, name + "_k", False, ts, sync("k"))
    a(f"s_branch {name}_fft")
    a.label(f"{name}_rv")
    kv_role(a, name + "_v", True, ts, sync("v"))
    a.label(f"{name}_fft")
    ts(4)
    a(f"s_mov_b32 s38, s{S_F}\ns_mov_b32 s39, 64\ns_mov_b32 s37, {129 - DF2}")
    a.label(f"{name}_f2s")
    wait(0, 32)
    gen_f2(a, name + "_f2", 38, "s39", "s37")
    a.label(f"{name}_f2e")
    signal(1)
    ts(7)
    KS = E("KS", 62)
    assert KS % 2 == 0
    a(f"""
    s_mov_b32 s{S_O0}, 0
    s_mov_b32 s{S_O1}, {KS}
    s_lshl_b32 s{S_OI}, s{S_H}, 13
    s_add_u32 s{S_OI}, s{S_OI}, {WS_OI}
    s_mov_b32 s{S_OT}, 0
    s_mov_b32 s{S_OX}, 8192
    s_mov_b32 s{S_OM}, 1
    s_cmp_eq_u32 s{S_G}, 3
    s_cbranch_scc1 {name}_out
    """)
    wait(1, 96)
    a(f"s_mov_b32 s93, s{S_F}")
    gen_f3(a, name + "_f3", 93, 64, 128)
    ts(8)
    a(f"""
    s_waitcnt vmcnt(0)
    s_barrier
    s_mov_b32 s{S_O0}, {KS}
    s_mov_b32 s{S_O1}, 63
    s_add_u32 s{S_OI}, s{S_OI}, {32 * 8192}
    s_mov_b32 s{S_OT}, {(KS >> 1) & 1}
    s_cmp_eq_u32 s{S_G}, 0
    s_cbranch_scc1 {name}_out
    s_mov_b32 s{S_O0}, 63
    s_mov_b32 s{S_O1}, 64
    s_lshr_b32 s{S_OI}, s{S_H}, 2
    s_lshl_b32 s{S_OI}, s{S_OI}, 17
    s_and_b32 s{S_OT}, s{S_H}, 3
    s_lshl_b32 s{S_OT}, s{S_OT}, 12
    s_add_u32 s{S_OI}, s{S_OI}, s{S_OT}
    s_add_u32 s{S_OI}, s{S_OI}, {WS_I + 114688}
    s_mov_b32 s{S_OT}, 1
    s_mov_b32 s{S_OX}, 4096
    s_mov_b32 s{S_OM}, 0
    """)
    a.label(f"{name}_out")
    out_role(a, name + "_o", lambda i: ts(i + 6))
    a.label(f"{name}_exit")
    a("s_endpgm")
    a.label(f"{name}_recf")
    rec_body(a, name + "_rf", "", sync("r"), prof=bool(E("PROF", 0)), ts=ts)
    a.label(f"{name}_recs")
    rec_body(a, name + "_rs", "sc1", sync("s"))
    return kd(name, 512, sgpr=102, accum=256)


def build(path, force_slow=False):
    a = Asm()
    k = gen_mega(a, "mega_kernel", force_slow)
    out = HEADER + f"; @launch kernel=mega_kernel grid=(256,1,1) block=(256,1,1) lds={LDS}\n"
    out += '.amdgcn_target "amdgcn-amd-amdhsa--gfx950"\n.text\n' + a.text() + '.section .rodata,"a"\n' + k
    open(path, "w").write(out)
    import json
    json.dump(WD_SITES, open("wd.json", "w"))


if __name__ == "__main__":
    build(sys.argv[1] if len(sys.argv) > 1 else "mega.s", force_slow=("slow" in sys.argv))
```

```python
from gen_common import *
from gen_rec import S_WSD, S_DBG, E

W = S_WSD
SRD = f"s[{W}:{W+3}]"
S_H = 40
S_WAVE, S_SEG, S_T0, S_T1, S_T2 = 41, 42, 43, 44, 45
S_WM, S_XM = 4, 8
V_L, V_T0, V_T1, V_T2, V_LL = 1, 2, 3, 4, 5


def wdog(a, name):
    wd_code(a, name + ":" + a.lines[-1], f"s{S_SEG}")


def tsx(a, ts, i):
    if E("BPROF", 0):
        ts(i)
        a(f"v_and_b32 v{V_L}, 63, v0")


def pst(i):
    if not E("KPROF", 0): return []
    return ["s_memtime s[76:77]", "s_waitcnt lgkmcnt(0)", "s_sub_u32 s78, s76, s31", f"s_add_u32 s{32+i}, s{32+i}, s78", "s_mov_b32 s31, s76"]


def pinit(a):
    if not E("KPROF", 0): return
    for i in range(8): a(f"s_mov_b32 s{32+i}, 0")
    a("s_memtime s[76:77]\ns_waitcnt lgkmcnt(0)\ns_mov_b32 s31, s76")


def pdump(a):
    if not E("KPROF", 0): return
    a(f"s_lshl_b32 s78, s2, 7\ns_lshl_b32 s77, s{S_WAVE}, 5\ns_add_u32 s78, s78, s77\ns_add_u32 s78, s78, {WS_PROF + 9*MB}\nv_mov_b32 v2, 0\ns_mov_b64 exec, 1")
    for i in range(8):
        a(f"v_mov_b32 v3, s{32+i}\nbuffer_store_dword v3, v2, {SRD}, s78 offen offset:{4*i}\ns_nop 1")
    a("s_mov_b64 exec, -1")


def common(a, ka_w, ka_x, xbytes):
    a(f"""
    s_load_dwordx2 s[{S_WM}:{S_WM+1}], s[0:1], {ka_w}
    s_load_dwordx2 s[{S_XM}:{S_XM+1}], s[0:1], {ka_x}
    v_lshrrev_b32 v{V_T0}, 6, v0
    v_and_b32 v{V_L}, 63, v0
    v_readfirstlane_b32 s{S_WAVE}, v{V_T0}
    v_lshlrev_b32 v{V_LL}, 4, v{V_L}
    s_waitcnt lgkmcnt(0)
    s_mov_b32 s{S_WM+2}, {8*MB}
    s_mov_b32 s{S_WM+3}, 0x00020000
    s_mov_b32 s{S_XM+2}, {xbytes}
    s_mov_b32 s{S_XM+3}, 0x00020000
    """)


def load_weights(a, rowlog, s_base, lane_addr, frag_off, rot=None, cl=2, touch=False):
    a(f"""
    v_lshrrev_b32 v{V_T0}, {cl}, v{V_L}
    v_and_b32 v{V_T1}, {(1 << cl) - 1}, v{V_L}
    v_lshlrev_b32 v16, {rowlog}, v{V_T0}
    v_lshl_add_u32 v16, v{V_T1}, 4, v16
    v_add_u32 v16, s{s_base}, v16
    v_and_b32 v{V_T1}, 3, v{V_L}
    s_lshl_b32 s{S_T2}, s{S_WAVE}, 15
    """)
    RI = 64 >> cl
    a(lane_addr)
    a(f"v_add_u32 v17, s{S_T2}, v17")

    HELP = 1 if (touch and E("BHELP", 1)) else 0
    if HELP:
        a(f"""
        s_and_b32 s{S_T0}, s{S_H}, 3
        s_lshl_b32 s{S_T0}, s{S_T0}, 2
        s_add_u32 s{S_T0}, s{S_T0}, s{S_WAVE}
        s_lshl_b32 s{S_T0}, s{S_T0}, 4
        v_and_b32 v23, 15, v{V_L}
        v_add_u32 v23, s{S_T0}, v23
        s_lshr_b32 s{S_T0}, s{S_H}, 2
        s_lshl_b32 s{S_T0}, s{S_T0}, 10
        s_add_u32 s{S_T1}, s{S_T0}, 896
        s_add_u32 s{S_T0}, s{S_T0}, 384
        s_cmp_ge_u32 s{S_H}, 28
        s_cselect_b32 s{S_T1}, s{S_T1}, s{S_T0}
        v_mov_b32 v24, s{S_T0}
        v_mov_b32 v25, s{S_T1}
        v_cmp_gt_u32 vcc, 32, v{V_L}
        s_nop 1
        v_cndmask_b32 v24, v25, v24, vcc
        v_lshl_add_u32 v23, v23, 13, v24
        """)

    def dma(ch):
        if HELP:
            a(f"s_mov_b32 s{S_T1}, {ch * 2 * MB}\nbuffer_load_dword v22, v23, s[{S_WM}:{S_WM+3}], s{S_T1} offen")
        for r in range(16):
            a(f"s_add_u32 m0, s{S_T2}, {(ch & 1)*16384 + 1024*r}")
            if rot is None:
                a(f"s_mov_b32 s{S_T1}, {(RI * (16 * ch + r)) << rowlog}")
            else:
                a(f"s_add_u32 s{S_T1}, s{rot}, {RI * (16 * ch + r)}\ns_and_b32 s{S_T1}, s{S_T1}, {64 * RI - 1}\ns_lshl_b32 s{S_T1}, s{S_T1}, {rowlog}")
            a(f"buffer_load_dwordx4 v16, s[{S_WM}:{S_WM+3}], s{S_T1} offen {'nt ' if E('BNT', 0) else ''}lds")

    def tr(ch):
        for f in range(16 * ch, 16 * ch + 16):
            for jj in range(2):
                o = frag_off(f, jj) - 16384 * ch
                assert 0 <= o < 16384
                a(f"ds_read_b64_tr_b16 a[{4*f+2*jj}:{4*f+2*jj+1}], v17 offset:{(ch & 1)*16384 + o}")
            if f % 4 == 3:
                a("s_waitcnt lgkmcnt(0)")
    WT = E("BWT", 0) if touch else 0
    if WT:
        a(f"""
        s_lshl_b32 s{S_T0}, s{S_H}, 16
        s_lshl_b32 s{S_T1}, s{S_WAVE}, 14
        s_add_u32 s{S_T0}, s{S_T0}, s{S_T1}
        v_lshlrev_b32 v21, 7, v{V_L}
        v_add_u32 v21, s{S_T0}, v21
        """)
    def tch(n):
        for i in range(2):
            a(f"s_mov_b32 s{S_T1}, {n * 2 * MB + i * 8192}")
            a(f"buffer_load_dword v22, v21, s[{S_WM}:{S_WM+3}], s{S_T1} offen")
    if WT == 1:
        tch(0); tch(1); dma(0); tch(2); dma(1); tch(3)
    elif WT == 2:
        tch(0); tch(1); tch(2); tch(3); dma(0); dma(1)
    else:
        dma(0); dma(1)
    a(f"s_waitcnt vmcnt({(20 if WT == 1 else 16) + HELP})"); tr(0); dma(2)
    a(f"s_waitcnt vmcnt({(18 if WT == 1 else 16) + HELP})"); tr(1); dma(3)
    a("s_waitcnt vmcnt(16)"); tr(2)
    a("s_waitcnt vmcnt(0)"); tr(3)
    a("s_barrier")


def lane32(hi_mul, swap=False, rl=6):
    if swap:
        return lane32(hi_mul).replace(f"v_lshl_add_u32 v17, v{V_T1}, 3, v17", f"""
        v_and_b32 v18, 1, v{V_L}
        v_lshl_add_u32 v17, v18, 4, v17
        v_bfe_u32 v18, v{V_L}, 1, 1
        v_lshl_add_u32 v17, v18, 3, v17""")
    return f"""
    v_bfe_u32 v17, v{V_L}, 2, 2
    v_lshrrev_b32 v18, 5, v{V_L}
    v_mul_u32_u24 v18, {hi_mul}, v18
    v_add_u32 v17, v17, v18
    v_lshlrev_b32 v17, {rl}, v17
    v_bfe_u32 v18, v{V_L}, 4, 1
    v_lshl_add_u32 v17, v18, 5, v17
    v_lshl_add_u32 v17, v{V_T1}, 3, v17
    """


def lane16(qlog):
    return f"""
    v_bfe_u32 v17, v{V_L}, 2, 2
    v_lshrrev_b32 v18, 4, v{V_L}
    v_lshl_add_u32 v17, v18, 3, v17
    v_lshlrev_b32 v17, 6, v17
    v_lshl_add_u32 v17, v{V_T1}, {qlog}, v17
    """


M32 = E('M32', 0)
GR2 = 512 if M32 else 1024
V_DX, V_RA, V_ST = 6, 8, 7
FR, NFR, AHEAD = 20, 8, 6
ACC = (52, 68)
EP = 84
S_XB = 46
S_CU, S_OB, S_FL = 47, 48, 49
S_OX, S_OM = 68, 69
S_O0, S_O1, S_OI, S_OT = 64, 65, 66, 67


def proj_setup(a, ka_w, swap):
    assert not M32
    common(a, ka_w, KA_AX, 4 * MB)
    a(f"""
    s_lshl_b32 s{S_T0}, s{S_H}, 8
    s_lshl_b32 s{S_T1}, s{S_WAVE}, 6
    s_add_u32 s{S_OB}, s{S_T0}, s{S_T1}
    s_and_b32 s{S_T0}, s{S_OB}, 0x7ff
    v_add_u32 v19, s{S_T0}, v{V_L}
    v_lshlrev_b32 v19, 7, v19
    buffer_load_dword v250, v19, s[{S_XM}:{S_XM+3}], 0 offen
    s_nop 0
    """)
    a(f"""
    v_lshrrev_b32 v{V_T0}, 3, v{V_L}
    s_lshl_b32 s{S_T0}, s{S_WAVE}, 3
    v_add_u32 v{V_T0}, s{S_T0}, v{V_T0}
    v_bfe_u32 v{V_T1}, v{V_T0}, 1, 3
    v_and_b32 v{V_T2}, 7, v{V_L}
    v_xor_b32 v{V_T1}, v{V_T1}, v{V_T2}
    v_lshlrev_b32 v{V_DX}, 11, v{V_T0}
    v_lshl_add_u32 v{V_DX}, v{V_T1}, 4, v{V_DX}
    s_lshl_b32 s{S_XB}, s{S_WAVE}, 10
    v_and_b32 v{V_T0}, 15, v{V_L}
    v_bfe_u32 v{V_T1}, v{V_T0}, 1, 3
    v_lshrrev_b32 v{V_T2}, 4, v{V_L}
    v_xor_b32 v{V_T1}, v{V_T1}, v{V_T2}
    v_lshlrev_b32 v{V_RA}, 7, v{V_T0}
    v_lshl_add_u32 v{V_RA}, v{V_T1}, 4, v{V_RA}
    v_xor_b32 v{V_RA+1}, 64, v{V_RA}
    v_add_u32 v{V_RA+2}, 0x10000, v{V_RA}
    v_add_u32 v{V_RA+3}, 0x10000, v{V_RA+1}
    v_mov_b32 v{V_ST}, v{V_LL}
    """)
    if M32:
        a(f"""
        v_and_b32 v{V_T0}, 31, v{V_L}
        v_bfe_u32 v{V_T1}, v{V_T0}, 1, 3
        v_lshrrev_b32 v{V_T2}, 5, v{V_L}
        v_xor_b32 v{V_T1}, v{V_T1}, v{V_T2}
        v_lshlrev_b32 v{V_RA}, 7, v{V_T0}
        v_lshl_add_u32 v{V_RA}, v{V_T1}, 4, v{V_RA}
        v_xor_b32 v{V_RA+1}, 32, v{V_RA}
        v_xor_b32 v{V_RA+2}, 64, v{V_RA}
        v_xor_b32 v{V_RA+3}, 96, v{V_RA}
        v_add_u32 v{V_RA+4}, 0x10000, v{V_RA}
        v_add_u32 v{V_RA+5}, 0x10000, v{V_RA+1}
        v_add_u32 v{V_RA+6}, 0x10000, v{V_RA+2}
        v_add_u32 v{V_RA+7}, 0x10000, v{V_RA+3}
        v_bfe_u32 v{V_T1}, v{V_L}, 4, 1
        v_lshlrev_b32 v{V_ST}, 10, v{V_T1}
        v_lshl_add_u32 v{V_ST}, v{V_T2}, 8, v{V_ST}
        v_and_b32 v{V_T1}, 15, v{V_L}
        v_lshl_add_u32 v{V_ST}, v{V_T1}, 4, v{V_ST}
        """)
    a(f"""
    s_lshl_b32 s{S_CU}, s{S_H}, 2
    s_add_u32 s{S_CU}, s{S_CU}, s{S_WAVE}
    s_mov_b32 s{S_SEG}, 0
    s_mov_b32 s50, 0
    """)
    for g in xdma_lines(0, 50):
        a("\n".join(g))
    a(f"""
    v_lshrrev_b32 v{V_T0}, 2, v{V_L}
    v_and_b32 v{V_T1}, 3, v{V_L}
    v_lshlrev_b32 v16, 13, v{V_T0}
    v_lshl_add_u32 v16, v{V_T1}, 4, v16
    v_add_u32 v16, s{S_OB}, v16
    s_mul_i32 s{S_T2}, s{S_WAVE}, 24576
    s_add_u32 s{S_T2}, s{S_T2}, 65536
    """)
    a(lane16(4 if swap else 3))
    a(f"""
    v_add_u32 v17, s{S_T2}, v17
    s_and_b32 s{S_T0}, s{S_H}, 3
    s_lshl_b32 s{S_T0}, s{S_T0}, 2
    s_add_u32 s{S_T0}, s{S_T0}, s{S_WAVE}
    s_lshl_b32 s{S_T0}, s{S_T0}, 3
    v_and_b32 v12, 7, v{V_L}
    v_add_u32 v12, s{S_T0}, v12
    s_lshr_b32 s{S_T0}, s{S_H}, 2
    s_lshl_b32 s{S_T0}, s{S_T0}, 10
    s_add_u32 s{S_T1}, s{S_T0}, 896
    s_add_u32 s{S_T0}, s{S_T0}, 384
    s_cmp_ge_u32 s{S_H}, 28
    s_cselect_b32 s{S_T1}, s{S_T1}, s{S_T0}
    v_mov_b32 v13, s{S_T0}
    v_mov_b32 v14, s{S_T1}
    v_cmp_gt_u32 vcc, 32, v{V_L}
    s_nop 1
    v_cndmask_b32 v13, v14, v13, vcc
    v_lshl_add_u32 v12, v12, 13, v13
    """)

    def dma(ch):
        a(f"s_mov_b32 s{S_T1}, {min(ch + E('HA', 0), 7) * MB}\nbuffer_load_dword v250, v12, s[{S_WM}:{S_WM+3}], s{S_T1} offen")
        for r in range(8):
            a(f"s_add_u32 m0, s{S_T2}, {(ch % 3)*8192 + 1024*r}")
            a(f"s_mov_b32 s{S_T1}, {(128 * ch + 16 * r) << 13}")
            a(f"buffer_load_dwordx4 v16, s[{S_WM}:{S_WM+3}], s{S_T1} offen {'nt ' if E('BNT', 0) else ''}lds")
    for ch in range(3): dma(ch)
    acc = ACC[0]
    for ch in range(8):
        a(f"s_waitcnt vmcnt({9 * min(2, 7 - ch)})")
        if ch == 0: a("s_barrier")
        for f in range(8 * ch, 8 * ch + 8):
            for jj in range(2):
                o = (32 * ((f >> 1) - 4 * ch) + 4 * jj) * 64 + (f & 1) * (8 if swap else 32)
                a(f"ds_read_b64_tr_b16 a[{4*f+2*jj}:{4*f+2*jj+1}], v17 offset:{(ch % 3)*8192 + o}")
            if f % 4 == 3: a("s_waitcnt lgkmcnt(0)")
        for n in range(8 * ch, 8 * ch + 8):
            k = n >> 1
            a(f"ds_read_b128 v[{FR+4*(n%8)}:{FR+4*(n%8)+3}], v{V_RA + (k & 1)} offset:{4096*(k >> 1) + 2048*(n & 1)}")
        if ch + 3 < 8: dma(ch + 3)
        a("s_waitcnt lgkmcnt(0)")
        for n in range(8 * ch, 8 * ch + 8):
            k, tt, f = n >> 1, n & 1, FR + 4 * (n % 8)
            for u in range(2):
                d, w = acc + 8 * tt + 4 * u, 4 * (2 * k + u)
                c = "0" if k == 0 else f"v[{d}:{d+3}]"
                if swap: a(f"v_mfma_f32_16x16x32_bf16 v[{d}:{d+3}], a[{w}:{w+3}], v[{f}:{f+3}], {c}")
                else: a(f"v_mfma_f32_16x16x32_bf16 v[{d}:{d+3}], v[{f}:{f+3}], a[{w}:{w+3}], {c}")
    a("s_barrier\ns_mov_b32 s50, 0x10000")
    for g in xdma_lines(1, 50):
        a("\n".join(g))


def xdma_lines(buf, s_off):
    out = []
    for kb in range(16):
        out.append([f"s_add_u32 m0, s{S_XB}, {buf*65536 + kb*3968}", "s_nop 0",
                    f"buffer_load_dwordx4 v{V_DX}, s[{S_XM}:{S_XM+3}], s{s_off} offen offset:{128*kb} lds"])
    return out


def proj_segment(a, buf, acc, wA, fill, stg=None):
    def rd(n):
        f = FR + 4 * (n % NFR)
        k = n >> 1
        if M32:
            a(f"ds_read_b128 v[{f}:{f+3}], v{V_RA + 4*buf + (n & 3)} offset:{4096*(n >> 2)}")
        else:
            a(f"ds_read_b128 v[{f}:{f+3}], v{V_RA + 2*buf + (k & 1)} offset:{4096*(k >> 1) + 2048*(n & 1)}")
    for n in range(AHEAD):
        rd(n)
    for l in fill.get(-1, []):
        a(l)
    for n in range(64):
        f = FR + 4 * (n % NFR)
        k, tt = n >> 1, n & 1
        fl = list(fill.get(n, []))
        if fl and "m0" in fl[0] and fl[1] == "s_nop 0":
            a(fl[0]); fl = fl[2:]
        if not (E("LG2", 1) and n % 2 == 1 and n + AHEAD < 64):
            a(f"s_waitcnt lgkmcnt({min(AHEAD, 64 - n) - 1 - (1 if E('LG2', 1) and n + 1 + AHEAD < 64 else 0)})")
        if M32:
            c = "0" if n == 0 else f"v[{acc}:{acc+15}]"
            if wA:
                a(f"v_mfma_f32_32x32x16_bf16 v[{acc}:{acc+15}], a[{4*n}:{4*n+3}], v[{f}:{f+3}], {c}")
            else:
                a(f"v_mfma_f32_32x32x16_bf16 v[{acc}:{acc+15}], v[{f}:{f+3}], a[{4*n}:{4*n+3}], {c}")
            if n + AHEAD < 64:
                rd(n + AHEAD)
        for u in range(0 if M32 else 2):
            d = acc + 8 * tt + 4 * u
            w = 4 * (2 * k + u)
            c = "0" if k == 0 else f"v[{d}:{d+3}]"
            if stg is not None and k == 31: d += stg - acc
            if wA:
                a(f"v_mfma_f32_16x16x32_bf16 v[{d}:{d+3}], a[{w}:{w+3}], v[{f}:{f+3}], {c}")
            else:
                a(f"v_mfma_f32_16x16x32_bf16 v[{d}:{d+3}], v[{f}:{f+3}], a[{w}:{w+3}], {c}")
            if u == 0 and n + AHEAD < 64:
                rd(n + AHEAD)
        for l in fl:
            a(l)


def pack_lines(acc, isV):
    src = [0, 2, 8, 10, 4, 6, 12, 14] if isV else [0, 2, 4, 6, 8, 10, 12, 14]
    return [f"v_cvt_pk_bf16_f32 v{EP+i}, v{acc+s}, v{acc+s+1}" for i, s in enumerate(src)]


def kvx(cu):
    m = E("KVPAR", 0)
    return ["", f"s_xor_b32 s{S_T1}, s{S_T1}, 1", f"s_xor_b32 s{S_T1}, s{S_T1}, s{cu}"][m]


def near_base(a, dst, cu, log, region):
    a(f"""
    s_lshr_b32 s{S_T1}, s{cu}, {21 - log}
    s_xor_b32 s{S_T1}, s{S_T1}, s98
    {kvx(cu) if log == 18 else ""}
    s_and_b32 s{S_T1}, s{S_T1}, 1
    s_lshl_b32 s{S_T1}, s{S_T1}, 13
    s_lshl_b32 s{dst}, s{cu}, {log}
    s_add_u32 s{dst}, s{dst}, s{S_T1}
    s_add_u32 s{dst}, s{dst}, {region}
    """)


def kv_role(a: Asm, name, isV, ts, sync):
    proj_setup(a, KA_WV if isV else KA_WK, not isV)
    tsx(a, ts, 2)
    def store_lines():
        return [f"s_add_u32 s51, s{S_SEG}, s{S_CU}", "s_sub_u32 s51, s51, 1", "s_bfe_u32 s52, s51, 0x40002", "s_lshl_b32 s52, s52, 14",
                "s_and_b32 s51, s51, 3", "s_lshl_b32 s51, s51, 11", "s_add_u32 s51, s51, s52", f"s_add_u32 s51, s51, s{S_OB}",
                f"buffer_store_dwordx4 v[{EP}:{EP+3}], v{V_ST}, {SRD}, s51 offen sc1",
                f"buffer_store_dwordx4 v[{EP+4}:{EP+7}], v{V_ST}, {SRD}, s51 offen offset:{GR2} sc1"]

    def flag_lines():
        return [f"v_mov_b32 v17, s{S_SEG}", "s_mov_b64 exec, 1", f"buffer_store_dword v17, v16, {SRD}, s{S_FL} offen sc1", "s_mov_b64 exec, -1"]

    def seg(buf, first):
        a("\n".join(pst(0)))
        a(f"s_waitcnt vmcnt({0 if first else 2})")
        a("\n".join(pst(1)))
        a("s_barrier")
        a("\n".join(pst(2)))
        a(f"s_add_u32 s50, s{S_SEG}, 1\ns_min_u32 s50, s50, 63\ns_lshl_b32 s50, s50, 16")
        fill = {}
        if not first:
            pk = pack_lines(ACC[1 - buf], isV)
            fill[0] = pk[:3]; fill[1] = pk[3:6]; fill[2] = pk[6:]
            st = store_lines()
            fill[3] = st[:4]; fill[4] = st[4:9]; fill[5] = st[9:]
            fill[E("FG", 42)] = pst(3) + ["s_waitcnt vmcnt(16)"] + pst(4) + flag_lines()
        fill[E("FG", 42) + 2] = [f"s_add_u32 s53, s{S_SEG}, 3", "s_min_u32 s53, s53, 63", "s_lshl_b32 s53, s53, 16",
                    "s_mov_b64 exec, 0xffff", f"buffer_load_dword v250, v19, s[{S_XM}:{S_XM+3}], s53 offen", "s_mov_b64 exec, -1"]
        for i, g in enumerate(xdma_lines(1 - buf, 50)):
            fill[7 + 2 * i] = g
        proj_segment(a, buf, ACC[buf], not isV, fill)
        a(f"s_add_u32 s{S_SEG}, s{S_SEG}, 1")
        if E("EARLY", 0):
            a(f"s_cmp_le_u32 s{S_SEG}, {E('EARLY', 0)}\ns_cbranch_scc0 {name}_ne{buf}")
            a.nops(8)
            a("\n".join(pack_lines(ACC[buf], isV) + store_lines() + ["s_waitcnt vmcnt(0)"] + flag_lines()))
            a.label(f"{name}_ne{buf}")
    a(f"s_and_b32 s53, s{S_CU}, 31\ns_lshl_b32 s53, s53, 4\nv_add_u32 v19, s53, v{V_L}\nv_lshlrev_b32 v19, 7, v19")
    pinit(a)
    a(f"s_mov_b32 s{S_SEG}, 1")
    sync(V_T0)
    tsx(a, ts, 3)
    near_base(a, S_OB, S_CU, 18, WS_VT if isV else WS_KX)
    a(f"""
    s_xor_b32 s{S_T1}, s98, 1
    s_lshl_b32 s{S_T1}, s{S_T1}, 13
    s_lshl_b32 s{S_FL}, s{S_H}, 7
    s_add_u32 s{S_FL}, s{S_FL}, s{S_T1}
    s_lshl_b32 s{S_T1}, s{S_WAVE}, 2
    s_add_u32 s{S_FL}, s{S_FL}, s{S_T1}
    s_add_u32 s{S_FL}, s{S_FL}, {WS_F + (F_V if isV else F_K)}
    v_mov_b32 v16, 0
    """)

    a("\n".join(pack_lines(ACC[0], isV) + store_lines() + ["s_waitcnt vmcnt(0)"] + flag_lines()))
    a.label(f"{name}_loop")
    seg(1, False)
    a(f"s_cmp_eq_u32 s{S_SEG}, 64\ns_cbranch_scc1 {name}_fin")
    seg(0, False)
    a(f"s_branch {name}_loop")
    a.label(f"{name}_fin")
    a.nops(12)
    a("\n".join(pack_lines(ACC[1], isV) + store_lines() + ["s_waitcnt vmcnt(0)"] + flag_lines()))
    pdump(a)
    a("s_waitcnt vmcnt(0)\ns_barrier")


def qx_role(a: Asm, name, ts, sync):
    if E('NI', 64) == 64: sync(V_T0)
    proj_setup(a, KA_WQ, True)
    if E('NI', 64) == 32: sync(V_T0)
    tsx(a, ts, 3)
    L_Q, L_KV, L_KM = 131072, 139264, 155648
    S_NT, S_EH, S_C, S_KVN, S_KMN = 52, 53, 54, 55, 56
    S_KB, S_MB, S_LK, S_LM = 58, 59, 60, 61
    S_MK = 12
    V_G, V_M, V_OKM, V_OVM, V_OO, V_NEG, V_CM, V_OF, V_OF2, V_QW, V_QR = 92, 93, 94, 95, 96, 97, 98, 99, 100, 101, 102
    ONE, LS = 104, 108
    V_KR, V_VR = 103, 240
    KX, VT, KM, VM, Q, S, P, O, TMP = 112, 144, 160, 176, 184, 200, 212, 220, 236
    a(f"""
    v_lshrrev_b32 v{V_G}, 4, v{V_L}
    v_and_b32 v{V_M}, 15, v{V_L}
    s_and_b32 s{S_NT}, s{S_WAVE}, 1
    s_lshr_b32 s{S_EH}, s{S_WAVE}, 1
    s_mov_b32 s{S_C}, 0x3e0293ee
    s_mov_b32 s{S_KVN}, 0
    s_mov_b32 s{S_KMN}, 0
    v_mov_b32 v{V_NEG}, 0xff800000
    v_mov_b32 v241, 0xceabdc6e
    v_and_b32 v{V_T0}, 7, v{V_M}
    v_lshlrev_b32 v{V_OKM}, 7, v{V_G}
    v_lshl_add_u32 v{V_OKM}, v{V_T0}, 4, v{V_OKM}
    v_and_b32 v{V_T0}, 31, v{V_L}
    v_lshlrev_b32 v{V_OVM}, 3, v{V_T0}
    v_lshrrev_b32 v{V_T0}, 1, v{V_G}
    v_lshlrev_b32 v{V_OO}, 10, v{V_T0}
    v_and_b32 v{V_T0}, 1, v{V_G}
    v_lshl_add_u32 v{V_OO}, v{V_T0}, 9, v{V_OO}
    v_lshl_add_u32 v{V_OO}, v{V_M}, 4, v{V_OO}
    s_lshl_b32 s{S_T0}, s{S_H}, 13
    s_lshl_b32 s{S_T1}, s{S_EH}, 12
    s_add_u32 s{S_T0}, s{S_T0}, s{S_T1}
    s_lshl_b32 s{S_T1}, s{S_NT}, 8
    s_add_u32 s{S_T0}, s{S_T0}, s{S_T1}
    s_add_u32 s{S_T0}, s{S_T0}, {WS_O}
    v_add_u32 v{V_OO}, s{S_T0}, v{V_OO}
    s_lshl_b32 s{S_T0}, s{S_NT}, 4
    v_add_u32 v{V_CM}, s{S_T0}, v{V_M}
    v_lshlrev_b32 v{V_T0}, 2, v{V_G}
    v_sub_u32 v{V_CM}, v{V_CM}, v{V_T0}
    s_mov_b32 s28, 0
    s_mov_b32 s29, -1
    s_xor_b32 s{S_T1}, s98, 1
    s_lshl_b32 s{S_T1}, s{S_T1}, 13
    s_lshl_b32 s{S_T0}, s{S_H}, 7
    s_add_u32 s{S_T0}, s{S_T0}, s{S_T1}
    s_add_u32 s{S_T0}, s{S_T0}, {WS_F}
    v_and_b32 v{V_T0}, 3, v{V_L}
    v_bfe_u32 v{V_T1}, v{V_L}, 2, 1
    v_lshlrev_b32 v{V_OF}, 12, v{V_T1}
    v_lshl_add_u32 v{V_OF}, v{V_T0}, 2, v{V_OF}
    v_add_u32 v{V_OF}, s{S_T0}, v{V_OF}
    s_xor_b32 s62, s98, 1
    s_lshl_b32 s62, s62, 13
    s_lshr_b32 s{S_T1}, s{S_CU}, 6
    s_lshl_b32 s{S_T1}, s{S_T1}, 14
    s_add_u32 s62, s62, s{S_T1}
    s_and_b32 s{S_T1}, s{S_CU}, 63
    s_lshl_b32 s{S_T1}, s{S_T1}, 7
    s_add_u32 s62, s62, s{S_T1}
    s_add_u32 s62, s62, {WS_F + F_KVM}
    s_lshl_b32 s{S_FL}, s{S_H}, 7
    s_lshl_b32 s{S_T1}, s{S_WAVE}, 2
    s_add_u32 s{S_FL}, s{S_FL}, s{S_T1}
    s_lshl_b32 s{S_T1}, s98, 13
    s_add_u32 s{S_FL}, s{S_FL}, s{S_T1}
    s_add_u32 s{S_FL}, s{S_FL}, {WS_F + F_O}
    s_lshl_b32 s{S_T0}, s{S_WAVE}, 11
    s_add_u32 s{S_T0}, s{S_T0}, {L_Q}
    v_add_u32 v{V_QW}, s{S_T0}, v{V_ST}
    s_lshl_b32 s{S_T0}, s{S_NT}, 10
    s_add_u32 s{S_T0}, s{S_T0}, {L_Q}
    v_add_u32 v{V_QR}, s{S_T0}, v{V_LL}
    v_mov_b32 v16, 0
    s_mov_b32 s50, 0
    """)
    for i in range(4):
        a(f"v_mov_b32 v{ONE+i}, 0x3f803f80")
    for t in range(2):
        for r in range(4):
            a(f"v_cmp_gt_i32 s[{S_MK+8*t+2*r}:{S_MK+8*t+2*r+1}], {16*t+r}, v{V_CM}")
    near_base(a, S_KB, S_CU, 18, WS_KX)
    near_base(a, S_MB, S_CU, 17, WS_KVM)
    a(f"""
    s_lshl_b32 s{S_LK}, s{S_WAVE}, 11
    s_add_u32 s{S_LK}, s{S_LK}, {L_KV}
    s_lshl_b32 s{S_LM}, s{S_WAVE}, 10
    s_add_u32 s{S_LM}, s{S_LM}, {L_KM}
    v_add_u32 v{V_OKM}, {L_KM}, v{V_OKM}
    s_lshl_b32 s{S_T0}, s{S_EH}, 11
    s_add_u32 s{S_T0}, s{S_T0}, {L_KM + 512}
    v_add_u32 v{V_OVM}, s{S_T0}, v{V_OVM}
    v_add_u32 v{V_KR}, {L_KV}, v{V_LL}
    s_lshl_b32 s{S_T0}, s{S_EH}, 12
    s_add_u32 s{S_T0}, s{S_T0}, {L_KV + 8192}
    v_add_u32 v{V_VR}, s{S_T0}, v{V_LL}
    """)
    a("s_waitcnt vmcnt(0)")

    def wait_flag(tag, known, voff, sleep):
        a(f"""
        s_cmp_gt_i32 s{known}, s{S_SEG}
        s_cbranch_scc1 {name}_{tag}k
{name}_{tag}w:
        """)
        wdog(a, name)
        a(f"""
        buffer_load_dword v{V_T0}, v{voff}, {SRD}, 0 offen sc1
        s_waitcnt vmcnt(0)
        v_min_i32_dpp v{V_T0}, v{V_T0}, v{V_T0} quad_perm:[1,0,3,2] row_mask:0xf bank_mask:0xf
        s_nop 1
        v_min_i32_dpp v{V_T0}, v{V_T0}, v{V_T0} quad_perm:[2,3,0,1] row_mask:0xf bank_mask:0xf
        s_nop 1
        v_min_i32_dpp v{V_T0}, v{V_T0}, v{V_T0} row_ror:4 row_mask:0xf bank_mask:0xf
        s_nop 0
        v_readfirstlane_b32 s{known}, v{V_T0}
        s_cmp_gt_i32 s{known}, s{S_SEG}
        s_cbranch_scc1 {name}_{tag}k
        s_sleep {sleep}
        s_branch {name}_{tag}w
{name}_{tag}k:
        """)

    def flag_lines():
        return [f"v_mov_b32 v17, s{S_SEG}", "s_mov_b64 exec, 1", f"buffer_store_dword v17, v16, {SRD}, s{S_FL} offen sc1", "s_mov_b64 exec, -1"]

    def kmpoll_lines():
        if E("APOLL", 1):
            return [f"v_mov_b32 v{V_OF2}, 0", "s_mov_b64 exec, 1", f"buffer_atomic_add v{V_OF2}, v16, {SRD}, s62 offen sc0 sc1", "s_mov_b64 exec, -1"]
        return [f"buffer_load_dword v{V_OF2}, v16, {SRD}, s62 offen sc1"]

    def km_lines():
        return [f"s_mov_b32 m0, s{S_LM}", "s_nop 0", f"buffer_load_dwordx4 v{V_LL}, {SRD}, s68 offen sc1 lds"]

    def seg(buf):
        a("s_barrier")
        a("\n".join(pst(0)))
        wait_flag(f"kv{buf}", S_KVN, V_OF, 4)
        sal = f"""s_add_u32 s51, s{S_CU}, s{S_SEG}
        s_bfe_u32 s57, s51, 0x40002
        s_lshl_b32 s57, s57, 14
        s_and_b32 s66, s51, 3
        s_lshl_b32 s66, s66, 11
        s_add_u32 s66, s66, s57
        s_add_u32 s66, s66, s{S_KB}
        s_add_u32 s67, s66, {WS_VT}
        s_bfe_u32 s57, s51, 0x30003
        s_lshl_b32 s57, s57, 14
        s_and_b32 s68, s51, 7
        s_lshl_b32 s68, s68, 10
        s_add_u32 s68, s68, s57
        s_add_u32 s68, s68, s{S_MB}
        s_add_u32 s50, s{S_SEG}, 2
        s_min_u32 s50, s50, 63
        s_lshl_b32 s50, s50, 16
        s_cmp_gt_i32 s{S_KMN}, s{S_SEG}
        s_cselect_b32 s30, 1, 0""".split("\n")
        fill = {-1: sal}
        for i in range(4):
            fill[2 * i] = [f"s_add_u32 m0, s{S_LK}, {8192 * (i >> 1)}", "s_nop 0",
                           f"buffer_load_dwordx4 v{V_LL}, {SRD}, s{66 + (i >> 1)} offen offset:{1024 * (i & 1)} sc1 lds"]
        fill[8] = ["s_cmp_eq_u32 s30, 1", f"s_cbranch_scc0 {name}_ke{buf}"] + km_lines() + [f"{name}_ke{buf}:"]
        for i, g in enumerate(xdma_lines(1 - (buf & 1), 50)):
            fill[10 + 2 * i] = g
        a("\n".join(pst(1)))
        fill[27] = ["s_waitcnt vmcnt(13)"] + flag_lines()
        fill[29] = kmpoll_lines()
        pk = pack_lines(ACC[1], False)
        for i in range(4): fill[43 + 2 * i] = pk[2*i:2*i+2]
        fill[54] = ["s_waitcnt vmcnt(6)", f"v_readfirstlane_b32 s{S_KMN}, v{V_OF2}", "s_cmp_eq_u32 s30, 1", f"s_cbranch_scc1 {name}_kf{buf}",
                    f"s_cmp_gt_i32 s{S_KMN}, s{S_SEG}", f"s_cbranch_scc0 {name}_kf{buf}", "s_mov_b32 s30, 1"] + km_lines() + [f"{name}_kf{buf}:"]
        fill[61] = [f"ds_write_b128 v{V_QW}, v[{EP}:{EP+3}]", f"ds_write_b128 v{V_QW}, v[{EP+4}:{EP+7}] offset:{GR2}"]
        if buf == 0:
            a(f"s_cmp_eq_u32 s{S_SEG}, 63\ns_cbranch_scc0 {name}_nl")
            for i in (-1, 0, 2, 4, 6, 8, 43, 45, 47, 49, 61):
                a("\n".join(fill[i]).replace(f"{name}_ke0", f"{name}_ke2"))
            a("\n".join(["s_waitcnt vmcnt(4)"] + flag_lines()))
            a(f"s_branch {name}_jl")
            a.label(f"{name}_nl")
        proj_segment(a, buf, ACC[0], True, fill, stg=ACC[1])
        if buf == 0: a.label(f"{name}_jl")
        a("\n".join(pst(2)))
        a(f"s_cmp_eq_u32 s30, 1\ns_cbranch_scc1 {name}_kl{buf}")
        a.label(f"{name}_kw{buf}")
        wdog(a, name)
        a("\n".join(kmpoll_lines()))
        a(f"""
        s_waitcnt vmcnt(0)
        v_readfirstlane_b32 s{S_KMN}, v{V_OF2}
        s_cmp_gt_i32 s{S_KMN}, s{S_SEG}
        s_cbranch_scc0 {name}_kw{buf}
        """)
        a("\n".join(km_lines()))
        a.label(f"{name}_kl{buf}")
        a("\n".join(pst(4)))
        a(f"""
        s_waitcnt lgkmcnt(0) vmcnt(0)
        s_barrier
        """)
        a("\n".join(pst(5)))
        for j in range(4):
            a(f"ds_read_b128 v[{Q+4*j}:{Q+4*j+3}], v{V_QR} offset:{2048*j}")
            for t in range(2):
                a(f"ds_read_b128 v[{KX+16*t+4*j}:{KX+16*t+4*j+3}], v{V_KR} offset:{2048*j + 1024*t}")
        for j in range(4):
            a(f"s_waitcnt lgkmcnt({9 - 2*j})")
            for t in range(2):
                c = "0" if j == 0 else f"v[{S+4*t}:{S+4*t+3}]"
                a(f"v_mfma_f32_16x16x32_bf16 v[{S+4*t}:{S+4*t+3}], v[{KX+16*t+4*j}:{KX+16*t+4*j+3}], v[{Q+4*j}:{Q+4*j+3}], {c}")
            a(f"ds_read_b128 v[{KM+4*j}:{KM+4*j+3}], v{V_OKM} offset:{1024*j}")
        for j in range(4):
            a(f"s_waitcnt lgkmcnt({3 + j})")
            c = "0" if j == 0 else f"v[{S+8}:{S+11}]"
            a(f"v_mfma_f32_16x16x32_bf16 v[{S+8}:{S+11}], v[{KM+4*j}:{KM+4*j+3}], v[{Q+4*j}:{Q+4*j+3}], {c}")
            a(f"ds_read_b128 v[{VT+4*j}:{VT+4*j+3}], v{V_VR} offset:{1024*j}")
            a(f"ds_read_b64 v[{VM+2*j}:{VM+2*j+1}], v{V_OVM} offset:{1024*(j >> 1) + 256*(j & 1)}")
        for i in range(0, 8, 2):
            a(f"v_pk_mul_f32 v[{S+i}:{S+i+1}], v[{S+i}:{S+i+1}], s[{S_C}:{S_C+1}] op_sel_hi:[1,0]")
        for i in range(8):
            a(f"v_cndmask_b32 v{S+i}, v{S+i}, v241, s[{S_MK+2*i}:{S_MK+2*i+1}]")
        for i in (8, 10):
            a(f"v_pk_mul_f32 v[{S+i}:{S+i+1}], v[{S+i}:{S+i+1}], s[{S_C}:{S_C+1}] op_sel_hi:[1,0]")
        for i in range(4):
            a(f"v_cndmask_b32 v{S+8+i}, v{S+8+i}, v{V_NEG}, s[28:29]")
        MX, TM, SM = TMP, TMP + 1, TMP + 2
        a(f"v_max3_f32 v{MX}, v{S}, v{S+1}, v{S+2}")
        for i in range(3, 11, 2):
            a(f"v_max3_f32 v{MX}, v{MX}, v{S+i}, v{S+i+1}")
        a(f"""
        v_max_f32 v{TM}, v{MX}, v{S+11}
        v_max_f32 v{MX}, v{MX}, v{S+11}
        s_nop 1
        v_permlane16_swap_b32 v{MX}, v{TM}
        s_nop 0
        v_max_f32 v{SM}, v{MX}, v{TM}
        v_max_f32 v{SM+1}, v{MX}, v{TM}
        s_nop 1
        v_permlane32_swap_b32 v{SM}, v{SM+1}
        s_nop 0
        v_max_f32 v{MX}, v{SM}, v{SM+1}
        """)
        for i in range(0, 12, 2):
            a(f"v_pk_add_f32 v[{S+i}:{S+i+1}], v[{S+i}:{S+i+1}], v[{MX}:{MX+1}] op_sel_hi:[1,0] neg_lo:[0,1] neg_hi:[0,1]")
        for i in range(12):
            a(f"v_exp_f32 v{S+i}, v{S+i}")
        a.nops(1)
        for i in range(6):
            a(f"v_cvt_pk_bf16_f32 v{P+i}, v{S+2*i}, v{S+2*i+1}")
        a("s_waitcnt lgkmcnt(0)\ns_nop 0")
        a(f"v_mfma_f32_16x16x32_bf16 v[{LS}:{LS+3}], v[{ONE}:{ONE+3}], v[{P}:{P+3}], 0")
        for T in range(4):
            a(f"v_mfma_f32_16x16x32_bf16 v[{O+4*T}:{O+4*T+3}], v[{VT+4*T}:{VT+4*T+3}], v[{P}:{P+3}], 0")
        a(f"v_mfma_f32_16x16x16_bf16 v[{LS}:{LS+3}], v[{ONE}:{ONE+1}], v[{P+4}:{P+5}], v[{LS}:{LS+3}]")
        for T in range(4):
            a(f"v_mfma_f32_16x16x16_bf16 v[{O+4*T}:{O+4*T+3}], v[{VM+2*T}:{VM+2*T+1}], v[{P+4}:{P+5}], v[{O+4*T}:{O+4*T+3}]")
        a(f"""
        s_lshl_b32 s51, s{S_SEG}, 18
        s_nop 2
        v_rcp_f32 v{SM}, v{LS}
        v_rcp_f32 v{SM+1}, v{LS+1}
        s_nop 1
        """)
        for i in range(0, 16, 2):
            a(f"v_pk_mul_f32 v[{O+i}:{O+i+1}], v[{O+i}:{O+i+1}], v[{SM}:{SM+1}]")
        for i in range(8):
            a(f"v_cvt_pk_bf16_f32 v{S+i}, v{O+2*i}, v{O+2*i+1}")
        a(f"""
        buffer_store_dwordx4 v[{S}:{S+3}], v{V_OO}, {SRD}, s51 offen sc1
        buffer_store_dwordx4 v[{S+4}:{S+7}], v{V_OO}, {SRD}, s51 offen offset:2048 sc1
        s_add_u32 s{S_SEG}, s{S_SEG}, 1
        """)
        a("\n".join(pst(6)))
    pinit(a)
    for i in range(16):
        a(f"v_mov_b32 v{ACC[1]+i}, v{ACC[0]+i}")
    a.label(f"{name}_loop")
    seg(1)
    seg(0)
    a(f"s_cmp_lt_u32 s{S_SEG}, 64\ns_cbranch_scc1 {name}_loop")
    a("\n".join(["s_waitcnt vmcnt(0)"] + flag_lines()))
    pdump(a)
    a.label(f"{name}_quit")
    ts(4)
    a("s_endpgm")


def out_role(a: Asm, name, ts):
    common(a, KA_WO, KA_OUT, 8 * MB)
    S_ON, S_PAR, S_PRE, S_ROT, S_PEND, S_KH, S_C = 52, 53, 55, 56, 57, 58, 59
    S_AM = 71
    V_OL, V_OF, V_LW, V_LRK, V_LRS, V_OS, V_SND, V_RCV = 6, 7, 8, 9, 10, 11, 12, 13
    ACCO, RD, KEEP, INB, F0, NF, STG = 20, 52, 84, 88, 96, 32, 224
    HS, QS, US, WSs, PS = 544, 1088, 4352, 8704, 34816
    a(f"""
    s_and_b32 s{S_KH}, s{S_H}, 1
    s_lshr_b32 s{S_C}, s{S_H}, 1
    s_lshl_b32 s{S_T0}, s{S_KH}, 22
    s_lshl_b32 s{S_T1}, s{S_WAVE}, 20
    s_add_u32 s{S_T0}, s{S_T0}, s{S_T1}
    s_lshl_b32 s{S_T1}, s{S_C}, 7
    s_add_u32 s{S_OB}, s{S_T0}, s{S_T1}
    s_and_b32 s{S_ROT}, s{S_C}, {7 if E("ROT8", 1) else 3}
    s_lshl_b32 s{S_ROT}, s{S_ROT}, {6 if E("ROT8", 1) else 7}
    """)
    load_weights(a, 11, S_OB, lane32(4, rl=7), lambda f, jj: (128 * (f >> 4) + 32 * ((f >> 2) & 3) + 8 * ((f >> 1) & 1) + 16 * jj) * 128 + 64 * (f & 1), rot=S_ROT, cl=3)
    a(f"""
    s_lshl_b32 s{S_ROT}, s{S_ROT}, 6
    s_lshl_b32 s{S_T0}, s{S_KH}, 17
    s_lshl_b32 s{S_T1}, s{S_WAVE}, 15
    s_add_u32 s{S_T0}, s{S_T0}, s{S_T1}
    s_add_u32 s{S_T0}, s{S_T0}, {WS_O}
    v_add_u32 v{V_OL}, s{S_T0}, v{V_LL}
    v_and_b32 v{V_T0}, 3, v{V_L}
    v_lshlrev_b32 v{V_OF}, 2, v{V_T0}
    v_bfe_u32 v{V_T0}, v{V_L}, 2, 2
    v_lshl_add_u32 v{V_OF}, v{V_T0}, 7, v{V_OF}
    s_lshl_b32 s{S_T0}, s{S_KH}, 11
    s_lshl_b32 s{S_T1}, s{S_WAVE}, 9
    s_add_u32 s{S_T0}, s{S_T0}, s{S_T1}
    s_lshl_b32 s{S_T1}, s98, 13
    s_add_u32 s{S_T0}, s{S_T0}, s{S_T1}
    s_add_u32 s{S_T0}, s{S_T0}, {WS_F + F_O}
    v_add_u32 v{V_OF}, s{S_T0}, v{V_OF}
    s_mul_i32 s{S_T0}, s{S_WAVE}, {WSs}
    v_lshrrev_b32 v{V_T0}, 5, v{V_L}
    v_lshl_add_u32 v{V_LW}, v{V_T0}, 5, v{V_LL}
    v_add_u32 v{V_LW}, s{S_T0}, v{V_LW}
    v_and_b32 v{V_T0}, 7, v{V_L}
    v_mul_u32_u24 v{V_LRK}, {HS}, v{V_T0}
    v_lshrrev_b32 v{V_T1}, 3, v{V_L}
    v_lshl_add_u32 v{V_LRK}, v{V_T1}, 4, v{V_LRK}
    s_lshl_b32 s{S_T0}, s{S_WAVE}, 7
    v_add_u32 v{V_LRK}, s{S_T0}, v{V_LRK}
    s_mul_i32 s{S_T0}, s{S_KH}, {US}
    s_sub_u32 s{S_T1}, {US}, s{S_T0}
    v_add_u32 v{V_LRS}, s{S_T1}, v{V_LRK}
    v_add_u32 v{V_LRK}, s{S_T0}, v{V_LRK}
    s_lshl_b32 s{S_T0}, s{S_WAVE}, 15
    s_lshl_b32 s{S_T1}, s{S_H}, 6
    s_add_u32 s{S_T0}, s{S_T0}, s{S_T1}
    v_lshlrev_b32 v{V_OS}, 12, v{V_T1}
    v_and_b32 v{V_T0}, 7, v{V_L}
    v_lshl_add_u32 v{V_OS}, v{V_T0}, 3, v{V_OS}
    v_add_u32 v{V_OS}, s{S_T0}, v{V_OS}
    s_lshl_b32 s{S_T1}, s{S_WAVE}, 10
    s_add_u32 s{S_T0}, s{S_OI}, s{S_T1}
    v_add_u32 v{V_RCV}, s{S_T0}, v{V_LL}
    v_xor_b32 v{V_SND}, s{S_OX}, v{V_RCV}
    s_mov_b32 s{S_SEG}, s{S_O0}
    s_mov_b32 s{S_ON}, 0
    s_mov_b32 s{S_PAR}, 0
    s_mov_b32 s{S_PEND}, 0
    """)

    def opoll(r):
        if E("OAP", 0):
            a(f"v_mov_b32 v{r}, 0\ns_mov_b64 exec, 0xffff\nbuffer_atomic_add v{r}, v{V_OF}, {SRD}, 0 offen sc0 sc1\ns_mov_b64 exec, -1")
        else:
            a(f"buffer_load_dword v{r}, v{V_OF}, {SRD}, 0 offen sc1")

    def ld(k, sbase):
        f = F0 + 4 * k
        if k % 4 == 0:
            a(f"s_add_u32 s51, s{S_ROT}, {1024 * k}\ns_and_b32 s51, s51, 0x7fff\ns_add_u32 s51, s51, s{sbase}")
        a(f"buffer_load_dwordx4 v[{f}:{f+3}], v{V_OL}, {SRD}, s51 offen offset:{1024*(k & 3)} sc1")

    def mf(k):
        f = F0 + 4 * k
        for u in range(2):
            d = ACCO + 16 * u
            c = "0" if k == 0 else f"v[{d}:{d+15}]"
            if k == NF - 1: d = STG + 16 * u
            a(f"v_mfma_f32_32x32x16_bf16 v[{d}:{d+15}], a[{8*k+4*u}:{8*k+4*u+3}], v[{f}:{f+3}], {c}")

    def inb(sreg):
        a(f"s_and_b32 s60, s{sreg}, s{S_OM}\ns_lshl_b32 s60, s60, 12")
        a(f"buffer_load_dwordx4 v[{INB}:{INB+3}], v{V_RCV}, {SRD}, s60 offen sc1")

    def fin(tag, sreg, cnt):
        a(f"s_bfe_u32 s61, s{sreg}, 0x10001\ns_xor_b32 s61, s61, s{S_OT}\ns_and_b32 s61, s61, s{S_AM}\ns_waitcnt vmcnt({cnt})")
        a.label(f"{name}_{tag}c")
        a(f"""
        v_and_b32 v14, s{S_AM}, v{INB}
        v_cmp_ne_u32 vcc, s61, v14
        s_cbranch_vccz {name}_{tag}k
        """)
        wdog(a, name)
        inb(sreg)
        a(f"s_waitcnt vmcnt(0)\ns_branch {name}_{tag}c")
        a.label(f"{name}_{tag}k")
        a(f"""
        v_pk_add_f32 v[{INB}:{INB+1}], v[{INB}:{INB+1}], v[{KEEP}:{KEEP+1}]
        v_pk_add_f32 v[{INB+2}:{INB+3}], v[{INB+2}:{INB+3}], v[{KEEP+2}:{KEEP+3}]
        s_lshl_b32 s60, s{sreg}, 17
        v_cvt_pk_bf16_f32 v{INB+4}, v{INB}, v{INB+1}
        v_cvt_pk_bf16_f32 v{INB+5}, v{INB+2}, v{INB+3}
        buffer_store_dwordx2 v[{INB+4}:{INB+5}], v{V_OS}, s[{S_XM}:{S_XM+3}], s60 offen {os.environ.get('OSTO', 'sc1')}
        """)

    a(f"""
    s_mov_b32 s{S_AM}, 1
    s_cmp_eq_u32 s{S_O0}, 0
    s_cbranch_scc1 {name}_nodry
    s_mov_b32 s{S_AM}, 0
    s_mov_b32 s{S_SEG}, 0
    s_mov_b32 s70, s{S_O1}
    s_mov_b32 s{S_O1}, 1
    v_mov_b32 v16, v{V_SND}
    v_mov_b32 v17, v{V_OS}
    v_mov_b32 v{V_SND}, -16
    v_mov_b32 v{V_OS}, -16
{name}_nodry:
    """)
    tsx(a, ts, 3)
    pinit(a)
    a.label(f"{name}_cold")
    a(f"s_cmp_gt_i32 s{S_ON}, s{S_SEG}\ns_cbranch_scc1 {name}_fk")
    a.label(f"{name}_fw")
    wdog(a, name)
    opoll(V_T0)
    a(f"""
    s_waitcnt vmcnt(0)
    v_min_i32_dpp v{V_T0}, v{V_T0}, v{V_T0} quad_perm:[1,0,3,2] row_mask:0xf bank_mask:0xf
    s_nop 1
    v_min_i32_dpp v{V_T0}, v{V_T0}, v{V_T0} quad_perm:[2,3,0,1] row_mask:0xf bank_mask:0xf
    s_nop 1
    v_min_i32_dpp v{V_T0}, v{V_T0}, v{V_T0} row_ror:4 row_mask:0xf bank_mask:0xf
    s_nop 1
    v_min_i32_dpp v{V_T0}, v{V_T0}, v{V_T0} row_ror:8 row_mask:0xf bank_mask:0xf
    s_nop 0
    v_readfirstlane_b32 s{S_ON}, v{V_T0}
    s_min_i32 s{S_ON}, s{S_ON}, s{S_O1}
    s_cmp_gt_i32 s{S_ON}, s{S_SEG}
    s_cbranch_scc1 {name}_fk
    s_sleep 2
    s_add_u32 s{S_T0}, s{S_ON}, 2
    s_cmp_gt_i32 s{S_T0}, s{S_SEG}
    s_cbranch_scc1 {name}_fw
    s_sleep 48
    s_branch {name}_fw
    """)
    a.label(f"{name}_fk")
    a(f"s_add_u32 s54, s{S_SEG}, 1\ns_cmp_gt_i32 s{S_ON}, s54\ns_cbranch_scc0 {name}_c0")
    a(f"s_lshl_b32 s50, s{S_SEG}, 18")
    for k in range(NF):
        ld(k, 50)
    a("\n".join(pst(0)))
    if E("KPROF", 0): a("s_add_u32 s39, s39, 64")

    uid = [0]
    def epi_groups(sreg):
        g = [[f"v_add_u32 v{V_T0}, s{S_PAR}, v{V_LW}", f"v_add_u32 v{V_T1}, s{S_PAR}, v{V_LRK}", f"v_add_u32 v{V_T2}, s{S_PAR}, v{V_LRS}"]]
        for q in range(0, 8, 2):
            g.append([f"ds_write_b128 v{V_T0}, v[{STG+4*(q+i)}:{STG+4*(q+i)+3}] offset:{QS*(q+i)}" for i in range(2)])
        g.append([])
        g.append(["s_waitcnt lgkmcnt(0)", "s_barrier"] + [f"ds_read_b128 v[{RD+4*w}:{RD+4*w+3}], v{V_T2} offset:{WSs*w}" for w in range(4)])
        g.append([f"ds_read_b128 v[{RD+16+4*w}:{RD+16+4*w+3}], v{V_T1} offset:{WSs*w}" for w in range(4)] +
                 [f"s_sub_u32 s{S_PAR}, {PS}, s{S_PAR}", f"s_bfe_u32 s61, s{sreg}, 0x10001", f"s_xor_b32 s61, s61, s{S_OT}", f"s_and_b32 s60, s{sreg}, s{S_OM}", "s_lshl_b32 s60, s60, 12"])
        g.append([])
        for h, dst in ((0, RD), (16, KEEP)):
            b = RD + h
            l = [f"s_waitcnt lgkmcnt({4 if h == 0 else 0})"]
            for i in range(4):
                l.append(f"v_add_f32 v{b+i}, v{b+i}, v{b+4+i}")
                l.append(f"v_add_f32 v{b+8+i}, v{b+8+i}, v{b+12+i}")
            g.append(l)
            l = [f"v_add_f32 v{dst+i}, v{b+i}, v{b+8+i}" for i in range(4)]
            if h == 0:
                uid[0] += 1
                l += [f"v_and_or_b32 v{RD}, v{RD}, -2, s61", "s_cmp_eq_u32 s95, 0", f"s_cbranch_scc1 {name}_sa{uid[0]}",
                      f"buffer_store_dwordx4 v[{RD}:{RD+3}], v{V_SND}, {SRD}, s60 offen sc1", f"s_branch {name}_sb{uid[0]}", f"{name}_sa{uid[0]}:",
                      f"buffer_store_dwordx4 v[{RD}:{RD+3}], v{V_SND}, {SRD}, s60 offen", f"{name}_sb{uid[0]}:"]
            g.append(l)
        return g

    def loop(pre, epi):
        g = epi_groups(62) if epi else []
        for k in range(NF):
            a(f"s_waitcnt vmcnt({NF-1 if pre else NF-1-k})")
            mf(k)
            if pre: ld(k, 50)
            if 1 <= k <= len(g): a("\n".join(g[k-1]))
            if epi and k == 27: inb(62)
            if not pre and k == 20: opoll(15)
        if epi: fin(f"f{pre}", 62, 4 if pre else 0)

    def loopc(epi):
        Wn = E("OWIN", 8)
        g = epi_groups(62) if epi else []
        a.label(f"{name}_c{epi}")
        if epi == 0: tsx(a, ts, 5)
        a(f"s_add_u32 s54, s{S_SEG}, 1\ns_sub_u32 s62, s{S_SEG}, 1\ns_lshl_b32 s50, s{S_SEG}, 18")
        for k in range(Wn):
            ld(k, 50)
        for l in g: a("\n".join(l))
        for k in range(NF):
            a(f"s_waitcnt vmcnt({min(Wn, NF - k) - 1})")
            mf(k)
            if k + Wn < NF: ld(k + Wn, 50)
            if epi and k == 24: inb(62)
            if k == 24: opoll(15)
        if epi == 0: tsx(a, ts, 6)
        if epi: fin("fc", 62, 0)
        a("\n".join(pst(3)))
        a(f"s_lshl_b32 s50, s54, 18\ns_branch {name}_imm")

    for epi in range(2):
        a.label(f"{name}_w{epi}")
        a(f"""
        s_add_u32 s54, s{S_SEG}, 1
        s_sub_u32 s62, s{S_SEG}, 1
        s_lshl_b32 s50, s54, 18
        s_cmp_gt_i32 s{S_ON}, s54
        s_cbranch_scc0 {name}_n{epi}
        """)
        loop(1, epi)
        a("\n".join(pst(1)))
        a(f"s_add_u32 s{S_SEG}, s{S_SEG}, 1\ns_branch {name}_w1")
        a.label(f"{name}_n{epi}")
        loop(0, epi)
        a("\n".join(pst(2)))
        if epi == 0: a(f"s_branch {name}_imm")
    a.label(f"{name}_imm")
    a(f"""
    s_waitcnt vmcnt(1)
    v_min_i32_dpp v15, v15, v15 quad_perm:[1,0,3,2] row_mask:0xf bank_mask:0xf
    s_nop 1
    v_min_i32_dpp v15, v15, v15 quad_perm:[2,3,0,1] row_mask:0xf bank_mask:0xf
    s_nop 1
    v_min_i32_dpp v15, v15, v15 row_ror:4 row_mask:0xf bank_mask:0xf
    s_nop 1
    v_min_i32_dpp v15, v15, v15 row_ror:8 row_mask:0xf bank_mask:0xf
    s_nop 0
    v_readfirstlane_b32 s{S_ON}, v15
    s_min_i32 s{S_ON}, s{S_ON}, s{S_O1}
    s_cmp_gt_i32 s{S_ON}, s54
    s_cbranch_scc0 {name}_im2
    s_add_u32 s{S_SEG}, s{S_SEG}, 1
    s_add_u32 s54, s54, 1
    s_cmp_gt_i32 s{S_ON}, s54
    s_cbranch_scc0 {name}_c1
    """)
    for k in range(NF):
        ld(k, 50)
    a(f"s_branch {name}_w1")
    loopc(0)
    loopc(1)
    a.label(f"{name}_im2")
    for g in epi_groups(S_SEG):
        a("\n".join(g))
    inb(S_SEG)
    fin("f2", S_SEG, 0)
    a("\n".join(pst(4)))
    a(f"""
    s_add_u32 s{S_SEG}, s{S_SEG}, 1
    s_cmp_lt_u32 s{S_SEG}, s{S_O1}
    s_cbranch_scc1 {name}_cold
    s_cmp_eq_u32 s{S_AM}, 1
    s_cbranch_scc1 {name}_fin
    s_mov_b32 s{S_AM}, 1
    s_mov_b32 s{S_SEG}, s{S_O0}
    s_mov_b32 s{S_O1}, s70
    v_mov_b32 v{V_SND}, v16
    v_mov_b32 v{V_OS}, v17
    """)
    inb(S_SEG)
    a(f"s_branch {name}_cold")
    a.label(f"{name}_fin")
    pdump(a)
    a.label(f"{name}_quit")
    ts(4)
    a("s_endpgm")
```

```python
from gen_common import *

S_X, S_T = 30, 31
S_WSD, S_DBG = 84, 72
E = lambda k, d: int(os.environ.get(k, d))


D_VOTE, D_PD, D_SLOW, D_PD2 = 128, 160, 192, 224
NI = E('NI', 64)


def start_code(a: Asm, name):
    W, D = S_WSD, S_DBG
    a(f"""
    s_load_dwordx2 s[{W}:{W+1}], s[0:1], {KA_WS}
    s_load_dwordx2 s[{D}:{D+1}], s[0:1], {KA_DBG}
    s_getreg_b32 s90, hwreg(HW_REG_XCC_ID)
    s_and_b32 s90, s90, 7
    v_mov_b32 v1, 0
    v_mov_b32 v2, 1
    s_lshl_b32 s91, s90, 4
    s_mov_b32 s95, 0
    s_mov_b32 s99, 0
    s_waitcnt lgkmcnt(0)
    s_mov_b32 s{W+2}, {WS_BYTES}
    s_mov_b32 s{W+3}, 0x00020000
    s_mov_b32 s{D+2}, 256
    s_mov_b32 s{D+3}, 0x00020000
    v_cmp_eq_u32 vcc, 0, v0
    s_and_saveexec_b64 s[88:89], vcc
    s_cbranch_execz {name}_tkd
    s_lshl_b32 s92, s2, 13
    s_add_u32 s92, s92, {WS_CAL}
    buffer_atomic_add v2, v1, s[{D}:{D+3}], s91 offen sc0
    buffer_load_dword v251, v1, s[{W}:{W+3}], s92 offen offset:2048 sc1
    s_waitcnt vmcnt(1)
    ds_write_b32 v1, v2
    s_waitcnt lgkmcnt(0)
{name}_tkd:
    s_mov_b64 exec, s[88:89]
    s_barrier
    ds_read_b32 v2, v1
    s_waitcnt lgkmcnt(0)
    v_readfirstlane_b32 s96, v2
    s_barrier
    """)


def sync_code(a: Asm, kname, tag, vt, force_slow=False):
    D = S_DBG
    n = f"{kname}_sy{tag}"
    a(f"""
    v_and_b32 v{vt+1}, 15, v0
    v_lshlrev_b32 v{vt+1}, 4, v{vt+1}
    s_branch {n}
{n}w:
    s_sleep 4
{n}:
    """)
    wd_code(a, n)
    a(f"""
    buffer_load_dword v{vt}, v{vt+1}, s[{D}:{D+3}], 0 offen sc1
    s_waitcnt vmcnt(0)
    s_cmp_eq_u32 s95, 1
    s_cbranch_scc0 {n}f
    v_readlane_b32 s76, v{vt}, {D_PD2 // 16}
    s_mov_b32 s98, 0
    s_cmp_eq_u32 s76, {NI}
    s_cbranch_scc0 {n}w
    s_branch {n}d
{n}f:
    s_mov_b32 s77, 0
    s_mov_b32 s78, 0
    """)
    for i in range(8):
        a(f"v_readlane_b32 s76, v{vt}, {i}\ns_add_u32 s77, s77, s76\ns_xor_b32 s76, s76, 32\ns_or_b32 s78, s78, s76")
    a(f"""
    s_cmp_eq_u32 s77, 256
    s_cbranch_scc0 {n}w
    {"s_mov_b32 s78, 1" if force_slow else ""}
    v_mov_b32 v252, v{vt}
    s_cmp_eq_u32 s78, 0
    s_cbranch_scc0 {kname}_slowent
    v_readlane_b32 s76, v{vt}, {D_PD // 16}
    v_readlane_b32 s77, v{vt}, {D_VOTE // 16}
    s_cmp_eq_u32 s76, {NI}
    s_cbranch_scc0 {n}w
    s_cmp_gt_u32 s77, {NI // 2}
    s_cselect_b32 s98, 1, 0
    {f"s_xor_b32 s98, s98, {os.environ['PAR']}" if "PAR" in os.environ else ""}
{n}d:
    """)


def slow_entry(a: Asm, name):
    D = S_DBG
    a.label(f"{name}_slowent")
    a(f"""
    s_mov_b64 exec, -1
    s_waitcnt vmcnt(0) lgkmcnt(0)
    s_barrier
    s_mov_b32 s97, s96
    """)
    for i in range(7):
        a(f"v_readlane_b32 s76, v252, {i}\ns_cmp_gt_u32 s90, {i}\ns_cselect_b32 s76, s76, 0\ns_add_u32 s97, s97, s76")
    a(f"""
    v_mov_b32 v1, 0
    v_mov_b32 v2, 1
    v_cmp_eq_u32 vcc, 0, v0
    s_and_saveexec_b64 s[88:89], vcc
    s_cbranch_execz {name}_sb1
    buffer_atomic_add v2, v1, s[{D}:{D+3}], 0 offen offset:{D_SLOW} sc1
{name}_sb1:
    s_mov_b64 exec, s[88:89]
{name}_sb2:
    s_sleep 4
    """)
    wd_code(a, "slowbar")
    a(f"""
    buffer_load_dword v2, v1, s[{D}:{D+3}], 0 offen offset:{D_SLOW} sc1
    s_waitcnt vmcnt(0)
    v_cmp_ne_u32 vcc, 256, v2
    s_cbranch_vccnz {name}_sb2
    s_mov_b32 s95, 1
    """)


def init_cd(a: Asm, name, idx):
    W, D = S_WSD, S_DBG
    a(f"""
    v_mov_b32 v8, -1
    v_mov_b32 v9, -1
    v_mov_b32 v10, -1
    v_mov_b32 v11, -1
    v_lshlrev_b32 v1, 4, v0
    v_mov_b32 v2, 0
    v_cmp_gt_u32 vcc, 64, v0
    s_cbranch_vccz {name}_nv
    s_cmp_eq_u32 s95, 0
    s_cbranch_scc0 {name}_nv
    ; latency samples of both parities (order alternates with idx), sign vote
    s_lshr_b32 s60, s2, 1
    s_lshl_b32 s60, s60, 14
    s_and_b32 s61, s{idx}, 1
    s_lshl_b32 s66, s61, 13
    s_add_u32 s60, s60, s66
    s_and_b32 s66, s2, 1
    s_lshl_b32 s66, s66, 10
    s_add_u32 s60, s60, s66
    s_add_u32 s60, s60, {WS_CAL}
    s_mov_b32 s66, 0x7fffffff
    s_mov_b32 s67, 0x7fffffff
    s_mov_b64 exec, 0xff
    s_waitcnt vmcnt(0)
    """)
    for i in range(E("NSAMP", 4)):
        a(f"""
        s_memtime s[62:63]
        s_waitcnt lgkmcnt(0)
        buffer_store_dwordx4 v[8:11], v1, s[{W}:{W+3}], s60 offen offset:{256 * (i >> 1)} sc1
        s_waitcnt vmcnt(0)
        s_memtime s[64:65]
        s_xor_b32 s60, s60, 8192
        s_waitcnt lgkmcnt(0)
        s_sub_u32 s64, s64, s62
        s_min_u32 s{66 + (i & 1)}, s{66 + (i & 1)}, s64
        """)
    a(f"""
    s_cmp_lt_u32 s67, s66
    s_cselect_b32 s60, 1, 0
    s_xor_b32 s60, s60, s61          ; parity that is near this XCD
    s_lshr_b32 s61, s90, 2
    s_xor_b32 s60, s60, s61
    v_mov_b32 v3, s60
    s_mov_b64 exec, 1
    buffer_atomic_add v3, v2, s[{D}:{D+3}], 0 offen offset:{D_VOTE} sc1
    s_mov_b64 exec, -1
{name}_nv:
    s_barrier
    s_lshl_b32 s60, s{idx}, 12
    s_add_u32 s60, s60, {WS_H}
    """)
    for i in range(512 // NI):
        a(f"buffer_store_dwordx4 v[8:11], v1, s[{W}:{W+3}], s60 offen sc1")
        a(f"s_add_u32 s60, s60, {NI * 4096}")
    a(f"""
    s_lshr_b32 s62, s{idx}, 1
    s_and_b32 s63, s{idx}, 1
    s_add_u32 s63, s63, s62
    s_lshl_b32 s62, s62, 19
    s_and_b32 s64, s63, 14
    s_lshl_b32 s64, s64, 13
    s_add_u32 s62, s62, s64
    s_and_b32 s64, s63, 1
    s_lshl_b32 s64, s64, 12
    s_add_u32 s62, s62, s64
    s_add_u32 s62, s62, {WS_XU}
    {"" if E("TAG", 1) else f"buffer_store_dwordx4 v[8:11], v1, s[{W}:{W+3}], s62 offen sc1"}
    s_add_u32 s62, s62, 8192
    {"" if E("TAG", 1) else f"buffer_store_dwordx4 v[8:11], v1, s[{W}:{W+3}], s62 offen sc1"}
    s_cmp_lt_u32 s{idx}, 16
    s_cbranch_scc0 {name}_pz
    buffer_store_dwordx4 v[8:11], v1, s[{W}:{W+3}], s60 offen sc1
{name}_pz:
    s_waitcnt vmcnt(0)
    s_barrier
    v_mov_b32 v3, 1
    s_lshl_b32 s62, s95, 6
    v_cmp_eq_u32 vcc, 0, v0
    s_and_saveexec_b64 s[60:61], vcc
    s_cbranch_execz {name}_xps
    buffer_atomic_add v3, v2, s[{D}:{D+3}], s62 offen offset:{D_PD} sc1
{name}_xps:
    s_mov_b64 exec, s[60:61]
    """)


def rec_body(a: Asm, name, IS, sync, nsteps=64, prof=False, flags=True, ts=None):
    W = S_WSD
    SRD = f"s[{W}:{W+3}]"
    S_WQ, S_WK, S_WV, S_WO, S_M0 = 4, 8, 12, 16, 20
    S_WAVE, S_H, S_J, S_STEP, S_T0, S_T1 = 24, 25, 26, 27, 28, 29
    S_C = 32
    S_SL, S_SLO = 33, 34
    S_XS, S_XSO = 35, 36
    S_P = 37
    S_MN8, S_MMEM = 40, 42
    S_XBR, S_XBW = 44, 45
    S_KVN = 46
    S_KVB, S_FLB, S_CU, S_KXB, S_TAG = 79, 81, 82, 83, 47
    S_LATE, S_WARM = 36, 89
    ONE, LS, ZER = 220, 224, 228
    S_MKM = 48
    V_L, V_G, V_M, V_T0, V_T1, V_IDX = 1, 2, 3, 4, 5, 6
    V_OMEM, V_OM0, V_OPUB, V_OSCM, V_OOP, V_OXW, V_OXR = 7, 8, 9, 10, 11, 12, 13
    V_LWQ, V_LWK, V_LRR, V_LL, V_LWO, V_LRO, V_LVW, V_LVR, V_OKV, V_NEG, V_OFL = 14, 15, 16, 17, 18, 19, 20, 21, 22, 23, 24
    V_POI = 28
    MA, AQ, AV = 32, 96, 112
    RP, R, KX, VTX, S, PL = 120, 152, 156, 164, 172, 184
    VM, P, PM, O, TMP = 208, 212, 216, 120, 232
    MO, AO, KVH = 32, 96, 244
    A_W1, A_WO = 0, 192
    L_QK, L_VP, L_OP, L_VM, L_XB, L_ST = 0, 9216, 13312, 17920, 18432, 32768

    TAG = E("TAG", 1)
    WPAD, SCS = E("WPAD", 0), E("SCS", 2048)
    OXO, SCO = 24576, 49152

    def wdog():
        wd_code(a, name + ":" + a.lines[-1], f"s{S_STEP}")

    def stamp(i):
        if E("TR", 0):
            if i == 0: return
            if i < 11: a(f"s_memtime s[{48+2*i}:{49+2*i}]")
            if i == 11:
                a("s_memrealtime s[70:71]\ns_memtime s[100:101]\ns_waitcnt lgkmcnt(0)\nv_writelane_b32 v250, s100, 12")
                for k in range(1, 12):
                    a(f"v_writelane_b32 v250, s{48+2*k}, {k}")
                a(f"v_writelane_b32 v250, s99, 0")
                a(f"""
                s_lshl_b32 s80, s{S_X}, 5
                s_add_u32 s80, s80, s{S_T}
                s_lshl_b32 s80, s80, 2
                s_add_u32 s80, s80, s{S_WAVE}
                s_lshl_b32 s80, s80, 6
                s_add_u32 s80, s80, s{S_STEP}
                s_lshl_b32 s80, s80, 6
                s_add_u32 s80, s80, {WS_PROF}
                v_lshlrev_b32 v251, 2, v{V_L}
                s_mov_b64 exec, 0xffff
                buffer_store_dword v250, v251, {SRD}, s80 offen
                s_mov_b64 exec, -1
                """)
            return
        if not prof or i == 11:
            return
        a("s_memtime s[66:67]")
        a("s_waitcnt lgkmcnt(0)")
        a("s_sub_u32 s68, s66, s69")
        a(f"s_add_u32 s{50+i}, s{50+i}, s68")
        a("s_mov_b32 s69, s66")

    if prof:
        for i in range(16):
            a(f"s_mov_b32 s{50+i}, 0")
        a("s_memtime s[66:67]\ns_waitcnt lgkmcnt(0)\ns_mov_b32 s69, s66")
    if ts: ts(1)
    a(f"""
    s_load_dwordx2 s[{S_M0}:{S_M0+1}], s[0:1], {KA_MEM0}
    s_load_dwordx2 s[{S_WO}:{S_WO+1}], s[0:1], {KA_WO}
    s_load_dwordx2 s[{S_WQ}:{S_WQ+1}], s[0:1], {KA_WQ}
    s_load_dwordx2 s[{S_WK}:{S_WK+1}], s[0:1], {KA_WK}
    s_load_dwordx2 s[{S_WV}:{S_WV+1}], s[0:1], {KA_WV}
    v_lshrrev_b32 v{V_T0}, 6, v0
    v_and_b32 v{V_L}, 63, v0
    v_readfirstlane_b32 s{S_WAVE}, v{V_T0}
    v_lshrrev_b32 v{V_G}, 4, v{V_L}
    v_and_b32 v{V_M}, 15, v{V_L}
    v_lshlrev_b32 v{V_LL}, 4, v{V_L}
    s_lshr_b32 s{S_T0}, s{S_T}, 2
    s_lshl_b32 s{S_H}, s{S_X}, 3
    s_add_u32 s{S_H}, s{S_H}, s{S_T0}
    s_and_b32 s{S_J}, s{S_T}, 3
    s_waitcnt lgkmcnt(0)
    s_mov_b32 s{S_M0+2}, 16384
    s_mov_b32 s{S_M0+3}, 0x00020000
    """)
    for s in (S_WO, S_WQ, S_WK, S_WV):
        a(f"s_mov_b32 s{s+2}, {8*MB}\ns_mov_b32 s{s+3}, 0x00020000")
    FULL = E("FULL", 0)
    CL = 2 + FULL
    a(f"""
    s_lshl_b32 s{S_T0}, s{S_H}, 8
    s_lshr_b32 s{S_T1}, s{S_J}, {FULL}
    s_lshl_b32 s{S_T1}, s{S_T1}, {6 + FULL}
    s_add_u32 s{S_T0}, s{S_T0}, s{S_T1}
    s_lshl_b32 s{S_T1}, s{S_WAVE}, 21
    s_add_u32 s{S_T0}, s{S_T0}, s{S_T1}
    v_lshrrev_b32 v{V_T0}, {CL}, v{V_L}
    v_and_b32 v{V_T1}, {(1 << CL) - 1}, v{V_L}
    v_lshlrev_b32 v40, 13, v{V_T0}
    v_lshl_add_u32 v40, v{V_T1}, 4, v40
    v_add_u32 v40, s{S_T0}, v40
    s_lshl_b32 s{S_T0}, s{S_X}, 21
    s_lshl_b32 s{S_T1}, s{S_WAVE}, 19
    s_add_u32 s{S_T0}, s{S_T0}, s{S_T1}
    s_lshr_b32 s{S_T1}, s{S_T}, {FULL}
    s_lshl_b32 s{S_T1}, s{S_T1}, {6 + FULL}
    s_add_u32 s{S_T0}, s{S_T0}, s{S_T1}
    v_lshlrev_b32 v41, 11, v{V_T0}
    v_lshl_add_u32 v41, v{V_T1}, 4, v41
    v_add_u32 v41, s{S_T0}, v41
    s_lshl_b32 s47, s{S_WAVE}, 15
    s_add_u32 s47, s47, {L_ST}
    """)
    order = [int(c) for c in os.environ.get("WORD", "1203")]
    PH = [(c, p) for c in order for p in range(1 << FULL)]
    RI = 64 >> CL

    def wdma(n):
        c, p = PH[n]
        srd = (S_WQ, S_WK, S_WV, S_WO)[c]
        if E("HELP", 1):
            a(f"buffer_load_dword v50, v{51 if c < 3 else 52}, s[{srd}:{srd+3}], 0 offen")
        for r in range(16):
            if E("PSW", 1):
                a(f"s_xor_b32 s{S_T1}, s76, {r}")
                a(f"s_lshl_b32 s{S_T0}, s{S_T1}, 10")
                a(f"s_add_u32 s{S_T0}, s{S_T0}, s47")
                a(f"s_add_u32 m0, s{S_T0}, {(n & 1)*16384}")
                a(f"s_lshl_b32 s{S_T1}, s{S_T1}, {17 if c < 3 else 15}")
            else:
                a(f"s_add_u32 m0, s47, {(n & 1)*16384 + 1024*r}")
                a(f"s_mov_b32 s{S_T1}, {RI * (16 * p + r) * (8192 if c < 3 else 2048)}")
            a(f"buffer_load_dwordx4 v{40 if c < 3 else 41}, s[{srd}:{srd+3}], s{S_T1} offen {'nt ' if (E('RNT', 0) >> c) & 1 else ''}lds")
    WT = E("WT", 0)
    assert not (WT and FULL)
    a(f"""
    s_lshl_b32 s{S_T0}, s{S_T}, 18
    s_lshl_b32 s{S_T1}, s{S_WAVE}, 16
    s_add_u32 s{S_T0}, s{S_T0}, s{S_T1}
    s_lshl_b32 s{S_T1}, s{S_X}, 11
    s_add_u32 s{S_T0}, s{S_T0}, s{S_T1}
    v_lshlrev_b32 v48, 13, v{V_G}
    v_lshl_add_u32 v48, v{V_M}, 7, v48
    v_add_u32 v48, s{S_T0}, v48
    s_lshl_b32 s{S_T0}, s{S_X}, 21
    s_lshl_b32 s{S_T1}, s{S_T}, 16
    s_add_u32 s{S_T0}, s{S_T0}, s{S_T1}
    s_lshl_b32 s{S_T1}, s{S_WAVE}, 14
    s_add_u32 s{S_T0}, s{S_T0}, s{S_T1}
    v_lshlrev_b32 v49, 7, v{V_L}
    v_add_u32 v49, s{S_T0}, v49
    """)

    a(f"""
    s_and_b32 s76, s{S_T}, 1
    s_mul_i32 s76, s76, {E("PSW", 1) * 8 if E("PSW", 1) < 2 else E("PSW", 1)}
    ; helper touch of the slow lines: row = 256w + 16*(l&15... ) : rows w*256 + (t&15)*16 + (l&15), col (t>>4)*1024 + 384
    s_and_b32 s{S_T0}, s{S_T}, 15
    s_lshl_b32 s{S_T0}, s{S_T0}, 4
    s_lshl_b32 s{S_T1}, s{S_WAVE}, 8
    s_add_u32 s{S_T0}, s{S_T0}, s{S_T1}
    v_add_u32 v53, s{S_T0}, v{V_M}
    s_lshr_b32 s{S_T0}, s{S_T}, 4
    s_lshl_b32 s{S_T0}, s{S_T0}, 10
    s_add_u32 s{S_T0}, s{S_T0}, 384
    v_mov_b32 v54, s{S_T0}
    v_mov_b32 v55, 1920
    v_cmp_gt_u32 vcc, 32, v{V_L}
    s_nop 1
    v_cndmask_b32 v54, v55, v54, vcc
    s_lshl_b32 s{S_T1}, s{S_X}, 11
    v_lshl_add_u32 v51, v53, 13, v54
    v_add_u32 v51, s{S_T1}, v51
    s_lshl_b32 s{S_T1}, s{S_X}, 21
    v_lshl_add_u32 v52, v53, 11, v54
    v_add_u32 v52, s{S_T1}, v52
    """)

    NSELF = E("NSELF", 0)
    XF, XA = 64, 192
    if NSELF:
        assert order[:2] == [1, 2] and not FULL
        a(f"""
        s_load_dwordx2 s[56:57], s[0:1], {KA_AX}
        v_lshrrev_b32 v56, 1, v{V_G}
        v_lshlrev_b32 v56, 5, v56
        v_and_b32 v57, 1, v{V_G}
        v_lshl_add_u32 v56, v57, 3, v56
        v_lshl_add_u32 v56, v{V_M}, 11, v56
        s_lshl_b32 s{S_T0}, s{S_WAVE}, 9
        v_add_u32 v56, s{S_T0}, v56
        s_mov_b32 s58, {4*MB}
        s_mov_b32 s59, 0x00020000
        s_waitcnt lgkmcnt(0)
        """)
        for zt in range(2 * NSELF):
            a(f"s_mov_b32 s{S_T1}, {zt * 32768}")
            for hk in range(8):
                f = XF + (zt * 8 + hk) * 4
                a(f"buffer_load_dwordx2 v[{f}:{f+1}], v56, s[56:59], s{S_T1} offen offset:{64*hk}")
                a(f"buffer_load_dwordx2 v[{f+2}:{f+3}], v56, s[56:59], s{S_T1} offen offset:{64*hk+16}")

    def selfproj(isV):
        if not isV:
            for f in range(16 * NSELF):
                a(f"v_swap_b32 v{XF+4*f+1}, v{XF+4*f+2}")
            a(f"""
            s_lshl_b32 s{S_T0}, s{S_WAVE}, 12
            v_add_u32 v57, s{S_T0}, v{V_LL}
            v_lshlrev_b32 v60, 3, v0
            v_add_u32 v60, {L_XB}, v60
            v_bfe_u32 v61, v0, 1, 4
            v_lshlrev_b32 v58, 4, v61                    ; m*16
            v_and_b32 v61, 1, v0
            v_lshrrev_b32 v62, 5, v0
            v_lshl_add_u32 v59, v61, 11, v58             ; V: tt*2048
            v_lshl_add_u32 v59, v62, 8, v59              ;   + u*1024 + g*256
            v_lshl_add_u32 v58, v61, 8, v58              ; K: hf*256
            v_lshl_add_u32 v58, v62, 9, v58              ;   + (tt*2048 + u*1024 + (g'&1)*512)
            """)
        for z in range(NSELF):
            for hk in range(8):
                for tt in range(2):
                    for u in range(2):
                        d, f = XA + 8 * tt + 4 * u, XF + ((2 * z + tt) * 8 + hk) * 4
                        w = A_W1 + (((2 if isV else 1) * 2 + u) * 4 + (hk >> 1)) * 8 + 4 * (hk & 1)
                        c = "0" if hk == 0 else f"v[{d}:{d+3}]"
                        if isV: a(f"v_mfma_f32_16x16x32_bf16 v[{d}:{d+3}], v[{f}:{f+3}], a[{w}:{w+3}], {c}")
                        else: a(f"v_mfma_f32_16x16x32_bf16 v[{d}:{d+3}], a[{w}:{w+3}], v[{f}:{f+3}], {c}")
            a("s_barrier")
            a.nops(8)
            for i in range(4):
                a(f"ds_write_b128 v57, v[{XA+4*i}:{XA+4*i+3}] offset:{1024*i}")
            a("s_waitcnt lgkmcnt(0)\ns_barrier")
            for w in range(4):
                a(f"ds_read_b128 v[{XA+16+4*w}:{XA+16+4*w+3}], v{59 if isV else 58} offset:{4096*w}")
            a("s_waitcnt lgkmcnt(0)")
            b = XA + 16
            for i in (0, 2):
                a(f"v_pk_add_f32 v[{b+i}:{b+i+1}], v[{b+i}:{b+i+1}], v[{b+4+i}:{b+4+i+1}]")
                a(f"v_pk_add_f32 v[{b+8+i}:{b+8+i+1}], v[{b+8+i}:{b+8+i+1}], v[{b+12+i}:{b+12+i+1}]")
            for i in (0, 2):
                a(f"v_pk_add_f32 v[{b+i}:{b+i+1}], v[{b+i}:{b+i+1}], v[{b+8+i}:{b+8+i+1}]")
            a(f"v_cvt_pk_bf16_f32 v{b+4}, v{b}, v{b+1}\nv_cvt_pk_bf16_f32 v{b+5}, v{b+2}, v{b+3}")
            a(f"ds_write_b64 v60, v[{b+4}:{b+5}] offset:{4096*z + (2048 if isV else 0)}")

    def wtouch(n):
        c, p = PH[n]
        srd = (S_WQ, S_WK, S_WV, S_WO)[c]
        for i in range(2):
            a(f"s_mov_b32 s{S_T1}, {i * (32768 if c < 3 else 8192)}")
            a(f"buffer_load_dword v50, v{48 if c < 3 else 49}, s[{srd}:{srd+3}], s{S_T1} offen")
    if WT == 1:
        wtouch(0); wtouch(1); wdma(0); wtouch(2); wdma(1); wtouch(3)
    elif WT == 2:
        wtouch(0); wtouch(1); wtouch(2); wtouch(3); wdma(0); wdma(1)
    else:
        wdma(0); wdma(1)
    a(f"""
    s_mov_b32 s{S_MN8}, 0x00ff00ff
    s_mov_b32 s{S_MN8+1}, 0x00ff00ff
    s_mov_b32 s{S_MKM}, 0xff00ff00
    s_mov_b32 s{S_MKM+1}, 0xff00ff00
    s_mov_b32 s{S_MMEM}, 0
    s_mov_b32 s{S_MMEM+1}, 0x00ff00ff
    s_mov_b32 s{S_C}, 0x3e0293ee
    v_mov_b32 v{V_NEG}, 0xff800000
    v_mov_b32 v{V_IDX}, 0x4444
    v_mov_b32 v{V_T0}, 0xeeee
    v_cndmask_b32 v{V_IDX}, v{V_IDX}, v{V_T0}, s[{S_MKM}:{S_MKM+1}]
    v_mov_b32 v{V_POI}, -1
    v_mov_b32 v{V_POI+1}, -1
    v_mov_b32 v{V_POI+2}, -1
    v_mov_b32 v{V_POI+3}, -1
    s_mul_i32 s{S_T0}, s{S_WAVE}, {4096 + WPAD}
    v_add_u32 v{V_OMEM}, s{S_T0}, v{V_LL}
    v_and_b32 v{V_T0}, 7, v{V_L}
    v_lshlrev_b32 v{V_OM0}, 11, v{V_T0}
    v_lshrrev_b32 v{V_T1}, 3, v{V_L}
    v_lshl_add_u32 v{V_OM0}, v{V_T1}, 4, v{V_OM0}
    s_lshl_b32 s{S_T0}, s{S_WAVE}, 9
    v_add_u32 v{V_OM0}, s{S_T0}, v{V_OM0}
    s_lshl_b32 s{S_T0}, s{S_T}, 9
    s_lshr_b32 s{S_T1}, s{S_T}, 3
    s_mul_i32 s{S_T1}, s{S_T1}, {WPAD}
    s_add_u32 s{S_T0}, s{S_T0}, s{S_T1}
    v_lshlrev_b32 v{V_OPUB}, 3, v{V_L}
    v_add_u32 v{V_OPUB}, s{S_T0}, v{V_OPUB}
    ; o publish: 16384 + t*512 + g*128 + (m&7)*16
    v_and_b32 v{V_T0}, 7, v{V_M}
    v_lshlrev_b32 v{V_OOP}, 7, v{V_G}
    v_lshl_add_u32 v{V_OOP}, v{V_T0}, 4, v{V_OOP}
    v_add_u32 v{V_OKV}, 0, v{V_OOP}              ; g*128 + (m&7)*16 (k_m publish)
    s_add_u32 s{S_T0}, s{S_T0}, {OXO}
    v_add_u32 v{V_OOP}, s{S_T0}, v{V_OOP}
    v_and_b32 v{V_T1}, 1, v{V_G}
    v_lshlrev_b32 v{V_OSCM}, 7, v{V_T1}
    v_lshl_add_u32 v{V_OSCM}, v{V_T0}, 4, v{V_OSCM}
    v_add_u32 v{V_OSCM}, 1024, v{V_OSCM}
    ; partner score offsets: 32768 + (t ^ p)*2048, own in S_P+3 (s47 later); kept relative to slot base
    """)
    for p in range(1, 4):
        a(f"""
        s_xor_b32 s{S_P+p-1}, s{S_T}, {p}
        s_mul_i32 s{S_P+p-1}, s{S_P+p-1}, {SCS}
        s_add_u32 s{S_P+p-1}, s{S_P+p-1}, {SCO}
        """)
    a(f"""
    ; LDS: q/k partial write: w*2304 + (4*(g&1))*144 + ((g>>1)*16 + m)*4
    v_and_b32 v{V_T0}, 1, v{V_G}
    v_mul_u32_u24 v{V_LWQ}, 576, v{V_T0}
    v_lshrrev_b32 v{V_T1}, 1, v{V_G}
    v_lshl_add_u32 v{V_T1}, v{V_T1}, 4, v{V_M}
    v_lshl_add_u32 v{V_LWQ}, v{V_T1}, 2, v{V_LWQ}
    s_mul_i32 s{S_T0}, s{S_WAVE}, 1152
    s_add_u32 s{S_T0}, s{S_T0}, {L_OP}
    v_add_u32 v{V_LWO}, s{S_T0}, v{V_LWQ}
    s_mul_i32 s{S_T0}, s{S_WAVE}, 2304
    v_add_u32 v{V_LWQ}, s{S_T0}, v{V_LWQ}
    v_add_u32 v{V_LWK}, 1152, v{V_LWQ}
    ; R read: m*144 + g*32
    v_mul_u32_u24 v{V_LRR}, 144, v{V_M}
    v_lshl_add_u32 v{V_LRR}, v{V_G}, 5, v{V_LRR}
    ; O partial read: L_OP + ((l>>1)&7)*144 + (2*(l>>4) + (l&1))*16
    v_bfe_u32 v{V_T0}, v{V_L}, 1, 3
    v_mul_u32_u24 v{V_LRO}, 144, v{V_T0}
    v_lshl_add_u32 v{V_LRO}, v{V_G}, 5, v{V_LRO}
    v_and_b32 v{V_T0}, 1, v{V_L}
    v_lshl_add_u32 v{V_LRO}, v{V_T0}, 4, v{V_LRO}
    v_add_u32 v{V_LRO}, {L_OP}, v{V_LRO}
    ; v partial write: L_VP + w*1024 + lane*16 ; read (tile u at +512u): L_VP + (l&31)*16
    s_lshl_b32 s{S_T0}, s{S_WAVE}, 10
    s_add_u32 s{S_T0}, s{S_T0}, {L_VP}
    v_add_u32 v{V_LVW}, s{S_T0}, v{V_LL}
    v_and_b32 v{V_T0}, 31, v{V_L}
    v_lshlrev_b32 v{V_LVR}, 3, v{V_T0}
    v_add_u32 v{V_LVR}, {L_VM}, v{V_LVR}
    v_lshrrev_b32 v{V_T0}, 2, v{V_M}             ; r
    v_and_b32 v42, 1, v{V_T0}                    ; r&1
    v_lshrrev_b32 v43, 1, v{V_T0}                ; r>>1
    v_lshrrev_b32 v44, 1, v{V_G}                 ; g>>1
    v_and_b32 v45, 1, v{V_G}                     ; g&1
    v_lshl_add_u32 v46, v44, 4, v42
    v_lshl_add_u32 v46, v45, 2, v46
    v_lshl_add_u32 v46, v43, 3, v46              ; W1 row
    v_lshl_add_u32 v47, v44, 3, v42
    v_lshl_add_u32 v47, v45, 4, v47
    v_lshl_add_u32 v47, v43, 2, v47
    v_and_b32 v{V_T1}, 3, v{V_M}
    v_lshlrev_b32 v{V_T1}, 3, v{V_T1}
    v_lshl_add_u32 v46, v46, {6 + FULL}, v{V_T1}
    v_lshl_add_u32 v47, v47, {6 + FULL}, v{V_T1}
    s_and_b32 s{S_T0}, s{S_T}, {FULL}
    s_lshl_b32 s{S_T0}, s{S_T0}, 6
    s_add_u32 s{S_T0}, s{S_T0}, s47
    v_add_u32 v46, s{S_T0}, v46
    v_add_u32 v47, s{S_T0}, v47
    """)

    def wtr(n):
        c, p = PH[n]
        nk = 4 >> FULL
        for u in range(2):
            for k in range(nk * p, nk * p + nk):
                d = (A_W1 + ((c * 2 + u) * 4 + k) * 8) if c < 3 else (A_WO + (u * 4 + k) * 8)
                for Pp in range(4):
                    off = (n & 1) * 16384 + ((64 * (k - nk * p) + 32 * (Pp >> 1) + 2 * (Pp & 1)) << (6 + FULL)) + 32 * u
                    a(f"ds_read_b64_tr_b16 a[{d+2*Pp}:{d+2*Pp+1}], v{46 if c < 3 else 47} offset:{off}")
                if k & 1:
                    a("s_waitcnt lgkmcnt(0)")
    for n in range(len(PH)):
        a(f"s_waitcnt vmcnt({(16 + E('HELP', 1) + ([4, 2, 0][n] if WT == 1 else 0)) if n + 1 < len(PH) else 0})")
        wtr(n)
        if n + 2 < len(PH): wdma(n + 2)
        if NSELF and n < 2: selfproj(n == 1)
    sync(V_T0)
    if TAG: a(f"""
    ; cross exchange: WS_H + slot*256K + src*64K + (t>>3)*16K + par*8K + (t&7)*1K
    s_lshr_b32 s{S_T0}, s{S_T}, 3
    s_lshl_b32 s{S_T0}, s{S_T0}, 14
    s_lshl_b32 s{S_T1}, s98, 13
    s_add_u32 s{S_T0}, s{S_T0}, s{S_T1}
    s_and_b32 s{S_T1}, s{S_T}, 7
    s_lshl_b32 s{S_T1}, s{S_T1}, 10
    s_add_u32 s{S_T0}, s{S_T0}, s{S_T1}
    s_lshl_b32 s{S_T1}, s{S_X}, 16
    s_add_u32 s{S_T0}, s{S_T0}, s{S_T1}
    s_add_u32 s{S_T0}, s{S_T0}, {WS_H}
    v_add_u32 v{V_OXW}, s{S_T0}, v{V_LL}
    v_xor_b32 v25, 0x10000, v{V_OXW}
    v_xor_b32 v26, 0x20000, v{V_OXW}
    v_xor_b32 v27, 0x30000, v{V_OXW}
    v_add_u32 v25, {(WS_XU - WS_H) * E("COPY3", 0)}, v25
    v_add_u32 v26, {(WS_XU - WS_H + 4 * MB) * E("COPY3", 0)}, v26
    v_add_u32 v27, {(WS_XU - WS_H + 8 * MB) * E("COPY3", 0)}, v27
    """)
    else: a(f"""
    s_lshr_b32 s{S_T0}, s{S_T}, 2
    s_xor_b32 s{S_T0}, s{S_T0}, s98
    s_and_b32 s{S_T0}, s{S_T0}, 1
    s_lshl_b32 s{S_T0}, s{S_T0}, 13
    s_lshl_b32 s{S_T1}, s{S_T}, 19
    s_add_u32 s{S_T0}, s{S_T0}, s{S_T1}
    s_lshl_b32 s{S_T1}, s{S_X}, 10
    s_add_u32 s{S_T0}, s{S_T0}, s{S_T1}
    s_add_u32 s{S_T0}, s{S_T0}, {WS_XU}
    v_add_u32 v{V_OXW}, s{S_T0}, v{V_LL}
    v_xor_b32 v25, 1024, v{V_OXW}
    v_xor_b32 v26, 2048, v{V_OXW}
    v_xor_b32 v27, 3072, v{V_OXW}
    """)
    a(f"""
    s_lshl_b32 s{S_T0}, s{S_H}, 2
    s_add_u32 s{S_T0}, s{S_T0}, s{S_J}
    s_mov_b32 s{S_CU}, s{S_T0}
    s_lshr_b32 s{S_T1}, s{S_T0}, 3
    s_xor_b32 s{S_T1}, s{S_T1}, s98
    {["", f"s_xor_b32 s{S_T1}, s{S_T1}, 1", f"s_xor_b32 s{S_T1}, s{S_T1}, s{S_T0}"][E("KVPAR", 0)]}
    s_and_b32 s{S_T1}, s{S_T1}, 1
    s_lshl_b32 s{S_T1}, s{S_T1}, 13
    s_lshl_b32 s76, s{S_T0}, 18
    s_add_u32 s76, s76, s{S_T1}
    s_mov_b32 s{S_KXB}, s76
    v_add_u32 v{TMP+8}, s76, v{V_LL}
    v_add_u32 v{TMP+9}, {WS_VT}, v{TMP+8}
    s_lshr_b32 s{S_T1}, s{S_T0}, 4
    s_xor_b32 s{S_T1}, s{S_T1}, s98
    s_and_b32 s{S_T1}, s{S_T1}, 1
    s_lshl_b32 s{S_T1}, s{S_T1}, 13
    s_lshl_b32 s{S_KVB}, s{S_T0}, 17
    s_add_u32 s{S_KVB}, s{S_KVB}, s{S_T1}
    s_add_u32 s{S_KVB}, s{S_KVB}, {WS_KVM}
    ; flags
    s_xor_b32 s{S_T1}, s98, 1
    s_lshl_b32 s{S_T1}, s{S_T1}, 13
    s_lshl_b32 s{S_T0}, s{S_H}, 7
    s_add_u32 s{S_T0}, s{S_T0}, s{S_T1}
    s_add_u32 s{S_T0}, s{S_T0}, {WS_F}
    v_and_b32 v{V_T0}, 1, v{V_L}
    v_lshlrev_b32 v{V_OFL}, 12, v{V_T0}
    v_add_u32 v{V_OFL}, s{S_T0}, v{V_OFL}
    s_lshl_b32 s{S_T1}, s{S_J}, 2
    v_add_u32 v{V_OFL}, s{S_T1}, v{V_OFL}
    s_xor_b32 s{S_FLB}, s98, 1
    s_lshl_b32 s{S_FLB}, s{S_FLB}, 13
    s_lshr_b32 s{S_T1}, s{S_CU}, 6
    s_lshl_b32 s{S_T1}, s{S_T1}, 14
    s_add_u32 s{S_FLB}, s{S_FLB}, s{S_T1}
    s_and_b32 s{S_T1}, s{S_CU}, 63
    s_lshl_b32 s{S_T1}, s{S_T1}, 7
    s_add_u32 s{S_FLB}, s{S_FLB}, s{S_T1}
    s_add_u32 s{S_FLB}, s{S_FLB}, {WS_F + F_KVM}
    v_mov_b32 v{ONE}, 0x3f803f80
    v_mov_b32 v{ONE+1}, 0x3f803f80
    v_mov_b32 v{ONE+2}, 0x3f803f80
    v_mov_b32 v{ONE+3}, 0x3f803f80
    v_mov_b32 v{ZER}, 0
    s_mov_b32 s{S_STEP}, 0
    s_mov_b32 s{S_KVN}, 0
    s_mov_b32 s{S_WARM}, 0
    s_mov_b32 s88, 0
    s_mov_b32 s{S_XBR}, {L_XB}
    s_mov_b32 s{S_XBW}, {L_XB + 4096 * NSELF}
    """)
    V_PK, V_PV = TMP + 8, TMP + 9
    pfn = [0]

    def prefetch(seg_sreg, part=3, chk=True, skip=None):
        i = pfn[0]; pfn[0] += 1
        if flags and chk:
            a(f"""
            s_cmp_gt_i32 s{S_KVN}, s{seg_sreg}
            s_cbranch_scc1 {name}_pf{i}ok
{name}_pf{i}w:
            """)
            wdog()
            a(f"""
            buffer_load_dword v{V_T0}, v{V_OFL}, {SRD}, 0 offen sc1
            s_waitcnt vmcnt(0)
            v_readlane_b32 s{S_KVN}, v{V_T0}, 0
            v_readlane_b32 s{S_T0}, v{V_T0}, 1
            s_nop 1
            s_min_i32 s{S_KVN}, s{S_KVN}, s{S_T0}
            s_cmp_gt_i32 s{S_KVN}, s{seg_sreg}
            s_cbranch_scc0 {skip or f"{name}_pf{i}w"}
{name}_pf{i}ok:
            """)
        if part is None: return
        a(f"""
        s_add_u32 s77, s{seg_sreg}, s{S_CU}
        s_bfe_u32 s{S_T0}, s77, 0x40002
        s_lshl_b32 s{S_T0}, s{S_T0}, 14
        s_and_b32 s77, s77, 3
        s_lshl_b32 s77, s77, 11
        s_add_u32 s{S_T0}, s{S_T0}, s77
        """)
        if part <= 0:
            a(f"s_add_u32 s{S_T0}, s{S_T0}, s{S_KXB}")
            if part < 0: a(f"s_add_u32 s{S_T0}, s{S_T0}, {WS_VT}")
            for l in range(16):
                a(f"s_buffer_load_dword s78, {SRD}, s{S_T0} offset:{128*l}")
            return
        for f in range(4):
            if not (part >> (f >> 1)) & 1: continue
            a(f"s_add_u32 m0, s{S_XBW}, {2048 * (f >> 1)}")
            a("s_nop 0")
            a(f"buffer_load_dwordx4 v{V_PK if f < 2 else V_PV}, {SRD}, s{S_T0} offen offset:{1024 * (f & 1)} sc1 lds")
        if part & 2: a(f"""
        s_add_u32 s{S_XBW}, s{S_XBW}, 4096
        s_cmp_eq_u32 s{S_XBW}, {L_XB + 3 * 4096}
        s_cselect_b32 s{S_XBW}, {L_XB}, s{S_XBW}
        """)

    def flag_store(val_sreg):
        a(f"""
        v_mov_b32 v{V_T1}, s{val_sreg}
        s_mov_b64 exec, 1
        buffer_store_dword v{V_T1}, v{ZER}, {SRD}, s{S_FLB} offen sc1
        s_mov_b64 exec, -1
        """)

    def zero(base, n):
        for i in range(n):
            a(f"v_mov_b32 v{base+i}, 0")

    if ts and E("BPROF", 0):
        ts(2)
        a(f"v_and_b32 v{V_L}, 63, v0\nv_lshrrev_b32 v{V_G}, 4, v{V_L}")
    a(f"s_cmp_eq_u32 s{S_WAVE}, 3\ns_cbranch_scc0 {name}_pfi")
    a(f"s_mov_b32 s76, 0")
    if not NSELF: prefetch(76)
    a("s_waitcnt vmcnt(0) lgkmcnt(0)")
    a.label(f"{name}_pfi")
    zero(PL, 24)
    zero(AQ, 24)
    a("s_barrier")
    if ts and E("BPROF", 0):
        ts(3)
        a(f"v_and_b32 v{V_L}, 63, v0\nv_lshrrev_b32 v{V_G}, 4, v{V_L}")
    stamp(0)

    def smf(d, areg, w):
        a(f"v_smfmac_f32_16x16x64_bf16 v[{d}:{d+3}], v[{areg}:{areg+3}], a[{w}:{w+7}], v{V_IDX}")

    def stream_poll(tag, base, soff, off0, two, work, first=None):
        def ld(i):
            a(f"buffer_load_dwordx4 v[{base+4*i}:{base+4*i+3}], v{V_OMEM}, {SRD}, s{soff} offen offset:{1024*i} sc1")
        G = E("GAP", 10)
        for i in range(4):
            ld(i)
            if i == 0 and first:
                first()
                if G > 5: a.nops(G - 5)
            elif i < 3 and G:
                a.nops(G)
        if E("RR", 1):
            def lab(S, i): return f"{name}_{tag}_{S}_{i}"
            def nxt(S, i):
                for d in range(1, 5):
                    if S >> ((i + d) & 3) & 1: return (i + d) & 3
            def chk(i):
                if two:
                    a(f"v_max_u32 v{V_T0}, v{base+4*i}, v{base+4*i+2}")
                    a(f"v_cmp_eq_u32 vcc, -1, v{V_T0}")
                else:
                    a(f"v_cmp_eq_u32 vcc, -1, v{base+4*i}")
            def block(S, i, fall):
                a.label(lab(S, i))
                a(f"s_waitcnt vmcnt({bin(S).count('1') - 1})")
                chk(i)
                a(f"s_cbranch_vccnz {lab(S, i)}f")
                work(i)
                if not fall:
                    S2 = S & ~(1 << i)
                    a(f"s_branch {lab(S2, nxt(S2, i)) if S2 else f'{name}_{tag}_d'}")
            fast = [(15, 0), (14, 1), (12, 2), (8, 3)]
            if E("HOIST", 1) and two:
                def cap(fn, *ar):
                    sv = a.lines; a.lines = []; fn(*ar); o = a.lines; a.lines = sv; return o
                a("s_waitcnt vmcnt(3)")
                chk(0)
                for n, (S, i) in enumerate(fast):
                    a(f"s_cbranch_vccnz {lab(S, i)}f")
                    wk = cap(work, i)
                    a.lines += wk[:3]
                    if i < 3:
                        a(f"s_waitcnt vmcnt({2 - i})")
                        chk(i + 1)
                    a.lines += wk[3:]
                fast = []
            for S, i in fast:
                block(S, i, True)
            a.label(f"{name}_{tag}_d")
            def stubs():
                for S in range(1, 16):
                    for i in range(4):
                        if not S >> i & 1: continue
                        a.label(lab(S, i) + "f")
                        if E("MSK", 1): a("s_mov_b64 exec, vcc")
                        ld(i)
                        if E("MSK", 1): a("s_mov_b64 exec, -1")
                        if bin(S).count('1') == 1 or i == nxt(S, 3): wdog()
                        a(f"s_branch {lab(S, nxt(S, i))}")
                        if (S, i) not in fast:
                            block(S, i, False)
            return stubs
        for i in range(4):
            a.label(f"{name}_{tag}{i}")
            a(f"s_waitcnt vmcnt({3-i})")
            if two:
                a(f"v_max_u32 v{V_T0}, v{base+4*i}, v{base+4*i+2}")
                a(f"v_cmp_eq_u32 vcc, -1, v{V_T0}")
            else:
                a(f"v_cmp_eq_u32 vcc, -1, v{base+4*i}")
            a(f"s_cbranch_vccnz {name}_{tag}r{i}")
            a.label(f"{name}_{tag}k{i}")
            work(i)
        def stubs():
            for i in range(4):
                a.label(f"{name}_{tag}r{i}")
                if prof: a(f"s_add_u32 s{62 if tag == 'pa' else 63}, s{62 if tag == 'pa' else 63}, 1")
                wdog()
                if not E("IMM", 1): a("s_waitcnt vmcnt(0)")
                for k in range(i, 4):
                    ld(k)
                a(f"s_branch {name}_{tag}{i}")
        return stubs

    def fold(t0, t1):
        for i in range(4):
            a(f"v_permlane32_swap_b32 v{t0+i}, v{t1+i}")
        a(f"v_pk_add_f32 v[{t0}:{t0+1}], v[{t0}:{t0+1}], v[{t1}:{t1+1}]")
        a(f"v_pk_add_f32 v[{t0+2}:{t0+3}], v[{t0+2}:{t0+3}], v[{t1+2}:{t1+3}]")

    def vwork(lo, hi):
        for n in range(lo, hi):
            i, u = n >> 1, n & 1
            smf(AV + 4 * u, MA + 4 * i, A_W1 + ((4 + u) * 4 + (i & 3)) * 8)

    def vfin():
        fold(AV, AV + 4)
        a(f"ds_write_b128 v{V_LVW}, v[{AV}:{AV+3}]")

    def rread():
        for w in range(4):
            for hh in range(2):
                d = RP + 8 * w + 4 * hh
                a(f"ds_read_b128 v[{d}:{d+3}], v{V_LRR} offset:{L_QK + 2304*w + 16*hh}")

    def rsum(dst):
        a("s_waitcnt lgkmcnt(4)")
        for i in range(0, 8, 2):
            a(f"v_pk_add_f32 v[{RP+i}:{RP+i+1}], v[{RP+i}:{RP+i+1}], v[{RP+8+i}:{RP+8+i+1}]")
        a("s_waitcnt lgkmcnt(0)")
        for i in range(0, 8, 2):
            a(f"v_pk_add_f32 v[{RP+16+i}:{RP+16+i+1}], v[{RP+16+i}:{RP+16+i+1}], v[{RP+24+i}:{RP+24+i+1}]")
        for i in range(0, 8, 2):
            a(f"v_pk_add_f32 v[{RP+i}:{RP+i+1}], v[{RP+i}:{RP+i+1}], v[{RP+16+i}:{RP+16+i+1}]")
        for i in range(4):
            a(f"v_cvt_pk_bf16_f32 v{dst+i}, v{RP+2*i}, v{RP+2*i+1}")

    S_FM = S_TAG
    def xuoff(dst, step):
        a(f"""
        s_add_u32 s{S_T0}, s{step}, s{S_T}
        s_and_b32 s77, s{S_T0}, 14
        s_and_b32 s{S_T0}, s{S_T0}, 1
        s_lshl_b32 s{S_T0}, s{S_T0}, 12
        s_and_b32 s{dst}, s{step}, 48
        s_or_b32 s{dst}, s{dst}, s77
        s_lshl_b32 s{dst}, s{dst}, 13
        s_add_u32 s{dst}, s{dst}, s{S_T0}
        """)

    def heads():
        a(f"""
        s_and_b32 s{S_T1}, s{S_STEP}, 1
        s_lshl_b32 s{S_SL}, s{S_T1}, 17
        s_lshl_b32 s{S_T0}, s{S_X}, 18
        s_add_u32 s{S_SL}, s{S_SL}, s{S_T0}
        s_add_u32 s{S_SL}, s{S_SL}, {WS_I}
        s_xor_b32 s{S_SLO}, s{S_SL}, {1 << 17}
        """)
        if TAG: a(f"""
        s_lshl_b32 s{S_XS}, s{S_T1}, 18
        s_bfe_u32 s{S_TAG}, s{S_STEP}, 0x10001
        """)
        else: xuoff(S_XS, S_STEP)
    heads()
    if E("PRIO", 0):
        a(f"s_cmp_eq_u32 s{S_WAVE}, 0\ns_cbranch_scc0 {name}_np\ns_setprio 3")
        a.label(f"{name}_np")
    a(f"s_branch {name}_first")

    def wa(i):
        for c in range(4):
            smf(AQ + 4 * c, MA + 4 * i, A_W1 + (c * 4 + (i & 3)) * 8)

    def xread():
        a(f"v_add_u32 v{V_T1}, s{S_XBR}, v{V_LL}")
        for f in range(4):
            a(f"ds_read_b128 v[{KX+4*f}:{KX+4*f+3}], v{V_T1} offset:{1024*f}")

    if E("AL", 2) >= 0:
        a(".p2align 6")
        for i in range(E("AL", 2)): a("s_nop 0")
    a.label(f"{name}_loop")
    stubs_a = stream_poll("pa", MA, S_SL, 0, True, wa, first=xread)
    a.label(f"{name}_adone")
    stamp(1)
    a.nops(6)
    fold(AQ, AQ + 4)
    a(f"ds_write2_b32 v{V_LWQ}, v{AQ}, v{AQ+1} offset0:0 offset1:36")
    a(f"ds_write2_b32 v{V_LWQ}, v{AQ+2}, v{AQ+3} offset0:72 offset1:108")
    fold(AQ + 8, AQ + 12)
    a(f"ds_write2_b32 v{V_LWK}, v{AQ+8}, v{AQ+9} offset0:0 offset1:36")
    a(f"ds_write2_b32 v{V_LWK}, v{AQ+10}, v{AQ+11} offset0:72 offset1:108")
    VE, VE2 = E("VE", 4), 8
    vwork(0, VE)
    a(f"""
    s_waitcnt lgkmcnt(0)
    s_barrier
    s_cmp_lg_u32 s{S_WAVE}, 0
    s_cbranch_scc1 {name}_side
    """)
    stamp(2)
    rread()
    vwork(VE, VE2)
    a(f"""
    s_mul_i32 s{S_T0}, s{S_T}, {SCS}
    s_add_u32 s{S_T0}, s{S_T0}, s{S_SL}
    s_add_u32 s{S_T0}, s{S_T0}, {SCO}
    s_add_u32 s76, s{S_P}, s{S_SL}
    s_add_u32 s77, s{S_P+1}, s{S_SL}
    s_add_u32 s78, s{S_P+2}, s{S_SL}
    """)
    rsum(R)
    a.nops(2)
    a(f"v_mfma_f32_16x16x32_bf16 v[{S+4}:{S+7}], v[{KX+4}:{KX+7}], v[{R}:{R+3}], 0")
    a(f"v_mfma_f32_16x16x32_bf16 v[{S}:{S+3}], v[{KX}:{KX+3}], v[{R}:{R+3}], 0")
    a(f"v_mfma_f32_16x16x32_bf16 v[{S+8}:{S+11}], v[{R}:{R+3}], v[{R}:{R+3}], 0")
    a(f"s_cmp_eq_u32 s{S_STEP}, {nsteps-1}")
    a(f"s_cbranch_scc1 {name}_w0last")
    if E("VF", 0) == 1: vfin()
    else: a.nops(5)
    for i in range(4):
        a(f"v_mov_b32_dpp v{S+i}, v{S+4+i} row_shr:8 row_mask:0xf bank_mask:0xc")
    a(f"""
    v_min_u32 v{S+8}, -2, v{S+8}
    v_min_u32 v{S}, -2, v{S}
    s_mov_b64 exec, s[{S_MMEM}:{S_MMEM+1}]
    buffer_store_dwordx4 v[{S+8}:{S+11}], v{V_OSCM}, {SRD}, s{S_T0} offen {IS}
    s_mov_b64 exec, -1
    buffer_store_dwordx4 v[{S}:{S+3}], v{V_LL}, {SRD}, s{S_T0} offen {IS}
    """)
    stamp(3)

    def p2ld():
        if E("P2K", 1):
            a(f"s_mov_b64 exec, s[{S_MMEM}:{S_MMEM+1}]")
            for p, so in enumerate((76, 77, 78)):
                a(f"buffer_load_dwordx4 v[{PL+8*p+4}:{PL+8*p+7}], v{V_OSCM}, {SRD}, s{so} offen sc1")
            a("s_mov_b64 exec, -1")
            for p, so in enumerate((76, 77, 78)):
                a(f"buffer_load_dwordx4 v[{PL+8*p}:{PL+8*p+3}], v{V_LL}, {SRD}, s{so} offen sc1")
            return
        for p, so in enumerate((76, 77, 78)):
            a(f"buffer_load_dwordx4 v[{PL+8*p}:{PL+8*p+3}], v{V_LL}, {SRD}, s{so} offen sc1")
            a(f"buffer_load_dwordx4 v[{PL+8*p+4}:{PL+8*p+7}], v{V_OSCM}, {SRD}, s{so} offen sc1")
    P2M = E("P2M", 0)
    if E("VF", 0) == 0: vfin()
    def p2fill():
        zero(AO, 8)
        for i in range(4):
            a(f"v_cndmask_b32 v{S+4+i}, v{V_NEG}, v{S+8+i}, s[{S_MMEM}:{S_MMEM+1}]")
    def p2scale():
        for i in range(0, 8, 2):
            a(f"v_pk_mul_f32 v[{S+i}:{S+i+1}], v[{S+i}:{S+i+1}], s[{S_C}:{S_C+1}] op_sel_hi:[1,0]")
    assert P2M == 0
    if P2M == 0:
        a("s_waitcnt lgkmcnt(0)\ns_barrier")
        p2fill()
        p2ld()
        p2scale()
        a.nops(20)
        p2ld()
    elif P2M == 1:
        if E("W2A", 0): a.nops(E("W2A", 0))
        p2ld()
        a("s_waitcnt lgkmcnt(0)\ns_barrier")
        p2fill()
        if E("W2", 0): a.nops(E("W2", 0))
        p2ld()
    elif P2M == 2:
        p2fill()
        p2ld()
        a("s_waitcnt lgkmcnt(0)\ns_barrier")
        if E("W2", 0): a.nops(E("W2", 0))
        p2ld()
    else:
        if E("W2A", 0): a.nops(E("W2A", 0))
        p2ld()
        a("s_waitcnt lgkmcnt(0)\ns_barrier")
        p2fill()
        for r in range(P2M - 1):
            p2ld()
            if r + 2 < P2M: a.nops(E("W2", 16))
    assert TAG
    stamp(4)
    a.label(f"{name}_p2")
    a(f"s_waitcnt vmcnt({6 * (max(P2M, 2) - 1)})")
    a(f"v_max3_u32 v{V_T0}, v{PL}, v{PL+4}, v{PL+8}")
    a(f"v_max3_u32 v{V_T1}, v{PL+12}, v{PL+16}, v{PL+20}")
    a(f"v_max_u32 v{V_T0}, v{V_T0}, v{V_T1}")
    a(f"v_cmp_eq_u32 vcc, -1, v{V_T0}")
    a(f"s_cbranch_vccnz {name}_p2r")
    stamp(5)
    BP = E("BP", 1)
    def b2b():
        a("s_barrier")
        a(f"ds_read2_b64 v[{VM}:{VM+3}], v{V_LVR} offset0:0 offset1:32")
    if BP == 0: b2b()
    for o in (4, 6, 0, 2):
        a(f"v_pk_add_f32 v[{RP+o}:{RP+o+1}], v[{PL+8+o}:{PL+8+o+1}], v[{PL+16+o}:{PL+16+o+1}]")
    for o in (4, 6, 0, 2):
        a(f"v_pk_add_f32 v[{RP+o}:{RP+o+1}], v[{RP+o}:{RP+o+1}], v[{PL+o}:{PL+o+1}]")
    for o in (4, 6, 0, 2):
        a(f"v_pk_fma_f32 v[{S+o}:{S+o+1}], v[{RP+o}:{RP+o+1}], s[{S_C}:{S_C+1}], v[{S+o}:{S+o+1}] op_sel_hi:[1,0,1]")
    MX, TM, SM = TMP, TMP + 1, TMP + 2
    a(f"""
    v_max3_f32 v{MX}, v{S}, v{S+1}, v{S+2}
    v_max3_f32 v{TM}, v{S+4}, v{S+5}, v{S+6}
    v_max3_f32 v{MX}, v{MX}, v{S+3}, v{S+7}
    v_max_f32 v{SM}, v{MX}, v{TM}
    """)
    if BP == 1: b2b()
    else: a("s_nop 1")
    a(f"""
    v_max_f32_dpp v{MX}, v{SM}, v{SM} row_ror:8 row_mask:0xf bank_mask:0xf
    v_max_f32_dpp v{TM}, v{SM}, v{SM} row_ror:8 row_mask:0xf bank_mask:0xf
    s_nop 1
    v_permlane16_swap_b32 v{MX}, v{TM}
    s_nop 0
    v_max_f32 v{SM}, v{MX}, v{TM}
    v_max_f32 v{SM+1}, v{MX}, v{TM}
    """)
    if BP == 2: b2b()
    else: a("s_nop 1")
    a(f"""
    v_permlane32_swap_b32 v{SM}, v{SM+1}
    s_nop 0
    v_max_f32 v{MX}, v{SM}, v{SM+1}
    """)
    for i in (4, 6, 0, 2):
        a(f"v_pk_add_f32 v[{S+i}:{S+i+1}], v[{S+i}:{S+i+1}], v[{MX}:{MX+1}] op_sel_hi:[1,0] neg_lo:[0,1] neg_hi:[0,1]")
    for i in (4, 5, 6, 7):
        a(f"v_exp_f32 v{S+i}, v{S+i}")
    a(f"""
    v_exp_f32 v{S}, v{S}
    v_cvt_pk_bf16_f32 v{PM}, v{S+4}, v{S+5}
    v_cvt_pk_bf16_f32 v{PM+1}, v{S+6}, v{S+7}
    v_exp_f32 v{S+1}, v{S+1}
    v_exp_f32 v{S+2}, v{S+2}
    v_mfma_f32_16x16x16_bf16 v[{LS}:{LS+3}], v[{ONE}:{ONE+1}], v[{PM}:{PM+1}], 0
    v_exp_f32 v{S+3}, v{S+3}
    v_cvt_pk_bf16_f32 v{P}, v{S}, v{S+1}
    s_waitcnt lgkmcnt(0)
    v_mfma_f32_16x16x16_bf16 v[{O}:{O+3}], v[{VM}:{VM+1}], v[{PM}:{PM+1}], 0
    v_cvt_pk_bf16_f32 v{P+1}, v{S+2}, v{S+3}
    v_mfma_f32_16x16x16_bf16 v[{O+4}:{O+7}], v[{VM+2}:{VM+3}], v[{PM}:{PM+1}], 0
    v_mov_b32_dpp v{P+2}, v{P} row_ror:8 row_mask:0xf bank_mask:0xf
    v_mov_b32_dpp v{P+3}, v{P+1} row_ror:8 row_mask:0xf bank_mask:0xf
    s_nop 1
    v_mfma_f32_16x16x32_bf16 v[{LS}:{LS+3}], v[{ONE}:{ONE+3}], v[{P}:{P+3}], v[{LS}:{LS+3}]
    v_mfma_f32_16x16x32_bf16 v[{O}:{O+3}], v[{VTX}:{VTX+3}], v[{P}:{P+3}], v[{O}:{O+3}]
    v_mfma_f32_16x16x32_bf16 v[{O+4}:{O+7}], v[{VTX+4}:{VTX+7}], v[{P}:{P+3}], v[{O+4}:{O+7}]
    s_add_u32 s{S_T1}, s{S_SL}, {OXO}
    s_nop 4
    v_rcp_f32 v{SM}, v{LS}
    s_nop 0
    """)
    for i in range(0, 8, 2):
        a(f"v_pk_mul_f32 v[{O+i}:{O+i+1}], v[{O+i}:{O+i+1}], v[{SM}:{SM+1}] op_sel_hi:[1,0]")
    for i in range(4):
        a(f"v_cvt_pk_bf16_f32 v{P+i}, v{O+2*i}, v{O+2*i+1}")
    a(f"""
    v_min_u32 v{P}, -2, v{P}
    s_mov_b64 exec, s[{S_MN8}:{S_MN8+1}]
    buffer_store_dwordx4 v[{P}:{P+3}], v{V_OOP}, {SRD}, s{S_SL} offen {IS}
    s_mov_b64 exec, -1
    """)
    NB3, NB5 = E("NB3", 0), E("NB5", 0)
    if NB3:
        stamp(6)
        if E("W3", 16): a.nops(E("W3", 16))
        a.label(f"{name}_b3")
    else:
        a.label(f"{name}_b3")
        a("s_barrier")
        stamp(6)
        if E("W3", 16): a.nops(E("W3", 16))

    def wc(i):
        for u in range(2):
            smf(AO + 4 * u, MO + 4 * i, A_WO + (u * 4 + i) * 8)
    stubs_c = stream_poll("pc", MO, S_T1, 0, False, wc)
    stamp(7)
    a.nops(8)
    fold(AO, AO + 4)
    a(f"ds_write2_b32 v{V_LWO}, v{AO}, v{AO+1} offset0:0 offset1:36")
    a(f"ds_write2_b32 v{V_LWO}, v{AO+2}, v{AO+3} offset0:72 offset1:108")
    a("s_waitcnt lgkmcnt(0)\ns_barrier")
    a(f"s_cmp_lg_u32 s{S_WAVE}, 0\ns_cbranch_scc1 {name}_x1")
    for w in range(4):
        a(f"ds_read_b128 v[{RP+4*w}:{RP+4*w+3}], v{V_LRO} offset:{1152*w}")
    a("s_waitcnt lgkmcnt(2)")
    for i in (0, 2):
        a(f"v_pk_add_f32 v[{RP+i}:{RP+i+1}], v[{RP+i}:{RP+i+1}], v[{RP+4+i}:{RP+4+i+1}]")
    a("s_waitcnt lgkmcnt(0)")
    for i in (0, 2):
        a(f"v_pk_add_f32 v[{RP+8+i}:{RP+8+i+1}], v[{RP+8+i}:{RP+8+i+1}], v[{RP+12+i}:{RP+12+i+1}]")
    for i in (0, 2):
        a(f"v_pk_add_f32 v[{RP+i}:{RP+i+1}], v[{RP+i}:{RP+i+1}], v[{RP+8+i}:{RP+8+i+1}]")
    X4 = 48
    A4 = E("A4", 0)
    def p4ld():
        for p in range(3):
            a(f"buffer_load_dwordx4 v[{X4+4*p}:{X4+4*p+3}], v{25+p}, {SRD}, s{S_XS} offen sc1")
    def maxall(regs):
        regs = list(regs)
        h = len(regs) // 2
        for t, rs in ((V_T0, regs[:h]), (V_T1, regs[h:])):
            a(f"v_max3_u32 v{t}, v{rs[0]}, v{rs[1]}, v{rs[2]}")
        k = 3
        while k < h:
            for t, rs in ((V_T0, regs[:h]), (V_T1, regs[h:])):
                if k + 1 < h: a(f"v_max3_u32 v{t}, v{t}, v{rs[k]}, v{rs[k+1]}")
                else: a(f"v_max_u32 v{t}, v{t}, v{rs[k]}")
            k += 2
        a(f"v_max_u32 v{V_T0}, v{V_T0}, v{V_T1}")
        a(f"v_cmp_eq_u32 vcc, -1, v{V_T0}")
    if TAG:
        for i in range(4):
            a(f"v_and_or_b32 v{RP+i}, v{RP+i}, -2, s{S_TAG}")
        if E("HALF", 0): a(f"s_mov_b64 exec, {hex((1 << E('HALF', 0)) - 1)}")
        if E("COPY3", 0):
            for p in range(3):
                a(f"s_add_u32 s76, s{S_XS}, {WS_XU - WS_H + p * 4 * MB}")
                a(f"buffer_store_dwordx4 v[{RP}:{RP+3}], v{V_OXW}, {SRD}, s76 offen sc1")
        else:
            a(f"buffer_store_dwordx4 v[{RP}:{RP+3}], v{V_OXW}, {SRD}, s{S_XS} offen sc1")
        stamp(8)
        a(f"s_xor_b32 s76, s{S_TAG}, 1")
        for i in range(12):
            a(f"v_mov_b32 v{X4+i}, s76")
        if E("HALF", 0): a("s_mov_b64 exec, -1")
        zero(AQ, 24)
        if E("HALF", 0): a(f"s_mov_b64 exec, {hex((1 << E('HALF', 0)) - 1)}")
        if E("XW", 16): a.nops(E("XW", 16))
        stamp(11)
        a(f"s_cmp_eq_u32 s{S_TAG}, 1\ns_cbranch_scc1 {name}_p4_1")
        def fin4():
            stamp(9)
            for i in (0, 2):
                a(f"v_pk_add_f32 v[{RP+i}:{RP+i+1}], v[{RP+i}:{RP+i+1}], v[{X4+i}:{X4+i+1}]")
                a(f"v_pk_add_f32 v[{RP+4+i}:{RP+4+i+1}], v[{X4+4+i}:{X4+4+i+1}], v[{X4+8+i}:{X4+8+i+1}]")
            for i in (0, 2):
                a(f"v_pk_add_f32 v[{RP+i}:{RP+i+1}], v[{RP+i}:{RP+i+1}], v[{RP+4+i}:{RP+4+i+1}]")
            a(f"""
            v_cvt_pk_bf16_f32 v{P}, v{RP}, v{RP+1}
            v_cvt_pk_bf16_f32 v{P+1}, v{RP+2}, v{RP+3}
            v_min_u32 v{P}, -2, v{P}
            buffer_store_dwordx2 v[{P}:{P+1}], v{V_OPUB}, {SRD}, s{S_SLO} offen {IS}
            """)
        R4 = E("R4", 1)
        for tg in range(2):
            a.label(f"{name}_p4_{tg}")
            wdog()
            p4ld()
            a(f"s_waitcnt vmcnt({E('Q4', 12)})")
            a.nops(A4)
            bo = "0xfe" if tg == 0 else "0x80"
            if R4 > 1: a(f"s_mov_b32 s76, {R4}")
            a.label(f"{name}_p4c_{tg}")
            if R4 > 1: a(f"s_sub_u32 s76, s76, 1\ns_cbranch_scc1 {name}_p4_{tg}")
            for t, b in ((V_T0, X4), (V_T1, X4 + 6)):
                a(f"v_bitop3_b32 v{t}, v{b}, v{b+1}, v{b+2} bitop3:{bo}")
            for t, b in ((V_T0, X4), (V_T1, X4 + 6)):
                a(f"v_bitop3_b32 v{t}, v{t}, v{b+3}, v{b+4} bitop3:{bo}")
            a(f"v_bitop3_b32 v{V_T0}, v{V_T0}, v{X4+5}, v{X4+11} bitop3:{bo}")
            a(f"v_bitop3_b32 v{V_T0}, v{V_T0}, v{V_T1}, 1 bitop3:{'0xa8' if tg == 0 else '0x80'}")
            a(f"v_cmp_ne_u32 vcc, {tg}, v{V_T0}")
            a(f"s_cbranch_vccnz {name}_p4{'c' if R4 > 1 else ''}_{tg}")
            fin4()
            if tg == 0: a(f"s_branch {name}_p4d")
        a.label(f"{name}_p4d")
    if E("LT", 0):
        a(f"s_cmp_eq_u32 s{S_STEP}, 8\ns_cbranch_scc0 {name}_lt\ns_memtime s[50:51]\ns_memrealtime s[52:53]")
        a.label(f"{name}_lt")
    a.label(f"{name}_b5")
    a(f"""
    s_add_u32 s{S_STEP}, s{S_STEP}, 1
    s_add_u32 s{S_XBR}, s{S_XBR}, 4096
    s_cmp_eq_u32 s{S_XBR}, {L_XB + 3 * 4096}
    s_cselect_b32 s{S_XBR}, {L_XB}, s{S_XBR}
    s_mov_b32 s{S_T0}, s{S_SL}
    s_mov_b32 s{S_SL}, s{S_SLO}
    s_mov_b32 s{S_SLO}, s{S_T0}
    {f"s_xor_b32 s{S_XS}, s{S_XS}, {1 << 18}" if TAG else ""}
    {f"s_bfe_u32 s{S_TAG}, s{S_STEP}, 0x10001" if TAG else ""}
    {"" if NB5 else "s_barrier"}
    """)
    stamp(10)
    if E("W1", 16): a.nops(E("W1", 16))
    a(f"s_branch {name}_loop")
    a.label(f"{name}_x1")
    stamp(11)
    if not E("NOKVM", 0):
        a(f"s_cmp_eq_u32 s{S_WAVE}, 1\ns_cbranch_scc0 {name}_x2\ns_add_u32 s76, s{S_STEP}, 1")
        flag_store(76)
        a.label(f"{name}_x2")
    a(f"""
    s_cmp_eq_u32 s{S_WAVE}, 3
    s_cbranch_scc0 {name}_x4
    s_cmp_eq_u32 s{S_LATE}, 1
    s_cbranch_scc0 {name}_x5
    s_add_u32 s76, s{S_STEP}, 1
    """)
    prefetch(76, 3)
    a(f"""
    s_waitcnt vmcnt(0)
{name}_x5:
    """)
    if E("RF4", 1):
        a(f"s_add_u32 s76, s{S_STEP}, 3\ns_min_u32 s76, s76, 63")
        prefetch(76, None, skip=f"{name}_x6")
        a.label(f"{name}_x6")
    a(f"""
    """)
    if not E("PB1", 1): a(f"""
    buffer_store_dwordx2 v[{V_POI}:{V_POI+1}], v{V_OPUB}, {SRD}, s{S_SL} offen {IS}
    s_mul_i32 s{S_T0}, s{S_T}, {SCS}
    s_add_u32 s{S_T0}, s{S_T0}, s{S_SL}
    s_add_u32 s{S_T0}, s{S_T0}, {SCO}
    buffer_store_dwordx4 v[{V_POI}:{V_POI+3}], v{V_LL}, {SRD}, s{S_T0} offen {IS}
    buffer_store_dwordx4 v[{V_POI}:{V_POI+3}], v{V_OSCM}, {SRD}, s{S_T0} offen {IS}
    """)
    a(f"""
    s_add_u32 s76, s{S_STEP}, 2
    s_cmp_lt_u32 s76, {nsteps-1}
    s_cbranch_scc0 {name}_x4
    {f"s_cmp_gt_i32 s{S_KVN}, s76" if flags else ""}
    s_cbranch_scc0 {name}_x4
    """)
    if not E("NOPF", 0):
        a(f"s_cmp_eq_u32 s88, s76\ns_cbranch_scc1 {name}_x7")
        prefetch(76, 0, False)
        a.label(f"{name}_x7")
        prefetch(76, -1, False)
        a(f"s_mov_b32 s{S_WARM}, s76")
    a.label(f"{name}_x4")
    zero(AQ, 24)
    if NB5: a(f"s_sleep {NB5}")
    a(f"s_branch {name}_b5")
    a.label(f"{name}_p2r")
    if prof: a("s_add_u32 s65, s65, 1")
    wdog()
    p2ld()
    a(f"s_branch {name}_p2")
    stubs_a()
    stubs_c()
    a.label(f"{name}_w0last")
    if E("LT", 0):
        a(f"""
        s_memtime s[54:55]
        s_memrealtime s[56:57]
        s_waitcnt lgkmcnt(0)
        s_sub_u32 s54, s54, s50
        s_sub_u32 s56, s56, s52
        v_mov_b32 v250, s54
        v_mov_b32 v251, s56
        s_lshl_b32 s80, s{S_CU}, 3
        s_add_u32 s80, s80, {WS_PROF + 14 * MB}
        buffer_store_dwordx2 v[250:251], v{ZER}, {SRD}, s80 offen
        """)
    a.nops(8)
    vfin()
    a("s_waitcnt lgkmcnt(0)\ns_barrier")
    a(f"s_branch {name}_end")
    a.label(f"{name}_side")
    if E("SV", 0): vwork(VE, 8)
    a(f"""
    s_cmp_eq_u32 s{S_WAVE}, 3
    s_cbranch_scc1 {name}_sd3
    s_cmp_eq_u32 s{S_WAVE}, 2
    s_cbranch_scc0 {name}_sd4
    s_mov_b64 exec, s[{S_MN8}:{S_MN8+1}]
    buffer_store_dwordx4 v[{V_POI}:{V_POI+3}], v{V_OOP}, {SRD}, s{S_SLO} offen {IS}
    s_mov_b64 exec, -1
    """)
    if E("PB1", 1): a(f"""
    buffer_store_dwordx2 v[{V_POI}:{V_POI+1}], v{V_OPUB}, {SRD}, s{S_SLO} offen {IS}
    s_mul_i32 s{S_T0}, s{S_T}, {SCS}
    s_add_u32 s{S_T0}, s{S_T0}, s{S_SLO}
    s_add_u32 s{S_T0}, s{S_T0}, {SCO}
    buffer_store_dwordx4 v[{V_POI}:{V_POI+3}], v{V_LL}, {SRD}, s{S_T0} offen {IS}
    buffer_store_dwordx4 v[{V_POI}:{V_POI+3}], v{V_OSCM}, {SRD}, s{S_T0} offen {IS}
    """)
    a(f"""
    s_branch {name}_sd4
{name}_sd3:
    s_mov_b32 s{S_LATE}, 0
    s_add_u32 s76, s{S_STEP}, 1
    s_cmp_lt_u32 s76, {nsteps-1}
    s_cbranch_scc0 {name}_sd4
    s_cmp_ge_u32 s76, {NSELF}
    s_cbranch_scc0 {name}_sd4
    {(f"s_cmp_eq_u32 s{S_WARM}, s76" if E("WARM", 0) else f"s_cmp_gt_i32 s{S_KVN}, s76") if flags else ""}
    s_cselect_b32 s{S_LATE}, 0, 1
    s_cbranch_scc0 {name}_sd4
    """)
    if not E("NOPF", 0): prefetch(76, 3, False)
    a.label(f"{name}_sd4")
    if not E("SV", 0): vwork(VE, 8)
    a.nops(8)
    vfin()
    zero(AO, 8)
    if not E("K2", 0):
        a(f"""
        s_cmp_eq_u32 s{S_WAVE}, 1
        s_cbranch_scc0 {name}_s1
        s_waitcnt lgkmcnt(0)
        """)
        rread()
        rsum(KVH)
        a.label(f"{name}_s1")
    a(f"""
    v_add_u32 v{V_T1}, {L_VP}, v{V_LL}
    s_waitcnt lgkmcnt(0)
    s_barrier
    s_cmp_eq_u32 s{S_WAVE}, 2
    s_cbranch_scc1 {name}_s2
    """)
    if E("K2", 0):
        a(f"s_cmp_eq_u32 s{S_WAVE}, 1\ns_cbranch_scc0 {name}_s1")
        rread()
        rsum(KVH)
        a(f"s_branch {name}_s3")
        a.label(f"{name}_s1")
    if E("KPF", 1) and not E("NOPF", 0):
        a(f"""
        s_cmp_eq_u32 s{S_WAVE}, 3
        s_cbranch_scc0 {name}_s3
        s_add_u32 s76, s{S_STEP}, 2
        s_cmp_lt_u32 s76, {nsteps-1}
        s_cbranch_scc0 {name}_s3
        {f"s_cmp_gt_i32 s{S_KVN}, s76" if flags else ""}
        s_cbranch_scc0 {name}_s3
        """)
        prefetch(76, 0, False)
        a(f"s_mov_b32 s88, s76")
    a(f"s_branch {name}_s3")
    a.label(f"{name}_s2")
    for w in range(4):
        a(f"ds_read_b128 v[{RP+4*w}:{RP+4*w+3}], v{V_T1} offset:{1024*w}")
    a(f"v_lshrrev_b32 v{V_T1}, 1, v{V_LL}")
    a("s_waitcnt lgkmcnt(2)")
    for i in (0, 2):
        a(f"v_pk_add_f32 v[{RP+i}:{RP+i+1}], v[{RP+i}:{RP+i+1}], v[{RP+4+i}:{RP+4+i+1}]")
    a("s_waitcnt lgkmcnt(0)")
    for i in (0, 2):
        a(f"v_pk_add_f32 v[{RP+8+i}:{RP+8+i+1}], v[{RP+8+i}:{RP+8+i+1}], v[{RP+12+i}:{RP+12+i+1}]")
    for i in (0, 2):
        a(f"v_pk_add_f32 v[{RP+i}:{RP+i+1}], v[{RP+i}:{RP+i+1}], v[{RP+8+i}:{RP+8+i+1}]")
    a(f"v_cvt_pk_bf16_f32 v{KVH}, v{RP}, v{RP+1}")
    a(f"v_cvt_pk_bf16_f32 v{KVH+1}, v{RP+2}, v{RP+3}")
    a(f"ds_write_b64 v{V_T1}, v[{KVH}:{KVH+1}] offset:{L_VM}")
    a("s_waitcnt lgkmcnt(0) vmcnt(0)")
    a.label(f"{name}_s3")
    a(f"""
    s_cmp_eq_u32 s{S_STEP}, {nsteps-1}
    s_cbranch_scc1 {name}_slast
    s_add_u32 s{S_T1}, s{S_SL}, {OXO}
    s_barrier
    """)

    def kv_pub(tag):
        a(f"""
        s_add_u32 s77, s{S_STEP}, s{S_CU}
        s_bfe_u32 s{S_T0}, s77, 0x30003
        s_lshl_b32 s{S_T0}, s{S_T0}, 14
        s_and_b32 s77, s77, 7
        s_lshl_b32 s77, s77, 10
        s_add_u32 s{S_T0}, s{S_T0}, s77
        s_add_u32 s{S_T0}, s{S_T0}, s{S_KVB}
        s_cmp_eq_u32 s{S_WAVE}, 2
        s_cbranch_scc1 {name}_kv2{tag}
        s_mov_b64 exec, s[{S_MKM}:{S_MKM+1}]
        buffer_store_dwordx4 v[{KVH}:{KVH+3}], v{V_OKV}, {SRD}, s{S_T0} offen sc1
        s_mov_b64 exec, -1
        s_branch {name}_kvd{tag}
{name}_kv2{tag}:
        v_lshlrev_b32 v{V_T0}, 3, v{V_L}
        buffer_store_dwordx2 v[{KVH}:{KVH+1}], v{V_T0}, {SRD}, s{S_T0} offen offset:512 sc1
{name}_kvd{tag}:
        """)
    a(f"s_cmp_eq_u32 s{S_WAVE}, 3\ns_cbranch_scc1 {name}_y3")
    if not E("NOKVM", 0):
        kv_pub("a")
    a(f"s_branch {name}_y4")
    a.label(f"{name}_y3")
    if not TAG:
        a(f"s_add_u32 s76, s{S_STEP}, 2\ns_and_b32 s76, s76, 63")
        xuoff(S_XS, 76)
        a(f"s_cmp_lt_u32 s76, 2\ns_cbranch_scc1 {name}_y4")
        a(f"buffer_store_dwordx4 v[{V_POI}:{V_POI+3}], v{V_OXW}, {SRD}, s{S_XS} offen sc1")
    a(f"""
    s_add_u32 s76, s{S_STEP}, 2
    s_cmp_lt_u32 s76, {nsteps-1}
    s_cbranch_scc0 {name}_y4
    """)
    if not E("NOPF", 0):
        if E("KPF", 1):
            if not E("RF4", 1):
                a(f"s_add_u32 s76, s{S_STEP}, 3")
                prefetch(76, None, skip=f"{name}_y4")
        else:
            prefetch(76, 0, skip=f"{name}_y4")
    a.label(f"{name}_y4")
    if NB3: a(f"s_sleep {NB3}")
    a(f"s_branch {name}_b3")
    a.label(f"{name}_first")
    for i in range(4):
        a(f"buffer_load_dwordx4 v[{MA+4*i}:{MA+4*i+3}], v{V_OM0}, s[{S_M0}:{S_M0+3}], 0 offen offset:{128*i}")
    xread()
    a("s_waitcnt vmcnt(0)")
    for i in range(4):
        wa(i)
    a.nops(2)
    a(f"s_branch {name}_adone")
    a.label(f"{name}_slast")
    a(f"s_cmp_eq_u32 s{S_WAVE}, 3\ns_cbranch_scc1 {name}_end")
    kv_pub("b")
    a(f"s_waitcnt vmcnt(0)\ns_barrier\ns_mov_b32 s76, {nsteps}\ns_cmp_eq_u32 s{S_WAVE}, 1\ns_cbranch_scc0 {name}_end")
    flag_store(76)
    a.label(f"{name}_end")
    if ts: ts(4)
    if prof:
        a(f"""
        s_lshl_b32 s{S_T0}, s{S_X}, 5
        s_add_u32 s{S_T0}, s{S_T0}, s{S_T}
        s_lshl_b32 s{S_T0}, s{S_T0}, 2
        s_add_u32 s{S_T0}, s{S_T0}, s{S_WAVE}
        s_lshl_b32 s{S_T0}, s{S_T0}, 6
        s_add_u32 s{S_T0}, s{S_T0}, {WS_PROF}
        v_mov_b32 v{V_T1}, 0
        s_mov_b64 exec, 1
        """)
        for i in range(16):
            a(f"v_mov_b32 v{V_T0}, s{50+i}")
            a(f"buffer_store_dword v{V_T0}, v{V_T1}, {SRD}, s{S_T0} offen offset:{4*i}")
            a("s_nop 1")
    a("s_endpgm")


def gen_rec_standalone(a: Asm, name, prof=False, force_slow=False):
    a.kernel_begin(name)
    a(f"s_cmp_ge_u32 s2, 256\ns_cbranch_scc1 {name}_exit")
    start_code(a, name)
    a(f"""
    s_sub_u32 s40, s90, 6
    s_lshl_b32 s40, s40, 5
    s_add_u32 s40, s40, s96
    s_cmp_lt_u32 s90, 4
    s_cbranch_scc0 {name}_oth
    s_mov_b32 s{S_X}, s90
    s_mov_b32 s{S_T}, s96
    """)
    rec_body(a, name + "_f", "", lambda vt: sync_code(a, name, "r", vt), prof=prof, flags=False)
    a.label(f"{name}_oth")
    a(f"s_cmp_lt_u32 s40, {NI}\ns_cbranch_scc0 {name}_exit")
    init_cd(a, name, 40)
    a.label(f"{name}_slowent")
    a.label(f"{name}_exit")
    a("s_endpgm")
    return kd(name, 512, sgpr=102, accum=256)


if __name__ == "__main__":
    import sys
    a = Asm()
    name = "rec_kernel"
    k = gen_rec_standalone(a, name, prof=("prof" in sys.argv), force_slow=("slow" in sys.argv))
    out = HEADER + f"; @launch kernel={name} grid=(256,1,1) block=(256,1,1) lds=163840\n"
    out += '.amdgcn_target "amdgcn-amd-amdhsa--gfx950"\n.text\n' + a.text() + '.section .rodata,"a"\n' + k
    open(os.environ.get("OUT", "rec.s"), "w").write(out)
```

```python
from gen_common import *
from gen_rec import S_WSD, S_DBG, E, sync_issue

W = S_WSD
SRD = f"s[{W}:{W+3}]"
S_H = 40
S_WAVE, S_SEG, S_T0, S_T1, S_T2 = 41, 42, 43, 44, 45
S_WM, S_XM = 4, 8
V_L, V_T0, V_T1, V_T2, V_LL = 1, 2, 3, 4, 5


def wdog(a, name):
    wd_code(a, name + ":" + a.lines[-1], f"s{S_SEG}")


def tsx(a, ts, i):
    if E("BPROF", 0):
        ts(i)
        a(f"v_and_b32 v{V_L}, 63, v0")


def pst(i):
    if not E("KPROF", 0): return []
    return ["s_memtime s[76:77]", "s_waitcnt lgkmcnt(0)", "s_sub_u32 s78, s76, s31", f"s_add_u32 s{32+i}, s{32+i}, s78", "s_mov_b32 s31, s76"]


def pinit(a):
    if not E("KPROF", 0): return
    for i in range(8): a(f"s_mov_b32 s{32+i}, 0")
    a("s_memtime s[76:77]\ns_waitcnt lgkmcnt(0)\ns_mov_b32 s31, s76")


def pdump(a):
    if not E("KPROF", 0): return
    a(f"s_lshl_b32 s78, s2, 7\ns_lshl_b32 s77, s{S_WAVE}, 5\ns_add_u32 s78, s78, s77\ns_add_u32 s78, s78, {WS_PROF + 9*MB}\nv_mov_b32 v2, 0\ns_mov_b64 exec, 1")
    for i in range(8):
        a(f"v_mov_b32 v3, s{32+i}\nbuffer_store_dword v3, v2, {SRD}, s78 offen offset:{4*i}\ns_nop 1")
    a("s_mov_b64 exec, -1")


def common(a, ka_w, ka_x, xbytes):
    a(f"""
    s_load_dwordx2 s[{S_WM}:{S_WM+1}], s[0:1], {ka_w}
    s_load_dwordx2 s[{S_XM}:{S_XM+1}], s[0:1], {ka_x}
    v_lshrrev_b32 v{V_T0}, 6, v0
    v_and_b32 v{V_L}, 63, v0
    v_readfirstlane_b32 s{S_WAVE}, v{V_T0}
    v_lshlrev_b32 v{V_LL}, 4, v{V_L}
    s_waitcnt lgkmcnt(0)
    s_mov_b32 s{S_WM+2}, {8*MB}
    s_mov_b32 s{S_WM+3}, 0x00020000
    s_mov_b32 s{S_XM+2}, {xbytes}
    s_mov_b32 s{S_XM+3}, 0x00020000
    """)


def load_weights(a, rowlog, s_base, lane_addr, frag_off, rot=None, cl=2, touch=False):
    a(f"""
    v_lshrrev_b32 v{V_T0}, {cl}, v{V_L}
    v_and_b32 v{V_T1}, {(1 << cl) - 1}, v{V_L}
    v_lshlrev_b32 v16, {rowlog}, v{V_T0}
    v_lshl_add_u32 v16, v{V_T1}, 4, v16
    v_add_u32 v16, s{s_base}, v16
    v_and_b32 v{V_T1}, 3, v{V_L}
    s_lshl_b32 s{S_T2}, s{S_WAVE}, 15
    """)
    RI = 64 >> cl
    a(lane_addr)
    a(f"v_add_u32 v17, s{S_T2}, v17")

    HELP = 1 if (touch and E("BHELP", 1)) else 0
    if HELP:
        a(f"""
        s_and_b32 s{S_T0}, s{S_H}, 3
        s_lshl_b32 s{S_T0}, s{S_T0}, 2
        s_add_u32 s{S_T0}, s{S_T0}, s{S_WAVE}
        s_lshl_b32 s{S_T0}, s{S_T0}, 4
        v_and_b32 v23, 15, v{V_L}
        v_add_u32 v23, s{S_T0}, v23
        s_lshr_b32 s{S_T0}, s{S_H}, 2
        s_lshl_b32 s{S_T0}, s{S_T0}, 10
        s_add_u32 s{S_T1}, s{S_T0}, 896
        s_add_u32 s{S_T0}, s{S_T0}, 384
        s_cmp_ge_u32 s{S_H}, 28
        s_cselect_b32 s{S_T1}, s{S_T1}, s{S_T0}
        v_mov_b32 v24, s{S_T0}
        v_mov_b32 v25, s{S_T1}
        v_cmp_gt_u32 vcc, 32, v{V_L}
        s_nop 1
        v_cndmask_b32 v24, v25, v24, vcc
        v_lshl_add_u32 v23, v23, 13, v24
        """)

    def dma(ch):
        if HELP:
            a(f"s_mov_b32 s{S_T1}, {ch * 2 * MB}\nbuffer_load_dword v22, v23, s[{S_WM}:{S_WM+3}], s{S_T1} offen")
        for r in range(16):
            a(f"s_add_u32 m0, s{S_T2}, {(ch & 1)*16384 + 1024*r}")
            if rot is None:
                a(f"s_mov_b32 s{S_T1}, {(RI * (16 * ch + r)) << rowlog}")
            else:
                a(f"s_add_u32 s{S_T1}, s{rot}, {RI * (16 * ch + r)}\ns_and_b32 s{S_T1}, s{S_T1}, {64 * RI - 1}\ns_lshl_b32 s{S_T1}, s{S_T1}, {rowlog}")
            a(f"buffer_load_dwordx4 v16, s[{S_WM}:{S_WM+3}], s{S_T1} offen {'nt ' if E('BNT', 0) else ''}lds")

    def tr(ch):
        for f in range(16 * ch, 16 * ch + 16):
            for jj in range(2):
                o = frag_off(f, jj) - 16384 * ch
                assert 0 <= o < 16384
                a(f"ds_read_b64_tr_b16 a[{4*f+2*jj}:{4*f+2*jj+1}], v17 offset:{(ch & 1)*16384 + o}")
            if f % 4 == 3:
                a("s_waitcnt lgkmcnt(0)")
    WT = E("BWT", 0) if touch else 0
    if WT:
        a(f"""
        s_lshl_b32 s{S_T0}, s{S_H}, 16
        s_lshl_b32 s{S_T1}, s{S_WAVE}, 14
        s_add_u32 s{S_T0}, s{S_T0}, s{S_T1}
        v_lshlrev_b32 v21, 7, v{V_L}
        v_add_u32 v21, s{S_T0}, v21
        """)
    def tch(n):
        for i in range(2):
            a(f"s_mov_b32 s{S_T1}, {n * 2 * MB + i * 8192}")
            a(f"buffer_load_dword v22, v21, s[{S_WM}:{S_WM+3}], s{S_T1} offen")
    if WT == 1:
        tch(0); tch(1); dma(0); tch(2); dma(1); tch(3)
    elif WT == 2:
        tch(0); tch(1); tch(2); tch(3); dma(0); dma(1)
    else:
        dma(0); dma(1)
    a(f"s_waitcnt vmcnt({(20 if WT == 1 else 16) + HELP})"); tr(0); dma(2)
    a(f"s_waitcnt vmcnt({(18 if WT == 1 else 16) + HELP})"); tr(1); dma(3)
    a("s_waitcnt vmcnt(16)"); tr(2)
    a("s_waitcnt vmcnt(0)"); tr(3)
    a("s_barrier")


def lane32(hi_mul, swap=False, rl=6):
    if swap:
        return lane32(hi_mul).replace(f"v_lshl_add_u32 v17, v{V_T1}, 3, v17", f"""
        v_and_b32 v18, 1, v{V_L}
        v_lshl_add_u32 v17, v18, 4, v17
        v_bfe_u32 v18, v{V_L}, 1, 1
        v_lshl_add_u32 v17, v18, 3, v17""")
    return f"""
    v_bfe_u32 v17, v{V_L}, 2, 2
    v_lshrrev_b32 v18, 5, v{V_L}
    v_mul_u32_u24 v18, {hi_mul}, v18
    v_add_u32 v17, v17, v18
    v_lshlrev_b32 v17, {rl}, v17
    v_bfe_u32 v18, v{V_L}, 4, 1
    v_lshl_add_u32 v17, v18, 5, v17
    v_lshl_add_u32 v17, v{V_T1}, 3, v17
    """


def lane16(qlog):
    return f"""
    v_bfe_u32 v17, v{V_L}, 2, 2
    v_lshrrev_b32 v18, 4, v{V_L}
    v_lshl_add_u32 v17, v18, 3, v17
    v_lshlrev_b32 v17, 6, v17
    v_lshl_add_u32 v17, v{V_T1}, {qlog}, v17
    """


M32 = E('M32', 0)
GR2 = 512 if M32 else 1024
V_DX, V_RA, V_ST = 6, 8, 7
FR, NFR, AHEAD = 20, 8, 6
ACC = (52, 68)
EP = 84
S_XB = 46
S_CU, S_OB, S_FL = 47, 48, 49
S_OX, S_OM = 68, 69
S_O0, S_O1, S_OI, S_OT = 64, 65, 66, 67


def proj_setup(a, ka_w, swap, two=False):
    assert not M32
    common(a, ka_w, KA_AX, 4 * MB)
    a(f"""
    s_lshl_b32 s{S_T0}, s{S_H}, 8
    s_lshl_b32 s{S_T1}, s{S_WAVE}, 6
    s_add_u32 s{S_OB}, s{S_T0}, s{S_T1}
    s_and_b32 s{S_T0}, s{S_OB}, 0x7ff
    v_add_u32 v19, s{S_T0}, v{V_L}
    v_lshlrev_b32 v19, 7, v19
    s_mov_b32 s{S_T0}, {0x20000 if two else 0}
    buffer_load_dword v250, v19, s[{S_XM}:{S_XM+3}], s{S_T0} offen
    s_nop 0
    """)
    a(f"""
    v_lshrrev_b32 v{V_T0}, 3, v{V_L}
    s_lshl_b32 s{S_T0}, s{S_WAVE}, 3
    v_add_u32 v{V_T0}, s{S_T0}, v{V_T0}
    v_bfe_u32 v{V_T1}, v{V_T0}, 1, 3
    v_and_b32 v{V_T2}, 7, v{V_L}
    v_xor_b32 v{V_T1}, v{V_T1}, v{V_T2}
    v_lshlrev_b32 v{V_DX}, 11, v{V_T0}
    v_lshl_add_u32 v{V_DX}, v{V_T1}, 4, v{V_DX}
    s_lshl_b32 s{S_XB}, s{S_WAVE}, 10
    v_and_b32 v{V_T0}, 15, v{V_L}
    v_bfe_u32 v{V_T1}, v{V_T0}, 1, 3
    v_lshrrev_b32 v{V_T2}, 4, v{V_L}
    v_xor_b32 v{V_T1}, v{V_T1}, v{V_T2}
    v_lshlrev_b32 v{V_RA}, 7, v{V_T0}
    v_lshl_add_u32 v{V_RA}, v{V_T1}, 4, v{V_RA}
    v_xor_b32 v{V_RA+1}, 64, v{V_RA}
    v_add_u32 v{V_RA+2}, 0x10000, v{V_RA}
    v_add_u32 v{V_RA+3}, 0x10000, v{V_RA+1}
    v_mov_b32 v{V_ST}, v{V_LL}
    """)
    if M32:
        a(f"""
        v_and_b32 v{V_T0}, 31, v{V_L}
        v_bfe_u32 v{V_T1}, v{V_T0}, 1, 3
        v_lshrrev_b32 v{V_T2}, 5, v{V_L}
        v_xor_b32 v{V_T1}, v{V_T1}, v{V_T2}
        v_lshlrev_b32 v{V_RA}, 7, v{V_T0}
        v_lshl_add_u32 v{V_RA}, v{V_T1}, 4, v{V_RA}
        v_xor_b32 v{V_RA+1}, 32, v{V_RA}
        v_xor_b32 v{V_RA+2}, 64, v{V_RA}
        v_xor_b32 v{V_RA+3}, 96, v{V_RA}
        v_add_u32 v{V_RA+4}, 0x10000, v{V_RA}
        v_add_u32 v{V_RA+5}, 0x10000, v{V_RA+1}
        v_add_u32 v{V_RA+6}, 0x10000, v{V_RA+2}
        v_add_u32 v{V_RA+7}, 0x10000, v{V_RA+3}
        v_bfe_u32 v{V_T1}, v{V_L}, 4, 1
        v_lshlrev_b32 v{V_ST}, 10, v{V_T1}
        v_lshl_add_u32 v{V_ST}, v{V_T2}, 8, v{V_ST}
        v_and_b32 v{V_T1}, 15, v{V_L}
        v_lshl_add_u32 v{V_ST}, v{V_T1}, 4, v{V_ST}
        """)
    a(f"""
    s_lshl_b32 s{S_CU}, s{S_H}, 2
    s_add_u32 s{S_CU}, s{S_CU}, s{S_WAVE}
    s_mov_b32 s{S_SEG}, 0
    s_mov_b32 s50, 0
    """)
    for g in xdma_lines(0, 50):
        a("\n".join(g))
    if two:
        a("s_mov_b32 s50, 0x10000")
        for g in xdma_lines(1, 50):
            a("\n".join(g))
    NC, RG, NI_, CB = (16, 2, 4, 4096) if two else (8, 3, 8, 8192)
    a(f"""
    v_lshrrev_b32 v{V_T0}, 2, v{V_L}
    v_and_b32 v{V_T1}, 3, v{V_L}
    v_lshlrev_b32 v16, 13, v{V_T0}
    v_lshl_add_u32 v16, v{V_T1}, 4, v16
    v_add_u32 v16, s{S_OB}, v16
    s_mul_i32 s{S_T2}, s{S_WAVE}, {RG * CB}
    s_add_u32 s{S_T2}, s{S_T2}, {131072 if two else 65536}
    """)
    a(lane16(4 if swap else 3))
    a(f"""
    v_add_u32 v17, s{S_T2}, v17
    s_and_b32 s{S_T0}, s{S_H}, 3
    s_lshl_b32 s{S_T0}, s{S_T0}, 2
    s_add_u32 s{S_T0}, s{S_T0}, s{S_WAVE}
    s_lshl_b32 s{S_T0}, s{S_T0}, 3
    v_and_b32 v12, 7, v{V_L}
    v_add_u32 v12, s{S_T0}, v12
    s_lshr_b32 s{S_T0}, s{S_H}, 2
    s_lshl_b32 s{S_T0}, s{S_T0}, 10
    s_add_u32 s{S_T1}, s{S_T0}, 896
    s_add_u32 s{S_T0}, s{S_T0}, 384
    s_cmp_ge_u32 s{S_H}, 28
    s_cselect_b32 s{S_T1}, s{S_T1}, s{S_T0}
    v_mov_b32 v13, s{S_T0}
    v_mov_b32 v14, s{S_T1}
    v_cmp_gt_u32 vcc, 32, v{V_L}
    s_nop 1
    v_cndmask_b32 v13, v14, v13, vcc
    v_lshl_add_u32 v12, v12, 13, v13
    """)

    def hastouch(ch):
        return (not two) or ch % 2 == 0

    def dma(ch):
        if hastouch(ch):
            a(f"s_mov_b32 s{S_T1}, {(ch // 2 if two else ch) * MB}\nbuffer_load_dword v250, v12, s[{S_WM}:{S_WM+3}], s{S_T1} offen")
        for r in range(NI_):
            a(f"s_add_u32 m0, s{S_T2}, {(ch % RG)*CB + 1024*r}")
            a(f"s_mov_b32 s{S_T1}, {(16 * (NI_ * ch + r)) << 13}")
            a(f"buffer_load_dwordx4 v16, s[{S_WM}:{S_WM+3}], s{S_T1} offen lds")
    for ch in range(RG): dma(ch)
    for ch in range(NC):
        a(f"s_waitcnt vmcnt({sum(NI_ + hastouch(c) for c in range(ch + 1, min(ch + RG, NC)))})")
        if ch == 0: a("s_barrier")
        for f in range(NI_ * ch, NI_ * ch + NI_):
            for jj in range(2):
                o = (32 * ((f >> 1) - NI_ // 2 * ch) + 4 * jj) * 64 + (f & 1) * (8 if swap else 32)
                a(f"ds_read_b64_tr_b16 a[{4*f+2*jj}:{4*f+2*jj+1}], v17 offset:{(ch % RG)*CB + o}")
            if f % 4 == 3: a("s_waitcnt lgkmcnt(0)")
        if two and ch == NC - RG - 1: sync_issue(a, 246)
        if ch + RG < NC: dma(ch + RG)
        work = [(z, n) for z in range(2 if two else 1) for n in range(NI_ * ch, NI_ * ch + NI_)]
        for i, (z, n) in enumerate(work):
            k = n >> 1
            a(f"ds_read_b128 v[{FR+4*i}:{FR+4*i+3}], v{V_RA + 2*z + (k & 1)} offset:{4096*(k >> 1) + 2048*(n & 1)}")
        a("s_waitcnt lgkmcnt(0)")
        for i, (z, n) in enumerate(work):
            k, tt, f = n >> 1, n & 1, FR + 4 * i
            for u in range(2):
                d, w = ACC[z] + 8 * tt + 4 * u, 4 * (2 * k + u)
                c = "0" if k == 0 else f"v[{d}:{d+3}]"
                if swap: a(f"v_mfma_f32_16x16x32_bf16 v[{d}:{d+3}], a[{w}:{w+3}], v[{f}:{f+3}], {c}")
                else: a(f"v_mfma_f32_16x16x32_bf16 v[{d}:{d+3}], v[{f}:{f+3}], a[{w}:{w+3}], {c}")
    if not two:
        a("s_barrier\ns_mov_b32 s50, 0x10000")
        for g in xdma_lines(1, 50):
            a("\n".join(g))


def xdma_lines(buf, s_off):
    out = []
    for kb in range(16):
        out.append([f"s_add_u32 m0, s{S_XB}, {buf*65536 + kb*3968}", "s_nop 0",
                    f"buffer_load_dwordx4 v{V_DX}, s[{S_XM}:{S_XM+3}], s{s_off} offen offset:{128*kb} lds"])
    return out


def proj_segment(a, buf, acc, wA, fill, stg=None):
    def rd(n):
        f = FR + 4 * (n % NFR)
        k = n >> 1
        if M32:
            a(f"ds_read_b128 v[{f}:{f+3}], v{V_RA + 4*buf + (n & 3)} offset:{4096*(n >> 2)}")
        else:
            a(f"ds_read_b128 v[{f}:{f+3}], v{V_RA + 2*buf + (k & 1)} offset:{4096*(k >> 1) + 2048*(n & 1)}")
    for n in range(AHEAD):
        rd(n)
    for l in fill.get(-1, []):
        a(l)
    for n in range(64):
        f = FR + 4 * (n % NFR)
        k, tt = n >> 1, n & 1
        fl = list(fill.get(n, []))
        if fl and "m0" in fl[0] and fl[1] == "s_nop 0":
            a(fl[0]); fl = fl[2:]
        if not (E("LG2", 1) and n % 2 == 1 and n + AHEAD < 64):
            a(f"s_waitcnt lgkmcnt({min(AHEAD, 64 - n) - 1 - (1 if E('LG2', 1) and n + 1 + AHEAD < 64 else 0)})")
        if M32:
            c = "0" if n == 0 else f"v[{acc}:{acc+15}]"
            if wA:
                a(f"v_mfma_f32_32x32x16_bf16 v[{acc}:{acc+15}], a[{4*n}:{4*n+3}], v[{f}:{f+3}], {c}")
            else:
                a(f"v_mfma_f32_32x32x16_bf16 v[{acc}:{acc+15}], v[{f}:{f+3}], a[{4*n}:{4*n+3}], {c}")
            if n + AHEAD < 64:
                rd(n + AHEAD)
        for u in range(0 if M32 else 2):
            d = acc + 8 * tt + 4 * u
            w = 4 * (2 * k + u)
            c = "0" if k == 0 else f"v[{d}:{d+3}]"
            if stg is not None and k == 31: d += stg - acc
            if wA:
                a(f"v_mfma_f32_16x16x32_bf16 v[{d}:{d+3}], a[{w}:{w+3}], v[{f}:{f+3}], {c}")
            else:
                a(f"v_mfma_f32_16x16x32_bf16 v[{d}:{d+3}], v[{f}:{f+3}], a[{w}:{w+3}], {c}")
            if u == 0 and n + AHEAD < 64:
                rd(n + AHEAD)
        for l in fl:
            a(l)


def pack_lines(acc, isV):
    src = [0, 2, 8, 10, 4, 6, 12, 14] if isV else [0, 2, 4, 6, 8, 10, 12, 14]
    return [f"v_cvt_pk_bf16_f32 v{EP+i}, v{acc+s}, v{acc+s+1}" for i, s in enumerate(src)]


def kvx(cu):
    m = E("KVPAR", 0)
    return ["", f"s_xor_b32 s{S_T1}, s{S_T1}, 1", f"s_xor_b32 s{S_T1}, s{S_T1}, s{cu}"][m]


def near_base(a, dst, cu, log, region):
    a(f"""
    s_lshr_b32 s{S_T1}, s{cu}, {21 - log}
    s_xor_b32 s{S_T1}, s{S_T1}, s98
    {kvx(cu) if log == 18 else ""}
    s_and_b32 s{S_T1}, s{S_T1}, 1
    s_lshl_b32 s{S_T1}, s{S_T1}, 13
    s_lshl_b32 s{dst}, s{cu}, {log}
    s_add_u32 s{dst}, s{dst}, s{S_T1}
    s_add_u32 s{dst}, s{dst}, {region}
    """)


def kv_role(a: Asm, name, isV, ts, sync):
    TWO = E('TWO', 1)
    proj_setup(a, KA_WV if isV else KA_WK, not isV, two=TWO)
    tsx(a, ts, 2)
    def store_lines():
        return [f"s_add_u32 s51, s{S_SEG}, s{S_CU}", "s_sub_u32 s51, s51, 1", "s_bfe_u32 s52, s51, 0x40002", "s_lshl_b32 s52, s52, 14",
                "s_and_b32 s51, s51, 3", "s_lshl_b32 s51, s51, 11", "s_add_u32 s51, s51, s52", f"s_add_u32 s51, s51, s{S_OB}",
                f"buffer_store_dwordx4 v[{EP}:{EP+3}], v{V_ST}, {SRD}, s51 offen sc1",
                f"buffer_store_dwordx4 v[{EP+4}:{EP+7}], v{V_ST}, {SRD}, s51 offen offset:{GR2} sc1"]

    def flag_lines():
        return [f"v_mov_b32 v17, s{S_SEG}", "s_mov_b64 exec, 1", f"buffer_store_dword v17, v16, {SRD}, s{S_FL} offen sc1", "s_mov_b64 exec, -1"]

    def seg(buf, first):
        a("\n".join(pst(0)))
        a(f"s_waitcnt vmcnt({0 if first else 2})")
        a("\n".join(pst(1)))
        a("s_barrier")
        a("\n".join(pst(2)))
        a(f"s_add_u32 s50, s{S_SEG}, 1\ns_min_u32 s50, s50, 63\ns_lshl_b32 s50, s50, 16")
        fill = {}
        if not first:
            pk = pack_lines(ACC[1 - buf], isV)
            fill[0] = pk[:3]; fill[1] = pk[3:6]; fill[2] = pk[6:]
            st = store_lines()
            fill[3] = st[:4]; fill[4] = st[4:9]; fill[5] = st[9:]
            fill[E("FG", 42)] = pst(3) + ["s_waitcnt vmcnt(16)"] + pst(4) + flag_lines()
        fill[E("FG", 42) + 2] = [f"s_add_u32 s53, s{S_SEG}, 3", "s_min_u32 s53, s53, 63", "s_lshl_b32 s53, s53, 16",
                    "s_mov_b64 exec, 0xffff", f"buffer_load_dword v250, v19, s[{S_XM}:{S_XM+3}], s53 offen", "s_mov_b64 exec, -1"]
        for i, g in enumerate(xdma_lines(1 - buf, 50)):
            fill[7 + 2 * i] = g
        proj_segment(a, buf, ACC[buf], not isV, fill)
        a(f"s_add_u32 s{S_SEG}, s{S_SEG}, 1")
        if E("EARLY", 0):
            a(f"s_cmp_le_u32 s{S_SEG}, {E('EARLY', 0)}\ns_cbranch_scc0 {name}_ne{buf}")
            a.nops(8)
            a("\n".join(pack_lines(ACC[buf], isV) + store_lines() + ["s_waitcnt vmcnt(0)"] + flag_lines()))
            a.label(f"{name}_ne{buf}")
    a(f"s_and_b32 s53, s{S_CU}, 31\ns_lshl_b32 s53, s53, 4\nv_add_u32 v19, s53, v{V_L}\nv_lshlrev_b32 v19, 7, v19")
    pinit(a)
    a(f"s_mov_b32 s{S_SEG}, 1")
    if TWO: sync(246, True)
    else: sync(V_T0)
    tsx(a, ts, 3)
    near_base(a, S_OB, S_CU, 18, WS_VT if isV else WS_KX)
    a(f"""
    s_xor_b32 s{S_T1}, s98, 1
    s_lshl_b32 s{S_T1}, s{S_T1}, 13
    s_lshl_b32 s{S_FL}, s{S_H}, 7
    s_add_u32 s{S_FL}, s{S_FL}, s{S_T1}
    s_lshl_b32 s{S_T1}, s{S_WAVE}, 2
    s_add_u32 s{S_FL}, s{S_FL}, s{S_T1}
    s_add_u32 s{S_FL}, s{S_FL}, {WS_F + (F_V if isV else F_K)}
    v_mov_b32 v16, 0
    """)

    if TWO:
        a("\n".join(pack_lines(ACC[0], isV) + store_lines() + [f"s_mov_b32 s{S_SEG}, 2", "s_nop 1"] + pack_lines(ACC[1], isV) + store_lines()))
        a("s_barrier\ns_mov_b32 s50, 0x20000")
        for g in xdma_lines(0, 50):
            a("\n".join(g))
        a("\n".join(["s_waitcnt vmcnt(16)"] + flag_lines() + ["s_waitcnt vmcnt(1)"]))
        a(f"s_branch {name}_mid")
    else:
        a("\n".join(pack_lines(ACC[0], isV) + store_lines() + ["s_waitcnt vmcnt(0)"] + flag_lines()))
    a.label(f"{name}_loop")
    seg(1, False)
    a(f"s_cmp_eq_u32 s{S_SEG}, 64\ns_cbranch_scc1 {name}_fin")
    a.label(f"{name}_mid")
    seg(0, False)
    a(f"s_branch {name}_loop")
    a.label(f"{name}_fin")
    a.nops(12)
    a("\n".join(pack_lines(ACC[1], isV) + store_lines() + ["s_waitcnt vmcnt(0)"] + flag_lines()))
    pdump(a)
    a("s_waitcnt vmcnt(0)\ns_barrier")


def qx_role(a: Asm, name, ts, sync):
    if E('NI', 64) == 64: sync(V_T0)
    proj_setup(a, KA_WQ, True)
    if E('NI', 64) == 32: sync(V_T0)
    tsx(a, ts, 3)
    L_Q, L_KV, L_KM = 131072, 139264, 155648
    S_NT, S_EH, S_C, S_KVN, S_KMN = 52, 53, 54, 55, 56
    S_KB, S_MB, S_LK, S_LM = 58, 59, 60, 61
    S_MK = 12
    V_G, V_M, V_OKM, V_OVM, V_OO, V_NEG, V_CM, V_OF, V_OF2, V_QW, V_QR = 92, 93, 94, 95, 96, 97, 98, 99, 100, 101, 102
    ONE, LS = 104, 108
    V_KR, V_VR = 103, 240
    KX, VT, KM, VM, Q, S, P, O, TMP = 112, 144, 160, 176, 184, 200, 212, 220, 236
    a(f"""
    v_lshrrev_b32 v{V_G}, 4, v{V_L}
    v_and_b32 v{V_M}, 15, v{V_L}
    s_and_b32 s{S_NT}, s{S_WAVE}, 1
    s_lshr_b32 s{S_EH}, s{S_WAVE}, 1
    s_mov_b32 s{S_C}, 0x3e0293ee
    s_mov_b32 s{S_KVN}, 0
    s_mov_b32 s{S_KMN}, 0
    v_mov_b32 v{V_NEG}, 0xff800000
    v_mov_b32 v241, 0xceabdc6e
    v_and_b32 v{V_T0}, 7, v{V_M}
    v_lshlrev_b32 v{V_OKM}, 7, v{V_G}
    v_lshl_add_u32 v{V_OKM}, v{V_T0}, 4, v{V_OKM}
    v_and_b32 v{V_T0}, 31, v{V_L}
    v_lshlrev_b32 v{V_OVM}, 3, v{V_T0}
    v_lshrrev_b32 v{V_T0}, 1, v{V_G}
    v_lshlrev_b32 v{V_OO}, 10, v{V_T0}
    v_and_b32 v{V_T0}, 1, v{V_G}
    v_lshl_add_u32 v{V_OO}, v{V_T0}, 9, v{V_OO}
    v_lshl_add_u32 v{V_OO}, v{V_M}, 4, v{V_OO}
    s_lshl_b32 s{S_T0}, s{S_H}, 13
    s_lshl_b32 s{S_T1}, s{S_EH}, 12
    s_add_u32 s{S_T0}, s{S_T0}, s{S_T1}
    s_lshl_b32 s{S_T1}, s{S_NT}, 8
    s_add_u32 s{S_T0}, s{S_T0}, s{S_T1}
    s_add_u32 s{S_T0}, s{S_T0}, {WS_O}
    v_add_u32 v{V_OO}, s{S_T0}, v{V_OO}
    s_lshl_b32 s{S_T0}, s{S_NT}, 4
    v_add_u32 v{V_CM}, s{S_T0}, v{V_M}
    v_lshlrev_b32 v{V_T0}, 2, v{V_G}
    v_sub_u32 v{V_CM}, v{V_CM}, v{V_T0}
    s_mov_b32 s28, 0
    s_mov_b32 s29, -1
    s_xor_b32 s{S_T1}, s98, 1
    s_lshl_b32 s{S_T1}, s{S_T1}, 13
    s_lshl_b32 s{S_T0}, s{S_H}, 7
    s_add_u32 s{S_T0}, s{S_T0}, s{S_T1}
    s_add_u32 s{S_T0}, s{S_T0}, {WS_F}
    v_and_b32 v{V_T0}, 3, v{V_L}
    v_bfe_u32 v{V_T1}, v{V_L}, 2, 1
    v_lshlrev_b32 v{V_OF}, 12, v{V_T1}
    v_lshl_add_u32 v{V_OF}, v{V_T0}, 2, v{V_OF}
    v_add_u32 v{V_OF}, s{S_T0}, v{V_OF}
    s_xor_b32 s62, s98, 1
    s_lshl_b32 s62, s62, 13
    s_lshr_b32 s{S_T1}, s{S_CU}, 6
    s_lshl_b32 s{S_T1}, s{S_T1}, 14
    s_add_u32 s62, s62, s{S_T1}
    s_and_b32 s{S_T1}, s{S_CU}, 63
    s_lshl_b32 s{S_T1}, s{S_T1}, 7
    s_add_u32 s62, s62, s{S_T1}
    s_add_u32 s62, s62, {WS_F + F_KVM}
    s_lshl_b32 s{S_FL}, s{S_H}, 7
    s_lshl_b32 s{S_T1}, s{S_WAVE}, 2
    s_add_u32 s{S_FL}, s{S_FL}, s{S_T1}
    s_lshl_b32 s{S_T1}, s98, 13
    s_add_u32 s{S_FL}, s{S_FL}, s{S_T1}
    s_add_u32 s{S_FL}, s{S_FL}, {WS_F + F_O}
    s_lshl_b32 s{S_T0}, s{S_WAVE}, 11
    s_add_u32 s{S_T0}, s{S_T0}, {L_Q}
    v_add_u32 v{V_QW}, s{S_T0}, v{V_ST}
    s_lshl_b32 s{S_T0}, s{S_NT}, 10
    s_add_u32 s{S_T0}, s{S_T0}, {L_Q}
    v_add_u32 v{V_QR}, s{S_T0}, v{V_LL}
    v_mov_b32 v16, 0
    s_mov_b32 s50, 0
    """)
    for i in range(4):
        a(f"v_mov_b32 v{ONE+i}, 0x3f803f80")
    for t in range(2):
        for r in range(4):
            a(f"v_cmp_gt_i32 s[{S_MK+8*t+2*r}:{S_MK+8*t+2*r+1}], {16*t+r}, v{V_CM}")
    near_base(a, S_KB, S_CU, 18, WS_KX)
    near_base(a, S_MB, S_CU, 17, WS_KVM)
    a(f"""
    s_lshl_b32 s{S_LK}, s{S_WAVE}, 11
    s_add_u32 s{S_LK}, s{S_LK}, {L_KV}
    s_lshl_b32 s{S_LM}, s{S_WAVE}, 10
    s_add_u32 s{S_LM}, s{S_LM}, {L_KM}
    v_add_u32 v{V_OKM}, {L_KM}, v{V_OKM}
    s_lshl_b32 s{S_T0}, s{S_EH}, 11
    s_add_u32 s{S_T0}, s{S_T0}, {L_KM + 512}
    v_add_u32 v{V_OVM}, s{S_T0}, v{V_OVM}
    v_add_u32 v{V_KR}, {L_KV}, v{V_LL}
    s_lshl_b32 s{S_T0}, s{S_EH}, 12
    s_add_u32 s{S_T0}, s{S_T0}, {L_KV + 8192}
    v_add_u32 v{V_VR}, s{S_T0}, v{V_LL}
    """)
    a("s_waitcnt vmcnt(0)")

    def wait_flag(tag, known, voff, sleep):
        a(f"""
        s_cmp_gt_i32 s{known}, s{S_SEG}
        s_cbranch_scc1 {name}_{tag}k
{name}_{tag}w:
        """)
        wdog(a, name)
        if E("KAP", 1):
            a(f"v_mov_b32 v{V_T0}, 0\ns_mov_b64 exec, 0xff\nbuffer_atomic_add v{V_T0}, v{voff}, {SRD}, 0 offen sc0 sc1\ns_mov_b64 exec, -1")
        else:
            a(f"buffer_load_dword v{V_T0}, v{voff}, {SRD}, 0 offen sc1")
        a(f"""
        s_waitcnt vmcnt(0)
        v_min_i32_dpp v{V_T0}, v{V_T0}, v{V_T0} quad_perm:[1,0,3,2] row_mask:0xf bank_mask:0xf
        s_nop 1
        v_min_i32_dpp v{V_T0}, v{V_T0}, v{V_T0} quad_perm:[2,3,0,1] row_mask:0xf bank_mask:0xf
        s_nop 1
        v_min_i32_dpp v{V_T0}, v{V_T0}, v{V_T0} row_half_mirror row_mask:0xf bank_mask:0xf
        s_nop 0
        v_readfirstlane_b32 s{known}, v{V_T0}
        s_cmp_gt_i32 s{known}, s{S_SEG}
        s_cbranch_scc1 {name}_{tag}k
        s_sleep {sleep}
        s_branch {name}_{tag}w
{name}_{tag}k:
        """)

    def flag_lines():
        return [f"v_mov_b32 v17, s{S_SEG}", "s_mov_b64 exec, 1", f"buffer_store_dword v17, v16, {SRD}, s{S_FL} offen sc1", "s_mov_b64 exec, -1"]

    def kmpoll_lines():
        if E("APOLL", 1):
            return [f"v_mov_b32 v{V_OF2}, 0", "s_mov_b64 exec, 1", f"buffer_atomic_add v{V_OF2}, v16, {SRD}, s62 offen sc0 sc1", "s_mov_b64 exec, -1"]
        return [f"buffer_load_dword v{V_OF2}, v16, {SRD}, s62 offen sc1"]

    def km_lines():
        return [f"s_mov_b32 m0, s{S_LM}", "s_nop 0", f"buffer_load_dwordx4 v{V_LL}, {SRD}, s68 offen sc1 lds"]

    def seg(buf):
        a("s_barrier")
        a("\n".join(pst(0)))
        wait_flag(f"kv{buf}", S_KVN, V_OF, 4)
        sal = f"""s_add_u32 s51, s{S_CU}, s{S_SEG}
        s_bfe_u32 s57, s51, 0x40002
        s_lshl_b32 s57, s57, 14
        s_and_b32 s66, s51, 3
        s_lshl_b32 s66, s66, 11
        s_add_u32 s66, s66, s57
        s_add_u32 s66, s66, s{S_KB}
        s_add_u32 s67, s66, {WS_VT}
        s_bfe_u32 s57, s51, 0x30003
        s_lshl_b32 s57, s57, 14
        s_and_b32 s68, s51, 7
        s_lshl_b32 s68, s68, 10
        s_add_u32 s68, s68, s57
        s_add_u32 s68, s68, s{S_MB}
        s_add_u32 s50, s{S_SEG}, 2
        s_min_u32 s50, s50, 63
        s_lshl_b32 s50, s50, 16
        s_cmp_gt_i32 s{S_KMN}, s{S_SEG}
        s_cselect_b32 s30, 1, 0""".split("\n")
        fill = {-1: sal}
        for i in range(4):
            fill[2 * i] = [f"s_add_u32 m0, s{S_LK}, {8192 * (i >> 1)}", "s_nop 0",
                           f"buffer_load_dwordx4 v{V_LL}, {SRD}, s{66 + (i >> 1)} offen offset:{1024 * (i & 1)} sc1 lds"]
        fill[8] = ["s_cmp_eq_u32 s30, 1", f"s_cbranch_scc0 {name}_ke{buf}"] + km_lines() + [f"{name}_ke{buf}:"]
        for i, g in enumerate(xdma_lines(1 - (buf & 1), 50)):
            fill[10 + 2 * i] = g
        a("\n".join(pst(1)))
        fill[27] = ["s_waitcnt vmcnt(13)"] + flag_lines()
        fill[29] = kmpoll_lines()
        pk = pack_lines(ACC[1], False)
        for i in range(4): fill[43 + 2 * i] = pk[2*i:2*i+2]
        fill[54] = ["s_waitcnt vmcnt(6)", f"v_readfirstlane_b32 s{S_KMN}, v{V_OF2}", "s_cmp_eq_u32 s30, 1", f"s_cbranch_scc1 {name}_kf{buf}",
                    f"s_cmp_gt_i32 s{S_KMN}, s{S_SEG}", f"s_cbranch_scc0 {name}_kf{buf}", "s_mov_b32 s30, 1"] + km_lines() + [f"{name}_kf{buf}:"]
        fill[61] = [f"ds_write_b128 v{V_QW}, v[{EP}:{EP+3}]", f"ds_write_b128 v{V_QW}, v[{EP+4}:{EP+7}] offset:{GR2}"]
        if buf == 0:
            a(f"s_cmp_eq_u32 s{S_SEG}, 63\ns_cbranch_scc0 {name}_nl")
            for i in (-1, 0, 2, 4, 6, 8, 43, 45, 47, 49, 61):
                a("\n".join(fill[i]).replace(f"{name}_ke0", f"{name}_ke2"))
            a("\n".join(["s_waitcnt vmcnt(4)"] + flag_lines()))
            a(f"s_branch {name}_jl")
            a.label(f"{name}_nl")
        proj_segment(a, buf, ACC[0], True, fill, stg=ACC[1])
        if buf == 0: a.label(f"{name}_jl")
        a("\n".join(pst(2)))
        a(f"s_cmp_eq_u32 s30, 1\ns_cbranch_scc1 {name}_kl{buf}")
        a.label(f"{name}_kw{buf}")
        wdog(a, name)
        a("\n".join(kmpoll_lines()))
        a(f"""
        s_waitcnt vmcnt(0)
        v_readfirstlane_b32 s{S_KMN}, v{V_OF2}
        s_cmp_gt_i32 s{S_KMN}, s{S_SEG}
        s_cbranch_scc0 {name}_kw{buf}
        """)
        a("\n".join(km_lines()))
        a.label(f"{name}_kl{buf}")
        a("\n".join(pst(4)))
        a(f"""
        s_waitcnt lgkmcnt(0) vmcnt(0)
        s_barrier
        """)
        a("\n".join(pst(5)))
        for j in range(4):
            a(f"ds_read_b128 v[{Q+4*j}:{Q+4*j+3}], v{V_QR} offset:{2048*j}")
            for t in range(2):
                a(f"ds_read_b128 v[{KX+16*t+4*j}:{KX+16*t+4*j+3}], v{V_KR} offset:{2048*j + 1024*t}")
        for j in range(4):
            a(f"s_waitcnt lgkmcnt({9 - 2*j})")
            for t in range(2):
                c = "0" if j == 0 else f"v[{S+4*t}:{S+4*t+3}]"
                a(f"v_mfma_f32_16x16x32_bf16 v[{S+4*t}:{S+4*t+3}], v[{KX+16*t+4*j}:{KX+16*t+4*j+3}], v[{Q+4*j}:{Q+4*j+3}], {c}")
            a(f"ds_read_b128 v[{KM+4*j}:{KM+4*j+3}], v{V_OKM} offset:{1024*j}")
        for j in range(4):
            a(f"s_waitcnt lgkmcnt({3 + j})")
            c = "0" if j == 0 else f"v[{S+8}:{S+11}]"
            a(f"v_mfma_f32_16x16x32_bf16 v[{S+8}:{S+11}], v[{KM+4*j}:{KM+4*j+3}], v[{Q+4*j}:{Q+4*j+3}], {c}")
            a(f"ds_read_b128 v[{VT+4*j}:{VT+4*j+3}], v{V_VR} offset:{1024*j}")
            a(f"ds_read_b64 v[{VM+2*j}:{VM+2*j+1}], v{V_OVM} offset:{1024*(j >> 1) + 256*(j & 1)}")
        for i in range(0, 8, 2):
            a(f"v_pk_mul_f32 v[{S+i}:{S+i+1}], v[{S+i}:{S+i+1}], s[{S_C}:{S_C+1}] op_sel_hi:[1,0]")
        for i in range(8):
            a(f"v_cndmask_b32 v{S+i}, v{S+i}, v241, s[{S_MK+2*i}:{S_MK+2*i+1}]")
        for i in (8, 10):
            a(f"v_pk_mul_f32 v[{S+i}:{S+i+1}], v[{S+i}:{S+i+1}], s[{S_C}:{S_C+1}] op_sel_hi:[1,0]")
        for i in range(4):
            a(f"v_cndmask_b32 v{S+8+i}, v{S+8+i}, v{V_NEG}, s[28:29]")
        MX, TM, SM = TMP, TMP + 1, TMP + 2
        a(f"v_max3_f32 v{MX}, v{S}, v{S+1}, v{S+2}")
        for i in range(3, 11, 2):
            a(f"v_max3_f32 v{MX}, v{MX}, v{S+i}, v{S+i+1}")
        a(f"""
        v_max_f32 v{TM}, v{MX}, v{S+11}
        v_max_f32 v{MX}, v{MX}, v{S+11}
        s_nop 1
        v_permlane16_swap_b32 v{MX}, v{TM}
        s_nop 0
        v_max_f32 v{SM}, v{MX}, v{TM}
        v_max_f32 v{SM+1}, v{MX}, v{TM}
        s_nop 1
        v_permlane32_swap_b32 v{SM}, v{SM+1}
        s_nop 0
        v_max_f32 v{MX}, v{SM}, v{SM+1}
        """)
        for i in range(0, 12, 2):
            a(f"v_pk_add_f32 v[{S+i}:{S+i+1}], v[{S+i}:{S+i+1}], v[{MX}:{MX+1}] op_sel_hi:[1,0] neg_lo:[0,1] neg_hi:[0,1]")
        for i in range(12):
            a(f"v_exp_f32 v{S+i}, v{S+i}")
        a.nops(1)
        for i in range(6):
            a(f"v_cvt_pk_bf16_f32 v{P+i}, v{S+2*i}, v{S+2*i+1}")
        a("s_waitcnt lgkmcnt(0)\ns_nop 0")
        a(f"v_mfma_f32_16x16x32_bf16 v[{LS}:{LS+3}], v[{ONE}:{ONE+3}], v[{P}:{P+3}], 0")
        for T in range(4):
            a(f"v_mfma_f32_16x16x32_bf16 v[{O+4*T}:{O+4*T+3}], v[{VT+4*T}:{VT+4*T+3}], v[{P}:{P+3}], 0")
        a(f"v_mfma_f32_16x16x16_bf16 v[{LS}:{LS+3}], v[{ONE}:{ONE+1}], v[{P+4}:{P+5}], v[{LS}:{LS+3}]")
        for T in range(4):
            a(f"v_mfma_f32_16x16x16_bf16 v[{O+4*T}:{O+4*T+3}], v[{VM+2*T}:{VM+2*T+1}], v[{P+4}:{P+5}], v[{O+4*T}:{O+4*T+3}]")
        a(f"""
        s_lshl_b32 s51, s{S_SEG}, 18
        s_nop 2
        v_rcp_f32 v{SM}, v{LS}
        v_rcp_f32 v{SM+1}, v{LS+1}
        s_nop 1
        """)
        for i in range(0, 16, 2):
            a(f"v_pk_mul_f32 v[{O+i}:{O+i+1}], v[{O+i}:{O+i+1}], v[{SM}:{SM+1}]")
        for i in range(8):
            a(f"v_cvt_pk_bf16_f32 v{S+i}, v{O+2*i}, v{O+2*i+1}")
        a(f"""
        buffer_store_dwordx4 v[{S}:{S+3}], v{V_OO}, {SRD}, s51 offen sc1
        buffer_store_dwordx4 v[{S+4}:{S+7}], v{V_OO}, {SRD}, s51 offen offset:2048 sc1
        s_add_u32 s{S_SEG}, s{S_SEG}, 1
        """)
        a("\n".join(pst(6)))
    pinit(a)
    for i in range(16):
        a(f"v_mov_b32 v{ACC[1]+i}, v{ACC[0]+i}")
    a.label(f"{name}_loop")
    seg(1)
    seg(0)
    a(f"s_cmp_lt_u32 s{S_SEG}, 64\ns_cbranch_scc1 {name}_loop")
    a("\n".join(["s_waitcnt vmcnt(0)"] + flag_lines()))
    pdump(a)
    a.label(f"{name}_quit")
    ts(4)
    a("s_endpgm")


def out_role(a: Asm, name, ts):
    common(a, KA_WO, KA_OUT, 8 * MB)
    S_ON, S_PAR, S_PRE, S_ROT, S_PEND, S_KH, S_C = 52, 53, 55, 56, 57, 58, 59
    S_AM = 71
    V_OL, V_OF, V_LW, V_LRK, V_LRS, V_OS, V_SND, V_RCV = 6, 7, 8, 9, 10, 11, 12, 13
    ACCO, RD, KEEP, INB, F0, NF, STG = 20, 52, 84, 88, 96, 32, 224
    HS, QS, US, WSs, PS = 544, 1088, 4352, 8704, 34816
    a(f"""
    s_and_b32 s{S_KH}, s{S_H}, 1
    s_lshr_b32 s{S_C}, s{S_H}, 1
    s_lshl_b32 s{S_T0}, s{S_KH}, 22
    s_lshl_b32 s{S_T1}, s{S_WAVE}, 20
    s_add_u32 s{S_T0}, s{S_T0}, s{S_T1}
    s_lshl_b32 s{S_T1}, s{S_C}, 7
    s_add_u32 s{S_OB}, s{S_T0}, s{S_T1}
    s_and_b32 s{S_ROT}, s{S_C}, {7 if E("ROT8", 1) else 3}
    s_lshl_b32 s{S_ROT}, s{S_ROT}, {6 if E("ROT8", 1) else 7}
    """)
    load_weights(a, 11, S_OB, lane32(4, rl=7), lambda f, jj: (128 * (f >> 4) + 32 * ((f >> 2) & 3) + 8 * ((f >> 1) & 1) + 16 * jj) * 128 + 64 * (f & 1), rot=S_ROT, cl=3)
    a(f"""
    s_lshl_b32 s{S_ROT}, s{S_ROT}, 6
    s_lshl_b32 s{S_T0}, s{S_KH}, 17
    s_lshl_b32 s{S_T1}, s{S_WAVE}, 15
    s_add_u32 s{S_T0}, s{S_T0}, s{S_T1}
    s_add_u32 s{S_T0}, s{S_T0}, {WS_O}
    v_add_u32 v{V_OL}, s{S_T0}, v{V_LL}
    v_and_b32 v{V_T0}, 3, v{V_L}
    v_lshlrev_b32 v{V_OF}, 2, v{V_T0}
    v_bfe_u32 v{V_T0}, v{V_L}, 2, 2
    v_lshl_add_u32 v{V_OF}, v{V_T0}, 7, v{V_OF}
    s_lshl_b32 s{S_T0}, s{S_KH}, 11
    s_lshl_b32 s{S_T1}, s{S_WAVE}, 9
    s_add_u32 s{S_T0}, s{S_T0}, s{S_T1}
    s_lshl_b32 s{S_T1}, s98, 13
    s_add_u32 s{S_T0}, s{S_T0}, s{S_T1}
    s_add_u32 s{S_T0}, s{S_T0}, {WS_F + F_O}
    v_add_u32 v{V_OF}, s{S_T0}, v{V_OF}
    s_mul_i32 s{S_T0}, s{S_WAVE}, {WSs}
    v_lshrrev_b32 v{V_T0}, 5, v{V_L}
    v_lshl_add_u32 v{V_LW}, v{V_T0}, 5, v{V_LL}
    v_add_u32 v{V_LW}, s{S_T0}, v{V_LW}
    v_and_b32 v{V_T0}, 7, v{V_L}
    v_mul_u32_u24 v{V_LRK}, {HS}, v{V_T0}
    v_lshrrev_b32 v{V_T1}, 3, v{V_L}
    v_lshl_add_u32 v{V_LRK}, v{V_T1}, 4, v{V_LRK}
    s_lshl_b32 s{S_T0}, s{S_WAVE}, 7
    v_add_u32 v{V_LRK}, s{S_T0}, v{V_LRK}
    s_mul_i32 s{S_T0}, s{S_KH}, {US}
    s_sub_u32 s{S_T1}, {US}, s{S_T0}
    v_add_u32 v{V_LRS}, s{S_T1}, v{V_LRK}
    v_add_u32 v{V_LRK}, s{S_T0}, v{V_LRK}
    s_lshl_b32 s{S_T0}, s{S_WAVE}, 15
    s_lshl_b32 s{S_T1}, s{S_H}, 6
    s_add_u32 s{S_T0}, s{S_T0}, s{S_T1}
    v_lshlrev_b32 v{V_OS}, 12, v{V_T1}
    v_and_b32 v{V_T0}, 7, v{V_L}
    v_lshl_add_u32 v{V_OS}, v{V_T0}, 3, v{V_OS}
    v_add_u32 v{V_OS}, s{S_T0}, v{V_OS}
    s_lshl_b32 s{S_T1}, s{S_WAVE}, 10
    s_add_u32 s{S_T0}, s{S_OI}, s{S_T1}
    v_add_u32 v{V_RCV}, s{S_T0}, v{V_LL}
    v_xor_b32 v{V_SND}, s{S_OX}, v{V_RCV}
    s_mov_b32 s{S_SEG}, s{S_O0}
    s_mov_b32 s{S_ON}, 0
    s_mov_b32 s{S_PAR}, 0
    s_mov_b32 s{S_PEND}, 0
    """)

    def opoll(r):
        if E("OAP", 0):
            a(f"v_mov_b32 v{r}, 0\ns_mov_b64 exec, 0xffff\nbuffer_atomic_add v{r}, v{V_OF}, {SRD}, 0 offen sc0 sc1\ns_mov_b64 exec, -1")
        else:
            a(f"buffer_load_dword v{r}, v{V_OF}, {SRD}, 0 offen sc1")

    def ld(k, sbase):
        f = F0 + 4 * k
        if k % 4 == 0:
            a(f"s_add_u32 s51, s{S_ROT}, {1024 * k}\ns_and_b32 s51, s51, 0x7fff\ns_add_u32 s51, s51, s{sbase}")
        a(f"buffer_load_dwordx4 v[{f}:{f+3}], v{V_OL}, {SRD}, s51 offen offset:{1024*(k & 3)} sc1")

    def mf(k):
        f = F0 + 4 * k
        for u in range(2):
            d = ACCO + 16 * u
            c = "0" if k == 0 else f"v[{d}:{d+15}]"
            if k == NF - 1: d = STG + 16 * u
            a(f"v_mfma_f32_32x32x16_bf16 v[{d}:{d+15}], a[{8*k+4*u}:{8*k+4*u+3}], v[{f}:{f+3}], {c}")

    def inb(sreg):
        a(f"s_and_b32 s60, s{sreg}, s{S_OM}\ns_lshl_b32 s60, s60, 12")
        a(f"buffer_load_dwordx4 v[{INB}:{INB+3}], v{V_RCV}, {SRD}, s60 offen sc1")

    def fin(tag, sreg, cnt):
        a(f"s_bfe_u32 s61, s{sreg}, 0x10001\ns_xor_b32 s61, s61, s{S_OT}\ns_and_b32 s61, s61, s{S_AM}\ns_waitcnt vmcnt({cnt})")
        a.label(f"{name}_{tag}c")
        a(f"""
        v_and_b32 v14, s{S_AM}, v{INB}
        v_cmp_ne_u32 vcc, s61, v14
        s_cbranch_vccz {name}_{tag}k
        """)
        wdog(a, name)
        inb(sreg)
        a(f"s_waitcnt vmcnt(0)\ns_branch {name}_{tag}c")
        a.label(f"{name}_{tag}k")
        a(f"""
        v_pk_add_f32 v[{INB}:{INB+1}], v[{INB}:{INB+1}], v[{KEEP}:{KEEP+1}]
        v_pk_add_f32 v[{INB+2}:{INB+3}], v[{INB+2}:{INB+3}], v[{KEEP+2}:{KEEP+3}]
        s_lshl_b32 s60, s{sreg}, 17
        v_cvt_pk_bf16_f32 v{INB+4}, v{INB}, v{INB+1}
        v_cvt_pk_bf16_f32 v{INB+5}, v{INB+2}, v{INB+3}
        buffer_store_dwordx2 v[{INB+4}:{INB+5}], v{V_OS}, s[{S_XM}:{S_XM+3}], s60 offen {os.environ.get('OSTO', 'sc1')}
        """)

    a(f"""
    s_mov_b32 s{S_AM}, 1
    s_cmp_eq_u32 s{S_O0}, 0
    s_cbranch_scc1 {name}_nodry
    s_mov_b32 s{S_AM}, 0
    s_mov_b32 s{S_SEG}, 0
    s_mov_b32 s70, s{S_O1}
    s_mov_b32 s{S_O1}, 1
    v_mov_b32 v16, v{V_SND}
    v_mov_b32 v17, v{V_OS}
    v_mov_b32 v{V_SND}, -16
    v_mov_b32 v{V_OS}, -16
{name}_nodry:
    """)
    tsx(a, ts, 3)
    pinit(a)
    a.label(f"{name}_cold")
    a(f"s_cmp_gt_i32 s{S_ON}, s{S_SEG}\ns_cbranch_scc1 {name}_fk")
    a.label(f"{name}_fw")
    wdog(a, name)
    opoll(V_T0)
    a(f"""
    s_waitcnt vmcnt(0)
    v_min_i32_dpp v{V_T0}, v{V_T0}, v{V_T0} quad_perm:[1,0,3,2] row_mask:0xf bank_mask:0xf
    s_nop 1
    v_min_i32_dpp v{V_T0}, v{V_T0}, v{V_T0} quad_perm:[2,3,0,1] row_mask:0xf bank_mask:0xf
    s_nop 1
    v_min_i32_dpp v{V_T0}, v{V_T0}, v{V_T0} row_ror:4 row_mask:0xf bank_mask:0xf
    s_nop 1
    v_min_i32_dpp v{V_T0}, v{V_T0}, v{V_T0} row_ror:8 row_mask:0xf bank_mask:0xf
    s_nop 0
    v_readfirstlane_b32 s{S_ON}, v{V_T0}
    s_min_i32 s{S_ON}, s{S_ON}, s{S_O1}
    s_cmp_gt_i32 s{S_ON}, s{S_SEG}
    s_cbranch_scc1 {name}_fk
    s_sleep 2
    s_add_u32 s{S_T0}, s{S_ON}, 2
    s_cmp_gt_i32 s{S_T0}, s{S_SEG}
    s_cbranch_scc1 {name}_fw
    s_sleep 48
    s_branch {name}_fw
    """)
    a.label(f"{name}_fk")
    a(f"s_add_u32 s54, s{S_SEG}, 1\ns_cmp_gt_i32 s{S_ON}, s54\ns_cbranch_scc0 {name}_c0")
    a(f"s_lshl_b32 s50, s{S_SEG}, 18")
    for k in range(NF):
        ld(k, 50)
    a("\n".join(pst(0)))
    if E("KPROF", 0): a("s_add_u32 s39, s39, 64")

    uid = [0]
    def epi_groups(sreg):
        g = [[f"v_add_u32 v{V_T0}, s{S_PAR}, v{V_LW}", f"v_add_u32 v{V_T1}, s{S_PAR}, v{V_LRK}", f"v_add_u32 v{V_T2}, s{S_PAR}, v{V_LRS}"]]
        for q in range(0, 8, 2):
            g.append([f"ds_write_b128 v{V_T0}, v[{STG+4*(q+i)}:{STG+4*(q+i)+3}] offset:{QS*(q+i)}" for i in range(2)])
        g.append([])
        g.append(["s_waitcnt lgkmcnt(0)", "s_barrier"] + [f"ds_read_b128 v[{RD+4*w}:{RD+4*w+3}], v{V_T2} offset:{WSs*w}" for w in range(4)])
        g.append([f"ds_read_b128 v[{RD+16+4*w}:{RD+16+4*w+3}], v{V_T1} offset:{WSs*w}" for w in range(4)] +
                 [f"s_sub_u32 s{S_PAR}, {PS}, s{S_PAR}", f"s_bfe_u32 s61, s{sreg}, 0x10001", f"s_xor_b32 s61, s61, s{S_OT}", f"s_and_b32 s60, s{sreg}, s{S_OM}", "s_lshl_b32 s60, s60, 12"])
        g.append([])
        for h, dst in ((0, RD), (16, KEEP)):
            b = RD + h
            l = [f"s_waitcnt lgkmcnt({4 if h == 0 else 0})"]
            for i in range(4):
                l.append(f"v_add_f32 v{b+i}, v{b+i}, v{b+4+i}")
                l.append(f"v_add_f32 v{b+8+i}, v{b+8+i}, v{b+12+i}")
            g.append(l)
            l = [f"v_add_f32 v{dst+i}, v{b+i}, v{b+8+i}" for i in range(4)]
            if h == 0:
                uid[0] += 1
                l += [f"v_and_or_b32 v{RD}, v{RD}, -2, s61", "s_cmp_eq_u32 s95, 0", f"s_cbranch_scc1 {name}_sa{uid[0]}",
                      f"buffer_store_dwordx4 v[{RD}:{RD+3}], v{V_SND}, {SRD}, s60 offen sc1", f"s_branch {name}_sb{uid[0]}", f"{name}_sa{uid[0]}:",
                      f"buffer_store_dwordx4 v[{RD}:{RD+3}], v{V_SND}, {SRD}, s60 offen", f"{name}_sb{uid[0]}:"]
            g.append(l)
        return g

    def loop(pre, epi):
        g = epi_groups(62) if epi else []
        for k in range(NF):
            a(f"s_waitcnt vmcnt({NF-1 if pre else NF-1-k})")
            mf(k)
            if pre: ld(k, 50)
            if 1 <= k <= len(g): a("\n".join(g[k-1]))
            if epi and k == 27: inb(62)
            if not pre and k == 20: opoll(15)
        if epi: fin(f"f{pre}", 62, 4 if pre else 0)

    def loopc(epi):
        Wn = E("OWIN", 8)
        g = epi_groups(62) if epi else []
        a.label(f"{name}_c{epi}")
        if epi == 0: tsx(a, ts, 5)
        a(f"s_add_u32 s54, s{S_SEG}, 1\ns_sub_u32 s62, s{S_SEG}, 1\ns_lshl_b32 s50, s{S_SEG}, 18")
        for k in range(Wn):
            ld(k, 50)
        for l in g: a("\n".join(l))
        for k in range(NF):
            a(f"s_waitcnt vmcnt({min(Wn, NF - k) - 1})")
            mf(k)
            if k + Wn < NF: ld(k + Wn, 50)
            if epi and k == 24: inb(62)
            if k == 24: opoll(15)
        if epi == 0: tsx(a, ts, 6)
        if epi: fin("fc", 62, 0)
        a("\n".join(pst(3)))
        a(f"s_lshl_b32 s50, s54, 18\ns_branch {name}_imm")

    for epi in range(2):
        a.label(f"{name}_w{epi}")
        a(f"""
        s_add_u32 s54, s{S_SEG}, 1
        s_sub_u32 s62, s{S_SEG}, 1
        s_lshl_b32 s50, s54, 18
        s_cmp_gt_i32 s{S_ON}, s54
        s_cbranch_scc0 {name}_n{epi}
        """)
        loop(1, epi)
        a("\n".join(pst(1)))
        a(f"s_add_u32 s{S_SEG}, s{S_SEG}, 1\ns_branch {name}_w1")
        a.label(f"{name}_n{epi}")
        loop(0, epi)
        a("\n".join(pst(2)))
        if epi == 0: a(f"s_branch {name}_imm")
    a.label(f"{name}_imm")
    a(f"""
    s_waitcnt vmcnt(1)
    v_min_i32_dpp v15, v15, v15 quad_perm:[1,0,3,2] row_mask:0xf bank_mask:0xf
    s_nop 1
    v_min_i32_dpp v15, v15, v15 quad_perm:[2,3,0,1] row_mask:0xf bank_mask:0xf
    s_nop 1
    v_min_i32_dpp v15, v15, v15 row_ror:4 row_mask:0xf bank_mask:0xf
    s_nop 1
    v_min_i32_dpp v15, v15, v15 row_ror:8 row_mask:0xf bank_mask:0xf
    s_nop 0
    v_readfirstlane_b32 s{S_ON}, v15
    s_min_i32 s{S_ON}, s{S_ON}, s{S_O1}
    s_cmp_gt_i32 s{S_ON}, s54
    s_cbranch_scc0 {name}_im2
    s_add_u32 s{S_SEG}, s{S_SEG}, 1
    s_add_u32 s54, s54, 1
    s_cmp_gt_i32 s{S_ON}, s54
    s_cbranch_scc0 {name}_c1
    """)
    for k in range(NF):
        ld(k, 50)
    a(f"s_branch {name}_w1")
    loopc(0)
    loopc(1)
    a.label(f"{name}_im2")
    for g in epi_groups(S_SEG):
        a("\n".join(g))
    inb(S_SEG)
    fin("f2", S_SEG, 0)
    a("\n".join(pst(4)))
    a(f"""
    s_add_u32 s{S_SEG}, s{S_SEG}, 1
    s_cmp_lt_u32 s{S_SEG}, s{S_O1}
    s_cbranch_scc1 {name}_cold
    s_cmp_eq_u32 s{S_AM}, 1
    s_cbranch_scc1 {name}_fin
    s_mov_b32 s{S_AM}, 1
    s_mov_b32 s{S_SEG}, s{S_O0}
    s_mov_b32 s{S_O1}, s70
    v_mov_b32 v{V_SND}, v16
    v_mov_b32 v{V_OS}, v17
    """)
    inb(S_SEG)
    a(f"s_branch {name}_cold")
    a.label(f"{name}_fin")
    pdump(a)
    a.label(f"{name}_quit")
    ts(4)
    a("s_endpgm")
```

```python
import math, struct
from gen_common import *

SCALE = 0.5 / (2048.0 * 1024.0)
SC = 48
WSRD = "s[84:87]"


def flit(x):
    return "0x%08x" % struct.unpack("<I", struct.pack("<f", x))[0]


def P(r):
    return f"v[{r}:{r+1}]"


def consts(a):
    for k in range(1, 9):
        a(f"s_mov_b32 s{SC+2*k-2}, {flit(math.cos(2*math.pi*k/64))}")
        a(f"s_mov_b32 s{SC+2*k-1}, {flit(math.sin(2*math.pi*k/64))}")


def cmul(a, dst, src, tmp, w, ic=0, is_=1, sc=1, ss=1):
    n = lambda b: int(bool(b))
    a(f"v_pk_mul_f32 {P(tmp)}, {P(src)}, {w} op_sel:[0,{ic}] op_sel_hi:[0,{is_}] neg_lo:[0,{n(sc<0)}] neg_hi:[0,{n(ss<0)}]")
    a(f"v_pk_fma_f32 {P(dst)}, {P(src)}, {w}, {P(tmp)} op_sel:[1,{is_},0] op_sel_hi:[1,{ic},1] neg_lo:[0,{n(ss>0)},0] neg_hi:[0,{n(sc<0)},0]")


def cmul_const(a, dst, src, tmp, c, s):
    eps = 1e-9
    n = lambda b: int(bool(b))
    if abs(s) < eps:
        a(f"v_pk_add_f32 {P(dst)}, {P(src)}, 0 neg_lo:[{n(c<0)},0] neg_hi:[{n(c<0)},0]"); return
    if abs(c) < eps:
        a(f"v_pk_add_f32 {P(dst)}, {P(src)}, 0 op_sel:[1,0] op_sel_hi:[0,0] neg_lo:[{n(s>0)},0] neg_hi:[{n(s<0)},0]"); return
    for k in range(1, 9):
        C, S = math.cos(2*math.pi*k/64), math.sin(2*math.pi*k/64)
        w = f"s[{SC+2*k-2}:{SC+2*k-1}]"
        if abs(abs(c) - C) < eps and abs(abs(s) - S) < eps:
            return cmul(a, dst, src, tmp, w, 0, 1, c, s)
        if abs(abs(c) - S) < eps and abs(abs(s) - C) < eps:
            return cmul(a, dst, src, tmp, w, 1, 0, c, s)
    raise ValueError


class PF:
    def __init__(self, a, base, tmp):
        self.a, self.base, self.tmp0 = a, base, tmp
        self.reset()

    def reset(self):
        self.r = [self.base + 2 * i for i in range(32)]
        self.t = self.tmp0

    def fft(self, sign, src=None, after_first=None):
        a, r = self.a, self.r
        span = 16
        while span >= 1:
            for start in range(0, 32, 2 * span):
                for j in range(span):
                    p, q = start + j, start + j + span
                    sp, sq = (src[p], src[q]) if src else (r[p], r[q])
                    den = 2 * span
                    triv = j == 0 or 4 * j == den
                    d = r[q] if (src and triv) else self.t
                    if 4 * j == den:
                        if sign > 0:
                            a(f"v_pk_add_f32 {P(d)}, {P(sp)}, {P(sq)} op_sel:[1,1] op_sel_hi:[0,0] neg_lo:[1,0] neg_hi:[0,1]")
                        else:
                            a(f"v_pk_add_f32 {P(d)}, {P(sp)}, {P(sq)} op_sel:[1,1] op_sel_hi:[0,0] neg_lo:[0,1] neg_hi:[1,0]")
                    else:
                        a(f"v_pk_add_f32 {P(d)}, {P(sp)}, {P(sq)} neg_lo:[0,1] neg_hi:[0,1]")
                    a(f"v_pk_add_f32 {P(r[p])}, {P(sp)}, {P(sq)}")
                    if triv:
                        if not src:
                            self.t, r[q] = r[q], self.t
                    else:
                        cmul_const(a, r[q], self.t, r[q], math.cos(2*math.pi*j/den), sign * math.sin(2*math.pi*j/den))
            if src and after_first:
                after_first()
            src = None
            span //= 2
        rev = [int(format(i, "05b")[::-1], 2) for i in range(32)]
        self.r = [r[rev[i]] for i in range(32)]

    def twiddle(self, tw, first=1):
        for k in range(first, 32):
            cmul(self.a, self.r[k], self.r[k], self.t, P(tw + 2 * k))

    def lds_write(self, va, stride):
        for k in range(32):
            self.a(f"ds_write_b64 v{va}, {P(self.r[k])} offset:{k*stride}")

    def lds_read(self, va, stride):
        self.reset()
        order = [i // 2 + 16 * (i & 1) for i in range(32)]
        for n in order:
            self.a(f"ds_read_b64 {P(self.r[n])}, v{va} offset:{n*stride}")
        self.a("s_waitcnt lgkmcnt(0)")


def make_tw(a, tw, vx, den, sign, vbase=None, mul=1, scale=None, tmp=12, first=1):
    for k in range(first, 32):
        if vbase is None:
            a(f"v_mul_f32 v{tmp}, {flit(sign * mul * k / den)}, v{vx}")
        else:
            a(f"v_mov_b32 v{tmp}, v{vbase}")
            a(f"v_fmac_f32 v{tmp}, {flit(sign * mul * k / den)}, v{vx}")
        a(f"v_cos_f32 v{tw+2*k}, v{tmp}")
        a(f"v_sin_f32 v{tw+2*k+1}, v{tmp}")
    if scale is not None:
        a("s_nop 0")
        for k in range(first, 32):
            a(f"v_mul_f32 v{tw+2*k}, {flit(scale)}, v{tw+2*k}")
            a(f"v_mul_f32 v{tw+2*k+1}, {flit(scale)}, v{tw+2*k+1}")


FB = 8448
TS = 16384 + int(os.environ.get('TPAD', 0))
WS_ = 8192 + int(os.environ.get('WPADF', 0))
D0, T0, TW, IN = 16, 14, 80, 144


def row_setup(a, sign):
    consts(a)
    a(f"""
    v_and_b32 v1, 31, v0
    v_lshrrev_b32 v2, 5, v0
    v_cvt_f32_u32 v3, v1
    v_mul_u32_u24 v10, {FB}, v2
    v_lshl_add_u32 v4, v1, 3, v10
    v_mul_u32_u24 v5, 264, v1
    v_add_u32 v5, v5, v10
    v_and_b32 v11, 7, v0
    v_lshrrev_b32 v9, 3, v0
    v_mul_u32_u24 v10, {FB}, v11
    v_lshl_add_u32 v6, v9, 3, v10
    v_lshlrev_b32 v7, 3, v9
    v_sub_u32 v7, v10, v7
    v_add_u32 v7, 4096, v7
    v_mul_u32_u24 v8, {TS}, v9
    v_lshl_add_u32 v8, v11, 4, v8
    """)
    make_tw(a, TW, 3, 1024.0, sign)


def task_loop(a, name, st, stride, n, issue, body):
    a(f"s_cmp_lt_u32 s{st}, {n}\ns_cbranch_scc0 {name}_e")
    issue(st)
    a.label(f"{name}_l")
    a(f"s_add_u32 s21, s{st}, {stride}\ns_cmp_lt_u32 s21, {n}\ns_cselect_b32 s22, s21, s{st}")
    body(lambda: issue(22))
    a(f"s_mov_b32 s{st}, s21\ns_cmp_lt_u32 s{st}, {n}\ns_cbranch_scc1 {name}_l")
    a.label(f"{name}_e")


def gen_f1(a: Asm, name, st, stride, n):
    a(f"s_load_dwordx2 s[4:5], s[0:1], {KA_BX}")
    row_setup(a, -1)
    a(f"""
    v_lshlrev_b32 v12, 12, v2
    v_lshl_add_u32 v12, v1, 1, v12
    s_waitcnt lgkmcnt(0)
    s_mov_b32 s6, {4*MB}
    s_mov_b32 s7, 0x00020000
    """)
    for i in range(64):
        a(f"v_mov_b32 v{IN+i}, 0")
    F = PF(a, D0, T0)

    def issue(s):
        a(f"s_lshl_b32 s12, s{s}, 15")
        for i in [i // 2 + 16 * (i & 1) for i in range(32)]:
            a(f"buffer_load_short_d16_hi v{IN+2*i}, v12, s[4:7], s12 offen offset:{64*i}")
            a(f"buffer_load_short_d16_hi v{IN+2*i+1}, v12, s[4:7], s12 offen offset:{2048+64*i}")

    def body(pref):
        a("s_waitcnt vmcnt(17)")
        F.reset()
        F.fft(-1, src=[IN + 2 * i for i in range(32)], after_first=pref)
        F.twiddle(TW)
        a("s_barrier")
        F.lds_write(4, 264)
        a("s_waitcnt lgkmcnt(0)")
        F.lds_read(5, 8)
        F.fft(-1)
        F.lds_write(4, 256)
        a(f"ds_write_b64 v4, {P(F.r[0])} offset:8192")
        a(f"s_waitcnt lgkmcnt(0)\ns_barrier\ns_lshl_b32 s13, s{st}, 7\ns_add_u32 s13, s13, {WS_T1}")
        R, O = D0, 208
        def rd(it):
            b = R + 4 * (it % 8)
            a(f"ds_read_b64 {P(b)}, v6 offset:{256*it}")
            a(f"ds_read_b64 {P(b+2)}, v7 offset:{4096 - 256*it}")
        for it in range(6): rd(it)
        for it in range(17):
            b, o = R + 4 * (it % 8), O + 4 * (it % 8)
            a(f"s_waitcnt lgkmcnt({2 * (min(it + 6, 17) - it - 1)})")
            a(f"v_pk_add_f32 {P(o)}, {P(b)}, {P(b+2)} neg_hi:[0,1]")
            a(f"v_pk_add_f32 {P(o+2)}, {P(b)}, {P(b+2)} op_sel:[1,1] op_sel_hi:[0,0] neg_hi:[1,0]")
            if it + 6 < 17: rd(it + 6)
            if it == 16:
                a(f"v_cmp_eq_u32 vcc, 0, v9\ns_nop 1\nv_cndmask_b32 v13, -16, v8, vcc")
            a(f"buffer_store_dwordx4 v[{o}:{o+3}], v{13 if it == 16 else 8}, {WSRD}, s13 offen sc1")
            a(f"s_add_u32 s13, s13, {32 * TS}")
    def issue0(s):
        issue(s)
    def issue_first(s):
        issue(s)
        if s == st: a("s_waitcnt vmcnt(0)")
    task_loop(a, name, st, stride, n, issue_first, body)


def gen_f3(a: Asm, name, st, stride, n, ready):
    a(f"s_load_dwordx2 s[4:5], s[0:1], {KA_OUT}")
    row_setup(a, +1)
    a(f"""
    v_lshlrev_b32 v12, 2, v1
    v_sub_u32 v12, v4, v12
    v_and_b32 v10, 127, v0
    v_lshrrev_b32 v11, 7, v0
    v_lshlrev_b32 v2, 5, v10
    v_lshl_add_u32 v2, v11, 12, v2
    v_lshlrev_b32 v3, 4, v10
    v_lshl_add_u32 v3, v11, 12, v3
    v_add_u32 v3, 2048, v3
    v_cmp_eq_u32 s[14:15], 0, v9
    s_waitcnt lgkmcnt(0)
    s_mov_b32 s6, {8*MB}
    s_mov_b32 s7, 0x00020000
    """)
    F = PF(a, D0, T0)
    ready()

    def issue(s):
        a(f"s_lshl_b32 s12, s{s}, 7\ns_add_u32 s12, s12, {WS_T2}")
        for it in range(17):
            a(f"buffer_load_dwordx4 v[{IN+4*it}:{IN+4*it+3}], v8, {WSRD}, s12 offen sc1")
            a(f"s_add_u32 s12, s12, {32 * TS}")
        if s == st: a("s_waitcnt vmcnt(0)")

    def body(pref):
        a("s_waitcnt vmcnt(8)\ns_barrier")
        for it in (0, 16):
            b = IN + 4 * it
            a(f"v_cndmask_b32 v{b+1}, v{b+1}, 0, s[14:15]")
            a(f"v_cndmask_b32 v{b+3}, v{b+3}, 0, s[14:15]")
        for it in range(17):
            b, o = IN + 4 * it, D0 + 4 * (it % 16)
            a(f"v_pk_add_f32 {P(o)}, {P(b)}, {P(b+2)} op_sel:[0,1] op_sel_hi:[1,0] neg_lo:[0,1]")
            a(f"v_pk_add_f32 {P(o+2)}, {P(b)}, {P(b+2)} op_sel:[0,1] op_sel_hi:[1,0] neg_hi:[1,0]")
            if it == 16: a("s_mov_b64 exec, s[14:15]")
            a(f"ds_write_b64 v6, {P(o)} offset:{256*it}")
            if it < 16: a(f"ds_write_b64 v7, {P(o+2)} offset:{4096 - 256*it}")
            if it == 14: a("s_waitcnt lgkmcnt(8)")
        a("s_mov_b64 exec, -1")
        pref()
        a("s_waitcnt lgkmcnt(0)\ns_barrier")
        F.lds_read(4, 256)
        F.fft(+1)
        F.twiddle(TW)
        F.lds_write(4, 264)
        a("s_waitcnt lgkmcnt(0)")
        F.lds_read(5, 8)
        F.fft(+1)
        for i in range(32):
            a(f"ds_write2st64_b32 v12, v{F.r[i]}, v{F.r[i]+1} offset0:0 offset1:16" if i == 0 else
              f"ds_write_b32 v12, v{F.r[i]} offset:{128*i}\nds_write_b32 v12, v{F.r[i]+1} offset:{4096+128*i}")
        a(f"s_waitcnt lgkmcnt(0)\ns_barrier\ns_lshl_b32 s13, s{st}, 16")
        for j in range(8):
            a(f"ds_read_b128 v[{D0+8*j}:{D0+8*j+3}], v2 offset:{FB*j}")
            a(f"ds_read_b128 v[{D0+8*j+4}:{D0+8*j+7}], v2 offset:{FB*j+16}")
            if j == 6: a("s_waitcnt lgkmcnt(12)")
        for j in range(8):
            a(f"s_waitcnt lgkmcnt({14 - 2*j})")
            o = 216 + 4 * j
            for i in range(4):
                a(f"v_cvt_pk_bf16_f32 v{o+i}, v{D0+8*j+2*i}, v{D0+8*j+2*i+1}")
            a(f"buffer_store_dwordx4 v[{o}:{o+3}], v3, s[4:7], s13 offen {os.environ.get('OSTF', 'sc1')}")
            a(f"s_add_u32 s13, s13, 8192")
    task_loop(a, name, st, stride, n, issue, body)


def gen_f2(a: Asm, name, st, stride, n):
    TW2, WR = 144, 208
    WB = 32 * 66 * 8
    consts(a)
    a(f"""
    v_lshrrev_b32 v10, 6, v0
    v_and_b32 v1, 63, v0
    v_readfirstlane_b32 s16, v10
    v_cvt_f32_u32 v2, v1
    v_lshlrev_b32 v5, 3, v1                   ; T1/T2 offset
    s_mul_i32 s17, s16, {WB}
    v_add_u32 v3, s17, v5                     ; n2*8 + k1*528
    v_and_b32 v7, 1, v1
    v_lshrrev_b32 v6, 1, v1
    v_cvt_f32_u32 v8, v6
    v_cvt_f32_u32 v10, v7
    v_mul_u32_u24 v4, 528, v6
    v_lshl_add_u32 v4, v7, 3, v4
    v_add_u32 v4, s17, v4                     ; k1*528 + b*8 + m*16
    v_lshlrev_b32 v11, 12, v7
    v_lshl_add_u32 v11, v6, 2, v11
    v_fma_f32 v9, v10, 2.0, -1.0
    v_sub_f32 v7, 0, v9
    v_mul_f32 v13, v10, v8
    v_mul_f32 v13, {flit(1.0/2048.0)}, v13
    s_mov_b32 s18, 0xaaaaaaaa
    s_mov_b32 s19, 0xaaaaaaaa
    """)
    make_tw(a, TW, 2, 2048.0, -1)
    make_tw(a, TW2, 8, 2048.0, +1, vbase=13, mul=2, scale=SCALE, first=0)
    F = PF(a, D0, T0)

    def issue(s):
        a(f"s_lshl_b32 s12, s{s}, 2\ns_add_u32 s12, s12, s16\ns_min_u32 s12, s12, 512\ns_mul_i32 s13, s12, {WS_}\ns_mul_i32 s12, s12, {TS}")
        a(f"s_add_u32 s12, s12, {WS_T1}\ns_add_u32 s13, s13, {WS_WT}")
        for i in range(32):
            a(f"buffer_load_dwordx2 a[{2*i}:{2*i+1}], v5, {WSRD}, s12 offen offset:{512*(i & 7)} sc1")
            if i % 8 == 7: a("s_add_u32 s12, s12, 4096")
        for k in range(32):
            a(f"buffer_load_dword a{64+k}, v11, {WSRD}, s13 offen offset:{128*k} sc1")
        if s == st: a("s_waitcnt vmcnt(0)")

    def w64(sign):
        a("s_mov_b64 exec, s[18:19]")
        for k in range(32):
            cmul_const(a, F.r[k], F.r[k], F.t, -math.cos(2*math.pi*k/64), -sign * math.sin(2*math.pi*k/64))
        a("s_mov_b64 exec, -1")

    def cross(vs):
        for k in range(32):
            for h in range(2):
                a(f"v_fmac_f32_dpp v{F.r[k]+h}, v{F.r[k]+h}, v{vs} quad_perm:[1,0,3,2] row_mask:0xf bank_mask:0xf")

    def body(pref):
        a("s_waitcnt vmcnt(32)")
        F.reset()
        for i in range(64):
            a(f"v_accvgpr_read_b32 v{D0+i}, a{i}")
        for k in range(32):
            a(f"v_accvgpr_read_b32 v{WR+k}, a{64+k}")
        pref()
        F.fft(-1)
        F.twiddle(TW)
        F.lds_write(3, 528)
        a("s_waitcnt lgkmcnt(0)")
        F.lds_read(4, 16)
        F.fft(-1)
        w64(-1)
        cross(9)
        for k in range(32):
            a(f"v_lshlrev_b32 v240, 16, v{WR+k}")
            a(f"v_and_b32 v241, 0xffff0000, v{WR+k}")
            cmul(a, F.r[k], F.r[k], F.t, P(240))
        cross(7)
        w64(+1)
        F.fft(+1)
        F.twiddle(TW2, first=0)
        F.lds_write(4, 16)
        a("s_waitcnt lgkmcnt(0)")
        F.lds_read(3, 528)
        F.fft(+1)
        a(f"s_lshl_b32 s12, s{st}, 2\ns_add_u32 s12, s12, s16\ns_min_u32 s12, s12, 512\ns_mul_i32 s12, s12, {TS}\ns_add_u32 s12, s12, {WS_T2}")
        for i in range(32):
            a(f"buffer_store_dwordx2 {P(F.r[i])}, v5, {WSRD}, s12 offen offset:{512*(i & 7)} sc1")
            if i % 8 == 7: a("s_add_u32 s12, s12, 4096")
    task_loop(a, name, st, stride, n, issue, body)


def gen_f0(a: Asm, name, st, stride, n):
    a(f"""
    s_load_dwordx2 s[4:5], s[0:1], {KA_WR}
    s_load_dwordx2 s[8:9], s[0:1], {KA_WI}
    v_and_b32 v1, 63, v0
    v_lshrrev_b32 v2, 6, v0
    v_mul_u32_u24 v3, 1026, v2
    v_lshl_add_u32 v3, v1, 1, v3
    v_mul_u32_u24 v4, 65, v1
    v_add_u32 v4, v4, v2
    v_lshlrev_b32 v4, 2, v4
    v_lshrrev_b32 v7, 4, v0
    v_and_b32 v8, 15, v0
    v_mul_u32_u24 v5, 65, v7
    v_lshl_add_u32 v5, v8, 2, v5
    v_lshlrev_b32 v5, 2, v5
    v_mul_u32_u24 v6, {WS_}, v7
    v_lshl_add_u32 v6, v8, 4, v6
    s_add_u32 s24, s84, {WS_WT}
    s_addc_u32 s25, s85, 0
    s_mov_b32 s26, {513*WS_}
    s_mov_b32 s27, 0x00020000
    s_waitcnt lgkmcnt(0)
    s_mov_b32 s6, {2048*513*2}
    s_mov_b32 s7, 0x00020000
    s_mov_b32 s10, {2048*513*2}
    s_mov_b32 s11, 0x00020000
    """)
    if int(os.environ.get("F0T", 0)):
        a(f"v_lshlrev_b32 v9, 7, v0\ns_and_b32 s12, s{st}, 31\ns_mul_i32 s12, s12, {64*1026}")
        for i in range(2):
            a(f"buffer_load_dword v250, v9, s[4:7], s12 offen\nbuffer_load_dword v250, v9, s[8:11], s12 offen\ns_add_u32 s12, s12, 32768")

    def issue(s):
        a(f"s_and_b32 s12, s{s}, 31\ns_mul_i32 s12, s12, {64*1026}\ns_lshr_b32 s13, s{s}, 5\ns_lshl_b32 s13, s13, 7\ns_add_u32 s12, s12, s13")
        for i in range(16):
            a(f"buffer_load_ushort v{16+i}, v3, s[4:7], s12 offen")
            a(f"buffer_load_ushort v{32+i}, v3, s[8:11], s12 offen")
            a(f"s_add_u32 s12, s12, {4*1026}")
        if s == st: a("s_waitcnt vmcnt(0)")

    def body(pref):
        a("s_waitcnt vmcnt(4)")
        for i in range(16):
            a(f"v_lshl_or_b32 v{48+i}, v{32+i}, 16, v{16+i}")
        pref()
        a("s_barrier")
        for i in range(16):
            a(f"ds_write_b32 v4, v{48+i} offset:{16*i}")
            if i == 11: a("s_waitcnt lgkmcnt(4)")
        a("s_waitcnt lgkmcnt(0)\ns_barrier")
        for i in range(4):
            a(f"ds_read2_b32 v[{64+4*i}:{65+4*i}], v5 offset0:0 offset1:1" if i == 0 else f"ds_read_b32 v{64+4*i}, v5 offset:{16*65*4*i}\nds_read_b32 v{65+4*i}, v5 offset:{16*65*4*i+4}")
            a(f"ds_read_b32 v{66+4*i}, v5 offset:{16*65*4*i+8}\nds_read_b32 v{67+4*i}, v5 offset:{16*65*4*i+12}")
        a(f"s_and_b32 s14, s{st}, 31\ns_lshl_b32 s14, s14, 8\ns_lshr_b32 s15, s{st}, 5\ns_mul_i32 s15, s15, {64*WS_}\ns_add_u32 s14, s14, s15\ns_waitcnt lgkmcnt(0)")
        for i in range(4):
            a(f"buffer_store_dwordx4 v[{64+4*i}:{67+4*i}], v6, s[24:27], s14 offen sc1")
            a(f"s_add_u32 s14, s14, {16*WS_}")
    task_loop(a, name, st, stride, n, issue, body)
```

```python
from gen_common import *

S_X, S_T = 30, 31
S_WSD, S_DBG = 84, 72
E = lambda k, d: int(os.environ.get(k, d))


D_VOTE, D_PD, D_SLOW, D_PD2 = 128, 160, 192, 224
NI = E('NI', 64)


def start_code(a: Asm, name):
    W, D = S_WSD, S_DBG
    a(f"""
    s_load_dwordx2 s[{W}:{W+1}], s[0:1], {KA_WS}
    s_load_dwordx2 s[{D}:{D+1}], s[0:1], {KA_DBG}
    s_getreg_b32 s90, hwreg(HW_REG_XCC_ID)
    s_and_b32 s90, s90, 7
    v_mov_b32 v1, 0
    v_mov_b32 v2, 1
    s_lshl_b32 s91, s90, 4
    s_mov_b32 s95, 0
    s_mov_b32 s99, 0
    s_waitcnt lgkmcnt(0)
    s_mov_b32 s{W+2}, {WS_BYTES}
    s_mov_b32 s{W+3}, 0x00020000
    s_mov_b32 s{D+2}, 256
    s_mov_b32 s{D+3}, 0x00020000
    v_cmp_eq_u32 vcc, 0, v0
    s_and_saveexec_b64 s[88:89], vcc
    s_cbranch_execz {name}_tkd
    s_lshl_b32 s92, s2, 13
    s_add_u32 s92, s92, {WS_CAL}
    buffer_atomic_add v2, v1, s[{D}:{D+3}], s91 offen sc0
    buffer_load_dword v251, v1, s[{W}:{W+3}], s92 offen offset:2048 sc1
    s_waitcnt vmcnt(1)
    ds_write_b32 v1, v2
    s_waitcnt lgkmcnt(0)
{name}_tkd:
    s_mov_b64 exec, s[88:89]
    s_barrier
    ds_read_b32 v2, v1
    s_waitcnt lgkmcnt(0)
    v_readfirstlane_b32 s96, v2
    s_barrier
    """)


def sync_issue(a: Asm, vt):
    a(f"""
    v_and_b32 v{vt+1}, 15, v0
    v_lshlrev_b32 v{vt+1}, 4, v{vt+1}
    buffer_load_dword v{vt}, v{vt+1}, s[{S_DBG}:{S_DBG+3}], 0 offen sc1
    """)


def sync_code(a: Asm, kname, tag, vt, force_slow=False, pre=False):
    D = S_DBG
    n = f"{kname}_sy{tag}"
    a(f"""
    v_and_b32 v{vt+1}, 15, v0
    v_lshlrev_b32 v{vt+1}, 4, v{vt+1}
    s_branch {n}{"p" if pre else ""}
{n}w:
    s_sleep 4
{n}:
    """)
    wd_code(a, n)
    a(f"""
    buffer_load_dword v{vt}, v{vt+1}, s[{D}:{D+3}], 0 offen sc1
    s_waitcnt vmcnt(0)
{n}p:
    s_cmp_eq_u32 s95, 1
    s_cbranch_scc0 {n}f
    v_readlane_b32 s76, v{vt}, {D_PD2 // 16}
    s_mov_b32 s98, 0
    s_cmp_eq_u32 s76, {NI}
    s_cbranch_scc0 {n}w
    s_branch {n}d
{n}f:
    s_mov_b32 s77, 0
    s_mov_b32 s78, 0
    """)
    for i in range(8):
        a(f"v_readlane_b32 s76, v{vt}, {i}\ns_add_u32 s77, s77, s76\ns_xor_b32 s76, s76, 32\ns_or_b32 s78, s78, s76")
    a(f"""
    s_cmp_eq_u32 s77, 256
    s_cbranch_scc0 {n}w
    {"s_mov_b32 s78, 1" if force_slow else ""}
    v_mov_b32 v252, v{vt}
    s_cmp_eq_u32 s78, 0
    s_cbranch_scc0 {kname}_slowent
    v_readlane_b32 s76, v{vt}, {D_PD // 16}
    v_readlane_b32 s77, v{vt}, {D_VOTE // 16}
    s_cmp_eq_u32 s76, {NI}
    s_cbranch_scc0 {n}w
    s_cmp_gt_u32 s77, {NI // 2}
    s_cselect_b32 s98, 1, 0
    {f"s_xor_b32 s98, s98, {os.environ['PAR']}" if "PAR" in os.environ else ""}
{n}d:
    """)


def slow_entry(a: Asm, name):
    D = S_DBG
    a.label(f"{name}_slowent")
    a(f"""
    s_mov_b64 exec, -1
    s_waitcnt vmcnt(0) lgkmcnt(0)
    s_barrier
    s_mov_b32 s97, s96
    """)
    for i in range(7):
        a(f"v_readlane_b32 s76, v252, {i}\ns_cmp_gt_u32 s90, {i}\ns_cselect_b32 s76, s76, 0\ns_add_u32 s97, s97, s76")
    a(f"""
    v_mov_b32 v1, 0
    v_mov_b32 v2, 1
    v_cmp_eq_u32 vcc, 0, v0
    s_and_saveexec_b64 s[88:89], vcc
    s_cbranch_execz {name}_sb1
    buffer_atomic_add v2, v1, s[{D}:{D+3}], 0 offen offset:{D_SLOW} sc1
{name}_sb1:
    s_mov_b64 exec, s[88:89]
{name}_sb2:
    s_sleep 4
    """)
    wd_code(a, "slowbar")
    a(f"""
    buffer_load_dword v2, v1, s[{D}:{D+3}], 0 offen offset:{D_SLOW} sc1
    s_waitcnt vmcnt(0)
    v_cmp_ne_u32 vcc, 256, v2
    s_cbranch_vccnz {name}_sb2
    s_mov_b32 s95, 1
    """)


def init_cd(a: Asm, name, idx):
    W, D = S_WSD, S_DBG
    a(f"""
    v_mov_b32 v8, -1
    v_mov_b32 v9, -1
    v_mov_b32 v10, -1
    v_mov_b32 v11, -1
    v_lshlrev_b32 v1, 4, v0
    v_mov_b32 v2, 0
    v_cmp_gt_u32 vcc, 64, v0
    s_cbranch_vccz {name}_nv
    s_cmp_eq_u32 s95, 0
    s_cbranch_scc0 {name}_nv
    ; latency samples of both parities (order alternates with idx), sign vote
    s_lshr_b32 s60, s2, 1
    s_lshl_b32 s60, s60, 14
    s_and_b32 s61, s{idx}, 1
    s_lshl_b32 s66, s61, 13
    s_add_u32 s60, s60, s66
    s_and_b32 s66, s2, 1
    s_lshl_b32 s66, s66, 10
    s_add_u32 s60, s60, s66
    s_add_u32 s60, s60, {WS_CAL}
    s_mov_b32 s66, 0x7fffffff
    s_mov_b32 s67, 0x7fffffff
    s_mov_b64 exec, 0xff
    s_waitcnt vmcnt(0)
    """)
    for i in range(E("NSAMP", 4)):
        a(f"""
        s_memtime s[62:63]
        s_waitcnt lgkmcnt(0)
        buffer_store_dwordx4 v[8:11], v1, s[{W}:{W+3}], s60 offen offset:{256 * (i >> 1)} sc1
        s_waitcnt vmcnt(0)
        s_memtime s[64:65]
        s_xor_b32 s60, s60, 8192
        s_waitcnt lgkmcnt(0)
        s_sub_u32 s64, s64, s62
        s_min_u32 s{66 + (i & 1)}, s{66 + (i & 1)}, s64
        """)
    a(f"""
    s_cmp_lt_u32 s67, s66
    s_cselect_b32 s60, 1, 0
    s_xor_b32 s60, s60, s61          ; parity that is near this XCD
    s_lshr_b32 s61, s90, 2
    s_xor_b32 s60, s60, s61
    v_mov_b32 v3, s60
    s_mov_b64 exec, 1
    buffer_atomic_add v3, v2, s[{D}:{D+3}], 0 offen offset:{D_VOTE} sc1
    s_mov_b64 exec, -1
{name}_nv:
    s_barrier
    s_lshl_b32 s60, s{idx}, 12
    s_add_u32 s60, s60, {WS_H}
    """)
    for i in range(512 // NI):
        a(f"buffer_store_dwordx4 v[8:11], v1, s[{W}:{W+3}], s60 offen sc1")
        a(f"s_add_u32 s60, s60, {NI * 4096}")
    a(f"""
    s_lshr_b32 s62, s{idx}, 1
    s_and_b32 s63, s{idx}, 1
    s_add_u32 s63, s63, s62
    s_lshl_b32 s62, s62, 19
    s_and_b32 s64, s63, 14
    s_lshl_b32 s64, s64, 13
    s_add_u32 s62, s62, s64
    s_and_b32 s64, s63, 1
    s_lshl_b32 s64, s64, 12
    s_add_u32 s62, s62, s64
    s_add_u32 s62, s62, {WS_XU}
    {"" if E("TAG", 1) else f"buffer_store_dwordx4 v[8:11], v1, s[{W}:{W+3}], s62 offen sc1"}
    s_add_u32 s62, s62, 8192
    {"" if E("TAG", 1) else f"buffer_store_dwordx4 v[8:11], v1, s[{W}:{W+3}], s62 offen sc1"}
    s_cmp_lt_u32 s{idx}, 16
    s_cbranch_scc0 {name}_pz
    buffer_store_dwordx4 v[8:11], v1, s[{W}:{W+3}], s60 offen sc1
{name}_pz:
    s_waitcnt vmcnt(0)
    s_barrier
    v_mov_b32 v3, 1
    s_lshl_b32 s62, s95, 6
    v_cmp_eq_u32 vcc, 0, v0
    s_and_saveexec_b64 s[60:61], vcc
    s_cbranch_execz {name}_xps
    buffer_atomic_add v3, v2, s[{D}:{D+3}], s62 offen offset:{D_PD} sc1
{name}_xps:
    s_mov_b64 exec, s[60:61]
    """)


def rec_body(a: Asm, name, IS, sync, nsteps=64, prof=False, flags=True, ts=None):
    W = S_WSD
    SRD = f"s[{W}:{W+3}]"
    S_WQ, S_WK, S_WV, S_WO, S_M0 = 4, 8, 12, 16, 20
    S_WAVE, S_H, S_J, S_STEP, S_T0, S_T1 = 24, 25, 26, 27, 28, 29
    S_C = 32
    S_SL, S_SLO = 33, 34
    S_XS, S_XSO = 35, 36
    S_P = 37
    S_MN8, S_MMEM = 40, 42
    S_XBR, S_XBW = 44, 45
    S_KVN = 46
    S_KVB, S_FLB, S_CU, S_KXB, S_TAG = 79, 81, 82, 83, 47
    S_LATE, S_WARM = 36, 89
    ONE, LS, ZER = 220, 224, 228
    S_MKM = 48
    V_L, V_G, V_M, V_T0, V_T1, V_IDX = 1, 2, 3, 4, 5, 6
    V_OMEM, V_OM0, V_OPUB, V_OSCM, V_OOP, V_OXW, V_OXR = 7, 8, 9, 10, 11, 12, 13
    V_LWQ, V_LWK, V_LRR, V_LL, V_LWO, V_LRO, V_LVW, V_LVR, V_OKV, V_NEG, V_OFL = 14, 15, 16, 17, 18, 19, 20, 21, 22, 23, 24
    V_POI = 28
    MA, AQ, AV = 32, 96, 112
    RP, R, KX, VTX, S, PL = 120, 152, 156, 164, 172, 184
    VM, P, PM, O, TMP = 208, 212, 216, 120, 232
    MO, AO, KVH = 32, 96, 244
    A_W1, A_WO = 0, 192
    L_QK, L_VP, L_OP, L_VM, L_XB, L_ST = 0, 9216, 13312, 17920, 18432, 32768

    TAG = E("TAG", 1)
    WPAD, SCS = E("WPAD", 0), E("SCS", 2048)
    OXO, SCO = 24576, 49152

    def wdog():
        wd_code(a, name + ":" + a.lines[-1], f"s{S_STEP}")

    def stamp(i):
        if E("TR", 0):
            if i == 0: return
            if i < 11: a(f"s_memtime s[{48+2*i}:{49+2*i}]")
            if i == 11:
                a("s_memrealtime s[70:71]\ns_memtime s[100:101]\ns_waitcnt lgkmcnt(0)\nv_writelane_b32 v250, s100, 12")
                for k in range(1, 12):
                    a(f"v_writelane_b32 v250, s{48+2*k}, {k}")
                a(f"v_writelane_b32 v250, s99, 0")
                a(f"""
                s_lshl_b32 s80, s{S_X}, 5
                s_add_u32 s80, s80, s{S_T}
                s_lshl_b32 s80, s80, 2
                s_add_u32 s80, s80, s{S_WAVE}
                s_lshl_b32 s80, s80, 6
                s_add_u32 s80, s80, s{S_STEP}
                s_lshl_b32 s80, s80, 6
                s_add_u32 s80, s80, {WS_PROF}
                v_lshlrev_b32 v251, 2, v{V_L}
                s_mov_b64 exec, 0xffff
                buffer_store_dword v250, v251, {SRD}, s80 offen
                s_mov_b64 exec, -1
                """)
            return
        if not prof or i == 11:
            return
        a("s_memtime s[66:67]")
        a("s_waitcnt lgkmcnt(0)")
        a("s_sub_u32 s68, s66, s69")
        a(f"s_add_u32 s{50+i}, s{50+i}, s68")
        a("s_mov_b32 s69, s66")

    if prof:
        for i in range(16):
            a(f"s_mov_b32 s{50+i}, 0")
        a("s_memtime s[66:67]\ns_waitcnt lgkmcnt(0)\ns_mov_b32 s69, s66")
    if ts: ts(1)
    a(f"""
    s_load_dwordx2 s[{S_M0}:{S_M0+1}], s[0:1], {KA_MEM0}
    s_load_dwordx2 s[{S_WO}:{S_WO+1}], s[0:1], {KA_WO}
    s_load_dwordx2 s[{S_WQ}:{S_WQ+1}], s[0:1], {KA_WQ}
    s_load_dwordx2 s[{S_WK}:{S_WK+1}], s[0:1], {KA_WK}
    s_load_dwordx2 s[{S_WV}:{S_WV+1}], s[0:1], {KA_WV}
    v_lshrrev_b32 v{V_T0}, 6, v0
    v_and_b32 v{V_L}, 63, v0
    v_readfirstlane_b32 s{S_WAVE}, v{V_T0}
    v_lshrrev_b32 v{V_G}, 4, v{V_L}
    v_and_b32 v{V_M}, 15, v{V_L}
    v_lshlrev_b32 v{V_LL}, 4, v{V_L}
    s_lshr_b32 s{S_T0}, s{S_T}, 2
    s_lshl_b32 s{S_H}, s{S_X}, 3
    s_add_u32 s{S_H}, s{S_H}, s{S_T0}
    s_and_b32 s{S_J}, s{S_T}, 3
    s_waitcnt lgkmcnt(0)
    s_mov_b32 s{S_M0+2}, 16384
    s_mov_b32 s{S_M0+3}, 0x00020000
    """)
    for s in (S_WO, S_WQ, S_WK, S_WV):
        a(f"s_mov_b32 s{s+2}, {8*MB}\ns_mov_b32 s{s+3}, 0x00020000")
    FULL = E("FULL", 0)
    CL = 2 + FULL
    a(f"""
    s_lshl_b32 s{S_T0}, s{S_H}, 8
    s_lshr_b32 s{S_T1}, s{S_J}, {FULL}
    s_lshl_b32 s{S_T1}, s{S_T1}, {6 + FULL}
    s_add_u32 s{S_T0}, s{S_T0}, s{S_T1}
    s_lshl_b32 s{S_T1}, s{S_WAVE}, 21
    s_add_u32 s{S_T0}, s{S_T0}, s{S_T1}
    v_lshrrev_b32 v{V_T0}, {CL}, v{V_L}
    v_and_b32 v{V_T1}, {(1 << CL) - 1}, v{V_L}
    v_lshlrev_b32 v40, 13, v{V_T0}
    v_lshl_add_u32 v40, v{V_T1}, 4, v40
    v_add_u32 v40, s{S_T0}, v40
    s_lshl_b32 s{S_T0}, s{S_X}, 21
    s_lshl_b32 s{S_T1}, s{S_WAVE}, 19
    s_add_u32 s{S_T0}, s{S_T0}, s{S_T1}
    s_lshr_b32 s{S_T1}, s{S_T}, {FULL}
    s_lshl_b32 s{S_T1}, s{S_T1}, {6 + FULL}
    s_add_u32 s{S_T0}, s{S_T0}, s{S_T1}
    v_lshlrev_b32 v41, 11, v{V_T0}
    v_lshl_add_u32 v41, v{V_T1}, 4, v41
    v_add_u32 v41, s{S_T0}, v41
    s_lshl_b32 s47, s{S_WAVE}, 15
    s_add_u32 s47, s47, {L_ST}
    """)
    order = [int(c) for c in os.environ.get("WORD", "1203")]
    PH = [(c, p) for c in order for p in range(1 << FULL)]
    RI = 64 >> CL

    def wdma(n):
        c, p = PH[n]
        srd = (S_WQ, S_WK, S_WV, S_WO)[c]
        if E("HELP", 1):
            a(f"buffer_load_dword v50, v{51 if c < 3 else 52}, s[{srd}:{srd+3}], 0 offen")
        for r in range(16):
            if E("PSW", 1):
                a(f"s_xor_b32 s{S_T1}, s76, {r}")
                a(f"s_lshl_b32 s{S_T0}, s{S_T1}, 10")
                a(f"s_add_u32 s{S_T0}, s{S_T0}, s47")
                a(f"s_add_u32 m0, s{S_T0}, {(n & 1)*16384}")
                a(f"s_lshl_b32 s{S_T1}, s{S_T1}, {17 if c < 3 else 15}")
            else:
                a(f"s_add_u32 m0, s47, {(n & 1)*16384 + 1024*r}")
                a(f"s_mov_b32 s{S_T1}, {RI * (16 * p + r) * (8192 if c < 3 else 2048)}")
            a(f"buffer_load_dwordx4 v{40 if c < 3 else 41}, s[{srd}:{srd+3}], s{S_T1} offen {'nt ' if (E('RNT', 0) >> c) & 1 else ''}lds")
    WT = E("WT", 0)
    assert not (WT and FULL)
    a(f"""
    s_lshl_b32 s{S_T0}, s{S_T}, 18
    s_lshl_b32 s{S_T1}, s{S_WAVE}, 16
    s_add_u32 s{S_T0}, s{S_T0}, s{S_T1}
    s_lshl_b32 s{S_T1}, s{S_X}, 11
    s_add_u32 s{S_T0}, s{S_T0}, s{S_T1}
    v_lshlrev_b32 v48, 13, v{V_G}
    v_lshl_add_u32 v48, v{V_M}, 7, v48
    v_add_u32 v48, s{S_T0}, v48
    s_lshl_b32 s{S_T0}, s{S_X}, 21
    s_lshl_b32 s{S_T1}, s{S_T}, 16
    s_add_u32 s{S_T0}, s{S_T0}, s{S_T1}
    s_lshl_b32 s{S_T1}, s{S_WAVE}, 14
    s_add_u32 s{S_T0}, s{S_T0}, s{S_T1}
    v_lshlrev_b32 v49, 7, v{V_L}
    v_add_u32 v49, s{S_T0}, v49
    """)

    a(f"""
    s_and_b32 s76, s{S_T}, 1
    s_mul_i32 s76, s76, {E("PSW", 1) * 8 if E("PSW", 1) < 2 else E("PSW", 1)}
    ; helper touch of the slow lines: row = 256w + 16*(l&15... ) : rows w*256 + (t&15)*16 + (l&15), col (t>>4)*1024 + 384
    s_and_b32 s{S_T0}, s{S_T}, 15
    s_lshl_b32 s{S_T0}, s{S_T0}, 4
    s_lshl_b32 s{S_T1}, s{S_WAVE}, 8
    s_add_u32 s{S_T0}, s{S_T0}, s{S_T1}
    v_add_u32 v53, s{S_T0}, v{V_M}
    s_lshr_b32 s{S_T0}, s{S_T}, 4
    s_lshl_b32 s{S_T0}, s{S_T0}, 10
    s_add_u32 s{S_T0}, s{S_T0}, 384
    v_mov_b32 v54, s{S_T0}
    v_mov_b32 v55, 1920
    v_cmp_gt_u32 vcc, 32, v{V_L}
    s_nop 1
    v_cndmask_b32 v54, v55, v54, vcc
    s_lshl_b32 s{S_T1}, s{S_X}, 11
    v_lshl_add_u32 v51, v53, 13, v54
    v_add_u32 v51, s{S_T1}, v51
    s_lshl_b32 s{S_T1}, s{S_X}, 21
    v_lshl_add_u32 v52, v53, 11, v54
    v_add_u32 v52, s{S_T1}, v52
    """)

    NSELF = E("NSELF", 0)
    XF, XA = 64, 192
    if NSELF:
        assert order[:2] == [1, 2] and not FULL
        a(f"""
        s_load_dwordx2 s[56:57], s[0:1], {KA_AX}
        v_lshrrev_b32 v56, 1, v{V_G}
        v_lshlrev_b32 v56, 5, v56
        v_and_b32 v57, 1, v{V_G}
        v_lshl_add_u32 v56, v57, 3, v56
        v_lshl_add_u32 v56, v{V_M}, 11, v56
        s_lshl_b32 s{S_T0}, s{S_WAVE}, 9
        v_add_u32 v56, s{S_T0}, v56
        s_mov_b32 s58, {4*MB}
        s_mov_b32 s59, 0x00020000
        s_waitcnt lgkmcnt(0)
        """)
        for zt in range(2 * NSELF):
            a(f"s_mov_b32 s{S_T1}, {zt * 32768}")
            for hk in range(8):
                f = XF + (zt * 8 + hk) * 4
                a(f"buffer_load_dwordx2 v[{f}:{f+1}], v56, s[56:59], s{S_T1} offen offset:{64*hk}")
                a(f"buffer_load_dwordx2 v[{f+2}:{f+3}], v56, s[56:59], s{S_T1} offen offset:{64*hk+16}")

    def selfproj(isV):
        if not isV:
            for f in range(16 * NSELF):
                a(f"v_swap_b32 v{XF+4*f+1}, v{XF+4*f+2}")
            a(f"""
            s_lshl_b32 s{S_T0}, s{S_WAVE}, 12
            v_add_u32 v57, s{S_T0}, v{V_LL}
            v_lshlrev_b32 v60, 3, v0
            v_add_u32 v60, {L_XB}, v60
            v_bfe_u32 v61, v0, 1, 4
            v_lshlrev_b32 v58, 4, v61                    ; m*16
            v_and_b32 v61, 1, v0
            v_lshrrev_b32 v62, 5, v0
            v_lshl_add_u32 v59, v61, 11, v58             ; V: tt*2048
            v_lshl_add_u32 v59, v62, 8, v59              ;   + u*1024 + g*256
            v_lshl_add_u32 v58, v61, 8, v58              ; K: hf*256
            v_lshl_add_u32 v58, v62, 9, v58              ;   + (tt*2048 + u*1024 + (g'&1)*512)
            """)
        for z in range(NSELF):
            for hk in range(8):
                for tt in range(2):
                    for u in range(2):
                        d, f = XA + 8 * tt + 4 * u, XF + ((2 * z + tt) * 8 + hk) * 4
                        w = A_W1 + (((2 if isV else 1) * 2 + u) * 4 + (hk >> 1)) * 8 + 4 * (hk & 1)
                        c = "0" if hk == 0 else f"v[{d}:{d+3}]"
                        if isV: a(f"v_mfma_f32_16x16x32_bf16 v[{d}:{d+3}], v[{f}:{f+3}], a[{w}:{w+3}], {c}")
                        else: a(f"v_mfma_f32_16x16x32_bf16 v[{d}:{d+3}], a[{w}:{w+3}], v[{f}:{f+3}], {c}")
            a("s_barrier")
            a.nops(8)
            for i in range(4):
                a(f"ds_write_b128 v57, v[{XA+4*i}:{XA+4*i+3}] offset:{1024*i}")
            a("s_waitcnt lgkmcnt(0)\ns_barrier")
            for w in range(4):
                a(f"ds_read_b128 v[{XA+16+4*w}:{XA+16+4*w+3}], v{59 if isV else 58} offset:{4096*w}")
            a("s_waitcnt lgkmcnt(0)")
            b = XA + 16
            for i in (0, 2):
                a(f"v_pk_add_f32 v[{b+i}:{b+i+1}], v[{b+i}:{b+i+1}], v[{b+4+i}:{b+4+i+1}]")
                a(f"v_pk_add_f32 v[{b+8+i}:{b+8+i+1}], v[{b+8+i}:{b+8+i+1}], v[{b+12+i}:{b+12+i+1}]")
            for i in (0, 2):
                a(f"v_pk_add_f32 v[{b+i}:{b+i+1}], v[{b+i}:{b+i+1}], v[{b+8+i}:{b+8+i+1}]")
            a(f"v_cvt_pk_bf16_f32 v{b+4}, v{b}, v{b+1}\nv_cvt_pk_bf16_f32 v{b+5}, v{b+2}, v{b+3}")
            a(f"ds_write_b64 v60, v[{b+4}:{b+5}] offset:{4096*z + (2048 if isV else 0)}")

    def wtouch(n):
        c, p = PH[n]
        srd = (S_WQ, S_WK, S_WV, S_WO)[c]
        for i in range(2):
            a(f"s_mov_b32 s{S_T1}, {i * (32768 if c < 3 else 8192)}")
            a(f"buffer_load_dword v50, v{48 if c < 3 else 49}, s[{srd}:{srd+3}], s{S_T1} offen")
    if WT == 1:
        wtouch(0); wtouch(1); wdma(0); wtouch(2); wdma(1); wtouch(3)
    elif WT == 2:
        wtouch(0); wtouch(1); wtouch(2); wtouch(3); wdma(0); wdma(1)
    else:
        wdma(0); wdma(1)
    a(f"""
    s_mov_b32 s{S_MN8}, 0x00ff00ff
    s_mov_b32 s{S_MN8+1}, 0x00ff00ff
    s_mov_b32 s{S_MKM}, 0xff00ff00
    s_mov_b32 s{S_MKM+1}, 0xff00ff00
    s_mov_b32 s{S_MMEM}, 0
    s_mov_b32 s{S_MMEM+1}, 0x00ff00ff
    s_mov_b32 s{S_C}, 0x3e0293ee
    v_mov_b32 v{V_NEG}, 0xff800000
    v_mov_b32 v{V_IDX}, 0x4444
    v_mov_b32 v{V_T0}, 0xeeee
    v_cndmask_b32 v{V_IDX}, v{V_IDX}, v{V_T0}, s[{S_MKM}:{S_MKM+1}]
    v_mov_b32 v{V_POI}, -1
    v_mov_b32 v{V_POI+1}, -1
    v_mov_b32 v{V_POI+2}, -1
    v_mov_b32 v{V_POI+3}, -1
    s_mul_i32 s{S_T0}, s{S_WAVE}, {4096 + WPAD}
    v_add_u32 v{V_OMEM}, s{S_T0}, v{V_LL}
    v_and_b32 v{V_T0}, 7, v{V_L}
    v_lshlrev_b32 v{V_OM0}, 11, v{V_T0}
    v_lshrrev_b32 v{V_T1}, 3, v{V_L}
    v_lshl_add_u32 v{V_OM0}, v{V_T1}, 4, v{V_OM0}
    s_lshl_b32 s{S_T0}, s{S_WAVE}, 9
    v_add_u32 v{V_OM0}, s{S_T0}, v{V_OM0}
    s_lshl_b32 s{S_T0}, s{S_T}, 9
    s_lshr_b32 s{S_T1}, s{S_T}, 3
    s_mul_i32 s{S_T1}, s{S_T1}, {WPAD}
    s_add_u32 s{S_T0}, s{S_T0}, s{S_T1}
    v_lshlrev_b32 v{V_OPUB}, 3, v{V_L}
    v_add_u32 v{V_OPUB}, s{S_T0}, v{V_OPUB}
    ; o publish: 16384 + t*512 + g*128 + (m&7)*16
    v_and_b32 v{V_T0}, 7, v{V_M}
    v_lshlrev_b32 v{V_OOP}, 7, v{V_G}
    v_lshl_add_u32 v{V_OOP}, v{V_T0}, 4, v{V_OOP}
    v_add_u32 v{V_OKV}, 0, v{V_OOP}              ; g*128 + (m&7)*16 (k_m publish)
    s_add_u32 s{S_T0}, s{S_T0}, {OXO}
    v_add_u32 v{V_OOP}, s{S_T0}, v{V_OOP}
    v_and_b32 v{V_T1}, 1, v{V_G}
    v_lshlrev_b32 v{V_OSCM}, 7, v{V_T1}
    v_lshl_add_u32 v{V_OSCM}, v{V_T0}, 4, v{V_OSCM}
    v_add_u32 v{V_OSCM}, 1024, v{V_OSCM}
    ; partner score offsets: 32768 + (t ^ p)*2048, own in S_P+3 (s47 later); kept relative to slot base
    """)
    for p in range(1, 4):
        a(f"""
        s_xor_b32 s{S_P+p-1}, s{S_T}, {p}
        s_mul_i32 s{S_P+p-1}, s{S_P+p-1}, {SCS}
        s_add_u32 s{S_P+p-1}, s{S_P+p-1}, {SCO}
        """)
    a(f"""
    ; LDS: q/k partial write: w*2304 + (4*(g&1))*144 + ((g>>1)*16 + m)*4
    v_and_b32 v{V_T0}, 1, v{V_G}
    v_mul_u32_u24 v{V_LWQ}, 576, v{V_T0}
    v_lshrrev_b32 v{V_T1}, 1, v{V_G}
    v_lshl_add_u32 v{V_T1}, v{V_T1}, 4, v{V_M}
    v_lshl_add_u32 v{V_LWQ}, v{V_T1}, 2, v{V_LWQ}
    s_mul_i32 s{S_T0}, s{S_WAVE}, 1152
    s_add_u32 s{S_T0}, s{S_T0}, {L_OP}
    v_add_u32 v{V_LWO}, s{S_T0}, v{V_LWQ}
    s_mul_i32 s{S_T0}, s{S_WAVE}, 2304
    v_add_u32 v{V_LWQ}, s{S_T0}, v{V_LWQ}
    v_add_u32 v{V_LWK}, 1152, v{V_LWQ}
    ; R read: m*144 + g*32
    v_mul_u32_u24 v{V_LRR}, 144, v{V_M}
    v_lshl_add_u32 v{V_LRR}, v{V_G}, 5, v{V_LRR}
    ; O partial read: L_OP + ((l>>1)&7)*144 + (2*(l>>4) + (l&1))*16
    v_bfe_u32 v{V_T0}, v{V_L}, 1, 3
    v_mul_u32_u24 v{V_LRO}, 144, v{V_T0}
    v_lshl_add_u32 v{V_LRO}, v{V_G}, 5, v{V_LRO}
    v_and_b32 v{V_T0}, 1, v{V_L}
    v_lshl_add_u32 v{V_LRO}, v{V_T0}, 4, v{V_LRO}
    v_add_u32 v{V_LRO}, {L_OP}, v{V_LRO}
    ; v partial write: L_VP + w*1024 + lane*16 ; read (tile u at +512u): L_VP + (l&31)*16
    s_lshl_b32 s{S_T0}, s{S_WAVE}, 10
    s_add_u32 s{S_T0}, s{S_T0}, {L_VP}
    v_add_u32 v{V_LVW}, s{S_T0}, v{V_LL}
    v_and_b32 v{V_T0}, 31, v{V_L}
    v_lshlrev_b32 v{V_LVR}, 3, v{V_T0}
    v_add_u32 v{V_LVR}, {L_VM}, v{V_LVR}
    v_lshrrev_b32 v{V_T0}, 2, v{V_M}             ; r
    v_and_b32 v42, 1, v{V_T0}                    ; r&1
    v_lshrrev_b32 v43, 1, v{V_T0}                ; r>>1
    v_lshrrev_b32 v44, 1, v{V_G}                 ; g>>1
    v_and_b32 v45, 1, v{V_G}                     ; g&1
    v_lshl_add_u32 v46, v44, 4, v42
    v_lshl_add_u32 v46, v45, 2, v46
    v_lshl_add_u32 v46, v43, 3, v46              ; W1 row
    v_lshl_add_u32 v47, v44, 3, v42
    v_lshl_add_u32 v47, v45, 4, v47
    v_lshl_add_u32 v47, v43, 2, v47
    v_and_b32 v{V_T1}, 3, v{V_M}
    v_lshlrev_b32 v{V_T1}, 3, v{V_T1}
    v_lshl_add_u32 v46, v46, {6 + FULL}, v{V_T1}
    v_lshl_add_u32 v47, v47, {6 + FULL}, v{V_T1}
    s_and_b32 s{S_T0}, s{S_T}, {FULL}
    s_lshl_b32 s{S_T0}, s{S_T0}, 6
    s_add_u32 s{S_T0}, s{S_T0}, s47
    v_add_u32 v46, s{S_T0}, v46
    v_add_u32 v47, s{S_T0}, v47
    """)

    def wtr(n):
        c, p = PH[n]
        nk = 4 >> FULL
        for u in range(2):
            for k in range(nk * p, nk * p + nk):
                d = (A_W1 + ((c * 2 + u) * 4 + k) * 8) if c < 3 else (A_WO + (u * 4 + k) * 8)
                for Pp in range(4):
                    off = (n & 1) * 16384 + ((64 * (k - nk * p) + 32 * (Pp >> 1) + 2 * (Pp & 1)) << (6 + FULL)) + 32 * u
                    a(f"ds_read_b64_tr_b16 a[{d+2*Pp}:{d+2*Pp+1}], v{46 if c < 3 else 47} offset:{off}")
                if k & 1:
                    a("s_waitcnt lgkmcnt(0)")
    for n in range(len(PH)):
        a(f"s_waitcnt vmcnt({(16 + E('HELP', 1) + ([4, 2, 0][n] if WT == 1 else 0)) if n + 1 < len(PH) else 0})")
        wtr(n)
        if n + 2 < len(PH): wdma(n + 2)
        if NSELF and n < 2: selfproj(n == 1)
        if n == len(PH) - 2: sync_issue(a, 246)
    sync(246, True)
    if TAG: a(f"""
    ; cross exchange: WS_H + slot*256K + src*64K + (t>>3)*16K + par*8K + (t&7)*1K
    s_lshr_b32 s{S_T0}, s{S_T}, 3
    s_lshl_b32 s{S_T0}, s{S_T0}, 14
    s_lshl_b32 s{S_T1}, s98, 13
    s_add_u32 s{S_T0}, s{S_T0}, s{S_T1}
    s_and_b32 s{S_T1}, s{S_T}, 7
    s_lshl_b32 s{S_T1}, s{S_T1}, 10
    s_add_u32 s{S_T0}, s{S_T0}, s{S_T1}
    s_lshl_b32 s{S_T1}, s{S_X}, 16
    s_add_u32 s{S_T0}, s{S_T0}, s{S_T1}
    s_add_u32 s{S_T0}, s{S_T0}, {WS_H}
    v_add_u32 v{V_OXW}, s{S_T0}, v{V_LL}
    v_xor_b32 v25, 0x10000, v{V_OXW}
    v_xor_b32 v26, 0x20000, v{V_OXW}
    v_xor_b32 v27, 0x30000, v{V_OXW}
    v_add_u32 v25, {(WS_XU - WS_H) * E("COPY3", 0)}, v25
    v_add_u32 v26, {(WS_XU - WS_H + 4 * MB) * E("COPY3", 0)}, v26
    v_add_u32 v27, {(WS_XU - WS_H + 8 * MB) * E("COPY3", 0)}, v27
    """)
    else: a(f"""
    s_lshr_b32 s{S_T0}, s{S_T}, 2
    s_xor_b32 s{S_T0}, s{S_T0}, s98
    s_and_b32 s{S_T0}, s{S_T0}, 1
    s_lshl_b32 s{S_T0}, s{S_T0}, 13
    s_lshl_b32 s{S_T1}, s{S_T}, 19
    s_add_u32 s{S_T0}, s{S_T0}, s{S_T1}
    s_lshl_b32 s{S_T1}, s{S_X}, 10
    s_add_u32 s{S_T0}, s{S_T0}, s{S_T1}
    s_add_u32 s{S_T0}, s{S_T0}, {WS_XU}
    v_add_u32 v{V_OXW}, s{S_T0}, v{V_LL}
    v_xor_b32 v25, 1024, v{V_OXW}
    v_xor_b32 v26, 2048, v{V_OXW}
    v_xor_b32 v27, 3072, v{V_OXW}
    """)
    a(f"""
    s_lshl_b32 s{S_T0}, s{S_H}, 2
    s_add_u32 s{S_T0}, s{S_T0}, s{S_J}
    s_mov_b32 s{S_CU}, s{S_T0}
    s_lshr_b32 s{S_T1}, s{S_T0}, 3
    s_xor_b32 s{S_T1}, s{S_T1}, s98
    {["", f"s_xor_b32 s{S_T1}, s{S_T1}, 1", f"s_xor_b32 s{S_T1}, s{S_T1}, s{S_T0}"][E("KVPAR", 0)]}
    s_and_b32 s{S_T1}, s{S_T1}, 1
    s_lshl_b32 s{S_T1}, s{S_T1}, 13
    s_lshl_b32 s76, s{S_T0}, 18
    s_add_u32 s76, s76, s{S_T1}
    s_mov_b32 s{S_KXB}, s76
    v_add_u32 v{TMP+8}, s76, v{V_LL}
    v_add_u32 v{TMP+9}, {WS_VT}, v{TMP+8}
    s_lshr_b32 s{S_T1}, s{S_T0}, 4
    s_xor_b32 s{S_T1}, s{S_T1}, s98
    s_and_b32 s{S_T1}, s{S_T1}, 1
    s_lshl_b32 s{S_T1}, s{S_T1}, 13
    s_lshl_b32 s{S_KVB}, s{S_T0}, 17
    s_add_u32 s{S_KVB}, s{S_KVB}, s{S_T1}
    s_add_u32 s{S_KVB}, s{S_KVB}, {WS_KVM}
    ; flags
    s_xor_b32 s{S_T1}, s98, 1
    s_lshl_b32 s{S_T1}, s{S_T1}, 13
    s_lshl_b32 s{S_T0}, s{S_H}, 7
    s_add_u32 s{S_T0}, s{S_T0}, s{S_T1}
    s_add_u32 s{S_T0}, s{S_T0}, {WS_F}
    v_and_b32 v{V_T0}, 1, v{V_L}
    v_lshlrev_b32 v{V_OFL}, 12, v{V_T0}
    v_add_u32 v{V_OFL}, s{S_T0}, v{V_OFL}
    s_lshl_b32 s{S_T1}, s{S_J}, 2
    v_add_u32 v{V_OFL}, s{S_T1}, v{V_OFL}
    s_xor_b32 s{S_FLB}, s98, 1
    s_lshl_b32 s{S_FLB}, s{S_FLB}, 13
    s_lshr_b32 s{S_T1}, s{S_CU}, 6
    s_lshl_b32 s{S_T1}, s{S_T1}, 14
    s_add_u32 s{S_FLB}, s{S_FLB}, s{S_T1}
    s_and_b32 s{S_T1}, s{S_CU}, 63
    s_lshl_b32 s{S_T1}, s{S_T1}, 7
    s_add_u32 s{S_FLB}, s{S_FLB}, s{S_T1}
    s_add_u32 s{S_FLB}, s{S_FLB}, {WS_F + F_KVM}
    v_mov_b32 v{ONE}, 0x3f803f80
    v_mov_b32 v{ONE+1}, 0x3f803f80
    v_mov_b32 v{ONE+2}, 0x3f803f80
    v_mov_b32 v{ONE+3}, 0x3f803f80
    v_mov_b32 v{ZER}, 0
    s_mov_b32 s{S_STEP}, 0
    s_mov_b32 s{S_KVN}, 0
    s_mov_b32 s{S_WARM}, 0
    s_mov_b32 s88, 0
    s_mov_b32 s{S_XBR}, {L_XB}
    s_mov_b32 s{S_XBW}, {L_XB + 4096 * NSELF}
    """)
    V_PK, V_PV = TMP + 8, TMP + 9
    pfn = [0]

    def prefetch(seg_sreg, part=3, chk=True, skip=None):
        i = pfn[0]; pfn[0] += 1
        if flags and chk:
            a(f"""
            s_cmp_gt_i32 s{S_KVN}, s{seg_sreg}
            s_cbranch_scc1 {name}_pf{i}ok
{name}_pf{i}w:
            """)
            wdog()
            a(f"""
            {f'''v_mov_b32 v{V_T0}, 0
            s_mov_b64 exec, 3
            buffer_atomic_add v{V_T0}, v{V_OFL}, {SRD}, 0 offen sc0 sc1
            s_mov_b64 exec, -1''' if E("KAP", 1) else f"buffer_load_dword v{V_T0}, v{V_OFL}, {SRD}, 0 offen sc1"}
            s_waitcnt vmcnt(0)
            v_readlane_b32 s{S_KVN}, v{V_T0}, 0
            v_readlane_b32 s{S_T0}, v{V_T0}, 1
            s_nop 1
            s_min_i32 s{S_KVN}, s{S_KVN}, s{S_T0}
            s_cmp_gt_i32 s{S_KVN}, s{seg_sreg}
            s_cbranch_scc0 {skip or f"{name}_pf{i}w"}
{name}_pf{i}ok:
            """)
        if part is None: return
        a(f"""
        s_add_u32 s77, s{seg_sreg}, s{S_CU}
        s_bfe_u32 s{S_T0}, s77, 0x40002
        s_lshl_b32 s{S_T0}, s{S_T0}, 14
        s_and_b32 s77, s77, 3
        s_lshl_b32 s77, s77, 11
        s_add_u32 s{S_T0}, s{S_T0}, s77
        """)
        if part <= 0:
            a(f"s_add_u32 s{S_T0}, s{S_T0}, s{S_KXB}")
            if part < 0: a(f"s_add_u32 s{S_T0}, s{S_T0}, {WS_VT}")
            for l in range(16):
                a(f"s_buffer_load_dword s78, {SRD}, s{S_T0} offset:{128*l}")
            return
        for f in range(4):
            if not (part >> (f >> 1)) & 1: continue
            a(f"s_add_u32 m0, s{S_XBW}, {2048 * (f >> 1)}")
            a("s_nop 0")
            a(f"buffer_load_dwordx4 v{V_PK if f < 2 else V_PV}, {SRD}, s{S_T0} offen offset:{1024 * (f & 1)} sc1 lds")
        if part & 2: a(f"""
        s_add_u32 s{S_XBW}, s{S_XBW}, 4096
        s_cmp_eq_u32 s{S_XBW}, {L_XB + 3 * 4096}
        s_cselect_b32 s{S_XBW}, {L_XB}, s{S_XBW}
        """)

    def flag_store(val_sreg):
        a(f"""
        v_mov_b32 v{V_T1}, s{val_sreg}
        s_mov_b64 exec, 1
        buffer_store_dword v{V_T1}, v{ZER}, {SRD}, s{S_FLB} offen sc1
        s_mov_b64 exec, -1
        """)

    def zero(base, n):
        for i in range(n):
            a(f"v_mov_b32 v{base+i}, 0")

    if ts and E("BPROF", 0):
        ts(2)
        a(f"v_and_b32 v{V_L}, 63, v0\nv_lshrrev_b32 v{V_G}, 4, v{V_L}")
    a(f"s_cmp_eq_u32 s{S_WAVE}, 3\ns_cbranch_scc0 {name}_pfi")
    a(f"s_mov_b32 s76, 0")
    if not NSELF: prefetch(76)
    a("s_waitcnt vmcnt(0) lgkmcnt(0)")
    a.label(f"{name}_pfi")
    zero(PL, 24)
    zero(249, 1)
    zero(AQ, 24)
    a("s_barrier")
    if ts and E("BPROF", 0):
        ts(3)
        a(f"v_and_b32 v{V_L}, 63, v0\nv_lshrrev_b32 v{V_G}, 4, v{V_L}")
    stamp(0)

    def smf(d, areg, w):
        a(f"v_smfmac_f32_16x16x64_bf16 v[{d}:{d+3}], v[{areg}:{areg+3}], a[{w}:{w+7}], v{V_IDX}")

    def stream_poll(tag, base, soff, off0, two, work, first=None):
        def ld(i):
            a(f"buffer_load_dwordx4 v[{base+4*i}:{base+4*i+3}], v{V_OMEM}, {SRD}, s{soff} offen offset:{1024*i} sc1")
        G = E("GAP", 10)
        for i in range(4):
            ld(i)
            if i == 0 and first:
                first()
                if G > 5: a.nops(G - 5)
            elif i < 3 and G:
                a.nops(G)
        if E("RR", 1):
            def lab(S, i): return f"{name}_{tag}_{S}_{i}"
            def nxt(S, i):
                for d in range(1, 5):
                    if S >> ((i + d) & 3) & 1: return (i + d) & 3
            def chk(i):
                if two:
                    a(f"v_max_u32 v{V_T0}, v{base+4*i}, v{base+4*i+2}")
                    a(f"v_cmp_eq_u32 vcc, -1, v{V_T0}")
                else:
                    a(f"v_cmp_eq_u32 vcc, -1, v{base+4*i}")
            def block(S, i, fall):
                a.label(lab(S, i))
                a(f"s_waitcnt vmcnt({bin(S).count('1') - 1})")
                chk(i)
                a(f"s_cbranch_vccnz {lab(S, i)}f")
                work(i)
                if not fall:
                    S2 = S & ~(1 << i)
                    a(f"s_branch {lab(S2, nxt(S2, i)) if S2 else f'{name}_{tag}_d'}")
            fast = [(15, 0), (14, 1), (12, 2), (8, 3)]
            if E("HOIST", 1) and two:
                def cap(fn, *ar):
                    sv = a.lines; a.lines = []; fn(*ar); o = a.lines; a.lines = sv; return o
                a("s_waitcnt vmcnt(3)")
                chk(0)
                for n, (S, i) in enumerate(fast):
                    a(f"s_cbranch_vccnz {lab(S, i)}f")
                    wk = cap(work, i)
                    a.lines += wk[:3]
                    if i < 3:
                        a(f"s_waitcnt vmcnt({2 - i})")
                        chk(i + 1)
                    a.lines += wk[3:]
                fast = []
            for S, i in fast:
                block(S, i, True)
            a.label(f"{name}_{tag}_d")
            def stubs():
                for S in range(1, 16):
                    for i in range(4):
                        if not S >> i & 1: continue
                        a.label(lab(S, i) + "f")
                        if E("MSK", 1): a("s_mov_b64 exec, vcc")
                        ld(i)
                        if E("MSK", 1): a("s_mov_b64 exec, -1")
                        if bin(S).count('1') == 1 or i == nxt(S, 3): wdog()
                        a(f"s_branch {lab(S, nxt(S, i))}")
                        if (S, i) not in fast:
                            block(S, i, False)
            return stubs
        for i in range(4):
            a.label(f"{name}_{tag}{i}")
            a(f"s_waitcnt vmcnt({3-i})")
            if two:
                a(f"v_max_u32 v{V_T0}, v{base+4*i}, v{base+4*i+2}")
                a(f"v_cmp_eq_u32 vcc, -1, v{V_T0}")
            else:
                a(f"v_cmp_eq_u32 vcc, -1, v{base+4*i}")
            a(f"s_cbranch_vccnz {name}_{tag}r{i}")
            a.label(f"{name}_{tag}k{i}")
            work(i)
        def stubs():
            for i in range(4):
                a.label(f"{name}_{tag}r{i}")
                if prof: a(f"s_add_u32 s{62 if tag == 'pa' else 63}, s{62 if tag == 'pa' else 63}, 1")
                wdog()
                if not E("IMM", 1): a("s_waitcnt vmcnt(0)")
                for k in range(i, 4):
                    ld(k)
                a(f"s_branch {name}_{tag}{i}")
        return stubs

    def fold(t0, t1):
        for i in range(4):
            a(f"v_permlane32_swap_b32 v{t0+i}, v{t1+i}")
        a(f"v_pk_add_f32 v[{t0}:{t0+1}], v[{t0}:{t0+1}], v[{t1}:{t1+1}]")
        a(f"v_pk_add_f32 v[{t0+2}:{t0+3}], v[{t0+2}:{t0+3}], v[{t1+2}:{t1+3}]")

    def vwork(lo, hi):
        for n in range(lo, hi):
            i, u = n >> 1, n & 1
            smf(AV + 4 * u, MA + 4 * i, A_W1 + ((4 + u) * 4 + (i & 3)) * 8)

    def vfin():
        fold(AV, AV + 4)
        a(f"ds_write_b128 v{V_LVW}, v[{AV}:{AV+3}]")

    def rread():
        for w in range(4):
            for hh in range(2):
                d = RP + 8 * w + 4 * hh
                a(f"ds_read_b128 v[{d}:{d+3}], v{V_LRR} offset:{L_QK + 2304*w + 16*hh}")

    def rsum(dst):
        a("s_waitcnt lgkmcnt(4)")
        for i in range(0, 8, 2):
            a(f"v_pk_add_f32 v[{RP+i}:{RP+i+1}], v[{RP+i}:{RP+i+1}], v[{RP+8+i}:{RP+8+i+1}]")
        a("s_waitcnt lgkmcnt(0)")
        for i in range(0, 8, 2):
            a(f"v_pk_add_f32 v[{RP+16+i}:{RP+16+i+1}], v[{RP+16+i}:{RP+16+i+1}], v[{RP+24+i}:{RP+24+i+1}]")
        for i in range(0, 8, 2):
            a(f"v_pk_add_f32 v[{RP+i}:{RP+i+1}], v[{RP+i}:{RP+i+1}], v[{RP+16+i}:{RP+16+i+1}]")
        for i in range(4):
            a(f"v_cvt_pk_bf16_f32 v{dst+i}, v{RP+2*i}, v{RP+2*i+1}")

    S_FM = S_TAG
    def xuoff(dst, step):
        a(f"""
        s_add_u32 s{S_T0}, s{step}, s{S_T}
        s_and_b32 s77, s{S_T0}, 14
        s_and_b32 s{S_T0}, s{S_T0}, 1
        s_lshl_b32 s{S_T0}, s{S_T0}, 12
        s_and_b32 s{dst}, s{step}, 48
        s_or_b32 s{dst}, s{dst}, s77
        s_lshl_b32 s{dst}, s{dst}, 13
        s_add_u32 s{dst}, s{dst}, s{S_T0}
        """)

    def heads():
        a(f"""
        s_and_b32 s{S_T1}, s{S_STEP}, 1
        s_lshl_b32 s{S_SL}, s{S_T1}, 17
        s_lshl_b32 s{S_T0}, s{S_X}, 18
        s_add_u32 s{S_SL}, s{S_SL}, s{S_T0}
        s_add_u32 s{S_SL}, s{S_SL}, {WS_I}
        s_xor_b32 s{S_SLO}, s{S_SL}, {1 << 17}
        """)
        if TAG: a(f"""
        s_lshl_b32 s{S_XS}, s{S_T1}, 18
        s_bfe_u32 s{S_TAG}, s{S_STEP}, 0x10001
        """)
        else: xuoff(S_XS, S_STEP)
    heads()
    if E("PRIO", 0):
        a(f"s_cmp_eq_u32 s{S_WAVE}, 0\ns_cbranch_scc0 {name}_np\ns_setprio 3")
        a.label(f"{name}_np")
    a(f"s_branch {name}_first")

    def wa(i):
        for c in range(4):
            smf(AQ + 4 * c, MA + 4 * i, A_W1 + (c * 4 + (i & 3)) * 8)

    def xread():
        a(f"v_add_u32 v{V_T1}, s{S_XBR}, v{V_LL}")
        for f in range(4):
            a(f"ds_read_b128 v[{KX+4*f}:{KX+4*f+3}], v{V_T1} offset:{1024*f}")

    if E("AL", 2) >= 0:
        a(".p2align 6")
        for i in range(E("AL", 2)): a("s_nop 0")
    a.label(f"{name}_loop")
    stubs_a = stream_poll("pa", MA, S_SL, 0, True, wa, first=xread)
    a.label(f"{name}_adone")
    stamp(1)
    a.nops(6)
    fold(AQ, AQ + 4)
    a(f"ds_write2_b32 v{V_LWQ}, v{AQ}, v{AQ+1} offset0:0 offset1:36")
    a(f"ds_write2_b32 v{V_LWQ}, v{AQ+2}, v{AQ+3} offset0:72 offset1:108")
    fold(AQ + 8, AQ + 12)
    a(f"ds_write2_b32 v{V_LWK}, v{AQ+8}, v{AQ+9} offset0:0 offset1:36")
    a(f"ds_write2_b32 v{V_LWK}, v{AQ+10}, v{AQ+11} offset0:72 offset1:108")
    VE, VE2 = E("VE", 4), 8
    vwork(0, VE)
    a(f"""
    s_waitcnt lgkmcnt(0)
    s_barrier
    s_cmp_lg_u32 s{S_WAVE}, 0
    s_cbranch_scc1 {name}_side
    """)
    stamp(2)
    rread()
    vwork(VE, VE2)
    a(f"""
    s_mul_i32 s{S_T0}, s{S_T}, {SCS}
    s_add_u32 s{S_T0}, s{S_T0}, s{S_SL}
    s_add_u32 s{S_T0}, s{S_T0}, {SCO}
    s_add_u32 s76, s{S_P}, s{S_SL}
    s_add_u32 s77, s{S_P+1}, s{S_SL}
    s_add_u32 s78, s{S_P+2}, s{S_SL}
    """)
    rsum(R)
    a.nops(2)
    a(f"v_mfma_f32_16x16x32_bf16 v[{S+4}:{S+7}], v[{KX+4}:{KX+7}], v[{R}:{R+3}], 0")
    a(f"v_mfma_f32_16x16x32_bf16 v[{S}:{S+3}], v[{KX}:{KX+3}], v[{R}:{R+3}], 0")
    a(f"v_mfma_f32_16x16x32_bf16 v[{S+8}:{S+11}], v[{R}:{R+3}], v[{R}:{R+3}], 0")
    a(f"s_cmp_eq_u32 s{S_STEP}, {nsteps-1}")
    a(f"s_cbranch_scc1 {name}_w0last")
    if E("VF", 0) == 1: vfin()
    else: a.nops(5)
    for i in range(4):
        a(f"v_mov_b32_dpp v{S+i}, v{S+4+i} row_shr:8 row_mask:0xf bank_mask:0xc")
    a(f"""
    v_min_u32 v{S+8}, -2, v{S+8}
    v_min_u32 v{S}, -2, v{S}
    s_mov_b64 exec, s[{S_MMEM}:{S_MMEM+1}]
    buffer_store_dwordx4 v[{S+8}:{S+11}], v{V_OSCM}, {SRD}, s{S_T0} offen {IS}
    s_mov_b64 exec, -1
    buffer_store_dwordx4 v[{S}:{S+3}], v{V_LL}, {SRD}, s{S_T0} offen {IS}
    """)
    stamp(3)

    def p2ld():
        if E("P2K", 1):
            a(f"s_mov_b64 exec, s[{S_MMEM}:{S_MMEM+1}]")
            for p, so in enumerate((76, 77, 78)):
                a(f"buffer_load_dwordx4 v[{PL+8*p+4}:{PL+8*p+7}], v{V_OSCM}, {SRD}, s{so} offen sc1")
            a("s_mov_b64 exec, -1")
            for p, so in enumerate((76, 77, 78)):
                a(f"buffer_load_dwordx4 v[{PL+8*p}:{PL+8*p+3}], v{V_LL}, {SRD}, s{so} offen sc1")
            return
        for p, so in enumerate((76, 77, 78)):
            a(f"buffer_load_dwordx4 v[{PL+8*p}:{PL+8*p+3}], v{V_LL}, {SRD}, s{so} offen sc1")
            a(f"buffer_load_dwordx4 v[{PL+8*p+4}:{PL+8*p+7}], v{V_OSCM}, {SRD}, s{so} offen sc1")
    P2M = E("P2M", 0)
    if E("VF", 0) == 0: vfin()
    def p2fill():
        zero(AO, 8)
        for i in range(4):
            a(f"v_cndmask_b32 v{S+4+i}, v{V_NEG}, v{S+8+i}, s[{S_MMEM}:{S_MMEM+1}]")
    def p2scale():
        for i in range(0, 8, 2):
            a(f"v_pk_mul_f32 v[{S+i}:{S+i+1}], v[{S+i}:{S+i+1}], s[{S_C}:{S_C+1}] op_sel_hi:[1,0]")
    assert P2M == 0
    if P2M == 0:
        a("s_waitcnt lgkmcnt(0)\ns_barrier")
        p2fill()
        p2ld()
        p2scale()
        a.nops(20)
        p2ld()
    elif P2M == 1:
        if E("W2A", 0): a.nops(E("W2A", 0))
        p2ld()
        a("s_waitcnt lgkmcnt(0)\ns_barrier")
        p2fill()
        if E("W2", 0): a.nops(E("W2", 0))
        p2ld()
    elif P2M == 2:
        p2fill()
        p2ld()
        a("s_waitcnt lgkmcnt(0)\ns_barrier")
        if E("W2", 0): a.nops(E("W2", 0))
        p2ld()
    else:
        if E("W2A", 0): a.nops(E("W2A", 0))
        p2ld()
        a("s_waitcnt lgkmcnt(0)\ns_barrier")
        p2fill()
        for r in range(P2M - 1):
            p2ld()
            if r + 2 < P2M: a.nops(E("W2", 16))
    assert TAG
    stamp(4)
    a.label(f"{name}_p2")
    a(f"s_waitcnt vmcnt({6 * (max(P2M, 2) - 1)})")
    a(f"v_max3_u32 v{V_T0}, v{PL}, v{PL+4}, v{PL+8}")
    a(f"v_max3_u32 v{V_T1}, v{PL+12}, v{PL+16}, v{PL+20}")
    a(f"v_max_u32 v{V_T0}, v{V_T0}, v{V_T1}")
    a(f"v_cmp_eq_u32 vcc, -1, v{V_T0}")
    a(f"s_cbranch_vccnz {name}_p2r")
    stamp(5)
    BP = E("BP", 1)
    def b2b():
        a("s_barrier")
        a(f"ds_read2_b64 v[{VM}:{VM+3}], v{V_LVR} offset0:0 offset1:32")
    if BP == 0: b2b()
    for o in (4, 6, 0, 2):
        a(f"v_pk_add_f32 v[{RP+o}:{RP+o+1}], v[{PL+8+o}:{PL+8+o+1}], v[{PL+16+o}:{PL+16+o+1}]")
    for o in (4, 6, 0, 2):
        a(f"v_pk_add_f32 v[{RP+o}:{RP+o+1}], v[{RP+o}:{RP+o+1}], v[{PL+o}:{PL+o+1}]")
    for o in (4, 6, 0, 2):
        a(f"v_pk_fma_f32 v[{S+o}:{S+o+1}], v[{RP+o}:{RP+o+1}], s[{S_C}:{S_C+1}], v[{S+o}:{S+o+1}] op_sel_hi:[1,0,1]")
    MX, TM, SM = TMP, TMP + 1, TMP + 2
    a(f"""
    v_max3_f32 v{MX}, v{S}, v{S+1}, v{S+2}
    v_max3_f32 v{TM}, v{S+4}, v{S+5}, v{S+6}
    v_max3_f32 v{MX}, v{MX}, v{S+3}, v{S+7}
    v_max_f32 v{SM}, v{MX}, v{TM}
    """)
    if BP == 1: b2b()
    else: a("s_nop 1")
    a(f"""
    v_max_f32_dpp v{MX}, v{SM}, v{SM} row_ror:8 row_mask:0xf bank_mask:0xf
    v_max_f32_dpp v{TM}, v{SM}, v{SM} row_ror:8 row_mask:0xf bank_mask:0xf
    s_nop 1
    v_permlane16_swap_b32 v{MX}, v{TM}
    s_nop 0
    v_max_f32 v{SM}, v{MX}, v{TM}
    v_max_f32 v{SM+1}, v{MX}, v{TM}
    """)
    if BP == 2: b2b()
    else: a("s_nop 1")
    a(f"""
    v_permlane32_swap_b32 v{SM}, v{SM+1}
    s_nop 0
    v_max_f32 v{MX}, v{SM}, v{SM+1}
    """)
    for i in (4, 6, 0, 2):
        a(f"v_pk_add_f32 v[{S+i}:{S+i+1}], v[{S+i}:{S+i+1}], v[{MX}:{MX+1}] op_sel_hi:[1,0] neg_lo:[0,1] neg_hi:[0,1]")
    for i in (4, 5, 6, 7):
        a(f"v_exp_f32 v{S+i}, v{S+i}")
    a(f"""
    v_exp_f32 v{S}, v{S}
    v_cvt_pk_bf16_f32 v{PM}, v{S+4}, v{S+5}
    v_cvt_pk_bf16_f32 v{PM+1}, v{S+6}, v{S+7}
    v_exp_f32 v{S+1}, v{S+1}
    v_exp_f32 v{S+2}, v{S+2}
    v_mfma_f32_16x16x16_bf16 v[{LS}:{LS+3}], v[{ONE}:{ONE+1}], v[{PM}:{PM+1}], 0
    v_exp_f32 v{S+3}, v{S+3}
    v_cvt_pk_bf16_f32 v{P}, v{S}, v{S+1}
    s_waitcnt lgkmcnt(0)
    v_mfma_f32_16x16x16_bf16 v[{O}:{O+3}], v[{VM}:{VM+1}], v[{PM}:{PM+1}], 0
    v_cvt_pk_bf16_f32 v{P+1}, v{S+2}, v{S+3}
    v_mfma_f32_16x16x16_bf16 v[{O+4}:{O+7}], v[{VM+2}:{VM+3}], v[{PM}:{PM+1}], 0
    v_mov_b32_dpp v{P+2}, v{P} row_ror:8 row_mask:0xf bank_mask:0xf
    v_mov_b32_dpp v{P+3}, v{P+1} row_ror:8 row_mask:0xf bank_mask:0xf
    s_nop 1
    v_mfma_f32_16x16x32_bf16 v[{LS}:{LS+3}], v[{ONE}:{ONE+3}], v[{P}:{P+3}], v[{LS}:{LS+3}]
    v_mfma_f32_16x16x32_bf16 v[{O}:{O+3}], v[{VTX}:{VTX+3}], v[{P}:{P+3}], v[{O}:{O+3}]
    v_mfma_f32_16x16x32_bf16 v[{O+4}:{O+7}], v[{VTX+4}:{VTX+7}], v[{P}:{P+3}], v[{O+4}:{O+7}]
    s_add_u32 s{S_T1}, s{S_SL}, {OXO}
    s_nop 4
    v_rcp_f32 v{SM}, v{LS}
    s_nop 0
    """)
    for i in range(0, 8, 2):
        a(f"v_pk_mul_f32 v[{O+i}:{O+i+1}], v[{O+i}:{O+i+1}], v[{SM}:{SM+1}] op_sel_hi:[1,0]")
    for i in range(4):
        a(f"v_cvt_pk_bf16_f32 v{P+i}, v{O+2*i}, v{O+2*i+1}")
    a(f"""
    v_min_u32 v{P}, -2, v{P}
    s_mov_b64 exec, s[{S_MN8}:{S_MN8+1}]
    buffer_store_dwordx4 v[{P}:{P+3}], v{V_OOP}, {SRD}, s{S_SL} offen {IS}
    s_mov_b64 exec, -1
    """)
    NB3, NB5 = E("NB3", 0), E("NB5", 0)
    if NB3:
        stamp(6)
        if E("W3", 16): a.nops(E("W3", 16))
        a.label(f"{name}_b3")
    else:
        a.label(f"{name}_b3")
        a("s_barrier")
        stamp(6)
        if E("W3", 16): a.nops(E("W3", 16))

    def wc(i):
        for u in range(2):
            smf(AO + 4 * u, MO + 4 * i, A_WO + (u * 4 + i) * 8)
    stubs_c = stream_poll("pc", MO, S_T1, 0, False, wc)
    stamp(7)
    a.nops(8)
    fold(AO, AO + 4)
    a(f"ds_write2_b32 v{V_LWO}, v{AO}, v{AO+1} offset0:0 offset1:36")
    a(f"ds_write2_b32 v{V_LWO}, v{AO+2}, v{AO+3} offset0:72 offset1:108")
    a("s_waitcnt lgkmcnt(0)\ns_barrier")
    a(f"s_cmp_lg_u32 s{S_WAVE}, 0\ns_cbranch_scc1 {name}_x1")
    for w in range(4):
        a(f"ds_read_b128 v[{RP+4*w}:{RP+4*w+3}], v{V_LRO} offset:{1152*w}")
    a("s_waitcnt lgkmcnt(2)")
    for i in (0, 2):
        a(f"v_pk_add_f32 v[{RP+i}:{RP+i+1}], v[{RP+i}:{RP+i+1}], v[{RP+4+i}:{RP+4+i+1}]")
    a("s_waitcnt lgkmcnt(0)")
    for i in (0, 2):
        a(f"v_pk_add_f32 v[{RP+8+i}:{RP+8+i+1}], v[{RP+8+i}:{RP+8+i+1}], v[{RP+12+i}:{RP+12+i+1}]")
    for i in (0, 2):
        a(f"v_pk_add_f32 v[{RP+i}:{RP+i+1}], v[{RP+i}:{RP+i+1}], v[{RP+8+i}:{RP+8+i+1}]")
    X4 = 48
    A4 = E("A4", 0)
    def p4ld():
        for p in range(3):
            a(f"buffer_load_dwordx4 v[{X4+4*p}:{X4+4*p+3}], v{25+p}, {SRD}, s{S_XS} offen sc1")
    def maxall(regs):
        regs = list(regs)
        h = len(regs) // 2
        for t, rs in ((V_T0, regs[:h]), (V_T1, regs[h:])):
            a(f"v_max3_u32 v{t}, v{rs[0]}, v{rs[1]}, v{rs[2]}")
        k = 3
        while k < h:
            for t, rs in ((V_T0, regs[:h]), (V_T1, regs[h:])):
                if k + 1 < h: a(f"v_max3_u32 v{t}, v{t}, v{rs[k]}, v{rs[k+1]}")
                else: a(f"v_max_u32 v{t}, v{t}, v{rs[k]}")
            k += 2
        a(f"v_max_u32 v{V_T0}, v{V_T0}, v{V_T1}")
        a(f"v_cmp_eq_u32 vcc, -1, v{V_T0}")
    if TAG:
        for i in range(4):
            a(f"v_and_or_b32 v{RP+i}, v{RP+i}, -2, s{S_TAG}")
        if E("HALF", 0): a(f"s_mov_b64 exec, {hex((1 << E('HALF', 0)) - 1)}")
        if E("COPY3", 0):
            for p in range(3):
                a(f"s_add_u32 s76, s{S_XS}, {WS_XU - WS_H + p * 4 * MB}")
                a(f"buffer_store_dwordx4 v[{RP}:{RP+3}], v{V_OXW}, {SRD}, s76 offen sc1")
        else:
            a(f"buffer_store_dwordx4 v[{RP}:{RP+3}], v{V_OXW}, {SRD}, s{S_XS} offen sc1")
        stamp(8)
        a(f"s_xor_b32 s76, s{S_TAG}, 1")
        for i in range(12):
            a(f"v_mov_b32 v{X4+i}, s76")
        if E("HALF", 0): a("s_mov_b64 exec, -1")
        zero(AQ, 24)
        if E("HALF", 0): a(f"s_mov_b64 exec, {hex((1 << E('HALF', 0)) - 1)}")
        if E("XW", 16): a.nops(E("XW", 16))
        stamp(11)
        a(f"s_cmp_eq_u32 s{S_TAG}, 1\ns_cbranch_scc1 {name}_p4_1")
        def fin4():
            stamp(9)
            for i in (0, 2):
                a(f"v_pk_add_f32 v[{RP+i}:{RP+i+1}], v[{RP+i}:{RP+i+1}], v[{X4+i}:{X4+i+1}]")
                a(f"v_pk_add_f32 v[{RP+4+i}:{RP+4+i+1}], v[{X4+4+i}:{X4+4+i+1}], v[{X4+8+i}:{X4+8+i+1}]")
            for i in (0, 2):
                a(f"v_pk_add_f32 v[{RP+i}:{RP+i+1}], v[{RP+i}:{RP+i+1}], v[{RP+4+i}:{RP+4+i+1}]")
            a(f"""
            v_cvt_pk_bf16_f32 v{P}, v{RP}, v{RP+1}
            v_cvt_pk_bf16_f32 v{P+1}, v{RP+2}, v{RP+3}
            v_min_u32 v{P}, -2, v{P}
            buffer_store_dwordx2 v[{P}:{P+1}], v{V_OPUB}, {SRD}, s{S_SLO} offen {IS}
            """)
        R4 = E("R4", 1)
        for tg in range(2):
            a.label(f"{name}_p4_{tg}")
            wdog()
            p4ld()
            a(f"s_waitcnt vmcnt({E('Q4', 12)})")
            a.nops(A4)
            bo = "0xfe" if tg == 0 else "0x80"
            if R4 > 1: a(f"s_mov_b32 s76, {R4}")
            a.label(f"{name}_p4c_{tg}")
            if R4 > 1: a(f"s_sub_u32 s76, s76, 1\ns_cbranch_scc1 {name}_p4_{tg}")
            for t, b in ((V_T0, X4), (V_T1, X4 + 6)):
                a(f"v_bitop3_b32 v{t}, v{b}, v{b+1}, v{b+2} bitop3:{bo}")
            for t, b in ((V_T0, X4), (V_T1, X4 + 6)):
                a(f"v_bitop3_b32 v{t}, v{t}, v{b+3}, v{b+4} bitop3:{bo}")
            a(f"v_bitop3_b32 v{V_T0}, v{V_T0}, v{X4+5}, v{X4+11} bitop3:{bo}")
            a(f"v_bitop3_b32 v{V_T0}, v{V_T0}, v{V_T1}, 1 bitop3:{'0xa8' if tg == 0 else '0x80'}")
            a(f"v_cmp_ne_u32 vcc, {tg}, v{V_T0}")
            a(f"s_cbranch_vccnz {name}_p4{'c' if R4 > 1 else ''}_{tg}")
            fin4()
            if tg == 0: a(f"s_branch {name}_p4d")
        a.label(f"{name}_p4d")
    if E("LT", 0):
        a(f"s_cmp_eq_u32 s{S_STEP}, 8\ns_cbranch_scc0 {name}_lt\ns_memtime s[50:51]\ns_memrealtime s[52:53]")
        a.label(f"{name}_lt")
    a.label(f"{name}_b5")
    a(f"""
    s_add_u32 s{S_STEP}, s{S_STEP}, 1
    s_add_u32 s{S_XBR}, s{S_XBR}, 4096
    s_cmp_eq_u32 s{S_XBR}, {L_XB + 3 * 4096}
    s_cselect_b32 s{S_XBR}, {L_XB}, s{S_XBR}
    s_mov_b32 s{S_T0}, s{S_SL}
    s_mov_b32 s{S_SL}, s{S_SLO}
    s_mov_b32 s{S_SLO}, s{S_T0}
    {f"s_xor_b32 s{S_XS}, s{S_XS}, {1 << 18}" if TAG else ""}
    {f"s_bfe_u32 s{S_TAG}, s{S_STEP}, 0x10001" if TAG else ""}
    {"" if NB5 else "s_barrier"}
    """)
    stamp(10)
    if E("W1", 16): a.nops(E("W1", 16))
    a(f"s_branch {name}_loop")
    a.label(f"{name}_x1")
    stamp(11)
    if not E("NOKVM", 0):
        a(f"s_cmp_eq_u32 s{S_WAVE}, 1\ns_cbranch_scc0 {name}_x2\ns_add_u32 s76, s{S_STEP}, 1")
        flag_store(76)
        a.label(f"{name}_x2")
    a(f"""
    s_cmp_eq_u32 s{S_WAVE}, 3
    s_cbranch_scc0 {name}_x4
    s_cmp_eq_u32 s{S_LATE}, 1
    s_cbranch_scc0 {name}_x5
    s_add_u32 s76, s{S_STEP}, 1
    """)
    prefetch(76, 3)
    a(f"""
    s_waitcnt vmcnt(0)
{name}_x5:
    """)
    if flags:
        a(f"""
        s_add_u32 s76, s{S_STEP}, 4
        s_min_u32 s76, s76, 63
        s_cmp_gt_i32 s{S_KVN}, s76
        s_cbranch_scc1 {name}_x6
        v_mov_b32 v249, 0
        s_mov_b64 exec, 3
        buffer_atomic_add v249, v{V_OFL}, {SRD}, 0 offen sc0 sc1
        s_mov_b64 exec, -1
{name}_x6:
        """)
    a(f"""
    """)
    if not E("PB1", 1): a(f"""
    buffer_store_dwordx2 v[{V_POI}:{V_POI+1}], v{V_OPUB}, {SRD}, s{S_SL} offen {IS}
    s_mul_i32 s{S_T0}, s{S_T}, {SCS}
    s_add_u32 s{S_T0}, s{S_T0}, s{S_SL}
    s_add_u32 s{S_T0}, s{S_T0}, {SCO}
    buffer_store_dwordx4 v[{V_POI}:{V_POI+3}], v{V_LL}, {SRD}, s{S_T0} offen {IS}
    buffer_store_dwordx4 v[{V_POI}:{V_POI+3}], v{V_OSCM}, {SRD}, s{S_T0} offen {IS}
    """)
    a(f"""
    s_add_u32 s76, s{S_STEP}, 2
    s_cmp_lt_u32 s76, {nsteps-1}
    s_cbranch_scc0 {name}_x4
    {f"s_cmp_gt_i32 s{S_KVN}, s76" if flags else ""}
    s_cbranch_scc0 {name}_x4
    """)
    if not E("NOPF", 0):
        prefetch(76, -1, False)
        a(f"s_mov_b32 s{S_WARM}, s76")
    a.label(f"{name}_x4")
    zero(AQ, 24)
    if NB5: a(f"s_sleep {NB5}")
    a(f"s_branch {name}_b5")
    a.label(f"{name}_p2r")
    if prof: a("s_add_u32 s65, s65, 1")
    wdog()
    p2ld()
    a(f"s_branch {name}_p2")
    stubs_a()
    stubs_c()
    a.label(f"{name}_w0last")
    if E("LT", 0):
        a(f"""
        s_memtime s[54:55]
        s_memrealtime s[56:57]
        s_waitcnt lgkmcnt(0)
        s_sub_u32 s54, s54, s50
        s_sub_u32 s56, s56, s52
        v_mov_b32 v250, s54
        v_mov_b32 v251, s56
        s_lshl_b32 s80, s{S_CU}, 3
        s_add_u32 s80, s80, {WS_PROF + 14 * MB}
        buffer_store_dwordx2 v[250:251], v{ZER}, {SRD}, s80 offen
        """)
    a.nops(8)
    vfin()
    a("s_waitcnt lgkmcnt(0)\ns_barrier")
    a(f"s_branch {name}_end")
    a.label(f"{name}_side")
    if E("SV", 0): vwork(VE, 8)
    a(f"""
    s_cmp_eq_u32 s{S_WAVE}, 3
    s_cbranch_scc1 {name}_sd3
    s_cmp_eq_u32 s{S_WAVE}, 2
    s_cbranch_scc0 {name}_sd4
    s_mov_b64 exec, s[{S_MN8}:{S_MN8+1}]
    buffer_store_dwordx4 v[{V_POI}:{V_POI+3}], v{V_OOP}, {SRD}, s{S_SLO} offen {IS}
    s_mov_b64 exec, -1
    """)
    if E("PB1", 1): a(f"""
    buffer_store_dwordx2 v[{V_POI}:{V_POI+1}], v{V_OPUB}, {SRD}, s{S_SLO} offen {IS}
    s_mul_i32 s{S_T0}, s{S_T}, {SCS}
    s_add_u32 s{S_T0}, s{S_T0}, s{S_SLO}
    s_add_u32 s{S_T0}, s{S_T0}, {SCO}
    buffer_store_dwordx4 v[{V_POI}:{V_POI+3}], v{V_LL}, {SRD}, s{S_T0} offen {IS}
    buffer_store_dwordx4 v[{V_POI}:{V_POI+3}], v{V_OSCM}, {SRD}, s{S_T0} offen {IS}
    """)
    a(f"""
    s_branch {name}_sd4
{name}_sd3:
    v_readlane_b32 s76, v249, 0
    v_readlane_b32 s77, v249, 1
    s_min_i32 s76, s76, s77
    s_max_i32 s{S_KVN}, s{S_KVN}, s76
    s_mov_b32 s{S_LATE}, 0
    s_add_u32 s76, s{S_STEP}, 1
    s_cmp_lt_u32 s76, {nsteps-1}
    s_cbranch_scc0 {name}_sd4
    s_cmp_ge_u32 s76, {NSELF}
    s_cbranch_scc0 {name}_sd4
    {(f"s_cmp_eq_u32 s{S_WARM}, s76" if E("WARM", 0) else f"s_cmp_gt_i32 s{S_KVN}, s76") if flags else ""}
    s_cselect_b32 s{S_LATE}, 0, 1
    s_cbranch_scc0 {name}_sd4
    """)
    if not E("NOPF", 0): prefetch(76, 3, False)
    a.label(f"{name}_sd4")
    if not E("SV", 0): vwork(VE, 8)
    a.nops(8)
    vfin()
    zero(AO, 8)
    if not E("K2", 0):
        a(f"""
        s_cmp_eq_u32 s{S_WAVE}, 1
        s_cbranch_scc0 {name}_s1
        s_waitcnt lgkmcnt(0)
        """)
        rread()
        rsum(KVH)
        a.label(f"{name}_s1")
    a(f"""
    v_add_u32 v{V_T1}, {L_VP}, v{V_LL}
    s_waitcnt lgkmcnt(0)
    s_barrier
    s_cmp_eq_u32 s{S_WAVE}, 2
    s_cbranch_scc1 {name}_s2
    """)
    if E("K2", 0):
        a(f"s_cmp_eq_u32 s{S_WAVE}, 1\ns_cbranch_scc0 {name}_s1")
        rread()
        rsum(KVH)
        a(f"s_branch {name}_s3")
        a.label(f"{name}_s1")
    if E("KPF", 1) and not E("NOPF", 0):
        a(f"""
        s_cmp_eq_u32 s{S_WAVE}, 3
        s_cbranch_scc0 {name}_s3
        s_add_u32 s76, s{S_STEP}, 2
        s_cmp_lt_u32 s76, {nsteps-1}
        s_cbranch_scc0 {name}_s3
        {f"s_cmp_gt_i32 s{S_KVN}, s76" if flags else ""}
        s_cbranch_scc0 {name}_s3
        """)
        prefetch(76, 0, False)
        a(f"s_mov_b32 s88, s76")
    a(f"s_branch {name}_s3")
    a.label(f"{name}_s2")
    for w in range(4):
        a(f"ds_read_b128 v[{RP+4*w}:{RP+4*w+3}], v{V_T1} offset:{1024*w}")
    a(f"v_lshrrev_b32 v{V_T1}, 1, v{V_LL}")
    a("s_waitcnt lgkmcnt(2)")
    for i in (0, 2):
        a(f"v_pk_add_f32 v[{RP+i}:{RP+i+1}], v[{RP+i}:{RP+i+1}], v[{RP+4+i}:{RP+4+i+1}]")
    a("s_waitcnt lgkmcnt(0)")
    for i in (0, 2):
        a(f"v_pk_add_f32 v[{RP+8+i}:{RP+8+i+1}], v[{RP+8+i}:{RP+8+i+1}], v[{RP+12+i}:{RP+12+i+1}]")
    for i in (0, 2):
        a(f"v_pk_add_f32 v[{RP+i}:{RP+i+1}], v[{RP+i}:{RP+i+1}], v[{RP+8+i}:{RP+8+i+1}]")
    a(f"v_cvt_pk_bf16_f32 v{KVH}, v{RP}, v{RP+1}")
    a(f"v_cvt_pk_bf16_f32 v{KVH+1}, v{RP+2}, v{RP+3}")
    a(f"ds_write_b64 v{V_T1}, v[{KVH}:{KVH+1}] offset:{L_VM}")
    a("s_waitcnt lgkmcnt(0) vmcnt(0)")
    a.label(f"{name}_s3")
    a(f"""
    s_cmp_eq_u32 s{S_STEP}, {nsteps-1}
    s_cbranch_scc1 {name}_slast
    s_add_u32 s{S_T1}, s{S_SL}, {OXO}
    s_barrier
    """)

    def kv_pub(tag):
        a(f"""
        s_add_u32 s77, s{S_STEP}, s{S_CU}
        s_bfe_u32 s{S_T0}, s77, 0x30003
        s_lshl_b32 s{S_T0}, s{S_T0}, 14
        s_and_b32 s77, s77, 7
        s_lshl_b32 s77, s77, 10
        s_add_u32 s{S_T0}, s{S_T0}, s77
        s_add_u32 s{S_T0}, s{S_T0}, s{S_KVB}
        s_cmp_eq_u32 s{S_WAVE}, 2
        s_cbranch_scc1 {name}_kv2{tag}
        s_mov_b64 exec, s[{S_MKM}:{S_MKM+1}]
        buffer_store_dwordx4 v[{KVH}:{KVH+3}], v{V_OKV}, {SRD}, s{S_T0} offen sc1
        s_mov_b64 exec, -1
        s_branch {name}_kvd{tag}
{name}_kv2{tag}:
        v_lshlrev_b32 v{V_T0}, 3, v{V_L}
        buffer_store_dwordx2 v[{KVH}:{KVH+1}], v{V_T0}, {SRD}, s{S_T0} offen offset:512 sc1
{name}_kvd{tag}:
        """)
    a(f"s_cmp_eq_u32 s{S_WAVE}, 3\ns_cbranch_scc1 {name}_y3")
    if not E("NOKVM", 0):
        kv_pub("a")
    a(f"s_branch {name}_y4")
    a.label(f"{name}_y3")
    if not TAG:
        a(f"s_add_u32 s76, s{S_STEP}, 2\ns_and_b32 s76, s76, 63")
        xuoff(S_XS, 76)
        a(f"s_cmp_lt_u32 s76, 2\ns_cbranch_scc1 {name}_y4")
        a(f"buffer_store_dwordx4 v[{V_POI}:{V_POI+3}], v{V_OXW}, {SRD}, s{S_XS} offen sc1")
    a(f"""
    s_add_u32 s76, s{S_STEP}, 2
    s_cmp_lt_u32 s76, {nsteps-1}
    s_cbranch_scc0 {name}_y4
    """)
    if not E("NOPF", 0):
        if E("KPF", 1):
            if not E("RF4", 1):
                a(f"s_add_u32 s76, s{S_STEP}, 3")
                prefetch(76, None, skip=f"{name}_y4")
        else:
            prefetch(76, 0, skip=f"{name}_y4")
    a.label(f"{name}_y4")
    if NB3: a(f"s_sleep {NB3}")
    a(f"s_branch {name}_b3")
    a.label(f"{name}_first")
    for i in range(4):
        a(f"buffer_load_dwordx4 v[{MA+4*i}:{MA+4*i+3}], v{V_OM0}, s[{S_M0}:{S_M0+3}], 0 offen offset:{128*i}")
    xread()
    a("s_waitcnt vmcnt(0)")
    for i in range(4):
        wa(i)
    a.nops(2)
    a(f"s_branch {name}_adone")
    a.label(f"{name}_slast")
    a(f"s_cmp_eq_u32 s{S_WAVE}, 3\ns_cbranch_scc1 {name}_end")
    kv_pub("b")
    a(f"s_waitcnt vmcnt(0)\ns_barrier\ns_mov_b32 s76, {nsteps}\ns_cmp_eq_u32 s{S_WAVE}, 1\ns_cbranch_scc0 {name}_end")
    flag_store(76)
    a.label(f"{name}_end")
    if ts: ts(4)
    if prof:
        a(f"""
        s_lshl_b32 s{S_T0}, s{S_X}, 5
        s_add_u32 s{S_T0}, s{S_T0}, s{S_T}
        s_lshl_b32 s{S_T0}, s{S_T0}, 2
        s_add_u32 s{S_T0}, s{S_T0}, s{S_WAVE}
        s_lshl_b32 s{S_T0}, s{S_T0}, 6
        s_add_u32 s{S_T0}, s{S_T0}, {WS_PROF}
        v_mov_b32 v{V_T1}, 0
        s_mov_b64 exec, 1
        """)
        for i in range(16):
            a(f"v_mov_b32 v{V_T0}, s{50+i}")
            a(f"buffer_store_dword v{V_T0}, v{V_T1}, {SRD}, s{S_T0} offen offset:{4*i}")
            a("s_nop 1")
    a("s_endpgm")


def gen_rec_standalone(a: Asm, name, prof=False, force_slow=False):
    a.kernel_begin(name)
    a(f"s_cmp_ge_u32 s2, 256\ns_cbranch_scc1 {name}_exit")
    start_code(a, name)
    a(f"""
    s_sub_u32 s40, s90, 6
    s_lshl_b32 s40, s40, 5
    s_add_u32 s40, s40, s96
    s_cmp_lt_u32 s90, 4
    s_cbranch_scc0 {name}_oth
    s_mov_b32 s{S_X}, s90
    s_mov_b32 s{S_T}, s96
    """)
    rec_body(a, name + "_f", "", lambda vt, pre=False: sync_code(a, name, "r", vt, pre=pre), prof=prof, flags=False)
    a.label(f"{name}_oth")
    a(f"s_cmp_lt_u32 s40, {NI}\ns_cbranch_scc0 {name}_exit")
    init_cd(a, name, 40)
    a.label(f"{name}_slowent")
    a.label(f"{name}_exit")
    a("s_endpgm")
    return kd(name, 512, sgpr=102, accum=256)


if __name__ == "__main__":
    import sys
    a = Asm()
    name = "rec_kernel"
    k = gen_rec_standalone(a, name, prof=("prof" in sys.argv), force_slow=("slow" in sys.argv))
    out = HEADER + f"; @launch kernel={name} grid=(256,1,1) block=(256,1,1) lds=163840\n"
    out += '.amdgcn_target "amdgcn-amd-amdhsa--gfx950"\n.text\n' + a.text() + '.section .rodata,"a"\n' + k
    open(os.environ.get("OUT", "rec.s"), "w").write(out)
```

```python
import sys
from gen_common import *
from gen_rec import S_X, S_T, S_WSD, S_DBG, E, start_code, rec_body, sync_code, slow_entry, init_cd
from gen_bulk import kv_role, qx_role, out_role, S_H, S_O0, S_O1, S_OI, S_OT, S_OX, S_OM
from gen_fft2 import gen_f0, gen_f1, gen_f2, gen_f3

LDS = 163840


def gen_mega(a, name, force_slow=False):
    W = S_WSD
    S_B, S_G, S_F = 94, 91, 92
    a.kernel_begin(name)

    dbgn = [0]
    def ts(i):
        if E("DBGT", 0):
            slot = {2: 1, 3: 2, 4: 3, 8: 2, 10: 3}.get(i)
            if slot is None: return
            dbgn[0] += 1
            a(f"""
            s_cmp_eq_u32 s96, 5
            s_cbranch_scc0 {name}_dg{dbgn[0]}
            v_cmp_eq_u32 vcc, 64, v0
            s_cbranch_vccz {name}_dg{dbgn[0]}
            s_memrealtime s[76:77]
            s_waitcnt lgkmcnt(0)
            s_sub_u32 s76, s76, s100
            s_sub_u32 s78, s90, 3
            s_max_i32 s78, s78, 0
            s_cmp_eq_u32 s90, 7
            s_cselect_b32 s78, 1, s78
            s_cmp_eq_u32 s90, 4
            s_cbranch_scc1 {name}_dg{dbgn[0]}
            s_lshl_b32 s78, s78, 4
            v_mov_b32 v1, 0
            v_mov_b32 v2, s76
            s_mov_b64 exec, 1
            buffer_atomic_umax v2, v1, s[{S_DBG}:{S_DBG+3}], s78 offen offset:{4 * slot} sc1
            s_mov_b64 exec, -1
{name}_dg{dbgn[0]}:
            """)
            return
        if not E("BPROF", 0): return
        a(f"""
        s_memrealtime s[76:77]
        s_memtime s[100:101]
        s_waitcnt lgkmcnt(0)
        v_mov_b32 v1, 0
        v_mov_b32 v2, s76
        s_lshl_b32 s78, s2, 6
        s_add_u32 s78, s78, {WS_PROF + 8 * MB + 4 * i}
        s_mov_b64 exec, 1
        buffer_store_dword v2, v1, s[{W}:{W+3}], s78 offen
        s_nop 1
        v_mov_b32 v2, s100
        s_add_u32 s78, s78, 16384
        buffer_store_dword v2, v1, s[{W}:{W+3}], s78 offen
        s_nop 1
        v_mov_b32 v2, s96
        s_lshl_b32 s78, s2, 6
        s_add_u32 s78, s78, {WS_PROF + 8 * MB + 56}
        buffer_store_dword v2, v1, s[{W}:{W+3}], s78 offen
        s_mov_b64 exec, -1
        """)
    a(f"s_cmp_ge_u32 s2, 256\ns_cbranch_scc1 {name}_exit")
    if E("BPROF", 0) == 1: a("s_memrealtime s[80:81]")
    if E("DBGT", 0): a("s_memrealtime s[100:101]")
    start_code(a, name)
    sync = lambda tag: (lambda vt, pre=False: sync_code(a, name, tag, vt, force_slow, pre))
    a(f"""
    s_cmp_lt_u32 s96, 32
    s_cbranch_scc1 {name}_spec
    """)
    sync("x")(2)
    slow_entry(a, name)
    a(f"""
    s_lshr_b32 s{S_X}, s97, 5
    s_and_b32 s{S_T}, s97, 31
    s_cmp_lt_u32 s97, 128
    s_cbranch_scc1 {name}_recs
    s_sub_u32 s{S_B}, s97, 128
    s_branch {name}_bulk
{name}_spec:
    s_mov_b32 s{S_X}, s90
    s_mov_b32 s{S_T}, s96
    s_cmp_lt_u32 s90, 4
    s_cbranch_scc1 {name}_recf
    s_sub_u32 s{S_B}, s90, 4
    s_lshl_b32 s{S_B}, s{S_B}, 5
    s_add_u32 s{S_B}, s{S_B}, s96
{name}_bulk:
    """)
    if E("MIX", 0):
        a(f"s_and_b32 s{S_G}, s{S_B}, 3\ns_lshr_b32 s{S_H}, s{S_B}, 2")
    else:
        a(f"s_lshr_b32 s{S_G}, s{S_B}, 5\ns_and_b32 s{S_H}, s{S_B}, 31")
    a(f"""
    s_and_b32 s{S_F}, s{S_G}, 1
    s_lshl_b32 s{S_F}, s{S_F}, 5
    s_add_u32 s{S_F}, s{S_F}, s{S_H}
    """)
    if E("BPROF", 0) == 1:
        a(f"""
        v_mov_b32 v1, 0
        v_mov_b32 v2, s80
        v_mov_b32 v3, s{S_G}
        s_lshl_b32 s78, s2, 6
        s_add_u32 s78, s78, {WS_PROF + 8 * MB}
        s_mov_b64 exec, 1
        buffer_store_dword v2, v1, s[{W}:{W+3}], s78 offen
        buffer_store_dword v3, v1, s[{W}:{W+3}], s78 offen offset:60
        s_mov_b64 exec, -1
        """)
    ts(1)
    a(f"""
    s_cmp_eq_u32 s{S_G}, 0
    s_cbranch_scc1 {name}_rk
    s_cmp_eq_u32 s{S_G}, 1
    s_cbranch_scc1 {name}_rv
    """)
    def signal(i):
        a(f"""
        s_waitcnt vmcnt(0)
        s_barrier
        v_mov_b32 v1, 0
        v_mov_b32 v2, 1
        s_mov_b32 s82, {WS_F + F_CNT + 128 * i}
        v_cmp_eq_u32 vcc, 0, v0
        s_and_saveexec_b64 s[80:81], vcc
        s_cbranch_execz {name}_sg{i}
        buffer_atomic_add v2, v1, s[{W}:{W+3}], s82 offen sc1
{name}_sg{i}:
        s_mov_b64 exec, s[80:81]
        """)

    def wait(i, n):
        a(f"v_mov_b32 v1, 0\ns_mov_b32 s82, {WS_F + F_CNT + 128 * i}")
        a.label(f"{name}_w{i}")
        wd_code(a, f"fftwait{i}")
        a(f"""
        s_sleep 8
        buffer_load_dword v2, v1, s[{W}:{W+3}], s82 offen sc1
        s_waitcnt vmcnt(0)
        v_cmp_ne_u32 vcc, {n-1}, v2
        s_cbranch_vccnz {name}_w{i}
        """)

    def tasks(tag, fn, first, stride, n, base_sreg):
        a(f"s_add_u32 s93, s{base_sreg}, {first}")
        a(f"s_cmp_lt_u32 s93, {n}\ns_cbranch_scc0 {name}_{tag}e")
        a.label(f"{name}_{tag}l")
        fn()
        a(f"s_add_u32 s93, s93, {stride}\ns_cmp_lt_u32 s93, {n}\ns_cbranch_scc1 {name}_{tag}l")
        a.label(f"{name}_{tag}e")
    DF2 = E("DF2", 0)
    if E("NI", 64) == 32:
        a(f"s_cmp_eq_u32 s{S_G}, 2\ns_cbranch_scc1 {name}_noinit")
        init_cd(a, name, S_H)
        if E("WOT", 1):
            a(f"""
            s_load_dwordx2 s[4:5], s[0:1], {KA_WO}
            v_lshlrev_b32 v1, 7, v0
            s_lshl_b32 s8, s{S_H}, 15
            s_waitcnt lgkmcnt(0)
            s_mov_b32 s6, {8*MB}
            s_mov_b32 s7, 0x00020000
            """)
            for i in range(8):
                a(f"buffer_load_dword v250, v1, s[4:7], s8 offen\ns_add_u32 s8, s8, {MB}")
            a("s_waitcnt vmcnt(0)")
        a.label(f"{name}_noinit")
    else:
        init_cd(a, name, S_F)
    if E("CDH", 0):
        if E("CDH", 0) == 1: a(f"s_cmp_eq_u32 s{S_G}, 2\ns_cbranch_scc1 {name}_nohold")
        sync("h")(2)
        a(f"""
        s_xor_b32 s76, s98, 1
        s_lshl_b32 s76, s76, 13
        s_lshl_b32 s77, s{S_H}, 7
        s_add_u32 s76, s76, s77
        s_add_u32 s76, s76, {WS_F + F_K}
        v_mov_b32 v1, 0
{name}_hold:
        s_sleep 12
        """)
        wd_code(a, "hold")
        a(f"""
        buffer_load_dword v2, v1, s[{W}:{W+3}], s76 offen sc1
        s_waitcnt vmcnt(0)
        v_cmp_gt_i32 vcc, 1, v2
        s_cbranch_vccnz {name}_hold
{name}_nohold:
        """)
    ts(2)
    a(f"s_cmp_eq_u32 s{S_G}, 2\ns_cbranch_scc0 {name}_rd")
    qx_role(a, name + "_q", ts, sync("c"))
    a.label(f"{name}_rd")
    fs = [lambda: gen_f1(a, name + "_f1", 93, 32, 128), lambda: gen_f0(a, name + "_f0", 93, 32, 288)]
    if E("F0FIRST", 1): fs.reverse()
    a(f"s_mov_b32 s93, s{S_H}")
    fs[0]()
    ts(5)
    if E("FGAP", 0):
        a(f"s_mov_b32 s76, {E('FGAP', 0)}")
        a.label(f"{name}_fg")
        a(f"s_sleep 32\ns_sub_u32 s76, s76, 1\ns_cmp_lg_u32 s76, 0\ns_cbranch_scc1 {name}_fg")
    a(f"s_mov_b32 s93, s{S_H}\ns_waitcnt vmcnt(0)")
    fs[1]()
    sync("d")(2)
    signal(0)
    ts(6)
    a(f"s_add_u32 s38, s{S_H}, {129 - DF2}\ns_mov_b32 s39, 32\ns_mov_b32 s37, 129")
    a(f"s_cmp_lt_u32 s38, 129\ns_cbranch_scc1 {name}_f2s\ns_branch {name}_f2e")
    a.label(f"{name}_rk")
    kv_role(a, name + "_k", False, ts, sync("k"))
    a(f"s_branch {name}_fft")
    a.label(f"{name}_rv")
    kv_role(a, name + "_v", True, ts, sync("v"))
    a.label(f"{name}_fft")
    ts(4)
    a(f"s_mov_b32 s38, s{S_F}\ns_mov_b32 s39, 64\ns_mov_b32 s37, {129 - DF2}")
    a.label(f"{name}_f2s")
    wait(0, 32)
    gen_f2(a, name + "_f2", 38, "s39", "s37")
    a.label(f"{name}_f2e")
    signal(1)
    ts(7)
    KS = E("KS", 62)
    assert KS % 2 == 0
    a(f"""
    s_mov_b32 s{S_O0}, 0
    s_mov_b32 s{S_O1}, {KS}
    s_lshl_b32 s{S_OI}, s{S_H}, 13
    s_add_u32 s{S_OI}, s{S_OI}, {WS_OI}
    s_mov_b32 s{S_OT}, 0
    s_mov_b32 s{S_OX}, 8192
    s_mov_b32 s{S_OM}, 1
    s_cmp_eq_u32 s{S_G}, 3
    s_cbranch_scc1 {name}_out
    """)
    wait(1, 96)
    a(f"s_mov_b32 s93, s{S_F}")
    gen_f3(a, name + "_f3", 93, 64, 128)
    ts(8)
    a(f"""
    s_waitcnt vmcnt(0)
    s_barrier
    s_mov_b32 s{S_O0}, {KS}
    s_mov_b32 s{S_O1}, 63
    s_add_u32 s{S_OI}, s{S_OI}, {32 * 8192}
    s_mov_b32 s{S_OT}, {(KS >> 1) & 1}
    s_cmp_eq_u32 s{S_G}, 0
    s_cbranch_scc1 {name}_out
    s_mov_b32 s{S_O0}, 63
    s_mov_b32 s{S_O1}, 64
    s_lshr_b32 s{S_OI}, s{S_H}, 2
    s_lshl_b32 s{S_OI}, s{S_OI}, 17
    s_and_b32 s{S_OT}, s{S_H}, 3
    s_lshl_b32 s{S_OT}, s{S_OT}, 12
    s_add_u32 s{S_OI}, s{S_OI}, s{S_OT}
    s_add_u32 s{S_OI}, s{S_OI}, {WS_I + 114688}
    s_mov_b32 s{S_OT}, 1
    s_mov_b32 s{S_OX}, 4096
    s_mov_b32 s{S_OM}, 0
    """)
    a.label(f"{name}_out")
    out_role(a, name + "_o", lambda i: ts(i + 6))
    a.label(f"{name}_exit")
    a("s_endpgm")
    a.label(f"{name}_recf")
    rec_body(a, name + "_rf", "", sync("r"), prof=bool(E("PROF", 0)), ts=ts)
    a.label(f"{name}_recs")
    rec_body(a, name + "_rs", "sc1", sync("s"))
    return kd(name, 512, sgpr=102, accum=256)


def build(path, force_slow=False):
    a = Asm()
    k = gen_mega(a, "mega_kernel", force_slow)
    out = HEADER + f"; @launch kernel=mega_kernel grid=(256,1,1) block=(256,1,1) lds={LDS}\n"
    out += '.amdgcn_target "amdgcn-amd-amdhsa--gfx950"\n.text\n' + a.text() + '.section .rodata,"a"\n' + k
    open(path, "w").write(out)
    import json
    json.dump(WD_SITES, open("wd.json", "w"))


if __name__ == "__main__":
    build(sys.argv[1] if len(sys.argv) > 1 else "mega.s", force_slow=("slow" in sys.argv))
```

```python
import sys
from gen_common import *
from gen_rec import S_X, S_T, S_WSD, S_DBG, E, start_code, rec_body, sync_code, slow_entry, init_cd
from gen_bulk import kv_role, qx_role, out_role, S_H, S_O0, S_O1, S_OI, S_OT, S_OX, S_OM
from gen_fft2 import gen_f0, gen_f1, gen_f2, gen_f3

LDS = 163840


def gen_mega(a, name, force_slow=False):
    W = S_WSD
    S_B, S_G, S_F = 94, 91, 92
    a.kernel_begin(name)

    dbgn = [0]
    def ts(i):
        if E("DBGT", 0):
            slot = {2: 1, 3: 2, 4: 3, 8: 2, 10: 3}.get(i)
            if slot is None: return
            dbgn[0] += 1
            a(f"""
            s_cmp_eq_u32 s96, 5
            s_cbranch_scc0 {name}_dg{dbgn[0]}
            v_cmp_eq_u32 vcc, 64, v0
            s_cbranch_vccz {name}_dg{dbgn[0]}
            s_memrealtime s[76:77]
            s_waitcnt lgkmcnt(0)
            s_sub_u32 s76, s76, s100
            s_sub_u32 s78, s90, 3
            s_max_i32 s78, s78, 0
            s_cmp_eq_u32 s90, 7
            s_cselect_b32 s78, 1, s78
            s_cmp_eq_u32 s90, 4
            s_cbranch_scc1 {name}_dg{dbgn[0]}
            s_lshl_b32 s78, s78, 4
            v_mov_b32 v1, 0
            v_mov_b32 v2, s76
            s_mov_b64 exec, 1
            buffer_atomic_umax v2, v1, s[{S_DBG}:{S_DBG+3}], s78 offen offset:{4 * slot} sc1
            s_mov_b64 exec, -1
{name}_dg{dbgn[0]}:
            """)
            return
        if not E("BPROF", 0): return
        a(f"""
        s_memrealtime s[76:77]
        s_memtime s[100:101]
        s_waitcnt lgkmcnt(0)
        v_mov_b32 v1, 0
        v_mov_b32 v2, s76
        s_lshl_b32 s78, s2, 6
        s_add_u32 s78, s78, {WS_PROF + 8 * MB + 4 * i}
        s_mov_b64 exec, 1
        buffer_store_dword v2, v1, s[{W}:{W+3}], s78 offen
        s_nop 1
        v_mov_b32 v2, s100
        s_add_u32 s78, s78, 16384
        buffer_store_dword v2, v1, s[{W}:{W+3}], s78 offen
        s_nop 1
        v_mov_b32 v2, s96
        s_lshl_b32 s78, s2, 6
        s_add_u32 s78, s78, {WS_PROF + 8 * MB + 56}
        buffer_store_dword v2, v1, s[{W}:{W+3}], s78 offen
        s_mov_b64 exec, -1
        """)
    a(f"s_cmp_ge_u32 s2, 256\ns_cbranch_scc1 {name}_exit")
    if E("BPROF", 0) == 1: a("s_memrealtime s[80:81]")
    if E("DBGT", 0): a("s_memrealtime s[100:101]")
    start_code(a, name)
    sync = lambda tag: (lambda vt, pre=False: sync_code(a, name, tag, vt, force_slow, pre))
    a(f"""
    s_cmp_lt_u32 s96, 32
    s_cbranch_scc1 {name}_spec
    """)
    sync("x")(2)
    slow_entry(a, name)
    a(f"""
    s_lshr_b32 s{S_X}, s97, 5
    s_and_b32 s{S_T}, s97, 31
    s_cmp_lt_u32 s97, 128
    s_cbranch_scc1 {name}_recs
    s_sub_u32 s{S_B}, s97, 128
    s_branch {name}_bulk
{name}_spec:
    s_mov_b32 s{S_X}, s90
    s_mov_b32 s{S_T}, s96
    s_cmp_lt_u32 s90, 4
    s_cbranch_scc1 {name}_recf
    s_sub_u32 s{S_B}, s90, 4
    s_lshl_b32 s{S_B}, s{S_B}, 5
    s_add_u32 s{S_B}, s{S_B}, s96
{name}_bulk:
    """)
    if E("MIX", 0):
        a(f"s_and_b32 s{S_G}, s{S_B}, 3\ns_lshr_b32 s{S_H}, s{S_B}, 2")
    else:
        a(f"s_lshr_b32 s{S_G}, s{S_B}, 5\ns_and_b32 s{S_H}, s{S_B}, 31")
    a(f"""
    s_and_b32 s{S_F}, s{S_G}, 1
    s_lshl_b32 s{S_F}, s{S_F}, 5
    s_add_u32 s{S_F}, s{S_F}, s{S_H}
    """)
    if E("BPROF", 0) == 1:
        a(f"""
        v_mov_b32 v1, 0
        v_mov_b32 v2, s80
        v_mov_b32 v3, s{S_G}
        s_lshl_b32 s78, s2, 6
        s_add_u32 s78, s78, {WS_PROF + 8 * MB}
        s_mov_b64 exec, 1
        buffer_store_dword v2, v1, s[{W}:{W+3}], s78 offen
        buffer_store_dword v3, v1, s[{W}:{W+3}], s78 offen offset:60
        s_mov_b64 exec, -1
        """)
    ts(1)
    a(f"""
    s_cmp_eq_u32 s{S_G}, 0
    s_cbranch_scc1 {name}_rk
    s_cmp_eq_u32 s{S_G}, 1
    s_cbranch_scc1 {name}_rv
    """)
    def signal(i):
        a(f"""
        s_waitcnt vmcnt(0)
        s_barrier
        v_mov_b32 v1, 0
        v_mov_b32 v2, 1
        s_mov_b32 s82, {WS_F + F_CNT + 128 * i}
        v_cmp_eq_u32 vcc, 0, v0
        s_and_saveexec_b64 s[80:81], vcc
        s_cbranch_execz {name}_sg{i}
        buffer_atomic_add v2, v1, s[{W}:{W+3}], s82 offen sc1
{name}_sg{i}:
        s_mov_b64 exec, s[80:81]
        """)

    def wait(i, n):
        a(f"v_mov_b32 v1, 0\ns_mov_b32 s82, {WS_F + F_CNT + 128 * i}")
        a.label(f"{name}_w{i}")
        wd_code(a, f"fftwait{i}")
        a(f"""
        s_sleep 8
        buffer_load_dword v2, v1, s[{W}:{W+3}], s82 offen sc1
        s_waitcnt vmcnt(0)
        v_cmp_ne_u32 vcc, {n-1}, v2
        s_cbranch_vccnz {name}_w{i}
        """)

    def tasks(tag, fn, first, stride, n, base_sreg):
        a(f"s_add_u32 s93, s{base_sreg}, {first}")
        a(f"s_cmp_lt_u32 s93, {n}\ns_cbranch_scc0 {name}_{tag}e")
        a.label(f"{name}_{tag}l")
        fn()
        a(f"s_add_u32 s93, s93, {stride}\ns_cmp_lt_u32 s93, {n}\ns_cbranch_scc1 {name}_{tag}l")
        a.label(f"{name}_{tag}e")
    DF2 = E("DF2", 0)
    if E("NI", 64) == 32:
        a(f"s_cmp_eq_u32 s{S_G}, 2\ns_cbranch_scc1 {name}_noinit")
        init_cd(a, name, S_H)
        if E("WOT", 1):
            a(f"""
            s_load_dwordx2 s[4:5], s[0:1], {KA_WO}
            v_lshlrev_b32 v1, 7, v0
            s_lshl_b32 s8, s{S_H}, 15
            s_waitcnt lgkmcnt(0)
            s_mov_b32 s6, {8*MB}
            s_mov_b32 s7, 0x00020000
            """)
            for i in range(8):
                a(f"buffer_load_dword v250, v1, s[4:7], s8 offen\ns_add_u32 s8, s8, {MB}")
            a("s_waitcnt vmcnt(0)")
        a.label(f"{name}_noinit")
    else:
        init_cd(a, name, S_F)
    if E("CDH", 0):
        if E("CDH", 0) == 1: a(f"s_cmp_eq_u32 s{S_G}, 2\ns_cbranch_scc1 {name}_nohold")
        sync("h")(2)
        a(f"""
        s_xor_b32 s76, s98, 1
        s_lshl_b32 s76, s76, 13
        s_lshl_b32 s77, s{S_H}, 7
        s_add_u32 s76, s76, s77
        s_add_u32 s76, s76, {WS_F + F_K}
        v_mov_b32 v1, 0
{name}_hold:
        s_sleep 12
        """)
        wd_code(a, "hold")
        a(f"""
        buffer_load_dword v2, v1, s[{W}:{W+3}], s76 offen sc1
        s_waitcnt vmcnt(0)
        v_cmp_gt_i32 vcc, 1, v2
        s_cbranch_vccnz {name}_hold
{name}_nohold:
        """)
    ts(2)
    a(f"s_cmp_eq_u32 s{S_G}, 2\ns_cbranch_scc0 {name}_rd")
    qx_role(a, name + "_q", ts, sync("c"))
    a.label(f"{name}_rd")
    fs = [lambda: gen_f1(a, name + "_f1", 93, 32, 128), lambda: gen_f0(a, name + "_f0", 93, 32, 288)]
    if E("F0FIRST", 1): fs.reverse()
    a(f"s_mov_b32 s93, s{S_H}")
    fs[0]()
    ts(5)
    if E("FGAP", 0):
        a(f"s_mov_b32 s76, {E('FGAP', 0)}")
        a.label(f"{name}_fg")
        a(f"s_sleep 32\ns_sub_u32 s76, s76, 1\ns_cmp_lg_u32 s76, 0\ns_cbranch_scc1 {name}_fg")
    a(f"s_mov_b32 s93, s{S_H}\ns_waitcnt vmcnt(0)")
    fs[1]()
    sync("d")(2)
    signal(0)
    ts(6)
    a(f"s_add_u32 s38, s{S_H}, {129 - DF2}\ns_mov_b32 s39, 32\ns_mov_b32 s37, 129")
    a(f"s_cmp_lt_u32 s38, 129\ns_cbranch_scc1 {name}_f2s\ns_branch {name}_f2e")
    a.label(f"{name}_rk")
    kv_role(a, name + "_k", False, ts, sync("k"))
    a(f"s_branch {name}_fft")
    a.label(f"{name}_rv")
    kv_role(a, name + "_v", True, ts, sync("v"))
    a.label(f"{name}_fft")
    ts(4)
    a(f"s_mov_b32 s38, s{S_F}\ns_mov_b32 s39, 64\ns_mov_b32 s37, {129 - DF2}")
    a.label(f"{name}_f2s")
    wait(0, 32)
    gen_f2(a, name + "_f2", 38, "s39", "s37")
    a.label(f"{name}_f2e")
    signal(1)
    ts(7)
    KS = E("KS", 62)
    assert KS % 2 == 0
    a(f"""
    s_mov_b32 s{S_O0}, 0
    s_mov_b32 s{S_O1}, {KS}
    s_lshl_b32 s{S_OI}, s{S_H}, 13
    s_add_u32 s{S_OI}, s{S_OI}, {WS_OI}
    s_mov_b32 s{S_OT}, 0
    s_mov_b32 s{S_OX}, 8192
    s_mov_b32 s{S_OM}, 1
    s_cmp_eq_u32 s{S_G}, 3
    s_cbranch_scc1 {name}_out
    """)
    wait(1, 96)
    a(f"s_mov_b32 s93, s{S_F}")
    gen_f3(a, name + "_f3", 93, 64, 128)
    ts(8)
    a(f"""
    s_waitcnt vmcnt(0)
    s_barrier
    s_mov_b32 s{S_O0}, {KS}
    s_mov_b32 s{S_O1}, 63
    s_add_u32 s{S_OI}, s{S_OI}, {32 * 8192}
    s_mov_b32 s{S_OT}, {(KS >> 1) & 1}
    s_cmp_eq_u32 s{S_G}, 0
    s_cbranch_scc1 {name}_out
    s_mov_b32 s{S_O0}, 63
    s_mov_b32 s{S_O1}, 64
    s_lshr_b32 s{S_OI}, s{S_H}, 2
    s_lshl_b32 s{S_OI}, s{S_OI}, 17
    s_and_b32 s{S_OT}, s{S_H}, 3
    s_lshl_b32 s{S_OT}, s{S_OT}, 12
    s_add_u32 s{S_OI}, s{S_OI}, s{S_OT}
    s_add_u32 s{S_OI}, s{S_OI}, {WS_I + 114688}
    s_mov_b32 s{S_OT}, 1
    s_mov_b32 s{S_OX}, 4096
    s_mov_b32 s{S_OM}, 0
    """)
    a.label(f"{name}_out")
    out_role(a, name + "_o", lambda i: ts(i + 6))
    a.label(f"{name}_exit")
    a("s_endpgm")
    a.label(f"{name}_recf")
    rec_body(a, name + "_rf", "", sync("r"), prof=bool(E("PROF", 0)), ts=ts)
    a.label(f"{name}_recs")
    rec_body(a, name + "_rs", "sc1", sync("s"))
    return kd(name, 512, sgpr=102, accum=256)


def build(path, force_slow=False):
    a = Asm()
    k = gen_mega(a, "mega_kernel", force_slow)
    out = HEADER + f"; @launch kernel=mega_kernel grid=(256,1,1) block=(256,1,1) lds={LDS}\n"
    out += '.amdgcn_target "amdgcn-amd-amdhsa--gfx950"\n.text\n' + a.text() + '.section .rodata,"a"\n' + k
    if E("PLAIN", 0):
        import re
        out = out.replace("; @launch kernel=mega_kernel grid", "; @launch grid")
        out = re.sub(r"\bmega_kernel\b", KNAME + "_kernel", out).replace("mega_kernel_", "mk_")
    open(path, "w").write(out)
    import json
    json.dump(WD_SITES, open("wd.json", "w"))


if __name__ == "__main__":
    build(sys.argv[1] if len(sys.argv) > 1 else "mega.s", force_slow=("slow" in sys.argv))
```

```python
from gen_common import *

S_X, S_T = 30, 31
S_WSD, S_DBG = 84, 72
E = lambda k, d: int(os.environ.get(k, d))


D_VOTE, D_PD, D_SLOW, D_PD2 = 128, 160, 192, 224
NI = E('NI', 32)


def start_code(a: Asm, name):
    W, D = S_WSD, S_DBG
    a(f"""
    s_load_dwordx2 s[{W}:{W+1}], s[0:1], {KA_WS}
    s_load_dwordx2 s[{D}:{D+1}], s[0:1], {KA_DBG}
    s_getreg_b32 s90, hwreg(HW_REG_XCC_ID)
    s_and_b32 s90, s90, 7
    v_mov_b32 v1, 0
    v_mov_b32 v2, 1
    s_lshl_b32 s91, s90, 4
    s_mov_b32 s95, 0
    s_mov_b32 s99, 0
    s_waitcnt lgkmcnt(0)
    s_mov_b32 s{W+2}, {WS_BYTES}
    s_mov_b32 s{W+3}, 0x00020000
    s_mov_b32 s{D+2}, 256
    s_mov_b32 s{D+3}, 0x00020000
    v_cmp_eq_u32 vcc, 0, v0
    s_and_saveexec_b64 s[88:89], vcc
    s_cbranch_execz {name}_tkd
    s_lshl_b32 s92, s2, 13
    s_add_u32 s92, s92, {WS_CAL}
    buffer_atomic_add v2, v1, s[{D}:{D+3}], s91 offen sc0
    buffer_load_dword v251, v1, s[{W}:{W+3}], s92 offen offset:2048 sc1
    s_waitcnt vmcnt(1)
    ds_write_b32 v1, v2
    s_waitcnt lgkmcnt(0)
{name}_tkd:
    s_mov_b64 exec, s[88:89]
    s_barrier
    ds_read_b32 v2, v1
    s_waitcnt lgkmcnt(0)
    v_readfirstlane_b32 s96, v2
    s_barrier
    """)


def sync_issue(a: Asm, vt):
    a(f"""
    v_and_b32 v{vt+1}, 15, v0
    v_lshlrev_b32 v{vt+1}, 4, v{vt+1}
    buffer_load_dword v{vt}, v{vt+1}, s[{S_DBG}:{S_DBG+3}], 0 offen sc1
    """)


def sync_code(a: Asm, kname, tag, vt, force_slow=False, pre=False):
    D = S_DBG
    n = f"{kname}_sy{tag}"
    a(f"""
    v_and_b32 v{vt+1}, 15, v0
    v_lshlrev_b32 v{vt+1}, 4, v{vt+1}
    s_branch {n}{"p" if pre else ""}
{n}w:
    s_sleep 4
{n}:
    """)
    wd_code(a, n)
    a(f"""
    buffer_load_dword v{vt}, v{vt+1}, s[{D}:{D+3}], 0 offen sc1
    s_waitcnt vmcnt(0)
{n}p:
    s_cmp_eq_u32 s95, 1
    s_cbranch_scc0 {n}f
    v_readlane_b32 s76, v{vt}, {D_PD2 // 16}
    s_mov_b32 s98, 0
    s_cmp_eq_u32 s76, {NI}
    s_cbranch_scc0 {n}w
    s_branch {n}d
{n}f:
    s_mov_b32 s77, 0
    s_mov_b32 s78, 0
    """)
    for i in range(8):
        a(f"v_readlane_b32 s76, v{vt}, {i}\ns_add_u32 s77, s77, s76\ns_xor_b32 s76, s76, 32\ns_or_b32 s78, s78, s76")
    a(f"""
    s_cmp_eq_u32 s77, 256
    s_cbranch_scc0 {n}w
    {"s_mov_b32 s78, 1" if force_slow else ""}
    v_mov_b32 v252, v{vt}
    s_cmp_eq_u32 s78, 0
    s_cbranch_scc0 {kname}_slowent
    v_readlane_b32 s76, v{vt}, {D_PD // 16}
    v_readlane_b32 s77, v{vt}, {D_VOTE // 16}
    s_cmp_eq_u32 s76, {NI}
    s_cbranch_scc0 {n}w
    s_cmp_gt_u32 s77, {NI // 2}
    s_cselect_b32 s98, 1, 0
    {f"s_xor_b32 s98, s98, {os.environ['PAR']}" if "PAR" in os.environ else ""}
{n}d:
    """)


def slow_entry(a: Asm, name):
    D = S_DBG
    a.label(f"{name}_slowent")
    a(f"""
    s_mov_b64 exec, -1
    s_waitcnt vmcnt(0) lgkmcnt(0)
    s_barrier
    s_mov_b32 s97, s96
    """)
    for i in range(7):
        a(f"v_readlane_b32 s76, v252, {i}\ns_cmp_gt_u32 s90, {i}\ns_cselect_b32 s76, s76, 0\ns_add_u32 s97, s97, s76")
    a(f"""
    v_mov_b32 v1, 0
    v_mov_b32 v2, 1
    v_cmp_eq_u32 vcc, 0, v0
    s_and_saveexec_b64 s[88:89], vcc
    s_cbranch_execz {name}_sb1
    buffer_atomic_add v2, v1, s[{D}:{D+3}], 0 offen offset:{D_SLOW} sc1
{name}_sb1:
    s_mov_b64 exec, s[88:89]
{name}_sb2:
    s_sleep 4
    """)
    wd_code(a, "slowbar")
    a(f"""
    buffer_load_dword v2, v1, s[{D}:{D+3}], 0 offen offset:{D_SLOW} sc1
    s_waitcnt vmcnt(0)
    v_cmp_ne_u32 vcc, 256, v2
    s_cbranch_vccnz {name}_sb2
    s_mov_b32 s95, 1
    """)


def init_cd(a: Asm, name, idx):
    W, D = S_WSD, S_DBG
    a(f"""
    v_mov_b32 v8, -1
    v_mov_b32 v9, -1
    v_mov_b32 v10, -1
    v_mov_b32 v11, -1
    v_lshlrev_b32 v1, 4, v0
    v_mov_b32 v2, 0
    v_cmp_gt_u32 vcc, 64, v0
    s_cbranch_vccz {name}_nv
    s_cmp_eq_u32 s95, 0
    s_cbranch_scc0 {name}_nv
    ; latency samples of both parities (order alternates with idx), sign vote
    s_lshr_b32 s60, s2, 1
    s_lshl_b32 s60, s60, 14
    s_and_b32 s61, s{idx}, 1
    s_lshl_b32 s66, s61, 13
    s_add_u32 s60, s60, s66
    s_and_b32 s66, s2, 1
    s_lshl_b32 s66, s66, 10
    s_add_u32 s60, s60, s66
    s_add_u32 s60, s60, {WS_CAL}
    s_mov_b32 s66, 0x7fffffff
    s_mov_b32 s67, 0x7fffffff
    s_mov_b64 exec, 0xff
    s_waitcnt vmcnt(0)
    """)
    for i in range(E("NSAMP", 4)):
        a(f"""
        s_memtime s[62:63]
        s_waitcnt lgkmcnt(0)
        buffer_store_dwordx4 v[8:11], v1, s[{W}:{W+3}], s60 offen offset:{256 * (i >> 1)} sc1
        s_waitcnt vmcnt(0)
        s_memtime s[64:65]
        s_xor_b32 s60, s60, 8192
        s_waitcnt lgkmcnt(0)
        s_sub_u32 s64, s64, s62
        s_min_u32 s{66 + (i & 1)}, s{66 + (i & 1)}, s64
        """)
    a(f"""
    s_cmp_lt_u32 s67, s66
    s_cselect_b32 s60, 1, 0
    s_xor_b32 s60, s60, s61          ; parity that is near this XCD
    s_lshr_b32 s61, s90, 2
    s_xor_b32 s60, s60, s61
    v_mov_b32 v3, s60
    s_mov_b64 exec, 1
    buffer_atomic_add v3, v2, s[{D}:{D+3}], 0 offen offset:{D_VOTE} sc1
    s_mov_b64 exec, -1
{name}_nv:
    s_barrier
    s_lshl_b32 s60, s{idx}, 12
    s_add_u32 s60, s60, {WS_H}
    """)
    for i in range(512 // NI):
        a(f"buffer_store_dwordx4 v[8:11], v1, s[{W}:{W+3}], s60 offen sc1")
        a(f"s_add_u32 s60, s60, {NI * 4096}")
    a(f"""
    s_lshr_b32 s62, s{idx}, 1
    s_and_b32 s63, s{idx}, 1
    s_add_u32 s63, s63, s62
    s_lshl_b32 s62, s62, 19
    s_and_b32 s64, s63, 14
    s_lshl_b32 s64, s64, 13
    s_add_u32 s62, s62, s64
    s_and_b32 s64, s63, 1
    s_lshl_b32 s64, s64, 12
    s_add_u32 s62, s62, s64
    s_add_u32 s62, s62, {WS_XU}
    {"" if E("TAG", 1) else f"buffer_store_dwordx4 v[8:11], v1, s[{W}:{W+3}], s62 offen sc1"}
    s_add_u32 s62, s62, 8192
    {"" if E("TAG", 1) else f"buffer_store_dwordx4 v[8:11], v1, s[{W}:{W+3}], s62 offen sc1"}
    s_cmp_lt_u32 s{idx}, 16
    s_cbranch_scc0 {name}_pz
    buffer_store_dwordx4 v[8:11], v1, s[{W}:{W+3}], s60 offen sc1
{name}_pz:
    s_waitcnt vmcnt(0)
    s_barrier
    v_mov_b32 v3, 1
    s_lshl_b32 s62, s95, 6
    v_cmp_eq_u32 vcc, 0, v0
    s_and_saveexec_b64 s[60:61], vcc
    s_cbranch_execz {name}_xps
    buffer_atomic_add v3, v2, s[{D}:{D+3}], s62 offen offset:{D_PD} sc1
{name}_xps:
    s_mov_b64 exec, s[60:61]
    """)


def rec_body(a: Asm, name, IS, sync, nsteps=64, prof=False, flags=True, ts=None):
    W = S_WSD
    SRD = f"s[{W}:{W+3}]"
    S_WQ, S_WK, S_WV, S_WO, S_M0 = 4, 8, 12, 16, 20
    S_WAVE, S_H, S_J, S_STEP, S_T0, S_T1 = 24, 25, 26, 27, 28, 29
    S_C = 32
    S_SL, S_SLO = 33, 34
    S_XS, S_XSO = 35, 36
    S_P = 37
    S_MN8, S_MMEM = 40, 42
    S_XBR, S_XBW = 44, 45
    S_KVN = 46
    S_KVB, S_FLB, S_CU, S_KXB, S_TAG = 79, 81, 82, 83, 47
    S_LATE, S_WARM = 36, 89
    ONE, LS, ZER = 220, 224, 228
    S_MKM = 48
    V_L, V_G, V_M, V_T0, V_T1, V_IDX = 1, 2, 3, 4, 5, 6
    V_OMEM, V_OM0, V_OPUB, V_OSCM, V_OOP, V_OXW, V_OXR = 7, 8, 9, 10, 11, 12, 13
    V_LWQ, V_LWK, V_LRR, V_LL, V_LWO, V_LRO, V_LVW, V_LVR, V_OKV, V_NEG, V_OFL = 14, 15, 16, 17, 18, 19, 20, 21, 22, 23, 24
    V_POI = 28
    MA, AQ, AV = 32, 96, 112
    RP, R, KX, VTX, S, PL = 120, 152, 156, 164, 172, 184
    VM, P, PM, O, TMP = 208, 212, 216, 120, 232
    MO, AO, KVH = 32, 96, 244
    A_W1, A_WO = 0, 192
    L_QK, L_VP, L_OP, L_VM, L_XB, L_ST = 0, 9216, 13312, 17920, 18432, 32768

    TAG = E("TAG", 1)
    WPAD, SCS = E("WPAD", 0), E("SCS", 2048)
    OXO, SCO = 24576, 49152

    def wdog():
        wd_code(a, name + ":" + a.lines[-1], f"s{S_STEP}")

    def stamp(i):
        if E("TR", 0):
            if i == 0: return
            if i < 11: a(f"s_memtime s[{48+2*i}:{49+2*i}]")
            if i == 11:
                a("s_memrealtime s[70:71]\ns_memtime s[100:101]\ns_waitcnt lgkmcnt(0)\nv_writelane_b32 v250, s100, 12")
                for k in range(1, 12):
                    a(f"v_writelane_b32 v250, s{48+2*k}, {k}")
                a(f"v_writelane_b32 v250, s99, 0")
                a(f"""
                s_lshl_b32 s80, s{S_X}, 5
                s_add_u32 s80, s80, s{S_T}
                s_lshl_b32 s80, s80, 2
                s_add_u32 s80, s80, s{S_WAVE}
                s_lshl_b32 s80, s80, 6
                s_add_u32 s80, s80, s{S_STEP}
                s_lshl_b32 s80, s80, 6
                s_add_u32 s80, s80, {WS_PROF}
                v_lshlrev_b32 v251, 2, v{V_L}
                s_mov_b64 exec, 0xffff
                buffer_store_dword v250, v251, {SRD}, s80 offen
                s_mov_b64 exec, -1
                """)
            return
        if not prof or i == 11:
            return
        a("s_memtime s[66:67]")
        a("s_waitcnt lgkmcnt(0)")
        a("s_sub_u32 s68, s66, s69")
        a(f"s_add_u32 s{50+i}, s{50+i}, s68")
        a("s_mov_b32 s69, s66")

    if prof:
        for i in range(16):
            a(f"s_mov_b32 s{50+i}, 0")
        a("s_memtime s[66:67]\ns_waitcnt lgkmcnt(0)\ns_mov_b32 s69, s66")
    if ts: ts(1)
    a(f"""
    s_load_dwordx2 s[{S_M0}:{S_M0+1}], s[0:1], {KA_MEM0}
    s_load_dwordx2 s[{S_WO}:{S_WO+1}], s[0:1], {KA_WO}
    s_load_dwordx2 s[{S_WQ}:{S_WQ+1}], s[0:1], {KA_WQ}
    s_load_dwordx2 s[{S_WK}:{S_WK+1}], s[0:1], {KA_WK}
    s_load_dwordx2 s[{S_WV}:{S_WV+1}], s[0:1], {KA_WV}
    v_lshrrev_b32 v{V_T0}, 6, v0
    v_and_b32 v{V_L}, 63, v0
    v_readfirstlane_b32 s{S_WAVE}, v{V_T0}
    v_lshrrev_b32 v{V_G}, 4, v{V_L}
    v_and_b32 v{V_M}, 15, v{V_L}
    v_lshlrev_b32 v{V_LL}, 4, v{V_L}
    s_lshr_b32 s{S_T0}, s{S_T}, 2
    s_lshl_b32 s{S_H}, s{S_X}, 3
    s_add_u32 s{S_H}, s{S_H}, s{S_T0}
    s_and_b32 s{S_J}, s{S_T}, 3
    s_waitcnt lgkmcnt(0)
    s_mov_b32 s{S_M0+2}, 16384
    s_mov_b32 s{S_M0+3}, 0x00020000
    """)
    for s in (S_WO, S_WQ, S_WK, S_WV):
        a(f"s_mov_b32 s{s+2}, {8*MB}\ns_mov_b32 s{s+3}, 0x00020000")
    FULL = E("FULL", 0)
    CL = 2 + FULL
    a(f"""
    s_lshl_b32 s{S_T0}, s{S_H}, 8
    s_lshr_b32 s{S_T1}, s{S_J}, {FULL}
    s_lshl_b32 s{S_T1}, s{S_T1}, {6 + FULL}
    s_add_u32 s{S_T0}, s{S_T0}, s{S_T1}
    s_lshl_b32 s{S_T1}, s{S_WAVE}, 21
    s_add_u32 s{S_T0}, s{S_T0}, s{S_T1}
    v_lshrrev_b32 v{V_T0}, {CL}, v{V_L}
    v_and_b32 v{V_T1}, {(1 << CL) - 1}, v{V_L}
    v_lshlrev_b32 v40, 13, v{V_T0}
    v_lshl_add_u32 v40, v{V_T1}, 4, v40
    v_add_u32 v40, s{S_T0}, v40
    s_lshl_b32 s{S_T0}, s{S_X}, 21
    s_lshl_b32 s{S_T1}, s{S_WAVE}, 19
    s_add_u32 s{S_T0}, s{S_T0}, s{S_T1}
    s_lshr_b32 s{S_T1}, s{S_T}, {FULL}
    s_lshl_b32 s{S_T1}, s{S_T1}, {6 + FULL}
    s_add_u32 s{S_T0}, s{S_T0}, s{S_T1}
    v_lshlrev_b32 v41, 11, v{V_T0}
    v_lshl_add_u32 v41, v{V_T1}, 4, v41
    v_add_u32 v41, s{S_T0}, v41
    s_lshl_b32 s47, s{S_WAVE}, 15
    s_add_u32 s47, s47, {L_ST}
    """)
    order = [int(c) for c in os.environ.get("WORD", "1203")]
    PH = [(c, p) for c in order for p in range(1 << FULL)]
    RI = 64 >> CL

    def wdma(n):
        c, p = PH[n]
        srd = (S_WQ, S_WK, S_WV, S_WO)[c]
        if E("HELP", 1):
            a(f"buffer_load_dword v50, v{51 if c < 3 else 52}, s[{srd}:{srd+3}], 0 offen")
        for r in range(16):
            if E("PSW", 1):
                a(f"s_xor_b32 s{S_T1}, s76, {r}")
                a(f"s_lshl_b32 s{S_T0}, s{S_T1}, 10")
                a(f"s_add_u32 s{S_T0}, s{S_T0}, s47")
                a(f"s_add_u32 m0, s{S_T0}, {(n & 1)*16384}")
                a(f"s_lshl_b32 s{S_T1}, s{S_T1}, {17 if c < 3 else 15}")
            else:
                a(f"s_add_u32 m0, s47, {(n & 1)*16384 + 1024*r}")
                a(f"s_mov_b32 s{S_T1}, {RI * (16 * p + r) * (8192 if c < 3 else 2048)}")
            a(f"buffer_load_dwordx4 v{40 if c < 3 else 41}, s[{srd}:{srd+3}], s{S_T1} offen {'nt ' if (E('RNT', 0) >> c) & 1 else ''}lds")
    WT = E("WT", 0)
    assert not (WT and FULL)
    a(f"""
    s_lshl_b32 s{S_T0}, s{S_T}, 18
    s_lshl_b32 s{S_T1}, s{S_WAVE}, 16
    s_add_u32 s{S_T0}, s{S_T0}, s{S_T1}
    s_lshl_b32 s{S_T1}, s{S_X}, 11
    s_add_u32 s{S_T0}, s{S_T0}, s{S_T1}
    v_lshlrev_b32 v48, 13, v{V_G}
    v_lshl_add_u32 v48, v{V_M}, 7, v48
    v_add_u32 v48, s{S_T0}, v48
    s_lshl_b32 s{S_T0}, s{S_X}, 21
    s_lshl_b32 s{S_T1}, s{S_T}, 16
    s_add_u32 s{S_T0}, s{S_T0}, s{S_T1}
    s_lshl_b32 s{S_T1}, s{S_WAVE}, 14
    s_add_u32 s{S_T0}, s{S_T0}, s{S_T1}
    v_lshlrev_b32 v49, 7, v{V_L}
    v_add_u32 v49, s{S_T0}, v49
    """)

    a(f"""
    s_and_b32 s76, s{S_T}, 1
    s_mul_i32 s76, s76, {E("PSW", 1) * 8 if E("PSW", 1) < 2 else E("PSW", 1)}
    ; helper touch of the slow lines: row = 256w + 16*(l&15... ) : rows w*256 + (t&15)*16 + (l&15), col (t>>4)*1024 + 384
    s_and_b32 s{S_T0}, s{S_T}, 15
    s_lshl_b32 s{S_T0}, s{S_T0}, 4
    s_lshl_b32 s{S_T1}, s{S_WAVE}, 8
    s_add_u32 s{S_T0}, s{S_T0}, s{S_T1}
    v_add_u32 v53, s{S_T0}, v{V_M}
    s_lshr_b32 s{S_T0}, s{S_T}, 4
    s_lshl_b32 s{S_T0}, s{S_T0}, 10
    s_add_u32 s{S_T0}, s{S_T0}, 384
    v_mov_b32 v54, s{S_T0}
    v_mov_b32 v55, 1920
    v_cmp_gt_u32 vcc, 32, v{V_L}
    s_nop 1
    v_cndmask_b32 v54, v55, v54, vcc
    s_lshl_b32 s{S_T1}, s{S_X}, 11
    v_lshl_add_u32 v51, v53, 13, v54
    v_add_u32 v51, s{S_T1}, v51
    s_lshl_b32 s{S_T1}, s{S_X}, 21
    v_lshl_add_u32 v52, v53, 11, v54
    v_add_u32 v52, s{S_T1}, v52
    """)

    NSELF = E("NSELF", 0)
    XF, XA = 64, 192
    if NSELF:
        assert order[:2] == [1, 2] and not FULL
        a(f"""
        s_load_dwordx2 s[56:57], s[0:1], {KA_AX}
        v_lshrrev_b32 v56, 1, v{V_G}
        v_lshlrev_b32 v56, 5, v56
        v_and_b32 v57, 1, v{V_G}
        v_lshl_add_u32 v56, v57, 3, v56
        v_lshl_add_u32 v56, v{V_M}, 11, v56
        s_lshl_b32 s{S_T0}, s{S_WAVE}, 9
        v_add_u32 v56, s{S_T0}, v56
        s_mov_b32 s58, {4*MB}
        s_mov_b32 s59, 0x00020000
        s_waitcnt lgkmcnt(0)
        """)
        for zt in range(2 * NSELF):
            a(f"s_mov_b32 s{S_T1}, {zt * 32768}")
            for hk in range(8):
                f = XF + (zt * 8 + hk) * 4
                a(f"buffer_load_dwordx2 v[{f}:{f+1}], v56, s[56:59], s{S_T1} offen offset:{64*hk}")
                a(f"buffer_load_dwordx2 v[{f+2}:{f+3}], v56, s[56:59], s{S_T1} offen offset:{64*hk+16}")

    def selfproj(isV):
        if not isV:
            for f in range(16 * NSELF):
                a(f"v_swap_b32 v{XF+4*f+1}, v{XF+4*f+2}")
            a(f"""
            s_lshl_b32 s{S_T0}, s{S_WAVE}, 12
            v_add_u32 v57, s{S_T0}, v{V_LL}
            v_lshlrev_b32 v60, 3, v0
            v_add_u32 v60, {L_XB}, v60
            v_bfe_u32 v61, v0, 1, 4
            v_lshlrev_b32 v58, 4, v61                    ; m*16
            v_and_b32 v61, 1, v0
            v_lshrrev_b32 v62, 5, v0
            v_lshl_add_u32 v59, v61, 11, v58             ; V: tt*2048
            v_lshl_add_u32 v59, v62, 8, v59              ;   + u*1024 + g*256
            v_lshl_add_u32 v58, v61, 8, v58              ; K: hf*256
            v_lshl_add_u32 v58, v62, 9, v58              ;   + (tt*2048 + u*1024 + (g'&1)*512)
            """)
        for z in range(NSELF):
            for hk in range(8):
                for tt in range(2):
                    for u in range(2):
                        d, f = XA + 8 * tt + 4 * u, XF + ((2 * z + tt) * 8 + hk) * 4
                        w = A_W1 + (((2 if isV else 1) * 2 + u) * 4 + (hk >> 1)) * 8 + 4 * (hk & 1)
                        c = "0" if hk == 0 else f"v[{d}:{d+3}]"
                        if isV: a(f"v_mfma_f32_16x16x32_bf16 v[{d}:{d+3}], v[{f}:{f+3}], a[{w}:{w+3}], {c}")
                        else: a(f"v_mfma_f32_16x16x32_bf16 v[{d}:{d+3}], a[{w}:{w+3}], v[{f}:{f+3}], {c}")
            a("s_barrier")
            a.nops(8)
            for i in range(4):
                a(f"ds_write_b128 v57, v[{XA+4*i}:{XA+4*i+3}] offset:{1024*i}")
            a("s_waitcnt lgkmcnt(0)\ns_barrier")
            for w in range(4):
                a(f"ds_read_b128 v[{XA+16+4*w}:{XA+16+4*w+3}], v{59 if isV else 58} offset:{4096*w}")
            a("s_waitcnt lgkmcnt(0)")
            b = XA + 16
            for i in (0, 2):
                a(f"v_pk_add_f32 v[{b+i}:{b+i+1}], v[{b+i}:{b+i+1}], v[{b+4+i}:{b+4+i+1}]")
                a(f"v_pk_add_f32 v[{b+8+i}:{b+8+i+1}], v[{b+8+i}:{b+8+i+1}], v[{b+12+i}:{b+12+i+1}]")
            for i in (0, 2):
                a(f"v_pk_add_f32 v[{b+i}:{b+i+1}], v[{b+i}:{b+i+1}], v[{b+8+i}:{b+8+i+1}]")
            a(f"v_cvt_pk_bf16_f32 v{b+4}, v{b}, v{b+1}\nv_cvt_pk_bf16_f32 v{b+5}, v{b+2}, v{b+3}")
            a(f"ds_write_b64 v60, v[{b+4}:{b+5}] offset:{4096*z + (2048 if isV else 0)}")

    def wtouch(n):
        c, p = PH[n]
        srd = (S_WQ, S_WK, S_WV, S_WO)[c]
        for i in range(2):
            a(f"s_mov_b32 s{S_T1}, {i * (32768 if c < 3 else 8192)}")
            a(f"buffer_load_dword v50, v{48 if c < 3 else 49}, s[{srd}:{srd+3}], s{S_T1} offen")
    if WT == 1:
        wtouch(0); wtouch(1); wdma(0); wtouch(2); wdma(1); wtouch(3)
    elif WT == 2:
        wtouch(0); wtouch(1); wtouch(2); wtouch(3); wdma(0); wdma(1)
    else:
        wdma(0); wdma(1)
    a(f"""
    s_mov_b32 s{S_MN8}, 0x00ff00ff
    s_mov_b32 s{S_MN8+1}, 0x00ff00ff
    s_mov_b32 s{S_MKM}, 0xff00ff00
    s_mov_b32 s{S_MKM+1}, 0xff00ff00
    s_mov_b32 s{S_MMEM}, 0
    s_mov_b32 s{S_MMEM+1}, 0x00ff00ff
    s_mov_b32 s{S_C}, 0x3e0293ee
    v_mov_b32 v{V_NEG}, 0xff800000
    v_mov_b32 v{V_IDX}, 0x4444
    v_mov_b32 v{V_T0}, 0xeeee
    v_cndmask_b32 v{V_IDX}, v{V_IDX}, v{V_T0}, s[{S_MKM}:{S_MKM+1}]
    v_mov_b32 v{V_POI}, -1
    v_mov_b32 v{V_POI+1}, -1
    v_mov_b32 v{V_POI+2}, -1
    v_mov_b32 v{V_POI+3}, -1
    s_mul_i32 s{S_T0}, s{S_WAVE}, {4096 + WPAD}
    v_add_u32 v{V_OMEM}, s{S_T0}, v{V_LL}
    v_and_b32 v{V_T0}, 7, v{V_L}
    v_lshlrev_b32 v{V_OM0}, 11, v{V_T0}
    v_lshrrev_b32 v{V_T1}, 3, v{V_L}
    v_lshl_add_u32 v{V_OM0}, v{V_T1}, 4, v{V_OM0}
    s_lshl_b32 s{S_T0}, s{S_WAVE}, 9
    v_add_u32 v{V_OM0}, s{S_T0}, v{V_OM0}
    s_lshl_b32 s{S_T0}, s{S_T}, 9
    s_lshr_b32 s{S_T1}, s{S_T}, 3
    s_mul_i32 s{S_T1}, s{S_T1}, {WPAD}
    s_add_u32 s{S_T0}, s{S_T0}, s{S_T1}
    v_lshlrev_b32 v{V_OPUB}, 3, v{V_L}
    v_add_u32 v{V_OPUB}, s{S_T0}, v{V_OPUB}
    ; o publish: 16384 + t*512 + g*128 + (m&7)*16
    v_and_b32 v{V_T0}, 7, v{V_M}
    v_lshlrev_b32 v{V_OOP}, 7, v{V_G}
    v_lshl_add_u32 v{V_OOP}, v{V_T0}, 4, v{V_OOP}
    v_add_u32 v{V_OKV}, 0, v{V_OOP}              ; g*128 + (m&7)*16 (k_m publish)
    s_add_u32 s{S_T0}, s{S_T0}, {OXO}
    v_add_u32 v{V_OOP}, s{S_T0}, v{V_OOP}
    v_and_b32 v{V_T1}, 1, v{V_G}
    v_lshlrev_b32 v{V_OSCM}, 7, v{V_T1}
    v_lshl_add_u32 v{V_OSCM}, v{V_T0}, 4, v{V_OSCM}
    v_add_u32 v{V_OSCM}, 1024, v{V_OSCM}
    ; partner score offsets: 32768 + (t ^ p)*2048, own in S_P+3 (s47 later); kept relative to slot base
    """)
    for p in range(1, 4):
        a(f"""
        s_xor_b32 s{S_P+p-1}, s{S_T}, {p}
        s_mul_i32 s{S_P+p-1}, s{S_P+p-1}, {SCS}
        s_add_u32 s{S_P+p-1}, s{S_P+p-1}, {SCO}
        """)
    a(f"""
    ; LDS: q/k partial write: w*2304 + (4*(g&1))*144 + ((g>>1)*16 + m)*4
    v_and_b32 v{V_T0}, 1, v{V_G}
    v_mul_u32_u24 v{V_LWQ}, 576, v{V_T0}
    v_lshrrev_b32 v{V_T1}, 1, v{V_G}
    v_lshl_add_u32 v{V_T1}, v{V_T1}, 4, v{V_M}
    v_lshl_add_u32 v{V_LWQ}, v{V_T1}, 2, v{V_LWQ}
    s_mul_i32 s{S_T0}, s{S_WAVE}, 1152
    s_add_u32 s{S_T0}, s{S_T0}, {L_OP}
    v_add_u32 v{V_LWO}, s{S_T0}, v{V_LWQ}
    s_mul_i32 s{S_T0}, s{S_WAVE}, 2304
    v_add_u32 v{V_LWQ}, s{S_T0}, v{V_LWQ}
    v_add_u32 v{V_LWK}, 1152, v{V_LWQ}
    ; R read: m*144 + g*32
    v_mul_u32_u24 v{V_LRR}, 144, v{V_M}
    v_lshl_add_u32 v{V_LRR}, v{V_G}, 5, v{V_LRR}
    ; O partial read: L_OP + ((l>>1)&7)*144 + (2*(l>>4) + (l&1))*16
    v_bfe_u32 v{V_T0}, v{V_L}, 1, 3
    v_mul_u32_u24 v{V_LRO}, 144, v{V_T0}
    v_lshl_add_u32 v{V_LRO}, v{V_G}, 5, v{V_LRO}
    v_and_b32 v{V_T0}, 1, v{V_L}
    v_lshl_add_u32 v{V_LRO}, v{V_T0}, 4, v{V_LRO}
    v_add_u32 v{V_LRO}, {L_OP}, v{V_LRO}
    ; v partial write: L_VP + w*1024 + lane*16 ; read (tile u at +512u): L_VP + (l&31)*16
    s_lshl_b32 s{S_T0}, s{S_WAVE}, 10
    s_add_u32 s{S_T0}, s{S_T0}, {L_VP}
    v_add_u32 v{V_LVW}, s{S_T0}, v{V_LL}
    v_and_b32 v{V_T0}, 31, v{V_L}
    v_lshlrev_b32 v{V_LVR}, 3, v{V_T0}
    v_add_u32 v{V_LVR}, {L_VM}, v{V_LVR}
    v_lshrrev_b32 v{V_T0}, 2, v{V_M}             ; r
    v_and_b32 v42, 1, v{V_T0}                    ; r&1
    v_lshrrev_b32 v43, 1, v{V_T0}                ; r>>1
    v_lshrrev_b32 v44, 1, v{V_G}                 ; g>>1
    v_and_b32 v45, 1, v{V_G}                     ; g&1
    v_lshl_add_u32 v46, v44, 4, v42
    v_lshl_add_u32 v46, v45, 2, v46
    v_lshl_add_u32 v46, v43, 3, v46              ; W1 row
    v_lshl_add_u32 v47, v44, 3, v42
    v_lshl_add_u32 v47, v45, 4, v47
    v_lshl_add_u32 v47, v43, 2, v47
    v_and_b32 v{V_T1}, 3, v{V_M}
    v_lshlrev_b32 v{V_T1}, 3, v{V_T1}
    v_lshl_add_u32 v46, v46, {6 + FULL}, v{V_T1}
    v_lshl_add_u32 v47, v47, {6 + FULL}, v{V_T1}
    s_and_b32 s{S_T0}, s{S_T}, {FULL}
    s_lshl_b32 s{S_T0}, s{S_T0}, 6
    s_add_u32 s{S_T0}, s{S_T0}, s47
    v_add_u32 v46, s{S_T0}, v46
    v_add_u32 v47, s{S_T0}, v47
    """)

    def wtr(n):
        c, p = PH[n]
        nk = 4 >> FULL
        for u in range(2):
            for k in range(nk * p, nk * p + nk):
                d = (A_W1 + ((c * 2 + u) * 4 + k) * 8) if c < 3 else (A_WO + (u * 4 + k) * 8)
                for Pp in range(4):
                    off = (n & 1) * 16384 + ((64 * (k - nk * p) + 32 * (Pp >> 1) + 2 * (Pp & 1)) << (6 + FULL)) + 32 * u
                    a(f"ds_read_b64_tr_b16 a[{d+2*Pp}:{d+2*Pp+1}], v{46 if c < 3 else 47} offset:{off}")
                if k & 1:
                    a("s_waitcnt lgkmcnt(0)")
    for n in range(len(PH)):
        a(f"s_waitcnt vmcnt({(16 + E('HELP', 1) + ([4, 2, 0][n] if WT == 1 else 0)) if n + 1 < len(PH) else 0})")
        wtr(n)
        if n + 2 < len(PH): wdma(n + 2)
        if NSELF and n < 2: selfproj(n == 1)
        if n == len(PH) - 2: sync_issue(a, 246)
    sync(246, True)
    if TAG: a(f"""
    ; cross exchange: WS_H + slot*256K + src*64K + (t>>3)*16K + par*8K + (t&7)*1K
    s_lshr_b32 s{S_T0}, s{S_T}, {3 + E("XC", 1)}
    s_lshl_b32 s{S_T0}, s{S_T0}, 14
    s_lshl_b32 s{S_T1}, s98, 13
    s_add_u32 s{S_T0}, s{S_T0}, s{S_T1}
    s_and_b32 s{S_T1}, s{S_T}, {(8 << E("XC", 1)) - 1}
    s_lshl_b32 s{S_T1}, s{S_T1}, {10 - E("XC", 1)}
    s_add_u32 s{S_T0}, s{S_T0}, s{S_T1}
    s_lshl_b32 s{S_T1}, s{S_X}, 16
    s_add_u32 s{S_T0}, s{S_T0}, s{S_T1}
    s_add_u32 s{S_T0}, s{S_T0}, {WS_H}
    v_lshrrev_b32 v{V_OXW}, {E("B16", 1)}, v{V_LL}
    v_add_u32 v{V_OXW}, s{S_T0}, v{V_OXW}
    v_xor_b32 v25, 0x10000, v{V_OXW}
    v_xor_b32 v26, 0x20000, v{V_OXW}
    v_xor_b32 v27, 0x30000, v{V_OXW}
    v_add_u32 v25, {(WS_XU - WS_H) * E("COPY3", 0)}, v25
    v_add_u32 v26, {(WS_XU - WS_H + 4 * MB) * E("COPY3", 0)}, v26
    v_add_u32 v27, {(WS_XU - WS_H + 8 * MB) * E("COPY3", 0)}, v27
    """)
    else: a(f"""
    s_lshr_b32 s{S_T0}, s{S_T}, 2
    s_xor_b32 s{S_T0}, s{S_T0}, s98
    s_and_b32 s{S_T0}, s{S_T0}, 1
    s_lshl_b32 s{S_T0}, s{S_T0}, 13
    s_lshl_b32 s{S_T1}, s{S_T}, 19
    s_add_u32 s{S_T0}, s{S_T0}, s{S_T1}
    s_lshl_b32 s{S_T1}, s{S_X}, 10
    s_add_u32 s{S_T0}, s{S_T0}, s{S_T1}
    s_add_u32 s{S_T0}, s{S_T0}, {WS_XU}
    v_add_u32 v{V_OXW}, s{S_T0}, v{V_LL}
    v_xor_b32 v25, 1024, v{V_OXW}
    v_xor_b32 v26, 2048, v{V_OXW}
    v_xor_b32 v27, 3072, v{V_OXW}
    """)
    a(f"""
    s_lshl_b32 s{S_T0}, s{S_H}, 2
    s_add_u32 s{S_T0}, s{S_T0}, s{S_J}
    s_mov_b32 s{S_CU}, s{S_T0}
    s_lshr_b32 s{S_T1}, s{S_T0}, 3
    s_xor_b32 s{S_T1}, s{S_T1}, s98
    {["", f"s_xor_b32 s{S_T1}, s{S_T1}, 1", f"s_xor_b32 s{S_T1}, s{S_T1}, s{S_T0}"][E("KVPAR", 0)]}
    s_and_b32 s{S_T1}, s{S_T1}, 1
    s_lshl_b32 s{S_T1}, s{S_T1}, 13
    s_lshl_b32 s76, s{S_T0}, 18
    s_add_u32 s76, s76, s{S_T1}
    s_mov_b32 s{S_KXB}, s76
    v_add_u32 v{TMP+8}, s76, v{V_LL}
    v_add_u32 v{TMP+9}, {WS_VT}, v{TMP+8}
    s_lshr_b32 s{S_T1}, s{S_T0}, 4
    s_xor_b32 s{S_T1}, s{S_T1}, s98
    s_and_b32 s{S_T1}, s{S_T1}, 1
    s_lshl_b32 s{S_T1}, s{S_T1}, 13
    s_lshl_b32 s{S_KVB}, s{S_T0}, 17
    s_add_u32 s{S_KVB}, s{S_KVB}, s{S_T1}
    s_add_u32 s{S_KVB}, s{S_KVB}, {WS_KVM}
    ; flags
    s_xor_b32 s{S_T1}, s98, 1
    s_lshl_b32 s{S_T1}, s{S_T1}, 13
    s_lshl_b32 s{S_T0}, s{S_H}, 7
    s_add_u32 s{S_T0}, s{S_T0}, s{S_T1}
    s_add_u32 s{S_T0}, s{S_T0}, {WS_F}
    v_and_b32 v{V_T0}, 1, v{V_L}
    v_lshlrev_b32 v{V_OFL}, 12, v{V_T0}
    v_add_u32 v{V_OFL}, s{S_T0}, v{V_OFL}
    s_lshl_b32 s{S_T1}, s{S_J}, 2
    v_add_u32 v{V_OFL}, s{S_T1}, v{V_OFL}
    s_xor_b32 s{S_FLB}, s98, 1
    s_lshl_b32 s{S_FLB}, s{S_FLB}, 13
    s_lshr_b32 s{S_T1}, s{S_CU}, 6
    s_lshl_b32 s{S_T1}, s{S_T1}, 14
    s_add_u32 s{S_FLB}, s{S_FLB}, s{S_T1}
    s_and_b32 s{S_T1}, s{S_CU}, 63
    s_lshl_b32 s{S_T1}, s{S_T1}, 7
    s_add_u32 s{S_FLB}, s{S_FLB}, s{S_T1}
    s_add_u32 s{S_FLB}, s{S_FLB}, {WS_F + F_KVM}
    v_mov_b32 v{ONE}, 0x3f803f80
    v_mov_b32 v{ONE+1}, 0x3f803f80
    v_mov_b32 v{ONE+2}, 0x3f803f80
    v_mov_b32 v{ONE+3}, 0x3f803f80
    v_mov_b32 v{ZER}, 0
    s_mov_b32 s{S_STEP}, 0
    s_mov_b32 s{S_KVN}, 0
    s_mov_b32 s{S_WARM}, 0
    s_mov_b32 s88, 0
    s_mov_b32 s{S_XBR}, {L_XB}
    s_mov_b32 s{S_XBW}, {L_XB + 4096 * NSELF}
    """)
    V_PK, V_PV = TMP + 8, TMP + 9
    pfn = [0]

    def prefetch(seg_sreg, part=3, chk=True, skip=None):
        i = pfn[0]; pfn[0] += 1
        if flags and chk:
            a(f"""
            s_cmp_gt_i32 s{S_KVN}, s{seg_sreg}
            s_cbranch_scc1 {name}_pf{i}ok
{name}_pf{i}w:
            """)
            wdog()
            a(f"""
            {f'''v_mov_b32 v{V_T0}, 0
            s_mov_b64 exec, 3
            buffer_atomic_add v{V_T0}, v{V_OFL}, {SRD}, 0 offen sc0 sc1
            s_mov_b64 exec, -1''' if E("KAP", 1) else f"buffer_load_dword v{V_T0}, v{V_OFL}, {SRD}, 0 offen sc1"}
            s_waitcnt vmcnt(0)
            v_readlane_b32 s{S_KVN}, v{V_T0}, 0
            v_readlane_b32 s{S_T0}, v{V_T0}, 1
            s_nop 1
            s_min_i32 s{S_KVN}, s{S_KVN}, s{S_T0}
            s_cmp_gt_i32 s{S_KVN}, s{seg_sreg}
            s_cbranch_scc0 {skip or f"{name}_pf{i}w"}
{name}_pf{i}ok:
            """)
        if part is None: return
        a(f"""
        s_add_u32 s77, s{seg_sreg}, s{S_CU}
        s_bfe_u32 s{S_T0}, s77, 0x40002
        s_lshl_b32 s{S_T0}, s{S_T0}, 14
        s_and_b32 s77, s77, 3
        s_lshl_b32 s77, s77, 11
        s_add_u32 s{S_T0}, s{S_T0}, s77
        """)
        if part <= 0:
            a(f"s_add_u32 s{S_T0}, s{S_T0}, s{S_KXB}")
            if part < 0: a(f"s_add_u32 s{S_T0}, s{S_T0}, {WS_VT}")
            for l in range(16):
                a(f"s_buffer_load_dword s78, {SRD}, s{S_T0} offset:{128*l}")
            return
        for f in range(4):
            if not (part >> (f >> 1)) & 1: continue
            a(f"s_add_u32 m0, s{S_XBW}, {2048 * (f >> 1)}")
            a("s_nop 0")
            a(f"buffer_load_dwordx4 v{V_PK if f < 2 else V_PV}, {SRD}, s{S_T0} offen offset:{1024 * (f & 1)} sc1 lds")
        if part & 2: a(f"""
        s_add_u32 s{S_XBW}, s{S_XBW}, 4096
        s_cmp_eq_u32 s{S_XBW}, {L_XB + 3 * 4096}
        s_cselect_b32 s{S_XBW}, {L_XB}, s{S_XBW}
        """)

    def flag_store(val_sreg):
        a(f"""
        v_mov_b32 v{V_T1}, s{val_sreg}
        s_mov_b64 exec, 1
        buffer_store_dword v{V_T1}, v{ZER}, {SRD}, s{S_FLB} offen sc1
        s_mov_b64 exec, -1
        """)

    def zero(base, n):
        for i in range(n):
            a(f"v_mov_b32 v{base+i}, 0")

    if ts and E("BPROF", 0):
        ts(2)
        a(f"v_and_b32 v{V_L}, 63, v0\nv_lshrrev_b32 v{V_G}, 4, v{V_L}")
    a(f"s_cmp_eq_u32 s{S_WAVE}, 3\ns_cbranch_scc0 {name}_pfi")
    a(f"s_mov_b32 s76, 0")
    if not NSELF: prefetch(76)
    a("s_waitcnt vmcnt(0) lgkmcnt(0)")
    a.label(f"{name}_pfi")
    zero(PL, 24)
    zero(249, 1)
    zero(AQ, 24)
    a("s_barrier")
    if ts and E("BPROF", 0):
        ts(3)
        a(f"v_and_b32 v{V_L}, 63, v0\nv_lshrrev_b32 v{V_G}, 4, v{V_L}")
    stamp(0)

    def smf(d, areg, w):
        a(f"v_smfmac_f32_16x16x64_bf16 v[{d}:{d+3}], v[{areg}:{areg+3}], a[{w}:{w+7}], v{V_IDX}")

    def stream_poll(tag, base, soff, off0, two, work, first=None):
        def ld(i):
            a(f"buffer_load_dwordx4 v[{base+4*i}:{base+4*i+3}], v{V_OMEM}, {SRD}, s{soff} offen offset:{1024*i} sc1")
        G = E("GAP", 10)
        for i in range(4):
            ld(i)
            if i == 0 and first:
                first()
                if G > 5: a.nops(G - 5)
            elif i < 3 and G:
                a.nops(G)
        if E("RR", 1):
            def lab(S, i): return f"{name}_{tag}_{S}_{i}"
            def nxt(S, i):
                for d in range(1, 5):
                    if S >> ((i + d) & 3) & 1: return (i + d) & 3
            def chk(i):
                if two:
                    a(f"v_max_u32 v{V_T0}, v{base+4*i}, v{base+4*i+2}")
                    a(f"v_cmp_eq_u32 vcc, -1, v{V_T0}")
                else:
                    a(f"v_cmp_eq_u32 vcc, -1, v{base+4*i}")
            def block(S, i, fall):
                a.label(lab(S, i))
                a(f"s_waitcnt vmcnt({bin(S).count('1') - 1})")
                chk(i)
                a(f"s_cbranch_vccnz {lab(S, i)}f")
                work(i)
                if not fall:
                    S2 = S & ~(1 << i)
                    a(f"s_branch {lab(S2, nxt(S2, i)) if S2 else f'{name}_{tag}_d'}")
            fast = [(15, 0), (14, 1), (12, 2), (8, 3)]
            if E("HOIST", 1) and two:
                def cap(fn, *ar):
                    sv = a.lines; a.lines = []; fn(*ar); o = a.lines; a.lines = sv; return o
                a("s_waitcnt vmcnt(3)")
                chk(0)
                for n, (S, i) in enumerate(fast):
                    a(f"s_cbranch_vccnz {lab(S, i)}f")
                    wk = cap(work, i)
                    a.lines += wk[:3]
                    if i < 3:
                        a(f"s_waitcnt vmcnt({2 - i})")
                        chk(i + 1)
                    a.lines += wk[3:]
                fast = []
            for S, i in fast:
                block(S, i, True)
            a.label(f"{name}_{tag}_d")
            def stubs():
                for S in range(1, 16):
                    for i in range(4):
                        if not S >> i & 1: continue
                        if E("ALR", 5): a(f".p2align {E('ALR', 5)}")
                        a.label(lab(S, i) + "f")
                        if E("MSK", 1): a("s_mov_b64 exec, vcc")
                        ld(i)
                        if E("MSK", 1): a("s_mov_b64 exec, -1")
                        if bin(S).count('1') == 1 or i == nxt(S, 3): wdog()
                        a(f"s_branch {lab(S, nxt(S, i))}")
                        if (S, i) not in fast:
                            if E("ALR", 5): a(f".p2align {E('ALR', 5)}")
                            block(S, i, False)
            return stubs
        for i in range(4):
            a.label(f"{name}_{tag}{i}")
            a(f"s_waitcnt vmcnt({3-i})")
            if two:
                a(f"v_max_u32 v{V_T0}, v{base+4*i}, v{base+4*i+2}")
                a(f"v_cmp_eq_u32 vcc, -1, v{V_T0}")
            else:
                a(f"v_cmp_eq_u32 vcc, -1, v{base+4*i}")
            a(f"s_cbranch_vccnz {name}_{tag}r{i}")
            a.label(f"{name}_{tag}k{i}")
            work(i)
        def stubs():
            for i in range(4):
                a.label(f"{name}_{tag}r{i}")
                if prof: a(f"s_add_u32 s{62 if tag == 'pa' else 63}, s{62 if tag == 'pa' else 63}, 1")
                wdog()
                if not E("IMM", 1): a("s_waitcnt vmcnt(0)")
                for k in range(i, 4):
                    ld(k)
                a(f"s_branch {name}_{tag}{i}")
        return stubs

    def fold(t0, t1):
        for i in range(4):
            a(f"v_permlane32_swap_b32 v{t0+i}, v{t1+i}")
        a(f"v_pk_add_f32 v[{t0}:{t0+1}], v[{t0}:{t0+1}], v[{t1}:{t1+1}]")
        a(f"v_pk_add_f32 v[{t0+2}:{t0+3}], v[{t0+2}:{t0+3}], v[{t1+2}:{t1+3}]")

    def vwork(lo, hi):
        for n in range(lo, hi):
            i, u = n >> 1, n & 1
            smf(AV + 4 * u, MA + 4 * i, A_W1 + ((4 + u) * 4 + (i & 3)) * 8)

    def vfin():
        fold(AV, AV + 4)
        a(f"ds_write_b128 v{V_LVW}, v[{AV}:{AV+3}]")

    def rread():
        for w in range(4):
            for hh in range(2):
                d = RP + 8 * w + 4 * hh
                a(f"ds_read_b128 v[{d}:{d+3}], v{V_LRR} offset:{L_QK + 2304*w + 16*hh}")

    def rsum(dst):
        a("s_waitcnt lgkmcnt(4)")
        for i in range(0, 8, 2):
            a(f"v_pk_add_f32 v[{RP+i}:{RP+i+1}], v[{RP+i}:{RP+i+1}], v[{RP+8+i}:{RP+8+i+1}]")
        a("s_waitcnt lgkmcnt(0)")
        for i in range(0, 8, 2):
            a(f"v_pk_add_f32 v[{RP+16+i}:{RP+16+i+1}], v[{RP+16+i}:{RP+16+i+1}], v[{RP+24+i}:{RP+24+i+1}]")
        for i in range(0, 8, 2):
            a(f"v_pk_add_f32 v[{RP+i}:{RP+i+1}], v[{RP+i}:{RP+i+1}], v[{RP+16+i}:{RP+16+i+1}]")
        for i in range(4):
            a(f"v_cvt_pk_bf16_f32 v{dst+i}, v{RP+2*i}, v{RP+2*i+1}")

    S_FM = S_TAG
    def xuoff(dst, step):
        a(f"""
        s_add_u32 s{S_T0}, s{step}, s{S_T}
        s_and_b32 s77, s{S_T0}, 14
        s_and_b32 s{S_T0}, s{S_T0}, 1
        s_lshl_b32 s{S_T0}, s{S_T0}, 12
        s_and_b32 s{dst}, s{step}, 48
        s_or_b32 s{dst}, s{dst}, s77
        s_lshl_b32 s{dst}, s{dst}, 13
        s_add_u32 s{dst}, s{dst}, s{S_T0}
        """)

    def heads():
        a(f"""
        s_and_b32 s{S_T1}, s{S_STEP}, 1
        s_lshl_b32 s{S_SL}, s{S_T1}, 17
        s_lshl_b32 s{S_T0}, s{S_X}, 18
        s_add_u32 s{S_SL}, s{S_SL}, s{S_T0}
        s_add_u32 s{S_SL}, s{S_SL}, {WS_I}
        s_xor_b32 s{S_SLO}, s{S_SL}, {1 << 17}
        """)
        if TAG: a(f"""
        s_lshl_b32 s{S_XS}, s{S_T1}, 18
        s_bfe_u32 s{S_TAG}, s{S_STEP}, 0x10001
        """)
        else: xuoff(S_XS, S_STEP)
    heads()
    if E("PRIO", 0):
        a(f"s_cmp_eq_u32 s{S_WAVE}, 0\ns_cbranch_scc0 {name}_np\ns_setprio 3")
        a.label(f"{name}_np")
    a(f"s_branch {name}_first")

    def wa(i):
        for c in range(4):
            smf(AQ + 4 * c, MA + 4 * i, A_W1 + (c * 4 + (i & 3)) * 8)

    def xread():
        a(f"v_add_u32 v{V_T1}, s{S_XBR}, v{V_LL}")
        for f in range(4):
            a(f"ds_read_b128 v[{KX+4*f}:{KX+4*f+3}], v{V_T1} offset:{1024*f}")

    if E("AL", 2) >= 0:
        a(".p2align 6")
        for i in range(E("AL", 2)): a("s_nop 0")
    a.label(f"{name}_loop")
    stubs_a = stream_poll("pa", MA, S_SL, 0, True, wa, first=xread)
    a.label(f"{name}_adone")
    stamp(1)
    a.nops(6)
    fold(AQ, AQ + 4)
    a(f"ds_write2_b32 v{V_LWQ}, v{AQ}, v{AQ+1} offset0:0 offset1:36")
    a(f"ds_write2_b32 v{V_LWQ}, v{AQ+2}, v{AQ+3} offset0:72 offset1:108")
    fold(AQ + 8, AQ + 12)
    a(f"ds_write2_b32 v{V_LWK}, v{AQ+8}, v{AQ+9} offset0:0 offset1:36")
    a(f"ds_write2_b32 v{V_LWK}, v{AQ+10}, v{AQ+11} offset0:72 offset1:108")
    VE, VE2 = E("VE", 4), 8
    vwork(0, VE)
    a(f"""
    s_waitcnt lgkmcnt(0)
    s_barrier
    s_cmp_lg_u32 s{S_WAVE}, 0
    s_cbranch_scc1 {name}_side
    """)
    stamp(2)
    rread()
    vwork(VE, VE2)
    a(f"""
    s_mul_i32 s{S_T0}, s{S_T}, {SCS}
    s_add_u32 s{S_T0}, s{S_T0}, s{S_SL}
    s_add_u32 s{S_T0}, s{S_T0}, {SCO}
    s_add_u32 s76, s{S_P}, s{S_SL}
    s_add_u32 s77, s{S_P+1}, s{S_SL}
    s_add_u32 s78, s{S_P+2}, s{S_SL}
    """)
    rsum(R)
    a.nops(2)
    a(f"v_mfma_f32_16x16x32_bf16 v[{S+4}:{S+7}], v[{KX+4}:{KX+7}], v[{R}:{R+3}], 0")
    a(f"v_mfma_f32_16x16x32_bf16 v[{S}:{S+3}], v[{KX}:{KX+3}], v[{R}:{R+3}], 0")
    a(f"v_mfma_f32_16x16x32_bf16 v[{S+8}:{S+11}], v[{R}:{R+3}], v[{R}:{R+3}], 0")
    a(f"s_cmp_eq_u32 s{S_STEP}, {nsteps-1}")
    a(f"s_cbranch_scc1 {name}_w0last")
    if E("VF", 0) == 1: vfin()
    else: a.nops(5)
    for i in range(4):
        a(f"v_mov_b32_dpp v{S+i}, v{S+4+i} row_shr:8 row_mask:0xf bank_mask:0xc")
    a(f"""
    v_min_u32 v{S+8}, -2, v{S+8}
    v_min_u32 v{S}, -2, v{S}
    s_mov_b64 exec, s[{S_MMEM}:{S_MMEM+1}]
    buffer_store_dwordx4 v[{S+8}:{S+11}], v{V_OSCM}, {SRD}, s{S_T0} offen {IS}
    s_mov_b64 exec, -1
    buffer_store_dwordx4 v[{S}:{S+3}], v{V_LL}, {SRD}, s{S_T0} offen {IS}
    """)
    stamp(3)

    def p2ld():
        if E("P2K", 1):
            a(f"s_mov_b64 exec, s[{S_MMEM}:{S_MMEM+1}]")
            for p, so in enumerate((76, 77, 78)):
                a(f"buffer_load_dwordx4 v[{PL+8*p+4}:{PL+8*p+7}], v{V_OSCM}, {SRD}, s{so} offen sc1")
            a("s_mov_b64 exec, -1")
            for p, so in enumerate((76, 77, 78)):
                a(f"buffer_load_dwordx4 v[{PL+8*p}:{PL+8*p+3}], v{V_LL}, {SRD}, s{so} offen sc1")
            return
        for p, so in enumerate((76, 77, 78)):
            a(f"buffer_load_dwordx4 v[{PL+8*p}:{PL+8*p+3}], v{V_LL}, {SRD}, s{so} offen sc1")
            a(f"buffer_load_dwordx4 v[{PL+8*p+4}:{PL+8*p+7}], v{V_OSCM}, {SRD}, s{so} offen sc1")
    P2M = E("P2M", 0)
    if E("VF", 0) == 0: vfin()
    def p2fill():
        zero(AO, 8)
        for i in range(4):
            a(f"v_cndmask_b32 v{S+4+i}, v{V_NEG}, v{S+8+i}, s[{S_MMEM}:{S_MMEM+1}]")
    def p2scale():
        for i in range(0, 8, 2):
            a(f"v_pk_mul_f32 v[{S+i}:{S+i+1}], v[{S+i}:{S+i+1}], s[{S_C}:{S_C+1}] op_sel_hi:[1,0]")
    assert P2M == 0
    if P2M == 0:
        a("s_waitcnt lgkmcnt(0)\ns_barrier")
        p2fill()
        p2ld()
        p2scale()
        a(f"s_lshl_b32 s89, s{S_TAG}, 31\ns_or_b32 s89, s89, 0x3b39999a")
        a.nops(18)
        p2ld()
    elif P2M == 1:
        if E("W2A", 0): a.nops(E("W2A", 0))
        p2ld()
        a("s_waitcnt lgkmcnt(0)\ns_barrier")
        p2fill()
        if E("W2", 0): a.nops(E("W2", 0))
        p2ld()
    elif P2M == 2:
        p2fill()
        p2ld()
        a("s_waitcnt lgkmcnt(0)\ns_barrier")
        if E("W2", 0): a.nops(E("W2", 0))
        p2ld()
    else:
        if E("W2A", 0): a.nops(E("W2A", 0))
        p2ld()
        a("s_waitcnt lgkmcnt(0)\ns_barrier")
        p2fill()
        for r in range(P2M - 1):
            p2ld()
            if r + 2 < P2M: a.nops(E("W2", 16))
    assert TAG
    stamp(4)
    a.label(f"{name}_p2")
    a(f"s_waitcnt vmcnt({6 * (max(P2M, 2) - 1)})")
    a(f"v_max3_u32 v{V_T0}, v{PL}, v{PL+4}, v{PL+8}")
    a(f"v_max3_u32 v{V_T1}, v{PL+12}, v{PL+16}, v{PL+20}")
    a(f"v_max_u32 v{V_T0}, v{V_T0}, v{V_T1}")
    a(f"v_cmp_eq_u32 vcc, -1, v{V_T0}")
    a(f"s_cbranch_vccnz {name}_p2r")
    stamp(5)
    a.nops(E("RSLOW", 0))
    BP = E("BP", 1)
    def b2b():
        a("s_barrier")
        a(f"ds_read2_b64 v[{VM}:{VM+3}], v{V_LVR} offset0:0 offset1:32")
    if BP == 0: b2b()
    for o in (4, 6, 0, 2):
        a(f"v_pk_add_f32 v[{RP+o}:{RP+o+1}], v[{PL+8+o}:{PL+8+o+1}], v[{PL+16+o}:{PL+16+o+1}]")
    for o in (4, 6, 0, 2):
        a(f"v_pk_add_f32 v[{RP+o}:{RP+o+1}], v[{RP+o}:{RP+o+1}], v[{PL+o}:{PL+o+1}]")
    for o in (4, 6, 0, 2):
        a(f"v_pk_fma_f32 v[{S+o}:{S+o+1}], v[{RP+o}:{RP+o+1}], s[{S_C}:{S_C+1}], v[{S+o}:{S+o+1}] op_sel_hi:[1,0,1]")
    MX, TM, SM = TMP, TMP + 1, TMP + 2
    a(f"""
    v_max3_f32 v{MX}, v{S}, v{S+1}, v{S+2}
    v_max3_f32 v{TM}, v{S+4}, v{S+5}, v{S+6}
    v_max3_f32 v{MX}, v{MX}, v{S+3}, v{S+7}
    v_max_f32 v{SM}, v{MX}, v{TM}
    """)
    if BP == 1: b2b()
    else: a("s_nop 1")
    a(f"""
    v_max_f32_dpp v{MX}, v{SM}, v{SM} row_ror:8 row_mask:0xf bank_mask:0xf
    v_max_f32_dpp v{TM}, v{SM}, v{SM} row_ror:8 row_mask:0xf bank_mask:0xf
    s_nop 1
    v_permlane16_swap_b32 v{MX}, v{TM}
    s_nop 0
    v_max_f32 v{SM}, v{MX}, v{TM}
    v_max_f32 v{SM+1}, v{MX}, v{TM}
    """)
    if BP == 2: b2b()
    else: a("s_nop 1")
    a(f"""
    v_permlane32_swap_b32 v{SM}, v{SM+1}
    s_nop 0
    v_max_f32 v{MX}, v{SM}, v{SM+1}
    """)
    for i in (4, 6, 0, 2):
        a(f"v_pk_add_f32 v[{S+i}:{S+i+1}], v[{S+i}:{S+i+1}], v[{MX}:{MX+1}] op_sel_hi:[1,0] neg_lo:[0,1] neg_hi:[0,1]")
    for i in (4, 5, 6, 7):
        a(f"v_exp_f32 v{S+i}, v{S+i}")
    a(f"""
    v_exp_f32 v{S}, v{S}
    v_cvt_pk_bf16_f32 v{PM}, v{S+4}, v{S+5}
    v_cvt_pk_bf16_f32 v{PM+1}, v{S+6}, v{S+7}
    v_exp_f32 v{S+1}, v{S+1}
    v_exp_f32 v{S+2}, v{S+2}
    v_mfma_f32_16x16x16_bf16 v[{LS}:{LS+3}], v[{ONE}:{ONE+1}], v[{PM}:{PM+1}], 0
    v_exp_f32 v{S+3}, v{S+3}
    v_cvt_pk_bf16_f32 v{P}, v{S}, v{S+1}
    s_waitcnt lgkmcnt(0)
    v_mfma_f32_16x16x16_bf16 v[{O}:{O+3}], v[{VM}:{VM+1}], v[{PM}:{PM+1}], 0
    v_cvt_pk_bf16_f32 v{P+1}, v{S+2}, v{S+3}
    v_mfma_f32_16x16x16_bf16 v[{O+4}:{O+7}], v[{VM+2}:{VM+3}], v[{PM}:{PM+1}], 0
    v_mov_b32_dpp v{P+2}, v{P} row_ror:8 row_mask:0xf bank_mask:0xf
    v_mov_b32_dpp v{P+3}, v{P+1} row_ror:8 row_mask:0xf bank_mask:0xf
    s_nop 1
    v_mfma_f32_16x16x32_bf16 v[{LS}:{LS+3}], v[{ONE}:{ONE+3}], v[{P}:{P+3}], v[{LS}:{LS+3}]
    v_mfma_f32_16x16x32_bf16 v[{O}:{O+3}], v[{VTX}:{VTX+3}], v[{P}:{P+3}], v[{O}:{O+3}]
    v_mfma_f32_16x16x32_bf16 v[{O+4}:{O+7}], v[{VTX+4}:{VTX+7}], v[{P}:{P+3}], v[{O+4}:{O+7}]
    s_add_u32 s{S_T1}, s{S_SL}, {OXO}
    s_nop 4
    v_rcp_f32 v{SM}, v{LS}
    s_nop 0
    """)
    for i in range(0, 8, 2):
        a(f"v_pk_mul_f32 v[{O+i}:{O+i+1}], v[{O+i}:{O+i+1}], v[{SM}:{SM+1}] op_sel_hi:[1,0]")
    for i in range(4):
        a(f"v_cvt_pk_bf16_f32 v{P+i}, v{O+2*i}, v{O+2*i+1}")
    a(f"""
    v_min_u32 v{P}, -2, v{P}
    s_mov_b64 exec, s[{S_MN8}:{S_MN8+1}]
    buffer_store_dwordx4 v[{P}:{P+3}], v{V_OOP}, {SRD}, s{S_SL} offen {IS}
    s_mov_b64 exec, -1
    """)
    NB3, NB5 = E("NB3", 0), E("NB5", 0)
    if NB3:
        stamp(6)
        if E("W3", 16): a.nops(E("W3", 16))
        a.label(f"{name}_b3")
    else:
        a.label(f"{name}_b3")
        a("s_barrier")
        if E("AL3", -1) >= 0:
            a(".p2align 5")
            for i in range(E("AL3", -1)): a("s_nop 0")
        stamp(6)
        if E("W3", 16): a.nops(E("W3", 16))

    def wc(i):
        for u in range(2):
            smf(AO + 4 * u, MO + 4 * i, A_WO + (u * 4 + i) * 8)
    stubs_c = stream_poll("pc", MO, S_T1, 0, False, wc)
    stamp(7)
    a.nops(8)
    fold(AO, AO + 4)
    a(f"ds_write2_b32 v{V_LWO}, v{AO}, v{AO+1} offset0:0 offset1:36")
    a(f"ds_write2_b32 v{V_LWO}, v{AO+2}, v{AO+3} offset0:72 offset1:108")
    a("s_waitcnt lgkmcnt(0)\ns_barrier")
    a(f"s_cmp_lg_u32 s{S_WAVE}, 0\ns_cbranch_scc1 {name}_x1")
    for w in range(4):
        a(f"ds_read_b128 v[{RP+4*w}:{RP+4*w+3}], v{V_LRO} offset:{1152*w}")
    a("s_waitcnt lgkmcnt(2)")
    for i in (0, 2):
        a(f"v_pk_add_f32 v[{RP+i}:{RP+i+1}], v[{RP+i}:{RP+i+1}], v[{RP+4+i}:{RP+4+i+1}]")
    a("s_waitcnt lgkmcnt(0)")
    for i in (0, 2):
        a(f"v_pk_add_f32 v[{RP+8+i}:{RP+8+i+1}], v[{RP+8+i}:{RP+8+i+1}], v[{RP+12+i}:{RP+12+i+1}]")
    for i in (0, 2):
        a(f"v_pk_add_f32 v[{RP+i}:{RP+i+1}], v[{RP+i}:{RP+i+1}], v[{RP+8+i}:{RP+8+i+1}]")
    X4 = 48
    A4 = E("A4", 0)
    B16 = E("B16", 1)
    def p4ld():
        for p in range(3):
            if B16: a(f"buffer_load_dwordx2 v[{X4+2*p}:{X4+2*p+1}], v{25+p}, {SRD}, s{S_XS} offen sc1")
            else: a(f"buffer_load_dwordx4 v[{X4+4*p}:{X4+4*p+3}], v{25+p}, {SRD}, s{S_XS} offen sc1")
    def maxall(regs):
        regs = list(regs)
        h = len(regs) // 2
        for t, rs in ((V_T0, regs[:h]), (V_T1, regs[h:])):
            a(f"v_max3_u32 v{t}, v{rs[0]}, v{rs[1]}, v{rs[2]}")
        k = 3
        while k < h:
            for t, rs in ((V_T0, regs[:h]), (V_T1, regs[h:])):
                if k + 1 < h: a(f"v_max3_u32 v{t}, v{t}, v{rs[k]}, v{rs[k+1]}")
                else: a(f"v_max_u32 v{t}, v{t}, v{rs[k]}")
            k += 2
        a(f"v_max_u32 v{V_T0}, v{V_T0}, v{V_T1}")
        a(f"v_cmp_eq_u32 vcc, -1, v{V_T0}")
    if TAG:
        if B16:
            a(f"""
            v_fma_f32 v{P}, v{RP}, s89, v{RP}
            v_cvt_pk_bf16_f32 v{P+1}, v{RP+2}, v{RP+3}
            v_cvt_pk_bf16_f32 v{P}, v{P}, v{RP+1}
            v_and_or_b32 v{P}, v{P}, -2, s{S_TAG}
            buffer_store_dwordx2 v[{P}:{P+1}], v{V_OXW}, {SRD}, s{S_XS} offen sc1
            s_mov_b32 s77, 0x3f80
            s_mov_b32 s78, 0x3f800000
            """)
        for i in range(0 if B16 else 4):
            a(f"v_and_or_b32 v{RP+i}, v{RP+i}, -2, s{S_TAG}")
        if E("HALF", 0): a(f"s_mov_b64 exec, {hex((1 << E('HALF', 0)) - 1)}")
        if E("COPY3", 0):
            for p in range(3):
                a(f"s_add_u32 s76, s{S_XS}, {WS_XU - WS_H + p * 4 * MB}")
                a(f"buffer_store_dwordx4 v[{RP}:{RP+3}], v{V_OXW}, {SRD}, s76 offen sc1")
        elif not B16:
            a(f"buffer_store_dwordx4 v[{RP}:{RP+3}], v{V_OXW}, {SRD}, s{S_XS} offen sc1")
        stamp(8)
        a(f"s_xor_b32 s76, s{S_TAG}, 1")
        for i in (range(0, 6, 2) if B16 else range(12)):
            a(f"v_mov_b32 v{X4+i}, s76")
        if B16: a.nops(9)
        if E("HALF", 0): a("s_mov_b64 exec, -1")
        zero(AQ, 24)
        if E("HALF", 0): a(f"s_mov_b64 exec, {hex((1 << E('HALF', 0)) - 1)}")
        if E("XW", 24): a.nops(E("XW", 24))
        stamp(11)
        a(f"s_cmp_eq_u32 s{S_TAG}, 1\ns_cbranch_scc1 {name}_p4_1")
        def fin4():
            stamp(9)
            if B16:
                for p in range(3):
                    for i in range(4):
                        a(f"v_dot2_f32_bf16 v{RP+i}, v{X4+2*p+(i>>1)}, s{77+(i&1)}, v{RP+i}")
                a("s_nop 0")
            for i in (() if B16 else (0, 2)):
                a(f"v_pk_add_f32 v[{RP+i}:{RP+i+1}], v[{RP+i}:{RP+i+1}], v[{X4+i}:{X4+i+1}]")
                a(f"v_pk_add_f32 v[{RP+4+i}:{RP+4+i+1}], v[{X4+4+i}:{X4+4+i+1}], v[{X4+8+i}:{X4+8+i+1}]")
            for i in (() if B16 else (0, 2)):
                a(f"v_pk_add_f32 v[{RP+i}:{RP+i+1}], v[{RP+i}:{RP+i+1}], v[{RP+4+i}:{RP+4+i+1}]")
            a(f"""
            v_cvt_pk_bf16_f32 v{P}, v{RP}, v{RP+1}
            v_min_u32 v{P}, -2, v{P}
            v_cvt_pk_bf16_f32 v{P+1}, v{RP+2}, v{RP+3}
            buffer_store_dwordx2 v[{P}:{P+1}], v{V_OPUB}, {SRD}, s{S_SLO} offen {IS}
            """)
        R4 = E("R4", 1)
        for tg in range(2):
            if E("AL4", 6): a(f".p2align {E('AL4', 6)}")
            a.label(f"{name}_p4_{tg}")
            wdog()
            p4ld()
            a(f"s_waitcnt vmcnt({E('Q4', 12)})")
            a.nops(A4)
            bo = "0xfe" if tg == 0 else "0x80"
            if R4 > 1: a(f"s_mov_b32 s76, {R4}")
            a.label(f"{name}_p4c_{tg}")
            if R4 > 1: a(f"s_sub_u32 s76, s76, 1\ns_cbranch_scc1 {name}_p4_{tg}")
            if B16:
                a(f"v_bitop3_b32 v{V_T0}, v{X4}, v{X4+2}, v{X4+4} bitop3:{bo}")
                a(f"v_and_b32 v{V_T0}, 1, v{V_T0}")
            else:
                for t, b in ((V_T0, X4), (V_T1, X4 + 6)):
                    a(f"v_bitop3_b32 v{t}, v{b}, v{b+1}, v{b+2} bitop3:{bo}")
                for t, b in ((V_T0, X4), (V_T1, X4 + 6)):
                    a(f"v_bitop3_b32 v{t}, v{t}, v{b+3}, v{b+4} bitop3:{bo}")
                a(f"v_bitop3_b32 v{V_T0}, v{V_T0}, v{X4+5}, v{X4+11} bitop3:{bo}")
            if not B16: a(f"v_bitop3_b32 v{V_T0}, v{V_T0}, v{V_T1}, 1 bitop3:{'0xa8' if tg == 0 else '0x80'}")
            a(f"v_cmp_ne_u32 vcc, {tg}, v{V_T0}")
            a(f"s_cbranch_vccnz {name}_p4{'c' if R4 > 1 else ''}_{tg}")
            fin4()
            if tg == 0: a(f"s_branch {name}_p4d")
        a.label(f"{name}_p4d")
    if E("LT", 0):
        a(f"s_cmp_eq_u32 s{S_STEP}, 8\ns_cbranch_scc0 {name}_lt\ns_memtime s[50:51]\ns_memrealtime s[52:53]")
        a.label(f"{name}_lt")
    a.label(f"{name}_b5")
    a(f"""
    s_add_u32 s{S_STEP}, s{S_STEP}, 1
    s_add_u32 s{S_XBR}, s{S_XBR}, 4096
    s_cmp_eq_u32 s{S_XBR}, {L_XB + 3 * 4096}
    s_cselect_b32 s{S_XBR}, {L_XB}, s{S_XBR}
    s_mov_b32 s{S_T0}, s{S_SL}
    s_mov_b32 s{S_SL}, s{S_SLO}
    s_mov_b32 s{S_SLO}, s{S_T0}
    {f"s_xor_b32 s{S_XS}, s{S_XS}, {1 << 18}" if TAG else ""}
    {f"s_bfe_u32 s{S_TAG}, s{S_STEP}, 0x10001" if TAG else ""}
    {"" if NB5 else "s_barrier"}
    """)
    stamp(10)
    if E("W1", 16): a.nops(E("W1", 16))
    a(f"s_branch {name}_loop")
    a.label(f"{name}_x1")
    stamp(11)
    if not E("NOKVM", 0):
        a(f"s_cmp_eq_u32 s{S_WAVE}, 1\ns_cbranch_scc0 {name}_x2\ns_add_u32 s76, s{S_STEP}, 1")
        flag_store(76)
        a.label(f"{name}_x2")
    a(f"""
    s_cmp_eq_u32 s{S_WAVE}, 3
    s_cbranch_scc0 {name}_x4
    s_cmp_eq_u32 s{S_LATE}, 1
    s_cbranch_scc0 {name}_x5
    s_add_u32 s76, s{S_STEP}, 1
    """)
    prefetch(76, 3)
    a(f"""
    s_waitcnt vmcnt(0)
{name}_x5:
    """)
    if flags:
        a(f"""
        s_add_u32 s76, s{S_STEP}, 4
        s_min_u32 s76, s76, 63
        s_cmp_gt_i32 s{S_KVN}, s76
        s_cbranch_scc1 {name}_x6
        v_mov_b32 v249, 0
        s_mov_b64 exec, 3
        buffer_atomic_add v249, v{V_OFL}, {SRD}, 0 offen sc0 sc1
        s_mov_b64 exec, -1
{name}_x6:
        """)
    a(f"""
    """)
    if not E("PB1", 1): a(f"""
    buffer_store_dwordx2 v[{V_POI}:{V_POI+1}], v{V_OPUB}, {SRD}, s{S_SL} offen {IS}
    s_mul_i32 s{S_T0}, s{S_T}, {SCS}
    s_add_u32 s{S_T0}, s{S_T0}, s{S_SL}
    s_add_u32 s{S_T0}, s{S_T0}, {SCO}
    buffer_store_dwordx4 v[{V_POI}:{V_POI+3}], v{V_LL}, {SRD}, s{S_T0} offen {IS}
    buffer_store_dwordx4 v[{V_POI}:{V_POI+3}], v{V_OSCM}, {SRD}, s{S_T0} offen {IS}
    """)
    a(f"""
    s_add_u32 s76, s{S_STEP}, 2
    s_cmp_lt_u32 s76, {nsteps-1}
    s_cbranch_scc0 {name}_x4
    {f"s_cmp_gt_i32 s{S_KVN}, s76" if flags else ""}
    s_cbranch_scc0 {name}_x4
    """)
    if not E("NOPF", 0):
        prefetch(76, -1, False)
        a(f"s_mov_b32 s{S_WARM}, s76")
    a.label(f"{name}_x4")
    zero(AQ, 24)
    if NB5: a(f"s_sleep {NB5}")
    a(f"s_branch {name}_b5")
    a.label(f"{name}_p2r")
    if prof: a("s_add_u32 s65, s65, 1")
    wdog()
    p2ld()
    a(f"s_branch {name}_p2")
    stubs_a()
    stubs_c()
    a.label(f"{name}_w0last")
    if E("LT", 0):
        a(f"""
        s_memtime s[54:55]
        s_memrealtime s[56:57]
        s_waitcnt lgkmcnt(0)
        s_sub_u32 s54, s54, s50
        s_sub_u32 s56, s56, s52
        v_mov_b32 v250, s54
        v_mov_b32 v251, s56
        s_lshl_b32 s80, s{S_CU}, 3
        s_add_u32 s80, s80, {WS_PROF + 14 * MB}
        buffer_store_dwordx2 v[250:251], v{ZER}, {SRD}, s80 offen
        """)
    a.nops(8)
    vfin()
    a("s_waitcnt lgkmcnt(0)\ns_barrier")
    a(f"s_branch {name}_end")
    a.label(f"{name}_side")
    if E("SV", 0): vwork(VE, 8)
    a(f"""
    s_cmp_eq_u32 s{S_WAVE}, 3
    s_cbranch_scc1 {name}_sd3
    s_cmp_eq_u32 s{S_WAVE}, 2
    s_cbranch_scc0 {name}_sd4
    s_mov_b64 exec, s[{S_MN8}:{S_MN8+1}]
    buffer_store_dwordx4 v[{V_POI}:{V_POI+3}], v{V_OOP}, {SRD}, s{S_SLO} offen {IS}
    s_mov_b64 exec, -1
    """)
    if E("PB1", 1): a(f"""
    buffer_store_dwordx2 v[{V_POI}:{V_POI+1}], v{V_OPUB}, {SRD}, s{S_SLO} offen {IS}
    s_mul_i32 s{S_T0}, s{S_T}, {SCS}
    s_add_u32 s{S_T0}, s{S_T0}, s{S_SLO}
    s_add_u32 s{S_T0}, s{S_T0}, {SCO}
    buffer_store_dwordx4 v[{V_POI}:{V_POI+3}], v{V_LL}, {SRD}, s{S_T0} offen {IS}
    buffer_store_dwordx4 v[{V_POI}:{V_POI+3}], v{V_OSCM}, {SRD}, s{S_T0} offen {IS}
    """)
    a(f"""
    s_branch {name}_sd4
{name}_sd3:
    v_readlane_b32 s76, v249, 0
    v_readlane_b32 s77, v249, 1
    s_min_i32 s76, s76, s77
    s_max_i32 s{S_KVN}, s{S_KVN}, s76
    s_mov_b32 s{S_LATE}, 0
    s_add_u32 s76, s{S_STEP}, 1
    s_cmp_lt_u32 s76, {nsteps-1}
    s_cbranch_scc0 {name}_sd4
    s_cmp_ge_u32 s76, {NSELF}
    s_cbranch_scc0 {name}_sd4
    {(f"s_cmp_eq_u32 s{S_WARM}, s76" if E("WARM", 0) else f"s_cmp_gt_i32 s{S_KVN}, s76") if flags else ""}
    s_cselect_b32 s{S_LATE}, 0, 1
    s_cbranch_scc0 {name}_sd4
    """)
    if not E("NOPF", 0): prefetch(76, 3, False)
    a.label(f"{name}_sd4")
    if not E("SV", 0): vwork(VE, 8)
    a.nops(8)
    vfin()
    zero(AO, 8)
    if not E("K2", 0):
        a(f"""
        s_cmp_eq_u32 s{S_WAVE}, 1
        s_cbranch_scc0 {name}_s1
        s_waitcnt lgkmcnt(0)
        """)
        rread()
        rsum(KVH)
        a.label(f"{name}_s1")
    a(f"""
    v_add_u32 v{V_T1}, {L_VP}, v{V_LL}
    s_waitcnt lgkmcnt(0)
    s_barrier
    s_cmp_eq_u32 s{S_WAVE}, 2
    s_cbranch_scc1 {name}_s2
    """)
    if E("K2", 0):
        a(f"s_cmp_eq_u32 s{S_WAVE}, 1\ns_cbranch_scc0 {name}_s1")
        rread()
        rsum(KVH)
        a(f"s_branch {name}_s3")
        a.label(f"{name}_s1")
    if E("KPF", 1) and not E("NOPF", 0):
        a(f"""
        s_cmp_eq_u32 s{S_WAVE}, 3
        s_cbranch_scc0 {name}_s3
        s_add_u32 s76, s{S_STEP}, 2
        s_cmp_lt_u32 s76, {nsteps-1}
        s_cbranch_scc0 {name}_s3
        {f"s_cmp_gt_i32 s{S_KVN}, s76" if flags else ""}
        s_cbranch_scc0 {name}_s3
        """)
        prefetch(76, 0, False)
        a(f"s_mov_b32 s88, s76")
    a(f"s_branch {name}_s3")
    a.label(f"{name}_s2")
    for w in range(4):
        a(f"ds_read_b128 v[{RP+4*w}:{RP+4*w+3}], v{V_T1} offset:{1024*w}")
    a(f"v_lshrrev_b32 v{V_T1}, 1, v{V_LL}")
    a("s_waitcnt lgkmcnt(2)")
    for i in (0, 2):
        a(f"v_pk_add_f32 v[{RP+i}:{RP+i+1}], v[{RP+i}:{RP+i+1}], v[{RP+4+i}:{RP+4+i+1}]")
    a("s_waitcnt lgkmcnt(0)")
    for i in (0, 2):
        a(f"v_pk_add_f32 v[{RP+8+i}:{RP+8+i+1}], v[{RP+8+i}:{RP+8+i+1}], v[{RP+12+i}:{RP+12+i+1}]")
    for i in (0, 2):
        a(f"v_pk_add_f32 v[{RP+i}:{RP+i+1}], v[{RP+i}:{RP+i+1}], v[{RP+8+i}:{RP+8+i+1}]")
    a(f"v_cvt_pk_bf16_f32 v{KVH}, v{RP}, v{RP+1}")
    a(f"v_cvt_pk_bf16_f32 v{KVH+1}, v{RP+2}, v{RP+3}")
    a(f"ds_write_b64 v{V_T1}, v[{KVH}:{KVH+1}] offset:{L_VM}")
    a("s_waitcnt lgkmcnt(0) vmcnt(0)")
    a.label(f"{name}_s3")
    a(f"""
    s_cmp_eq_u32 s{S_STEP}, {nsteps-1}
    s_cbranch_scc1 {name}_slast
    s_add_u32 s{S_T1}, s{S_SL}, {OXO}
    s_barrier
    """)

    def kv_pub(tag):
        a(f"""
        s_add_u32 s77, s{S_STEP}, s{S_CU}
        s_bfe_u32 s{S_T0}, s77, 0x30003
        s_lshl_b32 s{S_T0}, s{S_T0}, 14
        s_and_b32 s77, s77, 7
        s_lshl_b32 s77, s77, 10
        s_add_u32 s{S_T0}, s{S_T0}, s77
        s_add_u32 s{S_T0}, s{S_T0}, s{S_KVB}
        s_cmp_eq_u32 s{S_WAVE}, 2
        s_cbranch_scc1 {name}_kv2{tag}
        s_mov_b64 exec, s[{S_MKM}:{S_MKM+1}]
        buffer_store_dwordx4 v[{KVH}:{KVH+3}], v{V_OKV}, {SRD}, s{S_T0} offen sc1
        s_mov_b64 exec, -1
        s_branch {name}_kvd{tag}
{name}_kv2{tag}:
        v_lshlrev_b32 v{V_T0}, 3, v{V_L}
        buffer_store_dwordx2 v[{KVH}:{KVH+1}], v{V_T0}, {SRD}, s{S_T0} offen offset:512 sc1
{name}_kvd{tag}:
        """)
    a(f"s_cmp_eq_u32 s{S_WAVE}, 3\ns_cbranch_scc1 {name}_y3")
    if not E("NOKVM", 0):
        kv_pub("a")
    a(f"s_branch {name}_y4")
    a.label(f"{name}_y3")
    if not TAG:
        a(f"s_add_u32 s76, s{S_STEP}, 2\ns_and_b32 s76, s76, 63")
        xuoff(S_XS, 76)
        a(f"s_cmp_lt_u32 s76, 2\ns_cbranch_scc1 {name}_y4")
        a(f"buffer_store_dwordx4 v[{V_POI}:{V_POI+3}], v{V_OXW}, {SRD}, s{S_XS} offen sc1")
    a(f"""
    s_add_u32 s76, s{S_STEP}, 2
    s_cmp_lt_u32 s76, {nsteps-1}
    s_cbranch_scc0 {name}_y4
    """)
    if not E("NOPF", 0):
        if E("KPF", 1):
            if not E("RF4", 1):
                a(f"s_add_u32 s76, s{S_STEP}, 3")
                prefetch(76, None, skip=f"{name}_y4")
        else:
            prefetch(76, 0, skip=f"{name}_y4")
    a.label(f"{name}_y4")
    if NB3: a(f"s_sleep {NB3}")
    a(f"s_branch {name}_b3")
    a.label(f"{name}_first")
    for i in range(4):
        a(f"buffer_load_dwordx4 v[{MA+4*i}:{MA+4*i+3}], v{V_OM0}, s[{S_M0}:{S_M0+3}], 0 offen offset:{128*i}")
    xread()
    a("s_waitcnt vmcnt(0)")
    for i in range(4):
        wa(i)
    a.nops(2)
    a(f"s_branch {name}_adone")
    a.label(f"{name}_slast")
    a(f"s_cmp_eq_u32 s{S_WAVE}, 3\ns_cbranch_scc1 {name}_end")
    kv_pub("b")
    a(f"s_waitcnt vmcnt(0)\ns_barrier\ns_mov_b32 s76, {nsteps}\ns_cmp_eq_u32 s{S_WAVE}, 1\ns_cbranch_scc0 {name}_end")
    flag_store(76)
    a.label(f"{name}_end")
    if ts: ts(4)
    if prof:
        a(f"""
        s_lshl_b32 s{S_T0}, s{S_X}, 5
        s_add_u32 s{S_T0}, s{S_T0}, s{S_T}
        s_lshl_b32 s{S_T0}, s{S_T0}, 2
        s_add_u32 s{S_T0}, s{S_T0}, s{S_WAVE}
        s_lshl_b32 s{S_T0}, s{S_T0}, 6
        s_add_u32 s{S_T0}, s{S_T0}, {WS_PROF}
        v_mov_b32 v{V_T1}, 0
        s_mov_b64 exec, 1
        """)
        for i in range(16):
            a(f"v_mov_b32 v{V_T0}, s{50+i}")
            a(f"buffer_store_dword v{V_T0}, v{V_T1}, {SRD}, s{S_T0} offen offset:{4*i}")
            a("s_nop 1")
    a("s_endpgm")


def gen_rec_standalone(a: Asm, name, prof=False, force_slow=False):
    a.kernel_begin(name)
    a(f"s_cmp_ge_u32 s2, 256\ns_cbranch_scc1 {name}_exit")
    start_code(a, name)
    a(f"""
    s_sub_u32 s40, s90, 6
    s_lshl_b32 s40, s40, 5
    s_add_u32 s40, s40, s96
    s_cmp_lt_u32 s90, 4
    s_cbranch_scc0 {name}_oth
    s_mov_b32 s{S_X}, s90
    s_mov_b32 s{S_T}, s96
    """)
    rec_body(a, name + "_f", "", lambda vt, pre=False: sync_code(a, name, "r", vt, pre=pre), prof=prof, flags=False)
    a.label(f"{name}_oth")
    a(f"s_cmp_lt_u32 s40, {NI}\ns_cbranch_scc0 {name}_exit")
    init_cd(a, name, 40)
    a.label(f"{name}_slowent")
    a.label(f"{name}_exit")
    a("s_endpgm")
    return kd(name, 512, sgpr=102, accum=256)


if __name__ == "__main__":
    import sys
    a = Asm()
    name = "rec_kernel"
    k = gen_rec_standalone(a, name, prof=("prof" in sys.argv), force_slow=("slow" in sys.argv))
    out = HEADER + f"; @launch kernel={name} grid=(256,1,1) block=(256,1,1) lds=163840\n"
    out += '.amdgcn_target "amdgcn-amd-amdhsa--gfx950"\n.text\n' + a.text() + '.section .rodata,"a"\n' + k
    open(os.environ.get("OUT", "rec.s"), "w").write(out)
```

```python
from gen_common import *
from gen_rec import S_WSD, S_DBG, E, sync_issue

W = S_WSD
SRD = f"s[{W}:{W+3}]"
S_H = 40
S_WAVE, S_SEG, S_T0, S_T1, S_T2 = 41, 42, 43, 44, 45
S_WM, S_XM = 4, 8
V_L, V_T0, V_T1, V_T2, V_LL = 1, 2, 3, 4, 5


def wdog(a, name):
    wd_code(a, name + ":" + a.lines[-1], f"s{S_SEG}")


def tsx(a, ts, i):
    if E("BPROF", 0):
        ts(i)
        a(f"v_and_b32 v{V_L}, 63, v0")


def pst(i):
    if not E("KPROF", 0): return []
    return ["s_memtime s[76:77]", "s_waitcnt lgkmcnt(0)", "s_sub_u32 s78, s76, s31", f"s_add_u32 s{32+i}, s{32+i}, s78", "s_mov_b32 s31, s76"]


def pinit(a):
    if not E("KPROF", 0): return
    for i in range(8): a(f"s_mov_b32 s{32+i}, 0")
    a("s_memtime s[76:77]\ns_waitcnt lgkmcnt(0)\ns_mov_b32 s31, s76")


def pdump(a):
    if not E("KPROF", 0): return
    a(f"s_lshl_b32 s78, s2, 7\ns_lshl_b32 s77, s{S_WAVE}, 5\ns_add_u32 s78, s78, s77\ns_add_u32 s78, s78, {WS_PROF + 9*MB}\nv_mov_b32 v2, 0\ns_mov_b64 exec, 1")
    for i in range(8):
        a(f"v_mov_b32 v3, s{32+i}\nbuffer_store_dword v3, v2, {SRD}, s78 offen offset:{4*i}\ns_nop 1")
    a("s_mov_b64 exec, -1")


def common(a, ka_w, ka_x, xbytes):
    a(f"""
    s_load_dwordx2 s[{S_WM}:{S_WM+1}], s[0:1], {ka_w}
    s_load_dwordx2 s[{S_XM}:{S_XM+1}], s[0:1], {ka_x}
    v_lshrrev_b32 v{V_T0}, 6, v0
    v_and_b32 v{V_L}, 63, v0
    v_readfirstlane_b32 s{S_WAVE}, v{V_T0}
    v_lshlrev_b32 v{V_LL}, 4, v{V_L}
    s_waitcnt lgkmcnt(0)
    s_mov_b32 s{S_WM+2}, {8*MB}
    s_mov_b32 s{S_WM+3}, 0x00020000
    s_mov_b32 s{S_XM+2}, {xbytes}
    s_mov_b32 s{S_XM+3}, 0x00020000
    """)


def load_weights(a, rowlog, s_base, lane_addr, frag_off, rot=None, cl=2, touch=False):
    a(f"""
    v_lshrrev_b32 v{V_T0}, {cl}, v{V_L}
    v_and_b32 v{V_T1}, {(1 << cl) - 1}, v{V_L}
    v_lshlrev_b32 v16, {rowlog}, v{V_T0}
    v_lshl_add_u32 v16, v{V_T1}, 4, v16
    v_add_u32 v16, s{s_base}, v16
    v_and_b32 v{V_T1}, 3, v{V_L}
    s_lshl_b32 s{S_T2}, s{S_WAVE}, 15
    """)
    RI = 64 >> cl
    a(lane_addr)
    a(f"v_add_u32 v17, s{S_T2}, v17")

    HELP = 1 if (touch and E("BHELP", 1)) else 0
    if HELP:
        a(f"""
        s_and_b32 s{S_T0}, s{S_H}, 3
        s_lshl_b32 s{S_T0}, s{S_T0}, 2
        s_add_u32 s{S_T0}, s{S_T0}, s{S_WAVE}
        s_lshl_b32 s{S_T0}, s{S_T0}, 4
        v_and_b32 v23, 15, v{V_L}
        v_add_u32 v23, s{S_T0}, v23
        s_lshr_b32 s{S_T0}, s{S_H}, 2
        s_lshl_b32 s{S_T0}, s{S_T0}, 10
        s_add_u32 s{S_T1}, s{S_T0}, 896
        s_add_u32 s{S_T0}, s{S_T0}, 384
        s_cmp_ge_u32 s{S_H}, 28
        s_cselect_b32 s{S_T1}, s{S_T1}, s{S_T0}
        v_mov_b32 v24, s{S_T0}
        v_mov_b32 v25, s{S_T1}
        v_cmp_gt_u32 vcc, 32, v{V_L}
        s_nop 1
        v_cndmask_b32 v24, v25, v24, vcc
        v_lshl_add_u32 v23, v23, 13, v24
        """)

    def dma(ch):
        if HELP:
            a(f"s_mov_b32 s{S_T1}, {ch * 2 * MB}\nbuffer_load_dword v22, v23, s[{S_WM}:{S_WM+3}], s{S_T1} offen")
        for r in range(16):
            a(f"s_add_u32 m0, s{S_T2}, {(ch & 1)*16384 + 1024*r}")
            if rot is None:
                a(f"s_mov_b32 s{S_T1}, {(RI * (16 * ch + r)) << rowlog}")
            else:
                a(f"s_add_u32 s{S_T1}, s{rot}, {RI * (16 * ch + r)}\ns_and_b32 s{S_T1}, s{S_T1}, {64 * RI - 1}\ns_lshl_b32 s{S_T1}, s{S_T1}, {rowlog}")
            a(f"buffer_load_dwordx4 v16, s[{S_WM}:{S_WM+3}], s{S_T1} offen {'nt ' if E('BNT', 0) else ''}lds")

    def tr(ch):
        for f in range(16 * ch, 16 * ch + 16):
            for jj in range(2):
                o = frag_off(f, jj) - 16384 * ch
                assert 0 <= o < 16384
                a(f"ds_read_b64_tr_b16 a[{4*f+2*jj}:{4*f+2*jj+1}], v17 offset:{(ch & 1)*16384 + o}")
            if f % 4 == 3:
                a("s_waitcnt lgkmcnt(0)")
    WT = E("BWT", 0) if touch else 0
    if WT:
        a(f"""
        s_lshl_b32 s{S_T0}, s{S_H}, 16
        s_lshl_b32 s{S_T1}, s{S_WAVE}, 14
        s_add_u32 s{S_T0}, s{S_T0}, s{S_T1}
        v_lshlrev_b32 v21, 7, v{V_L}
        v_add_u32 v21, s{S_T0}, v21
        """)
    def tch(n):
        for i in range(2):
            a(f"s_mov_b32 s{S_T1}, {n * 2 * MB + i * 8192}")
            a(f"buffer_load_dword v22, v21, s[{S_WM}:{S_WM+3}], s{S_T1} offen")
    if WT == 1:
        tch(0); tch(1); dma(0); tch(2); dma(1); tch(3)
    elif WT == 2:
        tch(0); tch(1); tch(2); tch(3); dma(0); dma(1)
    else:
        dma(0); dma(1)
    a(f"s_waitcnt vmcnt({(20 if WT == 1 else 16) + HELP})"); tr(0); dma(2)
    a(f"s_waitcnt vmcnt({(18 if WT == 1 else 16) + HELP})"); tr(1); dma(3)
    a("s_waitcnt vmcnt(16)"); tr(2)
    a("s_waitcnt vmcnt(0)"); tr(3)
    a("s_barrier")


def lane32(hi_mul, swap=False, rl=6):
    if swap:
        return lane32(hi_mul).replace(f"v_lshl_add_u32 v17, v{V_T1}, 3, v17", f"""
        v_and_b32 v18, 1, v{V_L}
        v_lshl_add_u32 v17, v18, 4, v17
        v_bfe_u32 v18, v{V_L}, 1, 1
        v_lshl_add_u32 v17, v18, 3, v17""")
    return f"""
    v_bfe_u32 v17, v{V_L}, 2, 2
    v_lshrrev_b32 v18, 5, v{V_L}
    v_mul_u32_u24 v18, {hi_mul}, v18
    v_add_u32 v17, v17, v18
    v_lshlrev_b32 v17, {rl}, v17
    v_bfe_u32 v18, v{V_L}, 4, 1
    v_lshl_add_u32 v17, v18, 5, v17
    v_lshl_add_u32 v17, v{V_T1}, 3, v17
    """


def lane16(qlog):
    return f"""
    v_bfe_u32 v17, v{V_L}, 2, 2
    v_lshrrev_b32 v18, 4, v{V_L}
    v_lshl_add_u32 v17, v18, 3, v17
    v_lshlrev_b32 v17, 6, v17
    v_lshl_add_u32 v17, v{V_T1}, {qlog}, v17
    """


M32 = E('M32', 0)
GR2 = 512 if M32 else 1024
V_DX, V_RA, V_ST = 6, 8, 7
FR, NFR, AHEAD = 20, 8, 6
ACC = (52, 68)
EP = 84
S_XB = 46
S_CU, S_OB, S_FL = 47, 48, 49
S_O0, S_O1, S_OI, S_SH = 64, 65, 66, 67


def proj_setup(a, ka_w, swap, two=False):
    assert not M32
    common(a, ka_w, KA_AX, 4 * MB)
    a(f"""
    s_lshl_b32 s{S_T0}, s{S_H}, 8
    s_lshl_b32 s{S_T1}, s{S_WAVE}, 6
    s_add_u32 s{S_OB}, s{S_T0}, s{S_T1}
    s_and_b32 s{S_T0}, s{S_OB}, 0x7ff
    v_add_u32 v19, s{S_T0}, v{V_L}
    v_lshlrev_b32 v19, 7, v19
    s_mov_b32 s{S_T0}, {0x20000 if two else 0}
    buffer_load_dword v250, v19, s[{S_XM}:{S_XM+3}], s{S_T0} offen
    s_nop 0
    """)
    a(f"""
    v_lshrrev_b32 v{V_T0}, 3, v{V_L}
    s_lshl_b32 s{S_T0}, s{S_WAVE}, 3
    v_add_u32 v{V_T0}, s{S_T0}, v{V_T0}
    v_bfe_u32 v{V_T1}, v{V_T0}, 1, 3
    v_and_b32 v{V_T2}, 7, v{V_L}
    v_xor_b32 v{V_T1}, v{V_T1}, v{V_T2}
    v_lshlrev_b32 v{V_DX}, 11, v{V_T0}
    v_lshl_add_u32 v{V_DX}, v{V_T1}, 4, v{V_DX}
    s_lshl_b32 s{S_XB}, s{S_WAVE}, 10
    v_and_b32 v{V_T0}, 15, v{V_L}
    v_bfe_u32 v{V_T1}, v{V_T0}, 1, 3
    v_lshrrev_b32 v{V_T2}, 4, v{V_L}
    v_xor_b32 v{V_T1}, v{V_T1}, v{V_T2}
    v_lshlrev_b32 v{V_RA}, 7, v{V_T0}
    v_lshl_add_u32 v{V_RA}, v{V_T1}, 4, v{V_RA}
    v_xor_b32 v{V_RA+1}, 64, v{V_RA}
    v_add_u32 v{V_RA+2}, 0x10000, v{V_RA}
    v_add_u32 v{V_RA+3}, 0x10000, v{V_RA+1}
    v_mov_b32 v{V_ST}, v{V_LL}
    """)
    if M32:
        a(f"""
        v_and_b32 v{V_T0}, 31, v{V_L}
        v_bfe_u32 v{V_T1}, v{V_T0}, 1, 3
        v_lshrrev_b32 v{V_T2}, 5, v{V_L}
        v_xor_b32 v{V_T1}, v{V_T1}, v{V_T2}
        v_lshlrev_b32 v{V_RA}, 7, v{V_T0}
        v_lshl_add_u32 v{V_RA}, v{V_T1}, 4, v{V_RA}
        v_xor_b32 v{V_RA+1}, 32, v{V_RA}
        v_xor_b32 v{V_RA+2}, 64, v{V_RA}
        v_xor_b32 v{V_RA+3}, 96, v{V_RA}
        v_add_u32 v{V_RA+4}, 0x10000, v{V_RA}
        v_add_u32 v{V_RA+5}, 0x10000, v{V_RA+1}
        v_add_u32 v{V_RA+6}, 0x10000, v{V_RA+2}
        v_add_u32 v{V_RA+7}, 0x10000, v{V_RA+3}
        v_bfe_u32 v{V_T1}, v{V_L}, 4, 1
        v_lshlrev_b32 v{V_ST}, 10, v{V_T1}
        v_lshl_add_u32 v{V_ST}, v{V_T2}, 8, v{V_ST}
        v_and_b32 v{V_T1}, 15, v{V_L}
        v_lshl_add_u32 v{V_ST}, v{V_T1}, 4, v{V_ST}
        """)
    a(f"""
    s_lshl_b32 s{S_CU}, s{S_H}, 2
    s_add_u32 s{S_CU}, s{S_CU}, s{S_WAVE}
    s_mov_b32 s{S_SEG}, 0
    s_mov_b32 s50, 0
    """)
    for g in xdma_lines(0, 50):
        a("\n".join(g))
    if two:
        a("s_mov_b32 s50, 0x10000")
        for g in xdma_lines(1, 50):
            a("\n".join(g))
    NC, RG, NI_, CB = (16, 2, 4, 4096) if two else (8, 3, 8, 8192)
    a(f"""
    v_lshrrev_b32 v{V_T0}, 2, v{V_L}
    v_and_b32 v{V_T1}, 3, v{V_L}
    v_lshlrev_b32 v16, 13, v{V_T0}
    v_lshl_add_u32 v16, v{V_T1}, 4, v16
    v_add_u32 v16, s{S_OB}, v16
    s_mul_i32 s{S_T2}, s{S_WAVE}, {RG * CB}
    s_add_u32 s{S_T2}, s{S_T2}, {131072 if two else 65536}
    """)
    a(lane16(4 if swap else 3))
    a(f"""
    v_add_u32 v17, s{S_T2}, v17
    s_and_b32 s{S_T0}, s{S_H}, 3
    s_lshl_b32 s{S_T0}, s{S_T0}, 2
    s_add_u32 s{S_T0}, s{S_T0}, s{S_WAVE}
    s_lshl_b32 s{S_T0}, s{S_T0}, 3
    v_and_b32 v12, 7, v{V_L}
    v_add_u32 v12, s{S_T0}, v12
    s_lshr_b32 s{S_T0}, s{S_H}, 2
    s_lshl_b32 s{S_T0}, s{S_T0}, 10
    s_add_u32 s{S_T1}, s{S_T0}, 896
    s_add_u32 s{S_T0}, s{S_T0}, 384
    s_cmp_ge_u32 s{S_H}, 28
    s_cselect_b32 s{S_T1}, s{S_T1}, s{S_T0}
    v_mov_b32 v13, s{S_T0}
    v_mov_b32 v14, s{S_T1}
    v_cmp_gt_u32 vcc, 32, v{V_L}
    s_nop 1
    v_cndmask_b32 v13, v14, v13, vcc
    v_lshl_add_u32 v12, v12, 13, v13
    """)

    def hastouch(ch):
        return (not two) or ch % 2 == 0

    def dma(ch):
        if hastouch(ch):
            a(f"s_mov_b32 s{S_T1}, {(ch // 2 if two else ch) * MB}\nbuffer_load_dword v250, v12, s[{S_WM}:{S_WM+3}], s{S_T1} offen")
        for r in range(NI_):
            a(f"s_add_u32 m0, s{S_T2}, {(ch % RG)*CB + 1024*r}")
            a(f"s_mov_b32 s{S_T1}, {(16 * (NI_ * ch + r)) << 13}")
            a(f"buffer_load_dwordx4 v16, s[{S_WM}:{S_WM+3}], s{S_T1} offen lds")
    for ch in range(RG): dma(ch)
    for ch in range(NC):
        a(f"s_waitcnt vmcnt({sum(NI_ + hastouch(c) for c in range(ch + 1, min(ch + RG, NC)))})")
        if ch == 0: a("s_barrier")
        for f in range(NI_ * ch, NI_ * ch + NI_):
            for jj in range(2):
                o = (32 * ((f >> 1) - NI_ // 2 * ch) + 4 * jj) * 64 + (f & 1) * (8 if swap else 32)
                a(f"ds_read_b64_tr_b16 a[{4*f+2*jj}:{4*f+2*jj+1}], v17 offset:{(ch % RG)*CB + o}")
            if f % 4 == 3: a("s_waitcnt lgkmcnt(0)")
        if two and ch == NC - RG - 1: sync_issue(a, 246)
        if ch + RG < NC: dma(ch + RG)
        work = [(z, n) for z in range(2 if two else 1) for n in range(NI_ * ch, NI_ * ch + NI_)]
        for i, (z, n) in enumerate(work):
            k = n >> 1
            a(f"ds_read_b128 v[{FR+4*i}:{FR+4*i+3}], v{V_RA + 2*z + (k & 1)} offset:{4096*(k >> 1) + 2048*(n & 1)}")
        a("s_waitcnt lgkmcnt(0)")
        for i, (z, n) in enumerate(work):
            k, tt, f = n >> 1, n & 1, FR + 4 * i
            for u in range(2):
                d, w = ACC[z] + 8 * tt + 4 * u, 4 * (2 * k + u)
                c = "0" if k == 0 else f"v[{d}:{d+3}]"
                if swap: a(f"v_mfma_f32_16x16x32_bf16 v[{d}:{d+3}], a[{w}:{w+3}], v[{f}:{f+3}], {c}")
                else: a(f"v_mfma_f32_16x16x32_bf16 v[{d}:{d+3}], v[{f}:{f+3}], a[{w}:{w+3}], {c}")
    if not two:
        a("s_barrier\ns_mov_b32 s50, 0x10000")
        for g in xdma_lines(1, 50):
            a("\n".join(g))


def xdma_lines(buf, s_off):
    out = []
    for kb in range(16):
        out.append([f"s_add_u32 m0, s{S_XB}, {buf*65536 + kb*3968}", "s_nop 0",
                    f"buffer_load_dwordx4 v{V_DX}, s[{S_XM}:{S_XM+3}], s{s_off} offen offset:{128*kb} lds"])
    return out


def proj_segment(a, buf, acc, wA, fill, stg=None):
    def rd(n):
        f = FR + 4 * (n % NFR)
        k = n >> 1
        if M32:
            a(f"ds_read_b128 v[{f}:{f+3}], v{V_RA + 4*buf + (n & 3)} offset:{4096*(n >> 2)}")
        else:
            a(f"ds_read_b128 v[{f}:{f+3}], v{V_RA + 2*buf + (k & 1)} offset:{4096*(k >> 1) + 2048*(n & 1)}")
    for n in range(AHEAD):
        rd(n)
    for l in fill.get(-1, []):
        a(l)
    for n in range(64):
        f = FR + 4 * (n % NFR)
        k, tt = n >> 1, n & 1
        fl = list(fill.get(n, []))
        if fl and "m0" in fl[0] and fl[1] == "s_nop 0":
            a(fl[0]); fl = fl[2:]
        if not (E("LG2", 1) and n % 2 == 1 and n + AHEAD < 64):
            a(f"s_waitcnt lgkmcnt({min(AHEAD, 64 - n) - 1 - (1 if E('LG2', 1) and n + 1 + AHEAD < 64 else 0)})")
        if M32:
            c = "0" if n == 0 else f"v[{acc}:{acc+15}]"
            if wA:
                a(f"v_mfma_f32_32x32x16_bf16 v[{acc}:{acc+15}], a[{4*n}:{4*n+3}], v[{f}:{f+3}], {c}")
            else:
                a(f"v_mfma_f32_32x32x16_bf16 v[{acc}:{acc+15}], v[{f}:{f+3}], a[{4*n}:{4*n+3}], {c}")
            if n + AHEAD < 64:
                rd(n + AHEAD)
        for u in range(0 if M32 else 2):
            d = acc + 8 * tt + 4 * u
            w = 4 * (2 * k + u)
            c = "0" if k == 0 else f"v[{d}:{d+3}]"
            if stg is not None and k == 31: d += stg - acc
            if wA:
                a(f"v_mfma_f32_16x16x32_bf16 v[{d}:{d+3}], a[{w}:{w+3}], v[{f}:{f+3}], {c}")
            else:
                a(f"v_mfma_f32_16x16x32_bf16 v[{d}:{d+3}], v[{f}:{f+3}], a[{w}:{w+3}], {c}")
            if u == 0 and n + AHEAD < 64:
                rd(n + AHEAD)
        for l in fl:
            a(l)


def pack_lines(acc, isV):
    src = [0, 2, 8, 10, 4, 6, 12, 14] if isV else [0, 2, 4, 6, 8, 10, 12, 14]
    return [f"v_cvt_pk_bf16_f32 v{EP+i}, v{acc+s}, v{acc+s+1}" for i, s in enumerate(src)]


def kvx(cu):
    m = E("KVPAR", 0)
    return ["", f"s_xor_b32 s{S_T1}, s{S_T1}, 1", f"s_xor_b32 s{S_T1}, s{S_T1}, s{cu}"][m]


def near_base(a, dst, cu, log, region):
    a(f"""
    s_lshr_b32 s{S_T1}, s{cu}, {21 - log}
    s_xor_b32 s{S_T1}, s{S_T1}, s98
    {kvx(cu) if log == 18 else ""}
    s_and_b32 s{S_T1}, s{S_T1}, 1
    s_lshl_b32 s{S_T1}, s{S_T1}, 13
    s_lshl_b32 s{dst}, s{cu}, {log}
    s_add_u32 s{dst}, s{dst}, s{S_T1}
    s_add_u32 s{dst}, s{dst}, {region}
    """)


def kv_role(a: Asm, name, isV, ts, sync):
    TWO = E('TWO', 1)
    proj_setup(a, KA_WV if isV else KA_WK, not isV, two=TWO)
    tsx(a, ts, 2)
    def store_lines():
        return [f"s_add_u32 s51, s{S_SEG}, s{S_CU}", "s_sub_u32 s51, s51, 1", "s_bfe_u32 s52, s51, 0x40002", "s_lshl_b32 s52, s52, 14",
                "s_and_b32 s51, s51, 3", "s_lshl_b32 s51, s51, 11", "s_add_u32 s51, s51, s52", f"s_add_u32 s51, s51, s{S_OB}",
                f"buffer_store_dwordx4 v[{EP}:{EP+3}], v{V_ST}, {SRD}, s51 offen sc1",
                f"buffer_store_dwordx4 v[{EP+4}:{EP+7}], v{V_ST}, {SRD}, s51 offen offset:{GR2} sc1"]

    def flag_lines():
        return [f"v_mov_b32 v17, s{S_SEG}", "s_mov_b64 exec, 1", f"buffer_store_dword v17, v16, {SRD}, s{S_FL} offen sc1", "s_mov_b64 exec, -1"]

    def seg(buf, first):
        a("\n".join(pst(0)))
        a(f"s_waitcnt vmcnt({0 if first else 2})")
        a("\n".join(pst(1)))
        a("s_barrier")
        a("\n".join(pst(2)))
        a(f"s_add_u32 s50, s{S_SEG}, 1\ns_min_u32 s50, s50, 63\ns_lshl_b32 s50, s50, 16")
        fill = {}
        if not first:
            pk = pack_lines(ACC[1 - buf], isV)
            fill[0] = pk[:3]; fill[1] = pk[3:6]; fill[2] = pk[6:]
            st = store_lines()
            fill[3] = st[:4]; fill[4] = st[4:9]; fill[5] = st[9:]
            fill[E("FG", 42)] = pst(3) + ["s_waitcnt vmcnt(16)"] + pst(4) + flag_lines()
        fill[E("FG", 42) + 2] = [f"s_add_u32 s53, s{S_SEG}, 3", "s_min_u32 s53, s53, 63", "s_lshl_b32 s53, s53, 16",
                    "s_mov_b64 exec, 0xffff", f"buffer_load_dword v250, v19, s[{S_XM}:{S_XM+3}], s53 offen", "s_mov_b64 exec, -1"]
        for i, g in enumerate(xdma_lines(1 - buf, 50)):
            fill[7 + 2 * i] = g
        proj_segment(a, buf, ACC[buf], not isV, fill)
        a(f"s_add_u32 s{S_SEG}, s{S_SEG}, 1")
        if E("EARLY", 0):
            a(f"s_cmp_le_u32 s{S_SEG}, {E('EARLY', 0)}\ns_cbranch_scc0 {name}_ne{buf}")
            a.nops(8)
            a("\n".join(pack_lines(ACC[buf], isV) + store_lines() + ["s_waitcnt vmcnt(0)"] + flag_lines()))
            a.label(f"{name}_ne{buf}")
    a(f"s_and_b32 s53, s{S_CU}, 31\ns_lshl_b32 s53, s53, 4\nv_add_u32 v19, s53, v{V_L}\nv_lshlrev_b32 v19, 7, v19")
    pinit(a)
    a(f"s_mov_b32 s{S_SEG}, 1")
    if TWO: sync(246, True)
    else: sync(V_T0)
    tsx(a, ts, 3)
    near_base(a, S_OB, S_CU, 18, WS_VT if isV else WS_KX)
    a(f"""
    s_xor_b32 s{S_T1}, s98, 1
    s_lshl_b32 s{S_T1}, s{S_T1}, 13
    s_lshl_b32 s{S_FL}, s{S_H}, 7
    s_add_u32 s{S_FL}, s{S_FL}, s{S_T1}
    s_lshl_b32 s{S_T1}, s{S_WAVE}, 2
    s_add_u32 s{S_FL}, s{S_FL}, s{S_T1}
    s_add_u32 s{S_FL}, s{S_FL}, {WS_F + (F_V if isV else F_K)}
    v_mov_b32 v16, 0
    """)

    if TWO:
        a("\n".join(pack_lines(ACC[0], isV) + store_lines() + [f"s_mov_b32 s{S_SEG}, 2", "s_nop 1"] + pack_lines(ACC[1], isV) + store_lines()))
        a("s_barrier\ns_mov_b32 s50, 0x20000")
        for g in xdma_lines(0, 50):
            a("\n".join(g))
        a("\n".join(["s_waitcnt vmcnt(16)"] + flag_lines() + ["s_waitcnt vmcnt(1)"]))
        a(f"s_branch {name}_mid")
    else:
        a("\n".join(pack_lines(ACC[0], isV) + store_lines() + ["s_waitcnt vmcnt(0)"] + flag_lines()))
    a.label(f"{name}_loop")
    seg(1, False)
    a(f"s_cmp_eq_u32 s{S_SEG}, 64\ns_cbranch_scc1 {name}_fin")
    a.label(f"{name}_mid")
    seg(0, False)
    a(f"s_branch {name}_loop")
    a.label(f"{name}_fin")
    a.nops(12)
    a("\n".join(pack_lines(ACC[1], isV) + store_lines() + ["s_waitcnt vmcnt(0)"] + flag_lines()))
    pdump(a)
    a("s_waitcnt vmcnt(0)\ns_barrier")


def qx_role(a: Asm, name, ts, sync):
    if E('NI', 32) == 64: sync(V_T0)
    proj_setup(a, KA_WQ, True)
    if E('NI', 32) == 32: sync(V_T0)
    tsx(a, ts, 3)
    L_Q, L_KV, L_KM = 131072, 139264, 155648
    S_NT, S_EH, S_C, S_KVN, S_KMN = 52, 53, 54, 55, 56
    S_KB, S_MB, S_LK, S_LM = 58, 59, 60, 61
    S_MK = 12
    V_G, V_M, V_OKM, V_OVM, V_OO, V_NEG, V_CM, V_OF, V_OF2, V_QW, V_QR = 92, 93, 94, 95, 96, 97, 98, 99, 100, 101, 102
    ONE, LS = 104, 108
    V_KR, V_VR = 103, 240
    KX, VT, KM, VM, Q, S, P, O, TMP = 112, 144, 160, 176, 184, 200, 212, 220, 236
    a(f"""
    v_lshrrev_b32 v{V_G}, 4, v{V_L}
    v_and_b32 v{V_M}, 15, v{V_L}
    s_and_b32 s{S_NT}, s{S_WAVE}, 1
    s_lshr_b32 s{S_EH}, s{S_WAVE}, 1
    s_mov_b32 s{S_C}, 0x3e0293ee
    s_mov_b32 s{S_KVN}, 0
    s_mov_b32 s{S_KMN}, 0
    v_mov_b32 v{V_NEG}, 0xff800000
    v_mov_b32 v241, 0xceabdc6e
    v_and_b32 v{V_T0}, 7, v{V_M}
    v_lshlrev_b32 v{V_OKM}, 7, v{V_G}
    v_lshl_add_u32 v{V_OKM}, v{V_T0}, 4, v{V_OKM}
    v_and_b32 v{V_T0}, 31, v{V_L}
    v_lshlrev_b32 v{V_OVM}, 3, v{V_T0}
    v_lshrrev_b32 v{V_T0}, 1, v{V_G}
    v_lshlrev_b32 v{V_OO}, 10, v{V_T0}
    v_and_b32 v{V_T0}, 1, v{V_G}
    v_lshl_add_u32 v{V_OO}, v{V_T0}, 9, v{V_OO}
    v_lshl_add_u32 v{V_OO}, v{V_M}, 4, v{V_OO}
    s_lshl_b32 s{S_T0}, s{S_H}, 13
    s_lshl_b32 s{S_T1}, s{S_EH}, 12
    s_add_u32 s{S_T0}, s{S_T0}, s{S_T1}
    s_lshl_b32 s{S_T1}, s{S_NT}, 8
    s_add_u32 s{S_T0}, s{S_T0}, s{S_T1}
    s_add_u32 s{S_T0}, s{S_T0}, {WS_O}
    v_add_u32 v{V_OO}, s{S_T0}, v{V_OO}
    s_lshl_b32 s{S_T0}, s{S_NT}, 4
    v_add_u32 v{V_CM}, s{S_T0}, v{V_M}
    v_lshlrev_b32 v{V_T0}, 2, v{V_G}
    v_sub_u32 v{V_CM}, v{V_CM}, v{V_T0}
    s_mov_b32 s28, 0
    s_mov_b32 s29, -1
    s_xor_b32 s{S_T1}, s98, 1
    s_lshl_b32 s{S_T1}, s{S_T1}, 13
    s_lshl_b32 s{S_T0}, s{S_H}, 7
    s_add_u32 s{S_T0}, s{S_T0}, s{S_T1}
    s_add_u32 s{S_T0}, s{S_T0}, {WS_F}
    v_and_b32 v{V_T0}, 3, v{V_L}
    v_bfe_u32 v{V_T1}, v{V_L}, 2, 1
    v_lshlrev_b32 v{V_OF}, 12, v{V_T1}
    v_lshl_add_u32 v{V_OF}, v{V_T0}, 2, v{V_OF}
    v_add_u32 v{V_OF}, s{S_T0}, v{V_OF}
    s_xor_b32 s62, s98, 1
    s_lshl_b32 s62, s62, 13
    s_lshr_b32 s{S_T1}, s{S_CU}, 6
    s_lshl_b32 s{S_T1}, s{S_T1}, 14
    s_add_u32 s62, s62, s{S_T1}
    s_and_b32 s{S_T1}, s{S_CU}, 63
    s_lshl_b32 s{S_T1}, s{S_T1}, 7
    s_add_u32 s62, s62, s{S_T1}
    s_add_u32 s62, s62, {WS_F + F_KVM}
    s_lshl_b32 s{S_FL}, s{S_H}, 7
    s_lshl_b32 s{S_T1}, s{S_WAVE}, 2
    s_add_u32 s{S_FL}, s{S_FL}, s{S_T1}
    s_lshl_b32 s{S_T1}, s98, 13
    s_add_u32 s{S_FL}, s{S_FL}, s{S_T1}
    s_add_u32 s{S_FL}, s{S_FL}, {WS_F + F_O}
    s_lshl_b32 s{S_T0}, s{S_WAVE}, 11
    s_add_u32 s{S_T0}, s{S_T0}, {L_Q}
    v_add_u32 v{V_QW}, s{S_T0}, v{V_ST}
    s_lshl_b32 s{S_T0}, s{S_NT}, 10
    s_add_u32 s{S_T0}, s{S_T0}, {L_Q}
    v_add_u32 v{V_QR}, s{S_T0}, v{V_LL}
    v_mov_b32 v16, 0
    s_mov_b32 s50, 0
    """)
    for i in range(4):
        a(f"v_mov_b32 v{ONE+i}, 0x3f803f80")
    for t in range(2):
        for r in range(4):
            a(f"v_cmp_gt_i32 s[{S_MK+8*t+2*r}:{S_MK+8*t+2*r+1}], {16*t+r}, v{V_CM}")
    near_base(a, S_KB, S_CU, 18, WS_KX)
    near_base(a, S_MB, S_CU, 17, WS_KVM)
    a(f"""
    s_lshl_b32 s{S_LK}, s{S_WAVE}, 11
    s_add_u32 s{S_LK}, s{S_LK}, {L_KV}
    s_lshl_b32 s{S_LM}, s{S_WAVE}, 10
    s_add_u32 s{S_LM}, s{S_LM}, {L_KM}
    v_add_u32 v{V_OKM}, {L_KM}, v{V_OKM}
    s_lshl_b32 s{S_T0}, s{S_EH}, 11
    s_add_u32 s{S_T0}, s{S_T0}, {L_KM + 512}
    v_add_u32 v{V_OVM}, s{S_T0}, v{V_OVM}
    v_add_u32 v{V_KR}, {L_KV}, v{V_LL}
    s_lshl_b32 s{S_T0}, s{S_EH}, 12
    s_add_u32 s{S_T0}, s{S_T0}, {L_KV + 8192}
    v_add_u32 v{V_VR}, s{S_T0}, v{V_LL}
    """)
    a("s_waitcnt vmcnt(0)")

    def wait_flag(tag, known, voff, sleep):
        a(f"""
        s_cmp_gt_i32 s{known}, s{S_SEG}
        s_cbranch_scc1 {name}_{tag}k
{name}_{tag}w:
        """)
        wdog(a, name)
        if E("KAP", 1):
            a(f"v_mov_b32 v{V_T0}, 0\ns_mov_b64 exec, 0xff\nbuffer_atomic_add v{V_T0}, v{voff}, {SRD}, 0 offen sc0 sc1\ns_mov_b64 exec, -1")
        else:
            a(f"buffer_load_dword v{V_T0}, v{voff}, {SRD}, 0 offen sc1")
        a(f"""
        s_waitcnt vmcnt(0)
        v_min_i32_dpp v{V_T0}, v{V_T0}, v{V_T0} quad_perm:[1,0,3,2] row_mask:0xf bank_mask:0xf
        s_nop 1
        v_min_i32_dpp v{V_T0}, v{V_T0}, v{V_T0} quad_perm:[2,3,0,1] row_mask:0xf bank_mask:0xf
        s_nop 1
        v_min_i32_dpp v{V_T0}, v{V_T0}, v{V_T0} row_half_mirror row_mask:0xf bank_mask:0xf
        s_nop 0
        v_readfirstlane_b32 s{known}, v{V_T0}
        s_cmp_gt_i32 s{known}, s{S_SEG}
        s_cbranch_scc1 {name}_{tag}k
        s_sleep {sleep}
        s_branch {name}_{tag}w
{name}_{tag}k:
        """)

    def flag_lines():
        return [f"v_mov_b32 v17, s{S_SEG}", "s_mov_b64 exec, 1", f"buffer_store_dword v17, v16, {SRD}, s{S_FL} offen sc1", "s_mov_b64 exec, -1"]

    def kmpoll_lines():
        if E("APOLL", 1):
            return [f"v_mov_b32 v{V_OF2}, 0", "s_mov_b64 exec, 1", f"buffer_atomic_add v{V_OF2}, v16, {SRD}, s62 offen sc0 sc1", "s_mov_b64 exec, -1"]
        return [f"buffer_load_dword v{V_OF2}, v16, {SRD}, s62 offen sc1"]

    def km_lines():
        return [f"s_mov_b32 m0, s{S_LM}", "s_nop 0", f"buffer_load_dwordx4 v{V_LL}, {SRD}, s68 offen sc1 lds"]

    def seg(buf):
        a("s_barrier")
        a("\n".join(pst(0)))
        wait_flag(f"kv{buf}", S_KVN, V_OF, 4)
        sal = f"""s_add_u32 s51, s{S_CU}, s{S_SEG}
        s_bfe_u32 s57, s51, 0x40002
        s_lshl_b32 s57, s57, 14
        s_and_b32 s66, s51, 3
        s_lshl_b32 s66, s66, 11
        s_add_u32 s66, s66, s57
        s_add_u32 s66, s66, s{S_KB}
        s_add_u32 s67, s66, {WS_VT}
        s_bfe_u32 s57, s51, 0x30003
        s_lshl_b32 s57, s57, 14
        s_and_b32 s68, s51, 7
        s_lshl_b32 s68, s68, 10
        s_add_u32 s68, s68, s57
        s_add_u32 s68, s68, s{S_MB}
        s_add_u32 s50, s{S_SEG}, 2
        s_min_u32 s50, s50, 63
        s_lshl_b32 s50, s50, 16
        s_cmp_gt_i32 s{S_KMN}, s{S_SEG}
        s_cselect_b32 s30, 1, 0""".split("\n")
        fill = {-1: sal}
        for i in range(4):
            fill[2 * i] = [f"s_add_u32 m0, s{S_LK}, {8192 * (i >> 1)}", "s_nop 0",
                           f"buffer_load_dwordx4 v{V_LL}, {SRD}, s{66 + (i >> 1)} offen offset:{1024 * (i & 1)} sc1 lds"]
        fill[8] = ["s_cmp_eq_u32 s30, 1", f"s_cbranch_scc0 {name}_ke{buf}"] + km_lines() + [f"{name}_ke{buf}:"]
        for i, g in enumerate(xdma_lines(1 - (buf & 1), 50)):
            fill[10 + 2 * i] = g
        a("\n".join(pst(1)))
        fill[27] = ["s_waitcnt vmcnt(13)"] + flag_lines()
        fill[29] = kmpoll_lines()
        pk = pack_lines(ACC[1], False)
        for i in range(4): fill[43 + 2 * i] = pk[2*i:2*i+2]
        fill[54] = ["s_waitcnt vmcnt(6)", f"v_readfirstlane_b32 s{S_KMN}, v{V_OF2}", "s_cmp_eq_u32 s30, 1", f"s_cbranch_scc1 {name}_kf{buf}",
                    f"s_cmp_gt_i32 s{S_KMN}, s{S_SEG}", f"s_cbranch_scc0 {name}_kf{buf}", "s_mov_b32 s30, 1"] + km_lines() + [f"{name}_kf{buf}:"]
        fill[61] = [f"ds_write_b128 v{V_QW}, v[{EP}:{EP+3}]", f"ds_write_b128 v{V_QW}, v[{EP+4}:{EP+7}] offset:{GR2}"]
        if buf == 0:
            a(f"s_cmp_eq_u32 s{S_SEG}, 63\ns_cbranch_scc0 {name}_nl")
            for i in (-1, 0, 2, 4, 6, 8, 43, 45, 47, 49, 61):
                a("\n".join(fill[i]).replace(f"{name}_ke0", f"{name}_ke2"))
            a("\n".join(["s_waitcnt vmcnt(4)"] + flag_lines()))
            a(f"s_branch {name}_jl")
            a.label(f"{name}_nl")
        proj_segment(a, buf, ACC[0], True, fill, stg=ACC[1])
        if buf == 0: a.label(f"{name}_jl")
        a("\n".join(pst(2)))
        a(f"s_cmp_eq_u32 s30, 1\ns_cbranch_scc1 {name}_kl{buf}")
        a.label(f"{name}_kw{buf}")
        wdog(a, name)
        a("\n".join(kmpoll_lines()))
        a(f"""
        s_waitcnt vmcnt(0)
        v_readfirstlane_b32 s{S_KMN}, v{V_OF2}
        s_cmp_gt_i32 s{S_KMN}, s{S_SEG}
        s_cbranch_scc0 {name}_kw{buf}
        """)
        a("\n".join(km_lines()))
        a.label(f"{name}_kl{buf}")
        a("\n".join(pst(4)))
        a(f"""
        s_waitcnt lgkmcnt(0) vmcnt(0)
        s_barrier
        """)
        a("\n".join(pst(5)))
        a.nops(E("XSLOW", 0))
        for j in range(4):
            a(f"ds_read_b128 v[{Q+4*j}:{Q+4*j+3}], v{V_QR} offset:{2048*j}")
            for t in range(2):
                a(f"ds_read_b128 v[{KX+16*t+4*j}:{KX+16*t+4*j+3}], v{V_KR} offset:{2048*j + 1024*t}")
        for j in range(4):
            a(f"s_waitcnt lgkmcnt({9 - 2*j})")
            for t in range(2):
                c = "0" if j == 0 else f"v[{S+4*t}:{S+4*t+3}]"
                a(f"v_mfma_f32_16x16x32_bf16 v[{S+4*t}:{S+4*t+3}], v[{KX+16*t+4*j}:{KX+16*t+4*j+3}], v[{Q+4*j}:{Q+4*j+3}], {c}")
            a(f"ds_read_b128 v[{KM+4*j}:{KM+4*j+3}], v{V_OKM} offset:{1024*j}")
        for j in range(4):
            a(f"s_waitcnt lgkmcnt({3 + j})")
            c = "0" if j == 0 else f"v[{S+8}:{S+11}]"
            a(f"v_mfma_f32_16x16x32_bf16 v[{S+8}:{S+11}], v[{KM+4*j}:{KM+4*j+3}], v[{Q+4*j}:{Q+4*j+3}], {c}")
            a(f"ds_read_b128 v[{VT+4*j}:{VT+4*j+3}], v{V_VR} offset:{1024*j}")
            a(f"ds_read_b64 v[{VM+2*j}:{VM+2*j+1}], v{V_OVM} offset:{1024*(j >> 1) + 256*(j & 1)}")
        for i in range(0, 8, 2):
            a(f"v_pk_mul_f32 v[{S+i}:{S+i+1}], v[{S+i}:{S+i+1}], s[{S_C}:{S_C+1}] op_sel_hi:[1,0]")
        for i in range(8):
            a(f"v_cndmask_b32 v{S+i}, v{S+i}, v241, s[{S_MK+2*i}:{S_MK+2*i+1}]")
        for i in (8, 10):
            a(f"v_pk_mul_f32 v[{S+i}:{S+i+1}], v[{S+i}:{S+i+1}], s[{S_C}:{S_C+1}] op_sel_hi:[1,0]")
        for i in range(4):
            a(f"v_cndmask_b32 v{S+8+i}, v{S+8+i}, v{V_NEG}, s[28:29]")
        MX, TM, SM = TMP, TMP + 1, TMP + 2
        a(f"v_max3_f32 v{MX}, v{S}, v{S+1}, v{S+2}")
        for i in range(3, 11, 2):
            a(f"v_max3_f32 v{MX}, v{MX}, v{S+i}, v{S+i+1}")
        a(f"""
        v_max_f32 v{TM}, v{MX}, v{S+11}
        v_max_f32 v{MX}, v{MX}, v{S+11}
        s_nop 1
        v_permlane16_swap_b32 v{MX}, v{TM}
        s_nop 0
        v_max_f32 v{SM}, v{MX}, v{TM}
        v_max_f32 v{SM+1}, v{MX}, v{TM}
        s_nop 1
        v_permlane32_swap_b32 v{SM}, v{SM+1}
        s_nop 0
        v_max_f32 v{MX}, v{SM}, v{SM+1}
        """)
        for i in range(0, 12, 2):
            a(f"v_pk_add_f32 v[{S+i}:{S+i+1}], v[{S+i}:{S+i+1}], v[{MX}:{MX+1}] op_sel_hi:[1,0] neg_lo:[0,1] neg_hi:[0,1]")
        for i in range(12):
            a(f"v_exp_f32 v{S+i}, v{S+i}")
        a.nops(1)
        for i in range(6):
            a(f"v_cvt_pk_bf16_f32 v{P+i}, v{S+2*i}, v{S+2*i+1}")
        a("s_waitcnt lgkmcnt(0)\ns_nop 0")
        a(f"v_mfma_f32_16x16x32_bf16 v[{LS}:{LS+3}], v[{ONE}:{ONE+3}], v[{P}:{P+3}], 0")
        for T in range(4):
            a(f"v_mfma_f32_16x16x32_bf16 v[{O+4*T}:{O+4*T+3}], v[{VT+4*T}:{VT+4*T+3}], v[{P}:{P+3}], 0")
        a(f"v_mfma_f32_16x16x16_bf16 v[{LS}:{LS+3}], v[{ONE}:{ONE+1}], v[{P+4}:{P+5}], v[{LS}:{LS+3}]")
        for T in range(4):
            a(f"v_mfma_f32_16x16x16_bf16 v[{O+4*T}:{O+4*T+3}], v[{VM+2*T}:{VM+2*T+1}], v[{P+4}:{P+5}], v[{O+4*T}:{O+4*T+3}]")
        a(f"""
        s_lshl_b32 s51, s{S_SEG}, 18
        s_nop 2
        v_rcp_f32 v{SM}, v{LS}
        v_rcp_f32 v{SM+1}, v{LS+1}
        s_nop 1
        """)
        for i in range(0, 16, 2):
            a(f"v_pk_mul_f32 v[{O+i}:{O+i+1}], v[{O+i}:{O+i+1}], v[{SM}:{SM+1}]")
        for i in range(8):
            a(f"v_cvt_pk_bf16_f32 v{S+i}, v{O+2*i}, v{O+2*i+1}")
        a(f"""
        buffer_store_dwordx4 v[{S}:{S+3}], v{V_OO}, {SRD}, s51 offen sc1
        buffer_store_dwordx4 v[{S+4}:{S+7}], v{V_OO}, {SRD}, s51 offen offset:2048 sc1
        s_add_u32 s{S_SEG}, s{S_SEG}, 1
        """)
        a("\n".join(pst(6)))
    pinit(a)
    for i in range(16):
        a(f"v_mov_b32 v{ACC[1]+i}, v{ACC[0]+i}")
    a.label(f"{name}_loop")
    seg(1)
    seg(0)
    a(f"s_cmp_lt_u32 s{S_SEG}, 64\ns_cbranch_scc1 {name}_loop")
    a("\n".join(["s_waitcnt vmcnt(0)"] + flag_lines()))
    pdump(a)
    a.label(f"{name}_quit")
    ts(4)
    a("s_endpgm")


def out_role(a: Asm, name, ts, back):
    common(a, KA_WO, KA_OUT, 8 * MB)
    S_ON, S_PAR, S_PRE, S_ROT, S_PEND, S_KH, S_C = 52, 53, 55, 56, 57, 58, 59
    S_ST = 71
    V_OL, V_OF, V_LW, V_LRK, V_LRS, V_OS, V_SND, V_RCV = 6, 7, 8, 9, 10, 11, 12, 13
    ACCO, RD, KEEP, INB, F0, NF, STG = 20, 52, 84, 88, 96, 32, 224
    HS, QS, US, WSs, PS = 544, 1088, 4352, 8704, 34816
    a(f"""
    s_and_b32 s{S_KH}, s{S_H}, 1
    s_lshr_b32 s{S_C}, s{S_H}, 1
    s_lshl_b32 s{S_T0}, s{S_KH}, 22
    s_lshl_b32 s{S_T1}, s{S_WAVE}, 20
    s_add_u32 s{S_T0}, s{S_T0}, s{S_T1}
    s_lshl_b32 s{S_T1}, s{S_C}, 7
    s_add_u32 s{S_OB}, s{S_T0}, s{S_T1}
    s_and_b32 s{S_ROT}, s{S_C}, {7 if E("ROT8", 1) else 3}
    s_lshl_b32 s{S_ROT}, s{S_ROT}, {6 if E("ROT8", 1) else 7}
    """)
    a(f"s_cmp_eq_u32 s68, 2\ns_cbranch_scc1 {name}_hw")
    load_weights(a, 11, S_OB, lane32(4, rl=7), lambda f, jj: (128 * (f >> 4) + 32 * ((f >> 2) & 3) + 8 * ((f >> 1) & 1) + 16 * jj) * 128 + 64 * (f & 1), rot=S_ROT, cl=3)
    a(f"s_cmp_eq_u32 s68, 1\ns_cbranch_scc1 {back}")
    a.label(f"{name}_hw")
    a(f"""
    s_lshl_b32 s{S_ROT}, s{S_ROT}, 6
    s_lshl_b32 s{S_T0}, s{S_KH}, 17
    s_lshl_b32 s{S_T1}, s{S_WAVE}, 15
    s_add_u32 s{S_T0}, s{S_T0}, s{S_T1}
    s_add_u32 s{S_T0}, s{S_T0}, {WS_O}
    v_add_u32 v{V_OL}, s{S_T0}, v{V_LL}
    v_and_b32 v{V_T0}, 3, v{V_L}
    v_lshlrev_b32 v{V_OF}, 2, v{V_T0}
    v_bfe_u32 v{V_T0}, v{V_L}, 2, 2
    v_lshl_add_u32 v{V_OF}, v{V_T0}, 7, v{V_OF}
    s_lshl_b32 s{S_T0}, s{S_KH}, 11
    s_lshl_b32 s{S_T1}, s{S_WAVE}, 9
    s_add_u32 s{S_T0}, s{S_T0}, s{S_T1}
    s_lshl_b32 s{S_T1}, s98, 13
    s_add_u32 s{S_T0}, s{S_T0}, s{S_T1}
    s_add_u32 s{S_T0}, s{S_T0}, {WS_F + F_O}
    v_add_u32 v{V_OF}, s{S_T0}, v{V_OF}
    s_mul_i32 s{S_T0}, s{S_WAVE}, {WSs}
    v_lshrrev_b32 v{V_T0}, 5, v{V_L}
    v_lshl_add_u32 v{V_LW}, v{V_T0}, 5, v{V_LL}
    v_add_u32 v{V_LW}, s{S_T0}, v{V_LW}
    v_and_b32 v{V_T0}, 7, v{V_L}
    v_mul_u32_u24 v{V_LRK}, {HS}, v{V_T0}
    v_lshrrev_b32 v{V_T1}, 3, v{V_L}
    v_lshl_add_u32 v{V_LRK}, v{V_T1}, 4, v{V_LRK}
    s_lshl_b32 s{S_T0}, s{S_WAVE}, 7
    v_add_u32 v{V_LRK}, s{S_T0}, v{V_LRK}
    s_mul_i32 s{S_T0}, s{S_KH}, {US}
    s_sub_u32 s{S_T1}, {US}, s{S_T0}
    v_add_u32 v{V_LRS}, s{S_T1}, v{V_LRK}
    v_add_u32 v{V_LRK}, s{S_T0}, v{V_LRK}
    s_lshl_b32 s{S_T0}, s{S_WAVE}, 15
    s_lshl_b32 s{S_T1}, s{S_H}, 6
    s_add_u32 s{S_T0}, s{S_T0}, s{S_T1}
    v_lshlrev_b32 v{V_OS}, 12, v{V_T1}
    v_and_b32 v{V_T0}, 7, v{V_L}
    v_lshl_add_u32 v{V_OS}, v{V_T0}, 3, v{V_OS}
    v_add_u32 v{V_OS}, s{S_T0}, v{V_OS}
    s_lshl_b32 s{S_T1}, s{S_WAVE}, 10
    s_add_u32 s{S_T0}, s{S_OI}, s{S_T1}
    v_add_u32 v{V_RCV}, s{S_T0}, v{V_LL}
    v_xor_b32 v{V_SND}, 8192, v{V_RCV}
    s_lshl_b32 s{S_ST}, 1, s{S_SH}
    s_mov_b32 s{S_SEG}, s{S_O0}
    s_mov_b32 s{S_ON}, 0
    s_mov_b32 s{S_PAR}, 0
    s_mov_b32 s{S_PEND}, 0
    """)

    def opoll(r):
        if E("OAP", 0):
            a(f"v_mov_b32 v{r}, 0\ns_mov_b64 exec, 0xffff\nbuffer_atomic_add v{r}, v{V_OF}, {SRD}, 0 offen sc0 sc1\ns_mov_b64 exec, -1")
        else:
            a(f"buffer_load_dword v{r}, v{V_OF}, {SRD}, 0 offen sc1")

    def ld(k, sbase):
        f = F0 + 4 * k
        if k % 4 == 0:
            a(f"s_add_u32 s51, s{S_ROT}, {1024 * k}\ns_and_b32 s51, s51, 0x7fff\ns_add_u32 s51, s51, s{sbase}")
        a(f"buffer_load_dwordx4 v[{f}:{f+3}], v{V_OL}, {SRD}, s51 offen offset:{1024*(k & 3)} sc1")

    def mf(k):
        f = F0 + 4 * k
        for u in range(2):
            d = ACCO + 16 * u
            c = "0" if k == 0 else f"v[{d}:{d+15}]"
            if k == NF - 1: d = STG + 16 * u
            a(f"v_mfma_f32_32x32x16_bf16 v[{d}:{d+15}], a[{8*k+4*u}:{8*k+4*u+3}], v[{f}:{f+3}], {c}")

    def slot_lines(sreg):
        return [f"s_sub_u32 s60, s{sreg}, s{S_O0}", f"s_lshr_b32 s60, s60, s{S_SH}", "s_bfe_u32 s61, s60, 0x10001", "s_and_b32 s60, s60, 1", "s_lshl_b32 s60, s60, 12"]

    def inb(sreg):
        a("\n".join(slot_lines(sreg)))
        a(f"buffer_load_dwordx4 v[{INB}:{INB+3}], v{V_RCV}, {SRD}, s60 offen sc1")

    def fin(tag, sreg, cnt):
        a(f"s_waitcnt vmcnt({cnt})")
        a.label(f"{name}_{tag}c")
        a(f"""
        v_and_b32 v14, 1, v{INB}
        v_cmp_ne_u32 vcc, s61, v14
        s_cbranch_vccz {name}_{tag}k
        """)
        wdog(a, name)
        inb(sreg)
        a(f"s_waitcnt vmcnt(0)\ns_branch {name}_{tag}c")
        a.label(f"{name}_{tag}k")
        a(f"""
        v_pk_add_f32 v[{INB}:{INB+1}], v[{INB}:{INB+1}], v[{KEEP}:{KEEP+1}]
        v_pk_add_f32 v[{INB+2}:{INB+3}], v[{INB+2}:{INB+3}], v[{KEEP+2}:{KEEP+3}]
        s_lshl_b32 s60, s{sreg}, 17
        v_cvt_pk_bf16_f32 v{INB+4}, v{INB}, v{INB+1}
        v_cvt_pk_bf16_f32 v{INB+5}, v{INB+2}, v{INB+3}
        buffer_store_dwordx2 v[{INB+4}:{INB+5}], v{V_OS}, s[{S_XM}:{S_XM+3}], s60 offen {os.environ.get('OSTO', 'sc1')}
        """)

    tsx(a, ts, 3)
    pinit(a)
    a.label(f"{name}_cold")
    a(f"s_cmp_gt_i32 s{S_ON}, s{S_SEG}\ns_cbranch_scc1 {name}_fk")
    a.label(f"{name}_fw")
    wdog(a, name)
    opoll(V_T0)
    a(f"""
    s_waitcnt vmcnt(0)
    v_min_i32_dpp v{V_T0}, v{V_T0}, v{V_T0} quad_perm:[1,0,3,2] row_mask:0xf bank_mask:0xf
    s_nop 1
    v_min_i32_dpp v{V_T0}, v{V_T0}, v{V_T0} quad_perm:[2,3,0,1] row_mask:0xf bank_mask:0xf
    s_nop 1
    v_min_i32_dpp v{V_T0}, v{V_T0}, v{V_T0} row_ror:4 row_mask:0xf bank_mask:0xf
    s_nop 1
    v_min_i32_dpp v{V_T0}, v{V_T0}, v{V_T0} row_ror:8 row_mask:0xf bank_mask:0xf
    s_nop 0
    v_readfirstlane_b32 s{S_ON}, v{V_T0}
    s_min_i32 s{S_ON}, s{S_ON}, s{S_O1}
    s_cmp_gt_i32 s{S_ON}, s{S_SEG}
    s_cbranch_scc1 {name}_fk
    s_sleep 2
    s_add_u32 s{S_T0}, s{S_ON}, 2
    s_cmp_gt_i32 s{S_T0}, s{S_SEG}
    s_cbranch_scc1 {name}_fw
    s_sleep 48
    s_branch {name}_fw
    """)
    a.label(f"{name}_fk")
    a(f"s_add_u32 s54, s{S_SEG}, s{S_ST}\ns_cmp_gt_i32 s{S_ON}, s54\ns_cbranch_scc0 {name}_c0")
    a(f"s_lshl_b32 s50, s{S_SEG}, 18")
    for k in range(NF):
        ld(k, 50)
    a("\n".join(pst(0)))
    if E("KPROF", 0): a("s_add_u32 s39, s39, 64")

    uid = [0]
    def epi_groups(sreg):
        g = [[f"v_add_u32 v{V_T0}, s{S_PAR}, v{V_LW}", f"v_add_u32 v{V_T1}, s{S_PAR}, v{V_LRK}", f"v_add_u32 v{V_T2}, s{S_PAR}, v{V_LRS}"]]
        for q in range(0, 8, 2):
            g.append([f"ds_write_b128 v{V_T0}, v[{STG+4*(q+i)}:{STG+4*(q+i)+3}] offset:{QS*(q+i)}" for i in range(2)])
        g.append([])
        g.append(["s_waitcnt lgkmcnt(0)", "s_barrier"] + [f"ds_read_b128 v[{RD+4*w}:{RD+4*w+3}], v{V_T2} offset:{WSs*w}" for w in range(4)])
        g.append([f"ds_read_b128 v[{RD+16+4*w}:{RD+16+4*w+3}], v{V_T1} offset:{WSs*w}" for w in range(4)] +
                 [f"s_sub_u32 s{S_PAR}, {PS}, s{S_PAR}"] + slot_lines(sreg))
        g.append([])
        for h, dst in ((0, RD), (16, KEEP)):
            b = RD + h
            l = [f"s_waitcnt lgkmcnt({4 if h == 0 else 0})"]
            for i in range(4):
                l.append(f"v_add_f32 v{b+i}, v{b+i}, v{b+4+i}")
                l.append(f"v_add_f32 v{b+8+i}, v{b+8+i}, v{b+12+i}")
            g.append(l)
            l = [f"v_add_f32 v{dst+i}, v{b+i}, v{b+8+i}" for i in range(4)]
            if h == 0:
                uid[0] += 1
                l += [f"v_and_or_b32 v{RD}, v{RD}, -2, s61", "s_cmp_eq_u32 s95, 0", f"s_cbranch_scc1 {name}_sa{uid[0]}",
                      f"buffer_store_dwordx4 v[{RD}:{RD+3}], v{V_SND}, {SRD}, s60 offen sc1", f"s_branch {name}_sb{uid[0]}", f"{name}_sa{uid[0]}:",
                      f"buffer_store_dwordx4 v[{RD}:{RD+3}], v{V_SND}, {SRD}, s60 offen", f"{name}_sb{uid[0]}:"]
            g.append(l)
        return g

    def loop(pre, epi):
        g = epi_groups(62) if epi else []
        for k in range(NF):
            a(f"s_waitcnt vmcnt({NF-1 if pre else NF-1-k})")
            mf(k)
            if pre: ld(k, 50)
            if 1 <= k <= len(g): a("\n".join(g[k-1]))
            if epi and k == 27: inb(62)
            if not pre and k == 20: opoll(15)
        if epi: fin(f"f{pre}", 62, 4 if pre else 0)

    def loopc(epi):
        Wn = E("OWIN", 8)
        g = epi_groups(62) if epi else []
        a.label(f"{name}_c{epi}")
        if epi == 0: tsx(a, ts, 5)
        a(f"s_add_u32 s54, s{S_SEG}, s{S_ST}\ns_sub_u32 s62, s{S_SEG}, s{S_ST}\ns_lshl_b32 s50, s{S_SEG}, 18")
        for k in range(Wn):
            ld(k, 50)
        for l in g: a("\n".join(l))
        for k in range(NF):
            a(f"s_waitcnt vmcnt({min(Wn, NF - k) - 1})")
            mf(k)
            if k + Wn < NF: ld(k + Wn, 50)
            if epi and k == 24: inb(62)
            if k == 24: opoll(15)
        if epi == 0: tsx(a, ts, 6)
        if epi: fin("fc", 62, 0)
        a("\n".join(pst(3)))
        a(f"s_lshl_b32 s50, s54, 18\ns_branch {name}_imm")

    for epi in range(2):
        a.label(f"{name}_w{epi}")
        a(f"""
        s_add_u32 s54, s{S_SEG}, s{S_ST}
        s_sub_u32 s62, s{S_SEG}, s{S_ST}
        s_lshl_b32 s50, s54, 18
        s_cmp_gt_i32 s{S_ON}, s54
        s_cbranch_scc0 {name}_n{epi}
        """)
        loop(1, epi)
        a("\n".join(pst(1)))
        a(f"s_add_u32 s{S_SEG}, s{S_SEG}, s{S_ST}\ns_branch {name}_w1")
        a.label(f"{name}_n{epi}")
        loop(0, epi)
        a("\n".join(pst(2)))
        if epi == 0: a(f"s_branch {name}_imm")
    a.label(f"{name}_imm")
    a(f"""
    s_waitcnt vmcnt(1)
    v_min_i32_dpp v15, v15, v15 quad_perm:[1,0,3,2] row_mask:0xf bank_mask:0xf
    s_nop 1
    v_min_i32_dpp v15, v15, v15 quad_perm:[2,3,0,1] row_mask:0xf bank_mask:0xf
    s_nop 1
    v_min_i32_dpp v15, v15, v15 row_ror:4 row_mask:0xf bank_mask:0xf
    s_nop 1
    v_min_i32_dpp v15, v15, v15 row_ror:8 row_mask:0xf bank_mask:0xf
    s_nop 0
    v_readfirstlane_b32 s{S_ON}, v15
    s_min_i32 s{S_ON}, s{S_ON}, s{S_O1}
    s_cmp_gt_i32 s{S_ON}, s54
    s_cbranch_scc0 {name}_im2
    s_add_u32 s{S_SEG}, s{S_SEG}, s{S_ST}
    s_add_u32 s54, s54, s{S_ST}
    s_cmp_gt_i32 s{S_ON}, s54
    s_cbranch_scc0 {name}_c1
    """)
    for k in range(NF):
        ld(k, 50)
    a(f"s_branch {name}_w1")
    loopc(0)
    loopc(1)
    a.label(f"{name}_im2")
    for g in epi_groups(S_SEG):
        a("\n".join(g))
    inb(S_SEG)
    fin("f2", S_SEG, 0)
    a("\n".join(pst(4)))
    a(f"""
    s_add_u32 s{S_SEG}, s{S_SEG}, s{S_ST}
    s_cmp_lt_u32 s{S_SEG}, s{S_O1}
    s_cbranch_scc1 {name}_cold
    """)
    pdump(a)
    a.label(f"{name}_quit")
    ts(4)
    a("s_endpgm")
```

```python
import sys
from gen_common import *
from gen_rec import S_X, S_T, S_WSD, S_DBG, E, start_code, rec_body, sync_code, slow_entry, init_cd
from gen_bulk import kv_role, qx_role, out_role, S_H, S_O0, S_O1, S_OI, S_SH
from gen_fft2 import gen_f0, gen_f1, gen_f2, gen_f3

LDS = 163840


def gen_mega(a, name, force_slow=False):
    W = S_WSD
    S_B, S_G, S_F = 94, 91, 92
    a.kernel_begin(name)

    dbgn = [0]
    def ts(i):
        if E("DBGT", 0):
            slot = {2: 1, 3: 2, 4: 3, 8: 2, 10: 3}.get(i)
            if slot is None: return
            dbgn[0] += 1
            a(f"""
            s_cmp_eq_u32 s96, 5
            s_cbranch_scc0 {name}_dg{dbgn[0]}
            v_cmp_eq_u32 vcc, 64, v0
            s_cbranch_vccz {name}_dg{dbgn[0]}
            s_memrealtime s[76:77]
            s_waitcnt lgkmcnt(0)
            s_sub_u32 s76, s76, s100
            s_sub_u32 s78, s90, 3
            s_max_i32 s78, s78, 0
            s_cmp_eq_u32 s90, 7
            s_cselect_b32 s78, 1, s78
            s_cmp_eq_u32 s90, 4
            s_cbranch_scc1 {name}_dg{dbgn[0]}
            s_lshl_b32 s78, s78, 4
            v_mov_b32 v1, 0
            v_mov_b32 v2, s76
            s_mov_b64 exec, 1
            buffer_atomic_umax v2, v1, s[{S_DBG}:{S_DBG+3}], s78 offen offset:{4 * slot} sc1
            s_mov_b64 exec, -1
{name}_dg{dbgn[0]}:
            """)
            return
        if not E("BPROF", 0): return
        a(f"""
        s_memrealtime s[76:77]
        s_memtime s[100:101]
        s_waitcnt lgkmcnt(0)
        v_mov_b32 v1, 0
        v_mov_b32 v2, s76
        s_lshl_b32 s78, s2, 6
        s_add_u32 s78, s78, {WS_PROF + 8 * MB + 4 * i}
        s_mov_b64 exec, 1
        buffer_store_dword v2, v1, s[{W}:{W+3}], s78 offen
        s_nop 1
        v_mov_b32 v2, s100
        s_add_u32 s78, s78, 16384
        buffer_store_dword v2, v1, s[{W}:{W+3}], s78 offen
        s_nop 1
        v_mov_b32 v2, s96
        s_lshl_b32 s78, s2, 6
        s_add_u32 s78, s78, {WS_PROF + 8 * MB + 56}
        buffer_store_dword v2, v1, s[{W}:{W+3}], s78 offen
        s_mov_b64 exec, -1
        """)
    a(f"s_cmp_ge_u32 s2, 256\ns_cbranch_scc1 {name}_exit")
    if E("BPROF", 0) == 1: a("s_memrealtime s[80:81]")
    if E("DBGT", 0): a("s_memrealtime s[100:101]")
    start_code(a, name)
    sync = lambda tag: (lambda vt, pre=False: sync_code(a, name, tag, vt, force_slow, pre))
    a(f"""
    s_cmp_lt_u32 s96, 32
    s_cbranch_scc1 {name}_spec
    """)
    sync("x")(2)
    slow_entry(a, name)
    a(f"""
    s_lshr_b32 s{S_X}, s97, 5
    s_and_b32 s{S_T}, s97, 31
    s_cmp_lt_u32 s97, 128
    s_cbranch_scc1 {name}_recs
    s_sub_u32 s{S_B}, s97, 128
    s_branch {name}_bulk
{name}_spec:
    s_mov_b32 s{S_X}, s90
    s_mov_b32 s{S_T}, s96
    s_cmp_lt_u32 s90, 4
    s_cbranch_scc1 {name}_recf
    s_sub_u32 s{S_B}, s90, 4
    s_lshl_b32 s{S_B}, s{S_B}, 5
    s_add_u32 s{S_B}, s{S_B}, s96
{name}_bulk:
    """)
    if E("MIX", 0):
        a(f"s_and_b32 s{S_G}, s{S_B}, 3\ns_lshr_b32 s{S_H}, s{S_B}, 2")
    else:
        a(f"s_lshr_b32 s{S_G}, s{S_B}, 5\ns_and_b32 s{S_H}, s{S_B}, 31")
    a(f"""
    s_and_b32 s{S_F}, s{S_G}, 1
    s_lshl_b32 s{S_F}, s{S_F}, 5
    s_add_u32 s{S_F}, s{S_F}, s{S_H}
    """)
    if E("BPROF", 0) == 1:
        a(f"""
        v_mov_b32 v1, 0
        v_mov_b32 v2, s80
        v_mov_b32 v3, s{S_G}
        s_lshl_b32 s78, s2, 6
        s_add_u32 s78, s78, {WS_PROF + 8 * MB}
        s_mov_b64 exec, 1
        buffer_store_dword v2, v1, s[{W}:{W+3}], s78 offen
        buffer_store_dword v3, v1, s[{W}:{W+3}], s78 offen offset:60
        s_mov_b64 exec, -1
        """)
    ts(1)
    a(f"""
    s_cmp_eq_u32 s{S_G}, 0
    s_cbranch_scc1 {name}_rk
    s_cmp_eq_u32 s{S_G}, 1
    s_cbranch_scc1 {name}_rv
    """)
    def signal(i):
        a(f"""
        s_waitcnt vmcnt(0)
        s_barrier
        v_mov_b32 v1, 0
        v_mov_b32 v2, 1
        s_mov_b32 s82, {WS_F + F_CNT + 128 * i}
        v_cmp_eq_u32 vcc, 0, v0
        s_and_saveexec_b64 s[80:81], vcc
        s_cbranch_execz {name}_sg{i}
        buffer_atomic_add v2, v1, s[{W}:{W+3}], s82 offen sc1
{name}_sg{i}:
        s_mov_b64 exec, s[80:81]
        """)

    def wait(i, n, v=1):
        a(f"v_mov_b32 v{v}, 0\ns_mov_b32 s82, {WS_F + F_CNT + 128 * i}")
        a.label(f"{name}_w{i}")
        wd_code(a, f"fftwait{i}")
        a(f"""
        s_sleep 8
        buffer_load_dword v{v+1}, v{v}, s[{W}:{W+3}], s82 offen sc1
        s_waitcnt vmcnt(0)
        v_cmp_ne_u32 vcc, {n-1}, v{v+1}
        s_cbranch_vccnz {name}_w{i}
        """)

    def tasks(tag, fn, first, stride, n, base_sreg):
        a(f"s_add_u32 s93, s{base_sreg}, {first}")
        a(f"s_cmp_lt_u32 s93, {n}\ns_cbranch_scc0 {name}_{tag}e")
        a.label(f"{name}_{tag}l")
        fn()
        a(f"s_add_u32 s93, s93, {stride}\ns_cmp_lt_u32 s93, {n}\ns_cbranch_scc1 {name}_{tag}l")
        a.label(f"{name}_{tag}e")
    DF2 = E("DF2", 0)
    if E("NI", 32) == 32:
        a(f"s_cmp_eq_u32 s{S_G}, 2\ns_cbranch_scc1 {name}_noinit")
        init_cd(a, name, S_H)
        if E("WOT", 0):
            a(f"""
            s_load_dwordx2 s[4:5], s[0:1], {KA_WO}
            v_lshlrev_b32 v1, 7, v0
            s_lshl_b32 s8, s{S_H}, 15
            s_waitcnt lgkmcnt(0)
            s_mov_b32 s6, {8*MB}
            s_mov_b32 s7, 0x00020000
            """)
            for i in range(8):
                a(f"buffer_load_dword v250, v1, s[4:7], s8 offen\ns_add_u32 s8, s8, {MB}")
            a("s_waitcnt vmcnt(0)")
        a.label(f"{name}_noinit")
    else:
        init_cd(a, name, S_F)
    if E("CDH", 0):
        if E("CDH", 0) == 1: a(f"s_cmp_eq_u32 s{S_G}, 2\ns_cbranch_scc1 {name}_nohold")
        sync("h")(2)
        a(f"""
        s_xor_b32 s76, s98, 1
        s_lshl_b32 s76, s76, 13
        s_lshl_b32 s77, s{S_H}, 7
        s_add_u32 s76, s76, s77
        s_add_u32 s76, s76, {WS_F + F_K}
        v_mov_b32 v1, 0
{name}_hold:
        s_sleep 12
        """)
        wd_code(a, "hold")
        a(f"""
        buffer_load_dword v2, v1, s[{W}:{W+3}], s76 offen sc1
        s_waitcnt vmcnt(0)
        v_cmp_gt_i32 vcc, 1, v2
        s_cbranch_vccnz {name}_hold
{name}_nohold:
        """)
    ts(2)
    a(f"s_cmp_eq_u32 s{S_G}, 2\ns_cbranch_scc0 {name}_rd")
    qx_role(a, name + "_q", ts, sync("c"))
    a.label(f"{name}_rd")
    fs = [lambda: gen_f1(a, name + "_f1", 93, 32, 128), lambda: gen_f0(a, name + "_f0", 93, 32, 288)]
    if E("F0FIRST", 1): fs.reverse()
    a(f"s_mov_b32 s93, s{S_H}")
    fs[0]()
    ts(5)
    if E("FGAP", 0):
        a(f"s_mov_b32 s76, {E('FGAP', 0)}")
        a.label(f"{name}_fg")
        a(f"s_sleep 32\ns_sub_u32 s76, s76, 1\ns_cmp_lg_u32 s76, 0\ns_cbranch_scc1 {name}_fg")
    a(f"s_mov_b32 s93, s{S_H}\ns_waitcnt vmcnt(0)")
    fs[1]()
    sync("d")(2)
    signal(0)
    ts(6)
    a(f"s_add_u32 s38, s{S_H}, {129 - DF2}\ns_mov_b32 s39, 32\ns_mov_b32 s37, 129")
    a(f"s_cmp_lt_u32 s38, 129\ns_cbranch_scc1 {name}_f2s\ns_branch {name}_f2e")
    a.label(f"{name}_rk")
    kv_role(a, name + "_k", False, ts, sync("k"))
    a(f"s_branch {name}_fft")
    a.label(f"{name}_rv")
    kv_role(a, name + "_v", True, ts, sync("v"))
    a.label(f"{name}_fft")
    ts(4)
    a(f"s_mov_b32 s38, s{S_F}\ns_mov_b32 s39, 64\ns_mov_b32 s37, {129 - DF2}")
    a.label(f"{name}_f2s")
    wait(0, 32)
    gen_f2(a, name + "_f2", 38, "s39", "s37")
    a.label(f"{name}_f2e")
    signal(1)
    ts(7)
    KS = E("KS", 58)
    assert KS % 2 == 0 and E("B16", 1) and E("XC", 1)
    a(f"""
    s_mov_b32 s{S_O0}, 0
    s_mov_b32 s{S_O1}, {KS}
    s_lshl_b32 s{S_OI}, s{S_H}, 13
    s_add_u32 s{S_OI}, s{S_OI}, {WS_OI}
    s_mov_b32 s{S_SH}, 0
    s_mov_b32 s68, 0
    s_cmp_eq_u32 s{S_G}, 3
    s_cbranch_scc1 {name}_out
    s_cmp_lt_u32 s{S_F}, {1 - DF2 if E("WEARLY", 1) else 64}
    s_cbranch_scc1 {name}_back
    s_mov_b32 s68, 1
    s_branch {name}_out
{name}_back:
    s_lshl_b32 s68, s68, 1
    """)
    a(f"s_mov_b32 s93, s{S_F}")
    gen_f3(a, name + "_f3", 93, 64, 128, lambda: wait(1, 96, 250))
    ts(8)
    a(f"""
    s_waitcnt vmcnt(0)
    s_barrier
    s_add_u32 s{S_O0}, s{S_G}, {KS}
    s_mov_b32 s{S_O1}, 64
    s_mov_b32 s{S_SH}, 1
    s_add_u32 s{S_OI}, s{S_OI}, {32 * 8192}
    s_cmp_eq_u32 s{S_G}, 0
    s_cbranch_scc1 {name}_out
    s_lshr_b32 s{S_OI}, s{S_H}, 2
    s_lshl_b32 s{S_OI}, s{S_OI}, 16
    s_and_b32 s76, s{S_H}, 3
    s_lshl_b32 s76, s76, 13
    s_add_u32 s{S_OI}, s{S_OI}, s76
    s_add_u32 s{S_OI}, s{S_OI}, {WS_H + 32768}
    """)
    a.label(f"{name}_out")
    out_role(a, name + "_o", lambda i: ts(i + 6), f"{name}_back")
    a.label(f"{name}_exit")
    a("s_endpgm")
    a.label(f"{name}_recf")
    rec_body(a, name + "_rf", "", sync("r"), prof=bool(E("PROF", 0)), ts=ts)
    a.label(f"{name}_recs")
    rec_body(a, name + "_rs", "sc1", sync("s"))
    return kd(name, 512, sgpr=102, accum=256)


def build(path, force_slow=False):
    a = Asm()
    k = gen_mega(a, "mega_kernel", force_slow)
    out = HEADER + f"; @launch kernel=mega_kernel grid=(256,1,1) block=(256,1,1) lds={LDS}\n"
    out += '.amdgcn_target "amdgcn-amd-amdhsa--gfx950"\n.text\n' + a.text() + '.section .rodata,"a"\n' + k
    if E("PLAIN", 0):
        import re
        out = out.replace("; @launch kernel=mega_kernel grid", "; @launch grid")
        out = re.sub(r"\bmega_kernel\b", KNAME + "_kernel", out).replace("mega_kernel_", "mk_")
    open(path, "w").write(out)
    import json
    json.dump(WD_SITES, open("wd.json", "w"))


if __name__ == "__main__":
    build(sys.argv[1] if len(sys.argv) > 1 else "mega.s", force_slow=("slow" in sys.argv))
```

```python
from gen_common import *
from gen_rec import S_WSD, S_DBG, E, sync_issue

W = S_WSD
SRD = f"s[{W}:{W+3}]"
S_H = 40
S_WAVE, S_SEG, S_T0, S_T1, S_T2 = 41, 42, 43, 44, 45
S_WM, S_XM = 4, 8
V_L, V_T0, V_T1, V_T2, V_LL = 1, 2, 3, 4, 5


def wdog(a, name):
    wd_code(a, name + ":" + a.lines[-1], f"s{S_SEG}")


def tsx(a, ts, i):
    if E("BPROF", 0):
        ts(i)
        a(f"v_and_b32 v{V_L}, 63, v0")


def pst(i):
    if not E("KPROF", 0): return []
    return ["s_memtime s[76:77]", "s_waitcnt lgkmcnt(0)", "s_sub_u32 s78, s76, s31", f"s_add_u32 s{32+i}, s{32+i}, s78", "s_mov_b32 s31, s76"]


def pinit(a):
    if not E("KPROF", 0): return
    for i in range(8): a(f"s_mov_b32 s{32+i}, 0")
    a("s_memtime s[76:77]\ns_waitcnt lgkmcnt(0)\ns_mov_b32 s31, s76")


def pdump(a):
    if not E("KPROF", 0): return
    a(f"s_lshl_b32 s78, s2, 7\ns_lshl_b32 s77, s{S_WAVE}, 5\ns_add_u32 s78, s78, s77\ns_add_u32 s78, s78, {WS_PROF + 9*MB}\nv_mov_b32 v2, 0\ns_mov_b64 exec, 1")
    for i in range(8):
        a(f"v_mov_b32 v3, s{32+i}\nbuffer_store_dword v3, v2, {SRD}, s78 offen offset:{4*i}\ns_nop 1")
    a("s_mov_b64 exec, -1")


def common(a, ka_w, ka_x, xbytes):
    a(f"""
    s_load_dwordx2 s[{S_WM}:{S_WM+1}], s[0:1], {ka_w}
    s_load_dwordx2 s[{S_XM}:{S_XM+1}], s[0:1], {ka_x}
    v_lshrrev_b32 v{V_T0}, 6, v0
    v_and_b32 v{V_L}, 63, v0
    v_readfirstlane_b32 s{S_WAVE}, v{V_T0}
    v_lshlrev_b32 v{V_LL}, 4, v{V_L}
    s_waitcnt lgkmcnt(0)
    s_mov_b32 s{S_WM+2}, {8*MB}
    s_mov_b32 s{S_WM+3}, 0x00020000
    s_mov_b32 s{S_XM+2}, {xbytes}
    s_mov_b32 s{S_XM+3}, 0x00020000
    """)


def load_weights(a, rowlog, s_base, lane_addr, frag_off, rot=None, cl=2, touch=False):
    a(f"""
    v_lshrrev_b32 v{V_T0}, {cl}, v{V_L}
    v_and_b32 v{V_T1}, {(1 << cl) - 1}, v{V_L}
    v_lshlrev_b32 v16, {rowlog}, v{V_T0}
    v_lshl_add_u32 v16, v{V_T1}, 4, v16
    v_add_u32 v16, s{s_base}, v16
    v_and_b32 v{V_T1}, 3, v{V_L}
    s_lshl_b32 s{S_T2}, s{S_WAVE}, 15
    """)
    RI = 64 >> cl
    a(lane_addr)
    a(f"v_add_u32 v17, s{S_T2}, v17")

    HELP = 1 if (touch and E("BHELP", 1)) else 0
    if HELP:
        a(f"""
        s_and_b32 s{S_T0}, s{S_H}, 3
        s_lshl_b32 s{S_T0}, s{S_T0}, 2
        s_add_u32 s{S_T0}, s{S_T0}, s{S_WAVE}
        s_lshl_b32 s{S_T0}, s{S_T0}, 4
        v_and_b32 v23, 15, v{V_L}
        v_add_u32 v23, s{S_T0}, v23
        s_lshr_b32 s{S_T0}, s{S_H}, 2
        s_lshl_b32 s{S_T0}, s{S_T0}, 10
        s_add_u32 s{S_T1}, s{S_T0}, 896
        s_add_u32 s{S_T0}, s{S_T0}, 384
        s_cmp_ge_u32 s{S_H}, 28
        s_cselect_b32 s{S_T1}, s{S_T1}, s{S_T0}
        v_mov_b32 v24, s{S_T0}
        v_mov_b32 v25, s{S_T1}
        v_cmp_gt_u32 vcc, 32, v{V_L}
        s_nop 1
        v_cndmask_b32 v24, v25, v24, vcc
        v_lshl_add_u32 v23, v23, 13, v24
        """)

    def dma(ch):
        if HELP:
            a(f"s_mov_b32 s{S_T1}, {ch * 2 * MB}\nbuffer_load_dword v22, v23, s[{S_WM}:{S_WM+3}], s{S_T1} offen")
        for r in range(16):
            a(f"s_add_u32 m0, s{S_T2}, {(ch & 1)*16384 + 1024*r}")
            if rot is None:
                a(f"s_mov_b32 s{S_T1}, {(RI * (16 * ch + r)) << rowlog}")
            else:
                a(f"s_add_u32 s{S_T1}, s{rot}, {RI * (16 * ch + r)}\ns_and_b32 s{S_T1}, s{S_T1}, {64 * RI - 1}\ns_lshl_b32 s{S_T1}, s{S_T1}, {rowlog}")
            a(f"buffer_load_dwordx4 v16, s[{S_WM}:{S_WM+3}], s{S_T1} offen {'nt ' if E('BNT', 0) else ''}lds")

    def tr(ch):
        for f in range(16 * ch, 16 * ch + 16):
            for jj in range(2):
                o = frag_off(f, jj) - 16384 * ch
                assert 0 <= o < 16384
                a(f"ds_read_b64_tr_b16 a[{4*f+2*jj}:{4*f+2*jj+1}], v17 offset:{(ch & 1)*16384 + o}")
            if f % 4 == 3:
                a("s_waitcnt lgkmcnt(0)")
    WT = E("BWT", 0) if touch else 0
    if WT:
        a(f"""
        s_lshl_b32 s{S_T0}, s{S_H}, 16
        s_lshl_b32 s{S_T1}, s{S_WAVE}, 14
        s_add_u32 s{S_T0}, s{S_T0}, s{S_T1}
        v_lshlrev_b32 v21, 7, v{V_L}
        v_add_u32 v21, s{S_T0}, v21
        """)
    def tch(n):
        for i in range(2):
            a(f"s_mov_b32 s{S_T1}, {n * 2 * MB + i * 8192}")
            a(f"buffer_load_dword v22, v21, s[{S_WM}:{S_WM+3}], s{S_T1} offen")
    if WT == 1:
        tch(0); tch(1); dma(0); tch(2); dma(1); tch(3)
    elif WT == 2:
        tch(0); tch(1); tch(2); tch(3); dma(0); dma(1)
    else:
        dma(0); dma(1)
    a(f"s_waitcnt vmcnt({(20 if WT == 1 else 16) + HELP})"); tr(0); dma(2)
    a(f"s_waitcnt vmcnt({(18 if WT == 1 else 16) + HELP})"); tr(1); dma(3)
    a("s_waitcnt vmcnt(16)"); tr(2)
    a("s_waitcnt vmcnt(0)"); tr(3)
    a("s_barrier")


def lane32(hi_mul, swap=False, rl=6):
    if swap:
        return lane32(hi_mul).replace(f"v_lshl_add_u32 v17, v{V_T1}, 3, v17", f"""
        v_and_b32 v18, 1, v{V_L}
        v_lshl_add_u32 v17, v18, 4, v17
        v_bfe_u32 v18, v{V_L}, 1, 1
        v_lshl_add_u32 v17, v18, 3, v17""")
    return f"""
    v_bfe_u32 v17, v{V_L}, 2, 2
    v_lshrrev_b32 v18, 5, v{V_L}
    v_mul_u32_u24 v18, {hi_mul}, v18
    v_add_u32 v17, v17, v18
    v_lshlrev_b32 v17, {rl}, v17
    v_bfe_u32 v18, v{V_L}, 4, 1
    v_lshl_add_u32 v17, v18, 5, v17
    v_lshl_add_u32 v17, v{V_T1}, 3, v17
    """


def lane16(qlog):
    return f"""
    v_bfe_u32 v17, v{V_L}, 2, 2
    v_lshrrev_b32 v18, 4, v{V_L}
    v_lshl_add_u32 v17, v18, 3, v17
    v_lshlrev_b32 v17, 6, v17
    v_lshl_add_u32 v17, v{V_T1}, {qlog}, v17
    """


M32 = E('M32', 0)
GR2 = 512 if M32 else 1024
V_DX, V_RA, V_ST = 6, 8, 7
FR, NFR, AHEAD = 20, 8, 6
ACC = (52, 68)
EP = 84
S_XB = 46
S_CU, S_OB, S_FL = 47, 48, 49
S_O0, S_O1, S_OI, S_SH = 64, 65, 66, 67


def proj_setup(a, ka_w, swap, two=False, presync=True):
    assert not M32
    common(a, ka_w, KA_AX, 4 * MB)
    a(f"""
    s_lshl_b32 s{S_T0}, s{S_H}, 8
    s_lshl_b32 s{S_T1}, s{S_WAVE}, 6
    s_add_u32 s{S_OB}, s{S_T0}, s{S_T1}
    s_and_b32 s{S_T0}, s{S_OB}, 0x7ff
    v_add_u32 v19, s{S_T0}, v{V_L}
    v_lshlrev_b32 v19, 7, v19
    s_mov_b32 s{S_T0}, {0x20000 if two else 0}
    buffer_load_dword v250, v19, s[{S_XM}:{S_XM+3}], s{S_T0} offen
    s_nop 0
    """)
    a(f"""
    v_lshrrev_b32 v{V_T0}, 3, v{V_L}
    s_lshl_b32 s{S_T0}, s{S_WAVE}, 3
    v_add_u32 v{V_T0}, s{S_T0}, v{V_T0}
    v_bfe_u32 v{V_T1}, v{V_T0}, 1, 3
    v_and_b32 v{V_T2}, 7, v{V_L}
    v_xor_b32 v{V_T1}, v{V_T1}, v{V_T2}
    v_lshlrev_b32 v{V_DX}, 11, v{V_T0}
    v_lshl_add_u32 v{V_DX}, v{V_T1}, 4, v{V_DX}
    s_lshl_b32 s{S_XB}, s{S_WAVE}, 10
    v_and_b32 v{V_T0}, 15, v{V_L}
    v_bfe_u32 v{V_T1}, v{V_T0}, 1, 3
    v_lshrrev_b32 v{V_T2}, 4, v{V_L}
    v_xor_b32 v{V_T1}, v{V_T1}, v{V_T2}
    v_lshlrev_b32 v{V_RA}, 7, v{V_T0}
    v_lshl_add_u32 v{V_RA}, v{V_T1}, 4, v{V_RA}
    v_xor_b32 v{V_RA+1}, 64, v{V_RA}
    v_add_u32 v{V_RA+2}, 0x10000, v{V_RA}
    v_add_u32 v{V_RA+3}, 0x10000, v{V_RA+1}
    v_mov_b32 v{V_ST}, v{V_LL}
    """)
    if M32:
        a(f"""
        v_and_b32 v{V_T0}, 31, v{V_L}
        v_bfe_u32 v{V_T1}, v{V_T0}, 1, 3
        v_lshrrev_b32 v{V_T2}, 5, v{V_L}
        v_xor_b32 v{V_T1}, v{V_T1}, v{V_T2}
        v_lshlrev_b32 v{V_RA}, 7, v{V_T0}
        v_lshl_add_u32 v{V_RA}, v{V_T1}, 4, v{V_RA}
        v_xor_b32 v{V_RA+1}, 32, v{V_RA}
        v_xor_b32 v{V_RA+2}, 64, v{V_RA}
        v_xor_b32 v{V_RA+3}, 96, v{V_RA}
        v_add_u32 v{V_RA+4}, 0x10000, v{V_RA}
        v_add_u32 v{V_RA+5}, 0x10000, v{V_RA+1}
        v_add_u32 v{V_RA+6}, 0x10000, v{V_RA+2}
        v_add_u32 v{V_RA+7}, 0x10000, v{V_RA+3}
        v_bfe_u32 v{V_T1}, v{V_L}, 4, 1
        v_lshlrev_b32 v{V_ST}, 10, v{V_T1}
        v_lshl_add_u32 v{V_ST}, v{V_T2}, 8, v{V_ST}
        v_and_b32 v{V_T1}, 15, v{V_L}
        v_lshl_add_u32 v{V_ST}, v{V_T1}, 4, v{V_ST}
        """)
    a(f"""
    s_lshl_b32 s{S_CU}, s{S_H}, 2
    s_add_u32 s{S_CU}, s{S_CU}, s{S_WAVE}
    s_mov_b32 s{S_SEG}, 0
    s_mov_b32 s50, 0
    """)
    for g in xdma_lines(0, 50):
        a("\n".join(g))
    if two:
        a("s_mov_b32 s50, 0x10000")
        for g in xdma_lines(1, 50):
            a("\n".join(g))
    NC, RG, NI_, CB = (16, 2, 4, 4096) if two else (8, 3, 8, 8192)
    a(f"""
    v_lshrrev_b32 v{V_T0}, 2, v{V_L}
    v_and_b32 v{V_T1}, 3, v{V_L}
    v_lshlrev_b32 v16, 13, v{V_T0}
    v_lshl_add_u32 v16, v{V_T1}, 4, v16
    v_add_u32 v16, s{S_OB}, v16
    s_mul_i32 s{S_T2}, s{S_WAVE}, {RG * CB}
    s_add_u32 s{S_T2}, s{S_T2}, {131072 if two else 65536}
    """)
    a(lane16(4 if swap else 3))
    a(f"""
    v_add_u32 v17, s{S_T2}, v17
    s_and_b32 s{S_T0}, s{S_H}, 3
    s_lshl_b32 s{S_T0}, s{S_T0}, 2
    s_add_u32 s{S_T0}, s{S_T0}, s{S_WAVE}
    s_lshl_b32 s{S_T0}, s{S_T0}, 3
    v_and_b32 v12, 7, v{V_L}
    v_add_u32 v12, s{S_T0}, v12
    s_lshr_b32 s{S_T0}, s{S_H}, 2
    s_lshl_b32 s{S_T0}, s{S_T0}, 10
    s_add_u32 s{S_T1}, s{S_T0}, 896
    s_add_u32 s{S_T0}, s{S_T0}, 384
    s_cmp_ge_u32 s{S_H}, 28
    s_cselect_b32 s{S_T1}, s{S_T1}, s{S_T0}
    v_mov_b32 v13, s{S_T0}
    v_mov_b32 v14, s{S_T1}
    v_cmp_gt_u32 vcc, 32, v{V_L}
    s_nop 1
    v_cndmask_b32 v13, v14, v13, vcc
    v_lshl_add_u32 v12, v12, 13, v13
    """)

    def hastouch(ch):
        return (not two) or ch % 2 == 0

    def dma(ch):
        if hastouch(ch):
            a(f"s_mov_b32 s{S_T1}, {(ch // 2 if two else ch) * MB}\nbuffer_load_dword v250, v12, s[{S_WM}:{S_WM+3}], s{S_T1} offen")
        for r in range(NI_):
            a(f"s_add_u32 m0, s{S_T2}, {(ch % RG)*CB + 1024*r}")
            a(f"s_mov_b32 s{S_T1}, {(16 * (NI_ * ch + r)) << 13}")
            a(f"buffer_load_dwordx4 v16, s[{S_WM}:{S_WM+3}], s{S_T1} offen lds")
    for ch in range(RG): dma(ch)
    for ch in range(NC):
        a(f"s_waitcnt vmcnt({sum(NI_ + hastouch(c) for c in range(ch + 1, min(ch + RG, NC)))})")
        if ch == 0: a("s_barrier")
        for f in range(NI_ * ch, NI_ * ch + NI_):
            for jj in range(2):
                o = (32 * ((f >> 1) - NI_ // 2 * ch) + 4 * jj) * 64 + (f & 1) * (8 if swap else 32)
                a(f"ds_read_b64_tr_b16 a[{4*f+2*jj}:{4*f+2*jj+1}], v17 offset:{(ch % RG)*CB + o}")
            if f % 4 == 3: a("s_waitcnt lgkmcnt(0)")
        if two and presync and ch == NC - RG - 1: sync_issue(a, 246)
        if ch + RG < NC: dma(ch + RG)
        work = [(z, n) for z in range(2 if two else 1) for n in range(NI_ * ch, NI_ * ch + NI_)]
        for i, (z, n) in enumerate(work):
            k = n >> 1
            a(f"ds_read_b128 v[{FR+4*i}:{FR+4*i+3}], v{V_RA + 2*z + (k & 1)} offset:{4096*(k >> 1) + 2048*(n & 1)}")
        a("s_waitcnt lgkmcnt(0)")
        for i, (z, n) in enumerate(work):
            k, tt, f = n >> 1, n & 1, FR + 4 * i
            for u in range(2):
                d, w = ACC[z] + 8 * tt + 4 * u, 4 * (2 * k + u)
                c = "0" if k == 0 else f"v[{d}:{d+3}]"
                if swap: a(f"v_mfma_f32_16x16x32_bf16 v[{d}:{d+3}], a[{w}:{w+3}], v[{f}:{f+3}], {c}")
                else: a(f"v_mfma_f32_16x16x32_bf16 v[{d}:{d+3}], v[{f}:{f+3}], a[{w}:{w+3}], {c}")
    if not two:
        a("s_barrier\ns_mov_b32 s50, 0x10000")
        for g in xdma_lines(1, 50):
            a("\n".join(g))


def xdma_lines(buf, s_off):
    out = []
    for kb in range(16):
        out.append([f"s_add_u32 m0, s{S_XB}, {buf*65536 + kb*3968}", "s_nop 0",
                    f"buffer_load_dwordx4 v{V_DX}, s[{S_XM}:{S_XM+3}], s{s_off} offen offset:{128*kb} lds"])
    return out


def proj_segment(a, buf, acc, wA, fill, stg=None):
    def rd(n):
        f = FR + 4 * (n % NFR)
        k = n >> 1
        if M32:
            a(f"ds_read_b128 v[{f}:{f+3}], v{V_RA + 4*buf + (n & 3)} offset:{4096*(n >> 2)}")
        else:
            a(f"ds_read_b128 v[{f}:{f+3}], v{V_RA + 2*buf + (k & 1)} offset:{4096*(k >> 1) + 2048*(n & 1)}")
    for n in range(AHEAD):
        rd(n)
    for l in fill.get(-1, []):
        a(l)
    for n in range(64):
        f = FR + 4 * (n % NFR)
        k, tt = n >> 1, n & 1
        fl = list(fill.get(n, []))
        if fl and "m0" in fl[0] and fl[1] == "s_nop 0":
            a(fl[0]); fl = fl[2:]
        if not (E("LG2", 1) and n % 2 == 1 and n + AHEAD < 64):
            a(f"s_waitcnt lgkmcnt({min(AHEAD, 64 - n) - 1 - (1 if E('LG2', 1) and n + 1 + AHEAD < 64 else 0)})")
        if M32:
            c = "0" if n == 0 else f"v[{acc}:{acc+15}]"
            if wA:
                a(f"v_mfma_f32_32x32x16_bf16 v[{acc}:{acc+15}], a[{4*n}:{4*n+3}], v[{f}:{f+3}], {c}")
            else:
                a(f"v_mfma_f32_32x32x16_bf16 v[{acc}:{acc+15}], v[{f}:{f+3}], a[{4*n}:{4*n+3}], {c}")
            if n + AHEAD < 64:
                rd(n + AHEAD)
        for u in range(0 if M32 else 2):
            d = acc + 8 * tt + 4 * u
            w = 4 * (2 * k + u)
            c = "0" if k == 0 else f"v[{d}:{d+3}]"
            if stg is not None and k == 31: d += stg - acc
            if wA:
                a(f"v_mfma_f32_16x16x32_bf16 v[{d}:{d+3}], a[{w}:{w+3}], v[{f}:{f+3}], {c}")
            else:
                a(f"v_mfma_f32_16x16x32_bf16 v[{d}:{d+3}], v[{f}:{f+3}], a[{w}:{w+3}], {c}")
            if u == 0 and n + AHEAD < 64:
                rd(n + AHEAD)
        for l in fl:
            a(l)


def pack_lines(acc, isV):
    src = [0, 2, 8, 10, 4, 6, 12, 14] if isV else [0, 2, 4, 6, 8, 10, 12, 14]
    return [f"v_cvt_pk_bf16_f32 v{EP+i}, v{acc+s}, v{acc+s+1}" for i, s in enumerate(src)]


ONEAR = E("ONEAR", 1)


def obase(dst, seg, tmp=63):
    if not ONEAR:
        return f"s_lshl_b32 s{dst}, s{seg}, 18"
    return (f"s_lshr_b32 s{tmp}, s{seg}, 2\ns_xnor_b32 s{tmp}, s{tmp}, s98\ns_and_b32 s{tmp}, s{tmp}, 1\ns_lshl_b32 s{tmp}, s{tmp}, 13\n"
            f"s_lshl_b32 s{dst}, s{seg}, 19\ns_add_u32 s{dst}, s{dst}, s{tmp}")


def kvx(cu):
    m = E("KVPAR", 0)
    return ["", f"s_xor_b32 s{S_T1}, s{S_T1}, 1", f"s_xor_b32 s{S_T1}, s{S_T1}, s{cu}"][m]


def near_base(a, dst, cu, log, region):
    a(f"""
    s_lshr_b32 s{S_T1}, s{cu}, {21 - log}
    s_xor_b32 s{S_T1}, s{S_T1}, s98
    {kvx(cu) if log == 18 else ""}
    s_and_b32 s{S_T1}, s{S_T1}, 1
    s_lshl_b32 s{S_T1}, s{S_T1}, 13
    s_lshl_b32 s{dst}, s{cu}, {log}
    s_add_u32 s{dst}, s{dst}, s{S_T1}
    s_add_u32 s{dst}, s{dst}, {region}
    """)


def kv_role(a: Asm, name, isV, ts, sync):
    TWO = E('TWO', 0)
    proj_setup(a, KA_WV if isV else KA_WK, not isV, two=TWO)
    tsx(a, ts, 2)
    def store_lines():
        return [f"s_add_u32 s51, s{S_SEG}, s{S_CU}", "s_sub_u32 s51, s51, 1", "s_bfe_u32 s52, s51, 0x40002", "s_lshl_b32 s52, s52, 14",
                "s_and_b32 s51, s51, 3", "s_lshl_b32 s51, s51, 11", "s_add_u32 s51, s51, s52", f"s_add_u32 s51, s51, s{S_OB}",
                f"buffer_store_dwordx4 v[{EP}:{EP+3}], v{V_ST}, {SRD}, s51 offen sc1",
                f"buffer_store_dwordx4 v[{EP+4}:{EP+7}], v{V_ST}, {SRD}, s51 offen offset:{GR2} sc1"] + (
                ["s_xor_b32 s51, s51, 0x2000", f"buffer_store_dwordx4 v[{EP}:{EP+3}], v{V_ST}, {SRD}, s51 offen sc1",
                 f"buffer_store_dwordx4 v[{EP+4}:{EP+7}], v{V_ST}, {SRD}, s51 offen offset:{GR2} sc1"] if E("KV2", 0) else [])

    def flag_lines():
        return [f"v_mov_b32 v17, s{S_SEG}", "s_mov_b64 exec, 1", f"buffer_store_dword v17, v16, {SRD}, s{S_FL} offen sc1", "s_mov_b64 exec, -1"]

    def seg(buf, first):
        a("\n".join(pst(0)))
        a(f"s_waitcnt vmcnt({0 if first else 2})")
        a("\n".join(pst(1)))
        a("s_barrier")
        a("\n".join(pst(2)))
        a(f"s_add_u32 s50, s{S_SEG}, 1\ns_min_u32 s50, s50, 63\ns_lshl_b32 s50, s50, 16")
        fill = {}
        if not first:
            pk = pack_lines(ACC[1 - buf], isV)
            fill[0] = pk[:3]; fill[1] = pk[3:6]; fill[2] = pk[6:]
            st = store_lines()
            fill[3] = st[:4]; fill[4] = st[4:9]; fill[5] = st[9:12]; fill[6] = st[12:]
            fill[E("FG", 42)] = pst(3) + ["s_waitcnt vmcnt(16)"] + pst(4) + flag_lines()
        fill[E("FG", 42) + 2] = [f"s_add_u32 s53, s{S_SEG}, 3", "s_min_u32 s53, s53, 63", "s_lshl_b32 s53, s53, 16",
                    "s_mov_b64 exec, 0xffff", f"buffer_load_dword v250, v19, s[{S_XM}:{S_XM+3}], s53 offen", "s_mov_b64 exec, -1"]
        if E("XT", 3) != 3: fill[E("FG", 42) + 2][0] = f"s_add_u32 s53, s{S_SEG}, {E('XT', 3)}"
        for i, g in enumerate(xdma_lines(1 - buf, 50)):
            fill[7 + 2 * i] = g
        proj_segment(a, buf, ACC[buf], not isV, fill)
        a(f"s_add_u32 s{S_SEG}, s{S_SEG}, 1")
        if E("EARLY", 0):
            a(f"s_cmp_le_u32 s{S_SEG}, {E('EARLY', 0)}\ns_cbranch_scc0 {name}_ne{buf}")
            a.nops(8)
            a("\n".join(pack_lines(ACC[buf], isV) + store_lines() + ["s_waitcnt vmcnt(0)"] + flag_lines()))
            a.label(f"{name}_ne{buf}")
    a(f"s_and_b32 s53, s{S_CU}, 31\ns_lshl_b32 s53, s53, 4\nv_add_u32 v19, s53, v{V_L}\nv_lshlrev_b32 v19, 7, v19")
    pinit(a)
    a(f"s_mov_b32 s{S_SEG}, 1")
    if TWO: sync(246, True)
    else: sync(V_T0)
    tsx(a, ts, 3)
    near_base(a, S_OB, S_CU, 18, WS_VT if isV else WS_KX)
    a(f"""
    s_xor_b32 s{S_T1}, s98, 1
    s_lshl_b32 s{S_T1}, s{S_T1}, 13
    s_lshl_b32 s{S_FL}, s{S_H}, 7
    s_add_u32 s{S_FL}, s{S_FL}, s{S_T1}
    s_lshl_b32 s{S_T1}, s{S_WAVE}, 2
    s_add_u32 s{S_FL}, s{S_FL}, s{S_T1}
    s_add_u32 s{S_FL}, s{S_FL}, {WS_F + (F_V if isV else F_K)}
    v_mov_b32 v16, 0
    """)

    if TWO:
        a("\n".join(pack_lines(ACC[0], isV) + store_lines() + [f"s_mov_b32 s{S_SEG}, 2", "s_nop 1"] + pack_lines(ACC[1], isV) + store_lines()))
        a("s_barrier\ns_mov_b32 s50, 0x20000")
        for g in xdma_lines(0, 50):
            a("\n".join(g))
        a("\n".join(["s_waitcnt vmcnt(16)"] + flag_lines() + ["s_waitcnt vmcnt(1)"]))
        a(f"s_branch {name}_mid")
    else:
        a("\n".join(pack_lines(ACC[0], isV) + store_lines() + ["s_waitcnt vmcnt(0)"] + flag_lines()))
    a.label(f"{name}_loop")
    seg(1, False)
    a(f"s_cmp_eq_u32 s{S_SEG}, 64\ns_cbranch_scc1 {name}_fin")
    a.label(f"{name}_mid")
    seg(0, False)
    a(f"s_branch {name}_loop")
    a.label(f"{name}_fin")
    a.nops(12)
    a("\n".join(pack_lines(ACC[1], isV) + store_lines() + ["s_waitcnt vmcnt(0)"] + flag_lines()))
    pdump(a)
    a("s_waitcnt vmcnt(0)\ns_barrier")


def qx_role(a: Asm, name, ts, sync):
    if E('NI', 32) == 64: sync(V_T0)
    QD = E('QD', 3)
    assert QD in (1, 3)
    proj_setup(a, KA_WQ, True)
    if E('NI', 32) == 32: sync(V_T0)
    tsx(a, ts, 3)
    L_Q, L_KV, L_KM = 131072, 139264, 155648
    S_NT, S_EH, S_C, S_KVN, S_KMN = 52, 53, 54, 55, 56
    S_KB, S_MB, S_LK, S_LM = 58, 59, 60, 61
    S_MK = 12
    V_G, V_M, V_OKM, V_OVM, V_OO, V_NEG, V_CM, V_OF, V_OF2, V_QW, V_QR = 92, 93, 94, 95, 96, 97, 98, 99, 100, 101, 102
    ONE, LS = 104, 108
    V_KR, V_VR = 103, 240
    KX, VT, KM, VM, Q, S, P, O, TMP = 112, 144, 160, 176, 184, 200, 212, 112, 236
    Q1, Q2 = 220, 228
    a(f"""
    v_lshrrev_b32 v{V_G}, 4, v{V_L}
    v_and_b32 v{V_M}, 15, v{V_L}
    s_and_b32 s{S_NT}, s{S_WAVE}, 1
    s_lshr_b32 s{S_EH}, s{S_WAVE}, 1
    s_mov_b32 s{S_C}, 0x3e0293ee
    s_mov_b32 s{S_KVN}, 0
    s_mov_b32 s{S_KMN}, 0
    v_mov_b32 v{V_NEG}, 0xff800000
    v_mov_b32 v241, 0xceabdc6e
    v_and_b32 v{V_T0}, 7, v{V_M}
    v_lshlrev_b32 v{V_OKM}, 7, v{V_G}
    v_lshl_add_u32 v{V_OKM}, v{V_T0}, 4, v{V_OKM}
    v_and_b32 v{V_T0}, 31, v{V_L}
    v_lshlrev_b32 v{V_OVM}, 3, v{V_T0}
    v_lshrrev_b32 v{V_T0}, 1, v{V_G}
    v_lshlrev_b32 v{V_OO}, 10, v{V_T0}
    v_and_b32 v{V_T0}, 1, v{V_G}
    v_lshl_add_u32 v{V_OO}, v{V_T0}, 9, v{V_OO}
    v_lshl_add_u32 v{V_OO}, v{V_M}, 4, v{V_OO}
    s_lshl_b32 s{S_T0}, s{S_H}, {13 + ONEAR}
    s_lshl_b32 s{S_T1}, s{S_EH}, 12
    s_add_u32 s{S_T0}, s{S_T0}, s{S_T1}
    s_lshl_b32 s{S_T1}, s{S_NT}, 8
    s_add_u32 s{S_T0}, s{S_T0}, s{S_T1}
    s_add_u32 s{S_T0}, s{S_T0}, {WS_O}
    v_add_u32 v{V_OO}, s{S_T0}, v{V_OO}
    s_lshl_b32 s{S_T0}, s{S_NT}, 4
    v_add_u32 v{V_CM}, s{S_T0}, v{V_M}
    v_lshlrev_b32 v{V_T0}, 2, v{V_G}
    v_sub_u32 v{V_CM}, v{V_CM}, v{V_T0}
    s_mov_b32 s28, 0
    s_mov_b32 s29, -1
    s_xor_b32 s{S_T1}, s98, 1
    s_lshl_b32 s{S_T1}, s{S_T1}, 13
    s_lshl_b32 s{S_T0}, s{S_H}, 7
    s_add_u32 s{S_T0}, s{S_T0}, s{S_T1}
    s_add_u32 s{S_T0}, s{S_T0}, {WS_F}
    v_and_b32 v{V_T0}, 3, v{V_L}
    v_bfe_u32 v{V_T1}, v{V_L}, 2, 1
    v_lshlrev_b32 v{V_OF}, 12, v{V_T1}
    v_lshl_add_u32 v{V_OF}, v{V_T0}, 2, v{V_OF}
    v_add_u32 v{V_OF}, s{S_T0}, v{V_OF}
    s_xor_b32 s62, s98, 1
    s_lshl_b32 s62, s62, 13
    s_lshr_b32 s{S_T1}, s{S_CU}, 6
    s_lshl_b32 s{S_T1}, s{S_T1}, 14
    s_add_u32 s62, s62, s{S_T1}
    s_and_b32 s{S_T1}, s{S_CU}, 63
    s_lshl_b32 s{S_T1}, s{S_T1}, 7
    s_add_u32 s62, s62, s{S_T1}
    s_add_u32 s62, s62, {WS_F + F_KVM}
    s_lshl_b32 s{S_FL}, s{S_H}, 7
    s_lshl_b32 s{S_T1}, s{S_WAVE}, 2
    s_add_u32 s{S_FL}, s{S_FL}, s{S_T1}
    s_lshl_b32 s{S_T1}, s98, 13
    s_add_u32 s{S_FL}, s{S_FL}, s{S_T1}
    s_add_u32 s{S_FL}, s{S_FL}, {WS_F + F_O}
    s_lshl_b32 s{S_T0}, s{S_WAVE}, 11
    s_add_u32 s{S_T0}, s{S_T0}, {L_Q}
    v_add_u32 v{V_QW}, s{S_T0}, v{V_ST}
    s_lshl_b32 s{S_T0}, s{S_NT}, 10
    s_add_u32 s{S_T0}, s{S_T0}, {L_Q}
    v_add_u32 v{V_QR}, s{S_T0}, v{V_LL}
    v_mov_b32 v16, 0
    s_mov_b32 s50, 0
    """)
    for i in range(4):
        a(f"v_mov_b32 v{ONE+i}, 0x3f803f80")
    for t in range(2):
        for r in range(4):
            a(f"v_cmp_gt_i32 s[{S_MK+8*t+2*r}:{S_MK+8*t+2*r+1}], {16*t+r}, v{V_CM}")
    near_base(a, S_KB, S_CU, 18, WS_KX)
    if E("KV2", 0): a(f"s_xor_b32 s{S_KB}, s{S_KB}, 0x2000")
    near_base(a, S_MB, S_CU, 17, WS_KVM)
    a(f"""
    s_lshl_b32 s{S_LK}, s{S_WAVE}, 11
    s_add_u32 s{S_LK}, s{S_LK}, {L_KV}
    s_lshl_b32 s{S_LM}, s{S_WAVE}, 10
    s_add_u32 s{S_LM}, s{S_LM}, {L_KM}
    v_add_u32 v{V_OKM}, {L_KM}, v{V_OKM}
    s_lshl_b32 s{S_T0}, s{S_EH}, 11
    s_add_u32 s{S_T0}, s{S_T0}, {L_KM + 512}
    v_add_u32 v{V_OVM}, s{S_T0}, v{V_OVM}
    v_add_u32 v{V_KR}, {L_KV}, v{V_LL}
    s_lshl_b32 s{S_T0}, s{S_EH}, 12
    s_add_u32 s{S_T0}, s{S_T0}, {L_KV + 8192}
    v_add_u32 v{V_VR}, s{S_T0}, v{V_LL}
    """)
    a("s_waitcnt vmcnt(0)")

    def wait_flag(tag, known, voff, sleep):
        a(f"""
        s_cmp_gt_i32 s{known}, s{S_SEG}
        s_cbranch_scc1 {name}_{tag}k
{name}_{tag}w:
        """)
        wdog(a, name)
        if E("KAP", 1):
            a(f"v_mov_b32 v{V_T0}, 0\ns_mov_b64 exec, 0xff\nbuffer_atomic_add v{V_T0}, v{voff}, {SRD}, 0 offen sc0 sc1\ns_mov_b64 exec, -1")
        else:
            a(f"buffer_load_dword v{V_T0}, v{voff}, {SRD}, 0 offen sc1")
        a(f"""
        s_waitcnt vmcnt(0)
        v_min_i32_dpp v{V_T0}, v{V_T0}, v{V_T0} quad_perm:[1,0,3,2] row_mask:0xf bank_mask:0xf
        s_nop 1
        v_min_i32_dpp v{V_T0}, v{V_T0}, v{V_T0} quad_perm:[2,3,0,1] row_mask:0xf bank_mask:0xf
        s_nop 1
        v_min_i32_dpp v{V_T0}, v{V_T0}, v{V_T0} row_half_mirror row_mask:0xf bank_mask:0xf
        s_nop 0
        v_readfirstlane_b32 s{known}, v{V_T0}
        s_cmp_gt_i32 s{known}, s{S_SEG}
        s_cbranch_scc1 {name}_{tag}k
        s_sleep {sleep}
        s_branch {name}_{tag}w
{name}_{tag}k:
        """)

    def flag_lines():
        return [f"v_mov_b32 v17, s{S_SEG}", "s_mov_b64 exec, 1", f"buffer_store_dword v17, v16, {SRD}, s{S_FL} offen sc1", "s_mov_b64 exec, -1"]

    def kmpoll_lines():
        if E("APOLL", 1):
            return [f"v_mov_b32 v{V_OF2}, 0", "s_mov_b64 exec, 1", f"buffer_atomic_add v{V_OF2}, v16, {SRD}, s62 offen sc0 sc1", "s_mov_b64 exec, -1"]
        return [f"buffer_load_dword v{V_OF2}, v16, {SRD}, s62 offen sc1"]

    def km_lines():
        return [f"s_mov_b32 m0, s{S_LM}", "s_nop 0", f"buffer_load_dwordx4 v{V_LL}, {SRD}, s68 offen sc1 lds"]

    def seg(buf):
        a("s_barrier")
        a("\n".join(pst(0)))
        wait_flag(f"kv{buf}", S_KVN, V_OF, 4)
        sal = f"""s_add_u32 s51, s{S_CU}, s{S_SEG}
        s_bfe_u32 s57, s51, 0x40002
        s_lshl_b32 s57, s57, 14
        s_and_b32 s66, s51, 3
        s_lshl_b32 s66, s66, 11
        s_add_u32 s66, s66, s57
        s_add_u32 s66, s66, s{S_KB}
        s_add_u32 s67, s66, {WS_VT}
        s_bfe_u32 s57, s51, 0x30003
        s_lshl_b32 s57, s57, 14
        s_and_b32 s68, s51, 7
        s_lshl_b32 s68, s68, 10
        s_add_u32 s68, s68, s57
        s_add_u32 s68, s68, s{S_MB}
        s_add_u32 s50, s{S_SEG}, {QD + 1}
        s_min_u32 s50, s50, 63
        s_lshl_b32 s50, s50, 16
        s_cmp_gt_i32 s{S_KMN}, s{S_SEG}
        s_cselect_b32 s30, 1, 0""".split("\n")
        fill = {-1: sal}
        for i in range(4):
            fill[2 * i] = [f"s_add_u32 m0, s{S_LK}, {8192 * (i >> 1)}", "s_nop 0",
                           f"buffer_load_dwordx4 v{V_LL}, {SRD}, s{66 + (i >> 1)} offen offset:{1024 * (i & 1)} sc1 lds"]
        fill[8] = ["s_cmp_eq_u32 s30, 1", f"s_cbranch_scc0 {name}_ke{buf}"] + km_lines() + [f"{name}_ke{buf}:"]
        for i, g in enumerate(xdma_lines(1 - (buf & 1), 50)):
            fill[10 + 2 * i] = g
        a("\n".join(pst(1)))
        fill[27] = ["s_waitcnt vmcnt(13)"] + flag_lines()
        fill[29] = kmpoll_lines()
        pk = pack_lines(ACC[1], False)
        if QD > 1:
            pk = [f"v_pk_mul_f32 v[{d+i}:{d+i+1}], v[{r+i}:{r+i+1}], 1.0" if False else f"v_mov_b64 v[{d+i}:{d+i+1}], v[{r+i}:{r+i+1}]" for d, r in ((EP, Q1), (Q1, Q2)) for i in range(0, 8, 2)] + \
                 [l.replace(f"v{EP+i},", f"v{Q2+i},", 1) for i, l in enumerate(pk)]
        qg = list(range(42, 42 + len(pk) // 2))
        for i, g in enumerate(qg): fill[g] = pk[2*i:2*i+2]
        fill[54] = ["s_waitcnt vmcnt(6)", f"v_readfirstlane_b32 s{S_KMN}, v{V_OF2}", "s_cmp_eq_u32 s30, 1", f"s_cbranch_scc1 {name}_kf{buf}",
                    f"s_cmp_gt_i32 s{S_KMN}, s{S_SEG}", f"s_cbranch_scc0 {name}_kf{buf}", "s_mov_b32 s30, 1"] + km_lines() + [f"{name}_kf{buf}:"]
        fill[61] = [f"ds_write_b128 v{V_QW}, v[{EP}:{EP+3}]", f"ds_write_b128 v{V_QW}, v[{EP+4}:{EP+7}] offset:{GR2}"]
        a(f"s_cmp_ge_u32 s{S_SEG}, {64 - QD}\ns_cbranch_scc0 {name}_nl{buf}")
        for i in [-1, 0, 2, 4, 6, 8] + qg + [61]:
            a("\n".join(fill[i]).replace(f"{name}_ke{buf}", f"{name}_kx{buf}"))
        a("\n".join(["s_waitcnt vmcnt(4)"] + flag_lines()))
        a(f"s_branch {name}_jl{buf}")
        a.label(f"{name}_nl{buf}")
        proj_segment(a, buf, ACC[0], True, fill, stg=ACC[1])
        a.label(f"{name}_jl{buf}")
        a("\n".join(pst(2)))
        a(f"s_cmp_eq_u32 s30, 1\ns_cbranch_scc1 {name}_kl{buf}")
        a.label(f"{name}_kw{buf}")
        wdog(a, name)
        a("\n".join(kmpoll_lines()))
        a(f"""
        s_waitcnt vmcnt(0)
        v_readfirstlane_b32 s{S_KMN}, v{V_OF2}
        s_cmp_gt_i32 s{S_KMN}, s{S_SEG}
        s_cbranch_scc1 {name}_kv{buf}
        s_cmp_eq_u32 s{S_SEG}, 63
        s_cbranch_scc1 {name}_kw{buf}
        s_sleep {E("XS", 0)}
        s_branch {name}_kw{buf}
{name}_kv{buf}:
        """)
        a("\n".join(km_lines()))
        a.label(f"{name}_kl{buf}")
        a("\n".join(pst(4)))
        a(f"""
        s_waitcnt lgkmcnt(0) vmcnt(0)
        s_barrier
        """)
        a("\n".join(pst(5)))
        for j in range(4):
            a(f"ds_read_b128 v[{Q+4*j}:{Q+4*j+3}], v{V_QR} offset:{2048*j}")
            for t in range(2):
                a(f"ds_read_b128 v[{KX+16*t+4*j}:{KX+16*t+4*j+3}], v{V_KR} offset:{2048*j + 1024*t}")
        for j in range(4):
            a(f"s_waitcnt lgkmcnt({9 - 2*j})")
            for t in range(2):
                c = "0" if j == 0 else f"v[{S+4*t}:{S+4*t+3}]"
                a(f"v_mfma_f32_16x16x32_bf16 v[{S+4*t}:{S+4*t+3}], v[{KX+16*t+4*j}:{KX+16*t+4*j+3}], v[{Q+4*j}:{Q+4*j+3}], {c}")
            a(f"ds_read_b128 v[{KM+4*j}:{KM+4*j+3}], v{V_OKM} offset:{1024*j}")
        for j in range(4):
            a(f"s_waitcnt lgkmcnt({3 + j})")
            c = "0" if j == 0 else f"v[{S+8}:{S+11}]"
            a(f"v_mfma_f32_16x16x32_bf16 v[{S+8}:{S+11}], v[{KM+4*j}:{KM+4*j+3}], v[{Q+4*j}:{Q+4*j+3}], {c}")
            a(f"ds_read_b128 v[{VT+4*j}:{VT+4*j+3}], v{V_VR} offset:{1024*j}")
            a(f"ds_read_b64 v[{VM+2*j}:{VM+2*j+1}], v{V_OVM} offset:{1024*(j >> 1) + 256*(j & 1)}")
        for i in range(0, 8, 2):
            a(f"v_pk_mul_f32 v[{S+i}:{S+i+1}], v[{S+i}:{S+i+1}], s[{S_C}:{S_C+1}] op_sel_hi:[1,0]")
        for i in range(8):
            a(f"v_cndmask_b32 v{S+i}, v{S+i}, v241, s[{S_MK+2*i}:{S_MK+2*i+1}]")
        for i in (8, 10):
            a(f"v_pk_mul_f32 v[{S+i}:{S+i+1}], v[{S+i}:{S+i+1}], s[{S_C}:{S_C+1}] op_sel_hi:[1,0]")
        for i in range(4):
            a(f"v_cndmask_b32 v{S+8+i}, v{S+8+i}, v{V_NEG}, s[28:29]")
        MX, TM, SM = TMP, TMP + 1, TMP + 2
        a(f"v_max3_f32 v{MX}, v{S}, v{S+1}, v{S+2}")
        for i in range(3, 11, 2):
            a(f"v_max3_f32 v{MX}, v{MX}, v{S+i}, v{S+i+1}")
        a(f"""
        v_max_f32 v{TM}, v{MX}, v{S+11}
        v_max_f32 v{MX}, v{MX}, v{S+11}
        s_nop 1
        v_permlane16_swap_b32 v{MX}, v{TM}
        s_nop 0
        v_max_f32 v{SM}, v{MX}, v{TM}
        v_max_f32 v{SM+1}, v{MX}, v{TM}
        s_nop 1
        v_permlane32_swap_b32 v{SM}, v{SM+1}
        s_nop 0
        v_max_f32 v{MX}, v{SM}, v{SM+1}
        """)
        for i in range(0, 12, 2):
            a(f"v_pk_add_f32 v[{S+i}:{S+i+1}], v[{S+i}:{S+i+1}], v[{MX}:{MX+1}] op_sel_hi:[1,0] neg_lo:[0,1] neg_hi:[0,1]")
        for i in range(12):
            a(f"v_exp_f32 v{S+i}, v{S+i}")
        a.nops(1)
        for i in range(6):
            a(f"v_cvt_pk_bf16_f32 v{P+i}, v{S+2*i}, v{S+2*i+1}")
        a("s_waitcnt lgkmcnt(0)\ns_nop 0")
        a(f"v_mfma_f32_16x16x32_bf16 v[{LS}:{LS+3}], v[{ONE}:{ONE+3}], v[{P}:{P+3}], 0")
        for T in range(4):
            a(f"v_mfma_f32_16x16x32_bf16 v[{O+4*T}:{O+4*T+3}], v[{VT+4*T}:{VT+4*T+3}], v[{P}:{P+3}], 0")
        a(f"v_mfma_f32_16x16x16_bf16 v[{LS}:{LS+3}], v[{ONE}:{ONE+1}], v[{P+4}:{P+5}], v[{LS}:{LS+3}]")
        for T in range(4):
            a(f"v_mfma_f32_16x16x16_bf16 v[{O+4*T}:{O+4*T+3}], v[{VM+2*T}:{VM+2*T+1}], v[{P+4}:{P+5}], v[{O+4*T}:{O+4*T+3}]")
        a(f"""
        {obase(51, S_SEG)}
        s_nop 2
        v_rcp_f32 v{SM}, v{LS}
        v_rcp_f32 v{SM+1}, v{LS+1}
        s_nop 1
        """)
        for i in range(0, 16, 2):
            a(f"v_pk_mul_f32 v[{O+i}:{O+i+1}], v[{O+i}:{O+i+1}], v[{SM}:{SM+1}]")
        for i in range(8):
            a(f"v_cvt_pk_bf16_f32 v{S+i}, v{O+2*i}, v{O+2*i+1}")
        a(f"""
        buffer_store_dwordx4 v[{S}:{S+3}], v{V_OO}, {SRD}, s51 offen sc1
        buffer_store_dwordx4 v[{S+4}:{S+7}], v{V_OO}, {SRD}, s51 offen offset:2048 sc1
        s_add_u32 s{S_SEG}, s{S_SEG}, 1
        """)
        a("\n".join(pst(6)))
    pinit(a)
    if QD == 1:
        for i in range(16):
            a(f"v_mov_b32 v{ACC[1]+i}, v{ACC[0]+i}")
    else:
        pkto = lambda acc, d: "\n".join(l.replace(f"v{EP+i},", f"v{d+i},", 1) for i, l in enumerate(pack_lines(acc, False)))
        a(pkto(ACC[0], Q1))
        a("s_barrier\ns_mov_b32 s50, 0x20000")
        proj_segment(a, 1, ACC[0], True, {2 * i: g for i, g in enumerate(xdma_lines(0, 50))})
        a("s_waitcnt vmcnt(0)\ns_barrier\ns_mov_b32 s50, 0x30000")
        a.nops(6)
        a(pkto(ACC[0], Q2))
        proj_segment(a, 0, ACC[0], True, {2 * i: g for i, g in enumerate(xdma_lines(1, 50))}, stg=ACC[1])
        a("s_waitcnt vmcnt(0)")
    a.label(f"{name}_loop")
    seg(1)
    seg(0)
    a(f"s_cmp_lt_u32 s{S_SEG}, 64\ns_cbranch_scc1 {name}_loop")
    a("\n".join(["s_waitcnt vmcnt(0)"] + flag_lines()))
    pdump(a)
    a.label(f"{name}_quit")
    ts(4)
    a("s_endpgm")


def out_role(a: Asm, name, ts, back):
    common(a, KA_WO, KA_OUT, 8 * MB)
    S_ON, S_PAR, S_PRE, S_ROT, S_PEND, S_KH, S_C = 52, 53, 55, 56, 57, 58, 59
    S_ST = 71
    V_OL, V_OF, V_LW, V_LRK, V_LRS, V_OS, V_SND, V_RCV = 6, 7, 8, 9, 10, 11, 12, 13
    ACCO, RD, KEEP, INB, F0, NF, STG = 20, 52, 84, 88, 96, 32, 224
    HS, QS, US, WSs, PS = 544, 1088, 4352, 8704, 34816
    a(f"""
    s_and_b32 s{S_KH}, s{S_H}, 1
    s_lshr_b32 s{S_C}, s{S_H}, 1
    s_lshl_b32 s{S_T0}, s{S_KH}, 22
    s_lshl_b32 s{S_T1}, s{S_WAVE}, 20
    s_add_u32 s{S_T0}, s{S_T0}, s{S_T1}
    s_lshl_b32 s{S_T1}, s{S_C}, 7
    s_add_u32 s{S_OB}, s{S_T0}, s{S_T1}
    s_and_b32 s{S_ROT}, s{S_C}, {7 if E("ROT8", 1) else 3}
    s_lshl_b32 s{S_ROT}, s{S_ROT}, {6 if E("ROT8", 1) else 7}
    """)
    a(f"s_cmp_eq_u32 s68, 2\ns_cbranch_scc1 {name}_hw")
    load_weights(a, 11, S_OB, lane32(4, rl=7), lambda f, jj: (128 * (f >> 4) + 32 * ((f >> 2) & 3) + 8 * ((f >> 1) & 1) + 16 * jj) * 128 + 64 * (f & 1), rot=S_ROT, cl=3)
    a(f"s_cmp_eq_u32 s68, 1\ns_cbranch_scc1 {back}")
    a.label(f"{name}_hw")
    a(f"""
    s_lshl_b32 s{S_ROT}, s{S_ROT}, 6
    s_lshl_b32 s{S_T0}, s{S_KH}, {17 + ONEAR}
    s_lshl_b32 s{S_T1}, s{S_WAVE}, {15 + ONEAR}
    s_add_u32 s{S_T0}, s{S_T0}, s{S_T1}
    s_add_u32 s{S_T0}, s{S_T0}, {WS_O}
    v_add_u32 v{V_OL}, s{S_T0}, v{V_LL}
    v_and_b32 v{V_T0}, 3, v{V_L}
    v_lshlrev_b32 v{V_OF}, 2, v{V_T0}
    v_bfe_u32 v{V_T0}, v{V_L}, 2, 2
    v_lshl_add_u32 v{V_OF}, v{V_T0}, 7, v{V_OF}
    s_lshl_b32 s{S_T0}, s{S_KH}, 11
    s_lshl_b32 s{S_T1}, s{S_WAVE}, 9
    s_add_u32 s{S_T0}, s{S_T0}, s{S_T1}
    s_lshl_b32 s{S_T1}, s98, 13
    s_add_u32 s{S_T0}, s{S_T0}, s{S_T1}
    s_add_u32 s{S_T0}, s{S_T0}, {WS_F + F_O}
    v_add_u32 v{V_OF}, s{S_T0}, v{V_OF}
    s_mul_i32 s{S_T0}, s{S_WAVE}, {WSs}
    v_lshrrev_b32 v{V_T0}, 5, v{V_L}
    v_lshl_add_u32 v{V_LW}, v{V_T0}, 5, v{V_LL}
    v_add_u32 v{V_LW}, s{S_T0}, v{V_LW}
    v_and_b32 v{V_T0}, 7, v{V_L}
    v_mul_u32_u24 v{V_LRK}, {HS}, v{V_T0}
    v_lshrrev_b32 v{V_T1}, 3, v{V_L}
    v_lshl_add_u32 v{V_LRK}, v{V_T1}, 4, v{V_LRK}
    s_lshl_b32 s{S_T0}, s{S_WAVE}, 7
    v_add_u32 v{V_LRK}, s{S_T0}, v{V_LRK}
    s_mul_i32 s{S_T0}, s{S_KH}, {US}
    s_sub_u32 s{S_T1}, {US}, s{S_T0}
    v_add_u32 v{V_LRS}, s{S_T1}, v{V_LRK}
    v_add_u32 v{V_LRK}, s{S_T0}, v{V_LRK}
    s_lshl_b32 s{S_T0}, s{S_WAVE}, 15
    s_lshl_b32 s{S_T1}, s{S_H}, 6
    s_add_u32 s{S_T0}, s{S_T0}, s{S_T1}
    v_lshlrev_b32 v{V_OS}, 12, v{V_T1}
    v_and_b32 v{V_T0}, 7, v{V_L}
    v_lshl_add_u32 v{V_OS}, v{V_T0}, 3, v{V_OS}
    v_add_u32 v{V_OS}, s{S_T0}, v{V_OS}
    s_lshl_b32 s{S_T1}, s{S_WAVE}, 10
    s_add_u32 s{S_T0}, s{S_OI}, s{S_T1}
    v_add_u32 v{V_RCV}, s{S_T0}, v{V_LL}
    v_xor_b32 v{V_SND}, 8192, v{V_RCV}
    s_lshl_b32 s{S_ST}, 1, s{S_SH}
    s_mov_b32 s{S_SEG}, s{S_O0}
    s_mov_b32 s{S_ON}, 0
    s_mov_b32 s{S_PAR}, 0
    s_mov_b32 s{S_PEND}, 0
    """)

    def opoll(r):
        if E("OAP", 0):
            a(f"v_mov_b32 v{r}, 0\ns_mov_b64 exec, 0xffff\nbuffer_atomic_add v{r}, v{V_OF}, {SRD}, 0 offen sc0 sc1\ns_mov_b64 exec, -1")
        else:
            a(f"buffer_load_dword v{r}, v{V_OF}, {SRD}, 0 offen sc1")

    def ld(k, sbase):
        f = F0 + 4 * k
        if k % 4 == 0:
            a(f"s_add_u32 s51, s{S_ROT}, {1024 * k}\ns_and_b32 s51, s51, 0x7fff")
            if ONEAR: a("s_and_b32 s63, s51, 0x6000\ns_add_u32 s51, s51, s63")
            a(f"s_add_u32 s51, s51, s{sbase}")
        a(f"buffer_load_dwordx4 v[{f}:{f+3}], v{V_OL}, {SRD}, s51 offen offset:{1024*(k & 3)} sc1")

    def mf(k):
        f = F0 + 4 * k
        for u in range(2):
            d = ACCO + 16 * u
            c = "0" if k == 0 else f"v[{d}:{d+15}]"
            if k == NF - 1: d = STG + 16 * u
            a(f"v_mfma_f32_32x32x16_bf16 v[{d}:{d+15}], a[{8*k+4*u}:{8*k+4*u+3}], v[{f}:{f+3}], {c}")

    def slot_lines(sreg):
        return [f"s_sub_u32 s60, s{sreg}, s{S_O0}", f"s_lshr_b32 s60, s60, s{S_SH}", "s_bfe_u32 s61, s60, 0x10001", "s_and_b32 s60, s60, 1", "s_lshl_b32 s60, s60, 12"]

    def inb(sreg):
        a("\n".join(slot_lines(sreg)))
        a(f"buffer_load_dwordx4 v[{INB}:{INB+3}], v{V_RCV}, {SRD}, s60 offen sc1")

    def fin(tag, sreg, cnt):
        a(f"s_waitcnt vmcnt({cnt})")
        a.label(f"{name}_{tag}c")
        a(f"""
        v_and_b32 v14, 1, v{INB}
        v_cmp_ne_u32 vcc, s61, v14
        s_cbranch_vccz {name}_{tag}k
        """)
        wdog(a, name)
        inb(sreg)
        a(f"s_waitcnt vmcnt(0)\ns_branch {name}_{tag}c")
        a.label(f"{name}_{tag}k")
        a(f"""
        v_pk_add_f32 v[{INB}:{INB+1}], v[{INB}:{INB+1}], v[{KEEP}:{KEEP+1}]
        v_pk_add_f32 v[{INB+2}:{INB+3}], v[{INB+2}:{INB+3}], v[{KEEP+2}:{KEEP+3}]
        s_lshl_b32 s60, s{sreg}, 17
        v_cvt_pk_bf16_f32 v{INB+4}, v{INB}, v{INB+1}
        v_cvt_pk_bf16_f32 v{INB+5}, v{INB+2}, v{INB+3}
        buffer_store_dwordx2 v[{INB+4}:{INB+5}], v{V_OS}, s[{S_XM}:{S_XM+3}], s60 offen {os.environ.get('OSTO', 'sc1')}
        """)

    tsx(a, ts, 3)
    pinit(a)
    a.label(f"{name}_cold")
    a(f"s_cmp_gt_i32 s{S_ON}, s{S_SEG}\ns_cbranch_scc1 {name}_fk")
    a.label(f"{name}_fw")
    wdog(a, name)
    opoll(V_T0)
    a(f"""
    s_waitcnt vmcnt(0)
    v_min_i32_dpp v{V_T0}, v{V_T0}, v{V_T0} quad_perm:[1,0,3,2] row_mask:0xf bank_mask:0xf
    s_nop 1
    v_min_i32_dpp v{V_T0}, v{V_T0}, v{V_T0} quad_perm:[2,3,0,1] row_mask:0xf bank_mask:0xf
    s_nop 1
    v_min_i32_dpp v{V_T0}, v{V_T0}, v{V_T0} row_ror:4 row_mask:0xf bank_mask:0xf
    s_nop 1
    v_min_i32_dpp v{V_T0}, v{V_T0}, v{V_T0} row_ror:8 row_mask:0xf bank_mask:0xf
    s_nop 0
    v_readfirstlane_b32 s{S_ON}, v{V_T0}
    s_min_i32 s{S_ON}, s{S_ON}, s{S_O1}
    s_cmp_gt_i32 s{S_ON}, s{S_SEG}
    s_cbranch_scc1 {name}_fk
    s_sleep 2
    s_add_u32 s{S_T0}, s{S_ON}, 2
    s_cmp_gt_i32 s{S_T0}, s{S_SEG}
    s_cbranch_scc1 {name}_fw
    s_sleep 48
    s_branch {name}_fw
    """)
    a.label(f"{name}_fk")
    a(f"s_add_u32 s54, s{S_SEG}, s{S_ST}\ns_cmp_gt_i32 s{S_ON}, s54\ns_cbranch_scc0 {name}_c0")
    a(obase(50, S_SEG))
    for k in range(NF):
        ld(k, 50)
    a("\n".join(pst(0)))
    if E("KPROF", 0): a("s_add_u32 s39, s39, 64")

    uid = [0]
    def epi_groups(sreg):
        g = [[f"v_add_u32 v{V_T0}, s{S_PAR}, v{V_LW}", f"v_add_u32 v{V_T1}, s{S_PAR}, v{V_LRK}", f"v_add_u32 v{V_T2}, s{S_PAR}, v{V_LRS}"]]
        for q in range(0, 8, 2):
            g.append([f"ds_write_b128 v{V_T0}, v[{STG+4*(q+i)}:{STG+4*(q+i)+3}] offset:{QS*(q+i)}" for i in range(2)])
        g.append([])
        g.append(["s_waitcnt lgkmcnt(0)", "s_barrier"] + [f"ds_read_b128 v[{RD+4*w}:{RD+4*w+3}], v{V_T2} offset:{WSs*w}" for w in range(4)])
        g.append([f"ds_read_b128 v[{RD+16+4*w}:{RD+16+4*w+3}], v{V_T1} offset:{WSs*w}" for w in range(4)] +
                 [f"s_sub_u32 s{S_PAR}, {PS}, s{S_PAR}"] + slot_lines(sreg))
        g.append([])
        for h, dst in ((0, RD), (16, KEEP)):
            b = RD + h
            l = [f"s_waitcnt lgkmcnt({4 if h == 0 else 0})"]
            for i in range(4):
                l.append(f"v_add_f32 v{b+i}, v{b+i}, v{b+4+i}")
                l.append(f"v_add_f32 v{b+8+i}, v{b+8+i}, v{b+12+i}")
            g.append(l)
            l = [f"v_add_f32 v{dst+i}, v{b+i}, v{b+8+i}" for i in range(4)]
            if h == 0:
                uid[0] += 1
                l += [f"v_and_or_b32 v{RD}, v{RD}, -2, s61", "s_cmp_eq_u32 s95, 0", f"s_cbranch_scc1 {name}_sa{uid[0]}",
                      f"buffer_store_dwordx4 v[{RD}:{RD+3}], v{V_SND}, {SRD}, s60 offen sc1", f"s_branch {name}_sb{uid[0]}", f"{name}_sa{uid[0]}:",
                      f"buffer_store_dwordx4 v[{RD}:{RD+3}], v{V_SND}, {SRD}, s60 offen", f"{name}_sb{uid[0]}:"]
            g.append(l)
        return g

    def loop(pre, epi):
        g = epi_groups(62) if epi else []
        for k in range(NF):
            a(f"s_waitcnt vmcnt({NF-1 if pre else NF-1-k})")
            mf(k)
            if pre: ld(k, 50)
            if 1 <= k <= len(g): a("\n".join(g[k-1]))
            if epi and k == 27: inb(62)
            if not pre and k == 20: opoll(15)
        if epi: fin(f"f{pre}", 62, 4 if pre else 0)

    def loopc(epi):
        Wn = E("OWIN", 8)
        g = epi_groups(62) if epi else []
        a.label(f"{name}_c{epi}")
        if epi == 0: tsx(a, ts, 5)
        a(f"s_add_u32 s54, s{S_SEG}, s{S_ST}\ns_sub_u32 s62, s{S_SEG}, s{S_ST}")
        a(obase(50, S_SEG))
        for k in range(Wn):
            ld(k, 50)
        for l in g: a("\n".join(l))
        for k in range(NF):
            a(f"s_waitcnt vmcnt({min(Wn, NF - k) - 1})")
            mf(k)
            if k + Wn < NF: ld(k + Wn, 50)
            if epi and k == 24: inb(62)
            if k == 24: opoll(15)
        if epi == 0: tsx(a, ts, 6)
        if epi: fin("fc", 62, 0)
        a("\n".join(pst(3)))
        a(obase(50, 54))
        a(f"s_branch {name}_imm")

    for epi in range(2):
        a.label(f"{name}_w{epi}")
        a(f"""
        s_add_u32 s54, s{S_SEG}, s{S_ST}
        s_sub_u32 s62, s{S_SEG}, s{S_ST}
        {obase(50, 54)}
        s_cmp_gt_i32 s{S_ON}, s54
        s_cbranch_scc0 {name}_n{epi}
        """)
        loop(1, epi)
        a("\n".join(pst(1)))
        a(f"s_add_u32 s{S_SEG}, s{S_SEG}, s{S_ST}\ns_branch {name}_w1")
        a.label(f"{name}_n{epi}")
        loop(0, epi)
        a("\n".join(pst(2)))
        if epi == 0: a(f"s_branch {name}_imm")
    a.label(f"{name}_imm")
    a(f"""
    s_waitcnt vmcnt(1)
    v_min_i32_dpp v15, v15, v15 quad_perm:[1,0,3,2] row_mask:0xf bank_mask:0xf
    s_nop 1
    v_min_i32_dpp v15, v15, v15 quad_perm:[2,3,0,1] row_mask:0xf bank_mask:0xf
    s_nop 1
    v_min_i32_dpp v15, v15, v15 row_ror:4 row_mask:0xf bank_mask:0xf
    s_nop 1
    v_min_i32_dpp v15, v15, v15 row_ror:8 row_mask:0xf bank_mask:0xf
    s_nop 0
    v_readfirstlane_b32 s{S_ON}, v15
    s_min_i32 s{S_ON}, s{S_ON}, s{S_O1}
    s_cmp_gt_i32 s{S_ON}, s54
    s_cbranch_scc0 {name}_im2
    s_add_u32 s{S_SEG}, s{S_SEG}, s{S_ST}
    s_add_u32 s54, s54, s{S_ST}
    s_cmp_gt_i32 s{S_ON}, s54
    s_cbranch_scc0 {name}_c1
    """)
    for k in range(NF):
        ld(k, 50)
    a(f"s_branch {name}_w1")
    loopc(0)
    loopc(1)
    a.label(f"{name}_im2")
    for g in epi_groups(S_SEG):
        a("\n".join(g))
    inb(S_SEG)
    fin("f2", S_SEG, 0)
    a("\n".join(pst(4)))
    a(f"""
    s_add_u32 s{S_SEG}, s{S_SEG}, s{S_ST}
    s_cmp_lt_u32 s{S_SEG}, s{S_O1}
    s_cbranch_scc1 {name}_cold
    """)
    pdump(a)
    a.label(f"{name}_quit")
    ts(4)
    a("s_endpgm")
```

```python
import math, struct
from gen_common import *

SCALE = 0.5 / (2048.0 * 1024.0)
SC = 48
WSRD = "s[84:87]"


def flit(x):
    return "0x%08x" % struct.unpack("<I", struct.pack("<f", x))[0]


def P(r):
    return f"v[{r}:{r+1}]"


def consts(a):
    for k in range(1, 9):
        a(f"s_mov_b32 s{SC+2*k-2}, {flit(math.cos(2*math.pi*k/64))}")
        a(f"s_mov_b32 s{SC+2*k-1}, {flit(math.sin(2*math.pi*k/64))}")


def cmul(a, dst, src, tmp, w, ic=0, is_=1, sc=1, ss=1):
    n = lambda b: int(bool(b))
    a(f"v_pk_mul_f32 {P(tmp)}, {P(src)}, {w} op_sel:[0,{ic}] op_sel_hi:[0,{is_}] neg_lo:[0,{n(sc<0)}] neg_hi:[0,{n(ss<0)}]")
    a(f"v_pk_fma_f32 {P(dst)}, {P(src)}, {w}, {P(tmp)} op_sel:[1,{is_},0] op_sel_hi:[1,{ic},1] neg_lo:[0,{n(ss>0)},0] neg_hi:[0,{n(sc<0)},0]")


def cmul_const(a, dst, src, tmp, c, s):
    eps = 1e-9
    n = lambda b: int(bool(b))
    if abs(s) < eps:
        a(f"v_pk_add_f32 {P(dst)}, {P(src)}, 0 neg_lo:[{n(c<0)},0] neg_hi:[{n(c<0)},0]"); return
    if abs(c) < eps:
        a(f"v_pk_add_f32 {P(dst)}, {P(src)}, 0 op_sel:[1,0] op_sel_hi:[0,0] neg_lo:[{n(s>0)},0] neg_hi:[{n(s<0)},0]"); return
    for k in range(1, 9):
        C, S = math.cos(2*math.pi*k/64), math.sin(2*math.pi*k/64)
        w = f"s[{SC+2*k-2}:{SC+2*k-1}]"
        if abs(abs(c) - C) < eps and abs(abs(s) - S) < eps:
            return cmul(a, dst, src, tmp, w, 0, 1, c, s)
        if abs(abs(c) - S) < eps and abs(abs(s) - C) < eps:
            return cmul(a, dst, src, tmp, w, 1, 0, c, s)
    raise ValueError


class PF:
    def __init__(self, a, base, tmp):
        self.a, self.base, self.tmp0 = a, base, tmp
        self.reset()

    def reset(self):
        self.r = [self.base + 2 * i for i in range(32)]
        self.t = self.tmp0

    def fft(self, sign, src=None, after_first=None):
        a, r = self.a, self.r
        span = 16
        while span >= 1:
            for start in range(0, 32, 2 * span):
                for j in range(span):
                    p, q = start + j, start + j + span
                    sp, sq = (src[p], src[q]) if src else (r[p], r[q])
                    den = 2 * span
                    triv = j == 0 or 4 * j == den
                    d = r[q] if (src and triv) else self.t
                    if 4 * j == den:
                        if sign > 0:
                            a(f"v_pk_add_f32 {P(d)}, {P(sp)}, {P(sq)} op_sel:[1,1] op_sel_hi:[0,0] neg_lo:[1,0] neg_hi:[0,1]")
                        else:
                            a(f"v_pk_add_f32 {P(d)}, {P(sp)}, {P(sq)} op_sel:[1,1] op_sel_hi:[0,0] neg_lo:[0,1] neg_hi:[1,0]")
                    else:
                        a(f"v_pk_add_f32 {P(d)}, {P(sp)}, {P(sq)} neg_lo:[0,1] neg_hi:[0,1]")
                    a(f"v_pk_add_f32 {P(r[p])}, {P(sp)}, {P(sq)}")
                    if triv:
                        if not src:
                            self.t, r[q] = r[q], self.t
                    else:
                        cmul_const(a, r[q], self.t, r[q], math.cos(2*math.pi*j/den), sign * math.sin(2*math.pi*j/den))
            if src and after_first:
                after_first()
            src = None
            span //= 2
        rev = [int(format(i, "05b")[::-1], 2) for i in range(32)]
        self.r = [r[rev[i]] for i in range(32)]

    def twiddle(self, tw, first=1):
        for k in range(first, 32):
            cmul(self.a, self.r[k], self.r[k], self.t, P(tw + 2 * k))

    def lds_write(self, va, stride):
        for k in range(32):
            self.a(f"ds_write_b64 v{va}, {P(self.r[k])} offset:{k*stride}")

    def lds_read(self, va, stride):
        self.reset()
        order = [i // 2 + 16 * (i & 1) for i in range(32)]
        for n in order:
            self.a(f"ds_read_b64 {P(self.r[n])}, v{va} offset:{n*stride}")
        self.a("s_waitcnt lgkmcnt(0)")


def make_tw(a, tw, vx, den, sign, vbase=None, mul=1, scale=None, tmp=12, first=1):
    for k in range(first, 32):
        if vbase is None:
            a(f"v_mul_f32 v{tmp}, {flit(sign * mul * k / den)}, v{vx}")
        else:
            a(f"v_mov_b32 v{tmp}, v{vbase}")
            a(f"v_fmac_f32 v{tmp}, {flit(sign * mul * k / den)}, v{vx}")
        a(f"v_cos_f32 v{tw+2*k}, v{tmp}")
        a(f"v_sin_f32 v{tw+2*k+1}, v{tmp}")
    if scale is not None:
        a("s_nop 0")
        for k in range(first, 32):
            a(f"v_mul_f32 v{tw+2*k}, {flit(scale)}, v{tw+2*k}")
            a(f"v_mul_f32 v{tw+2*k+1}, {flit(scale)}, v{tw+2*k+1}")


FB = 8448
NT = ' nt' if int(os.environ.get('FNT', 0)) else ''
FN = int(os.environ.get('FNEAR', 1))
TS = 16384 << FN
WS_ = 8192 << FN
D0, T0, TW, IN = 16, 14, 80, 144


def rowbase(dst, task, region):
    if not FN:
        return f"s_lshl_b32 s{dst}, s{task}, 7\ns_add_u32 s{dst}, s{dst}, {region}"
    return (f"s_lshl_b32 s{dst}, s{task}, 7\ns_and_b32 s23, s{dst}, 0x2000\ns_add_u32 s{dst}, s{dst}, s23\n"
            f"s_xor_b32 s23, s98, 1\ns_lshl_b32 s23, s23, 13\ns_add_u32 s{dst}, s{dst}, s23\ns_add_u32 s{dst}, s{dst}, {region}")


def rowstep(dst, it):
    return f"s_add_u32 s{dst}, s{dst}, {32 * TS}" + (f"\ns_xor_b32 s{dst}, s{dst}, 0x2000" if FN and it % 2 == 1 else "")


def colbase(dst, col, stride, bit, region):
    r = f"s_mul_i32 s{dst}, s{col}, {stride}\ns_add_u32 s{dst}, s{dst}, {region}"
    if FN:
        r = f"s_lshr_b32 s23, s{col}, {bit}\ns_xnor_b32 s23, s23, s98\ns_and_b32 s23, s23, 1\ns_lshl_b32 s23, s23, 13\n" + r + f"\ns_add_u32 s{dst}, s{dst}, s23"
    return r


def row_setup(a, sign):
    consts(a)
    a(f"""
    v_and_b32 v1, 31, v0
    v_lshrrev_b32 v2, 5, v0
    v_cvt_f32_u32 v3, v1
    v_mul_u32_u24 v10, {FB}, v2
    v_lshl_add_u32 v4, v1, 3, v10
    v_mul_u32_u24 v5, 264, v1
    v_add_u32 v5, v5, v10
    v_and_b32 v11, 7, v0
    v_lshrrev_b32 v9, 3, v0
    v_mul_u32_u24 v10, {FB}, v11
    v_lshl_add_u32 v6, v9, 3, v10
    v_lshlrev_b32 v7, 3, v9
    v_sub_u32 v7, v10, v7
    v_add_u32 v7, 4096, v7
    v_mul_u32_u24 v8, {TS}, v9
    v_lshl_add_u32 v8, v11, 4, v8
    """)
    make_tw(a, TW, 3, 1024.0, sign)


def task_loop(a, name, st, stride, n, issue, body):
    a(f"s_cmp_lt_u32 s{st}, {n}\ns_cbranch_scc0 {name}_e")
    issue(st)
    a.label(f"{name}_l")
    a(f"s_add_u32 s21, s{st}, {stride}\ns_cmp_lt_u32 s21, {n}\ns_cselect_b32 s22, s21, s{st}")
    body(lambda: issue(22))
    a(f"s_mov_b32 s{st}, s21\ns_cmp_lt_u32 s{st}, {n}\ns_cbranch_scc1 {name}_l")
    a.label(f"{name}_e")


def gen_f1(a: Asm, name, st, stride, n):
    a(f"s_load_dwordx2 s[4:5], s[0:1], {KA_BX}")
    row_setup(a, -1)
    a(f"""
    v_lshlrev_b32 v12, 12, v2
    v_lshl_add_u32 v12, v1, 1, v12
    s_waitcnt lgkmcnt(0)
    s_mov_b32 s6, {4*MB}
    s_mov_b32 s7, 0x00020000
    """)
    for i in range(64):
        a(f"v_mov_b32 v{IN+i}, 0")
    F = PF(a, D0, T0)

    def issue(s):
        a(f"s_lshl_b32 s12, s{s}, 15")
        for i in [i // 2 + 16 * (i & 1) for i in range(32)]:
            a(f"buffer_load_short_d16_hi v{IN+2*i}, v12, s[4:7], s12 offen offset:{64*i}{NT}")
            a(f"buffer_load_short_d16_hi v{IN+2*i+1}, v12, s[4:7], s12 offen offset:{2048+64*i}{NT}")

    def body(pref):
        a("s_waitcnt vmcnt(17)")
        F.reset()
        F.fft(-1, src=[IN + 2 * i for i in range(32)], after_first=pref)
        F.twiddle(TW)
        a("s_barrier")
        F.lds_write(4, 264)
        a("s_waitcnt lgkmcnt(0)")
        F.lds_read(5, 8)
        F.fft(-1)
        F.lds_write(4, 256)
        a(f"ds_write_b64 v4, {P(F.r[0])} offset:8192")
        a("s_waitcnt lgkmcnt(0)\ns_barrier")
        a(rowbase(13, st, WS_T1))
        R, O = D0, 208
        def rd(it):
            b = R + 4 * (it % 8)
            a(f"ds_read_b64 {P(b)}, v6 offset:{256*it}")
            a(f"ds_read_b64 {P(b+2)}, v7 offset:{4096 - 256*it}")
        for it in range(6): rd(it)
        for it in range(17):
            b, o = R + 4 * (it % 8), O + 4 * (it % 8)
            a(f"s_waitcnt lgkmcnt({2 * (min(it + 6, 17) - it - 1)})")
            a(f"v_pk_add_f32 {P(o)}, {P(b)}, {P(b+2)} neg_hi:[0,1]")
            a(f"v_pk_add_f32 {P(o+2)}, {P(b)}, {P(b+2)} op_sel:[1,1] op_sel_hi:[0,0] neg_hi:[1,0]")
            if it + 6 < 17: rd(it + 6)
            if it == 16:
                a(f"v_cmp_eq_u32 vcc, 0, v9\ns_nop 1\nv_cndmask_b32 v13, -16, v8, vcc")
            a(f"buffer_store_dwordx4 v[{o}:{o+3}], v{13 if it == 16 else 8}, {WSRD}, s13 offen sc1")
            a(rowstep(13, it))
    def issue0(s):
        issue(s)
    def issue_first(s):
        issue(s)
        if s == st: a("s_waitcnt vmcnt(0)")
    task_loop(a, name, st, stride, n, issue_first, body)


def gen_f3(a: Asm, name, st, stride, n, ready):
    a(f"s_load_dwordx2 s[4:5], s[0:1], {KA_OUT}")
    row_setup(a, +1)
    a(f"""
    v_lshlrev_b32 v12, 2, v1
    v_sub_u32 v12, v4, v12
    v_and_b32 v10, 127, v0
    v_lshrrev_b32 v11, 7, v0
    v_lshlrev_b32 v2, 5, v10
    v_lshl_add_u32 v2, v11, 12, v2
    v_lshlrev_b32 v3, 4, v10
    v_lshl_add_u32 v3, v11, 12, v3
    v_add_u32 v3, 2048, v3
    v_cmp_eq_u32 s[14:15], 0, v9
    s_waitcnt lgkmcnt(0)
    s_mov_b32 s6, {8*MB}
    s_mov_b32 s7, 0x00020000
    """)
    F = PF(a, D0, T0)
    ready()

    def issue(s):
        a(rowbase(12, s, WS_T2))
        for it in range(17):
            a(f"buffer_load_dwordx4 v[{IN+4*it}:{IN+4*it+3}], v8, {WSRD}, s12 offen sc1")
            a(rowstep(12, it))
        if s == st: a("s_waitcnt vmcnt(0)")

    def body(pref):
        a("s_waitcnt vmcnt(8)\ns_barrier")
        for it in (0, 16):
            b = IN + 4 * it
            a(f"v_cndmask_b32 v{b+1}, v{b+1}, 0, s[14:15]")
            a(f"v_cndmask_b32 v{b+3}, v{b+3}, 0, s[14:15]")
        for it in range(17):
            b, o = IN + 4 * it, D0 + 4 * (it % 16)
            a(f"v_pk_add_f32 {P(o)}, {P(b)}, {P(b+2)} op_sel:[0,1] op_sel_hi:[1,0] neg_lo:[0,1]")
            a(f"v_pk_add_f32 {P(o+2)}, {P(b)}, {P(b+2)} op_sel:[0,1] op_sel_hi:[1,0] neg_hi:[1,0]")
            if it == 16: a("s_mov_b64 exec, s[14:15]")
            a(f"ds_write_b64 v6, {P(o)} offset:{256*it}")
            if it < 16: a(f"ds_write_b64 v7, {P(o+2)} offset:{4096 - 256*it}")
            if it == 14: a("s_waitcnt lgkmcnt(8)")
        a("s_mov_b64 exec, -1")
        pref()
        a("s_waitcnt lgkmcnt(0)\ns_barrier")
        F.lds_read(4, 256)
        F.fft(+1)
        F.twiddle(TW)
        F.lds_write(4, 264)
        a("s_waitcnt lgkmcnt(0)")
        F.lds_read(5, 8)
        F.fft(+1)
        for i in range(32):
            a(f"ds_write2st64_b32 v12, v{F.r[i]}, v{F.r[i]+1} offset0:0 offset1:16" if i == 0 else
              f"ds_write_b32 v12, v{F.r[i]} offset:{128*i}\nds_write_b32 v12, v{F.r[i]+1} offset:{4096+128*i}")
        a(f"s_waitcnt lgkmcnt(0)\ns_barrier\ns_lshl_b32 s13, s{st}, 16")
        for j in range(8):
            a(f"ds_read_b128 v[{D0+8*j}:{D0+8*j+3}], v2 offset:{FB*j}")
            a(f"ds_read_b128 v[{D0+8*j+4}:{D0+8*j+7}], v2 offset:{FB*j+16}")
            if j == 6: a("s_waitcnt lgkmcnt(12)")
        for j in range(8):
            a(f"s_waitcnt lgkmcnt({14 - 2*j})")
            o = 216 + 4 * j
            for i in range(4):
                a(f"v_cvt_pk_bf16_f32 v{o+i}, v{D0+8*j+2*i}, v{D0+8*j+2*i+1}")
            a(f"buffer_store_dwordx4 v[{o}:{o+3}], v3, s[4:7], s13 offen {os.environ.get('OSTF', 'sc1')}")
            a(f"s_add_u32 s13, s13, 8192")
    task_loop(a, name, st, stride, n, issue, body)


def gen_f2(a: Asm, name, st, stride, n):
    TW2, WR = 144, 208
    WB = 32 * 66 * 8
    consts(a)
    a(f"""
    v_lshrrev_b32 v10, 6, v0
    v_and_b32 v1, 63, v0
    v_readfirstlane_b32 s16, v10
    v_cvt_f32_u32 v2, v1
    v_lshlrev_b32 v5, 3, v1                   ; T1/T2 offset
    s_mul_i32 s17, s16, {WB}
    v_add_u32 v3, s17, v5                     ; n2*8 + k1*528
    v_and_b32 v7, 1, v1
    v_lshrrev_b32 v6, 1, v1
    v_cvt_f32_u32 v8, v6
    v_cvt_f32_u32 v10, v7
    v_mul_u32_u24 v4, 528, v6
    v_lshl_add_u32 v4, v7, 3, v4
    v_add_u32 v4, s17, v4                     ; k1*528 + b*8 + m*16
    v_lshlrev_b32 v11, 12, v7
    v_lshl_add_u32 v11, v6, 2, v11
    v_fma_f32 v9, v10, 2.0, -1.0
    v_sub_f32 v7, 0, v9
    v_mul_f32 v13, v10, v8
    v_mul_f32 v13, {flit(1.0/2048.0)}, v13
    s_mov_b32 s18, 0xaaaaaaaa
    s_mov_b32 s19, 0xaaaaaaaa
    """)
    make_tw(a, TW, 2, 2048.0, -1)
    make_tw(a, TW2, 8, 2048.0, +1, vbase=13, mul=2, scale=SCALE, first=0)
    F = PF(a, D0, T0)

    def issue(s):
        a(f"s_lshl_b32 s12, s{s}, 2\ns_add_u32 s12, s12, s16\ns_min_u32 s12, s12, 512")
        a(colbase(13, 12, WS_, 7, WS_WT))
        a(colbase(12, 12, TS, 6, WS_T1))
        for i in range(32):
            a(f"buffer_load_dwordx2 a[{2*i}:{2*i+1}], v5, {WSRD}, s12 offen offset:{512*(i & 7)} sc1")
            if i % 8 == 7: a(f"s_add_u32 s12, s12, {12288 if FN and i == 15 else 4096}")
        for k in range(32):
            a(f"buffer_load_dword a{64+k}, v11, {WSRD}, s13 offen offset:{128*k} sc1")
        if s == st: a("s_waitcnt vmcnt(0)")

    def w64(sign):
        a("s_mov_b64 exec, s[18:19]")
        for k in range(32):
            cmul_const(a, F.r[k], F.r[k], F.t, -math.cos(2*math.pi*k/64), -sign * math.sin(2*math.pi*k/64))
        a("s_mov_b64 exec, -1")

    def cross(vs):
        for k in range(32):
            for h in range(2):
                a(f"v_fmac_f32_dpp v{F.r[k]+h}, v{F.r[k]+h}, v{vs} quad_perm:[1,0,3,2] row_mask:0xf bank_mask:0xf")

    def body(pref):
        a("s_waitcnt vmcnt(32)")
        F.reset()
        for i in range(64):
            a(f"v_accvgpr_read_b32 v{D0+i}, a{i}")
        for k in range(32):
            a(f"v_accvgpr_read_b32 v{WR+k}, a{64+k}")
        pref()
        F.fft(-1)
        F.twiddle(TW)
        F.lds_write(3, 528)
        a("s_waitcnt lgkmcnt(0)")
        F.lds_read(4, 16)
        F.fft(-1)
        w64(-1)
        cross(9)
        for k in range(32):
            a(f"v_lshlrev_b32 v240, 16, v{WR+k}")
            a(f"v_and_b32 v241, 0xffff0000, v{WR+k}")
            cmul(a, F.r[k], F.r[k], F.t, P(240))
        cross(7)
        w64(+1)
        F.fft(+1)
        F.twiddle(TW2, first=0)
        F.lds_write(4, 16)
        a("s_waitcnt lgkmcnt(0)")
        F.lds_read(3, 528)
        F.fft(+1)
        a(f"s_lshl_b32 s12, s{st}, 2\ns_add_u32 s12, s12, s16\ns_min_u32 s12, s12, 512")
        a(colbase(12, 12, TS, 6, WS_T2))
        for i in range(32):
            a(f"buffer_store_dwordx2 {P(F.r[i])}, v5, {WSRD}, s12 offen offset:{512*(i & 7)} sc1")
            if i % 8 == 7: a(f"s_add_u32 s12, s12, {12288 if FN and i == 15 else 4096}")
    task_loop(a, name, st, stride, n, issue, body)


def gen_f0(a: Asm, name, st, stride, n):
    a(f"""
    s_load_dwordx2 s[4:5], s[0:1], {KA_WR}
    s_load_dwordx2 s[8:9], s[0:1], {KA_WI}
    v_and_b32 v1, 63, v0
    v_lshrrev_b32 v2, 6, v0
    v_mul_u32_u24 v3, 1026, v2
    v_lshl_add_u32 v3, v1, 1, v3
    v_mul_u32_u24 v4, 65, v1
    v_add_u32 v4, v4, v2
    v_lshlrev_b32 v4, 2, v4
    v_lshrrev_b32 v7, 4, v0
    v_and_b32 v8, 15, v0
    v_mul_u32_u24 v5, 65, v7
    v_lshl_add_u32 v5, v8, 2, v5
    v_lshlrev_b32 v5, 2, v5
    v_mul_u32_u24 v6, {WS_}, v7
    v_lshl_add_u32 v6, v8, 4, v6
    s_add_u32 s24, s84, {WS_WT}
    s_addc_u32 s25, s85, 0
    s_mov_b32 s26, {513*WS_}
    s_mov_b32 s27, 0x00020000
    s_waitcnt lgkmcnt(0)
    s_mov_b32 s6, {2048*513*2}
    s_mov_b32 s7, 0x00020000
    s_mov_b32 s10, {2048*513*2}
    s_mov_b32 s11, 0x00020000
    """)
    if int(os.environ.get("F0T", 1)):
        a(f"v_lshlrev_b32 v9, 7, v0\ns_and_b32 s12, s{st}, 31\ns_mul_i32 s12, s12, {64*1026}")
        for i in range(2):
            a(f"buffer_load_dword v250, v9, s[4:7], s12 offen{NT}\nbuffer_load_dword v250, v9, s[8:11], s12 offen{NT}\ns_add_u32 s12, s12, 32768")

    def issue(s):
        a(f"s_and_b32 s12, s{s}, 31\ns_mul_i32 s12, s12, {64*1026}\ns_lshr_b32 s13, s{s}, 5\ns_lshl_b32 s13, s13, 7\ns_add_u32 s12, s12, s13")
        for i in range(16):
            a(f"buffer_load_ushort v{16+i}, v3, s[4:7], s12 offen")
            a(f"buffer_load_ushort v{32+i}, v3, s[8:11], s12 offen")
            a(f"s_add_u32 s12, s12, {4*1026}")
        if s == st: a("s_waitcnt vmcnt(0)")

    def body(pref):
        a("s_waitcnt vmcnt(4)")
        for i in range(16):
            a(f"v_lshl_or_b32 v{48+i}, v{32+i}, 16, v{16+i}")
        pref()
        a("s_barrier")
        for i in range(16):
            a(f"ds_write_b32 v4, v{48+i} offset:{16*i}")
            if i == 11: a("s_waitcnt lgkmcnt(4)")
        a("s_waitcnt lgkmcnt(0)\ns_barrier")
        for i in range(4):
            a(f"ds_read2_b32 v[{64+4*i}:{65+4*i}], v5 offset0:0 offset1:1" if i == 0 else f"ds_read_b32 v{64+4*i}, v5 offset:{16*65*4*i}\nds_read_b32 v{65+4*i}, v5 offset:{16*65*4*i+4}")
            a(f"ds_read_b32 v{66+4*i}, v5 offset:{16*65*4*i+8}\nds_read_b32 v{67+4*i}, v5 offset:{16*65*4*i+12}")
        a(f"s_and_b32 s14, s{st}, 31\ns_lshl_b32 s14, s14, 8\ns_lshr_b32 s15, s{st}, 5")
        a(colbase(15, 15, 64 * WS_, 1, 0))
        a("s_add_u32 s14, s14, s15\ns_waitcnt lgkmcnt(0)")
        for i in range(4):
            a(f"buffer_store_dwordx4 v[{64+4*i}:{67+4*i}], v6, s[24:27], s14 offen sc1")
            a(f"s_add_u32 s14, s14, {16*WS_}")
    task_loop(a, name, st, stride, n, issue, body)
```

```python
from gen_common import *

S_X, S_T = 30, 31
S_WSD, S_DBG = 84, 72
E = lambda k, d: int(os.environ.get(k, d))


D_VOTE, D_PD, D_SLOW, D_PD2 = 128, 160, 192, 224
NI = E('NI', 32)


def start_code(a: Asm, name):
    W, D = S_WSD, S_DBG
    a(f"""
    s_load_dwordx2 s[{W}:{W+1}], s[0:1], {KA_WS}
    s_load_dwordx2 s[{D}:{D+1}], s[0:1], {KA_DBG}
    s_getreg_b32 s90, hwreg(HW_REG_XCC_ID)
    s_and_b32 s90, s90, 7
    v_mov_b32 v1, 0
    v_mov_b32 v2, 1
    s_lshl_b32 s91, s90, 4
    s_mov_b32 s95, 0
    s_mov_b32 s99, 0
    s_waitcnt lgkmcnt(0)
    s_mov_b32 s{W+2}, {WS_BYTES}
    s_mov_b32 s{W+3}, 0x00020000
    s_mov_b32 s{D+2}, 256
    s_mov_b32 s{D+3}, 0x00020000
    v_cmp_eq_u32 vcc, 0, v0
    s_and_saveexec_b64 s[88:89], vcc
    s_cbranch_execz {name}_tkd
    s_lshl_b32 s92, s2, 13
    s_add_u32 s92, s92, {WS_CAL}
    buffer_atomic_add v2, v1, s[{D}:{D+3}], s91 offen sc0
    buffer_load_dword v251, v1, s[{W}:{W+3}], s92 offen offset:2048 sc1
    s_waitcnt vmcnt(1)
    ds_write_b32 v1, v2
    s_waitcnt lgkmcnt(0)
{name}_tkd:
    s_mov_b64 exec, s[88:89]
    s_barrier
    ds_read_b32 v2, v1
    s_waitcnt lgkmcnt(0)
    v_readfirstlane_b32 s96, v2
    s_barrier
    """)


def sync_issue(a: Asm, vt):
    a(f"""
    v_and_b32 v{vt+1}, 15, v0
    v_lshlrev_b32 v{vt+1}, 4, v{vt+1}
    buffer_load_dword v{vt}, v{vt+1}, s[{S_DBG}:{S_DBG+3}], 0 offen sc1
    """)


def sync_code(a: Asm, kname, tag, vt, force_slow=False, pre=False):
    D = S_DBG
    n = f"{kname}_sy{tag}"
    a(f"""
    v_and_b32 v{vt+1}, 15, v0
    v_lshlrev_b32 v{vt+1}, 4, v{vt+1}
    s_branch {n}{"p" if pre else ""}
{n}w:
    s_sleep 4
{n}:
    """)
    wd_code(a, n)
    a(f"""
    buffer_load_dword v{vt}, v{vt+1}, s[{D}:{D+3}], 0 offen sc1
    s_waitcnt vmcnt(0)
{n}p:
    s_cmp_eq_u32 s95, 1
    s_cbranch_scc0 {n}f
    v_readlane_b32 s76, v{vt}, {D_PD2 // 16}
    s_mov_b32 s98, 0
    s_cmp_eq_u32 s76, {NI}
    s_cbranch_scc0 {n}w
    s_branch {n}d
{n}f:
    s_mov_b32 s77, 0
    s_mov_b32 s78, 0
    """)
    for i in range(8):
        a(f"v_readlane_b32 s76, v{vt}, {i}\ns_add_u32 s77, s77, s76\ns_xor_b32 s76, s76, 32\ns_or_b32 s78, s78, s76")
    a(f"""
    s_cmp_eq_u32 s77, 256
    s_cbranch_scc0 {n}w
    {"s_mov_b32 s78, 1" if force_slow else ""}
    v_mov_b32 v252, v{vt}
    s_cmp_eq_u32 s78, 0
    s_cbranch_scc0 {kname}_slowent
    v_readlane_b32 s76, v{vt}, {D_PD // 16}
    v_readlane_b32 s77, v{vt}, {D_VOTE // 16}
    s_cmp_eq_u32 s76, {NI}
    s_cbranch_scc0 {n}w
    s_cmp_gt_u32 s77, {NI // 2}
    s_cselect_b32 s98, 1, 0
    {f"s_xor_b32 s98, s98, {os.environ['PAR']}" if "PAR" in os.environ else ""}
{n}d:
    """)


def slow_entry(a: Asm, name):
    D = S_DBG
    a.label(f"{name}_slowent")
    a(f"""
    s_mov_b64 exec, -1
    s_waitcnt vmcnt(0) lgkmcnt(0)
    s_barrier
    s_mov_b32 s97, s96
    """)
    for i in range(7):
        a(f"v_readlane_b32 s76, v252, {i}\ns_cmp_gt_u32 s90, {i}\ns_cselect_b32 s76, s76, 0\ns_add_u32 s97, s97, s76")
    a(f"""
    v_mov_b32 v1, 0
    v_mov_b32 v2, 1
    v_cmp_eq_u32 vcc, 0, v0
    s_and_saveexec_b64 s[88:89], vcc
    s_cbranch_execz {name}_sb1
    buffer_atomic_add v2, v1, s[{D}:{D+3}], 0 offen offset:{D_SLOW} sc1
{name}_sb1:
    s_mov_b64 exec, s[88:89]
{name}_sb2:
    s_sleep 4
    """)
    wd_code(a, "slowbar")
    a(f"""
    buffer_load_dword v2, v1, s[{D}:{D+3}], 0 offen offset:{D_SLOW} sc1
    s_waitcnt vmcnt(0)
    v_cmp_ne_u32 vcc, 256, v2
    s_cbranch_vccnz {name}_sb2
    s_mov_b32 s95, 1
    """)


def init_cd(a: Asm, name, idx):
    W, D = S_WSD, S_DBG
    a(f"""
    v_mov_b32 v8, -1
    v_mov_b32 v9, -1
    v_mov_b32 v10, -1
    v_mov_b32 v11, -1
    v_lshlrev_b32 v1, 4, v0
    v_mov_b32 v2, 0
    v_cmp_gt_u32 vcc, 64, v0
    s_cbranch_vccz {name}_nv
    s_cmp_eq_u32 s95, 0
    s_cbranch_scc0 {name}_nv
    ; latency samples of both parities (order alternates with idx), sign vote
    s_lshr_b32 s60, s2, 1
    s_lshl_b32 s60, s60, 14
    s_and_b32 s61, s{idx}, 1
    s_lshl_b32 s66, s61, 13
    s_add_u32 s60, s60, s66
    s_and_b32 s66, s2, 1
    s_lshl_b32 s66, s66, 10
    s_add_u32 s60, s60, s66
    s_add_u32 s60, s60, {WS_CAL}
    s_mov_b32 s66, 0x7fffffff
    s_mov_b32 s67, 0x7fffffff
    s_mov_b64 exec, 0xff
    s_waitcnt vmcnt(0)
    """)
    for i in range(E("NSAMP", 4)):
        a(f"""
        s_memtime s[62:63]
        s_waitcnt lgkmcnt(0)
        buffer_store_dwordx4 v[8:11], v1, s[{W}:{W+3}], s60 offen offset:{256 * (i >> 1)} sc1
        s_waitcnt vmcnt(0)
        s_memtime s[64:65]
        s_xor_b32 s60, s60, 8192
        s_waitcnt lgkmcnt(0)
        s_sub_u32 s64, s64, s62
        s_min_u32 s{66 + (i & 1)}, s{66 + (i & 1)}, s64
        """)
    a(f"""
    s_cmp_lt_u32 s67, s66
    s_cselect_b32 s60, 1, 0
    s_xor_b32 s60, s60, s61          ; parity that is near this XCD
    s_lshr_b32 s61, s90, 2
    s_xor_b32 s60, s60, s61
    v_mov_b32 v3, s60
    s_mov_b64 exec, 1
    buffer_atomic_add v3, v2, s[{D}:{D+3}], 0 offen offset:{D_VOTE} sc1
    s_mov_b64 exec, -1
{name}_nv:
    s_barrier
    s_lshl_b32 s60, s{idx}, 12
    s_add_u32 s60, s60, {WS_H}
    """)
    for i in range(512 // NI):
        a(f"buffer_store_dwordx4 v[8:11], v1, s[{W}:{W+3}], s60 offen sc1")
        a(f"s_add_u32 s60, s60, {NI * 4096}")
    a(f"""
    s_lshr_b32 s62, s{idx}, 1
    s_and_b32 s63, s{idx}, 1
    s_add_u32 s63, s63, s62
    s_lshl_b32 s62, s62, 19
    s_and_b32 s64, s63, 14
    s_lshl_b32 s64, s64, 13
    s_add_u32 s62, s62, s64
    s_and_b32 s64, s63, 1
    s_lshl_b32 s64, s64, 12
    s_add_u32 s62, s62, s64
    s_add_u32 s62, s62, {WS_XU}
    {"" if E("TAG", 1) else f"buffer_store_dwordx4 v[8:11], v1, s[{W}:{W+3}], s62 offen sc1"}
    s_add_u32 s62, s62, 8192
    {"" if E("TAG", 1) else f"buffer_store_dwordx4 v[8:11], v1, s[{W}:{W+3}], s62 offen sc1"}
    s_cmp_lt_u32 s{idx}, 16
    s_cbranch_scc0 {name}_pz
    buffer_store_dwordx4 v[8:11], v1, s[{W}:{W+3}], s60 offen sc1
{name}_pz:
    s_waitcnt vmcnt(0)
    s_barrier
    v_mov_b32 v3, 1
    s_lshl_b32 s62, s95, 6
    v_cmp_eq_u32 vcc, 0, v0
    s_and_saveexec_b64 s[60:61], vcc
    s_cbranch_execz {name}_xps
    buffer_atomic_add v3, v2, s[{D}:{D+3}], s62 offen offset:{D_PD} sc1
{name}_xps:
    s_mov_b64 exec, s[60:61]
    """)


def rec_body(a: Asm, name, IS, sync, nsteps=64, prof=False, flags=True, ts=None):
    W = S_WSD
    SRD = f"s[{W}:{W+3}]"
    S_WQ, S_WK, S_WV, S_WO, S_M0 = 4, 8, 12, 16, 20
    S_WAVE, S_H, S_J, S_STEP, S_T0, S_T1 = 24, 25, 26, 27, 28, 29
    S_C = 32
    S_SL, S_SLO = 33, 34
    S_XS, S_XSO = 35, 36
    S_P = 37
    S_MN8, S_MMEM = 40, 42
    S_XBR, S_XBW = 44, 45
    S_KVN = 46
    S_KVB, S_FLB, S_CU, S_KXB, S_TAG = 79, 81, 82, 83, 47
    S_LATE, S_WARM = 36, 89
    ONE, LS, ZER = 220, 224, 228
    S_MKM = 48
    V_L, V_G, V_M, V_T0, V_T1, V_IDX = 1, 2, 3, 4, 5, 6
    V_OMEM, V_OM0, V_OPUB, V_OSCM, V_OOP, V_OXW, V_OXR = 7, 8, 9, 10, 11, 12, 13
    V_LWQ, V_LWK, V_LRR, V_LL, V_LWO, V_LRO, V_LVW, V_LVR, V_OKV, V_NEG, V_OFL = 14, 15, 16, 17, 18, 19, 20, 21, 22, 23, 24
    V_POI = 28
    MA, AQ, AV = 32, 96, 112
    RP, R, KX, VTX, S, PL = 120, 152, 156, 164, 172, 184
    VM, P, PM, O, TMP = 208, 212, 216, 120, 232
    MO, AO, KVH = 32, 96, 244
    A_W1, A_WO = 0, 192
    L_QK, L_VP, L_OP, L_VM, L_XB, L_ST = 0, 9216, 13312, 17920, 18432, 32768

    TAG = E("TAG", 1)
    WPAD, SCS = E("WPAD", 0), E("SCS", 2048)
    OXO, SCO = 24576, 49152

    def wdog():
        wd_code(a, name + ":" + a.lines[-1], f"s{S_STEP}")

    def stamp(i):
        if E("TR", 0):
            if i == 0: return
            if i < 11: a(f"s_memtime s[{48+2*i}:{49+2*i}]")
            if i == 11:
                a("s_memrealtime s[70:71]\ns_memtime s[100:101]\ns_waitcnt lgkmcnt(0)\nv_writelane_b32 v250, s100, 12")
                for k in range(1, 12):
                    a(f"v_writelane_b32 v250, s{48+2*k}, {k}")
                a(f"v_writelane_b32 v250, s99, 0")
                a(f"""
                s_lshl_b32 s80, s{S_X}, 5
                s_add_u32 s80, s80, s{S_T}
                s_lshl_b32 s80, s80, 2
                s_add_u32 s80, s80, s{S_WAVE}
                s_lshl_b32 s80, s80, 6
                s_add_u32 s80, s80, s{S_STEP}
                s_lshl_b32 s80, s80, 6
                s_add_u32 s80, s80, {WS_PROF}
                v_lshlrev_b32 v251, 2, v{V_L}
                s_mov_b64 exec, 0xffff
                buffer_store_dword v250, v251, {SRD}, s80 offen
                s_mov_b64 exec, -1
                """)
            return
        if not prof or i == 11:
            return
        a("s_memtime s[66:67]")
        a("s_waitcnt lgkmcnt(0)")
        a("s_sub_u32 s68, s66, s69")
        a(f"s_add_u32 s{50+i}, s{50+i}, s68")
        a("s_mov_b32 s69, s66")

    if prof:
        for i in range(16):
            a(f"s_mov_b32 s{50+i}, 0")
        a("s_memtime s[66:67]\ns_waitcnt lgkmcnt(0)\ns_mov_b32 s69, s66")
    if ts: ts(1)
    a(f"""
    s_load_dwordx2 s[{S_M0}:{S_M0+1}], s[0:1], {KA_MEM0}
    s_load_dwordx2 s[{S_WO}:{S_WO+1}], s[0:1], {KA_WO}
    s_load_dwordx2 s[{S_WQ}:{S_WQ+1}], s[0:1], {KA_WQ}
    s_load_dwordx2 s[{S_WK}:{S_WK+1}], s[0:1], {KA_WK}
    s_load_dwordx2 s[{S_WV}:{S_WV+1}], s[0:1], {KA_WV}
    v_lshrrev_b32 v{V_T0}, 6, v0
    v_and_b32 v{V_L}, 63, v0
    v_readfirstlane_b32 s{S_WAVE}, v{V_T0}
    v_lshrrev_b32 v{V_G}, 4, v{V_L}
    v_and_b32 v{V_M}, 15, v{V_L}
    v_lshlrev_b32 v{V_LL}, 4, v{V_L}
    s_lshr_b32 s{S_T0}, s{S_T}, 2
    s_lshl_b32 s{S_H}, s{S_X}, 3
    s_add_u32 s{S_H}, s{S_H}, s{S_T0}
    s_and_b32 s{S_J}, s{S_T}, 3
    s_waitcnt lgkmcnt(0)
    s_mov_b32 s{S_M0+2}, 16384
    s_mov_b32 s{S_M0+3}, 0x00020000
    """)
    for s in (S_WO, S_WQ, S_WK, S_WV):
        a(f"s_mov_b32 s{s+2}, {8*MB}\ns_mov_b32 s{s+3}, 0x00020000")
    FULL = E("FULL", 0)
    CL = 2 + FULL
    a(f"""
    s_lshl_b32 s{S_T0}, s{S_H}, 8
    s_lshr_b32 s{S_T1}, s{S_J}, {FULL}
    s_lshl_b32 s{S_T1}, s{S_T1}, {6 + FULL}
    s_add_u32 s{S_T0}, s{S_T0}, s{S_T1}
    s_lshl_b32 s{S_T1}, s{S_WAVE}, 21
    s_add_u32 s{S_T0}, s{S_T0}, s{S_T1}
    v_lshrrev_b32 v{V_T0}, {CL}, v{V_L}
    v_and_b32 v{V_T1}, {(1 << CL) - 1}, v{V_L}
    v_lshlrev_b32 v40, 13, v{V_T0}
    v_lshl_add_u32 v40, v{V_T1}, 4, v40
    v_add_u32 v40, s{S_T0}, v40
    s_lshl_b32 s{S_T0}, s{S_X}, 21
    s_lshl_b32 s{S_T1}, s{S_WAVE}, 19
    s_add_u32 s{S_T0}, s{S_T0}, s{S_T1}
    s_lshr_b32 s{S_T1}, s{S_T}, {FULL}
    s_lshl_b32 s{S_T1}, s{S_T1}, {6 + FULL}
    s_add_u32 s{S_T0}, s{S_T0}, s{S_T1}
    v_lshlrev_b32 v41, 11, v{V_T0}
    v_lshl_add_u32 v41, v{V_T1}, 4, v41
    v_add_u32 v41, s{S_T0}, v41
    s_lshl_b32 s47, s{S_WAVE}, 15
    s_add_u32 s47, s47, {L_ST}
    """)
    order = [int(c) for c in os.environ.get("WORD", "1203")]
    PH = [(c, p) for c in order for p in range(1 << FULL)]
    RI = 64 >> CL

    def wdma(n):
        c, p = PH[n]
        srd = (S_WQ, S_WK, S_WV, S_WO)[c]
        if E("HELP", 1):
            a(f"buffer_load_dword v50, v{51 if c < 3 else 52}, s[{srd}:{srd+3}], 0 offen")
        for r in range(16):
            if E("PSW", 1):
                a(f"s_xor_b32 s{S_T1}, s76, {r}")
                a(f"s_lshl_b32 s{S_T0}, s{S_T1}, 10")
                a(f"s_add_u32 s{S_T0}, s{S_T0}, s47")
                a(f"s_add_u32 m0, s{S_T0}, {(n & 1)*16384}")
                a(f"s_lshl_b32 s{S_T1}, s{S_T1}, {17 if c < 3 else 15}")
            else:
                a(f"s_add_u32 m0, s47, {(n & 1)*16384 + 1024*r}")
                a(f"s_mov_b32 s{S_T1}, {RI * (16 * p + r) * (8192 if c < 3 else 2048)}")
            a(f"buffer_load_dwordx4 v{40 if c < 3 else 41}, s[{srd}:{srd+3}], s{S_T1} offen {'nt ' if (E('RNT', 0) >> c) & 1 else ''}lds")
    WT = E("WT", 0)
    assert not (WT and FULL)
    a(f"""
    s_lshl_b32 s{S_T0}, s{S_T}, 18
    s_lshl_b32 s{S_T1}, s{S_WAVE}, 16
    s_add_u32 s{S_T0}, s{S_T0}, s{S_T1}
    s_lshl_b32 s{S_T1}, s{S_X}, 11
    s_add_u32 s{S_T0}, s{S_T0}, s{S_T1}
    v_lshlrev_b32 v48, 13, v{V_G}
    v_lshl_add_u32 v48, v{V_M}, 7, v48
    v_add_u32 v48, s{S_T0}, v48
    s_lshl_b32 s{S_T0}, s{S_X}, 21
    s_lshl_b32 s{S_T1}, s{S_T}, 16
    s_add_u32 s{S_T0}, s{S_T0}, s{S_T1}
    s_lshl_b32 s{S_T1}, s{S_WAVE}, 14
    s_add_u32 s{S_T0}, s{S_T0}, s{S_T1}
    v_lshlrev_b32 v49, 7, v{V_L}
    v_add_u32 v49, s{S_T0}, v49
    """)

    a(f"""
    s_and_b32 s76, s{S_T}, 1
    s_mul_i32 s76, s76, {E("PSW", 1) * 8 if E("PSW", 1) < 2 else E("PSW", 1)}
    ; helper touch of the slow lines: row = 256w + 16*(l&15... ) : rows w*256 + (t&15)*16 + (l&15), col (t>>4)*1024 + 384
    s_and_b32 s{S_T0}, s{S_T}, 15
    s_lshl_b32 s{S_T0}, s{S_T0}, 4
    s_lshl_b32 s{S_T1}, s{S_WAVE}, 8
    s_add_u32 s{S_T0}, s{S_T0}, s{S_T1}
    v_add_u32 v53, s{S_T0}, v{V_M}
    s_lshr_b32 s{S_T0}, s{S_T}, 4
    s_lshl_b32 s{S_T0}, s{S_T0}, 10
    s_add_u32 s{S_T0}, s{S_T0}, 384
    v_mov_b32 v54, s{S_T0}
    v_mov_b32 v55, 1920
    v_cmp_gt_u32 vcc, 32, v{V_L}
    s_nop 1
    v_cndmask_b32 v54, v55, v54, vcc
    s_lshl_b32 s{S_T1}, s{S_X}, 11
    v_lshl_add_u32 v51, v53, 13, v54
    v_add_u32 v51, s{S_T1}, v51
    s_lshl_b32 s{S_T1}, s{S_X}, 21
    v_lshl_add_u32 v52, v53, 11, v54
    v_add_u32 v52, s{S_T1}, v52
    """)

    NSELF = E("NSELF", 0)
    XF, XA = 64, 192
    if NSELF:
        assert order[:2] == [1, 2] and not FULL
        a(f"""
        s_load_dwordx2 s[56:57], s[0:1], {KA_AX}
        v_lshrrev_b32 v56, 1, v{V_G}
        v_lshlrev_b32 v56, 5, v56
        v_and_b32 v57, 1, v{V_G}
        v_lshl_add_u32 v56, v57, 3, v56
        v_lshl_add_u32 v56, v{V_M}, 11, v56
        s_lshl_b32 s{S_T0}, s{S_WAVE}, 9
        v_add_u32 v56, s{S_T0}, v56
        s_mov_b32 s58, {4*MB}
        s_mov_b32 s59, 0x00020000
        s_waitcnt lgkmcnt(0)
        """)
        for zt in range(2 * NSELF):
            a(f"s_mov_b32 s{S_T1}, {zt * 32768}")
            for hk in range(8):
                f = XF + (zt * 8 + hk) * 4
                a(f"buffer_load_dwordx2 v[{f}:{f+1}], v56, s[56:59], s{S_T1} offen offset:{64*hk}")
                a(f"buffer_load_dwordx2 v[{f+2}:{f+3}], v56, s[56:59], s{S_T1} offen offset:{64*hk+16}")

    def selfproj(isV):
        if not isV:
            for f in range(16 * NSELF):
                a(f"v_swap_b32 v{XF+4*f+1}, v{XF+4*f+2}")
            a(f"""
            s_lshl_b32 s{S_T0}, s{S_WAVE}, 12
            v_add_u32 v57, s{S_T0}, v{V_LL}
            v_lshlrev_b32 v60, 3, v0
            v_add_u32 v60, {L_XB}, v60
            v_bfe_u32 v61, v0, 1, 4
            v_lshlrev_b32 v58, 4, v61                    ; m*16
            v_and_b32 v61, 1, v0
            v_lshrrev_b32 v62, 5, v0
            v_lshl_add_u32 v59, v61, 11, v58             ; V: tt*2048
            v_lshl_add_u32 v59, v62, 8, v59              ;   + u*1024 + g*256
            v_lshl_add_u32 v58, v61, 8, v58              ; K: hf*256
            v_lshl_add_u32 v58, v62, 9, v58              ;   + (tt*2048 + u*1024 + (g'&1)*512)
            """)
        for z in range(NSELF):
            for hk in range(8):
                for tt in range(2):
                    for u in range(2):
                        d, f = XA + 8 * tt + 4 * u, XF + ((2 * z + tt) * 8 + hk) * 4
                        w = A_W1 + (((2 if isV else 1) * 2 + u) * 4 + (hk >> 1)) * 8 + 4 * (hk & 1)
                        c = "0" if hk == 0 else f"v[{d}:{d+3}]"
                        if isV: a(f"v_mfma_f32_16x16x32_bf16 v[{d}:{d+3}], v[{f}:{f+3}], a[{w}:{w+3}], {c}")
                        else: a(f"v_mfma_f32_16x16x32_bf16 v[{d}:{d+3}], a[{w}:{w+3}], v[{f}:{f+3}], {c}")
            a("s_barrier")
            a.nops(8)
            for i in range(4):
                a(f"ds_write_b128 v57, v[{XA+4*i}:{XA+4*i+3}] offset:{1024*i}")
            a("s_waitcnt lgkmcnt(0)\ns_barrier")
            for w in range(4):
                a(f"ds_read_b128 v[{XA+16+4*w}:{XA+16+4*w+3}], v{59 if isV else 58} offset:{4096*w}")
            a("s_waitcnt lgkmcnt(0)")
            b = XA + 16
            for i in (0, 2):
                a(f"v_pk_add_f32 v[{b+i}:{b+i+1}], v[{b+i}:{b+i+1}], v[{b+4+i}:{b+4+i+1}]")
                a(f"v_pk_add_f32 v[{b+8+i}:{b+8+i+1}], v[{b+8+i}:{b+8+i+1}], v[{b+12+i}:{b+12+i+1}]")
            for i in (0, 2):
                a(f"v_pk_add_f32 v[{b+i}:{b+i+1}], v[{b+i}:{b+i+1}], v[{b+8+i}:{b+8+i+1}]")
            a(f"v_cvt_pk_bf16_f32 v{b+4}, v{b}, v{b+1}\nv_cvt_pk_bf16_f32 v{b+5}, v{b+2}, v{b+3}")
            a(f"ds_write_b64 v60, v[{b+4}:{b+5}] offset:{4096*z + (2048 if isV else 0)}")

    def wtouch(n):
        c, p = PH[n]
        srd = (S_WQ, S_WK, S_WV, S_WO)[c]
        for i in range(2):
            a(f"s_mov_b32 s{S_T1}, {i * (32768 if c < 3 else 8192)}")
            a(f"buffer_load_dword v50, v{48 if c < 3 else 49}, s[{srd}:{srd+3}], s{S_T1} offen")
    if WT == 1:
        wtouch(0); wtouch(1); wdma(0); wtouch(2); wdma(1); wtouch(3)
    elif WT == 2:
        wtouch(0); wtouch(1); wtouch(2); wtouch(3); wdma(0); wdma(1)
    else:
        wdma(0); wdma(1)
    a(f"""
    s_mov_b32 s{S_MN8}, 0x00ff00ff
    s_mov_b32 s{S_MN8+1}, 0x00ff00ff
    s_mov_b32 s{S_MKM}, 0xff00ff00
    s_mov_b32 s{S_MKM+1}, 0xff00ff00
    s_mov_b32 s{S_MMEM}, 0
    s_mov_b32 s{S_MMEM+1}, 0x00ff00ff
    s_mov_b32 s{S_C}, 0x3e0293ee
    v_mov_b32 v{V_NEG}, 0xff800000
    v_mov_b32 v{V_IDX}, 0x4444
    v_mov_b32 v{V_T0}, 0xeeee
    v_cndmask_b32 v{V_IDX}, v{V_IDX}, v{V_T0}, s[{S_MKM}:{S_MKM+1}]
    v_mov_b32 v{V_POI}, -1
    v_mov_b32 v{V_POI+1}, -1
    v_mov_b32 v{V_POI+2}, -1
    v_mov_b32 v{V_POI+3}, -1
    s_mul_i32 s{S_T0}, s{S_WAVE}, {4096 + WPAD}
    v_add_u32 v{V_OMEM}, s{S_T0}, v{V_LL}
    v_and_b32 v{V_T0}, 7, v{V_L}
    v_lshlrev_b32 v{V_OM0}, 11, v{V_T0}
    v_lshrrev_b32 v{V_T1}, 3, v{V_L}
    v_lshl_add_u32 v{V_OM0}, v{V_T1}, 4, v{V_OM0}
    s_lshl_b32 s{S_T0}, s{S_WAVE}, 9
    v_add_u32 v{V_OM0}, s{S_T0}, v{V_OM0}
    s_lshl_b32 s{S_T0}, s{S_T}, 9
    s_lshr_b32 s{S_T1}, s{S_T}, 3
    s_mul_i32 s{S_T1}, s{S_T1}, {WPAD}
    s_add_u32 s{S_T0}, s{S_T0}, s{S_T1}
    v_lshlrev_b32 v{V_OPUB}, 3, v{V_L}
    v_add_u32 v{V_OPUB}, s{S_T0}, v{V_OPUB}
    ; o publish: 16384 + t*512 + g*128 + (m&7)*16
    v_and_b32 v{V_T0}, 7, v{V_M}
    v_lshlrev_b32 v{V_OOP}, 7, v{V_G}
    v_lshl_add_u32 v{V_OOP}, v{V_T0}, 4, v{V_OOP}
    v_add_u32 v{V_OKV}, 0, v{V_OOP}              ; g*128 + (m&7)*16 (k_m publish)
    s_add_u32 s{S_T0}, s{S_T0}, {OXO}
    v_add_u32 v{V_OOP}, s{S_T0}, v{V_OOP}
    v_and_b32 v{V_T1}, 1, v{V_G}
    v_lshlrev_b32 v{V_OSCM}, 7, v{V_T1}
    v_lshl_add_u32 v{V_OSCM}, v{V_T0}, 4, v{V_OSCM}
    v_add_u32 v{V_OSCM}, 1024, v{V_OSCM}
    ; partner score offsets: 32768 + (t ^ p)*2048, own in S_P+3 (s47 later); kept relative to slot base
    """)
    for p in range(1, 4):
        a(f"""
        s_xor_b32 s{S_P+p-1}, s{S_T}, {p}
        s_mul_i32 s{S_P+p-1}, s{S_P+p-1}, {SCS}
        s_add_u32 s{S_P+p-1}, s{S_P+p-1}, {SCO}
        """)
    a(f"""
    ; LDS: q/k partial write: w*2304 + (4*(g&1))*144 + ((g>>1)*16 + m)*4
    v_and_b32 v{V_T0}, 1, v{V_G}
    v_mul_u32_u24 v{V_LWQ}, 576, v{V_T0}
    v_lshrrev_b32 v{V_T1}, 1, v{V_G}
    v_lshl_add_u32 v{V_T1}, v{V_T1}, 4, v{V_M}
    v_lshl_add_u32 v{V_LWQ}, v{V_T1}, 2, v{V_LWQ}
    s_mul_i32 s{S_T0}, s{S_WAVE}, 1152
    s_add_u32 s{S_T0}, s{S_T0}, {L_OP}
    v_add_u32 v{V_LWO}, s{S_T0}, v{V_LWQ}
    s_mul_i32 s{S_T0}, s{S_WAVE}, 2304
    v_add_u32 v{V_LWQ}, s{S_T0}, v{V_LWQ}
    v_add_u32 v{V_LWK}, 1152, v{V_LWQ}
    ; R read: m*144 + g*32
    v_mul_u32_u24 v{V_LRR}, 144, v{V_M}
    v_lshl_add_u32 v{V_LRR}, v{V_G}, 5, v{V_LRR}
    ; O partial read: L_OP + ((l>>1)&7)*144 + (2*(l>>4) + (l&1))*16
    v_bfe_u32 v{V_T0}, v{V_L}, 1, 3
    v_mul_u32_u24 v{V_LRO}, 144, v{V_T0}
    v_lshl_add_u32 v{V_LRO}, v{V_G}, 5, v{V_LRO}
    v_and_b32 v{V_T0}, 1, v{V_L}
    v_lshl_add_u32 v{V_LRO}, v{V_T0}, 4, v{V_LRO}
    v_add_u32 v{V_LRO}, {L_OP}, v{V_LRO}
    ; v partial write: L_VP + w*1024 + lane*16 ; read (tile u at +512u): L_VP + (l&31)*16
    s_lshl_b32 s{S_T0}, s{S_WAVE}, 10
    s_add_u32 s{S_T0}, s{S_T0}, {L_VP}
    v_add_u32 v{V_LVW}, s{S_T0}, v{V_LL}
    v_and_b32 v{V_T0}, 31, v{V_L}
    v_lshlrev_b32 v{V_LVR}, 3, v{V_T0}
    v_add_u32 v{V_LVR}, {L_VM}, v{V_LVR}
    v_lshrrev_b32 v{V_T0}, 2, v{V_M}             ; r
    v_and_b32 v42, 1, v{V_T0}                    ; r&1
    v_lshrrev_b32 v43, 1, v{V_T0}                ; r>>1
    v_lshrrev_b32 v44, 1, v{V_G}                 ; g>>1
    v_and_b32 v45, 1, v{V_G}                     ; g&1
    v_lshl_add_u32 v46, v44, 4, v42
    v_lshl_add_u32 v46, v45, 2, v46
    v_lshl_add_u32 v46, v43, 3, v46              ; W1 row
    v_lshl_add_u32 v47, v44, 3, v42
    v_lshl_add_u32 v47, v45, 4, v47
    v_lshl_add_u32 v47, v43, 2, v47
    v_and_b32 v{V_T1}, 3, v{V_M}
    v_lshlrev_b32 v{V_T1}, 3, v{V_T1}
    v_lshl_add_u32 v46, v46, {6 + FULL}, v{V_T1}
    v_lshl_add_u32 v47, v47, {6 + FULL}, v{V_T1}
    s_and_b32 s{S_T0}, s{S_T}, {FULL}
    s_lshl_b32 s{S_T0}, s{S_T0}, 6
    s_add_u32 s{S_T0}, s{S_T0}, s47
    v_add_u32 v46, s{S_T0}, v46
    v_add_u32 v47, s{S_T0}, v47
    """)

    def wtr(n):
        c, p = PH[n]
        nk = 4 >> FULL
        for u in range(2):
            for k in range(nk * p, nk * p + nk):
                d = (A_W1 + ((c * 2 + u) * 4 + k) * 8) if c < 3 else (A_WO + (u * 4 + k) * 8)
                for Pp in range(4):
                    off = (n & 1) * 16384 + ((64 * (k - nk * p) + 32 * (Pp >> 1) + 2 * (Pp & 1)) << (6 + FULL)) + 32 * u
                    a(f"ds_read_b64_tr_b16 a[{d+2*Pp}:{d+2*Pp+1}], v{46 if c < 3 else 47} offset:{off}")
                if k & 1:
                    a("s_waitcnt lgkmcnt(0)")
    for n in range(len(PH)):
        a(f"s_waitcnt vmcnt({(16 + E('HELP', 1) + ([4, 2, 0][n] if WT == 1 else 0)) if n + 1 < len(PH) else 0})")
        wtr(n)
        if n + 2 < len(PH): wdma(n + 2)
        if NSELF and n < 2: selfproj(n == 1)
        if n == len(PH) - 3 and E("IW", 2):
            a("s_mov_b64 exec, 0")
            for w in range(3):
                a(f"s_cmp_eq_u32 s{S_WAVE}, {w}\ns_cbranch_scc1 {name}_iw{w}")
            a(f"s_branch {name}_iw3")
            a.label(f"{name}_iwd")
            a("s_mov_b64 exec, -1")
        if n == len(PH) - 2:
            sync_issue(a, 246)
            for i in range(4):
                a(f"buffer_load_dwordx4 v[{64+4*i}:{67+4*i}], v{V_OM0}, s[{S_M0}:{S_M0+3}], 0 offen offset:{128*i}")
    for i in range(16):
        a(f"v_mov_b32 v{MA+i}, v{64+i}")
    for i in range(24):
        a(f"v_mov_b32 v{AQ+i}, 0")
    a.nops(2)
    for i in range(4):
        for c in range(4):
            w = A_W1 + (c * 4 + i) * 8
            a(f"v_smfmac_f32_16x16x64_bf16 v[{AQ+4*c}:{AQ+4*c+3}], v[{MA+4*i}:{MA+4*i+3}], a[{w}:{w+7}], v{V_IDX}")
    sync(246, True)
    if TAG: a(f"""
    ; cross exchange: WS_H + slot*256K + src*64K + (t>>3)*16K + par*8K + (t&7)*1K
    s_lshr_b32 s{S_T0}, s{S_T}, {3 + E("XC", 1)}
    s_lshl_b32 s{S_T0}, s{S_T0}, 14
    s_lshl_b32 s{S_T1}, s98, 13
    s_add_u32 s{S_T0}, s{S_T0}, s{S_T1}
    s_and_b32 s{S_T1}, s{S_T}, {(8 << E("XC", 1)) - 1}
    s_lshl_b32 s{S_T1}, s{S_T1}, {10 - E("XC", 1)}
    s_add_u32 s{S_T0}, s{S_T0}, s{S_T1}
    s_lshl_b32 s{S_T1}, s{S_X}, 16
    s_add_u32 s{S_T0}, s{S_T0}, s{S_T1}
    s_add_u32 s{S_T0}, s{S_T0}, {WS_H}
    v_lshrrev_b32 v{V_OXW}, {E("B16", 1)}, v{V_LL}
    v_add_u32 v{V_OXW}, s{S_T0}, v{V_OXW}
    v_xor_b32 v25, 0x10000, v{V_OXW}
    v_xor_b32 v26, 0x20000, v{V_OXW}
    v_xor_b32 v27, 0x30000, v{V_OXW}
    v_add_u32 v25, {(WS_XU - WS_H) * E("COPY3", 0)}, v25
    v_add_u32 v26, {(WS_XU - WS_H + 4 * MB) * E("COPY3", 0)}, v26
    v_add_u32 v27, {(WS_XU - WS_H + 8 * MB) * E("COPY3", 0)}, v27
    """)
    else: a(f"""
    s_lshr_b32 s{S_T0}, s{S_T}, 2
    s_xor_b32 s{S_T0}, s{S_T0}, s98
    s_and_b32 s{S_T0}, s{S_T0}, 1
    s_lshl_b32 s{S_T0}, s{S_T0}, 13
    s_lshl_b32 s{S_T1}, s{S_T}, 19
    s_add_u32 s{S_T0}, s{S_T0}, s{S_T1}
    s_lshl_b32 s{S_T1}, s{S_X}, 10
    s_add_u32 s{S_T0}, s{S_T0}, s{S_T1}
    s_add_u32 s{S_T0}, s{S_T0}, {WS_XU}
    v_add_u32 v{V_OXW}, s{S_T0}, v{V_LL}
    v_xor_b32 v25, 1024, v{V_OXW}
    v_xor_b32 v26, 2048, v{V_OXW}
    v_xor_b32 v27, 3072, v{V_OXW}
    """)
    a(f"""
    s_lshl_b32 s{S_T0}, s{S_H}, 2
    s_add_u32 s{S_T0}, s{S_T0}, s{S_J}
    s_mov_b32 s{S_CU}, s{S_T0}
    s_lshr_b32 s{S_T1}, s{S_T0}, 3
    s_xor_b32 s{S_T1}, s{S_T1}, s98
    {["", f"s_xor_b32 s{S_T1}, s{S_T1}, 1", f"s_xor_b32 s{S_T1}, s{S_T1}, s{S_T0}"][E("KVPAR", 0)]}
    s_and_b32 s{S_T1}, s{S_T1}, 1
    s_lshl_b32 s{S_T1}, s{S_T1}, 13
    s_lshl_b32 s76, s{S_T0}, 18
    s_add_u32 s76, s76, s{S_T1}
    s_mov_b32 s{S_KXB}, s76
    v_add_u32 v{TMP+8}, s76, v{V_LL}
    v_add_u32 v{TMP+9}, {WS_VT}, v{TMP+8}
    s_lshr_b32 s{S_T1}, s{S_T0}, 4
    s_xor_b32 s{S_T1}, s{S_T1}, s98
    s_and_b32 s{S_T1}, s{S_T1}, 1
    s_lshl_b32 s{S_T1}, s{S_T1}, 13
    s_lshl_b32 s{S_KVB}, s{S_T0}, 17
    s_add_u32 s{S_KVB}, s{S_KVB}, s{S_T1}
    s_add_u32 s{S_KVB}, s{S_KVB}, {WS_KVM}
    ; flags
    s_xor_b32 s{S_T1}, s98, 1
    s_lshl_b32 s{S_T1}, s{S_T1}, 13
    s_lshl_b32 s{S_T0}, s{S_H}, 7
    s_add_u32 s{S_T0}, s{S_T0}, s{S_T1}
    s_add_u32 s{S_T0}, s{S_T0}, {WS_F}
    v_and_b32 v{V_T0}, 1, v{V_L}
    v_lshlrev_b32 v{V_OFL}, 12, v{V_T0}
    v_add_u32 v{V_OFL}, s{S_T0}, v{V_OFL}
    s_lshl_b32 s{S_T1}, s{S_J}, 2
    v_add_u32 v{V_OFL}, s{S_T1}, v{V_OFL}
    s_xor_b32 s{S_FLB}, s98, 1
    s_lshl_b32 s{S_FLB}, s{S_FLB}, 13
    s_lshr_b32 s{S_T1}, s{S_CU}, 6
    s_lshl_b32 s{S_T1}, s{S_T1}, 14
    s_add_u32 s{S_FLB}, s{S_FLB}, s{S_T1}
    s_and_b32 s{S_T1}, s{S_CU}, 63
    s_lshl_b32 s{S_T1}, s{S_T1}, 7
    s_add_u32 s{S_FLB}, s{S_FLB}, s{S_T1}
    s_add_u32 s{S_FLB}, s{S_FLB}, {WS_F + F_KVM}
    v_mov_b32 v{ONE}, 0x3f803f80
    v_mov_b32 v{ONE+1}, 0x3f803f80
    v_mov_b32 v{ONE+2}, 0x3f803f80
    v_mov_b32 v{ONE+3}, 0x3f803f80
    v_mov_b32 v{ZER}, 0
    s_mov_b32 s{S_STEP}, 0
    s_mov_b32 s{S_KVN}, 0
    s_mov_b32 s{S_WARM}, 0
    s_mov_b32 s88, 0
    s_mov_b32 s{S_XBR}, {L_XB}
    s_mov_b32 s{S_XBW}, {L_XB + 4096 * NSELF}
    """)
    V_PK, V_PV = TMP + 8, TMP + 9
    pfn = [0]

    def prefetch(seg_sreg, part=3, chk=True, skip=None):
        i = pfn[0]; pfn[0] += 1
        if flags and chk:
            a(f"""
            s_cmp_gt_i32 s{S_KVN}, s{seg_sreg}
            s_cbranch_scc1 {name}_pf{i}ok
{name}_pf{i}w:
            """)
            wdog()
            a(f"""
            {f'''v_mov_b32 v{V_T0}, 0
            s_mov_b64 exec, 3
            buffer_atomic_add v{V_T0}, v{V_OFL}, {SRD}, 0 offen sc0 sc1
            s_mov_b64 exec, -1''' if E("KAP", 1) else f"buffer_load_dword v{V_T0}, v{V_OFL}, {SRD}, 0 offen sc1"}
            s_waitcnt vmcnt(0)
            v_readlane_b32 s{S_KVN}, v{V_T0}, 0
            v_readlane_b32 s{S_T0}, v{V_T0}, 1
            s_nop 1
            s_min_i32 s{S_KVN}, s{S_KVN}, s{S_T0}
            s_cmp_gt_i32 s{S_KVN}, s{seg_sreg}
            s_cbranch_scc0 {skip or f"{name}_pf{i}w"}
{name}_pf{i}ok:
            """)
        if part is None: return
        a(f"""
        s_add_u32 s77, s{seg_sreg}, s{S_CU}
        s_bfe_u32 s{S_T0}, s77, 0x40002
        s_lshl_b32 s{S_T0}, s{S_T0}, 14
        s_and_b32 s77, s77, 3
        s_lshl_b32 s77, s77, 11
        s_add_u32 s{S_T0}, s{S_T0}, s77
        """)
        if part <= 0:
            a(f"s_add_u32 s{S_T0}, s{S_T0}, s{S_KXB}")
            if part < 0: a(f"s_add_u32 s{S_T0}, s{S_T0}, {WS_VT}")
            for l in range(16):
                a(f"s_buffer_load_dword s78, {SRD}, s{S_T0} offset:{128*l}")
            return
        for f in range(4):
            if not (part >> (f >> 1)) & 1: continue
            a(f"s_add_u32 m0, s{S_XBW}, {2048 * (f >> 1)}")
            a("s_nop 0")
            a(f"buffer_load_dwordx4 v{V_PK if f < 2 else V_PV}, {SRD}, s{S_T0} offen offset:{1024 * (f & 1)} sc1 lds")
        if part & 2: a(f"""
        s_add_u32 s{S_XBW}, s{S_XBW}, 4096
        s_cmp_eq_u32 s{S_XBW}, {L_XB + 3 * 4096}
        s_cselect_b32 s{S_XBW}, {L_XB}, s{S_XBW}
        """)

    def flag_store(val_sreg):
        a(f"""
        v_mov_b32 v{V_T1}, s{val_sreg}
        s_mov_b64 exec, 1
        buffer_store_dword v{V_T1}, v{ZER}, {SRD}, s{S_FLB} offen sc1
        s_mov_b64 exec, -1
        """)

    def zero(base, n):
        for i in range(n):
            a(f"v_mov_b32 v{base+i}, 0")

    if ts and E("BPROF", 0):
        ts(2)
        a(f"v_and_b32 v{V_L}, 63, v0\nv_lshrrev_b32 v{V_G}, 4, v{V_L}")
    a(f"s_cmp_eq_u32 s{S_WAVE}, 3\ns_cbranch_scc0 {name}_pfi")
    a(f"s_mov_b32 s76, 0")
    if not NSELF: prefetch(76)
    a("s_waitcnt vmcnt(0) lgkmcnt(0)")
    a.label(f"{name}_pfi")
    zero(PL, 24)
    zero(249, 1)
    a("s_barrier")
    if ts and E("BPROF", 0):
        ts(3)
        a(f"v_and_b32 v{V_L}, 63, v0\nv_lshrrev_b32 v{V_G}, 4, v{V_L}")
    stamp(0)

    def smf(d, areg, w):
        a(f"v_smfmac_f32_16x16x64_bf16 v[{d}:{d+3}], v[{areg}:{areg+3}], a[{w}:{w+7}], v{V_IDX}")

    def stream_poll(tag, base, soff, off0, two, work, first=None):
        def ld(i):
            a(f"buffer_load_dwordx4 v[{base+4*i}:{base+4*i+3}], v{V_OMEM}, {SRD}, s{soff} offen offset:{1024*i} sc1")
        G = E("GAP", 10)
        for i in range(4):
            ld(i)
            if i == 0 and first:
                first()
                if G > 5: a.nops(G - 5)
            elif i < 3 and G:
                a.nops(G)
        if E("RR", 1):
            def lab(S, i): return f"{name}_{tag}_{S}_{i}"
            def nxt(S, i):
                for d in range(1, 5):
                    if S >> ((i + d) & 3) & 1: return (i + d) & 3
            def chk(i):
                if two:
                    a(f"v_max_u32 v{V_T0}, v{base+4*i}, v{base+4*i+2}")
                    a(f"v_cmp_eq_u32 vcc, -1, v{V_T0}")
                else:
                    a(f"v_cmp_eq_u32 vcc, -1, v{base+4*i}")
            def block(S, i, fall):
                a.label(lab(S, i))
                a(f"s_waitcnt vmcnt({bin(S).count('1') - 1})")
                chk(i)
                a(f"s_cbranch_vccnz {lab(S, i)}f")
                work(i)
                if not fall:
                    S2 = S & ~(1 << i)
                    a(f"s_branch {lab(S2, nxt(S2, i)) if S2 else f'{name}_{tag}_d'}")
            fast = [(15, 0), (14, 1), (12, 2), (8, 3)]
            if E("HOIST", 1) and two:
                def cap(fn, *ar):
                    sv = a.lines; a.lines = []; fn(*ar); o = a.lines; a.lines = sv; return o
                a("s_waitcnt vmcnt(3)")
                chk(0)
                for n, (S, i) in enumerate(fast):
                    a(f"s_cbranch_vccnz {lab(S, i)}f")
                    wk = cap(work, i)
                    a.lines += wk[:3]
                    if i < 3:
                        a(f"s_waitcnt vmcnt({2 - i})")
                        chk(i + 1)
                    a.lines += wk[3:]
                fast = []
            for S, i in fast:
                block(S, i, True)
            a.label(f"{name}_{tag}_d")
            def stubs():
                for S in range(1, 16):
                    for i in range(4):
                        if not S >> i & 1: continue
                        if E("ALR", 5): a(f".p2align {E('ALR', 5)}")
                        a.label(lab(S, i) + "f")
                        if E("MSK", 1): a("s_mov_b64 exec, vcc")
                        ld(i)
                        if E("MSK", 1): a("s_mov_b64 exec, -1")
                        if bin(S).count('1') == 1 or i == nxt(S, 3): wdog()
                        a(f"s_branch {lab(S, nxt(S, i))}")
                        if (S, i) not in fast:
                            if E("ALR", 5): a(f".p2align {E('ALR', 5)}")
                            block(S, i, False)
            return stubs
        for i in range(4):
            a.label(f"{name}_{tag}{i}")
            a(f"s_waitcnt vmcnt({3-i})")
            if two:
                a(f"v_max_u32 v{V_T0}, v{base+4*i}, v{base+4*i+2}")
                a(f"v_cmp_eq_u32 vcc, -1, v{V_T0}")
            else:
                a(f"v_cmp_eq_u32 vcc, -1, v{base+4*i}")
            a(f"s_cbranch_vccnz {name}_{tag}r{i}")
            a.label(f"{name}_{tag}k{i}")
            work(i)
        def stubs():
            for i in range(4):
                a.label(f"{name}_{tag}r{i}")
                if prof: a(f"s_add_u32 s{62 if tag == 'pa' else 63}, s{62 if tag == 'pa' else 63}, 1")
                wdog()
                if not E("IMM", 1): a("s_waitcnt vmcnt(0)")
                for k in range(i, 4):
                    ld(k)
                a(f"s_branch {name}_{tag}{i}")
        return stubs

    def fold(t0, t1):
        for i in range(4):
            a(f"v_permlane32_swap_b32 v{t0+i}, v{t1+i}")
        a(f"v_pk_add_f32 v[{t0}:{t0+1}], v[{t0}:{t0+1}], v[{t1}:{t1+1}]")
        a(f"v_pk_add_f32 v[{t0+2}:{t0+3}], v[{t0+2}:{t0+3}], v[{t1+2}:{t1+3}]")

    def vwork(lo, hi):
        for n in range(lo, hi):
            i, u = n >> 1, n & 1
            smf(AV + 4 * u, MA + 4 * i, A_W1 + ((4 + u) * 4 + (i & 3)) * 8)

    def vfin():
        fold(AV, AV + 4)
        a(f"ds_write_b128 v{V_LVW}, v[{AV}:{AV+3}]")

    def rread():
        for w in range(4):
            for hh in range(2):
                d = RP + 8 * w + 4 * hh
                a(f"ds_read_b128 v[{d}:{d+3}], v{V_LRR} offset:{L_QK + 2304*w + 16*hh}")

    def rsum(dst):
        a("s_waitcnt lgkmcnt(4)")
        for i in range(0, 8, 2):
            a(f"v_pk_add_f32 v[{RP+i}:{RP+i+1}], v[{RP+i}:{RP+i+1}], v[{RP+8+i}:{RP+8+i+1}]")
        a("s_waitcnt lgkmcnt(0)")
        for i in range(0, 8, 2):
            a(f"v_pk_add_f32 v[{RP+16+i}:{RP+16+i+1}], v[{RP+16+i}:{RP+16+i+1}], v[{RP+24+i}:{RP+24+i+1}]")
        for i in range(0, 8, 2):
            a(f"v_pk_add_f32 v[{RP+i}:{RP+i+1}], v[{RP+i}:{RP+i+1}], v[{RP+16+i}:{RP+16+i+1}]")
        for i in range(4):
            a(f"v_cvt_pk_bf16_f32 v{dst+i}, v{RP+2*i}, v{RP+2*i+1}")

    S_FM = S_TAG
    def xuoff(dst, step):
        a(f"""
        s_add_u32 s{S_T0}, s{step}, s{S_T}
        s_and_b32 s77, s{S_T0}, 14
        s_and_b32 s{S_T0}, s{S_T0}, 1
        s_lshl_b32 s{S_T0}, s{S_T0}, 12
        s_and_b32 s{dst}, s{step}, 48
        s_or_b32 s{dst}, s{dst}, s77
        s_lshl_b32 s{dst}, s{dst}, 13
        s_add_u32 s{dst}, s{dst}, s{S_T0}
        """)

    def heads():
        a(f"""
        s_and_b32 s{S_T1}, s{S_STEP}, 1
        s_lshl_b32 s{S_SL}, s{S_T1}, 17
        s_lshl_b32 s{S_T0}, s{S_X}, 18
        s_add_u32 s{S_SL}, s{S_SL}, s{S_T0}
        s_add_u32 s{S_SL}, s{S_SL}, {WS_I}
        s_xor_b32 s{S_SLO}, s{S_SL}, {1 << 17}
        """)
        if TAG: a(f"""
        s_lshl_b32 s{S_XS}, s{S_T1}, 18
        s_bfe_u32 s{S_TAG}, s{S_STEP}, 0x10001
        """)
        else: xuoff(S_XS, S_STEP)
    heads()
    if E("PRIO", 0):
        a(f"s_cmp_eq_u32 s{S_WAVE}, 0\ns_cbranch_scc0 {name}_np\ns_setprio 3")
        a.label(f"{name}_np")
    a(f"s_branch {name}_first")

    def wa(i):
        for c in range(4):
            smf(AQ + 4 * c, MA + 4 * i, A_W1 + (c * 4 + (i & 3)) * 8)

    def xread():
        a(f"v_add_u32 v{V_T1}, s{S_XBR}, v{V_LL}")
        for f in range(4):
            a(f"ds_read_b128 v[{KX+4*f}:{KX+4*f+3}], v{V_T1} offset:{1024*f}")

    if E("AL", 2) >= 0:
        a(".p2align 6")
        for i in range(E("AL", 2)): a("s_nop 0")
    a.label(f"{name}_loop")
    stubs_a = stream_poll("pa", MA, S_SL, 0, True, wa, first=xread)
    a.label(f"{name}_adone")
    stamp(1)
    a.nops(6)
    fold(AQ, AQ + 4)
    a(f"ds_write2_b32 v{V_LWQ}, v{AQ}, v{AQ+1} offset0:0 offset1:36")
    a(f"ds_write2_b32 v{V_LWQ}, v{AQ+2}, v{AQ+3} offset0:72 offset1:108")
    fold(AQ + 8, AQ + 12)
    a(f"ds_write2_b32 v{V_LWK}, v{AQ+8}, v{AQ+9} offset0:0 offset1:36")
    a(f"ds_write2_b32 v{V_LWK}, v{AQ+10}, v{AQ+11} offset0:72 offset1:108")
    VE, VE2 = E("VE", 4), 8
    vwork(0, VE)
    a(f"""
    s_waitcnt lgkmcnt(0)
    s_barrier
    s_cmp_lg_u32 s{S_WAVE}, 0
    s_cbranch_scc1 {name}_side
    """)
    stamp(2)
    rread()
    vwork(VE, VE2)
    a(f"""
    s_mul_i32 s{S_T0}, s{S_T}, {SCS}
    s_add_u32 s{S_T0}, s{S_T0}, s{S_SL}
    s_add_u32 s{S_T0}, s{S_T0}, {SCO}
    s_add_u32 s76, s{S_P}, s{S_SL}
    s_add_u32 s77, s{S_P+1}, s{S_SL}
    s_add_u32 s78, s{S_P+2}, s{S_SL}
    """)
    rsum(R)
    a.nops(2)
    a(f"v_mfma_f32_16x16x32_bf16 v[{S+4}:{S+7}], v[{KX+4}:{KX+7}], v[{R}:{R+3}], 0")
    a(f"v_mfma_f32_16x16x32_bf16 v[{S}:{S+3}], v[{KX}:{KX+3}], v[{R}:{R+3}], 0")
    a(f"v_mfma_f32_16x16x32_bf16 v[{S+8}:{S+11}], v[{R}:{R+3}], v[{R}:{R+3}], 0")
    a(f"s_cmp_eq_u32 s{S_STEP}, {nsteps-1}")
    a(f"s_cbranch_scc1 {name}_w0last")
    if E("VF", 0) == 1: vfin()
    else: a.nops(5)
    for i in range(4):
        a(f"v_mov_b32_dpp v{S+i}, v{S+4+i} row_shr:8 row_mask:0xf bank_mask:0xc")
    a(f"""
    v_min_u32 v{S+8}, -2, v{S+8}
    v_min_u32 v{S}, -2, v{S}
    s_mov_b64 exec, s[{S_MMEM}:{S_MMEM+1}]
    buffer_store_dwordx4 v[{S+8}:{S+11}], v{V_OSCM}, {SRD}, s{S_T0} offen {IS}
    s_mov_b64 exec, -1
    buffer_store_dwordx4 v[{S}:{S+3}], v{V_LL}, {SRD}, s{S_T0} offen {IS}
    """)
    stamp(3)

    def p2ld():
        if E("P2K", 1):
            a(f"s_mov_b64 exec, s[{S_MMEM}:{S_MMEM+1}]")
            for p, so in enumerate((76, 77, 78)):
                a(f"buffer_load_dwordx4 v[{PL+8*p+4}:{PL+8*p+7}], v{V_OSCM}, {SRD}, s{so} offen sc1")
            a("s_mov_b64 exec, -1")
            for p, so in enumerate((76, 77, 78)):
                a(f"buffer_load_dwordx4 v[{PL+8*p}:{PL+8*p+3}], v{V_LL}, {SRD}, s{so} offen sc1")
            return
        for p, so in enumerate((76, 77, 78)):
            a(f"buffer_load_dwordx4 v[{PL+8*p}:{PL+8*p+3}], v{V_LL}, {SRD}, s{so} offen sc1")
            a(f"buffer_load_dwordx4 v[{PL+8*p+4}:{PL+8*p+7}], v{V_OSCM}, {SRD}, s{so} offen sc1")
    P2M = E("P2M", 0)
    if E("VF", 0) == 0: vfin()
    def p2fill():
        zero(AO, 8)
        for i in range(4):
            a(f"v_cndmask_b32 v{S+4+i}, v{V_NEG}, v{S+8+i}, s[{S_MMEM}:{S_MMEM+1}]")
    def p2scale():
        for i in range(0, 8, 2):
            a(f"v_pk_mul_f32 v[{S+i}:{S+i+1}], v[{S+i}:{S+i+1}], s[{S_C}:{S_C+1}] op_sel_hi:[1,0]")
    assert P2M == 0
    if P2M == 0:
        a("s_waitcnt lgkmcnt(0)\ns_barrier")
        p2fill()
        p2ld()
        p2scale()
        a(f"s_lshl_b32 s89, s{S_TAG}, 31\ns_or_b32 s89, s89, 0x3b39999a")
        a.nops(18)
        p2ld()
    elif P2M == 1:
        if E("W2A", 0): a.nops(E("W2A", 0))
        p2ld()
        a("s_waitcnt lgkmcnt(0)\ns_barrier")
        p2fill()
        if E("W2", 0): a.nops(E("W2", 0))
        p2ld()
    elif P2M == 2:
        p2fill()
        p2ld()
        a("s_waitcnt lgkmcnt(0)\ns_barrier")
        if E("W2", 0): a.nops(E("W2", 0))
        p2ld()
    else:
        if E("W2A", 0): a.nops(E("W2A", 0))
        p2ld()
        a("s_waitcnt lgkmcnt(0)\ns_barrier")
        p2fill()
        for r in range(P2M - 1):
            p2ld()
            if r + 2 < P2M: a.nops(E("W2", 16))
    assert TAG
    stamp(4)
    a.label(f"{name}_p2")
    a(f"s_waitcnt vmcnt({6 * (max(P2M, 2) - 1)})")
    a(f"v_max3_u32 v{V_T0}, v{PL}, v{PL+4}, v{PL+8}")
    a(f"v_max3_u32 v{V_T1}, v{PL+12}, v{PL+16}, v{PL+20}")
    a(f"v_max_u32 v{V_T0}, v{V_T0}, v{V_T1}")
    a(f"v_cmp_eq_u32 vcc, -1, v{V_T0}")
    a(f"s_cbranch_vccnz {name}_p2r")
    stamp(5)
    a.nops(E("RSLOW", 0))
    BP = E("BP", 1)
    def b2b():
        a("s_barrier")
        a(f"ds_read2_b64 v[{VM}:{VM+3}], v{V_LVR} offset0:0 offset1:32")
    if BP == 0: b2b()
    for o in (4, 6, 0, 2):
        a(f"v_pk_add_f32 v[{RP+o}:{RP+o+1}], v[{PL+8+o}:{PL+8+o+1}], v[{PL+16+o}:{PL+16+o+1}]")
    for o in (4, 6, 0, 2):
        a(f"v_pk_add_f32 v[{RP+o}:{RP+o+1}], v[{RP+o}:{RP+o+1}], v[{PL+o}:{PL+o+1}]")
    for o in (4, 6, 0, 2):
        a(f"v_pk_fma_f32 v[{S+o}:{S+o+1}], v[{RP+o}:{RP+o+1}], s[{S_C}:{S_C+1}], v[{S+o}:{S+o+1}] op_sel_hi:[1,0,1]")
    MX, TM, SM = TMP, TMP + 1, TMP + 2
    a(f"""
    v_max3_f32 v{MX}, v{S}, v{S+1}, v{S+2}
    v_max3_f32 v{TM}, v{S+4}, v{S+5}, v{S+6}
    v_max3_f32 v{MX}, v{MX}, v{S+3}, v{S+7}
    v_max_f32 v{SM}, v{MX}, v{TM}
    """)
    if BP == 1: b2b()
    else: a("s_nop 1")
    a(f"""
    v_max_f32_dpp v{MX}, v{SM}, v{SM} row_ror:8 row_mask:0xf bank_mask:0xf
    v_max_f32_dpp v{TM}, v{SM}, v{SM} row_ror:8 row_mask:0xf bank_mask:0xf
    s_nop 1
    v_permlane16_swap_b32 v{MX}, v{TM}
    s_nop 0
    v_max_f32 v{SM}, v{MX}, v{TM}
    v_max_f32 v{SM+1}, v{MX}, v{TM}
    """)
    if BP == 2: b2b()
    else: a("s_nop 1")
    a(f"""
    v_permlane32_swap_b32 v{SM}, v{SM+1}
    s_nop 0
    v_max_f32 v{MX}, v{SM}, v{SM+1}
    """)
    for i in (4, 6, 0, 2):
        a(f"v_pk_add_f32 v[{S+i}:{S+i+1}], v[{S+i}:{S+i+1}], v[{MX}:{MX+1}] op_sel_hi:[1,0] neg_lo:[0,1] neg_hi:[0,1]")
    for i in (4, 5, 6, 7):
        a(f"v_exp_f32 v{S+i}, v{S+i}")
    a(f"""
    v_exp_f32 v{S}, v{S}
    v_cvt_pk_bf16_f32 v{PM}, v{S+4}, v{S+5}
    v_cvt_pk_bf16_f32 v{PM+1}, v{S+6}, v{S+7}
    v_exp_f32 v{S+1}, v{S+1}
    v_exp_f32 v{S+2}, v{S+2}
    v_mfma_f32_16x16x16_bf16 v[{LS}:{LS+3}], v[{ONE}:{ONE+1}], v[{PM}:{PM+1}], 0
    v_exp_f32 v{S+3}, v{S+3}
    v_cvt_pk_bf16_f32 v{P}, v{S}, v{S+1}
    s_waitcnt lgkmcnt(0)
    v_mfma_f32_16x16x16_bf16 v[{O}:{O+3}], v[{VM}:{VM+1}], v[{PM}:{PM+1}], 0
    v_cvt_pk_bf16_f32 v{P+1}, v{S+2}, v{S+3}
    v_mfma_f32_16x16x16_bf16 v[{O+4}:{O+7}], v[{VM+2}:{VM+3}], v[{PM}:{PM+1}], 0
    v_mov_b32_dpp v{P+2}, v{P} row_ror:8 row_mask:0xf bank_mask:0xf
    v_mov_b32_dpp v{P+3}, v{P+1} row_ror:8 row_mask:0xf bank_mask:0xf
    s_nop 1
    v_mfma_f32_16x16x32_bf16 v[{LS}:{LS+3}], v[{ONE}:{ONE+3}], v[{P}:{P+3}], v[{LS}:{LS+3}]
    v_mfma_f32_16x16x32_bf16 v[{O}:{O+3}], v[{VTX}:{VTX+3}], v[{P}:{P+3}], v[{O}:{O+3}]
    v_mfma_f32_16x16x32_bf16 v[{O+4}:{O+7}], v[{VTX+4}:{VTX+7}], v[{P}:{P+3}], v[{O+4}:{O+7}]
    s_add_u32 s{S_T1}, s{S_SL}, {OXO}
    s_nop 4
    v_rcp_f32 v{SM}, v{LS}
    s_nop 0
    """)
    for i in range(0, 8, 2):
        a(f"v_pk_mul_f32 v[{O+i}:{O+i+1}], v[{O+i}:{O+i+1}], v[{SM}:{SM+1}] op_sel_hi:[1,0]")
    for i in range(4):
        a(f"v_cvt_pk_bf16_f32 v{P+i}, v{O+2*i}, v{O+2*i+1}")
    a(f"""
    v_min_u32 v{P}, -2, v{P}
    s_mov_b64 exec, s[{S_MN8}:{S_MN8+1}]
    buffer_store_dwordx4 v[{P}:{P+3}], v{V_OOP}, {SRD}, s{S_SL} offen {IS}
    s_mov_b64 exec, -1
    """)
    NB3, NB5 = E("NB3", 0), E("NB5", 0)
    if NB3:
        stamp(6)
        if E("W3", 16): a.nops(E("W3", 16))
        a.label(f"{name}_b3")
    else:
        a.label(f"{name}_b3")
        a("s_barrier")
        if E("AL3", -1) >= 0:
            a(".p2align 5")
            for i in range(E("AL3", -1)): a("s_nop 0")
        stamp(6)
        if E("W3", 16): a.nops(E("W3", 16))

    def wc(i):
        for u in range(2):
            smf(AO + 4 * u, MO + 4 * i, A_WO + (u * 4 + i) * 8)
    stubs_c = stream_poll("pc", MO, S_T1, 0, False, wc)
    stamp(7)
    a.nops(8)
    fold(AO, AO + 4)
    a(f"ds_write2_b32 v{V_LWO}, v{AO}, v{AO+1} offset0:0 offset1:36")
    a(f"ds_write2_b32 v{V_LWO}, v{AO+2}, v{AO+3} offset0:72 offset1:108")
    a("s_waitcnt lgkmcnt(0)\ns_barrier")
    a(f"s_cmp_lg_u32 s{S_WAVE}, 0\ns_cbranch_scc1 {name}_x1")
    for w in range(4):
        a(f"ds_read_b128 v[{RP+4*w}:{RP+4*w+3}], v{V_LRO} offset:{1152*w}")
    a("s_waitcnt lgkmcnt(2)")
    for i in (0, 2):
        a(f"v_pk_add_f32 v[{RP+i}:{RP+i+1}], v[{RP+i}:{RP+i+1}], v[{RP+4+i}:{RP+4+i+1}]")
    a("s_waitcnt lgkmcnt(0)")
    for i in (0, 2):
        a(f"v_pk_add_f32 v[{RP+8+i}:{RP+8+i+1}], v[{RP+8+i}:{RP+8+i+1}], v[{RP+12+i}:{RP+12+i+1}]")
    for i in (0, 2):
        a(f"v_pk_add_f32 v[{RP+i}:{RP+i+1}], v[{RP+i}:{RP+i+1}], v[{RP+8+i}:{RP+8+i+1}]")
    X4 = 48
    A4 = E("A4", 0)
    B16 = E("B16", 1)
    def p4ld():
        for p in range(3):
            if B16: a(f"buffer_load_dwordx2 v[{X4+2*p}:{X4+2*p+1}], v{25+p}, {SRD}, s{S_XS} offen sc1")
            else: a(f"buffer_load_dwordx4 v[{X4+4*p}:{X4+4*p+3}], v{25+p}, {SRD}, s{S_XS} offen sc1")
    def maxall(regs):
        regs = list(regs)
        h = len(regs) // 2
        for t, rs in ((V_T0, regs[:h]), (V_T1, regs[h:])):
            a(f"v_max3_u32 v{t}, v{rs[0]}, v{rs[1]}, v{rs[2]}")
        k = 3
        while k < h:
            for t, rs in ((V_T0, regs[:h]), (V_T1, regs[h:])):
                if k + 1 < h: a(f"v_max3_u32 v{t}, v{t}, v{rs[k]}, v{rs[k+1]}")
                else: a(f"v_max_u32 v{t}, v{t}, v{rs[k]}")
            k += 2
        a(f"v_max_u32 v{V_T0}, v{V_T0}, v{V_T1}")
        a(f"v_cmp_eq_u32 vcc, -1, v{V_T0}")
    if TAG:
        if B16:
            a(f"""
            v_fma_f32 v{P}, v{RP}, s89, v{RP}
            v_cvt_pk_bf16_f32 v{P+1}, v{RP+2}, v{RP+3}
            v_cvt_pk_bf16_f32 v{P}, v{P}, v{RP+1}
            v_and_or_b32 v{P}, v{P}, -2, s{S_TAG}
            buffer_store_dwordx2 v[{P}:{P+1}], v{V_OXW}, {SRD}, s{S_XS} offen sc1
            s_mov_b32 s77, 0x3f80
            s_mov_b32 s78, 0x3f800000
            """)
        for i in range(0 if B16 else 4):
            a(f"v_and_or_b32 v{RP+i}, v{RP+i}, -2, s{S_TAG}")
        if E("HALF", 0): a(f"s_mov_b64 exec, {hex((1 << E('HALF', 0)) - 1)}")
        if E("COPY3", 0):
            for p in range(3):
                a(f"s_add_u32 s76, s{S_XS}, {WS_XU - WS_H + p * 4 * MB}")
                a(f"buffer_store_dwordx4 v[{RP}:{RP+3}], v{V_OXW}, {SRD}, s76 offen sc1")
        elif not B16:
            a(f"buffer_store_dwordx4 v[{RP}:{RP+3}], v{V_OXW}, {SRD}, s{S_XS} offen sc1")
        stamp(8)
        a(f"s_xor_b32 s76, s{S_TAG}, 1")
        for i in (range(0, 6, 2) if B16 else range(12)):
            a(f"v_mov_b32 v{X4+i}, s76")
        if B16: a.nops(9)
        if E("HALF", 0): a("s_mov_b64 exec, -1")
        zero(AQ, 24)
        if E("HALF", 0): a(f"s_mov_b64 exec, {hex((1 << E('HALF', 0)) - 1)}")
        if E("XW", 24): a.nops(E("XW", 24))
        stamp(11)
        a(f"s_cmp_eq_u32 s{S_TAG}, 1\ns_cbranch_scc1 {name}_p4_1")
        def fin4():
            stamp(9)
            if B16:
                for p in range(3):
                    for i in range(4):
                        a(f"v_dot2_f32_bf16 v{RP+i}, v{X4+2*p+(i>>1)}, s{77+(i&1)}, v{RP+i}")
                a("s_nop 0")
            for i in (() if B16 else (0, 2)):
                a(f"v_pk_add_f32 v[{RP+i}:{RP+i+1}], v[{RP+i}:{RP+i+1}], v[{X4+i}:{X4+i+1}]")
                a(f"v_pk_add_f32 v[{RP+4+i}:{RP+4+i+1}], v[{X4+4+i}:{X4+4+i+1}], v[{X4+8+i}:{X4+8+i+1}]")
            for i in (() if B16 else (0, 2)):
                a(f"v_pk_add_f32 v[{RP+i}:{RP+i+1}], v[{RP+i}:{RP+i+1}], v[{RP+4+i}:{RP+4+i+1}]")
            a(f"""
            v_cvt_pk_bf16_f32 v{P}, v{RP}, v{RP+1}
            v_min_u32 v{P}, -2, v{P}
            v_cvt_pk_bf16_f32 v{P+1}, v{RP+2}, v{RP+3}
            buffer_store_dwordx2 v[{P}:{P+1}], v{V_OPUB}, {SRD}, s{S_SLO} offen {IS}
            """)
        R4 = E("R4", 1)
        for tg in range(2):
            if E("AL4", 6): a(f".p2align {E('AL4', 6)}")
            a.label(f"{name}_p4_{tg}")
            wdog()
            p4ld()
            a(f"s_waitcnt vmcnt({E('Q4', 12)})")
            a.nops(A4)
            bo = "0xfe" if tg == 0 else "0x80"
            if R4 > 1: a(f"s_mov_b32 s76, {R4}")
            a.label(f"{name}_p4c_{tg}")
            if R4 > 1: a(f"s_sub_u32 s76, s76, 1\ns_cbranch_scc1 {name}_p4_{tg}")
            if B16:
                a(f"v_bitop3_b32 v{V_T0}, v{X4}, v{X4+2}, v{X4+4} bitop3:{bo}")
                a(f"v_and_b32 v{V_T0}, 1, v{V_T0}")
            else:
                for t, b in ((V_T0, X4), (V_T1, X4 + 6)):
                    a(f"v_bitop3_b32 v{t}, v{b}, v{b+1}, v{b+2} bitop3:{bo}")
                for t, b in ((V_T0, X4), (V_T1, X4 + 6)):
                    a(f"v_bitop3_b32 v{t}, v{t}, v{b+3}, v{b+4} bitop3:{bo}")
                a(f"v_bitop3_b32 v{V_T0}, v{V_T0}, v{X4+5}, v{X4+11} bitop3:{bo}")
            if not B16: a(f"v_bitop3_b32 v{V_T0}, v{V_T0}, v{V_T1}, 1 bitop3:{'0xa8' if tg == 0 else '0x80'}")
            a(f"v_cmp_ne_u32 vcc, {tg}, v{V_T0}")
            a(f"s_cbranch_vccnz {name}_p4{'c' if R4 > 1 else ''}_{tg}")
            fin4()
            if tg == 0: a(f"s_branch {name}_p4d")
        a.label(f"{name}_p4d")
    if E("LT", 0):
        a(f"s_cmp_eq_u32 s{S_STEP}, 8\ns_cbranch_scc0 {name}_lt\ns_memtime s[50:51]\ns_memrealtime s[52:53]")
        a.label(f"{name}_lt")
    a.label(f"{name}_b5")
    a(f"""
    s_add_u32 s{S_STEP}, s{S_STEP}, 1
    s_add_u32 s{S_XBR}, s{S_XBR}, 4096
    s_cmp_eq_u32 s{S_XBR}, {L_XB + 3 * 4096}
    s_cselect_b32 s{S_XBR}, {L_XB}, s{S_XBR}
    s_mov_b32 s{S_T0}, s{S_SL}
    s_mov_b32 s{S_SL}, s{S_SLO}
    s_mov_b32 s{S_SLO}, s{S_T0}
    {f"s_xor_b32 s{S_XS}, s{S_XS}, {1 << 18}" if TAG else ""}
    {f"s_bfe_u32 s{S_TAG}, s{S_STEP}, 0x10001" if TAG else ""}
    {"" if NB5 else "s_barrier"}
    """)
    stamp(10)
    if E("W1", 16): a.nops(E("W1", 16))
    a(f"s_branch {name}_loop")
    a.label(f"{name}_x1")
    stamp(11)
    if not E("NOKVM", 0):
        a(f"s_cmp_eq_u32 s{S_WAVE}, 1\ns_cbranch_scc0 {name}_x2\ns_add_u32 s76, s{S_STEP}, 1")
        if E("FLM", 0):
            a(f"s_and_b32 s77, s76, {E('FLM', 0)}\ns_cmp_ge_u32 s76, {E('FLE', 54)}\ns_cselect_b32 s77, 0, s77\ns_cmp_eq_u32 s77, 0\ns_cbranch_scc0 {name}_x2")
        if E("FLD", 6): a(f"s_sleep {E('FLD', 6)}")
        flag_store(76)
        a.label(f"{name}_x2")
    a(f"""
    s_cmp_eq_u32 s{S_WAVE}, 3
    s_cbranch_scc0 {name}_x4
    s_cmp_eq_u32 s{S_LATE}, 1
    s_cbranch_scc0 {name}_x5
    s_add_u32 s76, s{S_STEP}, 1
    """)
    prefetch(76, 3)
    a(f"""
    s_waitcnt vmcnt(0)
{name}_x5:
    """)
    if E("VPD", 0): a(f"s_sleep {E('VPD', 0)}")
    if flags:
        a(f"""
        s_add_u32 s76, s{S_STEP}, 4
        s_min_u32 s76, s76, 63
        s_cmp_gt_i32 s{S_KVN}, s76
        s_cbranch_scc1 {name}_x6
        v_mov_b32 v249, 0
        s_mov_b64 exec, 3
        buffer_atomic_add v249, v{V_OFL}, {SRD}, 0 offen sc0 sc1
        s_mov_b64 exec, -1
{name}_x6:
        """)
    a(f"""
    """)
    if not E("PB1", 1): a(f"""
    buffer_store_dwordx2 v[{V_POI}:{V_POI+1}], v{V_OPUB}, {SRD}, s{S_SL} offen {IS}
    s_mul_i32 s{S_T0}, s{S_T}, {SCS}
    s_add_u32 s{S_T0}, s{S_T0}, s{S_SL}
    s_add_u32 s{S_T0}, s{S_T0}, {SCO}
    buffer_store_dwordx4 v[{V_POI}:{V_POI+3}], v{V_LL}, {SRD}, s{S_T0} offen {IS}
    buffer_store_dwordx4 v[{V_POI}:{V_POI+3}], v{V_OSCM}, {SRD}, s{S_T0} offen {IS}
    """)
    a(f"""
    s_add_u32 s76, s{S_STEP}, 2
    s_cmp_lt_u32 s76, {nsteps-1}
    s_cbranch_scc0 {name}_x4
    {f"s_cmp_gt_i32 s{S_KVN}, s76" if flags else ""}
    s_cbranch_scc0 {name}_x4
    """)
    if not E("NOPF", 0) and not E("VPOS", 0):
        prefetch(76, -1, False)
    a.label(f"{name}_x4")
    zero(AQ, 24)
    if NB5: a(f"s_sleep {NB5}")
    a(f"s_branch {name}_b5")
    a.label(f"{name}_p2r")
    if prof: a("s_add_u32 s65, s65, 1")
    wdog()
    p2ld()
    a(f"s_branch {name}_p2")
    stubs_a()
    stubs_c()
    a.label(f"{name}_w0last")
    if E("LT", 0):
        a(f"""
        s_memtime s[54:55]
        s_memrealtime s[56:57]
        s_waitcnt lgkmcnt(0)
        s_sub_u32 s54, s54, s50
        s_sub_u32 s56, s56, s52
        v_mov_b32 v250, s54
        v_mov_b32 v251, s56
        s_lshl_b32 s80, s{S_CU}, 3
        s_add_u32 s80, s80, {WS_PROF + 14 * MB}
        buffer_store_dwordx2 v[250:251], v{ZER}, {SRD}, s80 offen
        """)
    a.nops(8)
    vfin()
    a("s_waitcnt lgkmcnt(0)\ns_barrier")
    a(f"s_branch {name}_end")
    a.label(f"{name}_side")
    if E("SV", 0): vwork(VE, 8)
    a(f"""
    s_cmp_eq_u32 s{S_WAVE}, 3
    s_cbranch_scc1 {name}_sd3
    s_cmp_eq_u32 s{S_WAVE}, 2
    s_cbranch_scc0 {name}_sd4
    s_mov_b64 exec, s[{S_MN8}:{S_MN8+1}]
    buffer_store_dwordx4 v[{V_POI}:{V_POI+3}], v{V_OOP}, {SRD}, s{S_SLO} offen {IS}
    s_mov_b64 exec, -1
    """)
    if E("PB1", 1): a(f"""
    buffer_store_dwordx2 v[{V_POI}:{V_POI+1}], v{V_OPUB}, {SRD}, s{S_SLO} offen {IS}
    s_mul_i32 s{S_T0}, s{S_T}, {SCS}
    s_add_u32 s{S_T0}, s{S_T0}, s{S_SLO}
    s_add_u32 s{S_T0}, s{S_T0}, {SCO}
    buffer_store_dwordx4 v[{V_POI}:{V_POI+3}], v{V_LL}, {SRD}, s{S_T0} offen {IS}
    buffer_store_dwordx4 v[{V_POI}:{V_POI+3}], v{V_OSCM}, {SRD}, s{S_T0} offen {IS}
    """)
    a(f"""
    s_branch {name}_sd4
{name}_sd3:
    v_readlane_b32 s76, v249, 0
    v_readlane_b32 s77, v249, 1
    s_min_i32 s76, s76, s77
    s_max_i32 s{S_KVN}, s{S_KVN}, s76
    s_mov_b32 s{S_LATE}, 0
    s_add_u32 s76, s{S_STEP}, 1
    s_cmp_lt_u32 s76, {nsteps-1}
    s_cbranch_scc0 {name}_sd4
    s_cmp_ge_u32 s76, {NSELF}
    s_cbranch_scc0 {name}_sd4
    {(f"s_cmp_eq_u32 s{S_WARM}, s76" if E("WARM", 0) else f"s_cmp_gt_i32 s{S_KVN}, s76") if flags else ""}
    s_cselect_b32 s{S_LATE}, 0, 1
    s_cbranch_scc0 {name}_sd4
    """)
    if not E("NOPF", 0): prefetch(76, 3, False)
    a.label(f"{name}_sd4")
    if not E("SV", 0): vwork(VE, 8)
    a.nops(8)
    vfin()
    zero(AO, 8)
    if not E("K2", 0):
        a(f"""
        s_cmp_eq_u32 s{S_WAVE}, 1
        s_cbranch_scc0 {name}_s1
        s_waitcnt lgkmcnt(0)
        """)
        rread()
        rsum(KVH)
        a.label(f"{name}_s1")
    a(f"""
    v_add_u32 v{V_T1}, {L_VP}, v{V_LL}
    s_waitcnt lgkmcnt(0)
    s_barrier
    s_cmp_eq_u32 s{S_WAVE}, 2
    s_cbranch_scc1 {name}_s2
    """)
    if E("K2", 0):
        a(f"s_cmp_eq_u32 s{S_WAVE}, 1\ns_cbranch_scc0 {name}_s1")
        rread()
        rsum(KVH)
        a(f"s_branch {name}_s3")
        a.label(f"{name}_s1")
    if E("KPF", 1) and not E("NOPF", 0):
        a(f"""
        s_cmp_eq_u32 s{S_WAVE}, 3
        s_cbranch_scc0 {name}_s3
        s_add_u32 s76, s{S_STEP}, 2
        s_cmp_lt_u32 s76, {nsteps-1}
        s_cbranch_scc0 {name}_s3
        {f"s_cmp_gt_i32 s{S_KVN}, s76" if flags else ""}
        s_cbranch_scc0 {name}_s3
        """)
        prefetch(76, 0, False)
        a(f"s_mov_b32 s88, s76")
    a(f"s_branch {name}_s3")
    a.label(f"{name}_s2")
    for w in range(4):
        a(f"ds_read_b128 v[{RP+4*w}:{RP+4*w+3}], v{V_T1} offset:{1024*w}")
    a(f"v_lshrrev_b32 v{V_T1}, 1, v{V_LL}")
    a("s_waitcnt lgkmcnt(2)")
    for i in (0, 2):
        a(f"v_pk_add_f32 v[{RP+i}:{RP+i+1}], v[{RP+i}:{RP+i+1}], v[{RP+4+i}:{RP+4+i+1}]")
    a("s_waitcnt lgkmcnt(0)")
    for i in (0, 2):
        a(f"v_pk_add_f32 v[{RP+8+i}:{RP+8+i+1}], v[{RP+8+i}:{RP+8+i+1}], v[{RP+12+i}:{RP+12+i+1}]")
    for i in (0, 2):
        a(f"v_pk_add_f32 v[{RP+i}:{RP+i+1}], v[{RP+i}:{RP+i+1}], v[{RP+8+i}:{RP+8+i+1}]")
    a(f"v_cvt_pk_bf16_f32 v{KVH}, v{RP}, v{RP+1}")
    a(f"v_cvt_pk_bf16_f32 v{KVH+1}, v{RP+2}, v{RP+3}")
    a(f"ds_write_b64 v{V_T1}, v[{KVH}:{KVH+1}] offset:{L_VM}")
    a("s_waitcnt lgkmcnt(0) vmcnt(0)")
    a.label(f"{name}_s3")
    a(f"""
    s_cmp_eq_u32 s{S_STEP}, {nsteps-1}
    s_cbranch_scc1 {name}_slast
    s_add_u32 s{S_T1}, s{S_SL}, {OXO}
    s_barrier
    """)

    def kv_pub(tag):
        a(f"""
        s_add_u32 s77, s{S_STEP}, s{S_CU}
        s_bfe_u32 s{S_T0}, s77, 0x30003
        s_lshl_b32 s{S_T0}, s{S_T0}, 14
        s_and_b32 s77, s77, 7
        s_lshl_b32 s77, s77, 10
        s_add_u32 s{S_T0}, s{S_T0}, s77
        s_add_u32 s{S_T0}, s{S_T0}, s{S_KVB}
        s_cmp_eq_u32 s{S_WAVE}, 2
        s_cbranch_scc1 {name}_kv2{tag}
        s_mov_b64 exec, s[{S_MKM}:{S_MKM+1}]
        buffer_store_dwordx4 v[{KVH}:{KVH+3}], v{V_OKV}, {SRD}, s{S_T0} offen sc1
        s_mov_b64 exec, -1
        s_branch {name}_kvd{tag}
{name}_kv2{tag}:
        v_lshlrev_b32 v{V_T0}, 3, v{V_L}
        buffer_store_dwordx2 v[{KVH}:{KVH+1}], v{V_T0}, {SRD}, s{S_T0} offen offset:512 sc1
{name}_kvd{tag}:
        """)
    a(f"s_cmp_eq_u32 s{S_WAVE}, 3\ns_cbranch_scc1 {name}_y3")
    if not E("NOKVM", 0):
        kv_pub("a")
    a(f"s_branch {name}_y4")
    a.label(f"{name}_y3")
    if not TAG:
        a(f"s_add_u32 s76, s{S_STEP}, 2\ns_and_b32 s76, s76, 63")
        xuoff(S_XS, 76)
        a(f"s_cmp_lt_u32 s76, 2\ns_cbranch_scc1 {name}_y4")
        a(f"buffer_store_dwordx4 v[{V_POI}:{V_POI+3}], v{V_OXW}, {SRD}, s{S_XS} offen sc1")
    a(f"""
    s_add_u32 s76, s{S_STEP}, 2
    s_cmp_lt_u32 s76, {nsteps-1}
    s_cbranch_scc0 {name}_y4
    """)
    if E("VPOS", 0):
        a(f"s_cmp_eq_u32 s88, s76\ns_cbranch_scc0 {name}_y4")
        prefetch(76, -1, False)
    if not E("NOPF", 0):
        if E("KPF", 1):
            if not E("RF4", 1):
                a(f"s_add_u32 s76, s{S_STEP}, 3")
                prefetch(76, None, skip=f"{name}_y4")
        else:
            prefetch(76, 0, skip=f"{name}_y4")
    a.label(f"{name}_y4")
    if NB3: a(f"s_sleep {NB3}")
    a(f"s_branch {name}_b3")
    a.label(f"{name}_first")
    xread()
    a(f"s_branch {name}_adone")
    a.label(f"{name}_slast")
    a(f"s_cmp_eq_u32 s{S_WAVE}, 3\ns_cbranch_scc1 {name}_end")
    kv_pub("b")
    a(f"s_waitcnt vmcnt(0)\ns_barrier\ns_mov_b32 s76, {nsteps}\ns_cmp_eq_u32 s{S_WAVE}, 1\ns_cbranch_scc0 {name}_end")
    flag_store(76)
    if E("IW", 2):
        i0 = a.lines.index(f"{name}_loop:")
        import align8
        body = a.lines[i0:]
        sz = align8.sizes([l.split(";")[0].strip() for l in body])
        out, pos, lastl, links = [], 0, -1000, []
        for l in body:
            c = l.split(";")[0].strip()
            far = pos - lastl >= E("IWD", 48)
            if c.startswith("s_nop") and far and (E("IW", 2) == 1 or (E("IW", 2) == 3 and int(c.split()[1]) >= 9)):
                k = int(c.split()[1])
                links.append(len(out)); out.append("X"); lastl = pos
                if k: out.append(f"s_nop {k-1}"); pos += 4
                pos += 4
                continue
            out.append(l)
            if c.startswith(".p2align"):
                al = 1 << int(c.split()[1]); pos = (pos + al - 1) // al * al
            elif align8.is_inst(c):
                pos += sz[c]
                if c.startswith("s_branch") and far:
                    links.append(len(out)); out.append("X"); lastl = pos; pos += 4
        per = (len(links) + 3) // 4
        for n, i in enumerate(links):
            tgt = f"{name}_iwd" if (n + 1) % per == 0 or n + 1 == len(links) else f"{name}_il{n+1}"
            ent = f"{name}_iw{n // per}:\n" if n % per == 0 else ""
            out[i] = f"{ent}{name}_il{n}:\ns_cbranch_execz {tgt}"
        if os.environ.get("WV"): print("links", len(links), "bytes", pos)
        a.lines[i0:] = "\n".join(out).split("\n")
    a.label(f"{name}_end")
    if E("FIXT", 0):
        a(f"""
        s_memrealtime s[50:51]
        s_waitcnt lgkmcnt(0)
        s_sub_u32 s52, s50, s100
        s_mul_i32 s52, s52, {E("FIXM", 0)}
        s_add_u32 s52, s52, {E("FIXT", 0)}
{name}_fx:
        s_memrealtime s[50:51]
        s_waitcnt lgkmcnt(0)
        s_sub_u32 s50, s50, s100
        s_cmp_lt_u32 s50, s52
        s_cbranch_scc1 {name}_fx
        """)
    if ts: ts(4)
    if prof:
        a(f"""
        s_lshl_b32 s{S_T0}, s{S_X}, 5
        s_add_u32 s{S_T0}, s{S_T0}, s{S_T}
        s_lshl_b32 s{S_T0}, s{S_T0}, 2
        s_add_u32 s{S_T0}, s{S_T0}, s{S_WAVE}
        s_lshl_b32 s{S_T0}, s{S_T0}, 6
        s_add_u32 s{S_T0}, s{S_T0}, {WS_PROF}
        v_mov_b32 v{V_T1}, 0
        s_mov_b64 exec, 1
        """)
        for i in range(16):
            a(f"v_mov_b32 v{V_T0}, s{50+i}")
            a(f"buffer_store_dword v{V_T0}, v{V_T1}, {SRD}, s{S_T0} offen offset:{4*i}")
            a("s_nop 1")
    a("s_endpgm")


def gen_rec_standalone(a: Asm, name, prof=False, force_slow=False):
    a.kernel_begin(name)
    a(f"s_cmp_ge_u32 s2, 256\ns_cbranch_scc1 {name}_exit")
    start_code(a, name)
    a(f"""
    s_sub_u32 s40, s90, 6
    s_lshl_b32 s40, s40, 5
    s_add_u32 s40, s40, s96
    s_cmp_lt_u32 s90, 4
    s_cbranch_scc0 {name}_oth
    s_mov_b32 s{S_X}, s90
    s_mov_b32 s{S_T}, s96
    """)
    rec_body(a, name + "_f", "", lambda vt, pre=False: sync_code(a, name, "r", vt, pre=pre), prof=prof, flags=False)
    a.label(f"{name}_oth")
    a(f"s_cmp_lt_u32 s40, {NI}\ns_cbranch_scc0 {name}_exit")
    init_cd(a, name, 40)
    a.label(f"{name}_slowent")
    a.label(f"{name}_exit")
    a("s_endpgm")
    return kd(name, 512, sgpr=102, accum=256)


if __name__ == "__main__":
    import sys
    a = Asm()
    name = "rec_kernel"
    k = gen_rec_standalone(a, name, prof=("prof" in sys.argv), force_slow=("slow" in sys.argv))
    out = HEADER + f"; @launch kernel={name} grid=(256,1,1) block=(256,1,1) lds=163840\n"
    out += '.amdgcn_target "amdgcn-amd-amdhsa--gfx950"\n.text\n' + a.text() + '.section .rodata,"a"\n' + k
    open(os.environ.get("OUT", "rec.s"), "w").write(out)
```

```python
import sys
from gen_common import *
from gen_rec import S_X, S_T, S_WSD, S_DBG, E, start_code, rec_body, sync_code, slow_entry, init_cd
from gen_bulk import kv_role, qx_role, out_role, S_H, S_O0, S_O1, S_OI, S_SH
from gen_fft2 import gen_f0, gen_f1, gen_f2, gen_f3

LDS = 163840


def gen_mega(a, name, force_slow=False):
    W = S_WSD
    S_B, S_G, S_F = 94, 91, 92
    a.kernel_begin(name)

    dbgn = [0]
    def ts(i):
        if E("DBGT", 0):
            slot = {2: 1, 3: 2, 4: 3, 8: 2, 10: 3}.get(i)
            if slot is None: return
            dbgn[0] += 1
            a(f"""
            s_cmp_eq_u32 s96, 5
            s_cbranch_scc0 {name}_dg{dbgn[0]}
            v_cmp_eq_u32 vcc, 64, v0
            s_cbranch_vccz {name}_dg{dbgn[0]}
            s_memrealtime s[76:77]
            s_waitcnt lgkmcnt(0)
            s_sub_u32 s76, s76, s100
            s_sub_u32 s78, s90, 3
            s_max_i32 s78, s78, 0
            s_cmp_eq_u32 s90, 7
            s_cselect_b32 s78, 1, s78
            s_cmp_eq_u32 s90, 4
            s_cbranch_scc1 {name}_dg{dbgn[0]}
            s_lshl_b32 s78, s78, 4
            v_mov_b32 v1, 0
            v_mov_b32 v2, s76
            s_mov_b64 exec, 1
            buffer_atomic_umax v2, v1, s[{S_DBG}:{S_DBG+3}], s78 offen offset:{4 * slot} sc1
            s_mov_b64 exec, -1
{name}_dg{dbgn[0]}:
            """)
            return
        if not E("BPROF", 0): return
        a(f"""
        s_memrealtime s[76:77]
        s_memtime s[100:101]
        s_waitcnt lgkmcnt(0)
        v_mov_b32 v1, 0
        v_mov_b32 v2, s76
        s_lshl_b32 s78, s2, 6
        s_add_u32 s78, s78, {WS_PROF + 8 * MB + 4 * i}
        s_mov_b64 exec, 1
        buffer_store_dword v2, v1, s[{W}:{W+3}], s78 offen
        s_nop 1
        v_mov_b32 v2, s100
        s_add_u32 s78, s78, 16384
        buffer_store_dword v2, v1, s[{W}:{W+3}], s78 offen
        s_nop 1
        v_mov_b32 v2, s96
        s_lshl_b32 s78, s2, 6
        s_add_u32 s78, s78, {WS_PROF + 8 * MB + 56}
        buffer_store_dword v2, v1, s[{W}:{W+3}], s78 offen
        s_mov_b64 exec, -1
        """)
    a(f"s_cmp_ge_u32 s2, 256\ns_cbranch_scc1 {name}_exit")
    if E("BPROF", 0) == 1: a("s_memrealtime s[80:81]")
    if E("DBGT", 0) or E("FIXT", 0): a("s_memrealtime s[100:101]")
    start_code(a, name)
    sync = lambda tag: (lambda vt, pre=False: sync_code(a, name, tag, vt, force_slow, pre))
    a(f"""
    s_cmp_lt_u32 s96, 32
    s_cbranch_scc1 {name}_spec
    """)
    sync("x")(2)
    slow_entry(a, name)
    a(f"""
    s_lshr_b32 s{S_X}, s97, 5
    s_and_b32 s{S_T}, s97, 31
    s_cmp_lt_u32 s97, 128
    s_cbranch_scc1 {name}_recs
    s_sub_u32 s{S_B}, s97, 128
    s_branch {name}_bulk
{name}_spec:
    s_mov_b32 s{S_X}, s90
    s_mov_b32 s{S_T}, s96
    s_cmp_lt_u32 s90, 4
    s_cbranch_scc1 {name}_recf
    s_sub_u32 s{S_B}, s90, 4
    s_lshl_b32 s{S_B}, s{S_B}, 5
    s_add_u32 s{S_B}, s{S_B}, s96
{name}_bulk:
    """)
    if E("MIX", 0):
        a(f"s_and_b32 s{S_G}, s{S_B}, 3\ns_lshr_b32 s{S_H}, s{S_B}, 2")
    else:
        a(f"s_lshr_b32 s{S_G}, s{S_B}, 5\ns_and_b32 s{S_H}, s{S_B}, 31")
    a(f"""
    s_and_b32 s{S_F}, s{S_G}, 1
    s_lshl_b32 s{S_F}, s{S_F}, 5
    s_add_u32 s{S_F}, s{S_F}, s{S_H}
    """)
    if E("BPROF", 0) == 1:
        a(f"""
        v_mov_b32 v1, 0
        v_mov_b32 v2, s80
        v_mov_b32 v3, s{S_G}
        s_lshl_b32 s78, s2, 6
        s_add_u32 s78, s78, {WS_PROF + 8 * MB}
        s_mov_b64 exec, 1
        buffer_store_dword v2, v1, s[{W}:{W+3}], s78 offen
        buffer_store_dword v3, v1, s[{W}:{W+3}], s78 offen offset:60
        s_mov_b64 exec, -1
        """)
    ts(1)
    a(f"""
    s_cmp_eq_u32 s{S_G}, 0
    s_cbranch_scc1 {name}_rk
    s_cmp_eq_u32 s{S_G}, 1
    s_cbranch_scc1 {name}_rv
    """)
    def signal(i):
        a(f"""
        s_waitcnt vmcnt(0)
        s_barrier
        v_mov_b32 v1, 0
        v_mov_b32 v2, 1
        s_mov_b32 s82, {WS_F + F_CNT + 128 * i}
        v_cmp_eq_u32 vcc, 0, v0
        s_and_saveexec_b64 s[80:81], vcc
        s_cbranch_execz {name}_sg{i}
        buffer_atomic_add v2, v1, s[{W}:{W+3}], s82 offen sc1
{name}_sg{i}:
        s_mov_b64 exec, s[80:81]
        """)

    def wait(i, n, v=1):
        a(f"v_mov_b32 v{v}, 0\ns_mov_b32 s82, {WS_F + F_CNT + 128 * i}")
        a.label(f"{name}_w{i}")
        wd_code(a, f"fftwait{i}")
        a(f"""
        s_sleep 8
        buffer_load_dword v{v+1}, v{v}, s[{W}:{W+3}], s82 offen sc1
        s_waitcnt vmcnt(0)
        v_cmp_ne_u32 vcc, {n-1}, v{v+1}
        s_cbranch_vccnz {name}_w{i}
        """)

    def tasks(tag, fn, first, stride, n, base_sreg):
        a(f"s_add_u32 s93, s{base_sreg}, {first}")
        a(f"s_cmp_lt_u32 s93, {n}\ns_cbranch_scc0 {name}_{tag}e")
        a.label(f"{name}_{tag}l")
        fn()
        a(f"s_add_u32 s93, s93, {stride}\ns_cmp_lt_u32 s93, {n}\ns_cbranch_scc1 {name}_{tag}l")
        a.label(f"{name}_{tag}e")
    DF2 = E("DF2", 0)
    if E("NI", 32) == 32:
        a(f"s_cmp_eq_u32 s{S_G}, 2\ns_cbranch_scc1 {name}_noinit")
        init_cd(a, name, S_H)
        if E("WOT", 0):
            a(f"""
            s_load_dwordx2 s[4:5], s[0:1], {KA_WO}
            v_lshlrev_b32 v1, 7, v0
            s_lshl_b32 s8, s{S_H}, 15
            s_waitcnt lgkmcnt(0)
            s_mov_b32 s6, {8*MB}
            s_mov_b32 s7, 0x00020000
            """)
            for i in range(8):
                a(f"buffer_load_dword v250, v1, s[4:7], s8 offen\ns_add_u32 s8, s8, {MB}")
            a("s_waitcnt vmcnt(0)")
        a.label(f"{name}_noinit")
    else:
        init_cd(a, name, S_F)
    if E("CDH", 1):
        if E("CDH", 1) == 1: a(f"s_cmp_eq_u32 s{S_G}, 2\ns_cbranch_scc1 {name}_nohold")
        sync("h")(2)
        a(f"""
        s_xor_b32 s76, s98, 1
        s_lshl_b32 s76, s76, 13
        s_lshl_b32 s77, s{S_H}, 7
        s_add_u32 s76, s76, s77
        s_add_u32 s76, s76, {WS_F + F_K}
        v_mov_b32 v1, 0
{name}_hold:
        s_sleep 12
        """)
        wd_code(a, "hold")
        a(f"""
        buffer_load_dword v2, v1, s[{W}:{W+3}], s76 offen sc1
        s_waitcnt vmcnt(0)
        v_cmp_gt_i32 vcc, 1, v2
        s_cbranch_vccnz {name}_hold
{name}_nohold:
        """)
    ts(2)
    a(f"s_cmp_eq_u32 s{S_G}, 2\ns_cbranch_scc0 {name}_rd")
    qx_role(a, name + "_q", ts, sync("c"))
    a.label(f"{name}_rd")
    assert E("CDH", 1) or not E("FNEAR", 1)
    fs = [lambda: gen_f1(a, name + "_f1", 93, 32, 128), lambda: gen_f0(a, name + "_f0", 93, 32, 288)]
    if E("F0FIRST", 0): fs.reverse()
    a(f"s_mov_b32 s93, s{S_H}")
    fs[0]()
    ts(5)
    if E("FGAP", 0):
        a(f"s_mov_b32 s76, {E('FGAP', 0)}")
        a.label(f"{name}_fg")
        a(f"s_sleep 32\ns_sub_u32 s76, s76, 1\ns_cmp_lg_u32 s76, 0\ns_cbranch_scc1 {name}_fg")
    a(f"s_mov_b32 s93, s{S_H}\ns_waitcnt vmcnt(0)")
    fs[1]()
    sync("d")(2)
    signal(0)
    ts(6)
    a(f"s_add_u32 s38, s{S_H}, {129 - DF2}\ns_mov_b32 s39, 32\ns_mov_b32 s37, 129")
    a(f"s_cmp_lt_u32 s38, 129\ns_cbranch_scc1 {name}_f2s\ns_branch {name}_f2e")
    a.label(f"{name}_rk")
    kv_role(a, name + "_k", False, ts, sync("k"))
    a(f"s_branch {name}_fft")
    a.label(f"{name}_rv")
    kv_role(a, name + "_v", True, ts, sync("v"))
    a.label(f"{name}_fft")
    ts(4)
    a(f"s_mov_b32 s38, s{S_F}\ns_mov_b32 s39, 64\ns_mov_b32 s37, {129 - DF2}")
    a.label(f"{name}_f2s")
    wait(0, 32)
    gen_f2(a, name + "_f2", 38, "s39", "s37")
    a.label(f"{name}_f2e")
    signal(1)
    ts(7)
    KS = E("KS", 58)
    assert KS % 2 == 0 and E("B16", 1) and E("XC", 1)
    a(f"""
    s_mov_b32 s{S_O0}, 0
    s_mov_b32 s{S_O1}, {KS}
    s_lshl_b32 s{S_OI}, s{S_H}, 13
    s_add_u32 s{S_OI}, s{S_OI}, {WS_OI}
    s_mov_b32 s{S_SH}, 0
    s_mov_b32 s68, 0
    s_cmp_eq_u32 s{S_G}, 3
    s_cbranch_scc1 {name}_out
    s_cmp_lt_u32 s{S_F}, {1 - DF2 if E("WEARLY", 1) else 64}
    s_cbranch_scc1 {name}_back
    s_mov_b32 s68, 1
    s_branch {name}_out
{name}_back:
    s_lshl_b32 s68, s68, 1
    """)
    a(f"s_mov_b32 s93, s{S_F}")
    gen_f3(a, name + "_f3", 93, 64, 128, lambda: wait(1, 96, 250))
    ts(8)
    a(f"""
    s_waitcnt vmcnt(0)
    s_barrier
    s_add_u32 s{S_O0}, s{S_G}, {KS}
    s_mov_b32 s{S_O1}, 64
    s_mov_b32 s{S_SH}, 1
    s_add_u32 s{S_OI}, s{S_OI}, {32 * 8192}
    s_cmp_eq_u32 s{S_G}, 0
    s_cbranch_scc1 {name}_out
    s_lshr_b32 s{S_OI}, s{S_H}, 2
    s_lshl_b32 s{S_OI}, s{S_OI}, 16
    s_and_b32 s76, s{S_H}, 3
    s_lshl_b32 s76, s76, 13
    s_add_u32 s{S_OI}, s{S_OI}, s76
    s_add_u32 s{S_OI}, s{S_OI}, {WS_H + 32768}
    """)
    a.label(f"{name}_out")
    out_role(a, name + "_o", lambda i: ts(i + 6), f"{name}_back")
    a.label(f"{name}_exit")
    a("s_endpgm")
    a.label(f"{name}_recf")
    rec_body(a, name + "_rf", "", sync("r"), prof=bool(E("PROF", 0)), ts=ts)
    a.label(f"{name}_recs")
    rec_body(a, name + "_rs", "sc1", sync("s"))
    return kd(name, 512, sgpr=102, accum=256)


def build(path, force_slow=False):
    a = Asm()
    k = gen_mega(a, "mega_kernel", force_slow)
    out = HEADER + f"; @launch kernel=mega_kernel grid=(256,1,1) block=(256,1,1) lds={LDS}\n"
    out += '.amdgcn_target "amdgcn-amd-amdhsa--gfx950"\n.text\n' + a.text() + '.section .rodata,"a"\n' + k
    if E("PLAIN", 0):
        import re
        out = out.replace("; @launch kernel=mega_kernel grid", "; @launch grid")
        out = re.sub(r"\bmega_kernel\b", KNAME + "_kernel", out).replace("mega_kernel_", "mk_")
    open(path, "w").write(out)
    import json
    json.dump(WD_SITES, open("wd.json", "w"))


if __name__ == "__main__":
    build(sys.argv[1] if len(sys.argv) > 1 else "mega.s", force_slow=("slow" in sys.argv))
```

```python
import sys
from gen_common import *
from gen_rec import S_X, S_T, S_WSD, S_DBG, E, start_code, rec_body, sync_code, slow_entry, init_cd
from gen_bulk import kv_role, qx_role, out_role, S_H, S_O0, S_O1, S_OI, S_SH
from gen_fft2 import gen_f0, gen_f1, gen_f2, gen_f3

LDS = 163840


def gen_mega(a, name, force_slow=False):
    W = S_WSD
    S_B, S_G, S_F = 94, 91, 92
    a.kernel_begin(name)

    dbgn = [0]
    def ts(i):
        if E("DG2", 0):
            dbgn[0] += 1
            if i == E("DG2", 0):
                a(f"""
                s_cmp_{"lt_u32 s90, 4" if E("DG2R", 0) == 0 else f"eq_u32 s90, {E('DG2R', 0)}"}
                s_cbranch_scc0 {name}_dg{dbgn[0]}
                v_cmp_eq_u32 vcc, 64, v0
                s_cbranch_vccz {name}_dg{dbgn[0]}
                s_memrealtime s[76:77]
                s_waitcnt lgkmcnt(0)
                s_sub_u32 s76, s76, s100
                v_mov_b32 v1, 0
                v_mov_b32 v2, s76
                s_mov_b32 s78, {WS_F + F_CNT + 1024}
                s_mov_b64 exec, 1
                buffer_atomic_smax v2, v1, s[{W}:{W+3}], s78 offen sc1
                s_mov_b64 exec, -1
{name}_dg{dbgn[0]}:
                """)
            if i == 10:
                a(f"""
                s_cmp_eq_u32 s90, 7
                s_cbranch_scc0 {name}_dh{dbgn[0]}
                v_mov_b32 v1, 0
                s_mov_b32 s78, {WS_F + F_CNT + 1024}
{name}_di{dbgn[0]}:
                s_sleep 32
                buffer_load_dword v2, v1, s[{W}:{W+3}], s78 offen sc1
                s_memrealtime s[76:77]
                s_waitcnt lgkmcnt(0) vmcnt(0)
                v_readfirstlane_b32 s77, v2
                s_sub_u32 s76, s76, s100
                s_add_u32 s77, s77, 20000
                s_cmp_lt_u32 s76, s77
                s_cbranch_scc1 {name}_di{dbgn[0]}
{name}_dh{dbgn[0]}:
                """)
            return
        if E("DBGT", 0):
            slot = {2: 1, 3: 2, 4: 3, 8: 2, 10: 3}.get(i)
            if slot is None: return
            dbgn[0] += 1
            a(f"""
            s_cmp_eq_u32 s96, 5
            s_cbranch_scc0 {name}_dg{dbgn[0]}
            v_cmp_eq_u32 vcc, 64, v0
            s_cbranch_vccz {name}_dg{dbgn[0]}
            s_memrealtime s[76:77]
            s_waitcnt lgkmcnt(0)
            s_sub_u32 s76, s76, s100
            s_sub_u32 s78, s90, 3
            s_max_i32 s78, s78, 0
            s_cmp_eq_u32 s90, 7
            s_cselect_b32 s78, 1, s78
            s_cmp_eq_u32 s90, 4
            s_cbranch_scc1 {name}_dg{dbgn[0]}
            s_lshl_b32 s78, s78, 4
            v_mov_b32 v1, 0
            v_mov_b32 v2, s76
            s_mov_b64 exec, 1
            buffer_atomic_umax v2, v1, s[{S_DBG}:{S_DBG+3}], s78 offen offset:{4 * slot} sc1
            s_mov_b64 exec, -1
{name}_dg{dbgn[0]}:
            """)
            return
        if not E("BPROF", 0): return
        a(f"""
        s_memrealtime s[76:77]
        s_memtime s[100:101]
        s_waitcnt lgkmcnt(0)
        v_mov_b32 v1, 0
        v_mov_b32 v2, s76
        s_lshl_b32 s78, s2, 6
        s_add_u32 s78, s78, {WS_PROF + 8 * MB + 4 * i}
        s_mov_b64 exec, 1
        buffer_store_dword v2, v1, s[{W}:{W+3}], s78 offen
        s_nop 1
        v_mov_b32 v2, s100
        s_add_u32 s78, s78, 16384
        buffer_store_dword v2, v1, s[{W}:{W+3}], s78 offen
        s_nop 1
        v_mov_b32 v2, s96
        s_lshl_b32 s78, s2, 6
        s_add_u32 s78, s78, {WS_PROF + 8 * MB + 56}
        buffer_store_dword v2, v1, s[{W}:{W+3}], s78 offen
        s_mov_b64 exec, -1
        """)
    a(f"s_cmp_ge_u32 s2, 256\ns_cbranch_scc1 {name}_exit")
    if E("BPROF", 0) == 1: a("s_memrealtime s[80:81]")
    if E("DBGT", 0) or E("FIXT", 0) or E("DG2", 0): a("s_memrealtime s[100:101]")
    start_code(a, name)
    sync = lambda tag: (lambda vt, pre=False: sync_code(a, name, tag, vt, force_slow, pre))
    a(f"""
    s_cmp_lt_u32 s96, 32
    s_cbranch_scc1 {name}_spec
    """)
    sync("x")(2)
    slow_entry(a, name)
    a(f"""
    s_lshr_b32 s{S_X}, s97, 5
    s_and_b32 s{S_T}, s97, 31
    s_cmp_lt_u32 s97, 128
    s_cbranch_scc1 {name}_recs
    s_sub_u32 s{S_B}, s97, 128
    s_branch {name}_bulk
{name}_spec:
    s_mov_b32 s{S_X}, s90
    s_mov_b32 s{S_T}, s96
    s_cmp_lt_u32 s90, 4
    s_cbranch_scc1 {name}_recf
    s_sub_u32 s{S_B}, s90, 4
    s_lshl_b32 s{S_B}, s{S_B}, 5
    s_add_u32 s{S_B}, s{S_B}, s96
{name}_bulk:
    """)
    if E("MIX", 0):
        a(f"s_and_b32 s{S_G}, s{S_B}, 3\ns_lshr_b32 s{S_H}, s{S_B}, 2")
    else:
        a(f"s_lshr_b32 s{S_G}, s{S_B}, 5\ns_and_b32 s{S_H}, s{S_B}, 31")
        gm = os.environ.get("GMAP", "0123")
        lut = sum(int(c) << (4 * i) for i, c in enumerate(gm))
        if gm != "0123": a(f"s_lshl_b32 s{S_G}, s{S_G}, 2\ns_lshr_b32 s{S_G}, {lut}, s{S_G}\ns_and_b32 s{S_G}, s{S_G}, 3")
    a(f"""
    s_and_b32 s{S_F}, s{S_G}, 1
    s_lshl_b32 s{S_F}, s{S_F}, 5
    s_add_u32 s{S_F}, s{S_F}, s{S_H}
    """)
    if E("BPROF", 0) == 1:
        a(f"""
        v_mov_b32 v1, 0
        v_mov_b32 v2, s80
        v_mov_b32 v3, s{S_G}
        s_lshl_b32 s78, s2, 6
        s_add_u32 s78, s78, {WS_PROF + 8 * MB}
        s_mov_b64 exec, 1
        buffer_store_dword v2, v1, s[{W}:{W+3}], s78 offen
        buffer_store_dword v3, v1, s[{W}:{W+3}], s78 offen offset:60
        s_mov_b64 exec, -1
        """)
    ts(1)
    a(f"""
    s_cmp_eq_u32 s{S_G}, 0
    s_cbranch_scc1 {name}_rk
    s_cmp_eq_u32 s{S_G}, 1
    s_cbranch_scc1 {name}_rv
    """)
    def signal(i):
        a(f"""
        s_waitcnt vmcnt(0)
        s_barrier
        v_mov_b32 v1, 0
        v_mov_b32 v2, 1
        s_mov_b32 s82, {WS_F + F_CNT + 128 * i}
        v_cmp_eq_u32 vcc, 0, v0
        s_and_saveexec_b64 s[80:81], vcc
        s_cbranch_execz {name}_sg{i}
        buffer_atomic_add v2, v1, s[{W}:{W+3}], s82 offen sc1
{name}_sg{i}:
        s_mov_b64 exec, s[80:81]
        """)

    def wait(i, n, v=1):
        a(f"v_mov_b32 v{v}, 0\ns_mov_b32 s82, {WS_F + F_CNT + 128 * i}")
        a.label(f"{name}_w{i}")
        wd_code(a, f"fftwait{i}")
        a(f"""
        s_sleep 8
        buffer_load_dword v{v+1}, v{v}, s[{W}:{W+3}], s82 offen sc1
        s_waitcnt vmcnt(0)
        v_cmp_ne_u32 vcc, {n-1}, v{v+1}
        s_cbranch_vccnz {name}_w{i}
        """)

    def tasks(tag, fn, first, stride, n, base_sreg):
        a(f"s_add_u32 s93, s{base_sreg}, {first}")
        a(f"s_cmp_lt_u32 s93, {n}\ns_cbranch_scc0 {name}_{tag}e")
        a.label(f"{name}_{tag}l")
        fn()
        a(f"s_add_u32 s93, s93, {stride}\ns_cmp_lt_u32 s93, {n}\ns_cbranch_scc1 {name}_{tag}l")
        a.label(f"{name}_{tag}e")
    DF2 = E("DF2", 0)
    if E("NI", 32) == 32:
        a(f"s_cmp_eq_u32 s{S_G}, 2\ns_cbranch_scc1 {name}_noinit")
        init_cd(a, name, S_H)
        if E("WOT", 0):
            a(f"""
            s_load_dwordx2 s[4:5], s[0:1], {KA_WO}
            v_lshlrev_b32 v1, 7, v0
            s_lshl_b32 s8, s{S_H}, 15
            s_waitcnt lgkmcnt(0)
            s_mov_b32 s6, {8*MB}
            s_mov_b32 s7, 0x00020000
            """)
            for i in range(8):
                a(f"buffer_load_dword v250, v1, s[4:7], s8 offen\ns_add_u32 s8, s8, {MB}")
            a("s_waitcnt vmcnt(0)")
        a.label(f"{name}_noinit")
    else:
        init_cd(a, name, S_F)
    if E("CDH", 1):
        if E("CDH", 1) == 1: a(f"s_cmp_eq_u32 s{S_G}, 2\ns_cbranch_scc1 {name}_nohold")
        sync("h")(2)
        a(f"""
        s_xor_b32 s76, s98, 1
        s_lshl_b32 s76, s76, 13
        s_lshl_b32 s77, s{S_H}, 7
        s_add_u32 s76, s76, s77
        s_add_u32 s76, s76, {WS_F + F_K}
        v_mov_b32 v1, 0
{name}_hold:
        s_sleep 12
        """)
        wd_code(a, "hold")
        a(f"""
        buffer_load_dword v2, v1, s[{W}:{W+3}], s76 offen sc1
        s_waitcnt vmcnt(0)
        v_cmp_gt_i32 vcc, 1, v2
        s_cbranch_vccnz {name}_hold
{name}_nohold:
        """)
    ts(2)
    a(f"s_cmp_eq_u32 s{S_G}, 2\ns_cbranch_scc0 {name}_rd")
    qx_role(a, name + "_q", ts, sync("c"))
    a.label(f"{name}_rd")
    assert E("CDH", 1) or not E("FNEAR", 1)
    fs = [lambda: gen_f1(a, name + "_f1", 93, 32, 128), lambda: gen_f0(a, name + "_f0", 93, 32, 288)]
    if E("F0FIRST", 0): fs.reverse()
    a(f"s_mov_b32 s93, s{S_H}")
    fs[0]()
    ts(5)
    if E("FGAP", 0):
        a(f"s_mov_b32 s76, {E('FGAP', 0)}")
        a.label(f"{name}_fg")
        a(f"s_sleep 32\ns_sub_u32 s76, s76, 1\ns_cmp_lg_u32 s76, 0\ns_cbranch_scc1 {name}_fg")
    a(f"s_mov_b32 s93, s{S_H}\ns_waitcnt vmcnt(0)")
    fs[1]()
    sync("d")(2)
    signal(0)
    ts(6)
    a(f"s_add_u32 s38, s{S_H}, {129 - DF2}\ns_mov_b32 s39, 32\ns_mov_b32 s37, 129")
    a(f"s_cmp_lt_u32 s38, 129\ns_cbranch_scc1 {name}_f2s\ns_branch {name}_f2e")
    a.label(f"{name}_rk")
    kv_role(a, name + "_k", False, ts, sync("k"))
    a(f"s_branch {name}_fft")
    a.label(f"{name}_rv")
    kv_role(a, name + "_v", True, ts, sync("v"))
    a.label(f"{name}_fft")
    ts(4)
    a(f"s_mov_b32 s38, s{S_F}\ns_mov_b32 s39, 64\ns_mov_b32 s37, {129 - DF2}")
    a.label(f"{name}_f2s")
    wait(0, 32)
    gen_f2(a, name + "_f2", 38, "s39", "s37")
    a.label(f"{name}_f2e")
    signal(1)
    ts(7)
    KS = E("KS", 58)
    assert KS % 2 == 0 and E("B16", 1) and E("XC", 1)
    a(f"""
    s_mov_b32 s{S_O0}, 0
    s_mov_b32 s{S_O1}, {KS}
    s_lshl_b32 s{S_OI}, s{S_H}, 13
    s_add_u32 s{S_OI}, s{S_OI}, {WS_OI}
    s_mov_b32 s{S_SH}, 0
    s_mov_b32 s68, 0
    s_cmp_eq_u32 s{S_G}, 3
    s_cbranch_scc1 {name}_out
    s_cmp_lt_u32 s{S_F}, {1 - DF2 if E("WEARLY", 1) else 64}
    s_cbranch_scc1 {name}_back
    s_mov_b32 s68, 1
    s_branch {name}_out
{name}_back:
    s_lshl_b32 s68, s68, 1
    """)
    a(f"s_mov_b32 s93, s{S_F}")
    gen_f3(a, name + "_f3", 93, 64, 128, lambda: wait(1, 96, 250))
    ts(8)
    a(f"""
    s_waitcnt vmcnt(0)
    s_barrier
    s_add_u32 s{S_O0}, s{S_G}, {KS}
    s_mov_b32 s{S_O1}, {63 if E('D63', 0) else 64}
    s_mov_b32 s{S_SH}, 1
    s_add_u32 s{S_OI}, s{S_OI}, {32 * 8192}
    s_cmp_eq_u32 s{S_G}, 0
    s_cbranch_scc1 {name}_out
    s_lshr_b32 s{S_OI}, s{S_H}, 2
    s_lshl_b32 s{S_OI}, s{S_OI}, 16
    s_and_b32 s76, s{S_H}, 3
    s_lshl_b32 s76, s76, 13
    s_add_u32 s{S_OI}, s{S_OI}, s76
    s_add_u32 s{S_OI}, s{S_OI}, {WS_H + 32768}
    """)
    a.label(f"{name}_out")
    out_role(a, name + "_o", lambda i: ts(i + 6), f"{name}_back")
    a.label(f"{name}_exit")
    a("s_endpgm")
    a.label(f"{name}_recf")
    rec_body(a, name + "_rf", "", sync("r"), prof=bool(E("PROF", 0)), ts=ts)
    a.label(f"{name}_recs")
    rec_body(a, name + "_rs", "sc1", sync("s"))
    return kd(name, 512, sgpr=102, accum=256)


def build(path, force_slow=False):
    a = Asm()
    k = gen_mega(a, "mega_kernel", force_slow)
    out = HEADER + f"; @launch kernel=mega_kernel grid=(256,1,1) block=(256,1,1) lds={LDS}\n"
    out += '.amdgcn_target "amdgcn-amd-amdhsa--gfx950"\n.text\n' + a.text() + '.section .rodata,"a"\n' + k
    if E("PLAIN", 0):
        import re
        out = out.replace("; @launch kernel=mega_kernel grid", "; @launch grid")
        out = re.sub(r"\bmega_kernel\b", KNAME + "_kernel", out).replace("mega_kernel_", "mk_")
    open(path, "w").write(out)
    import json
    json.dump(WD_SITES, open("wd.json", "w"))


if __name__ == "__main__":
    build(sys.argv[1] if len(sys.argv) > 1 else "mega.s", force_slow=("slow" in sys.argv))
```

```python
from gen_common import *
from gen_rec import S_WSD, S_DBG, E, sync_issue, klast

W = S_WSD
SRD = f"s[{W}:{W+3}]"
S_H = 40
S_WAVE, S_SEG, S_T0, S_T1, S_T2 = 41, 42, 43, 44, 45
S_WM, S_XM = 4, 8
V_L, V_T0, V_T1, V_T2, V_LL = 1, 2, 3, 4, 5


def wdog(a, name):
    wd_code(a, name + ":" + a.lines[-1], f"s{S_SEG}")


def tsx(a, ts, i):
    if E("BPROF", 0):
        ts(i)
        a(f"v_and_b32 v{V_L}, 63, v0")


def pst(i):
    if not E("KPROF", 0): return []
    return ["s_memtime s[76:77]", "s_waitcnt lgkmcnt(0)", "s_sub_u32 s78, s76, s31", f"s_add_u32 s{32+i}, s{32+i}, s78", "s_mov_b32 s31, s76"]


def pinit(a):
    if not E("KPROF", 0): return
    for i in range(8): a(f"s_mov_b32 s{32+i}, 0")
    a("s_memtime s[76:77]\ns_waitcnt lgkmcnt(0)\ns_mov_b32 s31, s76")


def pdump(a):
    if not E("KPROF", 0): return
    a(f"s_lshl_b32 s78, s2, 7\ns_lshl_b32 s77, s{S_WAVE}, 5\ns_add_u32 s78, s78, s77\ns_add_u32 s78, s78, {WS_PROF + 9*MB}\nv_mov_b32 v2, 0\ns_mov_b64 exec, 1")
    for i in range(8):
        a(f"v_mov_b32 v3, s{32+i}\nbuffer_store_dword v3, v2, {SRD}, s78 offen offset:{4*i}\ns_nop 1")
    a("s_mov_b64 exec, -1")


def common(a, ka_w, ka_x, xbytes):
    a(f"""
    s_load_dwordx2 s[{S_WM}:{S_WM+1}], s[0:1], {ka_w}
    s_load_dwordx2 s[{S_XM}:{S_XM+1}], s[0:1], {ka_x}
    v_lshrrev_b32 v{V_T0}, 6, v0
    v_and_b32 v{V_L}, 63, v0
    v_readfirstlane_b32 s{S_WAVE}, v{V_T0}
    v_lshlrev_b32 v{V_LL}, 4, v{V_L}
    s_waitcnt lgkmcnt(0)
    s_mov_b32 s{S_WM+2}, {8*MB}
    s_mov_b32 s{S_WM+3}, 0x00020000
    s_mov_b32 s{S_XM+2}, {xbytes}
    s_mov_b32 s{S_XM+3}, 0x00020000
    """)


def load_weights(a, rowlog, s_base, lane_addr, frag_off, rot=None, cl=2, touch=False):
    a(f"""
    v_lshrrev_b32 v{V_T0}, {cl}, v{V_L}
    v_and_b32 v{V_T1}, {(1 << cl) - 1}, v{V_L}
    v_lshlrev_b32 v16, {rowlog}, v{V_T0}
    v_lshl_add_u32 v16, v{V_T1}, 4, v16
    v_add_u32 v16, s{s_base}, v16
    v_and_b32 v{V_T1}, 3, v{V_L}
    s_lshl_b32 s{S_T2}, s{S_WAVE}, 15
    """)
    RI = 64 >> cl
    a(lane_addr)
    a(f"v_add_u32 v17, s{S_T2}, v17")

    HELP = 1 if (touch and E("BHELP", 1)) else 0
    if HELP:
        a(f"""
        s_and_b32 s{S_T0}, s{S_H}, 3
        s_lshl_b32 s{S_T0}, s{S_T0}, 2
        s_add_u32 s{S_T0}, s{S_T0}, s{S_WAVE}
        s_lshl_b32 s{S_T0}, s{S_T0}, 4
        v_and_b32 v23, 15, v{V_L}
        v_add_u32 v23, s{S_T0}, v23
        s_lshr_b32 s{S_T0}, s{S_H}, 2
        s_lshl_b32 s{S_T0}, s{S_T0}, 10
        s_add_u32 s{S_T1}, s{S_T0}, 896
        s_add_u32 s{S_T0}, s{S_T0}, 384
        s_cmp_ge_u32 s{S_H}, 28
        s_cselect_b32 s{S_T1}, s{S_T1}, s{S_T0}
        v_mov_b32 v24, s{S_T0}
        v_mov_b32 v25, s{S_T1}
        v_cmp_gt_u32 vcc, 32, v{V_L}
        s_nop 1
        v_cndmask_b32 v24, v25, v24, vcc
        v_lshl_add_u32 v23, v23, 13, v24
        """)

    def dma(ch):
        if HELP:
            a(f"s_mov_b32 s{S_T1}, {ch * 2 * MB}\nbuffer_load_dword v22, v23, s[{S_WM}:{S_WM+3}], s{S_T1} offen")
        for r in range(16):
            a(f"s_add_u32 m0, s{S_T2}, {(ch & 1)*16384 + 1024*r}")
            if rot is None:
                a(f"s_mov_b32 s{S_T1}, {(RI * (16 * ch + r)) << rowlog}")
            else:
                a(f"s_add_u32 s{S_T1}, s{rot}, {RI * (16 * ch + r)}\ns_and_b32 s{S_T1}, s{S_T1}, {64 * RI - 1}\ns_lshl_b32 s{S_T1}, s{S_T1}, {rowlog}")
            a(f"buffer_load_dwordx4 v16, s[{S_WM}:{S_WM+3}], s{S_T1} offen {'nt ' if E('BNT', 0) else ''}lds")

    def tr(ch):
        for f in range(16 * ch, 16 * ch + 16):
            for jj in range(2):
                o = frag_off(f, jj) - 16384 * ch
                assert 0 <= o < 16384
                a(f"ds_read_b64_tr_b16 a[{4*f+2*jj}:{4*f+2*jj+1}], v17 offset:{(ch & 1)*16384 + o}")
            if f % 4 == 3:
                a("s_waitcnt lgkmcnt(0)")
    WT = E("BWT", 0) if touch else 0
    if WT:
        a(f"""
        s_lshl_b32 s{S_T0}, s{S_H}, 16
        s_lshl_b32 s{S_T1}, s{S_WAVE}, 14
        s_add_u32 s{S_T0}, s{S_T0}, s{S_T1}
        v_lshlrev_b32 v21, 7, v{V_L}
        v_add_u32 v21, s{S_T0}, v21
        """)
    def tch(n):
        for i in range(2):
            a(f"s_mov_b32 s{S_T1}, {n * 2 * MB + i * 8192}")
            a(f"buffer_load_dword v22, v21, s[{S_WM}:{S_WM+3}], s{S_T1} offen")
    if WT == 1:
        tch(0); tch(1); dma(0); tch(2); dma(1); tch(3)
    elif WT == 2:
        tch(0); tch(1); tch(2); tch(3); dma(0); dma(1)
    else:
        dma(0); dma(1)
    a(f"s_waitcnt vmcnt({(20 if WT == 1 else 16) + HELP})"); tr(0); dma(2)
    a(f"s_waitcnt vmcnt({(18 if WT == 1 else 16) + HELP})"); tr(1); dma(3)
    a("s_waitcnt vmcnt(16)"); tr(2)
    a("s_waitcnt vmcnt(0)"); tr(3)
    a("s_barrier")


def lane32(hi_mul, swap=False, rl=6):
    if swap:
        return lane32(hi_mul).replace(f"v_lshl_add_u32 v17, v{V_T1}, 3, v17", f"""
        v_and_b32 v18, 1, v{V_L}
        v_lshl_add_u32 v17, v18, 4, v17
        v_bfe_u32 v18, v{V_L}, 1, 1
        v_lshl_add_u32 v17, v18, 3, v17""")
    return f"""
    v_bfe_u32 v17, v{V_L}, 2, 2
    v_lshrrev_b32 v18, 5, v{V_L}
    v_mul_u32_u24 v18, {hi_mul}, v18
    v_add_u32 v17, v17, v18
    v_lshlrev_b32 v17, {rl}, v17
    v_bfe_u32 v18, v{V_L}, 4, 1
    v_lshl_add_u32 v17, v18, 5, v17
    v_lshl_add_u32 v17, v{V_T1}, 3, v17
    """


def lane16(qlog):
    return f"""
    v_bfe_u32 v17, v{V_L}, 2, 2
    v_lshrrev_b32 v18, 4, v{V_L}
    v_lshl_add_u32 v17, v18, 3, v17
    v_lshlrev_b32 v17, 6, v17
    v_lshl_add_u32 v17, v{V_T1}, {qlog}, v17
    """


M32 = E('M32', 0)
GR2 = 512 if M32 else 1024
V_DX, V_RA, V_ST = 6, 8, 7
FR, NFR, AHEAD = 20, 8, 6
ACC = (52, 68)
EP = 84
S_XB = 46
S_CU, S_OB, S_FL = 47, 48, 49
S_O0, S_O1, S_OI, S_SH = 64, 65, 66, 67


def proj_setup(a, ka_w, swap, two=False, presync=True):
    assert not M32
    common(a, ka_w, KA_AX, 4 * MB)
    a(f"""
    s_lshl_b32 s{S_T0}, s{S_H}, 8
    s_lshl_b32 s{S_T1}, s{S_WAVE}, 6
    s_add_u32 s{S_OB}, s{S_T0}, s{S_T1}
    s_and_b32 s{S_T0}, s{S_OB}, 0x7ff
    v_add_u32 v19, s{S_T0}, v{V_L}
    v_lshlrev_b32 v19, 7, v19
    s_mov_b32 s{S_T0}, {0x20000 if two else 0}
    buffer_load_dword v250, v19, s[{S_XM}:{S_XM+3}], s{S_T0} offen
    s_nop 0
    """)
    a(f"""
    v_lshrrev_b32 v{V_T0}, 3, v{V_L}
    s_lshl_b32 s{S_T0}, s{S_WAVE}, 3
    v_add_u32 v{V_T0}, s{S_T0}, v{V_T0}
    v_bfe_u32 v{V_T1}, v{V_T0}, 1, 3
    v_and_b32 v{V_T2}, 7, v{V_L}
    v_xor_b32 v{V_T1}, v{V_T1}, v{V_T2}
    v_lshlrev_b32 v{V_DX}, 11, v{V_T0}
    v_lshl_add_u32 v{V_DX}, v{V_T1}, 4, v{V_DX}
    s_lshl_b32 s{S_XB}, s{S_WAVE}, 10
    v_and_b32 v{V_T0}, 15, v{V_L}
    v_bfe_u32 v{V_T1}, v{V_T0}, 1, 3
    v_lshrrev_b32 v{V_T2}, 4, v{V_L}
    v_xor_b32 v{V_T1}, v{V_T1}, v{V_T2}
    v_lshlrev_b32 v{V_RA}, 7, v{V_T0}
    v_lshl_add_u32 v{V_RA}, v{V_T1}, 4, v{V_RA}
    v_xor_b32 v{V_RA+1}, 64, v{V_RA}
    v_add_u32 v{V_RA+2}, 0x10000, v{V_RA}
    v_add_u32 v{V_RA+3}, 0x10000, v{V_RA+1}
    v_mov_b32 v{V_ST}, v{V_LL}
    """)
    if M32:
        a(f"""
        v_and_b32 v{V_T0}, 31, v{V_L}
        v_bfe_u32 v{V_T1}, v{V_T0}, 1, 3
        v_lshrrev_b32 v{V_T2}, 5, v{V_L}
        v_xor_b32 v{V_T1}, v{V_T1}, v{V_T2}
        v_lshlrev_b32 v{V_RA}, 7, v{V_T0}
        v_lshl_add_u32 v{V_RA}, v{V_T1}, 4, v{V_RA}
        v_xor_b32 v{V_RA+1}, 32, v{V_RA}
        v_xor_b32 v{V_RA+2}, 64, v{V_RA}
        v_xor_b32 v{V_RA+3}, 96, v{V_RA}
        v_add_u32 v{V_RA+4}, 0x10000, v{V_RA}
        v_add_u32 v{V_RA+5}, 0x10000, v{V_RA+1}
        v_add_u32 v{V_RA+6}, 0x10000, v{V_RA+2}
        v_add_u32 v{V_RA+7}, 0x10000, v{V_RA+3}
        v_bfe_u32 v{V_T1}, v{V_L}, 4, 1
        v_lshlrev_b32 v{V_ST}, 10, v{V_T1}
        v_lshl_add_u32 v{V_ST}, v{V_T2}, 8, v{V_ST}
        v_and_b32 v{V_T1}, 15, v{V_L}
        v_lshl_add_u32 v{V_ST}, v{V_T1}, 4, v{V_ST}
        """)
    a(f"""
    s_lshl_b32 s{S_CU}, s{S_H}, 2
    s_add_u32 s{S_CU}, s{S_CU}, s{S_WAVE}
    s_mov_b32 s{S_SEG}, 0
    s_mov_b32 s50, 0
    """)
    for g in xdma_lines(0, 50):
        a("\n".join(g))
    if two:
        a("s_mov_b32 s50, 0x10000")
        for g in xdma_lines(1, 50):
            a("\n".join(g))
    NC, RG, NI_, CB = (16, 2, 4, 4096) if two else (8, 3, 8, 8192)
    a(f"""
    v_lshrrev_b32 v{V_T0}, 2, v{V_L}
    v_and_b32 v{V_T1}, 3, v{V_L}
    v_lshlrev_b32 v16, 13, v{V_T0}
    v_lshl_add_u32 v16, v{V_T1}, 4, v16
    v_add_u32 v16, s{S_OB}, v16
    s_mul_i32 s{S_T2}, s{S_WAVE}, {RG * CB}
    s_add_u32 s{S_T2}, s{S_T2}, {131072 if two else 65536}
    """)
    a(lane16(4 if swap else 3))
    a(f"""
    v_add_u32 v17, s{S_T2}, v17
    s_and_b32 s{S_T0}, s{S_H}, 3
    s_lshl_b32 s{S_T0}, s{S_T0}, 2
    s_add_u32 s{S_T0}, s{S_T0}, s{S_WAVE}
    s_lshl_b32 s{S_T0}, s{S_T0}, 3
    v_and_b32 v12, 7, v{V_L}
    v_add_u32 v12, s{S_T0}, v12
    s_lshr_b32 s{S_T0}, s{S_H}, 2
    s_lshl_b32 s{S_T0}, s{S_T0}, 10
    s_add_u32 s{S_T1}, s{S_T0}, 896
    s_add_u32 s{S_T0}, s{S_T0}, 384
    s_cmp_ge_u32 s{S_H}, 28
    s_cselect_b32 s{S_T1}, s{S_T1}, s{S_T0}
    v_mov_b32 v13, s{S_T0}
    v_mov_b32 v14, s{S_T1}
    v_cmp_gt_u32 vcc, 32, v{V_L}
    s_nop 1
    v_cndmask_b32 v13, v14, v13, vcc
    v_lshl_add_u32 v12, v12, 13, v13
    """)

    def hastouch(ch):
        return (not two) or ch % 2 == 0

    def dma(ch):
        if hastouch(ch):
            a(f"s_mov_b32 s{S_T1}, {(ch // 2 if two else ch) * MB}\nbuffer_load_dword v250, v12, s[{S_WM}:{S_WM+3}], s{S_T1} offen")
        for r in range(NI_):
            a(f"s_add_u32 m0, s{S_T2}, {(ch % RG)*CB + 1024*r}")
            a(f"s_mov_b32 s{S_T1}, {(16 * (NI_ * ch + r)) << 13}")
            a(f"buffer_load_dwordx4 v16, s[{S_WM}:{S_WM+3}], s{S_T1} offen lds")
    for ch in range(RG): dma(ch)
    for ch in range(NC):
        a(f"s_waitcnt vmcnt({sum(NI_ + hastouch(c) for c in range(ch + 1, min(ch + RG, NC)))})")
        if ch == 0: a("s_barrier")
        for f in range(NI_ * ch, NI_ * ch + NI_):
            for jj in range(2):
                o = (32 * ((f >> 1) - NI_ // 2 * ch) + 4 * jj) * 64 + (f & 1) * (8 if swap else 32)
                a(f"ds_read_b64_tr_b16 a[{4*f+2*jj}:{4*f+2*jj+1}], v17 offset:{(ch % RG)*CB + o}")
            if f % 4 == 3: a("s_waitcnt lgkmcnt(0)")
        if two and presync and ch == NC - RG - 1: sync_issue(a, 246)
        if ch + RG < NC: dma(ch + RG)
        work = [(z, n) for z in range(2 if two else 1) for n in range(NI_ * ch, NI_ * ch + NI_)]
        for i, (z, n) in enumerate(work):
            k = n >> 1
            a(f"ds_read_b128 v[{FR+4*i}:{FR+4*i+3}], v{V_RA + 2*z + (k & 1)} offset:{4096*(k >> 1) + 2048*(n & 1)}")
        a("s_waitcnt lgkmcnt(0)")
        for i, (z, n) in enumerate(work):
            k, tt, f = n >> 1, n & 1, FR + 4 * i
            for u in range(2):
                d, w = ACC[z] + 8 * tt + 4 * u, 4 * (2 * k + u)
                c = "0" if k == 0 else f"v[{d}:{d+3}]"
                if swap: a(f"v_mfma_f32_16x16x32_bf16 v[{d}:{d+3}], a[{w}:{w+3}], v[{f}:{f+3}], {c}")
                else: a(f"v_mfma_f32_16x16x32_bf16 v[{d}:{d+3}], v[{f}:{f+3}], a[{w}:{w+3}], {c}")
    if not two:
        a("s_barrier\ns_mov_b32 s50, 0x10000")
        for g in xdma_lines(1, 50):
            a("\n".join(g))


def xdma_lines(buf, s_off):
    out = []
    for kb in range(16):
        out.append([f"s_add_u32 m0, s{S_XB}, {buf*65536 + kb*3968}", "s_nop 0",
                    f"buffer_load_dwordx4 v{V_DX}, s[{S_XM}:{S_XM+3}], s{s_off} offen offset:{128*kb} lds"])
    return out


def proj_segment(a, buf, acc, wA, fill, stg=None):
    def rd(n):
        f = FR + 4 * (n % NFR)
        k = n >> 1
        if M32:
            a(f"ds_read_b128 v[{f}:{f+3}], v{V_RA + 4*buf + (n & 3)} offset:{4096*(n >> 2)}")
        else:
            a(f"ds_read_b128 v[{f}:{f+3}], v{V_RA + 2*buf + (k & 1)} offset:{4096*(k >> 1) + 2048*(n & 1)}")
    for n in range(AHEAD):
        rd(n)
    for l in fill.get(-1, []):
        a(l)
    for n in range(64):
        f = FR + 4 * (n % NFR)
        k, tt = n >> 1, n & 1
        fl = list(fill.get(n, []))
        if fl and "m0" in fl[0] and fl[1] == "s_nop 0":
            a(fl[0]); fl = fl[2:]
        if not (E("LG2", 1) and n % 2 == 1 and n + AHEAD < 64):
            a(f"s_waitcnt lgkmcnt({min(AHEAD, 64 - n) - 1 - (1 if E('LG2', 1) and n + 1 + AHEAD < 64 else 0)})")
        if M32:
            c = "0" if n == 0 else f"v[{acc}:{acc+15}]"
            if wA:
                a(f"v_mfma_f32_32x32x16_bf16 v[{acc}:{acc+15}], a[{4*n}:{4*n+3}], v[{f}:{f+3}], {c}")
            else:
                a(f"v_mfma_f32_32x32x16_bf16 v[{acc}:{acc+15}], v[{f}:{f+3}], a[{4*n}:{4*n+3}], {c}")
            if n + AHEAD < 64:
                rd(n + AHEAD)
        for u in range(0 if M32 else 2):
            d = acc + 8 * tt + 4 * u
            w = 4 * (2 * k + u)
            c = "0" if k == 0 else f"v[{d}:{d+3}]"
            if stg is not None and k == 31: d += stg - acc
            if wA:
                a(f"v_mfma_f32_16x16x32_bf16 v[{d}:{d+3}], a[{w}:{w+3}], v[{f}:{f+3}], {c}")
            else:
                a(f"v_mfma_f32_16x16x32_bf16 v[{d}:{d+3}], v[{f}:{f+3}], a[{w}:{w+3}], {c}")
            if u == 0 and n + AHEAD < 64:
                rd(n + AHEAD)
        for l in fl:
            a(l)


def pack_lines(acc, isV):
    src = [0, 2, 8, 10, 4, 6, 12, 14] if isV else [0, 2, 4, 6, 8, 10, 12, 14]
    return [f"v_cvt_pk_bf16_f32 v{EP+i}, v{acc+s}, v{acc+s+1}" for i, s in enumerate(src)]


ONEAR = E("ONEAR", 1)


def obase(dst, seg, tmp=63):
    if not ONEAR:
        return f"s_lshl_b32 s{dst}, s{seg}, 18"
    return (f"s_lshr_b32 s{tmp}, s{seg}, 2\ns_xnor_b32 s{tmp}, s{tmp}, s98\ns_and_b32 s{tmp}, s{tmp}, 1\ns_lshl_b32 s{tmp}, s{tmp}, 13\n"
            f"s_lshl_b32 s{dst}, s{seg}, 19\ns_add_u32 s{dst}, s{dst}, s{tmp}")


def kvx(cu):
    m = E("KVPAR", 0)
    return ["", f"s_xor_b32 s{S_T1}, s{S_T1}, 1", f"s_xor_b32 s{S_T1}, s{S_T1}, s{cu}"][m]


def near_base(a, dst, cu, log, region):
    a(f"""
    s_lshr_b32 s{S_T1}, s{cu}, {21 - log}
    s_xor_b32 s{S_T1}, s{S_T1}, s98
    {kvx(cu) if log == 18 else ""}
    s_and_b32 s{S_T1}, s{S_T1}, 1
    s_lshl_b32 s{S_T1}, s{S_T1}, 13
    s_lshl_b32 s{dst}, s{cu}, {log}
    s_add_u32 s{dst}, s{dst}, s{S_T1}
    s_add_u32 s{dst}, s{dst}, {region}
    """)


def kv_role(a: Asm, name, isV, ts, sync):
    TWO = E('TWO', 0)
    proj_setup(a, KA_WV if isV else KA_WK, not isV, two=TWO)
    tsx(a, ts, 2)
    def store_lines():
        return [f"s_add_u32 s51, s{S_SEG}, s{S_CU}", "s_sub_u32 s51, s51, 1", "s_bfe_u32 s52, s51, 0x40002", "s_lshl_b32 s52, s52, 14",
                "s_and_b32 s51, s51, 3", "s_lshl_b32 s51, s51, 11", "s_add_u32 s51, s51, s52", f"s_add_u32 s51, s51, s{S_OB}",
                f"buffer_store_dwordx4 v[{EP}:{EP+3}], v{V_ST}, {SRD}, s51 offen sc1",
                f"buffer_store_dwordx4 v[{EP+4}:{EP+7}], v{V_ST}, {SRD}, s51 offen offset:{GR2} sc1"] + (
                ["s_xor_b32 s51, s51, 0x2000", f"buffer_store_dwordx4 v[{EP}:{EP+3}], v{V_ST}, {SRD}, s51 offen sc1",
                 f"buffer_store_dwordx4 v[{EP+4}:{EP+7}], v{V_ST}, {SRD}, s51 offen offset:{GR2} sc1"] if E("KV2", 0) else [])

    def flag_lines():
        return [f"v_mov_b32 v17, s{S_SEG}", "s_mov_b64 exec, 1", f"buffer_store_dword v17, v16, {SRD}, s{S_FL} offen sc1", "s_mov_b64 exec, -1"]

    def seg(buf, first):
        a("\n".join(pst(0)))
        a(f"s_waitcnt vmcnt({0 if first else 2})")
        a("\n".join(pst(1)))
        a("s_barrier")
        a("\n".join(pst(2)))
        a(f"s_add_u32 s50, s{S_SEG}, 1\ns_min_u32 s50, s50, 63\ns_lshl_b32 s50, s50, 16")
        fill = {}
        if not first:
            pk = pack_lines(ACC[1 - buf], isV)
            fill[0] = pk[:3]; fill[1] = pk[3:6]; fill[2] = pk[6:]
            st = store_lines()
            fill[3] = st[:4]; fill[4] = st[4:9]; fill[5] = st[9:12]; fill[6] = st[12:]
            fill[E("FG", 42)] = pst(3) + ["s_waitcnt vmcnt(16)"] + pst(4) + flag_lines()
        fill[E("FG", 42) + 2] = [f"s_add_u32 s53, s{S_SEG}, 3", "s_min_u32 s53, s53, 63", "s_lshl_b32 s53, s53, 16",
                    "s_mov_b64 exec, 0xffff", f"buffer_load_dword v250, v19, s[{S_XM}:{S_XM+3}], s53 offen", "s_mov_b64 exec, -1"]
        if E("XT", 3) != 3: fill[E("FG", 42) + 2][0] = f"s_add_u32 s53, s{S_SEG}, {E('XT', 3)}"
        for i, g in enumerate(xdma_lines(1 - buf, 50)):
            fill[7 + 2 * i] = g
        proj_segment(a, buf, ACC[buf], not isV, fill)
        a(f"s_add_u32 s{S_SEG}, s{S_SEG}, 1")
        if E("EARLY", 0):
            a(f"s_cmp_le_u32 s{S_SEG}, {E('EARLY', 0)}\ns_cbranch_scc0 {name}_ne{buf}")
            a.nops(8)
            a("\n".join(pack_lines(ACC[buf], isV) + store_lines() + ["s_waitcnt vmcnt(0)"] + flag_lines()))
            a.label(f"{name}_ne{buf}")
    a(f"s_and_b32 s53, s{S_CU}, 31\ns_lshl_b32 s53, s53, 4\nv_add_u32 v19, s53, v{V_L}\nv_lshlrev_b32 v19, 7, v19")
    pinit(a)
    a(f"s_mov_b32 s{S_SEG}, 1")
    if TWO: sync(246, True)
    else: sync(V_T0)
    tsx(a, ts, 3)
    near_base(a, S_OB, S_CU, 18, WS_VT if isV else WS_KX)
    a(f"""
    s_xor_b32 s{S_T1}, s98, 1
    s_lshl_b32 s{S_T1}, s{S_T1}, 13
    s_lshl_b32 s{S_FL}, s{S_H}, 7
    s_add_u32 s{S_FL}, s{S_FL}, s{S_T1}
    s_lshl_b32 s{S_T1}, s{S_WAVE}, 2
    s_add_u32 s{S_FL}, s{S_FL}, s{S_T1}
    s_add_u32 s{S_FL}, s{S_FL}, {WS_F + (F_V if isV else F_K)}
    v_mov_b32 v16, 0
    """)

    if TWO:
        a("\n".join(pack_lines(ACC[0], isV) + store_lines() + [f"s_mov_b32 s{S_SEG}, 2", "s_nop 1"] + pack_lines(ACC[1], isV) + store_lines()))
        a("s_barrier\ns_mov_b32 s50, 0x20000")
        for g in xdma_lines(0, 50):
            a("\n".join(g))
        a("\n".join(["s_waitcnt vmcnt(16)"] + flag_lines() + ["s_waitcnt vmcnt(1)"]))
        a(f"s_branch {name}_mid")
    else:
        a("\n".join(pack_lines(ACC[0], isV) + store_lines() + ["s_waitcnt vmcnt(0)"] + flag_lines()))
    a.label(f"{name}_loop")
    seg(1, False)
    a(f"s_cmp_eq_u32 s{S_SEG}, 64\ns_cbranch_scc1 {name}_fin")
    a.label(f"{name}_mid")
    seg(0, False)
    a(f"s_branch {name}_loop")
    a.label(f"{name}_fin")
    a.nops(12)
    a("\n".join(pack_lines(ACC[1], isV) + store_lines() + ["s_waitcnt vmcnt(0)"] + flag_lines()))
    pdump(a)
    a("s_waitcnt vmcnt(0)\ns_barrier")


def qx_role(a: Asm, name, ts, sync):
    if E('NI', 32) == 64: sync(V_T0)
    QD = E('QD', 3)
    assert QD in (1, 3)
    proj_setup(a, KA_WQ, True)
    if E('NI', 32) == 32: sync(V_T0)
    tsx(a, ts, 3)
    L_Q, L_KV, L_KM = 131072, 139264, 155648
    S_NT, S_EH, S_C, S_KVN, S_KMN = 52, 53, 54, 55, 56
    S_KB, S_MB, S_LK, S_LM = 58, 59, 60, 61
    S_MK = 12
    V_G, V_M, V_OKM, V_OVM, V_OO, V_NEG, V_CM, V_OF, V_OF2, V_QW, V_QR = 92, 93, 94, 95, 96, 97, 98, 99, 100, 101, 102
    ONE, LS = 104, 108
    V_KR, V_VR = 103, 240
    KX, VT, KM, VM, Q, S, P, O, TMP = 112, 144, 160, 176, 184, 200, 212, 112, 236
    Q1, Q2 = 220, 228
    a(f"""
    v_lshrrev_b32 v{V_G}, 4, v{V_L}
    v_and_b32 v{V_M}, 15, v{V_L}
    s_and_b32 s{S_NT}, s{S_WAVE}, 1
    s_lshr_b32 s{S_EH}, s{S_WAVE}, 1
    s_mov_b32 s{S_C}, 0x3e0293ee
    s_mov_b32 s{S_KVN}, 0
    s_mov_b32 s{S_KMN}, 0
    v_mov_b32 v{V_NEG}, 0xff800000
    v_mov_b32 v241, 0xceabdc6e
    v_and_b32 v{V_T0}, 7, v{V_M}
    v_lshlrev_b32 v{V_OKM}, 7, v{V_G}
    v_lshl_add_u32 v{V_OKM}, v{V_T0}, 4, v{V_OKM}
    v_and_b32 v{V_T0}, 31, v{V_L}
    v_lshlrev_b32 v{V_OVM}, 3, v{V_T0}
    v_lshrrev_b32 v{V_T0}, 1, v{V_G}
    v_lshlrev_b32 v{V_OO}, 10, v{V_T0}
    v_and_b32 v{V_T0}, 1, v{V_G}
    v_lshl_add_u32 v{V_OO}, v{V_T0}, 9, v{V_OO}
    v_lshl_add_u32 v{V_OO}, v{V_M}, 4, v{V_OO}
    s_lshl_b32 s{S_T0}, s{S_H}, {13 + ONEAR}
    s_lshl_b32 s{S_T1}, s{S_EH}, 12
    s_add_u32 s{S_T0}, s{S_T0}, s{S_T1}
    s_lshl_b32 s{S_T1}, s{S_NT}, 8
    s_add_u32 s{S_T0}, s{S_T0}, s{S_T1}
    s_add_u32 s{S_T0}, s{S_T0}, {WS_O}
    v_add_u32 v{V_OO}, s{S_T0}, v{V_OO}
    s_lshl_b32 s{S_T0}, s{S_NT}, 4
    v_add_u32 v{V_CM}, s{S_T0}, v{V_M}
    v_lshlrev_b32 v{V_T0}, 2, v{V_G}
    v_sub_u32 v{V_CM}, v{V_CM}, v{V_T0}
    s_mov_b32 s28, 0
    s_mov_b32 s29, -1
    s_xor_b32 s{S_T1}, s98, 1
    s_lshl_b32 s{S_T1}, s{S_T1}, 13
    s_lshl_b32 s{S_T0}, s{S_H}, 7
    s_add_u32 s{S_T0}, s{S_T0}, s{S_T1}
    s_add_u32 s{S_T0}, s{S_T0}, {WS_F}
    v_and_b32 v{V_T0}, 3, v{V_L}
    v_bfe_u32 v{V_T1}, v{V_L}, 2, 1
    v_lshlrev_b32 v{V_OF}, 12, v{V_T1}
    v_lshl_add_u32 v{V_OF}, v{V_T0}, 2, v{V_OF}
    v_add_u32 v{V_OF}, s{S_T0}, v{V_OF}
    s_xor_b32 s62, s98, 1
    s_lshl_b32 s62, s62, 13
    s_lshr_b32 s{S_T1}, s{S_CU}, 6
    s_lshl_b32 s{S_T1}, s{S_T1}, 14
    s_add_u32 s62, s62, s{S_T1}
    s_and_b32 s{S_T1}, s{S_CU}, 63
    s_lshl_b32 s{S_T1}, s{S_T1}, 7
    s_add_u32 s62, s62, s{S_T1}
    s_add_u32 s62, s62, {WS_F + F_KVM}
    s_lshl_b32 s{S_FL}, s{S_H}, 7
    s_lshl_b32 s{S_T1}, s{S_WAVE}, 2
    s_add_u32 s{S_FL}, s{S_FL}, s{S_T1}
    s_lshl_b32 s{S_T1}, s98, 13
    s_add_u32 s{S_FL}, s{S_FL}, s{S_T1}
    s_add_u32 s{S_FL}, s{S_FL}, {WS_F + F_O}
    s_lshl_b32 s{S_T0}, s{S_WAVE}, 11
    s_add_u32 s{S_T0}, s{S_T0}, {L_Q}
    v_add_u32 v{V_QW}, s{S_T0}, v{V_ST}
    s_lshl_b32 s{S_T0}, s{S_NT}, 10
    s_add_u32 s{S_T0}, s{S_T0}, {L_Q}
    v_add_u32 v{V_QR}, s{S_T0}, v{V_LL}
    v_mov_b32 v16, 0
    s_mov_b32 s50, 0
    """)
    for i in range(4):
        a(f"v_mov_b32 v{ONE+i}, 0x3f803f80")
    for t in range(2):
        for r in range(4):
            a(f"v_cmp_gt_i32 s[{S_MK+8*t+2*r}:{S_MK+8*t+2*r+1}], {16*t+r}, v{V_CM}")
    near_base(a, S_KB, S_CU, 18, WS_KX)
    if E("KV2", 0): a(f"s_xor_b32 s{S_KB}, s{S_KB}, 0x2000")
    near_base(a, S_MB, S_CU, 17, WS_KVM)
    a(f"""
    s_lshl_b32 s{S_LK}, s{S_WAVE}, 11
    s_add_u32 s{S_LK}, s{S_LK}, {L_KV}
    s_lshl_b32 s{S_LM}, s{S_WAVE}, 10
    s_add_u32 s{S_LM}, s{S_LM}, {L_KM}
    v_add_u32 v{V_OKM}, {L_KM}, v{V_OKM}
    s_lshl_b32 s{S_T0}, s{S_EH}, 11
    s_add_u32 s{S_T0}, s{S_T0}, {L_KM + 512}
    v_add_u32 v{V_OVM}, s{S_T0}, v{V_OVM}
    v_add_u32 v{V_KR}, {L_KV}, v{V_LL}
    s_lshl_b32 s{S_T0}, s{S_EH}, 12
    s_add_u32 s{S_T0}, s{S_T0}, {L_KV + 8192}
    v_add_u32 v{V_VR}, s{S_T0}, v{V_LL}
    """)
    a("s_waitcnt vmcnt(0)")

    def wait_flag(tag, known, voff, sleep):
        a(f"""
        s_cmp_gt_i32 s{known}, s{S_SEG}
        s_cbranch_scc1 {name}_{tag}k
{name}_{tag}w:
        """)
        wdog(a, name)
        if E("KAP", 1):
            a(f"v_mov_b32 v{V_T0}, 0\ns_mov_b64 exec, 0xff\nbuffer_atomic_add v{V_T0}, v{voff}, {SRD}, 0 offen sc0 sc1\ns_mov_b64 exec, -1")
        else:
            a(f"buffer_load_dword v{V_T0}, v{voff}, {SRD}, 0 offen sc1")
        a(f"""
        s_waitcnt vmcnt(0)
        v_min_i32_dpp v{V_T0}, v{V_T0}, v{V_T0} quad_perm:[1,0,3,2] row_mask:0xf bank_mask:0xf
        s_nop 1
        v_min_i32_dpp v{V_T0}, v{V_T0}, v{V_T0} quad_perm:[2,3,0,1] row_mask:0xf bank_mask:0xf
        s_nop 1
        v_min_i32_dpp v{V_T0}, v{V_T0}, v{V_T0} row_half_mirror row_mask:0xf bank_mask:0xf
        s_nop 0
        v_readfirstlane_b32 s{known}, v{V_T0}
        s_cmp_gt_i32 s{known}, s{S_SEG}
        s_cbranch_scc1 {name}_{tag}k
        s_sleep {sleep}
        s_branch {name}_{tag}w
{name}_{tag}k:
        """)

    def flag_lines():
        return [f"v_mov_b32 v17, s{S_SEG}", "s_mov_b64 exec, 1", f"buffer_store_dword v17, v16, {SRD}, s{S_FL} offen sc1", "s_mov_b64 exec, -1"]

    def kmpoll_lines():
        if E("APOLL", 1):
            return [f"v_mov_b32 v{V_OF2}, 0", "s_mov_b64 exec, 1", f"buffer_atomic_add v{V_OF2}, v16, {SRD}, s62 offen sc0 sc1", "s_mov_b64 exec, -1"]
        return [f"buffer_load_dword v{V_OF2}, v16, {SRD}, s62 offen sc1"]

    def km_lines():
        return [f"s_mov_b32 m0, s{S_LM}", "s_nop 0", f"buffer_load_dwordx4 v{V_LL}, {SRD}, s68 offen sc1 lds"]

    def seg(buf):
        a("s_barrier")
        a("\n".join(pst(0)))
        wait_flag(f"kv{buf}", S_KVN, V_OF, 4)
        sal = f"""s_add_u32 s51, s{S_CU}, s{S_SEG}
        s_bfe_u32 s57, s51, 0x40002
        s_lshl_b32 s57, s57, 14
        s_and_b32 s66, s51, 3
        s_lshl_b32 s66, s66, 11
        s_add_u32 s66, s66, s57
        s_add_u32 s66, s66, s{S_KB}
        s_add_u32 s67, s66, {WS_VT}
        s_bfe_u32 s57, s51, 0x30003
        s_lshl_b32 s57, s57, 14
        s_and_b32 s68, s51, 7
        s_lshl_b32 s68, s68, 10
        s_add_u32 s68, s68, s57
        s_add_u32 s68, s68, s{S_MB}
        s_add_u32 s50, s{S_SEG}, {QD + 1}
        s_min_u32 s50, s50, 63
        s_lshl_b32 s50, s50, 16
        s_cmp_gt_i32 s{S_KMN}, s{S_SEG}
        s_cselect_b32 s30, 1, 0""".split("\n")
        fill = {-1: sal}
        for i in range(4):
            fill[2 * i] = [f"s_add_u32 m0, s{S_LK}, {8192 * (i >> 1)}", "s_nop 0",
                           f"buffer_load_dwordx4 v{V_LL}, {SRD}, s{66 + (i >> 1)} offen offset:{1024 * (i & 1)} sc1 lds"]
        fill[8] = ["s_cmp_eq_u32 s30, 1", f"s_cbranch_scc0 {name}_ke{buf}"] + km_lines() + [f"{name}_ke{buf}:"]
        for i, g in enumerate(xdma_lines(1 - (buf & 1), 50)):
            fill[10 + 2 * i] = g
        a("\n".join(pst(1)))
        fill[27] = ["s_waitcnt vmcnt(13)"] + flag_lines()
        fill[29] = kmpoll_lines()
        pk = pack_lines(ACC[1], False)
        if QD > 1:
            pk = [f"v_pk_mul_f32 v[{d+i}:{d+i+1}], v[{r+i}:{r+i+1}], 1.0" if False else f"v_mov_b64 v[{d+i}:{d+i+1}], v[{r+i}:{r+i+1}]" for d, r in ((EP, Q1), (Q1, Q2)) for i in range(0, 8, 2)] + \
                 [l.replace(f"v{EP+i},", f"v{Q2+i},", 1) for i, l in enumerate(pk)]
        qg = list(range(42, 42 + len(pk) // 2))
        for i, g in enumerate(qg): fill[g] = pk[2*i:2*i+2]
        fill[54] = ["s_waitcnt vmcnt(6)", f"v_readfirstlane_b32 s{S_KMN}, v{V_OF2}", "s_cmp_eq_u32 s30, 1", f"s_cbranch_scc1 {name}_kf{buf}",
                    f"s_cmp_gt_i32 s{S_KMN}, s{S_SEG}", f"s_cbranch_scc0 {name}_kf{buf}", "s_mov_b32 s30, 1"] + km_lines() + [f"{name}_kf{buf}:"]
        fill[61] = [f"ds_write_b128 v{V_QW}, v[{EP}:{EP+3}]", f"ds_write_b128 v{V_QW}, v[{EP+4}:{EP+7}] offset:{GR2}"]
        a(f"s_cmp_ge_u32 s{S_SEG}, {64 - QD}\ns_cbranch_scc0 {name}_nl{buf}")
        for i in [-1, 0, 2, 4, 6, 8] + qg + [61]:
            a("\n".join(fill[i]).replace(f"{name}_ke{buf}", f"{name}_kx{buf}"))
        a("\n".join(["s_waitcnt vmcnt(4)"] + flag_lines()))
        if E("LASTD", 0) > buf:
            a(f"""
            s_cmp_eq_u32 s{S_SEG}, {63 - buf}
            s_cbranch_scc0 {name}_jl{buf}
            s_waitcnt lgkmcnt(0) vmcnt(0)
            s_barrier
            """)
            klast(a, 69, S_H, -L_KM, 1 - buf)
            for j in range(4):
                a(f"ds_read_b128 v[{Q+4*j}:{Q+4*j+3}], v{V_QR} offset:{2048*j}")
                for t in range(2):
                    a(f"ds_read_b128 v[{KX+16*t+4*j}:{KX+16*t+4*j+3}], v{V_KR} offset:{2048*j + 1024*t}")
            a("s_waitcnt lgkmcnt(0)")
            for j in range(4):
                for t in range(2):
                    c = "0" if j == 0 else f"v[{S+4*t}:{S+4*t+3}]"
                    a(f"v_mfma_f32_16x16x32_bf16 v[{S+4*t}:{S+4*t+3}], v[{KX+16*t+4*j}:{KX+16*t+4*j+3}], v[{Q+4*j}:{Q+4*j+3}], {c}")
                a(f"ds_read_b128 v[{VT+4*j}:{VT+4*j+3}], v{V_VR} offset:{1024*j}")
            a.label(f"{name}_lp{buf}")
            wdog(a, name)
            for j in range(4):
                a(f"buffer_load_dwordx4 v[{KM+4*j}:{KM+4*j+3}], v{V_OKM}, {SRD}, s69 offen offset:{1024*j} sc1")
                a(f"buffer_load_dwordx2 v[{VM+2*j}:{VM+2*j+1}], v{V_OVM}, {SRD}, s69 offen offset:{1024*(j >> 1) + 256*(j & 1)} sc1")
            a(f"""
            s_waitcnt vmcnt(0)
            v_max3_u32 v{V_T0}, v{KM}, v{KM+4}, v{KM+8}
            v_max3_u32 v{V_T1}, v{VM}, v{VM+2}, v{VM+4}
            v_max3_u32 v{V_T0}, v{V_T0}, v{KM+12}, v{VM+6}
            v_max_u32 v{V_T0}, v{V_T0}, v{V_T1}
            v_cmp_eq_u32 vcc, -1, v{V_T0}
            s_cbranch_vccnz {name}_lp{buf}
            """)
            for j in range(4):
                c = "0" if j == 0 else f"v[{S+8}:{S+11}]"
                a(f"v_mfma_f32_16x16x32_bf16 v[{S+8}:{S+11}], v[{KM+4*j}:{KM+4*j+3}], v[{Q+4*j}:{Q+4*j+3}], {c}")
            a(f"s_branch {name}_sm{buf}")
        a(f"s_branch {name}_jl{buf}")
        a.label(f"{name}_nl{buf}")
        proj_segment(a, buf, ACC[0], True, fill, stg=ACC[1])
        a.label(f"{name}_jl{buf}")
        a("\n".join(pst(2)))
        a(f"s_cmp_eq_u32 s30, 1\ns_cbranch_scc1 {name}_kl{buf}")
        a.label(f"{name}_kw{buf}")
        wdog(a, name)
        a("\n".join(kmpoll_lines()))
        a(f"""
        s_waitcnt vmcnt(0)
        v_readfirstlane_b32 s{S_KMN}, v{V_OF2}
        s_cmp_gt_i32 s{S_KMN}, s{S_SEG}
        s_cbranch_scc1 {name}_kv{buf}
        s_cmp_eq_u32 s{S_SEG}, 63
        s_cbranch_scc1 {name}_kw{buf}
        {f"s_sleep {E('XS', 0)}" if E("XS", 0) else ""}
        s_branch {name}_kw{buf}
{name}_kv{buf}:
        """)
        a("\n".join(km_lines()))
        a.label(f"{name}_kl{buf}")
        a("\n".join(pst(4)))
        a(f"""
        s_waitcnt lgkmcnt(0) vmcnt(0)
        s_barrier
        """)
        a("\n".join(pst(5)))
        for j in range(4):
            a(f"ds_read_b128 v[{Q+4*j}:{Q+4*j+3}], v{V_QR} offset:{2048*j}")
            for t in range(2):
                a(f"ds_read_b128 v[{KX+16*t+4*j}:{KX+16*t+4*j+3}], v{V_KR} offset:{2048*j + 1024*t}")
        for j in range(4):
            a(f"s_waitcnt lgkmcnt({9 - 2*j})")
            for t in range(2):
                c = "0" if j == 0 else f"v[{S+4*t}:{S+4*t+3}]"
                a(f"v_mfma_f32_16x16x32_bf16 v[{S+4*t}:{S+4*t+3}], v[{KX+16*t+4*j}:{KX+16*t+4*j+3}], v[{Q+4*j}:{Q+4*j+3}], {c}")
            a(f"ds_read_b128 v[{KM+4*j}:{KM+4*j+3}], v{V_OKM} offset:{1024*j}")
        for j in range(4):
            a(f"s_waitcnt lgkmcnt({3 + j})")
            c = "0" if j == 0 else f"v[{S+8}:{S+11}]"
            a(f"v_mfma_f32_16x16x32_bf16 v[{S+8}:{S+11}], v[{KM+4*j}:{KM+4*j+3}], v[{Q+4*j}:{Q+4*j+3}], {c}")
            a(f"ds_read_b128 v[{VT+4*j}:{VT+4*j+3}], v{V_VR} offset:{1024*j}")
            a(f"ds_read_b64 v[{VM+2*j}:{VM+2*j+1}], v{V_OVM} offset:{1024*(j >> 1) + 256*(j & 1)}")
        a.label(f"{name}_sm{buf}")
        for i in range(0, 8, 2):
            a(f"v_pk_mul_f32 v[{S+i}:{S+i+1}], v[{S+i}:{S+i+1}], s[{S_C}:{S_C+1}] op_sel_hi:[1,0]")
        for i in range(8):
            a(f"v_cndmask_b32 v{S+i}, v{S+i}, v241, s[{S_MK+2*i}:{S_MK+2*i+1}]")
        for i in (8, 10):
            a(f"v_pk_mul_f32 v[{S+i}:{S+i+1}], v[{S+i}:{S+i+1}], s[{S_C}:{S_C+1}] op_sel_hi:[1,0]")
        for i in range(4):
            a(f"v_cndmask_b32 v{S+8+i}, v{S+8+i}, v{V_NEG}, s[28:29]")
        MX, TM, SM = TMP, TMP + 1, TMP + 2
        a(f"v_max3_f32 v{MX}, v{S}, v{S+1}, v{S+2}")
        for i in range(3, 11, 2):
            a(f"v_max3_f32 v{MX}, v{MX}, v{S+i}, v{S+i+1}")
        a(f"""
        v_max_f32 v{TM}, v{MX}, v{S+11}
        v_max_f32 v{MX}, v{MX}, v{S+11}
        s_nop 1
        v_permlane16_swap_b32 v{MX}, v{TM}
        s_nop 0
        v_max_f32 v{SM}, v{MX}, v{TM}
        v_max_f32 v{SM+1}, v{MX}, v{TM}
        s_nop 1
        v_permlane32_swap_b32 v{SM}, v{SM+1}
        s_nop 0
        v_max_f32 v{MX}, v{SM}, v{SM+1}
        """)
        for i in range(0, 12, 2):
            a(f"v_pk_add_f32 v[{S+i}:{S+i+1}], v[{S+i}:{S+i+1}], v[{MX}:{MX+1}] op_sel_hi:[1,0] neg_lo:[0,1] neg_hi:[0,1]")
        for i in range(12):
            a(f"v_exp_f32 v{S+i}, v{S+i}")
        a.nops(1)
        for i in range(6):
            a(f"v_cvt_pk_bf16_f32 v{P+i}, v{S+2*i}, v{S+2*i+1}")
        a("s_waitcnt lgkmcnt(0)\ns_nop 0")
        a(f"v_mfma_f32_16x16x32_bf16 v[{LS}:{LS+3}], v[{ONE}:{ONE+3}], v[{P}:{P+3}], 0")
        for T in range(4):
            a(f"v_mfma_f32_16x16x32_bf16 v[{O+4*T}:{O+4*T+3}], v[{VT+4*T}:{VT+4*T+3}], v[{P}:{P+3}], 0")
        a(f"v_mfma_f32_16x16x16_bf16 v[{LS}:{LS+3}], v[{ONE}:{ONE+1}], v[{P+4}:{P+5}], v[{LS}:{LS+3}]")
        for T in range(4):
            a(f"v_mfma_f32_16x16x16_bf16 v[{O+4*T}:{O+4*T+3}], v[{VM+2*T}:{VM+2*T+1}], v[{P+4}:{P+5}], v[{O+4*T}:{O+4*T+3}]")
        a(f"""
        {obase(51, S_SEG)}
        s_nop 2
        v_rcp_f32 v{SM}, v{LS}
        v_rcp_f32 v{SM+1}, v{LS+1}
        s_nop 1
        """)
        for i in range(0, 16, 2):
            a(f"v_pk_mul_f32 v[{O+i}:{O+i+1}], v[{O+i}:{O+i+1}], v[{SM}:{SM+1}]")
        for i in range(8):
            a(f"v_cvt_pk_bf16_f32 v{S+i}, v{O+2*i}, v{O+2*i+1}")
        a(f"""
        buffer_store_dwordx4 v[{S}:{S+3}], v{V_OO}, {SRD}, s51 offen sc1
        buffer_store_dwordx4 v[{S+4}:{S+7}], v{V_OO}, {SRD}, s51 offen offset:2048 sc1
        s_add_u32 s{S_SEG}, s{S_SEG}, 1
        """)
        a("\n".join(pst(6)))
    pinit(a)
    if QD == 1:
        for i in range(16):
            a(f"v_mov_b32 v{ACC[1]+i}, v{ACC[0]+i}")
    else:
        pkto = lambda acc, d: "\n".join(l.replace(f"v{EP+i},", f"v{d+i},", 1) for i, l in enumerate(pack_lines(acc, False)))
        a(pkto(ACC[0], Q1))
        a("s_barrier\ns_mov_b32 s50, 0x20000")
        proj_segment(a, 1, ACC[0], True, {2 * i: g for i, g in enumerate(xdma_lines(0, 50))})
        a("s_waitcnt vmcnt(0)\ns_barrier\ns_mov_b32 s50, 0x30000")
        a.nops(6)
        a(pkto(ACC[0], Q2))
        proj_segment(a, 0, ACC[0], True, {2 * i: g for i, g in enumerate(xdma_lines(1, 50))}, stg=ACC[1])
        a("s_waitcnt vmcnt(0)")
    a.label(f"{name}_loop")
    seg(1)
    seg(0)
    a(f"s_cmp_lt_u32 s{S_SEG}, 64\ns_cbranch_scc1 {name}_loop")
    a("\n".join(["s_waitcnt vmcnt(0)"] + flag_lines()))
    pdump(a)
    a.label(f"{name}_quit")
    ts(4)
    a("s_endpgm")


def out_role(a: Asm, name, ts, back):
    common(a, KA_WO, KA_OUT, 8 * MB)
    S_ON, S_PAR, S_PRE, S_ROT, S_PEND, S_KH, S_C = 52, 53, 55, 56, 57, 58, 59
    S_ST = 71
    V_OL, V_OF, V_LW, V_LRK, V_LRS, V_OS, V_SND, V_RCV = 6, 7, 8, 9, 10, 11, 12, 13
    ACCO, RD, KEEP, INB, F0, NF, STG = 20, 52, 84, 88, 96, 32, 224
    HS, QS, US, WSs, PS = 544, 1088, 4352, 8704, 34816
    a(f"""
    s_and_b32 s{S_KH}, s{S_H}, 1
    s_lshr_b32 s{S_C}, s{S_H}, 1
    s_lshl_b32 s{S_T0}, s{S_KH}, 22
    s_lshl_b32 s{S_T1}, s{S_WAVE}, 20
    s_add_u32 s{S_T0}, s{S_T0}, s{S_T1}
    s_lshl_b32 s{S_T1}, s{S_C}, 7
    s_add_u32 s{S_OB}, s{S_T0}, s{S_T1}
    s_and_b32 s{S_ROT}, s{S_C}, {7 if E("ROT8", 1) else 3}
    s_lshl_b32 s{S_ROT}, s{S_ROT}, {6 if E("ROT8", 1) else 7}
    """)
    a(f"s_cmp_eq_u32 s68, 2\ns_cbranch_scc1 {name}_hw")
    load_weights(a, 11, S_OB, lane32(4, rl=7), lambda f, jj: (128 * (f >> 4) + 32 * ((f >> 2) & 3) + 8 * ((f >> 1) & 1) + 16 * jj) * 128 + 64 * (f & 1), rot=S_ROT, cl=3)
    a(f"s_cmp_eq_u32 s68, 1\ns_cbranch_scc1 {back}")
    a.label(f"{name}_hw")
    a(f"""
    s_lshl_b32 s{S_ROT}, s{S_ROT}, 6
    s_lshl_b32 s{S_T0}, s{S_KH}, {17 + ONEAR}
    s_lshl_b32 s{S_T1}, s{S_WAVE}, {15 + ONEAR}
    s_add_u32 s{S_T0}, s{S_T0}, s{S_T1}
    s_add_u32 s{S_T0}, s{S_T0}, {WS_O}
    v_add_u32 v{V_OL}, s{S_T0}, v{V_LL}
    v_and_b32 v{V_T0}, 3, v{V_L}
    v_lshlrev_b32 v{V_OF}, 2, v{V_T0}
    v_bfe_u32 v{V_T0}, v{V_L}, 2, 2
    v_lshl_add_u32 v{V_OF}, v{V_T0}, 7, v{V_OF}
    s_lshl_b32 s{S_T0}, s{S_KH}, 11
    s_lshl_b32 s{S_T1}, s{S_WAVE}, 9
    s_add_u32 s{S_T0}, s{S_T0}, s{S_T1}
    s_lshl_b32 s{S_T1}, s98, 13
    s_add_u32 s{S_T0}, s{S_T0}, s{S_T1}
    s_add_u32 s{S_T0}, s{S_T0}, {WS_F + F_O}
    v_add_u32 v{V_OF}, s{S_T0}, v{V_OF}
    s_mul_i32 s{S_T0}, s{S_WAVE}, {WSs}
    v_lshrrev_b32 v{V_T0}, 5, v{V_L}
    v_lshl_add_u32 v{V_LW}, v{V_T0}, 5, v{V_LL}
    v_add_u32 v{V_LW}, s{S_T0}, v{V_LW}
    v_and_b32 v{V_T0}, 7, v{V_L}
    v_mul_u32_u24 v{V_LRK}, {HS}, v{V_T0}
    v_lshrrev_b32 v{V_T1}, 3, v{V_L}
    v_lshl_add_u32 v{V_LRK}, v{V_T1}, 4, v{V_LRK}
    s_lshl_b32 s{S_T0}, s{S_WAVE}, 7
    v_add_u32 v{V_LRK}, s{S_T0}, v{V_LRK}
    s_mul_i32 s{S_T0}, s{S_KH}, {US}
    s_sub_u32 s{S_T1}, {US}, s{S_T0}
    v_add_u32 v{V_LRS}, s{S_T1}, v{V_LRK}
    v_add_u32 v{V_LRK}, s{S_T0}, v{V_LRK}
    s_lshl_b32 s{S_T0}, s{S_WAVE}, 15
    s_lshl_b32 s{S_T1}, s{S_H}, 6
    s_add_u32 s{S_T0}, s{S_T0}, s{S_T1}
    v_lshlrev_b32 v{V_OS}, 12, v{V_T1}
    v_and_b32 v{V_T0}, 7, v{V_L}
    v_lshl_add_u32 v{V_OS}, v{V_T0}, 3, v{V_OS}
    v_add_u32 v{V_OS}, s{S_T0}, v{V_OS}
    s_lshl_b32 s{S_T1}, s{S_WAVE}, 10
    s_add_u32 s{S_T0}, s{S_OI}, s{S_T1}
    v_add_u32 v{V_RCV}, s{S_T0}, v{V_LL}
    v_xor_b32 v{V_SND}, 8192, v{V_RCV}
    s_lshl_b32 s{S_ST}, 1, s{S_SH}
    s_mov_b32 s{S_SEG}, s{S_O0}
    s_mov_b32 s{S_ON}, 0
    s_mov_b32 s{S_PAR}, 0
    s_mov_b32 s{S_PEND}, 0
    """)

    def opoll(r):
        if E("OAP", 0):
            a(f"v_mov_b32 v{r}, 0\ns_mov_b64 exec, 0xffff\nbuffer_atomic_add v{r}, v{V_OF}, {SRD}, 0 offen sc0 sc1\ns_mov_b64 exec, -1")
        else:
            a(f"buffer_load_dword v{r}, v{V_OF}, {SRD}, 0 offen sc1")

    def ld(k, sbase):
        f = F0 + 4 * k
        if k % 4 == 0:
            a(f"s_add_u32 s51, s{S_ROT}, {1024 * k}\ns_and_b32 s51, s51, 0x7fff")
            if ONEAR: a("s_and_b32 s63, s51, 0x6000\ns_add_u32 s51, s51, s63")
            a(f"s_add_u32 s51, s51, s{sbase}")
        a(f"buffer_load_dwordx4 v[{f}:{f+3}], v{V_OL}, {SRD}, s51 offen offset:{1024*(k & 3)} sc1")

    def mf(k):
        f = F0 + 4 * k
        for u in range(2):
            d = ACCO + 16 * u
            c = "0" if k == 0 else f"v[{d}:{d+15}]"
            if k == NF - 1: d = STG + 16 * u
            a(f"v_mfma_f32_32x32x16_bf16 v[{d}:{d+15}], a[{8*k+4*u}:{8*k+4*u+3}], v[{f}:{f+3}], {c}")

    def slot_lines(sreg):
        return [f"s_sub_u32 s60, s{sreg}, s{S_O0}", f"s_lshr_b32 s60, s60, s{S_SH}", "s_bfe_u32 s61, s60, 0x10001", "s_and_b32 s60, s60, 1", "s_lshl_b32 s60, s60, 12"]

    def inb(sreg):
        a("\n".join(slot_lines(sreg)))
        a(f"buffer_load_dwordx4 v[{INB}:{INB+3}], v{V_RCV}, {SRD}, s60 offen sc1")

    def fin(tag, sreg, cnt):
        a(f"s_waitcnt vmcnt({cnt})")
        a.label(f"{name}_{tag}c")
        a(f"""
        v_and_b32 v14, 1, v{INB}
        v_cmp_ne_u32 vcc, s61, v14
        s_cbranch_vccz {name}_{tag}k
        """)
        wdog(a, name)
        inb(sreg)
        a(f"s_waitcnt vmcnt(0)\ns_branch {name}_{tag}c")
        a.label(f"{name}_{tag}k")
        a(f"""
        v_pk_add_f32 v[{INB}:{INB+1}], v[{INB}:{INB+1}], v[{KEEP}:{KEEP+1}]
        v_pk_add_f32 v[{INB+2}:{INB+3}], v[{INB+2}:{INB+3}], v[{KEEP+2}:{KEEP+3}]
        s_lshl_b32 s60, s{sreg}, 17
        v_cvt_pk_bf16_f32 v{INB+4}, v{INB}, v{INB+1}
        v_cvt_pk_bf16_f32 v{INB+5}, v{INB+2}, v{INB+3}
        buffer_store_dwordx2 v[{INB+4}:{INB+5}], v{V_OS}, s[{S_XM}:{S_XM+3}], s60 offen {os.environ.get('OSTO', 'sc1')}
        """)

    tsx(a, ts, 3)
    pinit(a)
    a.label(f"{name}_cold")
    a(f"s_cmp_gt_i32 s{S_ON}, s{S_SEG}\ns_cbranch_scc1 {name}_fk")
    a.label(f"{name}_fw")
    wdog(a, name)
    opoll(V_T0)
    a(f"""
    s_waitcnt vmcnt(0)
    v_min_i32_dpp v{V_T0}, v{V_T0}, v{V_T0} quad_perm:[1,0,3,2] row_mask:0xf bank_mask:0xf
    s_nop 1
    v_min_i32_dpp v{V_T0}, v{V_T0}, v{V_T0} quad_perm:[2,3,0,1] row_mask:0xf bank_mask:0xf
    s_nop 1
    v_min_i32_dpp v{V_T0}, v{V_T0}, v{V_T0} row_ror:4 row_mask:0xf bank_mask:0xf
    s_nop 1
    v_min_i32_dpp v{V_T0}, v{V_T0}, v{V_T0} row_ror:8 row_mask:0xf bank_mask:0xf
    s_nop 0
    v_readfirstlane_b32 s{S_ON}, v{V_T0}
    s_min_i32 s{S_ON}, s{S_ON}, s{S_O1}
    s_cmp_gt_i32 s{S_ON}, s{S_SEG}
    s_cbranch_scc1 {name}_fk
    s_sleep 2
    s_add_u32 s{S_T0}, s{S_ON}, 2
    s_cmp_gt_i32 s{S_T0}, s{S_SEG}
    s_cbranch_scc1 {name}_fw
    s_sleep 48
    s_branch {name}_fw
    """)
    a.label(f"{name}_fk")
    a(f"s_add_u32 s54, s{S_SEG}, s{S_ST}\ns_cmp_gt_i32 s{S_ON}, s54\ns_cbranch_scc0 {name}_c0")
    a(obase(50, S_SEG))
    for k in range(NF):
        ld(k, 50)
    a("\n".join(pst(0)))
    if E("KPROF", 0): a("s_add_u32 s39, s39, 64")

    uid = [0]
    def epi_groups(sreg):
        g = [[f"v_add_u32 v{V_T0}, s{S_PAR}, v{V_LW}", f"v_add_u32 v{V_T1}, s{S_PAR}, v{V_LRK}", f"v_add_u32 v{V_T2}, s{S_PAR}, v{V_LRS}"]]
        for q in range(0, 8, 2):
            g.append([f"ds_write_b128 v{V_T0}, v[{STG+4*(q+i)}:{STG+4*(q+i)+3}] offset:{QS*(q+i)}" for i in range(2)])
        g.append([])
        g.append(["s_waitcnt lgkmcnt(0)", "s_barrier"] + [f"ds_read_b128 v[{RD+4*w}:{RD+4*w+3}], v{V_T2} offset:{WSs*w}" for w in range(4)])
        g.append([f"ds_read_b128 v[{RD+16+4*w}:{RD+16+4*w+3}], v{V_T1} offset:{WSs*w}" for w in range(4)] +
                 [f"s_sub_u32 s{S_PAR}, {PS}, s{S_PAR}"] + slot_lines(sreg))
        g.append([])
        for h, dst in ((0, RD), (16, KEEP)):
            b = RD + h
            l = [f"s_waitcnt lgkmcnt({4 if h == 0 else 0})"]
            for i in range(4):
                l.append(f"v_add_f32 v{b+i}, v{b+i}, v{b+4+i}")
                l.append(f"v_add_f32 v{b+8+i}, v{b+8+i}, v{b+12+i}")
            g.append(l)
            l = [f"v_add_f32 v{dst+i}, v{b+i}, v{b+8+i}" for i in range(4)]
            if h == 0:
                uid[0] += 1
                l += [f"v_and_or_b32 v{RD}, v{RD}, -2, s61", "s_cmp_eq_u32 s95, 0", f"s_cbranch_scc1 {name}_sa{uid[0]}",
                      f"buffer_store_dwordx4 v[{RD}:{RD+3}], v{V_SND}, {SRD}, s60 offen sc1", f"s_branch {name}_sb{uid[0]}", f"{name}_sa{uid[0]}:",
                      f"buffer_store_dwordx4 v[{RD}:{RD+3}], v{V_SND}, {SRD}, s60 offen", f"{name}_sb{uid[0]}:"]
            g.append(l)
        return g

    def loop(pre, epi):
        g = epi_groups(62) if epi else []
        for k in range(NF):
            a(f"s_waitcnt vmcnt({NF-1 if pre else NF-1-k})")
            mf(k)
            if pre: ld(k, 50)
            if 1 <= k <= len(g): a("\n".join(g[k-1]))
            if epi and k == 27: inb(62)
            if not pre and k == 20: opoll(15)
        if epi: fin(f"f{pre}", 62, 4 if pre else 0)

    def loopc(epi):
        Wn = E("OWIN", 8)
        g = epi_groups(62) if epi else []
        a.label(f"{name}_c{epi}")
        if epi == 0: tsx(a, ts, 5)
        a(f"s_add_u32 s54, s{S_SEG}, s{S_ST}\ns_sub_u32 s62, s{S_SEG}, s{S_ST}")
        a(obase(50, S_SEG))
        for k in range(Wn):
            ld(k, 50)
        for l in g: a("\n".join(l))
        for k in range(NF):
            a(f"s_waitcnt vmcnt({min(Wn, NF - k) - 1})")
            mf(k)
            if k + Wn < NF: ld(k + Wn, 50)
            if epi and k == 24: inb(62)
            if k == 24: opoll(15)
        if epi == 0: tsx(a, ts, 6)
        if epi: fin("fc", 62, 0)
        a("\n".join(pst(3)))
        a(obase(50, 54))
        a(f"s_branch {name}_imm")

    for epi in range(2):
        a.label(f"{name}_w{epi}")
        a(f"""
        s_add_u32 s54, s{S_SEG}, s{S_ST}
        s_sub_u32 s62, s{S_SEG}, s{S_ST}
        {obase(50, 54)}
        s_cmp_gt_i32 s{S_ON}, s54
        s_cbranch_scc0 {name}_n{epi}
        """)
        loop(1, epi)
        a("\n".join(pst(1)))
        a(f"s_add_u32 s{S_SEG}, s{S_SEG}, s{S_ST}\ns_branch {name}_w1")
        a.label(f"{name}_n{epi}")
        loop(0, epi)
        a("\n".join(pst(2)))
        if epi == 0: a(f"s_branch {name}_imm")
    a.label(f"{name}_imm")
    a(f"""
    s_waitcnt vmcnt(1)
    v_min_i32_dpp v15, v15, v15 quad_perm:[1,0,3,2] row_mask:0xf bank_mask:0xf
    s_nop 1
    v_min_i32_dpp v15, v15, v15 quad_perm:[2,3,0,1] row_mask:0xf bank_mask:0xf
    s_nop 1
    v_min_i32_dpp v15, v15, v15 row_ror:4 row_mask:0xf bank_mask:0xf
    s_nop 1
    v_min_i32_dpp v15, v15, v15 row_ror:8 row_mask:0xf bank_mask:0xf
    s_nop 0
    v_readfirstlane_b32 s{S_ON}, v15
    s_min_i32 s{S_ON}, s{S_ON}, s{S_O1}
    s_cmp_gt_i32 s{S_ON}, s54
    s_cbranch_scc0 {name}_im2
    s_add_u32 s{S_SEG}, s{S_SEG}, s{S_ST}
    s_add_u32 s54, s54, s{S_ST}
    s_cmp_gt_i32 s{S_ON}, s54
    s_cbranch_scc0 {name}_c1
    """)
    for k in range(NF):
        ld(k, 50)
    a(f"s_branch {name}_w1")
    loopc(0)
    loopc(1)
    a.label(f"{name}_im2")
    for g in epi_groups(S_SEG):
        a("\n".join(g))
    inb(S_SEG)
    fin("f2", S_SEG, 0)
    a("\n".join(pst(4)))
    a(f"""
    s_add_u32 s{S_SEG}, s{S_SEG}, s{S_ST}
    s_cmp_lt_u32 s{S_SEG}, s{S_O1}
    s_cbranch_scc1 {name}_cold
    """)
    if E("D63", 0):
        a(f"""
        s_add_u32 s{S_T0}, s{S_SH}, s{S_O0}
        s_cmp_eq_u32 s{S_T0}, 0
        s_cbranch_scc0 {name}_fin
        s_sub_u32 s{S_O0}, 63, s{S_O1}
        s_mov_b32 s{S_SEG}, 63
        s_mov_b32 s{S_O1}, 64
        s_branch {name}_cold
{name}_fin:
        """)
    pdump(a)
    a.label(f"{name}_quit")
    ts(4)
    a("s_endpgm")
```

```python
from gen_common import *

S_X, S_T = 30, 31
S_WSD, S_DBG = 84, 72
E = lambda k, d: int(os.environ.get(k, d))


D_VOTE, D_PD, D_SLOW, D_PD2 = 128, 160, 192, 224
NI = E('NI', 32)


def start_code(a: Asm, name):
    W, D = S_WSD, S_DBG
    a(f"""
    s_load_dwordx2 s[{W}:{W+1}], s[0:1], {KA_WS}
    s_load_dwordx2 s[{D}:{D+1}], s[0:1], {KA_DBG}
    s_getreg_b32 s90, hwreg(HW_REG_XCC_ID)
    s_and_b32 s90, s90, 7
    v_mov_b32 v1, 0
    v_mov_b32 v2, 1
    s_lshl_b32 s91, s90, 4
    s_mov_b32 s95, 0
    s_mov_b32 s99, 0
    s_waitcnt lgkmcnt(0)
    s_mov_b32 s{W+2}, {WS_BYTES}
    s_mov_b32 s{W+3}, 0x00020000
    s_mov_b32 s{D+2}, 256
    s_mov_b32 s{D+3}, 0x00020000
    v_cmp_eq_u32 vcc, 0, v0
    s_and_saveexec_b64 s[88:89], vcc
    s_cbranch_execz {name}_tkd
    s_lshl_b32 s92, s2, 13
    s_add_u32 s92, s92, {WS_CAL}
    buffer_atomic_add v2, v1, s[{D}:{D+3}], s91 offen sc0
    buffer_load_dword v251, v1, s[{W}:{W+3}], s92 offen offset:2048 sc1
    s_waitcnt vmcnt(1)
    ds_write_b32 v1, v2
    s_waitcnt lgkmcnt(0)
{name}_tkd:
    s_mov_b64 exec, s[88:89]
    s_barrier
    ds_read_b32 v2, v1
    s_waitcnt lgkmcnt(0)
    v_readfirstlane_b32 s96, v2
    s_barrier
    """)


def klast(a: Asm, dst, h, add=0, far=1):
    a(f"""
    s_lshr_b32 s{dst}, s{h}, 2
    s_lshl_b32 s{dst}, s{dst}, 17
    s_and_b32 s77, s{h}, 2
    s_lshl_b32 s77, s77, 13
    s_add_u32 s{dst}, s{dst}, s77
    s_and_b32 s77, s{h}, 1
    s_lshl_b32 s77, s77, 12
    s_add_u32 s{dst}, s{dst}, s77
    s_xor_b32 s77, s98, {far}
    s_lshl_b32 s77, s77, 13
    s_add_u32 s{dst}, s{dst}, s77
    s_add_u32 s{dst}, s{dst}, {WS_I + 98304 + add}
    """)


def sync_issue(a: Asm, vt):
    a(f"""
    v_and_b32 v{vt+1}, 15, v0
    v_lshlrev_b32 v{vt+1}, 4, v{vt+1}
    buffer_load_dword v{vt}, v{vt+1}, s[{S_DBG}:{S_DBG+3}], 0 offen sc1
    """)


def sync_code(a: Asm, kname, tag, vt, force_slow=False, pre=False):
    D = S_DBG
    n = f"{kname}_sy{tag}"
    a(f"""
    v_and_b32 v{vt+1}, 15, v0
    v_lshlrev_b32 v{vt+1}, 4, v{vt+1}
    s_branch {n}{"p" if pre else ""}
{n}w:
    s_sleep 4
{n}:
    """)
    wd_code(a, n)
    a(f"""
    buffer_load_dword v{vt}, v{vt+1}, s[{D}:{D+3}], 0 offen sc1
    s_waitcnt vmcnt(0)
{n}p:
    s_cmp_eq_u32 s95, 1
    s_cbranch_scc0 {n}f
    v_readlane_b32 s76, v{vt}, {D_PD2 // 16}
    s_mov_b32 s98, 0
    s_cmp_eq_u32 s76, {NI}
    s_cbranch_scc0 {n}w
    s_branch {n}d
{n}f:
    s_mov_b32 s77, 0
    s_mov_b32 s78, 0
    """)
    for i in range(8):
        a(f"v_readlane_b32 s76, v{vt}, {i}\ns_add_u32 s77, s77, s76\ns_xor_b32 s76, s76, 32\ns_or_b32 s78, s78, s76")
    a(f"""
    s_cmp_eq_u32 s77, 256
    s_cbranch_scc0 {n}w
    {"s_mov_b32 s78, 1" if force_slow else ""}
    v_mov_b32 v252, v{vt}
    s_cmp_eq_u32 s78, 0
    s_cbranch_scc0 {kname}_slowent
    v_readlane_b32 s76, v{vt}, {D_PD // 16}
    v_readlane_b32 s77, v{vt}, {D_VOTE // 16}
    s_cmp_eq_u32 s76, {NI}
    s_cbranch_scc0 {n}w
    s_cmp_gt_u32 s77, {NI // 2}
    s_cselect_b32 s98, 1, 0
    {f"s_xor_b32 s98, s98, {os.environ['PAR']}" if "PAR" in os.environ else ""}
{n}d:
    """)


def slow_entry(a: Asm, name):
    D = S_DBG
    a.label(f"{name}_slowent")
    a(f"""
    s_mov_b64 exec, -1
    s_waitcnt vmcnt(0) lgkmcnt(0)
    s_barrier
    s_mov_b32 s97, s96
    """)
    for i in range(7):
        a(f"v_readlane_b32 s76, v252, {i}\ns_cmp_gt_u32 s90, {i}\ns_cselect_b32 s76, s76, 0\ns_add_u32 s97, s97, s76")
    a(f"""
    v_mov_b32 v1, 0
    v_mov_b32 v2, 1
    v_cmp_eq_u32 vcc, 0, v0
    s_and_saveexec_b64 s[88:89], vcc
    s_cbranch_execz {name}_sb1
    buffer_atomic_add v2, v1, s[{D}:{D+3}], 0 offen offset:{D_SLOW} sc1
{name}_sb1:
    s_mov_b64 exec, s[88:89]
{name}_sb2:
    s_sleep 4
    """)
    wd_code(a, "slowbar")
    a(f"""
    buffer_load_dword v2, v1, s[{D}:{D+3}], 0 offen offset:{D_SLOW} sc1
    s_waitcnt vmcnt(0)
    v_cmp_ne_u32 vcc, 256, v2
    s_cbranch_vccnz {name}_sb2
    s_mov_b32 s95, 1
    """)


def init_cd(a: Asm, name, idx):
    W, D = S_WSD, S_DBG
    a(f"""
    v_mov_b32 v8, -1
    v_mov_b32 v9, -1
    v_mov_b32 v10, -1
    v_mov_b32 v11, -1
    v_lshlrev_b32 v1, 4, v0
    v_mov_b32 v2, 0
    v_cmp_gt_u32 vcc, 64, v0
    s_cbranch_vccz {name}_nv
    s_cmp_eq_u32 s95, 0
    s_cbranch_scc0 {name}_nv
    ; latency samples of both parities (order alternates with idx), sign vote
    s_lshr_b32 s60, s2, 1
    s_lshl_b32 s60, s60, 14
    s_and_b32 s61, s{idx}, 1
    s_lshl_b32 s66, s61, 13
    s_add_u32 s60, s60, s66
    s_and_b32 s66, s2, 1
    s_lshl_b32 s66, s66, 10
    s_add_u32 s60, s60, s66
    s_add_u32 s60, s60, {WS_CAL}
    s_mov_b32 s66, 0x7fffffff
    s_mov_b32 s67, 0x7fffffff
    s_mov_b64 exec, 0xff
    s_waitcnt vmcnt(0)
    """)
    for i in range(E("NSAMP", 4)):
        a(f"""
        s_memtime s[62:63]
        s_waitcnt lgkmcnt(0)
        buffer_store_dwordx4 v[8:11], v1, s[{W}:{W+3}], s60 offen offset:{256 * (i >> 1)} sc1
        s_waitcnt vmcnt(0)
        s_memtime s[64:65]
        s_xor_b32 s60, s60, 8192
        s_waitcnt lgkmcnt(0)
        s_sub_u32 s64, s64, s62
        s_min_u32 s{66 + (i & 1)}, s{66 + (i & 1)}, s64
        """)
    a(f"""
    s_cmp_lt_u32 s67, s66
    s_cselect_b32 s60, 1, 0
    s_xor_b32 s60, s60, s61          ; parity that is near this XCD
    s_lshr_b32 s61, s90, 2
    s_xor_b32 s60, s60, s61
    v_mov_b32 v3, s60
    s_mov_b64 exec, 1
    buffer_atomic_add v3, v2, s[{D}:{D+3}], 0 offen offset:{D_VOTE} sc1
    s_mov_b64 exec, -1
{name}_nv:
    s_barrier
    s_lshl_b32 s60, s{idx}, 12
    s_add_u32 s60, s60, {WS_H}
    """)
    for i in range(512 // NI):
        a(f"buffer_store_dwordx4 v[8:11], v1, s[{W}:{W+3}], s60 offen sc1")
        a(f"s_add_u32 s60, s60, {NI * 4096}")
    a(f"""
    s_lshr_b32 s62, s{idx}, 1
    s_and_b32 s63, s{idx}, 1
    s_add_u32 s63, s63, s62
    s_lshl_b32 s62, s62, 19
    s_and_b32 s64, s63, 14
    s_lshl_b32 s64, s64, 13
    s_add_u32 s62, s62, s64
    s_and_b32 s64, s63, 1
    s_lshl_b32 s64, s64, 12
    s_add_u32 s62, s62, s64
    s_add_u32 s62, s62, {WS_XU}
    {"" if E("TAG", 1) else f"buffer_store_dwordx4 v[8:11], v1, s[{W}:{W+3}], s62 offen sc1"}
    s_add_u32 s62, s62, 8192
    {"" if E("TAG", 1) else f"buffer_store_dwordx4 v[8:11], v1, s[{W}:{W+3}], s62 offen sc1"}
    s_cmp_lt_u32 s{idx}, 16
    s_cbranch_scc0 {name}_pz
    buffer_store_dwordx4 v[8:11], v1, s[{W}:{W+3}], s60 offen sc1
{name}_pz:
    s_waitcnt vmcnt(0)
    s_barrier
    v_mov_b32 v3, 1
    s_lshl_b32 s62, s95, 6
    v_cmp_eq_u32 vcc, 0, v0
    s_and_saveexec_b64 s[60:61], vcc
    s_cbranch_execz {name}_xps
    buffer_atomic_add v3, v2, s[{D}:{D+3}], s62 offen offset:{D_PD} sc1
{name}_xps:
    s_mov_b64 exec, s[60:61]
    """)


def rec_body(a: Asm, name, IS, sync, nsteps=64, prof=False, flags=True, ts=None):
    W = S_WSD
    SRD = f"s[{W}:{W+3}]"
    S_WQ, S_WK, S_WV, S_WO, S_M0 = 4, 8, 12, 16, 20
    S_WAVE, S_H, S_J, S_STEP, S_T0, S_T1 = 24, 25, 26, 27, 28, 29
    S_C = 32
    S_SL, S_SLO = 33, 34
    S_XS, S_XSO = 35, 36
    S_P = 37
    S_MN8, S_MMEM = 40, 42
    S_XBR, S_XBW = 44, 45
    S_KVN = 46
    S_KVB, S_FLB, S_CU, S_KXB, S_TAG = 79, 81, 82, 83, 47
    S_LATE, S_WARM = 36, 89
    ONE, LS, ZER = 220, 224, 228
    S_MKM = 48
    V_L, V_G, V_M, V_T0, V_T1, V_IDX = 1, 2, 3, 4, 5, 6
    V_OMEM, V_OM0, V_OPUB, V_OSCM, V_OOP, V_OXW, V_OXR = 7, 8, 9, 10, 11, 12, 13
    V_LWQ, V_LWK, V_LRR, V_LL, V_LWO, V_LRO, V_LVW, V_LVR, V_OKV, V_NEG, V_OFL = 14, 15, 16, 17, 18, 19, 20, 21, 22, 23, 24
    V_POI = 28
    MA, AQ, AV = 32, 96, 112
    RP, R, KX, VTX, S, PL = 120, 152, 156, 164, 172, 184
    VM, P, PM, O, TMP = 208, 212, 216, 120, 232
    MO, AO, KVH = 32, 96, 244
    A_W1, A_WO = 0, 192
    L_QK, L_VP, L_OP, L_VM, L_XB, L_ST = 0, 9216, 13312, 17920, 18432, 32768

    TAG = E("TAG", 1)
    WPAD, SCS = E("WPAD", 0), E("SCS", 1280)
    OXO, SCO = 24576, 49152

    def wdog():
        wd_code(a, name + ":" + a.lines[-1], f"s{S_STEP}")

    def stamp(i):
        if E("TR", 0):
            if i == 0: return
            if i < 11: a(f"s_memtime s[{48+2*i}:{49+2*i}]")
            if i == 11:
                a("s_memrealtime s[70:71]\ns_memtime s[100:101]\ns_waitcnt lgkmcnt(0)\nv_writelane_b32 v250, s100, 12")
                for k in range(1, 12):
                    a(f"v_writelane_b32 v250, s{48+2*k}, {k}")
                a(f"v_writelane_b32 v250, s99, 0")
                a(f"""
                s_lshl_b32 s80, s{S_X}, 5
                s_add_u32 s80, s80, s{S_T}
                s_lshl_b32 s80, s80, 2
                s_add_u32 s80, s80, s{S_WAVE}
                s_lshl_b32 s80, s80, 6
                s_add_u32 s80, s80, s{S_STEP}
                s_lshl_b32 s80, s80, 6
                s_add_u32 s80, s80, {WS_PROF}
                v_lshlrev_b32 v251, 2, v{V_L}
                s_mov_b64 exec, 0xffff
                buffer_store_dword v250, v251, {SRD}, s80 offen
                s_mov_b64 exec, -1
                """)
            return
        if not prof or i == 11:
            return
        a("s_memtime s[66:67]")
        a("s_waitcnt lgkmcnt(0)")
        a("s_sub_u32 s68, s66, s69")
        a(f"s_add_u32 s{50+i}, s{50+i}, s68")
        a("s_mov_b32 s69, s66")

    if prof:
        for i in range(16):
            a(f"s_mov_b32 s{50+i}, 0")
        a("s_memtime s[66:67]\ns_waitcnt lgkmcnt(0)\ns_mov_b32 s69, s66")
    if ts: ts(1)
    a(f"""
    s_load_dwordx2 s[{S_M0}:{S_M0+1}], s[0:1], {KA_MEM0}
    s_load_dwordx2 s[{S_WO}:{S_WO+1}], s[0:1], {KA_WO}
    s_load_dwordx2 s[{S_WQ}:{S_WQ+1}], s[0:1], {KA_WQ}
    s_load_dwordx2 s[{S_WK}:{S_WK+1}], s[0:1], {KA_WK}
    s_load_dwordx2 s[{S_WV}:{S_WV+1}], s[0:1], {KA_WV}
    v_lshrrev_b32 v{V_T0}, 6, v0
    v_and_b32 v{V_L}, 63, v0
    v_readfirstlane_b32 s{S_WAVE}, v{V_T0}
    v_lshrrev_b32 v{V_G}, 4, v{V_L}
    v_and_b32 v{V_M}, 15, v{V_L}
    v_lshlrev_b32 v{V_LL}, 4, v{V_L}
    s_lshr_b32 s{S_T0}, s{S_T}, 2
    s_lshl_b32 s{S_H}, s{S_X}, 3
    s_add_u32 s{S_H}, s{S_H}, s{S_T0}
    s_and_b32 s{S_J}, s{S_T}, 3
    s_waitcnt lgkmcnt(0)
    s_mov_b32 s{S_M0+2}, 16384
    s_mov_b32 s{S_M0+3}, 0x00020000
    """)
    for s in (S_WO, S_WQ, S_WK, S_WV):
        a(f"s_mov_b32 s{s+2}, {8*MB}\ns_mov_b32 s{s+3}, 0x00020000")
    FULL = E("FULL", 0)
    CL = 2 + FULL
    a(f"""
    s_lshl_b32 s{S_T0}, s{S_H}, 8
    s_lshr_b32 s{S_T1}, s{S_J}, {FULL}
    s_lshl_b32 s{S_T1}, s{S_T1}, {6 + FULL}
    s_add_u32 s{S_T0}, s{S_T0}, s{S_T1}
    s_lshl_b32 s{S_T1}, s{S_WAVE}, 21
    s_add_u32 s{S_T0}, s{S_T0}, s{S_T1}
    v_lshrrev_b32 v{V_T0}, {CL}, v{V_L}
    v_and_b32 v{V_T1}, {(1 << CL) - 1}, v{V_L}
    v_lshlrev_b32 v40, 13, v{V_T0}
    v_lshl_add_u32 v40, v{V_T1}, 4, v40
    v_add_u32 v40, s{S_T0}, v40
    s_lshl_b32 s{S_T0}, s{S_X}, 21
    s_lshl_b32 s{S_T1}, s{S_WAVE}, 19
    s_add_u32 s{S_T0}, s{S_T0}, s{S_T1}
    s_lshr_b32 s{S_T1}, s{S_T}, {FULL}
    s_lshl_b32 s{S_T1}, s{S_T1}, {6 + FULL}
    s_add_u32 s{S_T0}, s{S_T0}, s{S_T1}
    v_lshlrev_b32 v41, 11, v{V_T0}
    v_lshl_add_u32 v41, v{V_T1}, 4, v41
    v_add_u32 v41, s{S_T0}, v41
    s_lshl_b32 s47, s{S_WAVE}, 15
    s_add_u32 s47, s47, {L_ST}
    """)
    order = [int(c) for c in os.environ.get("WORD", "1203")]
    PH = [(c, p) for c in order for p in range(1 << FULL)]
    RI = 64 >> CL

    def wdma(n):
        c, p = PH[n]
        srd = (S_WQ, S_WK, S_WV, S_WO)[c]
        if E("HELP", 1):
            a(f"buffer_load_dword v50, v{51 if c < 3 else 52}, s[{srd}:{srd+3}], 0 offen")
        for r in range(16):
            if E("PSW", 1):
                a(f"s_xor_b32 s{S_T1}, s76, {r}")
                a(f"s_lshl_b32 s{S_T0}, s{S_T1}, 10")
                a(f"s_add_u32 s{S_T0}, s{S_T0}, s47")
                a(f"s_add_u32 m0, s{S_T0}, {(n & 1)*16384}")
                a(f"s_lshl_b32 s{S_T1}, s{S_T1}, {17 if c < 3 else 15}")
            else:
                a(f"s_add_u32 m0, s47, {(n & 1)*16384 + 1024*r}")
                a(f"s_mov_b32 s{S_T1}, {RI * (16 * p + r) * (8192 if c < 3 else 2048)}")
            a(f"buffer_load_dwordx4 v{40 if c < 3 else 41}, s[{srd}:{srd+3}], s{S_T1} offen {'nt ' if (E('RNT', 0) >> c) & 1 else ''}lds")
    WT = E("WT", 0)
    assert not (WT and FULL)
    a(f"""
    s_lshl_b32 s{S_T0}, s{S_T}, 18
    s_lshl_b32 s{S_T1}, s{S_WAVE}, 16
    s_add_u32 s{S_T0}, s{S_T0}, s{S_T1}
    s_lshl_b32 s{S_T1}, s{S_X}, 11
    s_add_u32 s{S_T0}, s{S_T0}, s{S_T1}
    v_lshlrev_b32 v48, 13, v{V_G}
    v_lshl_add_u32 v48, v{V_M}, 7, v48
    v_add_u32 v48, s{S_T0}, v48
    s_lshl_b32 s{S_T0}, s{S_X}, 21
    s_lshl_b32 s{S_T1}, s{S_T}, 16
    s_add_u32 s{S_T0}, s{S_T0}, s{S_T1}
    s_lshl_b32 s{S_T1}, s{S_WAVE}, 14
    s_add_u32 s{S_T0}, s{S_T0}, s{S_T1}
    v_lshlrev_b32 v49, 7, v{V_L}
    v_add_u32 v49, s{S_T0}, v49
    """)

    a(f"""
    s_and_b32 s76, s{S_T}, 1
    s_mul_i32 s76, s76, {E("PSW", 1) * 8 if E("PSW", 1) < 2 else E("PSW", 1)}
    ; helper touch of the slow lines: row = 256w + 16*(l&15... ) : rows w*256 + (t&15)*16 + (l&15), col (t>>4)*1024 + 384
    s_and_b32 s{S_T0}, s{S_T}, 15
    s_lshl_b32 s{S_T0}, s{S_T0}, 4
    s_lshl_b32 s{S_T1}, s{S_WAVE}, 8
    s_add_u32 s{S_T0}, s{S_T0}, s{S_T1}
    v_add_u32 v53, s{S_T0}, v{V_M}
    s_lshr_b32 s{S_T0}, s{S_T}, 4
    s_lshl_b32 s{S_T0}, s{S_T0}, 10
    s_add_u32 s{S_T0}, s{S_T0}, 384
    v_mov_b32 v54, s{S_T0}
    v_mov_b32 v55, 1920
    v_cmp_gt_u32 vcc, 32, v{V_L}
    s_nop 1
    v_cndmask_b32 v54, v55, v54, vcc
    s_lshl_b32 s{S_T1}, s{S_X}, 11
    v_lshl_add_u32 v51, v53, 13, v54
    v_add_u32 v51, s{S_T1}, v51
    s_lshl_b32 s{S_T1}, s{S_X}, 21
    v_lshl_add_u32 v52, v53, 11, v54
    v_add_u32 v52, s{S_T1}, v52
    """)

    NSELF = E("NSELF", 0)
    XF, XA = 64, 192
    if NSELF:
        assert order[:2] == [1, 2] and not FULL
        a(f"""
        s_load_dwordx2 s[56:57], s[0:1], {KA_AX}
        v_lshrrev_b32 v56, 1, v{V_G}
        v_lshlrev_b32 v56, 5, v56
        v_and_b32 v57, 1, v{V_G}
        v_lshl_add_u32 v56, v57, 3, v56
        v_lshl_add_u32 v56, v{V_M}, 11, v56
        s_lshl_b32 s{S_T0}, s{S_WAVE}, 9
        v_add_u32 v56, s{S_T0}, v56
        s_mov_b32 s58, {4*MB}
        s_mov_b32 s59, 0x00020000
        s_waitcnt lgkmcnt(0)
        """)
        for zt in range(2 * NSELF):
            a(f"s_mov_b32 s{S_T1}, {zt * 32768}")
            for hk in range(8):
                f = XF + (zt * 8 + hk) * 4
                a(f"buffer_load_dwordx2 v[{f}:{f+1}], v56, s[56:59], s{S_T1} offen offset:{64*hk}")
                a(f"buffer_load_dwordx2 v[{f+2}:{f+3}], v56, s[56:59], s{S_T1} offen offset:{64*hk+16}")

    def selfproj(isV):
        if not isV:
            for f in range(16 * NSELF):
                a(f"v_swap_b32 v{XF+4*f+1}, v{XF+4*f+2}")
            a(f"""
            s_lshl_b32 s{S_T0}, s{S_WAVE}, 12
            v_add_u32 v57, s{S_T0}, v{V_LL}
            v_lshlrev_b32 v60, 3, v0
            v_add_u32 v60, {L_XB}, v60
            v_bfe_u32 v61, v0, 1, 4
            v_lshlrev_b32 v58, 4, v61                    ; m*16
            v_and_b32 v61, 1, v0
            v_lshrrev_b32 v62, 5, v0
            v_lshl_add_u32 v59, v61, 11, v58             ; V: tt*2048
            v_lshl_add_u32 v59, v62, 8, v59              ;   + u*1024 + g*256
            v_lshl_add_u32 v58, v61, 8, v58              ; K: hf*256
            v_lshl_add_u32 v58, v62, 9, v58              ;   + (tt*2048 + u*1024 + (g'&1)*512)
            """)
        for z in range(NSELF):
            for hk in range(8):
                for tt in range(2):
                    for u in range(2):
                        d, f = XA + 8 * tt + 4 * u, XF + ((2 * z + tt) * 8 + hk) * 4
                        w = A_W1 + (((2 if isV else 1) * 2 + u) * 4 + (hk >> 1)) * 8 + 4 * (hk & 1)
                        c = "0" if hk == 0 else f"v[{d}:{d+3}]"
                        if isV: a(f"v_mfma_f32_16x16x32_bf16 v[{d}:{d+3}], v[{f}:{f+3}], a[{w}:{w+3}], {c}")
                        else: a(f"v_mfma_f32_16x16x32_bf16 v[{d}:{d+3}], a[{w}:{w+3}], v[{f}:{f+3}], {c}")
            a("s_barrier")
            a.nops(8)
            for i in range(4):
                a(f"ds_write_b128 v57, v[{XA+4*i}:{XA+4*i+3}] offset:{1024*i}")
            a("s_waitcnt lgkmcnt(0)\ns_barrier")
            for w in range(4):
                a(f"ds_read_b128 v[{XA+16+4*w}:{XA+16+4*w+3}], v{59 if isV else 58} offset:{4096*w}")
            a("s_waitcnt lgkmcnt(0)")
            b = XA + 16
            for i in (0, 2):
                a(f"v_pk_add_f32 v[{b+i}:{b+i+1}], v[{b+i}:{b+i+1}], v[{b+4+i}:{b+4+i+1}]")
                a(f"v_pk_add_f32 v[{b+8+i}:{b+8+i+1}], v[{b+8+i}:{b+8+i+1}], v[{b+12+i}:{b+12+i+1}]")
            for i in (0, 2):
                a(f"v_pk_add_f32 v[{b+i}:{b+i+1}], v[{b+i}:{b+i+1}], v[{b+8+i}:{b+8+i+1}]")
            a(f"v_cvt_pk_bf16_f32 v{b+4}, v{b}, v{b+1}\nv_cvt_pk_bf16_f32 v{b+5}, v{b+2}, v{b+3}")
            a(f"ds_write_b64 v60, v[{b+4}:{b+5}] offset:{4096*z + (2048 if isV else 0)}")

    def wtouch(n):
        c, p = PH[n]
        srd = (S_WQ, S_WK, S_WV, S_WO)[c]
        for i in range(2):
            a(f"s_mov_b32 s{S_T1}, {i * (32768 if c < 3 else 8192)}")
            a(f"buffer_load_dword v50, v{48 if c < 3 else 49}, s[{srd}:{srd+3}], s{S_T1} offen")
    if WT == 1:
        wtouch(0); wtouch(1); wdma(0); wtouch(2); wdma(1); wtouch(3)
    elif WT == 2:
        wtouch(0); wtouch(1); wtouch(2); wtouch(3); wdma(0); wdma(1)
    else:
        wdma(0); wdma(1)
    a(f"""
    s_mov_b32 s{S_MN8}, 0x00ff00ff
    s_mov_b32 s{S_MN8+1}, 0x00ff00ff
    s_mov_b32 s{S_MKM}, 0xff00ff00
    s_mov_b32 s{S_MKM+1}, 0xff00ff00
    s_mov_b32 s{S_MMEM}, 0
    s_mov_b32 s{S_MMEM+1}, 0x00ff00ff
    s_mov_b32 s{S_C}, 0x3e0293ee
    v_mov_b32 v{V_NEG}, 0xff800000
    v_mov_b32 v{V_IDX}, 0x4444
    v_mov_b32 v{V_T0}, 0xeeee
    v_cndmask_b32 v{V_IDX}, v{V_IDX}, v{V_T0}, s[{S_MKM}:{S_MKM+1}]
    v_mov_b32 v{V_POI}, -1
    v_mov_b32 v{V_POI+1}, -1
    v_mov_b32 v{V_POI+2}, -1
    v_mov_b32 v{V_POI+3}, -1
    s_mul_i32 s{S_T0}, s{S_WAVE}, {4096 + WPAD}
    v_add_u32 v{V_OMEM}, s{S_T0}, v{V_LL}
    v_and_b32 v{V_T0}, 7, v{V_L}
    v_lshlrev_b32 v{V_OM0}, 11, v{V_T0}
    v_lshrrev_b32 v{V_T1}, 3, v{V_L}
    v_lshl_add_u32 v{V_OM0}, v{V_T1}, 4, v{V_OM0}
    s_lshl_b32 s{S_T0}, s{S_WAVE}, 9
    v_add_u32 v{V_OM0}, s{S_T0}, v{V_OM0}
    s_lshl_b32 s{S_T0}, s{S_T}, 9
    s_lshr_b32 s{S_T1}, s{S_T}, 3
    s_mul_i32 s{S_T1}, s{S_T1}, {WPAD}
    s_add_u32 s{S_T0}, s{S_T0}, s{S_T1}
    v_lshlrev_b32 v{V_OPUB}, 3, v{V_L}
    v_add_u32 v{V_OPUB}, s{S_T0}, v{V_OPUB}
    ; o publish: 16384 + t*512 + g*128 + (m&7)*16
    v_and_b32 v{V_T0}, 7, v{V_M}
    v_lshlrev_b32 v{V_OOP}, 7, v{V_G}
    v_lshl_add_u32 v{V_OOP}, v{V_T0}, 4, v{V_OOP}
    v_add_u32 v{V_OKV}, 0, v{V_OOP}              ; g*128 + (m&7)*16 (k_m publish)
    s_add_u32 s{S_T0}, s{S_T0}, {OXO}
    v_add_u32 v{V_OOP}, s{S_T0}, v{V_OOP}
    v_and_b32 v{V_T1}, 1, v{V_G}
    v_lshlrev_b32 v{V_OSCM}, 7, v{V_T1}
    v_lshl_add_u32 v{V_OSCM}, v{V_T0}, 4, v{V_OSCM}
    v_add_u32 v{V_OSCM}, 1024, v{V_OSCM}
    ; partner score offsets: 32768 + (t ^ p)*2048, own in S_P+3 (s47 later); kept relative to slot base
    """)
    for p in range(1, 4):
        a(f"""
        s_xor_b32 s{S_P+p-1}, s{S_T}, {p}
        s_mul_i32 s{S_P+p-1}, s{S_P+p-1}, {SCS}
        s_add_u32 s{S_P+p-1}, s{S_P+p-1}, {SCO}
        """)
    a(f"""
    ; LDS: q/k partial write: w*2304 + (4*(g&1))*144 + ((g>>1)*16 + m)*4
    v_and_b32 v{V_T0}, 1, v{V_G}
    v_mul_u32_u24 v{V_LWQ}, 576, v{V_T0}
    v_lshrrev_b32 v{V_T1}, 1, v{V_G}
    v_lshl_add_u32 v{V_T1}, v{V_T1}, 4, v{V_M}
    v_lshl_add_u32 v{V_LWQ}, v{V_T1}, 2, v{V_LWQ}
    s_mul_i32 s{S_T0}, s{S_WAVE}, 1152
    s_add_u32 s{S_T0}, s{S_T0}, {L_OP}
    v_add_u32 v{V_LWO}, s{S_T0}, v{V_LWQ}
    s_mul_i32 s{S_T0}, s{S_WAVE}, 2304
    v_add_u32 v{V_LWQ}, s{S_T0}, v{V_LWQ}
    v_add_u32 v{V_LWK}, 1152, v{V_LWQ}
    ; R read: m*144 + g*32
    v_mul_u32_u24 v{V_LRR}, 144, v{V_M}
    v_lshl_add_u32 v{V_LRR}, v{V_G}, 5, v{V_LRR}
    ; O partial read: L_OP + ((l>>1)&7)*144 + (2*(l>>4) + (l&1))*16
    v_bfe_u32 v{V_T0}, v{V_L}, 1, 3
    v_mul_u32_u24 v{V_LRO}, 144, v{V_T0}
    v_lshl_add_u32 v{V_LRO}, v{V_G}, 5, v{V_LRO}
    v_and_b32 v{V_T0}, 1, v{V_L}
    v_lshl_add_u32 v{V_LRO}, v{V_T0}, 4, v{V_LRO}
    v_add_u32 v{V_LRO}, {L_OP}, v{V_LRO}
    ; v partial write: L_VP + w*1024 + lane*16 ; read (tile u at +512u): L_VP + (l&31)*16
    s_lshl_b32 s{S_T0}, s{S_WAVE}, 10
    s_add_u32 s{S_T0}, s{S_T0}, {L_VP}
    v_add_u32 v{V_LVW}, s{S_T0}, v{V_LL}
    v_and_b32 v{V_T0}, 31, v{V_L}
    v_lshlrev_b32 v{V_LVR}, 3, v{V_T0}
    v_add_u32 v{V_LVR}, {L_VM}, v{V_LVR}
    v_lshrrev_b32 v{V_T0}, 2, v{V_M}             ; r
    v_and_b32 v42, 1, v{V_T0}                    ; r&1
    v_lshrrev_b32 v43, 1, v{V_T0}                ; r>>1
    v_lshrrev_b32 v44, 1, v{V_G}                 ; g>>1
    v_and_b32 v45, 1, v{V_G}                     ; g&1
    v_lshl_add_u32 v46, v44, 4, v42
    v_lshl_add_u32 v46, v45, 2, v46
    v_lshl_add_u32 v46, v43, 3, v46              ; W1 row
    v_lshl_add_u32 v47, v44, 3, v42
    v_lshl_add_u32 v47, v45, 4, v47
    v_lshl_add_u32 v47, v43, 2, v47
    v_and_b32 v{V_T1}, 3, v{V_M}
    v_lshlrev_b32 v{V_T1}, 3, v{V_T1}
    v_lshl_add_u32 v46, v46, {6 + FULL}, v{V_T1}
    v_lshl_add_u32 v47, v47, {6 + FULL}, v{V_T1}
    s_and_b32 s{S_T0}, s{S_T}, {FULL}
    s_lshl_b32 s{S_T0}, s{S_T0}, 6
    s_add_u32 s{S_T0}, s{S_T0}, s47
    v_add_u32 v46, s{S_T0}, v46
    v_add_u32 v47, s{S_T0}, v47
    """)

    def wtr(n):
        c, p = PH[n]
        nk = 4 >> FULL
        for u in range(2):
            for k in range(nk * p, nk * p + nk):
                d = (A_W1 + ((c * 2 + u) * 4 + k) * 8) if c < 3 else (A_WO + (u * 4 + k) * 8)
                for Pp in range(4):
                    off = (n & 1) * 16384 + ((64 * (k - nk * p) + 32 * (Pp >> 1) + 2 * (Pp & 1)) << (6 + FULL)) + 32 * u
                    a(f"ds_read_b64_tr_b16 a[{d+2*Pp}:{d+2*Pp+1}], v{46 if c < 3 else 47} offset:{off}")
                if k & 1:
                    a("s_waitcnt lgkmcnt(0)")
    for n in range(len(PH)):
        a(f"s_waitcnt vmcnt({(16 + E('HELP', 1) + ([4, 2, 0][n] if WT == 1 else 0)) if n + 1 < len(PH) else 0})")
        wtr(n)
        if n + 2 < len(PH): wdma(n + 2)
        if NSELF and n < 2: selfproj(n == 1)
        if n == len(PH) - 3 and E("IW", 2):
            a("s_mov_b64 exec, 0")
            for w in range(3):
                a(f"s_cmp_eq_u32 s{S_WAVE}, {w}\ns_cbranch_scc1 {name}_iw{w}")
            a(f"s_branch {name}_iw3")
            a.label(f"{name}_iwd")
            a("s_mov_b64 exec, -1")
        if n == len(PH) - 2:
            sync_issue(a, 246)
            for i in range(4):
                a(f"buffer_load_dwordx4 v[{64+4*i}:{67+4*i}], v{V_OM0}, s[{S_M0}:{S_M0+3}], 0 offen offset:{128*i}")
    for i in range(16):
        a(f"v_mov_b32 v{MA+i}, v{64+i}")
    for i in range(24):
        a(f"v_mov_b32 v{AQ+i}, 0")
    a.nops(2)
    for i in range(4):
        for c in range(4):
            w = A_W1 + (c * 4 + i) * 8
            a(f"v_smfmac_f32_16x16x64_bf16 v[{AQ+4*c}:{AQ+4*c+3}], v[{MA+4*i}:{MA+4*i+3}], a[{w}:{w+7}], v{V_IDX}")
    sync(246, True)
    if TAG: a(f"""
    ; cross exchange: WS_H + slot*256K + src*64K + (t>>3)*16K + par*8K + (t&7)*1K
    s_lshr_b32 s{S_T0}, s{S_T}, {3 + E("XC", 1)}
    s_lshl_b32 s{S_T0}, s{S_T0}, 14
    s_lshl_b32 s{S_T1}, s98, 13
    s_add_u32 s{S_T0}, s{S_T0}, s{S_T1}
    s_and_b32 s{S_T1}, s{S_T}, {(8 << E("XC", 1)) - 1}
    s_lshl_b32 s{S_T1}, s{S_T1}, {10 - E("XC", 1)}
    s_add_u32 s{S_T0}, s{S_T0}, s{S_T1}
    s_lshl_b32 s{S_T1}, s{S_X}, 16
    s_add_u32 s{S_T0}, s{S_T0}, s{S_T1}
    s_add_u32 s{S_T0}, s{S_T0}, {WS_H}
    v_lshrrev_b32 v{V_OXW}, {E("B16", 1)}, v{V_LL}
    v_add_u32 v{V_OXW}, s{S_T0}, v{V_OXW}
    v_xor_b32 v25, 0x10000, v{V_OXW}
    v_xor_b32 v26, 0x20000, v{V_OXW}
    v_xor_b32 v27, 0x30000, v{V_OXW}
    v_add_u32 v25, {(WS_XU - WS_H) * E("COPY3", 0)}, v25
    v_add_u32 v26, {(WS_XU - WS_H + 4 * MB) * E("COPY3", 0)}, v26
    v_add_u32 v27, {(WS_XU - WS_H + 8 * MB) * E("COPY3", 0)}, v27
    """)
    else: a(f"""
    s_lshr_b32 s{S_T0}, s{S_T}, 2
    s_xor_b32 s{S_T0}, s{S_T0}, s98
    s_and_b32 s{S_T0}, s{S_T0}, 1
    s_lshl_b32 s{S_T0}, s{S_T0}, 13
    s_lshl_b32 s{S_T1}, s{S_T}, 19
    s_add_u32 s{S_T0}, s{S_T0}, s{S_T1}
    s_lshl_b32 s{S_T1}, s{S_X}, 10
    s_add_u32 s{S_T0}, s{S_T0}, s{S_T1}
    s_add_u32 s{S_T0}, s{S_T0}, {WS_XU}
    v_add_u32 v{V_OXW}, s{S_T0}, v{V_LL}
    v_xor_b32 v25, 1024, v{V_OXW}
    v_xor_b32 v26, 2048, v{V_OXW}
    v_xor_b32 v27, 3072, v{V_OXW}
    """)
    a(f"""
    s_lshl_b32 s{S_T0}, s{S_H}, 2
    s_add_u32 s{S_T0}, s{S_T0}, s{S_J}
    s_mov_b32 s{S_CU}, s{S_T0}
    s_lshr_b32 s{S_T1}, s{S_T0}, 3
    s_xor_b32 s{S_T1}, s{S_T1}, s98
    {["", f"s_xor_b32 s{S_T1}, s{S_T1}, 1", f"s_xor_b32 s{S_T1}, s{S_T1}, s{S_T0}"][E("KVPAR", 0)]}
    s_and_b32 s{S_T1}, s{S_T1}, 1
    s_lshl_b32 s{S_T1}, s{S_T1}, 13
    s_lshl_b32 s76, s{S_T0}, 18
    s_add_u32 s76, s76, s{S_T1}
    s_mov_b32 s{S_KXB}, s76
    v_add_u32 v{TMP+8}, s76, v{V_LL}
    v_add_u32 v{TMP+9}, {WS_VT}, v{TMP+8}
    s_lshr_b32 s{S_T1}, s{S_T0}, 4
    s_xor_b32 s{S_T1}, s{S_T1}, s98
    s_and_b32 s{S_T1}, s{S_T1}, 1
    s_lshl_b32 s{S_T1}, s{S_T1}, 13
    s_lshl_b32 s{S_KVB}, s{S_T0}, 17
    s_add_u32 s{S_KVB}, s{S_KVB}, s{S_T1}
    s_add_u32 s{S_KVB}, s{S_KVB}, {WS_KVM}
    ; flags
    s_xor_b32 s{S_T1}, s98, 1
    s_lshl_b32 s{S_T1}, s{S_T1}, 13
    s_lshl_b32 s{S_T0}, s{S_H}, 7
    s_add_u32 s{S_T0}, s{S_T0}, s{S_T1}
    s_add_u32 s{S_T0}, s{S_T0}, {WS_F}
    v_and_b32 v{V_T0}, 1, v{V_L}
    v_lshlrev_b32 v{V_OFL}, 12, v{V_T0}
    v_add_u32 v{V_OFL}, s{S_T0}, v{V_OFL}
    s_lshl_b32 s{S_T1}, s{S_J}, 2
    v_add_u32 v{V_OFL}, s{S_T1}, v{V_OFL}
    s_xor_b32 s{S_FLB}, s98, 1
    s_lshl_b32 s{S_FLB}, s{S_FLB}, 13
    s_lshr_b32 s{S_T1}, s{S_CU}, 6
    s_lshl_b32 s{S_T1}, s{S_T1}, 14
    s_add_u32 s{S_FLB}, s{S_FLB}, s{S_T1}
    s_and_b32 s{S_T1}, s{S_CU}, 63
    s_lshl_b32 s{S_T1}, s{S_T1}, 7
    s_add_u32 s{S_FLB}, s{S_FLB}, s{S_T1}
    s_add_u32 s{S_FLB}, s{S_FLB}, {WS_F + F_KVM}
    v_mov_b32 v{ONE}, 0x3f803f80
    v_mov_b32 v{ONE+1}, 0x3f803f80
    v_mov_b32 v{ONE+2}, 0x3f803f80
    v_mov_b32 v{ONE+3}, 0x3f803f80
    v_mov_b32 v{ZER}, 0
    s_mov_b32 s{S_STEP}, 0
    s_mov_b32 s{S_KVN}, 0
    s_mov_b32 s{S_WARM}, 0
    s_mov_b32 s88, 0
    s_mov_b32 s{S_XBR}, {L_XB}
    s_mov_b32 s{S_XBW}, {L_XB + 4096 * NSELF}
    """)
    V_PK, V_PV = TMP + 8, TMP + 9
    pfn = [0]

    def prefetch(seg_sreg, part=3, chk=True, skip=None):
        i = pfn[0]; pfn[0] += 1
        if flags and chk:
            a(f"""
            s_cmp_gt_i32 s{S_KVN}, s{seg_sreg}
            s_cbranch_scc1 {name}_pf{i}ok
{name}_pf{i}w:
            """)
            wdog()
            a(f"""
            {f'''v_mov_b32 v{V_T0}, 0
            s_mov_b64 exec, 3
            buffer_atomic_add v{V_T0}, v{V_OFL}, {SRD}, 0 offen sc0 sc1
            s_mov_b64 exec, -1''' if E("KAP", 1) else f"buffer_load_dword v{V_T0}, v{V_OFL}, {SRD}, 0 offen sc1"}
            s_waitcnt vmcnt(0)
            v_readlane_b32 s{S_KVN}, v{V_T0}, 0
            v_readlane_b32 s{S_T0}, v{V_T0}, 1
            s_nop 1
            s_min_i32 s{S_KVN}, s{S_KVN}, s{S_T0}
            s_cmp_gt_i32 s{S_KVN}, s{seg_sreg}
            s_cbranch_scc0 {skip or f"{name}_pf{i}w"}
{name}_pf{i}ok:
            """)
        if part is None: return
        a(f"""
        s_add_u32 s77, s{seg_sreg}, s{S_CU}
        s_bfe_u32 s{S_T0}, s77, 0x40002
        s_lshl_b32 s{S_T0}, s{S_T0}, 14
        s_and_b32 s77, s77, 3
        s_lshl_b32 s77, s77, 11
        s_add_u32 s{S_T0}, s{S_T0}, s77
        """)
        if part <= 0:
            a(f"s_add_u32 s{S_T0}, s{S_T0}, s{S_KXB}")
            if part < 0: a(f"s_add_u32 s{S_T0}, s{S_T0}, {WS_VT}")
            for l in range(16):
                a(f"s_buffer_load_dword s78, {SRD}, s{S_T0} offset:{128*l}")
            return
        for f in range(4):
            if not (part >> (f >> 1)) & 1: continue
            a(f"s_add_u32 m0, s{S_XBW}, {2048 * (f >> 1)}")
            a("s_nop 0")
            a(f"buffer_load_dwordx4 v{V_PK if f < 2 else V_PV}, {SRD}, s{S_T0} offen offset:{1024 * (f & 1)} sc1 lds")
        if part & 2: a(f"""
        s_add_u32 s{S_XBW}, s{S_XBW}, 4096
        s_cmp_eq_u32 s{S_XBW}, {L_XB + 3 * 4096}
        s_cselect_b32 s{S_XBW}, {L_XB}, s{S_XBW}
        """)

    def flag_store(val_sreg):
        a(f"""
        v_mov_b32 v{V_T1}, s{val_sreg}
        s_mov_b64 exec, 1
        buffer_store_dword v{V_T1}, v{ZER}, {SRD}, s{S_FLB} offen sc1
        s_mov_b64 exec, -1
        """)

    def zero(base, n):
        for i in range(n):
            a(f"v_mov_b32 v{base+i}, 0")

    if ts and E("BPROF", 0):
        ts(2)
        a(f"v_and_b32 v{V_L}, 63, v0\nv_lshrrev_b32 v{V_G}, 4, v{V_L}")
    a(f"s_cmp_eq_u32 s{S_WAVE}, 3\ns_cbranch_scc0 {name}_pfi")
    a(f"s_mov_b32 s76, 0")
    if not NSELF: prefetch(76)
    a("s_waitcnt vmcnt(0) lgkmcnt(0)")
    a(f"s_branch {name}_pfj")
    a.label(f"{name}_pfi")
    klast(a, 88, S_H, 0, 0)
    a(f"s_lshl_b32 s77, s{S_J}, 10\ns_add_u32 s88, s88, s77")
    a.label(f"{name}_pfj")
    zero(PL, 24)
    zero(249, 1)
    a("s_barrier")
    if ts and E("BPROF", 0):
        ts(3)
        a(f"v_and_b32 v{V_L}, 63, v0\nv_lshrrev_b32 v{V_G}, 4, v{V_L}")
    stamp(0)

    def smf(d, areg, w):
        a(f"v_smfmac_f32_16x16x64_bf16 v[{d}:{d+3}], v[{areg}:{areg+3}], a[{w}:{w+7}], v{V_IDX}")

    def stream_poll(tag, base, soff, off0, two, work, first=None):
        def ld(i):
            a(f"buffer_load_dwordx4 v[{base+4*i}:{base+4*i+3}], v{V_OMEM}, {SRD}, s{soff} offen offset:{1024*i} sc1")
        G = E("GAP", 10)
        a("; loads are spaced so that the four waves are served round robin")
        for i in range(4):
            ld(i)
            if i == 0 and first:
                first()
                if G > 5: a.nops(G - 5)
            elif i < 3 and G:
                a.nops(G)
        if E("RR", 1):
            def lab(S, i): return f"{name}_{tag}_{S}_{i}"
            def nxt(S, i):
                for d in range(1, 5):
                    if S >> ((i + d) & 3) & 1: return (i + d) & 3
            def chk(i):
                if two:
                    a(f"v_max_u32 v{V_T0}, v{base+4*i}, v{base+4*i+2}")
                    a(f"v_cmp_eq_u32 vcc, -1, v{V_T0}")
                else:
                    a(f"v_cmp_eq_u32 vcc, -1, v{base+4*i}")
            def block(S, i, fall):
                a.label(lab(S, i))
                a(f"s_waitcnt vmcnt({bin(S).count('1') - 1})")
                chk(i)
                a(f"s_cbranch_vccnz {lab(S, i)}f")
                work(i)
                if not fall:
                    S2 = S & ~(1 << i)
                    a(f"s_branch {lab(S2, nxt(S2, i)) if S2 else f'{name}_{tag}_d'}")
            fast = [(15, 0), (14, 1), (12, 2), (8, 3)]
            if E("HOIST", 1) and two:
                def cap(fn, *ar):
                    sv = a.lines; a.lines = []; fn(*ar); o = a.lines; a.lines = sv; return o
                a("s_waitcnt vmcnt(3)")
                chk(0)
                for n, (S, i) in enumerate(fast):
                    a(f"s_cbranch_vccnz {lab(S, i)}f")
                    wk = cap(work, i)
                    a.lines += wk[:3]
                    if i < 3:
                        a(f"s_waitcnt vmcnt({2 - i})")
                        chk(i + 1)
                    a.lines += wk[3:]
                fast = []
            for S, i in fast:
                block(S, i, True)
            a.label(f"{name}_{tag}_d")
            def stubs():
                for S in range(1, 16):
                    for i in range(4):
                        if not S >> i & 1: continue
                        if E("ALR", 5): a(f".p2align {E('ALR', 5)}")
                        a.label(lab(S, i) + "f")
                        if E("MSK", 1): a("s_mov_b64 exec, vcc")
                        ld(i)
                        if E("MSK", 1): a("s_mov_b64 exec, -1")
                        if bin(S).count('1') == 1 or i == nxt(S, 3): wdog()
                        a(f"s_branch {lab(S, nxt(S, i))}")
                        if (S, i) not in fast:
                            if E("ALR", 5): a(f".p2align {E('ALR', 5)}")
                            block(S, i, False)
            return stubs
        for i in range(4):
            a.label(f"{name}_{tag}{i}")
            a(f"s_waitcnt vmcnt({3-i})")
            if two:
                a(f"v_max_u32 v{V_T0}, v{base+4*i}, v{base+4*i+2}")
                a(f"v_cmp_eq_u32 vcc, -1, v{V_T0}")
            else:
                a(f"v_cmp_eq_u32 vcc, -1, v{base+4*i}")
            a(f"s_cbranch_vccnz {name}_{tag}r{i}")
            a.label(f"{name}_{tag}k{i}")
            work(i)
        def stubs():
            for i in range(4):
                a.label(f"{name}_{tag}r{i}")
                if prof: a(f"s_add_u32 s{62 if tag == 'pa' else 63}, s{62 if tag == 'pa' else 63}, 1")
                wdog()
                if not E("IMM", 1): a("s_waitcnt vmcnt(0)")
                for k in range(i, 4):
                    ld(k)
                a(f"s_branch {name}_{tag}{i}")
        return stubs

    def fold(t0, t1):
        for i in range(4):
            a(f"v_permlane32_swap_b32 v{t0+i}, v{t1+i}")
        a(f"v_pk_add_f32 v[{t0}:{t0+1}], v[{t0}:{t0+1}], v[{t1}:{t1+1}]")
        a(f"v_pk_add_f32 v[{t0+2}:{t0+3}], v[{t0+2}:{t0+3}], v[{t1+2}:{t1+3}]")

    def vwork(lo, hi):
        for n in range(lo, hi):
            i, u = n >> 1, n & 1
            smf(AV + 4 * u, MA + 4 * i, A_W1 + ((4 + u) * 4 + (i & 3)) * 8)

    def vfin():
        fold(AV, AV + 4)
        a(f"ds_write_b128 v{V_LVW}, v[{AV}:{AV+3}]")

    def rread():
        for w in range(4):
            for hh in range(2):
                d = RP + 8 * w + 4 * hh
                a(f"ds_read_b128 v[{d}:{d+3}], v{V_LRR} offset:{L_QK + 2304*w + 16*hh}")

    def rsum(dst):
        a("s_waitcnt lgkmcnt(4)")
        for i in range(0, 8, 2):
            a(f"v_pk_add_f32 v[{RP+i}:{RP+i+1}], v[{RP+i}:{RP+i+1}], v[{RP+8+i}:{RP+8+i+1}]")
        a("s_waitcnt lgkmcnt(0)")
        for i in range(0, 8, 2):
            a(f"v_pk_add_f32 v[{RP+16+i}:{RP+16+i+1}], v[{RP+16+i}:{RP+16+i+1}], v[{RP+24+i}:{RP+24+i+1}]")
        for i in range(0, 8, 2):
            a(f"v_pk_add_f32 v[{RP+i}:{RP+i+1}], v[{RP+i}:{RP+i+1}], v[{RP+16+i}:{RP+16+i+1}]")
        for i in range(4):
            a(f"v_cvt_pk_bf16_f32 v{dst+i}, v{RP+2*i}, v{RP+2*i+1}")

    S_FM = S_TAG
    def xuoff(dst, step):
        a(f"""
        s_add_u32 s{S_T0}, s{step}, s{S_T}
        s_and_b32 s77, s{S_T0}, 14
        s_and_b32 s{S_T0}, s{S_T0}, 1
        s_lshl_b32 s{S_T0}, s{S_T0}, 12
        s_and_b32 s{dst}, s{step}, 48
        s_or_b32 s{dst}, s{dst}, s77
        s_lshl_b32 s{dst}, s{dst}, 13
        s_add_u32 s{dst}, s{dst}, s{S_T0}
        """)

    def heads():
        a(f"""
        s_and_b32 s{S_T1}, s{S_STEP}, 1
        s_lshl_b32 s{S_SL}, s{S_T1}, 17
        s_lshl_b32 s{S_T0}, s{S_X}, 18
        s_add_u32 s{S_SL}, s{S_SL}, s{S_T0}
        s_add_u32 s{S_SL}, s{S_SL}, {WS_I}
        s_xor_b32 s{S_SLO}, s{S_SL}, {1 << 17}
        """)
        if TAG: a(f"""
        s_lshl_b32 s{S_XS}, s{S_T1}, 18
        s_bfe_u32 s{S_TAG}, s{S_STEP}, 0x10001
        """)
        else: xuoff(S_XS, S_STEP)
    heads()
    if E("PRIO", 0):
        a(f"s_cmp_eq_u32 s{S_WAVE}, 0\ns_cbranch_scc0 {name}_np\ns_setprio 3")
        a.label(f"{name}_np")
    a(f"s_branch {name}_first")

    def wa(i):
        for c in range(4):
            smf(AQ + 4 * c, MA + 4 * i, A_W1 + (c * 4 + (i & 3)) * 8)

    def xread():
        a(f"v_add_u32 v{V_T1}, s{S_XBR}, v{V_LL}")
        for f in range(4):
            a(f"ds_read_b128 v[{KX+4*f}:{KX+4*f+3}], v{V_T1} offset:{1024*f}")

    if E("AL", 2) >= 0:
        a(".p2align 6")
        for i in range(E("AL", 2)): a("s_nop 0")
    a.label(f"{name}_loop")
    stubs_a = stream_poll("pa", MA, S_SL, 0, True, wa, first=xread)
    a.label(f"{name}_adone")
    stamp(1)
    a.nops(6)
    fold(AQ, AQ + 4)
    a(f"ds_write2_b32 v{V_LWQ}, v{AQ}, v{AQ+1} offset0:0 offset1:36")
    a(f"ds_write2_b32 v{V_LWQ}, v{AQ+2}, v{AQ+3} offset0:72 offset1:108")
    fold(AQ + 8, AQ + 12)
    a(f"ds_write2_b32 v{V_LWK}, v{AQ+8}, v{AQ+9} offset0:0 offset1:36")
    a(f"ds_write2_b32 v{V_LWK}, v{AQ+10}, v{AQ+11} offset0:72 offset1:108")
    VE, VE2 = E("VE", 4), 8
    vwork(0, VE)
    a(f"""
    s_waitcnt lgkmcnt(0)
    s_barrier
    s_cmp_lg_u32 s{S_WAVE}, 0
    s_cbranch_scc1 {name}_side
    """)
    stamp(2)
    rread()
    vwork(VE, VE2)
    a(f"""
    s_mul_i32 s{S_T0}, s{S_T}, {SCS}
    s_add_u32 s{S_T0}, s{S_T0}, s{S_SL}
    s_add_u32 s{S_T0}, s{S_T0}, {SCO}
    s_add_u32 s76, s{S_P}, s{S_SL}
    s_add_u32 s77, s{S_P+1}, s{S_SL}
    s_add_u32 s78, s{S_P+2}, s{S_SL}
    """)
    rsum(R)
    a.nops(2)
    a(f"v_mfma_f32_16x16x32_bf16 v[{S+4}:{S+7}], v[{KX+4}:{KX+7}], v[{R}:{R+3}], 0")
    a(f"v_mfma_f32_16x16x32_bf16 v[{S}:{S+3}], v[{KX}:{KX+3}], v[{R}:{R+3}], 0")
    a(f"v_mfma_f32_16x16x32_bf16 v[{S+8}:{S+11}], v[{R}:{R+3}], v[{R}:{R+3}], 0")
    a(f"s_cmp_eq_u32 s{S_STEP}, {nsteps-1}")
    a(f"s_cbranch_scc1 {name}_w0last")
    if E("VF", 0) == 1: vfin()
    else: a.nops(5)
    for i in range(4):
        a(f"v_mov_b32_dpp v{S+i}, v{S+4+i} row_shr:8 row_mask:0xf bank_mask:0xc")
    a(f"""
    v_min_u32 v{S+8}, -2, v{S+8}
    v_min_u32 v{S}, -2, v{S}
    s_mov_b64 exec, s[{S_MMEM}:{S_MMEM+1}]
    buffer_store_dwordx4 v[{S+8}:{S+11}], v{V_OSCM}, {SRD}, s{S_T0} offen {IS}
    s_mov_b64 exec, -1
    buffer_store_dwordx4 v[{S}:{S+3}], v{V_LL}, {SRD}, s{S_T0} offen {IS}
    """)
    stamp(3)

    def p2ld():
        if E("P2K", 1):
            a(f"s_mov_b64 exec, s[{S_MMEM}:{S_MMEM+1}]")
            for p, so in enumerate((76, 77, 78)):
                a(f"buffer_load_dwordx4 v[{PL+8*p+4}:{PL+8*p+7}], v{V_OSCM}, {SRD}, s{so} offen sc1")
            a("s_mov_b64 exec, -1")
            for p, so in enumerate((76, 77, 78)):
                a(f"buffer_load_dwordx4 v[{PL+8*p}:{PL+8*p+3}], v{V_LL}, {SRD}, s{so} offen sc1")
            return
        for p, so in enumerate((76, 77, 78)):
            a(f"buffer_load_dwordx4 v[{PL+8*p}:{PL+8*p+3}], v{V_LL}, {SRD}, s{so} offen sc1")
            a(f"buffer_load_dwordx4 v[{PL+8*p+4}:{PL+8*p+7}], v{V_OSCM}, {SRD}, s{so} offen sc1")
    P2M = E("P2M", 0)
    if E("VF", 0) == 0: vfin()
    def p2fill():
        zero(AO, 8)
        for i in range(4):
            a(f"v_cndmask_b32 v{S+4+i}, v{V_NEG}, v{S+8+i}, s[{S_MMEM}:{S_MMEM+1}]")
    def p2scale():
        for i in range(0, 8, 2):
            a(f"v_pk_mul_f32 v[{S+i}:{S+i+1}], v[{S+i}:{S+i+1}], s[{S_C}:{S_C+1}] op_sel_hi:[1,0]")
    assert P2M == 0
    if P2M == 0:
        a("s_waitcnt lgkmcnt(0)\ns_barrier")
        p2fill()
        p2ld()
        p2scale()
        a(f"s_lshl_b32 s89, s{S_TAG}, 31\ns_or_b32 s89, s89, 0x3b39999a")
        a.nops(18)
        p2ld()
    elif P2M == 1:
        if E("W2A", 0): a.nops(E("W2A", 0))
        p2ld()
        a("s_waitcnt lgkmcnt(0)\ns_barrier")
        p2fill()
        if E("W2", 0): a.nops(E("W2", 0))
        p2ld()
    elif P2M == 2:
        p2fill()
        p2ld()
        a("s_waitcnt lgkmcnt(0)\ns_barrier")
        if E("W2", 0): a.nops(E("W2", 0))
        p2ld()
    else:
        if E("W2A", 0): a.nops(E("W2A", 0))
        p2ld()
        a("s_waitcnt lgkmcnt(0)\ns_barrier")
        p2fill()
        for r in range(P2M - 1):
            p2ld()
            if r + 2 < P2M: a.nops(E("W2", 16))
    assert TAG
    stamp(4)
    a.label(f"{name}_p2")
    a(f"s_waitcnt vmcnt({6 * (max(P2M, 2) - 1)})")
    a(f"v_max3_u32 v{V_T0}, v{PL}, v{PL+4}, v{PL+8}")
    a(f"v_max3_u32 v{V_T1}, v{PL+12}, v{PL+16}, v{PL+20}")
    a(f"v_max_u32 v{V_T0}, v{V_T0}, v{V_T1}")
    a(f"v_cmp_eq_u32 vcc, -1, v{V_T0}")
    a(f"s_cbranch_vccnz {name}_p2r")
    stamp(5)
    a.nops(E("RSLOW", 0))
    BP = E("BP", 1)
    def b2b():
        a("s_barrier")
        a(f"ds_read2_b64 v[{VM}:{VM+3}], v{V_LVR} offset0:0 offset1:32")
    if BP == 0: b2b()
    for o in (4, 6, 0, 2):
        a(f"v_pk_add_f32 v[{RP+o}:{RP+o+1}], v[{PL+8+o}:{PL+8+o+1}], v[{PL+16+o}:{PL+16+o+1}]")
    for o in (4, 6, 0, 2):
        a(f"v_pk_add_f32 v[{RP+o}:{RP+o+1}], v[{RP+o}:{RP+o+1}], v[{PL+o}:{PL+o+1}]")
    for o in (4, 6, 0, 2):
        a(f"v_pk_fma_f32 v[{S+o}:{S+o+1}], v[{RP+o}:{RP+o+1}], s[{S_C}:{S_C+1}], v[{S+o}:{S+o+1}] op_sel_hi:[1,0,1]")
    MX, TM, SM = TMP, TMP + 1, TMP + 2
    a(f"""
    v_max3_f32 v{MX}, v{S}, v{S+1}, v{S+2}
    v_max3_f32 v{TM}, v{S+4}, v{S+5}, v{S+6}
    v_max3_f32 v{MX}, v{MX}, v{S+3}, v{S+7}
    v_max_f32 v{SM}, v{MX}, v{TM}
    """)
    if BP == 1: b2b()
    else: a("s_nop 1")
    a(f"""
    v_max_f32_dpp v{MX}, v{SM}, v{SM} row_ror:8 row_mask:0xf bank_mask:0xf
    v_max_f32_dpp v{TM}, v{SM}, v{SM} row_ror:8 row_mask:0xf bank_mask:0xf
    s_nop 1
    v_permlane16_swap_b32 v{MX}, v{TM}
    s_nop 0
    v_max_f32 v{SM}, v{MX}, v{TM}
    v_max_f32 v{SM+1}, v{MX}, v{TM}
    """)
    if BP == 2: b2b()
    else: a("s_nop 1")
    a(f"""
    v_permlane32_swap_b32 v{SM}, v{SM+1}
    s_nop 0
    v_max_f32 v{MX}, v{SM}, v{SM+1}
    """)
    for i in (4, 6, 0, 2):
        a(f"v_pk_add_f32 v[{S+i}:{S+i+1}], v[{S+i}:{S+i+1}], v[{MX}:{MX+1}] op_sel_hi:[1,0] neg_lo:[0,1] neg_hi:[0,1]")
    for i in (4, 5, 6, 7):
        a(f"v_exp_f32 v{S+i}, v{S+i}")
    a(f"""
    v_exp_f32 v{S}, v{S}
    v_cvt_pk_bf16_f32 v{PM}, v{S+4}, v{S+5}
    v_cvt_pk_bf16_f32 v{PM+1}, v{S+6}, v{S+7}
    v_exp_f32 v{S+1}, v{S+1}
    v_exp_f32 v{S+2}, v{S+2}
    v_mfma_f32_16x16x16_bf16 v[{LS}:{LS+3}], v[{ONE}:{ONE+1}], v[{PM}:{PM+1}], 0
    v_exp_f32 v{S+3}, v{S+3}
    v_cvt_pk_bf16_f32 v{P}, v{S}, v{S+1}
    s_waitcnt lgkmcnt(0)
    v_mfma_f32_16x16x16_bf16 v[{O}:{O+3}], v[{VM}:{VM+1}], v[{PM}:{PM+1}], 0
    v_cvt_pk_bf16_f32 v{P+1}, v{S+2}, v{S+3}
    v_mfma_f32_16x16x16_bf16 v[{O+4}:{O+7}], v[{VM+2}:{VM+3}], v[{PM}:{PM+1}], 0
    v_mov_b32_dpp v{P+2}, v{P} row_ror:8 row_mask:0xf bank_mask:0xf
    v_mov_b32_dpp v{P+3}, v{P+1} row_ror:8 row_mask:0xf bank_mask:0xf
    s_nop 1
    v_mfma_f32_16x16x32_bf16 v[{LS}:{LS+3}], v[{ONE}:{ONE+3}], v[{P}:{P+3}], v[{LS}:{LS+3}]
    v_mfma_f32_16x16x32_bf16 v[{O}:{O+3}], v[{VTX}:{VTX+3}], v[{P}:{P+3}], v[{O}:{O+3}]
    v_mfma_f32_16x16x32_bf16 v[{O+4}:{O+7}], v[{VTX+4}:{VTX+7}], v[{P}:{P+3}], v[{O+4}:{O+7}]
    s_add_u32 s{S_T1}, s{S_SL}, {OXO}
    s_nop 4
    v_rcp_f32 v{SM}, v{LS}
    s_nop 0
    """)
    for i in range(0, 8, 2):
        a(f"v_pk_mul_f32 v[{O+i}:{O+i+1}], v[{O+i}:{O+i+1}], v[{SM}:{SM+1}] op_sel_hi:[1,0]")
    for i in range(4):
        a(f"v_cvt_pk_bf16_f32 v{P+i}, v{O+2*i}, v{O+2*i+1}")
    a(f"""
    v_min_u32 v{P}, -2, v{P}
    s_mov_b64 exec, s[{S_MN8}:{S_MN8+1}]
    buffer_store_dwordx4 v[{P}:{P+3}], v{V_OOP}, {SRD}, s{S_SL} offen {IS}
    s_mov_b64 exec, -1
    """)
    NB3, NB5 = E("NB3", 0), E("NB5", 0)
    if NB3:
        stamp(6)
        if E("W3", 16): a("; poll back-off: a too early first poll wastes a whole 16KB gather round"); a.nops(E("W3", 16))
        a.label(f"{name}_b3")
    else:
        a.label(f"{name}_b3")
        a("s_barrier")
        if E("AL3", -1) >= 0:
            a(".p2align 5")
            for i in range(E("AL3", -1)): a("s_nop 0")
        stamp(6)
        if E("W3", 16): a("; poll back-off: a too early first poll wastes a whole 16KB gather round"); a.nops(E("W3", 16))

    def wc(i):
        for u in range(2):
            smf(AO + 4 * u, MO + 4 * i, A_WO + (u * 4 + i) * 8)
    stubs_c = stream_poll("pc", MO, S_T1, 0, False, wc)
    stamp(7)
    a.nops(8)
    fold(AO, AO + 4)
    a(f"ds_write2_b32 v{V_LWO}, v{AO}, v{AO+1} offset0:0 offset1:36")
    a(f"ds_write2_b32 v{V_LWO}, v{AO+2}, v{AO+3} offset0:72 offset1:108")
    a("s_waitcnt lgkmcnt(0)\ns_barrier")
    a(f"s_cmp_lg_u32 s{S_WAVE}, 0\ns_cbranch_scc1 {name}_x1")
    for w in range(4):
        a(f"ds_read_b128 v[{RP+4*w}:{RP+4*w+3}], v{V_LRO} offset:{1152*w}")
    a("s_waitcnt lgkmcnt(2)")
    for i in (0, 2):
        a(f"v_pk_add_f32 v[{RP+i}:{RP+i+1}], v[{RP+i}:{RP+i+1}], v[{RP+4+i}:{RP+4+i+1}]")
    a("s_waitcnt lgkmcnt(0)")
    for i in (0, 2):
        a(f"v_pk_add_f32 v[{RP+8+i}:{RP+8+i+1}], v[{RP+8+i}:{RP+8+i+1}], v[{RP+12+i}:{RP+12+i+1}]")
    for i in (0, 2):
        a(f"v_pk_add_f32 v[{RP+i}:{RP+i+1}], v[{RP+i}:{RP+i+1}], v[{RP+8+i}:{RP+8+i+1}]")
    X4 = 48
    A4 = E("A4", 0)
    B16 = E("B16", 1)
    def p4ld():
        for p in range(3):
            if B16: a(f"buffer_load_dwordx2 v[{X4+2*p}:{X4+2*p+1}], v{25+p}, {SRD}, s{S_XS} offen sc1")
            else: a(f"buffer_load_dwordx4 v[{X4+4*p}:{X4+4*p+3}], v{25+p}, {SRD}, s{S_XS} offen sc1")
    def maxall(regs):
        regs = list(regs)
        h = len(regs) // 2
        for t, rs in ((V_T0, regs[:h]), (V_T1, regs[h:])):
            a(f"v_max3_u32 v{t}, v{rs[0]}, v{rs[1]}, v{rs[2]}")
        k = 3
        while k < h:
            for t, rs in ((V_T0, regs[:h]), (V_T1, regs[h:])):
                if k + 1 < h: a(f"v_max3_u32 v{t}, v{t}, v{rs[k]}, v{rs[k+1]}")
                else: a(f"v_max_u32 v{t}, v{t}, v{rs[k]}")
            k += 2
        a(f"v_max_u32 v{V_T0}, v{V_T0}, v{V_T1}")
        a(f"v_cmp_eq_u32 vcc, -1, v{V_T0}")
    if TAG:
        if B16:
            a(f"""
            v_fma_f32 v{P}, v{RP}, s89, v{RP}
            v_cvt_pk_bf16_f32 v{P+1}, v{RP+2}, v{RP+3}
            v_cvt_pk_bf16_f32 v{P}, v{P}, v{RP+1}
            v_and_or_b32 v{P}, v{P}, -2, s{S_TAG}
            buffer_store_dwordx2 v[{P}:{P+1}], v{V_OXW}, {SRD}, s{S_XS} offen sc1
            s_mov_b32 s77, 0x3f80
            s_mov_b32 s78, 0x3f800000
            """)
        for i in range(0 if B16 else 4):
            a(f"v_and_or_b32 v{RP+i}, v{RP+i}, -2, s{S_TAG}")
        if E("HALF", 0): a(f"s_mov_b64 exec, {hex((1 << E('HALF', 0)) - 1)}")
        if E("COPY3", 0):
            for p in range(3):
                a(f"s_add_u32 s76, s{S_XS}, {WS_XU - WS_H + p * 4 * MB}")
                a(f"buffer_store_dwordx4 v[{RP}:{RP+3}], v{V_OXW}, {SRD}, s76 offen sc1")
        elif not B16:
            a(f"buffer_store_dwordx4 v[{RP}:{RP+3}], v{V_OXW}, {SRD}, s{S_XS} offen sc1")
        stamp(8)
        a(f"s_xor_b32 s76, s{S_TAG}, 1")
        for i in (range(0, 6, 2) if B16 else range(12)):
            a(f"v_mov_b32 v{X4+i}, s76")
        if B16: a.nops(9)
        if E("HALF", 0): a("s_mov_b64 exec, -1")
        zero(AQ, 24)
        if E("HALF", 0): a(f"s_mov_b64 exec, {hex((1 << E('HALF', 0)) - 1)}")
        if E("XW", 24): a("; poll back-off until the partners' stores can be visible"); a.nops(E("XW", 24))
        stamp(11)
        a(f"s_cmp_eq_u32 s{S_TAG}, 1\ns_cbranch_scc1 {name}_p4_1")
        def fin4():
            stamp(9)
            if B16:
                for p in range(3):
                    for i in range(4):
                        a(f"v_dot2_f32_bf16 v{RP+i}, v{X4+2*p+(i>>1)}, s{77+(i&1)}, v{RP+i}")
                a("s_nop 0")
            for i in (() if B16 else (0, 2)):
                a(f"v_pk_add_f32 v[{RP+i}:{RP+i+1}], v[{RP+i}:{RP+i+1}], v[{X4+i}:{X4+i+1}]")
                a(f"v_pk_add_f32 v[{RP+4+i}:{RP+4+i+1}], v[{X4+4+i}:{X4+4+i+1}], v[{X4+8+i}:{X4+8+i+1}]")
            for i in (() if B16 else (0, 2)):
                a(f"v_pk_add_f32 v[{RP+i}:{RP+i+1}], v[{RP+i}:{RP+i+1}], v[{RP+4+i}:{RP+4+i+1}]")
            a(f"""
            v_cvt_pk_bf16_f32 v{P}, v{RP}, v{RP+1}
            v_min_u32 v{P}, -2, v{P}
            v_cvt_pk_bf16_f32 v{P+1}, v{RP+2}, v{RP+3}
            buffer_store_dwordx2 v[{P}:{P+1}], v{V_OPUB}, {SRD}, s{S_SLO} offen {IS}
            """)
        R4 = E("R4", 1)
        for tg in range(2):
            if E("AL4", 6): a(f".p2align {E('AL4', 6)}")
            a.label(f"{name}_p4_{tg}")
            wdog()
            p4ld()
            a(f"s_waitcnt vmcnt({E('Q4', 12)})")
            a.nops(A4)
            bo = "0xfe" if tg == 0 else "0x80"
            if R4 > 1: a(f"s_mov_b32 s76, {R4}")
            a.label(f"{name}_p4c_{tg}")
            if R4 > 1: a(f"s_sub_u32 s76, s76, 1\ns_cbranch_scc1 {name}_p4_{tg}")
            if B16:
                a(f"v_bitop3_b32 v{V_T0}, v{X4}, v{X4+2}, v{X4+4} bitop3:{bo}")
                a(f"v_and_b32 v{V_T0}, 1, v{V_T0}")
            else:
                for t, b in ((V_T0, X4), (V_T1, X4 + 6)):
                    a(f"v_bitop3_b32 v{t}, v{b}, v{b+1}, v{b+2} bitop3:{bo}")
                for t, b in ((V_T0, X4), (V_T1, X4 + 6)):
                    a(f"v_bitop3_b32 v{t}, v{t}, v{b+3}, v{b+4} bitop3:{bo}")
                a(f"v_bitop3_b32 v{V_T0}, v{V_T0}, v{X4+5}, v{X4+11} bitop3:{bo}")
            if not B16: a(f"v_bitop3_b32 v{V_T0}, v{V_T0}, v{V_T1}, 1 bitop3:{'0xa8' if tg == 0 else '0x80'}")
            a(f"v_cmp_ne_u32 vcc, {tg}, v{V_T0}")
            a(f"s_cbranch_vccnz {name}_p4{'c' if R4 > 1 else ''}_{tg}")
            fin4()
            if tg == 0: a(f"s_branch {name}_p4d")
        a.label(f"{name}_p4d")
    if E("LT", 0):
        a(f"s_cmp_eq_u32 s{S_STEP}, 8\ns_cbranch_scc0 {name}_lt\ns_memtime s[50:51]\ns_memrealtime s[52:53]")
        a.label(f"{name}_lt")
    a.label(f"{name}_b5")
    a(f"""
    s_add_u32 s{S_STEP}, s{S_STEP}, 1
    s_add_u32 s{S_XBR}, s{S_XBR}, 4096
    s_cmp_eq_u32 s{S_XBR}, {L_XB + 3 * 4096}
    s_cselect_b32 s{S_XBR}, {L_XB}, s{S_XBR}
    s_mov_b32 s{S_T0}, s{S_SL}
    s_mov_b32 s{S_SL}, s{S_SLO}
    s_mov_b32 s{S_SLO}, s{S_T0}
    {f"s_xor_b32 s{S_XS}, s{S_XS}, {1 << 18}" if TAG else ""}
    {f"s_bfe_u32 s{S_TAG}, s{S_STEP}, 0x10001" if TAG else ""}
    {"" if NB5 else "s_barrier"}
    """)
    stamp(10)
    if E("W1", 16): a("; poll back-off: a too early first poll wastes a whole 16KB gather round"); a.nops(E("W1", 16))
    a(f"s_branch {name}_loop")
    a.label(f"{name}_x1")
    stamp(11)
    if not E("NOKVM", 0):
        a(f"s_cmp_eq_u32 s{S_WAVE}, 1\ns_cbranch_scc0 {name}_x2\ns_add_u32 s76, s{S_STEP}, 1")
        if E("FLM", 0):
            a(f"s_and_b32 s77, s76, {E('FLM', 0)}\ns_cmp_ge_u32 s76, {E('FLE', 54)}\ns_cselect_b32 s77, 0, s77\ns_cmp_eq_u32 s77, 0\ns_cbranch_scc0 {name}_x2")
        if E("FLD", 6): a(f"; helper wave only: keep this store behind wave 0's cross-XCD store in the CU's in-order memory queue\ns_sleep {E('FLD', 6)}")
        flag_store(76)
        a.label(f"{name}_x2")
    a(f"""
    s_cmp_eq_u32 s{S_WAVE}, 3
    s_cbranch_scc0 {name}_x4
    s_cmp_eq_u32 s{S_LATE}, 1
    s_cbranch_scc0 {name}_x5
    s_add_u32 s76, s{S_STEP}, 1
    """)
    prefetch(76, 3)
    a(f"""
    s_waitcnt vmcnt(0)
{name}_x5:
    """)
    if E("VPD", 0): a(f"s_sleep {E('VPD', 0)}")
    if flags:
        a(f"""
        s_add_u32 s76, s{S_STEP}, 4
        s_min_u32 s76, s76, 63
        s_cmp_gt_i32 s{S_KVN}, s76
        s_cbranch_scc1 {name}_x6
        v_mov_b32 v249, 0
        s_mov_b64 exec, 3
        buffer_atomic_add v249, v{V_OFL}, {SRD}, 0 offen sc0 sc1
        s_mov_b64 exec, -1
{name}_x6:
        """)
    a(f"""
    """)
    if not E("PB1", 1): a(f"""
    buffer_store_dwordx2 v[{V_POI}:{V_POI+1}], v{V_OPUB}, {SRD}, s{S_SL} offen {IS}
    s_mul_i32 s{S_T0}, s{S_T}, {SCS}
    s_add_u32 s{S_T0}, s{S_T0}, s{S_SL}
    s_add_u32 s{S_T0}, s{S_T0}, {SCO}
    buffer_store_dwordx4 v[{V_POI}:{V_POI+3}], v{V_LL}, {SRD}, s{S_T0} offen {IS}
    buffer_store_dwordx4 v[{V_POI}:{V_POI+3}], v{V_OSCM}, {SRD}, s{S_T0} offen {IS}
    """)
    a(f"""
    s_add_u32 s76, s{S_STEP}, 2
    s_cmp_lt_u32 s76, {nsteps-1}
    s_cbranch_scc0 {name}_x4
    {f"s_cmp_gt_i32 s{S_KVN}, s76" if flags else ""}
    s_cbranch_scc0 {name}_x4
    """)
    if not E("NOPF", 0) and not E("VPOS", 0):
        prefetch(76, -1, False)
    a.label(f"{name}_x4")
    zero(AQ, 24)
    if NB5: a(f"s_sleep {NB5}")
    a(f"s_branch {name}_b5")
    a.label(f"{name}_p2r")
    if prof: a("s_add_u32 s65, s65, 1")
    wdog()
    p2ld()
    a(f"s_branch {name}_p2")
    stubs_a()
    stubs_c()
    a.label(f"{name}_w0last")
    if E("LT", 0):
        a(f"""
        s_memtime s[54:55]
        s_memrealtime s[56:57]
        s_waitcnt lgkmcnt(0)
        s_sub_u32 s54, s54, s50
        s_sub_u32 s56, s56, s52
        v_mov_b32 v250, s54
        v_mov_b32 v251, s56
        s_lshl_b32 s80, s{S_CU}, 3
        s_add_u32 s80, s80, {WS_PROF + 14 * MB}
        buffer_store_dwordx2 v[250:251], v{ZER}, {SRD}, s80 offen
        """)
    a.nops(8)
    vfin()
    a("s_waitcnt lgkmcnt(0)\ns_barrier")
    a(f"s_branch {name}_end")
    a.label(f"{name}_side")
    if E("SV", 0): vwork(VE, 8)
    a(f"""
    s_cmp_eq_u32 s{S_WAVE}, 3
    s_cbranch_scc1 {name}_sd3
    s_cmp_eq_u32 s{S_WAVE}, 2
    s_cbranch_scc0 {name}_sd4
    s_mov_b64 exec, s[{S_MN8}:{S_MN8+1}]
    buffer_store_dwordx4 v[{V_POI}:{V_POI+3}], v{V_OOP}, {SRD}, s{S_SLO} offen {IS}
    s_mov_b64 exec, -1
    """)
    if E("PB1", 1): a(f"""
    buffer_store_dwordx2 v[{V_POI}:{V_POI+1}], v{V_OPUB}, {SRD}, s{S_SLO} offen {IS}
    s_mul_i32 s{S_T0}, s{S_T}, {SCS}
    s_add_u32 s{S_T0}, s{S_T0}, s{S_SLO}
    s_add_u32 s{S_T0}, s{S_T0}, {SCO}
    buffer_store_dwordx4 v[{V_POI}:{V_POI+3}], v{V_LL}, {SRD}, s{S_T0} offen {IS}
    buffer_store_dwordx4 v[{V_POI}:{V_POI+3}], v{V_OSCM}, {SRD}, s{S_T0} offen {IS}
    """)
    a(f"""
    s_branch {name}_sd4
{name}_sd3:
    v_readlane_b32 s76, v249, 0
    v_readlane_b32 s77, v249, 1
    s_min_i32 s76, s76, s77
    s_max_i32 s{S_KVN}, s{S_KVN}, s76
    s_mov_b32 s{S_LATE}, 0
    s_add_u32 s76, s{S_STEP}, 1
    s_cmp_lt_u32 s76, {nsteps-1}
    s_cbranch_scc0 {name}_sd4
    s_cmp_ge_u32 s76, {NSELF}
    s_cbranch_scc0 {name}_sd4
    {(f"s_cmp_eq_u32 s{S_WARM}, s76" if E("WARM", 0) else f"s_cmp_gt_i32 s{S_KVN}, s76") if flags else ""}
    s_cselect_b32 s{S_LATE}, 0, 1
    s_cbranch_scc0 {name}_sd4
    """)
    if not E("NOPF", 0): prefetch(76, 3, False)
    a.label(f"{name}_sd4")
    if not E("SV", 0): vwork(VE, 8)
    a.nops(8)
    vfin()
    zero(AO, 8)
    if not E("K2", 0):
        a(f"""
        s_cmp_eq_u32 s{S_WAVE}, 1
        s_cbranch_scc0 {name}_s1
        s_waitcnt lgkmcnt(0)
        """)
        rread()
        rsum(KVH)
        a.label(f"{name}_s1")
    a(f"""
    v_add_u32 v{V_T1}, {L_VP}, v{V_LL}
    s_waitcnt lgkmcnt(0)
    s_barrier
    s_cmp_eq_u32 s{S_WAVE}, 2
    s_cbranch_scc1 {name}_s2
    """)
    if E("K2", 0):
        a(f"s_cmp_eq_u32 s{S_WAVE}, 1\ns_cbranch_scc0 {name}_s1")
        rread()
        rsum(KVH)
        a(f"s_branch {name}_s3")
        a.label(f"{name}_s1")
    if E("KPF", 1) and not E("NOPF", 0):
        a(f"""
        s_cmp_eq_u32 s{S_WAVE}, 3
        s_cbranch_scc0 {name}_s3
        s_add_u32 s76, s{S_STEP}, 2
        s_cmp_lt_u32 s76, {nsteps-1}
        s_cbranch_scc0 {name}_s3
        {f"s_cmp_gt_i32 s{S_KVN}, s76" if flags else ""}
        s_cbranch_scc0 {name}_s3
        """)
        prefetch(76, 0, False)
        a(f"s_mov_b32 s88, s76")
    a(f"s_branch {name}_s3")
    a.label(f"{name}_s2")
    for w in range(4):
        a(f"ds_read_b128 v[{RP+4*w}:{RP+4*w+3}], v{V_T1} offset:{1024*w}")
    a(f"v_lshrrev_b32 v{V_T1}, 1, v{V_LL}")
    a("s_waitcnt lgkmcnt(2)")
    for i in (0, 2):
        a(f"v_pk_add_f32 v[{RP+i}:{RP+i+1}], v[{RP+i}:{RP+i+1}], v[{RP+4+i}:{RP+4+i+1}]")
    a("s_waitcnt lgkmcnt(0)")
    for i in (0, 2):
        a(f"v_pk_add_f32 v[{RP+8+i}:{RP+8+i+1}], v[{RP+8+i}:{RP+8+i+1}], v[{RP+12+i}:{RP+12+i+1}]")
    for i in (0, 2):
        a(f"v_pk_add_f32 v[{RP+i}:{RP+i+1}], v[{RP+i}:{RP+i+1}], v[{RP+8+i}:{RP+8+i+1}]")
    a(f"v_cvt_pk_bf16_f32 v{KVH}, v{RP}, v{RP+1}")
    a(f"v_cvt_pk_bf16_f32 v{KVH+1}, v{RP+2}, v{RP+3}")
    a(f"ds_write_b64 v{V_T1}, v[{KVH}:{KVH+1}] offset:{L_VM}")
    a("s_waitcnt lgkmcnt(0) vmcnt(0)")
    a.label(f"{name}_s3")
    a(f"""
    s_cmp_eq_u32 s{S_STEP}, {nsteps-1}
    s_cbranch_scc1 {name}_slast
    s_add_u32 s{S_T1}, s{S_SL}, {OXO}
    s_barrier
    """)

    def kv_pub(tag):
        if tag == "b" and flags and E("LASTD", 0):
            klast(a, S_T0, S_H)
            a(f"s_lshl_b32 s77, s{S_J}, 10\ns_add_u32 s{S_T0}, s{S_T0}, s77\nv_min_u32 v{KVH}, -2, v{KVH}")
        else: a(f"""
        s_add_u32 s77, s{S_STEP}, s{S_CU}
        s_bfe_u32 s{S_T0}, s77, 0x30003
        s_lshl_b32 s{S_T0}, s{S_T0}, 14
        s_and_b32 s77, s77, 7
        s_lshl_b32 s77, s77, 10
        s_add_u32 s{S_T0}, s{S_T0}, s77
        s_add_u32 s{S_T0}, s{S_T0}, s{S_KVB}
        """)
        if tag == "a" and flags and E("LASTD", 0) == 2:
            a(f"s_cmp_eq_u32 s{S_STEP}, {nsteps-2}\ns_cselect_b32 s{S_T0}, s88, s{S_T0}\nv_min_u32 v{KVH}, -2, v{KVH}")
        a(f"""
        s_cmp_eq_u32 s{S_WAVE}, 2
        s_cbranch_scc1 {name}_kv2{tag}
        s_mov_b64 exec, s[{S_MKM}:{S_MKM+1}]
        buffer_store_dwordx4 v[{KVH}:{KVH+3}], v{V_OKV}, {SRD}, s{S_T0} offen sc1
        s_mov_b64 exec, -1
        s_branch {name}_kvd{tag}
{name}_kv2{tag}:
        v_lshlrev_b32 v{V_T0}, 3, v{V_L}
        buffer_store_dwordx2 v[{KVH}:{KVH+1}], v{V_T0}, {SRD}, s{S_T0} offen offset:512 sc1
{name}_kvd{tag}:
        """)
    a(f"s_cmp_eq_u32 s{S_WAVE}, 3\ns_cbranch_scc1 {name}_y3")
    if not E("NOKVM", 0):
        kv_pub("a")
    a(f"s_branch {name}_y4")
    a.label(f"{name}_y3")
    if not TAG:
        a(f"s_add_u32 s76, s{S_STEP}, 2\ns_and_b32 s76, s76, 63")
        xuoff(S_XS, 76)
        a(f"s_cmp_lt_u32 s76, 2\ns_cbranch_scc1 {name}_y4")
        a(f"buffer_store_dwordx4 v[{V_POI}:{V_POI+3}], v{V_OXW}, {SRD}, s{S_XS} offen sc1")
    a(f"""
    s_add_u32 s76, s{S_STEP}, 2
    s_cmp_lt_u32 s76, {nsteps-1}
    s_cbranch_scc0 {name}_y4
    """)
    if E("VPOS", 0):
        a(f"s_cmp_eq_u32 s88, s76\ns_cbranch_scc0 {name}_y4")
        prefetch(76, -1, False)
    if not E("NOPF", 0):
        if E("KPF", 1):
            if not E("RF4", 1):
                a(f"s_add_u32 s76, s{S_STEP}, 3")
                prefetch(76, None, skip=f"{name}_y4")
        else:
            prefetch(76, 0, skip=f"{name}_y4")
    a.label(f"{name}_y4")
    if NB3: a(f"s_sleep {NB3}")
    a(f"s_branch {name}_b3")
    a.label(f"{name}_first")
    xread()
    a(f"s_branch {name}_adone")
    a.label(f"{name}_slast")
    a(f"s_cmp_eq_u32 s{S_WAVE}, 3\ns_cbranch_scc1 {name}_end")
    kv_pub("b")
    if not (flags and E("LASTD", 0)):
        a(f"s_waitcnt vmcnt(0)\ns_barrier\ns_mov_b32 s76, {nsteps}\ns_cmp_eq_u32 s{S_WAVE}, 1\ns_cbranch_scc0 {name}_end")
        flag_store(76)
    if E("IW", 2):
        i0 = a.lines.index(f"{name}_loop:")
        import align8
        body = a.lines[i0:]
        sz = align8.sizes([l.split(";")[0].strip() for l in body])
        out, pos, lastl, links = [], 0, -1000, []
        for l in body:
            c = l.split(";")[0].strip()
            far = pos - lastl >= E("IWD", 48)
            if c.startswith("s_nop") and far and (E("IW", 2) == 1 or (E("IW", 2) == 3 and int(c.split()[1]) >= 9)):
                k = int(c.split()[1])
                links.append(len(out)); out.append("X"); lastl = pos
                if k: out.append(f"s_nop {k-1}"); pos += 4
                pos += 4
                continue
            out.append(l)
            if c.startswith(".p2align"):
                al = 1 << int(c.split()[1]); pos = (pos + al - 1) // al * al
            elif align8.is_inst(c):
                pos += sz[c]
                if c.startswith("s_branch") and far:
                    links.append(len(out)); out.append("X"); lastl = pos; pos += 4
        per = (len(links) + 3) // 4
        for n, i in enumerate(links):
            tgt = f"{name}_iwd" if (n + 1) % per == 0 or n + 1 == len(links) else f"{name}_il{n+1}"
            ent = f"{name}_iw{n // per}:\n" if n % per == 0 else ""
            out[i] = f"{ent}{name}_il{n}:\ns_cbranch_execz {tgt}"
        if os.environ.get("WV"): print("links", len(links), "bytes", pos)
        a.lines[i0:] = "\n".join(out).split("\n")
    a.label(f"{name}_end")
    if E("FIXT", 0):
        a(f"""
        s_memrealtime s[50:51]
        s_waitcnt lgkmcnt(0)
        s_sub_u32 s52, s50, s100
        s_mul_i32 s52, s52, {E("FIXM", 0)}
        s_add_u32 s52, s52, {E("FIXT", 0)}
{name}_fx:
        s_memrealtime s[50:51]
        s_waitcnt lgkmcnt(0)
        s_sub_u32 s50, s50, s100
        s_cmp_lt_u32 s50, s52
        s_cbranch_scc1 {name}_fx
        """)
    if ts: ts(4)
    if prof:
        a(f"""
        s_lshl_b32 s{S_T0}, s{S_X}, 5
        s_add_u32 s{S_T0}, s{S_T0}, s{S_T}
        s_lshl_b32 s{S_T0}, s{S_T0}, 2
        s_add_u32 s{S_T0}, s{S_T0}, s{S_WAVE}
        s_lshl_b32 s{S_T0}, s{S_T0}, 6
        s_add_u32 s{S_T0}, s{S_T0}, {WS_PROF}
        v_mov_b32 v{V_T1}, 0
        s_mov_b64 exec, 1
        """)
        for i in range(16):
            a(f"v_mov_b32 v{V_T0}, s{50+i}")
            a(f"buffer_store_dword v{V_T0}, v{V_T1}, {SRD}, s{S_T0} offen offset:{4*i}")
            a("s_nop 1")
    a("s_endpgm")


def gen_rec_standalone(a: Asm, name, prof=False, force_slow=False):
    a.kernel_begin(name)
    a(f"s_cmp_ge_u32 s2, 256\ns_cbranch_scc1 {name}_exit")
    start_code(a, name)
    a(f"""
    s_sub_u32 s40, s90, 6
    s_lshl_b32 s40, s40, 5
    s_add_u32 s40, s40, s96
    s_cmp_lt_u32 s90, 4
    s_cbranch_scc0 {name}_oth
    s_mov_b32 s{S_X}, s90
    s_mov_b32 s{S_T}, s96
    """)
    rec_body(a, name + "_f", "", lambda vt, pre=False: sync_code(a, name, "r", vt, pre=pre), prof=prof, flags=False)
    a.label(f"{name}_oth")
    a(f"s_cmp_lt_u32 s40, {NI}\ns_cbranch_scc0 {name}_exit")
    init_cd(a, name, 40)
    a.label(f"{name}_slowent")
    a.label(f"{name}_exit")
    a("s_endpgm")
    return kd(name, 512, sgpr=102, accum=256)


if __name__ == "__main__":
    import sys
    a = Asm()
    name = "rec_kernel"
    k = gen_rec_standalone(a, name, prof=("prof" in sys.argv), force_slow=("slow" in sys.argv))
    out = HEADER + f"; @launch kernel={name} grid=(256,1,1) block=(256,1,1) lds=163840\n"
    out += '.amdgcn_target "amdgcn-amd-amdhsa--gfx950"\n.text\n' + a.text() + '.section .rodata,"a"\n' + k
    open(os.environ.get("OUT", "rec.s"), "w").write(out)
```

```python
from gen_common import *
from gen_rec import S_WSD, S_DBG, E, sync_issue, klast

W = S_WSD
SRD = f"s[{W}:{W+3}]"
S_H = 40
S_WAVE, S_SEG, S_T0, S_T1, S_T2 = 41, 42, 43, 44, 45
S_WM, S_XM = 4, 8
V_L, V_T0, V_T1, V_T2, V_LL = 1, 2, 3, 4, 5


def wdog(a, name):
    wd_code(a, name + ":" + a.lines[-1], f"s{S_SEG}")


def tsx(a, ts, i):
    if E("BPROF", 0):
        ts(i)
        a(f"v_and_b32 v{V_L}, 63, v0")


def pst(i):
    if not E("KPROF", 0): return []
    return ["s_memtime s[76:77]", "s_waitcnt lgkmcnt(0)", "s_sub_u32 s78, s76, s31", f"s_add_u32 s{32+i}, s{32+i}, s78", "s_mov_b32 s31, s76"]


def pinit(a):
    if not E("KPROF", 0): return
    for i in range(8): a(f"s_mov_b32 s{32+i}, 0")
    a("s_memtime s[76:77]\ns_waitcnt lgkmcnt(0)\ns_mov_b32 s31, s76")


def pdump(a):
    if not E("KPROF", 0): return
    a(f"s_lshl_b32 s78, s2, 7\ns_lshl_b32 s77, s{S_WAVE}, 5\ns_add_u32 s78, s78, s77\ns_add_u32 s78, s78, {WS_PROF + 9*MB}\nv_mov_b32 v2, 0\ns_mov_b64 exec, 1")
    for i in range(8):
        a(f"v_mov_b32 v3, s{32+i}\nbuffer_store_dword v3, v2, {SRD}, s78 offen offset:{4*i}\ns_nop 1")
    a("s_mov_b64 exec, -1")


def common(a, ka_w, ka_x, xbytes):
    a(f"""
    s_load_dwordx2 s[{S_WM}:{S_WM+1}], s[0:1], {ka_w}
    s_load_dwordx2 s[{S_XM}:{S_XM+1}], s[0:1], {ka_x}
    v_lshrrev_b32 v{V_T0}, 6, v0
    v_and_b32 v{V_L}, 63, v0
    v_readfirstlane_b32 s{S_WAVE}, v{V_T0}
    v_lshlrev_b32 v{V_LL}, 4, v{V_L}
    s_waitcnt lgkmcnt(0)
    s_mov_b32 s{S_WM+2}, {8*MB}
    s_mov_b32 s{S_WM+3}, 0x00020000
    s_mov_b32 s{S_XM+2}, {xbytes}
    s_mov_b32 s{S_XM+3}, 0x00020000
    """)


def load_weights(a, rowlog, s_base, lane_addr, frag_off, rot=None, cl=2, touch=False):
    a(f"""
    v_lshrrev_b32 v{V_T0}, {cl}, v{V_L}
    v_and_b32 v{V_T1}, {(1 << cl) - 1}, v{V_L}
    v_lshlrev_b32 v16, {rowlog}, v{V_T0}
    v_lshl_add_u32 v16, v{V_T1}, 4, v16
    v_add_u32 v16, s{s_base}, v16
    v_and_b32 v{V_T1}, 3, v{V_L}
    s_lshl_b32 s{S_T2}, s{S_WAVE}, 15
    """)
    RI = 64 >> cl
    a(lane_addr)
    a(f"v_add_u32 v17, s{S_T2}, v17")

    HELP = 1 if (touch and E("BHELP", 1)) else 0
    if HELP:
        a(f"""
        s_and_b32 s{S_T0}, s{S_H}, 3
        s_lshl_b32 s{S_T0}, s{S_T0}, 2
        s_add_u32 s{S_T0}, s{S_T0}, s{S_WAVE}
        s_lshl_b32 s{S_T0}, s{S_T0}, 4
        v_and_b32 v23, 15, v{V_L}
        v_add_u32 v23, s{S_T0}, v23
        s_lshr_b32 s{S_T0}, s{S_H}, 2
        s_lshl_b32 s{S_T0}, s{S_T0}, 10
        s_add_u32 s{S_T1}, s{S_T0}, 896
        s_add_u32 s{S_T0}, s{S_T0}, 384
        s_cmp_ge_u32 s{S_H}, 28
        s_cselect_b32 s{S_T1}, s{S_T1}, s{S_T0}
        v_mov_b32 v24, s{S_T0}
        v_mov_b32 v25, s{S_T1}
        v_cmp_gt_u32 vcc, 32, v{V_L}
        s_nop 1
        v_cndmask_b32 v24, v25, v24, vcc
        v_lshl_add_u32 v23, v23, 13, v24
        """)

    def dma(ch):
        if HELP:
            a(f"s_mov_b32 s{S_T1}, {ch * 2 * MB}\nbuffer_load_dword v22, v23, s[{S_WM}:{S_WM+3}], s{S_T1} offen")
        for r in range(16):
            a(f"s_add_u32 m0, s{S_T2}, {(ch & 1)*16384 + 1024*r}")
            if rot is None:
                a(f"s_mov_b32 s{S_T1}, {(RI * (16 * ch + r)) << rowlog}")
            else:
                a(f"s_add_u32 s{S_T1}, s{rot}, {RI * (16 * ch + r)}\ns_and_b32 s{S_T1}, s{S_T1}, {64 * RI - 1}\ns_lshl_b32 s{S_T1}, s{S_T1}, {rowlog}")
            a(f"buffer_load_dwordx4 v16, s[{S_WM}:{S_WM+3}], s{S_T1} offen {'nt ' if E('BNT', 0) else ''}lds")

    def tr(ch):
        for f in range(16 * ch, 16 * ch + 16):
            for jj in range(2):
                o = frag_off(f, jj) - 16384 * ch
                assert 0 <= o < 16384
                a(f"ds_read_b64_tr_b16 a[{4*f+2*jj}:{4*f+2*jj+1}], v17 offset:{(ch & 1)*16384 + o}")
            if f % 4 == 3:
                a("s_waitcnt lgkmcnt(0)")
    WT = E("BWT", 0) if touch else 0
    if WT:
        a(f"""
        s_lshl_b32 s{S_T0}, s{S_H}, 16
        s_lshl_b32 s{S_T1}, s{S_WAVE}, 14
        s_add_u32 s{S_T0}, s{S_T0}, s{S_T1}
        v_lshlrev_b32 v21, 7, v{V_L}
        v_add_u32 v21, s{S_T0}, v21
        """)
    def tch(n):
        for i in range(2):
            a(f"s_mov_b32 s{S_T1}, {n * 2 * MB + i * 8192}")
            a(f"buffer_load_dword v22, v21, s[{S_WM}:{S_WM+3}], s{S_T1} offen")
    if WT == 1:
        tch(0); tch(1); dma(0); tch(2); dma(1); tch(3)
    elif WT == 2:
        tch(0); tch(1); tch(2); tch(3); dma(0); dma(1)
    else:
        dma(0); dma(1)
    a(f"s_waitcnt vmcnt({(20 if WT == 1 else 16) + HELP})"); tr(0); dma(2)
    a(f"s_waitcnt vmcnt({(18 if WT == 1 else 16) + HELP})"); tr(1); dma(3)
    a("s_waitcnt vmcnt(16)"); tr(2)
    a("s_waitcnt vmcnt(0)"); tr(3)
    a("s_barrier")


def lane32(hi_mul, swap=False, rl=6):
    if swap:
        return lane32(hi_mul).replace(f"v_lshl_add_u32 v17, v{V_T1}, 3, v17", f"""
        v_and_b32 v18, 1, v{V_L}
        v_lshl_add_u32 v17, v18, 4, v17
        v_bfe_u32 v18, v{V_L}, 1, 1
        v_lshl_add_u32 v17, v18, 3, v17""")
    return f"""
    v_bfe_u32 v17, v{V_L}, 2, 2
    v_lshrrev_b32 v18, 5, v{V_L}
    v_mul_u32_u24 v18, {hi_mul}, v18
    v_add_u32 v17, v17, v18
    v_lshlrev_b32 v17, {rl}, v17
    v_bfe_u32 v18, v{V_L}, 4, 1
    v_lshl_add_u32 v17, v18, 5, v17
    v_lshl_add_u32 v17, v{V_T1}, 3, v17
    """


def lane16(qlog):
    return f"""
    v_bfe_u32 v17, v{V_L}, 2, 2
    v_lshrrev_b32 v18, 4, v{V_L}
    v_lshl_add_u32 v17, v18, 3, v17
    v_lshlrev_b32 v17, 6, v17
    v_lshl_add_u32 v17, v{V_T1}, {qlog}, v17
    """


M32 = E('M32', 0)
GR2 = 512 if M32 else 1024
V_DX, V_RA, V_ST = 6, 8, 7
FR, NFR, AHEAD = 20, 8, 6
ACC = (52, 68)
EP = 84
S_XB = 46
S_CU, S_OB, S_FL = 47, 48, 49
S_O0, S_O1, S_OI, S_SH = 64, 65, 66, 67


def proj_setup(a, ka_w, swap, two=False, presync=True):
    assert not M32
    common(a, ka_w, KA_AX, 4 * MB)
    a(f"""
    s_lshl_b32 s{S_T0}, s{S_H}, 8
    s_lshl_b32 s{S_T1}, s{S_WAVE}, 6
    s_add_u32 s{S_OB}, s{S_T0}, s{S_T1}
    s_and_b32 s{S_T0}, s{S_OB}, 0x7ff
    v_add_u32 v19, s{S_T0}, v{V_L}
    v_lshlrev_b32 v19, 7, v19
    s_mov_b32 s{S_T0}, {0x20000 if two else 0}
    buffer_load_dword v250, v19, s[{S_XM}:{S_XM+3}], s{S_T0} offen
    s_nop 0
    """)
    a(f"""
    v_lshrrev_b32 v{V_T0}, 3, v{V_L}
    s_lshl_b32 s{S_T0}, s{S_WAVE}, 3
    v_add_u32 v{V_T0}, s{S_T0}, v{V_T0}
    v_bfe_u32 v{V_T1}, v{V_T0}, 1, 3
    v_and_b32 v{V_T2}, 7, v{V_L}
    v_xor_b32 v{V_T1}, v{V_T1}, v{V_T2}
    v_lshlrev_b32 v{V_DX}, 11, v{V_T0}
    v_lshl_add_u32 v{V_DX}, v{V_T1}, 4, v{V_DX}
    s_lshl_b32 s{S_XB}, s{S_WAVE}, 10
    v_and_b32 v{V_T0}, 15, v{V_L}
    v_bfe_u32 v{V_T1}, v{V_T0}, 1, 3
    v_lshrrev_b32 v{V_T2}, 4, v{V_L}
    v_xor_b32 v{V_T1}, v{V_T1}, v{V_T2}
    v_lshlrev_b32 v{V_RA}, 7, v{V_T0}
    v_lshl_add_u32 v{V_RA}, v{V_T1}, 4, v{V_RA}
    v_xor_b32 v{V_RA+1}, 64, v{V_RA}
    v_add_u32 v{V_RA+2}, 0x10000, v{V_RA}
    v_add_u32 v{V_RA+3}, 0x10000, v{V_RA+1}
    v_mov_b32 v{V_ST}, v{V_LL}
    """)
    if M32:
        a(f"""
        v_and_b32 v{V_T0}, 31, v{V_L}
        v_bfe_u32 v{V_T1}, v{V_T0}, 1, 3
        v_lshrrev_b32 v{V_T2}, 5, v{V_L}
        v_xor_b32 v{V_T1}, v{V_T1}, v{V_T2}
        v_lshlrev_b32 v{V_RA}, 7, v{V_T0}
        v_lshl_add_u32 v{V_RA}, v{V_T1}, 4, v{V_RA}
        v_xor_b32 v{V_RA+1}, 32, v{V_RA}
        v_xor_b32 v{V_RA+2}, 64, v{V_RA}
        v_xor_b32 v{V_RA+3}, 96, v{V_RA}
        v_add_u32 v{V_RA+4}, 0x10000, v{V_RA}
        v_add_u32 v{V_RA+5}, 0x10000, v{V_RA+1}
        v_add_u32 v{V_RA+6}, 0x10000, v{V_RA+2}
        v_add_u32 v{V_RA+7}, 0x10000, v{V_RA+3}
        v_bfe_u32 v{V_T1}, v{V_L}, 4, 1
        v_lshlrev_b32 v{V_ST}, 10, v{V_T1}
        v_lshl_add_u32 v{V_ST}, v{V_T2}, 8, v{V_ST}
        v_and_b32 v{V_T1}, 15, v{V_L}
        v_lshl_add_u32 v{V_ST}, v{V_T1}, 4, v{V_ST}
        """)
    a(f"""
    s_lshl_b32 s{S_CU}, s{S_H}, 2
    s_add_u32 s{S_CU}, s{S_CU}, s{S_WAVE}
    s_mov_b32 s{S_SEG}, 0
    s_mov_b32 s50, 0
    """)
    for g in xdma_lines(0, 50):
        a("\n".join(g))
    if two:
        a("s_mov_b32 s50, 0x10000")
        for g in xdma_lines(1, 50):
            a("\n".join(g))
    NC, RG, NI_, CB = (16, 2, 4, 4096) if two else (8, 3, 8, 8192)
    a(f"""
    v_lshrrev_b32 v{V_T0}, 2, v{V_L}
    v_and_b32 v{V_T1}, 3, v{V_L}
    v_lshlrev_b32 v16, 13, v{V_T0}
    v_lshl_add_u32 v16, v{V_T1}, 4, v16
    v_add_u32 v16, s{S_OB}, v16
    s_mul_i32 s{S_T2}, s{S_WAVE}, {RG * CB}
    s_add_u32 s{S_T2}, s{S_T2}, {131072 if two else 65536}
    """)
    a(lane16(4 if swap else 3))
    a(f"""
    v_add_u32 v17, s{S_T2}, v17
    s_and_b32 s{S_T0}, s{S_H}, 3
    s_lshl_b32 s{S_T0}, s{S_T0}, 2
    s_add_u32 s{S_T0}, s{S_T0}, s{S_WAVE}
    s_lshl_b32 s{S_T0}, s{S_T0}, 3
    v_and_b32 v12, 7, v{V_L}
    v_add_u32 v12, s{S_T0}, v12
    s_lshr_b32 s{S_T0}, s{S_H}, 2
    s_lshl_b32 s{S_T0}, s{S_T0}, 10
    s_add_u32 s{S_T1}, s{S_T0}, 896
    s_add_u32 s{S_T0}, s{S_T0}, 384
    s_cmp_ge_u32 s{S_H}, 28
    s_cselect_b32 s{S_T1}, s{S_T1}, s{S_T0}
    v_mov_b32 v13, s{S_T0}
    v_mov_b32 v14, s{S_T1}
    v_cmp_gt_u32 vcc, 32, v{V_L}
    s_nop 1
    v_cndmask_b32 v13, v14, v13, vcc
    v_lshl_add_u32 v12, v12, 13, v13
    """)

    BX = E("BX", 0)
    if BX:
        a(f"""
        s_lshl_b32 s{S_T0}, s{S_WAVE}, 4
        s_add_u32 s{S_T0}, s{S_T0}, 64
        v_and_b32 v13, 15, v{V_L}
        v_add_u32 v13, s{S_T0}, v13
        v_lshlrev_b32 v13, 13, v13
        v_bfe_u32 v14, v{V_L}, 4, 1
        v_lshl_add_u32 v13, v14, 7, v13
        s_xor_b32 s{S_T0}, s{S_H}, {BX}
        s_lshl_b32 s{S_T0}, s{S_T0}, 8
        v_add_u32 v13, s{S_T0}, v13
        """)

    def hastouch(ch):
        return (1 + bool(BX)) * ((not two) or ch % 2 == 0)

    def dma(ch):
        if hastouch(ch):
            a(f"s_mov_b32 s{S_T1}, {(ch // 2 if two else ch) * MB}\nbuffer_load_dword v250, v12, s[{S_WM}:{S_WM+3}], s{S_T1} offen")
            if BX: a(f"s_mov_b32 s{S_T1}, {min((ch // 2 if two else ch) + E('BXA', 0), 7) * MB}\nbuffer_load_dword v250, v13, s[{S_WM}:{S_WM+3}], s{S_T1} offen")
        for r in range(NI_):
            a(f"s_add_u32 m0, s{S_T2}, {(ch % RG)*CB + 1024*r}")
            a(f"s_mov_b32 s{S_T1}, {(16 * (NI_ * ch + r)) << 13}")
            a(f"buffer_load_dwordx4 v16, s[{S_WM}:{S_WM+3}], s{S_T1} offen lds")
    for ch in range(RG): dma(ch)
    for ch in range(NC):
        a(f"s_waitcnt vmcnt({sum(NI_ + hastouch(c) for c in range(ch + 1, min(ch + RG, NC)))})")
        if ch == 0: a("s_barrier")
        for f in range(NI_ * ch, NI_ * ch + NI_):
            for jj in range(2):
                o = (32 * ((f >> 1) - NI_ // 2 * ch) + 4 * jj) * 64 + (f & 1) * (8 if swap else 32)
                a(f"ds_read_b64_tr_b16 a[{4*f+2*jj}:{4*f+2*jj+1}], v17 offset:{(ch % RG)*CB + o}")
            if f % 4 == 3: a("s_waitcnt lgkmcnt(0)")
        if two and presync and ch == NC - RG - 1: sync_issue(a, 246)
        if ch + RG < NC: dma(ch + RG)
        work = [(z, n) for z in range(2 if two else 1) for n in range(NI_ * ch, NI_ * ch + NI_)]
        for i, (z, n) in enumerate(work):
            k = n >> 1
            a(f"ds_read_b128 v[{FR+4*i}:{FR+4*i+3}], v{V_RA + 2*z + (k & 1)} offset:{4096*(k >> 1) + 2048*(n & 1)}")
        a("s_waitcnt lgkmcnt(0)")
        for i, (z, n) in enumerate(work):
            k, tt, f = n >> 1, n & 1, FR + 4 * i
            for u in range(2):
                d, w = ACC[z] + 8 * tt + 4 * u, 4 * (2 * k + u)
                c = "0" if k == 0 else f"v[{d}:{d+3}]"
                if swap: a(f"v_mfma_f32_16x16x32_bf16 v[{d}:{d+3}], a[{w}:{w+3}], v[{f}:{f+3}], {c}")
                else: a(f"v_mfma_f32_16x16x32_bf16 v[{d}:{d+3}], v[{f}:{f+3}], a[{w}:{w+3}], {c}")
    if not two:
        a("s_barrier\ns_mov_b32 s50, 0x10000")
        for g in xdma_lines(1, 50):
            a("\n".join(g))


def xdma_lines(buf, s_off):
    out = []
    for kb in range(16):
        out.append([f"s_add_u32 m0, s{S_XB}, {buf*65536 + kb*3968}", "s_nop 0",
                    f"buffer_load_dwordx4 v{V_DX}, s[{S_XM}:{S_XM+3}], s{s_off} offen offset:{128*kb} lds"])
    return out


def proj_segment(a, buf, acc, wA, fill, stg=None):
    def rd(n):
        f = FR + 4 * (n % NFR)
        k = n >> 1
        if M32:
            a(f"ds_read_b128 v[{f}:{f+3}], v{V_RA + 4*buf + (n & 3)} offset:{4096*(n >> 2)}")
        else:
            a(f"ds_read_b128 v[{f}:{f+3}], v{V_RA + 2*buf + (k & 1)} offset:{4096*(k >> 1) + 2048*(n & 1)}")
    for n in range(AHEAD):
        rd(n)
    for l in fill.get(-1, []):
        a(l)
    for n in range(64):
        f = FR + 4 * (n % NFR)
        k, tt = n >> 1, n & 1
        fl = list(fill.get(n, []))
        if fl and "m0" in fl[0] and fl[1] == "s_nop 0":
            a(fl[0]); fl = fl[2:]
        if not (E("LG2", 1) and n % 2 == 1 and n + AHEAD < 64):
            a(f"s_waitcnt lgkmcnt({min(AHEAD, 64 - n) - 1 - (1 if E('LG2', 1) and n + 1 + AHEAD < 64 else 0)})")
        if M32:
            c = "0" if n == 0 else f"v[{acc}:{acc+15}]"
            if wA:
                a(f"v_mfma_f32_32x32x16_bf16 v[{acc}:{acc+15}], a[{4*n}:{4*n+3}], v[{f}:{f+3}], {c}")
            else:
                a(f"v_mfma_f32_32x32x16_bf16 v[{acc}:{acc+15}], v[{f}:{f+3}], a[{4*n}:{4*n+3}], {c}")
            if n + AHEAD < 64:
                rd(n + AHEAD)
        for u in range(0 if M32 else 2):
            d = acc + 8 * tt + 4 * u
            w = 4 * (2 * k + u)
            c = "0" if k == 0 else f"v[{d}:{d+3}]"
            if stg is not None and k == 31: d += stg - acc
            if wA:
                a(f"v_mfma_f32_16x16x32_bf16 v[{d}:{d+3}], a[{w}:{w+3}], v[{f}:{f+3}], {c}")
            else:
                a(f"v_mfma_f32_16x16x32_bf16 v[{d}:{d+3}], v[{f}:{f+3}], a[{w}:{w+3}], {c}")
            if u == 0 and n + AHEAD < 64:
                rd(n + AHEAD)
        for l in fl:
            a(l)


def pack_lines(acc, isV):
    src = [0, 2, 8, 10, 4, 6, 12, 14] if isV else [0, 2, 4, 6, 8, 10, 12, 14]
    return [f"v_cvt_pk_bf16_f32 v{EP+i}, v{acc+s}, v{acc+s+1}" for i, s in enumerate(src)]


ONEAR = E("ONEAR", 1)


def obase(dst, seg, tmp=63):
    if not ONEAR:
        return f"s_lshl_b32 s{dst}, s{seg}, 18"
    return (f"s_lshr_b32 s{tmp}, s{seg}, 2\ns_xnor_b32 s{tmp}, s{tmp}, s98\ns_and_b32 s{tmp}, s{tmp}, 1\ns_lshl_b32 s{tmp}, s{tmp}, 13\n"
            f"s_lshl_b32 s{dst}, s{seg}, 19\ns_add_u32 s{dst}, s{dst}, s{tmp}")


def kvx(cu):
    m = E("KVPAR", 0)
    return ["", f"s_xor_b32 s{S_T1}, s{S_T1}, 1", f"s_xor_b32 s{S_T1}, s{S_T1}, s{cu}"][m]


def near_base(a, dst, cu, log, region):
    a(f"""
    s_lshr_b32 s{S_T1}, s{cu}, {21 - log}
    s_xor_b32 s{S_T1}, s{S_T1}, s98
    {kvx(cu) if log == 18 else ""}
    s_and_b32 s{S_T1}, s{S_T1}, 1
    s_lshl_b32 s{S_T1}, s{S_T1}, 13
    s_lshl_b32 s{dst}, s{cu}, {log}
    s_add_u32 s{dst}, s{dst}, s{S_T1}
    s_add_u32 s{dst}, s{dst}, {region}
    """)


def kv_role(a: Asm, name, isV, ts, sync):
    TWO = E('TWO', 0)
    proj_setup(a, KA_WV if isV else KA_WK, not isV, two=TWO)
    tsx(a, ts, 2)
    def store_lines():
        return [f"s_add_u32 s51, s{S_SEG}, s{S_CU}", "s_sub_u32 s51, s51, 1", "s_bfe_u32 s52, s51, 0x40002", "s_lshl_b32 s52, s52, 14",
                "s_and_b32 s51, s51, 3", "s_lshl_b32 s51, s51, 11", "s_add_u32 s51, s51, s52", f"s_add_u32 s51, s51, s{S_OB}",
                f"buffer_store_dwordx4 v[{EP}:{EP+3}], v{V_ST}, {SRD}, s51 offen sc1",
                f"buffer_store_dwordx4 v[{EP+4}:{EP+7}], v{V_ST}, {SRD}, s51 offen offset:{GR2} sc1"] + (
                ["s_xor_b32 s51, s51, 0x2000", f"buffer_store_dwordx4 v[{EP}:{EP+3}], v{V_ST}, {SRD}, s51 offen sc1",
                 f"buffer_store_dwordx4 v[{EP+4}:{EP+7}], v{V_ST}, {SRD}, s51 offen offset:{GR2} sc1"] if E("KV2", 0) else [])

    def flag_lines():
        return [f"v_mov_b32 v17, s{S_SEG}", "s_mov_b64 exec, 1", f"buffer_store_dword v17, v16, {SRD}, s{S_FL} offen sc1", "s_mov_b64 exec, -1"]

    def seg(buf, first):
        a("\n".join(pst(0)))
        a(f"s_waitcnt vmcnt({0 if first else 2})")
        a("\n".join(pst(1)))
        a("s_barrier")
        a("\n".join(pst(2)))
        a(f"s_add_u32 s50, s{S_SEG}, 1\ns_min_u32 s50, s50, 63\ns_lshl_b32 s50, s50, 16")
        fill = {}
        if not first:
            pk = pack_lines(ACC[1 - buf], isV)
            fill[0] = pk[:3]; fill[1] = pk[3:6]; fill[2] = pk[6:]
            st = store_lines()
            fill[3] = st[:4]; fill[4] = st[4:9]; fill[5] = st[9:12]; fill[6] = st[12:]
            fill[E("FG", 42)] = pst(3) + ["s_waitcnt vmcnt(16)"] + pst(4) + flag_lines()
        fill[E("FG", 42) + 2] = [f"s_add_u32 s53, s{S_SEG}, 3", "s_min_u32 s53, s53, 63", "s_lshl_b32 s53, s53, 16",
                    "s_mov_b64 exec, 0xffff", f"buffer_load_dword v250, v19, s[{S_XM}:{S_XM+3}], s53 offen", "s_mov_b64 exec, -1"]
        if E("XT", 3) != 3: fill[E("FG", 42) + 2][0] = f"s_add_u32 s53, s{S_SEG}, {E('XT', 3)}"
        for i, g in enumerate(xdma_lines(1 - buf, 50)):
            fill[7 + 2 * i] = g
        proj_segment(a, buf, ACC[buf], not isV, fill)
        a(f"s_add_u32 s{S_SEG}, s{S_SEG}, 1")
        if E("EARLY", 0):
            a(f"s_cmp_le_u32 s{S_SEG}, {E('EARLY', 0)}\ns_cbranch_scc0 {name}_ne{buf}")
            a.nops(8)
            a("\n".join(pack_lines(ACC[buf], isV) + store_lines() + ["s_waitcnt vmcnt(0)"] + flag_lines()))
            a.label(f"{name}_ne{buf}")
    a(f"s_and_b32 s53, s{S_CU}, 31\ns_lshl_b32 s53, s53, 4\nv_add_u32 v19, s53, v{V_L}\nv_lshlrev_b32 v19, 7, v19")
    pinit(a)
    a(f"s_mov_b32 s{S_SEG}, 1")
    if TWO: sync(246, True)
    else: sync(V_T0)
    tsx(a, ts, 3)
    near_base(a, S_OB, S_CU, 18, WS_VT if isV else WS_KX)
    a(f"""
    s_xor_b32 s{S_T1}, s98, 1
    s_lshl_b32 s{S_T1}, s{S_T1}, 13
    s_lshl_b32 s{S_FL}, s{S_H}, 7
    s_add_u32 s{S_FL}, s{S_FL}, s{S_T1}
    s_lshl_b32 s{S_T1}, s{S_WAVE}, 2
    s_add_u32 s{S_FL}, s{S_FL}, s{S_T1}
    s_add_u32 s{S_FL}, s{S_FL}, {WS_F + (F_V if isV else F_K)}
    v_mov_b32 v16, 0
    """)

    if TWO:
        a("\n".join(pack_lines(ACC[0], isV) + store_lines() + [f"s_mov_b32 s{S_SEG}, 2", "s_nop 1"] + pack_lines(ACC[1], isV) + store_lines()))
        a("s_barrier\ns_mov_b32 s50, 0x20000")
        for g in xdma_lines(0, 50):
            a("\n".join(g))
        a("\n".join(["s_waitcnt vmcnt(16)"] + flag_lines() + ["s_waitcnt vmcnt(1)"]))
        a(f"s_branch {name}_mid")
    else:
        a("\n".join(pack_lines(ACC[0], isV) + store_lines() + ["s_waitcnt vmcnt(0)"] + flag_lines()))
    a.label(f"{name}_loop")
    seg(1, False)
    a(f"s_cmp_eq_u32 s{S_SEG}, 64\ns_cbranch_scc1 {name}_fin")
    a.label(f"{name}_mid")
    seg(0, False)
    a(f"s_branch {name}_loop")
    a.label(f"{name}_fin")
    a.nops(12)
    a("\n".join(pack_lines(ACC[1], isV) + store_lines() + ["s_waitcnt vmcnt(0)"] + flag_lines()))
    pdump(a)
    a("s_waitcnt vmcnt(0)\ns_barrier")


def qx_role(a: Asm, name, ts, sync):
    if E('NI', 32) == 64: sync(V_T0)
    QD = E('QD', 3)
    assert QD in (1, 3)
    proj_setup(a, KA_WQ, True)
    if E('NI', 32) == 32: sync(V_T0)
    tsx(a, ts, 3)
    L_Q, L_KV, L_KM = 131072, 139264, 155648
    S_NT, S_EH, S_C, S_KVN, S_KMN = 52, 53, 54, 55, 56
    S_KB, S_MB, S_LK, S_LM = 58, 59, 60, 61
    S_MK = 12
    V_G, V_M, V_OKM, V_OVM, V_OO, V_NEG, V_CM, V_OF, V_OF2, V_QW, V_QR = 92, 93, 94, 95, 96, 97, 98, 99, 100, 101, 102
    ONE, LS = 104, 108
    V_KR, V_VR = 103, 240
    KX, VT, KM, VM, Q, S, P, O, TMP = 112, 144, 160, 176, 184, 200, 212, 112, 236
    Q1, Q2 = 220, 228
    a(f"""
    v_lshrrev_b32 v{V_G}, 4, v{V_L}
    v_and_b32 v{V_M}, 15, v{V_L}
    s_and_b32 s{S_NT}, s{S_WAVE}, 1
    s_lshr_b32 s{S_EH}, s{S_WAVE}, 1
    s_mov_b32 s{S_C}, 0x3e0293ee
    s_mov_b32 s{S_KVN}, 0
    s_mov_b32 s{S_KMN}, 0
    v_mov_b32 v{V_NEG}, 0xff800000
    v_mov_b32 v241, 0xceabdc6e
    v_and_b32 v{V_T0}, 7, v{V_M}
    v_lshlrev_b32 v{V_OKM}, 7, v{V_G}
    v_lshl_add_u32 v{V_OKM}, v{V_T0}, 4, v{V_OKM}
    v_and_b32 v{V_T0}, 31, v{V_L}
    v_lshlrev_b32 v{V_OVM}, 3, v{V_T0}
    v_lshrrev_b32 v{V_T0}, 1, v{V_G}
    v_lshlrev_b32 v{V_OO}, 10, v{V_T0}
    v_and_b32 v{V_T0}, 1, v{V_G}
    v_lshl_add_u32 v{V_OO}, v{V_T0}, 9, v{V_OO}
    v_lshl_add_u32 v{V_OO}, v{V_M}, 4, v{V_OO}
    s_lshl_b32 s{S_T0}, s{S_H}, {13 + ONEAR}
    s_lshl_b32 s{S_T1}, s{S_EH}, 12
    s_add_u32 s{S_T0}, s{S_T0}, s{S_T1}
    s_lshl_b32 s{S_T1}, s{S_NT}, 8
    s_add_u32 s{S_T0}, s{S_T0}, s{S_T1}
    s_add_u32 s{S_T0}, s{S_T0}, {WS_O}
    v_add_u32 v{V_OO}, s{S_T0}, v{V_OO}
    s_lshl_b32 s{S_T0}, s{S_NT}, 4
    v_add_u32 v{V_CM}, s{S_T0}, v{V_M}
    v_lshlrev_b32 v{V_T0}, 2, v{V_G}
    v_sub_u32 v{V_CM}, v{V_CM}, v{V_T0}
    s_mov_b32 s28, 0
    s_mov_b32 s29, -1
    s_xor_b32 s{S_T1}, s98, 1
    s_lshl_b32 s{S_T1}, s{S_T1}, 13
    s_lshl_b32 s{S_T0}, s{S_H}, 7
    s_add_u32 s{S_T0}, s{S_T0}, s{S_T1}
    s_add_u32 s{S_T0}, s{S_T0}, {WS_F}
    v_and_b32 v{V_T0}, 3, v{V_L}
    v_bfe_u32 v{V_T1}, v{V_L}, 2, 1
    v_lshlrev_b32 v{V_OF}, 12, v{V_T1}
    v_lshl_add_u32 v{V_OF}, v{V_T0}, 2, v{V_OF}
    v_add_u32 v{V_OF}, s{S_T0}, v{V_OF}
    s_xor_b32 s62, s98, 1
    s_lshl_b32 s62, s62, 13
    s_lshr_b32 s{S_T1}, s{S_CU}, 6
    s_lshl_b32 s{S_T1}, s{S_T1}, 14
    s_add_u32 s62, s62, s{S_T1}
    s_and_b32 s{S_T1}, s{S_CU}, 63
    s_lshl_b32 s{S_T1}, s{S_T1}, 7
    s_add_u32 s62, s62, s{S_T1}
    s_add_u32 s62, s62, {WS_F + F_KVM}
    s_lshl_b32 s{S_FL}, s{S_H}, 7
    s_lshl_b32 s{S_T1}, s{S_WAVE}, 2
    s_add_u32 s{S_FL}, s{S_FL}, s{S_T1}
    s_lshl_b32 s{S_T1}, s98, 13
    s_add_u32 s{S_FL}, s{S_FL}, s{S_T1}
    s_add_u32 s{S_FL}, s{S_FL}, {WS_F + F_O}
    s_lshl_b32 s{S_T0}, s{S_WAVE}, 11
    s_add_u32 s{S_T0}, s{S_T0}, {L_Q}
    v_add_u32 v{V_QW}, s{S_T0}, v{V_ST}
    s_lshl_b32 s{S_T0}, s{S_NT}, 10
    s_add_u32 s{S_T0}, s{S_T0}, {L_Q}
    v_add_u32 v{V_QR}, s{S_T0}, v{V_LL}
    v_mov_b32 v16, 0
    s_mov_b32 s50, 0
    """)
    for i in range(4):
        a(f"v_mov_b32 v{ONE+i}, 0x3f803f80")
    for t in range(2):
        for r in range(4):
            a(f"v_cmp_gt_i32 s[{S_MK+8*t+2*r}:{S_MK+8*t+2*r+1}], {16*t+r}, v{V_CM}")
    near_base(a, S_KB, S_CU, 18, WS_KX)
    if E("KV2", 0): a(f"s_xor_b32 s{S_KB}, s{S_KB}, 0x2000")
    near_base(a, S_MB, S_CU, 17, WS_KVM)
    a(f"""
    s_lshl_b32 s{S_LK}, s{S_WAVE}, 11
    s_add_u32 s{S_LK}, s{S_LK}, {L_KV}
    s_lshl_b32 s{S_LM}, s{S_WAVE}, 10
    s_add_u32 s{S_LM}, s{S_LM}, {L_KM}
    v_add_u32 v{V_OKM}, {L_KM}, v{V_OKM}
    s_lshl_b32 s{S_T0}, s{S_EH}, 11
    s_add_u32 s{S_T0}, s{S_T0}, {L_KM + 512}
    v_add_u32 v{V_OVM}, s{S_T0}, v{V_OVM}
    v_add_u32 v{V_KR}, {L_KV}, v{V_LL}
    s_lshl_b32 s{S_T0}, s{S_EH}, 12
    s_add_u32 s{S_T0}, s{S_T0}, {L_KV + 8192}
    v_add_u32 v{V_VR}, s{S_T0}, v{V_LL}
    """)
    a("s_waitcnt vmcnt(0)")

    def wait_flag(tag, known, voff, sleep):
        a(f"""
        s_cmp_gt_i32 s{known}, s{S_SEG}
        s_cbranch_scc1 {name}_{tag}k
{name}_{tag}w:
        """)
        wdog(a, name)
        if E("KAP", 1):
            a(f"v_mov_b32 v{V_T0}, 0\ns_mov_b64 exec, 0xff\nbuffer_atomic_add v{V_T0}, v{voff}, {SRD}, 0 offen sc0 sc1\ns_mov_b64 exec, -1")
        else:
            a(f"buffer_load_dword v{V_T0}, v{voff}, {SRD}, 0 offen sc1")
        a(f"""
        s_waitcnt vmcnt(0)
        v_min_i32_dpp v{V_T0}, v{V_T0}, v{V_T0} quad_perm:[1,0,3,2] row_mask:0xf bank_mask:0xf
        s_nop 1
        v_min_i32_dpp v{V_T0}, v{V_T0}, v{V_T0} quad_perm:[2,3,0,1] row_mask:0xf bank_mask:0xf
        s_nop 1
        v_min_i32_dpp v{V_T0}, v{V_T0}, v{V_T0} row_half_mirror row_mask:0xf bank_mask:0xf
        s_nop 0
        v_readfirstlane_b32 s{known}, v{V_T0}
        s_cmp_gt_i32 s{known}, s{S_SEG}
        s_cbranch_scc1 {name}_{tag}k
        s_sleep {sleep}
        s_branch {name}_{tag}w
{name}_{tag}k:
        """)

    def flag_lines():
        return [f"v_mov_b32 v17, s{S_SEG}", "s_mov_b64 exec, 1", f"buffer_store_dword v17, v16, {SRD}, s{S_FL} offen sc1", "s_mov_b64 exec, -1"]

    def kmpoll_lines():
        if E("APOLL", 1):
            return [f"v_mov_b32 v{V_OF2}, 0", "s_mov_b64 exec, 1", f"buffer_atomic_add v{V_OF2}, v16, {SRD}, s62 offen sc0 sc1", "s_mov_b64 exec, -1"]
        return [f"buffer_load_dword v{V_OF2}, v16, {SRD}, s62 offen sc1"]

    def km_lines():
        return [f"s_mov_b32 m0, s{S_LM}", "s_nop 0", f"buffer_load_dwordx4 v{V_LL}, {SRD}, s68 offen sc1 lds"]

    def seg(buf):
        a("s_barrier")
        a("\n".join(pst(0)))
        wait_flag(f"kv{buf}", S_KVN, V_OF, 4)
        sal = f"""s_add_u32 s51, s{S_CU}, s{S_SEG}
        s_bfe_u32 s57, s51, 0x40002
        s_lshl_b32 s57, s57, 14
        s_and_b32 s66, s51, 3
        s_lshl_b32 s66, s66, 11
        s_add_u32 s66, s66, s57
        s_add_u32 s66, s66, s{S_KB}
        s_add_u32 s67, s66, {WS_VT}
        s_bfe_u32 s57, s51, 0x30003
        s_lshl_b32 s57, s57, 14
        s_and_b32 s68, s51, 7
        s_lshl_b32 s68, s68, 10
        s_add_u32 s68, s68, s57
        s_add_u32 s68, s68, s{S_MB}
        s_add_u32 s50, s{S_SEG}, {QD + 1}
        s_min_u32 s50, s50, 63
        s_lshl_b32 s50, s50, 16
        s_cmp_gt_i32 s{S_KMN}, s{S_SEG}
        s_cselect_b32 s30, 1, 0""".split("\n")
        fill = {-1: sal}
        for i in range(4):
            fill[2 * i] = [f"s_add_u32 m0, s{S_LK}, {8192 * (i >> 1)}", "s_nop 0",
                           f"buffer_load_dwordx4 v{V_LL}, {SRD}, s{66 + (i >> 1)} offen offset:{1024 * (i & 1)} sc1 lds"]
        fill[8] = ["s_cmp_eq_u32 s30, 1", f"s_cbranch_scc0 {name}_ke{buf}"] + km_lines() + [f"{name}_ke{buf}:"]
        for i, g in enumerate(xdma_lines(1 - (buf & 1), 50)):
            fill[10 + 2 * i] = g
        a("\n".join(pst(1)))
        fill[27] = ["s_waitcnt vmcnt(13)"] + flag_lines()
        fill[29] = kmpoll_lines()
        pk = pack_lines(ACC[1], False)
        if QD > 1:
            pk = [f"v_pk_mul_f32 v[{d+i}:{d+i+1}], v[{r+i}:{r+i+1}], 1.0" if False else f"v_mov_b64 v[{d+i}:{d+i+1}], v[{r+i}:{r+i+1}]" for d, r in ((EP, Q1), (Q1, Q2)) for i in range(0, 8, 2)] + \
                 [l.replace(f"v{EP+i},", f"v{Q2+i},", 1) for i, l in enumerate(pk)]
        qg = list(range(42, 42 + len(pk) // 2))
        for i, g in enumerate(qg): fill[g] = pk[2*i:2*i+2]
        fill[54] = ["s_waitcnt vmcnt(6)", f"v_readfirstlane_b32 s{S_KMN}, v{V_OF2}", "s_cmp_eq_u32 s30, 1", f"s_cbranch_scc1 {name}_kf{buf}",
                    f"s_cmp_gt_i32 s{S_KMN}, s{S_SEG}", f"s_cbranch_scc0 {name}_kf{buf}", "s_mov_b32 s30, 1"] + km_lines() + [f"{name}_kf{buf}:"]
        fill[61] = [f"ds_write_b128 v{V_QW}, v[{EP}:{EP+3}]", f"ds_write_b128 v{V_QW}, v[{EP+4}:{EP+7}] offset:{GR2}"]
        a(f"s_cmp_ge_u32 s{S_SEG}, {64 - QD}\ns_cbranch_scc0 {name}_nl{buf}")
        for i in [-1, 0, 2, 4, 6, 8] + qg + [61]:
            a("\n".join(fill[i]).replace(f"{name}_ke{buf}", f"{name}_kx{buf}"))
        a("\n".join(["s_waitcnt vmcnt(4)"] + flag_lines()))
        if E("LASTD", 0) > buf:
            a(f"""
            s_cmp_eq_u32 s{S_SEG}, {63 - buf}
            s_cbranch_scc0 {name}_jl{buf}
            s_waitcnt lgkmcnt(0) vmcnt(0)
            s_barrier
            """)
            klast(a, 69, S_H, -L_KM, 1 - buf)
            for j in range(4):
                a(f"ds_read_b128 v[{Q+4*j}:{Q+4*j+3}], v{V_QR} offset:{2048*j}")
                for t in range(2):
                    a(f"ds_read_b128 v[{KX+16*t+4*j}:{KX+16*t+4*j+3}], v{V_KR} offset:{2048*j + 1024*t}")
            a("s_waitcnt lgkmcnt(0)")
            for j in range(4):
                for t in range(2):
                    c = "0" if j == 0 else f"v[{S+4*t}:{S+4*t+3}]"
                    a(f"v_mfma_f32_16x16x32_bf16 v[{S+4*t}:{S+4*t+3}], v[{KX+16*t+4*j}:{KX+16*t+4*j+3}], v[{Q+4*j}:{Q+4*j+3}], {c}")
                a(f"ds_read_b128 v[{VT+4*j}:{VT+4*j+3}], v{V_VR} offset:{1024*j}")
            a.label(f"{name}_lp{buf}")
            wdog(a, name)
            for j in range(4):
                a(f"buffer_load_dwordx4 v[{KM+4*j}:{KM+4*j+3}], v{V_OKM}, {SRD}, s69 offen offset:{1024*j} sc1")
                a(f"buffer_load_dwordx2 v[{VM+2*j}:{VM+2*j+1}], v{V_OVM}, {SRD}, s69 offen offset:{1024*(j >> 1) + 256*(j & 1)} sc1")
            a(f"""
            s_waitcnt vmcnt(0)
            v_max3_u32 v{V_T0}, v{KM}, v{KM+4}, v{KM+8}
            v_max3_u32 v{V_T1}, v{VM}, v{VM+2}, v{VM+4}
            v_max3_u32 v{V_T0}, v{V_T0}, v{KM+12}, v{VM+6}
            v_max_u32 v{V_T0}, v{V_T0}, v{V_T1}
            v_cmp_eq_u32 vcc, -1, v{V_T0}
            s_cbranch_vccnz {name}_lp{buf}
            """)
            for j in range(4):
                c = "0" if j == 0 else f"v[{S+8}:{S+11}]"
                a(f"v_mfma_f32_16x16x32_bf16 v[{S+8}:{S+11}], v[{KM+4*j}:{KM+4*j+3}], v[{Q+4*j}:{Q+4*j+3}], {c}")
            a(f"s_branch {name}_sm{buf}")
        a(f"s_branch {name}_jl{buf}")
        a.label(f"{name}_nl{buf}")
        proj_segment(a, buf, ACC[0], True, fill, stg=ACC[1])
        a.label(f"{name}_jl{buf}")
        a("\n".join(pst(2)))
        a(f"s_cmp_eq_u32 s30, 1\ns_cbranch_scc1 {name}_kl{buf}")
        a.label(f"{name}_kw{buf}")
        wdog(a, name)
        a("\n".join(kmpoll_lines()))
        a(f"""
        s_waitcnt vmcnt(0)
        v_readfirstlane_b32 s{S_KMN}, v{V_OF2}
        s_cmp_gt_i32 s{S_KMN}, s{S_SEG}
        s_cbranch_scc1 {name}_kv{buf}
        s_cmp_eq_u32 s{S_SEG}, 63
        s_cbranch_scc1 {name}_kw{buf}
        {f"s_sleep {E('XS', 0)}" if E("XS", 0) else ""}
        s_branch {name}_kw{buf}
{name}_kv{buf}:
        """)
        a("\n".join(km_lines()))
        a.label(f"{name}_kl{buf}")
        a("\n".join(pst(4)))
        a(f"""
        s_waitcnt lgkmcnt(0) vmcnt(0)
        s_barrier
        """)
        a("\n".join(pst(5)))
        for j in range(4):
            a(f"ds_read_b128 v[{Q+4*j}:{Q+4*j+3}], v{V_QR} offset:{2048*j}")
            for t in range(2):
                a(f"ds_read_b128 v[{KX+16*t+4*j}:{KX+16*t+4*j+3}], v{V_KR} offset:{2048*j + 1024*t}")
        for j in range(4):
            a(f"s_waitcnt lgkmcnt({9 - 2*j})")
            for t in range(2):
                c = "0" if j == 0 else f"v[{S+4*t}:{S+4*t+3}]"
                a(f"v_mfma_f32_16x16x32_bf16 v[{S+4*t}:{S+4*t+3}], v[{KX+16*t+4*j}:{KX+16*t+4*j+3}], v[{Q+4*j}:{Q+4*j+3}], {c}")
            a(f"ds_read_b128 v[{KM+4*j}:{KM+4*j+3}], v{V_OKM} offset:{1024*j}")
        for j in range(4):
            a(f"s_waitcnt lgkmcnt({3 + j})")
            c = "0" if j == 0 else f"v[{S+8}:{S+11}]"
            a(f"v_mfma_f32_16x16x32_bf16 v[{S+8}:{S+11}], v[{KM+4*j}:{KM+4*j+3}], v[{Q+4*j}:{Q+4*j+3}], {c}")
            a(f"ds_read_b128 v[{VT+4*j}:{VT+4*j+3}], v{V_VR} offset:{1024*j}")
            a(f"ds_read_b64 v[{VM+2*j}:{VM+2*j+1}], v{V_OVM} offset:{1024*(j >> 1) + 256*(j & 1)}")
        a.label(f"{name}_sm{buf}")
        for i in range(0, 8, 2):
            a(f"v_pk_mul_f32 v[{S+i}:{S+i+1}], v[{S+i}:{S+i+1}], s[{S_C}:{S_C+1}] op_sel_hi:[1,0]")
        for i in range(8):
            a(f"v_cndmask_b32 v{S+i}, v{S+i}, v241, s[{S_MK+2*i}:{S_MK+2*i+1}]")
        for i in (8, 10):
            a(f"v_pk_mul_f32 v[{S+i}:{S+i+1}], v[{S+i}:{S+i+1}], s[{S_C}:{S_C+1}] op_sel_hi:[1,0]")
        for i in range(4):
            a(f"v_cndmask_b32 v{S+8+i}, v{S+8+i}, v{V_NEG}, s[28:29]")
        MX, TM, SM = TMP, TMP + 1, TMP + 2
        a(f"v_max3_f32 v{MX}, v{S}, v{S+1}, v{S+2}")
        for i in range(3, 11, 2):
            a(f"v_max3_f32 v{MX}, v{MX}, v{S+i}, v{S+i+1}")
        a(f"""
        v_max_f32 v{TM}, v{MX}, v{S+11}
        v_max_f32 v{MX}, v{MX}, v{S+11}
        s_nop 1
        v_permlane16_swap_b32 v{MX}, v{TM}
        s_nop 0
        v_max_f32 v{SM}, v{MX}, v{TM}
        v_max_f32 v{SM+1}, v{MX}, v{TM}
        s_nop 1
        v_permlane32_swap_b32 v{SM}, v{SM+1}
        s_nop 0
        v_max_f32 v{MX}, v{SM}, v{SM+1}
        """)
        for i in range(0, 12, 2):
            a(f"v_pk_add_f32 v[{S+i}:{S+i+1}], v[{S+i}:{S+i+1}], v[{MX}:{MX+1}] op_sel_hi:[1,0] neg_lo:[0,1] neg_hi:[0,1]")
        for i in range(12):
            a(f"v_exp_f32 v{S+i}, v{S+i}")
        a.nops(1)
        for i in range(6):
            a(f"v_cvt_pk_bf16_f32 v{P+i}, v{S+2*i}, v{S+2*i+1}")
        a("s_waitcnt lgkmcnt(0)\ns_nop 0")
        a(f"v_mfma_f32_16x16x32_bf16 v[{LS}:{LS+3}], v[{ONE}:{ONE+3}], v[{P}:{P+3}], 0")
        for T in range(4):
            a(f"v_mfma_f32_16x16x32_bf16 v[{O+4*T}:{O+4*T+3}], v[{VT+4*T}:{VT+4*T+3}], v[{P}:{P+3}], 0")
        a(f"v_mfma_f32_16x16x16_bf16 v[{LS}:{LS+3}], v[{ONE}:{ONE+1}], v[{P+4}:{P+5}], v[{LS}:{LS+3}]")
        for T in range(4):
            a(f"v_mfma_f32_16x16x16_bf16 v[{O+4*T}:{O+4*T+3}], v[{VM+2*T}:{VM+2*T+1}], v[{P+4}:{P+5}], v[{O+4*T}:{O+4*T+3}]")
        a(f"""
        {obase(51, S_SEG)}
        s_nop 2
        v_rcp_f32 v{SM}, v{LS}
        v_rcp_f32 v{SM+1}, v{LS+1}
        s_nop 1
        """)
        for i in range(0, 16, 2):
            a(f"v_pk_mul_f32 v[{O+i}:{O+i+1}], v[{O+i}:{O+i+1}], v[{SM}:{SM+1}]")
        for i in range(8):
            a(f"v_cvt_pk_bf16_f32 v{S+i}, v{O+2*i}, v{O+2*i+1}")
        a(f"""
        buffer_store_dwordx4 v[{S}:{S+3}], v{V_OO}, {SRD}, s51 offen sc1
        buffer_store_dwordx4 v[{S+4}:{S+7}], v{V_OO}, {SRD}, s51 offen offset:2048 sc1
        s_add_u32 s{S_SEG}, s{S_SEG}, 1
        """)
        a("\n".join(pst(6)))
    pinit(a)
    if QD == 1:
        for i in range(16):
            a(f"v_mov_b32 v{ACC[1]+i}, v{ACC[0]+i}")
    else:
        pkto = lambda acc, d: "\n".join(l.replace(f"v{EP+i},", f"v{d+i},", 1) for i, l in enumerate(pack_lines(acc, False)))
        a(pkto(ACC[0], Q1))
        a("s_barrier\ns_mov_b32 s50, 0x20000")
        proj_segment(a, 1, ACC[0], True, {2 * i: g for i, g in enumerate(xdma_lines(0, 50))})
        a("s_waitcnt vmcnt(0)\ns_barrier\ns_mov_b32 s50, 0x30000")
        a.nops(6)
        a(pkto(ACC[0], Q2))
        proj_segment(a, 0, ACC[0], True, {2 * i: g for i, g in enumerate(xdma_lines(1, 50))}, stg=ACC[1])
        a("s_waitcnt vmcnt(0)")
    a.label(f"{name}_loop")
    seg(1)
    seg(0)
    a(f"s_cmp_lt_u32 s{S_SEG}, 64\ns_cbranch_scc1 {name}_loop")
    a("\n".join(["s_waitcnt vmcnt(0)"] + flag_lines()))
    pdump(a)
    a.label(f"{name}_quit")
    ts(4)
    a("s_endpgm")


def out_role(a: Asm, name, ts, back):
    common(a, KA_WO, KA_OUT, 8 * MB)
    S_ON, S_PAR, S_PRE, S_ROT, S_PEND, S_KH, S_C = 52, 53, 55, 56, 57, 58, 59
    S_ST = 71
    V_OL, V_OF, V_LW, V_LRK, V_LRS, V_OS, V_SND, V_RCV = 6, 7, 8, 9, 10, 11, 12, 13
    ACCO, RD, KEEP, INB, F0, NF, STG = 20, 52, 84, 88, 96, 32, 224
    HS, QS, US, WSs, PS = 544, 1088, 4352, 8704, 34816
    a(f"""
    s_and_b32 s{S_KH}, s{S_H}, 1
    s_lshr_b32 s{S_C}, s{S_H}, 1
    s_lshl_b32 s{S_T0}, s{S_KH}, 22
    s_lshl_b32 s{S_T1}, s{S_WAVE}, 20
    s_add_u32 s{S_T0}, s{S_T0}, s{S_T1}
    s_lshl_b32 s{S_T1}, s{S_C}, 7
    s_add_u32 s{S_OB}, s{S_T0}, s{S_T1}
    s_and_b32 s{S_ROT}, s{S_C}, {7 if E("ROT8", 1) else 3}
    s_lshl_b32 s{S_ROT}, s{S_ROT}, {6 if E("ROT8", 1) else 7}
    """)
    a(f"s_cmp_eq_u32 s68, 2\ns_cbranch_scc1 {name}_hw")
    load_weights(a, 11, S_OB, lane32(4, rl=7), lambda f, jj: (128 * (f >> 4) + 32 * ((f >> 2) & 3) + 8 * ((f >> 1) & 1) + 16 * jj) * 128 + 64 * (f & 1), rot=S_ROT, cl=3)
    a(f"s_cmp_eq_u32 s68, 1\ns_cbranch_scc1 {back}")
    a.label(f"{name}_hw")
    a(f"""
    s_lshl_b32 s{S_ROT}, s{S_ROT}, 6
    s_lshl_b32 s{S_T0}, s{S_KH}, {17 + ONEAR}
    s_lshl_b32 s{S_T1}, s{S_WAVE}, {15 + ONEAR}
    s_add_u32 s{S_T0}, s{S_T0}, s{S_T1}
    s_add_u32 s{S_T0}, s{S_T0}, {WS_O}
    v_add_u32 v{V_OL}, s{S_T0}, v{V_LL}
    v_and_b32 v{V_T0}, 3, v{V_L}
    v_lshlrev_b32 v{V_OF}, 2, v{V_T0}
    v_bfe_u32 v{V_T0}, v{V_L}, 2, 2
    v_lshl_add_u32 v{V_OF}, v{V_T0}, 7, v{V_OF}
    s_lshl_b32 s{S_T0}, s{S_KH}, 11
    s_lshl_b32 s{S_T1}, s{S_WAVE}, 9
    s_add_u32 s{S_T0}, s{S_T0}, s{S_T1}
    s_lshl_b32 s{S_T1}, s98, 13
    s_add_u32 s{S_T0}, s{S_T0}, s{S_T1}
    s_add_u32 s{S_T0}, s{S_T0}, {WS_F + F_O}
    v_add_u32 v{V_OF}, s{S_T0}, v{V_OF}
    s_mul_i32 s{S_T0}, s{S_WAVE}, {WSs}
    v_lshrrev_b32 v{V_T0}, 5, v{V_L}
    v_lshl_add_u32 v{V_LW}, v{V_T0}, 5, v{V_LL}
    v_add_u32 v{V_LW}, s{S_T0}, v{V_LW}
    v_and_b32 v{V_T0}, 7, v{V_L}
    v_mul_u32_u24 v{V_LRK}, {HS}, v{V_T0}
    v_lshrrev_b32 v{V_T1}, 3, v{V_L}
    v_lshl_add_u32 v{V_LRK}, v{V_T1}, 4, v{V_LRK}
    s_lshl_b32 s{S_T0}, s{S_WAVE}, 7
    v_add_u32 v{V_LRK}, s{S_T0}, v{V_LRK}
    s_mul_i32 s{S_T0}, s{S_KH}, {US}
    s_sub_u32 s{S_T1}, {US}, s{S_T0}
    v_add_u32 v{V_LRS}, s{S_T1}, v{V_LRK}
    v_add_u32 v{V_LRK}, s{S_T0}, v{V_LRK}
    s_lshl_b32 s{S_T0}, s{S_WAVE}, 15
    s_lshl_b32 s{S_T1}, s{S_H}, 6
    s_add_u32 s{S_T0}, s{S_T0}, s{S_T1}
    v_lshlrev_b32 v{V_OS}, 12, v{V_T1}
    v_and_b32 v{V_T0}, 7, v{V_L}
    v_lshl_add_u32 v{V_OS}, v{V_T0}, 3, v{V_OS}
    v_add_u32 v{V_OS}, s{S_T0}, v{V_OS}
    s_lshl_b32 s{S_T1}, s{S_WAVE}, 10
    s_add_u32 s{S_T0}, s{S_OI}, s{S_T1}
    v_add_u32 v{V_RCV}, s{S_T0}, v{V_LL}
    v_xor_b32 v{V_SND}, 8192, v{V_RCV}
    s_lshl_b32 s{S_ST}, 1, s{S_SH}
    s_mov_b32 s{S_SEG}, s{S_O0}
    s_mov_b32 s{S_ON}, 0
    s_mov_b32 s{S_PAR}, 0
    s_mov_b32 s{S_PEND}, 0
    """)

    def opoll(r):
        if E("OAP", 0):
            a(f"v_mov_b32 v{r}, 0\ns_mov_b64 exec, 0xffff\nbuffer_atomic_add v{r}, v{V_OF}, {SRD}, 0 offen sc0 sc1\ns_mov_b64 exec, -1")
        else:
            a(f"buffer_load_dword v{r}, v{V_OF}, {SRD}, 0 offen sc1")

    def ld(k, sbase):
        f = F0 + 4 * k
        if k % 4 == 0:
            a(f"s_add_u32 s51, s{S_ROT}, {1024 * k}\ns_and_b32 s51, s51, 0x7fff")
            if ONEAR: a("s_and_b32 s63, s51, 0x6000\ns_add_u32 s51, s51, s63")
            a(f"s_add_u32 s51, s51, s{sbase}")
        a(f"buffer_load_dwordx4 v[{f}:{f+3}], v{V_OL}, {SRD}, s51 offen offset:{1024*(k & 3)} sc1")

    def mf(k):
        f = F0 + 4 * k
        for u in range(2):
            d = ACCO + 16 * u
            c = "0" if k == 0 else f"v[{d}:{d+15}]"
            if k == NF - 1: d = STG + 16 * u
            a(f"v_mfma_f32_32x32x16_bf16 v[{d}:{d+15}], a[{8*k+4*u}:{8*k+4*u+3}], v[{f}:{f+3}], {c}")

    def slot_lines(sreg):
        return [f"s_sub_u32 s60, s{sreg}, s{S_O0}", f"s_lshr_b32 s60, s60, s{S_SH}", "s_bfe_u32 s61, s60, 0x10001", "s_and_b32 s60, s60, 1", "s_lshl_b32 s60, s60, 12"]

    def inb(sreg):
        a("\n".join(slot_lines(sreg)))
        a(f"buffer_load_dwordx4 v[{INB}:{INB+3}], v{V_RCV}, {SRD}, s60 offen sc1")

    def fin(tag, sreg, cnt):
        a(f"s_waitcnt vmcnt({cnt})")
        a.label(f"{name}_{tag}c")
        a(f"""
        v_and_b32 v14, 1, v{INB}
        v_cmp_ne_u32 vcc, s61, v14
        s_cbranch_vccz {name}_{tag}k
        """)
        wdog(a, name)
        inb(sreg)
        a(f"s_waitcnt vmcnt(0)\ns_branch {name}_{tag}c")
        a.label(f"{name}_{tag}k")
        a(f"""
        v_pk_add_f32 v[{INB}:{INB+1}], v[{INB}:{INB+1}], v[{KEEP}:{KEEP+1}]
        v_pk_add_f32 v[{INB+2}:{INB+3}], v[{INB+2}:{INB+3}], v[{KEEP+2}:{KEEP+3}]
        s_lshl_b32 s60, s{sreg}, 17
        v_cvt_pk_bf16_f32 v{INB+4}, v{INB}, v{INB+1}
        v_cvt_pk_bf16_f32 v{INB+5}, v{INB+2}, v{INB+3}
        buffer_store_dwordx2 v[{INB+4}:{INB+5}], v{V_OS}, s[{S_XM}:{S_XM+3}], s60 offen {os.environ.get('OSTO', 'sc1')}
        """)

    tsx(a, ts, 3)
    pinit(a)
    a.label(f"{name}_cold")
    a(f"s_cmp_gt_i32 s{S_ON}, s{S_SEG}\ns_cbranch_scc1 {name}_fk")
    a.label(f"{name}_fw")
    wdog(a, name)
    opoll(V_T0)
    a(f"""
    s_waitcnt vmcnt(0)
    v_min_i32_dpp v{V_T0}, v{V_T0}, v{V_T0} quad_perm:[1,0,3,2] row_mask:0xf bank_mask:0xf
    s_nop 1
    v_min_i32_dpp v{V_T0}, v{V_T0}, v{V_T0} quad_perm:[2,3,0,1] row_mask:0xf bank_mask:0xf
    s_nop 1
    v_min_i32_dpp v{V_T0}, v{V_T0}, v{V_T0} row_ror:4 row_mask:0xf bank_mask:0xf
    s_nop 1
    v_min_i32_dpp v{V_T0}, v{V_T0}, v{V_T0} row_ror:8 row_mask:0xf bank_mask:0xf
    s_nop 0
    v_readfirstlane_b32 s{S_ON}, v{V_T0}
    s_min_i32 s{S_ON}, s{S_ON}, s{S_O1}
    s_cmp_gt_i32 s{S_ON}, s{S_SEG}
    s_cbranch_scc1 {name}_fk
    s_sleep 2
    s_add_u32 s{S_T0}, s{S_ON}, 2
    s_cmp_gt_i32 s{S_T0}, s{S_SEG}
    s_cbranch_scc1 {name}_fw
    s_sleep 48
    s_branch {name}_fw
    """)
    a.label(f"{name}_fk")
    a(f"s_add_u32 s54, s{S_SEG}, s{S_ST}\ns_cmp_gt_i32 s{S_ON}, s54\ns_cbranch_scc0 {name}_c0")
    a(obase(50, S_SEG))
    for k in range(NF):
        ld(k, 50)
    a("\n".join(pst(0)))
    if E("KPROF", 0): a("s_add_u32 s39, s39, 64")

    uid = [0]
    def epi_groups(sreg):
        g = [[f"v_add_u32 v{V_T0}, s{S_PAR}, v{V_LW}", f"v_add_u32 v{V_T1}, s{S_PAR}, v{V_LRK}", f"v_add_u32 v{V_T2}, s{S_PAR}, v{V_LRS}"]]
        for q in range(0, 8, 2):
            g.append([f"ds_write_b128 v{V_T0}, v[{STG+4*(q+i)}:{STG+4*(q+i)+3}] offset:{QS*(q+i)}" for i in range(2)])
        g.append([])
        g.append(["s_waitcnt lgkmcnt(0)", "s_barrier"] + [f"ds_read_b128 v[{RD+4*w}:{RD+4*w+3}], v{V_T2} offset:{WSs*w}" for w in range(4)])
        g.append([f"ds_read_b128 v[{RD+16+4*w}:{RD+16+4*w+3}], v{V_T1} offset:{WSs*w}" for w in range(4)] +
                 [f"s_sub_u32 s{S_PAR}, {PS}, s{S_PAR}"] + slot_lines(sreg))
        g.append([])
        for h, dst in ((0, RD), (16, KEEP)):
            b = RD + h
            l = [f"s_waitcnt lgkmcnt({4 if h == 0 else 0})"]
            for i in range(4):
                l.append(f"v_add_f32 v{b+i}, v{b+i}, v{b+4+i}")
                l.append(f"v_add_f32 v{b+8+i}, v{b+8+i}, v{b+12+i}")
            g.append(l)
            l = [f"v_add_f32 v{dst+i}, v{b+i}, v{b+8+i}" for i in range(4)]
            if h == 0:
                uid[0] += 1
                l += [f"v_and_or_b32 v{RD}, v{RD}, -2, s61", "s_cmp_eq_u32 s95, 0", f"s_cbranch_scc1 {name}_sa{uid[0]}",
                      f"buffer_store_dwordx4 v[{RD}:{RD+3}], v{V_SND}, {SRD}, s60 offen sc1", f"s_branch {name}_sb{uid[0]}", f"{name}_sa{uid[0]}:",
                      f"buffer_store_dwordx4 v[{RD}:{RD+3}], v{V_SND}, {SRD}, s60 offen", f"{name}_sb{uid[0]}:"]
            g.append(l)
        return g

    def loop(pre, epi):
        g = epi_groups(62) if epi else []
        for k in range(NF):
            a(f"s_waitcnt vmcnt({NF-1 if pre else NF-1-k})")
            mf(k)
            if pre: ld(k, 50)
            if 1 <= k <= len(g): a("\n".join(g[k-1]))
            if epi and k == 27: inb(62)
            if not pre and k == 20: opoll(15)
        if epi: fin(f"f{pre}", 62, 4 if pre else 0)

    def loopc(epi):
        Wn = E("OWIN", 8)
        g = epi_groups(62) if epi else []
        a.label(f"{name}_c{epi}")
        if epi == 0: tsx(a, ts, 5)
        a(f"s_add_u32 s54, s{S_SEG}, s{S_ST}\ns_sub_u32 s62, s{S_SEG}, s{S_ST}")
        a(obase(50, S_SEG))
        for k in range(Wn):
            ld(k, 50)
        for l in g: a("\n".join(l))
        for k in range(NF):
            a(f"s_waitcnt vmcnt({min(Wn, NF - k) - 1})")
            mf(k)
            if k + Wn < NF: ld(k + Wn, 50)
            if epi and k == 24: inb(62)
            if k == 24: opoll(15)
        if epi == 0: tsx(a, ts, 6)
        if epi: fin("fc", 62, 0)
        a("\n".join(pst(3)))
        a(obase(50, 54))
        a(f"s_branch {name}_imm")

    for epi in range(2):
        a.label(f"{name}_w{epi}")
        a(f"""
        s_add_u32 s54, s{S_SEG}, s{S_ST}
        s_sub_u32 s62, s{S_SEG}, s{S_ST}
        {obase(50, 54)}
        s_cmp_gt_i32 s{S_ON}, s54
        s_cbranch_scc0 {name}_n{epi}
        """)
        loop(1, epi)
        a("\n".join(pst(1)))
        a(f"s_add_u32 s{S_SEG}, s{S_SEG}, s{S_ST}\ns_branch {name}_w1")
        a.label(f"{name}_n{epi}")
        loop(0, epi)
        a("\n".join(pst(2)))
        if epi == 0: a(f"s_branch {name}_imm")
    a.label(f"{name}_imm")
    a(f"""
    s_waitcnt vmcnt(1)
    v_min_i32_dpp v15, v15, v15 quad_perm:[1,0,3,2] row_mask:0xf bank_mask:0xf
    s_nop 1
    v_min_i32_dpp v15, v15, v15 quad_perm:[2,3,0,1] row_mask:0xf bank_mask:0xf
    s_nop 1
    v_min_i32_dpp v15, v15, v15 row_ror:4 row_mask:0xf bank_mask:0xf
    s_nop 1
    v_min_i32_dpp v15, v15, v15 row_ror:8 row_mask:0xf bank_mask:0xf
    s_nop 0
    v_readfirstlane_b32 s{S_ON}, v15
    s_min_i32 s{S_ON}, s{S_ON}, s{S_O1}
    s_cmp_gt_i32 s{S_ON}, s54
    s_cbranch_scc0 {name}_im2
    s_add_u32 s{S_SEG}, s{S_SEG}, s{S_ST}
    s_add_u32 s54, s54, s{S_ST}
    s_cmp_gt_i32 s{S_ON}, s54
    s_cbranch_scc0 {name}_c1
    """)
    for k in range(NF):
        ld(k, 50)
    a(f"s_branch {name}_w1")
    loopc(0)
    loopc(1)
    a.label(f"{name}_im2")
    for g in epi_groups(S_SEG):
        a("\n".join(g))
    inb(S_SEG)
    fin("f2", S_SEG, 0)
    a("\n".join(pst(4)))
    a(f"""
    s_add_u32 s{S_SEG}, s{S_SEG}, s{S_ST}
    s_cmp_lt_u32 s{S_SEG}, s{S_O1}
    s_cbranch_scc1 {name}_cold
    """)
    if E("D63", 0):
        a(f"""
        s_add_u32 s{S_T0}, s{S_SH}, s{S_O0}
        s_cmp_eq_u32 s{S_T0}, 0
        s_cbranch_scc0 {name}_fin
        s_sub_u32 s{S_O0}, 63, s{S_O1}
        s_mov_b32 s{S_SEG}, 63
        s_mov_b32 s{S_O1}, 64
        s_branch {name}_cold
{name}_fin:
        """)
    pdump(a)
    a.label(f"{name}_quit")
    ts(4)
    a("s_endpgm")
```

```python
from gen_common import *

S_X, S_T = 30, 31
S_WSD, S_DBG = 84, 72
E = lambda k, d: int(os.environ.get(k, d))


D_VOTE, D_PD, D_SLOW, D_PD2 = 128, 160, 192, 224
NI = E('NI', 32)


def start_code(a: Asm, name):
    W, D = S_WSD, S_DBG
    a(f"""
    s_load_dwordx2 s[{W}:{W+1}], s[0:1], {KA_WS}
    s_load_dwordx2 s[{D}:{D+1}], s[0:1], {KA_DBG}
    s_getreg_b32 s90, hwreg(HW_REG_XCC_ID)
    s_and_b32 s90, s90, {E('FAKE', 7)}
    {'s_or_b32 s90, s90, ' + os.environ['FAKO'] if 'FAKO' in os.environ else ''}
    v_mov_b32 v1, 0
    v_mov_b32 v2, 1
    s_lshl_b32 s91, s90, 4
    s_mov_b32 s95, 0
    s_mov_b32 s99, 0
    s_waitcnt lgkmcnt(0)
    s_mov_b32 s{W+2}, {WS_BYTES}
    s_mov_b32 s{W+3}, 0x00020000
    s_mov_b32 s{D+2}, 256
    s_mov_b32 s{D+3}, 0x00020000
    v_cmp_eq_u32 vcc, 0, v0
    s_and_saveexec_b64 s[88:89], vcc
    s_cbranch_execz {name}_tkd
    s_lshl_b32 s92, s2, 13
    s_add_u32 s92, s92, {WS_CAL}
    buffer_atomic_add v2, v1, s[{D}:{D+3}], s91 offen sc0
    buffer_load_dword v251, v1, s[{W}:{W+3}], s92 offen offset:2048 sc1
    s_waitcnt vmcnt(1)
    ds_write_b32 v1, v2
    s_waitcnt lgkmcnt(0)
{name}_tkd:
    s_mov_b64 exec, s[88:89]
    s_barrier
    ds_read_b32 v2, v1
    s_waitcnt lgkmcnt(0)
    v_readfirstlane_b32 s96, v2
    s_barrier
    """)


def klast(a: Asm, dst, h, add=0, far=1):
    a(f"""
    s_lshr_b32 s{dst}, s{h}, 2
    s_lshl_b32 s{dst}, s{dst}, 17
    s_and_b32 s77, s{h}, 2
    s_lshl_b32 s77, s77, 13
    s_add_u32 s{dst}, s{dst}, s77
    s_and_b32 s77, s{h}, 1
    s_lshl_b32 s77, s77, 12
    s_add_u32 s{dst}, s{dst}, s77
    s_xor_b32 s77, s98, {far}
    s_lshl_b32 s77, s77, 13
    s_add_u32 s{dst}, s{dst}, s77
    s_add_u32 s{dst}, s{dst}, {WS_I + 98304 + add}
    """)


def sync_issue(a: Asm, vt):
    a(f"""
    v_and_b32 v{vt+1}, 15, v0
    v_lshlrev_b32 v{vt+1}, 4, v{vt+1}
    buffer_load_dword v{vt}, v{vt+1}, s[{S_DBG}:{S_DBG+3}], 0 offen sc1
    """)


def sync_code(a: Asm, kname, tag, vt, force_slow=False, pre=False):
    D = S_DBG
    n = f"{kname}_sy{tag}"
    a(f"""
    v_and_b32 v{vt+1}, 15, v0
    v_lshlrev_b32 v{vt+1}, 4, v{vt+1}
    s_branch {n}{"p" if pre else ""}
{n}w:
    s_sleep 4
{n}:
    """)
    wd_code(a, n)
    a(f"""
    buffer_load_dword v{vt}, v{vt+1}, s[{D}:{D+3}], 0 offen sc1
    s_waitcnt vmcnt(0)
{n}p:
    s_cmp_eq_u32 s95, 1
    s_cbranch_scc0 {n}f
    v_readlane_b32 s76, v{vt}, {D_PD2 // 16}
    s_mov_b32 s98, 0
    s_cmp_eq_u32 s76, {NI}
    s_cbranch_scc0 {n}w
    s_branch {n}d
{n}f:
    s_mov_b32 s77, 0
    s_mov_b32 s78, 0
    """)
    for i in range(8):
        a(f"v_readlane_b32 s76, v{vt}, {i}\ns_add_u32 s77, s77, s76\ns_xor_b32 s76, s76, 32\ns_or_b32 s78, s78, s76")
    a(f"""
    s_cmp_eq_u32 s77, 256
    s_cbranch_scc0 {n}w
    {"s_mov_b32 s78, 1" if force_slow else ""}
    v_mov_b32 v252, v{vt}
    s_cmp_eq_u32 s78, 0
    s_cbranch_scc0 {kname}_slowent
    v_readlane_b32 s76, v{vt}, {D_PD // 16}
    v_readlane_b32 s77, v{vt}, {D_VOTE // 16}
    s_cmp_eq_u32 s76, {NI}
    s_cbranch_scc0 {n}w
    s_cmp_gt_u32 s77, {NI // 2}
    s_cselect_b32 s98, 1, 0
    {f"s_xor_b32 s98, s98, {os.environ['PAR']}" if "PAR" in os.environ else ""}
{n}d:
    """)


def slow_entry(a: Asm, name):
    D = S_DBG
    a.label(f"{name}_slowent")
    a(f"""
    s_mov_b64 exec, -1
    s_waitcnt vmcnt(0) lgkmcnt(0)
    s_barrier
    s_mov_b32 s97, s96
    """)
    for i in range(7):
        a(f"v_readlane_b32 s76, v252, {i}\ns_cmp_gt_u32 s90, {i}\ns_cselect_b32 s76, s76, 0\ns_add_u32 s97, s97, s76")
    a(f"""
    v_mov_b32 v1, 0
    v_mov_b32 v2, 1
    v_cmp_eq_u32 vcc, 0, v0
    s_and_saveexec_b64 s[88:89], vcc
    s_cbranch_execz {name}_sb1
    buffer_atomic_add v2, v1, s[{D}:{D+3}], 0 offen offset:{D_SLOW} sc1
{name}_sb1:
    s_mov_b64 exec, s[88:89]
{name}_sb2:
    s_sleep 4
    """)
    wd_code(a, "slowbar")
    a(f"""
    buffer_load_dword v2, v1, s[{D}:{D+3}], 0 offen offset:{D_SLOW} sc1
    s_waitcnt vmcnt(0)
    v_cmp_ne_u32 vcc, 256, v2
    s_cbranch_vccnz {name}_sb2
    s_mov_b32 s95, 1
    """)


def init_cd(a: Asm, name, idx):
    W, D = S_WSD, S_DBG
    a(f"""
    v_mov_b32 v8, -1
    v_mov_b32 v9, -1
    v_mov_b32 v10, -1
    v_mov_b32 v11, -1
    v_lshlrev_b32 v1, 4, v0
    v_mov_b32 v2, 0
    v_cmp_gt_u32 vcc, 64, v0
    s_cbranch_vccz {name}_nv
    s_cmp_eq_u32 s95, 0
    s_cbranch_scc0 {name}_nv
    ; latency samples of both parities (order alternates with idx), sign vote
    s_lshr_b32 s60, s2, 1
    s_lshl_b32 s60, s60, 14
    s_and_b32 s61, s{idx}, 1
    s_lshl_b32 s66, s61, 13
    s_add_u32 s60, s60, s66
    s_and_b32 s66, s2, 1
    s_lshl_b32 s66, s66, 10
    s_add_u32 s60, s60, s66
    s_add_u32 s60, s60, {WS_CAL}
    s_mov_b32 s66, 0x7fffffff
    s_mov_b32 s67, 0x7fffffff
    s_mov_b64 exec, 0xff
    s_waitcnt vmcnt(0)
    """)
    for i in range(E("NSAMP", 4)):
        a(f"""
        s_memtime s[62:63]
        s_waitcnt lgkmcnt(0)
        buffer_store_dwordx4 v[8:11], v1, s[{W}:{W+3}], s60 offen offset:{256 * (i >> 1)} sc1
        s_waitcnt vmcnt(0)
        s_memtime s[64:65]
        s_xor_b32 s60, s60, 8192
        s_waitcnt lgkmcnt(0)
        s_sub_u32 s64, s64, s62
        s_min_u32 s{66 + (i & 1)}, s{66 + (i & 1)}, s64
        """)
    a(f"""
    s_cmp_lt_u32 s67, s66
    s_cselect_b32 s60, 1, 0
    s_xor_b32 s60, s60, s61          ; parity that is near this XCD
    s_lshr_b32 s61, s90, 2
    s_xor_b32 s60, s60, s61
    v_mov_b32 v3, s60
    s_mov_b64 exec, 1
    buffer_atomic_add v3, v2, s[{D}:{D+3}], 0 offen offset:{D_VOTE} sc1
    s_mov_b64 exec, -1
{name}_nv:
    s_barrier
    s_lshl_b32 s60, s{idx}, 12
    s_add_u32 s60, s60, {WS_H}
    """)
    for i in range(512 // NI):
        a(f"buffer_store_dwordx4 v[8:11], v1, s[{W}:{W+3}], s60 offen sc1")
        a(f"s_add_u32 s60, s60, {NI * 4096}")
    a(f"""
    s_lshr_b32 s62, s{idx}, 1
    s_and_b32 s63, s{idx}, 1
    s_add_u32 s63, s63, s62
    s_lshl_b32 s62, s62, 19
    s_and_b32 s64, s63, 14
    s_lshl_b32 s64, s64, 13
    s_add_u32 s62, s62, s64
    s_and_b32 s64, s63, 1
    s_lshl_b32 s64, s64, 12
    s_add_u32 s62, s62, s64
    s_add_u32 s62, s62, {WS_XU}
    {"" if E("TAG", 1) else f"buffer_store_dwordx4 v[8:11], v1, s[{W}:{W+3}], s62 offen sc1"}
    s_add_u32 s62, s62, 8192
    {"" if E("TAG", 1) else f"buffer_store_dwordx4 v[8:11], v1, s[{W}:{W+3}], s62 offen sc1"}
    s_cmp_lt_u32 s{idx}, 16
    s_cbranch_scc0 {name}_pz
    buffer_store_dwordx4 v[8:11], v1, s[{W}:{W+3}], s60 offen sc1
{name}_pz:
    s_waitcnt vmcnt(0)
    s_barrier
    v_mov_b32 v3, 1
    s_lshl_b32 s62, s95, 6
    v_cmp_eq_u32 vcc, 0, v0
    s_and_saveexec_b64 s[60:61], vcc
    s_cbranch_execz {name}_xps
    buffer_atomic_add v3, v2, s[{D}:{D+3}], s62 offen offset:{D_PD} sc1
{name}_xps:
    s_mov_b64 exec, s[60:61]
    """)


def rec_body(a: Asm, name, IS, sync, nsteps=64, prof=False, flags=True, ts=None):
    W = S_WSD
    SRD = f"s[{W}:{W+3}]"
    S_WQ, S_WK, S_WV, S_WO, S_M0 = 4, 8, 12, 16, 20
    S_WAVE, S_H, S_J, S_STEP, S_T0, S_T1 = 24, 25, 26, 27, 28, 29
    S_C = 32
    S_SL, S_SLO = 33, 34
    S_XS, S_XSO = 35, 36
    S_P = 37
    S_MN8, S_MMEM = 40, 42
    S_XBR, S_XBW = 44, 45
    S_KVN = 46
    S_KVB, S_FLB, S_CU, S_KXB, S_TAG = 79, 81, 82, 83, 47
    S_LATE, S_WARM = 36, 89
    ONE, LS, ZER = 220, 224, 228
    S_MKM = 48
    V_L, V_G, V_M, V_T0, V_T1, V_IDX = 1, 2, 3, 4, 5, 6
    V_OMEM, V_OM0, V_OPUB, V_OSCM, V_OOP, V_OXW, V_OXR = 7, 8, 9, 10, 11, 12, 13
    V_LWQ, V_LWK, V_LRR, V_LL, V_LWO, V_LRO, V_LVW, V_LVR, V_OKV, V_NEG, V_OFL = 14, 15, 16, 17, 18, 19, 20, 21, 22, 23, 24
    V_POI = 28
    MA, AQ, AV = 32, 96, 112
    RP, R, KX, VTX, S, PL = 120, 152, 156, 164, 172, 184
    VM, P, PM, O, TMP = 208, 212, 216, 120, 232
    MO, AO, KVH = 32, 96, 244
    A_W1, A_WO = 0, 192
    L_QK, L_VP, L_OP, L_VM, L_XB, L_ST = 0, 9216, 13312, 17920, 18432, 32768

    TAG = E("TAG", 1)
    DA = E("DA", 0)
    WPAD, SCS = E("WPAD", 0), E("SCS", 1280)
    OXO, SCO = 24576, 49152

    def wdog():
        wd_code(a, name + ":" + a.lines[-1], f"s{S_STEP}")

    def stamp(i):
        if E("TR", 0):
            if i == 0: return
            if i < 11: a(f"s_memtime s[{48+2*i}:{49+2*i}]")
            if i == 11:
                a("s_memrealtime s[70:71]\ns_memtime s[100:101]\ns_waitcnt lgkmcnt(0)\nv_writelane_b32 v250, s100, 12")
                for k in range(1, 12):
                    a(f"v_writelane_b32 v250, s{48+2*k}, {k}")
                a(f"v_writelane_b32 v250, s99, 0")
                a(f"""
                s_lshl_b32 s80, s{S_X}, 5
                s_add_u32 s80, s80, s{S_T}
                s_lshl_b32 s80, s80, 2
                s_add_u32 s80, s80, s{S_WAVE}
                s_lshl_b32 s80, s80, 6
                s_add_u32 s80, s80, s{S_STEP}
                s_lshl_b32 s80, s80, 6
                s_add_u32 s80, s80, {WS_PROF}
                v_lshlrev_b32 v251, 2, v{V_L}
                s_mov_b64 exec, 0xffff
                buffer_store_dword v250, v251, {SRD}, s80 offen
                s_mov_b64 exec, -1
                """)
            return
        if not prof or i == 11:
            return
        a("s_memtime s[66:67]")
        a("s_waitcnt lgkmcnt(0)")
        a("s_sub_u32 s68, s66, s69")
        a(f"s_add_u32 s{50+i}, s{50+i}, s68")
        a("s_mov_b32 s69, s66")

    if prof:
        for i in range(16):
            a(f"s_mov_b32 s{50+i}, 0")
        a("s_memtime s[66:67]\ns_waitcnt lgkmcnt(0)\ns_mov_b32 s69, s66")
    if ts: ts(1)
    a(f"""
    s_load_dwordx2 s[{S_M0}:{S_M0+1}], s[0:1], {KA_MEM0}
    s_load_dwordx2 s[{S_WO}:{S_WO+1}], s[0:1], {KA_WO}
    s_load_dwordx2 s[{S_WQ}:{S_WQ+1}], s[0:1], {KA_WQ}
    s_load_dwordx2 s[{S_WK}:{S_WK+1}], s[0:1], {KA_WK}
    s_load_dwordx2 s[{S_WV}:{S_WV+1}], s[0:1], {KA_WV}
    v_lshrrev_b32 v{V_T0}, 6, v0
    v_and_b32 v{V_L}, 63, v0
    v_readfirstlane_b32 s{S_WAVE}, v{V_T0}
    v_lshrrev_b32 v{V_G}, 4, v{V_L}
    v_and_b32 v{V_M}, 15, v{V_L}
    v_lshlrev_b32 v{V_LL}, 4, v{V_L}
    s_lshr_b32 s{S_T0}, s{S_T}, 2
    s_lshl_b32 s{S_H}, s{S_X}, 3
    s_add_u32 s{S_H}, s{S_H}, s{S_T0}
    s_and_b32 s{S_J}, s{S_T}, 3
    s_waitcnt lgkmcnt(0)
    s_mov_b32 s{S_M0+2}, 16384
    s_mov_b32 s{S_M0+3}, 0x00020000
    """)
    for s in (S_WO, S_WQ, S_WK, S_WV):
        a(f"s_mov_b32 s{s+2}, {8*MB}\ns_mov_b32 s{s+3}, 0x00020000")
    FULL = E("FULL", 0)
    CL = 2 + FULL
    a(f"""
    s_lshl_b32 s{S_T0}, s{S_H}, 8
    s_lshr_b32 s{S_T1}, s{S_J}, {FULL}
    s_lshl_b32 s{S_T1}, s{S_T1}, {6 + FULL}
    s_add_u32 s{S_T0}, s{S_T0}, s{S_T1}
    s_lshl_b32 s{S_T1}, s{S_WAVE}, 21
    s_add_u32 s{S_T0}, s{S_T0}, s{S_T1}
    v_lshrrev_b32 v{V_T0}, {CL}, v{V_L}
    v_and_b32 v{V_T1}, {(1 << CL) - 1}, v{V_L}
    v_lshlrev_b32 v40, 13, v{V_T0}
    v_lshl_add_u32 v40, v{V_T1}, 4, v40
    v_add_u32 v40, s{S_T0}, v40
    s_lshl_b32 s{S_T0}, s{S_X}, 21
    s_lshl_b32 s{S_T1}, s{S_WAVE}, 19
    s_add_u32 s{S_T0}, s{S_T0}, s{S_T1}
    s_lshr_b32 s{S_T1}, s{S_T}, {FULL}
    s_lshl_b32 s{S_T1}, s{S_T1}, {6 + FULL}
    s_add_u32 s{S_T0}, s{S_T0}, s{S_T1}
    v_lshlrev_b32 v41, 11, v{V_T0}
    v_lshl_add_u32 v41, v{V_T1}, 4, v41
    v_add_u32 v41, s{S_T0}, v41
    s_lshl_b32 s47, s{S_WAVE}, 15
    s_add_u32 s47, s47, {L_ST}
    """)
    order = [int(c) for c in os.environ.get("WORD", "1203")]
    PH = [(c, p) for c in order for p in range(1 << FULL)]
    RI = 64 >> CL

    def wdma(n):
        c, p = PH[n]
        srd = (S_WQ, S_WK, S_WV, S_WO)[c]
        if E("HELP", 1):
            a(f"buffer_load_dword v50, v{51 if c < 3 else 52}, s[{srd}:{srd+3}], 0 offen")
        if E("RX", 0):
            a(f"buffer_load_dword v50, v{58 if c < 3 else 59}, s[{srd}:{srd+3}], 0 offen")
        for r in range(16):
            if E("PSW", 1):
                a(f"s_xor_b32 s{S_T1}, s76, {r}")
                a(f"s_lshl_b32 s{S_T0}, s{S_T1}, 10")
                a(f"s_add_u32 s{S_T0}, s{S_T0}, s47")
                a(f"s_add_u32 m0, s{S_T0}, {(n & 1)*16384}")
                a(f"s_lshl_b32 s{S_T1}, s{S_T1}, {17 if c < 3 else 15}")
            else:
                a(f"s_add_u32 m0, s47, {(n & 1)*16384 + 1024*r}")
                a(f"s_mov_b32 s{S_T1}, {RI * (16 * p + r) * (8192 if c < 3 else 2048)}")
            a(f"buffer_load_dwordx4 v{40 if c < 3 else 41}, s[{srd}:{srd+3}], s{S_T1} offen {'nt ' if (E('RNT', 0) >> c) & 1 else ''}lds")
    WT = E("WT", 0)
    assert not (WT and FULL)
    a(f"""
    s_lshl_b32 s{S_T0}, s{S_T}, 18
    s_lshl_b32 s{S_T1}, s{S_WAVE}, 16
    s_add_u32 s{S_T0}, s{S_T0}, s{S_T1}
    s_lshl_b32 s{S_T1}, s{S_X}, 11
    s_add_u32 s{S_T0}, s{S_T0}, s{S_T1}
    v_lshlrev_b32 v48, 13, v{V_G}
    v_lshl_add_u32 v48, v{V_M}, 7, v48
    v_add_u32 v48, s{S_T0}, v48
    s_lshl_b32 s{S_T0}, s{S_X}, 21
    s_lshl_b32 s{S_T1}, s{S_T}, 16
    s_add_u32 s{S_T0}, s{S_T0}, s{S_T1}
    s_lshl_b32 s{S_T1}, s{S_WAVE}, 14
    s_add_u32 s{S_T0}, s{S_T0}, s{S_T1}
    v_lshlrev_b32 v49, 7, v{V_L}
    v_add_u32 v49, s{S_T0}, v49
    """)

    a(f"""
    s_and_b32 s76, s{S_T}, 1
    s_mul_i32 s76, s76, {E("PSW", 1) * 8 if E("PSW", 1) < 2 else E("PSW", 1)}
    ; helper touch of the slow lines: row = 256w + 16*(l&15... ) : rows w*256 + (t&15)*16 + (l&15), col (t>>4)*1024 + 384
    s_and_b32 s{S_T0}, s{S_T}, 15
    s_lshl_b32 s{S_T0}, s{S_T0}, 4
    s_lshl_b32 s{S_T1}, s{S_WAVE}, 8
    s_add_u32 s{S_T0}, s{S_T0}, s{S_T1}
    v_add_u32 v53, s{S_T0}, v{V_M}
    s_lshr_b32 s{S_T0}, s{S_T}, 4
    s_lshl_b32 s{S_T0}, s{S_T0}, 10
    s_add_u32 s{S_T0}, s{S_T0}, 384
    v_mov_b32 v54, s{S_T0}
    v_mov_b32 v55, 1920
    v_cmp_gt_u32 vcc, 32, v{V_L}
    s_nop 1
    v_cndmask_b32 v54, v55, v54, vcc
    s_lshl_b32 s{S_T1}, s{S_X}, 11
    v_lshl_add_u32 v51, v53, 13, v54
    v_add_u32 v51, s{S_T1}, v51
    s_lshl_b32 s{S_T1}, s{S_X}, 21
    v_lshl_add_u32 v52, v53, 11, v54
    v_add_u32 v52, s{S_T1}, v52
    """)

    if E("RX", 0):
        a(f"""
        s_lshl_b32 s{S_T0}, s{S_WAVE}, 8
        s_lshl_b32 s{S_T1}, s76, 4
        s_add_u32 s{S_T0}, s{S_T0}, s{S_T1}
        s_add_u32 s{S_T0}, s{S_T0}, 64
        v_add_u32 v57, s{S_T0}, v{V_L}
        s_xor_b32 s{S_T0}, s{S_T}, {E("RX", 0)}
        s_lshl_b32 s{S_T0}, s{S_T0}, 6
        s_lshl_b32 s{S_T1}, s{S_X}, 11
        s_add_u32 s{S_T1}, s{S_T1}, s{S_T0}
        v_lshlrev_b32 v58, 13, v57
        v_add_u32 v58, s{S_T1}, v58
        s_lshl_b32 s{S_T1}, s{S_X}, 21
        s_add_u32 s{S_T1}, s{S_T1}, s{S_T0}
        v_lshlrev_b32 v59, 11, v57
        v_add_u32 v59, s{S_T1}, v59
        """)
    NSELF = E("NSELF", 0)
    XF, XA = 64, 192
    if NSELF:
        assert order[:2] == [1, 2] and not FULL
        a(f"""
        s_load_dwordx2 s[56:57], s[0:1], {KA_AX}
        v_lshrrev_b32 v56, 1, v{V_G}
        v_lshlrev_b32 v56, 5, v56
        v_and_b32 v57, 1, v{V_G}
        v_lshl_add_u32 v56, v57, 3, v56
        v_lshl_add_u32 v56, v{V_M}, 11, v56
        s_lshl_b32 s{S_T0}, s{S_WAVE}, 9
        v_add_u32 v56, s{S_T0}, v56
        s_mov_b32 s58, {4*MB}
        s_mov_b32 s59, 0x00020000
        s_waitcnt lgkmcnt(0)
        """)
        for zt in range(2 * NSELF):
            a(f"s_mov_b32 s{S_T1}, {zt * 32768}")
            for hk in range(8):
                f = XF + (zt * 8 + hk) * 4
                a(f"buffer_load_dwordx2 v[{f}:{f+1}], v56, s[56:59], s{S_T1} offen offset:{64*hk}")
                a(f"buffer_load_dwordx2 v[{f+2}:{f+3}], v56, s[56:59], s{S_T1} offen offset:{64*hk+16}")

    def selfproj(isV):
        if not isV:
            for f in range(16 * NSELF):
                a(f"v_swap_b32 v{XF+4*f+1}, v{XF+4*f+2}")
            a(f"""
            s_lshl_b32 s{S_T0}, s{S_WAVE}, 12
            v_add_u32 v57, s{S_T0}, v{V_LL}
            v_lshlrev_b32 v60, 3, v0
            v_add_u32 v60, {L_XB}, v60
            v_bfe_u32 v61, v0, 1, 4
            v_lshlrev_b32 v58, 4, v61                    ; m*16
            v_and_b32 v61, 1, v0
            v_lshrrev_b32 v62, 5, v0
            v_lshl_add_u32 v59, v61, 11, v58             ; V: tt*2048
            v_lshl_add_u32 v59, v62, 8, v59              ;   + u*1024 + g*256
            v_lshl_add_u32 v58, v61, 8, v58              ; K: hf*256
            v_lshl_add_u32 v58, v62, 9, v58              ;   + (tt*2048 + u*1024 + (g'&1)*512)
            """)
        for z in range(NSELF):
            for hk in range(8):
                for tt in range(2):
                    for u in range(2):
                        d, f = XA + 8 * tt + 4 * u, XF + ((2 * z + tt) * 8 + hk) * 4
                        w = A_W1 + (((2 if isV else 1) * 2 + u) * 4 + (hk >> 1)) * 8 + 4 * (hk & 1)
                        c = "0" if hk == 0 else f"v[{d}:{d+3}]"
                        if isV: a(f"v_mfma_f32_16x16x32_bf16 v[{d}:{d+3}], v[{f}:{f+3}], a[{w}:{w+3}], {c}")
                        else: a(f"v_mfma_f32_16x16x32_bf16 v[{d}:{d+3}], a[{w}:{w+3}], v[{f}:{f+3}], {c}")
            a("s_barrier")
            a.nops(8)
            for i in range(4):
                a(f"ds_write_b128 v57, v[{XA+4*i}:{XA+4*i+3}] offset:{1024*i}")
            a("s_waitcnt lgkmcnt(0)\ns_barrier")
            for w in range(4):
                a(f"ds_read_b128 v[{XA+16+4*w}:{XA+16+4*w+3}], v{59 if isV else 58} offset:{4096*w}")
            a("s_waitcnt lgkmcnt(0)")
            b = XA + 16
            for i in (0, 2):
                a(f"v_pk_add_f32 v[{b+i}:{b+i+1}], v[{b+i}:{b+i+1}], v[{b+4+i}:{b+4+i+1}]")
                a(f"v_pk_add_f32 v[{b+8+i}:{b+8+i+1}], v[{b+8+i}:{b+8+i+1}], v[{b+12+i}:{b+12+i+1}]")
            for i in (0, 2):
                a(f"v_pk_add_f32 v[{b+i}:{b+i+1}], v[{b+i}:{b+i+1}], v[{b+8+i}:{b+8+i+1}]")
            a(f"v_cvt_pk_bf16_f32 v{b+4}, v{b}, v{b+1}\nv_cvt_pk_bf16_f32 v{b+5}, v{b+2}, v{b+3}")
            a(f"ds_write_b64 v60, v[{b+4}:{b+5}] offset:{4096*z + (2048 if isV else 0)}")

    def wtouch(n):
        c, p = PH[n]
        srd = (S_WQ, S_WK, S_WV, S_WO)[c]
        for i in range(2):
            a(f"s_mov_b32 s{S_T1}, {i * (32768 if c < 3 else 8192)}")
            a(f"buffer_load_dword v50, v{48 if c < 3 else 49}, s[{srd}:{srd+3}], s{S_T1} offen")
    if WT == 1:
        wtouch(0); wtouch(1); wdma(0); wtouch(2); wdma(1); wtouch(3)
    elif WT == 2:
        wtouch(0); wtouch(1); wtouch(2); wtouch(3); wdma(0); wdma(1)
    else:
        wdma(0); wdma(1)
    a(f"""
    s_mov_b32 s{S_MN8}, 0x00ff00ff
    s_mov_b32 s{S_MN8+1}, 0x00ff00ff
    s_mov_b32 s{S_MKM}, 0xff00ff00
    s_mov_b32 s{S_MKM+1}, 0xff00ff00
    s_mov_b32 s{S_MMEM}, 0
    s_mov_b32 s{S_MMEM+1}, 0x00ff00ff
    s_mov_b32 s{S_C}, 0x3e0293ee
    v_mov_b32 v{V_NEG}, 0xff800000
    v_mov_b32 v{V_IDX}, 0x4444
    v_mov_b32 v{V_T0}, 0xeeee
    v_cndmask_b32 v{V_IDX}, v{V_IDX}, v{V_T0}, s[{S_MKM}:{S_MKM+1}]
    v_mov_b32 v{V_POI}, -1
    v_mov_b32 v{V_POI+1}, -1
    v_mov_b32 v{V_POI+2}, -1
    v_mov_b32 v{V_POI+3}, -1
    s_mul_i32 s{S_T0}, s{S_WAVE}, {4096 + WPAD}
    v_add_u32 v{V_OMEM}, s{S_T0}, v{V_LL}
    v_and_b32 v{V_T0}, 7, v{V_L}
    v_lshlrev_b32 v{V_OM0}, 11, v{V_T0}
    v_lshrrev_b32 v{V_T1}, 3, v{V_L}
    v_lshl_add_u32 v{V_OM0}, v{V_T1}, 4, v{V_OM0}
    s_lshl_b32 s{S_T0}, s{S_WAVE}, 9
    v_add_u32 v{V_OM0}, s{S_T0}, v{V_OM0}
    s_lshl_b32 s{S_T0}, s{S_T}, 9
    s_lshr_b32 s{S_T1}, s{S_T}, 3
    s_mul_i32 s{S_T1}, s{S_T1}, {WPAD}
    s_add_u32 s{S_T0}, s{S_T0}, s{S_T1}
    v_lshlrev_b32 v{V_OPUB}, 3, v{V_L}
    v_add_u32 v{V_OPUB}, s{S_T0}, v{V_OPUB}
    ; o publish: 16384 + t*512 + g*128 + (m&7)*16
    v_and_b32 v{V_T0}, 7, v{V_M}
    v_lshlrev_b32 v{V_OOP}, 7, v{V_G}
    v_lshl_add_u32 v{V_OOP}, v{V_T0}, 4, v{V_OOP}
    v_add_u32 v{V_OKV}, 0, v{V_OOP}              ; g*128 + (m&7)*16 (k_m publish)
    s_add_u32 s{S_T0}, s{S_T0}, {OXO}
    v_add_u32 v{V_OOP}, s{S_T0}, v{V_OOP}
    v_and_b32 v{V_T1}, 1, v{V_G}
    v_lshlrev_b32 v{V_OSCM}, 7, v{V_T1}
    v_lshl_add_u32 v{V_OSCM}, v{V_T0}, 4, v{V_OSCM}
    v_add_u32 v{V_OSCM}, 1024, v{V_OSCM}
    ; partner score offsets: 32768 + (t ^ p)*2048, own in S_P+3 (s47 later); kept relative to slot base
    """)
    for p in range(1, 4):
        a(f"""
        s_xor_b32 s{S_P+p-1}, s{S_T}, {p}
        s_mul_i32 s{S_P+p-1}, s{S_P+p-1}, {SCS}
        s_add_u32 s{S_P+p-1}, s{S_P+p-1}, {SCO}
        """)
    a(f"""
    ; LDS: q/k partial write: w*2304 + (4*(g&1))*144 + ((g>>1)*16 + m)*4
    v_and_b32 v{V_T0}, 1, v{V_G}
    v_mul_u32_u24 v{V_LWQ}, 576, v{V_T0}
    v_lshrrev_b32 v{V_T1}, 1, v{V_G}
    v_lshl_add_u32 v{V_T1}, v{V_T1}, 4, v{V_M}
    v_lshl_add_u32 v{V_LWQ}, v{V_T1}, 2, v{V_LWQ}
    s_mul_i32 s{S_T0}, s{S_WAVE}, {0 if DA & 2 else 1152}
    s_add_u32 s{S_T0}, s{S_T0}, {L_OP}
    v_add_u32 v{V_LWO}, s{S_T0}, v{V_LWQ}
    s_mul_i32 s{S_T0}, s{S_WAVE}, {0 if DA & 1 else 2304}
    v_add_u32 v{V_LWQ}, s{S_T0}, v{V_LWQ}
    v_add_u32 v{V_LWK}, 1152, v{V_LWQ}
    ; R read: m*144 + g*32
    v_mul_u32_u24 v{V_LRR}, 144, v{V_M}
    v_lshl_add_u32 v{V_LRR}, v{V_G}, 5, v{V_LRR}
    ; O partial read: L_OP + ((l>>1)&7)*144 + (2*(l>>4) + (l&1))*16
    v_bfe_u32 v{V_T0}, v{V_L}, 1, 3
    v_mul_u32_u24 v{V_LRO}, 144, v{V_T0}
    v_lshl_add_u32 v{V_LRO}, v{V_G}, 5, v{V_LRO}
    v_and_b32 v{V_T0}, 1, v{V_L}
    v_lshl_add_u32 v{V_LRO}, v{V_T0}, 4, v{V_LRO}
    v_add_u32 v{V_LRO}, {L_OP}, v{V_LRO}
    ; v partial write: L_VP + w*1024 + lane*16 ; read (tile u at +512u): L_VP + (l&31)*16
    s_lshl_b32 s{S_T0}, s{S_WAVE}, 10
    s_add_u32 s{S_T0}, s{S_T0}, {L_VP}
    v_add_u32 v{V_LVW}, s{S_T0}, v{V_LL}
    v_and_b32 v{V_T0}, 31, v{V_L}
    v_lshlrev_b32 v{V_LVR}, 3, v{V_T0}
    v_add_u32 v{V_LVR}, {L_VM}, v{V_LVR}
    v_lshrrev_b32 v{V_T0}, 2, v{V_M}             ; r
    v_and_b32 v42, 1, v{V_T0}                    ; r&1
    v_lshrrev_b32 v43, 1, v{V_T0}                ; r>>1
    v_lshrrev_b32 v44, 1, v{V_G}                 ; g>>1
    v_and_b32 v45, 1, v{V_G}                     ; g&1
    v_lshl_add_u32 v46, v44, 4, v42
    v_lshl_add_u32 v46, v45, 2, v46
    v_lshl_add_u32 v46, v43, 3, v46              ; W1 row
    v_lshl_add_u32 v47, v44, 3, v42
    v_lshl_add_u32 v47, v45, 4, v47
    v_lshl_add_u32 v47, v43, 2, v47
    v_and_b32 v{V_T1}, 3, v{V_M}
    v_lshlrev_b32 v{V_T1}, 3, v{V_T1}
    v_lshl_add_u32 v46, v46, {6 + FULL}, v{V_T1}
    v_lshl_add_u32 v47, v47, {6 + FULL}, v{V_T1}
    s_and_b32 s{S_T0}, s{S_T}, {FULL}
    s_lshl_b32 s{S_T0}, s{S_T0}, 6
    s_add_u32 s{S_T0}, s{S_T0}, s47
    v_add_u32 v46, s{S_T0}, v46
    v_add_u32 v47, s{S_T0}, v47
    """)

    def wtr(n):
        c, p = PH[n]
        nk = 4 >> FULL
        for u in range(2):
            for k in range(nk * p, nk * p + nk):
                d = (A_W1 + ((c * 2 + u) * 4 + k) * 8) if c < 3 else (A_WO + (u * 4 + k) * 8)
                for Pp in range(4):
                    off = (n & 1) * 16384 + ((64 * (k - nk * p) + 32 * (Pp >> 1) + 2 * (Pp & 1)) << (6 + FULL)) + 32 * u
                    a(f"ds_read_b64_tr_b16 a[{d+2*Pp}:{d+2*Pp+1}], v{46 if c < 3 else 47} offset:{off}")
                if k & 1:
                    a("s_waitcnt lgkmcnt(0)")
    SK = E("SK", 0)
    if SK:
        a(f"""
        v_readfirstlane_b32 s60, v40
        v_readfirstlane_b32 s61, v41
        s_lshl_b32 s62, s76, 17
        s_add_u32 s60, s60, s62
        s_lshl_b32 s62, s76, 15
        s_add_u32 s61, s61, s62
        """)
    for n in range(len(PH)):
        if SK and n + 2 < len(PH):
            c = PH[n + 2][0]
            srd = (S_WQ, S_WK, S_WV, S_WO)[c]
            for r in range(SK):
                a(f"s_buffer_load_dword s63, s[{srd}:{srd+3}], s{60 if c < 3 else 61} offset:{r * (8192 if c < 3 else 2048)}")
        a(f"s_waitcnt vmcnt({(16 + E('HELP', 1) + bool(E('RX', 0)) + ([4, 2, 0][n] if WT == 1 else 0)) if n + 1 < len(PH) else 0})")
        wtr(n)
        if n + 2 < len(PH): wdma(n + 2)
        if NSELF and n < 2: selfproj(n == 1)
        if n == len(PH) - 3 and E("IW", 2):
            a("s_mov_b64 exec, 0")
            for w in range(3):
                a(f"s_cmp_eq_u32 s{S_WAVE}, {w}\ns_cbranch_scc1 {name}_iw{w}")
            a(f"s_branch {name}_iw3")
            a.label(f"{name}_iwd")
            a("s_mov_b64 exec, -1")
        if n == len(PH) - 2:
            sync_issue(a, 246)
            for i in range(4):
                a(f"buffer_load_dwordx4 v[{64+4*i}:{67+4*i}], v{V_OM0}, s[{S_M0}:{S_M0+3}], 0 offen offset:{128*i}")
    for i in range(16):
        a(f"v_mov_b32 v{MA+i}, v{64+i}")
    for i in range(24):
        a(f"v_mov_b32 v{AQ+i}, 0")
    a.nops(2)
    for i in range(4):
        for c in range(4):
            w = A_W1 + (c * 4 + i) * 8
            a(f"v_smfmac_f32_16x16x64_bf16 v[{AQ+4*c}:{AQ+4*c+3}], v[{MA+4*i}:{MA+4*i+3}], a[{w}:{w+7}], v{V_IDX}")
    sync(246, True)
    if TAG: a(f"""
    ; cross exchange: WS_H + slot*256K + src*64K + (t>>3)*16K + par*8K + (t&7)*1K
    s_lshr_b32 s{S_T0}, s{S_T}, {3 + E("XC", 1)}
    s_lshl_b32 s{S_T0}, s{S_T0}, 14
    s_lshl_b32 s{S_T1}, s98, 13
    s_add_u32 s{S_T0}, s{S_T0}, s{S_T1}
    s_and_b32 s{S_T1}, s{S_T}, {(8 << E("XC", 1)) - 1}
    s_lshl_b32 s{S_T1}, s{S_T1}, {10 - E("XC", 1)}
    s_add_u32 s{S_T0}, s{S_T0}, s{S_T1}
    s_lshl_b32 s{S_T1}, s{S_X}, 16
    s_add_u32 s{S_T0}, s{S_T0}, s{S_T1}
    s_add_u32 s{S_T0}, s{S_T0}, {WS_H}
    v_lshrrev_b32 v{V_OXW}, {E("B16", 1)}, v{V_LL}
    v_add_u32 v{V_OXW}, s{S_T0}, v{V_OXW}
    v_xor_b32 v25, 0x10000, v{V_OXW}
    v_xor_b32 v26, 0x20000, v{V_OXW}
    v_xor_b32 v27, 0x30000, v{V_OXW}
    v_add_u32 v25, {(WS_XU - WS_H) * E("COPY3", 0)}, v25
    v_add_u32 v26, {(WS_XU - WS_H + 4 * MB) * E("COPY3", 0)}, v26
    v_add_u32 v27, {(WS_XU - WS_H + 8 * MB) * E("COPY3", 0)}, v27
    """)
    else: a(f"""
    s_lshr_b32 s{S_T0}, s{S_T}, 2
    s_xor_b32 s{S_T0}, s{S_T0}, s98
    s_and_b32 s{S_T0}, s{S_T0}, 1
    s_lshl_b32 s{S_T0}, s{S_T0}, 13
    s_lshl_b32 s{S_T1}, s{S_T}, 19
    s_add_u32 s{S_T0}, s{S_T0}, s{S_T1}
    s_lshl_b32 s{S_T1}, s{S_X}, 10
    s_add_u32 s{S_T0}, s{S_T0}, s{S_T1}
    s_add_u32 s{S_T0}, s{S_T0}, {WS_XU}
    v_add_u32 v{V_OXW}, s{S_T0}, v{V_LL}
    v_xor_b32 v25, 1024, v{V_OXW}
    v_xor_b32 v26, 2048, v{V_OXW}
    v_xor_b32 v27, 3072, v{V_OXW}
    """)
    a(f"""
    s_lshl_b32 s{S_T0}, s{S_H}, 2
    s_add_u32 s{S_T0}, s{S_T0}, s{S_J}
    s_mov_b32 s{S_CU}, s{S_T0}
    s_lshr_b32 s{S_T1}, s{S_T0}, 3
    s_xor_b32 s{S_T1}, s{S_T1}, s98
    {["", f"s_xor_b32 s{S_T1}, s{S_T1}, 1", f"s_xor_b32 s{S_T1}, s{S_T1}, s{S_T0}"][E("KVPAR", 0)]}
    s_and_b32 s{S_T1}, s{S_T1}, 1
    s_lshl_b32 s{S_T1}, s{S_T1}, 13
    s_lshl_b32 s76, s{S_T0}, 18
    s_add_u32 s76, s76, s{S_T1}
    s_mov_b32 s{S_KXB}, s76
    v_add_u32 v{TMP+8}, s76, v{V_LL}
    v_add_u32 v{TMP+9}, {WS_VT}, v{TMP+8}
    s_lshr_b32 s{S_T1}, s{S_T0}, 4
    s_xor_b32 s{S_T1}, s{S_T1}, s98
    s_and_b32 s{S_T1}, s{S_T1}, 1
    s_lshl_b32 s{S_T1}, s{S_T1}, 13
    s_lshl_b32 s{S_KVB}, s{S_T0}, 17
    s_add_u32 s{S_KVB}, s{S_KVB}, s{S_T1}
    s_add_u32 s{S_KVB}, s{S_KVB}, {WS_KVM}
    ; flags
    s_xor_b32 s{S_T1}, s98, 1
    s_lshl_b32 s{S_T1}, s{S_T1}, 13
    s_lshl_b32 s{S_T0}, s{S_H}, 7
    s_add_u32 s{S_T0}, s{S_T0}, s{S_T1}
    s_add_u32 s{S_T0}, s{S_T0}, {WS_F}
    v_and_b32 v{V_T0}, 1, v{V_L}
    v_lshlrev_b32 v{V_OFL}, 12, v{V_T0}
    v_add_u32 v{V_OFL}, s{S_T0}, v{V_OFL}
    s_lshl_b32 s{S_T1}, s{S_J}, 2
    v_add_u32 v{V_OFL}, s{S_T1}, v{V_OFL}
    s_xor_b32 s{S_FLB}, s98, 1
    s_lshl_b32 s{S_FLB}, s{S_FLB}, 13
    s_lshr_b32 s{S_T1}, s{S_CU}, 6
    s_lshl_b32 s{S_T1}, s{S_T1}, 14
    s_add_u32 s{S_FLB}, s{S_FLB}, s{S_T1}
    s_and_b32 s{S_T1}, s{S_CU}, 63
    s_lshl_b32 s{S_T1}, s{S_T1}, 7
    s_add_u32 s{S_FLB}, s{S_FLB}, s{S_T1}
    s_add_u32 s{S_FLB}, s{S_FLB}, {WS_F + F_KVM}
    v_mov_b32 v{ONE}, 0x3f803f80
    v_mov_b32 v{ONE+1}, 0x3f803f80
    v_mov_b32 v{ONE+2}, 0x3f803f80
    v_mov_b32 v{ONE+3}, 0x3f803f80
    v_mov_b32 v{ZER}, 0
    s_mov_b32 s{S_STEP}, 0
    s_mov_b32 s{S_KVN}, 0
    s_mov_b32 s{S_WARM}, 0
    s_mov_b32 s88, 0
    s_mov_b32 s{S_XBR}, {L_XB}
    s_mov_b32 s{S_XBW}, {L_XB + 4096 * NSELF}
    """)
    V_PK, V_PV = TMP + 8, TMP + 9
    pfn = [0]

    def prefetch(seg_sreg, part=3, chk=True, skip=None):
        i = pfn[0]; pfn[0] += 1
        if flags and chk:
            a(f"""
            s_cmp_gt_i32 s{S_KVN}, s{seg_sreg}
            s_cbranch_scc1 {name}_pf{i}ok
{name}_pf{i}w:
            """)
            wdog()
            a(f"""
            {f'''v_mov_b32 v{V_T0}, 0
            s_mov_b64 exec, 3
            buffer_atomic_add v{V_T0}, v{V_OFL}, {SRD}, 0 offen sc0 sc1
            s_mov_b64 exec, -1''' if E("KAP", 1) else f"buffer_load_dword v{V_T0}, v{V_OFL}, {SRD}, 0 offen sc1"}
            s_waitcnt vmcnt(0)
            v_readlane_b32 s{S_KVN}, v{V_T0}, 0
            v_readlane_b32 s{S_T0}, v{V_T0}, 1
            s_nop 1
            s_min_i32 s{S_KVN}, s{S_KVN}, s{S_T0}
            s_cmp_gt_i32 s{S_KVN}, s{seg_sreg}
            s_cbranch_scc0 {skip or f"{name}_pf{i}w"}
{name}_pf{i}ok:
            """)
        if part is None: return
        a(f"""
        s_add_u32 s77, s{seg_sreg}, s{S_CU}
        s_bfe_u32 s{S_T0}, s77, 0x40002
        s_lshl_b32 s{S_T0}, s{S_T0}, 14
        s_and_b32 s77, s77, 3
        s_lshl_b32 s77, s77, 11
        s_add_u32 s{S_T0}, s{S_T0}, s77
        """)
        if part <= 0:
            a(f"s_add_u32 s{S_T0}, s{S_T0}, s{S_KXB}")
            if part < 0: a(f"s_add_u32 s{S_T0}, s{S_T0}, {WS_VT}")
            for l in range(16):
                a(f"s_buffer_load_dword s78, {SRD}, s{S_T0} offset:{128*l}")
            return
        for f in range(4):
            if not (part >> (f >> 1)) & 1: continue
            a(f"s_add_u32 m0, s{S_XBW}, {2048 * (f >> 1)}")
            a("s_nop 0")
            a(f"buffer_load_dwordx4 v{V_PK if f < 2 else V_PV}, {SRD}, s{S_T0} offen offset:{1024 * (f & 1)} sc1 lds")
        if part & 2: a(f"""
        s_add_u32 s{S_XBW}, s{S_XBW}, 4096
        s_cmp_eq_u32 s{S_XBW}, {L_XB + 3 * 4096}
        s_cselect_b32 s{S_XBW}, {L_XB}, s{S_XBW}
        """)

    def flag_store(val_sreg):
        a(f"""
        v_mov_b32 v{V_T1}, s{val_sreg}
        s_mov_b64 exec, 1
        buffer_store_dword v{V_T1}, v{ZER}, {SRD}, s{S_FLB} offen sc1
        s_mov_b64 exec, -1
        """)

    def wr4(va, r, at):
        if at:
            for i in range(4):
                a(f"ds_add_f32 v{va}, v{r+i} offset:{144*i}")
        else:
            a(f"ds_write2_b32 v{va}, v{r}, v{r+1} offset0:0 offset1:36")
            a(f"ds_write2_b32 v{va}, v{r+2}, v{r+3} offset0:72 offset1:108")

    def lzero(which):
        if which == 0:
            a(f"ds_write_b128 v{V_LRR}, v[60:63] offset:{L_QK}\nds_write_b128 v{V_LRR}, v[60:63] offset:{L_QK + 16}")
        else:
            a(f"ds_write_b128 v{V_LRO}, v[60:63]")

    def zero(base, n):
        for i in range(n):
            a(f"v_mov_b32 v{base+i}, 0")

    if ts and E("BPROF", 0):
        ts(2)
        a(f"v_and_b32 v{V_L}, 63, v0\nv_lshrrev_b32 v{V_G}, 4, v{V_L}")
    a(f"s_cmp_eq_u32 s{S_WAVE}, 3\ns_cbranch_scc0 {name}_pfi")
    a(f"s_mov_b32 s76, 0")
    if not NSELF: prefetch(76)
    a("s_waitcnt vmcnt(0) lgkmcnt(0)")
    a(f"s_branch {name}_pfj")
    a.label(f"{name}_pfi")
    klast(a, 88, S_H, 0, 0)
    a(f"s_lshl_b32 s77, s{S_J}, 10\ns_add_u32 s88, s88, s77")
    a.label(f"{name}_pfj")
    zero(PL, 24)
    zero(249, 1)
    zero(60, 4)
    if DA & 1: lzero(0)
    if DA & 2: lzero(1)
    a('s_waitcnt lgkmcnt(0)')
    a("s_barrier")
    if ts and E("BPROF", 0):
        ts(3)
        a(f"v_and_b32 v{V_L}, 63, v0\nv_lshrrev_b32 v{V_G}, 4, v{V_L}")
    stamp(0)

    def smf(d, areg, w):
        a(f"v_smfmac_f32_16x16x64_bf16 v[{d}:{d+3}], v[{areg}:{areg+3}], a[{w}:{w+7}], v{V_IDX}")

    def stream_poll(tag, base, soff, off0, two, work, first=None):
        def ld(i):
            a(f"buffer_load_dwordx4 v[{base+4*i}:{base+4*i+3}], v{V_OMEM}, {SRD}, s{soff} offen offset:{1024*i} sc1")
        G = E("GAP", 10)
        a("; loads are spaced so that the four waves are served round robin")
        for i in range(4):
            ld(i)
            if i == 0 and first:
                first()
                if G > 5: a.nops(G - 5)
            elif i < 3 and G:
                a.nops(G)
        if E("RR", 1):
            def lab(S, i): return f"{name}_{tag}_{S}_{i}"
            def nxt(S, i):
                for d in range(1, 5):
                    if S >> ((i + d) & 3) & 1: return (i + d) & 3
            def chk(i):
                if two:
                    a(f"v_max_u32 v{V_T0}, v{base+4*i}, v{base+4*i+2}")
                    a(f"v_cmp_eq_u32 vcc, -1, v{V_T0}")
                else:
                    a(f"v_cmp_eq_u32 vcc, -1, v{base+4*i}")
            def block(S, i, fall):
                a.label(lab(S, i))
                a(f"s_waitcnt vmcnt({bin(S).count('1') - 1})")
                chk(i)
                a(f"s_cbranch_vccnz {lab(S, i)}f")
                work(i)
                if not fall:
                    S2 = S & ~(1 << i)
                    a(f"s_branch {lab(S2, nxt(S2, i)) if S2 else f'{name}_{tag}_d'}")
            fast = [(15, 0), (14, 1), (12, 2), (8, 3)]
            if E("HOIST", 1) and two:
                def cap(fn, *ar):
                    sv = a.lines; a.lines = []; fn(*ar); o = a.lines; a.lines = sv; return o
                a("s_waitcnt vmcnt(3)")
                chk(0)
                for n, (S, i) in enumerate(fast):
                    a(f"s_cbranch_vccnz {lab(S, i)}f")
                    wk = cap(work, i)
                    a.lines += wk[:3]
                    if i < 3:
                        a(f"s_waitcnt vmcnt({2 - i})")
                        chk(i + 1)
                    a.lines += wk[3:]
                fast = []
            for S, i in fast:
                block(S, i, True)
            a.label(f"{name}_{tag}_d")
            def stubs():
                for S in range(1, 16):
                    for i in range(4):
                        if not S >> i & 1: continue
                        if E("ALR", 5): a(f".p2align {E('ALR', 5)}")
                        a.label(lab(S, i) + "f")
                        if E("MSK", 1): a("s_mov_b64 exec, vcc")
                        ld(i)
                        if E("MSK", 1): a("s_mov_b64 exec, -1")
                        if bin(S).count('1') == 1 or i == nxt(S, 3): wdog()
                        a(f"s_branch {lab(S, nxt(S, i))}")
                        if (S, i) not in fast:
                            if E("ALR", 5): a(f".p2align {E('ALR', 5)}")
                            block(S, i, False)
            return stubs
        for i in range(4):
            a.label(f"{name}_{tag}{i}")
            a(f"s_waitcnt vmcnt({3-i})")
            if two:
                a(f"v_max_u32 v{V_T0}, v{base+4*i}, v{base+4*i+2}")
                a(f"v_cmp_eq_u32 vcc, -1, v{V_T0}")
            else:
                a(f"v_cmp_eq_u32 vcc, -1, v{base+4*i}")
            a(f"s_cbranch_vccnz {name}_{tag}r{i}")
            a.label(f"{name}_{tag}k{i}")
            work(i)
        def stubs():
            for i in range(4):
                a.label(f"{name}_{tag}r{i}")
                if prof: a(f"s_add_u32 s{62 if tag == 'pa' else 63}, s{62 if tag == 'pa' else 63}, 1")
                wdog()
                if not E("IMM", 1): a("s_waitcnt vmcnt(0)")
                for k in range(i, 4):
                    ld(k)
                a(f"s_branch {name}_{tag}{i}")
        return stubs

    def fold(t0, t1):
        for i in range(4):
            a(f"v_permlane32_swap_b32 v{t0+i}, v{t1+i}")
        a(f"v_pk_add_f32 v[{t0}:{t0+1}], v[{t0}:{t0+1}], v[{t1}:{t1+1}]")
        a(f"v_pk_add_f32 v[{t0+2}:{t0+3}], v[{t0+2}:{t0+3}], v[{t1+2}:{t1+3}]")

    def vwork(lo, hi):
        for n in range(lo, hi):
            i, u = n >> 1, n & 1
            smf(AV + 4 * u, MA + 4 * i, A_W1 + ((4 + u) * 4 + (i & 3)) * 8)

    def vfin():
        fold(AV, AV + 4)
        a(f"ds_write_b128 v{V_LVW}, v[{AV}:{AV+3}]")

    def rread():
        for w in range(1 if DA & 1 else 4):
            for hh in range(2):
                d = RP + 8 * w + 4 * hh
                a(f"ds_read_b128 v[{d}:{d+3}], v{V_LRR} offset:{L_QK + 2304*w + 16*hh}")

    def rsum(dst):
        if DA & 1:
            a("s_waitcnt lgkmcnt(0)")
            for i in range(4):
                a(f"v_cvt_pk_bf16_f32 v{dst+i}, v{RP+2*i}, v{RP+2*i+1}")
            return
        a("s_waitcnt lgkmcnt(4)")
        for i in range(0, 8, 2):
            a(f"v_pk_add_f32 v[{RP+i}:{RP+i+1}], v[{RP+i}:{RP+i+1}], v[{RP+8+i}:{RP+8+i+1}]")
        a("s_waitcnt lgkmcnt(0)")
        for i in range(0, 8, 2):
            a(f"v_pk_add_f32 v[{RP+16+i}:{RP+16+i+1}], v[{RP+16+i}:{RP+16+i+1}], v[{RP+24+i}:{RP+24+i+1}]")
        for i in range(0, 8, 2):
            a(f"v_pk_add_f32 v[{RP+i}:{RP+i+1}], v[{RP+i}:{RP+i+1}], v[{RP+16+i}:{RP+16+i+1}]")
        for i in range(4):
            a(f"v_cvt_pk_bf16_f32 v{dst+i}, v{RP+2*i}, v{RP+2*i+1}")

    S_FM = S_TAG
    def xuoff(dst, step):
        a(f"""
        s_add_u32 s{S_T0}, s{step}, s{S_T}
        s_and_b32 s77, s{S_T0}, 14
        s_and_b32 s{S_T0}, s{S_T0}, 1
        s_lshl_b32 s{S_T0}, s{S_T0}, 12
        s_and_b32 s{dst}, s{step}, 48
        s_or_b32 s{dst}, s{dst}, s77
        s_lshl_b32 s{dst}, s{dst}, 13
        s_add_u32 s{dst}, s{dst}, s{S_T0}
        """)

    def heads():
        a(f"""
        s_and_b32 s{S_T1}, s{S_STEP}, 1
        s_lshl_b32 s{S_SL}, s{S_T1}, 17
        s_lshl_b32 s{S_T0}, s{S_X}, 18
        s_add_u32 s{S_SL}, s{S_SL}, s{S_T0}
        s_add_u32 s{S_SL}, s{S_SL}, {WS_I}
        s_xor_b32 s{S_SLO}, s{S_SL}, {1 << 17}
        """)
        if TAG: a(f"""
        s_lshl_b32 s{S_XS}, s{S_T1}, 18
        s_bfe_u32 s{S_TAG}, s{S_STEP}, 0x10001
        """)
        else: xuoff(S_XS, S_STEP)
    heads()
    if E("PRIO", 0):
        a(f"s_cmp_eq_u32 s{S_WAVE}, 0\ns_cbranch_scc0 {name}_np\ns_setprio 3")
        a.label(f"{name}_np")
    a(f"s_branch {name}_first")

    def wa(i):
        for c in range(4):
            smf(AQ + 4 * c, MA + 4 * i, A_W1 + (c * 4 + (i & 3)) * 8)

    def xread():
        a(f"v_add_u32 v{V_T1}, s{S_XBR}, v{V_LL}")
        for f in range(4):
            a(f"ds_read_b128 v[{KX+4*f}:{KX+4*f+3}], v{V_T1} offset:{1024*f}")

    if E("AL", 2) >= 0:
        a(".p2align 6")
        for i in range(E("AL", 2)): a("s_nop 0")
    a.label(f"{name}_loop")
    stubs_a = stream_poll("pa", MA, S_SL, 0, True, wa, first=xread)
    a.label(f"{name}_adone")
    stamp(1)
    a.nops(6)
    fold(AQ, AQ + 4)
    wr4(V_LWQ, AQ, DA & 1)
    fold(AQ + 8, AQ + 12)
    wr4(V_LWK, AQ + 8, DA & 1)
    VE, VE2 = E("VE", 4), 8
    vwork(0, VE)
    a(f"""
    s_waitcnt lgkmcnt(0)
    s_barrier
    s_cmp_lg_u32 s{S_WAVE}, 0
    s_cbranch_scc1 {name}_side
    """)
    stamp(2)
    rread()
    vwork(VE, VE2)
    a(f"""
    s_mul_i32 s{S_T0}, s{S_T}, {SCS}
    s_add_u32 s{S_T0}, s{S_T0}, s{S_SL}
    s_add_u32 s{S_T0}, s{S_T0}, {SCO}
    s_add_u32 s76, s{S_P}, s{S_SL}
    s_add_u32 s77, s{S_P+1}, s{S_SL}
    s_add_u32 s78, s{S_P+2}, s{S_SL}
    """)
    rsum(R)
    a.nops(2)
    a(f"v_mfma_f32_16x16x32_bf16 v[{S+4}:{S+7}], v[{KX+4}:{KX+7}], v[{R}:{R+3}], 0")
    a(f"v_mfma_f32_16x16x32_bf16 v[{S}:{S+3}], v[{KX}:{KX+3}], v[{R}:{R+3}], 0")
    a(f"v_mfma_f32_16x16x32_bf16 v[{S+8}:{S+11}], v[{R}:{R+3}], v[{R}:{R+3}], 0")
    a(f"s_cmp_eq_u32 s{S_STEP}, {nsteps-1}")
    a(f"s_cbranch_scc1 {name}_w0last")
    if E("VF", 0) == 1: vfin()
    else: a.nops(5)
    for i in range(4):
        a(f"v_mov_b32_dpp v{S+i}, v{S+4+i} row_shr:8 row_mask:0xf bank_mask:0xc")
    a(f"""
    v_min_u32 v{S+8}, -2, v{S+8}
    v_min_u32 v{S}, -2, v{S}
    s_mov_b64 exec, s[{S_MMEM}:{S_MMEM+1}]
    buffer_store_dwordx4 v[{S+8}:{S+11}], v{V_OSCM}, {SRD}, s{S_T0} offen {IS}
    s_mov_b64 exec, -1
    buffer_store_dwordx4 v[{S}:{S+3}], v{V_LL}, {SRD}, s{S_T0} offen {IS}
    """)
    stamp(3)

    def p2ld():
        if E("P2K", 1):
            a(f"s_mov_b64 exec, s[{S_MMEM}:{S_MMEM+1}]")
            for p, so in enumerate((76, 77, 78)):
                a(f"buffer_load_dwordx4 v[{PL+8*p+4}:{PL+8*p+7}], v{V_OSCM}, {SRD}, s{so} offen sc1")
            a("s_mov_b64 exec, -1")
            for p, so in enumerate((76, 77, 78)):
                a(f"buffer_load_dwordx4 v[{PL+8*p}:{PL+8*p+3}], v{V_LL}, {SRD}, s{so} offen sc1")
            return
        for p, so in enumerate((76, 77, 78)):
            a(f"buffer_load_dwordx4 v[{PL+8*p}:{PL+8*p+3}], v{V_LL}, {SRD}, s{so} offen sc1")
            a(f"buffer_load_dwordx4 v[{PL+8*p+4}:{PL+8*p+7}], v{V_OSCM}, {SRD}, s{so} offen sc1")
    P2M = E("P2M", 0)
    if E("VF", 0) == 0: vfin()
    def p2fill():
        zero(AO, 8)
        for i in range(4):
            a(f"v_cndmask_b32 v{S+4+i}, v{V_NEG}, v{S+8+i}, s[{S_MMEM}:{S_MMEM+1}]")
    def p2scale():
        for i in range(0, 8, 2):
            a(f"v_pk_mul_f32 v[{S+i}:{S+i+1}], v[{S+i}:{S+i+1}], s[{S_C}:{S_C+1}] op_sel_hi:[1,0]")
    assert P2M == 0
    if P2M == 0:
        a("s_waitcnt lgkmcnt(0)\ns_barrier")
        p2fill()
        p2ld()
        p2scale()
        if DA & 1: lzero(0)
        a(f"s_lshl_b32 s89, s{S_TAG}, 31\ns_or_b32 s89, s89, 0x3b39999a")
        a.nops(18)
        p2ld()
    elif P2M == 1:
        if E("W2A", 0): a.nops(E("W2A", 0))
        p2ld()
        a("s_waitcnt lgkmcnt(0)\ns_barrier")
        p2fill()
        if E("W2", 0): a.nops(E("W2", 0))
        p2ld()
    elif P2M == 2:
        p2fill()
        p2ld()
        a("s_waitcnt lgkmcnt(0)\ns_barrier")
        if E("W2", 0): a.nops(E("W2", 0))
        p2ld()
    else:
        if E("W2A", 0): a.nops(E("W2A", 0))
        p2ld()
        a("s_waitcnt lgkmcnt(0)\ns_barrier")
        p2fill()
        for r in range(P2M - 1):
            p2ld()
            if r + 2 < P2M: a.nops(E("W2", 16))
    assert TAG
    stamp(4)
    a.label(f"{name}_p2")
    a(f"s_waitcnt vmcnt({6 * (max(P2M, 2) - 1)})")
    a(f"v_max3_u32 v{V_T0}, v{PL}, v{PL+4}, v{PL+8}")
    a(f"v_max3_u32 v{V_T1}, v{PL+12}, v{PL+16}, v{PL+20}")
    a(f"v_max_u32 v{V_T0}, v{V_T0}, v{V_T1}")
    a(f"v_cmp_eq_u32 vcc, -1, v{V_T0}")
    a(f"s_cbranch_vccnz {name}_p2r")
    stamp(5)
    a.nops(E("RSLOW", 0))
    BP = E("BP", 1)
    def b2b():
        a("s_barrier")
        a(f"ds_read2_b64 v[{VM}:{VM+3}], v{V_LVR} offset0:0 offset1:32")
    if BP == 0: b2b()
    for o in (4, 6, 0, 2):
        a(f"v_pk_add_f32 v[{RP+o}:{RP+o+1}], v[{PL+8+o}:{PL+8+o+1}], v[{PL+16+o}:{PL+16+o+1}]")
    for o in (4, 6, 0, 2):
        a(f"v_pk_add_f32 v[{RP+o}:{RP+o+1}], v[{RP+o}:{RP+o+1}], v[{PL+o}:{PL+o+1}]")
    for o in (4, 6, 0, 2):
        a(f"v_pk_fma_f32 v[{S+o}:{S+o+1}], v[{RP+o}:{RP+o+1}], s[{S_C}:{S_C+1}], v[{S+o}:{S+o+1}] op_sel_hi:[1,0,1]")
    MX, TM, SM = TMP, TMP + 1, TMP + 2
    a(f"""
    v_max3_f32 v{MX}, v{S}, v{S+1}, v{S+2}
    v_max3_f32 v{TM}, v{S+4}, v{S+5}, v{S+6}
    v_max3_f32 v{MX}, v{MX}, v{S+3}, v{S+7}
    v_max_f32 v{SM}, v{MX}, v{TM}
    """)
    if BP == 1: b2b()
    else: a("s_nop 1")
    a(f"""
    v_max_f32_dpp v{MX}, v{SM}, v{SM} row_ror:8 row_mask:0xf bank_mask:0xf
    v_max_f32_dpp v{TM}, v{SM}, v{SM} row_ror:8 row_mask:0xf bank_mask:0xf
    s_nop 1
    v_permlane16_swap_b32 v{MX}, v{TM}
    s_nop 0
    v_max_f32 v{SM}, v{MX}, v{TM}
    v_max_f32 v{SM+1}, v{MX}, v{TM}
    """)
    if BP == 2: b2b()
    else: a("s_nop 1")
    a(f"""
    v_permlane32_swap_b32 v{SM}, v{SM+1}
    s_nop 0
    v_max_f32 v{MX}, v{SM}, v{SM+1}
    """)
    for i in (4, 6, 0, 2):
        a(f"v_pk_add_f32 v[{S+i}:{S+i+1}], v[{S+i}:{S+i+1}], v[{MX}:{MX+1}] op_sel_hi:[1,0] neg_lo:[0,1] neg_hi:[0,1]")
    for i in (4, 5, 6, 7):
        a(f"v_exp_f32 v{S+i}, v{S+i}")
    a(f"""
    v_exp_f32 v{S}, v{S}
    v_cvt_pk_bf16_f32 v{PM}, v{S+4}, v{S+5}
    v_cvt_pk_bf16_f32 v{PM+1}, v{S+6}, v{S+7}
    v_exp_f32 v{S+1}, v{S+1}
    v_exp_f32 v{S+2}, v{S+2}
    v_mfma_f32_16x16x16_bf16 v[{LS}:{LS+3}], v[{ONE}:{ONE+1}], v[{PM}:{PM+1}], 0
    v_exp_f32 v{S+3}, v{S+3}
    v_cvt_pk_bf16_f32 v{P}, v{S}, v{S+1}
    s_waitcnt lgkmcnt(0)
    v_mfma_f32_16x16x16_bf16 v[{O}:{O+3}], v[{VM}:{VM+1}], v[{PM}:{PM+1}], 0
    v_cvt_pk_bf16_f32 v{P+1}, v{S+2}, v{S+3}
    v_mfma_f32_16x16x16_bf16 v[{O+4}:{O+7}], v[{VM+2}:{VM+3}], v[{PM}:{PM+1}], 0
    v_mov_b32_dpp v{P+2}, v{P} row_ror:8 row_mask:0xf bank_mask:0xf
    v_mov_b32_dpp v{P+3}, v{P+1} row_ror:8 row_mask:0xf bank_mask:0xf
    s_nop 1
    v_mfma_f32_16x16x32_bf16 v[{LS}:{LS+3}], v[{ONE}:{ONE+3}], v[{P}:{P+3}], v[{LS}:{LS+3}]
    v_mfma_f32_16x16x32_bf16 v[{O}:{O+3}], v[{VTX}:{VTX+3}], v[{P}:{P+3}], v[{O}:{O+3}]
    v_mfma_f32_16x16x32_bf16 v[{O+4}:{O+7}], v[{VTX+4}:{VTX+7}], v[{P}:{P+3}], v[{O+4}:{O+7}]
    s_add_u32 s{S_T1}, s{S_SL}, {OXO}
    s_nop 4
    v_rcp_f32 v{SM}, v{LS}
    s_nop 0
    """)
    for i in range(0, 8, 2):
        a(f"v_pk_mul_f32 v[{O+i}:{O+i+1}], v[{O+i}:{O+i+1}], v[{SM}:{SM+1}] op_sel_hi:[1,0]")
    for i in range(4):
        a(f"v_cvt_pk_bf16_f32 v{P+i}, v{O+2*i}, v{O+2*i+1}")
    a(f"""
    v_min_u32 v{P}, -2, v{P}
    s_mov_b64 exec, s[{S_MN8}:{S_MN8+1}]
    buffer_store_dwordx4 v[{P}:{P+3}], v{V_OOP}, {SRD}, s{S_SL} offen {IS}
    s_mov_b64 exec, -1
    """)
    NB3, NB5 = E("NB3", 0), E("NB5", 0)
    if NB3:
        stamp(6)
        if E("W3", 16): a("; poll back-off: a too early first poll wastes a whole 16KB gather round"); a.nops(E("W3", 16))
        a.label(f"{name}_b3")
    else:
        a.label(f"{name}_b3")
        a("s_barrier")
        if E("AL3", -1) >= 0:
            a(".p2align 5")
            for i in range(E("AL3", -1)): a("s_nop 0")
        stamp(6)
        if E("W3", 16): a("; poll back-off: a too early first poll wastes a whole 16KB gather round"); a.nops(E("W3", 16))

    def wc(i):
        for u in range(2):
            smf(AO + 4 * u, MO + 4 * i, A_WO + (u * 4 + i) * 8)
    stubs_c = stream_poll("pc", MO, S_T1, 0, False, wc)
    stamp(7)
    a.nops(8)
    fold(AO, AO + 4)
    wr4(V_LWO, AO, DA & 2)
    a("s_waitcnt lgkmcnt(0)\ns_barrier")
    a(f"s_cmp_lg_u32 s{S_WAVE}, 0\ns_cbranch_scc1 {name}_x1")
    if DA & 2:
        a(f"ds_read_b128 v[{RP}:{RP+3}], v{V_LRO}\ns_waitcnt lgkmcnt(0)")
    else:
        for w in range(4):
            a(f"ds_read_b128 v[{RP+4*w}:{RP+4*w+3}], v{V_LRO} offset:{1152*w}")
        a("s_waitcnt lgkmcnt(2)")
        for i in (0, 2):
            a(f"v_pk_add_f32 v[{RP+i}:{RP+i+1}], v[{RP+i}:{RP+i+1}], v[{RP+4+i}:{RP+4+i+1}]")
        a("s_waitcnt lgkmcnt(0)")
        for i in (0, 2):
            a(f"v_pk_add_f32 v[{RP+8+i}:{RP+8+i+1}], v[{RP+8+i}:{RP+8+i+1}], v[{RP+12+i}:{RP+12+i+1}]")
        for i in (0, 2):
            a(f"v_pk_add_f32 v[{RP+i}:{RP+i+1}], v[{RP+i}:{RP+i+1}], v[{RP+8+i}:{RP+8+i+1}]")
    X4 = 48
    A4 = E("A4", 0)
    B16 = E("B16", 1)
    def p4ld():
        for p in range(3):
            if B16: a(f"buffer_load_dwordx2 v[{X4+2*p}:{X4+2*p+1}], v{25+p}, {SRD}, s{S_XS} offen sc1")
            else: a(f"buffer_load_dwordx4 v[{X4+4*p}:{X4+4*p+3}], v{25+p}, {SRD}, s{S_XS} offen sc1")
    def maxall(regs):
        regs = list(regs)
        h = len(regs) // 2
        for t, rs in ((V_T0, regs[:h]), (V_T1, regs[h:])):
            a(f"v_max3_u32 v{t}, v{rs[0]}, v{rs[1]}, v{rs[2]}")
        k = 3
        while k < h:
            for t, rs in ((V_T0, regs[:h]), (V_T1, regs[h:])):
                if k + 1 < h: a(f"v_max3_u32 v{t}, v{t}, v{rs[k]}, v{rs[k+1]}")
                else: a(f"v_max_u32 v{t}, v{t}, v{rs[k]}")
            k += 2
        a(f"v_max_u32 v{V_T0}, v{V_T0}, v{V_T1}")
        a(f"v_cmp_eq_u32 vcc, -1, v{V_T0}")
    if TAG:
        if B16:
            a(f"""
            v_fma_f32 v{P}, v{RP}, s89, v{RP}
            v_cvt_pk_bf16_f32 v{P+1}, v{RP+2}, v{RP+3}
            v_cvt_pk_bf16_f32 v{P}, v{P}, v{RP+1}
            v_and_or_b32 v{P}, v{P}, -2, s{S_TAG}
            buffer_store_dwordx2 v[{P}:{P+1}], v{V_OXW}, {SRD}, s{S_XS} offen sc1
            s_mov_b32 s77, 0x3f80
            s_mov_b32 s78, 0x3f800000
            """)
        for i in range(0 if B16 else 4):
            a(f"v_and_or_b32 v{RP+i}, v{RP+i}, -2, s{S_TAG}")
        if E("HALF", 0): a(f"s_mov_b64 exec, {hex((1 << E('HALF', 0)) - 1)}")
        if E("COPY3", 0):
            for p in range(3):
                a(f"s_add_u32 s76, s{S_XS}, {WS_XU - WS_H + p * 4 * MB}")
                a(f"buffer_store_dwordx4 v[{RP}:{RP+3}], v{V_OXW}, {SRD}, s76 offen sc1")
        elif not B16:
            a(f"buffer_store_dwordx4 v[{RP}:{RP+3}], v{V_OXW}, {SRD}, s{S_XS} offen sc1")
        stamp(8)
        a(f"s_xor_b32 s76, s{S_TAG}, 1")
        for i in (range(0, 6, 2) if B16 else range(12)):
            a(f"v_mov_b32 v{X4+i}, s76")
        if DA & 2: lzero(1)
        if B16: a.nops(9)
        if E("HALF", 0): a("s_mov_b64 exec, -1")
        zero(AQ, 24)
        if E("HALF", 0): a(f"s_mov_b64 exec, {hex((1 << E('HALF', 0)) - 1)}")
        if E("XW", 24): a("; poll back-off until the partners' stores can be visible"); a.nops(E("XW", 24))
        stamp(11)
        a(f"s_cmp_eq_u32 s{S_TAG}, 1\ns_cbranch_scc1 {name}_p4_1")
        def fin4():
            stamp(9)
            if B16:
                for p in range(3):
                    for i in range(4):
                        a(f"v_dot2_f32_bf16 v{RP+i}, v{X4+2*p+(i>>1)}, s{77+(i&1)}, v{RP+i}")
                a("s_nop 0")
            for i in (() if B16 else (0, 2)):
                a(f"v_pk_add_f32 v[{RP+i}:{RP+i+1}], v[{RP+i}:{RP+i+1}], v[{X4+i}:{X4+i+1}]")
                a(f"v_pk_add_f32 v[{RP+4+i}:{RP+4+i+1}], v[{X4+4+i}:{X4+4+i+1}], v[{X4+8+i}:{X4+8+i+1}]")
            for i in (() if B16 else (0, 2)):
                a(f"v_pk_add_f32 v[{RP+i}:{RP+i+1}], v[{RP+i}:{RP+i+1}], v[{RP+4+i}:{RP+4+i+1}]")
            a(f"""
            v_cvt_pk_bf16_f32 v{P}, v{RP}, v{RP+1}
            v_min_u32 v{P}, -2, v{P}
            v_cvt_pk_bf16_f32 v{P+1}, v{RP+2}, v{RP+3}
            buffer_store_dwordx2 v[{P}:{P+1}], v{V_OPUB}, {SRD}, s{S_SLO} offen {IS}
            """)
        R4 = E("R4", 1)
        for tg in range(2):
            if E("AL4", 6): a(f".p2align {E('AL4', 6)}")
            a.label(f"{name}_p4_{tg}")
            wdog()
            p4ld()
            a(f"s_waitcnt vmcnt({E('Q4', 12)})")
            a.nops(A4)
            bo = "0xfe" if tg == 0 else "0x80"
            if R4 > 1: a(f"s_mov_b32 s76, {R4}")
            a.label(f"{name}_p4c_{tg}")
            if R4 > 1: a(f"s_sub_u32 s76, s76, 1\ns_cbranch_scc1 {name}_p4_{tg}")
            if B16:
                a(f"v_bitop3_b32 v{V_T0}, v{X4}, v{X4+2}, v{X4+4} bitop3:{bo}")
                a(f"v_and_b32 v{V_T0}, 1, v{V_T0}")
            else:
                for t, b in ((V_T0, X4), (V_T1, X4 + 6)):
                    a(f"v_bitop3_b32 v{t}, v{b}, v{b+1}, v{b+2} bitop3:{bo}")
                for t, b in ((V_T0, X4), (V_T1, X4 + 6)):
                    a(f"v_bitop3_b32 v{t}, v{t}, v{b+3}, v{b+4} bitop3:{bo}")
                a(f"v_bitop3_b32 v{V_T0}, v{V_T0}, v{X4+5}, v{X4+11} bitop3:{bo}")
            if not B16: a(f"v_bitop3_b32 v{V_T0}, v{V_T0}, v{V_T1}, 1 bitop3:{'0xa8' if tg == 0 else '0x80'}")
            a(f"v_cmp_ne_u32 vcc, {tg}, v{V_T0}")
            a(f"s_cbranch_vccnz {name}_p4{'c' if R4 > 1 else ''}_{tg}")
            fin4()
            if tg == 0: a(f"s_branch {name}_p4d")
        a.label(f"{name}_p4d")
    if E("LT", 0):
        a(f"s_cmp_eq_u32 s{S_STEP}, 8\ns_cbranch_scc0 {name}_lt\ns_memtime s[50:51]\ns_memrealtime s[52:53]")
        a.label(f"{name}_lt")
    a.label(f"{name}_b5")
    a(f"""
    s_add_u32 s{S_STEP}, s{S_STEP}, 1
    s_add_u32 s{S_XBR}, s{S_XBR}, 4096
    s_cmp_eq_u32 s{S_XBR}, {L_XB + 3 * 4096}
    s_cselect_b32 s{S_XBR}, {L_XB}, s{S_XBR}
    s_mov_b32 s{S_T0}, s{S_SL}
    s_mov_b32 s{S_SL}, s{S_SLO}
    s_mov_b32 s{S_SLO}, s{S_T0}
    {f"s_xor_b32 s{S_XS}, s{S_XS}, {1 << 18}" if TAG else ""}
    {f"s_bfe_u32 s{S_TAG}, s{S_STEP}, 0x10001" if TAG else ""}
    {"" if NB5 else "s_barrier"}
    """)
    stamp(10)
    if E("W1", 16): a("; poll back-off: a too early first poll wastes a whole 16KB gather round"); a.nops(E("W1", 16))
    a(f"s_branch {name}_loop")
    a.label(f"{name}_x1")
    stamp(11)
    if not E("NOKVM", 0):
        a(f"s_cmp_eq_u32 s{S_WAVE}, 1\ns_cbranch_scc0 {name}_x2\ns_add_u32 s76, s{S_STEP}, 1")
        if E("FLM", 0):
            a(f"s_and_b32 s77, s76, {E('FLM', 0)}\ns_cmp_ge_u32 s76, {E('FLE', 54)}\ns_cselect_b32 s77, 0, s77\ns_cmp_eq_u32 s77, 0\ns_cbranch_scc0 {name}_x2")
        if E("FLD", 6): a(f"; helper wave only: keep this store behind wave 0's cross-XCD store in the CU's in-order memory queue\ns_sleep {E('FLD', 6)}")
        flag_store(76)
        a.label(f"{name}_x2")
    a(f"""
    s_cmp_eq_u32 s{S_WAVE}, 3
    s_cbranch_scc0 {name}_x4
    s_cmp_eq_u32 s{S_LATE}, 1
    s_cbranch_scc0 {name}_x5
    s_add_u32 s76, s{S_STEP}, 1
    """)
    prefetch(76, 3)
    a(f"""
    s_waitcnt vmcnt(0)
{name}_x5:
    """)
    if E("VPD", 0): a(f"s_sleep {E('VPD', 0)}")
    if flags:
        a(f"""
        s_add_u32 s76, s{S_STEP}, 4
        s_min_u32 s76, s76, 63
        s_cmp_gt_i32 s{S_KVN}, s76
        s_cbranch_scc1 {name}_x6
        v_mov_b32 v249, 0
        s_mov_b64 exec, 3
        buffer_atomic_add v249, v{V_OFL}, {SRD}, 0 offen sc0 sc1
        s_mov_b64 exec, -1
{name}_x6:
        """)
    a(f"""
    """)
    if not E("PB1", 1): a(f"""
    buffer_store_dwordx2 v[{V_POI}:{V_POI+1}], v{V_OPUB}, {SRD}, s{S_SL} offen {IS}
    s_mul_i32 s{S_T0}, s{S_T}, {SCS}
    s_add_u32 s{S_T0}, s{S_T0}, s{S_SL}
    s_add_u32 s{S_T0}, s{S_T0}, {SCO}
    buffer_store_dwordx4 v[{V_POI}:{V_POI+3}], v{V_LL}, {SRD}, s{S_T0} offen {IS}
    buffer_store_dwordx4 v[{V_POI}:{V_POI+3}], v{V_OSCM}, {SRD}, s{S_T0} offen {IS}
    """)
    a(f"""
    s_add_u32 s76, s{S_STEP}, 2
    s_cmp_lt_u32 s76, {nsteps-1}
    s_cbranch_scc0 {name}_x4
    {f"s_cmp_gt_i32 s{S_KVN}, s76" if flags else ""}
    s_cbranch_scc0 {name}_x4
    """)
    if not E("NOPF", 0) and not E("VPOS", 0):
        prefetch(76, -1, False)
    a.label(f"{name}_x4")
    zero(AQ, 24)
    if NB5: a(f"s_sleep {NB5}")
    a(f"s_branch {name}_b5")
    a.label(f"{name}_p2r")
    if prof: a("s_add_u32 s65, s65, 1")
    wdog()
    p2ld()
    a(f"s_branch {name}_p2")
    stubs_a()
    stubs_c()
    a.label(f"{name}_w0last")
    if E("LT", 0):
        a(f"""
        s_memtime s[54:55]
        s_memrealtime s[56:57]
        s_waitcnt lgkmcnt(0)
        s_sub_u32 s54, s54, s50
        s_sub_u32 s56, s56, s52
        v_mov_b32 v250, s54
        v_mov_b32 v251, s56
        s_lshl_b32 s80, s{S_CU}, 3
        s_add_u32 s80, s80, {WS_PROF + 14 * MB}
        buffer_store_dwordx2 v[250:251], v{ZER}, {SRD}, s80 offen
        """)
    a.nops(8)
    vfin()
    a("s_waitcnt lgkmcnt(0)\ns_barrier")
    a(f"s_branch {name}_end")
    a.label(f"{name}_side")
    if E("SV", 0): vwork(VE, 8)
    a(f"""
    s_cmp_eq_u32 s{S_WAVE}, 3
    s_cbranch_scc1 {name}_sd3
    s_cmp_eq_u32 s{S_WAVE}, 2
    s_cbranch_scc0 {name}_sd4
    s_mov_b64 exec, s[{S_MN8}:{S_MN8+1}]
    buffer_store_dwordx4 v[{V_POI}:{V_POI+3}], v{V_OOP}, {SRD}, s{S_SLO} offen {IS}
    s_mov_b64 exec, -1
    """)
    if E("PB1", 1): a(f"""
    buffer_store_dwordx2 v[{V_POI}:{V_POI+1}], v{V_OPUB}, {SRD}, s{S_SLO} offen {IS}
    s_mul_i32 s{S_T0}, s{S_T}, {SCS}
    s_add_u32 s{S_T0}, s{S_T0}, s{S_SLO}
    s_add_u32 s{S_T0}, s{S_T0}, {SCO}
    buffer_store_dwordx4 v[{V_POI}:{V_POI+3}], v{V_LL}, {SRD}, s{S_T0} offen {IS}
    buffer_store_dwordx4 v[{V_POI}:{V_POI+3}], v{V_OSCM}, {SRD}, s{S_T0} offen {IS}
    """)
    a(f"""
    s_branch {name}_sd4
{name}_sd3:
    v_readlane_b32 s76, v249, 0
    v_readlane_b32 s77, v249, 1
    s_min_i32 s76, s76, s77
    s_max_i32 s{S_KVN}, s{S_KVN}, s76
    s_mov_b32 s{S_LATE}, 0
    s_add_u32 s76, s{S_STEP}, 1
    s_cmp_lt_u32 s76, {nsteps-1}
    s_cbranch_scc0 {name}_sd4
    s_cmp_ge_u32 s76, {NSELF}
    s_cbranch_scc0 {name}_sd4
    {(f"s_cmp_eq_u32 s{S_WARM}, s76" if E("WARM", 0) else f"s_cmp_gt_i32 s{S_KVN}, s76") if flags else ""}
    s_cselect_b32 s{S_LATE}, 0, 1
    s_cbranch_scc0 {name}_sd4
    """)
    if not E("NOPF", 0): prefetch(76, 3, False)
    a.label(f"{name}_sd4")
    if not E("SV", 0): vwork(VE, 8)
    a.nops(8)
    vfin()
    zero(AO, 8)
    if not E("K2", 0):
        a(f"""
        s_cmp_eq_u32 s{S_WAVE}, 1
        s_cbranch_scc0 {name}_s1
        s_waitcnt lgkmcnt(0)
        """)
        rread()
        rsum(KVH)
        a.label(f"{name}_s1")
    a(f"""
    v_add_u32 v{V_T1}, {L_VP}, v{V_LL}
    s_waitcnt lgkmcnt(0)
    s_barrier
    s_cmp_eq_u32 s{S_WAVE}, 2
    s_cbranch_scc1 {name}_s2
    """)
    if E("K2", 0):
        a(f"s_cmp_eq_u32 s{S_WAVE}, 1\ns_cbranch_scc0 {name}_s1")
        rread()
        rsum(KVH)
        a(f"s_branch {name}_s3")
        a.label(f"{name}_s1")
    if E("KPF", 1) and not E("NOPF", 0):
        a(f"""
        s_cmp_eq_u32 s{S_WAVE}, 3
        s_cbranch_scc0 {name}_s3
        s_add_u32 s76, s{S_STEP}, 2
        s_cmp_lt_u32 s76, {nsteps-1}
        s_cbranch_scc0 {name}_s3
        {f"s_cmp_gt_i32 s{S_KVN}, s76" if flags else ""}
        s_cbranch_scc0 {name}_s3
        """)
        prefetch(76, 0, False)
        a(f"s_mov_b32 s88, s76")
    a(f"s_branch {name}_s3")
    a.label(f"{name}_s2")
    for w in range(4):
        a(f"ds_read_b128 v[{RP+4*w}:{RP+4*w+3}], v{V_T1} offset:{1024*w}")
    a(f"v_lshrrev_b32 v{V_T1}, 1, v{V_LL}")
    a("s_waitcnt lgkmcnt(2)")
    for i in (0, 2):
        a(f"v_pk_add_f32 v[{RP+i}:{RP+i+1}], v[{RP+i}:{RP+i+1}], v[{RP+4+i}:{RP+4+i+1}]")
    a("s_waitcnt lgkmcnt(0)")
    for i in (0, 2):
        a(f"v_pk_add_f32 v[{RP+8+i}:{RP+8+i+1}], v[{RP+8+i}:{RP+8+i+1}], v[{RP+12+i}:{RP+12+i+1}]")
    for i in (0, 2):
        a(f"v_pk_add_f32 v[{RP+i}:{RP+i+1}], v[{RP+i}:{RP+i+1}], v[{RP+8+i}:{RP+8+i+1}]")
    a(f"v_cvt_pk_bf16_f32 v{KVH}, v{RP}, v{RP+1}")
    a(f"v_cvt_pk_bf16_f32 v{KVH+1}, v{RP+2}, v{RP+3}")
    a(f"ds_write_b64 v{V_T1}, v[{KVH}:{KVH+1}] offset:{L_VM}")
    a("s_waitcnt lgkmcnt(0) vmcnt(0)")
    a.label(f"{name}_s3")
    a(f"""
    s_cmp_eq_u32 s{S_STEP}, {nsteps-1}
    s_cbranch_scc1 {name}_slast
    s_add_u32 s{S_T1}, s{S_SL}, {OXO}
    s_barrier
    """)

    def kv_pub(tag):
        if tag == "b" and flags and E("LASTD", 0):
            klast(a, S_T0, S_H)
            a(f"s_lshl_b32 s77, s{S_J}, 10\ns_add_u32 s{S_T0}, s{S_T0}, s77\nv_min_u32 v{KVH}, -2, v{KVH}")
        else: a(f"""
        s_add_u32 s77, s{S_STEP}, s{S_CU}
        s_bfe_u32 s{S_T0}, s77, 0x30003
        s_lshl_b32 s{S_T0}, s{S_T0}, 14
        s_and_b32 s77, s77, 7
        s_lshl_b32 s77, s77, 10
        s_add_u32 s{S_T0}, s{S_T0}, s77
        s_add_u32 s{S_T0}, s{S_T0}, s{S_KVB}
        """)
        if tag == "a" and flags and E("LASTD", 0) == 2:
            a(f"s_cmp_eq_u32 s{S_STEP}, {nsteps-2}\ns_cselect_b32 s{S_T0}, s88, s{S_T0}\nv_min_u32 v{KVH}, -2, v{KVH}")
        a(f"""
        s_cmp_eq_u32 s{S_WAVE}, 2
        s_cbranch_scc1 {name}_kv2{tag}
        s_mov_b64 exec, s[{S_MKM}:{S_MKM+1}]
        buffer_store_dwordx4 v[{KVH}:{KVH+3}], v{V_OKV}, {SRD}, s{S_T0} offen sc1
        s_mov_b64 exec, -1
        s_branch {name}_kvd{tag}
{name}_kv2{tag}:
        v_lshlrev_b32 v{V_T0}, 3, v{V_L}
        buffer_store_dwordx2 v[{KVH}:{KVH+1}], v{V_T0}, {SRD}, s{S_T0} offen offset:512 sc1
{name}_kvd{tag}:
        """)
    a(f"s_cmp_eq_u32 s{S_WAVE}, 3\ns_cbranch_scc1 {name}_y3")
    if not E("NOKVM", 0):
        kv_pub("a")
    a(f"s_branch {name}_y4")
    a.label(f"{name}_y3")
    if not TAG:
        a(f"s_add_u32 s76, s{S_STEP}, 2\ns_and_b32 s76, s76, 63")
        xuoff(S_XS, 76)
        a(f"s_cmp_lt_u32 s76, 2\ns_cbranch_scc1 {name}_y4")
        a(f"buffer_store_dwordx4 v[{V_POI}:{V_POI+3}], v{V_OXW}, {SRD}, s{S_XS} offen sc1")
    a(f"""
    s_add_u32 s76, s{S_STEP}, 2
    s_cmp_lt_u32 s76, {nsteps-1}
    s_cbranch_scc0 {name}_y4
    """)
    if E("VPOS", 0):
        a(f"s_cmp_eq_u32 s88, s76\ns_cbranch_scc0 {name}_y4")
        prefetch(76, -1, False)
    if not E("NOPF", 0):
        if E("KPF", 1):
            if not E("RF4", 1):
                a(f"s_add_u32 s76, s{S_STEP}, 3")
                prefetch(76, None, skip=f"{name}_y4")
        else:
            prefetch(76, 0, skip=f"{name}_y4")
    a.label(f"{name}_y4")
    if NB3: a(f"s_sleep {NB3}")
    a(f"s_branch {name}_b3")
    a.label(f"{name}_first")
    xread()
    a(f"s_branch {name}_adone")
    a.label(f"{name}_slast")
    a(f"s_cmp_eq_u32 s{S_WAVE}, 3\ns_cbranch_scc1 {name}_end")
    kv_pub("b")
    if not (flags and E("LASTD", 0)):
        a(f"s_waitcnt vmcnt(0)\ns_barrier\ns_mov_b32 s76, {nsteps}\ns_cmp_eq_u32 s{S_WAVE}, 1\ns_cbranch_scc0 {name}_end")
        flag_store(76)
    if E("IW", 2):
        i0 = a.lines.index(f"{name}_loop:")
        import align8
        body = a.lines[i0:]
        sz = align8.sizes([l.split(";")[0].strip() for l in body])
        out, pos, lastl, links = [], 0, -1000, []
        for l in body:
            c = l.split(";")[0].strip()
            far = pos - lastl >= E("IWD", 48)
            if c.startswith("s_nop") and far and (E("IW", 2) == 1 or (E("IW", 2) == 3 and int(c.split()[1]) >= 9)):
                k = int(c.split()[1])
                links.append(len(out)); out.append("X"); lastl = pos
                if k: out.append(f"s_nop {k-1}"); pos += 4
                pos += 4
                continue
            out.append(l)
            if c.startswith(".p2align"):
                al = 1 << int(c.split()[1]); pos = (pos + al - 1) // al * al
            elif align8.is_inst(c):
                pos += sz[c]
                if c.startswith("s_branch") and far:
                    links.append(len(out)); out.append("X"); lastl = pos; pos += 4
        per = (len(links) + 3) // 4
        for n, i in enumerate(links):
            tgt = f"{name}_iwd" if (n + 1) % per == 0 or n + 1 == len(links) else f"{name}_il{n+1}"
            ent = f"{name}_iw{n // per}:\n" if n % per == 0 else ""
            out[i] = f"{ent}{name}_il{n}:\ns_cbranch_execz {tgt}"
        if os.environ.get("WV"): print("links", len(links), "bytes", pos)
        a.lines[i0:] = "\n".join(out).split("\n")
    a.label(f"{name}_end")
    if E("FIXT", 0):
        a(f"""
        s_memrealtime s[50:51]
        s_waitcnt lgkmcnt(0)
        s_sub_u32 s52, s50, s100
        s_mul_i32 s52, s52, {E("FIXM", 0)}
        s_add_u32 s52, s52, {E("FIXT", 0)}
{name}_fx:
        s_memrealtime s[50:51]
        s_waitcnt lgkmcnt(0)
        s_sub_u32 s50, s50, s100
        s_cmp_lt_u32 s50, s52
        s_cbranch_scc1 {name}_fx
        """)
    if ts: ts(4)
    if prof:
        a(f"""
        s_lshl_b32 s{S_T0}, s{S_X}, 5
        s_add_u32 s{S_T0}, s{S_T0}, s{S_T}
        s_lshl_b32 s{S_T0}, s{S_T0}, 2
        s_add_u32 s{S_T0}, s{S_T0}, s{S_WAVE}
        s_lshl_b32 s{S_T0}, s{S_T0}, 6
        s_add_u32 s{S_T0}, s{S_T0}, {WS_PROF}
        v_mov_b32 v{V_T1}, 0
        s_mov_b64 exec, 1
        """)
        for i in range(16):
            a(f"v_mov_b32 v{V_T0}, s{50+i}")
            a(f"buffer_store_dword v{V_T0}, v{V_T1}, {SRD}, s{S_T0} offen offset:{4*i}")
            a("s_nop 1")
    a("s_endpgm")


def gen_rec_standalone(a: Asm, name, prof=False, force_slow=False):
    a.kernel_begin(name)
    a(f"s_cmp_ge_u32 s2, 256\ns_cbranch_scc1 {name}_exit")
    start_code(a, name)
    a(f"""
    s_sub_u32 s40, s90, 6
    s_lshl_b32 s40, s40, 5
    s_add_u32 s40, s40, s96
    s_cmp_lt_u32 s90, 4
    s_cbranch_scc0 {name}_oth
    s_mov_b32 s{S_X}, s90
    s_mov_b32 s{S_T}, s96
    """)
    rec_body(a, name + "_f", "", lambda vt, pre=False: sync_code(a, name, "r", vt, pre=pre), prof=prof, flags=False)
    a.label(f"{name}_oth")
    a(f"s_cmp_lt_u32 s40, {NI}\ns_cbranch_scc0 {name}_exit")
    init_cd(a, name, 40)
    a.label(f"{name}_slowent")
    a.label(f"{name}_exit")
    a("s_endpgm")
    return kd(name, 512, sgpr=102, accum=256)


if __name__ == "__main__":
    import sys
    a = Asm()
    name = "rec_kernel"
    k = gen_rec_standalone(a, name, prof=("prof" in sys.argv), force_slow=("slow" in sys.argv))
    out = HEADER + f"; @launch kernel={name} grid=(256,1,1) block=(256,1,1) lds=163840\n"
    out += '.amdgcn_target "amdgcn-amd-amdhsa--gfx950"\n.text\n' + a.text() + '.section .rodata,"a"\n' + k
    open(os.environ.get("OUT", "rec.s"), "w").write(out)
```

```python
from gen_common import *

S_X, S_T = 30, 31
S_WSD, S_DBG = 84, 72
E = lambda k, d: int(os.environ.get(k, d))


D_VOTE, D_PD, D_SLOW, D_PD2 = 128, 160, 192, 224
CL_ = [0, 1, 2, 3, 9, 11, 13, 15] if E('T2L', 0) else list(range(8))
NI = E('NI', 32)


def start_code(a: Asm, name):
    W, D = S_WSD, S_DBG
    a(f"""
    s_load_dwordx2 s[{W}:{W+1}], s[0:1], {KA_WS}
    s_load_dwordx2 s[{D}:{D+1}], s[0:1], {KA_DBG}
    s_getreg_b32 s90, hwreg(HW_REG_XCC_ID)
    s_and_b32 s90, s90, {E('FAKE', 7)}
    {'s_or_b32 s90, s90, ' + os.environ['FAKO'] if 'FAKO' in os.environ else ''}
    v_mov_b32 v1, 0
    v_mov_b32 v2, 1
    s_lshl_b32 s91, s90, 2
    s_lshr_b32 s91, {sum(v << (4 * i) for i, v in enumerate(CL_))}, s91
    s_and_b32 s91, s91, 15
    s_lshl_b32 s91, s91, 4
    s_mov_b32 s95, 0
    s_mov_b32 s99, 0
    s_waitcnt lgkmcnt(0)
    s_mov_b32 s{W+2}, {WS_BYTES}
    s_mov_b32 s{W+3}, 0x00020000
    s_mov_b32 s{D+2}, 256
    s_mov_b32 s{D+3}, 0x00020000
    v_cmp_eq_u32 vcc, 0, v0
    s_and_saveexec_b64 s[88:89], vcc
    s_cbranch_execz {name}_tkd
    s_lshl_b32 s92, s2, 13
    s_add_u32 s92, s92, {WS_CAL}
    buffer_atomic_add v2, v1, s[{D}:{D+3}], s91 offen sc0
    buffer_load_dword v251, v1, s[{W}:{W+3}], s92 offen offset:2048 sc1
    s_waitcnt vmcnt(1)
    ds_write_b32 v1, v2
    s_waitcnt lgkmcnt(0)
{name}_tkd:
    s_mov_b64 exec, s[88:89]
    s_barrier
    ds_read_b32 v2, v1
    s_waitcnt lgkmcnt(0)
    v_readfirstlane_b32 s96, v2
    s_barrier
    """)


def klast(a: Asm, dst, h, add=0, far=1):
    a(f"""
    s_lshr_b32 s{dst}, s{h}, 2
    s_lshl_b32 s{dst}, s{dst}, 17
    s_and_b32 s77, s{h}, 2
    s_lshl_b32 s77, s77, 13
    s_add_u32 s{dst}, s{dst}, s77
    s_and_b32 s77, s{h}, 1
    s_lshl_b32 s77, s77, 12
    s_add_u32 s{dst}, s{dst}, s77
    s_xor_b32 s77, s98, {far}
    s_lshl_b32 s77, s77, 13
    s_add_u32 s{dst}, s{dst}, s77
    s_add_u32 s{dst}, s{dst}, {WS_I + 98304 + add}
    """)


def sync_issue(a: Asm, vt):
    a(f"""
    v_and_b32 v{vt+1}, 15, v0
    v_lshlrev_b32 v{vt+1}, 4, v{vt+1}
    buffer_load_dword v{vt}, v{vt+1}, s[{S_DBG}:{S_DBG+3}], 0 offen sc1
    """)


def sync_code(a: Asm, kname, tag, vt, force_slow=False, pre=False):
    D = S_DBG
    n = f"{kname}_sy{tag}"
    a(f"""
    v_and_b32 v{vt+1}, 15, v0
    v_lshlrev_b32 v{vt+1}, 4, v{vt+1}
    s_branch {n}{"p" if pre else ""}
{n}w:
    s_sleep 4
{n}:
    """)
    wd_code(a, n)
    a(f"""
    buffer_load_dword v{vt}, v{vt+1}, s[{D}:{D+3}], 0 offen sc1
    s_waitcnt vmcnt(0)
{n}p:
    s_cmp_eq_u32 s95, 1
    s_cbranch_scc0 {n}f
    v_readlane_b32 s76, v{vt}, {D_PD2 // 16}
    s_mov_b32 s98, 0
    s_cmp_eq_u32 s76, {NI}
    s_cbranch_scc0 {n}w
    s_branch {n}d
{n}f:
    s_mov_b32 s77, 0
    s_mov_b32 s78, 0
    """)
    for i in range(8):
        a(f"v_readlane_b32 s76, v{vt}, {CL_[i]}\ns_add_u32 s77, s77, s76\ns_xor_b32 s76, s76, 32\ns_or_b32 s78, s78, s76")
    a(f"""
    s_cmp_eq_u32 s77, 256
    s_cbranch_scc0 {n}w
    {"s_mov_b32 s78, 1" if force_slow else ""}
    v_mov_b32 v252, v{vt}
    s_cmp_eq_u32 s78, 0
    s_cbranch_scc0 {kname}_slowent
    v_readlane_b32 s76, v{vt}, {D_PD // 16}
    v_readlane_b32 s77, v{vt}, {D_VOTE // 16}
    s_cmp_eq_u32 s76, {NI}
    s_cbranch_scc0 {n}w
    s_cmp_gt_u32 s77, {NI // 2}
    s_cselect_b32 s98, 1, 0
    {f"s_xor_b32 s98, s98, {os.environ['PAR']}" if "PAR" in os.environ else ""}
{n}d:
    """)


def slow_entry(a: Asm, name):
    D = S_DBG
    a.label(f"{name}_slowent")
    a(f"""
    s_mov_b64 exec, -1
    s_waitcnt vmcnt(0) lgkmcnt(0)
    s_barrier
    s_mov_b32 s97, s96
    """)
    for i in range(7):
        a(f"v_readlane_b32 s76, v252, {CL_[i]}\ns_cmp_gt_u32 s90, {i}\ns_cselect_b32 s76, s76, 0\ns_add_u32 s97, s97, s76")
    a(f"""
    v_mov_b32 v1, 0
    v_mov_b32 v2, 1
    v_cmp_eq_u32 vcc, 0, v0
    s_and_saveexec_b64 s[88:89], vcc
    s_cbranch_execz {name}_sb1
    buffer_atomic_add v2, v1, s[{D}:{D+3}], 0 offen offset:{D_SLOW} sc1
{name}_sb1:
    s_mov_b64 exec, s[88:89]
{name}_sb2:
    s_sleep 4
    """)
    wd_code(a, "slowbar")
    a(f"""
    buffer_load_dword v2, v1, s[{D}:{D+3}], 0 offen offset:{D_SLOW} sc1
    s_waitcnt vmcnt(0)
    v_cmp_ne_u32 vcc, 256, v2
    s_cbranch_vccnz {name}_sb2
    s_mov_b32 s95, 1
    """)


def init_cd(a: Asm, name, idx):
    W, D = S_WSD, S_DBG
    a(f"""
    v_mov_b32 v8, -1
    v_mov_b32 v9, -1
    v_mov_b32 v10, -1
    v_mov_b32 v11, -1
    v_lshlrev_b32 v1, 4, v0
    v_mov_b32 v2, 0
    v_cmp_gt_u32 vcc, 64, v0
    s_cbranch_vccz {name}_nv
    s_cmp_eq_u32 s95, 0
    s_cbranch_scc0 {name}_nv
    ; latency samples of both parities (order alternates with idx), sign vote
    s_lshr_b32 s60, s2, 1
    s_lshl_b32 s60, s60, 14
    s_and_b32 s61, s{idx}, 1
    s_lshl_b32 s66, s61, 13
    s_add_u32 s60, s60, s66
    s_and_b32 s66, s2, 1
    s_lshl_b32 s66, s66, 10
    s_add_u32 s60, s60, s66
    s_add_u32 s60, s60, {WS_CAL}
    s_mov_b32 s66, 0x7fffffff
    s_mov_b32 s67, 0x7fffffff
    s_mov_b64 exec, 0xff
    s_waitcnt vmcnt(0)
    """)
    for i in range(E("NSAMP", 4)):
        a(f"""
        s_memtime s[62:63]
        s_waitcnt lgkmcnt(0)
        buffer_store_dwordx4 v[8:11], v1, s[{W}:{W+3}], s60 offen offset:{256 * (i >> 1)} sc1
        s_waitcnt vmcnt(0)
        s_memtime s[64:65]
        s_xor_b32 s60, s60, 8192
        s_waitcnt lgkmcnt(0)
        s_sub_u32 s64, s64, s62
        s_min_u32 s{66 + (i & 1)}, s{66 + (i & 1)}, s64
        """)
    a(f"""
    s_cmp_lt_u32 s67, s66
    s_cselect_b32 s60, 1, 0
    s_xor_b32 s60, s60, s61          ; parity that is near this XCD
    s_lshr_b32 s61, s90, 2
    s_xor_b32 s60, s60, s61
    v_mov_b32 v3, s60
    s_mov_b64 exec, 1
    buffer_atomic_add v3, v2, s[{D}:{D+3}], 0 offen offset:{D_VOTE} sc1
    s_mov_b64 exec, -1
{name}_nv:
    s_barrier
    s_lshl_b32 s60, s{idx}, 12
    s_add_u32 s60, s60, {WS_H}
    """)
    for i in range(512 // NI):
        a(f"buffer_store_dwordx4 v[8:11], v1, s[{W}:{W+3}], s60 offen sc1")
        a(f"s_add_u32 s60, s60, {NI * 4096}")
    a(f"""
    s_lshr_b32 s62, s{idx}, 1
    s_and_b32 s63, s{idx}, 1
    s_add_u32 s63, s63, s62
    s_lshl_b32 s62, s62, 19
    s_and_b32 s64, s63, 14
    s_lshl_b32 s64, s64, 13
    s_add_u32 s62, s62, s64
    s_and_b32 s64, s63, 1
    s_lshl_b32 s64, s64, 12
    s_add_u32 s62, s62, s64
    s_add_u32 s62, s62, {WS_XU}
    {"" if E("TAG", 1) else f"buffer_store_dwordx4 v[8:11], v1, s[{W}:{W+3}], s62 offen sc1"}
    s_add_u32 s62, s62, 8192
    {"" if E("TAG", 1) else f"buffer_store_dwordx4 v[8:11], v1, s[{W}:{W+3}], s62 offen sc1"}
    s_cmp_lt_u32 s{idx}, 16
    s_cbranch_scc0 {name}_pz
    buffer_store_dwordx4 v[8:11], v1, s[{W}:{W+3}], s60 offen sc1
{name}_pz:
    s_waitcnt vmcnt(0)
    s_barrier
    v_mov_b32 v3, 1
    s_lshl_b32 s62, s95, 6
    v_cmp_eq_u32 vcc, 0, v0
    s_and_saveexec_b64 s[60:61], vcc
    s_cbranch_execz {name}_xps
    buffer_atomic_add v3, v2, s[{D}:{D+3}], s62 offen offset:{D_PD} sc1
{name}_xps:
    s_mov_b64 exec, s[60:61]
    """)


def rec_body(a: Asm, name, IS, sync, nsteps=64, prof=False, flags=True, ts=None):
    W = S_WSD
    SRD = f"s[{W}:{W+3}]"
    S_WQ, S_WK, S_WV, S_WO, S_M0 = 4, 8, 12, 16, 20
    S_WAVE, S_H, S_J, S_STEP, S_T0, S_T1 = 24, 25, 26, 27, 28, 29
    S_C = 32
    S_SL, S_SLO = 33, 34
    S_XS, S_XSO = 35, 36
    S_P = 37
    S_MN8, S_MMEM = 40, 42
    S_XBR, S_XBW = 44, 45
    S_KVN = 46
    S_KVB, S_FLB, S_CU, S_KXB, S_TAG = 79, 81, 82, 83, 47
    S_LATE, S_WARM = 36, 89
    ONE, LS, ZER = 220, 224, 228
    S_MKM = 48
    V_L, V_G, V_M, V_T0, V_T1, V_IDX = 1, 2, 3, 4, 5, 6
    V_OMEM, V_OM0, V_OPUB, V_OSCM, V_OOP, V_OXW, V_OXR = 7, 8, 9, 10, 11, 12, 13
    V_LWQ, V_LWK, V_LRR, V_LL, V_LWO, V_LRO, V_LVW, V_LVR, V_OKV, V_NEG, V_OFL = 14, 15, 16, 17, 18, 19, 20, 21, 22, 23, 24
    V_POI = 28
    MA, AQ, AV = 32, 96, 112
    RP, R, KX, VTX, S, PL = 120, 152, 156, 164, 172, 184
    VM, P, PM, O, TMP = 208, 212, 216, 120, 232
    MO, AO, KVH = 32, 96, 244
    A_W1, A_WO = 0, 192
    L_QK, L_VP, L_OP, L_VM, L_XB, L_ST = 0, 9216, 13312, 17920, 18432, 32768

    TAG = E("TAG", 1)
    DA = E("DA", 0)
    WPAD, SCS = E("WPAD", 0), E("SCS", 1280)
    OXO, SCO = 24576, 49152

    def wdog():
        wd_code(a, name + ":" + a.lines[-1], f"s{S_STEP}")

    def stamp(i):
        if E("TR", 0):
            if i == 0: return
            if i < 11: a(f"s_memtime s[{48+2*i}:{49+2*i}]")
            if i == 11:
                a("s_memrealtime s[70:71]\ns_memtime s[100:101]\ns_waitcnt lgkmcnt(0)\nv_writelane_b32 v250, s100, 12")
                for k in range(1, 12):
                    a(f"v_writelane_b32 v250, s{48+2*k}, {k}")
                a(f"v_writelane_b32 v250, s99, 0")
                a(f"""
                s_lshl_b32 s80, s{S_X}, 5
                s_add_u32 s80, s80, s{S_T}
                s_lshl_b32 s80, s80, 2
                s_add_u32 s80, s80, s{S_WAVE}
                s_lshl_b32 s80, s80, 6
                s_add_u32 s80, s80, s{S_STEP}
                s_lshl_b32 s80, s80, 6
                s_add_u32 s80, s80, {WS_PROF}
                v_lshlrev_b32 v251, 2, v{V_L}
                s_mov_b64 exec, 0xffff
                buffer_store_dword v250, v251, {SRD}, s80 offen
                s_mov_b64 exec, -1
                """)
            return
        if not prof or i == 11:
            return
        a("s_memtime s[66:67]")
        a("s_waitcnt lgkmcnt(0)")
        a("s_sub_u32 s68, s66, s69")
        a(f"s_add_u32 s{50+i}, s{50+i}, s68")
        a("s_mov_b32 s69, s66")

    if prof:
        for i in range(16):
            a(f"s_mov_b32 s{50+i}, 0")
        a("s_memtime s[66:67]\ns_waitcnt lgkmcnt(0)\ns_mov_b32 s69, s66")
    if ts: ts(1)
    a(f"""
    s_load_dwordx2 s[{S_M0}:{S_M0+1}], s[0:1], {KA_MEM0}
    s_load_dwordx2 s[{S_WO}:{S_WO+1}], s[0:1], {KA_WO}
    s_load_dwordx2 s[{S_WQ}:{S_WQ+1}], s[0:1], {KA_WQ}
    s_load_dwordx2 s[{S_WK}:{S_WK+1}], s[0:1], {KA_WK}
    s_load_dwordx2 s[{S_WV}:{S_WV+1}], s[0:1], {KA_WV}
    v_lshrrev_b32 v{V_T0}, 6, v0
    v_and_b32 v{V_L}, 63, v0
    v_readfirstlane_b32 s{S_WAVE}, v{V_T0}
    v_lshrrev_b32 v{V_G}, 4, v{V_L}
    v_and_b32 v{V_M}, 15, v{V_L}
    v_lshlrev_b32 v{V_LL}, 4, v{V_L}
    s_lshr_b32 s{S_T0}, s{S_T}, 2
    s_lshl_b32 s{S_H}, s{S_X}, 3
    s_add_u32 s{S_H}, s{S_H}, s{S_T0}
    s_and_b32 s{S_J}, s{S_T}, 3
    s_waitcnt lgkmcnt(0)
    s_mov_b32 s{S_M0+2}, 16384
    s_mov_b32 s{S_M0+3}, 0x00020000
    """)
    for s in (S_WO, S_WQ, S_WK, S_WV):
        a(f"s_mov_b32 s{s+2}, {8*MB}\ns_mov_b32 s{s+3}, 0x00020000")
    FULL = E("FULL", 0)
    CL = 2 + FULL
    a(f"""
    s_lshl_b32 s{S_T0}, s{S_H}, 8
    s_lshr_b32 s{S_T1}, s{S_J}, {FULL}
    s_lshl_b32 s{S_T1}, s{S_T1}, {6 + FULL}
    s_add_u32 s{S_T0}, s{S_T0}, s{S_T1}
    s_lshl_b32 s{S_T1}, s{S_WAVE}, 21
    s_add_u32 s{S_T0}, s{S_T0}, s{S_T1}
    v_lshrrev_b32 v{V_T0}, {CL}, v{V_L}
    v_and_b32 v{V_T1}, {(1 << CL) - 1}, v{V_L}
    v_lshlrev_b32 v40, 13, v{V_T0}
    v_lshl_add_u32 v40, v{V_T1}, 4, v40
    v_add_u32 v40, s{S_T0}, v40
    s_lshl_b32 s{S_T0}, s{S_X}, 21
    s_lshl_b32 s{S_T1}, s{S_WAVE}, 19
    s_add_u32 s{S_T0}, s{S_T0}, s{S_T1}
    s_lshr_b32 s{S_T1}, s{S_T}, {FULL}
    s_lshl_b32 s{S_T1}, s{S_T1}, {6 + FULL}
    s_add_u32 s{S_T0}, s{S_T0}, s{S_T1}
    v_lshlrev_b32 v41, 11, v{V_T0}
    v_lshl_add_u32 v41, v{V_T1}, 4, v41
    v_add_u32 v41, s{S_T0}, v41
    s_lshl_b32 s47, s{S_WAVE}, 15
    s_add_u32 s47, s47, {L_ST}
    """)
    order = [int(c) for c in os.environ.get("WORD", "1203")]
    PH = [(c, p) for c in order for p in range(1 << FULL)]
    RI = 64 >> CL

    def wdma(n):
        c, p = PH[n]
        srd = (S_WQ, S_WK, S_WV, S_WO)[c]
        if E("HELP", 1):
            a(f"buffer_load_dword v50, v{51 if c < 3 else 52}, s[{srd}:{srd+3}], 0 offen")
        if E("RX", 0):
            a(f"buffer_load_dword v50, v{58 if c < 3 else 59}, s[{srd}:{srd+3}], 0 offen")
        for r in range(16):
            if E("PSW", 1):
                a(f"s_xor_b32 s{S_T1}, s76, {r}")
                a(f"s_lshl_b32 s{S_T0}, s{S_T1}, 10")
                a(f"s_add_u32 s{S_T0}, s{S_T0}, s47")
                a(f"s_add_u32 m0, s{S_T0}, {(n & 1)*16384}")
                a(f"s_lshl_b32 s{S_T1}, s{S_T1}, {17 if c < 3 else 15}")
            else:
                a(f"s_add_u32 m0, s47, {(n & 1)*16384 + 1024*r}")
                a(f"s_mov_b32 s{S_T1}, {RI * (16 * p + r) * (8192 if c < 3 else 2048)}")
            a(f"buffer_load_dwordx4 v{40 if c < 3 else 41}, s[{srd}:{srd+3}], s{S_T1} offen {'nt ' if (E('RNT', 0) >> c) & 1 else ''}lds")
    WT = E("WT", 0)
    assert not (WT and FULL)
    a(f"""
    s_lshl_b32 s{S_T0}, s{S_T}, 18
    s_lshl_b32 s{S_T1}, s{S_WAVE}, 16
    s_add_u32 s{S_T0}, s{S_T0}, s{S_T1}
    s_lshl_b32 s{S_T1}, s{S_X}, 11
    s_add_u32 s{S_T0}, s{S_T0}, s{S_T1}
    v_lshlrev_b32 v48, 13, v{V_G}
    v_lshl_add_u32 v48, v{V_M}, 7, v48
    v_add_u32 v48, s{S_T0}, v48
    s_lshl_b32 s{S_T0}, s{S_X}, 21
    s_lshl_b32 s{S_T1}, s{S_T}, 16
    s_add_u32 s{S_T0}, s{S_T0}, s{S_T1}
    s_lshl_b32 s{S_T1}, s{S_WAVE}, 14
    s_add_u32 s{S_T0}, s{S_T0}, s{S_T1}
    v_lshlrev_b32 v49, 7, v{V_L}
    v_add_u32 v49, s{S_T0}, v49
    """)

    a(f"""
    s_and_b32 s76, s{S_T}, 1
    s_mul_i32 s76, s76, {E("PSW", 1) * 8 if E("PSW", 1) < 2 else E("PSW", 1)}
    ; helper touch of the slow lines: row = 256w + 16*(l&15... ) : rows w*256 + (t&15)*16 + (l&15), col (t>>4)*1024 + 384
    s_and_b32 s{S_T0}, s{S_T}, 15
    s_lshl_b32 s{S_T0}, s{S_T0}, 4
    s_lshl_b32 s{S_T1}, s{S_WAVE}, 8
    s_add_u32 s{S_T0}, s{S_T0}, s{S_T1}
    v_add_u32 v53, s{S_T0}, v{V_M}
    s_lshr_b32 s{S_T0}, s{S_T}, 4
    s_lshl_b32 s{S_T0}, s{S_T0}, 10
    s_add_u32 s{S_T0}, s{S_T0}, 384
    v_mov_b32 v54, s{S_T0}
    v_mov_b32 v55, 1920
    v_cmp_gt_u32 vcc, 32, v{V_L}
    s_nop 1
    v_cndmask_b32 v54, v55, v54, vcc
    s_lshl_b32 s{S_T1}, s{S_X}, 11
    v_lshl_add_u32 v51, v53, 13, v54
    v_add_u32 v51, s{S_T1}, v51
    s_lshl_b32 s{S_T1}, s{S_X}, 21
    v_lshl_add_u32 v52, v53, 11, v54
    v_add_u32 v52, s{S_T1}, v52
    """)

    if E("RX", 0):
        a(f"""
        s_lshl_b32 s{S_T0}, s{S_WAVE}, 8
        s_lshl_b32 s{S_T1}, s76, 4
        s_add_u32 s{S_T0}, s{S_T0}, s{S_T1}
        s_add_u32 s{S_T0}, s{S_T0}, 64
        v_add_u32 v57, s{S_T0}, v{V_L}
        s_xor_b32 s{S_T0}, s{S_T}, {E("RX", 0)}
        s_lshl_b32 s{S_T0}, s{S_T0}, 6
        s_lshl_b32 s{S_T1}, s{S_X}, 11
        s_add_u32 s{S_T1}, s{S_T1}, s{S_T0}
        v_lshlrev_b32 v58, 13, v57
        v_add_u32 v58, s{S_T1}, v58
        s_lshl_b32 s{S_T1}, s{S_X}, 21
        s_add_u32 s{S_T1}, s{S_T1}, s{S_T0}
        v_lshlrev_b32 v59, 11, v57
        v_add_u32 v59, s{S_T1}, v59
        """)
    NSELF = E("NSELF", 0)
    XF, XA = 64, 192
    if NSELF:
        assert order[:2] == [1, 2] and not FULL
        a(f"""
        s_load_dwordx2 s[56:57], s[0:1], {KA_AX}
        v_lshrrev_b32 v56, 1, v{V_G}
        v_lshlrev_b32 v56, 5, v56
        v_and_b32 v57, 1, v{V_G}
        v_lshl_add_u32 v56, v57, 3, v56
        v_lshl_add_u32 v56, v{V_M}, 11, v56
        s_lshl_b32 s{S_T0}, s{S_WAVE}, 9
        v_add_u32 v56, s{S_T0}, v56
        s_mov_b32 s58, {4*MB}
        s_mov_b32 s59, 0x00020000
        s_waitcnt lgkmcnt(0)
        """)
        for zt in range(2 * NSELF):
            a(f"s_mov_b32 s{S_T1}, {zt * 32768}")
            for hk in range(8):
                f = XF + (zt * 8 + hk) * 4
                a(f"buffer_load_dwordx2 v[{f}:{f+1}], v56, s[56:59], s{S_T1} offen offset:{64*hk}")
                a(f"buffer_load_dwordx2 v[{f+2}:{f+3}], v56, s[56:59], s{S_T1} offen offset:{64*hk+16}")

    def selfproj(isV):
        if not isV:
            for f in range(16 * NSELF):
                a(f"v_swap_b32 v{XF+4*f+1}, v{XF+4*f+2}")
            a(f"""
            s_lshl_b32 s{S_T0}, s{S_WAVE}, 12
            v_add_u32 v57, s{S_T0}, v{V_LL}
            v_lshlrev_b32 v60, 3, v0
            v_add_u32 v60, {L_XB}, v60
            v_bfe_u32 v61, v0, 1, 4
            v_lshlrev_b32 v58, 4, v61                    ; m*16
            v_and_b32 v61, 1, v0
            v_lshrrev_b32 v62, 5, v0
            v_lshl_add_u32 v59, v61, 11, v58             ; V: tt*2048
            v_lshl_add_u32 v59, v62, 8, v59              ;   + u*1024 + g*256
            v_lshl_add_u32 v58, v61, 8, v58              ; K: hf*256
            v_lshl_add_u32 v58, v62, 9, v58              ;   + (tt*2048 + u*1024 + (g'&1)*512)
            """)
        for z in range(NSELF):
            for hk in range(8):
                for tt in range(2):
                    for u in range(2):
                        d, f = XA + 8 * tt + 4 * u, XF + ((2 * z + tt) * 8 + hk) * 4
                        w = A_W1 + (((2 if isV else 1) * 2 + u) * 4 + (hk >> 1)) * 8 + 4 * (hk & 1)
                        c = "0" if hk == 0 else f"v[{d}:{d+3}]"
                        if isV: a(f"v_mfma_f32_16x16x32_bf16 v[{d}:{d+3}], v[{f}:{f+3}], a[{w}:{w+3}], {c}")
                        else: a(f"v_mfma_f32_16x16x32_bf16 v[{d}:{d+3}], a[{w}:{w+3}], v[{f}:{f+3}], {c}")
            a("s_barrier")
            a.nops(8)
            for i in range(4):
                a(f"ds_write_b128 v57, v[{XA+4*i}:{XA+4*i+3}] offset:{1024*i}")
            a("s_waitcnt lgkmcnt(0)\ns_barrier")
            for w in range(4):
                a(f"ds_read_b128 v[{XA+16+4*w}:{XA+16+4*w+3}], v{59 if isV else 58} offset:{4096*w}")
            a("s_waitcnt lgkmcnt(0)")
            b = XA + 16
            for i in (0, 2):
                a(f"v_pk_add_f32 v[{b+i}:{b+i+1}], v[{b+i}:{b+i+1}], v[{b+4+i}:{b+4+i+1}]")
                a(f"v_pk_add_f32 v[{b+8+i}:{b+8+i+1}], v[{b+8+i}:{b+8+i+1}], v[{b+12+i}:{b+12+i+1}]")
            for i in (0, 2):
                a(f"v_pk_add_f32 v[{b+i}:{b+i+1}], v[{b+i}:{b+i+1}], v[{b+8+i}:{b+8+i+1}]")
            a(f"v_cvt_pk_bf16_f32 v{b+4}, v{b}, v{b+1}\nv_cvt_pk_bf16_f32 v{b+5}, v{b+2}, v{b+3}")
            a(f"ds_write_b64 v60, v[{b+4}:{b+5}] offset:{4096*z + (2048 if isV else 0)}")

    def wtouch(n):
        c, p = PH[n]
        srd = (S_WQ, S_WK, S_WV, S_WO)[c]
        for i in range(2):
            a(f"s_mov_b32 s{S_T1}, {i * (32768 if c < 3 else 8192)}")
            a(f"buffer_load_dword v50, v{48 if c < 3 else 49}, s[{srd}:{srd+3}], s{S_T1} offen")
    if WT == 1:
        wtouch(0); wtouch(1); wdma(0); wtouch(2); wdma(1); wtouch(3)
    elif WT == 2:
        wtouch(0); wtouch(1); wtouch(2); wtouch(3); wdma(0); wdma(1)
    else:
        wdma(0); wdma(1)
    a(f"""
    s_mov_b32 s{S_MN8}, 0x00ff00ff
    s_mov_b32 s{S_MN8+1}, 0x00ff00ff
    s_mov_b32 s{S_MKM}, 0xff00ff00
    s_mov_b32 s{S_MKM+1}, 0xff00ff00
    s_mov_b32 s{S_MMEM}, 0
    s_mov_b32 s{S_MMEM+1}, 0x00ff00ff
    s_mov_b32 s{S_C}, 0x3e0293ee
    v_mov_b32 v{V_NEG}, 0xff800000
    v_mov_b32 v{V_IDX}, 0x4444
    v_mov_b32 v{V_T0}, 0xeeee
    v_cndmask_b32 v{V_IDX}, v{V_IDX}, v{V_T0}, s[{S_MKM}:{S_MKM+1}]
    v_mov_b32 v{V_POI}, -1
    v_mov_b32 v{V_POI+1}, -1
    v_mov_b32 v{V_POI+2}, -1
    v_mov_b32 v{V_POI+3}, -1
    s_mul_i32 s{S_T0}, s{S_WAVE}, {4096 + WPAD}
    v_add_u32 v{V_OMEM}, s{S_T0}, v{V_LL}
    v_and_b32 v{V_T0}, 7, v{V_L}
    v_lshlrev_b32 v{V_OM0}, 11, v{V_T0}
    v_lshrrev_b32 v{V_T1}, 3, v{V_L}
    v_lshl_add_u32 v{V_OM0}, v{V_T1}, 4, v{V_OM0}
    s_lshl_b32 s{S_T0}, s{S_WAVE}, 9
    v_add_u32 v{V_OM0}, s{S_T0}, v{V_OM0}
    s_lshl_b32 s{S_T0}, s{S_T}, 9
    s_lshr_b32 s{S_T1}, s{S_T}, 3
    s_mul_i32 s{S_T1}, s{S_T1}, {WPAD}
    s_add_u32 s{S_T0}, s{S_T0}, s{S_T1}
    v_lshlrev_b32 v{V_OPUB}, 3, v{V_L}
    v_add_u32 v{V_OPUB}, s{S_T0}, v{V_OPUB}
    ; o publish: 16384 + t*512 + g*128 + (m&7)*16
    v_and_b32 v{V_T0}, 7, v{V_M}
    v_lshlrev_b32 v{V_OOP}, 7, v{V_G}
    v_lshl_add_u32 v{V_OOP}, v{V_T0}, 4, v{V_OOP}
    v_add_u32 v{V_OKV}, 0, v{V_OOP}              ; g*128 + (m&7)*16 (k_m publish)
    s_add_u32 s{S_T0}, s{S_T0}, {OXO}
    v_add_u32 v{V_OOP}, s{S_T0}, v{V_OOP}
    v_and_b32 v{V_T1}, 1, v{V_G}
    v_lshlrev_b32 v{V_OSCM}, 7, v{V_T1}
    v_lshl_add_u32 v{V_OSCM}, v{V_T0}, 4, v{V_OSCM}
    v_add_u32 v{V_OSCM}, 1024, v{V_OSCM}
    ; partner score offsets: 32768 + (t ^ p)*2048, own in S_P+3 (s47 later); kept relative to slot base
    """)
    for p in range(1, 4):
        a(f"""
        s_xor_b32 s{S_P+p-1}, s{S_T}, {p}
        s_mul_i32 s{S_P+p-1}, s{S_P+p-1}, {SCS}
        s_add_u32 s{S_P+p-1}, s{S_P+p-1}, {SCO}
        """)
    a(f"""
    ; LDS: q/k partial write: w*2304 + (4*(g&1))*144 + ((g>>1)*16 + m)*4
    v_and_b32 v{V_T0}, 1, v{V_G}
    v_mul_u32_u24 v{V_LWQ}, 576, v{V_T0}
    v_lshrrev_b32 v{V_T1}, 1, v{V_G}
    v_lshl_add_u32 v{V_T1}, v{V_T1}, 4, v{V_M}
    v_lshl_add_u32 v{V_LWQ}, v{V_T1}, 2, v{V_LWQ}
    s_mul_i32 s{S_T0}, s{S_WAVE}, {0 if DA & 2 else 1152}
    s_add_u32 s{S_T0}, s{S_T0}, {L_OP}
    v_add_u32 v{V_LWO}, s{S_T0}, v{V_LWQ}
    s_mul_i32 s{S_T0}, s{S_WAVE}, {0 if DA & 1 else 2304}
    v_add_u32 v{V_LWQ}, s{S_T0}, v{V_LWQ}
    v_add_u32 v{V_LWK}, 1152, v{V_LWQ}
    ; R read: m*144 + g*32
    v_mul_u32_u24 v{V_LRR}, 144, v{V_M}
    v_lshl_add_u32 v{V_LRR}, v{V_G}, 5, v{V_LRR}
    ; O partial read: L_OP + ((l>>1)&7)*144 + (2*(l>>4) + (l&1))*16
    v_bfe_u32 v{V_T0}, v{V_L}, 1, 3
    v_mul_u32_u24 v{V_LRO}, 144, v{V_T0}
    v_lshl_add_u32 v{V_LRO}, v{V_G}, 5, v{V_LRO}
    v_and_b32 v{V_T0}, 1, v{V_L}
    v_lshl_add_u32 v{V_LRO}, v{V_T0}, 4, v{V_LRO}
    v_add_u32 v{V_LRO}, {L_OP}, v{V_LRO}
    ; v partial write: L_VP + w*1024 + lane*16 ; read (tile u at +512u): L_VP + (l&31)*16
    s_lshl_b32 s{S_T0}, s{S_WAVE}, 10
    s_add_u32 s{S_T0}, s{S_T0}, {L_VP}
    v_add_u32 v{V_LVW}, s{S_T0}, v{V_LL}
    v_and_b32 v{V_T0}, 31, v{V_L}
    v_lshlrev_b32 v{V_LVR}, 3, v{V_T0}
    v_add_u32 v{V_LVR}, {L_VM}, v{V_LVR}
    v_lshrrev_b32 v{V_T0}, 2, v{V_M}             ; r
    v_and_b32 v42, 1, v{V_T0}                    ; r&1
    v_lshrrev_b32 v43, 1, v{V_T0}                ; r>>1
    v_lshrrev_b32 v44, 1, v{V_G}                 ; g>>1
    v_and_b32 v45, 1, v{V_G}                     ; g&1
    v_lshl_add_u32 v46, v44, 4, v42
    v_lshl_add_u32 v46, v45, 2, v46
    v_lshl_add_u32 v46, v43, 3, v46              ; W1 row
    v_lshl_add_u32 v47, v44, 3, v42
    v_lshl_add_u32 v47, v45, 4, v47
    v_lshl_add_u32 v47, v43, 2, v47
    v_and_b32 v{V_T1}, 3, v{V_M}
    v_lshlrev_b32 v{V_T1}, 3, v{V_T1}
    v_lshl_add_u32 v46, v46, {6 + FULL}, v{V_T1}
    v_lshl_add_u32 v47, v47, {6 + FULL}, v{V_T1}
    s_and_b32 s{S_T0}, s{S_T}, {FULL}
    s_lshl_b32 s{S_T0}, s{S_T0}, 6
    s_add_u32 s{S_T0}, s{S_T0}, s47
    v_add_u32 v46, s{S_T0}, v46
    v_add_u32 v47, s{S_T0}, v47
    """)

    def wtr(n):
        c, p = PH[n]
        nk = 4 >> FULL
        for u in range(2):
            for k in range(nk * p, nk * p + nk):
                d = (A_W1 + ((c * 2 + u) * 4 + k) * 8) if c < 3 else (A_WO + (u * 4 + k) * 8)
                for Pp in range(4):
                    off = (n & 1) * 16384 + ((64 * (k - nk * p) + 32 * (Pp >> 1) + 2 * (Pp & 1)) << (6 + FULL)) + 32 * u
                    a(f"ds_read_b64_tr_b16 a[{d+2*Pp}:{d+2*Pp+1}], v{46 if c < 3 else 47} offset:{off}")
                if k & 1:
                    a("s_waitcnt lgkmcnt(0)")
    SK = E("SK", 0)
    if SK:
        a(f"""
        v_readfirstlane_b32 s60, v40
        v_readfirstlane_b32 s61, v41
        s_lshl_b32 s62, s76, 17
        s_add_u32 s60, s60, s62
        s_lshl_b32 s62, s76, 15
        s_add_u32 s61, s61, s62
        """)
    for n in range(len(PH)):
        if SK and n + 2 < len(PH):
            c = PH[n + 2][0]
            srd = (S_WQ, S_WK, S_WV, S_WO)[c]
            for r in range(SK):
                a(f"s_buffer_load_dword s63, s[{srd}:{srd+3}], s{60 if c < 3 else 61} offset:{r * (8192 if c < 3 else 2048)}")
        a(f"s_waitcnt vmcnt({(16 + E('HELP', 1) + bool(E('RX', 0)) + ([4, 2, 0][n] if WT == 1 else 0)) if n + 1 < len(PH) else 0})")
        wtr(n)
        if n + 2 < len(PH): wdma(n + 2)
        if NSELF and n < 2: selfproj(n == 1)
        if n == len(PH) - 3 and E("IW", 2):
            a("s_mov_b64 exec, 0")
            for w in range(3):
                a(f"s_cmp_eq_u32 s{S_WAVE}, {w}\ns_cbranch_scc1 {name}_iw{w}")
            a(f"s_branch {name}_iw3")
            a.label(f"{name}_iwd")
            a("s_mov_b64 exec, -1")
        if n == len(PH) - 2:
            sync_issue(a, 246)
            for i in range(4):
                a(f"buffer_load_dwordx4 v[{64+4*i}:{67+4*i}], v{V_OM0}, s[{S_M0}:{S_M0+3}], 0 offen offset:{128*i}")
    for i in range(16):
        a(f"v_mov_b32 v{MA+i}, v{64+i}")
    for i in range(24):
        a(f"v_mov_b32 v{AQ+i}, 0")
    a.nops(2)
    for i in range(4):
        for c in range(4):
            w = A_W1 + (c * 4 + i) * 8
            a(f"v_smfmac_f32_16x16x64_bf16 v[{AQ+4*c}:{AQ+4*c+3}], v[{MA+4*i}:{MA+4*i+3}], a[{w}:{w+7}], v{V_IDX}")
    sync(246, True)
    if TAG: a(f"""
    ; cross exchange: WS_H + slot*256K + src*64K + (t>>3)*16K + par*8K + (t&7)*1K
    s_lshr_b32 s{S_T0}, s{S_T}, {3 + E("XC", 1)}
    s_lshl_b32 s{S_T0}, s{S_T0}, 14
    s_lshl_b32 s{S_T1}, s98, 13
    s_add_u32 s{S_T0}, s{S_T0}, s{S_T1}
    s_and_b32 s{S_T1}, s{S_T}, {(8 << E("XC", 1)) - 1}
    s_lshl_b32 s{S_T1}, s{S_T1}, {10 - E("XC", 1)}
    s_add_u32 s{S_T0}, s{S_T0}, s{S_T1}
    s_lshl_b32 s{S_T1}, s{S_X}, 16
    s_add_u32 s{S_T0}, s{S_T0}, s{S_T1}
    s_add_u32 s{S_T0}, s{S_T0}, {WS_H}
    v_lshrrev_b32 v{V_OXW}, {E("B16", 1)}, v{V_LL}
    v_add_u32 v{V_OXW}, s{S_T0}, v{V_OXW}
    v_xor_b32 v25, 0x10000, v{V_OXW}
    v_xor_b32 v26, 0x20000, v{V_OXW}
    v_xor_b32 v27, 0x30000, v{V_OXW}
    v_add_u32 v25, {(WS_XU - WS_H) * E("COPY3", 0)}, v25
    v_add_u32 v26, {(WS_XU - WS_H + 4 * MB) * E("COPY3", 0)}, v26
    v_add_u32 v27, {(WS_XU - WS_H + 8 * MB) * E("COPY3", 0)}, v27
    """)
    else: a(f"""
    s_lshr_b32 s{S_T0}, s{S_T}, 2
    s_xor_b32 s{S_T0}, s{S_T0}, s98
    s_and_b32 s{S_T0}, s{S_T0}, 1
    s_lshl_b32 s{S_T0}, s{S_T0}, 13
    s_lshl_b32 s{S_T1}, s{S_T}, 19
    s_add_u32 s{S_T0}, s{S_T0}, s{S_T1}
    s_lshl_b32 s{S_T1}, s{S_X}, 10
    s_add_u32 s{S_T0}, s{S_T0}, s{S_T1}
    s_add_u32 s{S_T0}, s{S_T0}, {WS_XU}
    v_add_u32 v{V_OXW}, s{S_T0}, v{V_LL}
    v_xor_b32 v25, 1024, v{V_OXW}
    v_xor_b32 v26, 2048, v{V_OXW}
    v_xor_b32 v27, 3072, v{V_OXW}
    """)
    if E("U3", 0): a(f"""
    s_lshr_b32 s{S_T0}, s{S_T}, 1
    s_xor_b32 s{S_T0}, s{S_T0}, s98
    s_and_b32 s{S_T0}, s{S_T0}, 1
    s_lshl_b32 s{S_T0}, s{S_T0}, 13
    s_lshl_b32 s{S_T1}, s{S_T}, 20
    s_add_u32 s{S_T0}, s{S_T0}, s{S_T1}
    s_lshl_b32 s{S_T1}, s{S_X}, 9
    s_add_u32 s{S_T0}, s{S_T0}, s{S_T1}
    s_add_u32 s{S_T0}, s{S_T0}, {88 * MB}
    v_lshrrev_b32 v{V_OXW}, 1, v{V_LL}
    v_add_u32 v{V_OXW}, s{S_T0}, v{V_OXW}
    v_xor_b32 v25, 512, v{V_OXW}
    v_xor_b32 v26, 1024, v{V_OXW}
    v_xor_b32 v27, 1536, v{V_OXW}
    """)
    a(f"""
    s_lshl_b32 s{S_T0}, s{S_H}, 2
    s_add_u32 s{S_T0}, s{S_T0}, s{S_J}
    s_mov_b32 s{S_CU}, s{S_T0}
    s_lshr_b32 s{S_T1}, s{S_T0}, 3
    s_xor_b32 s{S_T1}, s{S_T1}, s98
    {["", f"s_xor_b32 s{S_T1}, s{S_T1}, 1", f"s_xor_b32 s{S_T1}, s{S_T1}, s{S_T0}"][E("KVPAR", 0)]}
    s_and_b32 s{S_T1}, s{S_T1}, 1
    s_lshl_b32 s{S_T1}, s{S_T1}, 13
    s_lshl_b32 s76, s{S_T0}, 18
    s_add_u32 s76, s76, s{S_T1}
    s_mov_b32 s{S_KXB}, s76
    v_add_u32 v{TMP+8}, s76, v{V_LL}
    v_add_u32 v{TMP+9}, {WS_VT}, v{TMP+8}
    s_lshr_b32 s{S_T1}, s{S_T0}, 4
    s_xor_b32 s{S_T1}, s{S_T1}, s98
    s_and_b32 s{S_T1}, s{S_T1}, 1
    s_lshl_b32 s{S_T1}, s{S_T1}, 13
    s_lshl_b32 s{S_KVB}, s{S_T0}, 17
    s_add_u32 s{S_KVB}, s{S_KVB}, s{S_T1}
    s_add_u32 s{S_KVB}, s{S_KVB}, {WS_KVM}
    ; flags
    s_xor_b32 s{S_T1}, s98, 1
    s_lshl_b32 s{S_T1}, s{S_T1}, 13
    s_lshl_b32 s{S_T0}, s{S_H}, 7
    s_add_u32 s{S_T0}, s{S_T0}, s{S_T1}
    s_add_u32 s{S_T0}, s{S_T0}, {WS_F}
    v_and_b32 v{V_T0}, 1, v{V_L}
    v_lshlrev_b32 v{V_OFL}, 12, v{V_T0}
    v_add_u32 v{V_OFL}, s{S_T0}, v{V_OFL}
    s_lshl_b32 s{S_T1}, s{S_J}, 2
    v_add_u32 v{V_OFL}, s{S_T1}, v{V_OFL}
    s_xor_b32 s{S_FLB}, s98, 1
    s_lshl_b32 s{S_FLB}, s{S_FLB}, 13
    s_lshr_b32 s{S_T1}, s{S_CU}, 6
    s_lshl_b32 s{S_T1}, s{S_T1}, 14
    s_add_u32 s{S_FLB}, s{S_FLB}, s{S_T1}
    s_and_b32 s{S_T1}, s{S_CU}, 63
    s_lshl_b32 s{S_T1}, s{S_T1}, 7
    s_add_u32 s{S_FLB}, s{S_FLB}, s{S_T1}
    s_add_u32 s{S_FLB}, s{S_FLB}, {WS_F + F_KVM}
    v_mov_b32 v{ONE}, 0x3f803f80
    v_mov_b32 v{ONE+1}, 0x3f803f80
    v_mov_b32 v{ONE+2}, 0x3f803f80
    v_mov_b32 v{ONE+3}, 0x3f803f80
    v_mov_b32 v{ZER}, 0
    s_mov_b32 s{S_STEP}, 0
    s_mov_b32 s{S_KVN}, 0
    s_mov_b32 s{S_WARM}, 0
    s_mov_b32 s88, 0
    s_mov_b32 s{S_XBR}, {L_XB}
    s_mov_b32 s{S_XBW}, {L_XB + 4096 * NSELF}
    """)
    V_PK, V_PV = TMP + 8, TMP + 9
    pfn = [0]

    def prefetch(seg_sreg, part=3, chk=True, skip=None):
        i = pfn[0]; pfn[0] += 1
        if flags and chk:
            a(f"""
            s_cmp_gt_i32 s{S_KVN}, s{seg_sreg}
            s_cbranch_scc1 {name}_pf{i}ok
{name}_pf{i}w:
            """)
            wdog()
            a(f"""
            {f'''v_mov_b32 v{V_T0}, 0
            s_mov_b64 exec, 3
            buffer_atomic_add v{V_T0}, v{V_OFL}, {SRD}, 0 offen sc0 sc1
            s_mov_b64 exec, -1''' if E("KAP", 1) else f"buffer_load_dword v{V_T0}, v{V_OFL}, {SRD}, 0 offen sc1"}
            s_waitcnt vmcnt(0)
            v_readlane_b32 s{S_KVN}, v{V_T0}, 0
            v_readlane_b32 s{S_T0}, v{V_T0}, 1
            s_nop 1
            s_min_i32 s{S_KVN}, s{S_KVN}, s{S_T0}
            s_cmp_gt_i32 s{S_KVN}, s{seg_sreg}
            s_cbranch_scc0 {skip or f"{name}_pf{i}w"}
{name}_pf{i}ok:
            """)
        if part is None: return
        a(f"""
        s_add_u32 s77, s{seg_sreg}, s{S_CU}
        s_bfe_u32 s{S_T0}, s77, 0x40002
        s_lshl_b32 s{S_T0}, s{S_T0}, 14
        s_and_b32 s77, s77, 3
        s_lshl_b32 s77, s77, 11
        s_add_u32 s{S_T0}, s{S_T0}, s77
        """)
        if part <= 0:
            a(f"s_add_u32 s{S_T0}, s{S_T0}, s{S_KXB}")
            if part < 0: a(f"s_add_u32 s{S_T0}, s{S_T0}, {WS_VT}")
            for l in range(16):
                a(f"s_buffer_load_dword s78, {SRD}, s{S_T0} offset:{128*l}")
            return
        for f in range(4):
            if not (part >> (f >> 1)) & 1: continue
            a(f"s_add_u32 m0, s{S_XBW}, {2048 * (f >> 1)}")
            a("s_nop 0")
            a(f"buffer_load_dwordx4 v{V_PK if f < 2 else V_PV}, {SRD}, s{S_T0} offen offset:{1024 * (f & 1)} sc1 lds")
        if part & 2: a(f"""
        s_add_u32 s{S_XBW}, s{S_XBW}, 4096
        s_cmp_eq_u32 s{S_XBW}, {L_XB + 3 * 4096}
        s_cselect_b32 s{S_XBW}, {L_XB}, s{S_XBW}
        """)

    def flag_store(val_sreg):
        a(f"""
        v_mov_b32 v{V_T1}, s{val_sreg}
        s_mov_b64 exec, 1
        buffer_store_dword v{V_T1}, v{ZER}, {SRD}, s{S_FLB} offen sc1
        s_mov_b64 exec, -1
        """)

    def wr4(va, r, at):
        if at:
            for i in range(4):
                a(f"ds_add_f32 v{va}, v{r+i} offset:{144*i}")
        else:
            a(f"ds_write2_b32 v{va}, v{r}, v{r+1} offset0:0 offset1:36")
            a(f"ds_write2_b32 v{va}, v{r+2}, v{r+3} offset0:72 offset1:108")

    def lzero(which):
        if which == 0:
            a(f"ds_write_b128 v{V_LRR}, v[60:63] offset:{L_QK}\nds_write_b128 v{V_LRR}, v[60:63] offset:{L_QK + 16}")
        else:
            a(f"ds_write_b128 v{V_LRO}, v[60:63]")

    def zero(base, n):
        for i in range(n):
            a(f"v_mov_b32 v{base+i}, 0")

    if ts and E("BPROF", 0):
        ts(2)
        a(f"v_and_b32 v{V_L}, 63, v0\nv_lshrrev_b32 v{V_G}, 4, v{V_L}")
    a(f"s_cmp_eq_u32 s{S_WAVE}, 3\ns_cbranch_scc0 {name}_pfi")
    a(f"s_mov_b32 s76, 0")
    if not NSELF: prefetch(76)
    a("s_waitcnt vmcnt(0) lgkmcnt(0)")
    a(f"s_branch {name}_pfj")
    a.label(f"{name}_pfi")
    klast(a, 88, S_H, 0, 0)
    a(f"s_lshl_b32 s77, s{S_J}, 10\ns_add_u32 s88, s88, s77")
    a.label(f"{name}_pfj")
    zero(PL, 24)
    zero(249, 1)
    zero(60, 4)
    if DA & 1: lzero(0)
    if DA & 2: lzero(1)
    a('s_waitcnt lgkmcnt(0)')
    a("s_barrier")
    if ts and E("BPROF", 0):
        ts(3)
        a(f"v_and_b32 v{V_L}, 63, v0\nv_lshrrev_b32 v{V_G}, 4, v{V_L}")
    stamp(0)

    def smf(d, areg, w):
        a(f"v_smfmac_f32_16x16x64_bf16 v[{d}:{d+3}], v[{areg}:{areg+3}], a[{w}:{w+7}], v{V_IDX}")

    def stream_poll(tag, base, soff, off0, two, work, first=None):
        def ld(i):
            a(f"buffer_load_dwordx4 v[{base+4*i}:{base+4*i+3}], v{V_OMEM}, {SRD}, s{soff} offen offset:{1024*i} sc1")
        G = E("GAP", 10)
        a("; loads are spaced so that the four waves are served round robin")
        for i in range(4):
            ld(i)
            if i == 0 and first:
                first()
                if G > 5: a.nops(G - 5)
            elif i < 3 and G:
                a.nops(G)
        if E("RR", 1):
            def lab(S, i): return f"{name}_{tag}_{S}_{i}"
            def nxt(S, i):
                for d in range(1, 5):
                    if S >> ((i + d) & 3) & 1: return (i + d) & 3
            def chk(i):
                if two:
                    a(f"v_max_u32 v{V_T0}, v{base+4*i}, v{base+4*i+2}")
                    a(f"v_cmp_eq_u32 vcc, -1, v{V_T0}")
                else:
                    a(f"v_cmp_eq_u32 vcc, -1, v{base+4*i}")
            def block(S, i, fall):
                a.label(lab(S, i))
                a(f"s_waitcnt vmcnt({bin(S).count('1') - 1})")
                chk(i)
                a(f"s_cbranch_vccnz {lab(S, i)}f")
                work(i)
                if not fall:
                    S2 = S & ~(1 << i)
                    a(f"s_branch {lab(S2, nxt(S2, i)) if S2 else f'{name}_{tag}_d'}")
            fast = [(15, 0), (14, 1), (12, 2), (8, 3)]
            if E("HOIST", 1) and two:
                def cap(fn, *ar):
                    sv = a.lines; a.lines = []; fn(*ar); o = a.lines; a.lines = sv; return o
                a("s_waitcnt vmcnt(3)")
                chk(0)
                for n, (S, i) in enumerate(fast):
                    a(f"s_cbranch_vccnz {lab(S, i)}f")
                    wk = cap(work, i)
                    a.lines += wk[:3]
                    if i < 3:
                        a(f"s_waitcnt vmcnt({2 - i})")
                        chk(i + 1)
                    a.lines += wk[3:]
                fast = []
            for S, i in fast:
                block(S, i, True)
            a.label(f"{name}_{tag}_d")
            def stubs():
                for S in range(1, 16):
                    for i in range(4):
                        if not S >> i & 1: continue
                        if E("ALR", 5): a(f".p2align {E('ALR', 5)}")
                        a.label(lab(S, i) + "f")
                        if E("MSK", 1): a("s_mov_b64 exec, vcc")
                        ld(i)
                        if E("MSK", 1): a("s_mov_b64 exec, -1")
                        if bin(S).count('1') == 1 or i == nxt(S, 3): wdog()
                        a(f"s_branch {lab(S, nxt(S, i))}")
                        if (S, i) not in fast:
                            if E("ALR", 5): a(f".p2align {E('ALR', 5)}")
                            block(S, i, False)
            return stubs
        for i in range(4):
            a.label(f"{name}_{tag}{i}")
            a(f"s_waitcnt vmcnt({3-i})")
            if two:
                a(f"v_max_u32 v{V_T0}, v{base+4*i}, v{base+4*i+2}")
                a(f"v_cmp_eq_u32 vcc, -1, v{V_T0}")
            else:
                a(f"v_cmp_eq_u32 vcc, -1, v{base+4*i}")
            a(f"s_cbranch_vccnz {name}_{tag}r{i}")
            a.label(f"{name}_{tag}k{i}")
            work(i)
        def stubs():
            for i in range(4):
                a.label(f"{name}_{tag}r{i}")
                if prof: a(f"s_add_u32 s{62 if tag == 'pa' else 63}, s{62 if tag == 'pa' else 63}, 1")
                wdog()
                if not E("IMM", 1): a("s_waitcnt vmcnt(0)")
                for k in range(i, 4):
                    ld(k)
                a(f"s_branch {name}_{tag}{i}")
        return stubs

    def fold(t0, t1):
        for i in range(4):
            a(f"v_permlane32_swap_b32 v{t0+i}, v{t1+i}")
        a(f"v_pk_add_f32 v[{t0}:{t0+1}], v[{t0}:{t0+1}], v[{t1}:{t1+1}]")
        a(f"v_pk_add_f32 v[{t0+2}:{t0+3}], v[{t0+2}:{t0+3}], v[{t1+2}:{t1+3}]")

    def vwork(lo, hi):
        for n in range(lo, hi):
            i, u = n >> 1, n & 1
            smf(AV + 4 * u, MA + 4 * i, A_W1 + ((4 + u) * 4 + (i & 3)) * 8)

    def vfin():
        fold(AV, AV + 4)
        a(f"ds_write_b128 v{V_LVW}, v[{AV}:{AV+3}]")

    def rread():
        for w in range(1 if DA & 1 else 4):
            for hh in range(2):
                d = RP + 8 * w + 4 * hh
                a(f"ds_read_b128 v[{d}:{d+3}], v{V_LRR} offset:{L_QK + 2304*w + 16*hh}")

    def rsum(dst):
        if DA & 1:
            a("s_waitcnt lgkmcnt(0)")
            for i in range(4):
                a(f"v_cvt_pk_bf16_f32 v{dst+i}, v{RP+2*i}, v{RP+2*i+1}")
            return
        a("s_waitcnt lgkmcnt(4)")
        for i in range(0, 8, 2):
            a(f"v_pk_add_f32 v[{RP+i}:{RP+i+1}], v[{RP+i}:{RP+i+1}], v[{RP+8+i}:{RP+8+i+1}]")
        a("s_waitcnt lgkmcnt(0)")
        for i in range(0, 8, 2):
            a(f"v_pk_add_f32 v[{RP+16+i}:{RP+16+i+1}], v[{RP+16+i}:{RP+16+i+1}], v[{RP+24+i}:{RP+24+i+1}]")
        for i in range(0, 8, 2):
            a(f"v_pk_add_f32 v[{RP+i}:{RP+i+1}], v[{RP+i}:{RP+i+1}], v[{RP+16+i}:{RP+16+i+1}]")
        for i in range(4):
            a(f"v_cvt_pk_bf16_f32 v{dst+i}, v{RP+2*i}, v{RP+2*i+1}")

    S_FM = S_TAG
    def xuoff(dst, step):
        a(f"""
        s_add_u32 s{S_T0}, s{step}, s{S_T}
        s_and_b32 s77, s{S_T0}, 14
        s_and_b32 s{S_T0}, s{S_T0}, 1
        s_lshl_b32 s{S_T0}, s{S_T0}, 12
        s_and_b32 s{dst}, s{step}, 48
        s_or_b32 s{dst}, s{dst}, s77
        s_lshl_b32 s{dst}, s{dst}, 13
        s_add_u32 s{dst}, s{dst}, s{S_T0}
        """)

    def heads():
        a(f"""
        s_and_b32 s{S_T1}, s{S_STEP}, 1
        s_lshl_b32 s{S_SL}, s{S_T1}, 17
        s_lshl_b32 s{S_T0}, s{S_X}, 18
        s_add_u32 s{S_SL}, s{S_SL}, s{S_T0}
        s_add_u32 s{S_SL}, s{S_SL}, {WS_I}
        s_xor_b32 s{S_SLO}, s{S_SL}, {1 << 17}
        """)
        if TAG: a(f"""
        s_lshl_b32 s{S_XS}, s{S_T1}, 18
        s_bfe_u32 s{S_TAG}, s{S_STEP}, 0x10001
        """)
        else: xuoff(S_XS, S_STEP)
    heads()
    if E("PRIO", 0):
        a(f"s_cmp_eq_u32 s{S_WAVE}, 0\ns_cbranch_scc0 {name}_np\ns_setprio 3")
        a.label(f"{name}_np")
    a(f"s_branch {name}_first")

    def wa(i):
        for c in range(4):
            smf(AQ + 4 * c, MA + 4 * i, A_W1 + (c * 4 + (i & 3)) * 8)

    def xread():
        a(f"v_add_u32 v{V_T1}, s{S_XBR}, v{V_LL}")
        for f in range(4):
            a(f"ds_read_b128 v[{KX+4*f}:{KX+4*f+3}], v{V_T1} offset:{1024*f}")

    if E("AL", 2) >= 0:
        a(".p2align 6")
        for i in range(E("AL", 2)): a("s_nop 0")
    a.label(f"{name}_loop")
    stubs_a = stream_poll("pa", MA, S_SL, 0, True, wa, first=xread)
    a.label(f"{name}_adone")
    stamp(1)
    a.nops(6)
    fold(AQ, AQ + 4)
    wr4(V_LWQ, AQ, DA & 1)
    fold(AQ + 8, AQ + 12)
    wr4(V_LWK, AQ + 8, DA & 1)
    VE, VE2 = E("VE", 4), 8
    vwork(0, VE)
    a(f"""
    s_waitcnt lgkmcnt(0)
    s_barrier
    s_cmp_lg_u32 s{S_WAVE}, 0
    s_cbranch_scc1 {name}_side
    """)
    stamp(2)
    rread()
    vwork(VE, VE2)
    a(f"""
    s_mul_i32 s{S_T0}, s{S_T}, {SCS}
    s_add_u32 s{S_T0}, s{S_T0}, s{S_SL}
    s_add_u32 s{S_T0}, s{S_T0}, {SCO}
    s_add_u32 s76, s{S_P}, s{S_SL}
    s_add_u32 s77, s{S_P+1}, s{S_SL}
    s_add_u32 s78, s{S_P+2}, s{S_SL}
    """)
    rsum(R)
    a.nops(2)
    a(f"v_mfma_f32_16x16x32_bf16 v[{S+4}:{S+7}], v[{KX+4}:{KX+7}], v[{R}:{R+3}], 0")
    a(f"v_mfma_f32_16x16x32_bf16 v[{S}:{S+3}], v[{KX}:{KX+3}], v[{R}:{R+3}], 0")
    a(f"v_mfma_f32_16x16x32_bf16 v[{S+8}:{S+11}], v[{R}:{R+3}], v[{R}:{R+3}], 0")
    a(f"s_cmp_eq_u32 s{S_STEP}, {nsteps-1}")
    a(f"s_cbranch_scc1 {name}_w0last")
    if E("VF", 0) == 1: vfin()
    else: a.nops(5)
    for i in range(4):
        a(f"v_mov_b32_dpp v{S+i}, v{S+4+i} row_shr:8 row_mask:0xf bank_mask:0xc")
    a(f"""
    v_min_u32 v{S+8}, -2, v{S+8}
    v_min_u32 v{S}, -2, v{S}
    s_mov_b64 exec, s[{S_MMEM}:{S_MMEM+1}]
    buffer_store_dwordx4 v[{S+8}:{S+11}], v{V_OSCM}, {SRD}, s{S_T0} offen {IS}
    s_mov_b64 exec, -1
    buffer_store_dwordx4 v[{S}:{S+3}], v{V_LL}, {SRD}, s{S_T0} offen {IS}
    """)
    stamp(3)

    def p2ld():
        if E("P2K", 1):
            a(f"s_mov_b64 exec, s[{S_MMEM}:{S_MMEM+1}]")
            for p, so in enumerate((76, 77, 78)):
                a(f"buffer_load_dwordx4 v[{PL+8*p+4}:{PL+8*p+7}], v{V_OSCM}, {SRD}, s{so} offen sc1")
            a("s_mov_b64 exec, -1")
            for p, so in enumerate((76, 77, 78)):
                a(f"buffer_load_dwordx4 v[{PL+8*p}:{PL+8*p+3}], v{V_LL}, {SRD}, s{so} offen sc1")
            return
        for p, so in enumerate((76, 77, 78)):
            a(f"buffer_load_dwordx4 v[{PL+8*p}:{PL+8*p+3}], v{V_LL}, {SRD}, s{so} offen sc1")
            a(f"buffer_load_dwordx4 v[{PL+8*p+4}:{PL+8*p+7}], v{V_OSCM}, {SRD}, s{so} offen sc1")
    P2M = E("P2M", 0)
    if E("VF", 0) == 0: vfin()
    def p2fill():
        zero(AO, 8)
        for i in range(4):
            a(f"v_cndmask_b32 v{S+4+i}, v{V_NEG}, v{S+8+i}, s[{S_MMEM}:{S_MMEM+1}]")
    def p2scale():
        for i in range(0, 8, 2):
            a(f"v_pk_mul_f32 v[{S+i}:{S+i+1}], v[{S+i}:{S+i+1}], s[{S_C}:{S_C+1}] op_sel_hi:[1,0]")
    assert P2M == 0
    if P2M == 0:
        a("s_waitcnt lgkmcnt(0)\ns_barrier")
        p2fill()
        p2ld()
        p2scale()
        if DA & 1: lzero(0)
        a(f"s_lshl_b32 s89, s{S_TAG}, 31\ns_or_b32 s89, s89, 0x3b39999a")
        if E("U3", 0):
            a(f"""
            s_add_u32 s88, s{S_STEP}, s{S_T}
            s_and_b32 s88, s88, 7
            s_and_b32 s89, s{S_STEP}, 56
            s_or_b32 s88, s88, s89
            s_lshl_b32 s88, s88, 14
            s_add_u32 s89, s88, 4096
            """)
        a.nops(12 if E("U3", 0) else 18)
        p2ld()
    elif P2M == 1:
        if E("W2A", 0): a.nops(E("W2A", 0))
        p2ld()
        a("s_waitcnt lgkmcnt(0)\ns_barrier")
        p2fill()
        if E("W2", 0): a.nops(E("W2", 0))
        p2ld()
    elif P2M == 2:
        p2fill()
        p2ld()
        a("s_waitcnt lgkmcnt(0)\ns_barrier")
        if E("W2", 0): a.nops(E("W2", 0))
        p2ld()
    else:
        if E("W2A", 0): a.nops(E("W2A", 0))
        p2ld()
        a("s_waitcnt lgkmcnt(0)\ns_barrier")
        p2fill()
        for r in range(P2M - 1):
            p2ld()
            if r + 2 < P2M: a.nops(E("W2", 16))
    assert TAG
    stamp(4)
    a.label(f"{name}_p2")
    a(f"s_waitcnt vmcnt({6 * (max(P2M, 2) - 1)})")
    a(f"v_max3_u32 v{V_T0}, v{PL}, v{PL+4}, v{PL+8}")
    a(f"v_max3_u32 v{V_T1}, v{PL+12}, v{PL+16}, v{PL+20}")
    a(f"v_max_u32 v{V_T0}, v{V_T0}, v{V_T1}")
    a(f"v_cmp_eq_u32 vcc, -1, v{V_T0}")
    a(f"s_cbranch_vccnz {name}_p2r")
    stamp(5)
    a.nops(E("RSLOW", 0))
    BP = E("BP", 1)
    def b2b():
        a("s_barrier")
        a(f"ds_read2_b64 v[{VM}:{VM+3}], v{V_LVR} offset0:0 offset1:32")
    if BP == 0: b2b()
    for o in (4, 6, 0, 2):
        a(f"v_pk_add_f32 v[{RP+o}:{RP+o+1}], v[{PL+8+o}:{PL+8+o+1}], v[{PL+16+o}:{PL+16+o+1}]")
    for o in (4, 6, 0, 2):
        a(f"v_pk_add_f32 v[{RP+o}:{RP+o+1}], v[{RP+o}:{RP+o+1}], v[{PL+o}:{PL+o+1}]")
    for o in (4, 6, 0, 2):
        a(f"v_pk_fma_f32 v[{S+o}:{S+o+1}], v[{RP+o}:{RP+o+1}], s[{S_C}:{S_C+1}], v[{S+o}:{S+o+1}] op_sel_hi:[1,0,1]")
    MX, TM, SM = TMP, TMP + 1, TMP + 2
    a(f"""
    v_max3_f32 v{MX}, v{S}, v{S+1}, v{S+2}
    v_max3_f32 v{TM}, v{S+4}, v{S+5}, v{S+6}
    v_max3_f32 v{MX}, v{MX}, v{S+3}, v{S+7}
    v_max_f32 v{SM}, v{MX}, v{TM}
    """)
    if BP == 1: b2b()
    else: a("s_nop 1")
    a(f"""
    v_max_f32_dpp v{MX}, v{SM}, v{SM} row_ror:8 row_mask:0xf bank_mask:0xf
    v_max_f32_dpp v{TM}, v{SM}, v{SM} row_ror:8 row_mask:0xf bank_mask:0xf
    s_nop 1
    v_permlane16_swap_b32 v{MX}, v{TM}
    s_nop 0
    v_max_f32 v{SM}, v{MX}, v{TM}
    v_max_f32 v{SM+1}, v{MX}, v{TM}
    """)
    if BP == 2: b2b()
    else: a("s_nop 1")
    a(f"""
    v_permlane32_swap_b32 v{SM}, v{SM+1}
    s_nop 0
    v_max_f32 v{MX}, v{SM}, v{SM+1}
    """)
    for i in (4, 6, 0, 2):
        a(f"v_pk_add_f32 v[{S+i}:{S+i+1}], v[{S+i}:{S+i+1}], v[{MX}:{MX+1}] op_sel_hi:[1,0] neg_lo:[0,1] neg_hi:[0,1]")
    for i in (4, 5, 6, 7):
        a(f"v_exp_f32 v{S+i}, v{S+i}")
    a(f"""
    v_exp_f32 v{S}, v{S}
    v_cvt_pk_bf16_f32 v{PM}, v{S+4}, v{S+5}
    v_cvt_pk_bf16_f32 v{PM+1}, v{S+6}, v{S+7}
    v_exp_f32 v{S+1}, v{S+1}
    v_exp_f32 v{S+2}, v{S+2}
    v_mfma_f32_16x16x16_bf16 v[{LS}:{LS+3}], v[{ONE}:{ONE+1}], v[{PM}:{PM+1}], 0
    v_exp_f32 v{S+3}, v{S+3}
    v_cvt_pk_bf16_f32 v{P}, v{S}, v{S+1}
    s_waitcnt lgkmcnt(0)
    v_mfma_f32_16x16x16_bf16 v[{O}:{O+3}], v[{VM}:{VM+1}], v[{PM}:{PM+1}], 0
    v_cvt_pk_bf16_f32 v{P+1}, v{S+2}, v{S+3}
    v_mfma_f32_16x16x16_bf16 v[{O+4}:{O+7}], v[{VM+2}:{VM+3}], v[{PM}:{PM+1}], 0
    v_mov_b32_dpp v{P+2}, v{P} row_ror:8 row_mask:0xf bank_mask:0xf
    v_mov_b32_dpp v{P+3}, v{P+1} row_ror:8 row_mask:0xf bank_mask:0xf
    s_nop 1
    v_mfma_f32_16x16x32_bf16 v[{LS}:{LS+3}], v[{ONE}:{ONE+3}], v[{P}:{P+3}], v[{LS}:{LS+3}]
    v_mfma_f32_16x16x32_bf16 v[{O}:{O+3}], v[{VTX}:{VTX+3}], v[{P}:{P+3}], v[{O}:{O+3}]
    v_mfma_f32_16x16x32_bf16 v[{O+4}:{O+7}], v[{VTX+4}:{VTX+7}], v[{P}:{P+3}], v[{O+4}:{O+7}]
    s_add_u32 s{S_T1}, s{S_SL}, {OXO}
    s_nop 4
    v_rcp_f32 v{SM}, v{LS}
    s_nop 0
    """)
    for i in range(0, 8, 2):
        a(f"v_pk_mul_f32 v[{O+i}:{O+i+1}], v[{O+i}:{O+i+1}], v[{SM}:{SM+1}] op_sel_hi:[1,0]")
    for i in range(4):
        a(f"v_cvt_pk_bf16_f32 v{P+i}, v{O+2*i}, v{O+2*i+1}")
    a(f"""
    v_min_u32 v{P}, -2, v{P}
    s_mov_b64 exec, s[{S_MN8}:{S_MN8+1}]
    buffer_store_dwordx4 v[{P}:{P+3}], v{V_OOP}, {SRD}, s{S_SL} offen {IS}
    s_mov_b64 exec, -1
    """)
    NB3, NB5 = E("NB3", 0), E("NB5", 0)
    if NB3:
        stamp(6)
        if E("W3", 16): a("; poll back-off: a too early first poll wastes a whole 16KB gather round"); a.nops(E("W3", 16))
        a.label(f"{name}_b3")
    else:
        a.label(f"{name}_b3")
        a("s_barrier")
        if E("AL3", -1) >= 0:
            a(".p2align 5")
            for i in range(E("AL3", -1)): a("s_nop 0")
        stamp(6)
        if E("W3", 16): a("; poll back-off: a too early first poll wastes a whole 16KB gather round"); a.nops(E("W3", 16))

    def wc(i):
        for u in range(2):
            smf(AO + 4 * u, MO + 4 * i, A_WO + (u * 4 + i) * 8)
    stubs_c = stream_poll("pc", MO, S_T1, 0, False, wc)
    stamp(7)
    a.nops(8)
    fold(AO, AO + 4)
    wr4(V_LWO, AO, DA & 2)
    a("s_waitcnt lgkmcnt(0)\ns_barrier")
    a(f"s_cmp_lg_u32 s{S_WAVE}, 0\ns_cbranch_scc1 {name}_x1")
    if DA & 2:
        a(f"ds_read_b128 v[{RP}:{RP+3}], v{V_LRO}\ns_waitcnt lgkmcnt(0)")
    else:
        for w in range(4):
            a(f"ds_read_b128 v[{RP+4*w}:{RP+4*w+3}], v{V_LRO} offset:{1152*w}")
        a("s_waitcnt lgkmcnt(2)")
        for i in (0, 2):
            a(f"v_pk_add_f32 v[{RP+i}:{RP+i+1}], v[{RP+i}:{RP+i+1}], v[{RP+4+i}:{RP+4+i+1}]")
        a("s_waitcnt lgkmcnt(0)")
        for i in (0, 2):
            a(f"v_pk_add_f32 v[{RP+8+i}:{RP+8+i+1}], v[{RP+8+i}:{RP+8+i+1}], v[{RP+12+i}:{RP+12+i+1}]")
        for i in (0, 2):
            a(f"v_pk_add_f32 v[{RP+i}:{RP+i+1}], v[{RP+i}:{RP+i+1}], v[{RP+8+i}:{RP+8+i+1}]")
    X4 = 48
    A4 = E("A4", 0)
    B16 = E("B16", 1)
    def p4ld():
        for p in range(3):
            if B16: a(f"buffer_load_dwordx2 v[{X4+2*p}:{X4+2*p+1}], v{25+p}, {SRD}, s{S_XS} offen sc1")
            else: a(f"buffer_load_dwordx4 v[{X4+4*p}:{X4+4*p+3}], v{25+p}, {SRD}, s{S_XS} offen sc1")
    def maxall(regs):
        regs = list(regs)
        h = len(regs) // 2
        for t, rs in ((V_T0, regs[:h]), (V_T1, regs[h:])):
            a(f"v_max3_u32 v{t}, v{rs[0]}, v{rs[1]}, v{rs[2]}")
        k = 3
        while k < h:
            for t, rs in ((V_T0, regs[:h]), (V_T1, regs[h:])):
                if k + 1 < h: a(f"v_max3_u32 v{t}, v{t}, v{rs[k]}, v{rs[k+1]}")
                else: a(f"v_max_u32 v{t}, v{t}, v{rs[k]}")
            k += 2
        a(f"v_max_u32 v{V_T0}, v{V_T0}, v{V_T1}")
        a(f"v_cmp_eq_u32 vcc, -1, v{V_T0}")
    U3 = E("U3", 0)
    if U3:
        XU = 64
        a(f"""
        v_cvt_pk_bf16_f32 v{P}, v{RP}, v{RP+1}
        v_cvt_pk_bf16_f32 v{P+1}, v{RP+2}, v{RP+3}
        v_min_u32 v{P}, -2, v{P}
        """)
        for c in range(U3):
            a(f"buffer_store_dwordx2 v[{P}:{P+1}], v{V_OXW}, {SRD}, s{88 + (c >> 1)} offen offset:{2048 * (c & 1)} sc1")
        a("s_mov_b32 s77, 0x3f80\ns_mov_b32 s78, 0x3f800000")
        zero(AQ, 24)
        a.nops(E("UW", 8))
        def uld(c):
            for p in range(3):
                a(f"buffer_load_dwordx2 v[{XU+6*c+2*p}:{XU+6*c+2*p+1}], v{25+p}, {SRD}, s{88 + (c >> 1)} offen offset:{2048 * (c & 1)} sc1")
        for c in range(U3):
            uld(c)
            if c + 1 < U3: a.nops(E("UD", 32))
        for c in range(U3):
            a.label(f"{name}_u{c}")
            a(f"s_waitcnt vmcnt({3 * (U3 - 1 - c)})")
            a(f"v_max3_u32 v{V_T0}, v{XU+6*c}, v{XU+6*c+2}, v{XU+6*c+4}\nv_cmp_eq_u32 vcc, -1, v{V_T0}\ns_cbranch_vccnz {name}_u{c+1}")
            for p in range(3):
                for i in range(4):
                    a(f"v_dot2_f32_bf16 v{RP+i}, v{XU+6*c+2*p+(i>>1)}, s{77+(i&1)}, v{RP+i}")
            a(f"""
            s_nop 0
            v_cvt_pk_bf16_f32 v{P}, v{RP}, v{RP+1}
            v_min_u32 v{P}, -2, v{P}
            v_cvt_pk_bf16_f32 v{P+1}, v{RP+2}, v{RP+3}
            buffer_store_dwordx2 v[{P}:{P+1}], v{V_OPUB}, {SRD}, s{S_SLO} offen {IS}
            s_branch {name}_p4d
            """)
        a.label(f"{name}_u{U3}")
        wdog()
        uld(U3 - 1)
        a(f"s_branch {name}_u{U3-1}")
        a.label(f"{name}_p4d")
    elif TAG:
        if B16:
            a(f"""
            v_fma_f32 v{P}, v{RP}, s89, v{RP}
            v_cvt_pk_bf16_f32 v{P+1}, v{RP+2}, v{RP+3}
            v_cvt_pk_bf16_f32 v{P}, v{P}, v{RP+1}
            v_and_or_b32 v{P}, v{P}, -2, s{S_TAG}
            buffer_store_dwordx2 v[{P}:{P+1}], v{V_OXW}, {SRD}, s{S_XS} offen sc1
            s_mov_b32 s77, 0x3f80
            s_mov_b32 s78, 0x3f800000
            """)
        for i in range(0 if B16 else 4):
            a(f"v_and_or_b32 v{RP+i}, v{RP+i}, -2, s{S_TAG}")
        if E("HALF", 0): a(f"s_mov_b64 exec, {hex((1 << E('HALF', 0)) - 1)}")
        if E("COPY3", 0):
            for p in range(3):
                a(f"s_add_u32 s76, s{S_XS}, {WS_XU - WS_H + p * 4 * MB}")
                a(f"buffer_store_dwordx4 v[{RP}:{RP+3}], v{V_OXW}, {SRD}, s76 offen sc1")
        elif not B16:
            a(f"buffer_store_dwordx4 v[{RP}:{RP+3}], v{V_OXW}, {SRD}, s{S_XS} offen sc1")
        stamp(8)
        a(f"s_xor_b32 s76, s{S_TAG}, 1")
        for i in (range(0, 6, 2) if B16 else range(12)):
            a(f"v_mov_b32 v{X4+i}, s76")
        if DA & 2: lzero(1)
        if B16: a.nops(9)
        if E("HALF", 0): a("s_mov_b64 exec, -1")
        zero(AQ, 24)
        if E("HALF", 0): a(f"s_mov_b64 exec, {hex((1 << E('HALF', 0)) - 1)}")
        if E("XW", 24): a("; poll back-off until the partners' stores can be visible"); a.nops(E("XW", 24))
        stamp(11)
        a(f"s_cmp_eq_u32 s{S_TAG}, 1\ns_cbranch_scc1 {name}_p4_1")
        def fin4():
            stamp(9)
            if B16:
                for p in range(3):
                    for i in range(4):
                        a(f"v_dot2_f32_bf16 v{RP+i}, v{X4+2*p+(i>>1)}, s{77+(i&1)}, v{RP+i}")
                a("s_nop 0")
            for i in (() if B16 else (0, 2)):
                a(f"v_pk_add_f32 v[{RP+i}:{RP+i+1}], v[{RP+i}:{RP+i+1}], v[{X4+i}:{X4+i+1}]")
                a(f"v_pk_add_f32 v[{RP+4+i}:{RP+4+i+1}], v[{X4+4+i}:{X4+4+i+1}], v[{X4+8+i}:{X4+8+i+1}]")
            for i in (() if B16 else (0, 2)):
                a(f"v_pk_add_f32 v[{RP+i}:{RP+i+1}], v[{RP+i}:{RP+i+1}], v[{RP+4+i}:{RP+4+i+1}]")
            a(f"""
            v_cvt_pk_bf16_f32 v{P}, v{RP}, v{RP+1}
            v_min_u32 v{P}, -2, v{P}
            v_cvt_pk_bf16_f32 v{P+1}, v{RP+2}, v{RP+3}
            buffer_store_dwordx2 v[{P}:{P+1}], v{V_OPUB}, {SRD}, s{S_SLO} offen {IS}
            """)
        R4 = E("R4", 1)
        for tg in range(2):
            if E("AL4", 6): a(f".p2align {E('AL4', 6)}")
            a.label(f"{name}_p4_{tg}")
            wdog()
            p4ld()
            a(f"s_waitcnt vmcnt({E('Q4', 12)})")
            a.nops(A4)
            bo = "0xfe" if tg == 0 else "0x80"
            if R4 > 1: a(f"s_mov_b32 s76, {R4}")
            a.label(f"{name}_p4c_{tg}")
            if R4 > 1: a(f"s_sub_u32 s76, s76, 1\ns_cbranch_scc1 {name}_p4_{tg}")
            if B16:
                a(f"v_bitop3_b32 v{V_T0}, v{X4}, v{X4+2}, v{X4+4} bitop3:{bo}")
                a(f"v_and_b32 v{V_T0}, 1, v{V_T0}")
            else:
                for t, b in ((V_T0, X4), (V_T1, X4 + 6)):
                    a(f"v_bitop3_b32 v{t}, v{b}, v{b+1}, v{b+2} bitop3:{bo}")
                for t, b in ((V_T0, X4), (V_T1, X4 + 6)):
                    a(f"v_bitop3_b32 v{t}, v{t}, v{b+3}, v{b+4} bitop3:{bo}")
                a(f"v_bitop3_b32 v{V_T0}, v{V_T0}, v{X4+5}, v{X4+11} bitop3:{bo}")
            if not B16: a(f"v_bitop3_b32 v{V_T0}, v{V_T0}, v{V_T1}, 1 bitop3:{'0xa8' if tg == 0 else '0x80'}")
            a(f"v_cmp_ne_u32 vcc, {tg}, v{V_T0}")
            a(f"s_cbranch_vccnz {name}_p4{'c' if R4 > 1 else ''}_{tg}")
            fin4()
            if tg == 0: a(f"s_branch {name}_p4d")
        a.label(f"{name}_p4d")
    if E("LT", 0):
        a(f"s_cmp_eq_u32 s{S_STEP}, 8\ns_cbranch_scc0 {name}_lt\ns_memtime s[50:51]\ns_memrealtime s[52:53]")
        a.label(f"{name}_lt")
    a.label(f"{name}_b5")
    a(f"""
    s_add_u32 s{S_STEP}, s{S_STEP}, 1
    s_add_u32 s{S_XBR}, s{S_XBR}, 4096
    s_cmp_eq_u32 s{S_XBR}, {L_XB + 3 * 4096}
    s_cselect_b32 s{S_XBR}, {L_XB}, s{S_XBR}
    s_mov_b32 s{S_T0}, s{S_SL}
    s_mov_b32 s{S_SL}, s{S_SLO}
    s_mov_b32 s{S_SLO}, s{S_T0}
    {f"s_xor_b32 s{S_XS}, s{S_XS}, {1 << 18}" if TAG else ""}
    {f"s_bfe_u32 s{S_TAG}, s{S_STEP}, 0x10001" if TAG else ""}
    {"" if NB5 else "s_barrier"}
    """)
    stamp(10)
    if E("W1", 16): a("; poll back-off: a too early first poll wastes a whole 16KB gather round"); a.nops(E("W1", 16))
    a(f"s_branch {name}_loop")
    a.label(f"{name}_x1")
    stamp(11)
    if not E("NOKVM", 0):
        a(f"s_cmp_eq_u32 s{S_WAVE}, 1\ns_cbranch_scc0 {name}_x2\ns_add_u32 s76, s{S_STEP}, 1")
        if E("FLM", 0):
            a(f"s_and_b32 s77, s76, {E('FLM', 0)}\ns_cmp_ge_u32 s76, {E('FLE', 54)}\ns_cselect_b32 s77, 0, s77\ns_cmp_eq_u32 s77, 0\ns_cbranch_scc0 {name}_x2")
        if E("FLD", 6): a(f"; helper wave only: keep this store behind wave 0's cross-XCD store in the CU's in-order memory queue\ns_sleep {E('FLD', 6)}")
        flag_store(76)
        a.label(f"{name}_x2")
    a(f"""
    s_cmp_eq_u32 s{S_WAVE}, 3
    s_cbranch_scc0 {name}_x4
    s_cmp_eq_u32 s{S_LATE}, 1
    s_cbranch_scc0 {name}_x5
    s_add_u32 s76, s{S_STEP}, 1
    """)
    prefetch(76, 3)
    a(f"""
    s_waitcnt vmcnt(0)
{name}_x5:
    """)
    if E("VPD", 0): a(f"s_sleep {E('VPD', 0)}")
    if flags:
        a(f"""
        s_add_u32 s76, s{S_STEP}, 4
        s_min_u32 s76, s76, 63
        s_cmp_gt_i32 s{S_KVN}, s76
        s_cbranch_scc1 {name}_x6
        v_mov_b32 v249, 0
        s_mov_b64 exec, 3
        buffer_atomic_add v249, v{V_OFL}, {SRD}, 0 offen sc0 sc1
        s_mov_b64 exec, -1
{name}_x6:
        """)
    a(f"""
    """)
    if not E("PB1", 1): a(f"""
    buffer_store_dwordx2 v[{V_POI}:{V_POI+1}], v{V_OPUB}, {SRD}, s{S_SL} offen {IS}
    s_mul_i32 s{S_T0}, s{S_T}, {SCS}
    s_add_u32 s{S_T0}, s{S_T0}, s{S_SL}
    s_add_u32 s{S_T0}, s{S_T0}, {SCO}
    buffer_store_dwordx4 v[{V_POI}:{V_POI+3}], v{V_LL}, {SRD}, s{S_T0} offen {IS}
    buffer_store_dwordx4 v[{V_POI}:{V_POI+3}], v{V_OSCM}, {SRD}, s{S_T0} offen {IS}
    """)
    a(f"""
    s_add_u32 s76, s{S_STEP}, 2
    s_cmp_lt_u32 s76, {nsteps-1}
    s_cbranch_scc0 {name}_x4
    {f"s_cmp_gt_i32 s{S_KVN}, s76" if flags else ""}
    s_cbranch_scc0 {name}_x4
    """)
    if not E("NOPF", 0) and not E("VPOS", 0):
        prefetch(76, -1, False)
    a.label(f"{name}_x4")
    zero(AQ, 24)
    if NB5: a(f"s_sleep {NB5}")
    a(f"s_branch {name}_b5")
    a.label(f"{name}_p2r")
    if prof: a("s_add_u32 s65, s65, 1")
    wdog()
    p2ld()
    a(f"s_branch {name}_p2")
    stubs_a()
    stubs_c()
    a.label(f"{name}_w0last")
    if E("LT", 0):
        a(f"""
        s_memtime s[54:55]
        s_memrealtime s[56:57]
        s_waitcnt lgkmcnt(0)
        s_sub_u32 s54, s54, s50
        s_sub_u32 s56, s56, s52
        v_mov_b32 v250, s54
        v_mov_b32 v251, s56
        s_lshl_b32 s80, s{S_CU}, 3
        s_add_u32 s80, s80, {WS_PROF + 14 * MB}
        buffer_store_dwordx2 v[250:251], v{ZER}, {SRD}, s80 offen
        """)
    a.nops(8)
    vfin()
    a("s_waitcnt lgkmcnt(0)\ns_barrier")
    a(f"s_branch {name}_end")
    a.label(f"{name}_side")
    if E("SV", 0): vwork(VE, 8)
    a(f"""
    s_cmp_eq_u32 s{S_WAVE}, 3
    s_cbranch_scc1 {name}_sd3
    s_cmp_eq_u32 s{S_WAVE}, 2
    s_cbranch_scc0 {name}_sd4
    s_mov_b64 exec, s[{S_MN8}:{S_MN8+1}]
    buffer_store_dwordx4 v[{V_POI}:{V_POI+3}], v{V_OOP}, {SRD}, s{S_SLO} offen {IS}
    s_mov_b64 exec, -1
    """)
    if E("PB1", 1): a(f"""
    buffer_store_dwordx2 v[{V_POI}:{V_POI+1}], v{V_OPUB}, {SRD}, s{S_SLO} offen {IS}
    s_mul_i32 s{S_T0}, s{S_T}, {SCS}
    s_add_u32 s{S_T0}, s{S_T0}, s{S_SLO}
    s_add_u32 s{S_T0}, s{S_T0}, {SCO}
    buffer_store_dwordx4 v[{V_POI}:{V_POI+3}], v{V_LL}, {SRD}, s{S_T0} offen {IS}
    buffer_store_dwordx4 v[{V_POI}:{V_POI+3}], v{V_OSCM}, {SRD}, s{S_T0} offen {IS}
    """)
    a(f"""
    s_branch {name}_sd4
{name}_sd3:
    v_readlane_b32 s76, v249, 0
    v_readlane_b32 s77, v249, 1
    s_min_i32 s76, s76, s77
    s_max_i32 s{S_KVN}, s{S_KVN}, s76
    s_mov_b32 s{S_LATE}, 0
    s_add_u32 s76, s{S_STEP}, 1
    s_cmp_lt_u32 s76, {nsteps-1}
    s_cbranch_scc0 {name}_sd4
    s_cmp_ge_u32 s76, {NSELF}
    s_cbranch_scc0 {name}_sd4
    {(f"s_cmp_eq_u32 s{S_WARM}, s76" if E("WARM", 0) else f"s_cmp_gt_i32 s{S_KVN}, s76") if flags else ""}
    s_cselect_b32 s{S_LATE}, 0, 1
    s_cbranch_scc0 {name}_sd4
    """)
    if not E("NOPF", 0): prefetch(76, 3, False)
    a.label(f"{name}_sd4")
    if not E("SV", 0): vwork(VE, 8)
    a.nops(8)
    vfin()
    zero(AO, 8)
    if not E("K2", 0):
        a(f"""
        s_cmp_eq_u32 s{S_WAVE}, 1
        s_cbranch_scc0 {name}_s1
        s_waitcnt lgkmcnt(0)
        """)
        rread()
        rsum(KVH)
        a.label(f"{name}_s1")
    a(f"""
    v_add_u32 v{V_T1}, {L_VP}, v{V_LL}
    s_waitcnt lgkmcnt(0)
    s_barrier
    s_cmp_eq_u32 s{S_WAVE}, 2
    s_cbranch_scc1 {name}_s2
    """)
    if E("K2", 0):
        a(f"s_cmp_eq_u32 s{S_WAVE}, 1\ns_cbranch_scc0 {name}_s1")
        rread()
        rsum(KVH)
        a(f"s_branch {name}_s3")
        a.label(f"{name}_s1")
    if E("KPF", 1) and not E("NOPF", 0):
        a(f"""
        s_cmp_eq_u32 s{S_WAVE}, 3
        s_cbranch_scc0 {name}_s3
        s_add_u32 s76, s{S_STEP}, 2
        s_cmp_lt_u32 s76, {nsteps-1}
        s_cbranch_scc0 {name}_s3
        {f"s_cmp_gt_i32 s{S_KVN}, s76" if flags else ""}
        s_cbranch_scc0 {name}_s3
        """)
        prefetch(76, 0, False)
        a(f"s_mov_b32 s88, s76")
    a(f"s_branch {name}_s3")
    a.label(f"{name}_s2")
    for w in range(4):
        a(f"ds_read_b128 v[{RP+4*w}:{RP+4*w+3}], v{V_T1} offset:{1024*w}")
    a(f"v_lshrrev_b32 v{V_T1}, 1, v{V_LL}")
    a("s_waitcnt lgkmcnt(2)")
    for i in (0, 2):
        a(f"v_pk_add_f32 v[{RP+i}:{RP+i+1}], v[{RP+i}:{RP+i+1}], v[{RP+4+i}:{RP+4+i+1}]")
    a("s_waitcnt lgkmcnt(0)")
    for i in (0, 2):
        a(f"v_pk_add_f32 v[{RP+8+i}:{RP+8+i+1}], v[{RP+8+i}:{RP+8+i+1}], v[{RP+12+i}:{RP+12+i+1}]")
    for i in (0, 2):
        a(f"v_pk_add_f32 v[{RP+i}:{RP+i+1}], v[{RP+i}:{RP+i+1}], v[{RP+8+i}:{RP+8+i+1}]")
    a(f"v_cvt_pk_bf16_f32 v{KVH}, v{RP}, v{RP+1}")
    a(f"v_cvt_pk_bf16_f32 v{KVH+1}, v{RP+2}, v{RP+3}")
    a(f"ds_write_b64 v{V_T1}, v[{KVH}:{KVH+1}] offset:{L_VM}")
    a("s_waitcnt lgkmcnt(0) vmcnt(0)")
    a.label(f"{name}_s3")
    a(f"""
    s_cmp_eq_u32 s{S_STEP}, {nsteps-1}
    s_cbranch_scc1 {name}_slast
    s_add_u32 s{S_T1}, s{S_SL}, {OXO}
    s_barrier
    """)

    def kv_pub(tag):
        if tag == "b" and flags and E("LASTD", 0):
            klast(a, S_T0, S_H)
            a(f"s_lshl_b32 s77, s{S_J}, 10\ns_add_u32 s{S_T0}, s{S_T0}, s77\nv_min_u32 v{KVH}, -2, v{KVH}")
        else: a(f"""
        s_add_u32 s77, s{S_STEP}, s{S_CU}
        s_bfe_u32 s{S_T0}, s77, 0x30003
        s_lshl_b32 s{S_T0}, s{S_T0}, 14
        s_and_b32 s77, s77, 7
        s_lshl_b32 s77, s77, 10
        s_add_u32 s{S_T0}, s{S_T0}, s77
        s_add_u32 s{S_T0}, s{S_T0}, s{S_KVB}
        """)
        if tag == "a" and flags and E("LASTD", 0) == 2:
            a(f"s_cmp_eq_u32 s{S_STEP}, {nsteps-2}\ns_cselect_b32 s{S_T0}, s88, s{S_T0}\nv_min_u32 v{KVH}, -2, v{KVH}")
        a(f"""
        s_cmp_eq_u32 s{S_WAVE}, 2
        s_cbranch_scc1 {name}_kv2{tag}
        s_mov_b64 exec, s[{S_MKM}:{S_MKM+1}]
        buffer_store_dwordx4 v[{KVH}:{KVH+3}], v{V_OKV}, {SRD}, s{S_T0} offen sc1
        s_mov_b64 exec, -1
        s_branch {name}_kvd{tag}
{name}_kv2{tag}:
        v_lshlrev_b32 v{V_T0}, 3, v{V_L}
        buffer_store_dwordx2 v[{KVH}:{KVH+1}], v{V_T0}, {SRD}, s{S_T0} offen offset:512 sc1
{name}_kvd{tag}:
        """)
    a(f"s_cmp_eq_u32 s{S_WAVE}, 3\ns_cbranch_scc1 {name}_y3")
    if not E("NOKVM", 0):
        kv_pub("a")
    a(f"s_branch {name}_y4")
    a.label(f"{name}_y3")
    if not TAG:
        a(f"s_add_u32 s76, s{S_STEP}, 2\ns_and_b32 s76, s76, 63")
        xuoff(S_XS, 76)
        a(f"s_cmp_lt_u32 s76, 2\ns_cbranch_scc1 {name}_y4")
        a(f"buffer_store_dwordx4 v[{V_POI}:{V_POI+3}], v{V_OXW}, {SRD}, s{S_XS} offen sc1")
    a(f"""
    s_add_u32 s76, s{S_STEP}, 2
    s_cmp_lt_u32 s76, {nsteps-1}
    s_cbranch_scc0 {name}_y4
    """)
    if E("VPOS", 0):
        a(f"s_cmp_eq_u32 s88, s76\ns_cbranch_scc0 {name}_y4")
        prefetch(76, -1, False)
    if not E("NOPF", 0):
        if E("KPF", 1):
            if not E("RF4", 1):
                a(f"s_add_u32 s76, s{S_STEP}, 3")
                prefetch(76, None, skip=f"{name}_y4")
        else:
            prefetch(76, 0, skip=f"{name}_y4")
    a.label(f"{name}_y4")
    if NB3: a(f"s_sleep {NB3}")
    a(f"s_branch {name}_b3")
    a.label(f"{name}_first")
    xread()
    a(f"s_branch {name}_adone")
    a.label(f"{name}_slast")
    a(f"s_cmp_eq_u32 s{S_WAVE}, 3\ns_cbranch_scc1 {name}_end")
    kv_pub("b")
    if not (flags and E("LASTD", 0)):
        a(f"s_waitcnt vmcnt(0)\ns_barrier\ns_mov_b32 s76, {nsteps}\ns_cmp_eq_u32 s{S_WAVE}, 1\ns_cbranch_scc0 {name}_end")
        flag_store(76)
    if E("IW", 2):
        i0 = a.lines.index(f"{name}_loop:")
        import align8
        body = a.lines[i0:]
        sz = align8.sizes([l.split(";")[0].strip() for l in body])
        out, pos, lastl, links = [], 0, -1000, []
        for l in body:
            c = l.split(";")[0].strip()
            far = pos - lastl >= E("IWD", 48)
            if c.startswith("s_nop") and far and (E("IW", 2) == 1 or (E("IW", 2) == 3 and int(c.split()[1]) >= 9)):
                k = int(c.split()[1])
                links.append(len(out)); out.append("X"); lastl = pos
                if k: out.append(f"s_nop {k-1}"); pos += 4
                pos += 4
                continue
            out.append(l)
            if c.startswith(".p2align"):
                al = 1 << int(c.split()[1]); pos = (pos + al - 1) // al * al
            elif align8.is_inst(c):
                pos += sz[c]
                if c.startswith("s_branch") and far:
                    links.append(len(out)); out.append("X"); lastl = pos; pos += 4
        per = (len(links) + 3) // 4
        for n, i in enumerate(links):
            tgt = f"{name}_iwd" if (n + 1) % per == 0 or n + 1 == len(links) else f"{name}_il{n+1}"
            ent = f"{name}_iw{n // per}:\n" if n % per == 0 else ""
            out[i] = f"{ent}{name}_il{n}:\ns_cbranch_execz {tgt}"
        if os.environ.get("WV"): print("links", len(links), "bytes", pos)
        a.lines[i0:] = "\n".join(out).split("\n")
    a.label(f"{name}_end")
    if E("FIXT", 0):
        a(f"""
        s_memrealtime s[50:51]
        s_waitcnt lgkmcnt(0)
        s_sub_u32 s52, s50, s100
        s_mul_i32 s52, s52, {E("FIXM", 0)}
        s_add_u32 s52, s52, {E("FIXT", 0)}
{name}_fx:
        s_memrealtime s[50:51]
        s_waitcnt lgkmcnt(0)
        s_sub_u32 s50, s50, s100
        s_cmp_lt_u32 s50, s52
        s_cbranch_scc1 {name}_fx
        """)
    if ts: ts(4)
    if prof:
        a(f"""
        s_lshl_b32 s{S_T0}, s{S_X}, 5
        s_add_u32 s{S_T0}, s{S_T0}, s{S_T}
        s_lshl_b32 s{S_T0}, s{S_T0}, 2
        s_add_u32 s{S_T0}, s{S_T0}, s{S_WAVE}
        s_lshl_b32 s{S_T0}, s{S_T0}, 6
        s_add_u32 s{S_T0}, s{S_T0}, {WS_PROF}
        v_mov_b32 v{V_T1}, 0
        s_mov_b64 exec, 1
        """)
        for i in range(16):
            a(f"v_mov_b32 v{V_T0}, s{50+i}")
            a(f"buffer_store_dword v{V_T0}, v{V_T1}, {SRD}, s{S_T0} offen offset:{4*i}")
            a("s_nop 1")
    a("s_endpgm")


def gen_rec_standalone(a: Asm, name, prof=False, force_slow=False):
    a.kernel_begin(name)
    a(f"s_cmp_ge_u32 s2, 256\ns_cbranch_scc1 {name}_exit")
    start_code(a, name)
    a(f"""
    s_sub_u32 s40, s90, 6
    s_lshl_b32 s40, s40, 5
    s_add_u32 s40, s40, s96
    s_cmp_lt_u32 s90, 4
    s_cbranch_scc0 {name}_oth
    s_mov_b32 s{S_X}, s90
    s_mov_b32 s{S_T}, s96
    """)
    rec_body(a, name + "_f", "", lambda vt, pre=False: sync_code(a, name, "r", vt, pre=pre), prof=prof, flags=False)
    a.label(f"{name}_oth")
    a(f"s_cmp_lt_u32 s40, {NI}\ns_cbranch_scc0 {name}_exit")
    init_cd(a, name, 40)
    a.label(f"{name}_slowent")
    a.label(f"{name}_exit")
    a("s_endpgm")
    return kd(name, 512, sgpr=102, accum=256)


if __name__ == "__main__":
    import sys
    a = Asm()
    name = "rec_kernel"
    k = gen_rec_standalone(a, name, prof=("prof" in sys.argv), force_slow=("slow" in sys.argv))
    out = HEADER + f"; @launch kernel={name} grid=(256,1,1) block=(256,1,1) lds=163840\n"
    out += '.amdgcn_target "amdgcn-amd-amdhsa--gfx950"\n.text\n' + a.text() + '.section .rodata,"a"\n' + k
    open(os.environ.get("OUT", "rec.s"), "w").write(out)
```

```python
from gen_common import *

S_X, S_T = 30, 31
S_WSD, S_DBG = 84, 72
E = lambda k, d: int(os.environ.get(k, d))


D_VOTE, D_PD, D_SLOW, D_PD2 = 128, 160, 192, 224
CL_ = [0, 1, 2, 3, 9, 11, 13, 15] if E('T2L', 0) else list(range(8))
NI = E('NI', 32)


def start_code(a: Asm, name):
    W, D = S_WSD, S_DBG
    a(f"""
    s_load_dwordx2 s[{W}:{W+1}], s[0:1], {KA_WS}
    s_load_dwordx2 s[{D}:{D+1}], s[0:1], {KA_DBG}
    s_getreg_b32 s90, hwreg(HW_REG_XCC_ID)
    s_and_b32 s90, s90, {E('FAKE', 7)}
    {'s_or_b32 s90, s90, ' + os.environ['FAKO'] if 'FAKO' in os.environ else ''}
    v_mov_b32 v1, 0
    v_mov_b32 v2, 1
    s_lshl_b32 s91, s90, 2
    s_lshr_b32 s91, {sum(v << (4 * i) for i, v in enumerate(CL_))}, s91
    s_and_b32 s91, s91, 15
    s_lshl_b32 s91, s91, 4
    s_mov_b32 s95, 0
    s_mov_b32 s99, 0
    s_waitcnt lgkmcnt(0)
    s_mov_b32 s{W+2}, {WS_BYTES}
    s_mov_b32 s{W+3}, 0x00020000
    s_mov_b32 s{D+2}, 256
    s_mov_b32 s{D+3}, 0x00020000
    v_cmp_eq_u32 vcc, 0, v0
    s_and_saveexec_b64 s[88:89], vcc
    s_cbranch_execz {name}_tkd
    s_lshl_b32 s92, s2, 13
    s_add_u32 s92, s92, {WS_CAL}
    buffer_atomic_add v2, v1, s[{D}:{D+3}], s91 offen sc0
    buffer_load_dword v251, v1, s[{W}:{W+3}], s92 offen offset:2048 sc1
    s_waitcnt vmcnt(1)
    ds_write_b32 v1, v2
    s_waitcnt lgkmcnt(0)
{name}_tkd:
    s_mov_b64 exec, s[88:89]
    s_barrier
    ds_read_b32 v2, v1
    s_waitcnt lgkmcnt(0)
    v_readfirstlane_b32 s96, v2
    s_barrier
    """)


def klast(a: Asm, dst, h, add=0, far=1):
    a(f"""
    s_lshr_b32 s{dst}, s{h}, 2
    s_lshl_b32 s{dst}, s{dst}, 17
    s_and_b32 s77, s{h}, 2
    s_lshl_b32 s77, s77, 13
    s_add_u32 s{dst}, s{dst}, s77
    s_and_b32 s77, s{h}, 1
    s_lshl_b32 s77, s77, 12
    s_add_u32 s{dst}, s{dst}, s77
    s_xor_b32 s77, s98, {far}
    s_lshl_b32 s77, s77, 13
    s_add_u32 s{dst}, s{dst}, s77
    s_add_u32 s{dst}, s{dst}, {WS_I + 98304 + add}
    """)


def sync_issue(a: Asm, vt):
    a(f"""
    v_and_b32 v{vt+1}, 15, v0
    v_lshlrev_b32 v{vt+1}, 4, v{vt+1}
    buffer_load_dword v{vt}, v{vt+1}, s[{S_DBG}:{S_DBG+3}], 0 offen sc1
    """)


def sync_code(a: Asm, kname, tag, vt, force_slow=False, pre=False):
    D = S_DBG
    n = f"{kname}_sy{tag}"
    a(f"""
    v_and_b32 v{vt+1}, 15, v0
    v_lshlrev_b32 v{vt+1}, 4, v{vt+1}
    s_branch {n}{"p" if pre else ""}
{n}w:
    s_sleep 4
{n}:
    """)
    wd_code(a, n)
    a(f"""
    buffer_load_dword v{vt}, v{vt+1}, s[{D}:{D+3}], 0 offen sc1
    s_waitcnt vmcnt(0)
{n}p:
    s_cmp_eq_u32 s95, 1
    s_cbranch_scc0 {n}f
    v_readlane_b32 s76, v{vt}, {D_PD2 // 16}
    s_mov_b32 s98, 0
    s_cmp_eq_u32 s76, {NI}
    s_cbranch_scc0 {n}w
    s_branch {n}d
{n}f:
    s_mov_b32 s77, 0
    s_mov_b32 s78, 0
    """)
    for i in range(8):
        a(f"v_readlane_b32 s76, v{vt}, {CL_[i]}\ns_add_u32 s77, s77, s76\ns_xor_b32 s76, s76, 32\ns_or_b32 s78, s78, s76")
    a(f"""
    s_cmp_eq_u32 s77, 256
    s_cbranch_scc0 {n}w
    {"s_mov_b32 s78, 1" if force_slow else ""}
    v_mov_b32 v252, v{vt}
    s_cmp_eq_u32 s78, 0
    s_cbranch_scc0 {kname}_slowent
    v_readlane_b32 s76, v{vt}, {D_PD // 16}
    v_readlane_b32 s77, v{vt}, {D_VOTE // 16}
    s_cmp_eq_u32 s76, {NI}
    s_cbranch_scc0 {n}w
    s_cmp_gt_u32 s77, {NI // 2}
    s_cselect_b32 s98, 1, 0
    {f"s_xor_b32 s98, s98, {os.environ['PAR']}" if "PAR" in os.environ else ""}
{n}d:
    """)


def slow_entry(a: Asm, name):
    D = S_DBG
    a.label(f"{name}_slowent")
    a(f"""
    s_mov_b64 exec, -1
    s_waitcnt vmcnt(0) lgkmcnt(0)
    s_barrier
    s_mov_b32 s97, s96
    """)
    for i in range(7):
        a(f"v_readlane_b32 s76, v252, {CL_[i]}\ns_cmp_gt_u32 s90, {i}\ns_cselect_b32 s76, s76, 0\ns_add_u32 s97, s97, s76")
    a(f"""
    v_mov_b32 v1, 0
    v_mov_b32 v2, 1
    v_cmp_eq_u32 vcc, 0, v0
    s_and_saveexec_b64 s[88:89], vcc
    s_cbranch_execz {name}_sb1
    buffer_atomic_add v2, v1, s[{D}:{D+3}], 0 offen offset:{D_SLOW} sc1
{name}_sb1:
    s_mov_b64 exec, s[88:89]
{name}_sb2:
    s_sleep 4
    """)
    wd_code(a, "slowbar")
    a(f"""
    buffer_load_dword v2, v1, s[{D}:{D+3}], 0 offen offset:{D_SLOW} sc1
    s_waitcnt vmcnt(0)
    v_cmp_ne_u32 vcc, 256, v2
    s_cbranch_vccnz {name}_sb2
    s_mov_b32 s95, 1
    """)


def init_cd(a: Asm, name, idx):
    W, D = S_WSD, S_DBG
    a(f"""
    v_mov_b32 v8, -1
    v_mov_b32 v9, -1
    v_mov_b32 v10, -1
    v_mov_b32 v11, -1
    v_lshlrev_b32 v1, 4, v0
    v_mov_b32 v2, 0
    v_cmp_gt_u32 vcc, 64, v0
    s_cbranch_vccz {name}_nv
    s_cmp_eq_u32 s95, 0
    s_cbranch_scc0 {name}_nv
    ; latency samples of both parities (order alternates with idx), sign vote
    s_lshr_b32 s60, s2, 1
    s_lshl_b32 s60, s60, 14
    s_and_b32 s61, s{idx}, 1
    s_lshl_b32 s66, s61, 13
    s_add_u32 s60, s60, s66
    s_and_b32 s66, s2, 1
    s_lshl_b32 s66, s66, 10
    s_add_u32 s60, s60, s66
    s_add_u32 s60, s60, {WS_CAL}
    s_mov_b32 s66, 0x7fffffff
    s_mov_b32 s67, 0x7fffffff
    s_mov_b64 exec, 0xff
    s_waitcnt vmcnt(0)
    """)
    for i in range(E("NSAMP", 4)):
        a(f"""
        s_memtime s[62:63]
        s_waitcnt lgkmcnt(0)
        buffer_store_dwordx4 v[8:11], v1, s[{W}:{W+3}], s60 offen offset:{256 * (i >> 1)} sc1
        s_waitcnt vmcnt(0)
        s_memtime s[64:65]
        s_xor_b32 s60, s60, 8192
        s_waitcnt lgkmcnt(0)
        s_sub_u32 s64, s64, s62
        s_min_u32 s{66 + (i & 1)}, s{66 + (i & 1)}, s64
        """)
    a(f"""
    s_cmp_lt_u32 s67, s66
    s_cselect_b32 s60, 1, 0
    s_xor_b32 s60, s60, s61          ; parity that is near this XCD
    s_lshr_b32 s61, s90, 2
    s_xor_b32 s60, s60, s61
    v_mov_b32 v3, s60
    s_mov_b64 exec, 1
    buffer_atomic_add v3, v2, s[{D}:{D+3}], 0 offen offset:{D_VOTE} sc1
    s_mov_b64 exec, -1
{name}_nv:
    s_barrier
    s_lshl_b32 s60, s{idx}, 12
    s_add_u32 s60, s60, {WS_H}
    """)
    for i in range(512 // NI):
        a(f"buffer_store_dwordx4 v[8:11], v1, s[{W}:{W+3}], s60 offen sc1")
        a(f"s_add_u32 s60, s60, {NI * 4096}")
    a(f"""
    s_lshr_b32 s62, s{idx}, 1
    s_and_b32 s63, s{idx}, 1
    s_add_u32 s63, s63, s62
    s_lshl_b32 s62, s62, 19
    s_and_b32 s64, s63, 14
    s_lshl_b32 s64, s64, 13
    s_add_u32 s62, s62, s64
    s_and_b32 s64, s63, 1
    s_lshl_b32 s64, s64, 12
    s_add_u32 s62, s62, s64
    s_add_u32 s62, s62, {WS_XU}
    {"" if E("TAG", 1) else f"buffer_store_dwordx4 v[8:11], v1, s[{W}:{W+3}], s62 offen sc1"}
    s_add_u32 s62, s62, 8192
    {"" if E("TAG", 1) else f"buffer_store_dwordx4 v[8:11], v1, s[{W}:{W+3}], s62 offen sc1"}
    s_cmp_lt_u32 s{idx}, 16
    s_cbranch_scc0 {name}_pz
    buffer_store_dwordx4 v[8:11], v1, s[{W}:{W+3}], s60 offen sc1
{name}_pz:
    s_waitcnt vmcnt(0)
    s_barrier
    v_mov_b32 v3, 1
    s_lshl_b32 s62, s95, 6
    v_cmp_eq_u32 vcc, 0, v0
    s_and_saveexec_b64 s[60:61], vcc
    s_cbranch_execz {name}_xps
    buffer_atomic_add v3, v2, s[{D}:{D+3}], s62 offen offset:{D_PD} sc1
{name}_xps:
    s_mov_b64 exec, s[60:61]
    """)


def rec_body(a: Asm, name, IS, sync, nsteps=64, prof=False, flags=True, ts=None):
    W = S_WSD
    SRD = f"s[{W}:{W+3}]"
    S_WQ, S_WK, S_WV, S_WO, S_M0 = 4, 8, 12, 16, 20
    S_WAVE, S_H, S_J, S_STEP, S_T0, S_T1 = 24, 25, 26, 27, 28, 29
    S_C = 32
    S_SL, S_SLO = 33, 34
    S_XS, S_XSO = 35, 36
    S_P = 37
    S_MN8, S_MMEM = 40, 42
    S_XBR, S_XBW = 44, 45
    S_KVN = 46
    S_KVB, S_FLB, S_CU, S_KXB, S_TAG = 79, 81, 82, 83, 47
    S_LATE, S_WARM = 36, 89
    ONE, LS, ZER = 220, 224, 228
    S_MKM = 48
    V_L, V_G, V_M, V_T0, V_T1, V_IDX = 1, 2, 3, 4, 5, 6
    V_OMEM, V_OM0, V_OPUB, V_OSCM, V_OOP, V_OXW, V_OXR = 7, 8, 9, 10, 11, 12, 13
    V_LWQ, V_LWK, V_LRR, V_LL, V_LWO, V_LRO, V_LVW, V_LVR, V_OKV, V_NEG, V_OFL = 14, 15, 16, 17, 18, 19, 20, 21, 22, 23, 24
    V_POI = 28
    MA, AQ, AV = 32, 96, 112
    RP, R, KX, VTX, S, PL = 120, 152, 156, 164, 172, 184
    VM, P, PM, O, TMP = 208, 212, 216, 120, 232
    MO, AO, KVH = 32, 96, 244
    A_W1, A_WO = 0, 192
    L_QK, L_VP, L_OP, L_VM, L_XB, L_ST = 0, 9216, 13312, 17920, 18432, 32768

    TAG = E("TAG", 1)
    DA = E("DA", 0)
    WPAD, SCS = E("WPAD", 0), E("SCS", 1280)
    OXO, SCO = 24576, 49152

    def wdog():
        wd_code(a, name + ":" + a.lines[-1], f"s{S_STEP}")

    def stamp(i):
        if E("TR", 0):
            if i == 0: return
            if i < 11: a(f"s_memtime s[{48+2*i}:{49+2*i}]")
            if i == 11:
                a("s_memrealtime s[70:71]\ns_memtime s[100:101]\ns_waitcnt lgkmcnt(0)\nv_writelane_b32 v250, s100, 12")
                for k in range(1, 12):
                    a(f"v_writelane_b32 v250, s{48+2*k}, {k}")
                a(f"v_writelane_b32 v250, s99, 0")
                a(f"""
                s_lshl_b32 s80, s{S_X}, 5
                s_add_u32 s80, s80, s{S_T}
                s_lshl_b32 s80, s80, 2
                s_add_u32 s80, s80, s{S_WAVE}
                s_lshl_b32 s80, s80, 6
                s_add_u32 s80, s80, s{S_STEP}
                s_lshl_b32 s80, s80, 6
                s_add_u32 s80, s80, {WS_PROF}
                v_lshlrev_b32 v251, 2, v{V_L}
                s_mov_b64 exec, 0xffff
                buffer_store_dword v250, v251, {SRD}, s80 offen
                s_mov_b64 exec, -1
                """)
            return
        if not prof or i == 11:
            return
        a("s_memtime s[66:67]")
        a("s_waitcnt lgkmcnt(0)")
        a("s_sub_u32 s68, s66, s69")
        a(f"s_add_u32 s{50+i}, s{50+i}, s68")
        a("s_mov_b32 s69, s66")

    if prof:
        for i in range(16):
            a(f"s_mov_b32 s{50+i}, 0")
        a("s_memtime s[66:67]\ns_waitcnt lgkmcnt(0)\ns_mov_b32 s69, s66")
    if ts: ts(1)
    a(f"""
    s_load_dwordx2 s[{S_M0}:{S_M0+1}], s[0:1], {KA_MEM0}
    s_load_dwordx2 s[{S_WO}:{S_WO+1}], s[0:1], {KA_WO}
    s_load_dwordx2 s[{S_WQ}:{S_WQ+1}], s[0:1], {KA_WQ}
    s_load_dwordx2 s[{S_WK}:{S_WK+1}], s[0:1], {KA_WK}
    s_load_dwordx2 s[{S_WV}:{S_WV+1}], s[0:1], {KA_WV}
    v_lshrrev_b32 v{V_T0}, 6, v0
    v_and_b32 v{V_L}, 63, v0
    v_readfirstlane_b32 s{S_WAVE}, v{V_T0}
    v_lshrrev_b32 v{V_G}, 4, v{V_L}
    v_and_b32 v{V_M}, 15, v{V_L}
    v_lshlrev_b32 v{V_LL}, 4, v{V_L}
    s_lshr_b32 s{S_T0}, s{S_T}, 2
    s_lshl_b32 s{S_H}, s{S_X}, 3
    s_add_u32 s{S_H}, s{S_H}, s{S_T0}
    s_and_b32 s{S_J}, s{S_T}, 3
    s_waitcnt lgkmcnt(0)
    s_mov_b32 s{S_M0+2}, 16384
    s_mov_b32 s{S_M0+3}, 0x00020000
    """)
    for s in (S_WO, S_WQ, S_WK, S_WV):
        a(f"s_mov_b32 s{s+2}, {8*MB}\ns_mov_b32 s{s+3}, 0x00020000")
    FULL = E("FULL", 0)
    CL = 2 + FULL
    a(f"""
    s_lshl_b32 s{S_T0}, s{S_H}, 8
    s_lshr_b32 s{S_T1}, s{S_J}, {FULL}
    s_lshl_b32 s{S_T1}, s{S_T1}, {6 + FULL}
    s_add_u32 s{S_T0}, s{S_T0}, s{S_T1}
    s_lshl_b32 s{S_T1}, s{S_WAVE}, 21
    s_add_u32 s{S_T0}, s{S_T0}, s{S_T1}
    v_lshrrev_b32 v{V_T0}, {CL}, v{V_L}
    v_and_b32 v{V_T1}, {(1 << CL) - 1}, v{V_L}
    v_lshlrev_b32 v40, 13, v{V_T0}
    v_lshl_add_u32 v40, v{V_T1}, 4, v40
    v_add_u32 v40, s{S_T0}, v40
    s_lshl_b32 s{S_T0}, s{S_X}, 21
    s_lshl_b32 s{S_T1}, s{S_WAVE}, 19
    s_add_u32 s{S_T0}, s{S_T0}, s{S_T1}
    s_lshr_b32 s{S_T1}, s{S_T}, {FULL}
    s_lshl_b32 s{S_T1}, s{S_T1}, {6 + FULL}
    s_add_u32 s{S_T0}, s{S_T0}, s{S_T1}
    v_lshlrev_b32 v41, 11, v{V_T0}
    v_lshl_add_u32 v41, v{V_T1}, 4, v41
    v_add_u32 v41, s{S_T0}, v41
    s_lshl_b32 s47, s{S_WAVE}, 15
    s_add_u32 s47, s47, {L_ST}
    """)
    order = [int(c) for c in os.environ.get("WORD", "1203")]
    PH = [(c, p) for c in order for p in range(1 << FULL)]
    RI = 64 >> CL

    def wdma(n):
        c, p = PH[n]
        srd = (S_WQ, S_WK, S_WV, S_WO)[c]
        if E("HELP", 1):
            a(f"buffer_load_dword v50, v{51 if c < 3 else 52}, s[{srd}:{srd+3}], 0 offen")
        if E("RX", 0):
            a(f"buffer_load_dword v50, v{58 if c < 3 else 59}, s[{srd}:{srd+3}], 0 offen")
        for r in range(16):
            if E("PSW", 1):
                a(f"s_xor_b32 s{S_T1}, s76, {r}")
                a(f"s_lshl_b32 s{S_T0}, s{S_T1}, 10")
                a(f"s_add_u32 s{S_T0}, s{S_T0}, s47")
                a(f"s_add_u32 m0, s{S_T0}, {(n & 1)*16384}")
                a(f"s_lshl_b32 s{S_T1}, s{S_T1}, {17 if c < 3 else 15}")
            else:
                a(f"s_add_u32 m0, s47, {(n & 1)*16384 + 1024*r}")
                a(f"s_mov_b32 s{S_T1}, {RI * (16 * p + r) * (8192 if c < 3 else 2048)}")
            a(f"buffer_load_dwordx4 v{40 if c < 3 else 41}, s[{srd}:{srd+3}], s{S_T1} offen {'nt ' if (E('RNT', 0) >> c) & 1 else ''}lds")
    WT = E("WT", 0)
    assert not (WT and FULL)
    a(f"""
    s_lshl_b32 s{S_T0}, s{S_T}, 18
    s_lshl_b32 s{S_T1}, s{S_WAVE}, 16
    s_add_u32 s{S_T0}, s{S_T0}, s{S_T1}
    s_lshl_b32 s{S_T1}, s{S_X}, 11
    s_add_u32 s{S_T0}, s{S_T0}, s{S_T1}
    v_lshlrev_b32 v48, 13, v{V_G}
    v_lshl_add_u32 v48, v{V_M}, 7, v48
    v_add_u32 v48, s{S_T0}, v48
    s_lshl_b32 s{S_T0}, s{S_X}, 21
    s_lshl_b32 s{S_T1}, s{S_T}, 16
    s_add_u32 s{S_T0}, s{S_T0}, s{S_T1}
    s_lshl_b32 s{S_T1}, s{S_WAVE}, 14
    s_add_u32 s{S_T0}, s{S_T0}, s{S_T1}
    v_lshlrev_b32 v49, 7, v{V_L}
    v_add_u32 v49, s{S_T0}, v49
    """)

    a(f"""
    s_and_b32 s76, s{S_T}, 1
    s_mul_i32 s76, s76, {E("PSW", 1) * 8 if E("PSW", 1) < 2 else E("PSW", 1)}
    ; helper touch of the slow lines: row = 256w + 16*(l&15... ) : rows w*256 + (t&15)*16 + (l&15), col (t>>4)*1024 + 384
    s_and_b32 s{S_T0}, s{S_T}, 15
    s_lshl_b32 s{S_T0}, s{S_T0}, 4
    s_lshl_b32 s{S_T1}, s{S_WAVE}, 8
    s_add_u32 s{S_T0}, s{S_T0}, s{S_T1}
    v_add_u32 v53, s{S_T0}, v{V_M}
    s_lshr_b32 s{S_T0}, s{S_T}, 4
    s_lshl_b32 s{S_T0}, s{S_T0}, 10
    s_add_u32 s{S_T0}, s{S_T0}, 384
    v_mov_b32 v54, s{S_T0}
    v_mov_b32 v55, 1920
    v_cmp_gt_u32 vcc, 32, v{V_L}
    s_nop 1
    v_cndmask_b32 v54, v55, v54, vcc
    s_lshl_b32 s{S_T1}, s{S_X}, 11
    v_lshl_add_u32 v51, v53, 13, v54
    v_add_u32 v51, s{S_T1}, v51
    s_lshl_b32 s{S_T1}, s{S_X}, 21
    v_lshl_add_u32 v52, v53, 11, v54
    v_add_u32 v52, s{S_T1}, v52
    """)

    if E("RX", 0):
        a(f"""
        s_lshl_b32 s{S_T0}, s{S_WAVE}, 8
        s_lshl_b32 s{S_T1}, s76, 4
        s_add_u32 s{S_T0}, s{S_T0}, s{S_T1}
        s_add_u32 s{S_T0}, s{S_T0}, 64
        v_add_u32 v57, s{S_T0}, v{V_L}
        s_xor_b32 s{S_T0}, s{S_T}, {E("RX", 0)}
        s_lshl_b32 s{S_T0}, s{S_T0}, 6
        s_lshl_b32 s{S_T1}, s{S_X}, 11
        s_add_u32 s{S_T1}, s{S_T1}, s{S_T0}
        v_lshlrev_b32 v58, 13, v57
        v_add_u32 v58, s{S_T1}, v58
        s_lshl_b32 s{S_T1}, s{S_X}, 21
        s_add_u32 s{S_T1}, s{S_T1}, s{S_T0}
        v_lshlrev_b32 v59, 11, v57
        v_add_u32 v59, s{S_T1}, v59
        """)
    NSELF = E("NSELF", 0)
    XF, XA = 64, 192
    if NSELF:
        assert order[:2] == [1, 2] and not FULL
        a(f"""
        s_load_dwordx2 s[56:57], s[0:1], {KA_AX}
        v_lshrrev_b32 v56, 1, v{V_G}
        v_lshlrev_b32 v56, 5, v56
        v_and_b32 v57, 1, v{V_G}
        v_lshl_add_u32 v56, v57, 3, v56
        v_lshl_add_u32 v56, v{V_M}, 11, v56
        s_lshl_b32 s{S_T0}, s{S_WAVE}, 9
        v_add_u32 v56, s{S_T0}, v56
        s_mov_b32 s58, {4*MB}
        s_mov_b32 s59, 0x00020000
        s_waitcnt lgkmcnt(0)
        """)
        for zt in range(2 * NSELF):
            a(f"s_mov_b32 s{S_T1}, {zt * 32768}")
            for hk in range(8):
                f = XF + (zt * 8 + hk) * 4
                a(f"buffer_load_dwordx2 v[{f}:{f+1}], v56, s[56:59], s{S_T1} offen offset:{64*hk}")
                a(f"buffer_load_dwordx2 v[{f+2}:{f+3}], v56, s[56:59], s{S_T1} offen offset:{64*hk+16}")

    def selfproj(isV):
        if not isV:
            for f in range(16 * NSELF):
                a(f"v_swap_b32 v{XF+4*f+1}, v{XF+4*f+2}")
            a(f"""
            s_lshl_b32 s{S_T0}, s{S_WAVE}, 12
            v_add_u32 v57, s{S_T0}, v{V_LL}
            v_lshlrev_b32 v60, 3, v0
            v_add_u32 v60, {L_XB}, v60
            v_bfe_u32 v61, v0, 1, 4
            v_lshlrev_b32 v58, 4, v61                    ; m*16
            v_and_b32 v61, 1, v0
            v_lshrrev_b32 v62, 5, v0
            v_lshl_add_u32 v59, v61, 11, v58             ; V: tt*2048
            v_lshl_add_u32 v59, v62, 8, v59              ;   + u*1024 + g*256
            v_lshl_add_u32 v58, v61, 8, v58              ; K: hf*256
            v_lshl_add_u32 v58, v62, 9, v58              ;   + (tt*2048 + u*1024 + (g'&1)*512)
            """)
        for z in range(NSELF):
            for hk in range(8):
                for tt in range(2):
                    for u in range(2):
                        d, f = XA + 8 * tt + 4 * u, XF + ((2 * z + tt) * 8 + hk) * 4
                        w = A_W1 + (((2 if isV else 1) * 2 + u) * 4 + (hk >> 1)) * 8 + 4 * (hk & 1)
                        c = "0" if hk == 0 else f"v[{d}:{d+3}]"
                        if isV: a(f"v_mfma_f32_16x16x32_bf16 v[{d}:{d+3}], v[{f}:{f+3}], a[{w}:{w+3}], {c}")
                        else: a(f"v_mfma_f32_16x16x32_bf16 v[{d}:{d+3}], a[{w}:{w+3}], v[{f}:{f+3}], {c}")
            a("s_barrier")
            a.nops(8)
            for i in range(4):
                a(f"ds_write_b128 v57, v[{XA+4*i}:{XA+4*i+3}] offset:{1024*i}")
            a("s_waitcnt lgkmcnt(0)\ns_barrier")
            for w in range(4):
                a(f"ds_read_b128 v[{XA+16+4*w}:{XA+16+4*w+3}], v{59 if isV else 58} offset:{4096*w}")
            a("s_waitcnt lgkmcnt(0)")
            b = XA + 16
            for i in (0, 2):
                a(f"v_pk_add_f32 v[{b+i}:{b+i+1}], v[{b+i}:{b+i+1}], v[{b+4+i}:{b+4+i+1}]")
                a(f"v_pk_add_f32 v[{b+8+i}:{b+8+i+1}], v[{b+8+i}:{b+8+i+1}], v[{b+12+i}:{b+12+i+1}]")
            for i in (0, 2):
                a(f"v_pk_add_f32 v[{b+i}:{b+i+1}], v[{b+i}:{b+i+1}], v[{b+8+i}:{b+8+i+1}]")
            a(f"v_cvt_pk_bf16_f32 v{b+4}, v{b}, v{b+1}\nv_cvt_pk_bf16_f32 v{b+5}, v{b+2}, v{b+3}")
            a(f"ds_write_b64 v60, v[{b+4}:{b+5}] offset:{4096*z + (2048 if isV else 0)}")

    def wtouch(n):
        c, p = PH[n]
        srd = (S_WQ, S_WK, S_WV, S_WO)[c]
        for i in range(2):
            a(f"s_mov_b32 s{S_T1}, {i * (32768 if c < 3 else 8192)}")
            a(f"buffer_load_dword v50, v{48 if c < 3 else 49}, s[{srd}:{srd+3}], s{S_T1} offen")
    if WT == 1:
        wtouch(0); wtouch(1); wdma(0); wtouch(2); wdma(1); wtouch(3)
    elif WT == 2:
        wtouch(0); wtouch(1); wtouch(2); wtouch(3); wdma(0); wdma(1)
    else:
        wdma(0); wdma(1)
    a(f"""
    s_mov_b32 s{S_MN8}, 0x00ff00ff
    s_mov_b32 s{S_MN8+1}, 0x00ff00ff
    s_mov_b32 s{S_MKM}, 0xff00ff00
    s_mov_b32 s{S_MKM+1}, 0xff00ff00
    s_mov_b32 s{S_MMEM}, 0
    s_mov_b32 s{S_MMEM+1}, 0x00ff00ff
    s_mov_b32 s{S_C}, 0x3e0293ee
    v_mov_b32 v{V_NEG}, 0xff800000
    v_mov_b32 v{V_IDX}, 0x4444
    v_mov_b32 v{V_T0}, 0xeeee
    v_cndmask_b32 v{V_IDX}, v{V_IDX}, v{V_T0}, s[{S_MKM}:{S_MKM+1}]
    v_mov_b32 v{V_POI}, -1
    v_mov_b32 v{V_POI+1}, -1
    v_mov_b32 v{V_POI+2}, -1
    v_mov_b32 v{V_POI+3}, -1
    s_mul_i32 s{S_T0}, s{S_WAVE}, {4096 + WPAD}
    v_add_u32 v{V_OMEM}, s{S_T0}, v{V_LL}
    v_and_b32 v{V_T0}, 7, v{V_L}
    v_lshlrev_b32 v{V_OM0}, 11, v{V_T0}
    v_lshrrev_b32 v{V_T1}, 3, v{V_L}
    v_lshl_add_u32 v{V_OM0}, v{V_T1}, 4, v{V_OM0}
    s_lshl_b32 s{S_T0}, s{S_WAVE}, 9
    v_add_u32 v{V_OM0}, s{S_T0}, v{V_OM0}
    s_lshl_b32 s{S_T0}, s{S_T}, 9
    s_lshr_b32 s{S_T1}, s{S_T}, 3
    s_mul_i32 s{S_T1}, s{S_T1}, {WPAD}
    s_add_u32 s{S_T0}, s{S_T0}, s{S_T1}
    v_lshlrev_b32 v{V_OPUB}, 3, v{V_L}
    v_add_u32 v{V_OPUB}, s{S_T0}, v{V_OPUB}
    ; o publish: 16384 + t*512 + g*128 + (m&7)*16
    v_and_b32 v{V_T0}, 7, v{V_M}
    v_lshlrev_b32 v{V_OOP}, 7, v{V_G}
    v_lshl_add_u32 v{V_OOP}, v{V_T0}, 4, v{V_OOP}
    v_add_u32 v{V_OKV}, 0, v{V_OOP}              ; g*128 + (m&7)*16 (k_m publish)
    s_add_u32 s{S_T0}, s{S_T0}, {OXO}
    v_add_u32 v{V_OOP}, s{S_T0}, v{V_OOP}
    v_and_b32 v{V_T1}, 1, v{V_G}
    v_lshlrev_b32 v{V_OSCM}, 7, v{V_T1}
    v_lshl_add_u32 v{V_OSCM}, v{V_T0}, 4, v{V_OSCM}
    v_add_u32 v{V_OSCM}, 1024, v{V_OSCM}
    ; partner score offsets: 32768 + (t ^ p)*2048, own in S_P+3 (s47 later); kept relative to slot base
    """)
    for p in range(1, 4):
        a(f"""
        s_xor_b32 s{S_P+p-1}, s{S_T}, {p}
        s_mul_i32 s{S_P+p-1}, s{S_P+p-1}, {SCS}
        s_add_u32 s{S_P+p-1}, s{S_P+p-1}, {SCO}
        """)
    a(f"""
    ; LDS: q/k partial write: w*2304 + (4*(g&1))*144 + ((g>>1)*16 + m)*4
    v_and_b32 v{V_T0}, 1, v{V_G}
    v_mul_u32_u24 v{V_LWQ}, 576, v{V_T0}
    v_lshrrev_b32 v{V_T1}, 1, v{V_G}
    v_lshl_add_u32 v{V_T1}, v{V_T1}, 4, v{V_M}
    v_lshl_add_u32 v{V_LWQ}, v{V_T1}, 2, v{V_LWQ}
    s_mul_i32 s{S_T0}, s{S_WAVE}, {0 if DA & 2 else 1152}
    s_add_u32 s{S_T0}, s{S_T0}, {L_OP}
    v_add_u32 v{V_LWO}, s{S_T0}, v{V_LWQ}
    s_mul_i32 s{S_T0}, s{S_WAVE}, {0 if DA & 1 else 2304}
    v_add_u32 v{V_LWQ}, s{S_T0}, v{V_LWQ}
    v_add_u32 v{V_LWK}, 1152, v{V_LWQ}
    ; R read: m*144 + g*32
    v_mul_u32_u24 v{V_LRR}, 144, v{V_M}
    v_lshl_add_u32 v{V_LRR}, v{V_G}, 5, v{V_LRR}
    ; O partial read: L_OP + ((l>>1)&7)*144 + (2*(l>>4) + (l&1))*16
    v_bfe_u32 v{V_T0}, v{V_L}, 1, 3
    v_mul_u32_u24 v{V_LRO}, 144, v{V_T0}
    v_lshl_add_u32 v{V_LRO}, v{V_G}, 5, v{V_LRO}
    v_and_b32 v{V_T0}, 1, v{V_L}
    v_lshl_add_u32 v{V_LRO}, v{V_T0}, 4, v{V_LRO}
    v_add_u32 v{V_LRO}, {L_OP}, v{V_LRO}
    ; v partial write: L_VP + w*1024 + lane*16 ; read (tile u at +512u): L_VP + (l&31)*16
    s_lshl_b32 s{S_T0}, s{S_WAVE}, 10
    s_add_u32 s{S_T0}, s{S_T0}, {L_VP}
    v_add_u32 v{V_LVW}, s{S_T0}, v{V_LL}
    v_and_b32 v{V_T0}, 31, v{V_L}
    v_lshlrev_b32 v{V_LVR}, 3, v{V_T0}
    v_add_u32 v{V_LVR}, {L_VM}, v{V_LVR}
    v_lshrrev_b32 v{V_T0}, 2, v{V_M}             ; r
    v_and_b32 v42, 1, v{V_T0}                    ; r&1
    v_lshrrev_b32 v43, 1, v{V_T0}                ; r>>1
    v_lshrrev_b32 v44, 1, v{V_G}                 ; g>>1
    v_and_b32 v45, 1, v{V_G}                     ; g&1
    v_lshl_add_u32 v46, v44, 4, v42
    v_lshl_add_u32 v46, v45, 2, v46
    v_lshl_add_u32 v46, v43, 3, v46              ; W1 row
    v_lshl_add_u32 v47, v44, 3, v42
    v_lshl_add_u32 v47, v45, 4, v47
    v_lshl_add_u32 v47, v43, 2, v47
    v_and_b32 v{V_T1}, 3, v{V_M}
    v_lshlrev_b32 v{V_T1}, 3, v{V_T1}
    v_lshl_add_u32 v46, v46, {6 + FULL}, v{V_T1}
    v_lshl_add_u32 v47, v47, {6 + FULL}, v{V_T1}
    s_and_b32 s{S_T0}, s{S_T}, {FULL}
    s_lshl_b32 s{S_T0}, s{S_T0}, 6
    s_add_u32 s{S_T0}, s{S_T0}, s47
    v_add_u32 v46, s{S_T0}, v46
    v_add_u32 v47, s{S_T0}, v47
    """)

    def wtr(n):
        c, p = PH[n]
        nk = 4 >> FULL
        for u in range(2):
            for k in range(nk * p, nk * p + nk):
                d = (A_W1 + ((c * 2 + u) * 4 + k) * 8) if c < 3 else (A_WO + (u * 4 + k) * 8)
                for Pp in range(4):
                    off = (n & 1) * 16384 + ((64 * (k - nk * p) + 32 * (Pp >> 1) + 2 * (Pp & 1)) << (6 + FULL)) + 32 * u
                    a(f"ds_read_b64_tr_b16 a[{d+2*Pp}:{d+2*Pp+1}], v{46 if c < 3 else 47} offset:{off}")
                if k & 1:
                    a("s_waitcnt lgkmcnt(0)")
    SK = E("SK", 0)
    if SK:
        a(f"""
        v_readfirstlane_b32 s60, v40
        v_readfirstlane_b32 s61, v41
        s_lshl_b32 s62, s76, 17
        s_add_u32 s60, s60, s62
        s_lshl_b32 s62, s76, 15
        s_add_u32 s61, s61, s62
        """)
    for n in range(len(PH)):
        if SK and n + 2 < len(PH):
            c = PH[n + 2][0]
            srd = (S_WQ, S_WK, S_WV, S_WO)[c]
            for r in range(SK):
                a(f"s_buffer_load_dword s63, s[{srd}:{srd+3}], s{60 if c < 3 else 61} offset:{r * (8192 if c < 3 else 2048)}")
        a(f"s_waitcnt vmcnt({(16 + E('HELP', 1) + bool(E('RX', 0)) + ([4, 2, 0][n] if WT == 1 else 0)) if n + 1 < len(PH) else 0})")
        wtr(n)
        if n + 2 < len(PH): wdma(n + 2)
        if NSELF and n < 2: selfproj(n == 1)
        if n == len(PH) - 3 and E("IW", 2):
            a("s_mov_b64 exec, 0")
            for w in range(3):
                a(f"s_cmp_eq_u32 s{S_WAVE}, {w}\ns_cbranch_scc1 {name}_iw{w}")
            a(f"s_branch {name}_iw3")
            a.label(f"{name}_iwd")
            a("s_mov_b64 exec, -1")
        if n == len(PH) - 2:
            sync_issue(a, 246)
            for i in range(4):
                a(f"buffer_load_dwordx4 v[{64+4*i}:{67+4*i}], v{V_OM0}, s[{S_M0}:{S_M0+3}], 0 offen offset:{128*i}")
    for i in range(16):
        a(f"v_mov_b32 v{MA+i}, v{64+i}")
    for i in range(24):
        a(f"v_mov_b32 v{AQ+i}, 0")
    a.nops(2)
    for i in range(4):
        for c in range(4):
            w = A_W1 + (c * 4 + i) * 8
            a(f"v_smfmac_f32_16x16x64_bf16 v[{AQ+4*c}:{AQ+4*c+3}], v[{MA+4*i}:{MA+4*i+3}], a[{w}:{w+7}], v{V_IDX}")
    sync(246, True)
    if TAG: a(f"""
    ; cross exchange: WS_H + slot*256K + src*64K + (t>>3)*16K + par*8K + (t&7)*1K
    s_lshr_b32 s{S_T0}, s{S_T}, {3 + E("XC", 1)}
    s_lshl_b32 s{S_T0}, s{S_T0}, 14
    s_lshl_b32 s{S_T1}, s98, 13
    s_add_u32 s{S_T0}, s{S_T0}, s{S_T1}
    s_and_b32 s{S_T1}, s{S_T}, {(8 << E("XC", 1)) - 1}
    s_lshl_b32 s{S_T1}, s{S_T1}, {10 - E("XC", 1)}
    s_add_u32 s{S_T0}, s{S_T0}, s{S_T1}
    s_lshl_b32 s{S_T1}, s{S_X}, 16
    s_add_u32 s{S_T0}, s{S_T0}, s{S_T1}
    s_add_u32 s{S_T0}, s{S_T0}, {WS_H}
    v_lshrrev_b32 v{V_OXW}, {E("B16", 1)}, v{V_LL}
    v_add_u32 v{V_OXW}, s{S_T0}, v{V_OXW}
    v_xor_b32 v25, 0x10000, v{V_OXW}
    v_xor_b32 v26, 0x20000, v{V_OXW}
    v_xor_b32 v27, 0x30000, v{V_OXW}
    v_add_u32 v25, {(WS_XU - WS_H) * E("COPY3", 0)}, v25
    v_add_u32 v26, {(WS_XU - WS_H + 4 * MB) * E("COPY3", 0)}, v26
    v_add_u32 v27, {(WS_XU - WS_H + 8 * MB) * E("COPY3", 0)}, v27
    """)
    else: a(f"""
    s_lshr_b32 s{S_T0}, s{S_T}, 2
    s_xor_b32 s{S_T0}, s{S_T0}, s98
    s_and_b32 s{S_T0}, s{S_T0}, 1
    s_lshl_b32 s{S_T0}, s{S_T0}, 13
    s_lshl_b32 s{S_T1}, s{S_T}, 19
    s_add_u32 s{S_T0}, s{S_T0}, s{S_T1}
    s_lshl_b32 s{S_T1}, s{S_X}, 10
    s_add_u32 s{S_T0}, s{S_T0}, s{S_T1}
    s_add_u32 s{S_T0}, s{S_T0}, {WS_XU}
    v_add_u32 v{V_OXW}, s{S_T0}, v{V_LL}
    v_xor_b32 v25, 1024, v{V_OXW}
    v_xor_b32 v26, 2048, v{V_OXW}
    v_xor_b32 v27, 3072, v{V_OXW}
    """)
    if E("U3", 0): a(f"""
    s_lshr_b32 s{S_T0}, s{S_T}, 1
    s_xor_b32 s{S_T0}, s{S_T0}, s98
    s_and_b32 s{S_T0}, s{S_T0}, 1
    s_lshl_b32 s{S_T0}, s{S_T0}, 13
    s_lshl_b32 s{S_T1}, s{S_T}, 20
    s_add_u32 s{S_T0}, s{S_T0}, s{S_T1}
    s_lshl_b32 s{S_T1}, s{S_X}, 9
    s_add_u32 s{S_T0}, s{S_T0}, s{S_T1}
    s_add_u32 s{S_T0}, s{S_T0}, {88 * MB}
    v_lshrrev_b32 v{V_OXW}, 1, v{V_LL}
    v_add_u32 v{V_OXW}, s{S_T0}, v{V_OXW}
    v_xor_b32 v25, 512, v{V_OXW}
    v_xor_b32 v26, 1024, v{V_OXW}
    v_xor_b32 v27, 1536, v{V_OXW}
    """)
    a(f"""
    s_lshl_b32 s{S_T0}, s{S_H}, 2
    s_add_u32 s{S_T0}, s{S_T0}, s{S_J}
    s_mov_b32 s{S_CU}, s{S_T0}
    s_lshr_b32 s{S_T1}, s{S_T0}, 3
    s_xor_b32 s{S_T1}, s{S_T1}, s98
    {["", f"s_xor_b32 s{S_T1}, s{S_T1}, 1", f"s_xor_b32 s{S_T1}, s{S_T1}, s{S_T0}"][E("KVPAR", 0)]}
    s_and_b32 s{S_T1}, s{S_T1}, 1
    s_lshl_b32 s{S_T1}, s{S_T1}, 13
    s_lshl_b32 s76, s{S_T0}, 18
    s_add_u32 s76, s76, s{S_T1}
    s_mov_b32 s{S_KXB}, s76
    v_add_u32 v{TMP+8}, s76, v{V_LL}
    v_add_u32 v{TMP+9}, {WS_VT}, v{TMP+8}
    s_lshr_b32 s{S_T1}, s{S_T0}, 4
    s_xor_b32 s{S_T1}, s{S_T1}, s98
    s_and_b32 s{S_T1}, s{S_T1}, 1
    s_lshl_b32 s{S_T1}, s{S_T1}, 13
    s_lshl_b32 s{S_KVB}, s{S_T0}, 17
    s_add_u32 s{S_KVB}, s{S_KVB}, s{S_T1}
    s_add_u32 s{S_KVB}, s{S_KVB}, {WS_KVM}
    ; flags
    s_xor_b32 s{S_T1}, s98, 1
    s_lshl_b32 s{S_T1}, s{S_T1}, 13
    s_lshl_b32 s{S_T0}, s{S_H}, 7
    s_add_u32 s{S_T0}, s{S_T0}, s{S_T1}
    s_add_u32 s{S_T0}, s{S_T0}, {WS_F}
    v_and_b32 v{V_T0}, 1, v{V_L}
    v_lshlrev_b32 v{V_OFL}, 12, v{V_T0}
    v_add_u32 v{V_OFL}, s{S_T0}, v{V_OFL}
    s_lshl_b32 s{S_T1}, s{S_J}, 2
    v_add_u32 v{V_OFL}, s{S_T1}, v{V_OFL}
    s_xor_b32 s{S_FLB}, s98, 1
    s_lshl_b32 s{S_FLB}, s{S_FLB}, 13
    s_lshr_b32 s{S_T1}, s{S_CU}, 6
    s_lshl_b32 s{S_T1}, s{S_T1}, 14
    s_add_u32 s{S_FLB}, s{S_FLB}, s{S_T1}
    s_and_b32 s{S_T1}, s{S_CU}, 63
    s_lshl_b32 s{S_T1}, s{S_T1}, 7
    s_add_u32 s{S_FLB}, s{S_FLB}, s{S_T1}
    s_add_u32 s{S_FLB}, s{S_FLB}, {WS_F + F_KVM}
    v_mov_b32 v{ONE}, 0x3f803f80
    v_mov_b32 v{ONE+1}, 0x3f803f80
    v_mov_b32 v{ONE+2}, 0x3f803f80
    v_mov_b32 v{ONE+3}, 0x3f803f80
    v_mov_b32 v{ZER}, 0
    s_mov_b32 s{S_STEP}, 0
    s_mov_b32 s{S_KVN}, 0
    s_mov_b32 s{S_WARM}, 0
    s_mov_b32 s88, 0
    s_mov_b32 s{S_XBR}, {L_XB}
    s_mov_b32 s{S_XBW}, {L_XB + 4096 * NSELF}
    """)
    V_PK, V_PV = TMP + 8, TMP + 9
    pfn = [0]

    def prefetch(seg_sreg, part=3, chk=True, skip=None):
        i = pfn[0]; pfn[0] += 1
        if flags and chk:
            a(f"""
            s_cmp_gt_i32 s{S_KVN}, s{seg_sreg}
            s_cbranch_scc1 {name}_pf{i}ok
{name}_pf{i}w:
            """)
            wdog()
            a(f"""
            {f'''v_mov_b32 v{V_T0}, 0
            s_mov_b64 exec, 3
            buffer_atomic_add v{V_T0}, v{V_OFL}, {SRD}, 0 offen sc0 sc1
            s_mov_b64 exec, -1''' if E("KAP", 1) else f"buffer_load_dword v{V_T0}, v{V_OFL}, {SRD}, 0 offen sc1"}
            s_waitcnt vmcnt(0)
            v_readlane_b32 s{S_KVN}, v{V_T0}, 0
            v_readlane_b32 s{S_T0}, v{V_T0}, 1
            s_nop 1
            s_min_i32 s{S_KVN}, s{S_KVN}, s{S_T0}
            s_cmp_gt_i32 s{S_KVN}, s{seg_sreg}
            s_cbranch_scc0 {skip or f"{name}_pf{i}w"}
{name}_pf{i}ok:
            """)
        if part is None: return
        a(f"""
        s_add_u32 s77, s{seg_sreg}, s{S_CU}
        s_bfe_u32 s{S_T0}, s77, 0x40002
        s_lshl_b32 s{S_T0}, s{S_T0}, 14
        s_and_b32 s77, s77, 3
        s_lshl_b32 s77, s77, 11
        s_add_u32 s{S_T0}, s{S_T0}, s77
        """)
        if part <= 0:
            a(f"s_add_u32 s{S_T0}, s{S_T0}, s{S_KXB}")
            if part < 0: a(f"s_add_u32 s{S_T0}, s{S_T0}, {WS_VT}")
            for l in range(16):
                a(f"s_buffer_load_dword s78, {SRD}, s{S_T0} offset:{128*l}")
            return
        for f in range(4):
            if not (part >> (f >> 1)) & 1: continue
            a(f"s_add_u32 m0, s{S_XBW}, {2048 * (f >> 1)}")
            a("s_nop 0")
            a(f"buffer_load_dwordx4 v{V_PK if f < 2 else V_PV}, {SRD}, s{S_T0} offen offset:{1024 * (f & 1)} sc1 lds")
        if part & 2: a(f"""
        s_add_u32 s{S_XBW}, s{S_XBW}, 4096
        s_cmp_eq_u32 s{S_XBW}, {L_XB + 3 * 4096}
        s_cselect_b32 s{S_XBW}, {L_XB}, s{S_XBW}
        """)

    def flag_store(val_sreg):
        a(f"""
        v_mov_b32 v{V_T1}, s{val_sreg}
        s_mov_b64 exec, 1
        buffer_store_dword v{V_T1}, v{ZER}, {SRD}, s{S_FLB} offen sc1
        s_mov_b64 exec, -1
        """)

    def wr4(va, r, at):
        if at:
            for i in range(4):
                a(f"ds_add_f32 v{va}, v{r+i} offset:{144*i}")
        else:
            a(f"ds_write2_b32 v{va}, v{r}, v{r+1} offset0:0 offset1:36")
            a(f"ds_write2_b32 v{va}, v{r+2}, v{r+3} offset0:72 offset1:108")

    def lzero(which):
        if which == 0:
            a(f"ds_write_b128 v{V_LRR}, v[60:63] offset:{L_QK}\nds_write_b128 v{V_LRR}, v[60:63] offset:{L_QK + 16}")
        else:
            a(f"ds_write_b128 v{V_LRO}, v[60:63]")

    def zero(base, n):
        for i in range(n):
            a(f"v_mov_b32 v{base+i}, 0")

    if ts and E("BPROF", 0):
        ts(2)
        a(f"v_and_b32 v{V_L}, 63, v0\nv_lshrrev_b32 v{V_G}, 4, v{V_L}")
    a(f"s_cmp_eq_u32 s{S_WAVE}, 3\ns_cbranch_scc0 {name}_pfi")
    a(f"s_mov_b32 s76, 0")
    if not NSELF: prefetch(76)
    a("s_waitcnt vmcnt(0) lgkmcnt(0)")
    a(f"s_branch {name}_pfj")
    a.label(f"{name}_pfi")
    klast(a, 88, S_H, 0, 0)
    a(f"s_lshl_b32 s77, s{S_J}, 10\ns_add_u32 s88, s88, s77")
    a.label(f"{name}_pfj")
    zero(PL, 24)
    zero(249, 1)
    a(f"v_cndmask_b32 v242, -16, v{V_OSCM}, s[{S_MMEM}:{S_MMEM+1}]")
    zero(60, 4)
    if DA & 1: lzero(0)
    if DA & 2: lzero(1)
    a('s_waitcnt lgkmcnt(0)')
    a("s_barrier")
    if ts and E("BPROF", 0):
        ts(3)
        a(f"v_and_b32 v{V_L}, 63, v0\nv_lshrrev_b32 v{V_G}, 4, v{V_L}")
    stamp(0)

    def smf(d, areg, w):
        a(f"v_smfmac_f32_16x16x64_bf16 v[{d}:{d+3}], v[{areg}:{areg+3}], a[{w}:{w+7}], v{V_IDX}")

    def stream_poll(tag, base, soff, off0, two, work, first=None):
        def ld(i):
            a(f"buffer_load_dwordx4 v[{base+4*i}:{base+4*i+3}], v{V_OMEM}, {SRD}, s{soff} offen offset:{1024*i} sc1")
        G = E("GAP", 10)
        a("; loads are spaced so that the four waves are served round robin")
        for i in range(4):
            ld(i)
            if i == 0 and first:
                first()
                if G > 5: a.nops(G - 5)
            elif i < 3 and G:
                a.nops(G)
        if E("RR", 1):
            def lab(S, i): return f"{name}_{tag}_{S}_{i}"
            def nxt(S, i):
                for d in range(1, 5):
                    if S >> ((i + d) & 3) & 1: return (i + d) & 3
            def chk(i):
                if two:
                    a(f"v_max_u32 v{V_T0}, v{base+4*i}, v{base+4*i+2}")
                    a(f"v_cmp_eq_u32 vcc, -1, v{V_T0}")
                else:
                    a(f"v_cmp_eq_u32 vcc, -1, v{base+4*i}")
            def block(S, i, fall):
                a.label(lab(S, i))
                a(f"s_waitcnt vmcnt({bin(S).count('1') - 1})")
                chk(i)
                a(f"s_cbranch_vccnz {lab(S, i)}f")
                work(i)
                if not fall:
                    S2 = S & ~(1 << i)
                    a(f"s_branch {lab(S2, nxt(S2, i)) if S2 else f'{name}_{tag}_d'}")
            fast = [(15, 0), (14, 1), (12, 2), (8, 3)]
            if E("HOIST", 1) and two:
                def cap(fn, *ar):
                    sv = a.lines; a.lines = []; fn(*ar); o = a.lines; a.lines = sv; return o
                a("s_waitcnt vmcnt(3)")
                chk(0)
                for n, (S, i) in enumerate(fast):
                    a(f"s_cbranch_vccnz {lab(S, i)}f")
                    wk = cap(work, i)
                    a.lines += wk[:3]
                    if i < 3:
                        a(f"s_waitcnt vmcnt({2 - i})")
                        chk(i + 1)
                    a.lines += wk[3:]
                fast = []
            for S, i in fast:
                block(S, i, True)
            a.label(f"{name}_{tag}_d")
            def stubs():
                for S in range(1, 16):
                    for i in range(4):
                        if not S >> i & 1: continue
                        if E("ALR", 5): a(f".p2align {E('ALR', 5)}")
                        a.label(lab(S, i) + "f")
                        if E("MSK", 1): a("s_mov_b64 exec, vcc")
                        ld(i)
                        if E("MSK", 1): a("s_mov_b64 exec, -1")
                        if bin(S).count('1') == 1 or i == nxt(S, 3): wdog()
                        a(f"s_branch {lab(S, nxt(S, i))}")
                        if (S, i) not in fast:
                            if E("ALR", 5): a(f".p2align {E('ALR', 5)}")
                            block(S, i, False)
            return stubs
        for i in range(4):
            a.label(f"{name}_{tag}{i}")
            a(f"s_waitcnt vmcnt({3-i})")
            if two:
                a(f"v_max_u32 v{V_T0}, v{base+4*i}, v{base+4*i+2}")
                a(f"v_cmp_eq_u32 vcc, -1, v{V_T0}")
            else:
                a(f"v_cmp_eq_u32 vcc, -1, v{base+4*i}")
            a(f"s_cbranch_vccnz {name}_{tag}r{i}")
            a.label(f"{name}_{tag}k{i}")
            work(i)
        def stubs():
            for i in range(4):
                a.label(f"{name}_{tag}r{i}")
                if prof: a(f"s_add_u32 s{62 if tag == 'pa' else 63}, s{62 if tag == 'pa' else 63}, 1")
                wdog()
                if not E("IMM", 1): a("s_waitcnt vmcnt(0)")
                for k in range(i, 4):
                    ld(k)
                a(f"s_branch {name}_{tag}{i}")
        return stubs

    def fold(t0, t1):
        for i in range(4):
            a(f"v_permlane32_swap_b32 v{t0+i}, v{t1+i}")
        a(f"v_pk_add_f32 v[{t0}:{t0+1}], v[{t0}:{t0+1}], v[{t1}:{t1+1}]")
        a(f"v_pk_add_f32 v[{t0+2}:{t0+3}], v[{t0+2}:{t0+3}], v[{t1+2}:{t1+3}]")

    def vwork(lo, hi):
        for n in range(lo, hi):
            i, u = n >> 1, n & 1
            smf(AV + 4 * u, MA + 4 * i, A_W1 + ((4 + u) * 4 + (i & 3)) * 8)

    def vfin():
        fold(AV, AV + 4)
        a(f"ds_write_b128 v{V_LVW}, v[{AV}:{AV+3}]")

    def rread():
        for w in range(1 if DA & 1 else 4):
            for hh in range(2):
                d = RP + 8 * w + 4 * hh
                a(f"ds_read_b128 v[{d}:{d+3}], v{V_LRR} offset:{L_QK + 2304*w + 16*hh}")

    def rsum(dst):
        if DA & 1:
            a("s_waitcnt lgkmcnt(0)")
            for i in range(4):
                a(f"v_cvt_pk_bf16_f32 v{dst+i}, v{RP+2*i}, v{RP+2*i+1}")
            return
        a("s_waitcnt lgkmcnt(4)")
        for i in range(0, 8, 2):
            a(f"v_pk_add_f32 v[{RP+i}:{RP+i+1}], v[{RP+i}:{RP+i+1}], v[{RP+8+i}:{RP+8+i+1}]")
        a("s_waitcnt lgkmcnt(0)")
        for i in range(0, 8, 2):
            a(f"v_pk_add_f32 v[{RP+16+i}:{RP+16+i+1}], v[{RP+16+i}:{RP+16+i+1}], v[{RP+24+i}:{RP+24+i+1}]")
        for i in range(0, 8, 2):
            a(f"v_pk_add_f32 v[{RP+i}:{RP+i+1}], v[{RP+i}:{RP+i+1}], v[{RP+16+i}:{RP+16+i+1}]")
        for i in range(4):
            a(f"v_cvt_pk_bf16_f32 v{dst+i}, v{RP+2*i}, v{RP+2*i+1}")

    S_FM = S_TAG
    def xuoff(dst, step):
        a(f"""
        s_add_u32 s{S_T0}, s{step}, s{S_T}
        s_and_b32 s77, s{S_T0}, 14
        s_and_b32 s{S_T0}, s{S_T0}, 1
        s_lshl_b32 s{S_T0}, s{S_T0}, 12
        s_and_b32 s{dst}, s{step}, 48
        s_or_b32 s{dst}, s{dst}, s77
        s_lshl_b32 s{dst}, s{dst}, 13
        s_add_u32 s{dst}, s{dst}, s{S_T0}
        """)

    def heads():
        a(f"""
        s_and_b32 s{S_T1}, s{S_STEP}, 1
        s_lshl_b32 s{S_SL}, s{S_T1}, 17
        s_lshl_b32 s{S_T0}, s{S_X}, 18
        s_add_u32 s{S_SL}, s{S_SL}, s{S_T0}
        s_add_u32 s{S_SL}, s{S_SL}, {WS_I}
        s_xor_b32 s{S_SLO}, s{S_SL}, {1 << 17}
        """)
        if TAG: a(f"""
        s_lshl_b32 s{S_XS}, s{S_T1}, 18
        s_bfe_u32 s{S_TAG}, s{S_STEP}, 0x10001
        """)
        else: xuoff(S_XS, S_STEP)
    heads()
    if E("PRIO", 0):
        a(f"s_cmp_eq_u32 s{S_WAVE}, 0\ns_cbranch_scc0 {name}_np\ns_setprio 3")
        a.label(f"{name}_np")
    a(f"s_branch {name}_first")

    def wa(i):
        for c in range(4):
            smf(AQ + 4 * c, MA + 4 * i, A_W1 + (c * 4 + (i & 3)) * 8)

    def xread():
        a(f"v_add_u32 v{V_T1}, s{S_XBR}, v{V_LL}")
        for f in range(4):
            a(f"ds_read_b128 v[{KX+4*f}:{KX+4*f+3}], v{V_T1} offset:{1024*f}")

    if E("AL", 2) >= 0:
        a(".p2align 6")
        for i in range(E("AL", 2)): a("s_nop 0")
    a.label(f"{name}_loop")
    stubs_a = stream_poll("pa", MA, S_SL, 0, True, wa, first=xread)
    a.label(f"{name}_adone")
    stamp(1)
    a.nops(6)
    fold(AQ, AQ + 4)
    wr4(V_LWQ, AQ, DA & 1)
    fold(AQ + 8, AQ + 12)
    wr4(V_LWK, AQ + 8, DA & 1)
    VE, VE2 = E("VE", 4), 8
    vwork(0, VE)
    a(f"""
    s_cmp_lg_u32 s{S_WAVE}, 0
    s_waitcnt lgkmcnt(0)
    s_barrier
    s_cbranch_scc1 {name}_side
    """)
    stamp(2)
    rread()
    vwork(VE, VE2)
    a(f"""
    s_mul_i32 s{S_T0}, s{S_T}, {SCS}
    s_add_u32 s{S_T0}, s{S_T0}, s{S_SL}
    s_add_u32 s{S_T0}, s{S_T0}, {SCO}
    s_add_u32 s76, s{S_P}, s{S_SL}
    s_add_u32 s77, s{S_P+1}, s{S_SL}
    s_add_u32 s78, s{S_P+2}, s{S_SL}
    """)
    rsum(R)
    a.nops(2)
    a(f"v_mfma_f32_16x16x32_bf16 v[{S+4}:{S+7}], v[{KX+4}:{KX+7}], v[{R}:{R+3}], 0")
    a(f"v_mfma_f32_16x16x32_bf16 v[{S}:{S+3}], v[{KX}:{KX+3}], v[{R}:{R+3}], 0")
    a(f"v_mfma_f32_16x16x32_bf16 v[{S+8}:{S+11}], v[{R}:{R+3}], v[{R}:{R+3}], 0")
    a(f"s_cmp_eq_u32 s{S_STEP}, {nsteps-1}")
    a(f"s_cbranch_scc1 {name}_w0last")
    if E("VF", 0) == 1: vfin()
    else: a.nops(5)
    for i in range(4):
        a(f"v_mov_b32_dpp v{S+i}, v{S+4+i} row_shr:8 row_mask:0xf bank_mask:0xc")
    a(f"""
    v_min_u32 v{S}, -2, v{S}
    buffer_store_dwordx4 v[{S}:{S+3}], v{V_LL}, {SRD}, s{S_T0} offen {IS}
    v_min_u32 v{S+8}, -2, v{S+8}
    buffer_store_dwordx4 v[{S+8}:{S+11}], v242, {SRD}, s{S_T0} offen {IS}
    """ if E("MT", 1) else f"""
    v_min_u32 v{S+8}, -2, v{S+8}
    v_min_u32 v{S}, -2, v{S}
    s_mov_b64 exec, s[{S_MMEM}:{S_MMEM+1}]
    buffer_store_dwordx4 v[{S+8}:{S+11}], v{V_OSCM}, {SRD}, s{S_T0} offen {IS}
    s_mov_b64 exec, -1
    buffer_store_dwordx4 v[{S}:{S+3}], v{V_LL}, {SRD}, s{S_T0} offen {IS}
    """)
    stamp(3)

    def p2ld():
        if E("P2K", 1):
            a(f"s_mov_b64 exec, s[{S_MMEM}:{S_MMEM+1}]")
            for p, so in enumerate((76, 77, 78)):
                a(f"buffer_load_dwordx4 v[{PL+8*p+4}:{PL+8*p+7}], v{V_OSCM}, {SRD}, s{so} offen sc1")
            a("s_mov_b64 exec, -1")
            for p, so in enumerate((76, 77, 78)):
                a(f"buffer_load_dwordx4 v[{PL+8*p}:{PL+8*p+3}], v{V_LL}, {SRD}, s{so} offen sc1")
            return
        for p, so in enumerate((76, 77, 78)):
            a(f"buffer_load_dwordx4 v[{PL+8*p}:{PL+8*p+3}], v{V_LL}, {SRD}, s{so} offen sc1")
            a(f"buffer_load_dwordx4 v[{PL+8*p+4}:{PL+8*p+7}], v{V_OSCM}, {SRD}, s{so} offen sc1")
    P2M = E("P2M", 0)
    if E("VF", 0) == 0: vfin()
    def p2fill():
        zero(AO, 8)
        for i in range(4):
            a(f"v_cndmask_b32 v{S+4+i}, v{V_NEG}, v{S+8+i}, s[{S_MMEM}:{S_MMEM+1}]")
    def p2scale():
        for i in range(0, 8, 2):
            a(f"v_pk_mul_f32 v[{S+i}:{S+i+1}], v[{S+i}:{S+i+1}], s[{S_C}:{S_C+1}] op_sel_hi:[1,0]")
    assert P2M == 0
    if P2M == 0:
        a("s_waitcnt lgkmcnt(0)\ns_barrier")
        p2fill()
        p2ld()
        p2scale()
        if DA & 1: lzero(0)
        a(f"s_lshl_b32 s89, s{S_TAG}, 31\ns_or_b32 s89, s89, 0x3b39999a")
        if E("U3", 0):
            a(f"""
            s_add_u32 s88, s{S_STEP}, s{S_T}
            s_and_b32 s88, s88, 7
            s_and_b32 s89, s{S_STEP}, 56
            s_or_b32 s88, s88, s89
            s_lshl_b32 s88, s88, 14
            s_add_u32 s89, s88, 4096
            """)
        a.nops(12 if E("U3", 0) else 18)
        p2ld()
    elif P2M == 1:
        if E("W2A", 0): a.nops(E("W2A", 0))
        p2ld()
        a("s_waitcnt lgkmcnt(0)\ns_barrier")
        p2fill()
        if E("W2", 0): a.nops(E("W2", 0))
        p2ld()
    elif P2M == 2:
        p2fill()
        p2ld()
        a("s_waitcnt lgkmcnt(0)\ns_barrier")
        if E("W2", 0): a.nops(E("W2", 0))
        p2ld()
    else:
        if E("W2A", 0): a.nops(E("W2A", 0))
        p2ld()
        a("s_waitcnt lgkmcnt(0)\ns_barrier")
        p2fill()
        for r in range(P2M - 1):
            p2ld()
            if r + 2 < P2M: a.nops(E("W2", 16))
    assert TAG
    stamp(4)
    a.label(f"{name}_p2")
    a(f"s_waitcnt vmcnt({6 * (max(P2M, 2) - 1)})")
    a(f"v_max3_u32 v{V_T0}, v{PL}, v{PL+4}, v{PL+8}")
    a(f"v_max3_u32 v{V_T1}, v{PL+12}, v{PL+16}, v{PL+20}")
    a(f"v_max_u32 v{V_T0}, v{V_T0}, v{V_T1}")
    a(f"v_cmp_eq_u32 vcc, -1, v{V_T0}")
    a(f"s_cbranch_vccnz {name}_p2r")
    stamp(5)
    a.nops(E("RSLOW", 0))
    BP = E("BP", 1)
    def b2b():
        a("s_barrier")
        a(f"ds_read2_b64 v[{VM}:{VM+3}], v{V_LVR} offset0:0 offset1:32")
    if BP == 0: b2b()
    for o in (4, 6, 0, 2):
        a(f"v_pk_add_f32 v[{RP+o}:{RP+o+1}], v[{PL+8+o}:{PL+8+o+1}], v[{PL+16+o}:{PL+16+o+1}]")
    for o in (4, 6, 0, 2):
        a(f"v_pk_add_f32 v[{RP+o}:{RP+o+1}], v[{RP+o}:{RP+o+1}], v[{PL+o}:{PL+o+1}]")
    for o in (4, 6, 0, 2):
        a(f"v_pk_fma_f32 v[{S+o}:{S+o+1}], v[{RP+o}:{RP+o+1}], s[{S_C}:{S_C+1}], v[{S+o}:{S+o+1}] op_sel_hi:[1,0,1]")
    MX, TM, SM = TMP, TMP + 1, TMP + 2
    a(f"""
    v_max3_f32 v{MX}, v{S}, v{S+1}, v{S+2}
    v_max3_f32 v{TM}, v{S+4}, v{S+5}, v{S+6}
    v_max3_f32 v{MX}, v{MX}, v{S+3}, v{S+7}
    v_max_f32 v{SM}, v{MX}, v{TM}
    """)
    if BP == 1: b2b()
    else: a("s_nop 1")
    a(f"""
    v_max_f32_dpp v{MX}, v{SM}, v{SM} row_ror:8 row_mask:0xf bank_mask:0xf
    v_max_f32_dpp v{TM}, v{SM}, v{SM} row_ror:8 row_mask:0xf bank_mask:0xf
    s_nop 1
    v_permlane16_swap_b32 v{MX}, v{TM}
    s_nop 0
    v_max_f32 v{SM}, v{MX}, v{TM}
    v_max_f32 v{SM+1}, v{MX}, v{TM}
    """)
    if BP == 2: b2b()
    else: a("s_nop 1")
    a(f"""
    v_permlane32_swap_b32 v{SM}, v{SM+1}
    s_nop 0
    v_max_f32 v{MX}, v{SM}, v{SM+1}
    """)
    for i in (4, 6, 0, 2):
        a(f"v_pk_add_f32 v[{S+i}:{S+i+1}], v[{S+i}:{S+i+1}], v[{MX}:{MX+1}] op_sel_hi:[1,0] neg_lo:[0,1] neg_hi:[0,1]")
    for i in (4, 5, 6, 7):
        a(f"v_exp_f32 v{S+i}, v{S+i}")
    a(f"""
    v_exp_f32 v{S}, v{S}
    v_cvt_pk_bf16_f32 v{PM}, v{S+4}, v{S+5}
    v_cvt_pk_bf16_f32 v{PM+1}, v{S+6}, v{S+7}
    v_exp_f32 v{S+1}, v{S+1}
    v_exp_f32 v{S+2}, v{S+2}
    v_mfma_f32_16x16x16_bf16 v[{LS}:{LS+3}], v[{ONE}:{ONE+1}], v[{PM}:{PM+1}], 0
    v_exp_f32 v{S+3}, v{S+3}
    v_cvt_pk_bf16_f32 v{P}, v{S}, v{S+1}
    s_waitcnt lgkmcnt(0)
    v_mfma_f32_16x16x16_bf16 v[{O}:{O+3}], v[{VM}:{VM+1}], v[{PM}:{PM+1}], 0
    v_cvt_pk_bf16_f32 v{P+1}, v{S+2}, v{S+3}
    v_mfma_f32_16x16x16_bf16 v[{O+4}:{O+7}], v[{VM+2}:{VM+3}], v[{PM}:{PM+1}], 0
    v_mov_b32_dpp v{P+2}, v{P} row_ror:8 row_mask:0xf bank_mask:0xf
    v_mov_b32_dpp v{P+3}, v{P+1} row_ror:8 row_mask:0xf bank_mask:0xf
    s_nop 1
    v_mfma_f32_16x16x32_bf16 v[{LS}:{LS+3}], v[{ONE}:{ONE+3}], v[{P}:{P+3}], v[{LS}:{LS+3}]
    v_mfma_f32_16x16x32_bf16 v[{O}:{O+3}], v[{VTX}:{VTX+3}], v[{P}:{P+3}], v[{O}:{O+3}]
    v_mfma_f32_16x16x32_bf16 v[{O+4}:{O+7}], v[{VTX+4}:{VTX+7}], v[{P}:{P+3}], v[{O+4}:{O+7}]
    s_add_u32 s{S_T1}, s{S_SL}, {OXO}
    s_nop 4
    v_rcp_f32 v{SM}, v{LS}
    {f"s_mov_b64 exec, s[{S_MN8}:{S_MN8+1}]" if E("MT", 1) else "s_nop 0"}
    """)
    for i in range(0, 8, 2):
        a(f"v_pk_mul_f32 v[{O+i}:{O+i+1}], v[{O+i}:{O+i+1}], v[{SM}:{SM+1}] op_sel_hi:[1,0]")
    for i in range(4):
        a(f"v_cvt_pk_bf16_f32 v{P+i}, v{O+2*i}, v{O+2*i+1}")
    a(f"""
    v_min_u32 v{P}, -2, v{P}
    {"" if E("MT", 1) else f"s_mov_b64 exec, s[{S_MN8}:{S_MN8+1}]"}
    buffer_store_dwordx4 v[{P}:{P+3}], v{V_OOP}, {SRD}, s{S_SL} offen {IS}
    s_mov_b64 exec, -1
    """)
    NB3, NB5 = E("NB3", 0), E("NB5", 0)
    if NB3:
        stamp(6)
        if E("W3", 16): a("; poll back-off: a too early first poll wastes a whole 16KB gather round"); a.nops(E("W3", 16))
        a.label(f"{name}_b3")
    else:
        a.label(f"{name}_b3")
        a("s_barrier")
        if E("AL3", -1) >= 0:
            a(".p2align 5")
            for i in range(E("AL3", -1)): a("s_nop 0")
        stamp(6)
        if E("W3", 16): a("; poll back-off: a too early first poll wastes a whole 16KB gather round"); a.nops(E("W3", 16))

    def wc(i):
        for u in range(2):
            smf(AO + 4 * u, MO + 4 * i, A_WO + (u * 4 + i) * 8)
    stubs_c = stream_poll("pc", MO, S_T1, 0, False, wc)
    stamp(7)
    a.nops(8)
    fold(AO, AO + 4)
    wr4(V_LWO, AO, DA & 2)
    a(f"s_cmp_lg_u32 s{S_WAVE}, 0\ns_waitcnt lgkmcnt(0)\ns_barrier\ns_cbranch_scc1 {name}_x1")
    if DA & 2:
        a(f"ds_read_b128 v[{RP}:{RP+3}], v{V_LRO}\ns_waitcnt lgkmcnt(0)")
    else:
        for w in range(4):
            a(f"ds_read_b128 v[{RP+4*w}:{RP+4*w+3}], v{V_LRO} offset:{1152*w}")
        a("s_waitcnt lgkmcnt(2)")
        for i in (0, 2):
            a(f"v_pk_add_f32 v[{RP+i}:{RP+i+1}], v[{RP+i}:{RP+i+1}], v[{RP+4+i}:{RP+4+i+1}]")
        a("s_waitcnt lgkmcnt(0)")
        for i in (0, 2):
            a(f"v_pk_add_f32 v[{RP+8+i}:{RP+8+i+1}], v[{RP+8+i}:{RP+8+i+1}], v[{RP+12+i}:{RP+12+i+1}]")
        for i in (0, 2):
            a(f"v_pk_add_f32 v[{RP+i}:{RP+i+1}], v[{RP+i}:{RP+i+1}], v[{RP+8+i}:{RP+8+i+1}]")
    X4 = 48
    A4 = E("A4", 0)
    B16 = E("B16", 1)
    def p4ld():
        for p in range(3):
            if B16: a(f"buffer_load_dwordx2 v[{X4+2*p}:{X4+2*p+1}], v{25+p}, {SRD}, s{S_XS} offen sc1")
            else: a(f"buffer_load_dwordx4 v[{X4+4*p}:{X4+4*p+3}], v{25+p}, {SRD}, s{S_XS} offen sc1")
    def maxall(regs):
        regs = list(regs)
        h = len(regs) // 2
        for t, rs in ((V_T0, regs[:h]), (V_T1, regs[h:])):
            a(f"v_max3_u32 v{t}, v{rs[0]}, v{rs[1]}, v{rs[2]}")
        k = 3
        while k < h:
            for t, rs in ((V_T0, regs[:h]), (V_T1, regs[h:])):
                if k + 1 < h: a(f"v_max3_u32 v{t}, v{t}, v{rs[k]}, v{rs[k+1]}")
                else: a(f"v_max_u32 v{t}, v{t}, v{rs[k]}")
            k += 2
        a(f"v_max_u32 v{V_T0}, v{V_T0}, v{V_T1}")
        a(f"v_cmp_eq_u32 vcc, -1, v{V_T0}")
    U3 = E("U3", 0)
    if U3:
        XU = 64
        a(f"""
        v_cvt_pk_bf16_f32 v{P}, v{RP}, v{RP+1}
        v_cvt_pk_bf16_f32 v{P+1}, v{RP+2}, v{RP+3}
        v_min_u32 v{P}, -2, v{P}
        """)
        for c in range(U3):
            a(f"buffer_store_dwordx2 v[{P}:{P+1}], v{V_OXW}, {SRD}, s{88 + (c >> 1)} offen offset:{2048 * (c & 1)} sc1")
        a("s_mov_b32 s77, 0x3f80\ns_mov_b32 s78, 0x3f800000")
        zero(AQ, 24)
        a.nops(E("UW", 8))
        def uld(c):
            for p in range(3):
                a(f"buffer_load_dwordx2 v[{XU+6*c+2*p}:{XU+6*c+2*p+1}], v{25+p}, {SRD}, s{88 + (c >> 1)} offen offset:{2048 * (c & 1)} sc1")
        for c in range(U3):
            uld(c)
            if c + 1 < U3: a.nops(E("UD", 32))
        for c in range(U3):
            a.label(f"{name}_u{c}")
            a(f"s_waitcnt vmcnt({3 * (U3 - 1 - c)})")
            a(f"v_max3_u32 v{V_T0}, v{XU+6*c}, v{XU+6*c+2}, v{XU+6*c+4}\nv_cmp_eq_u32 vcc, -1, v{V_T0}\ns_cbranch_vccnz {name}_u{c+1}")
            for p in range(3):
                for i in range(4):
                    a(f"v_dot2_f32_bf16 v{RP+i}, v{XU+6*c+2*p+(i>>1)}, s{77+(i&1)}, v{RP+i}")
            a(f"""
            s_nop 0
            v_cvt_pk_bf16_f32 v{P}, v{RP}, v{RP+1}
            v_min_u32 v{P}, -2, v{P}
            v_cvt_pk_bf16_f32 v{P+1}, v{RP+2}, v{RP+3}
            buffer_store_dwordx2 v[{P}:{P+1}], v{V_OPUB}, {SRD}, s{S_SLO} offen {IS}
            s_branch {name}_p4d
            """)
        a.label(f"{name}_u{U3}")
        wdog()
        uld(U3 - 1)
        a(f"s_branch {name}_u{U3-1}")
        a.label(f"{name}_p4d")
    elif TAG:
        if B16:
            a(f"""
            v_fma_f32 v{P}, v{RP}, s89, v{RP}
            v_cvt_pk_bf16_f32 v{P+1}, v{RP+2}, v{RP+3}
            v_cvt_pk_bf16_f32 v{P}, v{P}, v{RP+1}
            v_and_or_b32 v{P}, v{P}, -2, s{S_TAG}
            buffer_store_dwordx2 v[{P}:{P+1}], v{V_OXW}, {SRD}, s{S_XS} offen sc1
            s_mov_b32 s77, 0x3f80
            s_mov_b32 s78, 0x3f800000
            """)
        for i in range(0 if B16 else 4):
            a(f"v_and_or_b32 v{RP+i}, v{RP+i}, -2, s{S_TAG}")
        if E("HALF", 0): a(f"s_mov_b64 exec, {hex((1 << E('HALF', 0)) - 1)}")
        if E("COPY3", 0):
            for p in range(3):
                a(f"s_add_u32 s76, s{S_XS}, {WS_XU - WS_H + p * 4 * MB}")
                a(f"buffer_store_dwordx4 v[{RP}:{RP+3}], v{V_OXW}, {SRD}, s76 offen sc1")
        elif not B16:
            a(f"buffer_store_dwordx4 v[{RP}:{RP+3}], v{V_OXW}, {SRD}, s{S_XS} offen sc1")
        stamp(8)
        a(f"s_xor_b32 s76, s{S_TAG}, 1")
        for i in (range(0, 6, 2) if B16 else range(12)):
            a(f"v_mov_b32 v{X4+i}, s76")
        if DA & 2: lzero(1)
        if B16: a.nops(9)
        if E("HALF", 0): a("s_mov_b64 exec, -1")
        zero(AQ, 24)
        if E("HALF", 0): a(f"s_mov_b64 exec, {hex((1 << E('HALF', 0)) - 1)}")
        if E("XW", 24): a("; poll back-off until the partners' stores can be visible"); a.nops(E("XW", 24))
        stamp(11)
        a(f"s_cmp_eq_u32 s{S_TAG}, 1\ns_cbranch_scc1 {name}_p4_1")
        def fin4():
            stamp(9)
            if B16:
                for p in range(3):
                    for i in range(4):
                        a(f"v_dot2_f32_bf16 v{RP+i}, v{X4+2*p+(i>>1)}, s{77+(i&1)}, v{RP+i}")
                a("s_nop 0")
            for i in (() if B16 else (0, 2)):
                a(f"v_pk_add_f32 v[{RP+i}:{RP+i+1}], v[{RP+i}:{RP+i+1}], v[{X4+i}:{X4+i+1}]")
                a(f"v_pk_add_f32 v[{RP+4+i}:{RP+4+i+1}], v[{X4+4+i}:{X4+4+i+1}], v[{X4+8+i}:{X4+8+i+1}]")
            for i in (() if B16 else (0, 2)):
                a(f"v_pk_add_f32 v[{RP+i}:{RP+i+1}], v[{RP+i}:{RP+i+1}], v[{RP+4+i}:{RP+4+i+1}]")
            a(f"""
            v_cvt_pk_bf16_f32 v{P}, v{RP}, v{RP+1}
            v_min_u32 v{P}, -2, v{P}
            v_cvt_pk_bf16_f32 v{P+1}, v{RP+2}, v{RP+3}
            buffer_store_dwordx2 v[{P}:{P+1}], v{V_OPUB}, {SRD}, s{S_SLO} offen {IS}
            """)
        R4 = E("R4", 1)
        for tg in range(2):
            if E("AL4", 6): a(f".p2align {E('AL4', 6)}")
            a.label(f"{name}_p4_{tg}")
            wdog()
            p4ld()
            a(f"s_waitcnt vmcnt({E('Q4', 12)})")
            a.nops(A4)
            bo = "0xfe" if tg == 0 else "0x80"
            if R4 > 1: a(f"s_mov_b32 s76, {R4}")
            a.label(f"{name}_p4c_{tg}")
            if R4 > 1: a(f"s_sub_u32 s76, s76, 1\ns_cbranch_scc1 {name}_p4_{tg}")
            if B16:
                a(f"v_bitop3_b32 v{V_T0}, v{X4}, v{X4+2}, v{X4+4} bitop3:{bo}")
                a(f"v_and_b32 v{V_T0}, 1, v{V_T0}")
            else:
                for t, b in ((V_T0, X4), (V_T1, X4 + 6)):
                    a(f"v_bitop3_b32 v{t}, v{b}, v{b+1}, v{b+2} bitop3:{bo}")
                for t, b in ((V_T0, X4), (V_T1, X4 + 6)):
                    a(f"v_bitop3_b32 v{t}, v{t}, v{b+3}, v{b+4} bitop3:{bo}")
                a(f"v_bitop3_b32 v{V_T0}, v{V_T0}, v{X4+5}, v{X4+11} bitop3:{bo}")
            if not B16: a(f"v_bitop3_b32 v{V_T0}, v{V_T0}, v{V_T1}, 1 bitop3:{'0xa8' if tg == 0 else '0x80'}")
            a(f"v_cmp_ne_u32 vcc, {tg}, v{V_T0}")
            a(f"s_cbranch_vccnz {name}_p4{'c' if R4 > 1 else ''}_{tg}")
            fin4()
            if tg == 0: a(f"s_branch {name}_p4d")
        a.label(f"{name}_p4d")
    if E("LT", 0):
        a(f"s_cmp_eq_u32 s{S_STEP}, 8\ns_cbranch_scc0 {name}_lt\ns_memtime s[50:51]\ns_memrealtime s[52:53]")
        a.label(f"{name}_lt")
    a.label(f"{name}_b5")
    a(f"""
    s_add_u32 s{S_STEP}, s{S_STEP}, 1
    s_add_u32 s{S_XBR}, s{S_XBR}, 4096
    s_cmp_eq_u32 s{S_XBR}, {L_XB + 3 * 4096}
    s_cselect_b32 s{S_XBR}, {L_XB}, s{S_XBR}
    s_mov_b32 s{S_T0}, s{S_SL}
    s_mov_b32 s{S_SL}, s{S_SLO}
    s_mov_b32 s{S_SLO}, s{S_T0}
    {f"s_xor_b32 s{S_XS}, s{S_XS}, {1 << 18}" if TAG else ""}
    {f"s_bfe_u32 s{S_TAG}, s{S_STEP}, 0x10001" if TAG else ""}
    {"" if NB5 else "s_barrier"}
    """)
    stamp(10)
    if E("W1", 16): a("; poll back-off: a too early first poll wastes a whole 16KB gather round"); a.nops(E("W1", 16))
    a(f"s_branch {name}_loop")
    a.label(f"{name}_x1")
    stamp(11)
    if not E("NOKVM", 0):
        a(f"s_cmp_eq_u32 s{S_WAVE}, 1\ns_cbranch_scc0 {name}_x2\ns_add_u32 s76, s{S_STEP}, 1")
        if E("FLM", 0):
            a(f"s_and_b32 s77, s76, {E('FLM', 0)}\ns_cmp_ge_u32 s76, {E('FLE', 54)}\ns_cselect_b32 s77, 0, s77\ns_cmp_eq_u32 s77, 0\ns_cbranch_scc0 {name}_x2")
        if E("FLD", 6): a(f"; helper wave only: keep this store behind wave 0's cross-XCD store in the CU's in-order memory queue\ns_sleep {E('FLD', 6)}")
        flag_store(76)
        a.label(f"{name}_x2")
    if E("T5", 0):
        a(f"s_cmp_eq_u32 s{S_WAVE}, 2\ns_cbranch_scc0 {name}_x2b\ns_sleep {E('T5', 0)}")
        a.label(f"{name}_x2b")
    a(f"""
    s_cmp_eq_u32 s{S_WAVE}, 3
    s_cbranch_scc0 {name}_x4
    s_cmp_eq_u32 s{S_LATE}, 1
    s_cbranch_scc0 {name}_x5
    s_add_u32 s76, s{S_STEP}, 1
    """)
    prefetch(76, 3)
    a(f"""
    s_waitcnt vmcnt(0)
{name}_x5:
    """)
    if E("VPD", 0): a(f"s_sleep {E('VPD', 0)}")
    if flags:
        a(f"""
        s_add_u32 s76, s{S_STEP}, 4
        s_min_u32 s76, s76, 63
        s_cmp_gt_i32 s{S_KVN}, s76
        s_cbranch_scc1 {name}_x6
        v_mov_b32 v249, 0
        s_mov_b64 exec, 3
        buffer_atomic_add v249, v{V_OFL}, {SRD}, 0 offen sc0 sc1
        s_mov_b64 exec, -1
{name}_x6:
        """)
    a(f"""
    """)
    if not E("PB1", 1): a(f"""
    buffer_store_dwordx2 v[{V_POI}:{V_POI+1}], v{V_OPUB}, {SRD}, s{S_SL} offen {IS}
    s_mul_i32 s{S_T0}, s{S_T}, {SCS}
    s_add_u32 s{S_T0}, s{S_T0}, s{S_SL}
    s_add_u32 s{S_T0}, s{S_T0}, {SCO}
    buffer_store_dwordx4 v[{V_POI}:{V_POI+3}], v{V_LL}, {SRD}, s{S_T0} offen {IS}
    buffer_store_dwordx4 v[{V_POI}:{V_POI+3}], v{V_OSCM}, {SRD}, s{S_T0} offen {IS}
    """)
    a(f"""
    s_add_u32 s76, s{S_STEP}, 2
    s_cmp_lt_u32 s76, {nsteps-1}
    s_cbranch_scc0 {name}_x4
    {f"s_cmp_gt_i32 s{S_KVN}, s76" if flags else ""}
    s_cbranch_scc0 {name}_x4
    """)
    if not E("NOPF", 0) and not E("VPOS", 0):
        prefetch(76, -1, False)
    a.label(f"{name}_x4")
    zero(AQ, 24)
    if NB5: a(f"s_sleep {NB5}")
    a(f"s_branch {name}_b5")
    a.label(f"{name}_p2r")
    if prof: a("s_add_u32 s65, s65, 1")
    wdog()
    p2ld()
    a(f"s_branch {name}_p2")
    stubs_a()
    stubs_c()
    a.label(f"{name}_w0last")
    if E("LT", 0):
        a(f"""
        s_memtime s[54:55]
        s_memrealtime s[56:57]
        s_waitcnt lgkmcnt(0)
        s_sub_u32 s54, s54, s50
        s_sub_u32 s56, s56, s52
        v_mov_b32 v250, s54
        v_mov_b32 v251, s56
        s_lshl_b32 s80, s{S_CU}, 3
        s_add_u32 s80, s80, {WS_PROF + 14 * MB}
        buffer_store_dwordx2 v[250:251], v{ZER}, {SRD}, s80 offen
        """)
    a.nops(8)
    vfin()
    a("s_waitcnt lgkmcnt(0)\ns_barrier")
    a(f"s_branch {name}_end")
    a.label(f"{name}_side")
    if E("SV", 0): vwork(VE, 8)
    a(f"""
    s_cmp_eq_u32 s{S_WAVE}, 3
    s_cbranch_scc1 {name}_sd3
    s_cmp_eq_u32 s{S_WAVE}, 2
    s_cbranch_scc0 {name}_sd4
    s_mov_b64 exec, s[{S_MN8}:{S_MN8+1}]
    buffer_store_dwordx4 v[{V_POI}:{V_POI+3}], v{V_OOP}, {SRD}, s{S_SLO} offen {IS}
    s_mov_b64 exec, -1
    """)
    if E("PB1", 1): a(f"""
    buffer_store_dwordx2 v[{V_POI}:{V_POI+1}], v{V_OPUB}, {SRD}, s{S_SLO} offen {IS}
    s_mul_i32 s{S_T0}, s{S_T}, {SCS}
    s_add_u32 s{S_T0}, s{S_T0}, s{S_SLO}
    s_add_u32 s{S_T0}, s{S_T0}, {SCO}
    buffer_store_dwordx4 v[{V_POI}:{V_POI+3}], v{V_LL}, {SRD}, s{S_T0} offen {IS}
    buffer_store_dwordx4 v[{V_POI}:{V_POI+3}], v{V_OSCM}, {SRD}, s{S_T0} offen {IS}
    """)
    a(f"""
    s_branch {name}_sd4
{name}_sd3:
    v_readlane_b32 s76, v249, 0
    v_readlane_b32 s77, v249, 1
    s_min_i32 s76, s76, s77
    s_max_i32 s{S_KVN}, s{S_KVN}, s76
    s_mov_b32 s{S_LATE}, 0
    s_add_u32 s76, s{S_STEP}, 1
    s_cmp_lt_u32 s76, {nsteps-1}
    s_cbranch_scc0 {name}_sd4
    s_cmp_ge_u32 s76, {NSELF}
    s_cbranch_scc0 {name}_sd4
    {(f"s_cmp_eq_u32 s{S_WARM}, s76" if E("WARM", 0) else f"s_cmp_gt_i32 s{S_KVN}, s76") if flags else ""}
    s_cselect_b32 s{S_LATE}, 0, 1
    s_cbranch_scc0 {name}_sd4
    """)
    if not E("NOPF", 0): prefetch(76, 3, False)
    a.label(f"{name}_sd4")
    if not E("SV", 0): vwork(VE, 8)
    a.nops(8)
    vfin()
    zero(AO, 8)
    if not E("K2", 0):
        a(f"""
        s_cmp_eq_u32 s{S_WAVE}, 1
        s_cbranch_scc0 {name}_s1
        s_waitcnt lgkmcnt(0)
        """)
        rread()
        rsum(KVH)
        a.label(f"{name}_s1")
    a(f"""
    v_add_u32 v{V_T1}, {L_VP}, v{V_LL}
    s_waitcnt lgkmcnt(0)
    s_barrier
    s_cmp_eq_u32 s{S_WAVE}, 2
    s_cbranch_scc1 {name}_s2
    """)
    if E("K2", 0):
        a(f"s_cmp_eq_u32 s{S_WAVE}, 1\ns_cbranch_scc0 {name}_s1")
        rread()
        rsum(KVH)
        a(f"s_branch {name}_s3")
        a.label(f"{name}_s1")
    if E("KPF", 1) and not E("NOPF", 0):
        a(f"""
        s_cmp_eq_u32 s{S_WAVE}, 3
        s_cbranch_scc0 {name}_s3
        s_add_u32 s76, s{S_STEP}, 2
        s_cmp_lt_u32 s76, {nsteps-1}
        s_cbranch_scc0 {name}_s3
        {f"s_cmp_gt_i32 s{S_KVN}, s76" if flags else ""}
        s_cbranch_scc0 {name}_s3
        """)
        prefetch(76, 0, False)
        a(f"s_mov_b32 s88, s76")
    a(f"s_branch {name}_s3")
    a.label(f"{name}_s2")
    for w in range(4):
        a(f"ds_read_b128 v[{RP+4*w}:{RP+4*w+3}], v{V_T1} offset:{1024*w}")
    a(f"v_lshrrev_b32 v{V_T1}, 1, v{V_LL}")
    a("s_waitcnt lgkmcnt(2)")
    for i in (0, 2):
        a(f"v_pk_add_f32 v[{RP+i}:{RP+i+1}], v[{RP+i}:{RP+i+1}], v[{RP+4+i}:{RP+4+i+1}]")
    a("s_waitcnt lgkmcnt(0)")
    for i in (0, 2):
        a(f"v_pk_add_f32 v[{RP+8+i}:{RP+8+i+1}], v[{RP+8+i}:{RP+8+i+1}], v[{RP+12+i}:{RP+12+i+1}]")
    for i in (0, 2):
        a(f"v_pk_add_f32 v[{RP+i}:{RP+i+1}], v[{RP+i}:{RP+i+1}], v[{RP+8+i}:{RP+8+i+1}]")
    a(f"v_cvt_pk_bf16_f32 v{KVH}, v{RP}, v{RP+1}")
    a(f"v_cvt_pk_bf16_f32 v{KVH+1}, v{RP+2}, v{RP+3}")
    a(f"ds_write_b64 v{V_T1}, v[{KVH}:{KVH+1}] offset:{L_VM}")
    a("s_waitcnt lgkmcnt(0) vmcnt(0)")
    a.label(f"{name}_s3")
    a(f"""
    s_cmp_eq_u32 s{S_STEP}, {nsteps-1}
    s_cbranch_scc1 {name}_slast
    s_add_u32 s{S_T1}, s{S_SL}, {OXO}
    s_barrier
    """)

    def kv_pub(tag):
        if tag == "b" and flags and E("LASTD", 0):
            klast(a, S_T0, S_H)
            a(f"s_lshl_b32 s77, s{S_J}, 10\ns_add_u32 s{S_T0}, s{S_T0}, s77\nv_min_u32 v{KVH}, -2, v{KVH}")
        else: a(f"""
        s_add_u32 s77, s{S_STEP}, s{S_CU}
        s_bfe_u32 s{S_T0}, s77, 0x30003
        s_lshl_b32 s{S_T0}, s{S_T0}, 14
        s_and_b32 s77, s77, 7
        s_lshl_b32 s77, s77, 10
        s_add_u32 s{S_T0}, s{S_T0}, s77
        s_add_u32 s{S_T0}, s{S_T0}, s{S_KVB}
        """)
        if tag == "a" and flags and E("LASTD", 0) == 2:
            a(f"s_cmp_eq_u32 s{S_STEP}, {nsteps-2}\ns_cselect_b32 s{S_T0}, s88, s{S_T0}\nv_min_u32 v{KVH}, -2, v{KVH}")
        a(f"""
        s_cmp_eq_u32 s{S_WAVE}, 2
        s_cbranch_scc1 {name}_kv2{tag}
        s_mov_b64 exec, s[{S_MKM}:{S_MKM+1}]
        buffer_store_dwordx4 v[{KVH}:{KVH+3}], v{V_OKV}, {SRD}, s{S_T0} offen sc1
        s_mov_b64 exec, -1
        s_branch {name}_kvd{tag}
{name}_kv2{tag}:
        v_lshlrev_b32 v{V_T0}, 3, v{V_L}
        buffer_store_dwordx2 v[{KVH}:{KVH+1}], v{V_T0}, {SRD}, s{S_T0} offen offset:512 sc1
{name}_kvd{tag}:
        """)
    a(f"s_cmp_eq_u32 s{S_WAVE}, 3\ns_cbranch_scc1 {name}_y3")
    if not E("NOKVM", 0):
        kv_pub("a")
    a(f"s_branch {name}_y4")
    a.label(f"{name}_y3")
    if not TAG:
        a(f"s_add_u32 s76, s{S_STEP}, 2\ns_and_b32 s76, s76, 63")
        xuoff(S_XS, 76)
        a(f"s_cmp_lt_u32 s76, 2\ns_cbranch_scc1 {name}_y4")
        a(f"buffer_store_dwordx4 v[{V_POI}:{V_POI+3}], v{V_OXW}, {SRD}, s{S_XS} offen sc1")
    a(f"""
    s_add_u32 s76, s{S_STEP}, 2
    s_cmp_lt_u32 s76, {nsteps-1}
    s_cbranch_scc0 {name}_y4
    """)
    if E("VPOS", 0):
        a(f"s_cmp_eq_u32 s88, s76\ns_cbranch_scc0 {name}_y4")
        prefetch(76, -1, False)
    if not E("NOPF", 0):
        if E("KPF", 1):
            if not E("RF4", 1):
                a(f"s_add_u32 s76, s{S_STEP}, 3")
                prefetch(76, None, skip=f"{name}_y4")
        else:
            prefetch(76, 0, skip=f"{name}_y4")
    a.label(f"{name}_y4")
    if NB3: a(f"s_sleep {NB3}")
    a(f"s_branch {name}_b3")
    a.label(f"{name}_first")
    xread()
    a(f"s_branch {name}_adone")
    a.label(f"{name}_slast")
    a(f"s_cmp_eq_u32 s{S_WAVE}, 3\ns_cbranch_scc1 {name}_end")
    kv_pub("b")
    if not (flags and E("LASTD", 0)):
        a(f"s_waitcnt vmcnt(0)\ns_barrier\ns_mov_b32 s76, {nsteps}\ns_cmp_eq_u32 s{S_WAVE}, 1\ns_cbranch_scc0 {name}_end")
        flag_store(76)
    if E("IW", 2):
        i0 = a.lines.index(f"{name}_loop:")
        import align8
        body = a.lines[i0:]
        sz = align8.sizes([l.split(";")[0].strip() for l in body])
        out, pos, lastl, links = [], 0, -1000, []
        for l in body:
            c = l.split(";")[0].strip()
            far = pos - lastl >= E("IWD", 48)
            if c.startswith("s_nop") and far and (E("IW", 2) == 1 or (E("IW", 2) == 3 and int(c.split()[1]) >= 9)):
                k = int(c.split()[1])
                links.append(len(out)); out.append("X"); lastl = pos
                if k: out.append(f"s_nop {k-1}"); pos += 4
                pos += 4
                continue
            out.append(l)
            if c.startswith(".p2align"):
                al = 1 << int(c.split()[1]); pos = (pos + al - 1) // al * al
            elif align8.is_inst(c):
                pos += sz[c]
                if c.startswith("s_branch") and far:
                    links.append(len(out)); out.append("X"); lastl = pos; pos += 4
        per = (len(links) + 3) // 4
        for n, i in enumerate(links):
            tgt = f"{name}_iwd" if (n + 1) % per == 0 or n + 1 == len(links) else f"{name}_il{n+1}"
            ent = f"{name}_iw{n // per}:\n" if n % per == 0 else ""
            out[i] = f"{ent}{name}_il{n}:\ns_cbranch_execz {tgt}"
        if os.environ.get("WV"): print("links", len(links), "bytes", pos)
        a.lines[i0:] = "\n".join(out).split("\n")
    a.label(f"{name}_end")
    if E("FIXT", 0):
        a(f"""
        s_memrealtime s[50:51]
        s_waitcnt lgkmcnt(0)
        s_sub_u32 s52, s50, s100
        s_mul_i32 s52, s52, {E("FIXM", 0)}
        s_add_u32 s52, s52, {E("FIXT", 0)}
{name}_fx:
        s_memrealtime s[50:51]
        s_waitcnt lgkmcnt(0)
        s_sub_u32 s50, s50, s100
        s_cmp_lt_u32 s50, s52
        s_cbranch_scc1 {name}_fx
        """)
    if ts: ts(4)
    if prof:
        a(f"""
        s_lshl_b32 s{S_T0}, s{S_X}, 5
        s_add_u32 s{S_T0}, s{S_T0}, s{S_T}
        s_lshl_b32 s{S_T0}, s{S_T0}, 2
        s_add_u32 s{S_T0}, s{S_T0}, s{S_WAVE}
        s_lshl_b32 s{S_T0}, s{S_T0}, 6
        s_add_u32 s{S_T0}, s{S_T0}, {WS_PROF}
        v_mov_b32 v{V_T1}, 0
        s_mov_b64 exec, 1
        """)
        for i in range(16):
            a(f"v_mov_b32 v{V_T0}, s{50+i}")
            a(f"buffer_store_dword v{V_T0}, v{V_T1}, {SRD}, s{S_T0} offen offset:{4*i}")
            a("s_nop 1")
    a("s_endpgm")


def gen_rec_standalone(a: Asm, name, prof=False, force_slow=False):
    a.kernel_begin(name)
    a(f"s_cmp_ge_u32 s2, 256\ns_cbranch_scc1 {name}_exit")
    start_code(a, name)
    a(f"""
    s_sub_u32 s40, s90, 6
    s_lshl_b32 s40, s40, 5
    s_add_u32 s40, s40, s96
    s_cmp_lt_u32 s90, 4
    s_cbranch_scc0 {name}_oth
    s_mov_b32 s{S_X}, s90
    s_mov_b32 s{S_T}, s96
    """)
    rec_body(a, name + "_f", "", lambda vt, pre=False: sync_code(a, name, "r", vt, pre=pre), prof=prof, flags=False)
    a.label(f"{name}_oth")
    a(f"s_cmp_lt_u32 s40, {NI}\ns_cbranch_scc0 {name}_exit")
    init_cd(a, name, 40)
    a.label(f"{name}_slowent")
    a.label(f"{name}_exit")
    a("s_endpgm")
    return kd(name, 512, sgpr=102, accum=256)


if __name__ == "__main__":
    import sys
    a = Asm()
    name = "rec_kernel"
    k = gen_rec_standalone(a, name, prof=("prof" in sys.argv), force_slow=("slow" in sys.argv))
    out = HEADER + f"; @launch kernel={name} grid=(256,1,1) block=(256,1,1) lds=163840\n"
    out += '.amdgcn_target "amdgcn-amd-amdhsa--gfx950"\n.text\n' + a.text() + '.section .rodata,"a"\n' + k
    open(os.environ.get("OUT", "rec.s"), "w").write(out)
```
